```python
import torch

def _softmax(x, axis=-1):
    return torch.softmax(x, dim=axis)
def _gelu(x):
    return torch.nn.functional.gelu(x, approximate="tanh")
def _silu(x):
    return torch.nn.functional.silu(x)
def _sigmoid(x):
    return torch.sigmoid(x)
def _layernorm(x, axis=-1, eps=1e-5):
    m = x.mean(dim=axis, keepdim=True)
    v = x.var(dim=axis, keepdim=True, unbiased=False)
    return (x - m) / torch.sqrt(v + eps)
def _scatter_add(tgt, idx, src, axis=0):
    return tgt.clone().index_add_(axis, idx, src)
def _segment_sum(src, seg, n):
    out = torch.zeros((n,) + src.shape[1:], dtype=src.dtype)
    return out.index_add_(0, seg, src)
def _pad(x, pw):
    flat = tuple(v for pair in reversed(pw) for v in pair)
    return torch.nn.functional.pad(x, flat)

kernel_name = 'parallel_sum__ssm_conv_s5__mixer_channel_mlp__prompt'

def setup_inputs():

    _w = (lambda a: (lambda t: t.to(torch.bfloat16) if t.is_floating_point() else t)(torch.as_tensor(a)))
    def _A_setup():
        B, S, D = 1, 2048, 640
        P = D
        Lambda_re = -0.5 * (lambda _x: torch.exp(torch.as_tensor(_x)))((lambda *s: torch.randn(*s, dtype=torch.bfloat16) * 0.2)(P))
        Lambda_im = (lambda *s: torch.randn(*s, dtype=torch.bfloat16) * 0.8)(P) * 1.0
        B_re = (lambda *s: torch.randn(*s, dtype=torch.bfloat16) * 0.2)(P, D) * (D ** -0.5)
        B_im = (lambda *s: torch.randn(*s, dtype=torch.bfloat16) * 0.2)(P, D) * (D ** -0.5)
        C_re = (lambda *s: torch.randn(*s, dtype=torch.bfloat16) * 0.2)(D, P) * (P ** -0.5)
        C_im = (lambda *s: torch.randn(*s, dtype=torch.bfloat16) * 0.2)(D, P) * (P ** -0.5)
        log_dt = (lambda *s: torch.randn(*s, dtype=torch.bfloat16) * 0.2)(P) * 0.3 - 2.0
        Dskip = (lambda *s: torch.randn(*s, dtype=torch.bfloat16) * 0.05)(D)
        return {
            "x": _w((lambda *s: torch.randn(*s, dtype=torch.bfloat16) * 0.05)(B, S, D)),
            "Lambda_re": _w(Lambda_re),
            "Lambda_im": _w(Lambda_im),
            "B_re": _w(B_re),
            "B_im": _w(B_im),
            "C_re": _w(C_re),
            "C_im": _w(C_im),
            "log_dt": _w(log_dt),
            "Dskip": _w(Dskip),
        }
    _A_in = _A_setup()

    def _B_setup():
        B, S, D, F = 1, 2048, 640, 1536
        return {
            "x": _w((lambda *s: torch.randn(*s, dtype=torch.bfloat16) * 0.05)(B, S, D)),
            "w1": _w((lambda *s: torch.randn(*s, dtype=torch.bfloat16) * 1.6)(D, F) * (D ** -0.5)),
            "b1": _w((lambda *s: torch.randn(*s, dtype=torch.bfloat16) * 0.8)(F)),
            "w2": _w((lambda *s: torch.randn(*s, dtype=torch.bfloat16) * 0.05)(F, D) * (F ** -0.5)),
            "b2": _w((lambda *s: torch.randn(*s, dtype=torch.bfloat16) * 0.05)(D)),
        }
    _B_in = _B_setup()

    return {
        "A_x": _A_in["x"],
        "A_Lambda_re": _A_in["Lambda_re"],
        "A_Lambda_im": _A_in["Lambda_im"],
        "A_B_re": _A_in["B_re"],
        "A_B_im": _A_in["B_im"],
        "A_C_re": _A_in["C_re"],
        "A_C_im": _A_in["C_im"],
        "A_log_dt": _A_in["log_dt"],
        "A_Dskip": _A_in["Dskip"],
        "B_x": _B_in["x"],
        "B_w1": _B_in["w1"],
        "B_b1": _B_in["b1"],
        "B_w2": _B_in["w2"],
        "B_b2": _B_in["b2"],
    }

def reference(A_x, A_Lambda_re, A_Lambda_im, A_B_re, A_B_im, A_C_re, A_C_im, A_log_dt, A_Dskip, B_x, B_w1, B_b1, B_w2, B_b2):
    def _A_ref(x, Lambda_re, Lambda_im, B_re, B_im, C_re, C_im, log_dt, Dskip):
        Bsz, L, H = x.shape
        Lam = Lambda_re + 1j * Lambda_im
        Bmat = B_re + 1j * B_im
        Cmat = C_re + 1j * C_im
        dt = torch.exp(log_dt)
        Lam_bar = torch.exp(dt * Lam)
        B_bar = ((Lam_bar - 1.0) / Lam)[:, None] * Bmat
        Bu = torch.einsum("bld,pd->blp", x + 0j, B_bar)
        h = torch.zeros_like(Bu[:, 0, :])
        hs = []
        for t in range(L):
            h = Lam_bar[None, :] * h + Bu[:, t, :]
            hs.append(h)
        hseq = torch.stack(hs, 1)
        y = 2.0 * torch.einsum("blp,dp->bld", hseq, Cmat).real + x * Dskip[None, None, :]
        return y

    def _B_ref(x, w1, b1, w2, b2):
        y = _layernorm(x, axis=-1)
        h = _gelu(torch.einsum("bsd,df->bsf", y, w1) + b1)
        return torch.einsum("bsf,fd->bsd", h, w2) + b2

    x = A_x
    xn = _layernorm(x, axis=-1)
    return x + _A_ref(xn, A_Lambda_re, A_Lambda_im, A_B_re, A_B_im, A_C_re, A_C_im, A_log_dt, A_Dskip) + _B_ref(xn, B_w1, B_b1, B_w2, B_b2)
```

```python
import re

class Asm:
    def __init__(self):
        self.lines = []
        self.vm = []
        self.lg = []
    def e(self, s):
        for l in s.split("\n"):
            l = l.strip()
            if l: self.lines.append("    " + l if not l.endswith(":") else l)
    def c(self, s): self.lines.append("    ; " + s)
    def label(self, s): self.lines.append(s + ":")
    def raw(self, s): self.lines.append(s)
    def vmem(self, s, tag=None):
        self.e(s); self.vm.append(tag)
    def ds(self, s, tag=None):
        self.e(s); self.lg.append(tag)
    def _n(self, q, tags):
        if not isinstance(tags, (list, tuple, set)): tags = [tags]
        last = -1
        for i, t in enumerate(q):
            if t in tags: last = i
        return len(q) - 1 - last, last
    def wait_vm(self, tags, extra=""):
        n, last = self._n(self.vm, tags)
        if last < 0:
            if extra: self.e(f"s_waitcnt {extra}")
            return
        n2 = min(n, 63)
        self.e(f"s_waitcnt vmcnt({n2}) {extra}".strip())
        self.vm = self.vm[len(self.vm) - n2:] if n2 else []
    def wait_lg(self, tags=None):
        if tags is None:
            self.e("s_waitcnt lgkmcnt(0)"); self.lg = []; return
        n, last = self._n(self.lg, tags)
        if last < 0: return
        n2 = min(n, 15)
        self.e(f"s_waitcnt lgkmcnt({n2})")
        self.lg = self.lg[len(self.lg) - n2:] if n2 else []
    def wait_all(self):
        self.e("s_waitcnt vmcnt(0) lgkmcnt(0)"); self.vm = []; self.lg = []
    def wait_vm0(self):
        self.e("s_waitcnt vmcnt(0)"); self.vm = []
    def text(self): return "\n".join(self.lines) + "\n"

def R(kind, base, n=1):
    return f"{kind}{base}" if n == 1 else f"{kind}[{base}:{base+n-1}]"
def V(b, n=1): return R("v", b, n)
def A(b, n=1): return R("a", b, n)
def S(b, n=1): return R("s", b, n)

class Alloc:
    def __init__(self, lo, hi): self.lo, self.hi, self.p = lo, hi, lo; self.names = {}
    def get(self, n=1, align=None, name=None):
        al = align or (1 if n == 1 else (2 if n < 4 else 4))
        p = (self.p + al - 1) // al * al
        assert p + n <= self.hi, f"out of regs ({name})"
        self.p = p + n
        return p

_reg = re.compile(r"(-|\|)?\b([vas])(\d+)\b|(-|\|)?\b([vas])\[(\d+):(\d+)\]")
def regs_of(op):
    out = []
    for m in re.finditer(r"\b([vas])\[(\d+):(\d+)\]|\b([vas])(\d+)\b", op):
        if m.group(1): out += [(m.group(1), i) for i in range(int(m.group(2)), int(m.group(3)) + 1)]
        else: out.append((m.group(4), int(m.group(5))))
    if re.search(r"\bvcc\b", op): out += [("s", 106), ("s", 107)]
    if re.search(r"\bm0\b", op): out.append(("s", 124))
    if re.search(r"\bexec\b", op): out += [("s", 126), ("s", 127)]
    return out
TRANS = ("v_exp_f32", "v_log_f32", "v_rcp_f32", "v_rsq_f32", "v_sqrt_f32", "v_sin_f32", "v_cos_f32")
def parse(line):
    l = line.split(";")[0].strip()
    if not l or l.endswith(":") or l.startswith("."): return None
    p = l.split(None, 1)
    mn = p[0]; rest = p[1] if len(p) > 1 else ""
    ops = [o.strip() for o in re.split(r",(?![^\[]*\])", rest)]
    d = dict(mn=mn, ops=ops, text=l)
    isv = mn.startswith("v_"); mf = mn.startswith("v_mfma")
    defs, uses = [], []
    if mn.startswith("v_cmp"):
        defs = regs_of(ops[0]); uses = sum((regs_of(o) for o in ops[1:]), [])
        if mn.startswith("v_cmpx"): defs += [("s", 126), ("s", 127)]
    elif isv:
        defs = regs_of(ops[0]); uses = sum((regs_of(o.split(" ")[0]) for o in ops[1:]), [])
        if mn.startswith(("v_fmac", "v_pk_fmac", "v_dot2c")) or "_dpp" in mn or "permlane" in mn or mn.startswith("v_writelane"): uses += defs
        if "permlane" in mn and "swap" in mn: defs += regs_of(ops[1])
        if "_co_" in mn: defs += regs_of(ops[1])
        if mn.startswith("v_cndmask") and len(ops) == 3: uses += [("s", 106), ("s", 107)]
    elif mn.startswith("ds_read") or mn.startswith("ds_bperm") or mn.startswith("ds_swz"):
        defs = regs_of(ops[0]); uses = sum((regs_of(o.split(" ")[0]) for o in ops[1:]), [])
    elif mn.startswith("ds_"):
        uses = sum((regs_of(o.split(" ")[0]) for o in ops), [])
    elif mn.startswith(("buffer_load", "global_load")):
        if " lds" in l:
            uses = sum((regs_of(o.split(" ")[0]) for o in ops), []) + [("s", 124)]
        else:
            defs = regs_of(ops[0]); uses = sum((regs_of(o.split(" ")[0]) for o in ops[1:]), [])
    elif mn.startswith(("buffer_", "global_")):
        uses = sum((regs_of(o.split(" ")[0]) for o in ops), [])
    elif mn.startswith("s_"):
        if mn.startswith(("s_cmp", "s_cbranch", "s_branch", "s_waitcnt", "s_barrier", "s_nop", "s_sleep", "s_endpgm", "s_setprio")):
            uses = sum((regs_of(o) for o in ops), [])
        else:
            defs = regs_of(ops[0]); uses = sum((regs_of(o) for o in ops[1:]), [])
            if "saveexec" in mn: defs += [("s", 126), ("s", 127)]
    d.update(defs=set(defs), uses=set(uses), isv=isv, mf=mf, valu=isv and not mf,
             trans=mn.split("_e")[0] in TRANS or mn in TRANS, dpp="_dpp" in mn or "row_" in l or "quad_perm" in l,
             vmem=mn.startswith(("buffer_", "global_")), ds=mn.startswith("ds_"))
    if mf:
        d["A"] = set(regs_of(ops[1])); d["B"] = set(regs_of(ops[2])); d["C"] = set(regs_of(ops[3].split(" ")[0]))
        d["passes"] = 4 if "16x16x32" in mn else 8
    return d
def check_hazards(text):
    ins = [(i, parse(l)) for i, l in enumerate(text.split("\n"))]
    ins = [(i, d) for i, d in ins if d]
    errs = []
    for k, (ln, c) in enumerate(ins):
        dist = 0
        for b in range(k - 1, max(k - 24, -1), -1):
            pl, p = ins[b]
            need = 0
            pv = {r for r in p["defs"] if r[0] in "va"}; ps = {r for r in p["defs"] if r[0] == "s"}
            if p["valu"]:
                if c["mf"] and pv & (c["A"] | c["B"] | c["C"]): need = max(need, 2)
                if c["valu"] and c["dpp"] and pv & c["uses"]: need = max(need, 2)
                if "permlane" in c["mn"] and pv & c["uses"]: need = max(need, 2)
                if c["mn"].startswith(("v_readfirstlane", "v_readlane")) and pv & c["uses"]: need = max(need, 1)
                if p["trans"] and c["valu"] and not c["trans"] and pv & c["uses"]: need = max(need, 1)
                if p["trans"] and c["valu"] and c["trans"] and pv & c["uses"]: need = max(need, 1)
                if ps and c["vmem"] and ps & c["uses"]: need = max(need, 5)
                if ps and c["valu"] and ps & c["uses"]: need = max(need, 2)
                if ps and c["mn"].startswith(("v_readlane", "v_writelane")) and ps & c["uses"]: need = max(need, 4)
                if (("s", 126) in ps) and c["mf"]: need = max(need, 4)
                if (("s", 126) in ps) and c["dpp"]: need = max(need, 5)
            if p["mf"]:
                P = p["passes"]; full = {4: 8, 8: 12}[P]; ovl = {4: 6, 8: 10}[P]; war = {4: 3, 8: 7}[P]
                if c["mf"]:
                    if pv & (c["A"] | c["B"]): need = max(need, full)
                    if pv & c["C"] and pv != c["C"]: need = max(need, ovl)
                    if pv & c["defs"] and not (pv & c["C"]): need = max(need, ovl)
                else:
                    if pv & (c["uses"] | c["defs"]): need = max(need, full)
                    if c["valu"] and p["C"] & c["defs"]: need = max(need, war)
            if p["mn"].startswith("s_") and ("s", 124) in p["defs"] and c["vmem"] and " lds" in c["text"]: need = max(need, 1)
            if p["vmem"] and "store" in p["mn"] and ("x4" in p["mn"] or "x3" in p["mn"]):
                data = set(regs_of(p["ops"][0] if p["mn"].startswith("buffer") else p["ops"][1]))
                if data & c["defs"]: need = max(need, 2 if c["valu"] else 1)
            if need > dist:
                errs.append(f"line {ln+1}: '{c['text']}' needs {need} states after line {pl+1} '{p['text']}' (has {dist})")
            if p["mn"] == "s_nop": dist += int(p["ops"][0], 0) + 1
            else: dist += 1
    return errs
```

```python
import sys, struct
sys.path.insert(0, "dev")
from asmlib import *

NAME = "parallel_sum__ssm_conv_s5__mixer_channel_mlp__prompt"
OPT = dict(stamps=False, stop=None)
for a_ in sys.argv[2:]:
    k_, v_ = a_.split("="); OPT[k_] = eval(v_)

def f2u(x): return struct.unpack("<I", struct.pack("<f", x))[0]
def hx(x): return "0x%08x" % f2u(x)

WS_H = 0
WS_WP = 12 << 20
WS_E = 16 << 20
WS_RF = 17 << 20
WS_HF = (17 << 20) + 65536
WS_ST = 20 << 20
WS_DUMMY = 21 << 20
WS_SIZE = 24 << 20
L_TOK = 0; L_CH = 2048; L_PW = 7168; L_EX = 17408; L_EX2 = L_EX + 1280
L_STG = 20480; L_X = 40960; L_W = 90112; L_END = 163840
XS = 16384; WSL = 24576
L_SC = L_W + WSL; SCW = 11264
L_RED = L_STG
NST = 10
pX, pLre, pLim, pBre, pBim, pCre, pCim, pLdt = 16, 18, 20, 22, 24, 26, 28, 30
pDsk, pBx, pW1, pB1, pW2, pB2, pOut, pDbg, pWs = 32, 34, 36, 38, 40, 42, 44, 46, 48
sW, sWR, sWC, sMT, sNT, sTYP, sHALF, sDT = 3, 4, 5, 6, 7, 8, 9, 10
sNonce = 11; sT0, sT1, sT2, sT3 = 12, 13, 14, 15
rX, rW, rWS, rT, rT2 = 52, 56, 60, 64, 68
sX, sLX, sLW, sB0, sB2, sWsrc, sUnit, sRpSrc, sRpDst, sSpin = 72, 73, 74, 75, 76, 77, 78, 79, 80, 81
sK = 82
sEx = 84
sH, sHw, sWp = 86, 87, 88
sST = 90
sDis = 92
OOB = 0x4000000
vL, vN, vQ = 1, 2, 3
vDX0, vDX1, vXa, vXb = 4, 5, 6, 7
vDW = 8
vWA = 14
vL16 = 26
vNc = 27
vB1 = 28
vT = 40
ACC = 160
def acc(i, j): return ACC + (i * 4 + j) * 4
aF = [0, 40]
aONE = 80; aSUM = 84; aSQ = 100; aCS = 116

k = Asm()
stamp_n = [0]
vST = 99
def stamp(i=None):
    if not OPT["stamps"]: return
    if i is None:
        i = stamp_n[0]; stamp_n[0] += 1
    k.e(f"s_memrealtime s[{sST}:{sST+1}]"); k.e("s_waitcnt lgkmcnt(0)"); k.lg = []
    k.e(f"v_writelane_b32 v{vST}, s{sST}, {i}")
def srd(r, ptr, size):
    k.e(f"s_mov_b32 s{r}, s{ptr}\ns_mov_b32 s{r+1}, s{ptr+1}\ns_mov_b32 s{r+2}, {size}\ns_mov_b32 s{r+3}, 0x20000")

def interleave(main, fill, start=0, every=1):
    fi = 0
    for n_, m in enumerate(main):
        k.e(m)
        if n_ >= start and (n_ - start) % every == 0 and fi < len(fill):
            fill[fi](); fi += 1
    while fi < len(fill): fill[fi](); fi += 1

def merge(a, b):
    out = []; ia = ib = 0
    while ia < len(a) or ib < len(b):
        if ib >= len(b) or (ia < len(a) and ia * len(b) <= ib * len(a)): out.append(a[ia]); ia += 1
        else: out.append(b[ib]); ib += 1
    return out

def prologue():
    k.e(f"""
    s_cmp_ge_u32 s2, 256
    s_cbranch_scc1 L_end
    s_load_dwordx16 s[16:31], s[0:1], 0
    s_load_dwordx16 s[32:47], s[0:1], 64
    s_load_dwordx2 s[48:49], s[0:1], 128
    v_lshrrev_b32 v{vT}, 6, v0
    v_and_b32 v{vL}, 63, v0
    v_readfirstlane_b32 s{sW}, v{vT}
    v_and_b32 v{vN}, 15, v{vL}
    v_lshrrev_b32 v{vQ}, 4, v{vL}
    v_lshlrev_b32 v{vL16}, 4, v{vL}
    s_and_b32 s{sT0}, s2, 7
    s_lshr_b32 s{sT1}, s2, 3
    s_lshr_b32 s{sMT}, s{sT0}, 1
    s_lshl_b32 s{sMT}, s{sMT}, 2
    s_lshr_b32 s{sT2}, s{sT1}, 3
    s_add_u32 s{sMT}, s{sMT}, s{sT2}
    s_bfe_u32 s{sTYP}, s{sT1}, 0x10002
    s_and_b32 s{sNT}, s{sT0}, 1
    s_lshl_b32 s{sNT}, s{sNT}, 2
    s_and_b32 s{sT2}, s{sT1}, 3
    s_add_u32 s{sNT}, s{sNT}, s{sT2}
    s_mov_b32 s{sHALF}, s{sTYP}
    s_mov_b32 s{sDT}, s{sNT}
    s_lshr_b32 s{sWR}, s{sW}, 1
    s_and_b32 s{sWC}, s{sW}, 1
    s_mov_b32 s{sSpin}, 0x40000
    s_sub_u32 s{sT2}, s2, 80
    s_cmp_lt_u32 s2, 176
    s_cselect_b32 s{sUnit}, s2, s{sT2}
    s_cselect_b32 s{sDis}, 0, {OOB}
    """)
    if OPT["stamps"]:
        k.e(f"v_mov_b32 v{vST}, 0"); stamp()
        k.e(f"s_memtime s[94:95]")
    k.e(f"""
    v_lshrrev_b32 v{vT}, 3, v{vL}
    v_and_b32 v{vT+1}, 7, v{vL}
    v_lshrrev_b32 v{vT+2}, 1, v{vT}
    v_xor_b32 v{vT+2}, v{vT+1}, v{vT+2}
    v_mul_u32_u24 v{vT+3}, 5120, v{vT}
    v_lshl_add_u32 v{vDX0}, v{vT+2}, 4, v{vT+3}
    v_xor_b32 v{vDX1}, 64, v{vDX0}
    v_add_u32 v{vDX1}, 40960, v{vDX1}
    s_lshl_b32 s{sT0}, s{sMT}, 7
    s_lshl_b32 s{sT1}, s{sWR}, 6
    s_add_u32 s{sT0}, s{sT0}, s{sT1}
    s_lshl_b32 s{sT1}, s{sWC}, 1
    s_add_u32 s{sT0}, s{sT0}, s{sT1}
    s_mul_i32 s{sX}, s{sT0}, 1280
    s_lshl_b32 s{sLX}, s{sW}, 12
    s_xor_b32 s{sT2}, s{sWR}, s{sWC}
    s_lshl_b32 s{sT2}, s{sT2}, 2
    """)
    k.e(f"""
    v_add_u32 v{vT+4}, s{sT2}, v{vQ}
    v_lshrrev_b32 v{vT+5}, 1, v{vN}
    v_xor_b32 v{vT+4}, v{vT+4}, v{vT+5}
    v_lshlrev_b32 v{vT+4}, 4, v{vT+4}
    v_lshl_add_u32 v{vT+4}, v{vN}, 7, v{vT+4}
    s_lshl_b32 s{sT1}, s{sWC}, 13
    s_add_u32 s{sT1}, s{sT1}, {L_X}
    v_add_u32 v{vXa}, s{sT1}, v{vT+4}
    v_xor_b32 v{vXb}, 64, v{vXa}
    v_mov_b32 v{vT+6}, 0x3f803f80
    s_waitcnt lgkmcnt(0)
    """)
    for i in range(4): k.e(f"v_accvgpr_write_b32 a{aONE+i}, v{vT+6}")
    srd(rX, pX, 2048 * 1280)
    srd(rWS, pWs, WS_SIZE)
    k.e(f"""
    s_or_b32 s{sT0}, s2, s{sW}
    s_cmp_lg_u32 s{sT0}, 0
    s_cbranch_scc1 L_nononce
    s_memrealtime s[{sT0}:{sT1}]
    s_waitcnt lgkmcnt(0)
    s_or_b32 s{sT0}, s{sT0}, 1
    v_mov_b32 v{vT}, s{sT0}
    v_mov_b32 v{vT+1}, 0
    global_store_dword v{vT+1}, v{vT}, s[{pDbg}:{pDbg+1}] sc1
    L_nononce:
    """)
    k.e(f"s_cmp_eq_u32 s{sTYP}, 1\ns_cbranch_scc1 L_mlp")

def dma_x(stage, g):
    slot = stage % 3
    imm = (g >> 1) * 1280 + stage * 128
    tgt = L_X + slot * XS + g * 1024
    def f():
        k.e(f"s_add_u32 m0, s{sLX}, {tgt - imm}")
        k.e("s_nop 0")
        k.vmem(f"buffer_load_dwordx4 v{vDX0 + (g & 1)}, s[{rX}:{rX+3}], s{sX} offen offset:{imm} lds", ("st", stage))
    return f
def dma_w(typ, stage, g):
    slot = stage % 3
    if typ == "mlp":
        tgt = L_W + slot * WSL + g * 1024
        def f():
            k.e(f"s_add_u32 m0, s{sLW}, {tgt}")
            if g == 0 and stage > 0: k.e(f"s_add_u32 s{sWsrc}, s{sWsrc}, {64 * 3072}")
            else: k.e("s_nop 0")
            k.vmem(f"buffer_load_dwordx4 v{vDW + g}, s[{rW}:{rW+3}], s{sWsrc} offen lds", ("st", stage))
    else:
        imm = stage * 128 + (2560 if (g < 4 and g & 1) else 0)
        so = sB2 if g in (2, 3) else sB0
        tgt = L_W + slot * WSL + g * 2048
        def f():
            k.e(f"s_add_u32 m0, s{sLW}, {tgt - imm}")
            k.e("s_nop 0")
            k.vmem(f"buffer_load_dwordx4 v{vDW + (1 if g == 4 else 0)}, s[{rW}:{rW+3}], s{so} offen offset:{imm} lds", ("st", stage))
    return f
def dma_stage(typ, stage):
    nw = 6 if typ == "mlp" else 5
    return merge([dma_x(stage, g) for g in range(4)], [dma_w(typ, stage, g) for g in range(nw)])

def frag_reads(typ, stage, blk, fs):
    slot = stage % 3; out = []
    nr = 6 if typ == "mlp" else 5
    vx = vXa if blk == 0 else vXb
    xr = [(lambda j=j: k.ds(f"ds_read_b128 {A(aF[fs] + 24 + 4*j, 4)}, v{vx} offset:{slot*XS + j*2048}")) for j in range(4)]
    wr_ = []
    for i in range(nr):
        if typ == "mlp":
            for h in range(2):
                wr_.append(lambda i=i, h=h: k.ds(f"ds_read_b64_tr_b16 {A(aF[fs] + 4*i + 2*h, 2)}, v{vWA + blk*6 + i} offset:{slot*WSL + h*1536}"))
        else:
            wr_.append(lambda i=i: k.ds(f"ds_read_b128 {A(aF[fs] + 4*i, 4)}, v{vWA + blk} offset:{slot*WSL + i*2048}"))
    return merge(xr, wr_)

def mfmas(typ, stage, blk, fs):
    nr = 6 if typ == "mlp" else 5
    first = stage == 0
    out = []
    Af = lambda i: A(aF[fs] + 4*i, 4)
    Bf = lambda j: A(aF[fs] + 24 + 4*j, 4)
    extra = []
    if blk == 0:
        for j in range(4):
            extra.append(f"v_mfma_f32_16x16x32_bf16 {A(aSUM+4*j,4)}, {A(aONE,4)}, {Bf(j)}, {'0' if first else A(aSUM+4*j,4)}")
            extra.append(f"v_mfma_f32_16x16x32_bf16 {A(aSQ+4*j,4)}, {Bf(j)}, {Bf(j)}, {'0' if first else A(aSQ+4*j,4)}")
    else:
        for i in range(nr):
            extra.append(f"v_mfma_f32_16x16x32_bf16 {A(aCS+4*i,4)}, {Af(i)}, {A(aONE,4)}, {'0' if first else A(aCS+4*i,4)}")
    for i in range(nr):
        for j in range(4):
            c = "0" if (first and blk == 0) else V(acc(i, j), 4)
            out.append(f"v_mfma_f32_16x16x32_bf16 {V(acc(i,j),4)}, {Af(i)}, {Bf(j)}, {c}")
    return out + extra

def repack_issue():
    k.e(f"""
    s_and_b32 s{sT0}, s{sUnit}, 1
    s_mul_i32 s{sT0}, s{sT0}, 640
    s_lshr_b32 s{sT1}, s{sUnit}, 1
    s_cmp_lt_u32 s{sUnit}, 96
    s_cbranch_scc0 L_rpC_{repack_issue.n}
    s_mul_i32 s{sRpSrc}, s{sT1}, {32*1280}
    s_add_u32 s{sRpSrc}, s{sRpSrc}, s{sT0}
    s_mov_b32 s{rT}, s{pW2}
    s_mov_b32 s{rT+1}, s{pW2+1}
    s_mov_b32 s{rT+2}, {1536*1280}
    s_mov_b32 s{sT3}, 31
    s_branch L_rpJ_{repack_issue.n}
    L_rpC_{repack_issue.n}:
    s_sub_u32 s{sT1}, s{sT1}, 48
    s_mul_i32 s{sRpSrc}, s{sT1}, {16*1280}
    s_add_u32 s{sRpSrc}, s{sRpSrc}, s{sT0}
    s_cmp_eq_u32 s{sWR}, 0
    s_cselect_b32 s{rT}, s{pCre}, s{pCim}
    s_cselect_b32 s{rT+1}, s{pCre+1}, s{pCim+1}
    s_mov_b32 s{rT+2}, {640*1280}
    s_mov_b32 s{sT3}, 15
    L_rpJ_{repack_issue.n}:
    s_mov_b32 s{rT+3}, 0x20000
    s_mul_i32 s{sT0}, s{sW}, 320
    s_mul_i32 s{sT1}, s{sW}, 5120
    """)
    repack_issue.n += 1
    for g in range(5):
        k.e(f"""
        v_add_u32 v{vT}, s{sT0}, v{vL}
        v_add_u32 v{vT}, {64*g}, v{vT}
        v_mul_u32_u24 v{vT+1}, 1639, v{vT}
        v_lshrrev_b32 v{vT+1}, 16, v{vT+1}
        v_mul_u32_u24 v{vT+2}, 40, v{vT+1}
        v_sub_u32 v{vT+2}, v{vT}, v{vT+2}
        v_and_b32 v{vT+1}, s{sT3}, v{vT+1}
        v_mul_u32_u24 v{vT+1}, 1280, v{vT+1}
        v_lshl_add_u32 v{vT+1}, v{vT+2}, 4, v{vT+1}
        s_add_u32 m0, s{sT1}, {L_STG + g*1024}
        v_or_b32 v{vT+1}, s{sDis}, v{vT+1}
        """)
        k.vmem(f"buffer_load_dwordx4 v{vT+1}, s[{rT}:{rT+3}], s{sRpSrc} offen lds", "rp")
repack_issue.n = 0

def repack_process(tag):
    t = vT
    k.e(f"""
    s_cmp_lt_u32 s{sUnit}, 96
    s_cbranch_scc0 L_rqC_{tag}
    """)
    k.e(f"""
    v_lshrrev_b32 v{t}, 2, v{vN}
    v_lshl_add_u32 v{t}, v{vQ}, 2, v{t}
    v_mul_u32_u24 v{t}, 640, v{t}
    v_and_b32 v{t+1}, 3, v{vN}
    v_lshl_add_u32 v{t}, v{t+1}, 3, v{t}
    s_mul_i32 s{sT0}, s{sW}, 160
    s_add_u32 s{sT0}, s{sT0}, {L_STG}
    v_add_u32 v{t}, s{sT0}, v{t}
    """)
    for i in range(5):
        for h in range(2):
            k.e(f"ds_read_b64_tr_b16 {V(t+4+4*i+2*h,2)}, v{t} offset:{h*16*640 + i*32}")
    k.e(f"""
    s_lshr_b32 s{sT0}, s{sUnit}, 1
    s_mul_i32 s{sT1}, s{sT0}, 5462
    s_lshr_b32 s{sT1}, s{sT1}, 16
    s_mul_i32 s{sT1}, s{sT1}, 10
    s_add_u32 s{sT0}, s{sT0}, s{sT1}
    s_and_b32 s{sT1}, s{sUnit}, 1
    s_lshl_b32 s{sT1}, s{sT1}, 2
    s_add_u32 s{sT1}, s{sT1}, s{sW}
    s_mul_i32 s{sT1}, s{sT1}, 88
    s_add_u32 s{sT0}, s{sT0}, s{sT1}
    s_mul_i32 s{sRpDst}, s{sT0}, 5120
    s_add_u32 s{sRpDst}, s{sRpDst}, {WS_WP}
    s_mov_b32 s{sT3}, 1024
    s_branch L_rqJ_{tag}
    L_rqC_{tag}:
    """)
    k.e(f"""
    v_mul_u32_u24 v{t}, 640, v{vN}
    s_mul_i32 s{sT0}, s{sW}, 160
    s_add_u32 s{sT0}, s{sT0}, {L_STG}
    v_add_u32 v{t}, s{sT0}, v{t}
    v_lshl_add_u32 v{t+1}, v{vQ}, 2, v{t}
    v_lshl_add_u32 v{t}, v{vQ}, 4, v{t}
    ds_read_b128 {V(t+4,4)}, v{t}
    ds_read_b128 {V(t+8,4)}, v{t} offset:10240
    ds_read_b128 {V(t+12,4)}, v{t} offset:80
    ds_read_b128 {V(t+16,4)}, v{t} offset:{10240+80}
    ds_read_b32 v{t+20}, v{t+1} offset:64
    ds_read_b32 v{t+21}, v{t+1} offset:{10240+64}
    ds_read_b32 v{t+22}, v{t+1} offset:{80+64}
    ds_read_b32 v{t+23}, v{t+1} offset:{10240+80+64}
    """)
    k.e(f"""
    s_sub_u32 s{sT0}, s{sUnit}, 96
    s_lshr_b32 s{sT0}, s{sT0}, 1
    s_mul_i32 s{sT1}, s{sT0}, 13108
    s_lshr_b32 s{sT1}, s{sT1}, 16
    s_mul_i32 s{sT2}, s{sT1}, 5
    s_sub_u32 s{sT0}, s{sT0}, s{sT2}
    s_mul_i32 s{sT1}, s{sT1}, 88
    s_and_b32 s{sT2}, s{sUnit}, 1
    s_lshl_b32 s{sT2}, s{sT2}, 1
    s_add_u32 s{sT2}, s{sT2}, s{sWR}
    s_mul_i32 s{sT2}, s{sT2}, 22
    s_add_u32 s{sT1}, s{sT1}, s{sT2}
    s_mul_i32 s{sT2}, s{sWC}, 5
    s_add_u32 s{sT1}, s{sT1}, s{sT2}
    s_add_u32 s{sT1}, s{sT1}, 12
    s_mul_i32 s{sT1}, s{sT1}, 5
    s_add_u32 s{sT1}, s{sT1}, s{sT0}
    s_lshl_b32 s{sRpDst}, s{sT1}, 10
    s_add_u32 s{sRpDst}, s{sRpDst}, {WS_WP}
    s_mov_b32 s{sT3}, 5120
    L_rqJ_{tag}:
    v_or_b32 v{t+1}, s{sDis}, v{vL16}
    s_waitcnt lgkmcnt(0)
    """)
    k.lg = []
    for i in range(5):
        k.vmem(f"buffer_store_dwordx4 {V(t+4+4*i,4)}, v{t+1}, s[{rWS}:{rWS+3}], s{sRpDst} offen sc1", "rps")
        if i < 4: k.e(f"s_add_u32 s{sRpDst}, s{sRpDst}, s{sT3}")
    k.e(f"v_mov_b32 v{t}, 0")
    k.vmem(f"global_load_dword v{vNc}, v{t}, s[{pDbg}:{pDbg+1}] sc1", "nc")

def nonce_and_rflag(tag):
    t = vT
    k.e(f"""
    v_readfirstlane_b32 s{sNonce}, v{vNc}
    s_cmp_lg_u32 s{sNonce}, 0
    s_cbranch_scc1 L_ncok_{tag}
    v_mov_b32 v{t}, 0
    L_ncl_{tag}:
    s_sleep 2
    global_load_dword v{vNc}, v{t}, s[{pDbg}:{pDbg+1}] sc1
    s_sub_u32 s{sSpin}, s{sSpin}, 1
    s_cbranch_scc1 L_end
    s_waitcnt vmcnt(0)
    v_readfirstlane_b32 s{sNonce}, v{vNc}
    s_cmp_eq_u32 s{sNonce}, 0
    s_cbranch_scc1 L_ncl_{tag}
    L_ncok_{tag}:
    v_mov_b32 v{t}, s{sNonce}
    v_mov_b32 v{t+1}, s{sNonce}
    s_lshl_b32 s{sT0}, s2, 7
    s_add_u32 s{sT0}, s{sT0}, {WS_RF}
    s_cmp_eq_u32 s{sW}, 0
    s_cselect_b32 s{sT1}, s{sDis}, {OOB}
    v_lshlrev_b32 v{t+2}, 26, v{vL}
    v_or_b32 v{t+2}, s{sT1}, v{t+2}
    """)
    k.vmem(f"buffer_store_dwordx2 {V(t,2)}, v{t+2}, s[{rWS}:{rWS+3}], s{sT0} offen sc1", "rf")

def main_loop(typ):
    k.wait_vm(("st", 0)); k.e("s_barrier")
    stamp()
    for f in frag_reads(typ, 0, 0, 0): f()
    for s in range(NST):
        k.wait_lg()
        fill = frag_reads(typ, s, 1, 1)
        d2 = []
        if 1 <= s and s + 2 < NST: d2 = dma_stage(typ, s + 2)[5:]
        interleave(mfmas(typ, s, 0, 0), merge(fill, d2))
        k.wait_lg()
        m = mfmas(typ, s, 1, 1)
        k.e(m[0]); k.e(m[1])
        if s + 1 < NST:
            tags = [("st", s + 1)]
            if s == 1: tags.append("rp")
            if s == 2: tags += ["rps", "nc"]
            if OPT.get("fine"): stamp(16 + 3*s)
            k.wait_vm(tags)
            if OPT.get("fine"): stamp(17 + 3*s)
            k.e("s_barrier")
            if OPT.get("fine"): stamp(18 + 3*s)
            if s == 1: repack_process(typ)
            if s == 2: nonce_and_rflag(typ)
            fill = frag_reads(typ, s + 1, 0, 0)
            d1 = dma_stage(typ, s + 3)[:5] if s + 3 < NST else []
            interleave(m[2:], merge(fill, d1))
        else:
            for x in m[2:]: k.e(x)
    stamp()

def stats(typ):
    nr = 6 if typ == "mlp" else 5
    t = vT
    CS = t + 24
    k.e(f"""
    s_mul_i32 s{sT0}, s{sW}, {SCW}
    s_add_u32 s{sT0}, s{sT0}, {L_SC}
    v_add_u32 v{t}, s{sT0}, v{vL16}
    v_lshlrev_b32 v{t+1}, 2, v{vL}
    v_add_u32 v{t+1}, s{sT0}, v{t+1}
    s_nop 4
    """)
    for j in range(4): k.ds(f"ds_write_b128 v{t}, {A(aSQ+4*j,4)} offset:{j*1024}")
    for j in range(4): k.ds(f"ds_write_b32 v{t+1}, a{aSUM+4*j} offset:{10240+j*256}")
    for i in range(nr): k.ds(f"ds_write_b128 v{t}, {A(aCS+4*i,4)} offset:{4096+i*1024}")
    k.e(f"""
    s_mul_i32 s{sT0}, s{sWC}, {SCW}
    s_add_u32 s{sT0}, s{sT0}, {L_SC}
    v_lshrrev_b32 v{t+2}, 2, v{vN}
    v_lshl_add_u32 v{t+2}, v{t+2}, 4, v{vN}
    v_lshlrev_b32 v{t+2}, 4, v{t+2}
    v_and_b32 v{t+3}, 3, v{vN}
    v_lshl_add_u32 v{t+2}, v{t+3}, 2, v{t+2}
    v_lshl_add_u32 v{t+2}, v{vQ}, 10, v{t+2}
    v_add_u32 v{t+2}, s{sT0}, v{t+2}
    v_lshlrev_b32 v{t+3}, 2, v{vN}
    v_lshl_add_u32 v{t+3}, v{vQ}, 8, v{t+3}
    v_add_u32 v{t+3}, s{sT0}, v{t+3}
    s_mul_i32 s{sT0}, s{sWR}, {2*SCW}
    s_add_u32 s{sT0}, s{sT0}, {L_SC}
    v_lshlrev_b32 v{t+4}, 8, v{vQ}
    v_add_u32 v{t+4}, s{sT0}, v{t+4}
    """)
    k.wait_lg(); k.e("s_barrier")
    k.ds(f"ds_read_b32 v{t+6}, v{t+2}", "a")
    k.ds(f"ds_read_b32 v{t+7}, v{t+2} offset:{2*SCW}", "a")
    k.ds(f"ds_read_b32 v{t+8}, v{t+3} offset:10240", "a")
    k.ds(f"ds_read_b32 v{t+9}, v{t+3} offset:{2*SCW+10240}", "a")
    P2 = 100
    for i in range(nr):
        k.ds(f"ds_read_b128 {V(CS+4*i,4)}, v{t+4} offset:{4096+i*1024}", "cs")
        k.ds(f"ds_read_b128 {V(P2+4*i,4)}, v{t+4} offset:{SCW+4096+i*1024}", "cs")
    k.wait_lg("a")
    Q, S_, MEAN, VAR, M1, S1, A1, X, Y = t+6, t+8, t+10, t+11, t+12, t+16, t+13, t+17, t+18
    A2, AM = t+14, t+15
    def bfr(d, s):
        k.e(f"v_cvt_pk_bf16_f32 v{d}, v{s}, v{s}\nv_and_b32 v{d}, 0xffff0000, v{d}")
    k.e(f"""
    v_add_f32 v{Q}, v{t+6}, v{t+7}
    v_add_f32 v{S_}, v{t+8}, v{t+9}
    v_mul_f32 v{MEAN}, {hx(1/640)}, v{S_}
    v_mul_f32 v{VAR}, {hx(1/640)}, v{Q}
    v_fma_f32 v{VAR}, -v{MEAN}, v{MEAN}, v{VAR}
    v_max_f32 v{VAR}, 0, v{VAR}
    """)
    bfr(M1, MEAN); bfr(X, VAR)
    k.e(f"v_add_f32 v{X}, {hx(1e-5)}, v{X}"); bfr(X, X)
    k.e(f"v_sqrt_f32 v{X}, v{X}\ns_nop 0"); bfr(S1, X)
    k.e(f"v_rcp_f32 v{A1}, v{S1}\nv_sub_f32 v{Y}, v{MEAN}, v{M1}")
    if typ == "mlp":
        k.e(f"v_mul_f32 v{Y}, v{Y}, v{A1}"); bfr(Y, Y)
        k.e(f"v_mul_f32 v{X}, v{VAR}, v{A1}\nv_mul_f32 v{X}, v{X}, v{A1}"); bfr(X, X)
        k.e(f"v_add_f32 v{X}, {hx(1e-5)}, v{X}"); bfr(X, X)
        k.e(f"v_sqrt_f32 v{X}, v{X}\ns_nop 0"); bfr(X, X)
        k.e(f"v_mul_f32 v{X}, v{X}, v{S1}\nv_rcp_f32 v{A2}, v{X}\nv_fma_f32 v{Y}, v{Y}, v{S1}, v{M1}\nv_mul_f32 v{AM}, v{A2}, v{Y}")
    k.e(f"""
    s_lshl_b32 s{sT0}, s{sWC}, 10
    v_lshlrev_b32 v{t+5}, 6, v{vN}
    v_add_u32 v{t+5}, s{sT0}, v{t+5}
    v_lshl_add_u32 v{t+19}, v{vQ}, 4, v{t+5}
    """)
    k.ds(f"ds_write_b128 v{t+19}, {V(M1,4)} offset:{L_TOK}")
    k.wait_lg()
    TK = t + 8
    for j in range(4): k.ds(f"ds_read_b128 {V(TK+4*j,4)}, v{t+5} offset:{L_TOK + j*16}")
    for i in range(nr):
        for h in range(2):
            k.e(f"v_pk_add_f32 {V(CS+4*i+2*h,2)}, {V(CS+4*i+2*h,2)}, {V(P2+4*i+2*h,2)}")
    k.wait_lg()
    return TK, CS

def h_base():
    k.e(f"""
    s_lshl_b32 s{sT0}, s{sMT}, 1
    s_add_u32 s{sT0}, s{sT0}, s{sWC}
    s_mul_i32 s{sH}, s{sT0}, {88*4096}
    s_lshr_b32 s{sT0}, s{sNT}, 1
    s_mul_i32 s{sT0}, s{sT0}, 22
    s_and_b32 s{sT1}, s{sNT}, 1
    """)
def h_flag():
    t = vT
    k.wait_vm0()
    k.e(f"""
    s_lshl_b32 s{sT0}, s{sMT}, 4
    s_lshl_b32 s{sT1}, s{sTYP}, 3
    s_add_u32 s{sT0}, s{sT0}, s{sT1}
    s_add_u32 s{sT0}, s{sT0}, s{sNT}
    s_lshl_b32 s{sT0}, s{sT0}, 7
    s_lshl_b32 s{sT1}, s{sW}, 4
    s_add_u32 s{sT0}, s{sT0}, s{sT1}
    s_add_u32 s{sT0}, s{sT0}, {WS_HF}
    v_mov_b32 v{t}, s{sNonce}
    v_mov_b32 v{t+1}, s{sNonce}
    v_lshlrev_b32 v{t+2}, 26, v{vL}
    """)
    k.vmem(f"buffer_store_dwordx2 {V(t,2)}, v{t+2}, s[{rWS}:{rWS+3}], s{sT0} offen sc1", "hf")

def path_mlp():
    typ = "mlp"; t = vT
    k.label("L_mlp")
    k.vm = []; k.lg = []
    srd(rW, pW1, 640 * 3072)
    for g in range(6):
        k.e(f"""
        v_add_u32 v{t}, {64*g}, v{vL}
        v_mul_u32_u24 v{t+1}, 2731, v{t}
        v_lshrrev_b32 v{t+1}, 16, v{t+1}
        v_mul_u32_u24 v{t+2}, 24, v{t+1}
        v_sub_u32 v{t+2}, v{t}, v{t+2}
        v_and_b32 v{t+3}, 2, v{t+1}
        v_lshrrev_b32 v{t+4}, 1, v{t+1}
        v_and_b32 v{t+4}, 4, v{t+4}
        v_or_b32 v{t+3}, v{t+3}, v{t+4}
        v_xor_b32 v{t+2}, v{t+2}, v{t+3}
        v_mul_u32_u24 v{t+1}, 3072, v{t+1}
        v_lshl_add_u32 v{vDW+g}, v{t+2}, 4, v{t+1}
        """)
    k.e(f"""
    s_mul_i32 s{sWsrc}, s{sW}, {16*3072}
    s_mul_i32 s{sT0}, s{sNT}, 384
    s_add_u32 s{sWsrc}, s{sWsrc}, s{sT0}
    s_mul_i32 s{sLW}, s{sW}, 6144
    """)
    for s in range(3):
        for f in dma_stage(typ, s): f()
    repack_issue()
    srd(rT2, pB1, 3072)
    k.e(f"""
    s_mul_i32 s{sT0}, s{sNT}, 384
    s_mul_i32 s{sT1}, s{sWR}, 192
    s_add_u32 s{sT0}, s{sT0}, s{sT1}
    v_lshlrev_b32 v{t}, 3, v{vQ}
    """)
    for i in range(6): k.vmem(f"buffer_load_dwordx2 {V(vB1+2*i,2)}, v{t}, s[{rT2}:{rT2+3}], s{sT0} offen offset:{32*i}", "b1")
    k.e(f"""
    v_lshrrev_b32 v{t}, 2, v{vN}
    v_lshl_add_u32 v{t+1}, v{vQ}, 3, v{t}
    v_mul_u32_u24 v{t+1}, 384, v{t+1}
    v_and_b32 v{t+2}, 3, v{vN}
    v_lshl_add_u32 v{t+1}, v{t+2}, 3, v{t+1}
    v_lshrrev_b32 v{t}, 1, v{t}
    v_and_b32 v{t+2}, 1, v{vQ}
    v_lshl_add_u32 v{t}, v{t+2}, 1, v{t}
    s_xor_b32 s{sT2}, s{sWR}, s{sWC}
    s_mul_i32 s{sT0}, s{sT2}, 12288
    s_add_u32 s{sT0}, s{sT0}, {L_W}
    s_xor_b32 s{sT2}, s{sT2}, 1
    s_mul_i32 s{sT1}, s{sT2}, 12288
    s_add_u32 s{sT1}, s{sT1}, {L_W}
    s_mul_i32 s{sT2}, s{sWR}, 6
    """)
    for i in range(6):
        k.e(f"""
        s_add_u32 s{sT3}, s{sT2}, {i}
        v_xor_b32 v{t+2}, s{sT3}, v{t}
        v_lshl_add_u32 v{t+2}, v{t+2}, 5, v{t+1}
        v_add_u32 v{vWA+i}, s{sT0}, v{t+2}
        v_add_u32 v{vWA+6+i}, s{sT1}, v{t+2}
        """)
    Kc = 2 * 0.7978845608028654 * 1.4426950408889634
    k.e(f"s_mov_b32 s{sK}, {hx(-Kc*0.044715)}\ns_mov_b32 s{sK+1}, {hx(-Kc)}")
    main_loop(typ)
    TK, CS = stats(typ)
    stamp()
    h_base()
    k.e(f"""
    s_mul_i32 s{sT1}, s{sT1}, 6
    s_add_u32 s{sT0}, s{sT0}, s{sT1}
    s_mul_i32 s{sT1}, s{sWR}, 3
    s_add_u32 s{sT0}, s{sT0}, s{sT1}
    s_lshl_b32 s{sT0}, s{sT0}, 12
    s_add_u32 s{sH}, s{sH}, s{sT0}
    """)
    B = 100
    for i in range(6):
        for h in range(2):
            k.e(f"v_lshlrev_b32 v{B+4*i+2*h}, 16, v{vB1+2*i+h}\nv_and_b32 v{B+4*i+2*h+1}, 0xffff0000, v{vB1+2*i+h}")
    TM = 124
    OUT = [88, 92]
    n_ = 0
    for u in range(3):
        for j in range(4):
            o = OUT[n_ & 1]; n_ += 1
            prs = [(2*u + ii, h) for ii in range(2) for h in range(2)]
            Z = [acc(i, j) + 2*h for i, h in prs]
            T1 = [TM + 2*x for x in range(4)]; T2 = [TM + 8 + 2*x for x in range(4)]
            for x, (i, h) in enumerate(prs):
                k.e(f"v_pk_fma_f32 {V(T1[x],2)}, {V(CS+4*i+2*h,2)}, {V(TK+4*j+2,2)}, {V(B+4*i+2*h,2)} op_sel:[0,1,0] op_sel_hi:[1,1,1] neg_lo:[0,1,0] neg_hi:[0,1,0]")
            for x in range(4):
                k.e(f"v_pk_fma_f32 {V(Z[x],2)}, {V(Z[x],2)}, {V(TK+4*j+2,2)}, {V(T1[x],2)} op_sel:[0,0,0] op_sel_hi:[1,0,1]")
            for x in range(4): k.e(f"v_pk_mul_f32 {V(T1[x],2)}, {V(Z[x],2)}, {V(Z[x],2)}")
            for x in range(4): k.e(f"v_pk_fma_f32 {V(T1[x],2)}, {V(T1[x],2)}, s[{sK}:{sK+1}], s[{sK}:{sK+1}] op_sel:[0,0,1] op_sel_hi:[1,0,1]")
            for x in range(4): k.e(f"v_pk_mul_f32 {V(T1[x],2)}, {V(T1[x],2)}, {V(Z[x],2)}")
            for x in range(4): k.e(f"v_exp_f32 v{T2[x]}, v{T1[x]}\nv_exp_f32 v{T2[x]+1}, v{T1[x]+1}")
            for x in range(4): k.e(f"v_pk_add_f32 {V(T2[x],2)}, {V(T2[x],2)}, 1.0 op_sel_hi:[1,0]")
            for x in range(4): k.e(f"v_rcp_f32 v{T2[x]}, v{T2[x]}\nv_rcp_f32 v{T2[x]+1}, v{T2[x]+1}")
            for x in range(4): k.e(f"v_pk_mul_f32 {V(Z[x],2)}, {V(Z[x],2)}, {V(T2[x],2)}")
            for x in range(4): k.e(f"v_cvt_pk_bf16_f32 v{o+x}, v{Z[x]}, v{Z[x]+1}")
            k.vmem(f"buffer_store_dwordx4 {V(o,4)}, v{vL16}, s[{rWS}:{rWS+3}], s{sH} offen offset:{j*1024} sc1", "h")
        if u < 2: k.e(f"s_add_u32 s{sH}, s{sH}, 4096")
    stamp()
    h_flag()
    k.e("s_branch L_p2")

def cmul_acc(d, a, b, c):
    k.e(f"v_pk_fma_f32 {V(d,2)}, {V(a,2)}, {V(b,2)}, {V(c,2)} op_sel:[0,0,0] op_sel_hi:[1,0,1]")
    k.e(f"v_pk_fma_f32 {V(d,2)}, {V(a,2)}, {V(b,2)}, {V(d,2)} op_sel:[1,1,0] op_sel_hi:[0,1,1] neg_lo:[0,1,0]")

def path_ssm():
    typ = "ssm"; t = vT
    k.e(f"""
    s_cmp_eq_u32 s{sWC}, 0
    s_cselect_b32 s{rW}, s{pBre}, s{pBim}
    s_cselect_b32 s{rW+1}, s{pBre+1}, s{pBim+1}
    s_mov_b32 s{rW+2}, {640*1280}
    s_mov_b32 s{rW+3}, 0x20000
    v_lshrrev_b32 v{t}, 3, v{vL}
    v_and_b32 v{t+1}, 7, v{vL}
    v_and_b32 v{t+2}, 6, v{t}
    v_or_b32 v{t+2}, s{sWC}, v{t+2}
    v_xor_b32 v{t+1}, v{t+1}, v{t+2}
    v_lshlrev_b32 v{t+1}, 4, v{t+1}
    v_and_b32 v{t+2}, 6, v{t}
    v_and_b32 v{t+3}, 1, v{t}
    v_lshl_add_u32 v{t+2}, v{t+2}, 2, v{t+3}
    v_mul_u32_u24 v{t+2}, 1280, v{t+2}
    v_add_u32 v{vDW}, v{t+2}, v{t+1}
    v_add_u32 v{t+2}, 32, v{t}
    v_mul_u32_u24 v{t+2}, 1280, v{t+2}
    v_add_u32 v{vDW+1}, v{t+2}, v{t+1}
    s_mul_i32 s{sT0}, s{sNT}, 80
    s_mul_i32 s{sT1}, s{sWR}, 40
    s_add_u32 s{sT0}, s{sT0}, s{sT1}
    s_mul_i32 s{sB0}, s{sT0}, 1280
    s_add_u32 s{sB2}, s{sB0}, 5120
    s_mul_i32 s{sLW}, s{sWR}, 10240
    s_lshl_b32 s{sT0}, s{sWC}, 10
    s_add_u32 s{sLW}, s{sLW}, s{sT0}
    """)
    PR = 100
    k.e(f"""
    v_lshrrev_b32 v{t}, 4, v0
    s_mul_i32 s{sT0}, s{sNT}, 160
    v_lshlrev_b32 v{t+1}, 1, v{t}
    """)
    for pi, ptr in enumerate((pLre, pLim, pLdt)):
        srd(rT2, ptr, 1280)
        for u in range(5):
            k.vmem(f"buffer_load_ushort v{PR+5*pi+u}, v{t+1}, s[{rT2}:{rT2+3}], s{sT0} offen offset:{32*u}", "par")
    k.e(f"v_mov_b32 v{vB1+11}, v{t}")
    for s in range(3):
        for f in dma_stage(typ, s): f()
    repack_issue()
    k.e(f"""
    s_xor_b32 s{sT2}, s{sWR}, s{sWC}
    s_lshl_b32 s{sT2}, s{sT2}, 2
    v_add_u32 v{t}, s{sT2}, v{vQ}
    v_and_b32 v{t+1}, 1, v{vN}
    v_lshrrev_b32 v{t+2}, 2, v{vN}
    v_lshl_add_u32 v{t+2}, v{t+2}, 1, v{t+1}
    v_xor_b32 v{t}, v{t}, v{t+2}
    v_lshlrev_b32 v{t}, 4, v{t}
    v_lshl_add_u32 v{t}, v{t+1}, 10, v{t}
    v_lshrrev_b32 v{t+2}, 1, v{vN}
    v_lshl_add_u32 v{t}, v{t+2}, 7, v{t}
    s_mul_i32 s{sT0}, s{sWR}, 10240
    s_add_u32 s{sT0}, s{sT0}, {L_W}
    v_add_u32 v{vWA}, s{sT0}, v{t}
    v_xor_b32 v{vWA+1}, 64, v{vWA}
    """)
    CG = vB1 + 11
    K1, K2, APW, ACH, ACH2 = t, t+1, t+2, t+3, t+4
    k.e(f"""
    v_lshlrev_b32 v{K1}, 2, v{vN}
    v_cvt_f32_u32 v{K1}, v{K1}
    v_mov_b32 v{K2}, {hx(128.0)}
    v_mov_b32 v{t+5}, {hx(64.0)}
    v_cmp_eq_u32 vcc, 1, v{vN}
    v_lshlrev_b32 v{APW}, 7, v{CG}
    v_lshl_add_u32 v{APW}, v{vN}, 3, v{APW}
    v_cndmask_b32 v{K2}, v{K2}, v{t+5}, vcc
    v_cmp_eq_u32 vcc, 0, v{vN}
    v_mov_b32 v{t+5}, 1.0
    v_lshlrev_b32 v{ACH}, 6, v{CG}
    v_cndmask_b32 v{K2}, v{K2}, v{t+5}, vcc
    """)
    M1_, M2_, M0_ = 84, 86, 88
    k.e(f"""
    v_add_u32 v{ACH}, {L_CH}, v{ACH}
    v_ffbl_b32 v{t+5}, v{vN}
    v_lshl_add_u32 v{t+5}, v{t+5}, 3, v{ACH}
    v_add_u32 v{t+5}, 16, v{t+5}
    v_lshl_add_u32 v{t+7}, v{vN}, 3, v{ACH}
    v_add_u32 v{t+7}, 40, v{t+7}
    v_cmp_eq_u32 vcc, 0, v{vN}
    s_mov_b32 s{M1_}, 0x01160116
    s_mov_b32 s{M1_+1}, 0x01160116
    s_mov_b32 s{M2_}, 0x00070007
    s_mov_b32 s{M2_+1}, 0x00070007
    s_mov_b32 s{M0_}, 0x00010001
    s_mov_b32 s{M0_+1}, 0x00010001
    v_cndmask_b32 v{ACH2}, v{t+7}, v{ACH}, vcc
    """)
    R1 = t + 5
    def masked(m, ins):
        k.e(f"s_mov_b64 exec, s[{m}:{m+1}]"); k.ds(ins); k.e("s_mov_b64 exec, -1")
    k.wait_vm("par")
    LOG2E = 1.4426950408889634
    for u in range(5):
        lr, li, dt, al, be, x, y, c_, s_ = PR+u, PR+5+u, PR+10+u, t+8, t+9, t+10, t+11, t+12, t+13
        k.e(f"""
        v_lshlrev_b32 v{lr}, 16, v{lr}
        v_lshlrev_b32 v{li}, 16, v{li}
        v_lshlrev_b32 v{dt}, 16, v{dt}
        v_mul_f32 v{dt}, {hx(LOG2E)}, v{dt}
        v_exp_f32 v{dt}, v{dt}
        s_nop 0
        v_cvt_pk_bf16_f32 v{dt}, v{dt}, v{dt}
        v_and_b32 v{dt}, 0xffff0000, v{dt}
        v_mul_f32 v{al}, v{dt}, v{lr}
        v_mul_f32 v{be}, v{dt}, v{li}
        v_mul_f32 v{al}, {hx(LOG2E)}, v{al}
        v_mul_f32 v{be}, 0.15915494, v{be}
        """)
        for rnd, KK in ((1, K1), (2, K2)):
            k.e(f"""
            v_mul_f32 v{x}, v{KK}, v{al}
            v_mul_f32 v{y}, v{KK}, v{be}
            v_exp_f32 v{x}, v{x}
            v_fract_f32 v{y}, v{y}
            v_cos_f32 v{c_}, v{y}
            v_sin_f32 v{s_}, v{y}
            s_nop 0
            v_mul_f32 v{t+14}, v{x}, v{c_}
            v_mul_f32 v{t+15}, v{x}, v{s_}
            """)
            if rnd == 1:
                k.ds(f"ds_write_b64 v{APW}, {V(t+14,2)} offset:{L_PW + u*2048}")
                masked(M1_, f"ds_write_b64 v{R1}, {V(t+14,2)} offset:{u*1024}")
            else:
                masked(M2_, f"ds_write_b64 v{ACH2}, {V(t+14,2)} offset:{u*1024}")
                k.e(f"""
                v_add_f32 v{x}, -1.0, v{t+14}
                v_mul_f32 v{y}, v{lr}, v{lr}
                v_fma_f32 v{y}, v{li}, v{li}, v{y}
                v_rcp_f32 v{y}, v{y}
                v_mul_f32 v{c_}, v{x}, v{lr}
                v_fma_f32 v{c_}, v{t+15}, v{li}, v{c_}
                v_mul_f32 v{s_}, v{t+15}, v{lr}
                v_fma_f32 v{s_}, -v{x}, v{li}, v{s_}
                v_add_f32 v{y}, v{y}, v{y}
                v_mul_f32 v{t+16}, v{c_}, v{y}
                v_mul_f32 v{t+17}, v{s_}, v{y}
                """)
                masked(M0_, f"ds_write_b64 v{ACH}, {V(t+16,2)} offset:{u*1024 + 8}")
    main_loop(typ)
    TK, CS = stats(typ)
    stamp()
    vC0, vC1, vP0, vP1, vE0, vE1 = vB1, vB1+1, vB1+2, vB1+3, vB1+4, vB1+5
    k.e(f"""
    s_mul_i32 s{sT0}, s{sWR}, 40
    v_lshlrev_b32 v{t}, 3, v{vQ}
    v_add_u32 v{t}, s{sT0}, v{t}
    v_lshlrev_b32 v{t+1}, 1, v{vQ}
    v_add_u32 v{t+1}, s{sT0}, v{t+1}
    v_add_u32 v{t+1}, 32, v{t+1}
    v_lshlrev_b32 v{vC0}, 6, v{t}
    v_lshlrev_b32 v{vC1}, 6, v{t+1}
    v_lshlrev_b32 v{t+2}, 3, v{vN}
    v_lshl_add_u32 v{vP0}, v{t}, 7, v{t+2}
    v_lshl_add_u32 v{vP1}, v{t+1}, 7, v{t+2}
    v_lshlrev_b32 v{vE0}, 3, v{t}
    v_lshlrev_b32 v{vE1}, 3, v{t+1}
    """)
    slots = [(i, h) for i in range(5) for h in range(2)]
    def rec(i, h): return (vC0, L_CH + (2*i + h)*64) if i < 4 else (vC1, L_CH + h*64)
    LC = 100
    for x, (i, h) in enumerate(slots):
        a_, o_ = rec(i, h); k.ds(f"ds_read_b128 {V(LC+4*x,4)}, v{a_} offset:{o_}", ("lc", x))
    for x, (i, h) in enumerate(slots):
        for j in range(4):
            z = acc(i, j) + 2*h
            k.e(f"v_pk_fma_f32 {V(z,2)}, {V(CS+4*i+2*h,2)}, {V(TK+4*j,2)}, {V(z,2)} op_sel:[0,0,0] op_sel_hi:[1,0,1] neg_lo:[0,1,0] neg_hi:[0,1,0]")
        for j in range(4):
            z = acc(i, j) + 2*h
            k.e(f"v_pk_mul_f32 {V(z,2)}, {V(z,2)}, {V(TK+4*j,2)} op_sel:[0,1] op_sel_hi:[1,1]")
    k.wait_lg()
    EE = 140
    TMP = 88
    for x, (i, h) in enumerate(slots):
        for j in range(4):
            z = acc(i, j) + 2*h
            k.e(f"v_pk_mul_f32 {V(TMP+2*j,2)}, {V(z,2)}, {V(LC+4*x+2,2)} op_sel:[0,0] op_sel_hi:[1,0]")
        for j in range(4):
            z = acc(i, j) + 2*h
            k.e(f"v_pk_fma_f32 {V(z,2)}, {V(z,2)}, {V(LC+4*x+2,2)}, {V(TMP+2*j,2)} op_sel:[1,1,0] op_sel_hi:[0,1,1] neg_lo:[0,1,0]")
    MU = t
    def load_mu(b):
        for y in range(5):
            i, h = slots[5*b + y]; a_, o_ = rec(i, h)
            k.ds(f"ds_read_b128 {V(MU+8*y,4)}, v{a_} offset:{o_+16}")
            k.ds(f"ds_read_b128 {V(MU+8*y+4,4)}, v{a_} offset:{o_+32}")
    load_mu(0)
    E2 = 224
    E2 = 240
    def ereg(x): return EE + 2*x
    def treg(x): return (240 + 2*x) if x < 8 else (TMP + 2*(x - 8))
    for x, (i, h) in enumerate(slots): cmul_acc(ereg(x), acc(i,0)+2*h, LC+4*x, acc(i,1)+2*h)
    for x, (i, h) in enumerate(slots): cmul_acc(treg(x), ereg(x), LC+4*x, acc(i,2)+2*h)
    for x, (i, h) in enumerate(slots): cmul_acc(ereg(x), treg(x), LC+4*x, acc(i,3)+2*h)
    for b in range(2):
        k.wait_lg()
        for st, sh in enumerate((1, 2, 4, 8)):
            for y in range(5):
                x = 5*b + y
                k.e(f"v_mov_b32_dpp v{treg(x)}, v{ereg(x)} row_shr:{sh} row_mask:0xf bank_mask:0xf bound_ctrl:0")
                k.e(f"v_mov_b32_dpp v{treg(x)+1}, v{ereg(x)+1} row_shr:{sh} row_mask:0xf bank_mask:0xf bound_ctrl:0")
            for y in range(5):
                x = 5*b + y
                cmul_acc(ereg(x), treg(x), MU+8*y+2*st, ereg(x))
        if b == 0: load_mu(1)
    k.e(f"""
    s_mul_i32 s{sT0}, s{sWC}, 640
    v_add_u32 v{vB1+6}, s{sT0}, v{vE0}
    v_add_u32 v{vB1+7}, s{sT0}, v{vE1}
    v_cmp_eq_u32 vcc, 15, v{vN}
    s_and_saveexec_b64 s[{sEx}:{sEx+1}], vcc
    """)
    for i in range(5):
        k.ds(f"ds_write_b128 v{vB1+6 if i < 4 else vB1+7}, {V(EE+4*i,4)} offset:{L_EX + (16*i if i < 4 else 0)}")
    k.e(f"s_mov_b64 exec, s[{sEx}:{sEx+1}]")
    PWv = t
    k.wait_lg()
    k.e("s_barrier")
    ch = t + 24
    k.e(f"""
    s_mul_i32 s{sT0}, s{sWR}, 40
    v_min_u32 v{ch}, 39, v{vL}
    v_add_u32 v{ch}, s{sT0}, v{ch}
    v_lshlrev_b32 v{ch+1}, 3, v{ch}
    v_lshlrev_b32 v{ch+2}, 6, v{ch}
    v_lshlrev_b32 v{ch+3}, 4, v{ch}
    """)
    E0, E1, LL, ET, HI, HT = ch+4, ch+6, ch+8, ch+12, ch+16, ch+18
    k.ds(f"ds_read_b64 {V(E0,2)}, v{ch+1} offset:{L_EX}", "e")
    k.ds(f"ds_read_b64 {V(E1,2)}, v{ch+1} offset:{L_EX+640}", "e")
    k.ds(f"ds_read_b128 {V(LL,4)}, v{ch+2} offset:{L_CH+48}", "e")
    for x, (i, h) in enumerate(slots):
        k.ds(f"ds_read_b64 {V(PWv+2*x,2)}, v{vP0 if i < 4 else vP1} offset:{L_PW + ((2*i+h)*128 if i < 4 else h*128)}", "pw")
    k.e(f"""
    s_lshl_b32 s{sT0}, s{sNT}, 4
    s_mul_i32 s{sT0}, s{sT0}, 1280
    s_add_u32 s{sHw}, s{sT0}, {WS_E}
    s_mul_i32 s{sT0}, s{sMT}, 1280
    s_add_u32 s{sT0}, s{sT0}, s{sHw}
    s_cmp_eq_u32 s{sWC}, 0
    s_cselect_b32 s{sT1}, 0, {OOB}
    v_cmp_gt_u32 vcc, 40, v{vL}
    v_or_b32 v{HT}, s{sT1}, v{ch+3}
    v_mov_b32 v{HT+1}, {OOB}
    v_cndmask_b32 v{HT}, v{HT+1}, v{HT}, vcc
    """)
    k.wait_lg("e")
    cmul_acc(E1, E0, LL, E1)
    k.e(f"""
    v_mov_b32 v{ET}, v{E1}
    v_mov_b32 v{ET+1}, s{sNonce}
    v_mov_b32 v{ET+2}, v{E1+1}
    v_mov_b32 v{ET+3}, s{sNonce}
    """)
    k.vmem(f"buffer_store_dwordx4 {V(ET,4)}, v{HT}, s[{rWS}:{rWS+3}], s{sT0} offen sc1", "e")
    stamp()
    for x in range(10):
        k.e(f"v_mov_b32_dpp v{treg(x)}, v{ereg(x)} row_shr:1 row_mask:0xf bank_mask:0xf bound_ctrl:0")
        k.e(f"v_mov_b32_dpp v{treg(x)+1}, v{ereg(x)+1} row_shr:1 row_mask:0xf bank_mask:0xf bound_ctrl:0")
    k.e(f"v_mov_b32 v{HI}, 0\nv_mov_b32 v{HI+1}, 0")
    k.e(f"s_cmp_eq_u32 s{sMT}, 0\ns_cbranch_scc1 L_carry_done")
    k.label("L_carry_poll")
    k.e(f"s_mov_b32 s{sT0}, s{sHw}")
    for c in range(15):
        k.e(f"buffer_load_dwordx4 {A(4*c,4)}, v{ch+3}, s[{rWS}:{rWS+3}], s{sT0} offen sc1")
        if c < 14:
            k.e(f"s_add_u32 s{sT0}, s{sT0}, 1280\ns_cmp_eq_u32 s{sMT}, {c+1}\ns_cbranch_scc1 L_carry_issued")
    k.label("L_carry_issued")
    k.e(f"v_mov_b32 v{HI}, 0\nv_mov_b32 v{HI+1}, 0\ns_mov_b64 s[{sEx}:{sEx+1}], 0\ns_waitcnt vmcnt(0)")
    k.vm = []
    G = ET
    for c in range(15):
        k.e(f"""
        v_accvgpr_read_b32 v{G}, a{4*c}
        v_accvgpr_read_b32 v{G+1}, a{4*c+2}
        v_accvgpr_read_b32 v{G+2}, a{4*c+1}
        v_accvgpr_read_b32 v{G+3}, a{4*c+3}
        v_cmp_ne_u32 vcc, s{sNonce}, v{G+2}
        s_or_b64 s[{sEx}:{sEx+1}], s[{sEx}:{sEx+1}], vcc
        v_cmp_ne_u32 vcc, s{sNonce}, v{G+3}
        s_or_b64 s[{sEx}:{sEx+1}], s[{sEx}:{sEx+1}], vcc
        """)
        cmul_acc(G, HI, LL+2, G)
        k.e(f"v_mov_b32 v{HI}, v{G}\nv_mov_b32 v{HI+1}, v{G+1}")
        if c < 14: k.e(f"s_cmp_eq_u32 s{sMT}, {c+1}\ns_cbranch_scc1 L_carry_chk")
    k.label("L_carry_chk")
    k.e(f"""
    s_cmp_eq_u64 s[{sEx}:{sEx+1}], 0
    s_cbranch_scc1 L_carry_done
    s_sub_u32 s{sSpin}, s{sSpin}, 1
    s_cbranch_scc1 L_end
    s_sleep 1
    s_branch L_carry_poll
    """)
    k.label("L_carry_done")
    stamp()
    k.e(f"s_cmp_eq_u32 s{sWC}, 0\ns_cbranch_scc1 L_wc0")
    cmul_acc(E0, HI, LL, E0)
    k.e(f"v_mov_b32 v{HI}, v{E0}\nv_mov_b32 v{HI+1}, v{E0+1}")
    k.label("L_wc0")
    k.e(f"""
    s_mul_i32 s{sT0}, s{sWC}, 640
    v_add_u32 v{ch+1}, s{sT0}, v{ch+1}
    """)
    k.ds(f"ds_write_b64 v{ch+1}, {V(HI,2)} offset:{L_EX2}")
    k.wait_lg()
    for i in range(5):
        k.ds(f"ds_read_b128 {V(EE+4*i,4)}, v{vB1+6 if i < 4 else vB1+7} offset:{L_EX2 + (16*i if i < 4 else 0)}")
    h_base()
    k.e(f"""
    s_mul_i32 s{sT1}, s{sT1}, 5
    s_add_u32 s{sT0}, s{sT0}, s{sT1}
    s_add_u32 s{sT0}, s{sT0}, 12
    s_lshl_b32 s{sT0}, s{sT0}, 12
    s_add_u32 s{sH}, s{sH}, s{sT0}
    s_add_u32 s{sHw}, s{sH}, {4*4096}
    s_lshl_b32 s{sT0}, s{sWR}, 9
    s_add_u32 s{sHw}, s{sHw}, s{sT0}
    s_lshl_b32 s{sT0}, s{sWR}, 13
    s_add_u32 s{sH}, s{sH}, s{sT0}
    s_add_u32 s{sT2}, s{sH}, 4096
    v_lshlrev_b32 v{ch}, 3, v{vL}
    """)
    k.wait_lg()
    for x in range(10): cmul_acc(treg(x), ereg(x), PWv+2*x, treg(x))
    O = ch + 4
    for j in range(4):
        for x, (i, h) in enumerate(slots):
            prev = treg(x) if j == 0 else acc(i, j-1) + 2*h
            cmul_acc(acc(i,j)+2*h, prev, LC+4*x, acc(i,j)+2*h)
        o = O + (j & 1) * 10
        for i in range(4): k.e(f"v_cvt_pk_bf16_f32 v{o+i}, v{acc(i,j)}, v{acc(i,j)+2}")
        for i in range(4): k.e(f"v_cvt_pk_bf16_f32 v{o+4+i}, -v{acc(i,j)+1}, -v{acc(i,j)+3}")
        k.e(f"v_cvt_pk_bf16_f32 v{o+8}, v{acc(4,j)}, v{acc(4,j)+2}")
        k.e(f"v_cvt_pk_bf16_f32 v{o+9}, -v{acc(4,j)+1}, -v{acc(4,j)+3}")
        k.vmem(f"buffer_store_dwordx4 {V(o,4)}, v{vL16}, s[{rWS}:{rWS+3}], s{sH} offen offset:{j*1024} sc1", "h")
        k.vmem(f"buffer_store_dwordx4 {V(o+4,4)}, v{vL16}, s[{rWS}:{rWS+3}], s{sT2} offen offset:{j*1024} sc1", "h")
        k.vmem(f"buffer_store_dwordx2 {V(o+8,2)}, v{ch}, s[{rWS}:{rWS+3}], s{sHw} offen offset:{j*1024} sc1", "h")
    stamp()
    h_flag()
    k.e("s_branch L_p2")

def poll(tag, vaddr, nl, vd):
    k.e(f"""
    L_poll_{tag}:
    buffer_load_dwordx2 {V(vd,2)}, v{vaddr}, s[{rWS}:{rWS+3}], 0 offen sc1
    s_waitcnt vmcnt(0)
    v_cmp_ne_u32 vcc, s{sNonce}, v{vd}
    v_cmp_ne_u32 s[{sT0}:{sT1}], s{sNonce}, v{vd+1}
    s_or_b64 vcc, vcc, s[{sT0}:{sT1}]
    s_cmp_eq_u64 vcc, 0
    s_cbranch_scc1 L_pollok_{tag}
    s_sub_u32 s{sSpin}, s{sSpin}, 1
    s_cbranch_scc1 L_end
    s_sleep 1
    s_branch L_poll_{tag}
    L_pollok_{tag}:
    """)
    k.vm = []

WSLOT = [("a", 140 + 20*x) for x in range(5)] + [("v", 100 + 20*x) for x in range(3)] + [("a", 20*x) for x in range(7)]
HRING = [("v", 40), ("v", 56), ("v", 72), ("v", 240), ("a", 240)]
ACC2 = 160
def acc2(i, s): return ACC2 + (i*4 + s)*4
def phase2():
    k.label("L_p2")
    k.vm = []; k.lg = []
    stamp_n[0] = 8
    stamp()
    vF, vFd, vHs, vH8 = 28, 30, 32, 36
    k.e(f"""
    v_min_u32 v{vF}, 16, v{vL}
    s_mul_i32 s{sT0}, s{sW}, 24
    s_lshr_b32 s{sT1}, s{sDT}, 2
    s_add_u32 s{sT0}, s{sT0}, s{sT1}
    s_mul_i32 s{sT1}, s{sDT}, 10
    s_add_u32 s{sT1}, s{sT1}, {96 - 24}
    s_add_u32 s{sT1}, s{sT1}, s{sWR}
    v_cmp_gt_u32 vcc, 12, v{vF}
    v_mov_b32 v{vFd}, s{sT1}
    v_mov_b32 v{vFd+1}, s{sT0}
    v_cndmask_b32 v{vFd}, v{vFd}, v{vFd+1}, vcc
    v_lshl_add_u32 v{vF}, v{vF}, 1, v{vFd}
    v_lshlrev_b32 v{vF}, 7, v{vF}
    v_add_u32 v{vF}, {WS_RF}, v{vF}
    """)
    poll("rf", vF, 17, vFd)
    k.e(f"""
    s_mul_i32 s{sWp}, s{sDT}, 88
    s_mul_i32 s{sT0}, s{sW}, 22
    s_add_u32 s{sWp}, s{sWp}, s{sT0}
    s_mul_i32 s{sWp}, s{sWp}, 5120
    s_add_u32 s{sWp}, s{sWp}, {WS_WP}
    s_lshl_b32 s{sT1}, s{sMT}, 1
    s_add_u32 s{sT1}, s{sT1}, s{sHALF}
    s_mul_i32 s{sT1}, s{sT1}, 88
    s_add_u32 s{sT1}, s{sT1}, s{sT0}
    s_lshl_b32 s{sH}, s{sT1}, 12
    """)
    for s in range(4):
        k.e(f"""
        s_xor_b32 s{sT0}, s{sW}, {s}
        s_lshl_b32 s{sT0}, s{sT0}, 10
        v_add_u32 v{vHs+s}, s{sT0}, v{vL16}
        v_lshlrev_b32 v{vH8+s}, 3, v{vL}
        v_add_u32 v{vH8+s}, s{sT0}, v{vH8+s}
        """)
    wslot_of = {}
    def wload(tk, slot):
        wslot_of[tk] = slot
        kind, base = WSLOT[slot]
        fs = []
        def mk(i):
            def f():
                if i == 0: k.e(f"s_add_u32 s{sT2}, s{sWp}, {tk*5120}")
                if i == 4: k.e(f"s_add_u32 s{sT2}, s{sT2}, 4096")
                k.vmem(f"buffer_load_dwordx4 {R(kind, base+4*i, 4)}, v{vL16}, s[{rWS}:{rWS+3}], s{sT2} offen offset:{(i & 3)*1024} sc1", ("w", tk))
            return f
        return [mk(i) for i in range(5)]
    def hload(tk):
        kind, base = HRING[tk % 5]
        isE = tk in (16, 21)
        fs = []
        def mk(s):
            def f():
                if s == 0: k.e(f"s_add_u32 s{sT3}, s{sH}, {tk*4096}")
                if not isE:
                    k.vmem(f"buffer_load_dwordx4 {R(kind, base+4*s, 4)}, v{vHs+s}, s[{rWS}:{rWS+3}], s{sT3} offen sc1", ("h", tk))
                else:
                    k.vmem(f"buffer_load_dwordx2 {R(kind, base+4*s, 2)}, v{vH8+s}, s[{rWS}:{rWS+3}], s{sT3} offen sc1", ("h", tk))
                    k.vmem(f"buffer_load_dwordx2 {R(kind, base+4*s+2, 2)}, v{vH8+s}, s[{rWS}:{rWS+3}], s{sT3} offen offset:512 sc1", ("h", tk))
            return f
        return [mk(s) for s in range(4)]
    NPRE = 10
    for tk in range(NPRE):
        for f in wload(tk, tk): f()
    k.e(f"""
    v_and_b32 v{vF}, 7, v{vL}
    v_cmp_gt_u32 vcc, 4, v{vF}
    v_mov_b32 v{vFd}, 0
    v_mov_b32 v{vFd+1}, 8
    v_cndmask_b32 v{vFd}, v{vFd}, v{vFd+1}, vcc
    v_bfe_u32 v{vFd+1}, v{vF}, 1, 1
    v_add_u32 v{vFd}, v{vFd}, v{vFd+1}
    s_lshl_b32 s{sT0}, s{sMT}, 4
    s_lshl_b32 s{sT1}, s{sW}, 1
    s_add_u32 s{sT0}, s{sT0}, s{sT1}
    v_add_u32 v{vFd}, s{sT0}, v{vFd}
    v_lshlrev_b32 v{vFd}, 7, v{vFd}
    v_and_b32 v{vF}, 1, v{vF}
    v_lshl_add_u32 v{vF}, v{vF}, 5, v{vFd}
    s_lshl_b32 s{sT0}, s{sHALF}, 4
    s_add_u32 s{sT0}, s{sT0}, {WS_HF}
    v_add_u32 v{vF}, s{sT0}, v{vF}
    """)
    poll("hf", vF, 8, vFd)
    stamp()
    for tk in range(5):
        for f in hload(tk): f()
    EX_, ED, EB = 4, 14, 88
    vTok, vO = 24, 25
    for tk in range(22):
        k.wait_vm([("w", tk), ("h", tk)])
        wk, wb = WSLOT[wslot_of[tk]]; hk, hb = HRING[tk % 5]
        m = []
        for i in range(5):
            for s in range(4):
                c = "0" if tk == 0 else V(acc2(i, s), 4)
                m.append(f"v_mfma_f32_16x16x32_bf16 {V(acc2(i,s),4)}, {R(wk, wb+4*i, 4)}, {R(hk, hb+4*s, 4)}, {c}")
        fill = []
        nt_ = tk + NPRE
        if nt_ < 22:
            fill += wload(nt_, nt_ if nt_ < 15 else nt_ - 15)
        for x in m[:16]: pass
        interleave(m, fill, start=1, every=3)
        if tk + 5 < 22:
            for f in hload(tk + 5): f()
        if tk == 17:
            srd(rT, pDsk, 1280); srd(rT2, pB2, 1280)
            k.e(f"""
            s_lshl_b32 s{sT0}, s{sMT}, 7
            s_lshl_b32 s{sT1}, s{sHALF}, 6
            s_add_u32 s{sT0}, s{sT0}, s{sT1}
            s_add_u32 s{sT0}, s{sT0}, s{sW}
            v_lshlrev_b32 v{vTok}, 2, v{vN}
            v_add_u32 v{vTok}, s{sT0}, v{vTok}
            v_mul_u32_u24 v{vTok}, 640, v{vTok}
            s_mul_i32 s{sT0}, s{sDT}, 80
            v_lshlrev_b32 v{vF}, 2, v{vQ}
            v_add_u32 v{vF}, s{sT0}, v{vF}
            v_add_u32 v{vTok}, v{vTok}, v{vF}
            v_lshlrev_b32 v{vO}, 2, v{vTok}
            v_lshlrev_b32 v{vTok}, 1, v{vTok}
            v_lshlrev_b32 v{vF}, 1, v{vF}
            """)
            for i in range(5):
                k.vmem(f"buffer_load_dwordx2 {V(EX_+2*i,2)}, v{vTok}, s[{rX}:{rX+3}], 0 offen offset:{32*i}", "ep")
                k.vmem(f"buffer_load_dwordx2 {V(ED+2*i,2)}, v{vF}, s[{rT}:{rT+3}], 0 offen offset:{32*i}", "ep")
                k.vmem(f"buffer_load_dwordx2 {V(EB+2*i,2)}, v{vF}, s[{rT2}:{rT2+3}], 0 offen offset:{32*i}", "ep")
    stamp()
    vRw, vRr = 28, 32
    for s in range(1, 4):
        k.e(f"""
        s_xor_b32 s{sT0}, s{sW}, {s}
        s_lshl_b32 s{sT1}, s{sT0}, 2
        s_add_u32 s{sT1}, s{sT1}, s{sW}
        s_mul_i32 s{sT1}, s{sT1}, 5120
        s_add_u32 s{sT1}, s{sT1}, {L_RED}
        v_add_u32 v{vRw+s}, s{sT1}, v{vL16}
        s_lshl_b32 s{sT1}, s{sW}, 2
        s_add_u32 s{sT1}, s{sT1}, s{sT0}
        s_mul_i32 s{sT1}, s{sT1}, 5120
        s_add_u32 s{sT1}, s{sT1}, {L_RED}
        v_add_u32 v{vRr+s}, s{sT1}, v{vL16}
        """)
    k.e(f"""
    s_lshl_b32 s{sT0}, s{sHALF}, 10
    s_lshl_b32 s{sT1}, s{sW}, 4
    s_add_u32 s{sT0}, s{sT0}, s{sT1}
    v_lshlrev_b32 v{vRw}, 6, v{vN}
    v_add_u32 v{vRw}, s{sT0}, v{vRw}
    """)
    TKv = 36
    for s in range(1, 4):
        for i in range(5): k.ds(f"ds_write_b128 v{vRw+s}, {V(acc2(i,s),4)} offset:{i*1024}")
    srd(rT, pOut, 2048 * 2560)
    k.wait_vm("ep")
    k.wait_lg(); k.e("s_barrier")
    k.ds(f"ds_read_b64 {V(TKv,2)}, v{vRw} offset:{L_TOK}", "tk")
    RD = 100
    for i in range(5):
        for s in range(1, 4): k.ds(f"ds_read_b128 {V(RD+12*i+4*(s-1),4)}, v{vRr+s} offset:{i*1024}", ("r", i))
    U = 40
    k.wait_lg("tk")
    for i in range(5):
        xf, df, bf_ = U, U+4, U+8
        for src, dst in ((EX_, xf), (ED, df), (EB, bf_)):
            for h in range(2):
                k.e(f"v_lshlrev_b32 v{dst+2*h}, 16, v{src+2*i+h}\nv_and_b32 v{dst+2*h+1}, 0xffff0000, v{src+2*i+h}")
        tt = U + 12
        def rnd(a):
            k.e(f"v_cvt_pk_bf16_f32 v{a+1}, v{a}, v{a+1}\nv_lshlrev_b32 v{a}, 16, v{a+1}\nv_and_b32 v{a+1}, 0xffff0000, v{a+1}")
        for h in range(2):
            a = tt + 2*h
            k.e(f"v_pk_add_f32 {V(a,2)}, {V(xf+2*h,2)}, {V(TKv,2)} op_sel:[0,0] op_sel_hi:[1,0] neg_lo:[0,1] neg_hi:[0,1]"); rnd(a)
            k.e(f"v_pk_mul_f32 {V(a,2)}, {V(a,2)}, {V(TKv,2)} op_sel:[0,1] op_sel_hi:[1,1]"); rnd(a)
            k.e(f"v_pk_mul_f32 {V(a,2)}, {V(a,2)}, {V(df+2*h,2)}"); rnd(a)
            k.e(f"v_pk_add_f32 {V(a,2)}, {V(a,2)}, {V(xf+2*h,2)}")
            k.e(f"v_pk_add_f32 {V(a,2)}, {V(a,2)}, {V(bf_+2*h,2)}")
        k.wait_lg(("r", i))
        o = acc2(i, 0)
        for h in range(2):
            for s in range(3): k.e(f"v_pk_add_f32 {V(o+2*h,2)}, {V(o+2*h,2)}, {V(RD+12*i+4*s+2*h,2)}")
            k.e(f"v_pk_add_f32 {V(o+2*h,2)}, {V(o+2*h,2)}, {V(tt+2*h,2)}")
        k.vmem(f"buffer_store_dwordx4 {V(o,4)}, v{vO}, s[{rT}:{rT+3}], 0 offen offset:{64*i}", "o")
    if OPT["stamps"]:
        k.wait_vm0()
        stamp()
        k.e(f"s_memtime s[96:97]\ns_waitcnt lgkmcnt(0)\ns_sub_u32 s96, s96, s94\nv_writelane_b32 v{vST}, s96, 63")
        k.e(f"""
        s_lshl_b32 s{sT0}, s2, 2
        s_add_u32 s{sT0}, s{sT0}, s{sW}
        s_lshl_b32 s{sT0}, s{sT0}, 8
        s_add_u32 s{sT0}, s{sT0}, {WS_ST}
        v_lshlrev_b32 v2, 2, v{vL}
        buffer_store_dword v{vST}, v2, s[{rWS}:{rWS+3}], s{sT0} offen
        """)

prologue()
path_ssm()
if OPT["stamps"]: stamp_n[0] = 1
path_mlp()
phase2()
k.label("L_end")
body = k.text()
errs = check_hazards(body)
for e_ in errs: print("HAZARD:", e_, file=sys.stderr)

hdr = open(f"cdna_kernels/{NAME}.s.ref").read().split("\n")
hdr = [l for l in hdr if l.startswith(";") and "@launch" not in l and "Override" not in l and "grid=ceil" not in l]
out = "\n".join(hdr) + f"\n; @launch grid=(256,1,1) block=(256,1,1) lds={L_END}\n"
out += f""".amdgcn_target "amdgcn-amd-amdhsa--gfx950"
.text
.globl {NAME}_kernel
.p2align 8
.type {NAME}_kernel,@function
{NAME}_kernel:
{body}    s_endpgm
.section .rodata,"a"
.p2align 6
.amdhsa_kernel {NAME}_kernel
  .amdhsa_next_free_vgpr 512
  .amdhsa_next_free_sgpr 102
  .amdhsa_accum_offset 256
  .amdhsa_group_segment_fixed_size 0
  .amdhsa_kernarg_size 136
  .amdhsa_user_sgpr_count 2
  .amdhsa_user_sgpr_kernarg_segment_ptr 1
  .amdhsa_system_sgpr_workgroup_id_x 1
.end_amdhsa_kernel
"""
open(sys.argv[1], "w").write(out)
print("written", sys.argv[1], len(out), "bytes; hazards:", len(errs))
```

```python
import re

class Asm:
    def __init__(self):
        self.lines = []
        self.vm = []
        self.lg = []
    def e(self, s):
        for l in s.split("\n"):
            l = l.strip()
            if l: self.lines.append("    " + l if not l.endswith(":") else l)
    def c(self, s): self.lines.append("    ; " + s)
    def label(self, s): self.lines.append(s + ":")
    def raw(self, s): self.lines.append(s)
    def vmem(self, s, tag=None):
        self.e(s); self.vm.append(tag)
    def ds(self, s, tag=None):
        self.e(s); self.lg.append(tag)
    def _n(self, q, tags):
        if not isinstance(tags, (list, set)): tags = [tags]
        assert any(t in q for t in tags) or getattr(self, 'lenient', False), f'wait on tags not outstanding: {tags}'
        last = -1
        for i, t in enumerate(q):
            if t in tags: last = i
        return len(q) - 1 - last, last
    def wait_vm(self, tags, extra=""):
        n, last = self._n(self.vm, tags)
        if last < 0:
            if extra: self.e(f"s_waitcnt {extra}")
            return
        if getattr(self, "strict", False):
            n = sum(1 for t in self.vm[last + 1:] if isinstance(t, tuple) and t[0] == "st")
            self.e(f"s_waitcnt vmcnt({n})")
            self.vm = self.vm[last + 1:]
            return
        n2 = min(n, 63)
        self.e(f"s_waitcnt vmcnt({n2}) {extra}".strip())
        self.vm = self.vm[len(self.vm) - n2:] if n2 else []
    def wait_lg(self, tags=None):
        if tags is None:
            self.e("s_waitcnt lgkmcnt(0)"); self.lg = []; return
        n, last = self._n(self.lg, tags)
        if last < 0: return
        n2 = min(n, 15)
        self.e(f"s_waitcnt lgkmcnt({n2})")
        self.lg = self.lg[len(self.lg) - n2:] if n2 else []
    def wait_all(self):
        self.e("s_waitcnt vmcnt(0) lgkmcnt(0)"); self.vm = []; self.lg = []
    def wait_vm0(self):
        self.e("s_waitcnt vmcnt(0)"); self.vm = []
    def text(self): return "\n".join(self.lines) + "\n"

def R(kind, base, n=1):
    return f"{kind}{base}" if n == 1 else f"{kind}[{base}:{base+n-1}]"
def V(b, n=1): return R("v", b, n)
def A(b, n=1): return R("a", b, n)
def S(b, n=1): return R("s", b, n)

class Alloc:
    def __init__(self, lo, hi): self.lo, self.hi, self.p = lo, hi, lo; self.names = {}
    def get(self, n=1, align=None, name=None):
        al = align or (1 if n == 1 else (2 if n < 4 else 4))
        p = (self.p + al - 1) // al * al
        assert p + n <= self.hi, f"out of regs ({name})"
        self.p = p + n
        return p

_reg = re.compile(r"(-|\|)?\b([vas])(\d+)\b|(-|\|)?\b([vas])\[(\d+):(\d+)\]")
def regs_of(op):
    out = []
    for m in re.finditer(r"\b([vas])\[(\d+):(\d+)\]|\b([vas])(\d+)\b", op):
        if m.group(1): out += [(m.group(1), i) for i in range(int(m.group(2)), int(m.group(3)) + 1)]
        else: out.append((m.group(4), int(m.group(5))))
    if re.search(r"\bvcc\b", op): out += [("s", 106), ("s", 107)]
    if re.search(r"\bm0\b", op): out.append(("s", 124))
    if re.search(r"\bexec\b", op): out += [("s", 126), ("s", 127)]
    return out
TRANS = ("v_exp_f32", "v_log_f32", "v_rcp_f32", "v_rsq_f32", "v_sqrt_f32", "v_sin_f32", "v_cos_f32")
def parse(line):
    l = line.split(";")[0].strip()
    if not l or l.endswith(":") or l.startswith("."): return None
    p = l.split(None, 1)
    mn = p[0]; rest = p[1] if len(p) > 1 else ""
    ops = [o.strip() for o in re.split(r",(?![^\[]*\])", rest)]
    d = dict(mn=mn, ops=ops, text=l)
    isv = mn.startswith("v_"); mf = mn.startswith("v_mfma")
    defs, uses = [], []
    if mn.startswith("v_cmp"):
        defs = regs_of(ops[0]); uses = sum((regs_of(o) for o in ops[1:]), [])
        if mn.startswith("v_cmpx"): defs += [("s", 126), ("s", 127)]
    elif isv:
        defs = regs_of(ops[0]); uses = sum((regs_of(o.split(" ")[0]) for o in ops[1:]), [])
        if mn.startswith(("v_fmac", "v_pk_fmac", "v_dot2c")) or "_dpp" in mn or "permlane" in mn or mn.startswith("v_writelane"): uses += defs
        if "permlane" in mn and "swap" in mn: defs += regs_of(ops[1])
        if "_co_" in mn: defs += regs_of(ops[1])
        if mn.startswith("v_cndmask") and len(ops) == 3: uses += [("s", 106), ("s", 107)]
    elif mn.startswith("ds_read") or mn.startswith("ds_bperm") or mn.startswith("ds_swz"):
        defs = regs_of(ops[0]); uses = sum((regs_of(o.split(" ")[0]) for o in ops[1:]), [])
    elif mn.startswith("ds_"):
        uses = sum((regs_of(o.split(" ")[0]) for o in ops), [])
    elif mn.startswith(("buffer_load", "global_load")):
        if " lds" in l:
            uses = sum((regs_of(o.split(" ")[0]) for o in ops), []) + [("s", 124)]
        else:
            defs = regs_of(ops[0]); uses = sum((regs_of(o.split(" ")[0]) for o in ops[1:]), [])
    elif mn.startswith(("buffer_", "global_")):
        uses = sum((regs_of(o.split(" ")[0]) for o in ops), [])
    elif mn.startswith("s_"):
        if mn.startswith(("s_cmp", "s_cbranch", "s_branch", "s_waitcnt", "s_barrier", "s_nop", "s_sleep", "s_endpgm", "s_setprio")):
            uses = sum((regs_of(o) for o in ops), [])
        else:
            defs = regs_of(ops[0]); uses = sum((regs_of(o) for o in ops[1:]), [])
            if "saveexec" in mn: defs += [("s", 126), ("s", 127)]
    d.update(defs=set(defs), uses=set(uses), isv=isv, mf=mf, valu=isv and not mf,
             trans=mn.split("_e")[0] in TRANS or mn in TRANS, dpp="_dpp" in mn or "row_" in l or "quad_perm" in l,
             vmem=mn.startswith(("buffer_", "global_")), ds=mn.startswith("ds_"))
    if mf:
        d["A"] = set(regs_of(ops[1])); d["B"] = set(regs_of(ops[2])); d["C"] = set(regs_of(ops[3].split(" ")[0]))
        d["passes"] = 4 if "16x16x32" in mn else 8
    return d
def check_hazards(text):
    ins = [(i, parse(l)) for i, l in enumerate(text.split("\n"))]
    ins = [(i, d) for i, d in ins if d]
    errs = []
    for k, (ln, c) in enumerate(ins):
        dist = 0
        for b in range(k - 1, max(k - 24, -1), -1):
            pl, p = ins[b]
            need = 0
            pv = {r for r in p["defs"] if r[0] in "va"}; ps = {r for r in p["defs"] if r[0] == "s"}
            if p["valu"]:
                if c["mf"] and pv & (c["A"] | c["B"] | c["C"]): need = max(need, 2)
                if c["valu"] and c["dpp"] and pv & c["uses"]: need = max(need, 2)
                if "permlane" in c["mn"] and pv & c["uses"]: need = max(need, 2)
                if c["mn"].startswith(("v_readfirstlane", "v_readlane")) and pv & c["uses"]: need = max(need, 1)
                if p["trans"] and c["valu"] and not c["trans"] and pv & c["uses"]: need = max(need, 1)
                if p["trans"] and c["valu"] and c["trans"] and pv & c["uses"]: need = max(need, 1)
                if ps and c["vmem"] and ps & c["uses"]: need = max(need, 5)
                if ps and c["valu"] and ps & c["uses"]: need = max(need, 2)
                if ps and c["mn"].startswith(("v_readlane", "v_writelane")) and ps & c["uses"]: need = max(need, 4)
                if (("s", 126) in ps) and c["mf"]: need = max(need, 4)
                if (("s", 126) in ps) and c["dpp"]: need = max(need, 5)
            if p["mf"]:
                P = p["passes"]; full = {4: 8, 8: 12}[P]; ovl = {4: 6, 8: 10}[P]; war = {4: 3, 8: 7}[P]
                if c["mf"]:
                    if pv & (c["A"] | c["B"]): need = max(need, full)
                    if pv & c["C"] and pv != c["C"]: need = max(need, ovl)
                    if pv & c["defs"] and not (pv & c["C"]): need = max(need, ovl)
                else:
                    if pv & (c["uses"] | c["defs"]): need = max(need, full)
                    if c["valu"] and p["C"] & c["defs"]: need = max(need, war)
            if p["mn"].startswith("s_") and ("s", 124) in p["defs"] and c["vmem"] and " lds" in c["text"]: need = max(need, 1)
            if p["vmem"] and "store" in p["mn"] and ("x4" in p["mn"] or "x3" in p["mn"]):
                data = set(regs_of(p["ops"][0] if p["mn"].startswith("buffer") else p["ops"][1]))
                if data & c["defs"]: need = max(need, 2 if c["valu"] else 1)
            if need > dist:
                errs.append(f"line {ln+1}: '{c['text']}' needs {need} states after line {pl+1} '{p['text']}' (has {dist})")
            if p["mn"] == "s_nop": dist += int(p["ops"][0], 0) + 1
            else: dist += 1
    return errs
```

```python
import sys, struct
sys.path.insert(0, "dev")
from asmlib import *

NAME = "parallel_sum__ssm_conv_s5__mixer_channel_mlp__prompt"
OPT = dict(stamps=False, stop=None, nt_dma="", nt_pf="", nt_rp="", pf=1, pf0=0, pford=0)
for a_ in sys.argv[2:]:
    k_, v_ = a_.split("=", 1); OPT[k_] = eval(v_)

def f2u(x): return struct.unpack("<I", struct.pack("<f", x))[0]
def hx(x): return "0x%08x" % f2u(x)

WS_EP = 0
WS_H = 4096
WS_WP = 12 << 20
WS_E = 16 << 20
WS_RF = 17 << 20
WS_HF = (17 << 20) + 65536
WS_RS = 18 << 20
WS_ST = 20 << 20
WS_SIZE = 24 << 20
OOB = 0x4000000
L_TOK = 0; L_CH = 2048; L_PW = 7168; L_EX = 17408; L_EX2 = L_EX + 1280
L_STG = 20480; L_X = 40960; L_W = 90112; L_END = 163840
XS = 16384; WSL = 24576
L_SC = L_EX2; SCW = 384
L_WL = L_STG; WLW = 35840
NST = 10
pX, pLre, pLim, pBre, pBim, pCre, pCim, pLdt = 16, 18, 20, 22, 24, 26, 28, 30
pDsk, pBx, pW1, pB1, pW2, pB2, pOut, pDbg, pWs = 32, 34, 36, 38, 40, 42, 44, 46, 48
sW, sWR, sWC, sMT, sNT, sTYP, sHALF, sDT = 3, 4, 5, 6, 7, 8, 8, 7
sML, sI8 = 9, 10
sNonce = 11; sT0, sT1, sT2, sT3 = 12, 13, 14, 15
sKs = 50; sPF = 51
rX, rW, rWS, rT, rT2 = 52, 56, 60, 64, 68
sX, sLX, sLW, sB0, sB2, sPFs, sUnit, sRpSrc, sLR, sSpin = 72, 73, 74, 75, 76, 77, 78, 79, 80, 81
sK = 82; sEx = 84
sH, sHw, sWp, sDis = 86, 87, 88, 89
sST = 90
sRpD = 92
sWL = 97
rPF = rT2
vL, vN, vQ = 1, 2, 3
vDX0, vDX1, vXa, vXb = 4, 5, 6, 7
vDW = 8
vPF, vDR, vJunk, vNc = 10, 11, 12, 13
vWA = 14
vRA = 22
vL16 = 26
vRS = 27
vB1 = 28
vT = 40
vST = 99
ACC = 160
def acc(i, j): return ACC + (i * 4 + j) * 4
aF = [0, 40]
aONE = 80; aCS = 84

k = Asm()
k.strict = OPT.get('strict', False)
k.lenient = OPT['stamps']
stamp_n = [0]
def stamp(i=None):
    if not OPT["stamps"]: return
    if i is None:
        i = stamp_n[0]; stamp_n[0] += 1
    k.e(f"s_memrealtime s[{sST}:{sST+1}]"); k.e("s_waitcnt lgkmcnt(0)"); k.lg = []
    k.e(f"v_writelane_b32 v{vST}, s{sST}, {i}")
def srd(r, ptr, size):
    k.e(f"s_mov_b32 s{r}, s{ptr}\ns_mov_b32 s{r+1}, s{ptr+1}\ns_mov_b32 s{r+2}, {size}\ns_mov_b32 s{r+3}, 0x20000")

def lines(s):
    return [(lambda l=l: k.e(l.replace(" | ", "\n"))) for l in (x.strip() for x in s.split("\n")) if l]
def interleave(main, fill, start=0):
    n = len(main) - start; fi = 0
    for n_, m in enumerate(main):
        k.e(m)
        if n_ >= start:
            want = ((n_ - start + 1) * len(fill) + n - 1) // n if len(fill) > n else min(len(fill), n_ - start + 1)
            while fi < want: fill[fi](); fi += 1
    while fi < len(fill): fill[fi](); fi += 1
def sched(main, reads, others, start=0, rend=0.72):
    n = len(main) - start
    slots = [[] for _ in main]
    nr = max(1, int(n * rend))
    for i, f in enumerate(reads): slots[start + (i * nr) // len(reads)].append(f)
    for i, f in enumerate(others): slots[start + min(n - 1, int((i + 0.5) * n / len(others)))].append(f)
    for m, sl in zip(main, slots):
        k.e(m)
        for f in sl: f()
def merge(*ls):
    ls = [l for l in ls if l]
    if not ls: return []
    if len(ls) == 1: return list(ls[0])
    items = []
    for li, l in enumerate(ls):
        for i, f in enumerate(l): items.append(((i + 0.5) / len(l), li, i, f))
    items.sort(key=lambda x: (x[0], x[1]))
    return [x[3] for x in items]

def prologue():
    t = vT
    k.e(f"""
    s_cmp_ge_u32 s2, 256
    s_cbranch_scc1 L_end
    s_load_dwordx16 s[16:31], s[0:1], 0
    s_load_dwordx16 s[32:47], s[0:1], 64
    s_load_dwordx2 s[48:49], s[0:1], 128
    v_lshrrev_b32 v{t}, 6, v0
    v_and_b32 v{vL}, 63, v0
    v_readfirstlane_b32 s{sW}, v{t}
    v_and_b32 v{vN}, 15, v{vL}
    v_lshrrev_b32 v{vQ}, 4, v{vL}
    v_lshlrev_b32 v{vL16}, 4, v{vL}
    s_and_b32 s{sT0}, s2, 7
    s_lshr_b32 s{sT1}, s2, 3
    s_lshr_b32 s{sMT}, s{sT0}, 1
    s_lshl_b32 s{sMT}, s{sMT}, 2
    s_lshr_b32 s{sML}, s{sT1}, 3
    s_add_u32 s{sMT}, s{sMT}, s{sML}
    s_bfe_u32 s{sTYP}, s{sT1}, 0x10002
    s_and_b32 s{sI8}, s{sT1}, 7
    s_and_b32 s{sNT}, s{sT0}, 1
    s_lshl_b32 s{sNT}, s{sNT}, 2
    s_and_b32 s{sT2}, s{sT1}, 3
    s_add_u32 s{sNT}, s{sNT}, s{sT2}
    s_lshr_b32 s{sWR}, s{sW}, 1
    s_and_b32 s{sWC}, s{sW}, 1
    s_xor_b32 s{sKs}, s{sWR}, s{sWC}
    s_mov_b32 s{sSpin}, 0x40000
    s_sub_u32 s{sT2}, s2, 80
    s_cmp_lt_u32 s2, 176
    s_cselect_b32 s{sUnit}, s2, s{sT2}
    s_cselect_b32 s{sDis}, 0, {OOB}
    """)
    if OPT["stamps"]:
        k.e(f"v_mov_b32 v{vST}, 0\ns_memrealtime s[{sST}:{sST+1}]\ns_memtime s[98:99]"); stamp_n[0] = 1
    k.e(f"""
    v_lshrrev_b32 v{t}, 3, v{vL}
    v_and_b32 v{t+1}, 7, v{vL}
    v_lshrrev_b32 v{t+2}, 1, v{t}
    v_xor_b32 v{t+2}, v{t+1}, v{t+2}
    v_mul_u32_u24 v{t+3}, 5120, v{t}
    v_lshl_add_u32 v{vDX0}, v{t+2}, 4, v{t+3}
    v_xor_b32 v{vDX1}, 64, v{vDX0}
    v_add_u32 v{vDX1}, 40960, v{vDX1}
    s_lshl_b32 s{sT0}, s{sMT}, 7
    s_lshl_b32 s{sT1}, s{sWR}, 6
    s_add_u32 s{sT0}, s{sT0}, s{sT1}
    s_lshl_b32 s{sT1}, s{sWC}, 1
    s_add_u32 s{sT0}, s{sT0}, s{sT1}
    s_mul_i32 s{sX}, s{sT0}, 1280
    s_lshl_b32 s{sLX}, s{sW}, 12
    s_lshl_b32 s{sT2}, s{sKs}, 2
    v_add_u32 v{t+4}, s{sT2}, v{vQ}
    v_lshrrev_b32 v{t+5}, 1, v{vN}
    v_xor_b32 v{t+5}, v{t+4}, v{t+5}
    v_lshlrev_b32 v{t+5}, 4, v{t+5}
    v_lshl_add_u32 v{t+5}, v{vN}, 7, v{t+5}
    s_lshl_b32 s{sT1}, s{sWC}, 13
    s_add_u32 s{sT1}, s{sT1}, {L_X}
    v_add_u32 v{vXa}, s{sT1}, v{t+5}
    v_xor_b32 v{vXb}, 64, v{vXa}
    s_cmp_eq_u32 s{sTYP}, 1
    s_cbranch_scc1 L_mlp
    """)

def dma(vo, rs, so, imm, sl, tgt, tag, fl, pre=None):
    def f():
        k.e(f"s_add_u32 m0, s{sl}, {tgt - imm}")
        k.e(pre or "s_nop 0")
        k.vmem(f"buffer_load_dwordx4 v{vo}, s[{rs}:{rs+3}], s{so} offen offset:{imm} {fl} lds", tag)
    return f
def dma_x(stage, g):
    return dma(vDX0 + (g & 1), rX, sX, (g >> 1) * 1280 + stage * 128, sLX, L_X + (stage % 3) * XS + g * 1024, ("st", stage), OPT["nt_dma"])
def dma_w(typ, stage, g):
    base = L_W + (stage % 3) * WSL
    if typ == "mlp":
        rg, cg = g // 3, g % 3
        so = sB2 if rg else sB0
        pre = f"s_add_u32 s{so}, s{so}, {64*3072}" if (cg == 0 and stage > 0) else None
        return dma(vDW + rg, rW, so, cg * 128, sLW, base + cg * 8192 + rg * 1024, ("st", stage), OPT["nt_dma"], pre)
    imm = stage * 128 + (2560 if (g < 4 and g & 1) else 0)
    return dma(vDW + (1 if g == 4 else 0), rW, sB2 if g in (2, 3) else sB0, imm, sLW, base + g * 2048, ("st", stage), OPT["nt_dma"])
def dma_stage(typ, stage):
    nw = 6 if typ == "mlp" else 5
    return merge([dma_x(stage, g) for g in range(4)], [dma_w(typ, stage, g) for g in range(nw)])
def pf(a):
    def f():
        if not OPT["pf"]: return
        k.vmem(f"buffer_load_dword v{vJunk}, v{vPF}, s[{rPF}:{rPF+3}], s{sPF} offen {OPT['nt_pf']}", "pf")
        k.e(f"s_add_u32 s{sPF}, s{sPF}, s{sPFs}")
    return f

def frag_reads(typ, stage, blk, fs):
    slot = stage % 3
    nr = 6 if typ == "mlp" else 5
    vx = vXa if blk == 0 else vXb
    xr = [(lambda j=j: k.ds(f"ds_read_b128 {A(aF[fs] + 24 + 4*j, 4)}, v{vx} offset:{slot*XS + j*2048}")) for j in range(4)]
    wr_ = []
    for i in range(nr):
        if typ == "mlp":
            for h in range(2):
                wr_.append(lambda i=i, h=h: k.ds(f"ds_read_b64_tr_b16 {A(aF[fs] + 4*i + 2*h, 2)}, v{vWA + blk*4 + (i & 3)} offset:{slot*WSL + (i >> 2)*8192 + h*512}"))
        else:
            wr_.append(lambda i=i: k.ds(f"ds_read_b128 {A(aF[fs] + 4*i, 4)}, v{vWA + blk} offset:{slot*WSL + i*2048}"))
    return merge(xr, wr_)

def mfmas(typ, stage, blk, fs):
    nr = 6 if typ == "mlp" else 5
    first = stage == 0
    out = []
    Af = lambda i: A(aF[fs] + 4*i, 4)
    Bf = lambda j: A(aF[fs] + 24 + 4*j, 4)
    for i in range(nr):
        for j in range(4):
            c = "0" if (first and blk == 0) else V(acc(i, j), 4)
            out.append(f"v_mfma_f32_16x16x32_bf16 {V(acc(i,j),4)}, {Af(i)}, {Bf(j)}, {c}")
    if blk == 1:
        for i in range(nr):
            out.append(f"v_mfma_f32_16x16x32_bf16 {A(aCS+4*i,4)}, {Af(i)}, {A(aONE,4)}, {'0' if first else A(aCS+4*i,4)}")
    if OPT.get("nomfma"): return out[:2]
    return out

XR = 124
def start_loads(typ):
    t = vT
    k.e("s_waitcnt lgkmcnt(0)")
    if OPT["stamps"]: k.e(f"v_writelane_b32 v{vST}, s{sST}, 0")
    stamp(12)
    k.e(f"""
    s_or_b32 s{sT0}, s2, s{sW}
    s_cmp_lg_u32 s{sT0}, 0
    s_cbranch_scc1 L_nononce_{typ}
    s_memrealtime s[{sT0}:{sT1}]
    s_waitcnt lgkmcnt(0)
    s_or_b32 s{sT0}, s{sT0}, 1
    v_mov_b32 v{t+8}, s{sT0}
    v_mov_b32 v{t+9}, 0
    global_store_dword v{t+9}, v{t+8}, s[{pDbg}:{pDbg+1}] sc1
    L_nononce_{typ}:
    """)
    srd(rX, pX, 2048 * 1280)
    if typ == "mlp": srd(rW, pW1, 640 * 3072)
    else:
        k.e(f"""
        s_cmp_eq_u32 s{sWC}, 0
        s_cselect_b32 s{rW}, s{pBre}, s{pBim}
        s_cselect_b32 s{rW+1}, s{pBre+1}, s{pBim+1}
        s_mov_b32 s{rW+2}, {640*1280}
        s_mov_b32 s{rW+3}, 0x20000
        """)
    k.e(f"""
    s_cmp_eq_u32 s{sW}, 3
    s_cselect_b32 s{rPF}, s{rX}, s{rW}
    s_cselect_b32 s{rPF+1}, s{rX+1}, s{rW+1}
    s_cselect_b32 s{rPF+2}, s{rX+2}, s{rW+2}
    s_mov_b32 s{rPF+3}, 0x20000
    """)
    if OPT["pford"] == 1: pf(0)()
    for f in dma_stage(typ, 0): f()
    stamp(13)
    srd(rWS, pWs, WS_SIZE)
def second_loads(typ):
    t = vT
    k.e(f"""
    s_lshl_b32 s{sT0}, s{sTYP}, 3
    s_add_u32 s{sT0}, s{sT0}, s{sNT}
    s_lshl_b32 s{sT0}, s{sT0}, 2
    s_add_u32 s{sT0}, s{sT0}, s{sW}
    s_lshl_b32 s{sT0}, s{sT0}, 1
    s_lshl_b32 s{sT1}, s{sMT}, 7
    s_add_u32 s{sHw}, s{sT0}, s{sT1}
    s_mul_i32 s{sT0}, s{sHw}, 1280
    v_lshrrev_b32 v{t+8}, 5, v{vL}
    v_mul_u32_u24 v{t+8}, 1280, v{t+8}
    v_and_b32 v{t+9}, 31, v{vL}
    v_lshl_add_u32 v{t+8}, v{t+9}, 3, v{t+8}
    """)
    stamp(15)
    if OPT["pford"] == 0: pf(0)()
    if OPT["pford"] == 1: pf(1)()
    for i in range(5): k.vmem(f"buffer_load_dwordx2 {V(XR+2*i,2)}, v{t+8}, s[{rX}:{rX+3}], s{sT0} offen offset:{256*i} {OPT['nt_dma']}", "xr")
    for f in dma_stage(typ, 1): f()
    if OPT["pford"] == 0: pf(1)()
    stamp(14)

def pf_setup(typ):
    t = vT + 10
    k.e(f"""
    v_mul_u32_u24 v{t}, 52, v{vL}
    v_lshrrev_b32 v{t}, 10, v{t}
    v_mul_u32_u24 v{t+1}, 20, v{t}
    v_sub_u32 v{t+1}, v{vL}, v{t+1}
    s_lshl_b32 s{sT0}, s{sMT}, 7
    s_lshl_b32 s{sT1}, s{sI8}, 4
    s_add_u32 s{sT0}, s{sT0}, s{sT1}
    s_mul_i32 s{sT0}, s{sT0}, 1280
    s_add_u32 s{sT0}, s{sT0}, {128*OPT['pf0']}
    """)
    if typ == "mlp":
        k.e(f"""
        s_lshl_b32 s{sT1}, s{sML}, 4
        s_add_u32 s{sT1}, s{sT1}, {64*OPT['pf0']}
        s_mul_i32 s{sT1}, s{sT1}, 3072
        s_mul_i32 s{sT2}, s{sNT}, 384
        s_add_u32 s{sT1}, s{sT1}, s{sT2}
        s_lshl_b32 s{sT2}, s{sW}, 7
        s_add_u32 s{sT1}, s{sT1}, s{sT2}
        s_cmp_eq_u32 s{sW}, 3
        s_cselect_b32 s{sPF}, s{sT0}, s{sT1}
        s_mov_b32 s{sT2}, {64*3072}
        s_cselect_b32 s{sT2}, 128, s{sT2}
        s_mov_b32 s{sT3}, 3072
        s_cselect_b32 s{sT3}, 1280, s{sT3}
        s_mov_b32 s{sT0}, 16
        """)
    else:
        k.e(f"""
        s_mul_i32 s{sT1}, s{sNT}, 80
        s_mul_i32 s{sT2}, s{sML}, 20
        s_add_u32 s{sT1}, s{sT1}, s{sT2}
        s_mul_i32 s{sT1}, s{sT1}, 1280
        s_add_u32 s{sT1}, s{sT1}, {128*OPT['pf0']}
        s_cmp_eq_u32 s{sW}, 3
        s_cselect_b32 s{sPF}, s{sT0}, s{sT1}
        s_cselect_b32 s{sT0}, 16, 20
        s_cmp_eq_u32 s{sW}, 2
        s_cselect_b32 s{sT0}, 0, s{sT0}
        s_mov_b32 s{sT2}, 128
        s_mov_b32 s{sT3}, 1280
        """)
    k.e(f"""
    s_mul_i32 s{sPFs}, s{sT2}, 3
    v_mul_lo_u32 v{vPF}, v{t}, s{sT2}
    v_mul_lo_u32 v{t+2}, v{t+1}, s{sT3}
    v_add_u32 v{vPF}, v{vPF}, v{t+2}
    v_cmp_gt_u32 vcc, s{sT0}, v{t+1}
    v_cmp_gt_u32 s[{sT2}:{sT3}], 60, v{vL}
    s_and_b64 vcc, vcc, s[{sT2}:{sT3}]
    v_mov_b32 v{t+2}, {OOB}
    s_nop 0
    v_cndmask_b32 v{vPF}, v{t+2}, v{vPF}, vcc
    """)

def repack_setup(tag):
    t = vT
    k.e(f"""
    v_lshrrev_b32 v{t}, 3, v{vL}
    v_and_b32 v{t+1}, 7, v{vL}
    v_mul_u32_u24 v{t}, 1280, v{t}
    v_lshl_add_u32 v{t}, v{t+1}, 4, v{t}
    v_or_b32 v{vDR}, s{sDis}, v{t}
    v_or_b32 v{vRS}, s{sDis}, v{vL16}
    s_lshl_b32 s{sLR}, s{sW}, 10
    s_and_b32 s{sT0}, s{sUnit}, 1
    s_lshr_b32 s{sT1}, s{sUnit}, 1
    s_mov_b32 s{rT+3}, 0x20000
    s_cmp_lt_u32 s{sUnit}, 96
    s_cbranch_scc0 L_rpC_{tag}
    s_mov_b32 s{rT}, s{pW2}
    s_mov_b32 s{rT+1}, s{pW2+1}
    s_mov_b32 s{rT+2}, {1536*1280}
    s_lshl_b32 s{sT2}, s{sT1}, 2
    s_add_u32 s{sT2}, s{sT2}, s{sW}
    s_mul_i32 s{sRpSrc}, s{sT2}, {8*1280}
    s_mul_i32 s{sT2}, s{sT1}, 5462
    s_lshr_b32 s{sT2}, s{sT2}, 16
    s_mul_i32 s{sT2}, s{sT2}, 10
    s_add_u32 s{sT1}, s{sT1}, s{sT2}
    s_mul_i32 s{sT1}, s{sT1}, 5120
    s_add_u32 s{sT1}, s{sT1}, {WS_WP}
    s_mul_i32 s{sT2}, s{sT0}, 20
    s_add_u32 s{sT2}, s{sT2}, s{sW}
    """)
    for i in range(5):
        k.e(f"""
        s_mul_i32 s{sT3}, s{sT2}, 13108
        s_lshr_b32 s{sT3}, s{sT3}, 16
        s_mul_i32 s{sT3}, s{sT3}, 435
        s_add_u32 s{sT3}, s{sT3}, s{sT2}
        s_lshl_b32 s{sT3}, s{sT3}, 10
        s_add_u32 s{sRpD+i}, s{sT3}, s{sT1}
        s_add_u32 s{sT2}, s{sT2}, 4
        """)
    k.e(f"""
    v_lshrrev_b32 v{t}, 2, v{vN}
    v_lshl_add_u32 v{t}, v{vQ}, 2, v{t}
    v_lshlrev_b32 v{t}, 7, v{t}
    v_and_b32 v{t+1}, 3, v{vN}
    v_lshl_add_u32 v{t}, v{t+1}, 3, v{t}
    s_lshl_b32 s{sT2}, s{sW}, 5
    s_add_u32 s{sT2}, s{sT2}, {L_STG}
    v_add_u32 v{vRA}, s{sT2}, v{t}
    s_branch L_rpJ_{tag}
    L_rpC_{tag}:
    s_sub_u32 s{sT1}, s{sT1}, 48
    s_cmp_eq_u32 s{sWR}, 0
    s_cselect_b32 s{rT}, s{pCre}, s{pCim}
    s_cselect_b32 s{rT+1}, s{pCre+1}, s{pCim+1}
    s_mov_b32 s{rT+2}, {640*1280}
    s_lshl_b32 s{sT2}, s{sT1}, 1
    s_add_u32 s{sT2}, s{sT2}, s{sWC}
    s_mul_i32 s{sRpSrc}, s{sT2}, {8*1280}
    s_mul_i32 s{sT2}, s{sT1}, 13108
    s_lshr_b32 s{sT2}, s{sT2}, 16
    s_mul_i32 s{sT2}, s{sT2}, 435
    s_add_u32 s{sT1}, s{sT1}, s{sT2}
    s_lshl_b32 s{sT2}, s{sT0}, 1
    s_add_u32 s{sT2}, s{sT2}, s{sWR}
    s_mul_i32 s{sT2}, s{sT2}, 110
    s_add_u32 s{sT1}, s{sT1}, s{sT2}
    s_mul_i32 s{sT2}, s{sWC}, 25
    s_add_u32 s{sT1}, s{sT1}, s{sT2}
    s_add_u32 s{sT1}, s{sT1}, 60
    s_lshl_b32 s{sT1}, s{sT1}, 10
    s_add_u32 s{sRpD}, s{sT1}, {WS_WP}
    s_add_u32 s{sRpD+1}, s{sRpD}, 5120
    s_add_u32 s{sRpD+2}, s{sRpD}, 10240
    s_add_u32 s{sRpD+3}, s{sRpD}, 15360
    s_add_u32 s{sRpD+4}, s{sRpD}, 20480
    s_mul_i32 s{sT2}, s{sW}, 160
    v_lshlrev_b32 v{t+2}, 7, v{vN}
    v_add_u32 v{t+2}, {L_STG}, v{t+2}
    """)
    for x, (off, sh) in enumerate(((0, 4), (80, 4), (64, 2), (144, 2))):
        k.e(f"""
        s_add_u32 s{sT3}, s{sT2}, {off}
        v_lshl_add_u32 v{t}, v{vQ}, {sh}, s{sT3}
        v_lshrrev_b32 v{t+1}, 7, v{t}
        v_and_b32 v{t}, 127, v{t}
        v_lshl_add_u32 v{t}, v{t+1}, 12, v{t}
        v_add_u32 v{vRA+x}, v{t}, v{t+2}
        """)
    k.e(f"""
    L_rpJ_{tag}:
    s_mul_i32 s{sT0}, s{sT0}, 640
    s_add_u32 s{sRpSrc}, s{sRpSrc}, s{sT0}
    """)
def repack_dma():
    return [dma(vDR, rT, sRpSrc, g * 128, sLR, L_STG + g * 4096, "rp", OPT["nt_rp"]) for g in range(5)]
RP = 136
def repack_read(tag):
    def f():
        s = f"s_cmp_lt_u32 s{sUnit}, 96\ns_cbranch_scc0 L_rqC_{tag}\n"
        for i in range(5):
            for h in range(2): s += f"ds_read_b64_tr_b16 {V(RP+4*i+2*h,2)}, v{vRA} offset:{i*4096 + h*2048}\n"
        s += f"""s_branch L_rqJ_{tag}
        L_rqC_{tag}:
        ds_read_b128 {V(RP,4)}, v{vRA}
        ds_read_b128 {V(RP+4,4)}, v{vRA} offset:2048
        ds_read_b128 {V(RP+8,4)}, v{vRA+1}
        ds_read_b128 {V(RP+12,4)}, v{vRA+1} offset:2048
        ds_read_b32 v{RP+16}, v{vRA+2}
        ds_read_b32 v{RP+17}, v{vRA+2} offset:2048
        ds_read_b32 v{RP+18}, v{vRA+3}
        ds_read_b32 v{RP+19}, v{vRA+3} offset:2048
        L_rqJ_{tag}:
        """
        k.e(s)
    return [f]
def repack_store():
    return [(lambda i=i: k.vmem(f"buffer_store_dwordx4 {V(RP+4*i,4)}, v{vRS}, s[{rWS}:{rWS+3}], s{sRpD+i} offen sc1", "rps")) for i in range(5)]
def repack_flag():
    t = vT
    fl = lines(f"""
    v_mov_b32 v{t}, s{sNonce}
    v_mov_b32 v{t+1}, s{sNonce}
    s_lshl_b32 s{sT0}, s2, 7
    s_add_u32 s{sT0}, s{sT0}, {WS_RF}
    s_cmp_eq_u32 s{sW}, 0 | s_cselect_b32 s{sT1}, s{sDis}, {OOB}
    v_lshlrev_b32 v{t+2}, 26, v{vL}
    v_or_b32 v{t+2}, s{sT1}, v{t+2}
    """)
    return fl + [lambda: k.vmem(f"buffer_store_dwordx2 {V(t,2)}, v{t+2}, s[{rWS}:{rWS+3}], s{sT0} offen sc1", "rf")]

def bfr(d, s): return f"v_cvt_pk_bf16_f32 v{d}, v{s}, v{s}\nv_and_b32 v{d}, 0xffff0000, v{d}\n"
def nonce_load():
    return lines(f"v_mov_b32 v{vNc}, 0") + [lambda: k.vmem(f"global_load_dword v{vNc}, v{vNc}, s[{pDbg}:{pDbg+1}] sc1", "nc")]
def rowstat_job(tag):
    t = vT + 20
    S_, Q, MEAN, VAR, S1, X, Y = t, t+1, t+2, t+3, t+4, t+5, t+6
    G0, G1 = t+8, t+12
    M1, A1, A2, AM = G0, G0+2, G1, G1+2
    def dots():
        k.wait_vm("xr")
        s = f"v_mov_b32 v{X}, 0x3f803f80\nv_mov_b32 v{S_}, 0\nv_mov_b32 v{Q}, 0\n"
        for i in range(10): s += f"v_dot2c_f32_bf16 v{S_}, v{XR+i}, v{X}\nv_dot2c_f32_bf16 v{Q}, v{XR+i}, v{XR+i}\n"
        s += "s_nop 2\n"
        k.e(s)
    fl = [dots]
    for d in ("row_shr:1", "row_shr:2", "row_shr:4", "row_shr:8", "row_bcast:15"):
        rm = "0xa" if "bcast" in d else "0xf"
        fl.append(lambda d=d, rm=rm: k.e(f"v_add_f32_dpp v{S_}, v{S_}, v{S_} {d} row_mask:{rm} bank_mask:0xf bound_ctrl:0\nv_add_f32_dpp v{Q}, v{Q}, v{Q} {d} row_mask:{rm} bank_mask:0xf bound_ctrl:0"))
        fl.append(lambda: k.e("s_nop 0"))
    fl += lines(f"""
    v_mul_f32 v{MEAN}, {hx(1/640)}, v{S_}
    v_mul_f32 v{VAR}, {hx(1/640)}, v{Q}
    v_fma_f32 v{VAR}, -v{MEAN}, v{MEAN}, v{VAR}
    v_max_f32 v{VAR}, 0, v{VAR}
    {bfr(M1, MEAN)}{bfr(X, VAR)}
    v_add_f32 v{X}, {hx(1e-5)}, v{X}
    {bfr(X, X)}
    v_sqrt_f32 v{X}, v{X}
    v_sub_f32 v{Y}, v{MEAN}, v{M1}
    {bfr(S1, X)}
    v_rcp_f32 v{A1}, v{S1}
    s_nop 0
    v_mul_f32 v{Y}, v{Y}, v{A1}
    v_mul_f32 v{X}, v{VAR}, v{A1}
    {bfr(Y, Y)}
    v_mul_f32 v{X}, v{X}, v{A1}
    {bfr(X, X)}
    v_add_f32 v{X}, {hx(1e-5)}, v{X}
    {bfr(X, X)}
    v_sqrt_f32 v{X}, v{X}
    v_fma_f32 v{Y}, v{Y}, v{S1}, v{M1}
    {bfr(X, X)}
    v_mul_f32 v{X}, v{X}, v{S1}
    v_rcp_f32 v{A2}, v{X}
    v_and_b32 v{X}, 31, v{vL}
    v_mul_f32 v{AM}, v{A2}, v{Y}
    v_cmp_eq_u32 vcc, 31, v{X}
    v_and_b32 v{X}, 32, v{vL}
    v_mov_b32 v{Y}, {OOB}
    s_lshl_b32 s{sT0}, s{sHw}, 5
    v_cndmask_b32 v{X}, v{Y}, v{X}, vcc
    s_add_u32 s{sT0}, s{sT0}, {WS_RS}
    """)
    def nonce():
        k.wait_vm("nc")
        k.e(f"""
        v_readfirstlane_b32 s{sNonce}, v{vNc}
        s_cmp_lg_u32 s{sNonce}, 0
        s_cbranch_scc1 L_ncok_{tag}
        L_ncl_{tag}:
        s_sleep 1
        global_load_dword v{vNc}, v{Y}, s[{pDbg}:{pDbg+1}] sc1
        s_sub_u32 s{sSpin}, s{sSpin}, 1
        s_cbranch_scc1 L_end
        s_waitcnt vmcnt(0)
        v_readfirstlane_b32 s{sNonce}, v{vNc}
        s_cmp_eq_u32 s{sNonce}, 0
        s_cbranch_scc1 L_ncl_{tag}
        L_ncok_{tag}:
        s_nop 0
        """)
    fl += lines(f"v_mov_b32 v{Y}, 0") + [nonce]
    fl += lines(f"""
    v_mov_b32 v{G0+1}, s{sNonce}
    v_mov_b32 v{G0+3}, s{sNonce}
    v_mov_b32 v{G1+1}, s{sNonce}
    v_mov_b32 v{G1+3}, s{sNonce}
    """)
    fl.append(lambda: k.vmem(f"buffer_store_dwordx4 {V(G0,4)}, v{X}, s[{rWS}:{rWS+3}], s{sT0} offen sc1", "rs"))
    fl.append(lambda: k.vmem(f"buffer_store_dwordx4 {V(G1,4)}, v{X}, s[{rWS}:{rWS+3}], s{sT0} offen offset:16 sc1", "rs"))
    return fl
RSV = 124
def rowstat_fetch():
    fl = lines(f"""
    s_lshl_b32 s{sT0}, s{sMT}, 12
    s_add_u32 s{sT0}, s{sT0}, {WS_RS}
    v_lshlrev_b32 v{RSV+4}, 4, v0
    v_add_u32 v{RSV+4}, s{sT0}, v{RSV+4}
    """)
    return fl + [lambda: k.vmem(f"buffer_load_dwordx4 {V(RSV,4)}, v{RSV+4}, s[{rWS}:{rWS+3}], 0 offen sc1", "rsv")]

def main_loop(typ, jobs):
    k.wait_vm(("st", 0)); k.e("s_barrier")
    stamp()
    for f in frag_reads(typ, 0, 0, 0): f()
    for s in range(NST):
        k.wait_lg()
        fill = frag_reads(typ, s, 1, 1)
        d = []
        if s == 0: d = dma_stage(typ, 2)
        elif s + 2 < NST: d = dma_stage(typ, s + 2)[5:]
        sched(mfmas(typ, s, 0, 0), fill, merge(d, jobs.get((s, 0), [])))
        k.wait_lg()
        m = mfmas(typ, s, 1, 1)
        k.e(m[0]); k.e(m[1])
        if s + 1 < NST:
            if OPT.get("fine"): stamp(16 + 3*s)
            k.wait_vm([("st", s + 1)] + jobs.get(("wait", s), []))
            if OPT.get("fine"): stamp(17 + 3*s)
            k.e("s_barrier")
            fill = frag_reads(typ, s + 1, 0, 0)
            d = dma_stage(typ, s + 3)[:5] if s + 3 < NST else []
            sched(m[2:], fill, merge(d, jobs.get((s, 1), [])))
        else:
            interleave(m[2:], jobs.get((s, 1), []))
    stamp()
    if OPT["stop"] == "loop": k.e("s_branch L_fin")

WSLOT = [("a", 108 + 20*x) for x in range(7)] + [("a", 20*x) for x in range(5)] + [("v", 100 + 20*x) for x in range(3)]
NREG = 15
def wload(tk):
    kind, base = WSLOT[tk]
    def mk(i):
        def f():
            if i == 0: k.e(f"s_add_u32 s{sT2}, s{sWp}, {tk*5120}")
            if i == 4: k.e(f"s_add_u32 s{sT2}, s{sT2}, 4096")
            k.vmem(f"buffer_load_dwordx4 {R(kind, base+4*i, 4)}, v{vL16}, s[{rWS}:{rWS+3}], s{sT2} offen offset:{(i & 3)*1024} sc1", ("w", tk))
        return f
    return [mk(i) for i in range(5)]
def wdma():
    def mk(x):
        def f():
            k.e(f"s_add_u32 m0, s{sWL}, {(x & ~3)*1024}")
            k.e(f"s_add_u32 s{sT3}, s{sWp}, {NREG*5120 + (x & ~3)*1024}")
            k.vmem(f"buffer_load_dwordx4 v{vL16}, s[{rWS}:{rWS+3}], s{sT3} offen offset:{(x & 3)*1024} sc1 lds", "wl")
        return f
    return [mk(x) for x in range(35)]
RFV = 134
def rflag_fetch():
    vF, vFd = RFV, RFV + 2
    fl = lines(f"""
    v_min_u32 v{vF}, 16, v{vL}
    s_mul_i32 s{sT0}, s{sW}, 24
    s_lshr_b32 s{sT1}, s{sDT}, 2
    s_add_u32 s{sT0}, s{sT0}, s{sT1}
    s_mul_i32 s{sT1}, s{sDT}, 10
    s_add_u32 s{sT1}, s{sT1}, {96 - 24}
    s_add_u32 s{sT1}, s{sT1}, s{sWR}
    v_cmp_gt_u32 vcc, 12, v{vF}
    v_mov_b32 v{vFd}, s{sT1}
    v_mov_b32 v{vFd+1}, s{sT0}
    v_cndmask_b32 v{vFd}, v{vFd}, v{vFd+1}, vcc
    v_lshl_add_u32 v{vF}, v{vF}, 1, v{vFd}
    v_lshlrev_b32 v{vF}, 7, v{vF}
    v_add_u32 v{vF}, {WS_RF}, v{vF}
    s_mul_i32 s{sWp}, s{sDT}, 88
    s_mul_i32 s{sT0}, s{sW}, 22
    s_add_u32 s{sWp}, s{sWp}, s{sT0}
    s_mul_i32 s{sWp}, s{sWp}, 5120
    s_add_u32 s{sWp}, s{sWp}, {WS_WP}
    s_mul_i32 s{sWL}, s{sW}, {WLW}
    s_add_u32 s{sWL}, s{sWL}, {L_WL}
    """)
    return fl + [lambda: k.vmem(f"buffer_load_dwordx2 {V(vFd,2)}, v{vF}, s[{rWS}:{rWS+3}], 0 offen sc1", "rfv")]
def check(tag, vaddr, vd, width=2, second=1):
    k.e(f"""
    L_chk_{tag}:
    v_cmp_ne_u32 vcc, s{sNonce}, v{vd + (1 if width == 4 else 0)}
    v_cmp_ne_u32 s[{sT0}:{sT1}], s{sNonce}, v{vd + (3 if width == 4 else 1)}
    s_or_b64 vcc, vcc, s[{sT0}:{sT1}]
    s_cmp_eq_u64 vcc, 0
    s_cbranch_scc1 L_chkok_{tag}
    s_sub_u32 s{sSpin}, s{sSpin}, 1
    s_cbranch_scc1 L_end
    buffer_load_dwordx{width} {V(vd,width)}, v{vaddr}, s[{rWS}:{rWS+3}], 0 offen sc1
    s_waitcnt vmcnt(0)
    s_branch L_chk_{tag}
    L_chkok_{tag}:
    """)
def common_jobs(typ):
    j = {}
    rj = rowstat_job(typ)
    j[(0, 0)] = nonce_load() + rj[:11]
    j[(0, 1)] = rj[11:36]
    j[(1, 0)] = rj[36:] + [pf(2)]
    if OPT["pf0"] == 0: j[(2, 1)] = [pf(3)]
    j[(1, 1)] = repack_dma()
    j[("wait", 3)] = ["rp"]
    j[(3, 1)] = repack_read(typ)
    st = repack_store()
    j[(4, 0)] = st[:2]; j[(4, 1)] = st[2:]
    j[("wait", 6)] = ["rps"]
    j[(6, 1)] = repack_flag()
    j[(8, 0)] = rowstat_fetch()
    j[(8, 1)] = rflag_fetch()
    def chk():
        k.wait_vm("rfv"); check("rf_" + typ, RFV, RFV + 2)
    w = sum((wload(tk) for tk in range(7)), [])
    j[(9, 0)] = [chk] + w[:15]
    j[(9, 1)] = w[15:]
    return j

def stats(typ):
    nr = 6 if typ == "mlp" else 5
    t = vT
    CS = t + 24
    k.e(f"""
    s_mul_i32 s{sT0}, s{sW}, {SCW}
    s_add_u32 s{sT0}, s{sT0}, {L_SC}
    v_lshlrev_b32 v{t+4}, 4, v{vQ}
    v_add_u32 v{t}, s{sT0}, v{t+4}
    s_mul_i32 s{sT0}, s{sWR}, {2*SCW}
    s_add_u32 s{sT0}, s{sT0}, {L_SC}
    v_add_u32 v{t+4}, s{sT0}, v{t+4}
    s_lshl_b32 s{sT0}, s{sWC}, 10
    v_lshlrev_b32 v{t+5}, 6, v{vN}
    v_add_u32 v{t+5}, s{sT0}, v{t+5}
    v_lshlrev_b32 v{t+1}, 3, v0
    """)
    k.lenient = True; k.wait_vm("rsv"); k.lenient = OPT['stamps']
    check("rs_" + typ, RSV + 4, RSV, 4)
    k.ds(f"ds_write2_b32 v{t+1}, v{RSV}, v{RSV+2} offset0:{L_TOK//4} offset1:{L_TOK//4+1}")
    k.e("s_mov_b32 exec_lo, 0x00010001\ns_mov_b32 exec_hi, 0x00010001")
    for i in range(nr): k.ds(f"ds_write_b128 v{t}, {A(aCS+4*i,4)} offset:{i*64}")
    k.e("s_mov_b64 exec, -1")
    k.wait_lg(); k.e("s_barrier")
    TK = t + 8
    P2 = 100
    for j in range(4): k.ds(f"ds_read_b128 {V(TK+4*j,4)}, v{t+5} offset:{L_TOK + j*16}")
    for i in range(nr):
        k.ds(f"ds_read_b128 {V(CS+4*i,4)}, v{t+4} offset:{i*64}", ("cs", i))
        k.ds(f"ds_read_b128 {V(P2+4*i,4)}, v{t+4} offset:{SCW+i*64}", ("cs", i))
    return TK, CS, P2
def stats_sum(typ, CS, P2):
    for i in range(6 if typ == "mlp" else 5):
        k.wait_lg(("cs", i))
        for h in range(2):
            k.e(f"v_pk_add_f32 {V(CS+4*i+2*h,2)}, {V(CS+4*i+2*h,2)}, {V(P2+4*i+2*h,2)}")

class Feeder:
    def __init__(self, jobs, every): self.jobs, self.every, self.n = list(jobs), every, 0
    def tick(self, n=1):
        self.n += n
        while self.n >= self.every and self.jobs:
            self.n -= self.every; self.jobs.pop(0)()
    def flush(self):
        while self.jobs: self.jobs.pop(0)()

def h_base():
    k.e(f"""
    s_lshl_b32 s{sT0}, s{sMT}, 1
    s_add_u32 s{sT0}, s{sT0}, s{sWC}
    s_mul_i32 s{sH}, s{sT0}, {88*4096}
    s_add_u32 s{sH}, s{sH}, {WS_H}
    s_lshr_b32 s{sT0}, s{sNT}, 1
    s_mul_i32 s{sT0}, s{sT0}, 22
    s_and_b32 s{sT1}, s{sNT}, 1
    """)
def h_flag():
    t = vT
    k.e(f"""
    s_lshl_b32 s{sT0}, s{sMT}, 4
    s_lshl_b32 s{sT1}, s{sTYP}, 3
    s_add_u32 s{sT0}, s{sT0}, s{sT1}
    s_add_u32 s{sT0}, s{sT0}, s{sNT}
    s_lshl_b32 s{sT0}, s{sT0}, 7
    s_lshl_b32 s{sT1}, s{sW}, 4
    s_add_u32 s{sT0}, s{sT0}, s{sT1}
    s_add_u32 s{sT0}, s{sT0}, {WS_HF}
    v_mov_b32 v{t}, s{sNonce}
    v_mov_b32 v{t+1}, s{sNonce}
    v_lshlrev_b32 v{t+2}, 26, v{vL}
    """)
    k.wait_vm("h")
    k.vmem(f"buffer_store_dwordx2 {V(t,2)}, v{t+2}, s[{rWS}:{rWS+3}], s{sT0} offen sc1", "hf")

def ones():
    k.e(f"v_mov_b32 v{vT+6}, 0x3f803f80")
    for i in range(4): k.e(f"v_accvgpr_write_b32 a{aONE+i}, v{vT+6}")

def path_mlp():
    typ = "mlp"; t = vT
    k.label("L_mlp")
    k.vm = []; k.lg = []
    k.e(f"""
    v_and_b32 v{t+2}, 2, v{t}
    v_xor_b32 v{t+2}, v{t+1}, v{t+2}
    v_mul_u32_u24 v{t+3}, 3072, v{t}
    v_lshl_add_u32 v{vDW}, v{t+2}, 4, v{t+3}
    v_xor_b32 v{vDW+1}, 64, v{vDW}
    s_mul_i32 s{sB0}, s{sW}, {16*3072}
    s_mul_i32 s{sT0}, s{sNT}, 384
    s_add_u32 s{sB0}, s{sB0}, s{sT0}
    s_add_u32 s{sB2}, s{sB0}, {8*3072}
    s_lshl_b32 s{sLW}, s{sW}, 11
    """)
    pf_setup(typ)
    start_loads(typ)
    k.e(f"""
    v_lshrrev_b32 v{t}, 2, v{vN}
    v_lshl_add_u32 v{t+1}, v{vQ}, 3, v{t}
    v_lshlrev_b32 v{t+1}, 7, v{t+1}
    v_and_b32 v{t+2}, 3, v{vN}
    v_lshl_add_u32 v{t+1}, v{t+2}, 3, v{t+1}
    v_lshrrev_b32 v{t}, 1, v{t}
    v_and_b32 v{t+2}, 1, v{vQ}
    v_lshl_add_u32 v{t}, v{t+2}, 1, v{t}
    s_lshl_b32 s{sT0}, s{sKs}, 12
    s_add_u32 s{sT0}, s{sT0}, {L_W}
    v_add_u32 v{t+1}, s{sT0}, v{t+1}
    s_mul_i32 s{sT2}, s{sWR}, 6
    """)
    for i in range(4):
        k.e(f"""
        s_add_u32 s{sT3}, s{sT2}, {i}
        s_lshr_b32 s{sT0}, s{sT3}, 2
        s_lshl_b32 s{sT0}, s{sT0}, 13
        s_and_b32 s{sT3}, s{sT3}, 3
        v_xor_b32 v{t+2}, s{sT3}, v{t}
        v_lshl_add_u32 v{t+2}, v{t+2}, 5, v{t+1}
        v_add_u32 v{vWA+i}, s{sT0}, v{t+2}
        v_xor_b32 v{vWA+4+i}, 4096, v{vWA+i}
        """)
    Kc = 2 * 0.7978845608028654 * 1.4426950408889634
    k.e(f"s_mov_b32 s{sK}, {hx(-Kc*0.044715)}\ns_mov_b32 s{sK+1}, {hx(-Kc)}")
    ones()
    repack_setup(typ)
    second_loads(typ)
    jobs = common_jobs(typ)
    b1j = lines(f"""
    s_mov_b32 s{rT2}, s{pB1}
    s_mov_b32 s{rT2+1}, s{pB1+1}
    s_mov_b32 s{rT2+2}, 3072
    s_mov_b32 s{rT2+3}, 0x20000
    s_mul_i32 s{sT0}, s{sNT}, 384
    s_mul_i32 s{sT1}, s{sWR}, 192
    s_add_u32 s{sT0}, s{sT0}, s{sT1}
    v_lshlrev_b32 v{t}, 3, v{vQ}
    """) + [(lambda i=i: k.vmem(f"buffer_load_dwordx2 {V(vB1+2*i,2)}, v{t}, s[{rT2}:{rT2+3}], s{sT0} offen offset:{32*i}", "b1")) for i in range(6)]
    jobs[(5, 0)] = b1j
    main_loop(typ, jobs)
    TK, CS, P2 = stats(typ)
    stamp()
    fd = Feeder(wdma(), 12)
    h_base()
    k.e(f"""
    s_mul_i32 s{sT1}, s{sT1}, 6
    s_add_u32 s{sT0}, s{sT0}, s{sT1}
    s_mul_i32 s{sT1}, s{sWR}, 3
    s_add_u32 s{sT0}, s{sT0}, s{sT1}
    s_lshl_b32 s{sT0}, s{sT0}, 12
    s_add_u32 s{sH}, s{sH}, s{sT0}
    """)
    stats_sum(typ, CS, P2)
    B = 100
    for i in range(6):
        for h in range(2):
            k.e(f"v_lshlrev_b32 v{B+4*i+2*h}, 16, v{vB1+2*i+h}\nv_and_b32 v{B+4*i+2*h+1}, 0xffff0000, v{vB1+2*i+h}")
    TM = 124
    OUT = [88, 92]
    n_ = 0
    for u in range(3):
        for j in range(4):
            o = OUT[n_ & 1]; n_ += 1
            prs = [(2*u + ii, h) for ii in range(2) for h in range(2)]
            Z = [acc(i, j) + 2*h for i, h in prs]
            T1 = [TM + 2*x for x in range(4)]; T2 = [TM + 8 + 2*x for x in range(4)]
            for x, (i, h) in enumerate(prs):
                k.e(f"v_pk_fma_f32 {V(T1[x],2)}, {V(CS+4*i+2*h,2)}, {V(TK+4*j+2,2)}, {V(B+4*i+2*h,2)} op_sel:[0,1,0] op_sel_hi:[1,1,1] neg_lo:[0,1,0] neg_hi:[0,1,0]")
            for x in range(4):
                k.e(f"v_pk_fma_f32 {V(Z[x],2)}, {V(Z[x],2)}, {V(TK+4*j+2,2)}, {V(T1[x],2)} op_sel:[0,0,0] op_sel_hi:[1,0,1]")
            fd.tick(12)
            for x in range(4): k.e(f"v_pk_mul_f32 {V(T1[x],2)}, {V(Z[x],2)}, {V(Z[x],2)}")
            for x in range(4): k.e(f"v_pk_fma_f32 {V(T1[x],2)}, {V(T1[x],2)}, s[{sK}:{sK+1}], s[{sK}:{sK+1}] op_sel:[0,0,1] op_sel_hi:[1,0,1]")
            for x in range(4): k.e(f"v_pk_mul_f32 {V(T1[x],2)}, {V(T1[x],2)}, {V(Z[x],2)}")
            for x in range(4): k.e(f"v_exp_f32 v{T2[x]}, v{T1[x]}\nv_exp_f32 v{T2[x]+1}, v{T1[x]+1}")
            fd.tick(12)
            for x in range(4): k.e(f"v_pk_add_f32 {V(T2[x],2)}, {V(T2[x],2)}, 1.0 op_sel_hi:[1,0]")
            for x in range(4): k.e(f"v_rcp_f32 v{T2[x]}, v{T2[x]}\nv_rcp_f32 v{T2[x]+1}, v{T2[x]+1}")
            if n_ < 12: fd.tick(12)
            for x in range(4): k.e(f"v_pk_mul_f32 {V(Z[x],2)}, {V(Z[x],2)}, {V(T2[x],2)}")
            for x in range(4): k.e(f"v_cvt_pk_bf16_f32 v{o+x}, v{Z[x]}, v{Z[x]+1}")
            k.vmem(f"buffer_store_dwordx4 {V(o,4)}, v{vL16}, s[{rWS}:{rWS+3}], s{sH} offen offset:{j*1024} sc1", "h")
        if u < 2: k.e(f"s_add_u32 s{sH}, s{sH}, 4096")
    assert not fd.jobs
    stamp()
    h_flag()
    k.e("s_branch L_p2")

def cmul_acc(d, a, b, c):
    k.e(f"v_pk_fma_f32 {V(d,2)}, {V(a,2)}, {V(b,2)}, {V(c,2)} op_sel:[0,0,0] op_sel_hi:[1,0,1]")
    k.e(f"v_pk_fma_f32 {V(d,2)}, {V(a,2)}, {V(b,2)}, {V(d,2)} op_sel:[1,1,0] op_sel_hi:[0,1,1] neg_lo:[0,1,0]")

PR = 100
def table_job():
    t = 80
    CG = vB1 + 11
    K1, K2, APW, ACH, ACH2, R1 = t, t+1, t+2, t+3, t+4, t+5
    fl = lines(f"""
    v_lshlrev_b32 v{K1}, 2, v{vN}
    v_cvt_f32_u32 v{K1}, v{K1}
    v_mov_b32 v{K2}, {hx(128.0)}
    v_mov_b32 v{t+5}, {hx(64.0)}
    v_cmp_eq_u32 vcc, 1, v{vN}
    v_lshlrev_b32 v{APW}, 7, v{CG}
    v_lshl_add_u32 v{APW}, v{vN}, 3, v{APW}
    v_cndmask_b32 v{K2}, v{K2}, v{t+5}, vcc
    v_cmp_eq_u32 vcc, 0, v{vN}
    v_mov_b32 v{t+5}, 1.0
    v_lshlrev_b32 v{ACH}, 6, v{CG}
    v_cndmask_b32 v{K2}, v{K2}, v{t+5}, vcc
    v_add_u32 v{ACH}, {L_CH}, v{ACH}
    v_ffbl_b32 v{t+5}, v{vN}
    v_lshl_add_u32 v{t+5}, v{t+5}, 3, v{ACH}
    v_add_u32 v{t+5}, 16, v{t+5}
    v_lshl_add_u32 v{t+7}, v{vN}, 3, v{ACH}
    v_add_u32 v{t+7}, 40, v{t+7}
    v_cndmask_b32 v{ACH2}, v{t+7}, v{ACH}, vcc
    """)
    def masked(m, ins):
        def f():
            k.e(f"s_mov_b32 exec_lo, {m}\ns_mov_b32 exec_hi, {m}"); k.ds(ins); k.e("s_mov_b64 exec, -1")
        return f
    LOG2E = 1.4426950408889634
    parts = [fl]
    for u in range(5):
        lr, li, dt, al, be, x, y, c_, s_ = PR+u, PR+5+u, PR+10+u, t+8, t+9, t+10, t+11, t+12, t+13
        fl = lines(f"""
        v_lshlrev_b32 v{dt}, 16, v{dt}
        v_lshlrev_b32 v{lr}, 16, v{lr}
        v_mul_f32 v{dt}, {hx(LOG2E)}, v{dt}
        v_exp_f32 v{dt}, v{dt}
        v_lshlrev_b32 v{li}, 16, v{li}
        {bfr(dt, dt)}
        v_mul_f32 v{al}, v{dt}, v{lr}
        v_mul_f32 v{be}, v{dt}, v{li}
        v_mul_f32 v{al}, {hx(LOG2E)}, v{al}
        v_mul_f32 v{be}, 0.15915494, v{be}
        """)
        for rnd, KK in ((1, K1), (2, K2)):
            fl += lines(f"""
            v_mul_f32 v{y}, v{KK}, v{be}
            v_mul_f32 v{x}, v{KK}, v{al}
            v_fract_f32 v{y}, v{y}
            v_cos_f32 v{c_}, v{y}
            v_sin_f32 v{s_}, v{y}
            v_exp_f32 v{x}, v{x}
            s_nop 0
            v_mul_f32 v{t+14}, v{x}, v{c_}
            v_mul_f32 v{t+15}, v{x}, v{s_}
            """)
            if rnd == 1:
                fl.append(lambda u=u: k.ds(f"ds_write_b64 v{APW}, {V(t+14,2)} offset:{L_PW + u*2048}"))
                fl.append(masked("0x01160116", f"ds_write_b64 v{R1}, {V(t+14,2)} offset:{u*1024}"))
            else:
                fl.append(masked("0x00070007", f"ds_write_b64 v{ACH2}, {V(t+14,2)} offset:{u*1024}"))
                fl += lines(f"""
                v_mul_f32 v{y}, v{lr}, v{lr}
                v_add_f32 v{x}, -1.0, v{t+14}
                v_fma_f32 v{y}, v{li}, v{li}, v{y}
                v_rcp_f32 v{y}, v{y}
                v_mul_f32 v{c_}, v{x}, v{lr}
                v_fma_f32 v{c_}, v{t+15}, v{li}, v{c_}
                v_mul_f32 v{s_}, v{t+15}, v{lr}
                v_fma_f32 v{s_}, -v{x}, v{li}, v{s_}
                v_add_f32 v{y}, v{y}, v{y}
                v_mul_f32 v{t+16}, v{c_}, v{y}
                v_mul_f32 v{t+17}, v{s_}, v{y}
                """)
                fl.append(masked("0x00010001", f"ds_write_b64 v{ACH}, {V(t+16,2)} offset:{u*1024 + 8}"))
        parts.append(fl)
    return sum(parts, [])

def path_ssm():
    typ = "ssm"; t = vT
    k.e(f"""
    v_and_b32 v{t+2}, 6, v{t}
    v_or_b32 v{t+3}, s{sWC}, v{t+2}
    v_xor_b32 v{t+1}, v{t+1}, v{t+3}
    v_lshlrev_b32 v{t+1}, 4, v{t+1}
    v_and_b32 v{t+3}, 1, v{t}
    v_lshl_add_u32 v{t+2}, v{t+2}, 2, v{t+3}
    v_mul_u32_u24 v{t+2}, 1280, v{t+2}
    v_add_u32 v{vDW}, v{t+2}, v{t+1}
    v_add_u32 v{t+2}, 32, v{t}
    v_mul_u32_u24 v{t+2}, 1280, v{t+2}
    v_add_u32 v{vDW+1}, v{t+2}, v{t+1}
    s_mul_i32 s{sT0}, s{sNT}, 80
    s_mul_i32 s{sT1}, s{sWR}, 40
    s_add_u32 s{sT0}, s{sT0}, s{sT1}
    s_mul_i32 s{sB0}, s{sT0}, 1280
    s_add_u32 s{sB2}, s{sB0}, 5120
    s_mul_i32 s{sLW}, s{sWR}, 10240
    s_lshl_b32 s{sT0}, s{sWC}, 10
    s_add_u32 s{sLW}, s{sLW}, s{sT0}
    """)
    pf_setup(typ)
    start_loads(typ)
    k.e(f"""
    v_and_b32 v{t+1}, 1, v{vN}
    v_lshrrev_b32 v{t+2}, 2, v{vN}
    v_lshl_add_u32 v{t+2}, v{t+2}, 1, v{t+1}
    v_xor_b32 v{t}, v{t+4}, v{t+2}
    v_lshlrev_b32 v{t}, 4, v{t}
    v_lshl_add_u32 v{t}, v{t+1}, 10, v{t}
    v_lshrrev_b32 v{t+2}, 1, v{vN}
    v_lshl_add_u32 v{t}, v{t+2}, 7, v{t}
    s_mul_i32 s{sT0}, s{sWR}, 10240
    s_add_u32 s{sT0}, s{sT0}, {L_W}
    v_add_u32 v{vWA}, s{sT0}, v{t}
    v_xor_b32 v{vWA+1}, 64, v{vWA}
    """)
    ones()
    repack_setup(typ)
    second_loads(typ)
    k.e(f"""
    v_lshrrev_b32 v{vB1+11}, 4, v0
    s_mul_i32 s{sT0}, s{sNT}, 160
    v_lshlrev_b32 v{t+1}, 1, v{vB1+11}
    s_mov_b32 s{sEx+1}, s{rT+1}
    s_mov_b32 s{sEx}, s{rT}
    s_mov_b32 s{sT1}, s{rT+2}
    s_mov_b32 s{rT+2}, 1280
    """)
    for pi, ptr in enumerate((pLre, pLim, pLdt)):
        k.e(f"s_mov_b32 s{rT}, s{ptr}\ns_mov_b32 s{rT+1}, s{ptr+1}")
        for u in range(5):
            k.vmem(f"buffer_load_ushort v{PR+5*pi+u}, v{t+1}, s[{rT}:{rT+3}], s{sT0} offen offset:{32*u}", "par")
    k.e(f"s_mov_b32 s{rT}, s{sEx}\ns_mov_b32 s{rT+1}, s{sEx+1}\ns_mov_b32 s{rT+2}, s{sT1}")
    jobs = common_jobs(typ)
    jobs[("wait", 1)] = ["par"]
    tj = table_job()
    spots = [(1, 1), (2, 0), (2, 1), (3, 0), (3, 1), (4, 0), (4, 1), (5, 0), (5, 1), (6, 0), (6, 1), (7, 0), (7, 1), (8, 0)]
    per = (len(tj) + len(spots) - 1) // len(spots)
    for x, sp in enumerate(spots):
        jobs[sp] = merge(jobs.get(sp, []), tj[x*per:(x+1)*per])
    main_loop(typ, jobs)
    TK, CS, P2 = stats(typ)
    stamp()
    wd = wdma()
    fd = Feeder(wd[:22], 12)
    vC0, vC1, vP0, vP1, vE0, vE1 = vB1, vB1+1, vB1+2, vB1+3, vB1+4, vB1+5
    k.e(f"""
    s_mul_i32 s{sT0}, s{sWR}, 40
    v_lshlrev_b32 v{t}, 3, v{vQ}
    v_add_u32 v{t}, s{sT0}, v{t}
    v_lshlrev_b32 v{t+1}, 1, v{vQ}
    v_add_u32 v{t+1}, s{sT0}, v{t+1}
    v_add_u32 v{t+1}, 32, v{t+1}
    v_lshlrev_b32 v{vC0}, 6, v{t}
    v_lshlrev_b32 v{vC1}, 6, v{t+1}
    v_lshlrev_b32 v{t+2}, 3, v{vN}
    v_lshl_add_u32 v{vP0}, v{t}, 7, v{t+2}
    v_lshl_add_u32 v{vP1}, v{t+1}, 7, v{t+2}
    v_lshlrev_b32 v{vE0}, 3, v{t}
    v_lshlrev_b32 v{vE1}, 3, v{t+1}
    """)
    slots = [(i, h) for i in range(5) for h in range(2)]
    def rec(i, h): return (vC0, L_CH + (2*i + h)*64) if i < 4 else (vC1, L_CH + h*64)
    LC = 100
    stats_sum(typ, CS, P2)
    for x, (i, h) in enumerate(slots):
        a_, o_ = rec(i, h); k.ds(f"ds_read_b128 {V(LC+4*x,4)}, v{a_} offset:{o_}", ("lc", x))
    for x, (i, h) in enumerate(slots):
        fd.tick(8)
        for j in range(4):
            z = acc(i, j) + 2*h
            k.e(f"v_pk_fma_f32 {V(z,2)}, {V(CS+4*i+2*h,2)}, {V(TK+4*j,2)}, {V(z,2)} op_sel:[0,0,0] op_sel_hi:[1,0,1] neg_lo:[0,1,0] neg_hi:[0,1,0]")
        for j in range(4):
            z = acc(i, j) + 2*h
            k.e(f"v_pk_mul_f32 {V(z,2)}, {V(z,2)}, {V(TK+4*j,2)} op_sel:[0,1] op_sel_hi:[1,1]")
    k.wait_lg()
    EE = 140; TMP = 88
    MU = t
    def load_mu(b):
        for y in range(5):
            i, h = slots[5*b + y]; a_, o_ = rec(i, h)
            k.ds(f"ds_read_b128 {V(MU+8*y,4)}, v{a_} offset:{o_+16}")
            k.ds(f"ds_read_b128 {V(MU+8*y+4,4)}, v{a_} offset:{o_+32}")
    load_mu(0)
    for x, (i, h) in enumerate(slots):
        fd.tick(8)
        for j in range(4):
            z = acc(i, j) + 2*h
            k.e(f"v_pk_mul_f32 {V(TMP+2*j,2)}, {V(z,2)}, {V(LC+4*x+2,2)} op_sel:[0,0] op_sel_hi:[1,0]")
        for j in range(4):
            z = acc(i, j) + 2*h
            k.e(f"v_pk_fma_f32 {V(z,2)}, {V(z,2)}, {V(LC+4*x+2,2)}, {V(TMP+2*j,2)} op_sel:[1,1,0] op_sel_hi:[0,1,1] neg_lo:[0,1,0]")
    def ereg(x): return EE + 2*x
    def treg(x): return (240 + 2*x) if x < 8 else (TMP + 2*(x - 8))
    for x, (i, h) in enumerate(slots): cmul_acc(ereg(x), acc(i,0)+2*h, LC+4*x, acc(i,1)+2*h)
    fd.tick(20)
    for x, (i, h) in enumerate(slots): cmul_acc(treg(x), ereg(x), LC+4*x, acc(i,2)+2*h)
    fd.tick(20)
    for x, (i, h) in enumerate(slots): cmul_acc(ereg(x), treg(x), LC+4*x, acc(i,3)+2*h)
    for b in range(2):
        k.wait_lg()
        for st, sh in enumerate((1, 2, 4, 8)):
            for y in range(5):
                x = 5*b + y
                k.e(f"v_mov_b32_dpp v{treg(x)}, v{ereg(x)} row_shr:{sh} row_mask:0xf bank_mask:0xf bound_ctrl:0")
                k.e(f"v_mov_b32_dpp v{treg(x)+1}, v{ereg(x)+1} row_shr:{sh} row_mask:0xf bank_mask:0xf bound_ctrl:0")
            fd.tick(20)
            for y in range(5):
                x = 5*b + y
                cmul_acc(ereg(x), treg(x), MU+8*y+2*st, ereg(x))
        if b == 0: load_mu(1)
    fd.flush()
    k.e(f"""
    s_mul_i32 s{sT0}, s{sWC}, 640
    v_add_u32 v{vB1+6}, s{sT0}, v{vE0}
    v_add_u32 v{vB1+7}, s{sT0}, v{vE1}
    v_cmp_eq_u32 vcc, 15, v{vN}
    s_and_saveexec_b64 s[{sEx}:{sEx+1}], vcc
    """)
    for i in range(5):
        k.ds(f"ds_write_b128 v{vB1+6 if i < 4 else vB1+7}, {V(EE+4*i,4)} offset:{L_EX + (16*i if i < 4 else 0)}")
    k.e(f"s_mov_b64 exec, s[{sEx}:{sEx+1}]")
    PWv = t
    ch = t + 24
    E0, E1, LL, ET, HI, HT = ch+4, ch+6, ch+8, ch+12, ch+16, ch+18
    k.e(f"""
    s_mul_i32 s{sT0}, s{sWR}, 40
    v_min_u32 v{ch}, 39, v{vL}
    v_add_u32 v{ch}, s{sT0}, v{ch}
    v_lshlrev_b32 v{ch+1}, 3, v{ch}
    v_lshlrev_b32 v{ch+2}, 6, v{ch}
    v_lshlrev_b32 v{ch+3}, 4, v{ch}
    s_lshl_b32 s{sT0}, s{sNT}, 4
    s_mul_i32 s{sT0}, s{sT0}, 1280
    s_add_u32 s{sHw}, s{sT0}, {WS_E}
    s_mul_i32 s{sT0}, s{sMT}, 1280
    s_add_u32 s{sT0}, s{sT0}, s{sHw}
    s_cmp_eq_u32 s{sWC}, 0
    s_cselect_b32 s{sT1}, 0, {OOB}
    v_cmp_gt_u32 vcc, 40, v{vL}
    v_or_b32 v{HT}, s{sT1}, v{ch+3}
    v_mov_b32 v{HT+1}, {OOB}
    v_cndmask_b32 v{HT}, v{HT+1}, v{HT}, vcc
    v_mov_b32 v{ET+1}, s{sNonce}
    v_mov_b32 v{ET+3}, s{sNonce}
    """)
    k.wait_lg()
    k.e("s_barrier")
    k.ds(f"ds_read_b64 {V(E0,2)}, v{ch+1} offset:{L_EX}", "e")
    k.ds(f"ds_read_b64 {V(E1,2)}, v{ch+1} offset:{L_EX+640}", "e")
    k.ds(f"ds_read_b128 {V(LL,4)}, v{ch+2} offset:{L_CH+48}", "e")
    for x, (i, h) in enumerate(slots):
        k.ds(f"ds_read_b64 {V(PWv+2*x,2)}, v{vP0 if i < 4 else vP1} offset:{L_PW + ((2*i+h)*128 if i < 4 else h*128)}", "pw")
    k.wait_lg("e")
    cmul_acc(E1, E0, LL, E1)
    k.e(f"v_mov_b32 v{ET}, v{E1}\nv_mov_b32 v{ET+2}, v{E1+1}")
    k.vmem(f"buffer_store_dwordx4 {V(ET,4)}, v{HT}, s[{rWS}:{rWS+3}], s{sT0} offen sc1", "e")
    stamp()
    for x in range(10):
        k.e(f"v_mov_b32_dpp v{treg(x)}, v{ereg(x)} row_shr:1 row_mask:0xf bank_mask:0xf bound_ctrl:0")
        k.e(f"v_mov_b32_dpp v{treg(x)+1}, v{ereg(x)+1} row_shr:1 row_mask:0xf bank_mask:0xf bound_ctrl:0")
    k.e(f"v_mov_b32 v{HI}, 0\nv_mov_b32 v{HI+1}, 0")
    k.e(f"s_cmp_eq_u32 s{sMT}, 0\ns_cbranch_scc1 L_carry_done")
    k.label("L_carry_poll")
    k.e(f"s_mov_b32 s{sT0}, s{sHw}")
    for c in range(15):
        k.e(f"buffer_load_dwordx4 {A(4*c,4)}, v{ch+3}, s[{rWS}:{rWS+3}], s{sT0} offen sc1")
        if c < 14:
            k.e(f"s_add_u32 s{sT0}, s{sT0}, 1280\ns_cmp_eq_u32 s{sMT}, {c+1}\ns_cbranch_scc1 L_carry_issued")
    k.label("L_carry_issued")
    k.e(f"v_mov_b32 v{HI}, 0\nv_mov_b32 v{HI+1}, 0\ns_mov_b64 s[{sEx}:{sEx+1}], 0\ns_waitcnt vmcnt(0)")
    G = ET
    for c in range(15):
        k.e(f"""
        v_accvgpr_read_b32 v{G}, a{4*c}
        v_accvgpr_read_b32 v{G+1}, a{4*c+2}
        v_accvgpr_read_b32 v{G+2}, a{4*c+1}
        v_accvgpr_read_b32 v{G+3}, a{4*c+3}
        v_cmp_ne_u32 vcc, s{sNonce}, v{G+2}
        s_or_b64 s[{sEx}:{sEx+1}], s[{sEx}:{sEx+1}], vcc
        v_cmp_ne_u32 vcc, s{sNonce}, v{G+3}
        s_or_b64 s[{sEx}:{sEx+1}], s[{sEx}:{sEx+1}], vcc
        """)
        cmul_acc(G, HI, LL+2, G)
        k.e(f"v_mov_b32 v{HI}, v{G}\nv_mov_b32 v{HI+1}, v{G+1}")
        if c < 14: k.e(f"s_cmp_eq_u32 s{sMT}, {c+1}\ns_cbranch_scc1 L_carry_chk")
    k.label("L_carry_chk")
    k.e(f"""
    s_cmp_eq_u64 s[{sEx}:{sEx+1}], 0
    s_cbranch_scc1 L_carry_done
    s_sub_u32 s{sSpin}, s{sSpin}, 1
    s_cbranch_scc1 L_end
    s_branch L_carry_poll
    """)
    k.label("L_carry_done")
    stamp()
    k.e(f"s_cmp_eq_u32 s{sWC}, 0\ns_cbranch_scc1 L_wc0")
    cmul_acc(E0, HI, LL, E0)
    k.e(f"v_mov_b32 v{HI}, v{E0}\nv_mov_b32 v{HI+1}, v{E0+1}")
    k.label("L_wc0")
    k.e(f"""
    s_mul_i32 s{sT0}, s{sWC}, 640
    v_add_u32 v{ch+1}, s{sT0}, v{ch+1}
    """)
    k.ds(f"ds_write_b64 v{ch+1}, {V(HI,2)} offset:{L_EX2}")
    k.wait_lg()
    for i in range(5):
        k.ds(f"ds_read_b128 {V(EE+4*i,4)}, v{vB1+6 if i < 4 else vB1+7} offset:{L_EX2 + (16*i if i < 4 else 0)}")
    h_base()
    k.e(f"""
    s_mul_i32 s{sT1}, s{sT1}, 5
    s_add_u32 s{sT0}, s{sT0}, s{sT1}
    s_add_u32 s{sT0}, s{sT0}, 12
    s_lshl_b32 s{sT0}, s{sT0}, 12
    s_add_u32 s{sH}, s{sH}, s{sT0}
    s_add_u32 s{sHw}, s{sH}, {4*4096}
    s_lshl_b32 s{sT0}, s{sWR}, 9
    s_add_u32 s{sHw}, s{sHw}, s{sT0}
    s_lshl_b32 s{sT0}, s{sWR}, 13
    s_add_u32 s{sH}, s{sH}, s{sT0}
    s_add_u32 s{sB0}, s{sH}, 4096
    v_lshlrev_b32 v{ch}, 3, v{vL}
    """)
    k.wait_lg()
    for x in range(10): cmul_acc(treg(x), ereg(x), PWv+2*x, treg(x))
    O = ch + 4
    k.vm = []
    fd = Feeder(wd[22:], 6)
    for j in range(4):
        fd.tick(26 if j < 3 else 0)
        for x, (i, h) in enumerate(slots):
            prev = treg(x) if j == 0 else acc(i, j-1) + 2*h
            cmul_acc(acc(i,j)+2*h, prev, LC+4*x, acc(i,j)+2*h)
        o = O + (j & 1) * 10
        for i in range(4): k.e(f"v_cvt_pk_bf16_f32 v{o+i}, v{acc(i,j)}, v{acc(i,j)+2}")
        for i in range(4): k.e(f"v_cvt_pk_bf16_f32 v{o+4+i}, -v{acc(i,j)+1}, -v{acc(i,j)+3}")
        k.e(f"v_cvt_pk_bf16_f32 v{o+8}, v{acc(4,j)}, v{acc(4,j)+2}")
        k.e(f"v_cvt_pk_bf16_f32 v{o+9}, -v{acc(4,j)+1}, -v{acc(4,j)+3}")
        k.vmem(f"buffer_store_dwordx4 {V(o,4)}, v{vL16}, s[{rWS}:{rWS+3}], s{sH} offen offset:{j*1024} sc1", "h")
        k.vmem(f"buffer_store_dwordx4 {V(o+4,4)}, v{vL16}, s[{rWS}:{rWS+3}], s{sB0} offen offset:{j*1024} sc1", "h")
        k.vmem(f"buffer_store_dwordx2 {V(o+8,2)}, v{ch}, s[{rWS}:{rWS+3}], s{sHw} offen offset:{j*1024} sc1", "h")
    assert not fd.jobs
    stamp()
    h_flag()
    k.e("s_branch L_p2")

def poll(tag, vaddr, vd):
    k.e(f"""
    L_poll_{tag}:
    buffer_load_dwordx2 {V(vd,2)}, v{vaddr}, s[{rWS}:{rWS+3}], 0 offen sc1
    s_waitcnt vmcnt(0)
    v_cmp_ne_u32 vcc, s{sNonce}, v{vd}
    v_cmp_ne_u32 s[{sT0}:{sT1}], s{sNonce}, v{vd+1}
    s_or_b64 vcc, vcc, s[{sT0}:{sT1}]
    s_cmp_eq_u64 vcc, 0
    s_cbranch_scc1 L_pollok_{tag}
    s_sub_u32 s{sSpin}, s{sSpin}, 1
    s_cbranch_scc1 L_end
    s_sleep 1
    s_branch L_poll_{tag}
    L_pollok_{tag}:
    """)
    k.vm = []

HRING = [[("v", 40 + 4*s) for s in range(4)], [("v", 56 + 4*s) for s in range(4)], [("v", 72 + 4*s) for s in range(4)],
         [("v", 240 + 4*s) for s in range(4)], [("a", 100), ("a", 104), ("a", 248), ("a", 252)]]
ACC2 = 160
def acc2(i, s): return ACC2 + (i*4 + s)*4
def phase2():
    k.label("L_p2")
    k.strict = False
    k.vm = []; k.lg = []
    stamp_n[0] = 8
    stamp()
    vF, vFd, vHs, vH8 = 28, 30, 32, 36
    vTok, vO, vWL = 24, 25, 27
    EX_, ED, EB = 4, 14, 88
    TKv = 22
    srd(rT, pDsk, 1280); srd(rT2, pB2, 1280)
    k.e(f"""
    s_lshl_b32 s{sT0}, s{sMT}, 7
    s_lshl_b32 s{sT1}, s{sHALF}, 6
    s_add_u32 s{sT0}, s{sT0}, s{sT1}
    s_add_u32 s{sT0}, s{sT0}, s{sW}
    v_lshlrev_b32 v{vTok}, 2, v{vN}
    v_add_u32 v{vTok}, s{sT0}, v{vTok}
    v_mul_u32_u24 v{vTok}, 640, v{vTok}
    s_mul_i32 s{sT0}, s{sDT}, 80
    v_lshlrev_b32 v{vF}, 2, v{vQ}
    v_add_u32 v{vF}, s{sT0}, v{vF}
    v_add_u32 v{vTok}, v{vTok}, v{vF}
    v_lshlrev_b32 v{vO}, 2, v{vTok}
    v_lshlrev_b32 v{vTok}, 1, v{vTok}
    v_lshlrev_b32 v{vF}, 1, v{vF}
    """)
    EDr = [14, 16, 18, 20, 98 - 2]
    EBr = [88, 90, 92, 94, 240]
    for i in range(5):
        k.vmem(f"buffer_load_dwordx2 {V(EX_+2*i,2)}, v{vTok}, s[{rX}:{rX+3}], 0 offen offset:{32*i}", "ep")
        k.vmem(f"buffer_load_dwordx2 {V(EDr[i],2)}, v{vF}, s[{rT}:{rT+3}], 0 offen offset:{32*i}", "ep")
        k.vmem(f"buffer_load_dwordx2 {V(EBr[i],2)}, v{vF}, s[{rT2}:{rT2+3}], 0 offen offset:{32*i}", "ep")
    NP0 = OPT.get("np0", 11)
    for tk in range(7, NP0):
        for f in wload(tk): f()
    k.e(f"""
    s_lshl_b32 s{sT0}, s{sHALF}, 10
    s_lshl_b32 s{sT1}, s{sW}, 4
    s_add_u32 s{sT0}, s{sT0}, s{sT1}
    v_lshlrev_b32 v{vTok}, 6, v{vN}
    v_add_u32 v{vTok}, s{sT0}, v{vTok}
    """)
    k.ds(f"ds_read_b64 {V(TKv,2)}, v{vTok} offset:{L_TOK}", "tk")
    k.e(f"""
    s_mul_i32 s{sT0}, s{sW}, 22
    s_lshl_b32 s{sT1}, s{sMT}, 1
    s_add_u32 s{sT1}, s{sT1}, s{sHALF}
    s_mul_i32 s{sT1}, s{sT1}, 88
    s_add_u32 s{sT1}, s{sT1}, s{sT0}
    s_lshl_b32 s{sH}, s{sT1}, 12
    s_add_u32 s{sH}, s{sH}, {WS_H}
    v_add_u32 v{vWL}, s{sWL}, v{vL16}
    """)
    for s in range(4):
        k.e(f"""
        s_xor_b32 s{sT0}, s{sW}, {s}
        s_lshl_b32 s{sT0}, s{sT0}, 10
        v_add_u32 v{vHs+s}, s{sT0}, v{vL16}
        v_lshlrev_b32 v{vH8+s}, 3, v{vL}
        v_add_u32 v{vH8+s}, s{sT0}, v{vH8+s}
        """)
    k.e(f"""
    v_bfe_u32 v{vFd}, v{vL}, 1, 1
    s_lshl_b32 s{sT0}, s{sMT}, 4
    s_lshl_b32 s{sT1}, s{sW}, 1
    s_add_u32 s{sT0}, s{sT0}, s{sT1}
    s_add_u32 s{sT0}, s{sT0}, 8
    v_add_u32 v{vFd}, s{sT0}, v{vFd}
    v_lshlrev_b32 v{vFd}, 7, v{vFd}
    v_and_b32 v{vF}, 1, v{vL}
    v_lshl_add_u32 v{vF}, v{vF}, 5, v{vFd}
    s_lshl_b32 s{sT0}, s{sHALF}, 4
    s_add_u32 s{sT0}, s{sT0}, {WS_HF}
    v_add_u32 v{vF}, s{sT0}, v{vF}
    v_add_u32 v{vF+1}, -1024, v{vF}
    """)
    k.vmem(f"buffer_load_dwordx2 {V(vFd,2)}, v{vF}, s[{rWS}:{rWS+3}], 0 offen sc1", "hf")
    k.wait_vm("ep"); k.wait_lg()
    U = 40
    for i in range(5):
        df, bf_ = U + 8*(i & 1), U + 4 + 8*(i & 1)
        o = acc2(i, 0); xf = U + 16
        for src, dst in ((EX_ + 2*i, xf), (EDr[i], df), (EBr[i], bf_)):
            for h in range(2):
                k.e(f"v_lshlrev_b32 v{dst+2*h}, 16, v{src+h}\nv_and_b32 v{dst+2*h+1}, 0xffff0000, v{src+h}")
        def rnd(a):
            k.e(f"v_cvt_pk_bf16_f32 v{a+1}, v{a}, v{a+1}\nv_lshlrev_b32 v{a}, 16, v{a+1}\nv_and_b32 v{a+1}, 0xffff0000, v{a+1}")
        for h in range(2):
            a = o + 2*h
            k.e(f"v_pk_add_f32 {V(a,2)}, {V(xf+2*h,2)}, {V(TKv,2)} op_sel:[0,0] op_sel_hi:[1,0] neg_lo:[0,1] neg_hi:[0,1]"); rnd(a)
            k.e(f"v_pk_mul_f32 {V(a,2)}, {V(a,2)}, {V(TKv,2)} op_sel:[0,1] op_sel_hi:[1,1]"); rnd(a)
            k.e(f"v_pk_mul_f32 {V(a,2)}, {V(a,2)}, {V(df+2*h,2)}"); rnd(a)
            k.e(f"v_pk_add_f32 {V(a,2)}, {V(a,2)}, {V(xf+2*h,2)}")
            k.e(f"v_pk_add_f32 {V(a,2)}, {V(a,2)}, {V(bf_+2*h,2)}")
    srd(rT, pOut, 2048 * 2560)
    k.wait_vm("hf")
    check("hm", vF, vFd)
    stamp()
    def hload(tk):
        ring = HRING[tk % 5]
        isE = tk in (16, 21)
        def mk(s):
            kind, base = ring[s]
            def f():
                if s == 0: k.e(f"s_add_u32 s{sT3}, s{sH}, {tk*4096}")
                if not isE:
                    k.vmem(f"buffer_load_dwordx4 {R(kind, base, 4)}, v{vHs+s}, s[{rWS}:{rWS+3}], s{sT3} offen sc1", ("h", tk))
                else:
                    k.vmem(f"buffer_load_dwordx2 {R(kind, base, 2)}, v{vH8+s}, s[{rWS}:{rWS+3}], s{sT3} offen sc1", ("h", tk))
                    k.vmem(f"buffer_load_dwordx2 {R(kind, base+2, 2)}, v{vH8+s}, s[{rWS}:{rWS+3}], s{sT3} offen offset:512 sc1", ("h", tk))
            return f
        return [mk(s) for s in range(4)]
    def wreg(tk): return WSLOT[tk] if tk < NREG else WSLOT[tk - NREG]
    def wread(tk):
        kind, base = wreg(tk)
        return [(lambda i=i: k.ds(f"ds_read_b128 {R(kind, base+4*i, 4)}, v{vWL} offset:{((tk - NREG)*5 + i)*1024}", ("wr", tk))) for i in range(5)]
    for tk in range(5):
        for f in hload(tk): f()
    late = list(range(NP0, NREG))
    vRw, vRr = 4, 8
    for tk in range(22):
        k.lenient = True
        k.wait_vm([("w", tk), ("h", tk)])
        if tk >= NREG: k.wait_lg(("wr", tk))
        k.lenient = OPT['stamps']
        wk, wb = wreg(tk); ring = HRING[tk % 5]
        m = []
        for s in range(4):
            for i in range(5):
                c = "0" if (tk == 0 and s > 0) else V(acc2(i, s), 4)
                m.append(f"v_mfma_f32_16x16x32_bf16 {V(acc2(i,s),4)}, {R(wk, wb+4*i, 4)}, {R(ring[s][0], ring[s][1], 4)}, {c}")
        slots_ = [[] for _ in m]
        if tk + 5 < 22:
            if tk + 5 == 12:
                def chk():
                    k.wait_vm("hf2"); check("hs", vF + 1, vFd)
                slots_[3].append(chk)
            for s, f in enumerate(hload(tk + 5)): slots_[5*s + 4].append(f)
        if tk == 4: slots_[1].append(lambda: k.vmem(f"buffer_load_dwordx2 {V(vFd,2)}, v{vF+1}, s[{rWS}:{rWS+3}], 0 offen sc1", "hf2"))
        if late and tk % 2 == 0:
            for i, f in enumerate(wload(late.pop(0))): slots_[4*i + 1].append(f)
        if NREG <= tk + 2 < 22:
            for i, f in enumerate(wread(tk + 2)): slots_[3*i + 2].append(f)
        if tk == 20:
            ad = []
            for s in range(1, 4):
                ad += lines(f"""
                s_xor_b32 s{sT0}, s{sW}, {s}
                s_mul_i32 s{sT1}, s{sT0}, {WLW}
                s_add_u32 s{sT1}, s{sT1}, {L_WL + (s - 1)*5120}
                v_add_u32 v{vRr+s}, s{sT1}, v{vL16}
                """)
            for i, f in enumerate(ad): slots_[i + 4].append(f)
        for x, sl in zip(m, slots_):
            k.e(x)
            for f in sl: f()
    stamp()
    k.e("s_nop 3")
    for s in range(1, 4):
        for i in range(5): k.ds(f"ds_write_b128 v{vWL}, {V(acc2(i,s),4)} offset:{(s - 1)*5120 + i*1024}")
    k.wait_lg(); k.e("s_barrier")
    RD = 100
    for i in range(5):
        for s in range(1, 4): k.ds(f"ds_read_b128 {V(RD+12*i+4*(s-1),4)}, v{vRr+s} offset:{i*1024}", ("r", i))
    for i in range(5):
        k.wait_lg(("r", i))
        o = acc2(i, 0)
        for s in range(3):
            for h in range(2): k.e(f"v_pk_add_f32 {V(o+2*h,2)}, {V(o+2*h,2)}, {V(RD+12*i+4*s+2*h,2)}")
        k.vmem(f"buffer_store_dwordx4 {V(o,4)}, v{vO}, s[{rT}:{rT+3}], 0 offen offset:{64*i}", "o")
    if OPT["stamps"]:
        k.label("L_fin")
        k.wait_vm0()
        stamp(11)
        k.e(f"""
        s_memtime s[100:101]
        s_waitcnt lgkmcnt(0)
        s_sub_u32 s100, s100, s98
        v_writelane_b32 v{vST}, s100, 63
        s_lshl_b32 s{sT0}, s2, 2
        s_add_u32 s{sT0}, s{sT0}, s{sW}
        s_lshl_b32 s{sT0}, s{sT0}, 8
        s_add_u32 s{sT0}, s{sT0}, {WS_ST}
        v_lshlrev_b32 v2, 2, v{vL}
        buffer_store_dword v{vST}, v2, s[{rWS}:{rWS+3}], s{sT0} offen
        """)

prologue()
path_ssm()
if OPT["stamps"]: stamp_n[0] = 1
path_mlp()
phase2()
k.label("L_end")
body = k.text()
errs = check_hazards(body)
for e_ in errs: print("HAZARD:", e_, file=sys.stderr)

hdr = open(f"cdna_kernels/{NAME}.s.ref").read().split("\n")
hdr = [l for l in hdr if l.startswith(";") and "@launch" not in l and "Override" not in l and "grid=ceil" not in l]
out = "\n".join(hdr) + f"\n; @launch grid=(256,1,1) block=(256,1,1) lds={L_END}\n"
out += f""".amdgcn_target "amdgcn-amd-amdhsa--gfx950"
.text
.globl {NAME}_kernel
.p2align 8
.type {NAME}_kernel,@function
{NAME}_kernel:
{body}    s_endpgm
.section .rodata,"a"
.p2align 6
.amdhsa_kernel {NAME}_kernel
  .amdhsa_next_free_vgpr 512
  .amdhsa_next_free_sgpr 102
  .amdhsa_accum_offset 256
  .amdhsa_group_segment_fixed_size 0
  .amdhsa_kernarg_size 136
  .amdhsa_user_sgpr_count 2
  .amdhsa_user_sgpr_kernarg_segment_ptr 1
  .amdhsa_system_sgpr_workgroup_id_x 1
.end_amdhsa_kernel
"""
open(sys.argv[1], "w").write(out)
print("written", sys.argv[1], len(out), "bytes; hazards:", len(errs))
```

```python
import re

class Asm:
    def __init__(self):
        self.lines = []
        self.seen = set()
        self.vm = []
        self.lg = []
    def e(self, s):
        for l in s.split("\n"):
            l = l.strip()
            if l: self.lines.append("    " + l if not l.endswith(":") else l)
    def c(self, s): self.lines.append("    ; " + s)
    def label(self, s): self.lines.append(s + ":")
    def raw(self, s): self.lines.append(s)
    def vmem(self, s, tag=None):
        self.e(s); self.vm.append(tag); self.seen.add(tag)
    def ds(self, s, tag=None):
        self.e(s); self.lg.append(tag); self.seen.add(tag)
    def _n(self, q, tags):
        if not isinstance(tags, (list, set)): tags = [tags]
        assert any(t in self.seen for t in tags), f'wait on tags never issued: {tags}'
        last = -1
        for i, t in enumerate(q):
            if t in tags: last = i
        return len(q) - 1 - last, last
    def wait_vm(self, tags, extra=""):
        n, last = self._n(self.vm, tags)
        if last < 0:
            if extra: self.e(f"s_waitcnt {extra}")
            return
        if getattr(self, "strict", False):
            n = sum(1 for t in self.vm[last + 1:] if isinstance(t, tuple) and t[0] == "st")
            self.e(f"s_waitcnt vmcnt({n})")
            self.vm = self.vm[last + 1:]
            return
        n2 = min(n, 63)
        self.e(f"s_waitcnt vmcnt({n2}) {extra}".strip())
        self.vm = self.vm[len(self.vm) - n2:] if n2 else []
    def wait_lg(self, tags=None):
        if tags is None:
            self.e("s_waitcnt lgkmcnt(0)"); self.lg = []; return
        n, last = self._n(self.lg, tags)
        if last < 0: return
        n2 = min(n, 15)
        self.e(f"s_waitcnt lgkmcnt({n2})")
        self.lg = self.lg[len(self.lg) - n2:] if n2 else []
    def wait_all(self):
        self.e("s_waitcnt vmcnt(0) lgkmcnt(0)"); self.vm = []; self.lg = []
    def wait_vm0(self):
        self.e("s_waitcnt vmcnt(0)"); self.vm = []
    def text(self): return "\n".join(self.lines) + "\n"

def R(kind, base, n=1):
    return f"{kind}{base}" if n == 1 else f"{kind}[{base}:{base+n-1}]"
def V(b, n=1): return R("v", b, n)
def A(b, n=1): return R("a", b, n)
def S(b, n=1): return R("s", b, n)

class Alloc:
    def __init__(self, lo, hi): self.lo, self.hi, self.p = lo, hi, lo; self.names = {}
    def get(self, n=1, align=None, name=None):
        al = align or (1 if n == 1 else (2 if n < 4 else 4))
        p = (self.p + al - 1) // al * al
        assert p + n <= self.hi, f"out of regs ({name})"
        self.p = p + n
        return p

_reg = re.compile(r"(-|\|)?\b([vas])(\d+)\b|(-|\|)?\b([vas])\[(\d+):(\d+)\]")
def regs_of(op):
    out = []
    for m in re.finditer(r"\b([vas])\[(\d+):(\d+)\]|\b([vas])(\d+)\b", op):
        if m.group(1): out += [(m.group(1), i) for i in range(int(m.group(2)), int(m.group(3)) + 1)]
        else: out.append((m.group(4), int(m.group(5))))
    if re.search(r"\bvcc\b", op): out += [("s", 106), ("s", 107)]
    if re.search(r"\bm0\b", op): out.append(("s", 124))
    if re.search(r"\bexec\b", op): out += [("s", 126), ("s", 127)]
    return out
TRANS = ("v_exp_f32", "v_log_f32", "v_rcp_f32", "v_rsq_f32", "v_sqrt_f32", "v_sin_f32", "v_cos_f32")
def parse(line):
    l = line.split(";")[0].strip()
    if not l or l.endswith(":") or l.startswith("."): return None
    p = l.split(None, 1)
    mn = p[0]; rest = p[1] if len(p) > 1 else ""
    ops = [o.strip() for o in re.split(r",(?![^\[]*\])", rest)]
    d = dict(mn=mn, ops=ops, text=l)
    isv = mn.startswith("v_"); mf = mn.startswith("v_mfma")
    defs, uses = [], []
    if mn.startswith("v_cmp"):
        defs = regs_of(ops[0]); uses = sum((regs_of(o) for o in ops[1:]), [])
        if mn.startswith("v_cmpx"): defs += [("s", 126), ("s", 127)]
    elif isv:
        defs = regs_of(ops[0]); uses = sum((regs_of(o.split(" ")[0]) for o in ops[1:]), [])
        if mn.startswith(("v_fmac", "v_pk_fmac", "v_dot2c")) or "_dpp" in mn or "permlane" in mn or mn.startswith("v_writelane"): uses += defs
        if "permlane" in mn and "swap" in mn: defs += regs_of(ops[1])
        if "_co_" in mn: defs += regs_of(ops[1])
        if mn.startswith("v_cndmask") and len(ops) == 3: uses += [("s", 106), ("s", 107)]
    elif mn.startswith("ds_read") or mn.startswith("ds_bperm") or mn.startswith("ds_swz"):
        defs = regs_of(ops[0]); uses = sum((regs_of(o.split(" ")[0]) for o in ops[1:]), [])
    elif mn.startswith("ds_"):
        uses = sum((regs_of(o.split(" ")[0]) for o in ops), [])
    elif mn.startswith(("buffer_load", "global_load")):
        if " lds" in l:
            uses = sum((regs_of(o.split(" ")[0]) for o in ops), []) + [("s", 124)]
        else:
            defs = regs_of(ops[0]); uses = sum((regs_of(o.split(" ")[0]) for o in ops[1:]), [])
    elif mn.startswith(("buffer_", "global_")):
        uses = sum((regs_of(o.split(" ")[0]) for o in ops), [])
    elif mn.startswith("s_"):
        if mn.startswith(("s_cmp", "s_cbranch", "s_branch", "s_waitcnt", "s_barrier", "s_nop", "s_sleep", "s_endpgm", "s_setprio")):
            uses = sum((regs_of(o) for o in ops), [])
        else:
            defs = regs_of(ops[0]); uses = sum((regs_of(o) for o in ops[1:]), [])
            if "saveexec" in mn: defs += [("s", 126), ("s", 127)]
    d.update(defs=set(defs), uses=set(uses), isv=isv, mf=mf, valu=isv and not mf,
             trans=mn.split("_e")[0] in TRANS or mn in TRANS, dpp="_dpp" in mn or "row_" in l or "quad_perm" in l,
             vmem=mn.startswith(("buffer_", "global_")), ds=mn.startswith("ds_"))
    if mf:
        d["A"] = set(regs_of(ops[1])); d["B"] = set(regs_of(ops[2])); d["C"] = set(regs_of(ops[3].split(" ")[0]))
        d["passes"] = 4 if "16x16x32" in mn else 8
    return d
def check_hazards(text):
    ins = [(i, parse(l)) for i, l in enumerate(text.split("\n"))]
    ins = [(i, d) for i, d in ins if d]
    errs = []
    for k, (ln, c) in enumerate(ins):
        dist = 0
        for b in range(k - 1, max(k - 24, -1), -1):
            pl, p = ins[b]
            need = 0
            pv = {r for r in p["defs"] if r[0] in "va"}; ps = {r for r in p["defs"] if r[0] == "s"}
            if p["valu"]:
                if c["mf"] and pv & (c["A"] | c["B"] | c["C"]): need = max(need, 2)
                if c["valu"] and c["dpp"] and pv & c["uses"]: need = max(need, 2)
                if "permlane" in c["mn"] and pv & c["uses"]: need = max(need, 2)
                if c["mn"].startswith(("v_readfirstlane", "v_readlane")) and pv & c["uses"]: need = max(need, 1)
                if p["trans"] and c["valu"] and not c["trans"] and pv & c["uses"]: need = max(need, 1)
                if p["trans"] and c["valu"] and c["trans"] and pv & c["uses"]: need = max(need, 1)
                if ps and c["vmem"] and ps & c["uses"]: need = max(need, 5)
                if ps and c["valu"] and ps & c["uses"]: need = max(need, 2)
                if ps and c["mn"].startswith(("v_readlane", "v_writelane")) and ps & c["uses"]: need = max(need, 4)
                if (("s", 126) in ps) and c["mf"]: need = max(need, 4)
                if (("s", 126) in ps) and c["dpp"]: need = max(need, 5)
            if p["mf"]:
                P = p["passes"]; full = {4: 8, 8: 12}[P]; ovl = {4: 6, 8: 10}[P]; war = {4: 3, 8: 7}[P]
                if c["mf"]:
                    if pv & (c["A"] | c["B"]): need = max(need, full)
                    if pv & c["C"] and pv != c["C"]: need = max(need, ovl)
                    if pv & c["defs"] and not (pv & c["C"]): need = max(need, ovl)
                else:
                    if pv & (c["uses"] | c["defs"]): need = max(need, full)
                    if c["valu"] and p["C"] & c["defs"]: need = max(need, war)
            if p["mn"].startswith("s_") and ("s", 124) in p["defs"] and c["vmem"] and " lds" in c["text"]: need = max(need, 1)
            if p["vmem"] and "store" in p["mn"] and ("x4" in p["mn"] or "x3" in p["mn"]):
                data = set(regs_of(p["ops"][0] if p["mn"].startswith("buffer") else p["ops"][1]))
                if data & c["defs"]: need = max(need, 2 if c["valu"] else 1)
            if need > dist:
                errs.append(f"line {ln+1}: '{c['text']}' needs {need} states after line {pl+1} '{p['text']}' (has {dist})")
            if p["mn"] == "s_nop": dist += int(p["ops"][0], 0) + 1
            else: dist += 1
    return errs
```

```python
import sys, struct
sys.path.insert(0, "dev")
from asmlib import *

NAME = "parallel_sum__ssm_conv_s5__mixer_channel_mlp__prompt"
OPT = dict(stamps=False, stop=None, nt_dma="", nt_pf="", nt_rp="", pf=0, pf0=1, pford=0, post0=10, post=20, e1=35, ew=60, e2=0, post_s=0, cpf=1, rfchk_ssm=99, rfchk_mlp=15, rpst=(4, 5, 6, 7, 8), rpflag=4, kw_mlp=14, kw_ssm=6, util=1.0, rot1=1, rot2=1)
for a_ in sys.argv[2:]:
    k_, v_ = a_.split("=", 1); OPT[k_] = eval(v_)

def f2u(x): return struct.unpack("<I", struct.pack("<f", x))[0]
def hx(x): return "0x%08x" % f2u(x)

WS_EP = 0
WS_H = 4096
WS_WP = 12 << 20
WS_E = 16 << 20
WS_RF = 17 << 20
WS_HF = (17 << 20) + 65536
WS_RS = 18 << 20
WS_ST = 20 << 20
WS_SIZE = 24 << 20
OOB = 0x4000000
L_TOK = 0; L_CH = 2048; L_PW = 7168; L_EX = 17408; L_EX2 = L_EX + 1280
L_STG = 20480; L_X = 40960; L_W = 90112; L_END = 163840
XS = 16384; WSL = 24576
L_SC = L_EX2; SCW = 384
WLW = 35840; RROW = 336; RBLK = 16 * RROW
L_WL = L_STG
NST = 10
pX, pLre, pLim, pBre, pBim, pCre, pCim, pLdt = 16, 18, 20, 22, 24, 26, 28, 30
pDsk, pBx, pW1, pB1, pW2, pB2, pOut, pDbg, pWs = 32, 34, 36, 38, 40, 42, 44, 46, 48
sW, sWR, sWC, sMT, sNT, sTYP, sHALF, sDT = 3, 4, 5, 6, 7, 8, 8, 7
sML, sI8 = 9, 10
sNonce = 11; sT0, sT1, sT2, sT3 = 12, 13, 14, 15
sKs = 50; sPF = 51
rX, rW, rWS, rT, rT2 = 52, 56, 60, 64, 68
sX, sLX, sLW, sB0, sB2, sPFs, sUnit, sRpSrc, sLR, sSpin = 72, 73, 74, 75, 76, 77, 78, 79, 80, 81
sK = 82; sEx = 84
sH, sHw, sWp, sDis = 86, 87, 88, 89
sST = 90
sRpD = 92
sSig = 97
sWa, sHa, sLim = 18, 22, 26
sDX, sDW = 77, 51
rPF = rT2
vL, vN, vQ = 1, 2, 3
vDX0, vDX1, vXa, vXb = 4, 5, 6, 7
vDW = 8
vPF, vDR, vJunk, vNc = 10, 11, 12, 13
vWA = 14
vRA = 22
vL16 = 26
vRS = 27
vB1 = 28
vT = 40
vST = 99
ACC = 160
def acc(i, j): return ACC + (i * 4 + j) * 4
aF = [0, 40]
aONE = 80; aCS = 84

k = Asm()
k.strict = OPT.get('strict', False)
k.lenient = OPT['stamps']
stamp_n = [0]
def stamp(i=None):
    if not OPT["stamps"]: return
    if i is None:
        i = stamp_n[0]; stamp_n[0] += 1
    k.e(f"{'s_memtime' if OPT.get('cyc') else 's_memrealtime'} s[{sST}:{sST+1}]"); k.e("s_waitcnt lgkmcnt(0)"); k.lg = []
    k.e(f"v_writelane_b32 v{vST}, s{sST}, {i}")
def srd(r, ptr, size):
    k.e(f"s_mov_b32 s{r}, s{ptr}\ns_mov_b32 s{r+1}, s{ptr+1}\ns_mov_b32 s{r+2}, {size}\ns_mov_b32 s{r+3}, 0x20000")

class F:
    def __init__(self, fn, cost=1, ds=False, sep=False, ta=0): self.fn, self.cost, self.ds, self.sep, self.ta = fn, cost, ds, sep, ta
    def __call__(self): self.fn()
def lines(s):
    out = []
    for l in (x.strip() for x in s.split("\n")):
        if not l: continue
        parts = l.split(" | ")
        c = sum(2 if x.split()[0] in TRANS else 1 for x in parts)
        out.append(F(lambda l=l: k.e(l.replace(" | ", "\n")), c))
    return out
def VM(text, tag, sep=False, ta=66): return F(lambda: k.vmem(text, tag), 2, sep=sep, ta=ta)
def DSF(text, tag=None): return F(lambda: k.ds(text, tag), 1, ds=True)
def sched(main, streams, start=0):
    n = len(main)
    st = []
    for items, g0, g1, must in streams:
        cnt = len(items) if must else min(len(items), must if isinstance(must, int) and must > 1 else len(items))
        tot = sum(f.cost for f in items[:cnt]) or 1
        tg = []; acc_ = 0
        for f in items[:cnt]:
            tg.append(g0 + (g1 - g0) * acc_ / tot if must else g0); acc_ += f.cost
        st.append(dict(items=items, tg=tg, last=-1, must=must))
    for g, m in enumerate(main):
        k.e(m)
        if g < start: continue
        room = 2; hasds = False
        prog = True
        while prog and room > 0:
            prog = False
            for x in st:
                if not x["tg"] or x["tg"][0] > g: continue
                f = x["items"][0]
                if f.sep and x["last"] == g: continue
                if f.ds and hasds: continue
                if f.cost > room and room < 2 and not (not x["must"] and g - x["last"] >= 3): continue
                x["items"].pop(0); x["tg"].pop(0); x["last"] = g
                f(); room -= f.cost; hasds |= f.ds; prog = True
                break
    for x in st:
        if x["must"]:
            over = len(x["tg"])
            if over and OPT.get("show"): print("overflow", over)
            while x["tg"]:
                f = x["items"].pop(0); x["tg"].pop(0)
                if f.sep: k.e("s_nop 0")
                f()
def merge(*ls):
    ls = [l for l in ls if l]
    if not ls: return []
    if len(ls) == 1: return list(ls[0])
    items = []
    for li, l in enumerate(ls):
        for i, f in enumerate(l): items.append(((i + 0.5) / len(l), li, i, f))
    items.sort(key=lambda x: (x[0], x[1]))
    return [x[3] for x in items]

def prologue():
    t = vT
    k.e(f"""
    s_cmp_ge_u32 s2, 256
    s_cbranch_scc1 L_end
    s_load_dwordx16 s[16:31], s[0:1], 0
    s_load_dwordx16 s[32:47], s[0:1], 64
    s_load_dwordx2 s[48:49], s[0:1], 128
    v_lshrrev_b32 v{t}, 6, v0
    v_and_b32 v{vL}, 63, v0
    v_readfirstlane_b32 s{sW}, v{t}
    v_and_b32 v{vN}, 15, v{vL}
    v_lshrrev_b32 v{vQ}, 4, v{vL}
    v_lshlrev_b32 v{vL16}, 4, v{vL}
    s_and_b32 s{sT0}, s2, 7
    s_lshr_b32 s{sT1}, s2, 3
    s_lshr_b32 s{sTYP}, s{sT1}, 4
    s_bfe_u32 s{sML}, s{sT1}, 0x20002
    s_lshr_b32 s{sMT}, s{sT0}, 1
    s_lshl_b32 s{sT2}, s{sML}, 2
    s_add_u32 s{sMT}, s{sMT}, s{sT2}
    s_and_b32 s{sT2}, s{sT1}, 3
    s_lshl_b32 s{sI8}, s{sTYP}, 2
    s_add_u32 s{sI8}, s{sI8}, s{sT2}
    s_and_b32 s{sNT}, s{sT0}, 1
    s_lshl_b32 s{sNT}, s{sNT}, 2
    s_add_u32 s{sNT}, s{sNT}, s{sT2}
    s_lshr_b32 s{sWR}, s{sW}, 1
    s_and_b32 s{sWC}, s{sW}, 1
    s_xor_b32 s{sKs}, s{sWR}, s{sWC}
    s_mov_b32 s{sSpin}, 0x40000
    s_and_b32 s{sT2}, s2, 127
    s_sub_u32 s{sT3}, 255, s2
    s_cmp_eq_u32 s{sTYP}, 1
    s_cselect_b32 s{sUnit}, s{sT2}, s{sT3}
    s_cmp_lt_u32 s{sUnit}, 176
    s_cselect_b32 s{sUnit}, s{sUnit}, s{sT2}
    s_cselect_b32 s{sDis}, 0, {OOB}
    """)
    if OPT["stamps"]:
        k.e(f"v_mov_b32 v{vST}, 0\n{'s_memtime' if OPT.get('cyc') else 's_memrealtime'} s[{sST}:{sST+1}]\ns_memtime s[98:99]"); stamp_n[0] = 1
    if OPT["cpf"]:
        k.e(f"""
        s_getpc_b64 s[{sEx}:{sEx+1}]
        s_lshr_b32 s{sT1}, s2, 3
        s_lshl_b32 s{sT1}, s{sT1}, 2
        s_add_u32 s{sT1}, s{sT1}, s{sW}
        s_lshl_b32 s{sT1}, s{sT1}, 9
        v_and_b32 v{t}, 3, v{vL}
        v_lshlrev_b32 v{t}, 7, v{t}
        v_add_u32 v{t}, s{sT1}, v{t}
        v_min_u32 v{t}, CODE_BYTES, v{t}
        global_load_dword v{vJunk}, v{t}, s[{sEx}:{sEx+1}]
        """)
    k.e(f"""
    v_lshrrev_b32 v{t}, 3, v{vL}
    v_and_b32 v{t+1}, 7, v{vL}
    v_lshrrev_b32 v{t+2}, 1, v{t}
    v_xor_b32 v{t+2}, v{t+1}, v{t+2}
    v_mul_u32_u24 v{t+3}, 5120, v{t}
    v_lshl_add_u32 v{vDX0}, v{t+2}, 4, v{t+3}
    v_xor_b32 v{vDX1}, 64, v{vDX0}
    v_add_u32 v{vDX1}, 40960, v{vDX1}
    s_lshl_b32 s{sT0}, s{sMT}, 7
    s_lshl_b32 s{sT1}, s{sWR}, 6
    s_add_u32 s{sT0}, s{sT0}, s{sT1}
    s_lshl_b32 s{sT1}, s{sWC}, 1
    s_add_u32 s{sT0}, s{sT0}, s{sT1}
    s_mul_i32 s{sX}, s{sT0}, 1280
    s_lshl_b32 s{sLX}, s{sW}, 12
    s_lshl_b32 s{sT2}, s{sKs}, 2
    v_add_u32 v{t+4}, s{sT2}, v{vQ}
    v_lshrrev_b32 v{t+5}, 1, v{vN}
    v_xor_b32 v{t+5}, v{t+4}, v{t+5}
    v_lshlrev_b32 v{t+5}, 4, v{t+5}
    v_lshl_add_u32 v{t+5}, v{vN}, 7, v{t+5}
    s_lshl_b32 s{sT1}, s{sWC}, 13
    s_add_u32 s{sT1}, s{sT1}, {L_X}
    v_add_u32 v{vXa}, s{sT1}, v{t+5}
    v_xor_b32 v{vXb}, 64, v{vXa}
    s_cmp_eq_u32 s{sTYP}, 1
    s_cbranch_scc1 L_mlp
    """)

issued = {}
mark = []
def dma(vo, rs, so, imm, sl, tgt, tag, fl, pre=None):
    def f1():
        k.e(f"s_add_u32 m0, s{sl}, {tgt - imm}")
        if pre: k.e(pre)
    def f2():
        if isinstance(tag, tuple): issued[tag[1]] = issued.get(tag[1], 0) + 1
        k.vmem(f"buffer_load_dwordx4 v{vo}, s[{rs}:{rs+3}], s{so} offen offset:{imm} {fl} lds", tag)
    return [F(f1, 2 if pre else 1), F(f2, 2, sep=True, ta=66)]
def run(ops):
    for op in ops:
        for f in (op if isinstance(op, list) else [op]):
            if f.sep: k.e("s_nop 0")
            f()
def flat(ops): return [f for op in ops for f in (op if isinstance(op, list) else [op])]
def advance(typ):
    d = 64*3072 if typ == "mlp" else 128
    return (f"s_cmp_eq_u32 s{sSig}, 9 | s_cselect_b32 s{sDX}, {-9*128 & 0xffffffff}, s{sDX} | s_cselect_b32 s{sDW}, {-9*d & 0xffffffff}, s{sDW} | s_cselect_b32 s{sSig}, -1, s{sSig}\n"
            f"s_add_u32 s{sX}, s{sX}, s{sDX}\ns_add_u32 s{sB0}, s{sB0}, s{sDW}\ns_add_u32 s{sB2}, s{sB2}, s{sDW}\n"
            f"s_add_u32 s{sSig}, s{sSig}, 1\ns_movk_i32 s{sDX}, 128\ns_mov_b32 s{sDW}, {d}")
def rot_setup(typ):
    d = 64*3072 if typ == "mlp" else 128
    k.e(f"""
    s_mul_i32 s{sT0}, s{sI8}, 5
    s_lshr_b32 s{sT0}, s{sT0}, 2
    s_mul_i32 s{sT1}, s{sML}, 5
    s_lshr_b32 s{sT1}, s{sT1}, 1
    s_add_u32 s{sT0}, s{sT0}, s{sT1}
    s_and_b32 s{sT1}, s{sMT}, 3
    s_add_u32 s{sSig}, s{sT0}, s{sT1}
    s_sub_u32 s{sT0}, s{sSig}, 10
    s_cmp_ge_u32 s{sSig}, 10
    s_cselect_b32 s{sSig}, s{sT0}, s{sSig}
    s_mul_i32 s{sSig}, s{sSig}, {OPT['rot1']}
    s_lshl_b32 s{sT0}, s{sSig}, 7
    s_add_u32 s{sX}, s{sX}, s{sT0}
    s_mul_i32 s{sT0}, s{sSig}, {d}
    s_add_u32 s{sB0}, s{sB0}, s{sT0}
    s_add_u32 s{sB2}, s{sB2}, s{sT0}
    s_movk_i32 s{sDX}, 128
    s_mov_b32 s{sDW}, {d}
    """)
def dma_x(stage, g):
    return dma(vDX0 + (g & 1), rX, sX, (g >> 1) * 1280, sLX, L_X + (stage % 3) * XS + g * 1024, ("st", stage), OPT["nt_dma"])
def dma_w(typ, stage, g):
    base = L_W + (stage % 3) * WSL
    if typ == "mlp":
        rg, cg = g // 3, g % 3
        return dma(vDW + rg, rW, sB2 if rg else sB0, cg * 128, sLW, base + cg * 8192 + rg * 1024, ("st", stage), OPT["nt_dma"])
    imm = 2560 if (g < 4 and g & 1) else 0
    return dma(vDW + (1 if g == 4 else 0), rW, sB2 if g in (2, 3) else sB0, imm, sLW, base + g * 2048, ("st", stage), OPT["nt_dma"])
def dma_stage(typ, stage):
    nw = 6 if typ == "mlp" else 5
    ops = merge([dma_x(stage, g) for g in range(4)], [dma_w(typ, stage, g) for g in range(nw)])
    if stage > 0: ops[0] = lines(advance(typ)) + ops[0]
    return ops
def pf(a):
    def f():
        if not OPT["pf"]: return
        k.vmem(f"buffer_load_dword v{vJunk}, v{vPF}, s[{rPF}:{rPF+3}], s{sPF} offen {OPT['nt_pf']}", "pf")
        k.e(f"s_add_u32 s{sPF}, s{sPF}, s{sPFs}")
    return F(f, 3)

def frag_reads(typ, stage, blk, fs):
    slot = stage % 3
    nr = 6 if typ == "mlp" else 5
    vx = vXa if blk == 0 else vXb
    xr = [DSF(f"ds_read_b128 {A(aF[fs] + 24 + 4*j, 4)}, v{vx} offset:{slot*XS + j*2048}") for j in range(4)]
    wr_ = []
    for i in range(nr):
        if typ == "mlp":
            for h in range(2):
                wr_.append(DSF(f"ds_read_b64_tr_b16 {A(aF[fs] + 4*i + 2*h, 2)}, v{vWA + blk*4 + (i & 3)} offset:{slot*WSL + (i >> 2)*8192 + h*512}"))
        else:
            wr_.append(DSF(f"ds_read_b128 {A(aF[fs] + 4*i, 4)}, v{vWA + blk} offset:{slot*WSL + i*2048}"))
    return merge(xr, wr_)

def mfmas(typ, stage, blk, fs):
    nr = 6 if typ == "mlp" else 5
    first = stage == 0
    out = []
    Af = lambda i: A(aF[fs] + 4*i, 4)
    Bf = lambda j: A(aF[fs] + 24 + 4*j, 4)
    for i in range(nr):
        for j in range(4):
            c = "0" if (first and blk == 0) else V(acc(i, j), 4)
            out.append(f"v_mfma_f32_16x16x32_bf16 {V(acc(i,j),4)}, {Af(i)}, {Bf(j)}, {c}")
    if blk == 1:
        for i in range(nr):
            out.append(f"v_mfma_f32_16x16x32_bf16 {A(aCS+4*i,4)}, {Af(i)}, {A(aONE,4)}, {'0' if first else A(aCS+4*i,4)}")
    if blk == 1 and stage == NST - 1: out = out[-nr:] + out[:-nr]
    return out

XR = 124
def start_loads(typ):
    t = vT
    k.e("s_waitcnt lgkmcnt(0)")
    if OPT["stamps"]: k.e(f"v_writelane_b32 v{vST}, s{sST}, 0")
    stamp(12)
    k.e(f"""
    s_or_b32 s{sT0}, s2, s{sW}
    s_cmp_lg_u32 s{sT0}, 0
    s_cbranch_scc1 L_nononce_{typ}
    s_memrealtime s[{sT0}:{sT1}]
    s_waitcnt lgkmcnt(0)
    s_or_b32 s{sT0}, s{sT0}, 1
    v_mov_b32 v{t+8}, s{sT0}
    v_mov_b32 v{t+9}, 0
    global_store_dword v{t+9}, v{t+8}, s[{pDbg}:{pDbg+1}] sc1
    L_nononce_{typ}:
    """)
    srd(rX, pX, 2048 * 1280)
    if typ == "mlp": srd(rW, pW1, 640 * 3072)
    else:
        k.e(f"""
        s_cmp_eq_u32 s{sWC}, 0
        s_cselect_b32 s{rW}, s{pBre}, s{pBim}
        s_cselect_b32 s{rW+1}, s{pBre+1}, s{pBim+1}
        s_mov_b32 s{rW+2}, {640*1280}
        s_mov_b32 s{rW+3}, 0x20000
        """)
    run(dma_stage(typ, 0))
    stamp(13)
    srd(rWS, pWs, WS_SIZE)
def xr_setup():
    k.e(f"""
    s_lshl_b32 s{sT0}, s{sTYP}, 3
    s_add_u32 s{sT0}, s{sT0}, s{sNT}
    s_lshl_b32 s{sT0}, s{sT0}, 2
    s_add_u32 s{sT0}, s{sT0}, s{sW}
    s_lshl_b32 s{sT0}, s{sT0}, 1
    s_lshl_b32 s{sT1}, s{sMT}, 7
    s_add_u32 s{sHw}, s{sT0}, s{sT1}
    s_mul_i32 s{sH}, s{sHw}, 1280
    v_lshrrev_b32 v{XR+10}, 5, v{vL}
    v_mul_u32_u24 v{XR+10}, 1280, v{XR+10}
    v_and_b32 v{XR+11}, 31, v{vL}
    v_lshl_add_u32 v{XR+10}, v{XR+11}, 3, v{XR+10}
    """)
def xr_loads():
    return [VM(f"buffer_load_dwordx2 {V(XR+2*i,2)}, v{XR+10}, s[{rX}:{rX+3}], s{sH} offen offset:{256*i}", "xr", ta=36) for i in range(5)]

def pf_setup(typ):
    t = vT + 10
    k.e(f"""
    v_mul_u32_u24 v{t}, 52, v{vL}
    v_lshrrev_b32 v{t}, 10, v{t}
    v_mul_u32_u24 v{t+1}, 20, v{t}
    v_sub_u32 v{t+1}, v{vL}, v{t+1}
    s_lshl_b32 s{sT0}, s{sMT}, 7
    s_lshl_b32 s{sT1}, s{sI8}, 4
    s_add_u32 s{sT0}, s{sT0}, s{sT1}
    s_mul_i32 s{sT0}, s{sT0}, 1280
    s_add_u32 s{sT0}, s{sT0}, {128*OPT['pf0']}
    """)
    if typ == "mlp":
        k.e(f"""
        s_lshl_b32 s{sT1}, s{sML}, 4
        s_add_u32 s{sT1}, s{sT1}, {64*OPT['pf0']}
        s_mul_i32 s{sT1}, s{sT1}, 3072
        s_mul_i32 s{sT2}, s{sNT}, 384
        s_add_u32 s{sT1}, s{sT1}, s{sT2}
        s_lshl_b32 s{sT2}, s{sW}, 7
        s_add_u32 s{sT1}, s{sT1}, s{sT2}
        s_cmp_eq_u32 s{sW}, 3
        s_cselect_b32 s{sPF}, s{sT0}, s{sT1}
        s_mov_b32 s{sT2}, {64*3072}
        s_cselect_b32 s{sT2}, 128, s{sT2}
        s_mov_b32 s{sT3}, 3072
        s_cselect_b32 s{sT3}, 1280, s{sT3}
        s_mov_b32 s{sT0}, 16
        """)
    else:
        k.e(f"""
        s_mul_i32 s{sT1}, s{sNT}, 80
        s_mul_i32 s{sT2}, s{sML}, 20
        s_add_u32 s{sT1}, s{sT1}, s{sT2}
        s_mul_i32 s{sT1}, s{sT1}, 1280
        s_add_u32 s{sT1}, s{sT1}, {128*OPT['pf0']}
        s_cmp_eq_u32 s{sW}, 3
        s_cselect_b32 s{sPF}, s{sT0}, s{sT1}
        s_cselect_b32 s{sT0}, 16, 20
        s_cmp_eq_u32 s{sW}, 2
        s_cselect_b32 s{sT0}, 0, s{sT0}
        s_mov_b32 s{sT2}, 128
        s_mov_b32 s{sT3}, 1280
        """)
    k.e(f"""
    s_mul_i32 s{sPFs}, s{sT2}, 3
    v_mul_lo_u32 v{vPF}, v{t}, s{sT2}
    v_mul_lo_u32 v{t+2}, v{t+1}, s{sT3}
    v_add_u32 v{vPF}, v{vPF}, v{t+2}
    v_cmp_gt_u32 vcc, s{sT0}, v{t+1}
    v_cmp_gt_u32 s[{sT2}:{sT3}], 60, v{vL}
    s_and_b64 vcc, vcc, s[{sT2}:{sT3}]
    v_mov_b32 v{t+2}, {OOB}
    s_nop 0
    v_cndmask_b32 v{vPF}, v{t+2}, v{vPF}, vcc
    """)

def repack_setup(tag):
    t = vT
    k.e(f"""
    v_lshrrev_b32 v{t}, 3, v{vL}
    v_and_b32 v{t+1}, 7, v{vL}
    v_mul_u32_u24 v{t}, 1280, v{t}
    v_lshl_add_u32 v{t}, v{t+1}, 4, v{t}
    v_or_b32 v{vDR}, s{sDis}, v{t}
    v_or_b32 v{vRS}, s{sDis}, v{vL16}
    s_lshl_b32 s{sLR}, s{sW}, 10
    s_and_b32 s{sT0}, s{sUnit}, 1
    s_lshr_b32 s{sT1}, s{sUnit}, 1
    s_mov_b32 s{rT+3}, 0x20000
    s_cmp_lt_u32 s{sUnit}, 96
    s_cbranch_scc0 L_rpC_{tag}
    s_mov_b32 s{rT}, s{pW2}
    s_mov_b32 s{rT+1}, s{pW2+1}
    s_mov_b32 s{rT+2}, {1536*1280}
    s_lshl_b32 s{sT2}, s{sT1}, 2
    s_add_u32 s{sT2}, s{sT2}, s{sW}
    s_mul_i32 s{sRpSrc}, s{sT2}, {8*1280}
    s_mul_i32 s{sT2}, s{sT1}, 5462
    s_lshr_b32 s{sT2}, s{sT2}, 16
    s_mul_i32 s{sT2}, s{sT2}, 10
    s_add_u32 s{sT1}, s{sT1}, s{sT2}
    s_mul_i32 s{sT1}, s{sT1}, 5120
    s_add_u32 s{sT1}, s{sT1}, {WS_WP}
    s_mul_i32 s{sT2}, s{sT0}, 20
    s_add_u32 s{sT2}, s{sT2}, s{sW}
    """)
    for i in range(5):
        k.e(f"""
        s_mul_i32 s{sT3}, s{sT2}, 13108
        s_lshr_b32 s{sT3}, s{sT3}, 16
        s_mul_i32 s{sT3}, s{sT3}, 435
        s_add_u32 s{sT3}, s{sT3}, s{sT2}
        s_lshl_b32 s{sT3}, s{sT3}, 10
        s_add_u32 s{sRpD+i}, s{sT3}, s{sT1}
        s_add_u32 s{sT2}, s{sT2}, 4
        """)
    k.e(f"""
    v_lshrrev_b32 v{t}, 2, v{vN}
    v_lshl_add_u32 v{t}, v{vQ}, 2, v{t}
    v_lshlrev_b32 v{t}, 7, v{t}
    v_and_b32 v{t+1}, 3, v{vN}
    v_lshl_add_u32 v{t}, v{t+1}, 3, v{t}
    s_lshl_b32 s{sT2}, s{sW}, 5
    s_add_u32 s{sT2}, s{sT2}, {L_STG}
    v_add_u32 v{vRA}, s{sT2}, v{t}
    s_branch L_rpJ_{tag}
    L_rpC_{tag}:
    s_sub_u32 s{sT1}, s{sT1}, 48
    s_cmp_eq_u32 s{sWR}, 0
    s_cselect_b32 s{rT}, s{pCre}, s{pCim}
    s_cselect_b32 s{rT+1}, s{pCre+1}, s{pCim+1}
    s_mov_b32 s{rT+2}, {640*1280}
    s_lshl_b32 s{sT2}, s{sT1}, 1
    s_add_u32 s{sT2}, s{sT2}, s{sWC}
    s_mul_i32 s{sRpSrc}, s{sT2}, {8*1280}
    s_mul_i32 s{sT2}, s{sT1}, 13108
    s_lshr_b32 s{sT2}, s{sT2}, 16
    s_mul_i32 s{sT2}, s{sT2}, 435
    s_add_u32 s{sT1}, s{sT1}, s{sT2}
    s_lshl_b32 s{sT2}, s{sT0}, 1
    s_add_u32 s{sT2}, s{sT2}, s{sWR}
    s_mul_i32 s{sT2}, s{sT2}, 110
    s_add_u32 s{sT1}, s{sT1}, s{sT2}
    s_mul_i32 s{sT2}, s{sWC}, 25
    s_add_u32 s{sT1}, s{sT1}, s{sT2}
    s_add_u32 s{sT1}, s{sT1}, 60
    s_lshl_b32 s{sT1}, s{sT1}, 10
    s_add_u32 s{sRpD}, s{sT1}, {WS_WP}
    s_add_u32 s{sRpD+1}, s{sRpD}, 5120
    s_add_u32 s{sRpD+2}, s{sRpD}, 10240
    s_add_u32 s{sRpD+3}, s{sRpD}, 15360
    s_add_u32 s{sRpD+4}, s{sRpD}, 20480
    s_mul_i32 s{sT2}, s{sW}, 160
    v_lshlrev_b32 v{t+2}, 7, v{vN}
    v_add_u32 v{t+2}, {L_STG}, v{t+2}
    """)
    for x, (off, sh) in enumerate(((0, 4), (80, 4), (64, 2), (144, 2))):
        k.e(f"""
        s_add_u32 s{sT3}, s{sT2}, {off}
        v_lshl_add_u32 v{t}, v{vQ}, {sh}, s{sT3}
        v_lshrrev_b32 v{t+1}, 7, v{t}
        v_and_b32 v{t}, 127, v{t}
        v_lshl_add_u32 v{t}, v{t+1}, 12, v{t}
        v_add_u32 v{vRA+x}, v{t}, v{t+2}
        """)
    k.e(f"""
    L_rpJ_{tag}:
    s_mul_i32 s{sT0}, s{sT0}, 640
    s_add_u32 s{sRpSrc}, s{sRpSrc}, s{sT0}
    """)
def repack_dma():
    return [dma(vDR, rT, sRpSrc, g * 128, sLR, L_STG + g * 4096, "rp", OPT["nt_rp"]) for g in range(5)]
RP = 136
def repack_read(tag):
    def f():
        s = f"s_cmp_lt_u32 s{sUnit}, 96\ns_cbranch_scc0 L_rqC_{tag}\n"
        for i in range(5):
            for h in range(2): s += f"ds_read_b64_tr_b16 {V(RP+4*i+2*h,2)}, v{vRA} offset:{i*4096 + h*2048}\n"
        s += f"""s_branch L_rqJ_{tag}
        L_rqC_{tag}:
        ds_read_b128 {V(RP,4)}, v{vRA}
        ds_read_b128 {V(RP+4,4)}, v{vRA} offset:2048
        ds_read_b128 {V(RP+8,4)}, v{vRA+1}
        ds_read_b128 {V(RP+12,4)}, v{vRA+1} offset:2048
        ds_read_b32 v{RP+16}, v{vRA+2}
        ds_read_b32 v{RP+17}, v{vRA+2} offset:2048
        ds_read_b32 v{RP+18}, v{vRA+3}
        ds_read_b32 v{RP+19}, v{vRA+3} offset:2048
        L_rqJ_{tag}:
        """
        k.e(s)
    return [F(f, 12)]
def repack_store():
    return [VM(f"buffer_store_dwordx4 {V(RP+4*i,4)}, v{vRS}, s[{rWS}:{rWS+3}], s{sRpD+i} offen sc1", ("rps", i), ta=240) for i in range(5)]
def repack_flag():
    t = vT
    fl = lines(f"""
    v_mov_b32 v{t}, s{sNonce}
    v_mov_b32 v{t+1}, s{sNonce}
    s_lshl_b32 s{sT0}, s{sUnit}, 7
    s_add_u32 s{sT0}, s{sT0}, {WS_RF}
    s_cmp_eq_u32 s{sW}, 0 | s_cselect_b32 s{sT1}, s{sDis}, {OOB}
    v_lshlrev_b32 v{t+2}, 26, v{vL}
    v_or_b32 v{t+2}, s{sT1}, v{t+2}
    """)
    return fl + [VM(f"buffer_store_dwordx2 {V(t,2)}, v{t+2}, s[{rWS}:{rWS+3}], s{sT0} offen sc1", "rf", ta=20)]

def bfr(d, s): return f"v_cvt_pk_bf16_f32 v{d}, v{s}, v{s}\nv_and_b32 v{d}, 0xffff0000, v{d}\n"
def nonce_load():
    return lines(f"v_mov_b32 v{vNc}, 0") + [VM(f"global_load_dword v{vNc}, v{vNc}, s[{pDbg}:{pDbg+1}] sc1", "nc", ta=20)]
def rowstat_job(tag):
    t = vT + 20
    S_, Q, MEAN, VAR, S1, X, Y = t, t+1, t+2, t+3, t+4, t+5, t+6
    G0, G1 = t+8, t+12
    M1, A1, A2, AM = G0, G0+2, G1, G1+2
    def dots():
        k.wait_vm("xr")
        s = f"v_mov_b32 v{X}, 0x3f803f80\nv_mov_b32 v{S_}, 0\nv_mov_b32 v{Q}, 0\n"
        for i in range(10): s += f"v_dot2c_f32_bf16 v{S_}, v{XR+i}, v{X}\nv_dot2c_f32_bf16 v{Q}, v{XR+i}, v{XR+i}\n"
        s += "s_nop 2\n"
        k.e(s)
    fl = [F(dots, 24)]
    for d in ("row_shr:1", "row_shr:2", "row_shr:4", "row_shr:8", "row_bcast:15"):
        rm = "0xa" if "bcast" in d else "0xf"
        fl.append(F(lambda d=d, rm=rm: k.e(f"v_add_f32_dpp v{S_}, v{S_}, v{S_} {d} row_mask:{rm} bank_mask:0xf bound_ctrl:0"), 1, sep=True))
        fl.append(F(lambda d=d, rm=rm: k.e(f"v_add_f32_dpp v{Q}, v{Q}, v{Q} {d} row_mask:{rm} bank_mask:0xf bound_ctrl:0"), 1))
    fl += lines(f"""
    v_mul_f32 v{MEAN}, {hx(1/640)}, v{S_}
    v_mul_f32 v{VAR}, {hx(1/640)}, v{Q}
    v_fma_f32 v{VAR}, -v{MEAN}, v{MEAN}, v{VAR}
    v_max_f32 v{VAR}, 0, v{VAR}
    {bfr(M1, MEAN)}{bfr(X, VAR)}
    v_add_f32 v{X}, {hx(1e-5)}, v{X}
    {bfr(X, X)}
    v_sqrt_f32 v{X}, v{X}
    v_sub_f32 v{Y}, v{MEAN}, v{M1}
    {bfr(S1, X)}
    v_rcp_f32 v{A1}, v{S1}
    s_nop 0
    v_mul_f32 v{Y}, v{Y}, v{A1}
    v_mul_f32 v{X}, v{VAR}, v{A1}
    {bfr(Y, Y)}
    v_mul_f32 v{X}, v{X}, v{A1}
    {bfr(X, X)}
    v_add_f32 v{X}, {hx(1e-5)}, v{X}
    {bfr(X, X)}
    v_sqrt_f32 v{X}, v{X}
    v_fma_f32 v{Y}, v{Y}, v{S1}, v{M1}
    {bfr(X, X)}
    v_mul_f32 v{X}, v{X}, v{S1}
    v_rcp_f32 v{A2}, v{X}
    v_and_b32 v{X}, 31, v{vL}
    v_mul_f32 v{AM}, v{A2}, v{Y}
    v_cmp_eq_u32 vcc, 31, v{X} | v_and_b32 v{X}, 32, v{vL} | v_mov_b32 v{Y}, {OOB} | v_cndmask_b32 v{X}, v{Y}, v{X}, vcc
    s_lshl_b32 s{sT0}, s{sHw}, 5
    s_add_u32 s{sT0}, s{sT0}, {WS_RS}
    """)
    def nonce():
        k.wait_vm("nc")
        k.e(f"""
        v_readfirstlane_b32 s{sNonce}, v{vNc}
        s_cmp_lg_u32 s{sNonce}, 0
        s_cbranch_scc1 L_ncok_{tag}
        L_ncl_{tag}:
        s_sleep 1
        global_load_dword v{vNc}, v{Y}, s[{pDbg}:{pDbg+1}] sc1
        s_sub_u32 s{sSpin}, s{sSpin}, 1
        s_cbranch_scc1 L_end
        s_waitcnt vmcnt(0)
        v_readfirstlane_b32 s{sNonce}, v{vNc}
        s_cmp_eq_u32 s{sNonce}, 0
        s_cbranch_scc1 L_ncl_{tag}
        L_ncok_{tag}:
        s_nop 0
        """)
    fl += lines(f"v_mov_b32 v{Y}, 0") + [F(nonce, 4)]
    fl += lines(f"""
    v_mov_b32 v{G0+1}, s{sNonce}
    v_mov_b32 v{G0+3}, s{sNonce}
    v_mov_b32 v{G1+1}, s{sNonce}
    v_mov_b32 v{G1+3}, s{sNonce}
    """)
    fl.append(VM(f"buffer_store_dwordx4 {V(G0,4)}, v{X}, s[{rWS}:{rWS+3}], s{sT0} offen sc1", "rs", ta=20))
    fl.append(VM(f"buffer_store_dwordx4 {V(G1,4)}, v{X}, s[{rWS}:{rWS+3}], s{sT0} offen offset:16 sc1", "rs", ta=20))
    return fl
RSV = 124
def rowstat_fetch():
    fl = lines(f"""
    s_lshl_b32 s{sT0}, s{sMT}, 12
    s_add_u32 s{sT0}, s{sT0}, {WS_RS}
    v_lshlrev_b32 v{RSV+4}, 4, v0
    v_add_u32 v{RSV+4}, s{sT0}, v{RSV+4}
    """)
    return fl + [VM(f"buffer_load_dwordx4 {V(RSV,4)}, v{RSV+4}, s[{rWS}:{rWS+3}], 0 offen sc1", "rsv")]

def ta_of(op): return sum(f.ta for f in flat([op]))
def main_loop(typ, jobs, vq, bg):
    q = [(max(0, 2*st - 5), max(2*st - 4 + (x >= 5) - OPT.get('lag', 0), x >= 5), op) for st in range(2, NST) for x, op in enumerate(dma_stage(typ, st))]
    q = sorted(q + vq, key=lambda x: x[1])
    credit = [OPT.get("credit0", 0)]
    def take(bi, n):
        credit[0] = min(credit[0] + n * 17 * OPT["util"], n * 17 + 100) - sum(ta_of(x) for x in jobs.get(("pre", bi), []) + jobs.get(bi, []))
        out = []
        while True:
            c = [x for x in q if x[0] <= bi]
            if not c or (credit[0] < 33 and c[0][1] > bi): break
            q.remove(c[0]); out.append(c[0][2]); credit[0] -= ta_of(c[0][2])
        if OPT.get('show'): print(typ, bi, len(out), len(jq), len(bg), int(credit[0]), dict(issued))
        return flat(out)
    jq = []
    k.wait_vm(("st", 0)); k.e("s_barrier")
    stamp()
    run(frag_reads(typ, 0, 0, 0))
    def block(bi, m, reads, n):
        run(jobs.get(("pre", bi), []))
        jq.extend(jobs.get(bi, []))
        d = take(bi, n)
        n = len(m)
        if bi == 2*NST - 1: reads, r0 = jobs["last"], 12
        else: r0 = 0
        sched(m, [(d, 0, n - 1, True), (reads, r0, n - OPT.get("rend", 6), True), (jq, 0, n, False), (bg if bi >= OPT.get("bg0", 12) else [], 0, n, False)])
    for s in range(NST):
        k.wait_lg()
        m = mfmas(typ, s, 0, 0)
        block(2*s, m, frag_reads(typ, s, 1, 1), len(m))
        k.wait_lg()
        m = mfmas(typ, s, 1, 1)
        k.e(m[0]); k.e(m[1])
        if s + 1 < NST:
            if OPT.get("fine"): stamp(16 + 3*s)
            assert issued.get(s + 1, 0) == (10 if typ == "mlp" else 9), (typ, s, issued)
            for tg in jobs.get(("wait", s), []): assert tg in k.seen, tg
            k.wait_vm([("st", s + 1)] + jobs.get(("wait", s), []))
            if OPT.get("fine"): stamp(17 + 3*s)
            k.e("s_barrier")
        block(2*s + 1, m[2:], frag_reads(typ, s + 1, 0, 0) if s + 1 < NST else [], len(m))
    assert not jq and len(bg) < 12, (len(jq), len(bg))
    run(bg)
    stamp()
    if OPT["stop"] == "loop": k.e("s_branch L_fin")
    return [x[2] for x in q]

WSLOT = [("a", 108 + 20*x) for x in range(7)] + [("a", 20*x) for x in range(5)] + [("v", 100 + 20*x) for x in range(3)]
NREG = 15
def wreg(tk): return WSLOT[tk] if tk < NREG else WSLOT[tk - NREG]
def kaddr(dst, base, tk, stride, extra=0):
    g = 0 if tk < 12 else 1
    return lines(f"s_cmp_gt_u32 s{sLim+g}, {tk} | s_cselect_b32 s{dst}, s{base+2*g}, s{base+2*g+1}\ns_add_u32 s{dst}, s{dst}, {tk*stride + extra}")
def wload(tk):
    kind, base = wreg(tk)
    out = []
    for i in range(5):
        op = []
        if i == 0: op += kaddr(sT2, sWa, tk, 5120)
        if i == 4: op += lines(f"s_add_u32 s{sT2}, s{sT2}, 4096")
        op.append(VM(f"buffer_load_dwordx4 {R(kind, base+4*i, 4)}, v{vL16}, s[{rWS}:{rWS+3}], s{sT2} offen offset:{(i & 3)*1024} sc1", ("w", tk)))
        out.append(op)
    return out
def wdma():
    out = []
    for x in range(35):
        tk, i = NREG + x // 5, x % 5
        op = kaddr(sT2, sWa, tk, 5120) if i == 0 else lines(f"s_add_u32 s{sT2}, s{sT2}, 1024")
        out.append(op + lines(f"s_add_u32 m0, s{sRpD+2}, {x*1024}") + [VM(f"buffer_load_dwordx4 v{vL16}, s[{rWS}:{rWS+3}], s{sT2} offen sc1 lds", "wl", sep=True)])
    return out
RFV = 134
def rflag_fetch():
    vF, vFd = RFV, RFV + 2
    fl = lines(f"""
    v_min_u32 v{vF}, 16, v{vL}
    s_mul_i32 s{sT0}, s{sW}, 24
    s_lshr_b32 s{sT1}, s{sDT}, 2
    s_add_u32 s{sT0}, s{sT0}, s{sT1}
    s_mul_i32 s{sT1}, s{sDT}, 10
    s_add_u32 s{sT1}, s{sT1}, {96 - 24}
    s_add_u32 s{sT1}, s{sT1}, s{sWR}
    v_cmp_gt_u32 vcc, 12, v{vF} | v_mov_b32 v{vFd}, s{sT1} | v_mov_b32 v{vFd+1}, s{sT0} | v_cndmask_b32 v{vFd}, v{vFd}, v{vFd+1}, vcc
    v_lshl_add_u32 v{vF}, v{vF}, 1, v{vFd}
    v_lshlrev_b32 v{vF}, 7, v{vF}
    v_add_u32 v{vF}, {WS_RF}, v{vF}
    s_mul_i32 s{sWp}, s{sDT}, 88
    s_mul_i32 s{sT0}, s{sW}, 22
    s_add_u32 s{sWp}, s{sWp}, s{sT0}
    s_mul_i32 s{sWp}, s{sWp}, 5120
    s_add_u32 s{sWp}, s{sWp}, {WS_WP}
    s_lshl_b32 s{sT1}, s{sMT}, 1
    s_add_u32 s{sT1}, s{sT1}, s{sHALF}
    s_mul_i32 s{sT1}, s{sT1}, 88
    s_add_u32 s{sT1}, s{sT1}, s{sT0}
    s_lshl_b32 s{sRpSrc}, s{sT1}, 12
    s_add_u32 s{sRpSrc}, s{sRpSrc}, {WS_H}
    s_and_b32 s{sRpD}, s{sDT}, 3
    s_mul_i32 s{sRpD+2}, s{sW}, {WLW}
    s_add_u32 s{sRpD+2}, s{sRpD+2}, {L_WL}
    s_lshl_b32 s{sRpD+1}, s{sML}, 1
    s_add_u32 s{sRpD+1}, s{sRpD+1}, s{sHALF}
    """)
    for g, (n_, ma, mb) in enumerate(((12, 12, 6), (10, 10, 5))):
        fl += lines(f"""
        s_mul_i32 s{sT0}, s{sRpD}, {ma}
        s_lshr_b32 s{sT0}, s{sT0}, 2
        s_mul_i32 s{sT1}, s{sRpD+1}, {mb}
        s_lshr_b32 s{sT1}, s{sT1}, 2
        s_add_u32 s{sT0}, s{sT0}, s{sT1}
        s_sub_u32 s{sT1}, s{sT0}, {n_}
        s_cmp_ge_u32 s{sT0}, {n_} | s_cselect_b32 s{sT0}, s{sT1}, s{sT0}
        s_mul_i32 s{sT0}, s{sT0}, {OPT['rot2']}
        s_sub_u32 s{sLim+g}, {12*g + n_}, s{sT0}
        s_mul_i32 s{sT1}, s{sT0}, 5120
        s_add_u32 s{sWa+2*g}, s{sWp}, s{sT1}
        s_sub_u32 s{sWa+2*g+1}, s{sWa+2*g}, {n_*5120}
        s_lshl_b32 s{sT1}, s{sT0}, 12
        s_add_u32 s{sHa+2*g}, s{sRpSrc}, s{sT1}
        s_sub_u32 s{sHa+2*g+1}, s{sHa+2*g}, {n_*4096}
        """)
    return fl + [VM(f"buffer_load_dwordx2 {V(vFd,2)}, v{vF}, s[{rWS}:{rWS+3}], 0 offen sc1", "rfv", ta=66)]
def check(tag, vaddr, vd, width=2, second=1):
    k.e(f"""
    L_chk_{tag}:
    v_cmp_ne_u32 vcc, s{sNonce}, v{vd + (1 if width == 4 else 0)}
    v_cmp_ne_u32 s[{sT0}:{sT1}], s{sNonce}, v{vd + (3 if width == 4 else 1)}
    s_or_b64 vcc, vcc, s[{sT0}:{sT1}]
    s_cmp_eq_u64 vcc, 0
    s_cbranch_scc1 L_chkok_{tag}
    s_sub_u32 s{sSpin}, s{sSpin}, 1
    s_cbranch_scc1 L_end
    buffer_load_dwordx{width} {V(vd,width)}, v{vaddr}, s[{rWS}:{rWS+3}], 0 offen sc1
    s_waitcnt vmcnt(0)
    s_branch L_chk_{tag}
    L_chkok_{tag}:
    """)
def common_jobs(typ):
    j = {}
    j[0] = nonce_load()
    j[2] = rowstat_job(typ)
    r0 = OPT["rpst"][0]
    j[("wait", (r0 - 2) // 2)] = ["rp"]
    j[("pre", r0 - 1)] = repack_read(typ)
    for f, bi in zip(repack_store(), OPT["rpst"]): j[("pre", bi)] = j.get(("pre", bi), []) + [f]
    fs = OPT["rpflag"]
    j[("wait", fs)] = [("rps", 4)]
    j[2*fs + 1] = repack_flag()
    bi = OPT["rfchk_" + typ]
    rf = rflag_fetch()
    vq = [(0, 0, op) for op in xr_loads()] + [(0, 1.5, op) for op in repack_dma()]
    stats_jobs(typ, j)
    j[12] = j.get(12, []) + warm_params()
    if bi < 20:
        mk_ = []
        j[bi - 5] = j.get(bi - 5, []) + rf[:-1] + [F(lambda: mk_.append(1), 0)]
        j[("pre", bi - 1)] = [F(lambda: mk_[0], 0)] + rf[-1:]
        def chk():
            k.wait_vm("rfv"); check("rf_" + typ, RFV, RFV + 2)
        j[("pre", bi)] = [F(chk, 6)]
        vq += [(bi, 99, op) for tk in range(7) for op in wload(tk)]
    else:
        j[11] = j.get(11, []) + rf[:-1]
        j[17] = rf[-1:]
    return j, vq

TK = vT + 8
SA = 76
def stats_jobs(typ, j):
    nr = 6 if typ == "mlp" else 5
    j[13] = j.get(13, []) + lines(f"""
    s_mul_i32 s{sT0}, s{sW}, {SCW}
    s_add_u32 s{sT0}, s{sT0}, {L_SC}
    v_lshlrev_b32 v{SA+1}, 4, v{vQ}
    v_add_u32 v{SA}, s{sT0}, v{SA+1}
    s_mul_i32 s{sT0}, s{sWR}, {2*SCW}
    s_add_u32 s{sT0}, s{sT0}, {L_SC}
    v_add_u32 v{SA+1}, s{sT0}, v{SA+1}
    s_lshl_b32 s{sT0}, s{sWC}, 10
    v_lshlrev_b32 v{SA+2}, 6, v{vN}
    v_add_u32 v{SA+2}, s{sT0}, v{SA+2}
    v_lshlrev_b32 v{SA+3}, 3, v0
    """) + rowstat_fetch()
    def chk():
        k.wait_vm("rsv")
        check("rs_" + typ, RSV + 4, RSV, 4)
        k.ds(f"ds_write2_b32 v{SA+3}, v{RSV}, v{RSV+2} offset0:{L_TOK//4} offset1:{L_TOK//4+1}")
    j[("pre", 16)] = j.get(("pre", 16), []) + [F(chk, 8)]
    j[18] = j.get(18, []) + [DSF(f"ds_read_b128 {V(TK+4*x,4)}, v{SA+2} offset:{L_TOK + x*16}") for x in range(4)]
    def wr():
        k.e("s_mov_b32 exec_lo, 0x00010001\ns_mov_b32 exec_hi, 0x00010001")
        for i in range(nr): k.ds(f"ds_write_b128 v{SA}, {A(aCS+4*i,4)} offset:{i*64}")
        k.e("s_mov_b64 exec, -1")
    j["last"] = [F(wr, 8, ds=True)]
def stats(typ):
    nr = 6 if typ == "mlp" else 5
    CS = vT + 24; P2 = 100
    k.wait_lg(); k.e("s_barrier")
    for i in range(nr):
        k.ds(f"ds_read_b128 {V(P2+4*i,4)}, v{SA+1} offset:{SCW+i*64}", ("cs", i))
    for i in (0, 1, 2, 4, 5, 3)[:nr + 1]:
        if i < nr: k.ds(f"ds_read_b128 {V(CS+4*i,4)}, v{SA+1} offset:{i*64}", ("cs", i))
    return TK, CS, P2
def stats_sum(typ, CS, P2):
    k.wait_lg()
    for i in range(6 if typ == "mlp" else 5):
        for h in range(2):
            k.e(f"v_pk_add_f32 {V(CS+4*i+2*h,2)}, {V(CS+4*i+2*h,2)}, {V(P2+4*i+2*h,2)}")

class Feeder:
    def __init__(self, jobs, every): self.jobs, self.every, self.n = list(jobs), every, 0
    def tick(self, n=1):
        self.n += n
        while self.n >= self.every and self.jobs:
            self.n -= self.every; run([self.jobs.pop(0)])
    def flush(self):
        while self.jobs: run([self.jobs.pop(0)])

def h_base():
    k.e(f"""
    s_lshl_b32 s{sT0}, s{sMT}, 1
    s_add_u32 s{sT0}, s{sT0}, s{sWC}
    s_mul_i32 s{sH}, s{sT0}, {88*4096}
    s_add_u32 s{sH}, s{sH}, {WS_H}
    s_lshr_b32 s{sT0}, s{sNT}, 1
    s_mul_i32 s{sT0}, s{sT0}, 22
    s_and_b32 s{sT1}, s{sNT}, 1
    """)
HRING = [[("v", 40 + 4*s) for s in range(4)], [("v", 56 + 4*s) for s in range(4)], [("v", 72 + 4*s) for s in range(4)],
         [("v", 240 + 4*s) for s in range(4)], [("a", 100), ("a", 104), ("a", 248), ("a", 252)]]
vF, vFd, vHs = 28, 30, 32
vWL, vRw, XO, LO = 36, 37, 38, 39
RES = 4
def flag_addr():
    k.e(f"""
    v_bfe_u32 v{vFd}, v{vL}, 1, 1
    s_lshl_b32 s{sT0}, s{sMT}, 4
    s_lshl_b32 s{sT1}, s{sW}, 1
    s_add_u32 s{sT1}, s{sT0}, s{sT1}
    s_add_u32 s{sT1}, s{sT1}, 8
    v_add_u32 v{vFd}, s{sT1}, v{vFd}
    v_lshlrev_b32 v{vFd}, 7, v{vFd}
    v_and_b32 v{vF}, 1, v{vL}
    v_lshl_add_u32 v{vF}, v{vF}, 5, v{vFd}
    s_lshl_b32 s{sT1}, s{sHALF}, 4
    s_add_u32 s{sT1}, s{sT1}, {WS_HF}
    v_add_u32 v{vF}, s{sT1}, v{vF}
    v_add_u32 v{vF+1}, -1024, v{vF}
    s_lshl_b32 s{sT1}, s{sTYP}, 3
    s_add_u32 s{sT0}, s{sT0}, s{sT1}
    s_add_u32 s{sT0}, s{sT0}, s{sNT}
    s_lshl_b32 s{sT0}, s{sT0}, 7
    s_lshl_b32 s{sT1}, s{sW}, 4
    s_add_u32 s{sT0}, s{sT0}, s{sT1}
    s_add_u32 s{sLW}, s{sT0}, {WS_HF}
    """)
def h_offsets():
    for s in range(4):
        k.e(f"s_xor_b32 s{sT0}, s{sW}, {s}\ns_lshl_b32 s{sT0}, s{sT0}, 10\nv_add_u32 v{vHs+s}, s{sT0}, v{vL16}")
def poll_m(): k.vmem(f"buffer_load_dwordx2 {V(vFd,2)}, v{vF}, s[{rWS}:{rWS+3}], 0 offen sc1", "hf")
FL = 96
def h_flag(track=True):
    k.e(f"v_mov_b32 v{FL}, s{sNonce}\nv_mov_b32 v{FL+1}, s{sNonce}\nv_lshlrev_b32 v{FL+2}, 26, v{vL}")
    k.wait_vm("h")
    tx = f"buffer_store_dwordx2 {V(FL,2)}, v{FL+2}, s[{rWS}:{rWS+3}], s{sLW} offen sc1"
    k.vmem(tx, "fl") if track else k.e(tx)
EX_, ED, EB, TKv, U = 100, 110, 120, 130, 132
def ep_loads():
    k.e(f"""
    s_lshl_b32 s{sT0}, s{sMT}, 7
    s_lshl_b32 s{sT1}, s{sHALF}, 6
    s_add_u32 s{sT0}, s{sT0}, s{sT1}
    s_add_u32 s{sT0}, s{sT0}, s{sW}
    s_mul_i32 s{sX}, s{sT0}, 1280
    s_mul_i32 s{sT0}, s{sDT}, 160
    s_add_u32 s{sX}, s{sX}, s{sT0}
    v_lshrrev_b32 v{U}, 2, v{vL}
    v_and_b32 v{U+1}, 3, v{vL}
    v_lshlrev_b32 v{U+2}, 3, v{U+1}
    v_mul_u32_u24 v{XO}, 5120, v{U}
    v_add_u32 v{XO}, v{XO}, v{U+2}
    v_mul_u32_u24 v{LO}, {RROW}, v{U}
    v_lshl_add_u32 v{LO}, v{U+1}, 4, v{LO}
    v_lshlrev_b32 v{U}, 6, v{U}
    s_lshl_b32 s{sT1}, s{sHALF}, 10
    v_add_u32 v{U}, s{sT1}, v{U}
    s_lshl_b32 s{sT1}, s{sW}, 4
    v_add_u32 v{U}, s{sT1}, v{U}
    """)
    k.ds(f"ds_read_b64 {V(TKv,2)}, v{U} offset:{L_TOK}", "tk")
    for g in range(5): k.vmem(f"buffer_load_dwordx2 {V(EX_+2*g,2)}, v{XO}, s[{rX}:{rX+3}], s{sX} offen offset:{32*g}", "ep")
    for reg, ptr in ((ED, pDsk), (EB, pB2)):
        srd(rT, ptr, 1280)
        for g in range(5): k.vmem(f"buffer_load_dwordx2 {V(reg+2*g,2)}, v{U+2}, s[{rT}:{rT+3}], s{sT0} offen offset:{32*g}", "ep")
def residual(fd=None):
    k.wait_vm("ep"); k.wait_lg()
    for g in range(5):
        if fd: fd.tick(1)
        xf, df, bf_ = U + 4, U + 8, U + 12
        for src, dst in ((EX_ + 2*g, xf), (ED + 2*g, df), (EB + 2*g, bf_)):
            for h in range(2):
                k.e(f"v_lshlrev_b32 v{dst+2*h}, 16, v{src+h}\nv_and_b32 v{dst+2*h+1}, 0xffff0000, v{src+h}")
        A_ = [RES + 4*g, RES + 4*g + 2]
        def rnd():
            for a in A_: k.e(f"v_cvt_pk_bf16_f32 v{a+1}, v{a}, v{a+1}")
            for a in A_: k.e(f"v_lshlrev_b32 v{a}, 16, v{a+1}\nv_and_b32 v{a+1}, 0xffff0000, v{a+1}")
        for h, a in enumerate(A_): k.e(f"v_pk_add_f32 {V(a,2)}, {V(xf+2*h,2)}, {V(TKv,2)} op_sel:[0,0] op_sel_hi:[1,0] neg_lo:[0,1] neg_hi:[0,1]")
        rnd()
        for h, a in enumerate(A_): k.e(f"v_pk_mul_f32 {V(a,2)}, {V(a,2)}, {V(TKv,2)} op_sel:[0,1] op_sel_hi:[1,1]")
        rnd()
        for h, a in enumerate(A_): k.e(f"v_pk_mul_f32 {V(a,2)}, {V(a,2)}, {V(df+2*h,2)}")
        rnd()
        for h, a in enumerate(A_): k.e(f"v_pk_add_f32 {V(a,2)}, {V(a,2)}, {V(xf+2*h,2)}")
        for h, a in enumerate(A_): k.e(f"v_pk_add_f32 {V(a,2)}, {V(a,2)}, {V(bf_+2*h,2)}")
def hload(tk):
    ring = HRING[tk % 5]
    return kaddr(sT3, sHa, tk, 4096), [[VM(f"buffer_load_dwordx4 {R(ring[s][0], ring[s][1], 4)}, v{vHs+s}, s[{rWS}:{rWS+3}], s{sT3} offen sc1", ("h", tk))] for s in range(4)]
def h_first():
    for tk in range(5):
        a_, b_ = hload(tk); run(a_); run(b_)
def warm_params():
    return lines(f"v_mov_b32 v{vJunk}, 0") + [VM(f"global_load_dword v{vNc}, v{vL16}, s[{pDsk}:{pDsk+1}]", "jk", ta=20), VM(f"global_load_dword v{vNc}, v{vL16}, s[{pB2}:{pB2+1}]", "jk", ta=20),
            VM(f"global_load_dword v{vNc}, v{vJunk}, s[{pDsk}:{pDsk+1}] offset:1152", "jk", ta=10), VM(f"global_load_dword v{vNc}, v{vJunk}, s[{pB2}:{pB2+1}] offset:1152", "jk", ta=10),
            VM(f"global_load_dword v{vNc}, v{vJunk}, s[{pDsk}:{pDsk+1}] offset:1024", "jk", ta=10), VM(f"global_load_dword v{vNc}, v{vJunk}, s[{pB2}:{pB2+1}] offset:1024", "jk", ta=10)]

def ones():
    k.e(f"v_mov_b32 v{vT+6}, 0x3f803f80")
    for i in range(4): k.e(f"v_accvgpr_write_b32 a{aONE+i}, v{vT+6}")

def path_mlp():
    typ = "mlp"; t = vT
    k.label("L_mlp")
    issued.clear()
    k.vm = []; k.lg = []
    k.e(f"""
    v_and_b32 v{t+2}, 2, v{t}
    v_xor_b32 v{t+2}, v{t+1}, v{t+2}
    v_mul_u32_u24 v{t+3}, 3072, v{t}
    v_lshl_add_u32 v{vDW}, v{t+2}, 4, v{t+3}
    v_xor_b32 v{vDW+1}, 64, v{vDW}
    s_mul_i32 s{sB0}, s{sW}, {16*3072}
    s_mul_i32 s{sT0}, s{sNT}, 384
    s_add_u32 s{sB0}, s{sB0}, s{sT0}
    s_add_u32 s{sB2}, s{sB0}, {8*3072}
    s_lshl_b32 s{sLW}, s{sW}, 11
    """)
    k.e(f"""
    v_lshrrev_b32 v{t}, 2, v{vN}
    v_lshl_add_u32 v{t+1}, v{vQ}, 3, v{t}
    v_lshlrev_b32 v{t+1}, 7, v{t+1}
    v_and_b32 v{t+2}, 3, v{vN}
    v_lshl_add_u32 v{t+1}, v{t+2}, 3, v{t+1}
    v_lshrrev_b32 v{t}, 1, v{t}
    v_and_b32 v{t+2}, 1, v{vQ}
    v_lshl_add_u32 v{t}, v{t+2}, 1, v{t}
    s_lshl_b32 s{sT0}, s{sKs}, 12
    s_add_u32 s{sT0}, s{sT0}, {L_W}
    v_add_u32 v{t+1}, s{sT0}, v{t+1}
    s_mul_i32 s{sT2}, s{sWR}, 6
    """)
    for i in range(4):
        k.e(f"""
        s_add_u32 s{sT3}, s{sT2}, {i}
        s_lshr_b32 s{sT0}, s{sT3}, 2
        s_lshl_b32 s{sT0}, s{sT0}, 13
        s_and_b32 s{sT3}, s{sT3}, 3
        v_xor_b32 v{t+2}, s{sT3}, v{t}
        v_lshl_add_u32 v{t+2}, v{t+2}, 5, v{t+1}
        v_add_u32 v{vWA+i}, s{sT0}, v{t+2}
        v_xor_b32 v{vWA+4+i}, 4096, v{vWA+i}
        """)
    Kc = 2 * 0.7978845608028654 * 1.4426950408889634
    k.e(f"s_mov_b32 s{sK}, {hx(-Kc*0.044715)}\ns_mov_b32 s{sK+1}, {hx(-Kc)}")
    ones()
    xr_setup()
    rot_setup(typ)
    start_loads(typ)
    repack_setup(typ)
    stamp(15)
    run(dma_stage(typ, 1))
    stamp(14)
    jobs, vq = common_jobs(typ)
    b1j = lines(f"""
    s_mov_b32 s{rT2}, s{pB1}
    s_mov_b32 s{rT2+1}, s{pB1+1}
    s_mov_b32 s{rT2+2}, 3072
    s_mov_b32 s{rT2+3}, 0x20000
    s_mul_i32 s{sT0}, s{sNT}, 384
    s_mul_i32 s{sT1}, s{sWR}, 192
    s_add_u32 s{sT0}, s{sT0}, s{sT1}
    v_lshlrev_b32 v{t}, 3, v{vQ}
    """) + [VM(f"buffer_load_dwordx2 {V(vB1+2*i,2)}, v{t}, s[{rT2}:{rT2+3}], s{sT0} offen offset:{32*i}", "b1", ta=25) for i in range(6)]
    jobs[7] = b1j
    left = main_loop(typ, jobs, vq, [])
    TK, CS, P2 = stats(typ)
    stamp()
    pend = [(6 - (len(left) - 1 - x) // 5, op) for x, op in enumerate(left)] + [(tk, op) for tk in range(7, 22) for op in wload(tk)]
    ne = OPT.get("ne_mlp", 0)
    fd = Feeder([op for _, op in pend[:ne]], 35 * 12 // max(1, ne))
    pend = pend[ne:]
    h_base()
    k.e(f"""
    s_mul_i32 s{sT1}, s{sT1}, 6
    s_add_u32 s{sT0}, s{sT0}, s{sT1}
    s_mul_i32 s{sT1}, s{sWR}, 3
    s_add_u32 s{sT0}, s{sT0}, s{sT1}
    s_lshl_b32 s{sT0}, s{sT0}, 12
    s_add_u32 s{sH}, s{sH}, s{sT0}
    """)
    stats_sum(typ, CS, P2)
    B = 100
    for i in range(6):
        for h in range(2):
            k.e(f"v_lshlrev_b32 v{B+4*i+2*h}, 16, v{vB1+2*i+h}\nv_and_b32 v{B+4*i+2*h+1}, 0xffff0000, v{vB1+2*i+h}")
    TM = 124
    OUT = [88, 92]
    n_ = 0
    for u in range(3):
        for j in range(4):
            o = OUT[n_ & 1]; n_ += 1
            k.raw(".p2align 3")
            prs = [(2*u + ii, h) for ii in range(2) for h in range(2)]
            Z = [acc(i, j) + 2*h for i, h in prs]
            T1 = [TM + 2*x for x in range(4)]; T2 = [TM + 8 + 2*x for x in range(4)]
            for x, (i, h) in enumerate(prs):
                k.e(f"v_pk_fma_f32 {V(T1[x],2)}, {V(CS+4*i+2*h,2)}, {V(TK+4*j+2,2)}, {V(B+4*i+2*h,2)} op_sel:[0,1,0] op_sel_hi:[1,1,1] neg_lo:[0,1,0] neg_hi:[0,1,0]")
            for x in range(4):
                k.e(f"v_pk_fma_f32 {V(Z[x],2)}, {V(Z[x],2)}, {V(TK+4*j+2,2)}, {V(T1[x],2)} op_sel:[0,0,0] op_sel_hi:[1,0,1]")
            fd.tick(12)
            for x in range(4): k.e(f"v_pk_mul_f32 {V(T1[x],2)}, {V(Z[x],2)}, {V(Z[x],2)}")
            for x in range(4): k.e(f"v_pk_fma_f32 {V(T1[x],2)}, {V(T1[x],2)}, s[{sK}:{sK+1}], s[{sK}:{sK+1}] op_sel:[0,0,1] op_sel_hi:[1,0,1]")
            for x in range(4): k.e(f"v_pk_mul_f32 {V(T1[x],2)}, {V(T1[x],2)}, {V(Z[x],2)}")
            for x in range(4): k.e(f"v_exp_f32 v{T2[x]}, v{T1[x]}\nv_exp_f32 v{T2[x]+1}, v{T1[x]+1}")
            fd.tick(12)
            for x in range(4): k.e(f"v_pk_add_f32 {V(T2[x],2)}, {V(T2[x],2)}, 1.0 op_sel_hi:[1,0]")
            for x in range(4): k.e(f"v_rcp_f32 v{T2[x]}, v{T2[x]}\nv_rcp_f32 v{T2[x]+1}, v{T2[x]+1}")
            if n_ < 12: fd.tick(12)
            for x in range(4): k.e(f"v_pk_mul_f32 {V(Z[x],2)}, {V(Z[x],2)}, {V(T2[x],2)}")
            for x in range(4): k.e(f"v_cvt_pk_bf16_f32 v{o+x}, v{Z[x]}, v{Z[x]+1}")
            k.vmem(f"buffer_store_dwordx4 {V(o,4)}, v{vL16}, s[{rWS}:{rWS+3}], s{sH} offen offset:{j*1024} sc1", "h")
        if u < 2: k.e(f"s_add_u32 s{sH}, s{sH}, 4096")
    fd.flush()
    stamp()
    ep_loads()
    n0, n1 = OPT['post0'], OPT['post0'] + OPT['post']
    run([op for _, op in pend[:n0]])
    flag_addr()
    h_flag()
    poll_m()
    h_offsets()
    ops = [op for _, op in pend[n0:n1]]
    fd = Feeder([flat(ops[x::1][:0]) for x in range(0)], 1)
    cut = [ops[(x * len(ops)) // 5:((x + 1) * len(ops)) // 5] for x in range(5)]
    residual(Feeder([flat(c) for c in cut], 1))
    assert max([t_ for t_, _ in pend[:n1]] + [0]) < 12
    stamp(7)
    k.wait_vm("hf"); check("hm" + typ, vF, vFd)
    stamp(8)
    h_first()
    phase2(typ, pend[n1:], 22, OPT['kw_mlp'])

def cmul_acc(d, a, b, c):
    k.e(f"v_pk_fma_f32 {V(d,2)}, {V(a,2)}, {V(b,2)}, {V(c,2)} op_sel:[0,0,0] op_sel_hi:[1,0,1]")
    k.e(f"v_pk_fma_f32 {V(d,2)}, {V(a,2)}, {V(b,2)}, {V(d,2)} op_sel:[1,1,0] op_sel_hi:[0,1,1] neg_lo:[0,1,0]")

PR = 100
def masked(m, ins):
    def f():
        k.e(f"s_mov_b32 exec_lo, {m}\ns_mov_b32 exec_hi, {m}"); k.ds(ins); k.e("s_mov_b64 exec, -1")
    return F(f, 4, ds=True)
def power(KK, al, be, t):
    x, y, c_, s_ = t+10, t+11, t+12, t+13
    return lines(f"""
    v_mul_f32 v{y}, v{KK}, v{be}
    v_mul_f32 v{x}, v{KK}, v{al}
    v_fract_f32 v{y}, v{y}
    v_cos_f32 v{c_}, v{y}
    v_sin_f32 v{s_}, v{y}
    v_exp_f32 v{x}, v{x}
    s_nop 0
    v_mul_f32 v{t+14}, v{x}, v{c_}
    v_mul_f32 v{t+15}, v{x}, v{s_}
    """)
def table_a():
    t = 80; CH_ = vB1 + 10
    lr, li, dt, al, be, KK, AD = PR, PR+1, PR+2, t+8, t+9, t, t+1
    x, y, c_, s_ = t+10, t+11, t+12, t+13
    LOG2E = 1.4426950408889634
    fl = lines(f"""
    v_lshlrev_b32 v{dt}, 16, v{dt}
    v_lshlrev_b32 v{lr}, 16, v{lr}
    v_mul_f32 v{dt}, {hx(LOG2E)}, v{dt}
    v_exp_f32 v{dt}, v{dt}
    v_lshlrev_b32 v{li}, 16, v{li}
    {bfr(dt, dt)}
    v_mul_f32 v{al}, v{dt}, v{lr}
    v_mul_f32 v{be}, v{dt}, v{li}
    v_mul_f32 v{al}, {hx(LOG2E)}, v{al}
    v_mul_f32 v{be}, 0.15915494, v{be}
    v_lshlrev_b32 v{KK}, 6, v{CH_+1}
    v_max_u32 v{KK}, 1, v{KK}
    v_cvt_f32_u32 v{KK}, v{KK}
    v_lshlrev_b32 v{AD}, 3, v{CH_}
    """)
    fl += lines(f"v_lshrrev_b32 v{t+2}, 4, v0\nv_lshlrev_b32 v{t+3}, 3, v{t+2}")
    fl.append(DSF(f"ds_write_b64 v{AD}, {V(al,2)} offset:{L_EX}"))
    fl.append(F(lambda: mark.append(1), 0))
    fl += power(KK, al, be, t)
    fl += lines(f"""
    v_lshlrev_b32 v{AD}, 3, v{CH_+1}
    v_cmp_eq_u32 vcc, 0, v{CH_+1} | v_add_u32 v{AD}, 40, v{AD} | v_mov_b32 v{x}, 0 | v_cndmask_b32 v{AD}, v{AD}, v{x}, vcc
    v_lshl_add_u32 v{AD}, v{CH_}, 6, v{AD}
    """)
    fl.append(DSF(f"ds_write_b64 v{AD}, {V(t+14,2)} offset:{L_CH}"))
    fl += lines(f"""
    v_mul_f32 v{y}, v{lr}, v{lr}
    v_add_f32 v{x}, -1.0, v{t+14}
    v_fma_f32 v{y}, v{li}, v{li}, v{y}
    v_rcp_f32 v{y}, v{y}
    v_mul_f32 v{c_}, v{x}, v{lr}
    v_fma_f32 v{c_}, v{t+15}, v{li}, v{c_}
    v_mul_f32 v{s_}, v{t+15}, v{lr}
    v_fma_f32 v{s_}, -v{x}, v{li}, v{s_}
    v_add_f32 v{y}, v{y}, v{y}
    v_mul_f32 v{t+16}, v{c_}, v{y}
    v_mul_f32 v{t+17}, v{s_}, v{y}
    """)
    def f():
        k.e(f"v_cmp_eq_u32 vcc, 0, v{CH_+1}\ns_mov_b64 exec, vcc"); k.ds(f"ds_write_b64 v{AD}, {V(t+16,2)} offset:{L_CH + 8}"); k.e("s_mov_b64 exec, -1")
    fl.append(F(f, 4, ds=True))
    fl.append(F(lambda: mark.append(2), 0))
    return fl
def table_rd():
    t = 80
    return [DSF(f"ds_read_b64 {V(PR+4+2*u,2)}, v{t+3} offset:{L_EX + u*128}") for u in range(5)]
def table_b():
    t = 80
    K1, APW, R1 = t, t+4, t+5
    fl = lines(f"""
    v_lshlrev_b32 v{K1}, 2, v{vN}
    v_cvt_f32_u32 v{K1}, v{K1}
    v_lshlrev_b32 v{APW}, 7, v{t+2}
    v_lshl_add_u32 v{APW}, v{vN}, 3, v{APW}
    v_ffbl_b32 v{R1}, v{vN}
    v_lshlrev_b32 v{R1}, 3, v{R1}
    v_lshl_add_u32 v{R1}, v{t+2}, 6, v{R1}
    """)
    for u in range(5):
        fl += power(K1, PR+4+2*u, PR+5+2*u, t)
        fl.append(DSF(f"ds_write_b64 v{APW}, {V(t+14,2)} offset:{L_PW + u*2048}"))
        fl.append(masked("0x01160116", f"ds_write_b64 v{R1}, {V(t+14,2)} offset:{L_CH + 16 + u*1024}"))
    return fl

def path_ssm():
    typ = "ssm"; t = vT
    k.e(f"""
    v_and_b32 v{t+2}, 6, v{t}
    v_or_b32 v{t+3}, s{sWC}, v{t+2}
    v_xor_b32 v{t+1}, v{t+1}, v{t+3}
    v_lshlrev_b32 v{t+1}, 4, v{t+1}
    v_and_b32 v{t+3}, 1, v{t}
    v_lshl_add_u32 v{t+2}, v{t+2}, 2, v{t+3}
    v_mul_u32_u24 v{t+2}, 1280, v{t+2}
    v_add_u32 v{vDW}, v{t+2}, v{t+1}
    v_add_u32 v{t+2}, 32, v{t}
    v_mul_u32_u24 v{t+2}, 1280, v{t+2}
    v_add_u32 v{vDW+1}, v{t+2}, v{t+1}
    s_mul_i32 s{sT0}, s{sNT}, 80
    s_mul_i32 s{sT1}, s{sWR}, 40
    s_add_u32 s{sT0}, s{sT0}, s{sT1}
    s_mul_i32 s{sB0}, s{sT0}, 1280
    s_add_u32 s{sB2}, s{sB0}, 5120
    s_mul_i32 s{sLW}, s{sWR}, 10240
    s_lshl_b32 s{sT0}, s{sWC}, 10
    s_add_u32 s{sLW}, s{sLW}, s{sT0}
    """)
    k.e(f"""
    v_and_b32 v{t+1}, 1, v{vN}
    v_lshrrev_b32 v{t+2}, 2, v{vN}
    v_lshl_add_u32 v{t+2}, v{t+2}, 1, v{t+1}
    v_xor_b32 v{t}, v{t+4}, v{t+2}
    v_lshlrev_b32 v{t}, 4, v{t}
    v_lshl_add_u32 v{t}, v{t+1}, 10, v{t}
    v_lshrrev_b32 v{t+2}, 1, v{vN}
    v_lshl_add_u32 v{t}, v{t+2}, 7, v{t}
    s_mul_i32 s{sT0}, s{sWR}, 10240
    s_add_u32 s{sT0}, s{sT0}, {L_W}
    v_add_u32 v{vWA}, s{sT0}, v{t}
    v_xor_b32 v{vWA+1}, 64, v{vWA}
    """)
    ones()
    xr_setup()
    rot_setup(typ)
    start_loads(typ)
    k.e(f"""
    v_mul_u32_u24 v{vB1+11}, 820, v0
    v_lshrrev_b32 v{vB1+11}, 16, v{vB1+11}
    v_min_u32 v{vB1+11}, 2, v{vB1+11}
    v_mul_u32_u24 v{t+1}, 80, v{vB1+11}
    v_sub_u32 v{vB1+10}, v0, v{t+1}
    v_min_u32 v{vB1+10}, 79, v{vB1+10}
    s_mul_i32 s{sT0}, s{sNT}, 160
    v_lshlrev_b32 v{t+1}, 1, v{vB1+10}
    s_mov_b32 s{rT+2}, 1280
    s_mov_b32 s{rT+3}, 0x20000
    """)
    for pi, ptr in enumerate((pLre, pLim, pLdt)):
        k.e(f"s_mov_b32 s{rT}, s{ptr}\ns_mov_b32 s{rT+1}, s{ptr+1}")
        k.vmem(f"buffer_load_ushort v{PR+pi}, v{t+1}, s[{rT}:{rT+3}], s{sT0} offen", "par")
    repack_setup(typ)
    stamp(15)
    run(dma_stage(typ, 1))
    stamp(14)
    jobs, vq = common_jobs(typ)
    jobs[5] = table_a()
    jobs[("pre", 10)] = [F(lambda: mark[0], 0)]
    jobs[("pre", 11)] = table_rd()
    jobs[("pre", 12)] = [F(lambda: mark[1], 0)]
    tj = table_b()
    vC0, vC1, vP0, vP1, vE0, vE1, vGc, vGr, vPub = vB1, vB1+1, vB1+2, vB1+3, vB1+4, vB1+5, vB1+6, vB1+7, vB1+8
    CH_, WH_ = vB1 + 10, vB1 + 11
    vG = 114
    sVal = [28, 30, 36, 38, 40]
    u_ = 96
    ad = lines(f"""
    s_mul_i32 s{sUnit}, s{sWR}, 40
    v_lshlrev_b32 v{u_}, 3, v{vQ}
    v_add_u32 v{u_}, s{sUnit}, v{u_}
    v_lshlrev_b32 v{u_+1}, 1, v{vQ}
    v_add_u32 v{u_+1}, s{sUnit}, v{u_+1}
    v_add_u32 v{u_+1}, 32, v{u_+1}
    v_lshlrev_b32 v{vC0}, 6, v{u_}
    v_lshlrev_b32 v{vC1}, 6, v{u_+1}
    v_lshlrev_b32 v{u_+2}, 3, v{vN}
    v_lshl_add_u32 v{vP0}, v{u_}, 7, v{u_+2}
    v_lshl_add_u32 v{vP1}, v{u_+1}, 7, v{u_+2}
    s_mul_i32 s{sUnit}, s{sWC}, 640
    v_lshlrev_b32 v{vE0}, 3, v{u_}
    v_lshlrev_b32 v{vE1}, 3, v{u_+1}
    v_add_u32 v{vE0}, s{sUnit}, v{vE0}
    v_add_u32 v{vE1}, s{sUnit}, v{vE1}
    v_lshlrev_b32 v{vGc}, 3, v{CH_}
    v_lshlrev_b32 v{vGr}, 6, v{CH_}
    v_lshlrev_b32 v{u_}, 4, v{CH_}
    v_cmp_gt_u32 vcc, 80, v0 | v_mov_b32 v{u_+1}, {OOB} | s_nop 0 | v_cndmask_b32 v{vPub}, v{u_+1}, v{u_}, vcc
    v_mul_u32_u24 v{u_+2}, 5, v{WH_}
    v_sub_u32 v{u_+2}, s{sMT}, v{u_+2}
    s_mul_i32 s{sHw}, s{sNT}, {16*1280}
    s_add_u32 s{sHw}, s{sHw}, {WS_E}
    s_mul_i32 s{sH}, s{sMT}, 1280
    s_add_u32 s{sH}, s{sH}, s{sHw}
    """)
    for i in range(5):
        ad += lines(f"""
        v_add_u32 v{u_+2}, -1, v{u_+2}
        v_mul_i32_i24 v{vG+i}, 1280, v{u_+2}
        v_cmp_le_i32 s[{sVal[i]}:{sVal[i]+1}], 0, v{u_+2} | v_add_u32 v{vG+i}, v{vG+i}, v{u_} | s_nop 0 | v_cndmask_b32 v{vG+i}, v{u_+1}, v{vG+i}, s[{sVal[i]}:{sVal[i]+1}]
        """)
    tj = tj + ad
    left = main_loop(typ, jobs, vq, tj)
    vG2 = 8
    for i in range(5): k.e(f"v_mov_b32 v{vG2+i}, v{vG+i}")
    TK, CS, P2 = stats(typ)
    stamp()
    if OPT["rfchk_ssm"] >= 20:
        k.wait_vm("rfv"); check("rf_ssm", RFV, RFV + 2)
        left = [op for tk in range(7) for op in wload(tk)]
    early = [(6 - (len(left) - 1 - x) // 5, op) for x, op in enumerate(left)] + [(tk, op) for tk in range(7, 12) for op in wload(tk)]
    early += [(NREG - 2 + x // 5, op) for x, op in enumerate(wdma())]
    e1 = OPT['e1']; ew = OPT['ew']
    wd = [op for _, op in early]
    fd = Feeder(wd[:e1], 300 // max(1, e1))
    slots = [(i, h) for i in range(5) for h in range(2)]
    def rec(i, h): return (vC0, L_CH + (2*i + h)*64) if i < 4 else (vC1, L_CH + h*64)
    LC = 100
    stats_sum(typ, CS, P2)
    for x, (i, h) in enumerate(slots):
        a_, o_ = rec(i, h); k.ds(f"ds_read_b128 {V(LC+4*x,4)}, v{a_} offset:{o_}", ("lc", x))
    k.raw(".p2align 3")
    for x, (i, h) in enumerate(slots):
        fd.tick(8)
        for j in range(4):
            z = acc(i, j) + 2*h
            k.e(f"v_pk_fma_f32 {V(z,2)}, {V(CS+4*i+2*h,2)}, {V(TK+4*j,2)}, {V(z,2)} op_sel:[0,0,0] op_sel_hi:[1,0,1] neg_lo:[0,1,0] neg_hi:[0,1,0]")
        for j in range(4):
            z = acc(i, j) + 2*h
            k.e(f"v_pk_mul_f32 {V(z,2)}, {V(z,2)}, {V(TK+4*j,2)} op_sel:[0,1] op_sel_hi:[1,1]")
    EE = 140; TMP = 88
    MU = [t, t + 20]
    def load_mu(st):
        for x, (i, h) in enumerate(slots):
            a_, o_ = rec(i, h); k.ds(f"ds_read_b64 {V(MU[st & 1]+2*x,2)}, v{a_} offset:{o_ + 16 + 8*st}", ("mu", st))
    k.wait_lg()
    load_mu(0); load_mu(1)
    def ereg(x): return EE + 2*x
    def treg(x): return (240 + 2*x) if x < 8 else (TMP + 2*(x - 8))
    k.raw(".p2align 3")
    for x, (i, h) in enumerate(slots): cmul_acc(ereg(x), acc(i,0)+2*h, LC+4*x, acc(i,1)+2*h)
    fd.tick(20)
    for x, (i, h) in enumerate(slots): cmul_acc(treg(x), ereg(x), LC+4*x, acc(i,2)+2*h)
    fd.tick(20)
    for x, (i, h) in enumerate(slots): cmul_acc(ereg(x), treg(x), LC+4*x, acc(i,3)+2*h)
    PWv = t
    for st, sh in enumerate((1, 2, 4, 8)):
        fd.tick(20)
        k.raw(".p2align 3")
        for x in range(10):
            k.e(f"v_mov_b32_dpp v{treg(x)}, v{ereg(x)} row_shr:{sh} row_mask:0xf bank_mask:0xf bound_ctrl:0")
            k.e(f"v_mov_b32_dpp v{treg(x)+1}, v{ereg(x)+1} row_shr:{sh} row_mask:0xf bank_mask:0xf bound_ctrl:0")
        fd.tick(20)
        k.wait_lg(("mu", st))
        k.raw(".p2align 3")
        for x in range(10): cmul_acc(ereg(x), treg(x), MU[st & 1]+2*x, ereg(x))
        if st < 2: load_mu(st + 2)
        if st == 2:
            for x, (i, h) in enumerate(slots):
                k.ds(f"ds_read_b64 {V(PWv+2*x,2)}, v{vP0 if i < 4 else vP1} offset:{L_PW + ((2*i+h)*128 if i < 4 else h*128)}", "pw")
    k.e("s_mov_b32 exec_lo, 0x80008000\ns_mov_b32 exec_hi, 0x80008000")
    for i in range(5):
        k.ds(f"ds_write_b128 v{vE0 if i < 4 else vE1}, {V(EE+4*i,4)} offset:{L_EX + (16*i if i < 4 else 0)}")
    k.e("s_mov_b64 exec, -1")
    ch = t + 20
    E0, E1, LL, ET, GA = ch, ch+2, ch+4, ch+8, 14
    GA = [ch+8, ch+12, ch+16, ch+20, ch+24]
    k.ds(f"ds_read_b128 {V(LL,4)}, v{vGr} offset:{L_CH+48}", "e")
    k.e(f"v_mov_b32 v{ET+1}, s{sNonce}\nv_mov_b32 v{ET+3}, s{sNonce}")
    fd.flush()
    k.wait_lg()
    k.e("s_barrier")
    k.ds(f"ds_read_b64 {V(E0,2)}, v{vGc} offset:{L_EX}", "e")
    k.ds(f"ds_read_b64 {V(E1,2)}, v{vGc} offset:{L_EX+640}", "e")
    k.wait_lg()
    cmul_acc(E1, E0, LL, E1)
    k.e(f"v_mov_b32 v{ET}, v{E1}\nv_mov_b32 v{ET+2}, v{E1+1}")
    k.vmem(f"buffer_store_dwordx4 {V(ET,4)}, v{vPub}, s[{rWS}:{rWS+3}], s{sH} offen sc1", "e")
    stamp()
    def gather(track):
        for i in range(5):
            tx = f"buffer_load_dwordx4 {V(GA[i],4)}, v{vG2+i}, s[{rWS}:{rWS+3}], s{sHw} offen sc1"
            k.vmem(tx, "ga") if track else k.e(tx)
    k.e("s_nop 1")
    gather(True)
    fd = Feeder(wd[e1:e1 + ew], 1)
    per = ew / 14.0
    done = [0.0]
    def tk_():
        done[0] += per; n_ = int(done[0]); done[0] -= n_; fd.tick(n_); k.raw(".p2align 3")
    WT, W2 = 14, 16
    for x in range(10):
        k.e(f"v_mov_b32_dpp v{treg(x)}, v{ereg(x)} row_shr:1 row_mask:0xf bank_mask:0xf bound_ctrl:0")
        k.e(f"v_mov_b32_dpp v{treg(x)+1}, v{ereg(x)+1} row_shr:1 row_mask:0xf bank_mask:0xf bound_ctrl:0")
    def cmul(d, a, b, tmp):
        k.e(f"v_pk_mul_f32 {V(tmp,2)}, {V(a,2)}, {V(b,2)} op_sel:[0,0] op_sel_hi:[1,0]")
        k.e(f"v_pk_fma_f32 {V(d,2)}, {V(a,2)}, {V(b,2)}, {V(tmp,2)} op_sel:[1,1,0] op_sel_hi:[0,1,1] neg_lo:[0,1,0]")
    tk_()
    for x in range(10): cmul(treg(x), treg(x), LC+4*x+2, ereg(x))
    tk_()
    for x in range(10): cmul(PWv+2*x, PWv+2*x, LC+4*x+2, ereg(x))
    for x, (i, h) in enumerate(slots):
        tk_()
        for j in range(4): cmul(acc(i,j)+2*h, acc(i,j)+2*h, LC+4*x+2, EE+2*j)
    tk_()
    cmul(WT, LL+2, LL+2, W2); cmul(WT, WT, WT, W2); cmul(WT, WT, LL+2, W2); cmul(W2+2, WT, WT, W2)
    k.e(f"""
    v_cmp_eq_u32 vcc, 2, v{WH_}
    v_mov_b32 v{W2}, 1.0
    v_mov_b32 v{W2+1}, 0
    v_cndmask_b32 v{WT}, v{WT}, v{W2+2}, vcc
    v_cndmask_b32 v{WT+1}, v{WT+1}, v{W2+3}, vcc
    v_cmp_eq_u32 vcc, 0, v{WH_}
    v_mul_u32_u24 v{W2+2}, 640, v{WH_}
    v_add_u32 v{vGc}, v{vGc}, v{W2+2}
    v_cndmask_b32 v{WT}, v{WT}, v{W2}, vcc
    v_cndmask_b32 v{WT+1}, v{WT+1}, v{W2+1}, vcc
    v_cndmask_b32 v{E0}, v{W2+1}, v{E0}, vcc
    v_cndmask_b32 v{E0+1}, v{W2+1}, v{E0+1}, vcc
    s_mul_i32 s{sT0}, s{sWC}, 1280
    v_add_u32 v{vE0}, s{sT0}, v{vE0}
    v_add_u32 v{vE1}, s{sT0}, v{vE1}
    """)
    fd.flush()
    h_base()
    k.e(f"""
    s_mul_i32 s{sT1}, s{sT1}, 5
    s_add_u32 s{sT0}, s{sT0}, s{sT1}
    s_add_u32 s{sT0}, s{sT0}, 12
    s_lshl_b32 s{sT0}, s{sT0}, 12
    s_add_u32 s{sH}, s{sH}, s{sT0}
    s_add_u32 s{sB2}, s{sH}, {4*4096}
    s_lshl_b32 s{sT0}, s{sWR}, 3
    s_add_u32 s{sB2}, s{sB2}, s{sT0}
    s_lshl_b32 s{sT0}, s{sWR}, 13
    s_add_u32 s{sH}, s{sH}, s{sT0}
    s_add_u32 s{sB0}, s{sH}, 4096
    """)
    flag_addr()
    stamp(60)
    k.wait_vm("ga")
    k.label("L_carry_chk")
    k.e(f"s_mov_b64 s[{sEx}:{sEx+1}], 0")
    for i in range(5):
        k.e(f"""
        v_cmp_ne_u32 vcc, s{sNonce}, v{GA[i]+1}
        v_cmp_ne_u32 s[{sT0}:{sT1}], s{sNonce}, v{GA[i]+3}
        s_or_b64 vcc, vcc, s[{sT0}:{sT1}]
        s_and_b64 vcc, vcc, s[{sVal[i]}:{sVal[i]+1}]
        s_or_b64 s[{sEx}:{sEx+1}], s[{sEx}:{sEx+1}], vcc
        """)
    k.e(f"""
    s_cmp_eq_u64 s[{sEx}:{sEx+1}], 0
    s_cbranch_scc1 L_carry_done
    s_sub_u32 s{sSpin}, s{sSpin}, 1
    s_cbranch_scc1 L_end
    """)
    gather(False)
    k.e("s_waitcnt vmcnt(0)\ns_branch L_carry_chk")
    k.label("L_carry_done")
    stamp()
    for i in range(5): k.e(f"v_mov_b32 v{GA[i]+1}, v{GA[i]+2}")
    for i in (3, 2, 1, 0): cmul_acc(GA[i], GA[i+1], LL+2, GA[i])
    cmul(GA[0], GA[0], WT, W2)
    cmul_acc(E0, GA[0], LL, E0)
    k.ds(f"ds_write_b64 v{vGc}, {V(GA[0],2)} offset:{L_PW}")
    k.ds(f"ds_write_b64 v{vGc}, {V(E0,2)} offset:{L_PW + 1920}")
    k.wait_lg()
    k.e("s_barrier")
    poll_m()
    PB = [EE, ch, 4]
    for i in range(5):
        for g in range(3):
            k.ds(f"ds_read_b128 {V(PB[g]+4*i,4)}, v{vE0 if i < 4 else vE1} offset:{L_PW + 640*g + (16*i if i < 4 else 0)}", ("pb", i))
    k.raw(".p2align 3")
    for x in range(10):
        if x % 2 == 0: k.wait_lg(("pb", x // 2)); k.raw(".p2align 3")
        k.e(f"v_pk_add_f32 {V(ereg(x),2)}, {V(ereg(x),2)}, {V(PB[1]+2*x,2)}")
        k.e(f"v_pk_add_f32 {V(ereg(x),2)}, {V(ereg(x),2)}, {V(PB[2]+2*x,2)}")
        cmul_acc(treg(x), ereg(x), PWv+2*x, treg(x))
    O = ch
    pend = early[e1 + ew:]
    ej = [op for _, op in pend[:OPT['e2']]]; pend = pend[OPT['e2']:]
    pend = sorted(pend + [(tk, op) for tk in range(12, NREG) for op in wload(tk)], key=lambda x: x[0])
    fd = Feeder(ej, 1)
    for j in range(4):
        fd.tick((len(ej) + 3) // 4)
        k.raw(".p2align 3")
        for x, (i, h) in enumerate(slots):
            prev = treg(x) if j == 0 else acc(i, j-1) + 2*h
            cmul_acc(acc(i,j)+2*h, prev, LC+4*x, acc(i,j)+2*h)
        o = O + (j & 1) * 10
        for i in range(4): k.e(f"v_cvt_pk_bf16_f32 v{o+i}, v{acc(i,j)}, v{acc(i,j)+2}")
        for i in range(4): k.e(f"v_cvt_pk_bf16_f32 v{o+4+i}, -v{acc(i,j)+1}, -v{acc(i,j)+3}")
        k.e(f"v_cvt_pk_bf16_f32 v{o+8}, v{acc(4,j)}, v{acc(4,j)+2}")
        k.e(f"v_cvt_pk_bf16_f32 v{o+9}, -v{acc(4,j)+1}, -v{acc(4,j)+3}")
        k.vmem(f"buffer_store_dwordx4 {V(o,4)}, v{vL16}, s[{rWS}:{rWS+3}], s{sH} offen offset:{j*1024} sc1", "h")
        k.vmem(f"buffer_store_dwordx4 {V(o+4,4)}, v{vL16}, s[{rWS}:{rWS+3}], s{sB0} offen offset:{j*1024} sc1", "h")
        k.vmem(f"buffer_store_dwordx2 {V(o+8,2)}, v{vL16}, s[{rWS}:{rWS+3}], s{sB2} offen offset:{j*1024} sc1", "h")
    fd.flush()
    stamp()
    h_offsets()
    ep_loads()
    k.wait_vm("hf")
    k.e(f"""
    v_cmp_ne_u32 vcc, s{sNonce}, v{vFd}
    v_cmp_ne_u32 s[{sT0}:{sT1}], s{sNonce}, v{vFd+1}
    s_or_b64 vcc, vcc, s[{sT0}:{sT1}]
    s_cmp_eq_u64 vcc, 0
    s_cbranch_scc0 L_slow
    """)
    save = list(k.vm)
    h_first()
    h_flag(False)
    k.e("s_branch L_join")
    k.label("L_slow")
    k.vm = list(save)
    h_flag(False)
    check("hm" + typ, vF, vFd)
    h_first()
    k.label("L_join")
    stamp(7)
    residual()
    stamp(8)
    phase2(typ, pend, NREG, OPT['kw_ssm'])

def poll(tag, vaddr, vd):
    k.e(f"""
    L_poll_{tag}:
    buffer_load_dwordx2 {V(vd,2)}, v{vaddr}, s[{rWS}:{rWS+3}], 0 offen sc1
    s_waitcnt vmcnt(0)
    v_cmp_ne_u32 vcc, s{sNonce}, v{vd}
    v_cmp_ne_u32 s[{sT0}:{sT1}], s{sNonce}, v{vd+1}
    s_or_b64 vcc, vcc, s[{sT0}:{sT1}]
    s_cmp_eq_u64 vcc, 0
    s_cbranch_scc1 L_pollok_{tag}
    s_sub_u32 s{sSpin}, s{sSpin}, 1
    s_cbranch_scc1 L_end
    s_sleep 1
    s_branch L_poll_{tag}
    L_pollok_{tag}:
    """)
    k.vm = []

ACC2 = 160
def acc2(i, s): return ACC2 + (i*4 + s)*4
def phase2(typ, pend, nlds0, kw):
    stamp_n[0] = 10
    def wread(tk):
        kind, base = wreg(tk)
        return [DSF(f"ds_read_b128 {R(kind, base+4*i, 4)}, v{vWL} offset:{((tk - NREG)*5 + i)*1024}", ("wr", tk)) for i in range(5)]
    AD = [88, 89, 90, 91]
    setup = lines(f"""
    v_add_u32 v{vWL}, s{sRpD+2}, v{vL16}
    v_mul_u32_u24 v{vRw}, {RROW}, v{vN}
    v_lshl_add_u32 v{vRw}, v{vQ}, 4, v{vRw}
    v_add_u32 v{vRw}, s{sRpD+2}, v{vRw}
    v_lshlrev_b32 v{XO}, 1, v{XO}
    s_lshl_b32 s{sB2}, s{sX}, 1
    s_mov_b32 s{rW}, s{pOut}
    s_mov_b32 s{rW+1}, s{pOut+1}
    s_mov_b32 s{rW+2}, {2048*2560}
    s_mov_b32 s{rW+3}, 0x20000
    """)
    for s in range(4):
        setup += lines(f"s_xor_b32 s{sB0}, s{sW}, {s}\ns_mul_i32 s{sB0}, s{sB0}, {WLW}\ns_add_u32 s{sB0}, s{sB0}, {L_WL + s*RBLK}\nv_add_u32 v{AD[s]}, s{sB0}, v{LO}")
    bgq = list(setup)
    per = -(-len(pend) // kw)
    for tk in range(22):
        assert not [1 for t_, _ in pend if t_ <= tk], (typ, tk)
        if OPT.get("fine2"): stamp(16 + 2*tk)
        k.wait_vm([("w", tk), ("h", tk)] + (["wl"] if tk + 2 == nlds0 else []))
        if tk >= nlds0: k.wait_lg(("wr", tk))
        if OPT.get("fine2"): stamp(17 + 2*tk)
        wk, wb = wreg(tk); ring = HRING[tk % 5]
        m = []
        for s in range(4):
            for i in range(5):
                c = "0" if tk == 0 else V(acc2(i, s), 4)
                m.append(f"v_mfma_f32_16x16x32_bf16 {V(acc2(i,s),4)}, {R(wk, wb+4*i, 4)}, {R(ring[s][0], ring[s][1], 4)}, {c}")
        streams = []
        if tk + 5 == 12:
            k.wait_vm("hf2"); check("hs" + typ, vF + 1, vFd)
        if tk + 5 < 22:
            a_, b_ = hload(tk + 5)
            streams.append((a_, 0, 2, True))
            for s in range(4): streams.append((b_[s], 5*s + 4, 5*s + 4, True))
        if nlds0 <= tk + 2 < 22: streams.append((wread(tk + 2), 0, 14, True))
        mem = []
        if tk == 5: mem += [VM(f"buffer_load_dwordx2 {V(vFd,2)}, v{vF+1}, s[{rWS}:{rWS+3}], 0 offen sc1", "hf2")]
        n_ = 0
        while pend and n_ < per and (pend[0][0] < NREG or nlds0 < 22 or pend[0][0] - NREG < tk):
            mem += flat([pend.pop(0)[1]]); n_ += 1
        streams.append((mem, 1, 18, True))
        if tk == 12: assert not bgq
        if tk == 21:
            wr_ = [DSF(f"ds_write_b128 v{vRw}, {V(acc2(i,s),4)} offset:{s*RBLK + i*64}") for s in range(2) for i in range(5)]
            streams.append((wr_, 8, 19, True))
        streams.append((bgq, 0, 20, False))
        sched(m, streams)
    for i in range(5): k.ds(f"ds_write_b128 v{vRw}, {V(acc2(i,2),4)} offset:{2*RBLK + i*64}")
    stamp()
    for i in range(5): k.ds(f"ds_write_b128 v{vRw}, {V(acc2(i,3),4)} offset:{3*RBLK + i*64}")
    k.wait_lg(); k.e("s_barrier")
    RD = [160 + 16*g for g in range(5)]
    for g in range(5):
        for s in range(4): k.ds(f"ds_read_b128 {V(RD[g]+4*s,4)}, v{AD[s]} offset:{64*g}", ("r", g))
    for g in range(5):
        k.wait_lg(("r", g))
        o = RES + 4*g
        for h in range(2): k.e(f"v_pk_add_f32 {V(RD[g]+2*h,2)}, {V(RD[g]+2*h,2)}, {V(RD[g]+4+2*h,2)}")
        for h in range(2): k.e(f"v_pk_add_f32 {V(RD[g]+8+2*h,2)}, {V(RD[g]+8+2*h,2)}, {V(RD[g]+12+2*h,2)}")
        for h in range(2): k.e(f"v_pk_add_f32 {V(o+2*h,2)}, {V(o+2*h,2)}, {V(RD[g]+2*h,2)}")
        for h in range(2): k.e(f"v_pk_add_f32 {V(o+2*h,2)}, {V(o+2*h,2)}, {V(RD[g]+8+2*h,2)}")
        k.vmem(f"buffer_store_dwordx4 {V(o,4)}, v{XO}, s[{rW}:{rW+3}], s{sB2} offen offset:{64*g} {OPT.get('ost', '')}", "o")
    k.e("s_branch L_fin" if OPT["stamps"] else "s_endpgm")

def finish():
    if OPT["stamps"]:
        k.label("L_fin")
        k.wait_vm0()
        stamp(11)
        k.e(f"""
        s_memtime s[100:101]
        s_waitcnt lgkmcnt(0)
        s_sub_u32 s100, s100, s98
        v_writelane_b32 v{vST}, s100, 63
        s_lshl_b32 s{sT0}, s2, 2
        s_add_u32 s{sT0}, s{sT0}, s{sW}
        s_lshl_b32 s{sT0}, s{sT0}, 8
        s_add_u32 s{sT0}, s{sT0}, {WS_ST}
        v_lshlrev_b32 v2, 2, v{vL}
        buffer_store_dword v{vST}, v2, s[{rWS}:{rWS+3}], s{sT0} offen
        """)

prologue()
path_ssm()
if OPT["stamps"]: stamp_n[0] = 1
path_mlp()
finish()
k.label("L_end")
body = k.text()
errs = check_hazards(body)
for e_ in errs: print("HAZARD:", e_, file=sys.stderr)

hdr = open(f"cdna_kernels/{NAME}.s.ref").read().split("\n")
hdr = [l for l in hdr if l.startswith(";") and "@launch" not in l and "Override" not in l and "grid=ceil" not in l]
out = "\n".join(hdr) + f"\n; @launch grid=(256,1,1) block=(256,1,1) lds={L_END}\n"
out += f""".amdgcn_target "amdgcn-amd-amdhsa--gfx950"
.text
.globl {NAME}_kernel
.p2align 8
.type {NAME}_kernel,@function
{NAME}_kernel:
{body}    s_endpgm
L_code_end:
.set CODE_BYTES, L_code_end - {NAME}_kernel - 512
.section .rodata,"a"
.p2align 6
.amdhsa_kernel {NAME}_kernel
  .amdhsa_next_free_vgpr 512
  .amdhsa_next_free_sgpr 102
  .amdhsa_accum_offset 256
  .amdhsa_group_segment_fixed_size 0
  .amdhsa_kernarg_size 136
  .amdhsa_user_sgpr_count 2
  .amdhsa_user_sgpr_kernarg_segment_ptr 1
  .amdhsa_system_sgpr_workgroup_id_x 1
.end_amdhsa_kernel
"""
open(sys.argv[1], "w").write(out)
print("written", sys.argv[1], len(out), "bytes; hazards:", len(errs))
```

```python
import sys, struct
sys.path.insert(0, "dev")
from asmlib import *

NAME = "parallel_sum__ssm_conv_s5__mixer_channel_mlp__prompt"
OPT = dict(stamps=False, stop=None, nt_dma="", nt_pf="", nt_rp="", pf=0, pf0=1, pford=0, post0=10, post=20, e1=35, ew=60, e2=0, post_s=0, cpf=1, rfchk_ssm=99, rfchk_mlp=15, rpst=(4, 5, 6, 7, 8), rpflag=4, kw_mlp=14, kw_ssm=6, util=1.0, rot1=1, rot2=1)
for a_ in sys.argv[2:]:
    k_, v_ = a_.split("=", 1); OPT[k_] = eval(v_)

def f2u(x): return struct.unpack("<I", struct.pack("<f", x))[0]
def hx(x): return "0x%08x" % f2u(x)

WS_EP = 0
WS_H = 4096
WS_WP = 12 << 20
WS_E = 16 << 20
WS_RF = 17 << 20
WS_HF = (17 << 20) + 65536
WS_RS = 18 << 20
WS_ST = 20 << 20
WS_SIZE = 24 << 20
OOB = 0x4000000
L_TOK = 0; L_CH = 2048; L_PW = 7168; L_EX = 17408; L_EX2 = L_EX + 1280
L_STG = 20480; L_X = 40960; L_W = 90112; L_END = 163840
XS = 16384; WSL = 24576
L_SC = L_EX2; SCW = 384
WLW = 35840; RROW = 336; RBLK = 16 * RROW
L_WL = L_STG
NST = 10
pX, pLre, pLim, pBre, pBim, pCre, pCim, pLdt = 16, 18, 20, 22, 24, 26, 28, 30
pDsk, pBx, pW1, pB1, pW2, pB2, pOut, pDbg, pWs = 32, 34, 36, 38, 40, 42, 44, 46, 48
sW, sWR, sWC, sMT, sNT, sTYP, sHALF, sDT = 3, 4, 5, 6, 7, 8, 8, 7
sML, sI8 = 9, 10
sNonce = 11; sT0, sT1, sT2, sT3 = 12, 13, 14, 15
sKs = 50; sPF = 51
rX, rW, rWS, rT, rT2 = 52, 56, 60, 64, 68
sX, sLX, sLW, sB0, sB2, sPFs, sUnit, sRpSrc, sLR, sSpin = 72, 73, 74, 75, 76, 77, 78, 79, 80, 81
sK = 82; sEx = 84
sH, sHw, sWp, sDis = 86, 87, 88, 89
sST = 90
sRpD = 92
sSig = 97
sWa, sHa, sLim = 18, 22, 26
sDX, sDW = 77, 51
rPF = rT2
vL, vN, vQ = 1, 2, 3
vDX0, vDX1, vXa, vXb = 4, 5, 6, 7
vDW = 8
vPF, vDR, vJunk, vNc = 10, 11, 12, 13
vWA = 14
vRA = 22
vL16 = 26
vRS = 27
vB1 = 28
vT = 40
vST = 99
ACC = 160
def acc(i, j): return ACC + (i * 4 + j) * 4
aF = [0, 40]
aONE = 80; aCS = 84

k = Asm()
k.strict = OPT.get('strict', False)
k.lenient = OPT['stamps']
stamp_n = [0]
def stamp(i=None):
    if not OPT["stamps"]: return
    if i is None:
        i = stamp_n[0]; stamp_n[0] += 1
    k.e(f"{'s_memtime' if OPT.get('cyc') else 's_memrealtime'} s[{sST}:{sST+1}]"); k.e("s_waitcnt lgkmcnt(0)"); k.lg = []
    k.e(f"v_writelane_b32 v{vST}, s{sST}, {i}")
def srd(r, ptr, size):
    k.e(f"s_mov_b32 s{r}, s{ptr}\ns_mov_b32 s{r+1}, s{ptr+1}\ns_mov_b32 s{r+2}, {size}\ns_mov_b32 s{r+3}, 0x20000")

class F:
    def __init__(self, fn, cost=1, ds=False, sep=False, ta=0): self.fn, self.cost, self.ds, self.sep, self.ta = fn, cost, ds, sep, ta
    def __call__(self): self.fn()
def lines(s):
    out = []
    for l in (x.strip() for x in s.split("\n")):
        if not l: continue
        parts = l.split(" | ")
        c = sum(2 if x.split()[0] in TRANS else 1 for x in parts)
        out.append(F(lambda l=l: k.e(l.replace(" | ", "\n")), c))
    return out
def VM(text, tag, sep=False, ta=66): return F(lambda: k.vmem(text, tag), 2, sep=sep, ta=ta)
def DSF(text, tag=None): return F(lambda: k.ds(text, tag), 1, ds=True)
def sched(main, streams, start=0):
    n = len(main)
    st = []
    for items, g0, g1, must in streams:
        cnt = len(items) if must else min(len(items), must if isinstance(must, int) and must > 1 else len(items))
        tot = sum(f.cost for f in items[:cnt]) or 1
        tg = []; acc_ = 0
        for f in items[:cnt]:
            tg.append(g0 + (g1 - g0) * acc_ / tot if must else g0); acc_ += f.cost
        st.append(dict(items=items, tg=tg, last=-1, must=must))
    for g, m in enumerate(main):
        k.e(m)
        if g < start: continue
        room = 2; hasds = False
        prog = True
        while prog and room > 0:
            prog = False
            for x in st:
                if not x["tg"] or x["tg"][0] > g: continue
                f = x["items"][0]
                if f.sep and x["last"] == g: continue
                if f.ds and hasds: continue
                if f.cost > room and room < 2 and not (not x["must"] and g - x["last"] >= 3): continue
                x["items"].pop(0); x["tg"].pop(0); x["last"] = g
                f(); room -= f.cost; hasds |= f.ds; prog = True
                break
    for x in st:
        if x["must"]:
            over = len(x["tg"])
            if over and OPT.get("show"): print("overflow", over)
            while x["tg"]:
                f = x["items"].pop(0); x["tg"].pop(0)
                if f.sep: k.e("s_nop 0")
                f()
def merge(*ls):
    ls = [l for l in ls if l]
    if not ls: return []
    if len(ls) == 1: return list(ls[0])
    items = []
    for li, l in enumerate(ls):
        for i, f in enumerate(l): items.append(((i + 0.5) / len(l), li, i, f))
    items.sort(key=lambda x: (x[0], x[1]))
    return [x[3] for x in items]

def prologue():
    t = vT
    k.e(f"""
    s_cmp_ge_u32 s2, 256
    s_cbranch_scc1 L_end
    s_load_dwordx16 s[16:31], s[0:1], 0
    s_load_dwordx16 s[32:47], s[0:1], 64
    s_load_dwordx2 s[48:49], s[0:1], 128
    v_lshrrev_b32 v{t}, 6, v0
    v_and_b32 v{vL}, 63, v0
    v_readfirstlane_b32 s{sW}, v{t}
    v_and_b32 v{vN}, 15, v{vL}
    v_lshrrev_b32 v{vQ}, 4, v{vL}
    v_lshlrev_b32 v{vL16}, 4, v{vL}
    s_and_b32 s{sT0}, s2, 7
    s_lshr_b32 s{sT1}, s2, 3
    s_lshr_b32 s{sTYP}, s{sT1}, 4
    s_bfe_u32 s{sML}, s{sT1}, 0x20002
    s_lshr_b32 s{sMT}, s{sT0}, 1
    s_lshl_b32 s{sT2}, s{sML}, 2
    s_add_u32 s{sMT}, s{sMT}, s{sT2}
    s_and_b32 s{sT2}, s{sT1}, 3
    s_lshl_b32 s{sI8}, s{sTYP}, 2
    s_add_u32 s{sI8}, s{sI8}, s{sT2}
    s_and_b32 s{sNT}, s{sT0}, 1
    s_lshl_b32 s{sNT}, s{sNT}, 2
    s_add_u32 s{sNT}, s{sNT}, s{sT2}
    s_lshr_b32 s{sWR}, s{sW}, 1
    s_and_b32 s{sWC}, s{sW}, 1
    s_xor_b32 s{sKs}, s{sWR}, s{sWC}
    s_mov_b32 s{sSpin}, 0x40000
    s_and_b32 s{sT2}, s2, 127
    s_sub_u32 s{sT3}, 255, s2
    s_cmp_eq_u32 s{sTYP}, 1
    s_cselect_b32 s{sUnit}, s{sT2}, s{sT3}
    s_cmp_lt_u32 s{sUnit}, 176
    s_cselect_b32 s{sUnit}, s{sUnit}, s{sT2}
    s_cselect_b32 s{sDis}, 0, {OOB}
    """)
    if OPT["stamps"]:
        k.e(f"v_mov_b32 v{vST}, 0\n{'s_memtime' if OPT.get('cyc') else 's_memrealtime'} s[{sST}:{sST+1}]\ns_memtime s[98:99]"); stamp_n[0] = 1
    if OPT.get("spin"): k.e(f"{OPT['spin'][0]} s[98:99]")
    if OPT["cpf"]:
        k.e(f"""
        s_getpc_b64 s[{sEx}:{sEx+1}]
        s_lshr_b32 s{sT1}, s2, 3
        s_lshl_b32 s{sT1}, s{sT1}, 2
        s_add_u32 s{sT1}, s{sT1}, s{sW}
        s_lshl_b32 s{sT1}, s{sT1}, 9
        v_and_b32 v{t}, 3, v{vL}
        v_lshlrev_b32 v{t}, 7, v{t}
        v_add_u32 v{t}, s{sT1}, v{t}
        v_min_u32 v{t}, CODE_BYTES, v{t}
        global_load_dword v{vJunk}, v{t}, s[{sEx}:{sEx+1}]
        """)
    k.e(f"""
    v_lshrrev_b32 v{t}, 3, v{vL}
    v_and_b32 v{t+1}, 7, v{vL}
    v_lshrrev_b32 v{t+2}, 1, v{t}
    v_xor_b32 v{t+2}, v{t+1}, v{t+2}
    v_mul_u32_u24 v{t+3}, 5120, v{t}
    v_lshl_add_u32 v{vDX0}, v{t+2}, 4, v{t+3}
    v_xor_b32 v{vDX1}, 64, v{vDX0}
    v_add_u32 v{vDX1}, 40960, v{vDX1}
    s_lshl_b32 s{sT0}, s{sMT}, 7
    s_lshl_b32 s{sT1}, s{sWR}, 6
    s_add_u32 s{sT0}, s{sT0}, s{sT1}
    s_lshl_b32 s{sT1}, s{sWC}, 1
    s_add_u32 s{sT0}, s{sT0}, s{sT1}
    s_mul_i32 s{sX}, s{sT0}, 1280
    s_lshl_b32 s{sLX}, s{sW}, 12
    s_lshl_b32 s{sT2}, s{sKs}, 2
    v_add_u32 v{t+4}, s{sT2}, v{vQ}
    v_lshrrev_b32 v{t+5}, 1, v{vN}
    v_xor_b32 v{t+5}, v{t+4}, v{t+5}
    v_lshlrev_b32 v{t+5}, 4, v{t+5}
    v_lshl_add_u32 v{t+5}, v{vN}, 7, v{t+5}
    s_lshl_b32 s{sT1}, s{sWC}, 13
    s_add_u32 s{sT1}, s{sT1}, {L_X}
    v_add_u32 v{vXa}, s{sT1}, v{t+5}
    v_xor_b32 v{vXb}, 64, v{vXa}
    s_cmp_eq_u32 s{sTYP}, 1
    s_cbranch_scc1 L_mlp
    """)

issued = {}
mark = []
def dma(vo, rs, so, imm, sl, tgt, tag, fl, pre=None):
    def f1():
        k.e(f"s_add_u32 m0, s{sl}, {tgt - imm}")
        if pre: k.e(pre)
    def f2():
        if isinstance(tag, tuple): issued[tag[1]] = issued.get(tag[1], 0) + 1
        k.vmem(f"buffer_load_dwordx4 v{vo}, s[{rs}:{rs+3}], s{so} offen offset:{imm} {fl} lds", tag)
    return [F(f1, 2 if pre else 1), F(f2, 2, sep=True, ta=66)]
def run(ops):
    for op in ops:
        for f in (op if isinstance(op, list) else [op]):
            if f.sep: k.e("s_nop 0")
            f()
def flat(ops): return [f for op in ops for f in (op if isinstance(op, list) else [op])]
def advance(typ):
    d = 64*3072 if typ == "mlp" else 128
    return (f"s_cmp_eq_u32 s{sSig}, 9 | s_cselect_b32 s{sDX}, {-9*128 & 0xffffffff}, s{sDX} | s_cselect_b32 s{sDW}, {-9*d & 0xffffffff}, s{sDW} | s_cselect_b32 s{sSig}, -1, s{sSig}\n"
            f"s_add_u32 s{sX}, s{sX}, s{sDX}\ns_add_u32 s{sB0}, s{sB0}, s{sDW}\ns_add_u32 s{sB2}, s{sB2}, s{sDW}\n"
            f"s_add_u32 s{sSig}, s{sSig}, 1\ns_movk_i32 s{sDX}, 128\ns_mov_b32 s{sDW}, {d}")
def rot_setup(typ):
    d = 64*3072 if typ == "mlp" else 128
    k.e(f"""
    s_mul_i32 s{sT0}, s{sI8}, 5
    s_lshr_b32 s{sT0}, s{sT0}, 2
    s_mul_i32 s{sT1}, s{sML}, 5
    s_lshr_b32 s{sT1}, s{sT1}, 1
    s_add_u32 s{sT0}, s{sT0}, s{sT1}
    s_and_b32 s{sT1}, s{sMT}, 3
    s_add_u32 s{sSig}, s{sT0}, s{sT1}
    s_sub_u32 s{sT0}, s{sSig}, 10
    s_cmp_ge_u32 s{sSig}, 10
    s_cselect_b32 s{sSig}, s{sT0}, s{sSig}
    s_mul_i32 s{sSig}, s{sSig}, {OPT['rot1']}
    s_lshl_b32 s{sT0}, s{sSig}, 7
    s_add_u32 s{sX}, s{sX}, s{sT0}
    s_mul_i32 s{sT0}, s{sSig}, {d}
    s_add_u32 s{sB0}, s{sB0}, s{sT0}
    s_add_u32 s{sB2}, s{sB2}, s{sT0}
    s_movk_i32 s{sDX}, 128
    s_mov_b32 s{sDW}, {d}
    """)
def dma_x(stage, g):
    return dma(vDX0 + (g & 1), rX, sX, (g >> 1) * 1280, sLX, L_X + (stage % 3) * XS + g * 1024, ("st", stage), OPT["nt_dma"])
def dma_w(typ, stage, g):
    base = L_W + (stage % 3) * WSL
    if typ == "mlp":
        rg, cg = g // 3, g % 3
        return dma(vDW + rg, rW, sB2 if rg else sB0, cg * 128, sLW, base + cg * 8192 + rg * 1024, ("st", stage), OPT["nt_dma"])
    imm = 2560 if (g < 4 and g & 1) else 0
    return dma(vDW + (1 if g == 4 else 0), rW, sB2 if g in (2, 3) else sB0, imm, sLW, base + g * 2048, ("st", stage), OPT["nt_dma"])
def dma_stage(typ, stage):
    nw = 6 if typ == "mlp" else 5
    ops = merge([dma_x(stage, g) for g in range(4)], [dma_w(typ, stage, g) for g in range(nw)])
    if stage > 0: ops[0] = lines(advance(typ)) + ops[0]
    return ops
def pf(a):
    def f():
        if not OPT["pf"]: return
        k.vmem(f"buffer_load_dword v{vJunk}, v{vPF}, s[{rPF}:{rPF+3}], s{sPF} offen {OPT['nt_pf']}", "pf")
        k.e(f"s_add_u32 s{sPF}, s{sPF}, s{sPFs}")
    return F(f, 3)

def frag_reads(typ, stage, blk, fs):
    slot = stage % 3
    nr = 6 if typ == "mlp" else 5
    vx = vXa if blk == 0 else vXb
    xr = [DSF(f"ds_read_b128 {A(aF[fs] + 24 + 4*j, 4)}, v{vx} offset:{slot*XS + j*2048}") for j in range(4)]
    wr_ = []
    for i in range(nr):
        if typ == "mlp":
            for h in range(2):
                wr_.append(DSF(f"ds_read_b64_tr_b16 {A(aF[fs] + 4*i + 2*h, 2)}, v{vWA + blk*4 + (i & 3)} offset:{slot*WSL + (i >> 2)*8192 + h*512}"))
        else:
            wr_.append(DSF(f"ds_read_b128 {A(aF[fs] + 4*i, 4)}, v{vWA + blk} offset:{slot*WSL + i*2048}"))
    return merge(xr, wr_)

def mfmas(typ, stage, blk, fs):
    nr = 6 if typ == "mlp" else 5
    first = stage == 0
    out = []
    Af = lambda i: A(aF[fs] + 4*i, 4)
    Bf = lambda j: A(aF[fs] + 24 + 4*j, 4)
    for i in range(nr):
        for j in range(4):
            c = "0" if (first and blk == 0) else V(acc(i, j), 4)
            out.append(f"v_mfma_f32_16x16x32_bf16 {V(acc(i,j),4)}, {Af(i)}, {Bf(j)}, {c}")
    if blk == 1:
        for i in range(nr):
            out.append(f"v_mfma_f32_16x16x32_bf16 {A(aCS+4*i,4)}, {Af(i)}, {A(aONE,4)}, {'0' if first else A(aCS+4*i,4)}")
    if blk == 1 and stage == NST - 1: out = out[-nr:] + out[:-nr]
    return out

XR = 124
def start_loads(typ):
    t = vT
    k.e("s_waitcnt lgkmcnt(0)")
    if OPT["stamps"]: k.e(f"v_writelane_b32 v{vST}, s{sST}, 0")
    stamp(12)
    k.e(f"""
    s_or_b32 s{sT0}, s2, s{sW}
    s_cmp_lg_u32 s{sT0}, 0
    s_cbranch_scc1 L_nononce_{typ}
    s_memrealtime s[{sT0}:{sT1}]
    s_waitcnt lgkmcnt(0)
    s_or_b32 s{sT0}, s{sT0}, 1
    v_mov_b32 v{t+8}, s{sT0}
    v_mov_b32 v{t+9}, 0
    global_store_dword v{t+9}, v{t+8}, s[{pDbg}:{pDbg+1}] sc1
    L_nononce_{typ}:
    """)
    srd(rX, pX, 2048 * 1280)
    if typ == "mlp": srd(rW, pW1, 640 * 3072)
    else:
        k.e(f"""
        s_cmp_eq_u32 s{sWC}, 0
        s_cselect_b32 s{rW}, s{pBre}, s{pBim}
        s_cselect_b32 s{rW+1}, s{pBre+1}, s{pBim+1}
        s_mov_b32 s{rW+2}, {640*1280}
        s_mov_b32 s{rW+3}, 0x20000
        """)
    run(dma_stage(typ, 0))
    stamp(13)
    srd(rWS, pWs, WS_SIZE)
def xr_setup():
    k.e(f"""
    s_lshl_b32 s{sT0}, s{sTYP}, 3
    s_add_u32 s{sT0}, s{sT0}, s{sNT}
    s_lshl_b32 s{sT0}, s{sT0}, 2
    s_add_u32 s{sT0}, s{sT0}, s{sW}
    s_lshl_b32 s{sT0}, s{sT0}, 1
    s_lshl_b32 s{sT1}, s{sMT}, 7
    s_add_u32 s{sHw}, s{sT0}, s{sT1}
    s_mul_i32 s{sH}, s{sHw}, 1280
    v_lshrrev_b32 v{XR+10}, 5, v{vL}
    v_mul_u32_u24 v{XR+10}, 1280, v{XR+10}
    v_and_b32 v{XR+11}, 31, v{vL}
    v_lshl_add_u32 v{XR+10}, v{XR+11}, 3, v{XR+10}
    """)
def xr_loads():
    return [VM(f"buffer_load_dwordx2 {V(XR+2*i,2)}, v{XR+10}, s[{rX}:{rX+3}], s{sH} offen offset:{256*i}", "xr", ta=36) for i in range(5)]

def pf_setup(typ):
    t = vT + 10
    k.e(f"""
    v_mul_u32_u24 v{t}, 52, v{vL}
    v_lshrrev_b32 v{t}, 10, v{t}
    v_mul_u32_u24 v{t+1}, 20, v{t}
    v_sub_u32 v{t+1}, v{vL}, v{t+1}
    s_lshl_b32 s{sT0}, s{sMT}, 7
    s_lshl_b32 s{sT1}, s{sI8}, 4
    s_add_u32 s{sT0}, s{sT0}, s{sT1}
    s_mul_i32 s{sT0}, s{sT0}, 1280
    s_add_u32 s{sT0}, s{sT0}, {128*OPT['pf0']}
    """)
    if typ == "mlp":
        k.e(f"""
        s_lshl_b32 s{sT1}, s{sML}, 4
        s_add_u32 s{sT1}, s{sT1}, {64*OPT['pf0']}
        s_mul_i32 s{sT1}, s{sT1}, 3072
        s_mul_i32 s{sT2}, s{sNT}, 384
        s_add_u32 s{sT1}, s{sT1}, s{sT2}
        s_lshl_b32 s{sT2}, s{sW}, 7
        s_add_u32 s{sT1}, s{sT1}, s{sT2}
        s_cmp_eq_u32 s{sW}, 3
        s_cselect_b32 s{sPF}, s{sT0}, s{sT1}
        s_mov_b32 s{sT2}, {64*3072}
        s_cselect_b32 s{sT2}, 128, s{sT2}
        s_mov_b32 s{sT3}, 3072
        s_cselect_b32 s{sT3}, 1280, s{sT3}
        s_mov_b32 s{sT0}, 16
        """)
    else:
        k.e(f"""
        s_mul_i32 s{sT1}, s{sNT}, 80
        s_mul_i32 s{sT2}, s{sML}, 20
        s_add_u32 s{sT1}, s{sT1}, s{sT2}
        s_mul_i32 s{sT1}, s{sT1}, 1280
        s_add_u32 s{sT1}, s{sT1}, {128*OPT['pf0']}
        s_cmp_eq_u32 s{sW}, 3
        s_cselect_b32 s{sPF}, s{sT0}, s{sT1}
        s_cselect_b32 s{sT0}, 16, 20
        s_cmp_eq_u32 s{sW}, 2
        s_cselect_b32 s{sT0}, 0, s{sT0}
        s_mov_b32 s{sT2}, 128
        s_mov_b32 s{sT3}, 1280
        """)
    k.e(f"""
    s_mul_i32 s{sPFs}, s{sT2}, 3
    v_mul_lo_u32 v{vPF}, v{t}, s{sT2}
    v_mul_lo_u32 v{t+2}, v{t+1}, s{sT3}
    v_add_u32 v{vPF}, v{vPF}, v{t+2}
    v_cmp_gt_u32 vcc, s{sT0}, v{t+1}
    v_cmp_gt_u32 s[{sT2}:{sT3}], 60, v{vL}
    s_and_b64 vcc, vcc, s[{sT2}:{sT3}]
    v_mov_b32 v{t+2}, {OOB}
    s_nop 0
    v_cndmask_b32 v{vPF}, v{t+2}, v{vPF}, vcc
    """)

def repack_setup(tag):
    t = vT
    k.e(f"""
    v_lshrrev_b32 v{t}, 3, v{vL}
    v_and_b32 v{t+1}, 7, v{vL}
    v_mul_u32_u24 v{t}, 1280, v{t}
    v_lshl_add_u32 v{t}, v{t+1}, 4, v{t}
    v_or_b32 v{vDR}, s{sDis}, v{t}
    v_or_b32 v{vRS}, s{sDis}, v{vL16}
    s_lshl_b32 s{sLR}, s{sW}, 10
    s_and_b32 s{sT0}, s{sUnit}, 1
    s_lshr_b32 s{sT1}, s{sUnit}, 1
    s_mov_b32 s{rT+3}, 0x20000
    s_cmp_lt_u32 s{sUnit}, 96
    s_cbranch_scc0 L_rpC_{tag}
    s_mov_b32 s{rT}, s{pW2}
    s_mov_b32 s{rT+1}, s{pW2+1}
    s_mov_b32 s{rT+2}, {1536*1280}
    s_lshl_b32 s{sT2}, s{sT1}, 2
    s_add_u32 s{sT2}, s{sT2}, s{sW}
    s_mul_i32 s{sRpSrc}, s{sT2}, {8*1280}
    s_mul_i32 s{sT2}, s{sT1}, 5462
    s_lshr_b32 s{sT2}, s{sT2}, 16
    s_mul_i32 s{sT2}, s{sT2}, 10
    s_add_u32 s{sT1}, s{sT1}, s{sT2}
    s_mul_i32 s{sT1}, s{sT1}, 5120
    s_add_u32 s{sT1}, s{sT1}, {WS_WP}
    s_mul_i32 s{sT2}, s{sT0}, 20
    s_add_u32 s{sT2}, s{sT2}, s{sW}
    """)
    for i in range(5):
        k.e(f"""
        s_mul_i32 s{sT3}, s{sT2}, 13108
        s_lshr_b32 s{sT3}, s{sT3}, 16
        s_mul_i32 s{sT3}, s{sT3}, 435
        s_add_u32 s{sT3}, s{sT3}, s{sT2}
        s_lshl_b32 s{sT3}, s{sT3}, 10
        s_add_u32 s{sRpD+i}, s{sT3}, s{sT1}
        s_add_u32 s{sT2}, s{sT2}, 4
        """)
    k.e(f"""
    v_lshrrev_b32 v{t}, 2, v{vN}
    v_lshl_add_u32 v{t}, v{vQ}, 2, v{t}
    v_lshlrev_b32 v{t}, 7, v{t}
    v_and_b32 v{t+1}, 3, v{vN}
    v_lshl_add_u32 v{t}, v{t+1}, 3, v{t}
    s_lshl_b32 s{sT2}, s{sW}, 5
    s_add_u32 s{sT2}, s{sT2}, {L_STG}
    v_add_u32 v{vRA}, s{sT2}, v{t}
    s_branch L_rpJ_{tag}
    L_rpC_{tag}:
    s_sub_u32 s{sT1}, s{sT1}, 48
    s_cmp_eq_u32 s{sWR}, 0
    s_cselect_b32 s{rT}, s{pCre}, s{pCim}
    s_cselect_b32 s{rT+1}, s{pCre+1}, s{pCim+1}
    s_mov_b32 s{rT+2}, {640*1280}
    s_lshl_b32 s{sT2}, s{sT1}, 1
    s_add_u32 s{sT2}, s{sT2}, s{sWC}
    s_mul_i32 s{sRpSrc}, s{sT2}, {8*1280}
    s_mul_i32 s{sT2}, s{sT1}, 13108
    s_lshr_b32 s{sT2}, s{sT2}, 16
    s_mul_i32 s{sT2}, s{sT2}, 435
    s_add_u32 s{sT1}, s{sT1}, s{sT2}
    s_lshl_b32 s{sT2}, s{sT0}, 1
    s_add_u32 s{sT2}, s{sT2}, s{sWR}
    s_mul_i32 s{sT2}, s{sT2}, 110
    s_add_u32 s{sT1}, s{sT1}, s{sT2}
    s_mul_i32 s{sT2}, s{sWC}, 25
    s_add_u32 s{sT1}, s{sT1}, s{sT2}
    s_add_u32 s{sT1}, s{sT1}, 60
    s_lshl_b32 s{sT1}, s{sT1}, 10
    s_add_u32 s{sRpD}, s{sT1}, {WS_WP}
    s_add_u32 s{sRpD+1}, s{sRpD}, 5120
    s_add_u32 s{sRpD+2}, s{sRpD}, 10240
    s_add_u32 s{sRpD+3}, s{sRpD}, 15360
    s_add_u32 s{sRpD+4}, s{sRpD}, 20480
    s_mul_i32 s{sT2}, s{sW}, 160
    v_lshlrev_b32 v{t+2}, 7, v{vN}
    v_add_u32 v{t+2}, {L_STG}, v{t+2}
    """)
    for x, (off, sh) in enumerate(((0, 4), (80, 4), (64, 2), (144, 2))):
        k.e(f"""
        s_add_u32 s{sT3}, s{sT2}, {off}
        v_lshl_add_u32 v{t}, v{vQ}, {sh}, s{sT3}
        v_lshrrev_b32 v{t+1}, 7, v{t}
        v_and_b32 v{t}, 127, v{t}
        v_lshl_add_u32 v{t}, v{t+1}, 12, v{t}
        v_add_u32 v{vRA+x}, v{t}, v{t+2}
        """)
    k.e(f"""
    L_rpJ_{tag}:
    s_mul_i32 s{sT0}, s{sT0}, 640
    s_add_u32 s{sRpSrc}, s{sRpSrc}, s{sT0}
    """)
def repack_dma():
    return [dma(vDR, rT, sRpSrc, g * 128, sLR, L_STG + g * 4096, "rp", OPT["nt_rp"]) for g in range(5)]
RP = 136
def repack_read(tag):
    def f():
        s = f"s_cmp_lt_u32 s{sUnit}, 96\ns_cbranch_scc0 L_rqC_{tag}\n"
        for i in range(5):
            for h in range(2): s += f"ds_read_b64_tr_b16 {V(RP+4*i+2*h,2)}, v{vRA} offset:{i*4096 + h*2048}\n"
        s += f"""s_branch L_rqJ_{tag}
        L_rqC_{tag}:
        ds_read_b128 {V(RP,4)}, v{vRA}
        ds_read_b128 {V(RP+4,4)}, v{vRA} offset:2048
        ds_read_b128 {V(RP+8,4)}, v{vRA+1}
        ds_read_b128 {V(RP+12,4)}, v{vRA+1} offset:2048
        ds_read_b32 v{RP+16}, v{vRA+2}
        ds_read_b32 v{RP+17}, v{vRA+2} offset:2048
        ds_read_b32 v{RP+18}, v{vRA+3}
        ds_read_b32 v{RP+19}, v{vRA+3} offset:2048
        L_rqJ_{tag}:
        """
        k.e(s)
    return [F(f, 12)]
def repack_store():
    return [VM(f"buffer_store_dwordx4 {V(RP+4*i,4)}, v{vRS}, s[{rWS}:{rWS+3}], s{sRpD+i} offen sc1", ("rps", i), ta=240) for i in range(5)]
def repack_flag():
    t = vT
    fl = lines(f"""
    v_mov_b32 v{t}, s{sNonce}
    v_mov_b32 v{t+1}, s{sNonce}
    s_lshl_b32 s{sT0}, s{sUnit}, 7
    s_add_u32 s{sT0}, s{sT0}, {WS_RF}
    s_cmp_eq_u32 s{sW}, 0 | s_cselect_b32 s{sT1}, s{sDis}, {OOB}
    v_lshlrev_b32 v{t+2}, 26, v{vL}
    v_or_b32 v{t+2}, s{sT1}, v{t+2}
    """)
    return fl + [VM(f"buffer_store_dwordx2 {V(t,2)}, v{t+2}, s[{rWS}:{rWS+3}], s{sT0} offen sc1", "rf", ta=20)]

def bfr(d, s): return f"v_cvt_pk_bf16_f32 v{d}, v{s}, v{s}\nv_and_b32 v{d}, 0xffff0000, v{d}\n"
def nonce_load():
    return lines(f"v_mov_b32 v{vNc}, 0") + [VM(f"global_load_dword v{vNc}, v{vNc}, s[{pDbg}:{pDbg+1}] sc1", "nc", ta=20)]
def rowstat_job(tag):
    t = vT + 20
    S_, Q, MEAN, VAR, S1, X, Y = t, t+1, t+2, t+3, t+4, t+5, t+6
    G0, G1 = t+8, t+12
    M1, A1, A2, AM = G0, G0+2, G1, G1+2
    def dots():
        k.wait_vm("xr")
        s = f"v_mov_b32 v{X}, 0x3f803f80\nv_mov_b32 v{S_}, 0\nv_mov_b32 v{Q}, 0\n"
        for i in range(10): s += f"v_dot2c_f32_bf16 v{S_}, v{XR+i}, v{X}\nv_dot2c_f32_bf16 v{Q}, v{XR+i}, v{XR+i}\n"
        s += "s_nop 2\n"
        k.e(s)
    fl = [F(dots, 24)]
    for d in ("row_shr:1", "row_shr:2", "row_shr:4", "row_shr:8", "row_bcast:15"):
        rm = "0xa" if "bcast" in d else "0xf"
        fl.append(F(lambda d=d, rm=rm: k.e(f"v_add_f32_dpp v{S_}, v{S_}, v{S_} {d} row_mask:{rm} bank_mask:0xf bound_ctrl:0"), 1, sep=True))
        fl.append(F(lambda d=d, rm=rm: k.e(f"v_add_f32_dpp v{Q}, v{Q}, v{Q} {d} row_mask:{rm} bank_mask:0xf bound_ctrl:0"), 1))
    fl += lines(f"""
    v_mul_f32 v{MEAN}, {hx(1/640)}, v{S_}
    v_mul_f32 v{VAR}, {hx(1/640)}, v{Q}
    v_fma_f32 v{VAR}, -v{MEAN}, v{MEAN}, v{VAR}
    v_max_f32 v{VAR}, 0, v{VAR}
    {bfr(M1, MEAN)}{bfr(X, VAR)}
    v_add_f32 v{X}, {hx(1e-5)}, v{X}
    {bfr(X, X)}
    v_sqrt_f32 v{X}, v{X}
    v_sub_f32 v{Y}, v{MEAN}, v{M1}
    {bfr(S1, X)}
    v_rcp_f32 v{A1}, v{S1}
    s_nop 0
    v_mul_f32 v{Y}, v{Y}, v{A1}
    v_mul_f32 v{X}, v{VAR}, v{A1}
    {bfr(Y, Y)}
    v_mul_f32 v{X}, v{X}, v{A1}
    {bfr(X, X)}
    v_add_f32 v{X}, {hx(1e-5)}, v{X}
    {bfr(X, X)}
    v_sqrt_f32 v{X}, v{X}
    v_fma_f32 v{Y}, v{Y}, v{S1}, v{M1}
    {bfr(X, X)}
    v_mul_f32 v{X}, v{X}, v{S1}
    v_rcp_f32 v{A2}, v{X}
    v_and_b32 v{X}, 31, v{vL}
    v_mul_f32 v{AM}, v{A2}, v{Y}
    v_cmp_eq_u32 vcc, 31, v{X} | v_and_b32 v{X}, 32, v{vL} | v_mov_b32 v{Y}, {OOB} | v_cndmask_b32 v{X}, v{Y}, v{X}, vcc
    s_lshl_b32 s{sT0}, s{sHw}, 5
    s_add_u32 s{sT0}, s{sT0}, {WS_RS}
    """)
    def nonce():
        k.wait_vm("nc")
        k.e(f"""
        v_readfirstlane_b32 s{sNonce}, v{vNc}
        s_cmp_lg_u32 s{sNonce}, 0
        s_cbranch_scc1 L_ncok_{tag}
        L_ncl_{tag}:
        s_sleep 1
        global_load_dword v{vNc}, v{Y}, s[{pDbg}:{pDbg+1}] sc1
        s_sub_u32 s{sSpin}, s{sSpin}, 1
        s_cbranch_scc1 L_end
        s_waitcnt vmcnt(0)
        v_readfirstlane_b32 s{sNonce}, v{vNc}
        s_cmp_eq_u32 s{sNonce}, 0
        s_cbranch_scc1 L_ncl_{tag}
        L_ncok_{tag}:
        s_nop 0
        """)
    fl += lines(f"v_mov_b32 v{Y}, 0") + [F(nonce, 4)]
    fl += lines(f"""
    v_mov_b32 v{G0+1}, s{sNonce}
    v_mov_b32 v{G0+3}, s{sNonce}
    v_mov_b32 v{G1+1}, s{sNonce}
    v_mov_b32 v{G1+3}, s{sNonce}
    """)
    fl.append(VM(f"buffer_store_dwordx4 {V(G0,4)}, v{X}, s[{rWS}:{rWS+3}], s{sT0} offen sc1", "rs", ta=20))
    fl.append(VM(f"buffer_store_dwordx4 {V(G1,4)}, v{X}, s[{rWS}:{rWS+3}], s{sT0} offen offset:16 sc1", "rs", ta=20))
    return fl
RSV = 124
def rowstat_fetch():
    fl = lines(f"""
    s_lshl_b32 s{sT0}, s{sMT}, 12
    s_add_u32 s{sT0}, s{sT0}, {WS_RS}
    v_lshlrev_b32 v{RSV+4}, 4, v0
    v_add_u32 v{RSV+4}, s{sT0}, v{RSV+4}
    """)
    return fl + [VM(f"buffer_load_dwordx4 {V(RSV,4)}, v{RSV+4}, s[{rWS}:{rWS+3}], 0 offen sc1", "rsv")]

def ta_of(op): return sum(f.ta for f in flat([op]))
def main_loop(typ, jobs, vq, bg):
    q = [(max(0, 2*st - 5), max(2*st - 4 + (x >= 5) - OPT.get('lag', 0), x >= 5), op) for st in range(2, NST) for x, op in enumerate(dma_stage(typ, st))]
    q = sorted(q + vq, key=lambda x: x[1])
    credit = [OPT.get("credit0", 0)]
    def take(bi, n):
        credit[0] = min(credit[0] + n * 17 * OPT["util"], n * 17 + 100) - sum(ta_of(x) for x in jobs.get(("pre", bi), []) + jobs.get(bi, []))
        out = []
        while True:
            c = [x for x in q if x[0] <= bi]
            if not c or (credit[0] < 33 and c[0][1] > bi): break
            q.remove(c[0]); out.append(c[0][2]); credit[0] -= ta_of(c[0][2])
        if OPT.get('show'): print(typ, bi, len(out), len(jq), len(bg), int(credit[0]), dict(issued))
        return flat(out)
    jq = []
    k.wait_vm(("st", 0)); k.e("s_barrier")
    stamp()
    run(frag_reads(typ, 0, 0, 0))
    def block(bi, m, reads, n):
        run(jobs.get(("pre", bi), []))
        jq.extend(jobs.get(bi, []))
        d = take(bi, n)
        n = len(m)
        if bi == 2*NST - 1: reads, r0 = jobs["last"], 12
        else: r0 = 0
        sched(m, [(d, 0, n - 1, True), (reads, r0, n - OPT.get("rend", 6), True), (jq, 0, n, False), (bg if bi >= OPT.get("bg0", 12) else [], 0, n, False)])
    for s in range(NST):
        k.wait_lg()
        m = mfmas(typ, s, 0, 0)
        block(2*s, m, frag_reads(typ, s, 1, 1), len(m))
        k.wait_lg()
        m = mfmas(typ, s, 1, 1)
        k.e(m[0]); k.e(m[1])
        if s + 1 < NST:
            if OPT.get("fine"): stamp(16 + 3*s)
            assert issued.get(s + 1, 0) == (10 if typ == "mlp" else 9), (typ, s, issued)
            for tg in jobs.get(("wait", s), []): assert tg in k.seen, tg
            k.wait_vm([("st", s + 1)] + jobs.get(("wait", s), []))
            if OPT.get("fine"): stamp(17 + 3*s)
            k.e("s_barrier")
        block(2*s + 1, m[2:], frag_reads(typ, s + 1, 0, 0) if s + 1 < NST else [], len(m))
    assert not jq and len(bg) < 12, (len(jq), len(bg))
    run(bg)
    stamp()
    if OPT["stop"] == "loop": k.e("s_branch L_fin")
    return [x[2] for x in q]

WSLOT = [("a", 108 + 20*x) for x in range(7)] + [("a", 20*x) for x in range(5)] + [("v", 100 + 20*x) for x in range(3)]
NREG = 15
def wreg(tk): return WSLOT[tk] if tk < NREG else WSLOT[tk - NREG]
def kaddr(dst, base, tk, stride, extra=0):
    g = 0 if tk < 12 else 1
    return lines(f"s_cmp_gt_u32 s{sLim+g}, {tk} | s_cselect_b32 s{dst}, s{base+2*g}, s{base+2*g+1}\ns_add_u32 s{dst}, s{dst}, {tk*stride + extra}")
def wload(tk):
    kind, base = wreg(tk)
    out = []
    for i in range(5):
        op = []
        if i == 0: op += kaddr(sT2, sWa, tk, 5120)
        if i == 4: op += lines(f"s_add_u32 s{sT2}, s{sT2}, 4096")
        op.append(VM(f"buffer_load_dwordx4 {R(kind, base+4*i, 4)}, v{vL16}, s[{rWS}:{rWS+3}], s{sT2} offen offset:{(i & 3)*1024} sc1", ("w", tk)))
        out.append(op)
    return out
def wdma():
    out = []
    for x in range(35):
        tk, i = NREG + x // 5, x % 5
        op = kaddr(sT2, sWa, tk, 5120) if i == 0 else lines(f"s_add_u32 s{sT2}, s{sT2}, 1024")
        out.append(op + lines(f"s_add_u32 m0, s{sRpD+2}, {x*1024}") + [VM(f"buffer_load_dwordx4 v{vL16}, s[{rWS}:{rWS+3}], s{sT2} offen sc1 lds", "wl", sep=True)])
    return out
RFV = 134
def rflag_fetch():
    vF, vFd = RFV, RFV + 2
    fl = lines(f"""
    v_min_u32 v{vF}, 16, v{vL}
    s_mul_i32 s{sT0}, s{sW}, 24
    s_lshr_b32 s{sT1}, s{sDT}, 2
    s_add_u32 s{sT0}, s{sT0}, s{sT1}
    s_mul_i32 s{sT1}, s{sDT}, 10
    s_add_u32 s{sT1}, s{sT1}, {96 - 24}
    s_add_u32 s{sT1}, s{sT1}, s{sWR}
    v_cmp_gt_u32 vcc, 12, v{vF} | v_mov_b32 v{vFd}, s{sT1} | v_mov_b32 v{vFd+1}, s{sT0} | v_cndmask_b32 v{vFd}, v{vFd}, v{vFd+1}, vcc
    v_lshl_add_u32 v{vF}, v{vF}, 1, v{vFd}
    v_lshlrev_b32 v{vF}, 7, v{vF}
    v_add_u32 v{vF}, {WS_RF}, v{vF}
    s_mul_i32 s{sWp}, s{sDT}, 88
    s_mul_i32 s{sT0}, s{sW}, 22
    s_add_u32 s{sWp}, s{sWp}, s{sT0}
    s_mul_i32 s{sWp}, s{sWp}, 5120
    s_add_u32 s{sWp}, s{sWp}, {WS_WP}
    s_lshl_b32 s{sT1}, s{sMT}, 1
    s_add_u32 s{sT1}, s{sT1}, s{sHALF}
    s_mul_i32 s{sT1}, s{sT1}, 88
    s_add_u32 s{sT1}, s{sT1}, s{sT0}
    s_lshl_b32 s{sRpSrc}, s{sT1}, 12
    s_add_u32 s{sRpSrc}, s{sRpSrc}, {WS_H}
    s_and_b32 s{sRpD}, s{sDT}, 3
    s_mul_i32 s{sRpD+2}, s{sW}, {WLW}
    s_add_u32 s{sRpD+2}, s{sRpD+2}, {L_WL}
    s_lshl_b32 s{sRpD+1}, s{sML}, 1
    s_add_u32 s{sRpD+1}, s{sRpD+1}, s{sHALF}
    """)
    for g, (n_, ma, mb) in enumerate(((12, 12, 6), (10, 10, 5))):
        fl += lines(f"""
        s_mul_i32 s{sT0}, s{sRpD}, {ma}
        s_lshr_b32 s{sT0}, s{sT0}, 2
        s_mul_i32 s{sT1}, s{sRpD+1}, {mb}
        s_lshr_b32 s{sT1}, s{sT1}, 2
        s_add_u32 s{sT0}, s{sT0}, s{sT1}
        s_sub_u32 s{sT1}, s{sT0}, {n_}
        s_cmp_ge_u32 s{sT0}, {n_} | s_cselect_b32 s{sT0}, s{sT1}, s{sT0}
        s_mul_i32 s{sT0}, s{sT0}, {OPT['rot2']}
        s_sub_u32 s{sLim+g}, {12*g + n_}, s{sT0}
        s_mul_i32 s{sT1}, s{sT0}, 5120
        s_add_u32 s{sWa+2*g}, s{sWp}, s{sT1}
        s_sub_u32 s{sWa+2*g+1}, s{sWa+2*g}, {n_*5120}
        s_lshl_b32 s{sT1}, s{sT0}, 12
        s_add_u32 s{sHa+2*g}, s{sRpSrc}, s{sT1}
        s_sub_u32 s{sHa+2*g+1}, s{sHa+2*g}, {n_*4096}
        """)
    return fl + [VM(f"buffer_load_dwordx2 {V(vFd,2)}, v{vF}, s[{rWS}:{rWS+3}], 0 offen sc1", "rfv", ta=66)]
def check(tag, vaddr, vd, width=2, second=1):
    k.e(f"""
    L_chk_{tag}:
    v_cmp_ne_u32 vcc, s{sNonce}, v{vd + (1 if width == 4 else 0)}
    v_cmp_ne_u32 s[{sT0}:{sT1}], s{sNonce}, v{vd + (3 if width == 4 else 1)}
    s_or_b64 vcc, vcc, s[{sT0}:{sT1}]
    s_cmp_eq_u64 vcc, 0
    s_cbranch_scc1 L_chkok_{tag}
    s_sub_u32 s{sSpin}, s{sSpin}, 1
    s_cbranch_scc1 L_end
    buffer_load_dwordx{width} {V(vd,width)}, v{vaddr}, s[{rWS}:{rWS+3}], 0 offen sc1
    s_waitcnt vmcnt(0)
    s_branch L_chk_{tag}
    L_chkok_{tag}:
    """)
def common_jobs(typ):
    j = {}
    j[0] = nonce_load()
    j[2] = rowstat_job(typ)
    r0 = OPT["rpst"][0]
    j[("wait", (r0 - 2) // 2)] = ["rp"]
    j[("pre", r0 - 1)] = repack_read(typ)
    for f, bi in zip(repack_store(), OPT["rpst"]): j[("pre", bi)] = j.get(("pre", bi), []) + [f]
    fs = OPT["rpflag"]
    j[("wait", fs)] = [("rps", 4)]
    j[2*fs + 1] = repack_flag()
    bi = OPT["rfchk_" + typ]
    rf = rflag_fetch()
    vq = [(0, 0, op) for op in xr_loads()] + [(0, 1.5, op) for op in repack_dma()]
    stats_jobs(typ, j)
    j[12] = j.get(12, []) + warm_params()
    if bi < 20:
        mk_ = []
        j[bi - 5] = j.get(bi - 5, []) + rf[:-1] + [F(lambda: mk_.append(1), 0)]
        j[("pre", bi - 1)] = [F(lambda: mk_[0], 0)] + rf[-1:]
        def chk():
            k.wait_vm("rfv"); check("rf_" + typ, RFV, RFV + 2)
        j[("pre", bi)] = [F(chk, 6)]
        vq += [(bi, 99, op) for tk in range(7) for op in wload(tk)]
    else:
        j[11] = j.get(11, []) + rf[:-1]
        j[17] = rf[-1:]
    return j, vq

TK = vT + 8
SA = 76
def stats_jobs(typ, j):
    nr = 6 if typ == "mlp" else 5
    j[13] = j.get(13, []) + lines(f"""
    s_mul_i32 s{sT0}, s{sW}, {SCW}
    s_add_u32 s{sT0}, s{sT0}, {L_SC}
    v_lshlrev_b32 v{SA+1}, 4, v{vQ}
    v_add_u32 v{SA}, s{sT0}, v{SA+1}
    s_mul_i32 s{sT0}, s{sWR}, {2*SCW}
    s_add_u32 s{sT0}, s{sT0}, {L_SC}
    v_add_u32 v{SA+1}, s{sT0}, v{SA+1}
    s_lshl_b32 s{sT0}, s{sWC}, 10
    v_lshlrev_b32 v{SA+2}, 6, v{vN}
    v_add_u32 v{SA+2}, s{sT0}, v{SA+2}
    v_lshlrev_b32 v{SA+3}, 3, v0
    """) + rowstat_fetch()
    def chk():
        k.wait_vm("rsv")
        check("rs_" + typ, RSV + 4, RSV, 4)
        k.ds(f"ds_write2_b32 v{SA+3}, v{RSV}, v{RSV+2} offset0:{L_TOK//4} offset1:{L_TOK//4+1}")
    j[("pre", 16)] = j.get(("pre", 16), []) + [F(chk, 8)]
    j[18] = j.get(18, []) + [DSF(f"ds_read_b128 {V(TK+4*x,4)}, v{SA+2} offset:{L_TOK + x*16}") for x in range(4)]
    def wr():
        k.e("s_mov_b32 exec_lo, 0x00010001\ns_mov_b32 exec_hi, 0x00010001")
        for i in range(nr): k.ds(f"ds_write_b128 v{SA}, {A(aCS+4*i,4)} offset:{i*64}")
        k.e("s_mov_b64 exec, -1")
    j["last"] = [F(wr, 8, ds=True)]
def stats(typ):
    nr = 6 if typ == "mlp" else 5
    CS = vT + 24; P2 = 100
    k.wait_lg(); k.e("s_barrier")
    for i in range(nr):
        k.ds(f"ds_read_b128 {V(P2+4*i,4)}, v{SA+1} offset:{SCW+i*64}", ("cs", i))
    for i in (0, 1, 2, 4, 5, 3)[:nr + 1]:
        if i < nr: k.ds(f"ds_read_b128 {V(CS+4*i,4)}, v{SA+1} offset:{i*64}", ("cs", i))
    return TK, CS, P2
def stats_sum(typ, CS, P2):
    k.wait_lg()
    for i in range(6 if typ == "mlp" else 5):
        for h in range(2):
            k.e(f"v_pk_add_f32 {V(CS+4*i+2*h,2)}, {V(CS+4*i+2*h,2)}, {V(P2+4*i+2*h,2)}")

class Feeder:
    def __init__(self, jobs, every): self.jobs, self.every, self.n = list(jobs), every, 0
    def tick(self, n=1):
        self.n += n
        while self.n >= self.every and self.jobs:
            self.n -= self.every; run([self.jobs.pop(0)])
    def flush(self):
        while self.jobs: run([self.jobs.pop(0)])

def h_base():
    k.e(f"""
    s_lshl_b32 s{sT0}, s{sMT}, 1
    s_add_u32 s{sT0}, s{sT0}, s{sWC}
    s_mul_i32 s{sH}, s{sT0}, {88*4096}
    s_add_u32 s{sH}, s{sH}, {WS_H}
    s_lshr_b32 s{sT0}, s{sNT}, 1
    s_mul_i32 s{sT0}, s{sT0}, 22
    s_and_b32 s{sT1}, s{sNT}, 1
    """)
HRING = [[("v", 40 + 4*s) for s in range(4)], [("v", 56 + 4*s) for s in range(4)], [("v", 72 + 4*s) for s in range(4)],
         [("v", 240 + 4*s) for s in range(4)], [("a", 100), ("a", 104), ("a", 248), ("a", 252)]]
vF, vFd, vHs = 28, 30, 32
vWL, vRw, XO, LO = 36, 37, 38, 39
RES = 4
def flag_addr():
    k.e(f"""
    v_bfe_u32 v{vFd}, v{vL}, 1, 1
    s_lshl_b32 s{sT0}, s{sMT}, 4
    s_lshl_b32 s{sT1}, s{sW}, 1
    s_add_u32 s{sT1}, s{sT0}, s{sT1}
    s_add_u32 s{sT1}, s{sT1}, 8
    v_add_u32 v{vFd}, s{sT1}, v{vFd}
    v_lshlrev_b32 v{vFd}, 7, v{vFd}
    v_and_b32 v{vF}, 1, v{vL}
    v_lshl_add_u32 v{vF}, v{vF}, 5, v{vFd}
    s_lshl_b32 s{sT1}, s{sHALF}, 4
    s_add_u32 s{sT1}, s{sT1}, {WS_HF}
    v_add_u32 v{vF}, s{sT1}, v{vF}
    v_add_u32 v{vF+1}, -1024, v{vF}
    s_lshl_b32 s{sT1}, s{sTYP}, 3
    s_add_u32 s{sT0}, s{sT0}, s{sT1}
    s_add_u32 s{sT0}, s{sT0}, s{sNT}
    s_lshl_b32 s{sT0}, s{sT0}, 7
    s_lshl_b32 s{sT1}, s{sW}, 4
    s_add_u32 s{sT0}, s{sT0}, s{sT1}
    s_add_u32 s{sLW}, s{sT0}, {WS_HF}
    """)
def h_offsets():
    for s in range(4):
        k.e(f"s_xor_b32 s{sT0}, s{sW}, {s}\ns_lshl_b32 s{sT0}, s{sT0}, 10\nv_add_u32 v{vHs+s}, s{sT0}, v{vL16}")
def poll_m(): k.vmem(f"buffer_load_dwordx2 {V(vFd,2)}, v{vF}, s[{rWS}:{rWS+3}], 0 offen sc1", "hf")
FL = 96
def h_flag(track=True):
    k.e(f"v_mov_b32 v{FL}, s{sNonce}\nv_mov_b32 v{FL+1}, s{sNonce}\nv_lshlrev_b32 v{FL+2}, 26, v{vL}")
    k.wait_vm("h")
    tx = f"buffer_store_dwordx2 {V(FL,2)}, v{FL+2}, s[{rWS}:{rWS+3}], s{sLW} offen sc1"
    k.vmem(tx, "fl") if track else k.e(tx)
EX_, ED, EB, TKv, U = 100, 110, 120, 130, 132
def ep_loads():
    k.e(f"""
    s_lshl_b32 s{sT0}, s{sMT}, 7
    s_lshl_b32 s{sT1}, s{sHALF}, 6
    s_add_u32 s{sT0}, s{sT0}, s{sT1}
    s_add_u32 s{sT0}, s{sT0}, s{sW}
    s_mul_i32 s{sX}, s{sT0}, 1280
    s_mul_i32 s{sT0}, s{sDT}, 160
    s_add_u32 s{sX}, s{sX}, s{sT0}
    v_lshrrev_b32 v{U}, 2, v{vL}
    v_and_b32 v{U+1}, 3, v{vL}
    v_lshlrev_b32 v{U+2}, 3, v{U+1}
    v_mul_u32_u24 v{XO}, 5120, v{U}
    v_add_u32 v{XO}, v{XO}, v{U+2}
    v_mul_u32_u24 v{LO}, {RROW}, v{U}
    v_lshl_add_u32 v{LO}, v{U+1}, 4, v{LO}
    v_lshlrev_b32 v{U}, 6, v{U}
    s_lshl_b32 s{sT1}, s{sHALF}, 10
    v_add_u32 v{U}, s{sT1}, v{U}
    s_lshl_b32 s{sT1}, s{sW}, 4
    v_add_u32 v{U}, s{sT1}, v{U}
    """)
    k.ds(f"ds_read_b64 {V(TKv,2)}, v{U} offset:{L_TOK}", "tk")
    for g in range(5): k.vmem(f"buffer_load_dwordx2 {V(EX_+2*g,2)}, v{XO}, s[{rX}:{rX+3}], s{sX} offen offset:{32*g}", "ep")
    for reg, ptr in ((ED, pDsk), (EB, pB2)):
        srd(rT, ptr, 1280)
        for g in range(5): k.vmem(f"buffer_load_dwordx2 {V(reg+2*g,2)}, v{U+2}, s[{rT}:{rT+3}], s{sT0} offen offset:{32*g}", "ep")
def residual(fd=None):
    k.wait_vm("ep"); k.wait_lg()
    for g in range(5):
        if fd: fd.tick(1)
        xf, df, bf_ = U + 4, U + 8, U + 12
        for src, dst in ((EX_ + 2*g, xf), (ED + 2*g, df), (EB + 2*g, bf_)):
            for h in range(2):
                k.e(f"v_lshlrev_b32 v{dst+2*h}, 16, v{src+h}\nv_and_b32 v{dst+2*h+1}, 0xffff0000, v{src+h}")
        A_ = [RES + 4*g, RES + 4*g + 2]
        def rnd():
            for a in A_: k.e(f"v_cvt_pk_bf16_f32 v{a+1}, v{a}, v{a+1}")
            for a in A_: k.e(f"v_lshlrev_b32 v{a}, 16, v{a+1}\nv_and_b32 v{a+1}, 0xffff0000, v{a+1}")
        for h, a in enumerate(A_): k.e(f"v_pk_add_f32 {V(a,2)}, {V(xf+2*h,2)}, {V(TKv,2)} op_sel:[0,0] op_sel_hi:[1,0] neg_lo:[0,1] neg_hi:[0,1]")
        rnd()
        for h, a in enumerate(A_): k.e(f"v_pk_mul_f32 {V(a,2)}, {V(a,2)}, {V(TKv,2)} op_sel:[0,1] op_sel_hi:[1,1]")
        rnd()
        for h, a in enumerate(A_): k.e(f"v_pk_mul_f32 {V(a,2)}, {V(a,2)}, {V(df+2*h,2)}")
        rnd()
        for h, a in enumerate(A_): k.e(f"v_pk_add_f32 {V(a,2)}, {V(a,2)}, {V(xf+2*h,2)}")
        for h, a in enumerate(A_): k.e(f"v_pk_add_f32 {V(a,2)}, {V(a,2)}, {V(bf_+2*h,2)}")
def hload(tk):
    ring = HRING[tk % 5]
    return kaddr(sT3, sHa, tk, 4096), [[VM(f"buffer_load_dwordx4 {R(ring[s][0], ring[s][1], 4)}, v{vHs+s}, s[{rWS}:{rWS+3}], s{sT3} offen sc1", ("h", tk))] for s in range(4)]
def h_first():
    for tk in range(5):
        a_, b_ = hload(tk); run(a_); run(b_)
def warm_params():
    return lines(f"v_mov_b32 v{vJunk}, 0") + [VM(f"global_load_dword v{vNc}, v{vL16}, s[{pDsk}:{pDsk+1}]", "jk", ta=20), VM(f"global_load_dword v{vNc}, v{vL16}, s[{pB2}:{pB2+1}]", "jk", ta=20),
            VM(f"global_load_dword v{vNc}, v{vJunk}, s[{pDsk}:{pDsk+1}] offset:1152", "jk", ta=10), VM(f"global_load_dword v{vNc}, v{vJunk}, s[{pB2}:{pB2+1}] offset:1152", "jk", ta=10),
            VM(f"global_load_dword v{vNc}, v{vJunk}, s[{pDsk}:{pDsk+1}] offset:1024", "jk", ta=10), VM(f"global_load_dword v{vNc}, v{vJunk}, s[{pB2}:{pB2+1}] offset:1024", "jk", ta=10)]

def ones():
    k.e(f"v_mov_b32 v{vT+6}, 0x3f803f80")
    for i in range(4): k.e(f"v_accvgpr_write_b32 a{aONE+i}, v{vT+6}")

def path_mlp():
    typ = "mlp"; t = vT
    k.label("L_mlp")
    issued.clear()
    k.vm = []; k.lg = []
    k.e(f"""
    v_and_b32 v{t+2}, 2, v{t}
    v_xor_b32 v{t+2}, v{t+1}, v{t+2}
    v_mul_u32_u24 v{t+3}, 3072, v{t}
    v_lshl_add_u32 v{vDW}, v{t+2}, 4, v{t+3}
    v_xor_b32 v{vDW+1}, 64, v{vDW}
    s_mul_i32 s{sB0}, s{sW}, {16*3072}
    s_mul_i32 s{sT0}, s{sNT}, 384
    s_add_u32 s{sB0}, s{sB0}, s{sT0}
    s_add_u32 s{sB2}, s{sB0}, {8*3072}
    s_lshl_b32 s{sLW}, s{sW}, 11
    """)
    k.e(f"""
    v_lshrrev_b32 v{t}, 2, v{vN}
    v_lshl_add_u32 v{t+1}, v{vQ}, 3, v{t}
    v_lshlrev_b32 v{t+1}, 7, v{t+1}
    v_and_b32 v{t+2}, 3, v{vN}
    v_lshl_add_u32 v{t+1}, v{t+2}, 3, v{t+1}
    v_lshrrev_b32 v{t}, 1, v{t}
    v_and_b32 v{t+2}, 1, v{vQ}
    v_lshl_add_u32 v{t}, v{t+2}, 1, v{t}
    s_lshl_b32 s{sT0}, s{sKs}, 12
    s_add_u32 s{sT0}, s{sT0}, {L_W}
    v_add_u32 v{t+1}, s{sT0}, v{t+1}
    s_mul_i32 s{sT2}, s{sWR}, 6
    """)
    for i in range(4):
        k.e(f"""
        s_add_u32 s{sT3}, s{sT2}, {i}
        s_lshr_b32 s{sT0}, s{sT3}, 2
        s_lshl_b32 s{sT0}, s{sT0}, 13
        s_and_b32 s{sT3}, s{sT3}, 3
        v_xor_b32 v{t+2}, s{sT3}, v{t}
        v_lshl_add_u32 v{t+2}, v{t+2}, 5, v{t+1}
        v_add_u32 v{vWA+i}, s{sT0}, v{t+2}
        v_xor_b32 v{vWA+4+i}, 4096, v{vWA+i}
        """)
    Kc = 2 * 0.7978845608028654 * 1.4426950408889634
    k.e(f"s_mov_b32 s{sK}, {hx(-Kc*0.044715)}\ns_mov_b32 s{sK+1}, {hx(-Kc)}")
    ones()
    xr_setup()
    rot_setup(typ)
    start_loads(typ)
    repack_setup(typ)
    stamp(15)
    run(dma_stage(typ, 1))
    stamp(14)
    jobs, vq = common_jobs(typ)
    b1j = lines(f"""
    s_mov_b32 s{rT2}, s{pB1}
    s_mov_b32 s{rT2+1}, s{pB1+1}
    s_mov_b32 s{rT2+2}, 3072
    s_mov_b32 s{rT2+3}, 0x20000
    s_mul_i32 s{sT0}, s{sNT}, 384
    s_mul_i32 s{sT1}, s{sWR}, 192
    s_add_u32 s{sT0}, s{sT0}, s{sT1}
    v_lshlrev_b32 v{t}, 3, v{vQ}
    """) + [VM(f"buffer_load_dwordx2 {V(vB1+2*i,2)}, v{t}, s[{rT2}:{rT2+3}], s{sT0} offen offset:{32*i}", "b1", ta=25) for i in range(6)]
    jobs[7] = b1j
    left = main_loop(typ, jobs, vq, [])
    TK, CS, P2 = stats(typ)
    stamp()
    pend = [(6 - (len(left) - 1 - x) // 5, op) for x, op in enumerate(left)] + [(tk, op) for tk in range(7, 22) for op in wload(tk)]
    ne = OPT.get("ne_mlp", 0)
    fd = Feeder([op for _, op in pend[:ne]], 35 * 12 // max(1, ne))
    pend = pend[ne:]
    h_base()
    k.e(f"""
    s_mul_i32 s{sT1}, s{sT1}, 6
    s_add_u32 s{sT0}, s{sT0}, s{sT1}
    s_mul_i32 s{sT1}, s{sWR}, 3
    s_add_u32 s{sT0}, s{sT0}, s{sT1}
    s_lshl_b32 s{sT0}, s{sT0}, 12
    s_add_u32 s{sH}, s{sH}, s{sT0}
    """)
    stats_sum(typ, CS, P2)
    B = 100
    for i in range(6):
        for h in range(2):
            k.e(f"v_lshlrev_b32 v{B+4*i+2*h}, 16, v{vB1+2*i+h}\nv_and_b32 v{B+4*i+2*h+1}, 0xffff0000, v{vB1+2*i+h}")
    TM = 124
    OUT = [88, 92]
    n_ = 0
    for u in range(3):
        for j in range(4):
            o = OUT[n_ & 1]; n_ += 1
            k.raw(".p2align 3")
            prs = [(2*u + ii, h) for ii in range(2) for h in range(2)]
            Z = [acc(i, j) + 2*h for i, h in prs]
            T1 = [TM + 2*x for x in range(4)]; T2 = [TM + 8 + 2*x for x in range(4)]
            for x, (i, h) in enumerate(prs):
                k.e(f"v_pk_fma_f32 {V(T1[x],2)}, {V(CS+4*i+2*h,2)}, {V(TK+4*j+2,2)}, {V(B+4*i+2*h,2)} op_sel:[0,1,0] op_sel_hi:[1,1,1] neg_lo:[0,1,0] neg_hi:[0,1,0]")
            for x in range(4):
                k.e(f"v_pk_fma_f32 {V(Z[x],2)}, {V(Z[x],2)}, {V(TK+4*j+2,2)}, {V(T1[x],2)} op_sel:[0,0,0] op_sel_hi:[1,0,1]")
            fd.tick(12)
            for x in range(4): k.e(f"v_pk_mul_f32 {V(T1[x],2)}, {V(Z[x],2)}, {V(Z[x],2)}")
            for x in range(4): k.e(f"v_pk_fma_f32 {V(T1[x],2)}, {V(T1[x],2)}, s[{sK}:{sK+1}], s[{sK}:{sK+1}] op_sel:[0,0,1] op_sel_hi:[1,0,1]")
            for x in range(4): k.e(f"v_pk_mul_f32 {V(T1[x],2)}, {V(T1[x],2)}, {V(Z[x],2)}")
            for x in range(4): k.e(f"v_exp_f32 v{T2[x]}, v{T1[x]}\nv_exp_f32 v{T2[x]+1}, v{T1[x]+1}")
            fd.tick(12)
            for x in range(4): k.e(f"v_pk_add_f32 {V(T2[x],2)}, {V(T2[x],2)}, 1.0 op_sel_hi:[1,0]")
            for x in range(4): k.e(f"v_rcp_f32 v{T2[x]}, v{T2[x]}\nv_rcp_f32 v{T2[x]+1}, v{T2[x]+1}")
            if n_ < 12: fd.tick(12)
            for x in range(4): k.e(f"v_pk_mul_f32 {V(Z[x],2)}, {V(Z[x],2)}, {V(T2[x],2)}")
            for x in range(4): k.e(f"v_cvt_pk_bf16_f32 v{o+x}, v{Z[x]}, v{Z[x]+1}")
            k.vmem(f"buffer_store_dwordx4 {V(o,4)}, v{vL16}, s[{rWS}:{rWS+3}], s{sH} offen offset:{j*1024} sc1", "h")
        if u < 2: k.e(f"s_add_u32 s{sH}, s{sH}, 4096")
    fd.flush()
    stamp()
    ep_loads()
    n0, n1 = OPT['post0'], OPT['post0'] + OPT['post']
    run([op for _, op in pend[:n0]])
    flag_addr()
    h_flag()
    poll_m()
    h_offsets()
    ops = [op for _, op in pend[n0:n1]]
    fd = Feeder([flat(ops[x::1][:0]) for x in range(0)], 1)
    cut = [ops[(x * len(ops)) // 5:((x + 1) * len(ops)) // 5] for x in range(5)]
    residual(Feeder([flat(c) for c in cut], 1))
    assert max([t_ for t_, _ in pend[:n1]] + [0]) < 12
    stamp(7)
    k.wait_vm("hf"); check("hm" + typ, vF, vFd)
    stamp(8)
    h_first()
    phase2(typ, pend[n1:], 22, OPT['kw_mlp'])

def cmul_acc(d, a, b, c):
    k.e(f"v_pk_fma_f32 {V(d,2)}, {V(a,2)}, {V(b,2)}, {V(c,2)} op_sel:[0,0,0] op_sel_hi:[1,0,1]")
    k.e(f"v_pk_fma_f32 {V(d,2)}, {V(a,2)}, {V(b,2)}, {V(d,2)} op_sel:[1,1,0] op_sel_hi:[0,1,1] neg_lo:[0,1,0]")

PR = 100
def masked(m, ins):
    def f():
        k.e(f"s_mov_b32 exec_lo, {m}\ns_mov_b32 exec_hi, {m}"); k.ds(ins); k.e("s_mov_b64 exec, -1")
    return F(f, 4, ds=True)
def power(KK, al, be, t):
    x, y, c_, s_ = t+10, t+11, t+12, t+13
    return lines(f"""
    v_mul_f32 v{y}, v{KK}, v{be}
    v_mul_f32 v{x}, v{KK}, v{al}
    v_fract_f32 v{y}, v{y}
    v_cos_f32 v{c_}, v{y}
    v_sin_f32 v{s_}, v{y}
    v_exp_f32 v{x}, v{x}
    s_nop 0
    v_mul_f32 v{t+14}, v{x}, v{c_}
    v_mul_f32 v{t+15}, v{x}, v{s_}
    """)
def table_a():
    t = 80; CH_ = vB1 + 10
    lr, li, dt, al, be, KK, AD = PR, PR+1, PR+2, t+8, t+9, t, t+1
    x, y, c_, s_ = t+10, t+11, t+12, t+13
    LOG2E = 1.4426950408889634
    fl = lines(f"""
    v_lshlrev_b32 v{dt}, 16, v{dt}
    v_lshlrev_b32 v{lr}, 16, v{lr}
    v_mul_f32 v{dt}, {hx(LOG2E)}, v{dt}
    v_exp_f32 v{dt}, v{dt}
    v_lshlrev_b32 v{li}, 16, v{li}
    {bfr(dt, dt)}
    v_mul_f32 v{al}, v{dt}, v{lr}
    v_mul_f32 v{be}, v{dt}, v{li}
    v_mul_f32 v{al}, {hx(LOG2E)}, v{al}
    v_mul_f32 v{be}, 0.15915494, v{be}
    v_lshlrev_b32 v{KK}, 6, v{CH_+1}
    v_max_u32 v{KK}, 1, v{KK}
    v_cvt_f32_u32 v{KK}, v{KK}
    v_lshlrev_b32 v{AD}, 3, v{CH_}
    """)
    fl += lines(f"v_lshrrev_b32 v{t+2}, 4, v0\nv_lshlrev_b32 v{t+3}, 3, v{t+2}")
    fl.append(DSF(f"ds_write_b64 v{AD}, {V(al,2)} offset:{L_EX}"))
    fl.append(F(lambda: mark.append(1), 0))
    fl += power(KK, al, be, t)
    fl += lines(f"""
    v_lshlrev_b32 v{AD}, 3, v{CH_+1}
    v_cmp_eq_u32 vcc, 0, v{CH_+1} | v_add_u32 v{AD}, 40, v{AD} | v_mov_b32 v{x}, 0 | v_cndmask_b32 v{AD}, v{AD}, v{x}, vcc
    v_lshl_add_u32 v{AD}, v{CH_}, 6, v{AD}
    """)
    fl.append(DSF(f"ds_write_b64 v{AD}, {V(t+14,2)} offset:{L_CH}"))
    fl += lines(f"""
    v_mul_f32 v{y}, v{lr}, v{lr}
    v_add_f32 v{x}, -1.0, v{t+14}
    v_fma_f32 v{y}, v{li}, v{li}, v{y}
    v_rcp_f32 v{y}, v{y}
    v_mul_f32 v{c_}, v{x}, v{lr}
    v_fma_f32 v{c_}, v{t+15}, v{li}, v{c_}
    v_mul_f32 v{s_}, v{t+15}, v{lr}
    v_fma_f32 v{s_}, -v{x}, v{li}, v{s_}
    v_add_f32 v{y}, v{y}, v{y}
    v_mul_f32 v{t+16}, v{c_}, v{y}
    v_mul_f32 v{t+17}, v{s_}, v{y}
    """)
    def f():
        k.e(f"v_cmp_eq_u32 vcc, 0, v{CH_+1}\ns_mov_b64 exec, vcc"); k.ds(f"ds_write_b64 v{AD}, {V(t+16,2)} offset:{L_CH + 8}"); k.e("s_mov_b64 exec, -1")
    fl.append(F(f, 4, ds=True))
    fl.append(F(lambda: mark.append(2), 0))
    return fl
def table_rd():
    t = 80
    return [DSF(f"ds_read_b64 {V(PR+4+2*u,2)}, v{t+3} offset:{L_EX + u*128}") for u in range(5)]
def table_b():
    t = 80
    K1, APW, R1 = t, t+4, t+5
    fl = lines(f"""
    v_lshlrev_b32 v{K1}, 2, v{vN}
    v_cvt_f32_u32 v{K1}, v{K1}
    v_lshlrev_b32 v{APW}, 7, v{t+2}
    v_lshl_add_u32 v{APW}, v{vN}, 3, v{APW}
    v_ffbl_b32 v{R1}, v{vN}
    v_lshlrev_b32 v{R1}, 3, v{R1}
    v_lshl_add_u32 v{R1}, v{t+2}, 6, v{R1}
    """)
    for u in range(5):
        fl += power(K1, PR+4+2*u, PR+5+2*u, t)
        fl.append(DSF(f"ds_write_b64 v{APW}, {V(t+14,2)} offset:{L_PW + u*2048}"))
        fl.append(masked("0x01160116", f"ds_write_b64 v{R1}, {V(t+14,2)} offset:{L_CH + 16 + u*1024}"))
    return fl

def path_ssm():
    typ = "ssm"; t = vT
    k.e(f"""
    v_and_b32 v{t+2}, 6, v{t}
    v_or_b32 v{t+3}, s{sWC}, v{t+2}
    v_xor_b32 v{t+1}, v{t+1}, v{t+3}
    v_lshlrev_b32 v{t+1}, 4, v{t+1}
    v_and_b32 v{t+3}, 1, v{t}
    v_lshl_add_u32 v{t+2}, v{t+2}, 2, v{t+3}
    v_mul_u32_u24 v{t+2}, 1280, v{t+2}
    v_add_u32 v{vDW}, v{t+2}, v{t+1}
    v_add_u32 v{t+2}, 32, v{t}
    v_mul_u32_u24 v{t+2}, 1280, v{t+2}
    v_add_u32 v{vDW+1}, v{t+2}, v{t+1}
    s_mul_i32 s{sT0}, s{sNT}, 80
    s_mul_i32 s{sT1}, s{sWR}, 40
    s_add_u32 s{sT0}, s{sT0}, s{sT1}
    s_mul_i32 s{sB0}, s{sT0}, 1280
    s_add_u32 s{sB2}, s{sB0}, 5120
    s_mul_i32 s{sLW}, s{sWR}, 10240
    s_lshl_b32 s{sT0}, s{sWC}, 10
    s_add_u32 s{sLW}, s{sLW}, s{sT0}
    """)
    k.e(f"""
    v_and_b32 v{t+1}, 1, v{vN}
    v_lshrrev_b32 v{t+2}, 2, v{vN}
    v_lshl_add_u32 v{t+2}, v{t+2}, 1, v{t+1}
    v_xor_b32 v{t}, v{t+4}, v{t+2}
    v_lshlrev_b32 v{t}, 4, v{t}
    v_lshl_add_u32 v{t}, v{t+1}, 10, v{t}
    v_lshrrev_b32 v{t+2}, 1, v{vN}
    v_lshl_add_u32 v{t}, v{t+2}, 7, v{t}
    s_mul_i32 s{sT0}, s{sWR}, 10240
    s_add_u32 s{sT0}, s{sT0}, {L_W}
    v_add_u32 v{vWA}, s{sT0}, v{t}
    v_xor_b32 v{vWA+1}, 64, v{vWA}
    """)
    ones()
    xr_setup()
    rot_setup(typ)
    start_loads(typ)
    k.e(f"""
    v_mul_u32_u24 v{vB1+11}, 820, v0
    v_lshrrev_b32 v{vB1+11}, 16, v{vB1+11}
    v_min_u32 v{vB1+11}, 2, v{vB1+11}
    v_mul_u32_u24 v{t+1}, 80, v{vB1+11}
    v_sub_u32 v{vB1+10}, v0, v{t+1}
    v_min_u32 v{vB1+10}, 79, v{vB1+10}
    s_mul_i32 s{sT0}, s{sNT}, 160
    v_lshlrev_b32 v{t+1}, 1, v{vB1+10}
    s_mov_b32 s{rT+2}, 1280
    s_mov_b32 s{rT+3}, 0x20000
    """)
    for pi, ptr in enumerate((pLre, pLim, pLdt)):
        k.e(f"s_mov_b32 s{rT}, s{ptr}\ns_mov_b32 s{rT+1}, s{ptr+1}")
        k.vmem(f"buffer_load_ushort v{PR+pi}, v{t+1}, s[{rT}:{rT+3}], s{sT0} offen", "par")
    repack_setup(typ)
    stamp(15)
    run(dma_stage(typ, 1))
    stamp(14)
    jobs, vq = common_jobs(typ)
    jobs[5] = table_a()
    jobs[("pre", 10)] = [F(lambda: mark[0], 0)]
    jobs[("pre", 11)] = table_rd()
    jobs[("pre", 12)] = [F(lambda: mark[1], 0)]
    tj = table_b()
    vC0, vC1, vP0, vP1, vE0, vE1, vGc, vGr, vPub = vB1, vB1+1, vB1+2, vB1+3, vB1+4, vB1+5, vB1+6, vB1+7, vB1+8
    CH_, WH_ = vB1 + 10, vB1 + 11
    vG = 114
    sVal = [28, 30, 36, 38, 40]
    u_ = 96
    ad = lines(f"""
    s_mul_i32 s{sUnit}, s{sWR}, 40
    v_lshlrev_b32 v{u_}, 3, v{vQ}
    v_add_u32 v{u_}, s{sUnit}, v{u_}
    v_lshlrev_b32 v{u_+1}, 1, v{vQ}
    v_add_u32 v{u_+1}, s{sUnit}, v{u_+1}
    v_add_u32 v{u_+1}, 32, v{u_+1}
    v_lshlrev_b32 v{vC0}, 6, v{u_}
    v_lshlrev_b32 v{vC1}, 6, v{u_+1}
    v_lshlrev_b32 v{u_+2}, 3, v{vN}
    v_lshl_add_u32 v{vP0}, v{u_}, 7, v{u_+2}
    v_lshl_add_u32 v{vP1}, v{u_+1}, 7, v{u_+2}
    s_mul_i32 s{sUnit}, s{sWC}, 640
    v_lshlrev_b32 v{vE0}, 3, v{u_}
    v_lshlrev_b32 v{vE1}, 3, v{u_+1}
    v_add_u32 v{vE0}, s{sUnit}, v{vE0}
    v_add_u32 v{vE1}, s{sUnit}, v{vE1}
    v_lshlrev_b32 v{vGc}, 3, v{CH_}
    v_lshlrev_b32 v{vGr}, 6, v{CH_}
    v_lshlrev_b32 v{u_}, 4, v{CH_}
    v_cmp_gt_u32 vcc, 80, v0 | v_mov_b32 v{u_+1}, {OOB} | s_nop 0 | v_cndmask_b32 v{vPub}, v{u_+1}, v{u_}, vcc
    v_mul_u32_u24 v{u_+2}, 5, v{WH_}
    v_sub_u32 v{u_+2}, s{sMT}, v{u_+2}
    s_mul_i32 s{sHw}, s{sNT}, {16*1280}
    s_add_u32 s{sHw}, s{sHw}, {WS_E}
    s_mul_i32 s{sH}, s{sMT}, 1280
    s_add_u32 s{sH}, s{sH}, s{sHw}
    """)
    for i in range(5):
        ad += lines(f"""
        v_add_u32 v{u_+2}, -1, v{u_+2}
        v_mul_i32_i24 v{vG+i}, 1280, v{u_+2}
        v_cmp_le_i32 s[{sVal[i]}:{sVal[i]+1}], 0, v{u_+2} | v_add_u32 v{vG+i}, v{vG+i}, v{u_} | s_nop 0 | v_cndmask_b32 v{vG+i}, v{u_+1}, v{vG+i}, s[{sVal[i]}:{sVal[i]+1}]
        """)
    tj = tj + ad
    left = main_loop(typ, jobs, vq, tj)
    vG2 = 8
    for i in range(5): k.e(f"v_mov_b32 v{vG2+i}, v{vG+i}")
    TK, CS, P2 = stats(typ)
    stamp()
    if OPT["rfchk_ssm"] >= 20:
        k.wait_vm("rfv"); check("rf_ssm", RFV, RFV + 2)
        left = [op for tk in range(7) for op in wload(tk)]
    early = [(6 - (len(left) - 1 - x) // 5, op) for x, op in enumerate(left)] + [(tk, op) for tk in range(7, 12) for op in wload(tk)]
    early += [(NREG - 2 + x // 5, op) for x, op in enumerate(wdma())]
    e1 = OPT['e1']; ew = OPT['ew']
    wd = [op for _, op in early]
    fd = Feeder(wd[:e1], 300 // max(1, e1))
    slots = [(i, h) for i in range(5) for h in range(2)]
    def rec(i, h): return (vC0, L_CH + (2*i + h)*64) if i < 4 else (vC1, L_CH + h*64)
    LC = 100
    stats_sum(typ, CS, P2)
    for x, (i, h) in enumerate(slots):
        a_, o_ = rec(i, h); k.ds(f"ds_read_b128 {V(LC+4*x,4)}, v{a_} offset:{o_}", ("lc", x))
    k.raw(".p2align 3")
    for x, (i, h) in enumerate(slots):
        fd.tick(8)
        for j in range(4):
            z = acc(i, j) + 2*h
            k.e(f"v_pk_fma_f32 {V(z,2)}, {V(CS+4*i+2*h,2)}, {V(TK+4*j,2)}, {V(z,2)} op_sel:[0,0,0] op_sel_hi:[1,0,1] neg_lo:[0,1,0] neg_hi:[0,1,0]")
        for j in range(4):
            z = acc(i, j) + 2*h
            k.e(f"v_pk_mul_f32 {V(z,2)}, {V(z,2)}, {V(TK+4*j,2)} op_sel:[0,1] op_sel_hi:[1,1]")
    EE = 140; TMP = 88
    MU = [t, t + 20]
    def load_mu(st):
        for x, (i, h) in enumerate(slots):
            a_, o_ = rec(i, h); k.ds(f"ds_read_b64 {V(MU[st & 1]+2*x,2)}, v{a_} offset:{o_ + 16 + 8*st}", ("mu", st))
    k.wait_lg()
    load_mu(0); load_mu(1)
    def ereg(x): return EE + 2*x
    def treg(x): return (240 + 2*x) if x < 8 else (TMP + 2*(x - 8))
    k.raw(".p2align 3")
    for x, (i, h) in enumerate(slots): cmul_acc(ereg(x), acc(i,0)+2*h, LC+4*x, acc(i,1)+2*h)
    fd.tick(20)
    for x, (i, h) in enumerate(slots): cmul_acc(treg(x), ereg(x), LC+4*x, acc(i,2)+2*h)
    fd.tick(20)
    for x, (i, h) in enumerate(slots): cmul_acc(ereg(x), treg(x), LC+4*x, acc(i,3)+2*h)
    PWv = t
    for st, sh in enumerate((1, 2, 4, 8)):
        fd.tick(20)
        k.raw(".p2align 3")
        for x in range(10):
            k.e(f"v_mov_b32_dpp v{treg(x)}, v{ereg(x)} row_shr:{sh} row_mask:0xf bank_mask:0xf bound_ctrl:0")
            k.e(f"v_mov_b32_dpp v{treg(x)+1}, v{ereg(x)+1} row_shr:{sh} row_mask:0xf bank_mask:0xf bound_ctrl:0")
        fd.tick(20)
        k.wait_lg(("mu", st))
        k.raw(".p2align 3")
        for x in range(10): cmul_acc(ereg(x), treg(x), MU[st & 1]+2*x, ereg(x))
        if st < 2: load_mu(st + 2)
        if st == 2:
            for x, (i, h) in enumerate(slots):
                k.ds(f"ds_read_b64 {V(PWv+2*x,2)}, v{vP0 if i < 4 else vP1} offset:{L_PW + ((2*i+h)*128 if i < 4 else h*128)}", "pw")
    k.e("s_mov_b32 exec_lo, 0x80008000\ns_mov_b32 exec_hi, 0x80008000")
    for i in range(5):
        k.ds(f"ds_write_b128 v{vE0 if i < 4 else vE1}, {V(EE+4*i,4)} offset:{L_EX + (16*i if i < 4 else 0)}")
    k.e("s_mov_b64 exec, -1")
    ch = t + 20
    E0, E1, LL, ET, GA = ch, ch+2, ch+4, ch+8, 14
    GA = [ch+8, ch+12, ch+16, ch+20, ch+24]
    k.ds(f"ds_read_b128 {V(LL,4)}, v{vGr} offset:{L_CH+48}", "e")
    k.e(f"v_mov_b32 v{ET+1}, s{sNonce}\nv_mov_b32 v{ET+3}, s{sNonce}")
    fd.flush()
    k.wait_lg()
    k.e("s_barrier")
    k.ds(f"ds_read_b64 {V(E0,2)}, v{vGc} offset:{L_EX}", "e")
    k.ds(f"ds_read_b64 {V(E1,2)}, v{vGc} offset:{L_EX+640}", "e")
    k.wait_lg()
    cmul_acc(E1, E0, LL, E1)
    k.e(f"v_mov_b32 v{ET}, v{E1}\nv_mov_b32 v{ET+2}, v{E1+1}")
    k.vmem(f"buffer_store_dwordx4 {V(ET,4)}, v{vPub}, s[{rWS}:{rWS+3}], s{sH} offen sc1", "e")
    stamp()
    def gather(track):
        for i in range(5):
            tx = f"buffer_load_dwordx4 {V(GA[i],4)}, v{vG2+i}, s[{rWS}:{rWS+3}], s{sHw} offen sc1"
            k.vmem(tx, "ga") if track else k.e(tx)
    k.e("s_nop 1")
    gather(True)
    fd = Feeder(wd[e1:e1 + ew], 1)
    per = ew / 14.0
    done = [0.0]
    def tk_():
        done[0] += per; n_ = int(done[0]); done[0] -= n_; fd.tick(n_); k.raw(".p2align 3")
    WT, W2 = 14, 16
    for x in range(10):
        k.e(f"v_mov_b32_dpp v{treg(x)}, v{ereg(x)} row_shr:1 row_mask:0xf bank_mask:0xf bound_ctrl:0")
        k.e(f"v_mov_b32_dpp v{treg(x)+1}, v{ereg(x)+1} row_shr:1 row_mask:0xf bank_mask:0xf bound_ctrl:0")
    def cmul(d, a, b, tmp):
        k.e(f"v_pk_mul_f32 {V(tmp,2)}, {V(a,2)}, {V(b,2)} op_sel:[0,0] op_sel_hi:[1,0]")
        k.e(f"v_pk_fma_f32 {V(d,2)}, {V(a,2)}, {V(b,2)}, {V(tmp,2)} op_sel:[1,1,0] op_sel_hi:[0,1,1] neg_lo:[0,1,0]")
    tk_()
    for x in range(10): cmul(treg(x), treg(x), LC+4*x+2, ereg(x))
    tk_()
    for x in range(10): cmul(PWv+2*x, PWv+2*x, LC+4*x+2, ereg(x))
    for x, (i, h) in enumerate(slots):
        tk_()
        for j in range(4): cmul(acc(i,j)+2*h, acc(i,j)+2*h, LC+4*x+2, EE+2*j)
    tk_()
    cmul(WT, LL+2, LL+2, W2); cmul(WT, WT, WT, W2); cmul(WT, WT, LL+2, W2); cmul(W2+2, WT, WT, W2)
    k.e(f"""
    v_cmp_eq_u32 vcc, 2, v{WH_}
    v_mov_b32 v{W2}, 1.0
    v_mov_b32 v{W2+1}, 0
    v_cndmask_b32 v{WT}, v{WT}, v{W2+2}, vcc
    v_cndmask_b32 v{WT+1}, v{WT+1}, v{W2+3}, vcc
    v_cmp_eq_u32 vcc, 0, v{WH_}
    v_mul_u32_u24 v{W2+2}, 640, v{WH_}
    v_add_u32 v{vGc}, v{vGc}, v{W2+2}
    v_cndmask_b32 v{WT}, v{WT}, v{W2}, vcc
    v_cndmask_b32 v{WT+1}, v{WT+1}, v{W2+1}, vcc
    v_cndmask_b32 v{E0}, v{W2+1}, v{E0}, vcc
    v_cndmask_b32 v{E0+1}, v{W2+1}, v{E0+1}, vcc
    s_mul_i32 s{sT0}, s{sWC}, 1280
    v_add_u32 v{vE0}, s{sT0}, v{vE0}
    v_add_u32 v{vE1}, s{sT0}, v{vE1}
    """)
    fd.flush()
    h_base()
    k.e(f"""
    s_mul_i32 s{sT1}, s{sT1}, 5
    s_add_u32 s{sT0}, s{sT0}, s{sT1}
    s_add_u32 s{sT0}, s{sT0}, 12
    s_lshl_b32 s{sT0}, s{sT0}, 12
    s_add_u32 s{sH}, s{sH}, s{sT0}
    s_add_u32 s{sB2}, s{sH}, {4*4096}
    s_lshl_b32 s{sT0}, s{sWR}, 3
    s_add_u32 s{sB2}, s{sB2}, s{sT0}
    s_lshl_b32 s{sT0}, s{sWR}, 13
    s_add_u32 s{sH}, s{sH}, s{sT0}
    s_add_u32 s{sB0}, s{sH}, 4096
    """)
    flag_addr()
    stamp(60)
    k.wait_vm("ga")
    k.label("L_carry_chk")
    k.e(f"s_mov_b64 s[{sEx}:{sEx+1}], 0")
    for i in range(5):
        k.e(f"""
        v_cmp_ne_u32 vcc, s{sNonce}, v{GA[i]+1}
        v_cmp_ne_u32 s[{sT0}:{sT1}], s{sNonce}, v{GA[i]+3}
        s_or_b64 vcc, vcc, s[{sT0}:{sT1}]
        s_and_b64 vcc, vcc, s[{sVal[i]}:{sVal[i]+1}]
        s_or_b64 s[{sEx}:{sEx+1}], s[{sEx}:{sEx+1}], vcc
        """)
    k.e(f"""
    s_cmp_eq_u64 s[{sEx}:{sEx+1}], 0
    s_cbranch_scc1 L_carry_done
    s_sub_u32 s{sSpin}, s{sSpin}, 1
    s_cbranch_scc1 L_end
    """)
    gather(False)
    k.e("s_waitcnt vmcnt(0)\ns_branch L_carry_chk")
    k.label("L_carry_done")
    stamp()
    for i in range(5): k.e(f"v_mov_b32 v{GA[i]+1}, v{GA[i]+2}")
    for i in (3, 2, 1, 0): cmul_acc(GA[i], GA[i+1], LL+2, GA[i])
    cmul(GA[0], GA[0], WT, W2)
    cmul_acc(E0, GA[0], LL, E0)
    k.ds(f"ds_write_b64 v{vGc}, {V(GA[0],2)} offset:{L_PW}")
    k.ds(f"ds_write_b64 v{vGc}, {V(E0,2)} offset:{L_PW + 1920}")
    k.wait_lg()
    k.e("s_barrier")
    poll_m()
    PB = [EE, ch, 4]
    for i in range(5):
        for g in range(3):
            k.ds(f"ds_read_b128 {V(PB[g]+4*i,4)}, v{vE0 if i < 4 else vE1} offset:{L_PW + 640*g + (16*i if i < 4 else 0)}", ("pb", i))
    k.raw(".p2align 3")
    for x in range(10):
        if x % 2 == 0: k.wait_lg(("pb", x // 2)); k.raw(".p2align 3")
        k.e(f"v_pk_add_f32 {V(ereg(x),2)}, {V(ereg(x),2)}, {V(PB[1]+2*x,2)}")
        k.e(f"v_pk_add_f32 {V(ereg(x),2)}, {V(ereg(x),2)}, {V(PB[2]+2*x,2)}")
        cmul_acc(treg(x), ereg(x), PWv+2*x, treg(x))
    O = ch
    pend = early[e1 + ew:]
    ej = [op for _, op in pend[:OPT['e2']]]; pend = pend[OPT['e2']:]
    pend = sorted(pend + [(tk, op) for tk in range(12, NREG) for op in wload(tk)], key=lambda x: x[0])
    fd = Feeder(ej, 1)
    for j in range(4):
        fd.tick((len(ej) + 3) // 4)
        k.raw(".p2align 3")
        for x, (i, h) in enumerate(slots):
            prev = treg(x) if j == 0 else acc(i, j-1) + 2*h
            cmul_acc(acc(i,j)+2*h, prev, LC+4*x, acc(i,j)+2*h)
        o = O + (j & 1) * 10
        for i in range(4): k.e(f"v_cvt_pk_bf16_f32 v{o+i}, v{acc(i,j)}, v{acc(i,j)+2}")
        for i in range(4): k.e(f"v_cvt_pk_bf16_f32 v{o+4+i}, -v{acc(i,j)+1}, -v{acc(i,j)+3}")
        k.e(f"v_cvt_pk_bf16_f32 v{o+8}, v{acc(4,j)}, v{acc(4,j)+2}")
        k.e(f"v_cvt_pk_bf16_f32 v{o+9}, -v{acc(4,j)+1}, -v{acc(4,j)+3}")
        k.vmem(f"buffer_store_dwordx4 {V(o,4)}, v{vL16}, s[{rWS}:{rWS+3}], s{sH} offen offset:{j*1024} sc1", "h")
        k.vmem(f"buffer_store_dwordx4 {V(o+4,4)}, v{vL16}, s[{rWS}:{rWS+3}], s{sB0} offen offset:{j*1024} sc1", "h")
        k.vmem(f"buffer_store_dwordx2 {V(o+8,2)}, v{vL16}, s[{rWS}:{rWS+3}], s{sB2} offen offset:{j*1024} sc1", "h")
    fd.flush()
    stamp()
    h_offsets()
    ep_loads()
    k.wait_vm("hf")
    k.e(f"""
    v_cmp_ne_u32 vcc, s{sNonce}, v{vFd}
    v_cmp_ne_u32 s[{sT0}:{sT1}], s{sNonce}, v{vFd+1}
    s_or_b64 vcc, vcc, s[{sT0}:{sT1}]
    s_cmp_eq_u64 vcc, 0
    s_cbranch_scc0 L_slow
    """)
    save = list(k.vm)
    h_first()
    h_flag(False)
    k.e("s_branch L_join")
    k.label("L_slow")
    k.vm = list(save)
    h_flag(False)
    check("hm" + typ, vF, vFd)
    h_first()
    k.label("L_join")
    stamp(7)
    residual()
    stamp(8)
    phase2(typ, pend, NREG, OPT['kw_ssm'])

def poll(tag, vaddr, vd):
    k.e(f"""
    L_poll_{tag}:
    buffer_load_dwordx2 {V(vd,2)}, v{vaddr}, s[{rWS}:{rWS+3}], 0 offen sc1
    s_waitcnt vmcnt(0)
    v_cmp_ne_u32 vcc, s{sNonce}, v{vd}
    v_cmp_ne_u32 s[{sT0}:{sT1}], s{sNonce}, v{vd+1}
    s_or_b64 vcc, vcc, s[{sT0}:{sT1}]
    s_cmp_eq_u64 vcc, 0
    s_cbranch_scc1 L_pollok_{tag}
    s_sub_u32 s{sSpin}, s{sSpin}, 1
    s_cbranch_scc1 L_end
    s_sleep 1
    s_branch L_poll_{tag}
    L_pollok_{tag}:
    """)
    k.vm = []

ACC2 = 160
def acc2(i, s): return ACC2 + (i*4 + s)*4
def phase2(typ, pend, nlds0, kw):
    stamp_n[0] = 10
    def wread(tk):
        kind, base = wreg(tk)
        return [DSF(f"ds_read_b128 {R(kind, base+4*i, 4)}, v{vWL} offset:{((tk - NREG)*5 + i)*1024}", ("wr", tk)) for i in range(5)]
    AD = [88, 89, 90, 91]
    setup = lines(f"""
    v_add_u32 v{vWL}, s{sRpD+2}, v{vL16}
    v_mul_u32_u24 v{vRw}, {RROW}, v{vN}
    v_lshl_add_u32 v{vRw}, v{vQ}, 4, v{vRw}
    v_add_u32 v{vRw}, s{sRpD+2}, v{vRw}
    v_lshlrev_b32 v{XO}, 1, v{XO}
    s_lshl_b32 s{sB2}, s{sX}, 1
    s_mov_b32 s{rW}, s{pOut}
    s_mov_b32 s{rW+1}, s{pOut+1}
    s_mov_b32 s{rW+2}, {2048*2560}
    s_mov_b32 s{rW+3}, 0x20000
    """)
    for s in range(4):
        setup += lines(f"s_xor_b32 s{sB0}, s{sW}, {s}\ns_mul_i32 s{sB0}, s{sB0}, {WLW}\ns_add_u32 s{sB0}, s{sB0}, {L_WL + s*RBLK}\nv_add_u32 v{AD[s]}, s{sB0}, v{LO}")
    bgq = list(setup)
    per = -(-len(pend) // kw)
    for tk in range(22):
        assert not [1 for t_, _ in pend if t_ <= tk], (typ, tk)
        if OPT.get("fine2"): stamp(16 + 2*tk)
        k.wait_vm([("w", tk), ("h", tk)] + (["wl"] if tk + 2 == nlds0 else []))
        if tk >= nlds0: k.wait_lg(("wr", tk))
        if OPT.get("fine2"): stamp(17 + 2*tk)
        wk, wb = wreg(tk); ring = HRING[tk % 5]
        m = []
        for s in range(4):
            for i in range(5):
                c = "0" if tk == 0 else V(acc2(i, s), 4)
                m.append(f"v_mfma_f32_16x16x32_bf16 {V(acc2(i,s),4)}, {R(wk, wb+4*i, 4)}, {R(ring[s][0], ring[s][1], 4)}, {c}")
        streams = []
        if tk + 5 == 12:
            k.wait_vm("hf2"); check("hs" + typ, vF + 1, vFd)
        if tk + 5 < 22:
            a_, b_ = hload(tk + 5)
            streams.append((a_, 0, 2, True))
            for s in range(4): streams.append((b_[s], 5*s + 4, 5*s + 4, True))
        if nlds0 <= tk + 2 < 22: streams.append((wread(tk + 2), 0, 14, True))
        mem = []
        if tk == 5: mem += [VM(f"buffer_load_dwordx2 {V(vFd,2)}, v{vF+1}, s[{rWS}:{rWS+3}], 0 offen sc1", "hf2")]
        n_ = 0
        while pend and n_ < per and (pend[0][0] < NREG or nlds0 < 22 or pend[0][0] - NREG < tk):
            mem += flat([pend.pop(0)[1]]); n_ += 1
        streams.append((mem, 1, 18, True))
        if tk == 12: assert not bgq
        if tk == 21:
            wr_ = [DSF(f"ds_write_b128 v{vRw}, {V(acc2(i,s),4)} offset:{s*RBLK + i*64}") for s in range(2) for i in range(5)]
            streams.append((wr_, 8, 19, True))
        streams.append((bgq, 0, 20, False))
        sched(m, streams)
    for i in range(5): k.ds(f"ds_write_b128 v{vRw}, {V(acc2(i,2),4)} offset:{2*RBLK + i*64}")
    stamp()
    for i in range(5): k.ds(f"ds_write_b128 v{vRw}, {V(acc2(i,3),4)} offset:{3*RBLK + i*64}")
    k.wait_lg(); k.e("s_barrier")
    RD = [160 + 16*g for g in range(5)]
    for g in range(5):
        for s in range(4): k.ds(f"ds_read_b128 {V(RD[g]+4*s,4)}, v{AD[s]} offset:{64*g}", ("r", g))
    for g in range(5):
        k.wait_lg(("r", g))
        o = RES + 4*g
        for h in range(2): k.e(f"v_pk_add_f32 {V(RD[g]+2*h,2)}, {V(RD[g]+2*h,2)}, {V(RD[g]+4+2*h,2)}")
        for h in range(2): k.e(f"v_pk_add_f32 {V(RD[g]+8+2*h,2)}, {V(RD[g]+8+2*h,2)}, {V(RD[g]+12+2*h,2)}")
        for h in range(2): k.e(f"v_pk_add_f32 {V(o+2*h,2)}, {V(o+2*h,2)}, {V(RD[g]+2*h,2)}")
        for h in range(2): k.e(f"v_pk_add_f32 {V(o+2*h,2)}, {V(o+2*h,2)}, {V(RD[g]+8+2*h,2)}")
        k.vmem(f"buffer_store_dwordx4 {V(o,4)}, v{XO}, s[{rW}:{rW+3}], s{sB2} offen offset:{64*g} {OPT.get('ost', '')}", "o")
    if OPT.get("spin"):
        ins, n_ = OPT["spin"]
        k.e(f"""
        s_waitcnt vmcnt(0)
        L_spin_{typ}:
        {ins} s[100:101]
        s_waitcnt lgkmcnt(0)
        s_sub_u32 s100, s100, s98
        s_cmp_lt_u32 s100, {n_}
        s_cbranch_scc1 L_spin_{typ}
        """)
    k.e("s_branch L_fin" if OPT["stamps"] else "s_endpgm")

def finish():
    if OPT["stamps"]:
        k.label("L_fin")
        k.wait_vm0()
        stamp(11)
        k.e(f"""
        s_memtime s[100:101]
        s_waitcnt lgkmcnt(0)
        s_sub_u32 s100, s100, s98
        v_writelane_b32 v{vST}, s100, 63
        s_lshl_b32 s{sT0}, s2, 2
        s_add_u32 s{sT0}, s{sT0}, s{sW}
        s_lshl_b32 s{sT0}, s{sT0}, 8
        s_add_u32 s{sT0}, s{sT0}, {WS_ST}
        v_lshlrev_b32 v2, 2, v{vL}
        buffer_store_dword v{vST}, v2, s[{rWS}:{rWS+3}], s{sT0} offen
        """)

prologue()
path_ssm()
if OPT["stamps"]: stamp_n[0] = 1
path_mlp()
finish()
k.label("L_end")
body = k.text()
errs = check_hazards(body)
for e_ in errs: print("HAZARD:", e_, file=sys.stderr)

hdr = open(f"cdna_kernels/{NAME}.s.ref").read().split("\n")
hdr = [l for l in hdr if l.startswith(";") and "@launch" not in l and "Override" not in l and "grid=ceil" not in l]
out = "\n".join(hdr) + f"\n; @launch grid=(256,1,1) block=(256,1,1) lds={L_END}\n"
out += f""".amdgcn_target "amdgcn-amd-amdhsa--gfx950"
.text
.globl {NAME}_kernel
.p2align 8
.type {NAME}_kernel,@function
{NAME}_kernel:
{body}    s_endpgm
L_code_end:
.set CODE_BYTES, L_code_end - {NAME}_kernel - 512
.section .rodata,"a"
.p2align 6
.amdhsa_kernel {NAME}_kernel
  .amdhsa_next_free_vgpr 512
  .amdhsa_next_free_sgpr 102
  .amdhsa_accum_offset 256
  .amdhsa_group_segment_fixed_size 0
  .amdhsa_kernarg_size 136
  .amdhsa_user_sgpr_count 2
  .amdhsa_user_sgpr_kernarg_segment_ptr 1
  .amdhsa_system_sgpr_workgroup_id_x 1
.end_amdhsa_kernel
"""
open(sys.argv[1], "w").write(out)
print("written", sys.argv[1], len(out), "bytes; hazards:", len(errs))
```

```python
import sys, struct
sys.path.insert(0, "dev")
from asmlib import *

NAME = "parallel_sum__ssm_conv_s5__mixer_channel_mlp__prompt"
OPT = dict(stamps=False, stop=None, nt_dma="", nt_pf="", nt_rp="", pf=0, pf0=1, pford=0, post0=10, post=20, e1=35, ew=60, e2=0, post_s=0, cpf=1, rfchk_ssm=99, rfchk_mlp=15, rpst=(4, 5, 6, 7, 8), rpflag=4, kw_mlp=14, kw_ssm=6, util=1.0, rot1=1, rot2=1)
for a_ in sys.argv[2:]:
    k_, v_ = a_.split("=", 1); OPT[k_] = eval(v_)

def f2u(x): return struct.unpack("<I", struct.pack("<f", x))[0]
def hx(x): return "0x%08x" % f2u(x)

WS_EP = 0
WS_H = 4096
WS_WP = 12 << 20
WS_E = 16 << 20
WS_RF = 17 << 20
WS_HF = (17 << 20) + 65536
WS_RS = 18 << 20
WS_ST = 20 << 20
WS_SIZE = 24 << 20
OOB = 0x4000000
L_TOK = 0; L_CH = 2048; L_PW = 7168; L_EX = 17408; L_EX2 = L_EX + 1280
L_STG = 20480; L_X = 40960; L_W = 90112; L_END = 163840
XS = 16384; WSL = 24576
L_SC = L_EX2; SCW = 384
WLW = 35840; RROW = 336; RBLK = 16 * RROW
L_WL = L_STG
NST = 10
pX, pLre, pLim, pBre, pBim, pCre, pCim, pLdt = 16, 18, 20, 22, 24, 26, 28, 30
pDsk, pBx, pW1, pB1, pW2, pB2, pOut, pDbg, pWs = 32, 34, 36, 38, 40, 42, 44, 46, 48
sW, sWR, sWC, sMT, sNT, sTYP, sHALF, sDT = 3, 4, 5, 6, 7, 8, 8, 7
sML, sI8 = 9, 10
sNonce = 11; sT0, sT1, sT2, sT3 = 12, 13, 14, 15
sKs = 50; sPF = 51
rX, rW, rWS, rT, rT2 = 52, 56, 60, 64, 68
sX, sLX, sLW, sB0, sB2, sPFs, sUnit, sRpSrc, sLR, sSpin = 72, 73, 74, 75, 76, 77, 78, 79, 80, 81
sK = 82; sEx = 84
sH, sHw, sWp, sDis = 86, 87, 88, 89
sST = 90
sRpD = 92
sSig = 97
sWa, sHa, sLim = 18, 22, 26
sDX, sDW = 77, 51
rPF = rT2
vL, vN, vQ = 1, 2, 3
vDX0, vDX1, vXa, vXb = 4, 5, 6, 7
vDW = 8
vPF, vDR, vJunk, vNc = 10, 11, 12, 13
vWA = 14
vRA = 22
vL16 = 26
vRS = 27
vB1 = 28
vT = 40
vST = 99
ACC = 160
def acc(i, j): return ACC + (i * 4 + j) * 4
aF = [0, 40]
aONE = 80; aCS = 84

k = Asm()
k.strict = OPT.get('strict', False)
k.lenient = OPT['stamps']
stamp_n = [0]
def stamp(i=None):
    if not OPT["stamps"]: return
    if i is None:
        i = stamp_n[0]; stamp_n[0] += 1
    k.e(f"{'s_memtime' if OPT.get('cyc') else 's_memrealtime'} s[{sST}:{sST+1}]"); k.e("s_waitcnt lgkmcnt(0)"); k.lg = []
    k.e(f"v_writelane_b32 v{vST}, s{sST}, {i}")
def srd(r, ptr, size):
    k.e(f"s_mov_b32 s{r}, s{ptr}\ns_mov_b32 s{r+1}, s{ptr+1}\ns_mov_b32 s{r+2}, {size}\ns_mov_b32 s{r+3}, 0x20000")

class F:
    def __init__(self, fn, cost=1, ds=False, sep=False, ta=0): self.fn, self.cost, self.ds, self.sep, self.ta = fn, cost, ds, sep, ta
    def __call__(self): self.fn()
def lines(s):
    out = []
    for l in (x.strip() for x in s.split("\n")):
        if not l: continue
        parts = l.split(" | ")
        c = sum(2 if x.split()[0] in TRANS else 1 for x in parts)
        out.append(F(lambda l=l: k.e(l.replace(" | ", "\n")), c))
    return out
def VM(text, tag, sep=False, ta=66): return F(lambda: k.vmem(text, tag), 2, sep=sep, ta=ta)
def DSF(text, tag=None): return F(lambda: k.ds(text, tag), 1, ds=True)
def sched(main, streams, start=0):
    n = len(main)
    st = []
    for items, g0, g1, must in streams:
        cnt = len(items) if must else min(len(items), must if isinstance(must, int) and must > 1 else len(items))
        tot = sum(f.cost for f in items[:cnt]) or 1
        tg = []; acc_ = 0
        for f in items[:cnt]:
            tg.append(g0 + (g1 - g0) * acc_ / tot if must else g0); acc_ += f.cost
        st.append(dict(items=items, tg=tg, last=-1, must=must))
    for g, m in enumerate(main):
        k.e(m)
        if g < start: continue
        room = 2; hasds = False
        prog = True
        while prog and room > 0:
            prog = False
            for x in st:
                if not x["tg"] or x["tg"][0] > g: continue
                f = x["items"][0]
                if f.sep and x["last"] == g: continue
                if f.ds and hasds: continue
                if f.cost > room and room < 2 and not (not x["must"] and g - x["last"] >= 3): continue
                x["items"].pop(0); x["tg"].pop(0); x["last"] = g
                f(); room -= f.cost; hasds |= f.ds; prog = True
                break
    for x in st:
        if x["must"]:
            over = len(x["tg"])
            if over and OPT.get("show"): print("overflow", over)
            while x["tg"]:
                f = x["items"].pop(0); x["tg"].pop(0)
                if f.sep: k.e("s_nop 0")
                f()
def merge(*ls):
    ls = [l for l in ls if l]
    if not ls: return []
    if len(ls) == 1: return list(ls[0])
    items = []
    for li, l in enumerate(ls):
        for i, f in enumerate(l): items.append(((i + 0.5) / len(l), li, i, f))
    items.sort(key=lambda x: (x[0], x[1]))
    return [x[3] for x in items]

def prologue():
    t = vT
    k.e(f"""
    s_cmp_ge_u32 s2, 256
    s_cbranch_scc1 L_end
    s_load_dwordx16 s[16:31], s[0:1], 0
    s_load_dwordx16 s[32:47], s[0:1], 64
    s_load_dwordx2 s[48:49], s[0:1], 128
    v_lshrrev_b32 v{t}, 6, v0
    v_and_b32 v{vL}, 63, v0
    v_readfirstlane_b32 s{sW}, v{t}
    v_and_b32 v{vN}, 15, v{vL}
    v_lshrrev_b32 v{vQ}, 4, v{vL}
    v_lshlrev_b32 v{vL16}, 4, v{vL}
    s_and_b32 s{sT0}, s2, 7
    s_lshr_b32 s{sT1}, s2, 3
    s_lshr_b32 s{sTYP}, s{sT1}, 4
    s_bfe_u32 s{sML}, s{sT1}, 0x20002
    s_lshr_b32 s{sMT}, s{sT0}, 1
    s_lshl_b32 s{sT2}, s{sML}, 2
    s_add_u32 s{sMT}, s{sMT}, s{sT2}
    s_and_b32 s{sT2}, s{sT1}, 3
    s_lshl_b32 s{sI8}, s{sTYP}, 2
    s_add_u32 s{sI8}, s{sI8}, s{sT2}
    s_and_b32 s{sNT}, s{sT0}, 1
    s_lshl_b32 s{sNT}, s{sNT}, 2
    s_add_u32 s{sNT}, s{sNT}, s{sT2}
    s_lshr_b32 s{sWR}, s{sW}, 1
    s_and_b32 s{sWC}, s{sW}, 1
    s_xor_b32 s{sKs}, s{sWR}, s{sWC}
    s_mov_b32 s{sSpin}, 0x40000
    s_and_b32 s{sT2}, s2, 127
    s_sub_u32 s{sT3}, 255, s2
    s_cmp_eq_u32 s{sTYP}, 1
    s_cselect_b32 s{sUnit}, s{sT2}, s{sT3}
    s_cmp_lt_u32 s{sUnit}, 176
    s_cselect_b32 s{sUnit}, s{sUnit}, s{sT2}
    s_cselect_b32 s{sDis}, 0, {OOB}
    """)
    if OPT["stamps"]:
        k.e(f"v_mov_b32 v{vST}, 0\n{'s_memtime' if OPT.get('cyc') else 's_memrealtime'} s[{sST}:{sST+1}]\ns_memtime s[98:99]"); stamp_n[0] = 1
    if OPT.get("spin"): k.e(f"{OPT['spin'][0]} s[98:99]")
    if OPT["cpf"]:
        k.e(f"""
        s_getpc_b64 s[{sEx}:{sEx+1}]
        s_lshr_b32 s{sT1}, s2, 3
        s_lshl_b32 s{sT1}, s{sT1}, 2
        s_add_u32 s{sT1}, s{sT1}, s{sW}
        s_lshl_b32 s{sT1}, s{sT1}, 9
        v_and_b32 v{t}, 3, v{vL}
        v_lshlrev_b32 v{t}, 7, v{t}
        v_add_u32 v{t}, s{sT1}, v{t}
        v_min_u32 v{t}, CODE_BYTES, v{t}
        global_load_dword v{vJunk}, v{t}, s[{sEx}:{sEx+1}]
        """)
    k.e(f"""
    v_lshrrev_b32 v{t}, 3, v{vL}
    v_and_b32 v{t+1}, 7, v{vL}
    v_lshrrev_b32 v{t+2}, 1, v{t}
    v_xor_b32 v{t+2}, v{t+1}, v{t+2}
    v_mul_u32_u24 v{t+3}, 5120, v{t}
    v_lshl_add_u32 v{vDX0}, v{t+2}, 4, v{t+3}
    v_xor_b32 v{vDX1}, 64, v{vDX0}
    v_add_u32 v{vDX1}, 40960, v{vDX1}
    s_lshl_b32 s{sT0}, s{sMT}, 7
    s_lshl_b32 s{sT1}, s{sWR}, 6
    s_add_u32 s{sT0}, s{sT0}, s{sT1}
    s_lshl_b32 s{sT1}, s{sWC}, 1
    s_add_u32 s{sT0}, s{sT0}, s{sT1}
    s_mul_i32 s{sX}, s{sT0}, 1280
    s_lshl_b32 s{sLX}, s{sW}, 12
    s_lshl_b32 s{sT2}, s{sKs}, 2
    v_add_u32 v{t+4}, s{sT2}, v{vQ}
    v_lshrrev_b32 v{t+5}, 1, v{vN}
    v_xor_b32 v{t+5}, v{t+4}, v{t+5}
    v_lshlrev_b32 v{t+5}, 4, v{t+5}
    v_lshl_add_u32 v{t+5}, v{vN}, 7, v{t+5}
    s_lshl_b32 s{sT1}, s{sWC}, 13
    s_add_u32 s{sT1}, s{sT1}, {L_X}
    v_add_u32 v{vXa}, s{sT1}, v{t+5}
    v_xor_b32 v{vXb}, 64, v{vXa}
    s_cmp_eq_u32 s{sTYP}, 1
    s_cbranch_scc1 L_mlp
    """)

issued = {}
mark = []
def dma(vo, rs, so, imm, sl, tgt, tag, fl, pre=None):
    def f1():
        k.e(f"s_add_u32 m0, s{sl}, {tgt - imm}")
        if pre: k.e(pre)
    def f2():
        if isinstance(tag, tuple): issued[tag[1]] = issued.get(tag[1], 0) + 1
        k.vmem(f"buffer_load_dwordx4 v{vo}, s[{rs}:{rs+3}], s{so} offen offset:{imm} {fl} lds", tag)
    return [F(f1, 2 if pre else 1), F(f2, 2, sep=True, ta=66)]
def run(ops):
    for op in ops:
        for f in (op if isinstance(op, list) else [op]):
            if f.sep: k.e("s_nop 0")
            f()
def flat(ops): return [f for op in ops for f in (op if isinstance(op, list) else [op])]
def advance(typ):
    d = 64*3072 if typ == "mlp" else 128
    return (f"s_cmp_eq_u32 s{sSig}, 9 | s_cselect_b32 s{sDX}, {-9*128 & 0xffffffff}, s{sDX} | s_cselect_b32 s{sDW}, {-9*d & 0xffffffff}, s{sDW} | s_cselect_b32 s{sSig}, -1, s{sSig}\n"
            f"s_add_u32 s{sX}, s{sX}, s{sDX}\ns_add_u32 s{sB0}, s{sB0}, s{sDW}\ns_add_u32 s{sB2}, s{sB2}, s{sDW}\n"
            f"s_add_u32 s{sSig}, s{sSig}, 1\ns_movk_i32 s{sDX}, 128\ns_mov_b32 s{sDW}, {d}")
def rot_setup(typ):
    d = 64*3072 if typ == "mlp" else 128
    k.e(f"""
    s_mul_i32 s{sT0}, s{sI8}, 5
    s_lshr_b32 s{sT0}, s{sT0}, 2
    s_mul_i32 s{sT1}, s{sML}, 5
    s_lshr_b32 s{sT1}, s{sT1}, 1
    s_add_u32 s{sT0}, s{sT0}, s{sT1}
    s_and_b32 s{sT1}, s{sMT}, 3
    s_add_u32 s{sSig}, s{sT0}, s{sT1}
    s_sub_u32 s{sT0}, s{sSig}, 10
    s_cmp_ge_u32 s{sSig}, 10
    s_cselect_b32 s{sSig}, s{sT0}, s{sSig}
    s_mul_i32 s{sSig}, s{sSig}, {OPT['rot1']}
    s_lshl_b32 s{sT0}, s{sSig}, 7
    s_add_u32 s{sX}, s{sX}, s{sT0}
    s_mul_i32 s{sT0}, s{sSig}, {d}
    s_add_u32 s{sB0}, s{sB0}, s{sT0}
    s_add_u32 s{sB2}, s{sB2}, s{sT0}
    s_movk_i32 s{sDX}, 128
    s_mov_b32 s{sDW}, {d}
    """)
def dma_x(stage, g):
    return dma(vDX0 + (g & 1), rX, sX, (g >> 1) * 1280, sLX, L_X + (stage % 3) * XS + g * 1024, ("st", stage), OPT["nt_dma"])
def dma_w(typ, stage, g):
    base = L_W + (stage % 3) * WSL
    if typ == "mlp":
        rg, cg = g // 3, g % 3
        return dma(vDW + rg, rW, sB2 if rg else sB0, cg * 128, sLW, base + cg * 8192 + rg * 1024, ("st", stage), OPT["nt_dma"])
    imm = 2560 if (g < 4 and g & 1) else 0
    return dma(vDW + (1 if g == 4 else 0), rW, sB2 if g in (2, 3) else sB0, imm, sLW, base + g * 2048, ("st", stage), OPT["nt_dma"])
def dma_stage(typ, stage):
    nw = 6 if typ == "mlp" else 5
    ops = merge([dma_x(stage, g) for g in range(4)], [dma_w(typ, stage, g) for g in range(nw)])
    if stage > 0: ops[0] = lines(advance(typ)) + ops[0]
    return ops
def pf(a):
    def f():
        if not OPT["pf"]: return
        k.vmem(f"buffer_load_dword v{vJunk}, v{vPF}, s[{rPF}:{rPF+3}], s{sPF} offen {OPT['nt_pf']}", "pf")
        k.e(f"s_add_u32 s{sPF}, s{sPF}, s{sPFs}")
    return F(f, 3)

def frag_reads(typ, stage, blk, fs):
    slot = stage % 3
    nr = 6 if typ == "mlp" else 5
    vx = vXa if blk == 0 else vXb
    xr = [DSF(f"ds_read_b128 {A(aF[fs] + 24 + 4*j, 4)}, v{vx} offset:{slot*XS + j*2048}") for j in range(4)]
    wr_ = []
    for i in range(nr):
        if typ == "mlp":
            for h in range(2):
                wr_.append(DSF(f"ds_read_b64_tr_b16 {A(aF[fs] + 4*i + 2*h, 2)}, v{vWA + blk*4 + (i & 3)} offset:{slot*WSL + (i >> 2)*8192 + h*512}"))
        else:
            wr_.append(DSF(f"ds_read_b128 {A(aF[fs] + 4*i, 4)}, v{vWA + blk} offset:{slot*WSL + i*2048}"))
    return merge(xr, wr_)

def mfmas(typ, stage, blk, fs):
    nr = 6 if typ == "mlp" else 5
    first = stage == 0
    out = []
    Af = lambda i: A(aF[fs] + 4*i, 4)
    Bf = lambda j: A(aF[fs] + 24 + 4*j, 4)
    for i in range(nr):
        for j in range(4):
            c = "0" if (first and blk == 0) else V(acc(i, j), 4)
            out.append(f"v_mfma_f32_16x16x32_bf16 {V(acc(i,j),4)}, {Af(i)}, {Bf(j)}, {c}")
    if blk == 1:
        for i in range(nr):
            out.append(f"v_mfma_f32_16x16x32_bf16 {A(aCS+4*i,4)}, {Af(i)}, {A(aONE,4)}, {'0' if first else A(aCS+4*i,4)}")
    if blk == 1 and stage == NST - 1: out = out[-nr:] + out[:-nr]
    return out

XR = 124
def start_loads(typ):
    t = vT
    k.e("s_waitcnt lgkmcnt(0)")
    if OPT["stamps"]: k.e(f"v_writelane_b32 v{vST}, s{sST}, 0")
    stamp(12)
    k.e(f"""
    s_or_b32 s{sT0}, s2, s{sW}
    s_cmp_lg_u32 s{sT0}, 0
    s_cbranch_scc1 L_nononce_{typ}
    s_memrealtime s[{sT0}:{sT1}]
    s_waitcnt lgkmcnt(0)
    s_or_b32 s{sT0}, s{sT0}, 1
    v_mov_b32 v{t+8}, s{sT0}
    v_mov_b32 v{t+9}, 0
    global_store_dword v{t+9}, v{t+8}, s[{pDbg}:{pDbg+1}] sc1
    L_nononce_{typ}:
    """)
    srd(rX, pX, 2048 * 1280)
    if typ == "mlp": srd(rW, pW1, 640 * 3072)
    else:
        k.e(f"""
        s_cmp_eq_u32 s{sWC}, 0
        s_cselect_b32 s{rW}, s{pBre}, s{pBim}
        s_cselect_b32 s{rW+1}, s{pBre+1}, s{pBim+1}
        s_mov_b32 s{rW+2}, {640*1280}
        s_mov_b32 s{rW+3}, 0x20000
        """)
    run(dma_stage(typ, 0))
    stamp(13)
    srd(rWS, pWs, WS_SIZE)
    if OPT.get('wsoff'): k.e(f"s_add_u32 s{rWS}, s{rWS}, {OPT['wsoff'] << 20}\ns_addc_u32 s{rWS+1}, s{rWS+1}, 0")
def xr_setup():
    k.e(f"""
    s_lshl_b32 s{sT0}, s{sTYP}, 3
    s_add_u32 s{sT0}, s{sT0}, s{sNT}
    s_lshl_b32 s{sT0}, s{sT0}, 2
    s_add_u32 s{sT0}, s{sT0}, s{sW}
    s_lshl_b32 s{sT0}, s{sT0}, 1
    s_lshl_b32 s{sT1}, s{sMT}, 7
    s_add_u32 s{sHw}, s{sT0}, s{sT1}
    s_mul_i32 s{sH}, s{sHw}, 1280
    v_lshrrev_b32 v{XR+10}, 5, v{vL}
    v_mul_u32_u24 v{XR+10}, 1280, v{XR+10}
    v_and_b32 v{XR+11}, 31, v{vL}
    v_lshl_add_u32 v{XR+10}, v{XR+11}, 3, v{XR+10}
    """)
def xr_loads():
    return [VM(f"buffer_load_dwordx2 {V(XR+2*i,2)}, v{XR+10}, s[{rX}:{rX+3}], s{sH} offen offset:{256*i}", "xr", ta=36) for i in range(5)]

def pf_setup(typ):
    t = vT + 10
    k.e(f"""
    v_mul_u32_u24 v{t}, 52, v{vL}
    v_lshrrev_b32 v{t}, 10, v{t}
    v_mul_u32_u24 v{t+1}, 20, v{t}
    v_sub_u32 v{t+1}, v{vL}, v{t+1}
    s_lshl_b32 s{sT0}, s{sMT}, 7
    s_lshl_b32 s{sT1}, s{sI8}, 4
    s_add_u32 s{sT0}, s{sT0}, s{sT1}
    s_mul_i32 s{sT0}, s{sT0}, 1280
    s_add_u32 s{sT0}, s{sT0}, {128*OPT['pf0']}
    """)
    if typ == "mlp":
        k.e(f"""
        s_lshl_b32 s{sT1}, s{sML}, 4
        s_add_u32 s{sT1}, s{sT1}, {64*OPT['pf0']}
        s_mul_i32 s{sT1}, s{sT1}, 3072
        s_mul_i32 s{sT2}, s{sNT}, 384
        s_add_u32 s{sT1}, s{sT1}, s{sT2}
        s_lshl_b32 s{sT2}, s{sW}, 7
        s_add_u32 s{sT1}, s{sT1}, s{sT2}
        s_cmp_eq_u32 s{sW}, 3
        s_cselect_b32 s{sPF}, s{sT0}, s{sT1}
        s_mov_b32 s{sT2}, {64*3072}
        s_cselect_b32 s{sT2}, 128, s{sT2}
        s_mov_b32 s{sT3}, 3072
        s_cselect_b32 s{sT3}, 1280, s{sT3}
        s_mov_b32 s{sT0}, 16
        """)
    else:
        k.e(f"""
        s_mul_i32 s{sT1}, s{sNT}, 80
        s_mul_i32 s{sT2}, s{sML}, 20
        s_add_u32 s{sT1}, s{sT1}, s{sT2}
        s_mul_i32 s{sT1}, s{sT1}, 1280
        s_add_u32 s{sT1}, s{sT1}, {128*OPT['pf0']}
        s_cmp_eq_u32 s{sW}, 3
        s_cselect_b32 s{sPF}, s{sT0}, s{sT1}
        s_cselect_b32 s{sT0}, 16, 20
        s_cmp_eq_u32 s{sW}, 2
        s_cselect_b32 s{sT0}, 0, s{sT0}
        s_mov_b32 s{sT2}, 128
        s_mov_b32 s{sT3}, 1280
        """)
    k.e(f"""
    s_mul_i32 s{sPFs}, s{sT2}, 3
    v_mul_lo_u32 v{vPF}, v{t}, s{sT2}
    v_mul_lo_u32 v{t+2}, v{t+1}, s{sT3}
    v_add_u32 v{vPF}, v{vPF}, v{t+2}
    v_cmp_gt_u32 vcc, s{sT0}, v{t+1}
    v_cmp_gt_u32 s[{sT2}:{sT3}], 60, v{vL}
    s_and_b64 vcc, vcc, s[{sT2}:{sT3}]
    v_mov_b32 v{t+2}, {OOB}
    s_nop 0
    v_cndmask_b32 v{vPF}, v{t+2}, v{vPF}, vcc
    """)

def repack_setup(tag):
    t = vT
    k.e(f"""
    v_lshrrev_b32 v{t}, 3, v{vL}
    v_and_b32 v{t+1}, 7, v{vL}
    v_mul_u32_u24 v{t}, 1280, v{t}
    v_lshl_add_u32 v{t}, v{t+1}, 4, v{t}
    v_or_b32 v{vDR}, s{sDis}, v{t}
    v_or_b32 v{vRS}, s{sDis}, v{vL16}
    s_lshl_b32 s{sLR}, s{sW}, 10
    s_and_b32 s{sT0}, s{sUnit}, 1
    s_lshr_b32 s{sT1}, s{sUnit}, 1
    s_mov_b32 s{rT+3}, 0x20000
    s_cmp_lt_u32 s{sUnit}, 96
    s_cbranch_scc0 L_rpC_{tag}
    s_mov_b32 s{rT}, s{pW2}
    s_mov_b32 s{rT+1}, s{pW2+1}
    s_mov_b32 s{rT+2}, {1536*1280}
    s_lshl_b32 s{sT2}, s{sT1}, 2
    s_add_u32 s{sT2}, s{sT2}, s{sW}
    s_mul_i32 s{sRpSrc}, s{sT2}, {8*1280}
    s_mul_i32 s{sT2}, s{sT1}, 5462
    s_lshr_b32 s{sT2}, s{sT2}, 16
    s_mul_i32 s{sT2}, s{sT2}, 10
    s_add_u32 s{sT1}, s{sT1}, s{sT2}
    s_mul_i32 s{sT1}, s{sT1}, 5120
    s_add_u32 s{sT1}, s{sT1}, {WS_WP}
    s_mul_i32 s{sT2}, s{sT0}, 20
    s_add_u32 s{sT2}, s{sT2}, s{sW}
    """)
    for i in range(5):
        k.e(f"""
        s_mul_i32 s{sT3}, s{sT2}, 13108
        s_lshr_b32 s{sT3}, s{sT3}, 16
        s_mul_i32 s{sT3}, s{sT3}, 435
        s_add_u32 s{sT3}, s{sT3}, s{sT2}
        s_lshl_b32 s{sT3}, s{sT3}, 10
        s_add_u32 s{sRpD+i}, s{sT3}, s{sT1}
        s_add_u32 s{sT2}, s{sT2}, 4
        """)
    k.e(f"""
    v_lshrrev_b32 v{t}, 2, v{vN}
    v_lshl_add_u32 v{t}, v{vQ}, 2, v{t}
    v_lshlrev_b32 v{t}, 7, v{t}
    v_and_b32 v{t+1}, 3, v{vN}
    v_lshl_add_u32 v{t}, v{t+1}, 3, v{t}
    s_lshl_b32 s{sT2}, s{sW}, 5
    s_add_u32 s{sT2}, s{sT2}, {L_STG}
    v_add_u32 v{vRA}, s{sT2}, v{t}
    s_branch L_rpJ_{tag}
    L_rpC_{tag}:
    s_sub_u32 s{sT1}, s{sT1}, 48
    s_cmp_eq_u32 s{sWR}, 0
    s_cselect_b32 s{rT}, s{pCre}, s{pCim}
    s_cselect_b32 s{rT+1}, s{pCre+1}, s{pCim+1}
    s_mov_b32 s{rT+2}, {640*1280}
    s_lshl_b32 s{sT2}, s{sT1}, 1
    s_add_u32 s{sT2}, s{sT2}, s{sWC}
    s_mul_i32 s{sRpSrc}, s{sT2}, {8*1280}
    s_mul_i32 s{sT2}, s{sT1}, 13108
    s_lshr_b32 s{sT2}, s{sT2}, 16
    s_mul_i32 s{sT2}, s{sT2}, 435
    s_add_u32 s{sT1}, s{sT1}, s{sT2}
    s_lshl_b32 s{sT2}, s{sT0}, 1
    s_add_u32 s{sT2}, s{sT2}, s{sWR}
    s_mul_i32 s{sT2}, s{sT2}, 110
    s_add_u32 s{sT1}, s{sT1}, s{sT2}
    s_mul_i32 s{sT2}, s{sWC}, 25
    s_add_u32 s{sT1}, s{sT1}, s{sT2}
    s_add_u32 s{sT1}, s{sT1}, 60
    s_lshl_b32 s{sT1}, s{sT1}, 10
    s_add_u32 s{sRpD}, s{sT1}, {WS_WP}
    s_add_u32 s{sRpD+1}, s{sRpD}, 5120
    s_add_u32 s{sRpD+2}, s{sRpD}, 10240
    s_add_u32 s{sRpD+3}, s{sRpD}, 15360
    s_add_u32 s{sRpD+4}, s{sRpD}, 20480
    s_mul_i32 s{sT2}, s{sW}, 160
    v_lshlrev_b32 v{t+2}, 7, v{vN}
    v_add_u32 v{t+2}, {L_STG}, v{t+2}
    """)
    for x, (off, sh) in enumerate(((0, 4), (80, 4), (64, 2), (144, 2))):
        k.e(f"""
        s_add_u32 s{sT3}, s{sT2}, {off}
        v_lshl_add_u32 v{t}, v{vQ}, {sh}, s{sT3}
        v_lshrrev_b32 v{t+1}, 7, v{t}
        v_and_b32 v{t}, 127, v{t}
        v_lshl_add_u32 v{t}, v{t+1}, 12, v{t}
        v_add_u32 v{vRA+x}, v{t}, v{t+2}
        """)
    k.e(f"""
    L_rpJ_{tag}:
    s_mul_i32 s{sT0}, s{sT0}, 640
    s_add_u32 s{sRpSrc}, s{sRpSrc}, s{sT0}
    """)
def repack_dma():
    return [dma(vDR, rT, sRpSrc, g * 128, sLR, L_STG + g * 4096, "rp", OPT["nt_rp"]) for g in range(5)]
RP = 136
def repack_read(tag):
    def f():
        s = f"s_cmp_lt_u32 s{sUnit}, 96\ns_cbranch_scc0 L_rqC_{tag}\n"
        for i in range(5):
            for h in range(2): s += f"ds_read_b64_tr_b16 {V(RP+4*i+2*h,2)}, v{vRA} offset:{i*4096 + h*2048}\n"
        s += f"""s_branch L_rqJ_{tag}
        L_rqC_{tag}:
        ds_read_b128 {V(RP,4)}, v{vRA}
        ds_read_b128 {V(RP+4,4)}, v{vRA} offset:2048
        ds_read_b128 {V(RP+8,4)}, v{vRA+1}
        ds_read_b128 {V(RP+12,4)}, v{vRA+1} offset:2048
        ds_read_b32 v{RP+16}, v{vRA+2}
        ds_read_b32 v{RP+17}, v{vRA+2} offset:2048
        ds_read_b32 v{RP+18}, v{vRA+3}
        ds_read_b32 v{RP+19}, v{vRA+3} offset:2048
        L_rqJ_{tag}:
        """
        k.e(s)
    return [F(f, 12)]
def repack_store():
    return [VM(f"buffer_store_dwordx4 {V(RP+4*i,4)}, v{vRS}, s[{rWS}:{rWS+3}], s{sRpD+i} offen sc1", ("rps", i), ta=240) for i in range(5)]
def repack_flag():
    t = vT
    fl = lines(f"""
    v_mov_b32 v{t}, s{sNonce}
    v_mov_b32 v{t+1}, s{sNonce}
    s_lshl_b32 s{sT0}, s{sUnit}, 7
    s_add_u32 s{sT0}, s{sT0}, {WS_RF}
    s_cmp_eq_u32 s{sW}, 0 | s_cselect_b32 s{sT1}, s{sDis}, {OOB}
    v_lshlrev_b32 v{t+2}, 26, v{vL}
    v_or_b32 v{t+2}, s{sT1}, v{t+2}
    """)
    return fl + [VM(f"buffer_store_dwordx2 {V(t,2)}, v{t+2}, s[{rWS}:{rWS+3}], s{sT0} offen sc1", "rf", ta=20)]

def bfr(d, s): return f"v_cvt_pk_bf16_f32 v{d}, v{s}, v{s}\nv_and_b32 v{d}, 0xffff0000, v{d}\n"
def nonce_load():
    return lines(f"v_mov_b32 v{vNc}, 0") + [VM(f"global_load_dword v{vNc}, v{vNc}, s[{pDbg}:{pDbg+1}] sc1", "nc", ta=20)]
def rowstat_job(tag):
    t = vT + 20
    S_, Q, MEAN, VAR, S1, X, Y = t, t+1, t+2, t+3, t+4, t+5, t+6
    G0, G1 = t+8, t+12
    M1, A1, A2, AM = G0, G0+2, G1, G1+2
    def dots():
        k.wait_vm("xr")
        s = f"v_mov_b32 v{X}, 0x3f803f80\nv_mov_b32 v{S_}, 0\nv_mov_b32 v{Q}, 0\n"
        for i in range(10): s += f"v_dot2c_f32_bf16 v{S_}, v{XR+i}, v{X}\nv_dot2c_f32_bf16 v{Q}, v{XR+i}, v{XR+i}\n"
        s += "s_nop 2\n"
        k.e(s)
    fl = [F(dots, 24)]
    for d in ("row_shr:1", "row_shr:2", "row_shr:4", "row_shr:8", "row_bcast:15"):
        rm = "0xa" if "bcast" in d else "0xf"
        fl.append(F(lambda d=d, rm=rm: k.e(f"v_add_f32_dpp v{S_}, v{S_}, v{S_} {d} row_mask:{rm} bank_mask:0xf bound_ctrl:0"), 1, sep=True))
        fl.append(F(lambda d=d, rm=rm: k.e(f"v_add_f32_dpp v{Q}, v{Q}, v{Q} {d} row_mask:{rm} bank_mask:0xf bound_ctrl:0"), 1))
    fl += lines(f"""
    v_mul_f32 v{MEAN}, {hx(1/640)}, v{S_}
    v_mul_f32 v{VAR}, {hx(1/640)}, v{Q}
    v_fma_f32 v{VAR}, -v{MEAN}, v{MEAN}, v{VAR}
    v_max_f32 v{VAR}, 0, v{VAR}
    {bfr(M1, MEAN)}{bfr(X, VAR)}
    v_add_f32 v{X}, {hx(1e-5)}, v{X}
    {bfr(X, X)}
    v_sqrt_f32 v{X}, v{X}
    v_sub_f32 v{Y}, v{MEAN}, v{M1}
    {bfr(S1, X)}
    v_rcp_f32 v{A1}, v{S1}
    s_nop 0
    v_mul_f32 v{Y}, v{Y}, v{A1}
    v_mul_f32 v{X}, v{VAR}, v{A1}
    {bfr(Y, Y)}
    v_mul_f32 v{X}, v{X}, v{A1}
    {bfr(X, X)}
    v_add_f32 v{X}, {hx(1e-5)}, v{X}
    {bfr(X, X)}
    v_sqrt_f32 v{X}, v{X}
    v_fma_f32 v{Y}, v{Y}, v{S1}, v{M1}
    {bfr(X, X)}
    v_mul_f32 v{X}, v{X}, v{S1}
    v_rcp_f32 v{A2}, v{X}
    v_and_b32 v{X}, 31, v{vL}
    v_mul_f32 v{AM}, v{A2}, v{Y}
    v_cmp_eq_u32 vcc, 31, v{X} | v_and_b32 v{X}, 32, v{vL} | v_mov_b32 v{Y}, {OOB} | v_cndmask_b32 v{X}, v{Y}, v{X}, vcc
    s_lshl_b32 s{sT0}, s{sHw}, 5
    s_add_u32 s{sT0}, s{sT0}, {WS_RS}
    """)
    def nonce():
        k.wait_vm("nc")
        k.e(f"""
        v_readfirstlane_b32 s{sNonce}, v{vNc}
        s_cmp_lg_u32 s{sNonce}, 0
        s_cbranch_scc1 L_ncok_{tag}
        L_ncl_{tag}:
        s_sleep 1
        global_load_dword v{vNc}, v{Y}, s[{pDbg}:{pDbg+1}] sc1
        s_sub_u32 s{sSpin}, s{sSpin}, 1
        s_cbranch_scc1 L_end
        s_waitcnt vmcnt(0)
        v_readfirstlane_b32 s{sNonce}, v{vNc}
        s_cmp_eq_u32 s{sNonce}, 0
        s_cbranch_scc1 L_ncl_{tag}
        L_ncok_{tag}:
        s_nop 0
        """)
    fl += lines(f"v_mov_b32 v{Y}, 0") + [F(nonce, 4)]
    fl += lines(f"""
    v_mov_b32 v{G0+1}, s{sNonce}
    v_mov_b32 v{G0+3}, s{sNonce}
    v_mov_b32 v{G1+1}, s{sNonce}
    v_mov_b32 v{G1+3}, s{sNonce}
    """)
    fl.append(VM(f"buffer_store_dwordx4 {V(G0,4)}, v{X}, s[{rWS}:{rWS+3}], s{sT0} offen sc1", "rs", ta=20))
    fl.append(VM(f"buffer_store_dwordx4 {V(G1,4)}, v{X}, s[{rWS}:{rWS+3}], s{sT0} offen offset:16 sc1", "rs", ta=20))
    return fl
RSV = 124
def rowstat_fetch():
    fl = lines(f"""
    s_lshl_b32 s{sT0}, s{sMT}, 12
    s_add_u32 s{sT0}, s{sT0}, {WS_RS}
    v_lshlrev_b32 v{RSV+4}, 4, v0
    v_add_u32 v{RSV+4}, s{sT0}, v{RSV+4}
    """)
    return fl + [VM(f"buffer_load_dwordx4 {V(RSV,4)}, v{RSV+4}, s[{rWS}:{rWS+3}], 0 offen sc1", "rsv")]

def ta_of(op): return sum(f.ta for f in flat([op]))
def main_loop(typ, jobs, vq, bg):
    q = [(max(0, 2*st - 5), max(2*st - 4 + (x >= 5) - OPT.get('lag', 0), x >= 5), op) for st in range(2, NST) for x, op in enumerate(dma_stage(typ, st))]
    q = sorted(q + vq, key=lambda x: x[1])
    credit = [OPT.get("credit0", 0)]
    def take(bi, n):
        credit[0] = min(credit[0] + n * 17 * OPT["util"], n * 17 + 100) - sum(ta_of(x) for x in jobs.get(("pre", bi), []) + jobs.get(bi, []))
        out = []
        while True:
            c = [x for x in q if x[0] <= bi]
            if not c or (credit[0] < 33 and c[0][1] > bi): break
            q.remove(c[0]); out.append(c[0][2]); credit[0] -= ta_of(c[0][2])
        if OPT.get('show'): print(typ, bi, len(out), len(jq), len(bg), int(credit[0]), dict(issued))
        return flat(out)
    jq = []
    k.wait_vm(("st", 0)); k.e("s_barrier")
    stamp()
    run(frag_reads(typ, 0, 0, 0))
    def block(bi, m, reads, n):
        run(jobs.get(("pre", bi), []))
        jq.extend(jobs.get(bi, []))
        d = take(bi, n)
        n = len(m)
        if bi == 2*NST - 1: reads, r0 = jobs["last"], 12
        else: r0 = 0
        sched(m, [(d, 0, n - 1, True), (reads, r0, n - OPT.get("rend", 6), True), (jq, 0, n, False), (bg if bi >= OPT.get("bg0", 12) else [], 0, n, False)])
    for s in range(NST):
        k.wait_lg()
        m = mfmas(typ, s, 0, 0)
        block(2*s, m, frag_reads(typ, s, 1, 1), len(m))
        k.wait_lg()
        m = mfmas(typ, s, 1, 1)
        k.e(m[0]); k.e(m[1])
        if s + 1 < NST:
            if OPT.get("fine"): stamp(16 + 3*s)
            assert issued.get(s + 1, 0) == (10 if typ == "mlp" else 9), (typ, s, issued)
            for tg in jobs.get(("wait", s), []): assert tg in k.seen, tg
            k.wait_vm([("st", s + 1)] + jobs.get(("wait", s), []))
            if OPT.get("fine"): stamp(17 + 3*s)
            k.e("s_barrier")
        block(2*s + 1, m[2:], frag_reads(typ, s + 1, 0, 0) if s + 1 < NST else [], len(m))
    assert not jq and len(bg) < 12, (len(jq), len(bg))
    run(bg)
    stamp()
    if OPT["stop"] == "loop": k.e("s_branch L_fin")
    return [x[2] for x in q]

WSLOT = [("a", 108 + 20*x) for x in range(7)] + [("a", 20*x) for x in range(5)] + [("v", 100 + 20*x) for x in range(3)]
NREG = 15
def wreg(tk): return WSLOT[tk] if tk < NREG else WSLOT[tk - NREG]
def kaddr(dst, base, tk, stride, extra=0):
    g = 0 if tk < 12 else 1
    return lines(f"s_cmp_gt_u32 s{sLim+g}, {tk} | s_cselect_b32 s{dst}, s{base+2*g}, s{base+2*g+1}\ns_add_u32 s{dst}, s{dst}, {tk*stride + extra}")
def wload(tk):
    kind, base = wreg(tk)
    out = []
    for i in range(5):
        op = []
        if i == 0: op += kaddr(sT2, sWa, tk, 5120)
        if i == 4: op += lines(f"s_add_u32 s{sT2}, s{sT2}, 4096")
        op.append(VM(f"buffer_load_dwordx4 {R(kind, base+4*i, 4)}, v{vL16}, s[{rWS}:{rWS+3}], s{sT2} offen offset:{(i & 3)*1024} sc1", ("w", tk)))
        out.append(op)
    return out
def wdma():
    out = []
    for x in range(35):
        tk, i = NREG + x // 5, x % 5
        op = kaddr(sT2, sWa, tk, 5120) if i == 0 else lines(f"s_add_u32 s{sT2}, s{sT2}, 1024")
        out.append(op + lines(f"s_add_u32 m0, s{sWLb}, {x*1024}") + [VM(f"buffer_load_dwordx4 v{vL16}, s[{rWS}:{rWS+3}], s{sT2} offen sc1 lds", "wl", sep=True)])
    return out
RFV = 156
sWLb, sTx = 34, 35
def p2_addr():
    vF, vFd = RFV, RFV + 2
    k.e(f"""
    v_min_u32 v{vF}, 16, v{vL}
    s_mul_i32 s{sT0}, s{sW}, 24
    s_lshr_b32 s{sT1}, s{sDT}, 2
    s_add_u32 s{sT0}, s{sT0}, s{sT1}
    s_mul_i32 s{sT1}, s{sDT}, 10
    s_add_u32 s{sT1}, s{sT1}, {96 - 24}
    s_add_u32 s{sT1}, s{sT1}, s{sWR}
    v_cmp_gt_u32 vcc, 12, v{vF}
    v_mov_b32 v{vT}, s{sT1}
    v_mov_b32 v{vT+1}, s{sT0}
    v_cndmask_b32 v{vT}, v{vT}, v{vT+1}, vcc
    v_lshl_add_u32 v{vF}, v{vF}, 1, v{vT}
    v_lshlrev_b32 v{vF}, 7, v{vF}
    v_add_u32 v{vF}, {WS_RF}, v{vF}
    s_mul_i32 s{sWp}, s{sDT}, 88
    s_mul_i32 s{sT0}, s{sW}, 22
    s_add_u32 s{sWp}, s{sWp}, s{sT0}
    s_mul_i32 s{sWp}, s{sWp}, 5120
    s_add_u32 s{sWp}, s{sWp}, {WS_WP}
    s_lshl_b32 s{sT1}, s{sMT}, 1
    s_add_u32 s{sT1}, s{sT1}, s{sHALF}
    s_mul_i32 s{sT1}, s{sT1}, 88
    s_add_u32 s{sT1}, s{sT1}, s{sT0}
    s_lshl_b32 s{sTx}, s{sT1}, 12
    s_add_u32 s{sTx}, s{sTx}, {WS_H}
    s_and_b32 s{sT2}, s{sDT}, 3
    s_lshl_b32 s{sT3}, s{sML}, 1
    s_add_u32 s{sT3}, s{sT3}, s{sHALF}
    s_mul_i32 s{sWLb}, s{sW}, {WLW}
    s_add_u32 s{sWLb}, s{sWLb}, {L_WL}
    """)
    for g, (n_, ma, mb) in enumerate(((12, 12, 6), (10, 10, 5))):
        k.e(f"""
        s_mul_i32 s{sT0}, s{sT2}, {ma}
        s_lshr_b32 s{sT0}, s{sT0}, 2
        s_mul_i32 s{sT1}, s{sT3}, {mb}
        s_lshr_b32 s{sT1}, s{sT1}, 2
        s_add_u32 s{sT0}, s{sT0}, s{sT1}
        s_sub_u32 s{sT1}, s{sT0}, {n_}
        s_cmp_ge_u32 s{sT0}, {n_}
        s_cselect_b32 s{sT0}, s{sT1}, s{sT0}
        s_mul_i32 s{sT0}, s{sT0}, {OPT['rot2']}
        s_sub_u32 s{sLim+g}, {12*g + n_}, s{sT0}
        s_mul_i32 s{sT1}, s{sT0}, 5120
        s_add_u32 s{sWa+2*g}, s{sWp}, s{sT1}
        s_sub_u32 s{sWa+2*g+1}, s{sWa+2*g}, {n_*5120}
        s_lshl_b32 s{sT1}, s{sT0}, 12
        s_add_u32 s{sHa+2*g}, s{sTx}, s{sT1}
        s_sub_u32 s{sHa+2*g+1}, s{sHa+2*g}, {n_*4096}
        """)
def rflag_fetch():
    return [VM(f"buffer_load_dwordx2 {V(RFV+2,2)}, v{RFV}, s[{rWS}:{rWS+3}], 0 offen sc1", "rfv", ta=66)]
def check(tag, vaddr, vd, width=2, second=1):
    k.e(f"""
    L_chk_{tag}:
    v_cmp_ne_u32 vcc, s{sNonce}, v{vd + (1 if width == 4 else 0)}
    v_cmp_ne_u32 s[{sT0}:{sT1}], s{sNonce}, v{vd + (3 if width == 4 else 1)}
    s_or_b64 vcc, vcc, s[{sT0}:{sT1}]
    s_cmp_eq_u64 vcc, 0
    s_cbranch_scc1 L_chkok_{tag}
    s_sub_u32 s{sSpin}, s{sSpin}, 1
    s_cbranch_scc1 L_end
    buffer_load_dwordx{width} {V(vd,width)}, v{vaddr}, s[{rWS}:{rWS+3}], 0 offen sc1
    s_waitcnt vmcnt(0)
    s_branch L_chk_{tag}
    L_chkok_{tag}:
    """)
def common_jobs(typ):
    j = {}
    j[0] = nonce_load()
    j[2] = rowstat_job(typ)
    r0 = OPT["rpst"][0]
    j[("wait", (r0 - 2) // 2)] = ["rp"]
    j[("pre", r0 - 1)] = repack_read(typ)
    for f, bi in zip(repack_store(), OPT["rpst"]): j[("pre", bi)] = j.get(("pre", bi), []) + [f]
    fs = OPT["rpflag"]
    j[("wait", fs)] = [("rps", 4)]
    j[2*fs + 1] = repack_flag()
    bi = OPT["rfchk_" + typ]
    rf = rflag_fetch()
    vq = [(0, 0, op) for op in xr_loads()] + [(0, 1.5, op) for op in repack_dma()]
    stats_jobs(typ, j)
    j[12] = j.get(12, []) + warm_params()
    if bi < 20:
        j[("pre", bi - 1)] = j.get(("pre", bi - 1), []) + rf
        def chk():
            k.wait_vm("rfv"); check("rf_" + typ, RFV, RFV + 2)
        j[("pre", bi)] = j.get(("pre", bi), []) + [F(chk, 6)]
        vq += [(bi, 99, op) for tk in range(7) for op in wload(tk)]
    else:
        j[17] = rf
    return j, vq

TK = vT + 8
SA = 76
def stats_jobs(typ, j):
    nr = 6 if typ == "mlp" else 5
    j[OPT.get('rsb', 13)] = j.get(OPT.get('rsb', 13), []) + lines(f"""
    s_mul_i32 s{sT0}, s{sW}, {SCW}
    s_add_u32 s{sT0}, s{sT0}, {L_SC}
    v_lshlrev_b32 v{SA+1}, 4, v{vQ}
    v_add_u32 v{SA}, s{sT0}, v{SA+1}
    s_mul_i32 s{sT0}, s{sWR}, {2*SCW}
    s_add_u32 s{sT0}, s{sT0}, {L_SC}
    v_add_u32 v{SA+1}, s{sT0}, v{SA+1}
    s_lshl_b32 s{sT0}, s{sWC}, 10
    v_lshlrev_b32 v{SA+2}, 6, v{vN}
    v_add_u32 v{SA+2}, s{sT0}, v{SA+2}
    v_lshlrev_b32 v{SA+3}, 3, v0
    """) + rowstat_fetch()
    def chk():
        k.wait_vm("rsv")
        check("rs_" + typ, RSV + 4, RSV, 4)
        k.ds(f"ds_write2_b32 v{SA+3}, v{RSV}, v{RSV+2} offset0:{L_TOK//4} offset1:{L_TOK//4+1}")
    j[("pre", 16)] = j.get(("pre", 16), []) + [F(chk, 8)]
    j[18] = j.get(18, []) + [DSF(f"ds_read_b128 {V(TK+4*x,4)}, v{SA+2} offset:{L_TOK + x*16}") for x in range(4)]
    def wr():
        k.e("s_mov_b32 exec_lo, 0x00010001\ns_mov_b32 exec_hi, 0x00010001")
        for i in range(nr): k.ds(f"ds_write_b128 v{SA}, {A(aCS+4*i,4)} offset:{i*64}")
        k.e("s_mov_b64 exec, -1")
    j["last"] = [F(wr, 8, ds=True)]
def stats(typ):
    nr = 6 if typ == "mlp" else 5
    CS = vT + 24; P2 = 100
    k.wait_lg(); k.e("s_barrier")
    for i in range(nr):
        k.ds(f"ds_read_b128 {V(P2+4*i,4)}, v{SA+1} offset:{SCW+i*64}", ("cs", i))
    for i in (0, 1, 2, 4, 5, 3)[:nr + 1]:
        if i < nr: k.ds(f"ds_read_b128 {V(CS+4*i,4)}, v{SA+1} offset:{i*64}", ("cs", i))
    return TK, CS, P2
def stats_sum(typ, CS, P2):
    k.wait_lg()
    for i in range(6 if typ == "mlp" else 5):
        for h in range(2):
            k.e(f"v_pk_add_f32 {V(CS+4*i+2*h,2)}, {V(CS+4*i+2*h,2)}, {V(P2+4*i+2*h,2)}")

class Feeder:
    def __init__(self, jobs, every): self.jobs, self.every, self.n = list(jobs), every, 0
    def tick(self, n=1):
        self.n += n
        while self.n >= self.every and self.jobs:
            self.n -= self.every; run([self.jobs.pop(0)])
    def flush(self):
        while self.jobs: run([self.jobs.pop(0)])

def h_base():
    k.e(f"""
    s_lshl_b32 s{sT0}, s{sMT}, 1
    s_add_u32 s{sT0}, s{sT0}, s{sWC}
    s_mul_i32 s{sH}, s{sT0}, {88*4096}
    s_add_u32 s{sH}, s{sH}, {WS_H}
    s_lshr_b32 s{sT0}, s{sNT}, 1
    s_mul_i32 s{sT0}, s{sT0}, 22
    s_and_b32 s{sT1}, s{sNT}, 1
    """)
HRING = [[("v", 40 + 4*s) for s in range(4)], [("v", 56 + 4*s) for s in range(4)], [("v", 72 + 4*s) for s in range(4)],
         [("v", 240 + 4*s) for s in range(4)], [("a", 100), ("a", 104), ("a", 248), ("a", 252)]]
vF, vFd, vHs = 28, 30, 32
vWL, vRw, XO, LO = 36, 37, 38, 39
RES = 4
def flag_addr():
    k.e(f"""
    v_bfe_u32 v{vFd}, v{vL}, 1, 1
    s_lshl_b32 s{sT0}, s{sMT}, 4
    s_lshl_b32 s{sT1}, s{sW}, 1
    s_add_u32 s{sT1}, s{sT0}, s{sT1}
    s_add_u32 s{sT1}, s{sT1}, 8
    v_add_u32 v{vFd}, s{sT1}, v{vFd}
    v_lshlrev_b32 v{vFd}, 7, v{vFd}
    v_and_b32 v{vF}, 1, v{vL}
    v_lshl_add_u32 v{vF}, v{vF}, 5, v{vFd}
    s_lshl_b32 s{sT1}, s{sHALF}, 4
    s_add_u32 s{sT1}, s{sT1}, {WS_HF}
    v_add_u32 v{vF}, s{sT1}, v{vF}
    v_add_u32 v{vF+1}, -1024, v{vF}
    s_lshl_b32 s{sT1}, s{sTYP}, 3
    s_add_u32 s{sT0}, s{sT0}, s{sT1}
    s_add_u32 s{sT0}, s{sT0}, s{sNT}
    s_lshl_b32 s{sT0}, s{sT0}, 7
    s_lshl_b32 s{sT1}, s{sW}, 4
    s_add_u32 s{sT0}, s{sT0}, s{sT1}
    s_add_u32 s{sLW}, s{sT0}, {WS_HF}
    """)
def h_offsets():
    for s in range(4):
        k.e(f"s_xor_b32 s{sT0}, s{sW}, {s}\ns_lshl_b32 s{sT0}, s{sT0}, 10\nv_add_u32 v{vHs+s}, s{sT0}, v{vL16}")
def poll_m(): k.vmem(f"buffer_load_dwordx2 {V(vFd,2)}, v{vF}, s[{rWS}:{rWS+3}], 0 offen sc1", "hf")
FL = 96
def h_flag(track=True):
    k.e(f"v_mov_b32 v{FL}, s{sNonce}\nv_mov_b32 v{FL+1}, s{sNonce}\nv_lshlrev_b32 v{FL+2}, 26, v{vL}")
    k.wait_vm("h")
    tx = f"buffer_store_dwordx2 {V(FL,2)}, v{FL+2}, s[{rWS}:{rWS+3}], s{sLW} offen sc1"
    k.vmem(tx, "fl") if track else k.e(tx)
EX_, ED, EB, TKv, U = 100, 110, 120, 130, 132
def ep_loads():
    k.e(f"""
    s_lshl_b32 s{sT0}, s{sMT}, 7
    s_lshl_b32 s{sT1}, s{sHALF}, 6
    s_add_u32 s{sT0}, s{sT0}, s{sT1}
    s_add_u32 s{sT0}, s{sT0}, s{sW}
    s_mul_i32 s{sX}, s{sT0}, 1280
    s_mul_i32 s{sT0}, s{sDT}, 160
    s_add_u32 s{sX}, s{sX}, s{sT0}
    v_lshrrev_b32 v{U}, 2, v{vL}
    v_and_b32 v{U+1}, 3, v{vL}
    v_lshlrev_b32 v{U+2}, 3, v{U+1}
    v_mul_u32_u24 v{XO}, 5120, v{U}
    v_add_u32 v{XO}, v{XO}, v{U+2}
    v_mul_u32_u24 v{LO}, {RROW}, v{U}
    v_lshl_add_u32 v{LO}, v{U+1}, 4, v{LO}
    v_lshlrev_b32 v{U}, 6, v{U}
    s_lshl_b32 s{sT1}, s{sHALF}, 10
    v_add_u32 v{U}, s{sT1}, v{U}
    s_lshl_b32 s{sT1}, s{sW}, 4
    v_add_u32 v{U}, s{sT1}, v{U}
    """)
    k.ds(f"ds_read_b64 {V(TKv,2)}, v{U} offset:{L_TOK}", "tk")
    for g in range(5): k.vmem(f"buffer_load_dwordx2 {V(EX_+2*g,2)}, v{XO}, s[{rX}:{rX+3}], s{sX} offen offset:{32*g}", "ep")
    for reg, ptr in ((ED, pDsk), (EB, pB2)):
        srd(rT, ptr, 1280)
        for g in range(5): k.vmem(f"buffer_load_dwordx2 {V(reg+2*g,2)}, v{U+2}, s[{rT}:{rT+3}], s{sT0} offen offset:{32*g}", "ep")
def residual(fd=None):
    k.wait_vm("ep"); k.wait_lg()
    for g in range(5):
        if fd: fd.tick(1)
        xf, df, bf_ = U + 4, U + 8, U + 12
        for src, dst in ((EX_ + 2*g, xf), (ED + 2*g, df), (EB + 2*g, bf_)):
            for h in range(2):
                k.e(f"v_lshlrev_b32 v{dst+2*h}, 16, v{src+h}\nv_and_b32 v{dst+2*h+1}, 0xffff0000, v{src+h}")
        A_ = [RES + 4*g, RES + 4*g + 2]
        def rnd():
            for a in A_: k.e(f"v_cvt_pk_bf16_f32 v{a+1}, v{a}, v{a+1}")
            for a in A_: k.e(f"v_lshlrev_b32 v{a}, 16, v{a+1}\nv_and_b32 v{a+1}, 0xffff0000, v{a+1}")
        for h, a in enumerate(A_): k.e(f"v_pk_add_f32 {V(a,2)}, {V(xf+2*h,2)}, {V(TKv,2)} op_sel:[0,0] op_sel_hi:[1,0] neg_lo:[0,1] neg_hi:[0,1]")
        rnd()
        for h, a in enumerate(A_): k.e(f"v_pk_mul_f32 {V(a,2)}, {V(a,2)}, {V(TKv,2)} op_sel:[0,1] op_sel_hi:[1,1]")
        rnd()
        for h, a in enumerate(A_): k.e(f"v_pk_mul_f32 {V(a,2)}, {V(a,2)}, {V(df+2*h,2)}")
        rnd()
        for h, a in enumerate(A_): k.e(f"v_pk_add_f32 {V(a,2)}, {V(a,2)}, {V(xf+2*h,2)}")
        for h, a in enumerate(A_): k.e(f"v_pk_add_f32 {V(a,2)}, {V(a,2)}, {V(bf_+2*h,2)}")
def hload(tk):
    ring = HRING[tk % 5]
    return kaddr(sT3, sHa, tk, 4096), [[VM(f"buffer_load_dwordx4 {R(ring[s][0], ring[s][1], 4)}, v{vHs+s}, s[{rWS}:{rWS+3}], s{sT3} offen sc1", ("h", tk))] for s in range(4)]
def h_first():
    for tk in range(5):
        a_, b_ = hload(tk); run(a_); run(b_)
def warm_params():
    return lines(f"v_mov_b32 v{vJunk}, 0") + [VM(f"global_load_dword v{vNc}, v{vL16}, s[{pDsk}:{pDsk+1}]", "jk", ta=20), VM(f"global_load_dword v{vNc}, v{vL16}, s[{pB2}:{pB2+1}]", "jk", ta=20),
            VM(f"global_load_dword v{vNc}, v{vJunk}, s[{pDsk}:{pDsk+1}] offset:1152", "jk", ta=10), VM(f"global_load_dword v{vNc}, v{vJunk}, s[{pB2}:{pB2+1}] offset:1152", "jk", ta=10),
            VM(f"global_load_dword v{vNc}, v{vJunk}, s[{pDsk}:{pDsk+1}] offset:1024", "jk", ta=10), VM(f"global_load_dword v{vNc}, v{vJunk}, s[{pB2}:{pB2+1}] offset:1024", "jk", ta=10)]

def ones():
    k.e(f"v_mov_b32 v{vT+6}, 0x3f803f80")
    for i in range(4): k.e(f"v_accvgpr_write_b32 a{aONE+i}, v{vT+6}")

def path_mlp():
    typ = "mlp"; t = vT
    k.label("L_mlp")
    issued.clear(); k.seen.clear()
    k.vm = []; k.lg = []
    k.e(f"""
    v_and_b32 v{t+2}, 2, v{t}
    v_xor_b32 v{t+2}, v{t+1}, v{t+2}
    v_mul_u32_u24 v{t+3}, 3072, v{t}
    v_lshl_add_u32 v{vDW}, v{t+2}, 4, v{t+3}
    v_xor_b32 v{vDW+1}, 64, v{vDW}
    s_mul_i32 s{sB0}, s{sW}, {16*3072}
    s_mul_i32 s{sT0}, s{sNT}, 384
    s_add_u32 s{sB0}, s{sB0}, s{sT0}
    s_add_u32 s{sB2}, s{sB0}, {8*3072}
    s_lshl_b32 s{sLW}, s{sW}, 11
    """)
    k.e(f"""
    v_lshrrev_b32 v{t}, 2, v{vN}
    v_lshl_add_u32 v{t+1}, v{vQ}, 3, v{t}
    v_lshlrev_b32 v{t+1}, 7, v{t+1}
    v_and_b32 v{t+2}, 3, v{vN}
    v_lshl_add_u32 v{t+1}, v{t+2}, 3, v{t+1}
    v_lshrrev_b32 v{t}, 1, v{t}
    v_and_b32 v{t+2}, 1, v{vQ}
    v_lshl_add_u32 v{t}, v{t+2}, 1, v{t}
    s_lshl_b32 s{sT0}, s{sKs}, 12
    s_add_u32 s{sT0}, s{sT0}, {L_W}
    v_add_u32 v{t+1}, s{sT0}, v{t+1}
    s_mul_i32 s{sT2}, s{sWR}, 6
    """)
    for i in range(4):
        k.e(f"""
        s_add_u32 s{sT3}, s{sT2}, {i}
        s_lshr_b32 s{sT0}, s{sT3}, 2
        s_lshl_b32 s{sT0}, s{sT0}, 13
        s_and_b32 s{sT3}, s{sT3}, 3
        v_xor_b32 v{t+2}, s{sT3}, v{t}
        v_lshl_add_u32 v{t+2}, v{t+2}, 5, v{t+1}
        v_add_u32 v{vWA+i}, s{sT0}, v{t+2}
        v_xor_b32 v{vWA+4+i}, 4096, v{vWA+i}
        """)
    Kc = 2 * 0.7978845608028654 * 1.4426950408889634
    k.e(f"s_mov_b32 s{sK}, {hx(-Kc*0.044715)}\ns_mov_b32 s{sK+1}, {hx(-Kc)}")
    ones()
    xr_setup()
    rot_setup(typ)
    start_loads(typ)
    repack_setup(typ)
    stamp(15)
    run(dma_stage(typ, 1))
    p2_addr()
    stamp(14)
    jobs, vq = common_jobs(typ)
    b1j = lines(f"""
    s_mov_b32 s{rT2}, s{pB1}
    s_mov_b32 s{rT2+1}, s{pB1+1}
    s_mov_b32 s{rT2+2}, 3072
    s_mov_b32 s{rT2+3}, 0x20000
    s_mul_i32 s{sT0}, s{sNT}, 384
    s_mul_i32 s{sT1}, s{sWR}, 192
    s_add_u32 s{sT0}, s{sT0}, s{sT1}
    v_lshlrev_b32 v{t}, 3, v{vQ}
    """) + [VM(f"buffer_load_dwordx2 {V(vB1+2*i,2)}, v{t}, s[{rT2}:{rT2+3}], s{sT0} offen offset:{32*i}", "b1", ta=25) for i in range(6)]
    jobs[7] = b1j
    left = main_loop(typ, jobs, vq, [])
    TK, CS, P2 = stats(typ)
    stamp()
    pend = [(6 - (len(left) - 1 - x) // 5, op) for x, op in enumerate(left)] + [(tk, op) for tk in range(7, 22) for op in wload(tk)]
    ne = OPT.get("ne_mlp", 0)
    fd = Feeder([op for _, op in pend[:ne]], 35 * 12 // max(1, ne))
    pend = pend[ne:]
    h_base()
    k.e(f"""
    s_mul_i32 s{sT1}, s{sT1}, 6
    s_add_u32 s{sT0}, s{sT0}, s{sT1}
    s_mul_i32 s{sT1}, s{sWR}, 3
    s_add_u32 s{sT0}, s{sT0}, s{sT1}
    s_lshl_b32 s{sT0}, s{sT0}, 12
    s_add_u32 s{sH}, s{sH}, s{sT0}
    """)
    stats_sum(typ, CS, P2)
    B = 100
    for i in range(6):
        for h in range(2):
            k.e(f"v_lshlrev_b32 v{B+4*i+2*h}, 16, v{vB1+2*i+h}\nv_and_b32 v{B+4*i+2*h+1}, 0xffff0000, v{vB1+2*i+h}")
    TM = 124
    OUT = [88, 92]
    n_ = 0
    for u in range(3):
        for j in range(4):
            o = OUT[n_ & 1]; n_ += 1
            k.raw(".p2align 3")
            prs = [(2*u + ii, h) for ii in range(2) for h in range(2)]
            Z = [acc(i, j) + 2*h for i, h in prs]
            T1 = [TM + 2*x for x in range(4)]; T2 = [TM + 8 + 2*x for x in range(4)]
            for x, (i, h) in enumerate(prs):
                k.e(f"v_pk_fma_f32 {V(T1[x],2)}, {V(CS+4*i+2*h,2)}, {V(TK+4*j+2,2)}, {V(B+4*i+2*h,2)} op_sel:[0,1,0] op_sel_hi:[1,1,1] neg_lo:[0,1,0] neg_hi:[0,1,0]")
            for x in range(4):
                k.e(f"v_pk_fma_f32 {V(Z[x],2)}, {V(Z[x],2)}, {V(TK+4*j+2,2)}, {V(T1[x],2)} op_sel:[0,0,0] op_sel_hi:[1,0,1]")
            fd.tick(12)
            for x in range(4): k.e(f"v_pk_mul_f32 {V(T1[x],2)}, {V(Z[x],2)}, {V(Z[x],2)}")
            for x in range(4): k.e(f"v_pk_fma_f32 {V(T1[x],2)}, {V(T1[x],2)}, s[{sK}:{sK+1}], s[{sK}:{sK+1}] op_sel:[0,0,1] op_sel_hi:[1,0,1]")
            for x in range(4): k.e(f"v_pk_mul_f32 {V(T1[x],2)}, {V(T1[x],2)}, {V(Z[x],2)}")
            for x in range(4): k.e(f"v_exp_f32 v{T2[x]}, v{T1[x]}\nv_exp_f32 v{T2[x]+1}, v{T1[x]+1}")
            fd.tick(12)
            for x in range(4): k.e(f"v_pk_add_f32 {V(T2[x],2)}, {V(T2[x],2)}, 1.0 op_sel_hi:[1,0]")
            for x in range(4): k.e(f"v_rcp_f32 v{T2[x]}, v{T2[x]}\nv_rcp_f32 v{T2[x]+1}, v{T2[x]+1}")
            if n_ < 12: fd.tick(12)
            for x in range(4): k.e(f"v_pk_mul_f32 {V(Z[x],2)}, {V(Z[x],2)}, {V(T2[x],2)}")
            for x in range(4): k.e(f"v_cvt_pk_bf16_f32 v{o+x}, v{Z[x]}, v{Z[x]+1}")
            k.vmem(f"buffer_store_dwordx4 {V(o,4)}, v{vL16}, s[{rWS}:{rWS+3}], s{sH} offen offset:{j*1024} sc1", "h")
        if u < 2: k.e(f"s_add_u32 s{sH}, s{sH}, 4096")
    fd.flush()
    stamp()
    ep_loads()
    nmax = len([1 for t_, _ in pend if t_ < 12])
    n0 = min(OPT['post0'], nmax); n1 = min(n0 + OPT['post'], nmax)
    run([op for _, op in pend[:n0]])
    flag_addr()
    h_flag()
    poll_m()
    h_offsets()
    ops = [op for _, op in pend[n0:n1]]
    fd = Feeder([flat(ops[x::1][:0]) for x in range(0)], 1)
    cut = [ops[(x * len(ops)) // 5:((x + 1) * len(ops)) // 5] for x in range(5)]
    residual(Feeder([flat(c) for c in cut], 1))
    stamp(7)
    k.wait_vm("hf"); check("hm" + typ, vF, vFd)
    stamp(8)
    h_first()
    phase2(typ, pend[n1:], 22, OPT['kw_mlp'])

def cmul_acc(d, a, b, c):
    k.e(f"v_pk_fma_f32 {V(d,2)}, {V(a,2)}, {V(b,2)}, {V(c,2)} op_sel:[0,0,0] op_sel_hi:[1,0,1]")
    k.e(f"v_pk_fma_f32 {V(d,2)}, {V(a,2)}, {V(b,2)}, {V(d,2)} op_sel:[1,1,0] op_sel_hi:[0,1,1] neg_lo:[0,1,0]")

PR = 100
def masked(m, ins):
    def f():
        k.e(f"s_mov_b32 exec_lo, {m}\ns_mov_b32 exec_hi, {m}"); k.ds(ins); k.e("s_mov_b64 exec, -1")
    return F(f, 4, ds=True)
def power(KK, al, be, t):
    x, y, c_, s_ = t+10, t+11, t+12, t+13
    return lines(f"""
    v_mul_f32 v{y}, v{KK}, v{be}
    v_mul_f32 v{x}, v{KK}, v{al}
    v_fract_f32 v{y}, v{y}
    v_cos_f32 v{c_}, v{y}
    v_sin_f32 v{s_}, v{y}
    v_exp_f32 v{x}, v{x}
    s_nop 0
    v_mul_f32 v{t+14}, v{x}, v{c_}
    v_mul_f32 v{t+15}, v{x}, v{s_}
    """)
def table_a():
    t = 80; CH_ = vB1 + 10
    lr, li, dt, al, be, KK, AD = PR, PR+1, PR+2, t+8, t+9, t, t+1
    x, y, c_, s_ = t+10, t+11, t+12, t+13
    LOG2E = 1.4426950408889634
    fl = lines(f"""
    v_lshlrev_b32 v{dt}, 16, v{dt}
    v_lshlrev_b32 v{lr}, 16, v{lr}
    v_mul_f32 v{dt}, {hx(LOG2E)}, v{dt}
    v_exp_f32 v{dt}, v{dt}
    v_lshlrev_b32 v{li}, 16, v{li}
    {bfr(dt, dt)}
    v_mul_f32 v{al}, v{dt}, v{lr}
    v_mul_f32 v{be}, v{dt}, v{li}
    v_mul_f32 v{al}, {hx(LOG2E)}, v{al}
    v_mul_f32 v{be}, 0.15915494, v{be}
    v_lshlrev_b32 v{KK}, 6, v{CH_+1}
    v_max_u32 v{KK}, 1, v{KK}
    v_cvt_f32_u32 v{KK}, v{KK}
    v_lshlrev_b32 v{AD}, 3, v{CH_}
    """)
    fl += lines(f"v_lshrrev_b32 v{t+2}, 4, v0\nv_lshlrev_b32 v{t+3}, 3, v{t+2}")
    fl.append(DSF(f"ds_write_b64 v{AD}, {V(al,2)} offset:{L_EX}"))
    fl.append(F(lambda: mark.append(1), 0))
    fl += power(KK, al, be, t)
    fl += lines(f"""
    v_lshlrev_b32 v{AD}, 3, v{CH_+1}
    v_cmp_eq_u32 vcc, 0, v{CH_+1} | v_add_u32 v{AD}, 40, v{AD} | v_mov_b32 v{x}, 0 | v_cndmask_b32 v{AD}, v{AD}, v{x}, vcc
    v_lshl_add_u32 v{AD}, v{CH_}, 6, v{AD}
    """)
    fl.append(DSF(f"ds_write_b64 v{AD}, {V(t+14,2)} offset:{L_CH}"))
    fl += lines(f"""
    v_mul_f32 v{y}, v{lr}, v{lr}
    v_add_f32 v{x}, -1.0, v{t+14}
    v_fma_f32 v{y}, v{li}, v{li}, v{y}
    v_rcp_f32 v{y}, v{y}
    v_mul_f32 v{c_}, v{x}, v{lr}
    v_fma_f32 v{c_}, v{t+15}, v{li}, v{c_}
    v_mul_f32 v{s_}, v{t+15}, v{lr}
    v_fma_f32 v{s_}, -v{x}, v{li}, v{s_}
    v_add_f32 v{y}, v{y}, v{y}
    v_mul_f32 v{t+16}, v{c_}, v{y}
    v_mul_f32 v{t+17}, v{s_}, v{y}
    """)
    def f():
        k.e(f"v_cmp_eq_u32 vcc, 0, v{CH_+1}\ns_mov_b64 exec, vcc"); k.ds(f"ds_write_b64 v{AD}, {V(t+16,2)} offset:{L_CH + 8}"); k.e("s_mov_b64 exec, -1")
    fl.append(F(f, 4, ds=True))
    fl.append(F(lambda: mark.append(2), 0))
    return fl
def table_rd():
    t = 80
    return [DSF(f"ds_read_b64 {V(PR+4+2*u,2)}, v{t+3} offset:{L_EX + u*128}") for u in range(5)]
def table_b():
    t = 80
    K1, APW, R1 = t, t+4, t+5
    fl = lines(f"""
    v_lshlrev_b32 v{K1}, 2, v{vN}
    v_cvt_f32_u32 v{K1}, v{K1}
    v_lshlrev_b32 v{APW}, 7, v{t+2}
    v_lshl_add_u32 v{APW}, v{vN}, 3, v{APW}
    v_ffbl_b32 v{R1}, v{vN}
    v_lshlrev_b32 v{R1}, 3, v{R1}
    v_lshl_add_u32 v{R1}, v{t+2}, 6, v{R1}
    """)
    for u in range(5):
        fl += power(K1, PR+4+2*u, PR+5+2*u, t)
        fl.append(DSF(f"ds_write_b64 v{APW}, {V(t+14,2)} offset:{L_PW + u*2048}"))
        fl.append(masked("0x01160116", f"ds_write_b64 v{R1}, {V(t+14,2)} offset:{L_CH + 16 + u*1024}"))
    return fl

def path_ssm():
    typ = "ssm"; t = vT
    k.e(f"""
    v_and_b32 v{t+2}, 6, v{t}
    v_or_b32 v{t+3}, s{sWC}, v{t+2}
    v_xor_b32 v{t+1}, v{t+1}, v{t+3}
    v_lshlrev_b32 v{t+1}, 4, v{t+1}
    v_and_b32 v{t+3}, 1, v{t}
    v_lshl_add_u32 v{t+2}, v{t+2}, 2, v{t+3}
    v_mul_u32_u24 v{t+2}, 1280, v{t+2}
    v_add_u32 v{vDW}, v{t+2}, v{t+1}
    v_add_u32 v{t+2}, 32, v{t}
    v_mul_u32_u24 v{t+2}, 1280, v{t+2}
    v_add_u32 v{vDW+1}, v{t+2}, v{t+1}
    s_mul_i32 s{sT0}, s{sNT}, 80
    s_mul_i32 s{sT1}, s{sWR}, 40
    s_add_u32 s{sT0}, s{sT0}, s{sT1}
    s_mul_i32 s{sB0}, s{sT0}, 1280
    s_add_u32 s{sB2}, s{sB0}, 5120
    s_mul_i32 s{sLW}, s{sWR}, 10240
    s_lshl_b32 s{sT0}, s{sWC}, 10
    s_add_u32 s{sLW}, s{sLW}, s{sT0}
    """)
    k.e(f"""
    v_and_b32 v{t+1}, 1, v{vN}
    v_lshrrev_b32 v{t+2}, 2, v{vN}
    v_lshl_add_u32 v{t+2}, v{t+2}, 1, v{t+1}
    v_xor_b32 v{t}, v{t+4}, v{t+2}
    v_lshlrev_b32 v{t}, 4, v{t}
    v_lshl_add_u32 v{t}, v{t+1}, 10, v{t}
    v_lshrrev_b32 v{t+2}, 1, v{vN}
    v_lshl_add_u32 v{t}, v{t+2}, 7, v{t}
    s_mul_i32 s{sT0}, s{sWR}, 10240
    s_add_u32 s{sT0}, s{sT0}, {L_W}
    v_add_u32 v{vWA}, s{sT0}, v{t}
    v_xor_b32 v{vWA+1}, 64, v{vWA}
    """)
    ones()
    xr_setup()
    rot_setup(typ)
    start_loads(typ)
    k.e(f"""
    v_mul_u32_u24 v{vB1+11}, 820, v0
    v_lshrrev_b32 v{vB1+11}, 16, v{vB1+11}
    v_min_u32 v{vB1+11}, 2, v{vB1+11}
    v_mul_u32_u24 v{t+1}, 80, v{vB1+11}
    v_sub_u32 v{vB1+10}, v0, v{t+1}
    v_min_u32 v{vB1+10}, 79, v{vB1+10}
    s_mul_i32 s{sT0}, s{sNT}, 160
    v_lshlrev_b32 v{t+1}, 1, v{vB1+10}
    s_mov_b32 s{rT+2}, 1280
    s_mov_b32 s{rT+3}, 0x20000
    """)
    for pi, ptr in enumerate((pLre, pLim, pLdt)):
        k.e(f"s_mov_b32 s{rT}, s{ptr}\ns_mov_b32 s{rT+1}, s{ptr+1}")
        k.vmem(f"buffer_load_ushort v{PR+pi}, v{t+1}, s[{rT}:{rT+3}], s{sT0} offen", "par")
    repack_setup(typ)
    stamp(15)
    run(dma_stage(typ, 1))
    p2_addr()
    stamp(14)
    jobs, vq = common_jobs(typ)
    jobs[5] = table_a()
    jobs[("pre", 10)] = [F(lambda: mark[0], 0)]
    jobs[("pre", 11)] = table_rd()
    jobs[("pre", 12)] = [F(lambda: mark[1], 0)]
    tj = table_b()
    vC0, vC1, vP0, vP1, vE0, vE1, vGc, vGr, vPub = vB1, vB1+1, vB1+2, vB1+3, vB1+4, vB1+5, vB1+6, vB1+7, vB1+8
    CH_, WH_ = vB1 + 10, vB1 + 11
    vG = 114
    sVal = [28, 30, 36, 38, 40]
    u_ = 96
    ad = lines(f"""
    s_mul_i32 s{sUnit}, s{sWR}, 40
    v_lshlrev_b32 v{u_}, 3, v{vQ}
    v_add_u32 v{u_}, s{sUnit}, v{u_}
    v_lshlrev_b32 v{u_+1}, 1, v{vQ}
    v_add_u32 v{u_+1}, s{sUnit}, v{u_+1}
    v_add_u32 v{u_+1}, 32, v{u_+1}
    v_lshlrev_b32 v{vC0}, 6, v{u_}
    v_lshlrev_b32 v{vC1}, 6, v{u_+1}
    v_lshlrev_b32 v{u_+2}, 3, v{vN}
    v_lshl_add_u32 v{vP0}, v{u_}, 7, v{u_+2}
    v_lshl_add_u32 v{vP1}, v{u_+1}, 7, v{u_+2}
    s_mul_i32 s{sUnit}, s{sWC}, 640
    v_lshlrev_b32 v{vE0}, 3, v{u_}
    v_lshlrev_b32 v{vE1}, 3, v{u_+1}
    v_add_u32 v{vE0}, s{sUnit}, v{vE0}
    v_add_u32 v{vE1}, s{sUnit}, v{vE1}
    v_lshlrev_b32 v{vGc}, 3, v{CH_}
    v_lshlrev_b32 v{vGr}, 6, v{CH_}
    v_lshlrev_b32 v{u_}, 4, v{CH_}
    v_cmp_gt_u32 vcc, 80, v0 | v_mov_b32 v{u_+1}, {OOB} | s_nop 0 | v_cndmask_b32 v{vPub}, v{u_+1}, v{u_}, vcc
    v_mul_u32_u24 v{u_+2}, 5, v{WH_}
    v_sub_u32 v{u_+2}, s{sMT}, v{u_+2}
    s_mul_i32 s{sHw}, s{sNT}, {16*1280}
    s_add_u32 s{sHw}, s{sHw}, {WS_E}
    s_mul_i32 s{sH}, s{sMT}, 1280
    s_add_u32 s{sH}, s{sH}, s{sHw}
    """)
    for i in range(5):
        ad += lines(f"""
        v_add_u32 v{u_+2}, -1, v{u_+2}
        v_mul_i32_i24 v{vG+i}, 1280, v{u_+2}
        v_cmp_le_i32 s[{sVal[i]}:{sVal[i]+1}], 0, v{u_+2} | v_add_u32 v{vG+i}, v{vG+i}, v{u_} | s_nop 0 | v_cndmask_b32 v{vG+i}, v{u_+1}, v{vG+i}, s[{sVal[i]}:{sVal[i]+1}]
        """)
    tj = tj + ad
    left = main_loop(typ, jobs, vq, tj)
    vG2 = 8
    for i in range(5): k.e(f"v_mov_b32 v{vG2+i}, v{vG+i}")
    TK, CS, P2 = stats(typ)
    stamp()
    if OPT["rfchk_ssm"] >= 20:
        k.wait_vm("rfv"); check("rf_ssm", RFV, RFV + 2)
        left = [op for tk in range(7) for op in wload(tk)]
    early = [(6 - (len(left) - 1 - x) // 5, op) for x, op in enumerate(left)] + [(tk, op) for tk in range(7, 12) for op in wload(tk)]
    early += [(NREG - 2 + x // 5, op) for x, op in enumerate(wdma())]
    e1 = OPT['e1']; ew = OPT['ew']
    wd = [op for _, op in early]
    fd = Feeder(wd[:e1], 300 // max(1, e1))
    slots = [(i, h) for i in range(5) for h in range(2)]
    def rec(i, h): return (vC0, L_CH + (2*i + h)*64) if i < 4 else (vC1, L_CH + h*64)
    LC = 100
    stats_sum(typ, CS, P2)
    for x, (i, h) in enumerate(slots):
        a_, o_ = rec(i, h); k.ds(f"ds_read_b128 {V(LC+4*x,4)}, v{a_} offset:{o_}", ("lc", x))
    k.raw(".p2align 3")
    for x, (i, h) in enumerate(slots):
        fd.tick(8)
        for j in range(4):
            z = acc(i, j) + 2*h
            k.e(f"v_pk_fma_f32 {V(z,2)}, {V(CS+4*i+2*h,2)}, {V(TK+4*j,2)}, {V(z,2)} op_sel:[0,0,0] op_sel_hi:[1,0,1] neg_lo:[0,1,0] neg_hi:[0,1,0]")
        for j in range(4):
            z = acc(i, j) + 2*h
            k.e(f"v_pk_mul_f32 {V(z,2)}, {V(z,2)}, {V(TK+4*j,2)} op_sel:[0,1] op_sel_hi:[1,1]")
    EE = 140; TMP = 88
    MU = [t, t + 20]
    def load_mu(st):
        for x, (i, h) in enumerate(slots):
            a_, o_ = rec(i, h); k.ds(f"ds_read_b64 {V(MU[st & 1]+2*x,2)}, v{a_} offset:{o_ + 16 + 8*st}", ("mu", st))
    k.wait_lg()
    load_mu(0); load_mu(1)
    def ereg(x): return EE + 2*x
    def treg(x): return (240 + 2*x) if x < 8 else (TMP + 2*(x - 8))
    k.raw(".p2align 3")
    for x, (i, h) in enumerate(slots): cmul_acc(ereg(x), acc(i,0)+2*h, LC+4*x, acc(i,1)+2*h)
    fd.tick(20)
    for x, (i, h) in enumerate(slots): cmul_acc(treg(x), ereg(x), LC+4*x, acc(i,2)+2*h)
    fd.tick(20)
    for x, (i, h) in enumerate(slots): cmul_acc(ereg(x), treg(x), LC+4*x, acc(i,3)+2*h)
    PWv = t
    for st, sh in enumerate((1, 2, 4, 8)):
        fd.tick(20)
        k.raw(".p2align 3")
        for x in range(10):
            k.e(f"v_mov_b32_dpp v{treg(x)}, v{ereg(x)} row_shr:{sh} row_mask:0xf bank_mask:0xf bound_ctrl:0")
            k.e(f"v_mov_b32_dpp v{treg(x)+1}, v{ereg(x)+1} row_shr:{sh} row_mask:0xf bank_mask:0xf bound_ctrl:0")
        fd.tick(20)
        k.wait_lg(("mu", st))
        k.raw(".p2align 3")
        for x in range(10): cmul_acc(ereg(x), treg(x), MU[st & 1]+2*x, ereg(x))
        if st < 2: load_mu(st + 2)
        if st == 2:
            for x, (i, h) in enumerate(slots):
                k.ds(f"ds_read_b64 {V(PWv+2*x,2)}, v{vP0 if i < 4 else vP1} offset:{L_PW + ((2*i+h)*128 if i < 4 else h*128)}", "pw")
    k.e("s_mov_b32 exec_lo, 0x80008000\ns_mov_b32 exec_hi, 0x80008000")
    for i in range(5):
        k.ds(f"ds_write_b128 v{vE0 if i < 4 else vE1}, {V(EE+4*i,4)} offset:{L_EX + (16*i if i < 4 else 0)}")
    k.e("s_mov_b64 exec, -1")
    ch = t + 20
    E0, E1, LL, ET, GA = ch, ch+2, ch+4, ch+8, 14
    GA = [ch+8, ch+12, ch+16, ch+20, ch+24]
    k.ds(f"ds_read_b128 {V(LL,4)}, v{vGr} offset:{L_CH+48}", "e")
    k.e(f"v_mov_b32 v{ET+1}, s{sNonce}\nv_mov_b32 v{ET+3}, s{sNonce}")
    fd.flush()
    k.wait_lg()
    k.e("s_barrier")
    k.ds(f"ds_read_b64 {V(E0,2)}, v{vGc} offset:{L_EX}", "e")
    k.ds(f"ds_read_b64 {V(E1,2)}, v{vGc} offset:{L_EX+640}", "e")
    k.wait_lg()
    cmul_acc(E1, E0, LL, E1)
    k.e(f"v_mov_b32 v{ET}, v{E1}\nv_mov_b32 v{ET+2}, v{E1+1}")
    k.vmem(f"buffer_store_dwordx4 {V(ET,4)}, v{vPub}, s[{rWS}:{rWS+3}], s{sH} offen sc1", "e")
    stamp()
    def gather(track):
        for i in range(5):
            tx = f"buffer_load_dwordx4 {V(GA[i],4)}, v{vG2+i}, s[{rWS}:{rWS+3}], s{sHw} offen sc1"
            k.vmem(tx, "ga") if track else k.e(tx)
    k.e("s_nop 1")
    gather(True)
    fd = Feeder(wd[e1:e1 + ew], 1)
    per = ew / 14.0
    done = [0.0]
    def tk_():
        done[0] += per; n_ = int(done[0]); done[0] -= n_; fd.tick(n_); k.raw(".p2align 3")
    WT, W2 = 14, 16
    for x in range(10):
        k.e(f"v_mov_b32_dpp v{treg(x)}, v{ereg(x)} row_shr:1 row_mask:0xf bank_mask:0xf bound_ctrl:0")
        k.e(f"v_mov_b32_dpp v{treg(x)+1}, v{ereg(x)+1} row_shr:1 row_mask:0xf bank_mask:0xf bound_ctrl:0")
    def cmul(d, a, b, tmp):
        k.e(f"v_pk_mul_f32 {V(tmp,2)}, {V(a,2)}, {V(b,2)} op_sel:[0,0] op_sel_hi:[1,0]")
        k.e(f"v_pk_fma_f32 {V(d,2)}, {V(a,2)}, {V(b,2)}, {V(tmp,2)} op_sel:[1,1,0] op_sel_hi:[0,1,1] neg_lo:[0,1,0]")
    tk_()
    for x in range(10): cmul(treg(x), treg(x), LC+4*x+2, ereg(x))
    tk_()
    for x in range(10): cmul(PWv+2*x, PWv+2*x, LC+4*x+2, ereg(x))
    for x, (i, h) in enumerate(slots):
        tk_()
        for j in range(4): cmul(acc(i,j)+2*h, acc(i,j)+2*h, LC+4*x+2, EE+2*j)
    tk_()
    cmul(WT, LL+2, LL+2, W2); cmul(WT, WT, WT, W2); cmul(WT, WT, LL+2, W2); cmul(W2+2, WT, WT, W2)
    k.e(f"""
    v_cmp_eq_u32 vcc, 2, v{WH_}
    v_mov_b32 v{W2}, 1.0
    v_mov_b32 v{W2+1}, 0
    v_cndmask_b32 v{WT}, v{WT}, v{W2+2}, vcc
    v_cndmask_b32 v{WT+1}, v{WT+1}, v{W2+3}, vcc
    v_cmp_eq_u32 vcc, 0, v{WH_}
    v_mul_u32_u24 v{W2+2}, 640, v{WH_}
    v_add_u32 v{vGc}, v{vGc}, v{W2+2}
    v_cndmask_b32 v{WT}, v{WT}, v{W2}, vcc
    v_cndmask_b32 v{WT+1}, v{WT+1}, v{W2+1}, vcc
    v_cndmask_b32 v{E0}, v{W2+1}, v{E0}, vcc
    v_cndmask_b32 v{E0+1}, v{W2+1}, v{E0+1}, vcc
    s_mul_i32 s{sT0}, s{sWC}, 1280
    v_add_u32 v{vE0}, s{sT0}, v{vE0}
    v_add_u32 v{vE1}, s{sT0}, v{vE1}
    """)
    fd.flush()
    h_base()
    k.e(f"""
    s_mul_i32 s{sT1}, s{sT1}, 5
    s_add_u32 s{sT0}, s{sT0}, s{sT1}
    s_add_u32 s{sT0}, s{sT0}, 12
    s_lshl_b32 s{sT0}, s{sT0}, 12
    s_add_u32 s{sH}, s{sH}, s{sT0}
    s_add_u32 s{sB2}, s{sH}, {4*4096}
    s_lshl_b32 s{sT0}, s{sWR}, 3
    s_add_u32 s{sB2}, s{sB2}, s{sT0}
    s_lshl_b32 s{sT0}, s{sWR}, 13
    s_add_u32 s{sH}, s{sH}, s{sT0}
    s_add_u32 s{sB0}, s{sH}, 4096
    """)
    flag_addr()
    stamp(60)
    k.wait_vm("ga")
    k.label("L_carry_chk")
    k.e(f"s_mov_b64 s[{sEx}:{sEx+1}], 0")
    for i in range(5):
        k.e(f"""
        v_cmp_ne_u32 vcc, s{sNonce}, v{GA[i]+1}
        v_cmp_ne_u32 s[{sT0}:{sT1}], s{sNonce}, v{GA[i]+3}
        s_or_b64 vcc, vcc, s[{sT0}:{sT1}]
        s_and_b64 vcc, vcc, s[{sVal[i]}:{sVal[i]+1}]
        s_or_b64 s[{sEx}:{sEx+1}], s[{sEx}:{sEx+1}], vcc
        """)
    k.e(f"""
    s_cmp_eq_u64 s[{sEx}:{sEx+1}], 0
    s_cbranch_scc1 L_carry_done
    s_sub_u32 s{sSpin}, s{sSpin}, 1
    s_cbranch_scc1 L_end
    """)
    gather(False)
    k.e("s_waitcnt vmcnt(0)\ns_branch L_carry_chk")
    k.label("L_carry_done")
    stamp()
    for i in range(5): k.e(f"v_mov_b32 v{GA[i]+1}, v{GA[i]+2}")
    for i in (3, 2, 1, 0): cmul_acc(GA[i], GA[i+1], LL+2, GA[i])
    cmul(GA[0], GA[0], WT, W2)
    cmul_acc(E0, GA[0], LL, E0)
    k.ds(f"ds_write_b64 v{vGc}, {V(GA[0],2)} offset:{L_PW}")
    k.ds(f"ds_write_b64 v{vGc}, {V(E0,2)} offset:{L_PW + 1920}")
    k.wait_lg()
    k.e("s_barrier")
    poll_m()
    PB = [EE, ch, 4]
    for i in range(5):
        for g in range(3):
            k.ds(f"ds_read_b128 {V(PB[g]+4*i,4)}, v{vE0 if i < 4 else vE1} offset:{L_PW + 640*g + (16*i if i < 4 else 0)}", ("pb", i))
    k.raw(".p2align 3")
    for x in range(10):
        if x % 2 == 0: k.wait_lg(("pb", x // 2)); k.raw(".p2align 3")
        k.e(f"v_pk_add_f32 {V(ereg(x),2)}, {V(ereg(x),2)}, {V(PB[1]+2*x,2)}")
        k.e(f"v_pk_add_f32 {V(ereg(x),2)}, {V(ereg(x),2)}, {V(PB[2]+2*x,2)}")
        cmul_acc(treg(x), ereg(x), PWv+2*x, treg(x))
    O = ch
    pend = early[e1 + ew:]
    ej = [op for _, op in pend[:OPT['e2']]]; pend = pend[OPT['e2']:]
    pend = sorted(pend + [(tk, op) for tk in range(12, NREG) for op in wload(tk)], key=lambda x: x[0])
    fd = Feeder(ej, 1)
    for j in range(4):
        fd.tick((len(ej) + 3) // 4)
        k.raw(".p2align 3")
        for x, (i, h) in enumerate(slots):
            prev = treg(x) if j == 0 else acc(i, j-1) + 2*h
            cmul_acc(acc(i,j)+2*h, prev, LC+4*x, acc(i,j)+2*h)
        o = O + (j & 1) * 10
        for i in range(4): k.e(f"v_cvt_pk_bf16_f32 v{o+i}, v{acc(i,j)}, v{acc(i,j)+2}")
        for i in range(4): k.e(f"v_cvt_pk_bf16_f32 v{o+4+i}, -v{acc(i,j)+1}, -v{acc(i,j)+3}")
        k.e(f"v_cvt_pk_bf16_f32 v{o+8}, v{acc(4,j)}, v{acc(4,j)+2}")
        k.e(f"v_cvt_pk_bf16_f32 v{o+9}, -v{acc(4,j)+1}, -v{acc(4,j)+3}")
        k.vmem(f"buffer_store_dwordx4 {V(o,4)}, v{vL16}, s[{rWS}:{rWS+3}], s{sH} offen offset:{j*1024} sc1", "h")
        k.vmem(f"buffer_store_dwordx4 {V(o+4,4)}, v{vL16}, s[{rWS}:{rWS+3}], s{sB0} offen offset:{j*1024} sc1", "h")
        k.vmem(f"buffer_store_dwordx2 {V(o+8,2)}, v{vL16}, s[{rWS}:{rWS+3}], s{sB2} offen offset:{j*1024} sc1", "h")
    fd.flush()
    stamp()
    h_offsets()
    ep_loads()
    k.wait_vm("hf")
    k.e(f"""
    v_cmp_ne_u32 vcc, s{sNonce}, v{vFd}
    v_cmp_ne_u32 s[{sT0}:{sT1}], s{sNonce}, v{vFd+1}
    s_or_b64 vcc, vcc, s[{sT0}:{sT1}]
    s_cmp_eq_u64 vcc, 0
    s_cbranch_scc0 L_slow
    """)
    save = list(k.vm)
    h_first()
    h_flag(False)
    k.e("s_branch L_join")
    k.label("L_slow")
    k.vm = list(save)
    h_flag(False)
    check("hm" + typ, vF, vFd)
    h_first()
    k.label("L_join")
    stamp(7)
    residual()
    stamp(8)
    phase2(typ, pend, NREG, OPT['kw_ssm'])

def poll(tag, vaddr, vd):
    k.e(f"""
    L_poll_{tag}:
    buffer_load_dwordx2 {V(vd,2)}, v{vaddr}, s[{rWS}:{rWS+3}], 0 offen sc1
    s_waitcnt vmcnt(0)
    v_cmp_ne_u32 vcc, s{sNonce}, v{vd}
    v_cmp_ne_u32 s[{sT0}:{sT1}], s{sNonce}, v{vd+1}
    s_or_b64 vcc, vcc, s[{sT0}:{sT1}]
    s_cmp_eq_u64 vcc, 0
    s_cbranch_scc1 L_pollok_{tag}
    s_sub_u32 s{sSpin}, s{sSpin}, 1
    s_cbranch_scc1 L_end
    s_sleep 1
    s_branch L_poll_{tag}
    L_pollok_{tag}:
    """)
    k.vm = []

ACC2 = 160
def acc2(i, s): return ACC2 + (i*4 + s)*4
def phase2(typ, pend, nlds0, kw):
    stamp_n[0] = 10
    def wread(tk):
        kind, base = wreg(tk)
        return [DSF(f"ds_read_b128 {R(kind, base+4*i, 4)}, v{vWL} offset:{((tk - NREG)*5 + i)*1024}", ("wr", tk)) for i in range(5)]
    AD = [88, 89, 90, 91]
    setup = lines(f"""
    v_add_u32 v{vWL}, s{sWLb}, v{vL16}
    v_mul_u32_u24 v{vRw}, {RROW}, v{vN}
    v_lshl_add_u32 v{vRw}, v{vQ}, 4, v{vRw}
    v_add_u32 v{vRw}, s{sWLb}, v{vRw}
    v_lshlrev_b32 v{XO}, 1, v{XO}
    s_lshl_b32 s{sB2}, s{sX}, 1
    s_mov_b32 s{rW}, s{pOut}
    s_mov_b32 s{rW+1}, s{pOut+1}
    s_mov_b32 s{rW+2}, {2048*2560}
    s_mov_b32 s{rW+3}, 0x20000
    """)
    for s in range(4):
        setup += lines(f"s_xor_b32 s{sB0}, s{sW}, {s}\ns_mul_i32 s{sB0}, s{sB0}, {WLW}\ns_add_u32 s{sB0}, s{sB0}, {L_WL + s*RBLK}\nv_add_u32 v{AD[s]}, s{sB0}, v{LO}")
    bgq = list(setup)
    per = -(-len(pend) // kw)
    for tk in range(22):
        assert not [1 for t_, _ in pend if t_ <= tk], (typ, tk)
        if OPT.get("fine2"): stamp(16 + 2*tk)
        k.wait_vm([("w", tk), ("h", tk)] + (["wl"] if tk + 2 == nlds0 else []))
        if tk >= nlds0: k.wait_lg(("wr", tk))
        if OPT.get("fine2"): stamp(17 + 2*tk)
        wk, wb = wreg(tk); ring = HRING[tk % 5]
        m = []
        for s in range(4):
            for i in range(5):
                c = "0" if tk == 0 else V(acc2(i, s), 4)
                m.append(f"v_mfma_f32_16x16x32_bf16 {V(acc2(i,s),4)}, {R(wk, wb+4*i, 4)}, {R(ring[s][0], ring[s][1], 4)}, {c}")
        streams = []
        if tk + 5 == 12:
            k.wait_vm("hf2"); check("hs" + typ, vF + 1, vFd)
        if tk + 5 < 22:
            a_, b_ = hload(tk + 5)
            streams.append((a_, 0, 2, True))
            for s in range(4): streams.append((b_[s], 5*s + 4, 5*s + 4, True))
        if nlds0 <= tk + 2 < 22: streams.append((wread(tk + 2), 0, 14, True))
        mem = []
        if tk == 5: mem += [VM(f"buffer_load_dwordx2 {V(vFd,2)}, v{vF+1}, s[{rWS}:{rWS+3}], 0 offen sc1", "hf2")]
        n_ = 0
        while pend and n_ < per and (pend[0][0] < NREG or nlds0 < 22 or pend[0][0] - NREG < tk):
            mem += flat([pend.pop(0)[1]]); n_ += 1
        streams.append((mem, 1, 18, True))
        if tk == 12: assert not bgq
        if tk == 21:
            wr_ = [DSF(f"ds_write_b128 v{vRw}, {V(acc2(i,s),4)} offset:{s*RBLK + i*64}") for s in range(2) for i in range(5)]
            streams.append((wr_, 8, 19, True))
        streams.append((bgq, 0, 20, False))
        sched(m, streams)
    for i in range(5): k.ds(f"ds_write_b128 v{vRw}, {V(acc2(i,2),4)} offset:{2*RBLK + i*64}")
    stamp()
    for i in range(5): k.ds(f"ds_write_b128 v{vRw}, {V(acc2(i,3),4)} offset:{3*RBLK + i*64}")
    k.wait_lg(); k.e("s_barrier")
    RD = [160 + 16*g for g in range(5)]
    for g in range(5):
        for s in range(4): k.ds(f"ds_read_b128 {V(RD[g]+4*s,4)}, v{AD[s]} offset:{64*g}", ("r", g))
    for g in range(5):
        k.wait_lg(("r", g))
        o = RES + 4*g
        for h in range(2): k.e(f"v_pk_add_f32 {V(RD[g]+2*h,2)}, {V(RD[g]+2*h,2)}, {V(RD[g]+4+2*h,2)}")
        for h in range(2): k.e(f"v_pk_add_f32 {V(RD[g]+8+2*h,2)}, {V(RD[g]+8+2*h,2)}, {V(RD[g]+12+2*h,2)}")
        for h in range(2): k.e(f"v_pk_add_f32 {V(o+2*h,2)}, {V(o+2*h,2)}, {V(RD[g]+2*h,2)}")
        for h in range(2): k.e(f"v_pk_add_f32 {V(o+2*h,2)}, {V(o+2*h,2)}, {V(RD[g]+8+2*h,2)}")
        k.vmem(f"buffer_store_dwordx4 {V(o,4)}, v{XO}, s[{rW}:{rW+3}], s{sB2} offen offset:{64*g} {OPT.get('ost', '')}", "o")
    if OPT.get("spin"):
        ins, n_ = OPT["spin"]
        k.e(f"""
        s_waitcnt vmcnt(0)
        L_spin_{typ}:
        {ins} s[100:101]
        s_waitcnt lgkmcnt(0)
        s_sub_u32 s100, s100, s98
        s_cmp_lt_u32 s100, {n_}
        s_cbranch_scc1 L_spin_{typ}
        """)
    k.e("s_branch L_fin" if OPT["stamps"] else "s_endpgm")

def finish():
    if OPT["stamps"]:
        k.label("L_fin")
        k.wait_vm0()
        stamp(11)
        k.e(f"""
        s_memtime s[100:101]
        s_waitcnt lgkmcnt(0)
        s_sub_u32 s100, s100, s98
        v_writelane_b32 v{vST}, s100, 63
        s_lshl_b32 s{sT0}, s2, 2
        s_add_u32 s{sT0}, s{sT0}, s{sW}
        s_lshl_b32 s{sT0}, s{sT0}, 8
        s_add_u32 s{sT0}, s{sT0}, {WS_ST}
        v_lshlrev_b32 v2, 2, v{vL}
        buffer_store_dword v{vST}, v2, s[{rWS}:{rWS+3}], s{sT0} offen
        """)

prologue()
path_ssm()
if OPT["stamps"]: stamp_n[0] = 1
path_mlp()
finish()
k.label("L_end")
body = k.text()
errs = check_hazards(body)
for e_ in errs: print("HAZARD:", e_, file=sys.stderr)

hdr = open(f"cdna_kernels/{NAME}.s.ref").read().split("\n")
hdr = [l for l in hdr if l.startswith(";") and "@launch" not in l and "Override" not in l and "grid=ceil" not in l]
out = "\n".join(hdr) + f"\n; @launch grid=(256,1,1) block=(256,1,1) lds={L_END}\n"
out += f""".amdgcn_target "amdgcn-amd-amdhsa--gfx950"
.text
.globl {NAME}_kernel
.p2align 8
.type {NAME}_kernel,@function
{NAME}_kernel:
{body}    s_endpgm
L_code_end:
.set CODE_BYTES, L_code_end - {NAME}_kernel - 512
.section .rodata,"a"
.p2align 6
.amdhsa_kernel {NAME}_kernel
  .amdhsa_next_free_vgpr 512
  .amdhsa_next_free_sgpr 102
  .amdhsa_accum_offset 256
  .amdhsa_group_segment_fixed_size 0
  .amdhsa_kernarg_size 136
  .amdhsa_user_sgpr_count 2
  .amdhsa_user_sgpr_kernarg_segment_ptr 1
  .amdhsa_system_sgpr_workgroup_id_x 1
.end_amdhsa_kernel
"""
open(sys.argv[1], "w").write(out)
print("written", sys.argv[1], len(out), "bytes; hazards:", len(errs))
```

```python
import sys, struct
sys.path.insert(0, "dev")
from asmlib import *

NAME = "parallel_sum__ssm_conv_s5__mixer_channel_mlp__prompt"
OPT = dict(stamps=False, stop=None, nt_dma="", nt_pf="", nt_rp="", pf=0, pf0=1, pford=0, post0=10, post=20, e1=35, ew=60, e2=0, post_s=0, cpf=1, rfchk_ssm=99, rfchk_mlp=15, rpst=(4, 5, 6, 7, 8), rpflag=4, kw_mlp=14, kw_ssm=6, util=1.0, rot1=1, rot2=1)
for a_ in sys.argv[2:]:
    k_, v_ = a_.split("=", 1); OPT[k_] = eval(v_)

def f2u(x): return struct.unpack("<I", struct.pack("<f", x))[0]
def hx(x): return "0x%08x" % f2u(x)

WS_EP = 0
WS_H = 4096
WS_WP = 12 << 20
WS_E = 16 << 20
WS_RF = 17 << 20
WS_HF = (17 << 20) + 65536
WS_RS = 18 << 20
WS_ST = 20 << 20
WS_SIZE = 24 << 20
OOB = 0x4000000
L_TOK = 0; L_CH = 2048; L_PW = 7168; L_EX = 17408; L_EX2 = L_EX + 1280
L_STG = 20480; L_X = 40960; L_W = 90112; L_END = 163840
XS = 16384; WSL = 24576
L_SC = L_EX2; SCW = 384
WLW = 35840; RROW = 336; RBLK = 16 * RROW
L_WL = L_STG
NST = 10
pX, pLre, pLim, pBre, pBim, pCre, pCim, pLdt = 16, 18, 20, 22, 24, 26, 28, 30
pDsk, pBx, pW1, pB1, pW2, pB2, pOut, pDbg, pWs = 32, 34, 36, 38, 40, 42, 44, 46, 48
sW, sWR, sWC, sMT, sNT, sTYP, sHALF, sDT = 3, 4, 5, 6, 7, 8, 8, 7
sML, sI8 = 9, 10
sNonce = 11; sT0, sT1, sT2, sT3 = 12, 13, 14, 15
sKs = 50; sPF = 51
rX, rW, rWS, rT, rT2 = 52, 56, 60, 64, 68
sX, sLX, sLW, sB0, sB2, sPFs, sUnit, sRpSrc, sLR, sSpin = 72, 73, 74, 75, 76, 77, 78, 79, 80, 81
sK = 82; sEx = 84
sH, sHw, sWp, sDis = 86, 87, 88, 89
sST = 90
sRpD = 92
sSig = 97
sWa, sHa, sLim = 18, 22, 26
sDX, sDW = 77, 51
rPF = rT2
vL, vN, vQ = 1, 2, 3
vDX0, vDX1, vXa, vXb = 4, 5, 6, 7
vDW = 8
vPF, vDR, vJunk, vNc = 10, 11, 12, 13
vWA = 14
vRA = 22
vL16 = 26
vRS = 27
vB1 = 28
vT = 40
vST = 99
ACC = 160
def acc(i, j): return ACC + (i * 4 + j) * 4
aF = [0, 40]
aONE = 80; aCS = 84

k = Asm()
k.strict = OPT.get('strict', False)
k.lenient = OPT['stamps']
stamp_n = [0]
cur = ["ssm"]
def stamp(i=None):
    if i is None:
        i = stamp_n[0]; stamp_n[0] += 1
    if OPT.get("probe") == (cur[0], i):
        k.e(f"s_memrealtime s[{sST}:{sST+1}]"); k.e("s_waitcnt lgkmcnt(0)"); k.lg = []
    if not OPT["stamps"]: return
    k.e(f"{'s_memtime' if OPT.get('cyc') else 's_memrealtime'} s[{sST}:{sST+1}]"); k.e("s_waitcnt lgkmcnt(0)"); k.lg = []
    k.e(f"v_writelane_b32 v{vST}, s{sST}, {i}")
def srd(r, ptr, size):
    k.e(f"s_mov_b32 s{r}, s{ptr}\ns_mov_b32 s{r+1}, s{ptr+1}\ns_mov_b32 s{r+2}, {size}\ns_mov_b32 s{r+3}, 0x20000")

class F:
    def __init__(self, fn, cost=1, ds=False, sep=False, ta=0): self.fn, self.cost, self.ds, self.sep, self.ta = fn, cost, ds, sep, ta
    def __call__(self): self.fn()
def lines(s):
    out = []
    for l in (x.strip() for x in s.split("\n")):
        if not l: continue
        parts = l.split(" | ")
        c = sum(2 if x.split()[0] in TRANS else 1 for x in parts)
        out.append(F(lambda l=l: k.e(l.replace(" | ", "\n")), c))
    return out
def VM(text, tag, sep=False, ta=66): return F(lambda: k.vmem(text, tag), 2, sep=sep, ta=ta)
def DSF(text, tag=None): return F(lambda: k.ds(text, tag), 1, ds=True)
def sched(main, streams, start=0):
    n = len(main)
    st = []
    for items, g0, g1, must in streams:
        cnt = len(items) if must else min(len(items), must if isinstance(must, int) and must > 1 else len(items))
        tot = sum(f.cost for f in items[:cnt]) or 1
        tg = []; acc_ = 0
        for f in items[:cnt]:
            tg.append(g0 + (g1 - g0) * acc_ / tot if must else g0); acc_ += f.cost
        st.append(dict(items=items, tg=tg, last=-1, must=must))
    for g, m in enumerate(main):
        k.e(m)
        if g < start: continue
        room = 2; hasds = False
        prog = True
        while prog and room > 0:
            prog = False
            for x in st:
                if not x["tg"] or x["tg"][0] > g: continue
                f = x["items"][0]
                if f.sep and x["last"] == g: continue
                if f.ds and hasds: continue
                if f.cost > room and room < 2 and not (not x["must"] and g - x["last"] >= 3): continue
                x["items"].pop(0); x["tg"].pop(0); x["last"] = g
                f(); room -= f.cost; hasds |= f.ds; prog = True
                break
    for x in st:
        if x["must"]:
            over = len(x["tg"])
            if over and OPT.get("show"): print("overflow", over)
            while x["tg"]:
                f = x["items"].pop(0); x["tg"].pop(0)
                if f.sep: k.e("s_nop 0")
                f()
def merge(*ls):
    ls = [l for l in ls if l]
    if not ls: return []
    if len(ls) == 1: return list(ls[0])
    items = []
    for li, l in enumerate(ls):
        for i, f in enumerate(l): items.append(((i + 0.5) / len(l), li, i, f))
    items.sort(key=lambda x: (x[0], x[1]))
    return [x[3] for x in items]

def prologue():
    t = vT
    k.e(f"""
    s_cmp_ge_u32 s2, 256
    s_cbranch_scc1 L_end
    s_load_dwordx16 s[16:31], s[0:1], 0
    s_load_dwordx16 s[32:47], s[0:1], 64
    s_load_dwordx2 s[48:49], s[0:1], 128
    v_lshrrev_b32 v{t}, 6, v0
    v_and_b32 v{vL}, 63, v0
    v_readfirstlane_b32 s{sW}, v{t}
    v_and_b32 v{vN}, 15, v{vL}
    v_lshrrev_b32 v{vQ}, 4, v{vL}
    v_lshlrev_b32 v{vL16}, 4, v{vL}
    s_and_b32 s{sT0}, s2, 7
    s_lshr_b32 s{sT1}, s2, 3
    s_lshr_b32 s{sTYP}, s{sT1}, 4
    s_bfe_u32 s{sML}, s{sT1}, 0x20002
    s_lshr_b32 s{sMT}, s{sT0}, 1
    s_lshl_b32 s{sT2}, s{sML}, 2
    s_add_u32 s{sMT}, s{sMT}, s{sT2}
    s_and_b32 s{sT2}, s{sT1}, 3
    s_lshl_b32 s{sI8}, s{sTYP}, 2
    s_add_u32 s{sI8}, s{sI8}, s{sT2}
    s_and_b32 s{sNT}, s{sT0}, 1
    s_lshl_b32 s{sNT}, s{sNT}, 2
    s_add_u32 s{sNT}, s{sNT}, s{sT2}
    s_lshr_b32 s{sWR}, s{sW}, 1
    s_and_b32 s{sWC}, s{sW}, 1
    s_xor_b32 s{sKs}, s{sWR}, s{sWC}
    s_mov_b32 s{sSpin}, 0x40000
    s_and_b32 s{sT2}, s2, 127
    s_sub_u32 s{sT3}, 255, s2
    s_cmp_eq_u32 s{sTYP}, 1
    s_cselect_b32 s{sUnit}, s{sT2}, s{sT3}
    s_cmp_lt_u32 s{sUnit}, 176
    s_cselect_b32 s{sUnit}, s{sUnit}, s{sT2}
    s_cselect_b32 s{sDis}, 0, {OOB}
    """)
    if OPT["stamps"]:
        k.e(f"v_mov_b32 v{vST}, 0\n{'s_memtime' if OPT.get('cyc') else 's_memrealtime'} s[{sST}:{sST+1}]\ns_memtime s[98:99]"); stamp_n[0] = 1
    if OPT.get("spin"): k.e(f"{OPT['spin'][0]} s[98:99]\ns_waitcnt lgkmcnt(0)\ns_mov_b32 s{sST}, s98")
    if OPT["cpf"]:
        k.e(f"""
        s_getpc_b64 s[{sEx}:{sEx+1}]
        s_lshr_b32 s{sT1}, s2, 3
        s_lshl_b32 s{sT1}, s{sT1}, 2
        s_add_u32 s{sT1}, s{sT1}, s{sW}
        s_lshl_b32 s{sT1}, s{sT1}, 9
        v_and_b32 v{t}, 3, v{vL}
        v_lshlrev_b32 v{t}, 7, v{t}
        v_add_u32 v{t}, s{sT1}, v{t}
        v_min_u32 v{t}, CODE_BYTES, v{t}
        global_load_dword v{vJunk}, v{t}, s[{sEx}:{sEx+1}]
        """)
    k.e(f"""
    v_lshrrev_b32 v{t}, 3, v{vL}
    v_and_b32 v{t+1}, 7, v{vL}
    v_lshrrev_b32 v{t+2}, 1, v{t}
    v_xor_b32 v{t+2}, v{t+1}, v{t+2}
    v_mul_u32_u24 v{t+3}, 5120, v{t}
    v_lshl_add_u32 v{vDX0}, v{t+2}, 4, v{t+3}
    v_xor_b32 v{vDX1}, 64, v{vDX0}
    v_add_u32 v{vDX1}, 40960, v{vDX1}
    s_lshl_b32 s{sT0}, s{sMT}, 7
    s_lshl_b32 s{sT1}, s{sWR}, 6
    s_add_u32 s{sT0}, s{sT0}, s{sT1}
    s_lshl_b32 s{sT1}, s{sWC}, 1
    s_add_u32 s{sT0}, s{sT0}, s{sT1}
    s_mul_i32 s{sX}, s{sT0}, 1280
    s_lshl_b32 s{sLX}, s{sW}, 12
    s_lshl_b32 s{sT2}, s{sKs}, 2
    v_add_u32 v{t+4}, s{sT2}, v{vQ}
    v_lshrrev_b32 v{t+5}, 1, v{vN}
    v_xor_b32 v{t+5}, v{t+4}, v{t+5}
    v_lshlrev_b32 v{t+5}, 4, v{t+5}
    v_lshl_add_u32 v{t+5}, v{vN}, 7, v{t+5}
    s_lshl_b32 s{sT1}, s{sWC}, 13
    s_add_u32 s{sT1}, s{sT1}, {L_X}
    v_add_u32 v{vXa}, s{sT1}, v{t+5}
    v_xor_b32 v{vXb}, 64, v{vXa}
    s_cmp_eq_u32 s{sTYP}, 1
    s_cbranch_scc1 L_mlp
    """)

issued = {}
mark = []
def dma(vo, rs, so, imm, sl, tgt, tag, fl, pre=None):
    def f1():
        k.e(f"s_add_u32 m0, s{sl}, {tgt - imm}")
        if pre: k.e(pre)
    def f2():
        if isinstance(tag, tuple): issued[tag[1]] = issued.get(tag[1], 0) + 1
        k.vmem(f"buffer_load_dwordx4 v{vo}, s[{rs}:{rs+3}], s{so} offen offset:{imm} {fl} lds", tag)
    return [F(f1, 2 if pre else 1), F(f2, 2, sep=True, ta=66)]
def run(ops):
    for op in ops:
        for f in (op if isinstance(op, list) else [op]):
            if f.sep: k.e("s_nop 0")
            f()
def flat(ops): return [f for op in ops for f in (op if isinstance(op, list) else [op])]
def advance(typ):
    d = 64*3072 if typ == "mlp" else 128
    return (f"s_cmp_eq_u32 s{sSig}, 9 | s_cselect_b32 s{sDX}, {-9*128 & 0xffffffff}, s{sDX} | s_cselect_b32 s{sDW}, {-9*d & 0xffffffff}, s{sDW} | s_cselect_b32 s{sSig}, -1, s{sSig}\n"
            f"s_add_u32 s{sX}, s{sX}, s{sDX}\ns_add_u32 s{sB0}, s{sB0}, s{sDW}\ns_add_u32 s{sB2}, s{sB2}, s{sDW}\n"
            f"s_add_u32 s{sSig}, s{sSig}, 1\ns_movk_i32 s{sDX}, 128\ns_mov_b32 s{sDW}, {d}")
def rot_setup(typ):
    d = 64*3072 if typ == "mlp" else 128
    k.e(f"""
    s_mul_i32 s{sT0}, s{sI8}, 5
    s_lshr_b32 s{sT0}, s{sT0}, 2
    s_mul_i32 s{sT1}, s{sML}, 5
    s_lshr_b32 s{sT1}, s{sT1}, 1
    s_add_u32 s{sT0}, s{sT0}, s{sT1}
    s_and_b32 s{sT1}, s{sMT}, 3
    s_add_u32 s{sSig}, s{sT0}, s{sT1}
    s_sub_u32 s{sT0}, s{sSig}, 10
    s_cmp_ge_u32 s{sSig}, 10
    s_cselect_b32 s{sSig}, s{sT0}, s{sSig}
    s_mul_i32 s{sSig}, s{sSig}, {OPT['rot1']}
    s_lshl_b32 s{sT0}, s{sSig}, 7
    s_add_u32 s{sX}, s{sX}, s{sT0}
    s_mul_i32 s{sT0}, s{sSig}, {d}
    s_add_u32 s{sB0}, s{sB0}, s{sT0}
    s_add_u32 s{sB2}, s{sB2}, s{sT0}
    s_movk_i32 s{sDX}, 128
    s_mov_b32 s{sDW}, {d}
    """)
def dma_x(stage, g):
    return dma(vDX0 + (g & 1), rX, sX, (g >> 1) * 1280, sLX, L_X + (stage % 3) * XS + g * 1024, ("st", stage), OPT["nt_dma"])
def dma_w(typ, stage, g):
    base = L_W + (stage % 3) * WSL
    if typ == "mlp":
        rg, cg = g // 3, g % 3
        return dma(vDW + rg, rW, sB2 if rg else sB0, cg * 128, sLW, base + cg * 8192 + rg * 1024, ("st", stage), OPT["nt_dma"])
    imm = 2560 if (g < 4 and g & 1) else 0
    return dma(vDW + (1 if g == 4 else 0), rW, sB2 if g in (2, 3) else sB0, imm, sLW, base + g * 2048, ("st", stage), OPT["nt_dma"])
def dma_stage(typ, stage):
    nw = 6 if typ == "mlp" else 5
    ops = merge([dma_x(stage, g) for g in range(4)], [dma_w(typ, stage, g) for g in range(nw)])
    if stage > 0: ops[0] = lines(advance(typ)) + ops[0]
    return ops
def pf(a):
    def f():
        if not OPT["pf"]: return
        k.vmem(f"buffer_load_dword v{vJunk}, v{vPF}, s[{rPF}:{rPF+3}], s{sPF} offen {OPT['nt_pf']}", "pf")
        k.e(f"s_add_u32 s{sPF}, s{sPF}, s{sPFs}")
    return F(f, 3)

def frag_reads(typ, stage, blk, fs):
    slot = stage % 3
    nr = 6 if typ == "mlp" else 5
    vx = vXa if blk == 0 else vXb
    xr = [DSF(f"ds_read_b128 {A(aF[fs] + 24 + 4*j, 4)}, v{vx} offset:{slot*XS + j*2048}") for j in range(4)]
    wr_ = []
    for i in range(nr):
        if typ == "mlp":
            for h in range(2):
                wr_.append(DSF(f"ds_read_b64_tr_b16 {A(aF[fs] + 4*i + 2*h, 2)}, v{vWA + blk*4 + (i & 3)} offset:{slot*WSL + (i >> 2)*8192 + h*512}"))
        else:
            wr_.append(DSF(f"ds_read_b128 {A(aF[fs] + 4*i, 4)}, v{vWA + blk} offset:{slot*WSL + i*2048}"))
    return merge(xr, wr_)

def mfmas(typ, stage, blk, fs):
    nr = 6 if typ == "mlp" else 5
    first = stage == 0
    out = []
    Af = lambda i: A(aF[fs] + 4*i, 4)
    Bf = lambda j: A(aF[fs] + 24 + 4*j, 4)
    for i in range(nr):
        for j in range(4):
            c = "0" if (first and blk == 0) else V(acc(i, j), 4)
            out.append(f"v_mfma_f32_16x16x32_bf16 {V(acc(i,j),4)}, {Af(i)}, {Bf(j)}, {c}")
    if blk == 1:
        for i in range(nr):
            out.append(f"v_mfma_f32_16x16x32_bf16 {A(aCS+4*i,4)}, {Af(i)}, {A(aONE,4)}, {'0' if first else A(aCS+4*i,4)}")
    if blk == 1 and stage == NST - 1: out = out[-nr:] + out[:-nr]
    return out

XR = 124
def start_loads(typ):
    t = vT
    k.e("s_waitcnt lgkmcnt(0)")
    if OPT["stamps"]: k.e(f"v_writelane_b32 v{vST}, s{sST}, 0")
    stamp(12)
    k.e(f"""
    s_or_b32 s{sT0}, s2, s{sW}
    s_cmp_lg_u32 s{sT0}, 0
    s_cbranch_scc1 L_nononce_{typ}
    s_memrealtime s[{sT0}:{sT1}]
    s_waitcnt lgkmcnt(0)
    s_or_b32 s{sT0}, s{sT0}, 1
    v_mov_b32 v{t+8}, s{sT0}
    v_mov_b32 v{t+9}, 0
    global_store_dword v{t+9}, v{t+8}, s[{pDbg}:{pDbg+1}] sc1
    L_nononce_{typ}:
    """)
    srd(rX, pX, 2048 * 1280)
    if typ == "mlp": srd(rW, pW1, 640 * 3072)
    else:
        k.e(f"""
        s_cmp_eq_u32 s{sWC}, 0
        s_cselect_b32 s{rW}, s{pBre}, s{pBim}
        s_cselect_b32 s{rW+1}, s{pBre+1}, s{pBim+1}
        s_mov_b32 s{rW+2}, {640*1280}
        s_mov_b32 s{rW+3}, 0x20000
        """)
    run(dma_stage(typ, 0))
    stamp(13)
    srd(rWS, pWs, WS_SIZE)
    if OPT.get('wsoff'): k.e(f"s_add_u32 s{rWS}, s{rWS}, {OPT['wsoff'] << 20}\ns_addc_u32 s{rWS+1}, s{rWS+1}, 0")
def xr_setup():
    k.e(f"""
    s_lshl_b32 s{sT0}, s{sTYP}, 3
    s_add_u32 s{sT0}, s{sT0}, s{sNT}
    s_lshl_b32 s{sT0}, s{sT0}, 2
    s_add_u32 s{sT0}, s{sT0}, s{sW}
    s_lshl_b32 s{sT0}, s{sT0}, 1
    s_lshl_b32 s{sT1}, s{sMT}, 7
    s_add_u32 s{sHw}, s{sT0}, s{sT1}
    s_mul_i32 s{sH}, s{sHw}, 1280
    v_lshrrev_b32 v{XR+10}, 5, v{vL}
    v_mul_u32_u24 v{XR+10}, 1280, v{XR+10}
    v_and_b32 v{XR+11}, 31, v{vL}
    v_lshl_add_u32 v{XR+10}, v{XR+11}, 3, v{XR+10}
    """)
def xr_loads():
    return [VM(f"buffer_load_dwordx2 {V(XR+2*i,2)}, v{XR+10}, s[{rX}:{rX+3}], s{sH} offen offset:{256*i}", "xr", ta=36) for i in range(5)]

def pf_setup(typ):
    t = vT + 10
    k.e(f"""
    v_mul_u32_u24 v{t}, 52, v{vL}
    v_lshrrev_b32 v{t}, 10, v{t}
    v_mul_u32_u24 v{t+1}, 20, v{t}
    v_sub_u32 v{t+1}, v{vL}, v{t+1}
    s_lshl_b32 s{sT0}, s{sMT}, 7
    s_lshl_b32 s{sT1}, s{sI8}, 4
    s_add_u32 s{sT0}, s{sT0}, s{sT1}
    s_mul_i32 s{sT0}, s{sT0}, 1280
    s_add_u32 s{sT0}, s{sT0}, {128*OPT['pf0']}
    """)
    if typ == "mlp":
        k.e(f"""
        s_lshl_b32 s{sT1}, s{sML}, 4
        s_add_u32 s{sT1}, s{sT1}, {64*OPT['pf0']}
        s_mul_i32 s{sT1}, s{sT1}, 3072
        s_mul_i32 s{sT2}, s{sNT}, 384
        s_add_u32 s{sT1}, s{sT1}, s{sT2}
        s_lshl_b32 s{sT2}, s{sW}, 7
        s_add_u32 s{sT1}, s{sT1}, s{sT2}
        s_cmp_eq_u32 s{sW}, 3
        s_cselect_b32 s{sPF}, s{sT0}, s{sT1}
        s_mov_b32 s{sT2}, {64*3072}
        s_cselect_b32 s{sT2}, 128, s{sT2}
        s_mov_b32 s{sT3}, 3072
        s_cselect_b32 s{sT3}, 1280, s{sT3}
        s_mov_b32 s{sT0}, 16
        """)
    else:
        k.e(f"""
        s_mul_i32 s{sT1}, s{sNT}, 80
        s_mul_i32 s{sT2}, s{sML}, 20
        s_add_u32 s{sT1}, s{sT1}, s{sT2}
        s_mul_i32 s{sT1}, s{sT1}, 1280
        s_add_u32 s{sT1}, s{sT1}, {128*OPT['pf0']}
        s_cmp_eq_u32 s{sW}, 3
        s_cselect_b32 s{sPF}, s{sT0}, s{sT1}
        s_cselect_b32 s{sT0}, 16, 20
        s_cmp_eq_u32 s{sW}, 2
        s_cselect_b32 s{sT0}, 0, s{sT0}
        s_mov_b32 s{sT2}, 128
        s_mov_b32 s{sT3}, 1280
        """)
    k.e(f"""
    s_mul_i32 s{sPFs}, s{sT2}, 3
    v_mul_lo_u32 v{vPF}, v{t}, s{sT2}
    v_mul_lo_u32 v{t+2}, v{t+1}, s{sT3}
    v_add_u32 v{vPF}, v{vPF}, v{t+2}
    v_cmp_gt_u32 vcc, s{sT0}, v{t+1}
    v_cmp_gt_u32 s[{sT2}:{sT3}], 60, v{vL}
    s_and_b64 vcc, vcc, s[{sT2}:{sT3}]
    v_mov_b32 v{t+2}, {OOB}
    s_nop 0
    v_cndmask_b32 v{vPF}, v{t+2}, v{vPF}, vcc
    """)

def repack_setup(tag):
    t = vT
    k.e(f"""
    v_lshrrev_b32 v{t}, 3, v{vL}
    v_and_b32 v{t+1}, 7, v{vL}
    v_mul_u32_u24 v{t}, 1280, v{t}
    v_lshl_add_u32 v{t}, v{t+1}, 4, v{t}
    v_or_b32 v{vDR}, s{sDis}, v{t}
    v_or_b32 v{vRS}, s{sDis}, v{vL16}
    s_lshl_b32 s{sLR}, s{sW}, 10
    s_and_b32 s{sT0}, s{sUnit}, 1
    s_lshr_b32 s{sT1}, s{sUnit}, 1
    s_mov_b32 s{rT+3}, 0x20000
    s_cmp_lt_u32 s{sUnit}, 96
    s_cbranch_scc0 L_rpC_{tag}
    s_mov_b32 s{rT}, s{pW2}
    s_mov_b32 s{rT+1}, s{pW2+1}
    s_mov_b32 s{rT+2}, {1536*1280}
    s_lshl_b32 s{sT2}, s{sT1}, 2
    s_add_u32 s{sT2}, s{sT2}, s{sW}
    s_mul_i32 s{sRpSrc}, s{sT2}, {8*1280}
    s_mul_i32 s{sT2}, s{sT1}, 5462
    s_lshr_b32 s{sT2}, s{sT2}, 16
    s_mul_i32 s{sT2}, s{sT2}, 10
    s_add_u32 s{sT1}, s{sT1}, s{sT2}
    s_mul_i32 s{sT1}, s{sT1}, 5120
    s_add_u32 s{sT1}, s{sT1}, {WS_WP}
    s_mul_i32 s{sT2}, s{sT0}, 20
    s_add_u32 s{sT2}, s{sT2}, s{sW}
    """)
    for i in range(5):
        k.e(f"""
        s_mul_i32 s{sT3}, s{sT2}, 13108
        s_lshr_b32 s{sT3}, s{sT3}, 16
        s_mul_i32 s{sT3}, s{sT3}, 435
        s_add_u32 s{sT3}, s{sT3}, s{sT2}
        s_lshl_b32 s{sT3}, s{sT3}, 10
        s_add_u32 s{sRpD+i}, s{sT3}, s{sT1}
        s_add_u32 s{sT2}, s{sT2}, 4
        """)
    k.e(f"""
    v_lshrrev_b32 v{t}, 2, v{vN}
    v_lshl_add_u32 v{t}, v{vQ}, 2, v{t}
    v_lshlrev_b32 v{t}, 7, v{t}
    v_and_b32 v{t+1}, 3, v{vN}
    v_lshl_add_u32 v{t}, v{t+1}, 3, v{t}
    s_lshl_b32 s{sT2}, s{sW}, 5
    s_add_u32 s{sT2}, s{sT2}, {L_STG}
    v_add_u32 v{vRA}, s{sT2}, v{t}
    s_branch L_rpJ_{tag}
    L_rpC_{tag}:
    s_sub_u32 s{sT1}, s{sT1}, 48
    s_cmp_eq_u32 s{sWR}, 0
    s_cselect_b32 s{rT}, s{pCre}, s{pCim}
    s_cselect_b32 s{rT+1}, s{pCre+1}, s{pCim+1}
    s_mov_b32 s{rT+2}, {640*1280}
    s_lshl_b32 s{sT2}, s{sT1}, 1
    s_add_u32 s{sT2}, s{sT2}, s{sWC}
    s_mul_i32 s{sRpSrc}, s{sT2}, {8*1280}
    s_mul_i32 s{sT2}, s{sT1}, 13108
    s_lshr_b32 s{sT2}, s{sT2}, 16
    s_mul_i32 s{sT2}, s{sT2}, 435
    s_add_u32 s{sT1}, s{sT1}, s{sT2}
    s_lshl_b32 s{sT2}, s{sT0}, 1
    s_add_u32 s{sT2}, s{sT2}, s{sWR}
    s_mul_i32 s{sT2}, s{sT2}, 110
    s_add_u32 s{sT1}, s{sT1}, s{sT2}
    s_mul_i32 s{sT2}, s{sWC}, 25
    s_add_u32 s{sT1}, s{sT1}, s{sT2}
    s_add_u32 s{sT1}, s{sT1}, 60
    s_lshl_b32 s{sT1}, s{sT1}, 10
    s_add_u32 s{sRpD}, s{sT1}, {WS_WP}
    s_add_u32 s{sRpD+1}, s{sRpD}, 5120
    s_add_u32 s{sRpD+2}, s{sRpD}, 10240
    s_add_u32 s{sRpD+3}, s{sRpD}, 15360
    s_add_u32 s{sRpD+4}, s{sRpD}, 20480
    s_mul_i32 s{sT2}, s{sW}, 160
    v_lshlrev_b32 v{t+2}, 7, v{vN}
    v_add_u32 v{t+2}, {L_STG}, v{t+2}
    """)
    for x, (off, sh) in enumerate(((0, 4), (80, 4), (64, 2), (144, 2))):
        k.e(f"""
        s_add_u32 s{sT3}, s{sT2}, {off}
        v_lshl_add_u32 v{t}, v{vQ}, {sh}, s{sT3}
        v_lshrrev_b32 v{t+1}, 7, v{t}
        v_and_b32 v{t}, 127, v{t}
        v_lshl_add_u32 v{t}, v{t+1}, 12, v{t}
        v_add_u32 v{vRA+x}, v{t}, v{t+2}
        """)
    k.e(f"""
    L_rpJ_{tag}:
    s_mul_i32 s{sT0}, s{sT0}, 640
    s_add_u32 s{sRpSrc}, s{sRpSrc}, s{sT0}
    """)
def repack_dma():
    return [dma(vDR, rT, sRpSrc, g * 128, sLR, L_STG + g * 4096, "rp", OPT["nt_rp"]) for g in range(5)]
RP = 136
def repack_read(tag):
    def f():
        s = f"s_cmp_lt_u32 s{sUnit}, 96\ns_cbranch_scc0 L_rqC_{tag}\n"
        for i in range(5):
            for h in range(2): s += f"ds_read_b64_tr_b16 {V(RP+4*i+2*h,2)}, v{vRA} offset:{i*4096 + h*2048}\n"
        s += f"""s_branch L_rqJ_{tag}
        L_rqC_{tag}:
        ds_read_b128 {V(RP,4)}, v{vRA}
        ds_read_b128 {V(RP+4,4)}, v{vRA} offset:2048
        ds_read_b128 {V(RP+8,4)}, v{vRA+1}
        ds_read_b128 {V(RP+12,4)}, v{vRA+1} offset:2048
        ds_read_b32 v{RP+16}, v{vRA+2}
        ds_read_b32 v{RP+17}, v{vRA+2} offset:2048
        ds_read_b32 v{RP+18}, v{vRA+3}
        ds_read_b32 v{RP+19}, v{vRA+3} offset:2048
        L_rqJ_{tag}:
        """
        k.e(s)
    return [F(f, 12)]
def repack_store():
    return [VM(f"buffer_store_dwordx4 {V(RP+4*i,4)}, v{vRS}, s[{rWS}:{rWS+3}], s{sRpD+i} offen sc1", ("rps", i), ta=240) for i in range(5)]
def repack_flag():
    t = vT
    fl = lines(f"""
    v_mov_b32 v{t}, s{sNonce}
    v_mov_b32 v{t+1}, s{sNonce}
    s_lshl_b32 s{sT0}, s{sUnit}, 7
    s_add_u32 s{sT0}, s{sT0}, {WS_RF}
    s_cmp_eq_u32 s{sW}, 0 | s_cselect_b32 s{sT1}, s{sDis}, {OOB}
    v_lshlrev_b32 v{t+2}, 26, v{vL}
    v_or_b32 v{t+2}, s{sT1}, v{t+2}
    """)
    return fl + [VM(f"buffer_store_dwordx2 {V(t,2)}, v{t+2}, s[{rWS}:{rWS+3}], s{sT0} offen sc1", "rf", ta=20)]

def bfr(d, s): return f"v_cvt_pk_bf16_f32 v{d}, v{s}, v{s}\nv_and_b32 v{d}, 0xffff0000, v{d}\n"
def nonce_load():
    return lines(f"v_mov_b32 v{vNc}, 0") + [VM(f"global_load_dword v{vNc}, v{vNc}, s[{pDbg}:{pDbg+1}] sc1", "nc", ta=20)]
def rowstat_job(tag):
    t = vT + 20
    S_, Q, MEAN, VAR, S1, X, Y = t, t+1, t+2, t+3, t+4, t+5, t+6
    G0, G1 = t+8, t+12
    M1, A1, A2, AM = G0, G0+2, G1, G1+2
    def dots():
        k.wait_vm("xr")
        s = f"v_mov_b32 v{X}, 0x3f803f80\nv_mov_b32 v{S_}, 0\nv_mov_b32 v{Q}, 0\n"
        for i in range(10): s += f"v_dot2c_f32_bf16 v{S_}, v{XR+i}, v{X}\nv_dot2c_f32_bf16 v{Q}, v{XR+i}, v{XR+i}\n"
        s += "s_nop 2\n"
        k.e(s)
    fl = [F(dots, 24)]
    for d in ("row_shr:1", "row_shr:2", "row_shr:4", "row_shr:8", "row_bcast:15"):
        rm = "0xa" if "bcast" in d else "0xf"
        fl.append(F(lambda d=d, rm=rm: k.e(f"v_add_f32_dpp v{S_}, v{S_}, v{S_} {d} row_mask:{rm} bank_mask:0xf bound_ctrl:0"), 1, sep=True))
        fl.append(F(lambda d=d, rm=rm: k.e(f"v_add_f32_dpp v{Q}, v{Q}, v{Q} {d} row_mask:{rm} bank_mask:0xf bound_ctrl:0"), 1))
    fl += lines(f"""
    v_mul_f32 v{MEAN}, {hx(1/640)}, v{S_}
    v_mul_f32 v{VAR}, {hx(1/640)}, v{Q}
    v_fma_f32 v{VAR}, -v{MEAN}, v{MEAN}, v{VAR}
    v_max_f32 v{VAR}, 0, v{VAR}
    {bfr(M1, MEAN)}{bfr(X, VAR)}
    v_add_f32 v{X}, {hx(1e-5)}, v{X}
    {bfr(X, X)}
    v_sqrt_f32 v{X}, v{X}
    v_sub_f32 v{Y}, v{MEAN}, v{M1}
    {bfr(S1, X)}
    v_rcp_f32 v{A1}, v{S1}
    s_nop 0
    v_mul_f32 v{Y}, v{Y}, v{A1}
    v_mul_f32 v{X}, v{VAR}, v{A1}
    {bfr(Y, Y)}
    v_mul_f32 v{X}, v{X}, v{A1}
    {bfr(X, X)}
    v_add_f32 v{X}, {hx(1e-5)}, v{X}
    {bfr(X, X)}
    v_sqrt_f32 v{X}, v{X}
    v_fma_f32 v{Y}, v{Y}, v{S1}, v{M1}
    {bfr(X, X)}
    v_mul_f32 v{X}, v{X}, v{S1}
    v_rcp_f32 v{A2}, v{X}
    v_and_b32 v{X}, 31, v{vL}
    v_mul_f32 v{AM}, v{A2}, v{Y}
    v_cmp_eq_u32 vcc, 31, v{X} | v_and_b32 v{X}, 32, v{vL} | v_mov_b32 v{Y}, {OOB} | v_cndmask_b32 v{X}, v{Y}, v{X}, vcc
    s_lshl_b32 s{sT0}, s{sHw}, 5
    s_add_u32 s{sT0}, s{sT0}, {WS_RS}
    """)
    def nonce():
        k.wait_vm("nc")
        k.e(f"""
        v_readfirstlane_b32 s{sNonce}, v{vNc}
        s_cmp_lg_u32 s{sNonce}, 0
        s_cbranch_scc1 L_ncok_{tag}
        L_ncl_{tag}:
        s_sleep 1
        global_load_dword v{vNc}, v{Y}, s[{pDbg}:{pDbg+1}] sc1
        s_sub_u32 s{sSpin}, s{sSpin}, 1
        s_cbranch_scc1 L_end
        s_waitcnt vmcnt(0)
        v_readfirstlane_b32 s{sNonce}, v{vNc}
        s_cmp_eq_u32 s{sNonce}, 0
        s_cbranch_scc1 L_ncl_{tag}
        L_ncok_{tag}:
        s_nop 0
        """)
    fl += lines(f"v_mov_b32 v{Y}, 0") + [F(nonce, 4)]
    fl += lines(f"""
    v_mov_b32 v{G0+1}, s{sNonce}
    v_mov_b32 v{G0+3}, s{sNonce}
    v_mov_b32 v{G1+1}, s{sNonce}
    v_mov_b32 v{G1+3}, s{sNonce}
    """)
    fl.append(VM(f"buffer_store_dwordx4 {V(G0,4)}, v{X}, s[{rWS}:{rWS+3}], s{sT0} offen sc1", "rs", ta=20))
    fl.append(VM(f"buffer_store_dwordx4 {V(G1,4)}, v{X}, s[{rWS}:{rWS+3}], s{sT0} offen offset:16 sc1", "rs", ta=20))
    return fl
RSV = 124
def rowstat_fetch():
    fl = lines(f"""
    s_lshl_b32 s{sT0}, s{sMT}, 12
    s_add_u32 s{sT0}, s{sT0}, {WS_RS}
    v_lshlrev_b32 v{RSV+4}, 4, v0
    v_add_u32 v{RSV+4}, s{sT0}, v{RSV+4}
    """)
    return fl + [VM(f"buffer_load_dwordx4 {V(RSV,4)}, v{RSV+4}, s[{rWS}:{rWS+3}], 0 offen sc1", "rsv")]

def ta_of(op): return sum(f.ta for f in flat([op]))
def main_loop(typ, jobs, vq, bg):
    q = [(max(0, 2*st - 5), max(2*st - 4 + (x >= 5) - OPT.get('lag', 0), x >= 5), op) for st in range(2, NST) for x, op in enumerate(dma_stage(typ, st))]
    q = sorted(q + vq, key=lambda x: x[1])
    credit = [OPT.get("credit0", 0)]
    def take(bi, n):
        credit[0] = min(credit[0] + n * 17 * OPT["util"], n * 17 + 100) - sum(ta_of(x) for x in jobs.get(("pre", bi), []) + jobs.get(bi, []))
        out = []
        while True:
            c = [x for x in q if x[0] <= bi]
            if not c or (credit[0] < 33 and c[0][1] > bi): break
            q.remove(c[0]); out.append(c[0][2]); credit[0] -= ta_of(c[0][2])
        if OPT.get('show'): print(typ, bi, len(out), len(jq), len(bg), int(credit[0]), dict(issued))
        return flat(out)
    jq = []
    k.wait_vm(("st", 0)); k.e("s_barrier")
    stamp()
    run(frag_reads(typ, 0, 0, 0))
    def block(bi, m, reads, n):
        run(jobs.get(("pre", bi), []))
        jq.extend(jobs.get(bi, []))
        d = take(bi, n)
        n = len(m)
        if bi == 2*NST - 1: reads, r0 = jobs["last"], 12
        else: r0 = 0
        sched(m, [(d, 0, n - 1, True), (reads, r0, n - OPT.get("rend", 6), True), (jq, 0, n, False), (bg if bi >= OPT.get("bg0", 12) else [], 0, n, False)])
    for s in range(NST):
        k.wait_lg()
        m = mfmas(typ, s, 0, 0)
        block(2*s, m, frag_reads(typ, s, 1, 1), len(m))
        k.wait_lg()
        m = mfmas(typ, s, 1, 1)
        k.e(m[0]); k.e(m[1])
        if s + 1 < NST:
            if OPT.get("fine"): stamp(16 + 3*s)
            assert issued.get(s + 1, 0) == (10 if typ == "mlp" else 9), (typ, s, issued)
            for tg in jobs.get(("wait", s), []): assert tg in k.seen, tg
            k.wait_vm([("st", s + 1)] + jobs.get(("wait", s), []))
            if OPT.get("fine"): stamp(17 + 3*s)
            k.e("s_barrier")
        block(2*s + 1, m[2:], frag_reads(typ, s + 1, 0, 0) if s + 1 < NST else [], len(m))
    assert not jq and len(bg) < 12, (len(jq), len(bg))
    run(bg)
    stamp()
    if OPT["stop"] == "loop": k.e("s_branch L_fin")
    return [x[2] for x in q]

WSLOT = [("a", 108 + 20*x) for x in range(7)] + [("a", 20*x) for x in range(5)] + [("v", 100 + 20*x) for x in range(3)]
NREG = 15
def wreg(tk): return WSLOT[tk] if tk < NREG else WSLOT[tk - NREG]
def kaddr(dst, base, tk, stride, extra=0):
    g = 0 if tk < 12 else 1
    return lines(f"s_cmp_gt_u32 s{sLim+g}, {tk} | s_cselect_b32 s{dst}, s{base+2*g}, s{base+2*g+1}\ns_add_u32 s{dst}, s{dst}, {tk*stride + extra}")
def wload(tk):
    kind, base = wreg(tk)
    out = []
    for i in range(5):
        op = []
        if i == 0: op += kaddr(sT2, sWa, tk, 5120)
        if i == 4: op += lines(f"s_add_u32 s{sT2}, s{sT2}, 4096")
        op.append(VM(f"buffer_load_dwordx4 {R(kind, base+4*i, 4)}, v{vL16}, s[{rWS}:{rWS+3}], s{sT2} offen offset:{(i & 3)*1024} sc1", ("w", tk)))
        out.append(op)
    return out
def wdma():
    out = []
    for x in range(35):
        tk, i = NREG + x // 5, x % 5
        op = kaddr(sT2, sWa, tk, 5120) if i == 0 else lines(f"s_add_u32 s{sT2}, s{sT2}, 1024")
        out.append(op + lines(f"s_add_u32 m0, s{sWLb}, {x*1024}") + [VM(f"buffer_load_dwordx4 v{vL16}, s[{rWS}:{rWS+3}], s{sT2} offen sc1 lds", "wl", sep=True)])
    return out
RFV = 156
sWLb, sTx = 34, 35
def p2_addr():
    vF, vFd = RFV, RFV + 2
    k.e(f"""
    v_min_u32 v{vF}, 16, v{vL}
    s_mul_i32 s{sT0}, s{sW}, 24
    s_lshr_b32 s{sT1}, s{sDT}, 2
    s_add_u32 s{sT0}, s{sT0}, s{sT1}
    s_mul_i32 s{sT1}, s{sDT}, 10
    s_add_u32 s{sT1}, s{sT1}, {96 - 24}
    s_add_u32 s{sT1}, s{sT1}, s{sWR}
    v_cmp_gt_u32 vcc, 12, v{vF}
    v_mov_b32 v{vT}, s{sT1}
    v_mov_b32 v{vT+1}, s{sT0}
    v_cndmask_b32 v{vT}, v{vT}, v{vT+1}, vcc
    v_lshl_add_u32 v{vF}, v{vF}, 1, v{vT}
    v_lshlrev_b32 v{vF}, 7, v{vF}
    v_add_u32 v{vF}, {WS_RF}, v{vF}
    s_mul_i32 s{sWp}, s{sDT}, 88
    s_mul_i32 s{sT0}, s{sW}, 22
    s_add_u32 s{sWp}, s{sWp}, s{sT0}
    s_mul_i32 s{sWp}, s{sWp}, 5120
    s_add_u32 s{sWp}, s{sWp}, {WS_WP}
    s_lshl_b32 s{sT1}, s{sMT}, 1
    s_add_u32 s{sT1}, s{sT1}, s{sHALF}
    s_mul_i32 s{sT1}, s{sT1}, 88
    s_add_u32 s{sT1}, s{sT1}, s{sT0}
    s_lshl_b32 s{sTx}, s{sT1}, 12
    s_add_u32 s{sTx}, s{sTx}, {WS_H}
    s_and_b32 s{sT2}, s{sDT}, 3
    s_lshl_b32 s{sT3}, s{sML}, 1
    s_add_u32 s{sT3}, s{sT3}, s{sHALF}
    s_mul_i32 s{sWLb}, s{sW}, {WLW}
    s_add_u32 s{sWLb}, s{sWLb}, {L_WL}
    """)
    for g, (n_, ma, mb) in enumerate(((12, 12, 6), (10, 10, 5))):
        k.e(f"""
        s_mul_i32 s{sT0}, s{sT2}, {ma}
        s_lshr_b32 s{sT0}, s{sT0}, 2
        s_mul_i32 s{sT1}, s{sT3}, {mb}
        s_lshr_b32 s{sT1}, s{sT1}, 2
        s_add_u32 s{sT0}, s{sT0}, s{sT1}
        s_sub_u32 s{sT1}, s{sT0}, {n_}
        s_cmp_ge_u32 s{sT0}, {n_}
        s_cselect_b32 s{sT0}, s{sT1}, s{sT0}
        s_mul_i32 s{sT0}, s{sT0}, {OPT['rot2']}
        s_sub_u32 s{sLim+g}, {12*g + n_}, s{sT0}
        s_mul_i32 s{sT1}, s{sT0}, 5120
        s_add_u32 s{sWa+2*g}, s{sWp}, s{sT1}
        s_sub_u32 s{sWa+2*g+1}, s{sWa+2*g}, {n_*5120}
        s_lshl_b32 s{sT1}, s{sT0}, 12
        s_add_u32 s{sHa+2*g}, s{sTx}, s{sT1}
        s_sub_u32 s{sHa+2*g+1}, s{sHa+2*g}, {n_*4096}
        """)
def rflag_fetch():
    return [VM(f"buffer_load_dwordx2 {V(RFV+2,2)}, v{RFV}, s[{rWS}:{rWS+3}], 0 offen sc1", "rfv", ta=66)]
def check(tag, vaddr, vd, width=2, second=1):
    k.e(f"""
    L_chk_{tag}:
    v_cmp_ne_u32 vcc, s{sNonce}, v{vd + (1 if width == 4 else 0)}
    v_cmp_ne_u32 s[{sT0}:{sT1}], s{sNonce}, v{vd + (3 if width == 4 else 1)}
    s_or_b64 vcc, vcc, s[{sT0}:{sT1}]
    s_cmp_eq_u64 vcc, 0
    s_cbranch_scc1 L_chkok_{tag}
    s_sub_u32 s{sSpin}, s{sSpin}, 1
    s_cbranch_scc1 L_end
    buffer_load_dwordx{width} {V(vd,width)}, v{vaddr}, s[{rWS}:{rWS+3}], 0 offen sc1
    s_waitcnt vmcnt(0)
    s_branch L_chk_{tag}
    L_chkok_{tag}:
    """)
def common_jobs(typ):
    j = {}
    j[0] = nonce_load()
    j[2] = rowstat_job(typ)
    r0 = OPT["rpst"][0]
    j[("wait", (r0 - 2) // 2)] = ["rp"]
    j[("pre", r0 - 1)] = repack_read(typ)
    for f, bi in zip(repack_store(), OPT["rpst"]): j[("pre", bi)] = j.get(("pre", bi), []) + [f]
    fs = OPT["rpflag"]
    j[("wait", fs)] = [("rps", 4)]
    j[2*fs + 1] = repack_flag()
    bi = OPT["rfchk_" + typ]
    rf = rflag_fetch()
    vq = [(0, 0, op) for op in xr_loads()] + [(0, 1.5, op) for op in repack_dma()]
    stats_jobs(typ, j)
    j[12] = j.get(12, []) + warm_params()
    if bi < 20:
        j[("pre", bi - 1)] = j.get(("pre", bi - 1), []) + rf
        def chk():
            k.wait_vm("rfv"); check("rf_" + typ, RFV, RFV + 2)
        j[("pre", bi)] = j.get(("pre", bi), []) + [F(chk, 6)]
        vq += [(bi, 99, op) for tk in range(7) for op in wload(tk)]
    else:
        j[17] = rf
    return j, vq

TK = vT + 8
SA = 76
def stats_jobs(typ, j):
    nr = 6 if typ == "mlp" else 5
    j[OPT.get('rsb', 13)] = j.get(OPT.get('rsb', 13), []) + lines(f"""
    s_mul_i32 s{sT0}, s{sW}, {SCW}
    s_add_u32 s{sT0}, s{sT0}, {L_SC}
    v_lshlrev_b32 v{SA+1}, 4, v{vQ}
    v_add_u32 v{SA}, s{sT0}, v{SA+1}
    s_mul_i32 s{sT0}, s{sWR}, {2*SCW}
    s_add_u32 s{sT0}, s{sT0}, {L_SC}
    v_add_u32 v{SA+1}, s{sT0}, v{SA+1}
    s_lshl_b32 s{sT0}, s{sWC}, 10
    v_lshlrev_b32 v{SA+2}, 6, v{vN}
    v_add_u32 v{SA+2}, s{sT0}, v{SA+2}
    v_lshlrev_b32 v{SA+3}, 3, v0
    """) + rowstat_fetch()
    def chk():
        k.wait_vm("rsv")
        check("rs_" + typ, RSV + 4, RSV, 4)
        k.ds(f"ds_write2_b32 v{SA+3}, v{RSV}, v{RSV+2} offset0:{L_TOK//4} offset1:{L_TOK//4+1}")
    j[("pre", 16)] = j.get(("pre", 16), []) + [F(chk, 8)]
    j[18] = j.get(18, []) + [DSF(f"ds_read_b128 {V(TK+4*x,4)}, v{SA+2} offset:{L_TOK + x*16}") for x in range(4)]
    def wr():
        k.e("s_mov_b32 exec_lo, 0x00010001\ns_mov_b32 exec_hi, 0x00010001")
        for i in range(nr): k.ds(f"ds_write_b128 v{SA}, {A(aCS+4*i,4)} offset:{i*64}")
        k.e("s_mov_b64 exec, -1")
    j["last"] = [F(wr, 8, ds=True)]
def stats(typ):
    nr = 6 if typ == "mlp" else 5
    CS = vT + 24; P2 = 100
    k.wait_lg(); k.e("s_barrier")
    for i in range(nr):
        k.ds(f"ds_read_b128 {V(P2+4*i,4)}, v{SA+1} offset:{SCW+i*64}", ("cs", i))
    for i in (0, 1, 2, 4, 5, 3)[:nr + 1]:
        if i < nr: k.ds(f"ds_read_b128 {V(CS+4*i,4)}, v{SA+1} offset:{i*64}", ("cs", i))
    return TK, CS, P2
def stats_sum(typ, CS, P2):
    k.wait_lg()
    for i in range(6 if typ == "mlp" else 5):
        for h in range(2):
            k.e(f"v_pk_add_f32 {V(CS+4*i+2*h,2)}, {V(CS+4*i+2*h,2)}, {V(P2+4*i+2*h,2)}")

class Feeder:
    def __init__(self, jobs, every): self.jobs, self.every, self.n = list(jobs), every, 0
    def tick(self, n=1):
        self.n += n
        while self.n >= self.every and self.jobs:
            self.n -= self.every; run([self.jobs.pop(0)])
    def flush(self):
        while self.jobs: run([self.jobs.pop(0)])

def h_base():
    k.e(f"""
    s_lshl_b32 s{sT0}, s{sMT}, 1
    s_add_u32 s{sT0}, s{sT0}, s{sWC}
    s_mul_i32 s{sH}, s{sT0}, {88*4096}
    s_add_u32 s{sH}, s{sH}, {WS_H}
    s_lshr_b32 s{sT0}, s{sNT}, 1
    s_mul_i32 s{sT0}, s{sT0}, 22
    s_and_b32 s{sT1}, s{sNT}, 1
    """)
HRING = [[("v", 40 + 4*s) for s in range(4)], [("v", 56 + 4*s) for s in range(4)], [("v", 72 + 4*s) for s in range(4)],
         [("v", 240 + 4*s) for s in range(4)], [("a", 100), ("a", 104), ("a", 248), ("a", 252)]]
vF, vFd, vHs = 28, 30, 32
vWL, vRw, XO, LO = 36, 37, 38, 39
RES = 4
def flag_addr():
    k.e(f"""
    v_bfe_u32 v{vFd}, v{vL}, 1, 1
    s_lshl_b32 s{sT0}, s{sMT}, 4
    s_lshl_b32 s{sT1}, s{sW}, 1
    s_add_u32 s{sT1}, s{sT0}, s{sT1}
    s_add_u32 s{sT1}, s{sT1}, 8
    v_add_u32 v{vFd}, s{sT1}, v{vFd}
    v_lshlrev_b32 v{vFd}, 7, v{vFd}
    v_and_b32 v{vF}, 1, v{vL}
    v_lshl_add_u32 v{vF}, v{vF}, 5, v{vFd}
    s_lshl_b32 s{sT1}, s{sHALF}, 4
    s_add_u32 s{sT1}, s{sT1}, {WS_HF}
    v_add_u32 v{vF}, s{sT1}, v{vF}
    v_add_u32 v{vF+1}, -1024, v{vF}
    s_lshl_b32 s{sT1}, s{sTYP}, 3
    s_add_u32 s{sT0}, s{sT0}, s{sT1}
    s_add_u32 s{sT0}, s{sT0}, s{sNT}
    s_lshl_b32 s{sT0}, s{sT0}, 7
    s_lshl_b32 s{sT1}, s{sW}, 4
    s_add_u32 s{sT0}, s{sT0}, s{sT1}
    s_add_u32 s{sLW}, s{sT0}, {WS_HF}
    """)
def h_offsets():
    for s in range(4):
        k.e(f"s_xor_b32 s{sT0}, s{sW}, {s}\ns_lshl_b32 s{sT0}, s{sT0}, 10\nv_add_u32 v{vHs+s}, s{sT0}, v{vL16}")
def poll_m(): k.vmem(f"buffer_load_dwordx2 {V(vFd,2)}, v{vF}, s[{rWS}:{rWS+3}], 0 offen sc1", "hf")
FL = 96
def h_flag(track=True):
    k.e(f"v_mov_b32 v{FL}, s{sNonce}\nv_mov_b32 v{FL+1}, s{sNonce}\nv_lshlrev_b32 v{FL+2}, 26, v{vL}")
    k.wait_vm("h")
    tx = f"buffer_store_dwordx2 {V(FL,2)}, v{FL+2}, s[{rWS}:{rWS+3}], s{sLW} offen sc1"
    k.vmem(tx, "fl") if track else k.e(tx)
EX_, ED, EB, TKv, U = 100, 110, 120, 130, 132
def ep_loads():
    k.e(f"""
    s_lshl_b32 s{sT0}, s{sMT}, 7
    s_lshl_b32 s{sT1}, s{sHALF}, 6
    s_add_u32 s{sT0}, s{sT0}, s{sT1}
    s_add_u32 s{sT0}, s{sT0}, s{sW}
    s_mul_i32 s{sX}, s{sT0}, 1280
    s_mul_i32 s{sT0}, s{sDT}, 160
    s_add_u32 s{sX}, s{sX}, s{sT0}
    v_lshrrev_b32 v{U}, 2, v{vL}
    v_and_b32 v{U+1}, 3, v{vL}
    v_lshlrev_b32 v{U+2}, 3, v{U+1}
    v_mul_u32_u24 v{XO}, 5120, v{U}
    v_add_u32 v{XO}, v{XO}, v{U+2}
    v_mul_u32_u24 v{LO}, {RROW}, v{U}
    v_lshl_add_u32 v{LO}, v{U+1}, 4, v{LO}
    v_lshlrev_b32 v{U}, 6, v{U}
    s_lshl_b32 s{sT1}, s{sHALF}, 10
    v_add_u32 v{U}, s{sT1}, v{U}
    s_lshl_b32 s{sT1}, s{sW}, 4
    v_add_u32 v{U}, s{sT1}, v{U}
    """)
    k.ds(f"ds_read_b64 {V(TKv,2)}, v{U} offset:{L_TOK}", "tk")
    for g in range(5): k.vmem(f"buffer_load_dwordx2 {V(EX_+2*g,2)}, v{XO}, s[{rX}:{rX+3}], s{sX} offen offset:{32*g}", "ep")
    for reg, ptr in ((ED, pDsk), (EB, pB2)):
        srd(rT, ptr, 1280)
        for g in range(5): k.vmem(f"buffer_load_dwordx2 {V(reg+2*g,2)}, v{U+2}, s[{rT}:{rT+3}], s{sT0} offen offset:{32*g}", "ep")
def residual(fd=None):
    k.wait_vm("ep"); k.wait_lg()
    for g in range(5):
        if fd: fd.tick(1)
        xf, df, bf_ = U + 4, U + 8, U + 12
        for src, dst in ((EX_ + 2*g, xf), (ED + 2*g, df), (EB + 2*g, bf_)):
            for h in range(2):
                k.e(f"v_lshlrev_b32 v{dst+2*h}, 16, v{src+h}\nv_and_b32 v{dst+2*h+1}, 0xffff0000, v{src+h}")
        A_ = [RES + 4*g, RES + 4*g + 2]
        def rnd():
            for a in A_: k.e(f"v_cvt_pk_bf16_f32 v{a+1}, v{a}, v{a+1}")
            for a in A_: k.e(f"v_lshlrev_b32 v{a}, 16, v{a+1}\nv_and_b32 v{a+1}, 0xffff0000, v{a+1}")
        for h, a in enumerate(A_): k.e(f"v_pk_add_f32 {V(a,2)}, {V(xf+2*h,2)}, {V(TKv,2)} op_sel:[0,0] op_sel_hi:[1,0] neg_lo:[0,1] neg_hi:[0,1]")
        rnd()
        for h, a in enumerate(A_): k.e(f"v_pk_mul_f32 {V(a,2)}, {V(a,2)}, {V(TKv,2)} op_sel:[0,1] op_sel_hi:[1,1]")
        rnd()
        for h, a in enumerate(A_): k.e(f"v_pk_mul_f32 {V(a,2)}, {V(a,2)}, {V(df+2*h,2)}")
        rnd()
        for h, a in enumerate(A_): k.e(f"v_pk_add_f32 {V(a,2)}, {V(a,2)}, {V(xf+2*h,2)}")
        for h, a in enumerate(A_): k.e(f"v_pk_add_f32 {V(a,2)}, {V(a,2)}, {V(bf_+2*h,2)}")
def hload(tk):
    ring = HRING[tk % 5]
    return kaddr(sT3, sHa, tk, 4096), [[VM(f"buffer_load_dwordx4 {R(ring[s][0], ring[s][1], 4)}, v{vHs+s}, s[{rWS}:{rWS+3}], s{sT3} offen sc1", ("h", tk))] for s in range(4)]
def h_first():
    for tk in range(5):
        a_, b_ = hload(tk); run(a_); run(b_)
def warm_params():
    return lines(f"v_mov_b32 v{vJunk}, 0") + [VM(f"global_load_dword v{vNc}, v{vL16}, s[{pDsk}:{pDsk+1}]", "jk", ta=20), VM(f"global_load_dword v{vNc}, v{vL16}, s[{pB2}:{pB2+1}]", "jk", ta=20),
            VM(f"global_load_dword v{vNc}, v{vJunk}, s[{pDsk}:{pDsk+1}] offset:1152", "jk", ta=10), VM(f"global_load_dword v{vNc}, v{vJunk}, s[{pB2}:{pB2+1}] offset:1152", "jk", ta=10),
            VM(f"global_load_dword v{vNc}, v{vJunk}, s[{pDsk}:{pDsk+1}] offset:1024", "jk", ta=10), VM(f"global_load_dword v{vNc}, v{vJunk}, s[{pB2}:{pB2+1}] offset:1024", "jk", ta=10)]

def ones():
    k.e(f"v_mov_b32 v{vT+6}, 0x3f803f80")
    for i in range(4): k.e(f"v_accvgpr_write_b32 a{aONE+i}, v{vT+6}")

def path_mlp():
    typ = "mlp"; t = vT
    k.label("L_mlp")
    issued.clear(); k.seen.clear()
    k.vm = []; k.lg = []
    k.e(f"""
    v_and_b32 v{t+2}, 2, v{t}
    v_xor_b32 v{t+2}, v{t+1}, v{t+2}
    v_mul_u32_u24 v{t+3}, 3072, v{t}
    v_lshl_add_u32 v{vDW}, v{t+2}, 4, v{t+3}
    v_xor_b32 v{vDW+1}, 64, v{vDW}
    s_mul_i32 s{sB0}, s{sW}, {16*3072}
    s_mul_i32 s{sT0}, s{sNT}, 384
    s_add_u32 s{sB0}, s{sB0}, s{sT0}
    s_add_u32 s{sB2}, s{sB0}, {8*3072}
    s_lshl_b32 s{sLW}, s{sW}, 11
    """)
    k.e(f"""
    v_lshrrev_b32 v{t}, 2, v{vN}
    v_lshl_add_u32 v{t+1}, v{vQ}, 3, v{t}
    v_lshlrev_b32 v{t+1}, 7, v{t+1}
    v_and_b32 v{t+2}, 3, v{vN}
    v_lshl_add_u32 v{t+1}, v{t+2}, 3, v{t+1}
    v_lshrrev_b32 v{t}, 1, v{t}
    v_and_b32 v{t+2}, 1, v{vQ}
    v_lshl_add_u32 v{t}, v{t+2}, 1, v{t}
    s_lshl_b32 s{sT0}, s{sKs}, 12
    s_add_u32 s{sT0}, s{sT0}, {L_W}
    v_add_u32 v{t+1}, s{sT0}, v{t+1}
    s_mul_i32 s{sT2}, s{sWR}, 6
    """)
    for i in range(4):
        k.e(f"""
        s_add_u32 s{sT3}, s{sT2}, {i}
        s_lshr_b32 s{sT0}, s{sT3}, 2
        s_lshl_b32 s{sT0}, s{sT0}, 13
        s_and_b32 s{sT3}, s{sT3}, 3
        v_xor_b32 v{t+2}, s{sT3}, v{t}
        v_lshl_add_u32 v{t+2}, v{t+2}, 5, v{t+1}
        v_add_u32 v{vWA+i}, s{sT0}, v{t+2}
        v_xor_b32 v{vWA+4+i}, 4096, v{vWA+i}
        """)
    Kc = 2 * 0.7978845608028654 * 1.4426950408889634
    k.e(f"s_mov_b32 s{sK}, {hx(-Kc*0.044715)}\ns_mov_b32 s{sK+1}, {hx(-Kc)}")
    ones()
    xr_setup()
    rot_setup(typ)
    start_loads(typ)
    repack_setup(typ)
    stamp(15)
    run(dma_stage(typ, 1))
    p2_addr()
    stamp(14)
    jobs, vq = common_jobs(typ)
    b1j = lines(f"""
    s_mov_b32 s{rT2}, s{pB1}
    s_mov_b32 s{rT2+1}, s{pB1+1}
    s_mov_b32 s{rT2+2}, 3072
    s_mov_b32 s{rT2+3}, 0x20000
    s_mul_i32 s{sT0}, s{sNT}, 384
    s_mul_i32 s{sT1}, s{sWR}, 192
    s_add_u32 s{sT0}, s{sT0}, s{sT1}
    v_lshlrev_b32 v{t}, 3, v{vQ}
    """) + [VM(f"buffer_load_dwordx2 {V(vB1+2*i,2)}, v{t}, s[{rT2}:{rT2+3}], s{sT0} offen offset:{32*i}", "b1", ta=25) for i in range(6)]
    jobs[7] = b1j
    left = main_loop(typ, jobs, vq, [])
    TK, CS, P2 = stats(typ)
    stamp()
    pend = [(6 - (len(left) - 1 - x) // 5, op) for x, op in enumerate(left)] + [(tk, op) for tk in range(7, 22) for op in wload(tk)]
    ne = OPT.get("ne_mlp", 0)
    fd = Feeder([op for _, op in pend[:ne]], 35 * 12 // max(1, ne))
    pend = pend[ne:]
    h_base()
    k.e(f"""
    s_mul_i32 s{sT1}, s{sT1}, 6
    s_add_u32 s{sT0}, s{sT0}, s{sT1}
    s_mul_i32 s{sT1}, s{sWR}, 3
    s_add_u32 s{sT0}, s{sT0}, s{sT1}
    s_lshl_b32 s{sT0}, s{sT0}, 12
    s_add_u32 s{sH}, s{sH}, s{sT0}
    """)
    stats_sum(typ, CS, P2)
    B = 100
    for i in range(6):
        for h in range(2):
            k.e(f"v_lshlrev_b32 v{B+4*i+2*h}, 16, v{vB1+2*i+h}\nv_and_b32 v{B+4*i+2*h+1}, 0xffff0000, v{vB1+2*i+h}")
    TM = 124
    OUT = [88, 92]
    n_ = 0
    for u in range(3):
        for j in range(4):
            o = OUT[n_ & 1]; n_ += 1
            k.raw(".p2align 3")
            prs = [(2*u + ii, h) for ii in range(2) for h in range(2)]
            Z = [acc(i, j) + 2*h for i, h in prs]
            T1 = [TM + 2*x for x in range(4)]; T2 = [TM + 8 + 2*x for x in range(4)]
            for x, (i, h) in enumerate(prs):
                k.e(f"v_pk_fma_f32 {V(T1[x],2)}, {V(CS+4*i+2*h,2)}, {V(TK+4*j+2,2)}, {V(B+4*i+2*h,2)} op_sel:[0,1,0] op_sel_hi:[1,1,1] neg_lo:[0,1,0] neg_hi:[0,1,0]")
            for x in range(4):
                k.e(f"v_pk_fma_f32 {V(Z[x],2)}, {V(Z[x],2)}, {V(TK+4*j+2,2)}, {V(T1[x],2)} op_sel:[0,0,0] op_sel_hi:[1,0,1]")
            fd.tick(12)
            for x in range(4): k.e(f"v_pk_mul_f32 {V(T1[x],2)}, {V(Z[x],2)}, {V(Z[x],2)}")
            for x in range(4): k.e(f"v_pk_fma_f32 {V(T1[x],2)}, {V(T1[x],2)}, s[{sK}:{sK+1}], s[{sK}:{sK+1}] op_sel:[0,0,1] op_sel_hi:[1,0,1]")
            for x in range(4): k.e(f"v_pk_mul_f32 {V(T1[x],2)}, {V(T1[x],2)}, {V(Z[x],2)}")
            for x in range(4): k.e(f"v_exp_f32 v{T2[x]}, v{T1[x]}\nv_exp_f32 v{T2[x]+1}, v{T1[x]+1}")
            fd.tick(12)
            for x in range(4): k.e(f"v_pk_add_f32 {V(T2[x],2)}, {V(T2[x],2)}, 1.0 op_sel_hi:[1,0]")
            for x in range(4): k.e(f"v_rcp_f32 v{T2[x]}, v{T2[x]}\nv_rcp_f32 v{T2[x]+1}, v{T2[x]+1}")
            if n_ < 12: fd.tick(12)
            for x in range(4): k.e(f"v_pk_mul_f32 {V(Z[x],2)}, {V(Z[x],2)}, {V(T2[x],2)}")
            for x in range(4): k.e(f"v_cvt_pk_bf16_f32 v{o+x}, v{Z[x]}, v{Z[x]+1}")
            k.vmem(f"buffer_store_dwordx4 {V(o,4)}, v{vL16}, s[{rWS}:{rWS+3}], s{sH} offen offset:{j*1024} sc1", "h")
        if u < 2: k.e(f"s_add_u32 s{sH}, s{sH}, 4096")
    fd.flush()
    stamp()
    ep_loads()
    nmax = len([1 for t_, _ in pend if t_ < 12])
    n0 = min(OPT['post0'], nmax); n1 = min(n0 + OPT['post'], nmax)
    run([op for _, op in pend[:n0]])
    flag_addr()
    h_flag()
    poll_m()
    h_offsets()
    ops = [op for _, op in pend[n0:n1]]
    fd = Feeder([flat(ops[x::1][:0]) for x in range(0)], 1)
    cut = [ops[(x * len(ops)) // 5:((x + 1) * len(ops)) // 5] for x in range(5)]
    residual(Feeder([flat(c) for c in cut], 1))
    stamp(7)
    k.wait_vm("hf"); check("hm" + typ, vF, vFd)
    stamp(8)
    h_first()
    phase2(typ, pend[n1:], 22, OPT['kw_mlp'])

def cmul_acc(d, a, b, c):
    k.e(f"v_pk_fma_f32 {V(d,2)}, {V(a,2)}, {V(b,2)}, {V(c,2)} op_sel:[0,0,0] op_sel_hi:[1,0,1]")
    k.e(f"v_pk_fma_f32 {V(d,2)}, {V(a,2)}, {V(b,2)}, {V(d,2)} op_sel:[1,1,0] op_sel_hi:[0,1,1] neg_lo:[0,1,0]")

PR = 100
def masked(m, ins):
    def f():
        k.e(f"s_mov_b32 exec_lo, {m}\ns_mov_b32 exec_hi, {m}"); k.ds(ins); k.e("s_mov_b64 exec, -1")
    return F(f, 4, ds=True)
def power(KK, al, be, t):
    x, y, c_, s_ = t+10, t+11, t+12, t+13
    return lines(f"""
    v_mul_f32 v{y}, v{KK}, v{be}
    v_mul_f32 v{x}, v{KK}, v{al}
    v_fract_f32 v{y}, v{y}
    v_cos_f32 v{c_}, v{y}
    v_sin_f32 v{s_}, v{y}
    v_exp_f32 v{x}, v{x}
    s_nop 0
    v_mul_f32 v{t+14}, v{x}, v{c_}
    v_mul_f32 v{t+15}, v{x}, v{s_}
    """)
def table_a():
    t = 80; CH_ = vB1 + 10
    lr, li, dt, al, be, KK, AD = PR, PR+1, PR+2, t+8, t+9, t, t+1
    x, y, c_, s_ = t+10, t+11, t+12, t+13
    LOG2E = 1.4426950408889634
    fl = lines(f"""
    v_lshlrev_b32 v{dt}, 16, v{dt}
    v_lshlrev_b32 v{lr}, 16, v{lr}
    v_mul_f32 v{dt}, {hx(LOG2E)}, v{dt}
    v_exp_f32 v{dt}, v{dt}
    v_lshlrev_b32 v{li}, 16, v{li}
    {bfr(dt, dt)}
    v_mul_f32 v{al}, v{dt}, v{lr}
    v_mul_f32 v{be}, v{dt}, v{li}
    v_mul_f32 v{al}, {hx(LOG2E)}, v{al}
    v_mul_f32 v{be}, 0.15915494, v{be}
    v_lshlrev_b32 v{KK}, 6, v{CH_+1}
    v_max_u32 v{KK}, 1, v{KK}
    v_cvt_f32_u32 v{KK}, v{KK}
    v_lshlrev_b32 v{AD}, 3, v{CH_}
    """)
    fl += lines(f"v_lshrrev_b32 v{t+2}, 4, v0\nv_lshlrev_b32 v{t+3}, 3, v{t+2}")
    fl.append(DSF(f"ds_write_b64 v{AD}, {V(al,2)} offset:{L_EX}"))
    fl.append(F(lambda: mark.append(1), 0))
    fl += power(KK, al, be, t)
    fl += lines(f"""
    v_lshlrev_b32 v{AD}, 3, v{CH_+1}
    v_cmp_eq_u32 vcc, 0, v{CH_+1} | v_add_u32 v{AD}, 40, v{AD} | v_mov_b32 v{x}, 0 | v_cndmask_b32 v{AD}, v{AD}, v{x}, vcc
    v_lshl_add_u32 v{AD}, v{CH_}, 6, v{AD}
    """)
    fl.append(DSF(f"ds_write_b64 v{AD}, {V(t+14,2)} offset:{L_CH}"))
    fl += lines(f"""
    v_mul_f32 v{y}, v{lr}, v{lr}
    v_add_f32 v{x}, -1.0, v{t+14}
    v_fma_f32 v{y}, v{li}, v{li}, v{y}
    v_rcp_f32 v{y}, v{y}
    v_mul_f32 v{c_}, v{x}, v{lr}
    v_fma_f32 v{c_}, v{t+15}, v{li}, v{c_}
    v_mul_f32 v{s_}, v{t+15}, v{lr}
    v_fma_f32 v{s_}, -v{x}, v{li}, v{s_}
    v_add_f32 v{y}, v{y}, v{y}
    v_mul_f32 v{t+16}, v{c_}, v{y}
    v_mul_f32 v{t+17}, v{s_}, v{y}
    """)
    def f():
        k.e(f"v_cmp_eq_u32 vcc, 0, v{CH_+1}\ns_mov_b64 exec, vcc"); k.ds(f"ds_write_b64 v{AD}, {V(t+16,2)} offset:{L_CH + 8}"); k.e("s_mov_b64 exec, -1")
    fl.append(F(f, 4, ds=True))
    fl.append(F(lambda: mark.append(2), 0))
    return fl
def table_rd():
    t = 80
    return [DSF(f"ds_read_b64 {V(PR+4+2*u,2)}, v{t+3} offset:{L_EX + u*128}") for u in range(5)]
def table_b():
    t = 80
    K1, APW, R1 = t, t+4, t+5
    fl = lines(f"""
    v_lshlrev_b32 v{K1}, 2, v{vN}
    v_cvt_f32_u32 v{K1}, v{K1}
    v_lshlrev_b32 v{APW}, 7, v{t+2}
    v_lshl_add_u32 v{APW}, v{vN}, 3, v{APW}
    v_ffbl_b32 v{R1}, v{vN}
    v_lshlrev_b32 v{R1}, 3, v{R1}
    v_lshl_add_u32 v{R1}, v{t+2}, 6, v{R1}
    """)
    for u in range(5):
        fl += power(K1, PR+4+2*u, PR+5+2*u, t)
        fl.append(DSF(f"ds_write_b64 v{APW}, {V(t+14,2)} offset:{L_PW + u*2048}"))
        fl.append(masked("0x01160116", f"ds_write_b64 v{R1}, {V(t+14,2)} offset:{L_CH + 16 + u*1024}"))
    return fl

def path_ssm():
    typ = "ssm"; t = vT
    k.e(f"""
    v_and_b32 v{t+2}, 6, v{t}
    v_or_b32 v{t+3}, s{sWC}, v{t+2}
    v_xor_b32 v{t+1}, v{t+1}, v{t+3}
    v_lshlrev_b32 v{t+1}, 4, v{t+1}
    v_and_b32 v{t+3}, 1, v{t}
    v_lshl_add_u32 v{t+2}, v{t+2}, 2, v{t+3}
    v_mul_u32_u24 v{t+2}, 1280, v{t+2}
    v_add_u32 v{vDW}, v{t+2}, v{t+1}
    v_add_u32 v{t+2}, 32, v{t}
    v_mul_u32_u24 v{t+2}, 1280, v{t+2}
    v_add_u32 v{vDW+1}, v{t+2}, v{t+1}
    s_mul_i32 s{sT0}, s{sNT}, 80
    s_mul_i32 s{sT1}, s{sWR}, 40
    s_add_u32 s{sT0}, s{sT0}, s{sT1}
    s_mul_i32 s{sB0}, s{sT0}, 1280
    s_add_u32 s{sB2}, s{sB0}, 5120
    s_mul_i32 s{sLW}, s{sWR}, 10240
    s_lshl_b32 s{sT0}, s{sWC}, 10
    s_add_u32 s{sLW}, s{sLW}, s{sT0}
    """)
    k.e(f"""
    v_and_b32 v{t+1}, 1, v{vN}
    v_lshrrev_b32 v{t+2}, 2, v{vN}
    v_lshl_add_u32 v{t+2}, v{t+2}, 1, v{t+1}
    v_xor_b32 v{t}, v{t+4}, v{t+2}
    v_lshlrev_b32 v{t}, 4, v{t}
    v_lshl_add_u32 v{t}, v{t+1}, 10, v{t}
    v_lshrrev_b32 v{t+2}, 1, v{vN}
    v_lshl_add_u32 v{t}, v{t+2}, 7, v{t}
    s_mul_i32 s{sT0}, s{sWR}, 10240
    s_add_u32 s{sT0}, s{sT0}, {L_W}
    v_add_u32 v{vWA}, s{sT0}, v{t}
    v_xor_b32 v{vWA+1}, 64, v{vWA}
    """)
    ones()
    xr_setup()
    rot_setup(typ)
    start_loads(typ)
    k.e(f"""
    v_mul_u32_u24 v{vB1+11}, 820, v0
    v_lshrrev_b32 v{vB1+11}, 16, v{vB1+11}
    v_min_u32 v{vB1+11}, 2, v{vB1+11}
    v_mul_u32_u24 v{t+1}, 80, v{vB1+11}
    v_sub_u32 v{vB1+10}, v0, v{t+1}
    v_min_u32 v{vB1+10}, 79, v{vB1+10}
    s_mul_i32 s{sT0}, s{sNT}, 160
    v_lshlrev_b32 v{t+1}, 1, v{vB1+10}
    s_mov_b32 s{rT+2}, 1280
    s_mov_b32 s{rT+3}, 0x20000
    """)
    for pi, ptr in enumerate((pLre, pLim, pLdt)):
        k.e(f"s_mov_b32 s{rT}, s{ptr}\ns_mov_b32 s{rT+1}, s{ptr+1}")
        k.vmem(f"buffer_load_ushort v{PR+pi}, v{t+1}, s[{rT}:{rT+3}], s{sT0} offen", "par")
    repack_setup(typ)
    stamp(15)
    run(dma_stage(typ, 1))
    p2_addr()
    stamp(14)
    jobs, vq = common_jobs(typ)
    jobs[5] = table_a()
    jobs[("pre", 10)] = [F(lambda: mark[0], 0)]
    jobs[("pre", 11)] = table_rd()
    jobs[("pre", 12)] = [F(lambda: mark[1], 0)]
    tj = table_b()
    vC0, vC1, vP0, vP1, vE0, vE1, vGc, vGr, vPub = vB1, vB1+1, vB1+2, vB1+3, vB1+4, vB1+5, vB1+6, vB1+7, vB1+8
    CH_, WH_ = vB1 + 10, vB1 + 11
    vG = 114
    sVal = [28, 30, 36, 38, 40]
    u_ = 96
    ad = lines(f"""
    s_mul_i32 s{sUnit}, s{sWR}, 40
    v_lshlrev_b32 v{u_}, 3, v{vQ}
    v_add_u32 v{u_}, s{sUnit}, v{u_}
    v_lshlrev_b32 v{u_+1}, 1, v{vQ}
    v_add_u32 v{u_+1}, s{sUnit}, v{u_+1}
    v_add_u32 v{u_+1}, 32, v{u_+1}
    v_lshlrev_b32 v{vC0}, 6, v{u_}
    v_lshlrev_b32 v{vC1}, 6, v{u_+1}
    v_lshlrev_b32 v{u_+2}, 3, v{vN}
    v_lshl_add_u32 v{vP0}, v{u_}, 7, v{u_+2}
    v_lshl_add_u32 v{vP1}, v{u_+1}, 7, v{u_+2}
    s_mul_i32 s{sUnit}, s{sWC}, 640
    v_lshlrev_b32 v{vE0}, 3, v{u_}
    v_lshlrev_b32 v{vE1}, 3, v{u_+1}
    v_add_u32 v{vE0}, s{sUnit}, v{vE0}
    v_add_u32 v{vE1}, s{sUnit}, v{vE1}
    v_lshlrev_b32 v{vGc}, 3, v{CH_}
    v_lshlrev_b32 v{vGr}, 6, v{CH_}
    v_lshlrev_b32 v{u_}, 4, v{CH_}
    v_cmp_gt_u32 vcc, 80, v0 | v_mov_b32 v{u_+1}, {OOB} | s_nop 0 | v_cndmask_b32 v{vPub}, v{u_+1}, v{u_}, vcc
    v_mul_u32_u24 v{u_+2}, 5, v{WH_}
    v_sub_u32 v{u_+2}, s{sMT}, v{u_+2}
    s_mul_i32 s{sHw}, s{sNT}, {16*1280}
    s_add_u32 s{sHw}, s{sHw}, {WS_E}
    s_mul_i32 s{sH}, s{sMT}, 1280
    s_add_u32 s{sH}, s{sH}, s{sHw}
    """)
    for i in range(5):
        ad += lines(f"""
        v_add_u32 v{u_+2}, -1, v{u_+2}
        v_mul_i32_i24 v{vG+i}, 1280, v{u_+2}
        v_cmp_le_i32 s[{sVal[i]}:{sVal[i]+1}], 0, v{u_+2} | v_add_u32 v{vG+i}, v{vG+i}, v{u_} | s_nop 0 | v_cndmask_b32 v{vG+i}, v{u_+1}, v{vG+i}, s[{sVal[i]}:{sVal[i]+1}]
        """)
    tj = tj + ad
    left = main_loop(typ, jobs, vq, tj)
    vG2 = 8
    for i in range(5): k.e(f"v_mov_b32 v{vG2+i}, v{vG+i}")
    TK, CS, P2 = stats(typ)
    stamp()
    if OPT["rfchk_ssm"] >= 20:
        k.wait_vm("rfv"); check("rf_ssm", RFV, RFV + 2)
        left = [op for tk in range(7) for op in wload(tk)]
    early = [(6 - (len(left) - 1 - x) // 5, op) for x, op in enumerate(left)] + [(tk, op) for tk in range(7, 12) for op in wload(tk)]
    early += [(NREG - 2 + x // 5, op) for x, op in enumerate(wdma())]
    e1 = OPT['e1']; ew = OPT['ew']
    wd = [op for _, op in early]
    fd = Feeder(wd[:e1], 300 // max(1, e1))
    slots = [(i, h) for i in range(5) for h in range(2)]
    def rec(i, h): return (vC0, L_CH + (2*i + h)*64) if i < 4 else (vC1, L_CH + h*64)
    LC = 100
    stats_sum(typ, CS, P2)
    for x, (i, h) in enumerate(slots):
        a_, o_ = rec(i, h); k.ds(f"ds_read_b128 {V(LC+4*x,4)}, v{a_} offset:{o_}", ("lc", x))
    k.raw(".p2align 3")
    for x, (i, h) in enumerate(slots):
        fd.tick(8)
        for j in range(4):
            z = acc(i, j) + 2*h
            k.e(f"v_pk_fma_f32 {V(z,2)}, {V(CS+4*i+2*h,2)}, {V(TK+4*j,2)}, {V(z,2)} op_sel:[0,0,0] op_sel_hi:[1,0,1] neg_lo:[0,1,0] neg_hi:[0,1,0]")
        for j in range(4):
            z = acc(i, j) + 2*h
            k.e(f"v_pk_mul_f32 {V(z,2)}, {V(z,2)}, {V(TK+4*j,2)} op_sel:[0,1] op_sel_hi:[1,1]")
    EE = 140; TMP = 88
    MU = [t, t + 20]
    def load_mu(st):
        for x, (i, h) in enumerate(slots):
            a_, o_ = rec(i, h); k.ds(f"ds_read_b64 {V(MU[st & 1]+2*x,2)}, v{a_} offset:{o_ + 16 + 8*st}", ("mu", st))
    k.wait_lg()
    load_mu(0); load_mu(1)
    def ereg(x): return EE + 2*x
    def treg(x): return (240 + 2*x) if x < 8 else (TMP + 2*(x - 8))
    k.raw(".p2align 3")
    for x, (i, h) in enumerate(slots): cmul_acc(ereg(x), acc(i,0)+2*h, LC+4*x, acc(i,1)+2*h)
    fd.tick(20)
    for x, (i, h) in enumerate(slots): cmul_acc(treg(x), ereg(x), LC+4*x, acc(i,2)+2*h)
    fd.tick(20)
    for x, (i, h) in enumerate(slots): cmul_acc(ereg(x), treg(x), LC+4*x, acc(i,3)+2*h)
    PWv = t
    for st, sh in enumerate((1, 2, 4, 8)):
        fd.tick(20)
        k.raw(".p2align 3")
        for x in range(10):
            k.e(f"v_mov_b32_dpp v{treg(x)}, v{ereg(x)} row_shr:{sh} row_mask:0xf bank_mask:0xf bound_ctrl:0")
            k.e(f"v_mov_b32_dpp v{treg(x)+1}, v{ereg(x)+1} row_shr:{sh} row_mask:0xf bank_mask:0xf bound_ctrl:0")
        fd.tick(20)
        k.wait_lg(("mu", st))
        k.raw(".p2align 3")
        for x in range(10): cmul_acc(ereg(x), treg(x), MU[st & 1]+2*x, ereg(x))
        if st < 2: load_mu(st + 2)
        if st == 2:
            for x, (i, h) in enumerate(slots):
                k.ds(f"ds_read_b64 {V(PWv+2*x,2)}, v{vP0 if i < 4 else vP1} offset:{L_PW + ((2*i+h)*128 if i < 4 else h*128)}", "pw")
    k.e("s_mov_b32 exec_lo, 0x80008000\ns_mov_b32 exec_hi, 0x80008000")
    for i in range(5):
        k.ds(f"ds_write_b128 v{vE0 if i < 4 else vE1}, {V(EE+4*i,4)} offset:{L_EX + (16*i if i < 4 else 0)}")
    k.e("s_mov_b64 exec, -1")
    ch = t + 20
    E0, E1, LL, ET, GA = ch, ch+2, ch+4, ch+8, 14
    GA = [ch+8, ch+12, ch+16, ch+20, ch+24]
    k.ds(f"ds_read_b128 {V(LL,4)}, v{vGr} offset:{L_CH+48}", "e")
    k.e(f"v_mov_b32 v{ET+1}, s{sNonce}\nv_mov_b32 v{ET+3}, s{sNonce}")
    fd.flush()
    k.wait_lg()
    k.e("s_barrier")
    k.ds(f"ds_read_b64 {V(E0,2)}, v{vGc} offset:{L_EX}", "e")
    k.ds(f"ds_read_b64 {V(E1,2)}, v{vGc} offset:{L_EX+640}", "e")
    k.wait_lg()
    cmul_acc(E1, E0, LL, E1)
    k.e(f"v_mov_b32 v{ET}, v{E1}\nv_mov_b32 v{ET+2}, v{E1+1}")
    k.vmem(f"buffer_store_dwordx4 {V(ET,4)}, v{vPub}, s[{rWS}:{rWS+3}], s{sH} offen sc1", "e")
    stamp()
    def gather(track):
        for i in range(5):
            tx = f"buffer_load_dwordx4 {V(GA[i],4)}, v{vG2+i}, s[{rWS}:{rWS+3}], s{sHw} offen sc1"
            k.vmem(tx, "ga") if track else k.e(tx)
    k.e("s_nop 1")
    gather(True)
    fd = Feeder(wd[e1:e1 + ew], 1)
    per = ew / 14.0
    done = [0.0]
    def tk_():
        done[0] += per; n_ = int(done[0]); done[0] -= n_; fd.tick(n_); k.raw(".p2align 3")
    WT, W2 = 14, 16
    for x in range(10):
        k.e(f"v_mov_b32_dpp v{treg(x)}, v{ereg(x)} row_shr:1 row_mask:0xf bank_mask:0xf bound_ctrl:0")
        k.e(f"v_mov_b32_dpp v{treg(x)+1}, v{ereg(x)+1} row_shr:1 row_mask:0xf bank_mask:0xf bound_ctrl:0")
    def cmul(d, a, b, tmp):
        k.e(f"v_pk_mul_f32 {V(tmp,2)}, {V(a,2)}, {V(b,2)} op_sel:[0,0] op_sel_hi:[1,0]")
        k.e(f"v_pk_fma_f32 {V(d,2)}, {V(a,2)}, {V(b,2)}, {V(tmp,2)} op_sel:[1,1,0] op_sel_hi:[0,1,1] neg_lo:[0,1,0]")
    tk_()
    for x in range(10): cmul(treg(x), treg(x), LC+4*x+2, ereg(x))
    tk_()
    for x in range(10): cmul(PWv+2*x, PWv+2*x, LC+4*x+2, ereg(x))
    for x, (i, h) in enumerate(slots):
        tk_()
        for j in range(4): cmul(acc(i,j)+2*h, acc(i,j)+2*h, LC+4*x+2, EE+2*j)
    tk_()
    cmul(WT, LL+2, LL+2, W2); cmul(WT, WT, WT, W2); cmul(WT, WT, LL+2, W2); cmul(W2+2, WT, WT, W2)
    k.e(f"""
    v_cmp_eq_u32 vcc, 2, v{WH_}
    v_mov_b32 v{W2}, 1.0
    v_mov_b32 v{W2+1}, 0
    v_cndmask_b32 v{WT}, v{WT}, v{W2+2}, vcc
    v_cndmask_b32 v{WT+1}, v{WT+1}, v{W2+3}, vcc
    v_cmp_eq_u32 vcc, 0, v{WH_}
    v_mul_u32_u24 v{W2+2}, 640, v{WH_}
    v_add_u32 v{vGc}, v{vGc}, v{W2+2}
    v_cndmask_b32 v{WT}, v{WT}, v{W2}, vcc
    v_cndmask_b32 v{WT+1}, v{WT+1}, v{W2+1}, vcc
    v_cndmask_b32 v{E0}, v{W2+1}, v{E0}, vcc
    v_cndmask_b32 v{E0+1}, v{W2+1}, v{E0+1}, vcc
    s_mul_i32 s{sT0}, s{sWC}, 1280
    v_add_u32 v{vE0}, s{sT0}, v{vE0}
    v_add_u32 v{vE1}, s{sT0}, v{vE1}
    """)
    fd.flush()
    h_base()
    k.e(f"""
    s_mul_i32 s{sT1}, s{sT1}, 5
    s_add_u32 s{sT0}, s{sT0}, s{sT1}
    s_add_u32 s{sT0}, s{sT0}, 12
    s_lshl_b32 s{sT0}, s{sT0}, 12
    s_add_u32 s{sH}, s{sH}, s{sT0}
    s_add_u32 s{sB2}, s{sH}, {4*4096}
    s_lshl_b32 s{sT0}, s{sWR}, 3
    s_add_u32 s{sB2}, s{sB2}, s{sT0}
    s_lshl_b32 s{sT0}, s{sWR}, 13
    s_add_u32 s{sH}, s{sH}, s{sT0}
    s_add_u32 s{sB0}, s{sH}, 4096
    """)
    flag_addr()
    stamp(60)
    k.wait_vm("ga")
    k.label("L_carry_chk")
    k.e(f"s_mov_b64 s[{sEx}:{sEx+1}], 0")
    for i in range(5):
        k.e(f"""
        v_cmp_ne_u32 vcc, s{sNonce}, v{GA[i]+1}
        v_cmp_ne_u32 s[{sT0}:{sT1}], s{sNonce}, v{GA[i]+3}
        s_or_b64 vcc, vcc, s[{sT0}:{sT1}]
        s_and_b64 vcc, vcc, s[{sVal[i]}:{sVal[i]+1}]
        s_or_b64 s[{sEx}:{sEx+1}], s[{sEx}:{sEx+1}], vcc
        """)
    k.e(f"""
    s_cmp_eq_u64 s[{sEx}:{sEx+1}], 0
    s_cbranch_scc1 L_carry_done
    s_sub_u32 s{sSpin}, s{sSpin}, 1
    s_cbranch_scc1 L_end
    """)
    gather(False)
    k.e("s_waitcnt vmcnt(0)\ns_branch L_carry_chk")
    k.label("L_carry_done")
    stamp()
    for i in range(5): k.e(f"v_mov_b32 v{GA[i]+1}, v{GA[i]+2}")
    for i in (3, 2, 1, 0): cmul_acc(GA[i], GA[i+1], LL+2, GA[i])
    cmul(GA[0], GA[0], WT, W2)
    cmul_acc(E0, GA[0], LL, E0)
    k.ds(f"ds_write_b64 v{vGc}, {V(GA[0],2)} offset:{L_PW}")
    k.ds(f"ds_write_b64 v{vGc}, {V(E0,2)} offset:{L_PW + 1920}")
    k.wait_lg()
    k.e("s_barrier")
    poll_m()
    PB = [EE, ch, 4]
    for i in range(5):
        for g in range(3):
            k.ds(f"ds_read_b128 {V(PB[g]+4*i,4)}, v{vE0 if i < 4 else vE1} offset:{L_PW + 640*g + (16*i if i < 4 else 0)}", ("pb", i))
    k.raw(".p2align 3")
    for x in range(10):
        if x % 2 == 0: k.wait_lg(("pb", x // 2)); k.raw(".p2align 3")
        k.e(f"v_pk_add_f32 {V(ereg(x),2)}, {V(ereg(x),2)}, {V(PB[1]+2*x,2)}")
        k.e(f"v_pk_add_f32 {V(ereg(x),2)}, {V(ereg(x),2)}, {V(PB[2]+2*x,2)}")
        cmul_acc(treg(x), ereg(x), PWv+2*x, treg(x))
    O = ch
    pend = early[e1 + ew:]
    ej = [op for _, op in pend[:OPT['e2']]]; pend = pend[OPT['e2']:]
    pend = sorted(pend + [(tk, op) for tk in range(12, NREG) for op in wload(tk)], key=lambda x: x[0])
    fd = Feeder(ej, 1)
    for j in range(4):
        fd.tick((len(ej) + 3) // 4)
        k.raw(".p2align 3")
        for x, (i, h) in enumerate(slots):
            prev = treg(x) if j == 0 else acc(i, j-1) + 2*h
            cmul_acc(acc(i,j)+2*h, prev, LC+4*x, acc(i,j)+2*h)
        o = O + (j & 1) * 10
        for i in range(4): k.e(f"v_cvt_pk_bf16_f32 v{o+i}, v{acc(i,j)}, v{acc(i,j)+2}")
        for i in range(4): k.e(f"v_cvt_pk_bf16_f32 v{o+4+i}, -v{acc(i,j)+1}, -v{acc(i,j)+3}")
        k.e(f"v_cvt_pk_bf16_f32 v{o+8}, v{acc(4,j)}, v{acc(4,j)+2}")
        k.e(f"v_cvt_pk_bf16_f32 v{o+9}, -v{acc(4,j)+1}, -v{acc(4,j)+3}")
        k.vmem(f"buffer_store_dwordx4 {V(o,4)}, v{vL16}, s[{rWS}:{rWS+3}], s{sH} offen offset:{j*1024} sc1", "h")
        k.vmem(f"buffer_store_dwordx4 {V(o+4,4)}, v{vL16}, s[{rWS}:{rWS+3}], s{sB0} offen offset:{j*1024} sc1", "h")
        k.vmem(f"buffer_store_dwordx2 {V(o+8,2)}, v{vL16}, s[{rWS}:{rWS+3}], s{sB2} offen offset:{j*1024} sc1", "h")
    fd.flush()
    stamp()
    h_offsets()
    ep_loads()
    k.wait_vm("hf")
    k.e(f"""
    v_cmp_ne_u32 vcc, s{sNonce}, v{vFd}
    v_cmp_ne_u32 s[{sT0}:{sT1}], s{sNonce}, v{vFd+1}
    s_or_b64 vcc, vcc, s[{sT0}:{sT1}]
    s_cmp_eq_u64 vcc, 0
    s_cbranch_scc0 L_slow
    """)
    save = list(k.vm)
    h_first()
    h_flag(False)
    k.e("s_branch L_join")
    k.label("L_slow")
    k.vm = list(save)
    h_flag(False)
    check("hm" + typ, vF, vFd)
    h_first()
    k.label("L_join")
    stamp(7)
    residual()
    stamp(8)
    phase2(typ, pend, NREG, OPT['kw_ssm'])

def poll(tag, vaddr, vd):
    k.e(f"""
    L_poll_{tag}:
    buffer_load_dwordx2 {V(vd,2)}, v{vaddr}, s[{rWS}:{rWS+3}], 0 offen sc1
    s_waitcnt vmcnt(0)
    v_cmp_ne_u32 vcc, s{sNonce}, v{vd}
    v_cmp_ne_u32 s[{sT0}:{sT1}], s{sNonce}, v{vd+1}
    s_or_b64 vcc, vcc, s[{sT0}:{sT1}]
    s_cmp_eq_u64 vcc, 0
    s_cbranch_scc1 L_pollok_{tag}
    s_sub_u32 s{sSpin}, s{sSpin}, 1
    s_cbranch_scc1 L_end
    s_sleep 1
    s_branch L_poll_{tag}
    L_pollok_{tag}:
    """)
    k.vm = []

ACC2 = 160
def acc2(i, s): return ACC2 + (i*4 + s)*4
def phase2(typ, pend, nlds0, kw):
    stamp_n[0] = 10
    def wread(tk):
        kind, base = wreg(tk)
        return [DSF(f"ds_read_b128 {R(kind, base+4*i, 4)}, v{vWL} offset:{((tk - NREG)*5 + i)*1024}", ("wr", tk)) for i in range(5)]
    AD = [88, 89, 90, 91]
    setup = lines(f"""
    v_add_u32 v{vWL}, s{sWLb}, v{vL16}
    v_mul_u32_u24 v{vRw}, {RROW}, v{vN}
    v_lshl_add_u32 v{vRw}, v{vQ}, 4, v{vRw}
    v_add_u32 v{vRw}, s{sWLb}, v{vRw}
    v_lshlrev_b32 v{XO}, 1, v{XO}
    s_lshl_b32 s{sB2}, s{sX}, 1
    s_mov_b32 s{rW}, s{pOut}
    s_mov_b32 s{rW+1}, s{pOut+1}
    s_mov_b32 s{rW+2}, {2048*2560}
    s_mov_b32 s{rW+3}, 0x20000
    """)
    for s in range(4):
        setup += lines(f"s_xor_b32 s{sB0}, s{sW}, {s}\ns_mul_i32 s{sB0}, s{sB0}, {WLW}\ns_add_u32 s{sB0}, s{sB0}, {L_WL + s*RBLK}\nv_add_u32 v{AD[s]}, s{sB0}, v{LO}")
    bgq = list(setup)
    per = -(-len(pend) // kw)
    for tk in range(22):
        assert not [1 for t_, _ in pend if t_ <= tk], (typ, tk)
        if OPT.get("fine2"): stamp(16 + 2*tk)
        k.wait_vm([("w", tk), ("h", tk)] + (["wl"] if tk + 2 == nlds0 else []))
        if tk >= nlds0: k.wait_lg(("wr", tk))
        if OPT.get("fine2"): stamp(17 + 2*tk)
        wk, wb = wreg(tk); ring = HRING[tk % 5]
        m = []
        for s in range(4):
            for i in range(5):
                c = "0" if tk == 0 else V(acc2(i, s), 4)
                m.append(f"v_mfma_f32_16x16x32_bf16 {V(acc2(i,s),4)}, {R(wk, wb+4*i, 4)}, {R(ring[s][0], ring[s][1], 4)}, {c}")
        streams = []
        if tk + 5 == 12:
            k.wait_vm("hf2"); check("hs" + typ, vF + 1, vFd)
        if tk + 5 < 22:
            a_, b_ = hload(tk + 5)
            streams.append((a_, 0, 2, True))
            for s in range(4): streams.append((b_[s], 5*s + 4, 5*s + 4, True))
        if nlds0 <= tk + 2 < 22: streams.append((wread(tk + 2), 0, 14, True))
        mem = []
        if tk == 5: mem += [VM(f"buffer_load_dwordx2 {V(vFd,2)}, v{vF+1}, s[{rWS}:{rWS+3}], 0 offen sc1", "hf2")]
        n_ = 0
        while pend and n_ < per and (pend[0][0] < NREG or nlds0 < 22 or pend[0][0] - NREG < tk):
            mem += flat([pend.pop(0)[1]]); n_ += 1
        streams.append((mem, 1, 18, True))
        if tk == 12: assert not bgq
        if tk == 21:
            wr_ = [DSF(f"ds_write_b128 v{vRw}, {V(acc2(i,s),4)} offset:{s*RBLK + i*64}") for s in range(2) for i in range(5)]
            streams.append((wr_, 8, 19, True))
        streams.append((bgq, 0, 20, False))
        sched(m, streams)
    for i in range(5): k.ds(f"ds_write_b128 v{vRw}, {V(acc2(i,2),4)} offset:{2*RBLK + i*64}")
    stamp()
    for i in range(5): k.ds(f"ds_write_b128 v{vRw}, {V(acc2(i,3),4)} offset:{3*RBLK + i*64}")
    k.wait_lg(); k.e("s_barrier")
    RD = [160 + 16*g for g in range(5)]
    for g in range(5):
        for s in range(4): k.ds(f"ds_read_b128 {V(RD[g]+4*s,4)}, v{AD[s]} offset:{64*g}", ("r", g))
    for g in range(5):
        k.wait_lg(("r", g))
        o = RES + 4*g
        for h in range(2): k.e(f"v_pk_add_f32 {V(RD[g]+2*h,2)}, {V(RD[g]+2*h,2)}, {V(RD[g]+4+2*h,2)}")
        for h in range(2): k.e(f"v_pk_add_f32 {V(RD[g]+8+2*h,2)}, {V(RD[g]+8+2*h,2)}, {V(RD[g]+12+2*h,2)}")
        for h in range(2): k.e(f"v_pk_add_f32 {V(o+2*h,2)}, {V(o+2*h,2)}, {V(RD[g]+2*h,2)}")
        for h in range(2): k.e(f"v_pk_add_f32 {V(o+2*h,2)}, {V(o+2*h,2)}, {V(RD[g]+8+2*h,2)}")
        k.vmem(f"buffer_store_dwordx4 {V(o,4)}, v{XO}, s[{rW}:{rW+3}], s{sB2} offen offset:{64*g} {OPT.get('ost', '')}", "o")
    if OPT.get("spin"):
        ins, n_ = OPT["spin"]
        k.e(f"""
        s_waitcnt vmcnt(0)
        s_sub_u32 s{sST}, s{sST}, s98
        s_add_u32 s{sST}, s{sST}, {n_}
        L_spin_{typ}:
        {ins} s[100:101]
        s_waitcnt lgkmcnt(0)
        s_sub_u32 s100, s100, s98
        s_cmp_lt_u32 s100, s{sST}
        s_cbranch_scc1 L_spin_{typ}
        """)
    k.e("s_branch L_fin" if OPT["stamps"] else "s_endpgm")

def finish():
    if OPT["stamps"]:
        k.label("L_fin")
        k.wait_vm0()
        stamp(11)
        k.e(f"""
        s_memtime s[100:101]
        s_waitcnt lgkmcnt(0)
        s_sub_u32 s100, s100, s98
        v_writelane_b32 v{vST}, s100, 63
        s_lshl_b32 s{sT0}, s2, 2
        s_add_u32 s{sT0}, s{sT0}, s{sW}
        s_lshl_b32 s{sT0}, s{sT0}, 8
        s_add_u32 s{sT0}, s{sT0}, {WS_ST}
        v_lshlrev_b32 v2, 2, v{vL}
        buffer_store_dword v{vST}, v2, s[{rWS}:{rWS+3}], s{sT0} offen
        """)

prologue()
stamp_n[0] = 1
path_ssm()
stamp_n[0] = 1; cur[0] = "mlp"
path_mlp()
finish()
k.label("L_end")
body = k.text()
errs = check_hazards(body)
for e_ in errs: print("HAZARD:", e_, file=sys.stderr)

hdr = open(f"cdna_kernels/{NAME}.s.ref").read().split("\n")
hdr = [l for l in hdr if l.startswith(";") and "@launch" not in l and "Override" not in l and "grid=ceil" not in l]
out = "\n".join(hdr) + f"\n; @launch grid=(256,1,1) block=(256,1,1) lds={L_END}\n"
out += f""".amdgcn_target "amdgcn-amd-amdhsa--gfx950"
.text
.globl {NAME}_kernel
.p2align 8
.type {NAME}_kernel,@function
{NAME}_kernel:
{body}    s_endpgm
L_code_end:
.set CODE_BYTES, L_code_end - {NAME}_kernel - 512
.section .rodata,"a"
.p2align 6
.amdhsa_kernel {NAME}_kernel
  .amdhsa_next_free_vgpr 512
  .amdhsa_next_free_sgpr 102
  .amdhsa_accum_offset 256
  .amdhsa_group_segment_fixed_size 0
  .amdhsa_kernarg_size 136
  .amdhsa_user_sgpr_count 2
  .amdhsa_user_sgpr_kernarg_segment_ptr 1
  .amdhsa_system_sgpr_workgroup_id_x 1
.end_amdhsa_kernel
"""
open(sys.argv[1], "w").write(out)
print("written", sys.argv[1], len(out), "bytes; hazards:", len(errs))
```

```python
import sys, struct
sys.path.insert(0, "dev")
from asmlib import *

NAME = "parallel_sum__ssm_conv_s5__mixer_channel_mlp__prompt"
OPT = dict(stamps=False, stop=None, nt_dma="", nt_pf="", nt_rp="", pf=0, pf0=1, pford=0, post0=10, post=25, e1=0, ew=30, post0_s=0, wskip=3, rpd_mlp=(0, 3.5), rpd_ssm=(3, 9), rotg=4, e2=0, post_s=0, cpf=1, rp_mlp=(5, (6, 7, 9, 11, 12), 14), rp_ssm=(13, (15, 16, 17, 18, 19), 99), rf_mlp=17, rf_ssm=99, xfu=6, ne_mlp=10, kw=6, util=1.0, rot1=1, rot2=1)
for a_ in sys.argv[2:]:
    k_, v_ = a_.split("=", 1); OPT[k_] = eval(v_)

def f2u(x): return struct.unpack("<I", struct.pack("<f", x))[0]
def hx(x): return "0x%08x" % f2u(x)

WS_EP = 0
WS_H = 4096
WS_WP = 12 << 20
WS_E = 16 << 20
WS_RF = 17 << 20
WS_HF = (17 << 20) + 65536
WS_RS = 18 << 20
WS_ST = 20 << 20
WS_XF = (17 << 20) + 131072
WS_XB = 24 << 20
WS_SIZE = 32 << 20
OOB = 0x4000000
L_TOK = 0; L_CH = 2048; L_PW = 7168; L_EX = 17408; L_EX2 = L_EX + 1280
L_STG = 20480; L_X = 40960; L_W = 90112; L_END = 163840
XS = 16384; WSL = 24576
L_SCS = {'ssm': (L_EX2, 320), 'mlp': (L_CH + 512, 384)}; L_B1 = L_CH; L_DB = 20160
WLW = 4 * 16 * 336; RROW = 336; RBLK = 16 * RROW
L_WL = L_STG
NST = 10
pX, pLre, pLim, pBre, pBim, pCre, pCim, pLdt = 16, 18, 20, 22, 24, 26, 28, 30
pDsk, pBx, pW1, pB1, pW2, pB2, pOut, pDbg, pWs = 32, 34, 36, 38, 40, 42, 44, 46, 48
sW, sWR, sWC, sMT, sNT, sTYP, sHALF, sDT = 3, 4, 5, 6, 7, 8, 8, 7
sML, sI8 = 9, 10
sNonce = 11; sT0, sT1, sT2, sT3 = 12, 13, 14, 15
sKs = 50; sPF = 51
rX, rW, rWS, rT, rT2 = 52, 56, 60, 64, 68
sX, sLX, sLW, sB0, sB2, sPFs, sUnit, sRpSrc, sLR, sSpin = 72, 73, 74, 75, 76, 77, 78, 79, 80, 81
sK = 82; sEx = 84
sH, sHw, sWp, sDis = 86, 87, 88, 89
sST = 90
sRpD = 92
sSig = 97
sWa, sHa, sLim = 18, 22, 26
sDX, sDW = 77, 51
sKind = 88
rPF = rT2
vL, vN, vQ = 1, 2, 3
vDX0, vDX1, vXa, vXb = 4, 5, 6, 7
vDW = 8
vPF, vDR, vJunk, vNc = 10, 11, 12, 13
vWA = 14
vRA = 120
vL16 = 26
vRS = 27
vB1 = 28
vT = 40
vST = 25
ACC = 160
def acc(i, j): return ACC + (i * 4 + j) * 4
aF = [0, 40]
aONE = 80; aCS = 84

k = Asm()
k.strict = OPT.get('strict', False)
k.lenient = OPT['stamps']
stamp_n = [0]
cur = ["ssm"]
def stamp(i=None):
    if i is None:
        i = stamp_n[0]; stamp_n[0] += 1
    if OPT.get("probe") == (cur[0], i):
        k.e(f"s_memrealtime s[{sST}:{sST+1}]"); k.e("s_waitcnt lgkmcnt(0)"); k.lg = []
    if not OPT["stamps"]: return
    k.e(f"{'s_memtime' if OPT.get('cyc') else 's_memrealtime'} s[{sST}:{sST+1}]"); k.e("s_waitcnt lgkmcnt(0)"); k.lg = []
    k.e(f"v_writelane_b32 v{vST}, s{sST}, {i}")
def srd(r, ptr, size):
    k.e(f"s_mov_b32 s{r}, s{ptr}\ns_mov_b32 s{r+1}, s{ptr+1}\ns_mov_b32 s{r+2}, {size}\ns_mov_b32 s{r+3}, 0x20000")

class F:
    def __init__(self, fn, cost=1, ds=False, sep=False, ta=0): self.fn, self.cost, self.ds, self.sep, self.ta = fn, cost, ds, sep, ta
    gate = None
    def __call__(self): self.fn()
curblk = [0]
def note(d, key): return F(lambda: d.__setitem__(key, curblk[0]), 0)
def gate(fn):
    f = F(lambda: None, 0); f.gate = fn; return f
def lines(s):
    out = []; prev = set()
    for l in (x.strip() for x in s.split("\n")):
        if not l: continue
        if l == "s_nop 0":
            prev = None; continue
        parts = l.split(" | ")
        c = sum(2 if x.split()[0] in TRANS else 1 for x in parts)
        d = parse(parts[0])
        dep = prev is None or (d["valu"] and bool(d["uses"] & prev))
        prev = set().union(*[{r for r in parse(x)["defs"] if r[0] == "v"} for x in parts])
        out.append(F(lambda l=l: k.e(l.replace(" | ", "\n")), c, sep=dep))
    return out
def VM(text, tag, sep=False, ta=66): return F(lambda: k.vmem(text, tag), 2, sep=sep, ta=ta)
def DSF(text, tag=None): return F(lambda: k.ds(text, tag), 1, ds=True)
def sched(main, streams, start=0):
    n = len(main)
    st = []
    for items, g0, g1, must in streams:
        cnt = len(items) if must else min(len(items), must if isinstance(must, int) and must > 1 else len(items))
        tot = sum(f.cost for f in items[:cnt]) or 1
        tg = []; acc_ = 0
        for f in items[:cnt]:
            tg.append(g0 + (g1 - g0) * acc_ / tot if must else g0); acc_ += f.cost
        st.append(dict(items=items, tg=tg, last=-1, must=must))
    for g, m in enumerate(main):
        k.e(m)
        if g < start: continue
        room = 2; hasds = False
        prog = True
        while prog and room > 0:
            prog = False
            for x in st:
                if not x["tg"] or x["tg"][0] > g: continue
                f = x["items"][0]
                if f.gate and not f.gate(): continue
                if f.sep and x["last"] == g: continue
                if f.ds and (hasds or (not x["must"] and g >= n - 6)): continue
                if f.cost > room and room < 2 and not (not x["must"] and g - x["last"] >= 3): continue
                x["items"].pop(0); x["tg"].pop(0); x["last"] = g
                f(); room -= f.cost; hasds |= f.ds; prog = True
                break
    for x in st:
        if x["must"]:
            over = len(x["tg"])
            if over and OPT.get("show"): print("overflow", over)
            while x["tg"]:
                f = x["items"].pop(0); x["tg"].pop(0)
                if f.sep: k.e("s_nop 0")
                f()
def merge(*ls):
    ls = [l for l in ls if l]
    if not ls: return []
    if len(ls) == 1: return list(ls[0])
    items = []
    for li, l in enumerate(ls):
        for i, f in enumerate(l): items.append(((i + 0.5) / len(l), li, i, f))
    items.sort(key=lambda x: (x[0], x[1]))
    return [x[3] for x in items]

def prologue():
    t = vT
    k.e(f"""
    s_cmp_ge_u32 s2, 256
    s_cbranch_scc1 L_end
    s_load_dwordx16 s[16:31], s[0:1], 0
    s_load_dwordx16 s[32:47], s[0:1], 64
    s_load_dwordx2 s[48:49], s[0:1], 128
    v_lshrrev_b32 v{t}, 6, v0
    v_and_b32 v{vL}, 63, v0
    v_readfirstlane_b32 s{sW}, v{t}
    v_and_b32 v{vN}, 15, v{vL}
    v_lshrrev_b32 v{vQ}, 4, v{vL}
    v_lshlrev_b32 v{vL16}, 4, v{vL}
    s_and_b32 s{sT0}, s2, 7
    s_lshr_b32 s{sT1}, s2, 3
    s_lshr_b32 s{sTYP}, s{sT1}, 4
    s_bfe_u32 s{sML}, s{sT1}, 0x20002
    s_lshr_b32 s{sMT}, s{sT0}, 1
    s_lshl_b32 s{sT2}, s{sML}, 2
    s_add_u32 s{sMT}, s{sMT}, s{sT2}
    s_and_b32 s{sT2}, s{sT1}, 3
    s_lshl_b32 s{sI8}, s{sTYP}, 2
    s_add_u32 s{sI8}, s{sI8}, s{sT2}
    s_and_b32 s{sNT}, s{sT0}, 1
    s_lshl_b32 s{sNT}, s{sNT}, 2
    s_add_u32 s{sNT}, s{sNT}, s{sT2}
    s_lshr_b32 s{sWR}, s{sW}, 1
    s_and_b32 s{sWC}, s{sW}, 1
    s_xor_b32 s{sKs}, s{sWR}, s{sWC}
    s_mov_b32 s{sSpin}, 0x40000
    s_and_b32 s{sT2}, s2, 127
    s_sub_u32 s{sUnit}, 127, s{sT2}
    s_lshl_b32 s{sT2}, s{sTYP}, 4
    s_add_u32 s{sT2}, s{sT2}, 80
    s_cmp_lt_u32 s{sUnit}, s{sT2}
    s_cselect_b32 s{sUnit}, s{sUnit}, 0
    s_cselect_b32 s{sDis}, 0, {OOB}
    """)
    if OPT["stamps"]:
        k.e(f"v_mov_b32 v{vST}, 0\n{'s_memtime' if OPT.get('cyc') else 's_memrealtime'} s[{sST}:{sST+1}]\ns_memtime s[98:99]"); stamp_n[0] = 1
    if OPT.get("spin"): k.e(f"{OPT['spin'][0]} s[98:99]\ns_waitcnt lgkmcnt(0)\ns_mov_b32 s{sST}, s98")
    if OPT["cpf"]:
        k.e(f"""
        s_getpc_b64 s[{sEx}:{sEx+1}]
        s_lshr_b32 s{sT1}, s2, 3
        s_lshl_b32 s{sT1}, s{sT1}, 2
        s_add_u32 s{sT1}, s{sT1}, s{sW}
        s_lshl_b32 s{sT1}, s{sT1}, 9
        v_and_b32 v{t}, 3, v{vL}
        v_lshlrev_b32 v{t}, 7, v{t}
        v_add_u32 v{t}, s{sT1}, v{t}
        v_min_u32 v{t}, CODE_BYTES, v{t}
        global_load_dword v{vJunk}, v{t}, s[{sEx}:{sEx+1}]
        """)
    k.e(f"""
    v_lshrrev_b32 v{t}, 3, v{vL}
    v_and_b32 v{t+1}, 7, v{vL}
    v_lshrrev_b32 v{t+2}, 1, v{t}
    v_xor_b32 v{t+2}, v{t+1}, v{t+2}
    v_mul_u32_u24 v{t+3}, 5120, v{t}
    v_lshl_add_u32 v{vDX0}, v{t+2}, 4, v{t+3}
    v_xor_b32 v{vDX1}, 64, v{vDX0}
    v_add_u32 v{vDX1}, 40960, v{vDX1}
    s_lshl_b32 s{sT0}, s{sMT}, 7
    s_lshl_b32 s{sT1}, s{sWR}, 6
    s_add_u32 s{sT0}, s{sT0}, s{sT1}
    s_lshl_b32 s{sT1}, s{sWC}, 1
    s_add_u32 s{sT0}, s{sT0}, s{sT1}
    s_mul_i32 s{sX}, s{sT0}, 1280
    s_lshl_b32 s{sLX}, s{sW}, 12
    s_lshl_b32 s{sT2}, s{sKs}, 2
    v_add_u32 v{t+4}, s{sT2}, v{vQ}
    v_lshrrev_b32 v{t+5}, 1, v{vN}
    v_xor_b32 v{t+5}, v{t+4}, v{t+5}
    v_lshlrev_b32 v{t+5}, 4, v{t+5}
    v_lshl_add_u32 v{t+5}, v{vN}, 7, v{t+5}
    s_lshl_b32 s{sT1}, s{sWC}, 13
    s_add_u32 s{sT1}, s{sT1}, {L_X}
    v_add_u32 v{vXa}, s{sT1}, v{t+5}
    v_xor_b32 v{vXb}, 64, v{vXa}
    s_cmp_eq_u32 s{sTYP}, 1
    s_cbranch_scc1 L_mlp
    """)

issued = {}
mk = {}
def dma(vo, rs, so, imm, sl, tgt, tag, fl, pre=None):
    def f1():
        k.e(f"s_add_u32 m0, s{sl}, {tgt - imm}")
        if pre: k.e(pre)
    def f2():
        if isinstance(tag, tuple): issued[tag[1]] = issued.get(tag[1], 0) + 1
        k.vmem(f"buffer_load_dwordx4 v{vo}, s[{rs}:{rs+3}], s{so} offen offset:{imm} {fl} lds", tag)
    return [F(f1, 2 if pre else 1), F(f2, 2, sep=True, ta=66)]
def run(ops):
    for op in ops:
        for f in (op if isinstance(op, list) else [op]):
            if f.sep: k.e("s_nop 0")
            f()
def flat(ops): return [f for op in ops for f in (op if isinstance(op, list) else [op])]
def advance(typ, stage):
    d = 64*3072 if typ == "mlp" else 128
    G = OPT["rotg"]
    if stage not in [10 - (10*g) // G for g in range(1, G)]:
        return f"s_add_u32 s{sX}, s{sX}, 128\ns_add_u32 s{sB0}, s{sB0}, {d}\ns_add_u32 s{sB2}, s{sB2}, {d}"
    return (f"s_cmp_eq_u32 s{sSig}, {10 - stage} | s_cselect_b32 s{sT3}, {-9*128 & 0xffffffff}, s{sDX} | s_cselect_b32 s{sT2}, {-9*d & 0xffffffff}, s{sDW}\n"
            f"s_add_u32 s{sX}, s{sX}, s{sT3}\ns_add_u32 s{sB0}, s{sB0}, s{sT2}\ns_add_u32 s{sB2}, s{sB2}, s{sT2}")
def rot_setup(typ):
    d = 64*3072 if typ == "mlp" else 128
    G = OPT.get("rotg", 0)
    if G == 0: rotsel = f"""    s_mul_i32 s{sT0}, s{sI8}, 5
    s_lshr_b32 s{sT0}, s{sT0}, 2
    s_mul_i32 s{sT1}, s{sML}, 5
    s_lshr_b32 s{sT1}, s{sT1}, 1
    s_add_u32 s{sT0}, s{sT0}, s{sT1}
    s_and_b32 s{sT1}, s{sMT}, 3
    s_add_u32 s{sSig}, s{sT0}, s{sT1}
    s_sub_u32 s{sT0}, s{sSig}, 10
    s_cmp_ge_u32 s{sSig}, 10
    s_cselect_b32 s{sSig}, s{sT0}, s{sSig}
    s_mul_i32 s{sSig}, s{sSig}, {OPT['rot1']}
    """
    else:
        rotsel = f"s_add_u32 s{sT0}, s{sI8}, s{sML}\ns_and_b32 s{sT0}, s{sT0}, {G-1}\ns_mul_i32 s{sT0}, s{sT0}, 10\ns_lshr_b32 s{sSig}, s{sT0}, {G.bit_length()-1}"
    k.e(f"""
    {rotsel}
    s_lshl_b32 s{sT0}, s{sSig}, 7
    s_add_u32 s{sX}, s{sX}, s{sT0}
    s_mul_i32 s{sT0}, s{sSig}, {d}
    s_add_u32 s{sB0}, s{sB0}, s{sT0}
    s_add_u32 s{sB2}, s{sB2}, s{sT0}
    s_movk_i32 s{sDX}, 128
    s_mov_b32 s{sDW}, {d}
    """)
def dma_x(stage, g):
    return dma(vDX0 + (g & 1), rX, sX, (g >> 1) * 1280, sLX, L_X + (stage % 3) * XS + g * 1024, ("st", stage), OPT["nt_dma"])
def dma_w(typ, stage, g):
    base = L_W + (stage % 3) * WSL
    if typ == "mlp":
        rg, cg = g // 3, g % 3
        return dma(vDW + rg, rW, sB2 if rg else sB0, cg * 128, sLW, base + cg * 8192 + rg * 1024, ("st", stage), OPT["nt_dma"])
    imm = 2560 if (g < 4 and g & 1) else 0
    return dma(vDW + (1 if g == 4 else 0), rW, sB2 if g in (2, 3) else sB0, imm, sLW, base + g * 2048, ("st", stage), OPT["nt_dma"])
def dma_stage(typ, stage):
    nw = 6 if typ == "mlp" else 5
    ops = merge([dma_x(stage, g) for g in range(4)], [dma_w(typ, stage, g) for g in range(nw)])
    if stage > 0: ops[0] = lines(advance(typ, stage)) + ops[0]
    return ops
def pf(a):
    def f():
        if not OPT["pf"]: return
        k.vmem(f"buffer_load_dword v{vJunk}, v{vPF}, s[{rPF}:{rPF+3}], s{sPF} offen {OPT['nt_pf']}", "pf")
        k.e(f"s_add_u32 s{sPF}, s{sPF}, s{sPFs}")
    return F(f, 3)

def frag_reads(typ, stage, blk, fs):
    slot = stage % 3
    nr = 6 if typ == "mlp" else 5
    vx = vXa if blk == 0 else vXb
    xr = [DSF(f"ds_read_b128 {A(aF[fs] + 24 + 4*j, 4)}, v{vx} offset:{slot*XS + j*2048}") for j in range(4)]
    wr_ = []
    for i in range(nr):
        if typ == "mlp":
            for h in range(2):
                wr_.append(DSF(f"ds_read_b64_tr_b16 {A(aF[fs] + 4*i + 2*h, 2)}, v{vWA + blk*4 + (i & 3)} offset:{slot*WSL + (i >> 2)*8192 + h*512}"))
        else:
            wr_.append(DSF(f"ds_read_b128 {A(aF[fs] + 4*i, 4)}, v{vWA + blk} offset:{slot*WSL + i*2048}"))
    return merge(xr, wr_)

def mfmas(typ, stage, blk, fs):
    nr = 6 if typ == "mlp" else 5
    first = stage == 0
    out = []
    Af = lambda i: A(aF[fs] + 4*i, 4)
    Bf = lambda j: A(aF[fs] + 24 + 4*j, 4)
    for i in range(nr):
        for j in range(4):
            c = "0" if (first and blk == 0) else V(acc(i, j), 4)
            out.append(f"v_mfma_f32_16x16x32_bf16 {V(acc(i,j),4)}, {Af(i)}, {Bf(j)}, {c}")
    if blk == 1:
        for i in range(nr):
            out.append(f"v_mfma_f32_16x16x32_bf16 {A(aCS+4*i,4)}, {Af(i)}, {A(aONE,4)}, {'0' if first else A(aCS+4*i,4)}")
    if blk == 1 and stage == NST - 1: out = out[-nr:] + out[:-nr]
    return out

XR = 124
def start_loads(typ):
    t = vT
    k.e("s_waitcnt lgkmcnt(0)")
    if OPT["stamps"]: k.e(f"v_writelane_b32 v{vST}, s{sST}, 0")
    stamp(12)
    k.e(f"""
    s_or_b32 s{sT0}, s2, s{sW}
    s_cmp_lg_u32 s{sT0}, 0
    s_cbranch_scc1 L_nononce_{typ}
    s_memrealtime s[{sT0}:{sT1}]
    s_waitcnt lgkmcnt(0)
    s_or_b32 s{sT0}, s{sT0}, 1
    v_mov_b32 v{t+8}, s{sT0}
    v_mov_b32 v{t+9}, 0
    global_store_dword v{t+9}, v{t+8}, s[{pDbg}:{pDbg+1}] sc1
    L_nononce_{typ}:
    """)
    srd(rX, pX, 2048 * 1280)
    if typ == "mlp": srd(rW, pW1, 640 * 3072)
    else:
        k.e(f"""
        s_cmp_eq_u32 s{sWC}, 0
        s_cselect_b32 s{rW}, s{pBre}, s{pBim}
        s_cselect_b32 s{rW+1}, s{pBre+1}, s{pBim+1}
        s_mov_b32 s{rW+2}, {640*1280}
        s_mov_b32 s{rW+3}, 0x20000
        """)
    run(dma_stage(typ, 0))
    stamp(13)
    srd(rWS, pWs, WS_SIZE)
    if OPT.get('wsoff'): k.e(f"s_add_u32 s{rWS}, s{rWS}, {OPT['wsoff'] << 20}\ns_addc_u32 s{rWS+1}, s{rWS+1}, 0")
def xr_setup():
    k.e(f"""
    s_lshl_b32 s{sT0}, s{sTYP}, 3
    s_add_u32 s{sT0}, s{sT0}, s{sNT}
    s_lshl_b32 s{sT0}, s{sT0}, 2
    s_add_u32 s{sT0}, s{sT0}, s{sW}
    s_lshl_b32 s{sT0}, s{sT0}, 1
    s_lshl_b32 s{sT1}, s{sMT}, 7
    s_add_u32 s{sHw}, s{sT0}, s{sT1}
    s_mul_i32 s{sH}, s{sHw}, 1280
    v_lshrrev_b32 v{XR+10}, 5, v{vL}
    v_mul_u32_u24 v{XR+10}, 1280, v{XR+10}
    v_and_b32 v{XR+11}, 31, v{vL}
    v_lshl_add_u32 v{XR+11}, v{XR+11}, 3, v{XR+10}
    v_lshlrev_b32 v{XR+13}, 1, v{XR+11}
    v_sub_u32 v{XR+10}, v{XR+13}, v{XR+10}
    """)
def xr_loads():
    return [VM(f"buffer_load_dwordx4 {V(XR+4*i,4)}, v{XR+10}, s[{rX}:{rX+3}], s{sH} offen offset:{512*i}", "xr") for i in range(2)] + \
           [VM(f"buffer_load_dwordx2 {V(XR+8,2)}, v{XR+11}, s[{rX}:{rX+3}], s{sH} offen offset:1024", "xr", ta=40)]
def small_dma(ptr, size, soff, tgt, lanes):
    srd(rT2, ptr, size)
    k.e(f"s_mov_b32 m0, {tgt}\ns_mov_b32 exec_lo, {(1 << lanes) - 1}\ns_mov_b32 exec_hi, 0")
    k.vmem(f"buffer_load_dwordx4 v{vL16}, s[{rT2}:{rT2+3}], s{soff} offen lds", "sm")
    k.e("s_mov_b64 exec, -1")
def small_loads(typ):
    k.e(f"s_mul_i32 s{sT0}, s{sDT}, 160")
    small_dma(pDsk, 1280, sT0, L_DB, 10)
    small_dma(pB2, 1280, sT0, L_DB + 160, 10)
    if typ == "mlp":
        k.e(f"s_mul_i32 s{sT0}, s{sNT}, 384")
        small_dma(pB1, 3072, sT0, L_B1, 24)

def pf_setup(typ):
    t = vT + 10
    k.e(f"""
    v_mul_u32_u24 v{t}, 52, v{vL}
    v_lshrrev_b32 v{t}, 10, v{t}
    v_mul_u32_u24 v{t+1}, 20, v{t}
    v_sub_u32 v{t+1}, v{vL}, v{t+1}
    s_lshl_b32 s{sT0}, s{sMT}, 7
    s_lshl_b32 s{sT1}, s{sI8}, 4
    s_add_u32 s{sT0}, s{sT0}, s{sT1}
    s_mul_i32 s{sT0}, s{sT0}, 1280
    s_add_u32 s{sT0}, s{sT0}, {128*OPT['pf0']}
    """)
    if typ == "mlp":
        k.e(f"""
        s_lshl_b32 s{sT1}, s{sML}, 4
        s_add_u32 s{sT1}, s{sT1}, {64*OPT['pf0']}
        s_mul_i32 s{sT1}, s{sT1}, 3072
        s_mul_i32 s{sT2}, s{sNT}, 384
        s_add_u32 s{sT1}, s{sT1}, s{sT2}
        s_lshl_b32 s{sT2}, s{sW}, 7
        s_add_u32 s{sT1}, s{sT1}, s{sT2}
        s_cmp_eq_u32 s{sW}, 3
        s_cselect_b32 s{sPF}, s{sT0}, s{sT1}
        s_mov_b32 s{sT2}, {64*3072}
        s_cselect_b32 s{sT2}, 128, s{sT2}
        s_mov_b32 s{sT3}, 3072
        s_cselect_b32 s{sT3}, 1280, s{sT3}
        s_mov_b32 s{sT0}, 16
        """)
    else:
        k.e(f"""
        s_mul_i32 s{sT1}, s{sNT}, 80
        s_mul_i32 s{sT2}, s{sML}, 20
        s_add_u32 s{sT1}, s{sT1}, s{sT2}
        s_mul_i32 s{sT1}, s{sT1}, 1280
        s_add_u32 s{sT1}, s{sT1}, {128*OPT['pf0']}
        s_cmp_eq_u32 s{sW}, 3
        s_cselect_b32 s{sPF}, s{sT0}, s{sT1}
        s_cselect_b32 s{sT0}, 16, 20
        s_cmp_eq_u32 s{sW}, 2
        s_cselect_b32 s{sT0}, 0, s{sT0}
        s_mov_b32 s{sT2}, 128
        s_mov_b32 s{sT3}, 1280
        """)
    k.e(f"""
    s_mul_i32 s{sPFs}, s{sT2}, 3
    v_mul_lo_u32 v{vPF}, v{t}, s{sT2}
    v_mul_lo_u32 v{t+2}, v{t+1}, s{sT3}
    v_add_u32 v{vPF}, v{vPF}, v{t+2}
    v_cmp_gt_u32 vcc, s{sT0}, v{t+1}
    v_cmp_gt_u32 s[{sT2}:{sT3}], 60, v{vL}
    s_and_b64 vcc, vcc, s[{sT2}:{sT3}]
    v_mov_b32 v{t+2}, {OOB}
    s_nop 0
    v_cndmask_b32 v{vPF}, v{t+2}, v{vPF}, vcc
    """)

def repack_setup(tag):
    t = vT
    k.e(f"""
    v_lshrrev_b32 v{t}, 3, v{vL}
    v_and_b32 v{t+1}, 7, v{vL}
    v_mul_u32_u24 v{t}, 1280, v{t}
    v_lshl_add_u32 v{t}, v{t+1}, 4, v{t}
    v_or_b32 v{vDR}, s{sDis}, v{t}
    v_or_b32 v{vRS}, s{sDis}, v{vL16}
    s_lshl_b32 s{sLR}, s{sW}, 10
    s_and_b32 s{sT0}, s{sUnit}, 1
    s_lshr_b32 s{sT1}, s{sUnit}, 1
    s_mov_b32 s{rT+3}, 0x20000
    """)
    if tag == "mlp":
        k.e(f"""
        s_mov_b32 s{rT}, s{pW2}
        s_mov_b32 s{rT+1}, s{pW2+1}
        s_mov_b32 s{rT+2}, {1536*1280}
        s_lshl_b32 s{sT2}, s{sT1}, 2
        s_add_u32 s{sT2}, s{sT2}, s{sW}
        s_mul_i32 s{sRpSrc}, s{sT2}, {8*1280}
        s_mul_i32 s{sT2}, s{sT1}, 5462
        s_lshr_b32 s{sT2}, s{sT2}, 16
        s_mul_i32 s{sT2}, s{sT2}, 10
        s_add_u32 s{sT1}, s{sT1}, s{sT2}
        s_mul_i32 s{sT1}, s{sT1}, 5120
        s_add_u32 s{sT1}, s{sT1}, {WS_WP}
        s_mul_i32 s{sT2}, s{sT0}, 20
        s_add_u32 s{sT2}, s{sT2}, s{sW}
        """)
        for i in range(5):
            k.e(f"""
            s_mul_i32 s{sT3}, s{sT2}, 13108
            s_lshr_b32 s{sT3}, s{sT3}, 16
            s_mul_i32 s{sT3}, s{sT3}, 435
            s_add_u32 s{sT3}, s{sT3}, s{sT2}
            s_lshl_b32 s{sT3}, s{sT3}, 10
            s_add_u32 s{sRpD+i}, s{sT3}, s{sT1}
            s_add_u32 s{sT2}, s{sT2}, 4
            """)
        k.e(f"""
        v_lshrrev_b32 v{t}, 2, v{vN}
        v_lshl_add_u32 v{t}, v{vQ}, 2, v{t}
        v_lshlrev_b32 v{t}, 7, v{t}
        v_and_b32 v{t+1}, 3, v{vN}
        v_lshl_add_u32 v{t}, v{t+1}, 3, v{t}
        s_lshl_b32 s{sT2}, s{sW}, 5
        s_add_u32 s{sT2}, s{sT2}, {L_STG}
        v_add_u32 v{vRA}, s{sT2}, v{t}
    """)
    else:
        k.e(f"""
        s_cmp_eq_u32 s{sWR}, 0
        s_cselect_b32 s{rT}, s{pCre}, s{pCim}
        s_cselect_b32 s{rT+1}, s{pCre+1}, s{pCim+1}
        s_mov_b32 s{rT+2}, {640*1280}
        s_lshl_b32 s{sT2}, s{sT1}, 1
        s_add_u32 s{sT2}, s{sT2}, s{sWC}
        s_mul_i32 s{sRpSrc}, s{sT2}, {8*1280}
        s_mul_i32 s{sT2}, s{sT1}, 13108
        s_lshr_b32 s{sT2}, s{sT2}, 16
        s_mul_i32 s{sT2}, s{sT2}, 435
        s_add_u32 s{sT1}, s{sT1}, s{sT2}
        s_lshl_b32 s{sT2}, s{sT0}, 1
        s_add_u32 s{sT2}, s{sT2}, s{sWR}
        s_mul_i32 s{sT2}, s{sT2}, 110
        s_add_u32 s{sT1}, s{sT1}, s{sT2}
        s_mul_i32 s{sT2}, s{sWC}, 25
        s_add_u32 s{sT1}, s{sT1}, s{sT2}
        s_add_u32 s{sT1}, s{sT1}, 60
        s_lshl_b32 s{sT1}, s{sT1}, 10
        s_add_u32 s{sRpD}, s{sT1}, {WS_WP}
        s_add_u32 s{sRpD+1}, s{sRpD}, 5120
        s_add_u32 s{sRpD+2}, s{sRpD}, 10240
        s_add_u32 s{sRpD+3}, s{sRpD}, 15360
        s_add_u32 s{sRpD+4}, s{sRpD}, 20480
        s_mul_i32 s{sT2}, s{sW}, 160
        v_lshlrev_b32 v{t+2}, 7, v{vN}
        v_add_u32 v{t+2}, {L_STG}, v{t+2}
        """)
        for x, (off, sh) in enumerate(((0, 4), (80, 4), (64, 2), (144, 2))):
            k.e(f"""
            s_add_u32 s{sT3}, s{sT2}, {off}
            v_lshl_add_u32 v{t}, v{vQ}, {sh}, s{sT3}
            v_lshrrev_b32 v{t+1}, 7, v{t}
            v_and_b32 v{t}, 127, v{t}
            v_lshl_add_u32 v{t}, v{t+1}, 12, v{t}
            v_add_u32 v{vRA+x}, v{t}, v{t+2}
            """)
    k.e(f"""
    s_mul_i32 s{sT0}, s{sT0}, 640
    s_add_u32 s{sRpSrc}, s{sRpSrc}, s{sT0}
    """)
def repack_dma():
    return [dma(vDR, rT, sRpSrc, g * 128, sLR, L_STG + g * 4096, "rp%d" % g, OPT["nt_rp"]) for g in range(5)]
RP = 136
def RPR(tag, o, n): return V(RP + o, n)
def repack_read(tag):
    if tag == "mlp":
        return [DSF(f"ds_read_b64_tr_b16 {V(RP+4*i+2*h,2)}, v{vRA} offset:{i*4096 + h*2048}") for i in range(5) for h in range(2)]
    return [DSF(f"ds_read_b128 {V(RP+4*x,4)}, v{vRA + x//2} offset:{(x & 1)*2048}") for x in range(4)] + \
           [DSF(f"ds_read_b32 v{RP+16+x}, v{vRA + 2 + x//2} offset:{(x & 1)*2048}") for x in range(4)]
def repack_store(tag):
    return [VM(f"buffer_store_dwordx4 {RPR(tag, 4*i, 4)}, v{vRS}, s[{rWS}:{rWS+3}], s{sRpD+i} offen sc1", ("rps", i), ta=240) for i in range(5)]
def repack_flag():
    t = vT
    pre = lines(f"""
    v_mov_b32 v{t}, s{sNonce}
    v_mov_b32 v{t+1}, s{sNonce}
    s_lshl_b32 s{sRpSrc}, s{sUnit}, 7
    s_lshl_b32 s{sT1}, s{sW}, 4
    s_add_u32 s{sRpSrc}, s{sRpSrc}, s{sT1}
    s_add_u32 s{sRpSrc}, s{sRpSrc}, {WS_RF}
    s_lshl_b32 s{sT1}, s{sTYP}, 14
    s_add_u32 s{sRpSrc}, s{sRpSrc}, s{sT1}
    v_lshlrev_b32 v{t+2}, 26, v{vL}
    v_or_b32 v{t+2}, s{sDis}, v{t+2}
    """)
    def f():
        k.wait_vm(("rps", 4))
        k.vmem(f"buffer_store_dwordx2 {V(t,2)}, v{t+2}, s[{rWS}:{rWS+3}], s{sRpSrc} offen sc1", "rf")
    return pre, F(f, 3, ta=20)

def bfr(d, s): return f"v_cvt_pk_bf16_f32 v{d}, v{s}, v{s}\nv_and_b32 v{d}, 0xffff0000, v{d}\n"
def nonce_load():
    return lines(f"v_mov_b32 v{vNc}, 0") + [VM(f"global_load_dword v{vNc}, v{vNc}, s[{pDbg}:{pDbg+1}] sc1", "nc", ta=20)]
def rowstat_job(tag):
    t = vT + 20
    S_, Q, MEAN, VAR, S1, X, Y = t, t+1, t+2, t+3, t+4, t+5, t+6
    G0, G1 = t+8, t+12
    M1, A1, A2, AM = G0, G0+2, G1, G1+2
    def dots():
        k.wait_vm("xr")
        s = f"v_mov_b32 v{X}, 0x3f803f80\nv_mov_b32 v{S_}, 0\nv_mov_b32 v{Q}, 0\n"
        for i in range(10): s += f"v_dot2c_f32_bf16 v{S_}, v{XR+i}, v{X}\nv_dot2c_f32_bf16 v{Q}, v{XR+i}, v{XR+i}\n"
        s += "s_nop 2\n"
        k.e(s)
    fl = [F(dots, 24)]
    for d in ("row_shr:1", "row_shr:2", "row_shr:4", "row_shr:8", "row_bcast:15"):
        rm = "0xa" if "bcast" in d else "0xf"
        fl.append(F(lambda d=d, rm=rm: k.e(f"v_add_f32_dpp v{S_}, v{S_}, v{S_} {d} row_mask:{rm} bank_mask:0xf bound_ctrl:0"), 1, sep=True))
        fl.append(F(lambda d=d, rm=rm: k.e(f"v_add_f32_dpp v{Q}, v{Q}, v{Q} {d} row_mask:{rm} bank_mask:0xf bound_ctrl:0"), 1))
    fl += lines(f"""
    v_mul_f32 v{MEAN}, {hx(1/640)}, v{S_}
    v_mul_f32 v{VAR}, {hx(1/640)}, v{Q}
    v_fma_f32 v{VAR}, -v{MEAN}, v{MEAN}, v{VAR}
    v_max_f32 v{VAR}, 0, v{VAR}
    {bfr(M1, MEAN)}{bfr(X, VAR)}
    v_add_f32 v{X}, {hx(1e-5)}, v{X}
    {bfr(X, X)}
    v_sqrt_f32 v{X}, v{X}
    v_sub_f32 v{Y}, v{MEAN}, v{M1}
    {bfr(S1, X)}
    v_rcp_f32 v{A1}, v{S1}
    s_nop 0
    v_mul_f32 v{Y}, v{Y}, v{A1}
    v_mul_f32 v{X}, v{VAR}, v{A1}
    {bfr(Y, Y)}
    v_mul_f32 v{X}, v{X}, v{A1}
    {bfr(X, X)}
    v_add_f32 v{X}, {hx(1e-5)}, v{X}
    {bfr(X, X)}
    v_sqrt_f32 v{X}, v{X}
    v_fma_f32 v{Y}, v{Y}, v{S1}, v{M1}
    {bfr(X, X)}
    v_mul_f32 v{X}, v{X}, v{S1}
    v_rcp_f32 v{A2}, v{X}
    v_and_b32 v{X}, 31, v{vL}
    v_mul_f32 v{AM}, v{A2}, v{Y}
    v_sub_u32 v{X}, 31, v{X}
    v_and_b32 v{Y}, 32, v{vL}
    v_lshl_add_u32 v{X}, v{X}, 26, v{Y}
    s_lshl_b32 s{sT0}, s{sHw}, 5
    s_add_u32 s{sT0}, s{sT0}, {WS_RS}
    """)
    def nonce():
        k.wait_vm("nc")
        k.e(f"""
        v_readfirstlane_b32 s{sNonce}, v{vNc}
        s_cmp_lg_u32 s{sNonce}, 0
        s_cbranch_scc1 L_ncok_{tag}
        L_ncl_{tag}:
        s_sleep 1
        global_load_dword v{vNc}, v{Y}, s[{pDbg}:{pDbg+1}] sc1
        s_sub_u32 s{sSpin}, s{sSpin}, 1
        s_cbranch_scc1 L_end
        s_waitcnt vmcnt(0)
        v_readfirstlane_b32 s{sNonce}, v{vNc}
        s_cmp_eq_u32 s{sNonce}, 0
        s_cbranch_scc1 L_ncl_{tag}
        L_ncok_{tag}:
        s_nop 0
        """)
    fl += lines(f"v_mov_b32 v{Y}, 0") + [F(nonce, 4)]
    fl += lines(f"""
    v_mov_b32 v{G0+1}, s{sNonce}
    v_mov_b32 v{G0+3}, s{sNonce}
    v_mov_b32 v{G1+1}, s{sNonce}
    v_mov_b32 v{G1+3}, s{sNonce}
    """)
    fl.append(VM(f"buffer_store_dwordx4 {V(G0,4)}, v{X}, s[{rWS}:{rWS+3}], s{sT0} offen sc1", "rs", ta=20))
    fl.append(VM(f"buffer_store_dwordx4 {V(G1,4)}, v{X}, s[{rWS}:{rWS+3}], s{sT0} offen offset:16 sc1", "rs", ta=20))
    return fl
RSV = 124
def rowstat_fetch():
    fl = lines(f"""
    s_lshl_b32 s{sT0}, s{sMT}, 12
    s_add_u32 s{sT0}, s{sT0}, {WS_RS}
    v_lshlrev_b32 v{RSV+4}, 4, v0
    v_add_u32 v{RSV+4}, s{sT0}, v{RSV+4}
    """)
    return fl + [VM(f"buffer_load_dwordx4 {V(RSV,4)}, v{RSV+4}, s[{rWS}:{rWS+3}], 0 offen sc1", "rsv")]

def ta_of(op): return sum(f.ta for f in flat([op]))
def main_loop(typ, jobs, vq, bg):
    q = [(max(0, 2*st - 5), max(2*st - 4 + (x >= 5) - OPT.get('lag', 0), x >= 5), op) for st in range(2, NST) for x, op in enumerate(dma_stage(typ, st))]
    q = sorted(q + vq, key=lambda x: x[1])
    credit = [OPT.get("credit0", 0)]
    def take(bi, n):
        credit[0] = min(credit[0] + n * 17 * OPT["util"], n * 17 + 100) - sum(ta_of(x) for x in jobs.get(("pre", bi), []) + jobs.get(bi, []))
        out = []
        while True:
            c = [x for x in q if x[0] <= bi]
            if not c or ((credit[0] < 33 or len(out) >= OPT.get('cap', 6)) and c[0][1] > bi): break
            q.remove(c[0]); out.append(c[0][2]); credit[0] -= ta_of(c[0][2])
        if OPT.get('show'): print(typ, bi, len(out), len(jq), len(bg), int(credit[0]), dict(issued))
        return flat(out)
    jq = []
    k.wait_vm(("st", 0)); k.e("s_barrier")
    stamp()
    run(frag_reads(typ, 0, 0, 0))
    def block(bi, m, reads, n):
        curblk[0] = bi
        run(jobs.get(("pre", bi), []))
        jq.extend(jobs.get(bi, []))
        jq[:0] = jobs.get(("front", bi), [])
        d = take(bi, n)
        n = len(m)
        if bi == 2*NST - 1: reads, r0 = jobs["last"], 9
        else: r0 = 0
        sched(m, [(d, 0, n - 1, True), (reads, r0, n - OPT.get("rend", 6), True), (jq, 0, n, False), (bg if bi >= OPT.get("bg0", 1) else [], 0, n, False)])
    for s in range(NST):
        k.wait_lg()
        m = mfmas(typ, s, 0, 0)
        block(2*s, m, frag_reads(typ, s, 1, 1), len(m))
        k.wait_lg()
        m = mfmas(typ, s, 1, 1)
        k.e(m[0]); k.e(m[1])
        if s + 1 < NST:
            if OPT.get("fine"): stamp(16 + 3*s)
            assert issued.get(s + 1, 0) == (10 if typ == "mlp" else 9), (typ, s, issued)
            for tg in jobs.get(("wait", s), []): assert tg in k.seen, tg
            k.wait_vm([("st", s + 1)] + jobs.get(("wait", s), []))
            if OPT.get("fine"): stamp(17 + 3*s)
            k.e("s_barrier")
        block(2*s + 1, m[2:], frag_reads(typ, s + 1, 0, 0) if s + 1 < NST else [], len(m))
    assert not jq and len(bg) < 12, (len(jq), len(bg))
    run(bg)
    stamp()
    if OPT["stop"] == "loop":
        k.e("s_branch L_fin"); k.seen.update(["rsv", ("rps", 4), "b1"])
    return [x[2] for x in q]

WSLOT = [("a", 108 + 20*x) for x in range(7)] + [("a", 20*x) for x in range(5)] + [("v", 100 + 20*x) for x in range(3)]
NREG = 15
def wreg(tk): return WSLOT[tk]
def kaddr(dst, base, tk, stride):
    return lines(f"s_cmp_gt_u32 s{sLim}, {tk} | s_cselect_b32 s{dst}, s{base}, s{base+1}\ns_add_u32 s{dst}, s{dst}, {tk*stride}")
def wload(tk):
    kind, base = wreg(tk)
    out = []
    for i in range(5):
        op = []
        if i == 0: op += kaddr(sT2, sWa, tk, 5120)
        if i == 4: op += lines(f"s_add_u32 s{sT2}, s{sT2}, 4096")
        op.append(VM(f"buffer_load_dwordx4 {R(kind, base+4*i, 4)}, v{vL16}, s[{rWS}:{rWS+3}], s{sT2} offen offset:{(i & 3)*1024} sc1", ("w", tk)))
        out.append(op)
    return out
RFV = 24
sWLb, sTx = 34, 35
NK = {"mlp": 12, "ssm": 10}
def p2_addr(typ):
    n_ = NK[typ]; k0 = 0 if typ == "mlp" else 12
    if typ == "mlp":
        k.e(f"""
        v_min_u32 v{vT+2}, 47, v{vL}
        s_mul_i32 s{sT0}, s{sW}, 24
        s_lshr_b32 s{sT1}, s{sDT}, 2
        s_add_u32 s{sT0}, s{sT0}, s{sT1}
        s_lshl_b32 s{sT0}, s{sT0}, 7
        s_add_u32 s{sT0}, s{sT0}, {WS_RF + 16384}
        v_lshrrev_b32 v{vT}, 2, v{vT+2}
        v_and_b32 v{vT+1}, 3, v{vT+2}
        """)
    else:
        k.e(f"""
        v_min_u32 v{vT+2}, 9, v{vL}
        s_mul_i32 s{sT0}, s{sDT}, 10
        s_add_u32 s{sT0}, s{sT0}, s{sWR}
        s_lshl_b32 s{sT0}, s{sT0}, 7
        s_lshl_b32 s{sT1}, s{sWC}, 5
        s_add_u32 s{sT0}, s{sT0}, s{sT1}
        s_add_u32 s{sT0}, s{sT0}, {WS_RF}
        v_lshrrev_b32 v{vT}, 1, v{vT+2}
        v_and_b32 v{vT+1}, 1, v{vT+2}
        """)
    k.e(f"""
    v_lshlrev_b32 v{vT}, 8, v{vT}
    v_lshl_add_u32 v{vT}, v{vT+1}, 4, v{vT}
    v_add_u32 v{RFV}, s{sT0}, v{vT}
    s_and_b32 s{sT2}, s{sDT}, 3
    s_add_u32 s{sT2}, s{sT2}, s{sML}
    s_and_b32 s{sT2}, s{sT2}, 3
    s_mul_i32 s{sT2}, s{sT2}, {n_ * OPT['rot2']}
    s_lshr_b32 s{sT2}, s{sT2}, 2
    s_sub_u32 s{sLim}, {n_}, s{sT2}
    s_mul_i32 s{sT0}, s{sW}, 22
    s_add_u32 s{sT0}, s{sT0}, s{sT2}
    s_add_u32 s{sT0}, s{sT0}, {k0}
    s_mul_i32 s{sT1}, s{sDT}, 88
    s_add_u32 s{sT1}, s{sT1}, s{sT0}
    s_mul_i32 s{sT1}, s{sT1}, 5120
    s_add_u32 s{sWa}, s{sT1}, {WS_WP}
    s_sub_u32 s{sWa+1}, s{sWa}, {n_*5120}
    s_lshl_b32 s{sT1}, s{sMT}, 1
    s_add_u32 s{sT1}, s{sT1}, s{sHALF}
    s_mul_i32 s{sT2}, s{sT1}, 88
    s_add_u32 s{sT2}, s{sT2}, s{sT0}
    s_lshl_b32 s{sT2}, s{sT2}, 12
    s_add_u32 s{sHa+2}, s{sT2}, {WS_H}
    s_sub_u32 s{sHa+3}, s{sHa+2}, {n_*4096}
    s_{'sub' if typ == 'mlp' else 'add'}_u32 s{sHa}, s{sHa+2}, {88*4096}
    s_sub_u32 s{sHa+1}, s{sHa}, {n_*4096}
    s_mul_i32 s{sWLb}, s{sW}, {WLW}
    s_add_u32 s{sWLb}, s{sWLb}, {L_WL}
    """)
def rflag_fetch(vd):
    k.vmem(f"buffer_load_dwordx2 {V(vd,2)}, v{RFV}, s[{rWS}:{rWS+3}], 0 offen sc1", "rfv")
def check(tag, vaddr, vd, width=2, second=1):
    k.e(f"""
    L_chk_{tag}:
    v_cmp_ne_u32 vcc, s{sNonce}, v{vd + (1 if width == 4 else 0)}
    v_cmp_ne_u32 s[{sT0}:{sT1}], s{sNonce}, v{vd + (3 if width == 4 else 1)}
    s_or_b64 vcc, vcc, s[{sT0}:{sT1}]
    s_cmp_eq_u64 vcc, 0
    s_cbranch_scc1 L_chkok_{tag}
    s_sub_u32 s{sSpin}, s{sSpin}, 1
    s_cbranch_scc1 L_end
    buffer_load_dwordx{width} {V(vd,width)}, v{vaddr}, s[{rWS}:{rWS+3}], 0 offen sc1
    s_waitcnt vmcnt(0)
    s_branch L_chk_{tag}
    L_chkok_{tag}:
    """)
def common_jobs(typ):
    j = {}
    j[0] = nonce_load()
    j[3] = rowstat_job(typ)
    r0, rpst, rpfl = OPT["rp_" + typ]
    assert r0 % 2 == 1
    j[("wait", (r0 - 1) // 2)] = j.get(("wait", (r0 - 1) // 2), []) + ["rp4"]
    j[("pre", r0)] = repack_read(typ)
    for f, bi in zip(repack_store(typ), rpst): j[("pre", bi)] = j.get(("pre", bi), []) + [f]
    vq = [(0, 1.5, op) for op in xr_loads()] + [OPT["rpd_" + typ] + (op,) for op in repack_dma()]
    a_, b_ = repack_flag()
    d_ = {}
    fb = min(rpfl, 15)
    j[fb - 3] = j.get(fb - 3, []) + a_ + [note(d_, 1)]
    if rpfl < 20: j[("pre", rpfl)] = j.get(("pre", rpfl), []) + [F(lambda: d_[1], 0), b_]
    else: j["rpflag"] = b_
    bi = OPT["rf_" + typ]
    RD_ = vT + 4
    if bi <= 20: j[("pre", bi - 1)] = j.get(("pre", bi - 1), []) + [F(lambda: rflag_fetch(RD_), 2, ta=50)]
    def chk():
        k.wait_vm("rfv"); check("rf_" + typ, RFV, RD_)
    j["rfchk"] = chk
    if bi < 20:
        j[("pre", bi)] = j.get(("pre", bi), []) + [F(chk, 6)]
        vq += [(bi, 99, op) for tk in range(7) for op in wload(tk)]
    stats_jobs(typ, j)
    return j, vq

TK = vT + 8
SA = 76
def stats_jobs(typ, j):
    nr = 6 if typ == "mlp" else 5
    L_SC, SCW = L_SCS[typ]
    k.e(f"""
    s_mul_i32 s{sT0}, s{sW}, {SCW}
    s_add_u32 s{sT0}, s{sT0}, {L_SC}
    v_lshlrev_b32 v{SA+1}, 4, v{vQ}
    v_add_u32 v{SA}, s{sT0}, v{SA+1}
    v_min_u32 v{SA+2}, 1, v{vN}
    v_mul_u32_u24 v{SA+2}, 0x30000, v{SA+2}
    v_add_u32 v{SA}, v{SA}, v{SA+2}
    s_mul_i32 s{sT0}, s{sWR}, {2*SCW}
    s_add_u32 s{sT0}, s{sT0}, {L_SC}
    v_add_u32 v{SA+1}, s{sT0}, v{SA+1}
    s_lshl_b32 s{sT0}, s{sWC}, 10
    v_lshlrev_b32 v{SA+2}, 6, v{vN}
    v_add_u32 v{SA+2}, s{sT0}, v{SA+2}
    v_lshlrev_b32 v{SA+3}, 3, v0
    """)
    j[OPT.get('rsb', 13)] = j.get(OPT.get('rsb', 13), []) + rowstat_fetch()
    def chk():
        k.wait_vm("rsv")
        check("rs_" + typ, RSV + 4, RSV, 4)
        k.ds(f"ds_write2_b32 v{SA+3}, v{RSV}, v{RSV+2} offset0:{L_TOK//4} offset1:{L_TOK//4+1}")
    j[("pre", 16)] = j.get(("pre", 16), []) + [F(chk, 8)]
    j[18] = j.get(18, []) + [DSF(f"ds_read_b128 {V(TK+4*x,4)}, v{SA+2} offset:{L_TOK + x*16}") for x in range(4)]
    j["last"] = [DSF(f"ds_write_b128 v{SA}, {A(aCS+4*i,4)} offset:{i*64}") for i in range(nr)]
def stats(typ):
    nr = 6 if typ == "mlp" else 5
    CS = vT + 24; P2 = 100
    SCW = L_SCS[typ][1]
    k.wait_lg(); k.e("s_barrier")
    for i in range(nr):
        k.ds(f"ds_read_b128 {V(P2+4*i,4)}, v{SA+1} offset:{SCW+i*64}", ("cs", i))
    for i in (0, 1, 2, 4, 5, 3)[:nr + 1]:
        if i < nr: k.ds(f"ds_read_b128 {V(CS+4*i,4)}, v{SA+1} offset:{i*64}", ("cs", i))
    return TK, CS, P2
def stats_sum(typ, CS, P2):
    k.wait_lg()
    for i in range(6 if typ == "mlp" else 5):
        for h in range(2):
            k.e(f"v_pk_add_f32 {V(CS+4*i+2*h,2)}, {V(CS+4*i+2*h,2)}, {V(P2+4*i+2*h,2)}")

class Feeder:
    def __init__(self, jobs, every): self.jobs, self.every, self.n = list(jobs), every, 0
    def tick(self, n=1):
        self.n += n
        while self.n >= self.every and self.jobs:
            self.n -= self.every; run([self.jobs.pop(0)])
    def flush(self):
        while self.jobs: run([self.jobs.pop(0)])

def h_base():
    k.e(f"""
    s_lshl_b32 s{sT0}, s{sMT}, 1
    s_add_u32 s{sT0}, s{sT0}, s{sWC}
    s_mul_i32 s{sH}, s{sT0}, {88*4096}
    s_add_u32 s{sH}, s{sH}, {WS_H}
    s_lshr_b32 s{sT0}, s{sNT}, 1
    s_mul_i32 s{sT0}, s{sT0}, 22
    s_and_b32 s{sT1}, s{sNT}, 1
    """)
HRING = [[("v", 40 + 4*s) for s in range(4)], [("v", 56 + 4*s) for s in range(4)], [("v", 72 + 4*s) for s in range(4)],
         [("a", 100), ("a", 104), ("a", 248), ("a", 252)]]
NR = len(HRING)
vF, vFd, vHs = 28, 30, 32
vWL, vRw, XO, LO = 36, 37, 38, 39
RES = 4
def flag_addr():
    k.e(f"""
    s_lshl_b32 s{sT0}, s{sMT}, 4
    s_lshl_b32 s{sT1}, s{sTYP}, 3
    s_add_u32 s{sT0}, s{sT0}, s{sT1}
    s_lshl_b32 s{sT1}, s{sW}, 1
    s_add_u32 s{sT1}, s{sT0}, s{sT1}
    s_lshl_b32 s{sT1}, s{sT1}, 7
    s_add_u32 s{sT1}, s{sT1}, {WS_HF}
    v_bfe_u32 v{vFd}, v{vL}, 2, 1
    v_and_b32 v{vF}, 3, v{vL}
    v_lshlrev_b32 v{vF}, 4, v{vF}
    v_lshl_add_u32 v{vF}, v{vFd}, 7, v{vF}
    v_add_u32 v{vF}, s{sT1}, v{vF}
    s_add_u32 s{sT0}, s{sT0}, s{sNT}
    s_lshl_b32 s{sT0}, s{sT0}, 7
    s_lshl_b32 s{sT1}, s{sW}, 4
    s_add_u32 s{sT0}, s{sT0}, s{sT1}
    s_add_u32 s{sLW}, s{sT0}, {WS_HF}
    """)
def h_offsets():
    for s in range(4):
        k.e(f"s_xor_b32 s{sT0}, s{sW}, {s}\ns_lshl_b32 s{sT0}, s{sT0}, 10\nv_add_u32 v{vHs+s}, s{sT0}, v{vL16}")
def poll_m(): k.vmem(f"buffer_load_dwordx2 {V(vFd,2)}, v{vF}, s[{rWS}:{rWS+3}], 0 offen sc1", "hf")
FL = 96
def h_flag(track=True):
    k.e(f"v_mov_b32 v{FL}, s{sNonce}\nv_mov_b32 v{FL+1}, s{sNonce}\nv_lshlrev_b32 v{FL+2}, 26, v{vL}")
    k.wait_vm("h")
    tx = f"buffer_store_dwordx2 {V(FL,2)}, v{FL+2}, s[{rWS}:{rWS+3}], s{sLW} offen sc1"
    k.vmem(tx, "fl") if track else k.e(tx)
EX_, ED, EB, TKv, U = 100, 110, 120, 130, 132
def ep_loads():
    k.e(f"""
    s_lshl_b32 s{sT0}, s{sMT}, 7
    s_lshl_b32 s{sT1}, s{sHALF}, 6
    s_add_u32 s{sT0}, s{sT0}, s{sT1}
    s_add_u32 s{sT0}, s{sT0}, s{sW}
    s_mul_i32 s{sX}, s{sT0}, 1280
    s_mul_i32 s{sT0}, s{sDT}, 160
    s_add_u32 s{sX}, s{sX}, s{sT0}
    v_lshrrev_b32 v{U}, 2, v{vL}
    v_and_b32 v{U+1}, 3, v{vL}
    v_lshlrev_b32 v{U+2}, 3, v{U+1}
    v_mul_u32_u24 v{XO}, 5120, v{U}
    v_add_u32 v{XO}, v{XO}, v{U+2}
    v_mul_u32_u24 v{LO}, {RROW}, v{U}
    v_lshl_add_u32 v{LO}, v{U+1}, 4, v{LO}
    v_lshlrev_b32 v{U}, 6, v{U}
    s_lshl_b32 s{sT1}, s{sHALF}, 10
    v_add_u32 v{U}, s{sT1}, v{U}
    s_lshl_b32 s{sT1}, s{sW}, 4
    v_add_u32 v{U}, s{sT1}, v{U}
    """)
    k.ds(f"ds_read_b64 {V(TKv,2)}, v{U} offset:{L_TOK}", "tk")
    for g in range(5): k.vmem(f"buffer_load_dwordx2 {V(EX_+2*g,2)}, v{XO}, s[{rX}:{rX+3}], s{sX} offen offset:{32*g}", "ep")
    for reg, o_ in ((ED, 0), (EB, 160)):
        for g in range(5): k.ds(f"ds_read_b64 {V(reg+2*g,2)}, v{U+2} offset:{L_DB + o_ + 32*g}", "tk")
def residual(fd=None):
    k.wait_vm("ep"); k.wait_lg()
    for g in range(5):
        if fd: fd.tick(1)
        xf, df, bf_ = U + 4, U + 8, U + 12
        for src, dst in ((EX_ + 2*g, xf), (ED + 2*g, df), (EB + 2*g, bf_)):
            for h in range(2):
                k.e(f"v_lshlrev_b32 v{dst+2*h}, 16, v{src+h}\nv_and_b32 v{dst+2*h+1}, 0xffff0000, v{src+h}")
        A_ = [RES + 4*g, RES + 4*g + 2]
        def rnd():
            for a in A_: k.e(f"v_cvt_pk_bf16_f32 v{a+1}, v{a}, v{a+1}")
            for a in A_: k.e(f"v_lshlrev_b32 v{a}, 16, v{a+1}\nv_and_b32 v{a+1}, 0xffff0000, v{a+1}")
        for h, a in enumerate(A_): k.e(f"v_pk_add_f32 {V(a,2)}, {V(xf+2*h,2)}, {V(TKv,2)} op_sel:[0,0] op_sel_hi:[1,0] neg_lo:[0,1] neg_hi:[0,1]")
        rnd()
        for h, a in enumerate(A_): k.e(f"v_pk_mul_f32 {V(a,2)}, {V(a,2)}, {V(TKv,2)} op_sel:[0,1] op_sel_hi:[1,1]")
        rnd()
        for h, a in enumerate(A_): k.e(f"v_pk_mul_f32 {V(a,2)}, {V(a,2)}, {V(df+2*h,2)}")
        rnd()
        for h, a in enumerate(A_): k.e(f"v_pk_add_f32 {V(a,2)}, {V(a,2)}, {V(xf+2*h,2)}")
        for h, a in enumerate(A_): k.e(f"v_pk_add_f32 {V(a,2)}, {V(a,2)}, {V(bf_+2*h,2)}")
def hload(typ, t):
    ring = HRING[t % NR]; n_ = NK[typ]
    return kaddr(sT3, sHa + 2*(t // n_), t % n_, 4096), [[VM(f"buffer_load_dwordx4 {R(ring[s][0], ring[s][1], 4)}, v{vHs+s}, s[{rWS}:{rWS+3}], s{sT3} offen sc1", ("h", t))] for s in range(4)]
def seam(typ, pend, n0, n1):
    h_offsets()
    ep_loads()
    n0 = min(n0, len(pend)); n1 = min(n0 + n1, len(pend))
    run([op for _, op in pend[:n0]])
    flag_addr()
    h_flag()
    poll_m()
    ops = [op for _, op in pend[n0:n1]]
    residual(Feeder([flat(ops[(x * len(ops)) // 5:((x + 1) * len(ops)) // 5]) for x in range(5)], 1))
    stamp(7)
    k.wait_vm("hf"); check("hm" + typ, vF, vFd)
    stamp(8)
    for t in range(NR):
        a_, b_ = hload(typ, t); run(a_); run(b_)
    phase2(typ, pend[n1:])

def ones():
    k.e(f"v_mov_b32 v{vT+6}, 0x3f803f80")
    for i in range(4): k.e(f"v_accvgpr_write_b32 a{aONE+i}, v{vT+6}")

def path_mlp():
    typ = "mlp"; t = vT
    k.label("L_mlp")
    issued.clear(); k.seen.clear()
    k.vm = []; k.lg = []
    k.e(f"""
    v_and_b32 v{t+2}, 2, v{t}
    v_xor_b32 v{t+2}, v{t+1}, v{t+2}
    v_mul_u32_u24 v{t+3}, 3072, v{t}
    v_lshl_add_u32 v{vDW}, v{t+2}, 4, v{t+3}
    v_xor_b32 v{vDW+1}, 64, v{vDW}
    s_mul_i32 s{sB0}, s{sW}, {16*3072}
    s_mul_i32 s{sT0}, s{sNT}, 384
    s_add_u32 s{sB0}, s{sB0}, s{sT0}
    s_add_u32 s{sB2}, s{sB0}, {8*3072}
    s_lshl_b32 s{sLW}, s{sW}, 11
    """)
    k.e(f"""
    v_lshrrev_b32 v{t}, 2, v{vN}
    v_lshl_add_u32 v{t+1}, v{vQ}, 3, v{t}
    v_lshlrev_b32 v{t+1}, 7, v{t+1}
    v_and_b32 v{t+2}, 3, v{vN}
    v_lshl_add_u32 v{t+1}, v{t+2}, 3, v{t+1}
    v_lshrrev_b32 v{t}, 1, v{t}
    v_and_b32 v{t+2}, 1, v{vQ}
    v_lshl_add_u32 v{t}, v{t+2}, 1, v{t}
    s_lshl_b32 s{sT0}, s{sKs}, 12
    s_add_u32 s{sT0}, s{sT0}, {L_W}
    v_add_u32 v{t+1}, s{sT0}, v{t+1}
    s_mul_i32 s{sT2}, s{sWR}, 6
    """)
    for i in range(4):
        k.e(f"""
        s_add_u32 s{sT3}, s{sT2}, {i}
        s_lshr_b32 s{sT0}, s{sT3}, 2
        s_lshl_b32 s{sT0}, s{sT0}, 13
        s_and_b32 s{sT3}, s{sT3}, 3
        v_xor_b32 v{t+2}, s{sT3}, v{t}
        v_lshl_add_u32 v{t+2}, v{t+2}, 5, v{t+1}
        v_add_u32 v{vWA+i}, s{sT0}, v{t+2}
        v_xor_b32 v{vWA+4+i}, 4096, v{vWA+i}
        """)
    Kc = 2 * 0.7978845608028654 * 1.4426950408889634
    k.e(f"s_mov_b32 s{sK}, {hx(-Kc*0.044715)}\ns_mov_b32 s{sK+1}, {hx(-Kc)}")
    ones()
    xr_setup()
    rot_setup(typ)
    start_loads(typ)
    repack_setup(typ)
    stamp(15)
    run(dma_stage(typ, 1))
    small_loads(typ)
    p2_addr(typ)
    stamp(14)
    jobs, vq = common_jobs(typ)
    jobs[9] = lines(f"s_mul_i32 s{sT0}, s{sWR}, 192\nv_lshlrev_b32 v{t+3}, 3, v{vQ}\nv_add_u32 v{t+3}, s{sT0}, v{t+3}") + \
              [DSF(f"ds_read_b64 {V(vB1+2*i,2)}, v{t+3} offset:{L_B1 + 32*i}") for i in range(6)]
    left = main_loop(typ, jobs, vq, [])
    TK, CS, P2 = stats(typ)
    stamp()
    if OPT["rf_mlp"] >= 20:
        if OPT["rf_mlp"] == 20: jobs["rfchk"]()
        left = [op for tk in range(7) for op in wload(tk)]
    pend = [(6 - (len(left) - 1 - x) // 5, op) for x, op in enumerate(left)] + [(tk, op) for tk in range(7, 12) for op in wload(tk)]
    ne = OPT.get("ne_mlp", 0)
    fd = Feeder([op for _, op in pend[:ne]], 35 * 12 // max(1, ne))
    pend = pend[ne:]
    h_base()
    k.e(f"""
    s_mul_i32 s{sT1}, s{sT1}, 6
    s_add_u32 s{sT0}, s{sT0}, s{sT1}
    s_mul_i32 s{sT1}, s{sWR}, 3
    s_add_u32 s{sT0}, s{sT0}, s{sT1}
    s_lshl_b32 s{sT0}, s{sT0}, 12
    s_add_u32 s{sH}, s{sH}, s{sT0}
    """)
    stats_sum(typ, CS, P2)
    B = 100
    for i in range(6):
        for h in range(2):
            k.e(f"v_lshlrev_b32 v{B+4*i+2*h}, 16, v{vB1+2*i+h}\nv_and_b32 v{B+4*i+2*h+1}, 0xffff0000, v{vB1+2*i+h}")
    TM = 124
    OUT = [88, 92]
    n_ = 0
    for u in range(3):
        for j in range(4):
            o = OUT[n_ & 1]; n_ += 1
            if n_ == 11 and OPT["rf_mlp"] > 20: rflag_fetch(vT + 4)
            k.raw(".p2align 3")
            prs = [(2*u + ii, h) for ii in range(2) for h in range(2)]
            Z = [acc(i, j) + 2*h for i, h in prs]
            T1 = [TM + 2*x for x in range(4)]; T2 = [TM + 8 + 2*x for x in range(4)]
            for x, (i, h) in enumerate(prs):
                k.e(f"v_pk_fma_f32 {V(T1[x],2)}, {V(CS+4*i+2*h,2)}, {V(TK+4*j+2,2)}, {V(B+4*i+2*h,2)} op_sel:[0,1,0] op_sel_hi:[1,1,1] neg_lo:[0,1,0] neg_hi:[0,1,0]")
            for x in range(4):
                k.e(f"v_pk_fma_f32 {V(Z[x],2)}, {V(Z[x],2)}, {V(TK+4*j+2,2)}, {V(T1[x],2)} op_sel:[0,0,0] op_sel_hi:[1,0,1]")
            fd.tick(12)
            for x in range(4): k.e(f"v_pk_mul_f32 {V(T1[x],2)}, {V(Z[x],2)}, {V(Z[x],2)}")
            for x in range(4): k.e(f"v_pk_fma_f32 {V(T1[x],2)}, {V(T1[x],2)}, s[{sK}:{sK+1}], s[{sK}:{sK+1}] op_sel:[0,0,1] op_sel_hi:[1,0,1]")
            for x in range(4): k.e(f"v_pk_mul_f32 {V(T1[x],2)}, {V(T1[x],2)}, {V(Z[x],2)}")
            for x in range(4): k.e(f"v_exp_f32 v{T2[x]}, v{T1[x]}\nv_exp_f32 v{T2[x]+1}, v{T1[x]+1}")
            fd.tick(12)
            for x in range(4): k.e(f"v_pk_add_f32 {V(T2[x],2)}, {V(T2[x],2)}, 1.0 op_sel_hi:[1,0]")
            for x in range(4): k.e(f"v_rcp_f32 v{T2[x]}, v{T2[x]}\nv_rcp_f32 v{T2[x]+1}, v{T2[x]+1}")
            if n_ < 12: fd.tick(12)
            for x in range(4): k.e(f"v_pk_mul_f32 {V(Z[x],2)}, {V(Z[x],2)}, {V(T2[x],2)}")
            for x in range(4): k.e(f"v_cvt_pk_bf16_f32 v{o+x}, v{Z[x]}, v{Z[x]+1}")
            k.vmem(f"buffer_store_dwordx4 {V(o,4)}, v{vL16}, s[{rWS}:{rWS+3}], s{sH} offen offset:{j*1024} sc1", "h")
        if u < 2: k.e(f"s_add_u32 s{sH}, s{sH}, 4096")
    fd.flush()
    stamp()
    if OPT["rf_mlp"] > 20: jobs["rfchk"]()
    seam(typ, pend, OPT['post0'], OPT['post'])

def cmul_acc(d, a, b, c):
    k.e(f"v_pk_fma_f32 {V(d,2)}, {V(a,2)}, {V(b,2)}, {V(c,2)} op_sel:[0,0,0] op_sel_hi:[1,0,1]")
    k.e(f"v_pk_fma_f32 {V(d,2)}, {V(a,2)}, {V(b,2)}, {V(d,2)} op_sel:[1,1,0] op_sel_hi:[0,1,1] neg_lo:[0,1,0]")

PR = 100
def masked(m, ins):
    def f():
        k.e(f"s_mov_b32 exec_lo, {m}\ns_mov_b32 exec_hi, {m}"); k.ds(ins); k.e("s_mov_b64 exec, -1")
    return F(f, 4, ds=True)
def power(KK, al, be, t):
    x, y, c_, s_ = t+10, t+11, t+12, t+13
    return lines(f"""
    v_mul_f32 v{y}, v{KK}, v{be}
    v_mul_f32 v{x}, v{KK}, v{al}
    v_fract_f32 v{y}, v{y}
    v_cos_f32 v{c_}, v{y}
    v_sin_f32 v{s_}, v{y}
    v_exp_f32 v{x}, v{x}
    s_nop 0
    v_mul_f32 v{t+14}, v{x}, v{c_}
    v_mul_f32 v{t+15}, v{x}, v{s_}
    """)
def table_a():
    t = 80; CH_ = vB1 + 10
    lr, li, dt, al, be, KK, AD = PR, PR+1, PR+2, t+8, t+9, t, t+1
    x, y, c_, s_ = t+10, t+11, t+12, t+13
    LOG2E = 1.4426950408889634
    fl = lines(f"""
    v_lshlrev_b32 v{dt}, 16, v{dt}
    v_lshlrev_b32 v{lr}, 16, v{lr}
    v_mul_f32 v{dt}, {hx(LOG2E)}, v{dt}
    v_exp_f32 v{dt}, v{dt}
    v_lshlrev_b32 v{li}, 16, v{li}
    {bfr(dt, dt)}
    v_mul_f32 v{al}, v{dt}, v{lr}
    v_mul_f32 v{be}, v{dt}, v{li}
    v_mul_f32 v{al}, {hx(LOG2E)}, v{al}
    v_mul_f32 v{be}, 0.15915494, v{be}
    v_lshlrev_b32 v{KK}, 6, v{CH_+1}
    v_max_u32 v{KK}, 1, v{KK}
    v_cvt_f32_u32 v{KK}, v{KK}
    v_lshlrev_b32 v{AD}, 3, v{CH_}
    """)
    fl.append(DSF(f"ds_write_b64 v{AD}, {V(al,2)} offset:{L_EX}"))
    fl.append(note(mk, 'ab'))
    fl += power(KK, al, be, t)
    fl += lines(f"""
    v_lshlrev_b32 v{AD}, 3, v{CH_+1}
    v_min_u32 v{x}, 1, v{CH_+1}
    v_mad_u32_u24 v{AD}, v{x}, 40, v{AD}
    v_lshl_add_u32 v{AD}, v{CH_}, 6, v{AD}
    """)
    fl.append(DSF(f"ds_write_b64 v{AD}, {V(t+14,2)} offset:{L_CH}"))
    fl += lines(f"""
    v_mul_f32 v{y}, v{lr}, v{lr}
    v_add_f32 v{x}, -1.0, v{t+14}
    v_fma_f32 v{y}, v{li}, v{li}, v{y}
    v_rcp_f32 v{y}, v{y}
    v_mul_f32 v{c_}, v{x}, v{lr}
    v_fma_f32 v{c_}, v{t+15}, v{li}, v{c_}
    v_mul_f32 v{s_}, v{t+15}, v{lr}
    v_fma_f32 v{s_}, -v{x}, v{li}, v{s_}
    v_add_f32 v{y}, v{y}, v{y}
    v_mul_f32 v{t+16}, v{c_}, v{y}
    v_mul_f32 v{t+17}, v{s_}, v{y}
    """)
    fl += lines(f"v_min_u32 v{x}, 1, v{CH_+1}\nv_mul_u32_u24 v{x}, 0x30000, v{x}\nv_add_u32 v{AD}, v{AD}, v{x}")
    fl.append(DSF(f"ds_write_b64 v{AD}, {V(t+16,2)} offset:{L_CH + 8}"))
    return fl
def table_rd():
    t = 80
    return [DSF(f"ds_read_b64 {V(PR+4+2*u,2)}, v{t+3} offset:{L_EX + u*128}") for u in range(5)]
def table_b():
    t = 80
    K1, APW, R1 = t+7, t+4, t+5
    k.e(f"""
    v_lshrrev_b32 v{t+2}, 4, v0
    v_lshlrev_b32 v{t+3}, 3, v{t+2}
    v_lshlrev_b32 v{K1}, 2, v{vN}
    v_cvt_f32_u32 v{K1}, v{K1}
    v_lshlrev_b32 v{APW}, 7, v{t+2}
    v_lshl_add_u32 v{APW}, v{vN}, 3, v{APW}
    v_ffbl_b32 v{R1}, v{vN}
    v_lshlrev_b32 v{R1}, 3, v{R1}
    v_lshl_add_u32 v{R1}, v{t+2}, 6, v{R1}
    v_bcnt_u32_b32 v{t+6}, v{vN}, -1
    v_min_u32 v{t+6}, 1, v{t+6}
    v_mul_u32_u24 v{t+6}, 0x30000, v{t+6}
    v_add_u32 v{R1}, v{R1}, v{t+6}
    """)
    fl = []
    for u in range(5):
        fl += power(K1, PR+4+2*u, PR+5+2*u, t)
        fl.append(DSF(f"ds_write_b64 v{APW}, {V(t+14,2)} offset:{L_PW + u*2048}"))
        fl.append(DSF(f"ds_write_b64 v{R1}, {V(t+14,2)} offset:{L_CH + 16 + u*1024}"))
    return fl

def path_ssm():
    typ = "ssm"; t = vT
    k.e(f"""
    v_and_b32 v{t+2}, 6, v{t}
    v_or_b32 v{t+3}, s{sWC}, v{t+2}
    v_xor_b32 v{t+1}, v{t+1}, v{t+3}
    v_lshlrev_b32 v{t+1}, 4, v{t+1}
    v_and_b32 v{t+3}, 1, v{t}
    v_lshl_add_u32 v{t+2}, v{t+2}, 2, v{t+3}
    v_mul_u32_u24 v{t+2}, 1280, v{t+2}
    v_add_u32 v{vDW}, v{t+2}, v{t+1}
    v_add_u32 v{t+2}, 32, v{t}
    v_mul_u32_u24 v{t+2}, 1280, v{t+2}
    v_add_u32 v{vDW+1}, v{t+2}, v{t+1}
    s_mul_i32 s{sT0}, s{sNT}, 80
    s_mul_i32 s{sT1}, s{sWR}, 40
    s_add_u32 s{sT0}, s{sT0}, s{sT1}
    s_mul_i32 s{sB0}, s{sT0}, 1280
    s_add_u32 s{sB2}, s{sB0}, 5120
    s_mul_i32 s{sLW}, s{sWR}, 10240
    s_lshl_b32 s{sT0}, s{sWC}, 10
    s_add_u32 s{sLW}, s{sLW}, s{sT0}
    """)
    k.e(f"""
    v_and_b32 v{t+1}, 1, v{vN}
    v_lshrrev_b32 v{t+2}, 2, v{vN}
    v_lshl_add_u32 v{t+2}, v{t+2}, 1, v{t+1}
    v_xor_b32 v{t}, v{t+4}, v{t+2}
    v_lshlrev_b32 v{t}, 4, v{t}
    v_lshl_add_u32 v{t}, v{t+1}, 10, v{t}
    v_lshrrev_b32 v{t+2}, 1, v{vN}
    v_lshl_add_u32 v{t}, v{t+2}, 7, v{t}
    s_mul_i32 s{sT0}, s{sWR}, 10240
    s_add_u32 s{sT0}, s{sT0}, {L_W}
    v_add_u32 v{vWA}, s{sT0}, v{t}
    v_xor_b32 v{vWA+1}, 64, v{vWA}
    """)
    ones()
    xr_setup()
    rot_setup(typ)
    start_loads(typ)
    k.e(f"""
    v_mul_u32_u24 v{vB1+11}, 820, v0
    v_lshrrev_b32 v{vB1+11}, 16, v{vB1+11}
    v_min_u32 v{vB1+11}, 2, v{vB1+11}
    v_mul_u32_u24 v{t+1}, 80, v{vB1+11}
    v_sub_u32 v{vB1+10}, v0, v{t+1}
    v_min_u32 v{vB1+10}, 79, v{vB1+10}
    s_mul_i32 s{sT0}, s{sNT}, 160
    v_lshlrev_b32 v{t+1}, 1, v{vB1+10}
    s_mov_b32 s{rT+2}, 1280
    s_mov_b32 s{rT+3}, 0x20000
    """)
    for pi, ptr in enumerate((pLre, pLim, pLdt)):
        k.e(f"s_mov_b32 s{rT}, s{ptr}\ns_mov_b32 s{rT+1}, s{ptr+1}")
        k.vmem(f"buffer_load_ushort v{PR+pi}, v{t+1}, s[{rT}:{rT+3}], s{sT0} offen", "par")
    repack_setup(typ)
    stamp(15)
    run(dma_stage(typ, 1))
    small_loads(typ)
    p2_addr(typ)
    stamp(14)
    jobs, vq = common_jobs(typ)
    jobs[("wait", 0)] = ["par"]
    tj = table_a() + [gate(lambda: curblk[0] % 2 == 1 and curblk[0] > mk['ab'])] + table_rd() + [note(mk, 'rd'), gate(lambda: curblk[0] > mk['rd'])] + table_b()
    vC0, vC1, vP0, vP1, vE0, vE1, vGc, vGr, vPub = vB1, vB1+1, vB1+2, vB1+3, vB1+4, vB1+5, vB1+6, vB1+7, vB1+8
    CH_, WH_ = vB1 + 10, vB1 + 11
    vG = 114
    sVal = [28, 30, 36, 38, 40]
    u_ = 96
    ad = lines(f"""
    s_mul_i32 s{sT0}, s{sWR}, 40
    v_lshlrev_b32 v{u_}, 3, v{vQ}
    v_add_u32 v{u_}, s{sT0}, v{u_}
    v_lshlrev_b32 v{u_+1}, 1, v{vQ}
    v_add_u32 v{u_+1}, s{sT0}, v{u_+1}
    v_add_u32 v{u_+1}, 32, v{u_+1}
    v_lshlrev_b32 v{vC0}, 6, v{u_}
    v_lshlrev_b32 v{vC1}, 6, v{u_+1}
    v_lshlrev_b32 v{u_+2}, 3, v{vN}
    v_lshl_add_u32 v{vP0}, v{u_}, 7, v{u_+2}
    v_lshl_add_u32 v{vP1}, v{u_+1}, 7, v{u_+2}
    s_mul_i32 s{sT0}, s{sWC}, 640
    v_lshlrev_b32 v{vE0}, 3, v{u_}
    v_lshlrev_b32 v{vE1}, 3, v{u_+1}
    v_add_u32 v{vE0}, s{sT0}, v{vE0}
    v_add_u32 v{vE1}, s{sT0}, v{vE1}
    v_sub_u32 v{u_+2}, 15, v{vN}
    v_min_u32 v{u_+2}, 1, v{u_+2}
    v_mul_u32_u24 v{u_+2}, 0x30000, v{u_+2}
    v_add_u32 v{vB1+9}, v{u_+2}, v{vE0}
    v_add_u32 v119, v{u_+2}, v{vE1}
    v_lshlrev_b32 v{vGc}, 3, v{CH_}
    v_lshlrev_b32 v{vGr}, 6, v{CH_}
    v_lshlrev_b32 v{u_}, 4, v{CH_}
    v_lshl_add_u32 v{vPub}, v{WH_}, 26, v{u_}
    v_mul_u32_u24 v{u_+2}, 5, v{WH_}
    v_sub_u32 v{u_+2}, s{sMT}, v{u_+2}
    """)
    for i in range(5):
        ad += lines(f"""
        v_add_u32 v{u_+2}, -1, v{u_+2}
        v_mul_i32_i24 v{vG+i}, 1280, v{u_+2}
        v_cmp_le_i32 s[{sVal[i]}:{sVal[i]+1}], 0, v{u_+2}
        v_add_u32 v{vG+i}, v{vG+i}, v{u_}
        v_min_u32 v{vG+i}, {OOB}, v{vG+i}
        """)
    for f in ad: f()
    stamp(61)
    tj = tj + lines(f"""
    s_mul_i32 s{sHw}, s{sNT}, {16*1280}
    s_add_u32 s{sHw}, s{sHw}, {WS_E}
    s_mul_i32 s{sH}, s{sMT}, 1280
    s_add_u32 s{sH}, s{sH}, s{sHw}
    """)
    if OPT.get('lv', 9) < 2: tj = []
    left = main_loop(typ, jobs, vq, tj)
    vG2 = 8
    for i in range(6): k.e(f"v_mov_b32 v{vG2+i}, v{vG+i}")
    TK, CS, P2 = stats(typ)
    stamp()
    if OPT["rf_ssm"] >= 20:
        if OPT["rf_ssm"] == 20: jobs["rfchk"]()
        left = [op for tk in range(7) for op in wload(tk)]
    early = [(6 - (len(left) - 1 - x) // 5, op) for x, op in enumerate(left)] + [(tk, op) for tk in range(7, 10) for op in wload(tk)]
    e1 = OPT['e1']; ew = min(OPT['ew'], len(early) - e1)
    wd = [op for _, op in early]
    assert e1 == 0 or OPT['rf_ssm'] <= 20
    fd = Feeder(wd[:e1], 300 // max(1, e1))
    slots = [(i, h) for i in range(5) for h in range(2)]
    def rec(i, h): return (vC0, L_CH + (2*i + h)*64) if i < 4 else (vC1, L_CH + h*64)
    LC = 100
    stats_sum(typ, CS, P2)
    for x, (i, h) in enumerate(slots):
        a_, o_ = rec(i, h); k.ds(f"ds_read_b128 {V(LC+4*x,4)}, v{a_} offset:{o_}", ("lc", x))
    k.raw(".p2align 3")
    for x, (i, h) in enumerate(slots):
        fd.tick(8)
        for j in range(4):
            z = acc(i, j) + 2*h
            k.e(f"v_pk_fma_f32 {V(z,2)}, {V(CS+4*i+2*h,2)}, {V(TK+4*j,2)}, {V(z,2)} op_sel:[0,0,0] op_sel_hi:[1,0,1] neg_lo:[0,1,0] neg_hi:[0,1,0]")
        for j in range(4):
            z = acc(i, j) + 2*h
            k.e(f"v_pk_mul_f32 {V(z,2)}, {V(z,2)}, {V(TK+4*j,2)} op_sel:[0,1] op_sel_hi:[1,1]")
    if "rpflag" in jobs: jobs["rpflag"]()
    EE = 140; TMP = 88
    MU = [t, t + 20]
    def load_mu(st):
        for x, (i, h) in enumerate(slots):
            a_, o_ = rec(i, h); k.ds(f"ds_read_b64 {V(MU[st & 1]+2*x,2)}, v{a_} offset:{o_ + 16 + 8*st}", ("mu", st))
    k.wait_lg()
    load_mu(0); load_mu(1)
    def ereg(x): return EE + 2*x
    def treg(x): return (240 + 2*x) if x < 8 else (TMP + 2*(x - 8))
    k.raw(".p2align 3")
    for x, (i, h) in enumerate(slots): cmul_acc(ereg(x), acc(i,0)+2*h, LC+4*x, acc(i,1)+2*h)
    fd.tick(20)
    for x, (i, h) in enumerate(slots): cmul_acc(treg(x), ereg(x), LC+4*x, acc(i,2)+2*h)
    fd.tick(20)
    for x, (i, h) in enumerate(slots): cmul_acc(ereg(x), treg(x), LC+4*x, acc(i,3)+2*h)
    PWv = t
    for st, sh in enumerate((1, 2, 4, 8)):
        fd.tick(20)
        k.raw(".p2align 3")
        for x in range(10):
            k.e(f"v_mov_b32_dpp v{treg(x)}, v{ereg(x)} row_shr:{sh} row_mask:0xf bank_mask:0xf bound_ctrl:0")
            k.e(f"v_mov_b32_dpp v{treg(x)+1}, v{ereg(x)+1} row_shr:{sh} row_mask:0xf bank_mask:0xf bound_ctrl:0")
        fd.tick(20)
        k.wait_lg(("mu", st))
        k.raw(".p2align 3")
        for x in range(10): cmul_acc(ereg(x), treg(x), MU[st & 1]+2*x, ereg(x))
        if st < 2: load_mu(st + 2)
        if st == 2:
            for x, (i, h) in enumerate(slots):
                k.ds(f"ds_read_b64 {V(PWv+2*x,2)}, v{vP0 if i < 4 else vP1} offset:{L_PW + ((2*i+h)*128 if i < 4 else h*128)}", "pw")
    for i in range(5):
        k.ds(f"ds_write_b128 v{vB1+9 if i < 4 else 13}, {V(EE+4*i,4)} offset:{L_EX + (16*i if i < 4 else 0)}")
    ch = t + 20
    E0, E1, LL, ET, GA = ch, ch+2, ch+4, ch+8, 14
    GA = [ch+8, ch+12, ch+16, ch+20, ch+24]
    k.ds(f"ds_read_b128 {V(LL,4)}, v{vGr} offset:{L_CH+48}", "e")
    k.e(f"v_mov_b32 v{ET+1}, s{sNonce}\nv_mov_b32 v{ET+3}, s{sNonce}")
    fd.flush()
    k.wait_lg()
    k.e("s_barrier")
    k.ds(f"ds_read_b64 {V(E0,2)}, v{vGc} offset:{L_EX}", "e")
    k.ds(f"ds_read_b64 {V(E1,2)}, v{vGc} offset:{L_EX+640}", "e")
    k.wait_lg()
    cmul_acc(E1, E0, LL, E1)
    k.e(f"v_mov_b32 v{ET}, v{E1}\nv_mov_b32 v{ET+2}, v{E1+1}")
    k.vmem(f"buffer_store_dwordx4 {V(ET,4)}, v{vPub}, s[{rWS}:{rWS+3}], s{sH} offen sc1", "e")
    stamp()
    def gather(track):
        for i in range(5):
            tx = f"buffer_load_dwordx4 {V(GA[i],4)}, v{vG2+i}, s[{rWS}:{rWS+3}], s{sHw} offen sc1"
            k.vmem(tx, "ga") if track else k.e(tx)
    k.e("s_nop 1")
    if OPT["rf_ssm"] > 20: rflag_fetch(20)
    gather(True)
    fd = Feeder(wd[e1:e1 + ew], 1)
    per = ew / (13.0 - OPT.get('wskip', 4))
    done = [0.0]
    cnt = [0]
    def tk_():
        cnt[0] += 1
        if cnt[0] <= OPT.get("wskip", 4): return
        if cnt[0] == OPT["wskip"] + 1 and OPT["rf_ssm"] > 20:
            k.wait_vm("rfv"); check("rf_ssm", RFV, 20)
        done[0] += per; n_ = int(done[0]); done[0] -= n_; fd.tick(n_); k.raw(".p2align 3")
    WT, W2 = 14, 16
    for x in range(10):
        k.e(f"v_mov_b32_dpp v{treg(x)}, v{ereg(x)} row_shr:1 row_mask:0xf bank_mask:0xf bound_ctrl:0")
        k.e(f"v_mov_b32_dpp v{treg(x)+1}, v{ereg(x)+1} row_shr:1 row_mask:0xf bank_mask:0xf bound_ctrl:0")
    def cmul(d, a, b, tmp):
        k.e(f"v_pk_mul_f32 {V(tmp,2)}, {V(a,2)}, {V(b,2)} op_sel:[0,0] op_sel_hi:[1,0]")
        k.e(f"v_pk_fma_f32 {V(d,2)}, {V(a,2)}, {V(b,2)}, {V(tmp,2)} op_sel:[1,1,0] op_sel_hi:[0,1,1] neg_lo:[0,1,0]")
    tk_()
    for x in range(10): cmul(treg(x), treg(x), LC+4*x+2, ereg(x))
    tk_()
    for x in range(10): cmul(PWv+2*x, PWv+2*x, LC+4*x+2, ereg(x))
    for x, (i, h) in enumerate(slots):
        tk_()
        for j in range(4): cmul(acc(i,j)+2*h, acc(i,j)+2*h, LC+4*x+2, EE+2*j)
    tk_()
    cmul(WT, LL+2, LL+2, W2); cmul(WT, WT, WT, W2); cmul(WT, WT, LL+2, W2); cmul(W2+2, WT, WT, W2)
    k.e(f"""
    v_cmp_eq_u32 vcc, 2, v{WH_}
    v_mov_b32 v{W2}, 1.0
    v_mov_b32 v{W2+1}, 0
    v_cndmask_b32 v{WT}, v{WT}, v{W2+2}, vcc
    v_cndmask_b32 v{WT+1}, v{WT+1}, v{W2+3}, vcc
    v_cmp_eq_u32 vcc, 0, v{WH_}
    v_mul_u32_u24 v{W2+2}, 640, v{WH_}
    v_add_u32 v{vGc}, v{vGc}, v{W2+2}
    v_cndmask_b32 v{WT}, v{WT}, v{W2}, vcc
    v_cndmask_b32 v{WT+1}, v{WT+1}, v{W2+1}, vcc
    v_cndmask_b32 v{E0}, v{W2+1}, v{E0}, vcc
    v_cndmask_b32 v{E0+1}, v{W2+1}, v{E0+1}, vcc
    s_mul_i32 s{sT0}, s{sWC}, 1280
    v_add_u32 v{vE0}, s{sT0}, v{vE0}
    v_add_u32 v{vE1}, s{sT0}, v{vE1}
    """)
    fd.flush()
    h_base()
    k.e(f"""
    s_mul_i32 s{sT1}, s{sT1}, 5
    s_add_u32 s{sT0}, s{sT0}, s{sT1}
    s_add_u32 s{sT0}, s{sT0}, 12
    s_lshl_b32 s{sT0}, s{sT0}, 12
    s_add_u32 s{sH}, s{sH}, s{sT0}
    s_add_u32 s{sB2}, s{sH}, {4*4096}
    s_lshl_b32 s{sT0}, s{sWR}, 3
    s_add_u32 s{sB2}, s{sB2}, s{sT0}
    s_lshl_b32 s{sT0}, s{sWR}, 13
    s_add_u32 s{sH}, s{sH}, s{sT0}
    s_add_u32 s{sB0}, s{sH}, 4096
    """)
    stamp(60)
    k.wait_vm("ga")
    k.label("L_carry_chk")
    k.e(f"s_mov_b64 s[{sEx}:{sEx+1}], 0")
    for i in range(5):
        k.e(f"""
        v_cmp_ne_u32 vcc, s{sNonce}, v{GA[i]+1}
        v_cmp_ne_u32 s[{sT0}:{sT1}], s{sNonce}, v{GA[i]+3}
        s_or_b64 vcc, vcc, s[{sT0}:{sT1}]
        s_and_b64 vcc, vcc, s[{sVal[i]}:{sVal[i]+1}]
        s_or_b64 s[{sEx}:{sEx+1}], s[{sEx}:{sEx+1}], vcc
        """)
    k.e(f"""
    s_cmp_eq_u64 s[{sEx}:{sEx+1}], 0
    s_cbranch_scc1 L_carry_done
    s_sub_u32 s{sSpin}, s{sSpin}, 1
    s_cbranch_scc1 L_end
    """)
    gather(False)
    k.e("s_waitcnt vmcnt(0)\ns_branch L_carry_chk")
    k.label("L_carry_done")
    stamp()
    for i in range(5): k.e(f"v_mov_b32 v{GA[i]+1}, v{GA[i]+2}")
    for i in (3, 2, 1, 0): cmul_acc(GA[i], GA[i+1], LL+2, GA[i])
    cmul(GA[0], GA[0], WT, W2)
    cmul_acc(E0, GA[0], LL, E0)
    k.ds(f"ds_write_b64 v{vGc}, {V(GA[0],2)} offset:{L_PW}")
    k.ds(f"ds_write_b64 v{vGc}, {V(E0,2)} offset:{L_PW + 1920}")
    k.wait_lg()
    k.e("s_barrier")
    PB = [EE, ch, 4]
    for i in range(5):
        for g in range(3):
            k.ds(f"ds_read_b128 {V(PB[g]+4*i,4)}, v{vE0 if i < 4 else vE1} offset:{L_PW + 640*g + (16*i if i < 4 else 0)}", ("pb", i))
    k.raw(".p2align 3")
    for x in range(10):
        if x % 2 == 0: k.wait_lg(("pb", x // 2)); k.raw(".p2align 3")
        k.e(f"v_pk_add_f32 {V(ereg(x),2)}, {V(ereg(x),2)}, {V(PB[1]+2*x,2)}")
        k.e(f"v_pk_add_f32 {V(ereg(x),2)}, {V(ereg(x),2)}, {V(PB[2]+2*x,2)}")
        cmul_acc(treg(x), ereg(x), PWv+2*x, treg(x))
    O = ch
    pend = sorted(early[e1 + ew:], key=lambda x: x[0])
    ej = [op for _, op in pend[:OPT['e2']]]; pend = pend[OPT['e2']:]
    fd = Feeder(ej, 1)
    for j in range(4):
        fd.tick((len(ej) + 3) // 4)
        k.raw(".p2align 3")
        for x, (i, h) in enumerate(slots):
            prev = treg(x) if j == 0 else acc(i, j-1) + 2*h
            cmul_acc(acc(i,j)+2*h, prev, LC+4*x, acc(i,j)+2*h)
        o = O + (j & 1) * 10
        for i in range(4): k.e(f"v_cvt_pk_bf16_f32 v{o+i}, v{acc(i,j)}, v{acc(i,j)+2}")
        for i in range(4): k.e(f"v_cvt_pk_bf16_f32 v{o+4+i}, -v{acc(i,j)+1}, -v{acc(i,j)+3}")
        k.e(f"v_cvt_pk_bf16_f32 v{o+8}, v{acc(4,j)}, v{acc(4,j)+2}")
        k.e(f"v_cvt_pk_bf16_f32 v{o+9}, -v{acc(4,j)+1}, -v{acc(4,j)+3}")
        k.vmem(f"buffer_store_dwordx4 {V(o,4)}, v{vL16}, s[{rWS}:{rWS+3}], s{sH} offen offset:{j*1024} sc1", "h")
        k.vmem(f"buffer_store_dwordx4 {V(o+4,4)}, v{vL16}, s[{rWS}:{rWS+3}], s{sB0} offen offset:{j*1024} sc1", "h")
        k.vmem(f"buffer_store_dwordx2 {V(o+8,2)}, v{vL16}, s[{rWS}:{rWS+3}], s{sB2} offen offset:{j*1024} sc1", "h")
    fd.flush()
    stamp()
    seam(typ, pend, OPT['post0_s'], OPT['post'])

def poll(tag, vaddr, vd):
    k.e(f"""
    L_poll_{tag}:
    buffer_load_dwordx2 {V(vd,2)}, v{vaddr}, s[{rWS}:{rWS+3}], 0 offen sc1
    s_waitcnt vmcnt(0)
    v_cmp_ne_u32 vcc, s{sNonce}, v{vd}
    v_cmp_ne_u32 s[{sT0}:{sT1}], s{sNonce}, v{vd+1}
    s_or_b64 vcc, vcc, s[{sT0}:{sT1}]
    s_cmp_eq_u64 vcc, 0
    s_cbranch_scc1 L_pollok_{tag}
    s_sub_u32 s{sSpin}, s{sSpin}, 1
    s_cbranch_scc1 L_end
    s_sleep 1
    s_branch L_poll_{tag}
    L_pollok_{tag}:
    """)
    k.vm = []

def acc2(p_, i, s): return 96 + 80*p_ + (i*4 + s)*4
def phase2(typ, pend):
    stamp_n[0] = 10
    n_ = NK[typ]; T = 2*n_
    AD = [88, 89, 90, 91]
    XF, XD = 92, 94
    sXo, sXi, sFo = sB0, sH, sHw
    setup = lines(f"""
    v_mul_u32_u24 v{vRw}, {RROW}, v{vN}
    v_lshl_add_u32 v{vRw}, v{vQ}, 4, v{vRw}
    v_add_u32 v{vRw}, s{sWLb}, v{vRw}
    v_lshlrev_b32 v{XO}, 1, v{XO}
    s_lshl_b32 s{sB2}, s{sX}, 1
    s_mov_b32 s{rW}, s{pOut}
    s_mov_b32 s{rW+1}, s{pOut+1}
    s_mov_b32 s{rW+2}, {2048*2560}
    s_mov_b32 s{rW+3}, 0x20000
    s_lshl_b32 s{sXi}, s{sMT}, 3
    s_add_u32 s{sXi}, s{sXi}, s{sDT}
    s_lshl_b32 s{sXi}, s{sXi}, 1
    s_add_u32 s{sXi}, s{sXi}, s{sHALF}
    s_xor_b32 s{sXo}, s{sXi}, 1
    s_lshl_b32 s{sFo}, s{sXo}, 6
    s_lshl_b32 s{sLX}, s{sW}, 4
    s_add_u32 s{sLX}, s{sLX}, {WS_XF}
    s_add_u32 s{sFo}, s{sFo}, s{sLX}
    s_lshl_b32 s{sUnit}, s{sXi}, 6
    s_add_u32 s{sUnit}, s{sUnit}, s{sLX}
    v_mov_b32 v{XF}, s{sUnit}
    v_lshlrev_b32 v{XF+1}, 26, v{vL}
    s_mul_i32 s{sLX}, s{sW}, 5120
    s_add_u32 s{sLX}, s{sLX}, {WS_XB}
    s_mul_i32 s{sXi}, s{sXi}, 20480
    s_add_u32 s{sXi}, s{sXi}, s{sLX}
    s_mul_i32 s{sXo}, s{sXo}, 20480
    s_add_u32 s{sXo}, s{sXo}, s{sLX}
    s_add_u32 s{sDX}, s{sXi}, 4096
    s_add_u32 s{sDW}, s{sXo}, 4096
    """)
    for s in range(4):
        setup += lines(f"s_xor_b32 s{sLX}, s{sW}, {s}\ns_mul_i32 s{sLX}, s{sLX}, {WLW}\ns_add_u32 s{sLX}, s{sLX}, {L_WL + s*RBLK}\nv_add_u32 v{AD[s]}, s{sLX}, v{LO}")
    def red_w(p_, s): return [DSF(f"ds_write_b128 v{vRw}, {V(acc2(p_,i,s),4)} offset:{s*RBLK + i*64}", "rw") for i in range(5)]
    RD = [96 + 16*g for g in range(5)]
    def red_r(g): return [DSF(f"ds_read_b128 {V(RD[g]+4*s,4)}, v{AD[s]} offset:{64*g}", ("r", g)) for s in range(4)]
    bgq = list(setup)
    per = -(-len(pend) // OPT["kw"])
    for t in range(T):
        p_, tk = divmod(t, n_)
        assert not [1 for t_, _ in pend if t_ <= t], (typ, t)
        if OPT.get("fine2"): stamp(14 + 2*t)
        k.wait_vm([("w", tk), ("h", t)])
        if OPT.get("fine2"): stamp(15 + 2*t)
        wk, wb = wreg(tk); ring = HRING[t % NR]
        m = []
        for s in range(4):
            for i in range(5):
                c = "0" if tk == 0 else V(acc2(p_, i, s), 4)
                m.append(f"v_mfma_f32_16x16x32_bf16 {V(acc2(p_,i,s),4)}, {R(wk, wb+4*i, 4)}, {R(ring[s][0], ring[s][1], 4)}, {c}")
        streams = []
        if t + NR < T:
            a_, b_ = hload(typ, t + NR)
            streams.append((a_, 0, 2, True))
            for s in range(4): streams.append((b_[s], 5*s + 4, 5*s + 4, True))
        mem = []
        for _ in range(per):
            if pend: mem += flat([pend.pop(0)[1]])
        u = t - n_
        if u == 0:
            assert not bgq
            streams.append((sum((red_w(0, s) for s in range(3)), []), 2, 19, True))
        if u == 1: streams.append((red_w(0, 3), 0, 6, True))
        if u == 2:
            k.wait_lg(); k.e("s_barrier")
            streams.append((red_r(0) + red_r(1) + red_r(2), 0, 16, True))
        if u == 3: streams.append((red_r(3) + red_r(4), 0, 12, True))
        if u in (3, 4):
            for g in ((0, 1, 2) if u == 3 else (3, 4)):
                bgq += [F(lambda g=g: k.wait_lg(("r", g)), 1)]
                bgq += lines("\n".join(f"v_add_f32 v{RD[g]+x}, v{RD[g]+x}, v{RD[g]+4+x}" for x in range(4)) + "\n" +
                             "\n".join(f"v_add_f32 v{RD[g]+8+x}, v{RD[g]+8+x}, v{RD[g]+12+x}" for x in range(4)) + "\n" +
                             "\n".join(f"v_add_f32 v{RD[g]+x}, v{RD[g]+x}, v{RD[g]+8+x}" for x in range(4)))
                bgq += [VM(f"buffer_store_dwordx4 {V(RD[g],4)}, v{vL16}, s[{rWS}:{rWS+3}], s{sXo if g < 4 else sDW} offen offset:{(g & 3)*1024} sc1", ("xs", g))]
        if u == n_ - 2: k.e("s_barrier")
        if u == n_ - 3: mem += [VM(f"buffer_load_dwordx2 {V(vFd,2)}, v{XF}, s[{rWS}:{rWS+3}], 0 offen sc1", "xp")]
        if u == OPT["xfu"]:
            run(bgq); bgq.clear()
            k.e(f"v_mov_b32 v{XD}, s{sNonce}\nv_mov_b32 v{XD+1}, s{sNonce}")
            k.wait_vm(("xs", 4))
            k.vmem(f"buffer_store_dwordx2 {V(XD,2)}, v{XF+1}, s[{rWS}:{rWS+3}], s{sFo} offen sc1", "xf")
        if u == n_ - 1:
            k.wait_vm("xp"); check("x" + typ, XF, vFd)
            mem += [VM(f"buffer_load_dwordx4 {V(RD[g],4)}, v{vL16}, s[{rWS}:{rWS+3}], s{sXi if g < 4 else sDX} offen offset:{(g & 3)*1024} sc1", "xl") for g in range(5)]
            streams.append((red_w(1, 0) + red_w(1, 1), 8, 19, True))
        streams.append((mem, 1, 18, True))
        streams.append((bgq, 0, 20, False))
        sched(m, streams)
    run(red_w(1, 2))
    stamp()
    run(red_w(1, 3))
    k.wait_vm("xl")
    for g in range(5):
        for h in range(2): k.e(f"v_pk_add_f32 {V(RES+4*g+2*h,2)}, {V(RES+4*g+2*h,2)}, {V(RD[g]+2*h,2)}")
    k.wait_lg(); k.e("s_barrier")
    for g in range(5): run(red_r(g))
    for g in range(5):
        k.wait_lg(("r", g))
        o = RES + 4*g
        for h in range(2): k.e(f"v_pk_add_f32 {V(RD[g]+2*h,2)}, {V(RD[g]+2*h,2)}, {V(RD[g]+4+2*h,2)}")
        for h in range(2): k.e(f"v_pk_add_f32 {V(RD[g]+8+2*h,2)}, {V(RD[g]+8+2*h,2)}, {V(RD[g]+12+2*h,2)}")
        for h in range(2): k.e(f"v_pk_add_f32 {V(o+2*h,2)}, {V(o+2*h,2)}, {V(RD[g]+2*h,2)}")
        for h in range(2): k.e(f"v_pk_add_f32 {V(o+2*h,2)}, {V(o+2*h,2)}, {V(RD[g]+8+2*h,2)}")
        k.vmem(f"buffer_store_dwordx4 {V(o,4)}, v{XO}, s[{rW}:{rW+3}], s{sB2} offen offset:{64*g} {OPT.get('ost', '')}", "o")
    if OPT.get("spin"):
        ins, n_ = OPT["spin"]
        k.e(f"""
        s_waitcnt vmcnt(0)
        s_sub_u32 s{sST}, s{sST}, s98
        s_add_u32 s{sST}, s{sST}, {n_}
        L_spin_{typ}:
        {ins} s[100:101]
        s_waitcnt lgkmcnt(0)
        s_sub_u32 s100, s100, s98
        s_cmp_lt_u32 s100, s{sST}
        s_cbranch_scc1 L_spin_{typ}
        """)
    k.e("s_branch L_fin" if OPT["stamps"] else "s_endpgm")

def finish():
    if OPT["stamps"]:
        k.label("L_fin")
        k.wait_vm0()
        stamp(11)
        k.e(f"""
        s_memtime s[100:101]
        s_waitcnt lgkmcnt(0)
        s_sub_u32 s100, s100, s98
        v_writelane_b32 v{vST}, s100, 63
        s_lshl_b32 s{sT0}, s2, 2
        s_add_u32 s{sT0}, s{sT0}, s{sW}
        s_lshl_b32 s{sT0}, s{sT0}, 8
        s_add_u32 s{sT0}, s{sT0}, {WS_ST}
        v_lshlrev_b32 v2, 2, v{vL}
        buffer_store_dword v{vST}, v2, s[{rWS}:{rWS+3}], s{sT0} offen
        """)

prologue()
stamp_n[0] = 1
path_ssm()
stamp_n[0] = 1; cur[0] = "mlp"
path_mlp()
finish()
k.label("L_end")
body = k.text()
errs = check_hazards(body)
for e_ in errs: print("HAZARD:", e_, file=sys.stderr)

hdr = open(f"cdna_kernels/{NAME}.s.ref").read().split("\n")
hdr = [l for l in hdr if l.startswith(";") and "@launch" not in l and "Override" not in l and "grid=ceil" not in l]
out = "\n".join(hdr) + f"\n; @launch grid=(256,1,1) block=(256,1,1) lds={L_END}\n"
out += f""".amdgcn_target "amdgcn-amd-amdhsa--gfx950"
.text
.globl {NAME}_kernel
.p2align 8
.type {NAME}_kernel,@function
{NAME}_kernel:
{body}    s_endpgm
L_code_end:
.set CODE_BYTES, L_code_end - {NAME}_kernel - 512
.section .rodata,"a"
.p2align 6
.amdhsa_kernel {NAME}_kernel
  .amdhsa_next_free_vgpr 512
  .amdhsa_next_free_sgpr 102
  .amdhsa_accum_offset 256
  .amdhsa_group_segment_fixed_size 0
  .amdhsa_kernarg_size 136
  .amdhsa_user_sgpr_count 2
  .amdhsa_user_sgpr_kernarg_segment_ptr 1
  .amdhsa_system_sgpr_workgroup_id_x 1
.end_amdhsa_kernel
"""
open(sys.argv[1], "w").write(out)
print("written", sys.argv[1], len(out), "bytes; hazards:", len(errs))
```

```python
import sys, struct
sys.path.insert(0, "dev")
from asmlib import *

NAME = "parallel_sum__ssm_conv_s5__mixer_channel_mlp__prompt"
OPT = dict(stamps=False, stop=None, nt_dma="", nt_pf="", nt_rp="", pf=0, pf0=1, pford=0, post0=10, post=25, e1=0, ew=30, post0_s=0, wskip=3, rpd_mlp=(0, 3.5), rpd_ssm=(3, 9), rotg=4, e2=0, post_s=0, cpf=1, rp_mlp=(5, (6, 7, 9, 11, 12), 14), rp_ssm=(13, (15, 16, 17, 18, 19), 99), rf_mlp=17, wskip2=1, touch=8, rf_ssm=99, xfu=6, ne_mlp=10, kw=6, util=1.0, rot1=1, rot2=1)
for a_ in sys.argv[2:]:
    k_, v_ = a_.split("=", 1); OPT[k_] = eval(v_)

def f2u(x): return struct.unpack("<I", struct.pack("<f", x))[0]
def hx(x): return "0x%08x" % f2u(x)

WS_EP = 0
WS_H = 4096
WS_WP = 12 << 20
WS_E = 16 << 20
WS_RF = 17 << 20
WS_HF = (17 << 20) + 65536
WS_RS = 18 << 20
WS_ST = 20 << 20
WS_XF = (17 << 20) + 131072
WS_XB = 24 << 20
WS_SIZE = 32 << 20
OOB = 0x4000000
L_TOK = 0; L_CH = 2048; L_PW = 7168; L_EX = 17408; L_EX2 = L_EX + 1280
L_STG = 20480; L_X = 40960; L_W = 90112; L_END = 163840
XS = 16384; WSL = 24576
L_SCS = {'ssm': (L_EX2, 320), 'mlp': (L_CH + 512, 384)}; L_B1 = L_CH; L_DB = 20160
WLW = 4 * 16 * 336; RROW = 336; RBLK = 16 * RROW
L_WL = L_STG
NST = 10
pX, pLre, pLim, pBre, pBim, pCre, pCim, pLdt = 16, 18, 20, 22, 24, 26, 28, 30
pDsk, pBx, pW1, pB1, pW2, pB2, pOut, pDbg, pWs = 32, 34, 36, 38, 40, 42, 44, 46, 48
sW, sWR, sWC, sMT, sNT, sTYP, sHALF, sDT = 3, 4, 5, 6, 7, 8, 8, 7
sML, sI8 = 9, 10
sNonce = 11; sT0, sT1, sT2, sT3 = 12, 13, 14, 15
sKs = 50; sPF = 51
rX, rW, rWS, rT, rT2 = 52, 56, 60, 64, 68
sX, sLX, sLW, sB0, sB2, sPFs, sUnit, sRpSrc, sLR, sSpin = 72, 73, 74, 75, 76, 77, 78, 79, 80, 81
sK = 82; sEx = 84
sH, sHw, sWp, sDis = 86, 87, 88, 89
sST = 90
sRpD = 92
sSig = 97
sWa, sHa, sLim = 18, 22, 26
sDX, sDW = 77, 51
sKind = 88
rPF = rT2
vL, vN, vQ = 1, 2, 3
vDX0, vDX1, vXa, vXb = 4, 5, 6, 7
vDW = 8
vPF, vDR, vJunk, vNc = 10, 11, 12, 13
vWA = 14
vRA = 120
vL16 = 26
vRS = 27
vB1 = 28
vT = 40
vST = 25
ACC = 160
def acc(i, j): return ACC + (i * 4 + j) * 4
aF = [0, 40]
aONE = 80; aCS = 84

k = Asm()
k.strict = OPT.get('strict', False)
k.lenient = OPT['stamps']
stamp_n = [0]
cur = ["ssm"]
def stamp(i=None):
    if i is None:
        i = stamp_n[0]; stamp_n[0] += 1
    if OPT.get("probe") == (cur[0], i):
        k.e(f"s_memrealtime s[{sST}:{sST+1}]"); k.e("s_waitcnt lgkmcnt(0)"); k.lg = []
    if not OPT["stamps"]: return
    k.e(f"{'s_memtime' if OPT.get('cyc') else 's_memrealtime'} s[{sST}:{sST+1}]"); k.e("s_waitcnt lgkmcnt(0)"); k.lg = []
    k.e(f"v_writelane_b32 v{vST}, s{sST}, {i}")
def srd(r, ptr, size):
    k.e(f"s_mov_b32 s{r}, s{ptr}\ns_mov_b32 s{r+1}, s{ptr+1}\ns_mov_b32 s{r+2}, {size}\ns_mov_b32 s{r+3}, 0x20000")

class F:
    def __init__(self, fn, cost=1, ds=False, sep=False, ta=0): self.fn, self.cost, self.ds, self.sep, self.ta = fn, cost, ds, sep, ta
    gate = None
    def __call__(self): self.fn()
curblk = [0]
def note(d, key): return F(lambda: d.__setitem__(key, curblk[0]), 0)
def gate(fn):
    f = F(lambda: None, 0); f.gate = fn; return f
def lines(s):
    out = []; prev = set()
    for l in (x.strip() for x in s.split("\n")):
        if not l: continue
        if l == "s_nop 0":
            prev = None; continue
        parts = l.split(" | ")
        c = sum(2 if x.split()[0] in TRANS else 1 for x in parts)
        d = parse(parts[0])
        dep = prev is None or (d["valu"] and bool(d["uses"] & prev))
        prev = set().union(*[{r for r in parse(x)["defs"] if r[0] == "v"} for x in parts])
        out.append(F(lambda l=l: k.e(l.replace(" | ", "\n")), c, sep=dep))
    return out
def VM(text, tag, sep=False, ta=66): return F(lambda: k.vmem(text, tag), 2, sep=sep, ta=ta)
def DSF(text, tag=None): return F(lambda: k.ds(text, tag), 1, ds=True)
def sched(main, streams, start=0):
    n = len(main)
    st = []
    for items, g0, g1, must in streams:
        cnt = len(items) if must else min(len(items), must if isinstance(must, int) and must > 1 else len(items))
        tot = sum(f.cost for f in items[:cnt]) or 1
        tg = []; acc_ = 0
        for f in items[:cnt]:
            tg.append(g0 + (g1 - g0) * acc_ / tot if must else g0); acc_ += f.cost
        st.append(dict(items=items, tg=tg, last=-1, must=must))
    for g, m in enumerate(main):
        k.e(m)
        if g < start: continue
        room = 2; hasds = False
        prog = True
        while prog and room > 0:
            prog = False
            for x in st:
                if not x["tg"] or x["tg"][0] > g: continue
                f = x["items"][0]
                if f.gate and not f.gate(): continue
                if f.sep and x["last"] == g: continue
                if f.ds and (hasds or (not x["must"] and g >= n - 6)): continue
                if f.cost > room and room < 2 and not (not x["must"] and g - x["last"] >= 3): continue
                x["items"].pop(0); x["tg"].pop(0); x["last"] = g
                f(); room -= f.cost; hasds |= f.ds; prog = True
                break
    for x in st:
        if x["must"]:
            over = len(x["tg"])
            if over and OPT.get("show"): print("overflow", over)
            while x["tg"]:
                f = x["items"].pop(0); x["tg"].pop(0)
                if f.sep: k.e("s_nop 0")
                f()
def merge(*ls):
    ls = [l for l in ls if l]
    if not ls: return []
    if len(ls) == 1: return list(ls[0])
    items = []
    for li, l in enumerate(ls):
        for i, f in enumerate(l): items.append(((i + 0.5) / len(l), li, i, f))
    items.sort(key=lambda x: (x[0], x[1]))
    return [x[3] for x in items]

def prologue():
    t = vT
    k.e(f"""
    s_cmp_ge_u32 s2, 256
    s_cbranch_scc1 L_end
    s_load_dwordx16 s[16:31], s[0:1], 0
    s_load_dwordx16 s[32:47], s[0:1], 64
    s_load_dwordx2 s[48:49], s[0:1], 128
    v_lshrrev_b32 v{t}, 6, v0
    v_and_b32 v{vL}, 63, v0
    v_readfirstlane_b32 s{sW}, v{t}
    v_and_b32 v{vN}, 15, v{vL}
    v_lshrrev_b32 v{vQ}, 4, v{vL}
    v_lshlrev_b32 v{vL16}, 4, v{vL}
    s_and_b32 s{sT0}, s2, 7
    s_lshr_b32 s{sT1}, s2, 3
    s_lshr_b32 s{sTYP}, s{sT1}, 4
    s_bfe_u32 s{sML}, s{sT1}, 0x20002
    s_lshr_b32 s{sMT}, s{sT0}, 1
    s_lshl_b32 s{sT2}, s{sML}, 2
    s_add_u32 s{sMT}, s{sMT}, s{sT2}
    s_and_b32 s{sT2}, s{sT1}, 3
    s_lshl_b32 s{sI8}, s{sTYP}, 2
    s_add_u32 s{sI8}, s{sI8}, s{sT2}
    s_and_b32 s{sNT}, s{sT0}, 1
    s_lshl_b32 s{sNT}, s{sNT}, 2
    s_add_u32 s{sNT}, s{sNT}, s{sT2}
    s_lshr_b32 s{sWR}, s{sW}, 1
    s_and_b32 s{sWC}, s{sW}, 1
    s_xor_b32 s{sKs}, s{sWR}, s{sWC}
    s_mov_b32 s{sSpin}, 0x40000
    s_and_b32 s{sT2}, s2, 127
    s_sub_u32 s{sUnit}, 127, s{sT2}
    s_cmp_lt_u32 s{sUnit}, 96
    s_cselect_b32 s{sUnit}, s{sUnit}, 0
    s_cselect_b32 s{sDis}, 0, {OOB}
    """)
    if OPT["stamps"]:
        k.e(f"v_mov_b32 v{vST}, 0\n{'s_memtime' if OPT.get('cyc') else 's_memrealtime'} s[{sST}:{sST+1}]\ns_memtime s[98:99]"); stamp_n[0] = 1
    if OPT.get("spin"): k.e(f"{OPT['spin'][0]} s[98:99]\ns_waitcnt lgkmcnt(0)\ns_mov_b32 s{sST}, s98")
    if OPT["cpf"]:
        k.e(f"""
        s_getpc_b64 s[{sEx}:{sEx+1}]
        s_lshr_b32 s{sT1}, s2, 3
        s_lshl_b32 s{sT1}, s{sT1}, 2
        s_add_u32 s{sT1}, s{sT1}, s{sW}
        s_lshl_b32 s{sT1}, s{sT1}, 9
        v_and_b32 v{t}, 3, v{vL}
        v_lshlrev_b32 v{t}, 7, v{t}
        v_add_u32 v{t}, s{sT1}, v{t}
        v_min_u32 v{t}, CODE_BYTES, v{t}
        global_load_dword v{vJunk}, v{t}, s[{sEx}:{sEx+1}]
        """)
    k.e(f"""
    v_lshrrev_b32 v{t}, 3, v{vL}
    v_and_b32 v{t+1}, 7, v{vL}
    v_lshrrev_b32 v{t+2}, 1, v{t}
    v_xor_b32 v{t+2}, v{t+1}, v{t+2}
    v_mul_u32_u24 v{t+3}, 5120, v{t}
    v_lshl_add_u32 v{vDX0}, v{t+2}, 4, v{t+3}
    v_xor_b32 v{vDX1}, 64, v{vDX0}
    v_add_u32 v{vDX1}, 40960, v{vDX1}
    s_lshl_b32 s{sT0}, s{sMT}, 7
    s_lshl_b32 s{sT1}, s{sWR}, 6
    s_add_u32 s{sT0}, s{sT0}, s{sT1}
    s_lshl_b32 s{sT1}, s{sWC}, 1
    s_add_u32 s{sT0}, s{sT0}, s{sT1}
    s_mul_i32 s{sX}, s{sT0}, 1280
    s_lshl_b32 s{sLX}, s{sW}, 12
    s_lshl_b32 s{sT2}, s{sKs}, 2
    v_add_u32 v{t+4}, s{sT2}, v{vQ}
    v_lshrrev_b32 v{t+5}, 1, v{vN}
    v_xor_b32 v{t+5}, v{t+4}, v{t+5}
    v_lshlrev_b32 v{t+5}, 4, v{t+5}
    v_lshl_add_u32 v{t+5}, v{vN}, 7, v{t+5}
    s_lshl_b32 s{sT1}, s{sWC}, 13
    s_add_u32 s{sT1}, s{sT1}, {L_X}
    v_add_u32 v{vXa}, s{sT1}, v{t+5}
    v_xor_b32 v{vXb}, 64, v{vXa}
    s_cmp_eq_u32 s{sTYP}, 1
    s_cbranch_scc1 L_mlp
    """)

issued = {}
mk = {}
def dma(vo, rs, so, imm, sl, tgt, tag, fl, pre=None):
    def f1():
        k.e(f"s_add_u32 m0, s{sl}, {tgt - imm}")
        if pre: k.e(pre)
    def f2():
        if isinstance(tag, tuple): issued[tag[1]] = issued.get(tag[1], 0) + 1
        k.vmem(f"buffer_load_dwordx4 v{vo}, s[{rs}:{rs+3}], s{so} offen offset:{imm} {fl} lds", tag)
    return [F(f1, 2 if pre else 1), F(f2, 2, sep=True, ta=66)]
def run(ops):
    for op in ops:
        for f in (op if isinstance(op, list) else [op]):
            if f.sep: k.e("s_nop 0")
            f()
def flat(ops): return [f for op in ops for f in (op if isinstance(op, list) else [op])]
def advance(typ, stage):
    d = 64*3072 if typ == "mlp" else 128
    G = OPT["rotg"]
    if stage not in [10 - (10*g) // G for g in range(1, G)]:
        return f"s_add_u32 s{sX}, s{sX}, 128\ns_add_u32 s{sB0}, s{sB0}, {d}\ns_add_u32 s{sB2}, s{sB2}, {d}"
    return (f"s_cmp_eq_u32 s{sSig}, {10 - stage} | s_cselect_b32 s{sT3}, {-9*128 & 0xffffffff}, s{sDX} | s_cselect_b32 s{sT2}, {-9*d & 0xffffffff}, s{sDW}\n"
            f"s_add_u32 s{sX}, s{sX}, s{sT3}\ns_add_u32 s{sB0}, s{sB0}, s{sT2}\ns_add_u32 s{sB2}, s{sB2}, s{sT2}")
def rot_setup(typ):
    d = 64*3072 if typ == "mlp" else 128
    G = OPT.get("rotg", 0)
    if G == 0: rotsel = f"""    s_mul_i32 s{sT0}, s{sI8}, 5
    s_lshr_b32 s{sT0}, s{sT0}, 2
    s_mul_i32 s{sT1}, s{sML}, 5
    s_lshr_b32 s{sT1}, s{sT1}, 1
    s_add_u32 s{sT0}, s{sT0}, s{sT1}
    s_and_b32 s{sT1}, s{sMT}, 3
    s_add_u32 s{sSig}, s{sT0}, s{sT1}
    s_sub_u32 s{sT0}, s{sSig}, 10
    s_cmp_ge_u32 s{sSig}, 10
    s_cselect_b32 s{sSig}, s{sT0}, s{sSig}
    s_mul_i32 s{sSig}, s{sSig}, {OPT['rot1']}
    """
    else:
        rotsel = f"s_add_u32 s{sT0}, s{sI8}, s{sML}\ns_and_b32 s{sT0}, s{sT0}, {G-1}\ns_mul_i32 s{sT0}, s{sT0}, 10\ns_lshr_b32 s{sSig}, s{sT0}, {G.bit_length()-1}"
    k.e(f"""
    {rotsel}
    s_lshl_b32 s{sT0}, s{sSig}, 7
    s_add_u32 s{sX}, s{sX}, s{sT0}
    s_mul_i32 s{sT0}, s{sSig}, {d}
    s_add_u32 s{sB0}, s{sB0}, s{sT0}
    s_add_u32 s{sB2}, s{sB2}, s{sT0}
    s_movk_i32 s{sDX}, 128
    s_mov_b32 s{sDW}, {d}
    """)
def dma_x(stage, g):
    return dma(vDX0 + (g & 1), rX, sX, (g >> 1) * 1280, sLX, L_X + (stage % 3) * XS + g * 1024, ("st", stage), OPT["nt_dma"])
def dma_w(typ, stage, g):
    base = L_W + (stage % 3) * WSL
    if typ == "mlp":
        rg, cg = g // 3, g % 3
        return dma(vDW + rg, rW, sB2 if rg else sB0, cg * 128, sLW, base + cg * 8192 + rg * 1024, ("st", stage), OPT["nt_dma"])
    imm = 2560 if (g < 4 and g & 1) else 0
    return dma(vDW + (1 if g == 4 else 0), rW, sB2 if g in (2, 3) else sB0, imm, sLW, base + g * 2048, ("st", stage), OPT["nt_dma"])
def dma_stage(typ, stage):
    nw = 6 if typ == "mlp" else 5
    ops = merge([dma_x(stage, g) for g in range(4)], [dma_w(typ, stage, g) for g in range(nw)])
    if stage > 0: ops[0] = lines(advance(typ, stage)) + ops[0]
    return ops
def pf(a):
    def f():
        if not OPT["pf"]: return
        k.vmem(f"buffer_load_dword v{vJunk}, v{vPF}, s[{rPF}:{rPF+3}], s{sPF} offen {OPT['nt_pf']}", "pf")
        k.e(f"s_add_u32 s{sPF}, s{sPF}, s{sPFs}")
    return F(f, 3)

def frag_reads(typ, stage, blk, fs):
    slot = stage % 3
    nr = 6 if typ == "mlp" else 5
    vx = vXa if blk == 0 else vXb
    xr = [DSF(f"ds_read_b128 {A(aF[fs] + 24 + 4*j, 4)}, v{vx} offset:{slot*XS + j*2048}") for j in range(4)]
    wr_ = []
    for i in range(nr):
        if typ == "mlp":
            for h in range(2):
                wr_.append(DSF(f"ds_read_b64_tr_b16 {A(aF[fs] + 4*i + 2*h, 2)}, v{vWA + blk*4 + (i & 3)} offset:{slot*WSL + (i >> 2)*8192 + h*512}"))
        else:
            wr_.append(DSF(f"ds_read_b128 {A(aF[fs] + 4*i, 4)}, v{vWA + blk} offset:{slot*WSL + i*2048}"))
    return merge(xr, wr_)

def mfmas(typ, stage, blk, fs):
    nr = 6 if typ == "mlp" else 5
    first = stage == 0
    out = []
    Af = lambda i: A(aF[fs] + 4*i, 4)
    Bf = lambda j: A(aF[fs] + 24 + 4*j, 4)
    for i in range(nr):
        for j in range(4):
            c = "0" if (first and blk == 0) else V(acc(i, j), 4)
            out.append(f"v_mfma_f32_16x16x32_bf16 {V(acc(i,j),4)}, {Af(i)}, {Bf(j)}, {c}")
    if blk == 1:
        for i in range(nr):
            out.append(f"v_mfma_f32_16x16x32_bf16 {A(aCS+4*i,4)}, {Af(i)}, {A(aONE,4)}, {'0' if first else A(aCS+4*i,4)}")
    if blk == 1 and stage == NST - 1: out = out[-nr:] + out[:-nr]
    return out

XR = 124
def start_loads(typ):
    t = vT
    k.e("s_waitcnt lgkmcnt(0)")
    if OPT["stamps"]: k.e(f"v_writelane_b32 v{vST}, s{sST}, 0")
    stamp(12)
    k.e(f"""
    s_or_b32 s{sT0}, s2, s{sW}
    s_cmp_lg_u32 s{sT0}, 0
    s_cbranch_scc1 L_nononce_{typ}
    s_memrealtime s[{sT0}:{sT1}]
    s_waitcnt lgkmcnt(0)
    s_or_b32 s{sT0}, s{sT0}, 1
    v_mov_b32 v{t+8}, s{sT0}
    v_mov_b32 v{t+9}, 0
    global_store_dword v{t+9}, v{t+8}, s[{pDbg}:{pDbg+1}] sc1
    L_nononce_{typ}:
    """)
    srd(rX, pX, 2048 * 1280)
    if typ == "mlp": srd(rW, pW1, 640 * 3072)
    else:
        k.e(f"""
        s_cmp_eq_u32 s{sWC}, 0
        s_cselect_b32 s{rW}, s{pBre}, s{pBim}
        s_cselect_b32 s{rW+1}, s{pBre+1}, s{pBim+1}
        s_mov_b32 s{rW+2}, {640*1280}
        s_mov_b32 s{rW+3}, 0x20000
        """)
    run(dma_stage(typ, 0))
    stamp(13)
    srd(rWS, pWs, WS_SIZE)
    if OPT.get('wsoff'): k.e(f"s_add_u32 s{rWS}, s{rWS}, {OPT['wsoff'] << 20}\ns_addc_u32 s{rWS+1}, s{rWS+1}, 0")
def xr_setup():
    k.e(f"""
    s_lshl_b32 s{sT0}, s{sTYP}, 3
    s_add_u32 s{sT0}, s{sT0}, s{sNT}
    s_lshl_b32 s{sT0}, s{sT0}, 2
    s_add_u32 s{sT0}, s{sT0}, s{sW}
    s_lshl_b32 s{sT0}, s{sT0}, 1
    s_lshl_b32 s{sT1}, s{sMT}, 7
    s_add_u32 s{sHw}, s{sT0}, s{sT1}
    s_mul_i32 s{sH}, s{sHw}, 1280
    v_lshrrev_b32 v{XR+10}, 5, v{vL}
    v_mul_u32_u24 v{XR+10}, 1280, v{XR+10}
    v_and_b32 v{XR+11}, 31, v{vL}
    v_lshl_add_u32 v{XR+11}, v{XR+11}, 3, v{XR+10}
    v_lshlrev_b32 v{XR+13}, 1, v{XR+11}
    v_sub_u32 v{XR+10}, v{XR+13}, v{XR+10}
    """)
def xr_loads():
    return [VM(f"buffer_load_dwordx4 {V(XR+4*i,4)}, v{XR+10}, s[{rX}:{rX+3}], s{sH} offen offset:{512*i}", "xr") for i in range(2)] + \
           [VM(f"buffer_load_dwordx2 {V(XR+8,2)}, v{XR+11}, s[{rX}:{rX+3}], s{sH} offen offset:1024", "xr", ta=40)]
def small_dma(ptr, size, soff, tgt, lanes):
    srd(rT2, ptr, size)
    k.e(f"s_mov_b32 m0, {tgt}\ns_mov_b32 exec_lo, {(1 << lanes) - 1}\ns_mov_b32 exec_hi, 0")
    k.vmem(f"buffer_load_dwordx4 v{vL16}, s[{rT2}:{rT2+3}], s{soff} offen lds", "sm")
    k.e("s_mov_b64 exec, -1")
def touch_c():
    t = vT + 6
    pre = lines(f"""
    s_lshl_b32 s{sT0}, s2, 2
    s_add_u32 s{sT0}, s{sT0}, s{sW}
    s_mul_i32 s{sT0}, s{sT0}, {13*128}
    v_min_u32 v{t}, 12, v{vL}
    v_lshlrev_b32 v{t}, 7, v{t}
    v_add_u32 v{t}, s{sT0}, v{t}
    """)
    return pre + [VM(f"buffer_load_dword v{vJunk}, v{t}, s[{p_}:{p_+3}], 0 offen", "jk", ta=30) for p_ in (rT, rT2)]
def small_loads(typ):
    k.e(f"s_mul_i32 s{sT0}, s{sDT}, 160")
    small_dma(pDsk, 1280, sT0, L_DB, 10)
    small_dma(pB2, 1280, sT0, L_DB + 160, 10)
    if typ == "mlp":
        k.e(f"s_mul_i32 s{sT0}, s{sNT}, 384")
        small_dma(pB1, 3072, sT0, L_B1, 24)

def pf_setup(typ):
    t = vT + 10
    k.e(f"""
    v_mul_u32_u24 v{t}, 52, v{vL}
    v_lshrrev_b32 v{t}, 10, v{t}
    v_mul_u32_u24 v{t+1}, 20, v{t}
    v_sub_u32 v{t+1}, v{vL}, v{t+1}
    s_lshl_b32 s{sT0}, s{sMT}, 7
    s_lshl_b32 s{sT1}, s{sI8}, 4
    s_add_u32 s{sT0}, s{sT0}, s{sT1}
    s_mul_i32 s{sT0}, s{sT0}, 1280
    s_add_u32 s{sT0}, s{sT0}, {128*OPT['pf0']}
    """)
    if typ == "mlp":
        k.e(f"""
        s_lshl_b32 s{sT1}, s{sML}, 4
        s_add_u32 s{sT1}, s{sT1}, {64*OPT['pf0']}
        s_mul_i32 s{sT1}, s{sT1}, 3072
        s_mul_i32 s{sT2}, s{sNT}, 384
        s_add_u32 s{sT1}, s{sT1}, s{sT2}
        s_lshl_b32 s{sT2}, s{sW}, 7
        s_add_u32 s{sT1}, s{sT1}, s{sT2}
        s_cmp_eq_u32 s{sW}, 3
        s_cselect_b32 s{sPF}, s{sT0}, s{sT1}
        s_mov_b32 s{sT2}, {64*3072}
        s_cselect_b32 s{sT2}, 128, s{sT2}
        s_mov_b32 s{sT3}, 3072
        s_cselect_b32 s{sT3}, 1280, s{sT3}
        s_mov_b32 s{sT0}, 16
        """)
    else:
        k.e(f"""
        s_mul_i32 s{sT1}, s{sNT}, 80
        s_mul_i32 s{sT2}, s{sML}, 20
        s_add_u32 s{sT1}, s{sT1}, s{sT2}
        s_mul_i32 s{sT1}, s{sT1}, 1280
        s_add_u32 s{sT1}, s{sT1}, {128*OPT['pf0']}
        s_cmp_eq_u32 s{sW}, 3
        s_cselect_b32 s{sPF}, s{sT0}, s{sT1}
        s_cselect_b32 s{sT0}, 16, 20
        s_cmp_eq_u32 s{sW}, 2
        s_cselect_b32 s{sT0}, 0, s{sT0}
        s_mov_b32 s{sT2}, 128
        s_mov_b32 s{sT3}, 1280
        """)
    k.e(f"""
    s_mul_i32 s{sPFs}, s{sT2}, 3
    v_mul_lo_u32 v{vPF}, v{t}, s{sT2}
    v_mul_lo_u32 v{t+2}, v{t+1}, s{sT3}
    v_add_u32 v{vPF}, v{vPF}, v{t+2}
    v_cmp_gt_u32 vcc, s{sT0}, v{t+1}
    v_cmp_gt_u32 s[{sT2}:{sT3}], 60, v{vL}
    s_and_b64 vcc, vcc, s[{sT2}:{sT3}]
    v_mov_b32 v{t+2}, {OOB}
    s_nop 0
    v_cndmask_b32 v{vPF}, v{t+2}, v{vPF}, vcc
    """)

def repack_setup(tag):
    t = vT
    k.e(f"""
    v_lshrrev_b32 v{t}, 3, v{vL}
    v_and_b32 v{t+1}, 7, v{vL}
    v_mul_u32_u24 v{t}, 1280, v{t}
    v_lshl_add_u32 v{t}, v{t+1}, 4, v{t}
    v_or_b32 v{vDR}, s{sDis}, v{t}
    v_or_b32 v{vRS}, s{sDis}, v{vL16}
    s_lshl_b32 s{sLR}, s{sW}, 10
    s_and_b32 s{sT0}, s{sUnit}, 1
    s_lshr_b32 s{sT1}, s{sUnit}, 1
    s_mov_b32 s{rT+3}, 0x20000
    """)
    if tag == "mlp":
        k.e(f"""
        s_mov_b32 s{rT}, s{pW2}
        s_mov_b32 s{rT+1}, s{pW2+1}
        s_mov_b32 s{rT+2}, {1536*1280}
        s_lshl_b32 s{sT2}, s{sT1}, 2
        s_add_u32 s{sT2}, s{sT2}, s{sW}
        s_mul_i32 s{sRpSrc}, s{sT2}, {8*1280}
        s_mul_i32 s{sT2}, s{sT1}, 5462
        s_lshr_b32 s{sT2}, s{sT2}, 16
        s_mul_i32 s{sT2}, s{sT2}, 10
        s_add_u32 s{sT1}, s{sT1}, s{sT2}
        s_mul_i32 s{sT1}, s{sT1}, 5120
        s_add_u32 s{sT1}, s{sT1}, {WS_WP}
        s_mul_i32 s{sT2}, s{sT0}, 20
        s_add_u32 s{sT2}, s{sT2}, s{sW}
        """)
        for i in range(5):
            k.e(f"""
            s_mul_i32 s{sT3}, s{sT2}, 13108
            s_lshr_b32 s{sT3}, s{sT3}, 16
            s_mul_i32 s{sT3}, s{sT3}, 435
            s_add_u32 s{sT3}, s{sT3}, s{sT2}
            s_lshl_b32 s{sT3}, s{sT3}, 10
            s_add_u32 s{sRpD+i}, s{sT3}, s{sT1}
            s_add_u32 s{sT2}, s{sT2}, 4
            """)
        k.e(f"""
        v_lshrrev_b32 v{t}, 2, v{vN}
        v_lshl_add_u32 v{t}, v{vQ}, 2, v{t}
        v_lshlrev_b32 v{t}, 7, v{t}
        v_and_b32 v{t+1}, 3, v{vN}
        v_lshl_add_u32 v{t}, v{t+1}, 3, v{t}
        s_lshl_b32 s{sT2}, s{sW}, 5
        s_add_u32 s{sT2}, s{sT2}, {L_STG}
        v_add_u32 v{vRA}, s{sT2}, v{t}
    """)
    else:
        k.e(f"""
        s_cmp_eq_u32 s{sWR}, 0
        s_cselect_b32 s{rT}, s{pCre}, s{pCim}
        s_cselect_b32 s{rT+1}, s{pCre+1}, s{pCim+1}
        s_mov_b32 s{rT+2}, {640*1280}
        s_lshl_b32 s{sT2}, s{sT1}, 1
        s_add_u32 s{sT2}, s{sT2}, s{sWC}
        s_mul_i32 s{sRpSrc}, s{sT2}, {8*1280}
        s_mul_i32 s{sT2}, s{sT1}, 13108
        s_lshr_b32 s{sT2}, s{sT2}, 16
        s_mul_i32 s{sT2}, s{sT2}, 435
        s_add_u32 s{sT1}, s{sT1}, s{sT2}
        s_lshl_b32 s{sT2}, s{sT0}, 1
        s_add_u32 s{sT2}, s{sT2}, s{sWR}
        s_mul_i32 s{sT2}, s{sT2}, 110
        s_add_u32 s{sT1}, s{sT1}, s{sT2}
        s_mul_i32 s{sT2}, s{sWC}, 25
        s_add_u32 s{sT1}, s{sT1}, s{sT2}
        s_add_u32 s{sT1}, s{sT1}, 60
        s_lshl_b32 s{sT1}, s{sT1}, 10
        s_add_u32 s{sRpD}, s{sT1}, {WS_WP}
        s_add_u32 s{sRpD+1}, s{sRpD}, 5120
        s_add_u32 s{sRpD+2}, s{sRpD}, 10240
        s_add_u32 s{sRpD+3}, s{sRpD}, 15360
        s_add_u32 s{sRpD+4}, s{sRpD}, 20480
        s_mul_i32 s{sT2}, s{sW}, 160
        v_lshlrev_b32 v{t+2}, 7, v{vN}
        v_add_u32 v{t+2}, {L_STG}, v{t+2}
        """)
        for x, (off, sh) in enumerate(((0, 4), (80, 4), (64, 2), (144, 2))):
            k.e(f"""
            s_add_u32 s{sT3}, s{sT2}, {off}
            v_lshl_add_u32 v{t}, v{vQ}, {sh}, s{sT3}
            v_lshrrev_b32 v{t+1}, 7, v{t}
            v_and_b32 v{t}, 127, v{t}
            v_lshl_add_u32 v{t}, v{t+1}, 12, v{t}
            v_add_u32 v{vRA+x}, v{t}, v{t+2}
            """)
    k.e(f"""
    s_mul_i32 s{sT0}, s{sT0}, 640
    s_add_u32 s{sRpSrc}, s{sRpSrc}, s{sT0}
    """)
def repack_dma():
    return [dma(vDR, rT, sRpSrc, g * 128, sLR, L_STG + g * 4096, "rp%d" % g, OPT["nt_rp"]) for g in range(5)]
RP = 136
def RPR(tag, o, n): return V(RP + o, n)
def repack_read(tag):
    if tag == "mlp":
        return [DSF(f"ds_read_b64_tr_b16 {V(RP+4*i+2*h,2)}, v{vRA} offset:{i*4096 + h*2048}") for i in range(5) for h in range(2)]
    return [DSF(f"ds_read_b128 {V(RP+4*x,4)}, v{vRA + x//2} offset:{(x & 1)*2048}") for x in range(4)] + \
           [DSF(f"ds_read_b32 v{RP+16+x}, v{vRA + 2 + x//2} offset:{(x & 1)*2048}") for x in range(4)]
def repack_store(tag):
    return [VM(f"buffer_store_dwordx4 {RPR(tag, 4*i, 4)}, v{vRS}, s[{rWS}:{rWS+3}], s{sRpD+i} offen sc1", ("rps", i), ta=240) for i in range(5)]
def repack_flag():
    t = vT
    pre = lines(f"""
    v_mov_b32 v{t}, s{sNonce}
    v_mov_b32 v{t+1}, s{sNonce}
    s_lshl_b32 s{sRpSrc}, s{sUnit}, 7
    s_lshl_b32 s{sT1}, s{sW}, 4
    s_add_u32 s{sRpSrc}, s{sRpSrc}, s{sT1}
    s_add_u32 s{sRpSrc}, s{sRpSrc}, {WS_RF}
    s_lshl_b32 s{sT1}, s{sTYP}, 14
    s_add_u32 s{sRpSrc}, s{sRpSrc}, s{sT1}
    v_lshlrev_b32 v{t+2}, 26, v{vL}
    v_or_b32 v{t+2}, s{sDis}, v{t+2}
    """)
    def f():
        k.wait_vm(("rps", 4))
        k.vmem(f"buffer_store_dwordx2 {V(t,2)}, v{t+2}, s[{rWS}:{rWS+3}], s{sRpSrc} offen sc1", "rf")
    return pre, F(f, 3, ta=20)

def bfr(d, s): return f"v_cvt_pk_bf16_f32 v{d}, v{s}, v{s}\nv_and_b32 v{d}, 0xffff0000, v{d}\n"
def nonce_load():
    return lines(f"v_mov_b32 v{vNc}, 0") + [VM(f"global_load_dword v{vNc}, v{vNc}, s[{pDbg}:{pDbg+1}] sc1", "nc", ta=20)]
def rowstat_job(tag):
    t = vT + 20
    S_, Q, MEAN, VAR, S1, X, Y = t, t+1, t+2, t+3, t+4, t+5, t+6
    G0, G1 = t+8, t+12
    M1, A1, A2, AM = G0, G0+2, G1, G1+2
    def dots():
        k.wait_vm("xr")
        s = f"v_mov_b32 v{X}, 0x3f803f80\nv_mov_b32 v{S_}, 0\nv_mov_b32 v{Q}, 0\n"
        for i in range(10): s += f"v_dot2c_f32_bf16 v{S_}, v{XR+i}, v{X}\nv_dot2c_f32_bf16 v{Q}, v{XR+i}, v{XR+i}\n"
        s += "s_nop 2\n"
        k.e(s)
    fl = [F(dots, 24)]
    for d in ("row_shr:1", "row_shr:2", "row_shr:4", "row_shr:8", "row_bcast:15"):
        rm = "0xa" if "bcast" in d else "0xf"
        fl.append(F(lambda d=d, rm=rm: k.e(f"v_add_f32_dpp v{S_}, v{S_}, v{S_} {d} row_mask:{rm} bank_mask:0xf bound_ctrl:0"), 1, sep=True))
        fl.append(F(lambda d=d, rm=rm: k.e(f"v_add_f32_dpp v{Q}, v{Q}, v{Q} {d} row_mask:{rm} bank_mask:0xf bound_ctrl:0"), 1))
    fl += lines(f"""
    v_mul_f32 v{MEAN}, {hx(1/640)}, v{S_}
    v_mul_f32 v{VAR}, {hx(1/640)}, v{Q}
    v_fma_f32 v{VAR}, -v{MEAN}, v{MEAN}, v{VAR}
    v_max_f32 v{VAR}, 0, v{VAR}
    {bfr(M1, MEAN)}{bfr(X, VAR)}
    v_add_f32 v{X}, {hx(1e-5)}, v{X}
    {bfr(X, X)}
    v_sqrt_f32 v{X}, v{X}
    v_sub_f32 v{Y}, v{MEAN}, v{M1}
    {bfr(S1, X)}
    v_rcp_f32 v{A1}, v{S1}
    s_nop 0
    v_mul_f32 v{Y}, v{Y}, v{A1}
    v_mul_f32 v{X}, v{VAR}, v{A1}
    {bfr(Y, Y)}
    v_mul_f32 v{X}, v{X}, v{A1}
    {bfr(X, X)}
    v_add_f32 v{X}, {hx(1e-5)}, v{X}
    {bfr(X, X)}
    v_sqrt_f32 v{X}, v{X}
    v_fma_f32 v{Y}, v{Y}, v{S1}, v{M1}
    {bfr(X, X)}
    v_mul_f32 v{X}, v{X}, v{S1}
    v_rcp_f32 v{A2}, v{X}
    v_and_b32 v{X}, 31, v{vL}
    v_mul_f32 v{AM}, v{A2}, v{Y}
    v_sub_u32 v{X}, 31, v{X}
    v_and_b32 v{Y}, 32, v{vL}
    v_lshl_add_u32 v{X}, v{X}, 26, v{Y}
    s_lshl_b32 s{sT0}, s{sHw}, 5
    s_add_u32 s{sT0}, s{sT0}, {WS_RS}
    """)
    def nonce():
        k.wait_vm("nc")
        k.e(f"""
        v_readfirstlane_b32 s{sNonce}, v{vNc}
        s_cmp_lg_u32 s{sNonce}, 0
        s_cbranch_scc1 L_ncok_{tag}
        L_ncl_{tag}:
        s_sleep 1
        global_load_dword v{vNc}, v{Y}, s[{pDbg}:{pDbg+1}] sc1
        s_sub_u32 s{sSpin}, s{sSpin}, 1
        s_cbranch_scc1 L_end
        s_waitcnt vmcnt(0)
        v_readfirstlane_b32 s{sNonce}, v{vNc}
        s_cmp_eq_u32 s{sNonce}, 0
        s_cbranch_scc1 L_ncl_{tag}
        L_ncok_{tag}:
        s_nop 0
        """)
    fl += lines(f"v_mov_b32 v{Y}, 0") + [F(nonce, 4)]
    fl += lines(f"""
    v_mov_b32 v{G0+1}, s{sNonce}
    v_mov_b32 v{G0+3}, s{sNonce}
    v_mov_b32 v{G1+1}, s{sNonce}
    v_mov_b32 v{G1+3}, s{sNonce}
    """)
    fl.append(VM(f"buffer_store_dwordx4 {V(G0,4)}, v{X}, s[{rWS}:{rWS+3}], s{sT0} offen sc1", "rs", ta=20))
    fl.append(VM(f"buffer_store_dwordx4 {V(G1,4)}, v{X}, s[{rWS}:{rWS+3}], s{sT0} offen offset:16 sc1", "rs", ta=20))
    return fl
RSV = 124
def rowstat_fetch():
    fl = lines(f"""
    s_lshl_b32 s{sT0}, s{sMT}, 12
    s_add_u32 s{sT0}, s{sT0}, {WS_RS}
    v_lshlrev_b32 v{RSV+4}, 4, v0
    v_add_u32 v{RSV+4}, s{sT0}, v{RSV+4}
    """)
    return fl + [VM(f"buffer_load_dwordx4 {V(RSV,4)}, v{RSV+4}, s[{rWS}:{rWS+3}], 0 offen sc1", "rsv")]

def ta_of(op): return sum(f.ta for f in flat([op]))
def main_loop(typ, jobs, vq, bg):
    q = [(max(0, 2*st - 5), max(2*st - 4 + (x >= 5) - OPT.get('lag', 0), x >= 5), op) for st in range(2, NST) for x, op in enumerate(dma_stage(typ, st))]
    q = sorted(q + vq, key=lambda x: x[1])
    credit = [OPT.get("credit0", 0)]
    def take(bi, n):
        credit[0] = min(credit[0] + n * 17 * OPT["util"], n * 17 + 100) - sum(ta_of(x) for x in jobs.get(("pre", bi), []) + jobs.get(bi, []))
        out = []
        while True:
            c = [x for x in q if x[0] <= bi]
            if not c or ((credit[0] < 33 or len(out) >= OPT.get('cap', 6)) and c[0][1] > bi): break
            q.remove(c[0]); out.append(c[0][2]); credit[0] -= ta_of(c[0][2])
        if OPT.get('show'): print(typ, bi, len(out), len(jq), len(bg), int(credit[0]), dict(issued))
        return flat(out)
    jq = []
    k.wait_vm(("st", 0)); k.e("s_barrier")
    stamp()
    run(frag_reads(typ, 0, 0, 0))
    def block(bi, m, reads, n):
        curblk[0] = bi
        run(jobs.get(("pre", bi), []))
        jq.extend(jobs.get(bi, []))
        jq[:0] = jobs.get(("front", bi), [])
        d = take(bi, n)
        n = len(m)
        if bi == 2*NST - 1: reads, r0 = jobs["last"], 9
        else: r0 = 0
        sched(m, [(d, 0, n - 1, True), (reads, r0, n - OPT.get("rend", 6), True), (jq, 0, n, False), (bg if bi >= OPT.get("bg0", 1) else [], 0, n, False)])
    for s in range(NST):
        k.wait_lg()
        m = mfmas(typ, s, 0, 0)
        block(2*s, m, frag_reads(typ, s, 1, 1), len(m))
        k.wait_lg()
        m = mfmas(typ, s, 1, 1)
        k.e(m[0]); k.e(m[1])
        if s + 1 < NST:
            if OPT.get("fine"): stamp(16 + 3*s)
            assert issued.get(s + 1, 0) == (10 if typ == "mlp" else 9), (typ, s, issued)
            for tg in jobs.get(("wait", s), []): assert tg in k.seen, tg
            k.wait_vm([("st", s + 1)] + jobs.get(("wait", s), []))
            if OPT.get("fine"): stamp(17 + 3*s)
            k.e("s_barrier")
        block(2*s + 1, m[2:], frag_reads(typ, s + 1, 0, 0) if s + 1 < NST else [], len(m))
    assert not jq and len(bg) < 12, (len(jq), len(bg))
    run(bg)
    stamp()
    if OPT["stop"] == "loop":
        k.e("s_branch L_fin"); k.seen.update(["rsv", ("rps", 4), "b1"])
    return [x[2] for x in q]

WSLOT = [("a", 108 + 20*x) for x in range(7)] + [("a", 20*x) for x in range(5)] + [("v", 100 + 20*x) for x in range(3)]
NREG = 15
def wreg(tk): return WSLOT[tk]
def kaddr(dst, base, tk, stride):
    return lines(f"s_cmp_gt_u32 s{sLim}, {tk} | s_cselect_b32 s{dst}, s{base}, s{base+1}\ns_add_u32 s{dst}, s{dst}, {tk*stride}")
def wload(tk):
    kind, base = wreg(tk)
    out = []
    for i in range(5):
        op = []
        if i == 0: op += kaddr(sT2, sWa, tk, 5120)
        if i == 4: op += lines(f"s_add_u32 s{sT2}, s{sT2}, 4096")
        op.append(VM(f"buffer_load_dwordx4 {R(kind, base+4*i, 4)}, v{vL16}, s[{rWS}:{rWS+3}], s{sT2} offen offset:{(i & 3)*1024} sc1", ("w", tk)))
        out.append(op)
    return out
RFV = 24
sWLb, sTx = 34, 35
NK = {"mlp": 12, "ssm": 10}
def p2_addr(typ):
    n_ = NK[typ]; k0 = 0 if typ == "mlp" else 12
    if typ == "mlp":
        k.e(f"""
        v_min_u32 v{vT+2}, 47, v{vL}
        s_mul_i32 s{sT0}, s{sW}, 24
        s_lshr_b32 s{sT1}, s{sDT}, 2
        s_add_u32 s{sT0}, s{sT0}, s{sT1}
        s_lshl_b32 s{sT0}, s{sT0}, 7
        s_add_u32 s{sT0}, s{sT0}, {WS_RF + 16384}
        v_lshrrev_b32 v{vT}, 2, v{vT+2}
        v_and_b32 v{vT+1}, 3, v{vT+2}
        """)
        k.e(f"v_lshlrev_b32 v{vT}, 8, v{vT}\nv_lshl_add_u32 v{vT}, v{vT+1}, 4, v{vT}\nv_add_u32 v{RFV}, s{sT0}, v{vT}")
    k.e(f"""
    s_and_b32 s{sT2}, s{sDT}, 3
    s_add_u32 s{sT2}, s{sT2}, s{sML}
    s_and_b32 s{sT2}, s{sT2}, 3
    s_mul_i32 s{sT2}, s{sT2}, {n_ * OPT['rot2'] if typ == 'mlp' else 0}
    s_lshr_b32 s{sT2}, s{sT2}, 2
    s_sub_u32 s{sLim}, {n_}, s{sT2}
    s_mul_i32 s{sT0}, s{sW}, 22
    s_add_u32 s{sT0}, s{sT0}, s{sT2}
    s_add_u32 s{sT0}, s{sT0}, {k0}
    s_mul_i32 s{sT1}, s{sDT}, 88
    s_add_u32 s{sT1}, s{sT1}, s{sT0}
    s_mul_i32 s{sT1}, s{sT1}, 5120
    s_add_u32 s{sWa}, s{sT1}, {WS_WP}
    s_sub_u32 s{sWa+1}, s{sWa}, {n_*5120}
    s_lshl_b32 s{sT1}, s{sMT}, 1
    s_add_u32 s{sT1}, s{sT1}, s{sHALF}
    s_mul_i32 s{sT2}, s{sT1}, 88
    s_add_u32 s{sT2}, s{sT2}, s{sT0}
    s_lshl_b32 s{sT2}, s{sT2}, 12
    s_add_u32 s{sHa+2}, s{sT2}, {WS_H}
    s_sub_u32 s{sHa+3}, s{sHa+2}, {n_*4096}
    s_{'sub' if typ == 'mlp' else 'add'}_u32 s{sHa}, s{sHa+2}, {88*4096}
    s_sub_u32 s{sHa+1}, s{sHa}, {n_*4096}
    s_mul_i32 s{sWLb}, s{sW}, {WLW}
    s_add_u32 s{sWLb}, s{sWLb}, {L_WL}
    """)
def rflag_fetch(vd):
    k.vmem(f"buffer_load_dwordx2 {V(vd,2)}, v{RFV}, s[{rWS}:{rWS+3}], 0 offen sc1", "rfv")
def check(tag, vaddr, vd, width=2, second=1):
    k.e(f"""
    L_chk_{tag}:
    v_cmp_ne_u32 vcc, s{sNonce}, v{vd + (1 if width == 4 else 0)}
    v_cmp_ne_u32 s[{sT0}:{sT1}], s{sNonce}, v{vd + (3 if width == 4 else 1)}
    s_or_b64 vcc, vcc, s[{sT0}:{sT1}]
    s_cmp_eq_u64 vcc, 0
    s_cbranch_scc1 L_chkok_{tag}
    s_sub_u32 s{sSpin}, s{sSpin}, 1
    s_cbranch_scc1 L_end
    buffer_load_dwordx{width} {V(vd,width)}, v{vaddr}, s[{rWS}:{rWS+3}], 0 offen sc1
    s_waitcnt vmcnt(0)
    s_branch L_chk_{tag}
    L_chkok_{tag}:
    """)
vCD = 20
sCU = sRpD
def c_setup():
    t = vT
    srd(rT, pCre, 640 * 1280); srd(rT2, pCim, 640 * 1280)
    for g in range(5):
        k.e(f"""
        v_add_u32 v{t}, {64*g}, v{vL}
        v_mul_u32_u24 v{t+1}, 3277, v{t}
        v_lshrrev_b32 v{t+1}, 16, v{t+1}
        v_mul_u32_u24 v{t+2}, 20, v{t+1}
        v_sub_u32 v{t+2}, v{t}, v{t+2}
        v_mul_u32_u24 v{t+1}, 1280, v{t+1}
        v_lshl_add_u32 v{vCD+g}, v{t+2}, 4, v{t+1}
        """)
    k.e(f"""
    s_mul_i32 s{sRpSrc}, s{sDT}, {80*1280}
    s_mul_i32 s{sT0}, s{sW}, 320
    s_add_u32 s{sRpSrc}, s{sRpSrc}, s{sT0}
    s_mul_i32 s{sLR}, s{sW}, 5120
    s_add_u32 s{sCU}, s{sLR}, 20480
    s_add_u32 s{sCU+1}, s{sLR}, 110592
    s_add_u32 s{sCU+2}, s{sLR}, 57344
    s_add_u32 s{sCU+3}, s{sLR}, 131072
    s_mov_b32 s{sT0}, 77824
    s_cmp_eq_u32 s{sWR}, 0
    s_cselect_b32 s{sT0}, s{sT0}, 141312
    s_add_u32 s{sCU+4}, s{sLR}, s{sT0}
    """)
def c_dma(i, rs, tag):
    out = []
    for g in range(5):
        op = lines(f"s_add_u32 s{sUnit}, s{sRpSrc}, {i*16*1280}") if g == 0 else []
        out.append(op + lines(f"s_add_u32 m0, s{sCU+i}, {g*1024}") + [VM(f"buffer_load_dwordx4 v{vCD+g}, s[{rs}:{rs+3}], s{sUnit} offen lds", tag, sep=True, ta=80)])
    return out
def c_read(im, B):
    k.e(f"""
    v_mul_u32_u24 v{B[5]}, 320, v{vN}
    v_lshl_add_u32 v{B[2]}, v{vQ}, 4, v{B[5]}
    v_lshl_add_u32 v{B[5]}, v{vQ}, 2, v{B[5]}
    v_add_u32 v{B[0]}, s{sCU}, v{B[2]}
    v_add_u32 v{B[1]}, s{sCU+1}, v{B[2]}
    v_add_u32 v{B[2]}, s{sCU+4}, v{B[2]}
    v_add_u32 v{B[3]}, s{sCU}, v{B[5]}
    v_add_u32 v{B[4]}, s{sCU+1}, v{B[5]}
    v_add_u32 v{B[5]}, s{sCU+4}, v{B[5]}
    """)
    where = [(0, 0), (1, 0), (0, 57344 - 20480), (1, 131072 - 110592), (2, 0)]
    for a_ in range(2):
        for wr_ in range(2):
            kind, base = wreg(5*a_ + 2*wr_ + im)
            for i, (b_, o_) in enumerate(where):
                k.ds(f"ds_read_b128 {R(kind, base+4*i, 4)}, v{B[b_]} offset:{o_ + 160*a_ + 80*wr_}", "cr")
            kind, base = wreg(5*a_ + 4)
            for i, (b_, o_) in enumerate(where):
                k.ds(f"ds_read_b32 {R(kind, base+4*i+2*wr_+im, 1)}, v{B[3+b_]} offset:{o_ + 160*a_ + 80*wr_ + 64}", "cr")

def common_jobs(typ):
    j = {}
    j[0] = nonce_load()
    j[3] = rowstat_job(typ)
    if OPT['touch'] >= 0 and typ == 'ssm': j[OPT['touch']] = j.get(OPT['touch'], []) + touch_c()
    vq = [(0, 1.5, op) for op in xr_loads()]
    if typ == "ssm":
        vq += [(e_, 99, op) for i, e_ in zip((0, 1, 2, 3, 4), (OPT.get("c0", 12), 15, 17, 17, 17)) for op in c_dma(i, rT, "cre")]
        stats_jobs(typ, j)
        return j, vq
    r0, rpst, rpfl = OPT["rp_" + typ]
    assert r0 % 2 == 1
    j[("wait", (r0 - 1) // 2)] = j.get(("wait", (r0 - 1) // 2), []) + ["rp4"]
    j[("pre", r0)] = repack_read(typ)
    for f, bi in zip(repack_store(typ), rpst): j[("pre", bi)] = j.get(("pre", bi), []) + [f]
    vq += [OPT["rpd_" + typ] + (op,) for op in repack_dma()]
    a_, b_ = repack_flag()
    d_ = {}
    fb = min(rpfl, 15)
    j[fb - 3] = j.get(fb - 3, []) + a_ + [note(d_, 1)]
    if rpfl < 20: j[("pre", rpfl)] = j.get(("pre", rpfl), []) + [F(lambda: d_[1], 0), b_]
    else: j["rpflag"] = b_
    bi = OPT["rf_" + typ]
    RD_ = vT + 4
    if bi <= 20: j[("pre", bi - 1)] = j.get(("pre", bi - 1), []) + [F(lambda: rflag_fetch(RD_), 2, ta=50)]
    def chk():
        k.wait_vm("rfv"); check("rf_" + typ, RFV, RD_)
    j["rfchk"] = chk
    if bi < 20:
        j[("pre", bi)] = j.get(("pre", bi), []) + [F(chk, 6)]
        vq += [(bi, 99, op) for tk in range(7) for op in wload(tk)]
    stats_jobs(typ, j)
    return j, vq

TK = vT + 8
SA = 76
def stats_jobs(typ, j):
    nr = 6 if typ == "mlp" else 5
    L_SC, SCW = L_SCS[typ]
    k.e(f"""
    s_mul_i32 s{sT0}, s{sW}, {SCW}
    s_add_u32 s{sT0}, s{sT0}, {L_SC}
    v_lshlrev_b32 v{SA+1}, 4, v{vQ}
    v_add_u32 v{SA}, s{sT0}, v{SA+1}
    v_min_u32 v{SA+2}, 1, v{vN}
    v_mul_u32_u24 v{SA+2}, 0x30000, v{SA+2}
    v_add_u32 v{SA}, v{SA}, v{SA+2}
    s_mul_i32 s{sT0}, s{sWR}, {2*SCW}
    s_add_u32 s{sT0}, s{sT0}, {L_SC}
    v_add_u32 v{SA+1}, s{sT0}, v{SA+1}
    s_lshl_b32 s{sT0}, s{sWC}, 10
    v_lshlrev_b32 v{SA+2}, 6, v{vN}
    v_add_u32 v{SA+2}, s{sT0}, v{SA+2}
    v_lshlrev_b32 v{SA+3}, 3, v0
    """)
    j[OPT.get('rsb', 13)] = j.get(OPT.get('rsb', 13), []) + rowstat_fetch()
    def chk():
        k.wait_vm("rsv")
        check("rs_" + typ, RSV + 4, RSV, 4)
        k.ds(f"ds_write2_b32 v{SA+3}, v{RSV}, v{RSV+2} offset0:{L_TOK//4} offset1:{L_TOK//4+1}")
    j[("pre", 16)] = j.get(("pre", 16), []) + [F(chk, 8)]
    j[18] = j.get(18, []) + [DSF(f"ds_read_b128 {V(TK+4*x,4)}, v{SA+2} offset:{L_TOK + x*16}") for x in range(4)]
    j["last"] = [DSF(f"ds_write_b128 v{SA}, {A(aCS+4*i,4)} offset:{i*64}") for i in range(nr)]
def stats(typ):
    nr = 6 if typ == "mlp" else 5
    CS = vT + 24; P2 = 100
    SCW = L_SCS[typ][1]
    k.wait_lg(); k.e("s_barrier")
    for i in range(nr):
        k.ds(f"ds_read_b128 {V(P2+4*i,4)}, v{SA+1} offset:{SCW+i*64}", ("cs", i))
    for i in (0, 1, 2, 4, 5, 3)[:nr + 1]:
        if i < nr: k.ds(f"ds_read_b128 {V(CS+4*i,4)}, v{SA+1} offset:{i*64}", ("cs", i))
    return TK, CS, P2
def stats_sum(typ, CS, P2):
    k.wait_lg()
    for i in range(6 if typ == "mlp" else 5):
        for h in range(2):
            k.e(f"v_pk_add_f32 {V(CS+4*i+2*h,2)}, {V(CS+4*i+2*h,2)}, {V(P2+4*i+2*h,2)}")

class Feeder:
    def __init__(self, jobs, every): self.jobs, self.every, self.n = list(jobs), every, 0
    def tick(self, n=1):
        self.n += n
        while self.n >= self.every and self.jobs:
            self.n -= self.every; run([self.jobs.pop(0)])
    def flush(self):
        while self.jobs: run([self.jobs.pop(0)])

def h_base():
    k.e(f"""
    s_lshl_b32 s{sT0}, s{sMT}, 1
    s_add_u32 s{sT0}, s{sT0}, s{sWC}
    s_mul_i32 s{sH}, s{sT0}, {88*4096}
    s_add_u32 s{sH}, s{sH}, {WS_H}
    s_lshr_b32 s{sT0}, s{sNT}, 1
    s_mul_i32 s{sT0}, s{sT0}, 22
    s_and_b32 s{sT1}, s{sNT}, 1
    """)
HRING = [[("v", 40 + 4*s) for s in range(4)], [("v", 56 + 4*s) for s in range(4)], [("v", 72 + 4*s) for s in range(4)],
         [("a", 100), ("a", 104), ("a", 248), ("a", 252)]]
NR = len(HRING)
vF, vFd, vHs = 28, 30, 32
vWL, vRw, XO, LO = 36, 37, 38, 39
RES = 4
def flag_addr():
    k.e(f"""
    s_lshl_b32 s{sT0}, s{sMT}, 4
    s_lshl_b32 s{sT1}, s{sTYP}, 3
    s_add_u32 s{sT0}, s{sT0}, s{sT1}
    s_lshl_b32 s{sT1}, s{sW}, 1
    s_add_u32 s{sT1}, s{sT0}, s{sT1}
    s_lshl_b32 s{sT1}, s{sT1}, 7
    s_add_u32 s{sT1}, s{sT1}, {WS_HF}
    v_bfe_u32 v{vFd}, v{vL}, 2, 1
    v_and_b32 v{vF}, 3, v{vL}
    v_lshlrev_b32 v{vF}, 4, v{vF}
    v_lshl_add_u32 v{vF}, v{vFd}, 7, v{vF}
    v_add_u32 v{vF}, s{sT1}, v{vF}
    s_add_u32 s{sT0}, s{sT0}, s{sNT}
    s_lshl_b32 s{sT0}, s{sT0}, 7
    s_lshl_b32 s{sT1}, s{sW}, 4
    s_add_u32 s{sT0}, s{sT0}, s{sT1}
    s_add_u32 s{sLW}, s{sT0}, {WS_HF}
    """)
def h_offsets():
    for s in range(4):
        k.e(f"s_xor_b32 s{sT0}, s{sW}, {s}\ns_lshl_b32 s{sT0}, s{sT0}, 10\nv_add_u32 v{vHs+s}, s{sT0}, v{vL16}")
def poll_m(): k.vmem(f"buffer_load_dwordx2 {V(vFd,2)}, v{vF}, s[{rWS}:{rWS+3}], 0 offen sc1", "hf")
FL = 96
def h_flag(track=True):
    k.e(f"v_mov_b32 v{FL}, s{sNonce}\nv_mov_b32 v{FL+1}, s{sNonce}\nv_lshlrev_b32 v{FL+2}, 26, v{vL}")
    k.wait_vm("h")
    tx = f"buffer_store_dwordx2 {V(FL,2)}, v{FL+2}, s[{rWS}:{rWS+3}], s{sLW} offen sc1"
    k.vmem(tx, "fl") if track else k.e(tx)
EX_, ED, EB, TKv, U = 100, 110, 120, 130, 132
def ep_loads():
    k.e(f"""
    s_lshl_b32 s{sT0}, s{sMT}, 7
    s_lshl_b32 s{sT1}, s{sHALF}, 6
    s_add_u32 s{sT0}, s{sT0}, s{sT1}
    s_add_u32 s{sT0}, s{sT0}, s{sW}
    s_mul_i32 s{sX}, s{sT0}, 1280
    s_mul_i32 s{sT0}, s{sDT}, 160
    s_add_u32 s{sX}, s{sX}, s{sT0}
    v_lshrrev_b32 v{U}, 2, v{vL}
    v_and_b32 v{U+1}, 3, v{vL}
    v_lshlrev_b32 v{U+2}, 3, v{U+1}
    v_mul_u32_u24 v{XO}, 5120, v{U}
    v_add_u32 v{XO}, v{XO}, v{U+2}
    v_mul_u32_u24 v{LO}, {RROW}, v{U}
    v_lshl_add_u32 v{LO}, v{U+1}, 4, v{LO}
    v_lshlrev_b32 v{U}, 6, v{U}
    s_lshl_b32 s{sT1}, s{sHALF}, 10
    v_add_u32 v{U}, s{sT1}, v{U}
    s_lshl_b32 s{sT1}, s{sW}, 4
    v_add_u32 v{U}, s{sT1}, v{U}
    """)
    k.ds(f"ds_read_b64 {V(TKv,2)}, v{U} offset:{L_TOK}", "tk")
    for g in range(5): k.vmem(f"buffer_load_dwordx2 {V(EX_+2*g,2)}, v{XO}, s[{rX}:{rX+3}], s{sX} offen offset:{32*g}", "ep")
    for reg, o_ in ((ED, 0), (EB, 160)):
        for g in range(5): k.ds(f"ds_read_b64 {V(reg+2*g,2)}, v{U+2} offset:{L_DB + o_ + 32*g}", "tk")
def residual(fd=None):
    k.wait_vm("ep"); k.wait_lg()
    for g in range(5):
        if fd: fd.tick(1)
        xf, df, bf_ = U + 4, U + 8, U + 12
        for src, dst in ((EX_ + 2*g, xf), (ED + 2*g, df), (EB + 2*g, bf_)):
            for h in range(2):
                k.e(f"v_lshlrev_b32 v{dst+2*h}, 16, v{src+h}\nv_and_b32 v{dst+2*h+1}, 0xffff0000, v{src+h}")
        A_ = [RES + 4*g, RES + 4*g + 2]
        def rnd():
            for a in A_: k.e(f"v_cvt_pk_bf16_f32 v{a+1}, v{a}, v{a+1}")
            for a in A_: k.e(f"v_lshlrev_b32 v{a}, 16, v{a+1}\nv_and_b32 v{a+1}, 0xffff0000, v{a+1}")
        for h, a in enumerate(A_): k.e(f"v_pk_add_f32 {V(a,2)}, {V(xf+2*h,2)}, {V(TKv,2)} op_sel:[0,0] op_sel_hi:[1,0] neg_lo:[0,1] neg_hi:[0,1]")
        rnd()
        for h, a in enumerate(A_): k.e(f"v_pk_mul_f32 {V(a,2)}, {V(a,2)}, {V(TKv,2)} op_sel:[0,1] op_sel_hi:[1,1]")
        rnd()
        for h, a in enumerate(A_): k.e(f"v_pk_mul_f32 {V(a,2)}, {V(a,2)}, {V(df+2*h,2)}")
        rnd()
        for h, a in enumerate(A_): k.e(f"v_pk_add_f32 {V(a,2)}, {V(a,2)}, {V(xf+2*h,2)}")
        for h, a in enumerate(A_): k.e(f"v_pk_add_f32 {V(a,2)}, {V(a,2)}, {V(bf_+2*h,2)}")
def hload(typ, t):
    ring = HRING[t % NR]; n_ = NK[typ]
    return kaddr(sT3, sHa + 2*(t // n_), t % n_, 4096), [[VM(f"buffer_load_dwordx4 {R(ring[s][0], ring[s][1], 4)}, v{vHs+s}, s[{rWS}:{rWS+3}], s{sT3} offen sc1", ("h", t))] for s in range(4)]
def seam(typ, pend, n0, n1):
    h_offsets()
    ep_loads()
    n0 = min(n0, len(pend)); n1 = min(n0 + n1, len(pend))
    run([op for _, op in pend[:n0]])
    flag_addr()
    h_flag()
    poll_m()
    ops = [op for _, op in pend[n0:n1]]
    residual(Feeder([flat(ops[(x * len(ops)) // 5:((x + 1) * len(ops)) // 5]) for x in range(5)], 1))
    if typ == "ssm": k.e("s_barrier")
    stamp(7)
    k.wait_vm("hf"); check("hm" + typ, vF, vFd)
    stamp(8)
    for t in range(NR):
        a_, b_ = hload(typ, t); run(a_); run(b_)
    phase2(typ, pend[n1:])

def ones():
    k.e(f"v_mov_b32 v{vT+6}, 0x3f803f80")
    for i in range(4): k.e(f"v_accvgpr_write_b32 a{aONE+i}, v{vT+6}")

def path_mlp():
    typ = "mlp"; t = vT
    k.label("L_mlp")
    issued.clear(); k.seen.clear()
    k.vm = []; k.lg = []
    k.e(f"""
    v_and_b32 v{t+2}, 2, v{t}
    v_xor_b32 v{t+2}, v{t+1}, v{t+2}
    v_mul_u32_u24 v{t+3}, 3072, v{t}
    v_lshl_add_u32 v{vDW}, v{t+2}, 4, v{t+3}
    v_xor_b32 v{vDW+1}, 64, v{vDW}
    s_mul_i32 s{sB0}, s{sW}, {16*3072}
    s_mul_i32 s{sT0}, s{sNT}, 384
    s_add_u32 s{sB0}, s{sB0}, s{sT0}
    s_add_u32 s{sB2}, s{sB0}, {8*3072}
    s_lshl_b32 s{sLW}, s{sW}, 11
    """)
    k.e(f"""
    v_lshrrev_b32 v{t}, 2, v{vN}
    v_lshl_add_u32 v{t+1}, v{vQ}, 3, v{t}
    v_lshlrev_b32 v{t+1}, 7, v{t+1}
    v_and_b32 v{t+2}, 3, v{vN}
    v_lshl_add_u32 v{t+1}, v{t+2}, 3, v{t+1}
    v_lshrrev_b32 v{t}, 1, v{t}
    v_and_b32 v{t+2}, 1, v{vQ}
    v_lshl_add_u32 v{t}, v{t+2}, 1, v{t}
    s_lshl_b32 s{sT0}, s{sKs}, 12
    s_add_u32 s{sT0}, s{sT0}, {L_W}
    v_add_u32 v{t+1}, s{sT0}, v{t+1}
    s_mul_i32 s{sT2}, s{sWR}, 6
    """)
    for i in range(4):
        k.e(f"""
        s_add_u32 s{sT3}, s{sT2}, {i}
        s_lshr_b32 s{sT0}, s{sT3}, 2
        s_lshl_b32 s{sT0}, s{sT0}, 13
        s_and_b32 s{sT3}, s{sT3}, 3
        v_xor_b32 v{t+2}, s{sT3}, v{t}
        v_lshl_add_u32 v{t+2}, v{t+2}, 5, v{t+1}
        v_add_u32 v{vWA+i}, s{sT0}, v{t+2}
        v_xor_b32 v{vWA+4+i}, 4096, v{vWA+i}
        """)
    Kc = 2 * 0.7978845608028654 * 1.4426950408889634
    k.e(f"s_mov_b32 s{sK}, {hx(-Kc*0.044715)}\ns_mov_b32 s{sK+1}, {hx(-Kc)}")
    ones()
    xr_setup()
    rot_setup(typ)
    start_loads(typ)
    repack_setup(typ)
    stamp(15)
    run(dma_stage(typ, 1))
    small_loads(typ)
    p2_addr(typ)
    stamp(14)
    jobs, vq = common_jobs(typ)
    jobs[9] = lines(f"s_mul_i32 s{sT0}, s{sWR}, 192\nv_lshlrev_b32 v{t+3}, 3, v{vQ}\nv_add_u32 v{t+3}, s{sT0}, v{t+3}") + \
              [DSF(f"ds_read_b64 {V(vB1+2*i,2)}, v{t+3} offset:{L_B1 + 32*i}") for i in range(6)]
    left = main_loop(typ, jobs, vq, [])
    TK, CS, P2 = stats(typ)
    stamp()
    if OPT["rf_mlp"] >= 20:
        if OPT["rf_mlp"] == 20: jobs["rfchk"]()
        left = [op for tk in range(7) for op in wload(tk)]
    pend = [(6 - (len(left) - 1 - x) // 5, op) for x, op in enumerate(left)] + [(tk, op) for tk in range(7, 12) for op in wload(tk)]
    ne = OPT.get("ne_mlp", 0)
    fd = Feeder([op for _, op in pend[:ne]], 35 * 12 // max(1, ne))
    pend = pend[ne:]
    h_base()
    k.e(f"""
    s_mul_i32 s{sT1}, s{sT1}, 6
    s_add_u32 s{sT0}, s{sT0}, s{sT1}
    s_mul_i32 s{sT1}, s{sWR}, 3
    s_add_u32 s{sT0}, s{sT0}, s{sT1}
    s_lshl_b32 s{sT0}, s{sT0}, 12
    s_add_u32 s{sH}, s{sH}, s{sT0}
    """)
    stats_sum(typ, CS, P2)
    B = 100
    for i in range(6):
        for h in range(2):
            k.e(f"v_lshlrev_b32 v{B+4*i+2*h}, 16, v{vB1+2*i+h}\nv_and_b32 v{B+4*i+2*h+1}, 0xffff0000, v{vB1+2*i+h}")
    TM = 124
    OUT = [88, 92]
    n_ = 0
    for u in range(3):
        for j in range(4):
            o = OUT[n_ & 1]; n_ += 1
            if n_ == 11 and OPT["rf_mlp"] > 20: rflag_fetch(vT + 4)
            k.raw(".p2align 3")
            prs = [(2*u + ii, h) for ii in range(2) for h in range(2)]
            Z = [acc(i, j) + 2*h for i, h in prs]
            T1 = [TM + 2*x for x in range(4)]; T2 = [TM + 8 + 2*x for x in range(4)]
            for x, (i, h) in enumerate(prs):
                k.e(f"v_pk_fma_f32 {V(T1[x],2)}, {V(CS+4*i+2*h,2)}, {V(TK+4*j+2,2)}, {V(B+4*i+2*h,2)} op_sel:[0,1,0] op_sel_hi:[1,1,1] neg_lo:[0,1,0] neg_hi:[0,1,0]")
            for x in range(4):
                k.e(f"v_pk_fma_f32 {V(Z[x],2)}, {V(Z[x],2)}, {V(TK+4*j+2,2)}, {V(T1[x],2)} op_sel:[0,0,0] op_sel_hi:[1,0,1]")
            fd.tick(12)
            for x in range(4): k.e(f"v_pk_mul_f32 {V(T1[x],2)}, {V(Z[x],2)}, {V(Z[x],2)}")
            for x in range(4): k.e(f"v_pk_fma_f32 {V(T1[x],2)}, {V(T1[x],2)}, s[{sK}:{sK+1}], s[{sK}:{sK+1}] op_sel:[0,0,1] op_sel_hi:[1,0,1]")
            for x in range(4): k.e(f"v_pk_mul_f32 {V(T1[x],2)}, {V(T1[x],2)}, {V(Z[x],2)}")
            for x in range(4): k.e(f"v_exp_f32 v{T2[x]}, v{T1[x]}\nv_exp_f32 v{T2[x]+1}, v{T1[x]+1}")
            fd.tick(12)
            for x in range(4): k.e(f"v_pk_add_f32 {V(T2[x],2)}, {V(T2[x],2)}, 1.0 op_sel_hi:[1,0]")
            for x in range(4): k.e(f"v_rcp_f32 v{T2[x]}, v{T2[x]}\nv_rcp_f32 v{T2[x]+1}, v{T2[x]+1}")
            if n_ < 12: fd.tick(12)
            for x in range(4): k.e(f"v_pk_mul_f32 {V(Z[x],2)}, {V(Z[x],2)}, {V(T2[x],2)}")
            for x in range(4): k.e(f"v_cvt_pk_bf16_f32 v{o+x}, v{Z[x]}, v{Z[x]+1}")
            k.vmem(f"buffer_store_dwordx4 {V(o,4)}, v{vL16}, s[{rWS}:{rWS+3}], s{sH} offen offset:{j*1024} sc1", "h")
        if u < 2: k.e(f"s_add_u32 s{sH}, s{sH}, 4096")
    fd.flush()
    stamp()
    if OPT["rf_mlp"] > 20: jobs["rfchk"]()
    seam(typ, pend, OPT['post0'], OPT['post'])

def cmul_acc(d, a, b, c):
    k.e(f"v_pk_fma_f32 {V(d,2)}, {V(a,2)}, {V(b,2)}, {V(c,2)} op_sel:[0,0,0] op_sel_hi:[1,0,1]")
    k.e(f"v_pk_fma_f32 {V(d,2)}, {V(a,2)}, {V(b,2)}, {V(d,2)} op_sel:[1,1,0] op_sel_hi:[0,1,1] neg_lo:[0,1,0]")

PR = 100
def masked(m, ins):
    def f():
        k.e(f"s_mov_b32 exec_lo, {m}\ns_mov_b32 exec_hi, {m}"); k.ds(ins); k.e("s_mov_b64 exec, -1")
    return F(f, 4, ds=True)
def power(KK, al, be, t):
    x, y, c_, s_ = t+10, t+11, t+12, t+13
    return lines(f"""
    v_mul_f32 v{y}, v{KK}, v{be}
    v_mul_f32 v{x}, v{KK}, v{al}
    v_fract_f32 v{y}, v{y}
    v_cos_f32 v{c_}, v{y}
    v_sin_f32 v{s_}, v{y}
    v_exp_f32 v{x}, v{x}
    s_nop 0
    v_mul_f32 v{t+14}, v{x}, v{c_}
    v_mul_f32 v{t+15}, v{x}, v{s_}
    """)
def table_a():
    t = 80; CH_ = vB1 + 10
    lr, li, dt, al, be, KK, AD = PR, PR+1, PR+2, t+8, t+9, t, t+1
    x, y, c_, s_ = t+10, t+11, t+12, t+13
    LOG2E = 1.4426950408889634
    fl = lines(f"""
    v_lshlrev_b32 v{dt}, 16, v{dt}
    v_lshlrev_b32 v{lr}, 16, v{lr}
    v_mul_f32 v{dt}, {hx(LOG2E)}, v{dt}
    v_exp_f32 v{dt}, v{dt}
    v_lshlrev_b32 v{li}, 16, v{li}
    {bfr(dt, dt)}
    v_mul_f32 v{al}, v{dt}, v{lr}
    v_mul_f32 v{be}, v{dt}, v{li}
    v_mul_f32 v{al}, {hx(LOG2E)}, v{al}
    v_mul_f32 v{be}, 0.15915494, v{be}
    v_lshlrev_b32 v{KK}, 6, v{CH_+1}
    v_max_u32 v{KK}, 1, v{KK}
    v_cvt_f32_u32 v{KK}, v{KK}
    v_lshlrev_b32 v{AD}, 3, v{CH_}
    """)
    fl.append(DSF(f"ds_write_b64 v{AD}, {V(al,2)} offset:{L_EX}"))
    fl.append(note(mk, 'ab'))
    fl += power(KK, al, be, t)
    fl += lines(f"""
    v_lshlrev_b32 v{AD}, 3, v{CH_+1}
    v_min_u32 v{x}, 1, v{CH_+1}
    v_mad_u32_u24 v{AD}, v{x}, 40, v{AD}
    v_lshl_add_u32 v{AD}, v{CH_}, 6, v{AD}
    """)
    fl.append(DSF(f"ds_write_b64 v{AD}, {V(t+14,2)} offset:{L_CH}"))
    fl += lines(f"""
    v_mul_f32 v{y}, v{lr}, v{lr}
    v_add_f32 v{x}, -1.0, v{t+14}
    v_fma_f32 v{y}, v{li}, v{li}, v{y}
    v_rcp_f32 v{y}, v{y}
    v_mul_f32 v{c_}, v{x}, v{lr}
    v_fma_f32 v{c_}, v{t+15}, v{li}, v{c_}
    v_mul_f32 v{s_}, v{t+15}, v{lr}
    v_fma_f32 v{s_}, -v{x}, v{li}, v{s_}
    v_add_f32 v{y}, v{y}, v{y}
    v_mul_f32 v{t+16}, v{c_}, v{y}
    v_mul_f32 v{t+17}, v{s_}, v{y}
    """)
    fl += lines(f"v_min_u32 v{x}, 1, v{CH_+1}\nv_mul_u32_u24 v{x}, 0x30000, v{x}\nv_add_u32 v{AD}, v{AD}, v{x}")
    fl.append(DSF(f"ds_write_b64 v{AD}, {V(t+16,2)} offset:{L_CH + 8}"))
    return fl
def table_rd():
    t = 80
    return [DSF(f"ds_read_b64 {V(PR+4+2*u,2)}, v{t+3} offset:{L_EX + u*128}") for u in range(5)]
def table_b():
    t = 80
    K1, APW, R1 = t+7, t+4, t+5
    k.e(f"""
    v_lshrrev_b32 v{t+2}, 4, v0
    v_lshlrev_b32 v{t+3}, 3, v{t+2}
    v_lshlrev_b32 v{K1}, 2, v{vN}
    v_cvt_f32_u32 v{K1}, v{K1}
    v_lshlrev_b32 v{APW}, 7, v{t+2}
    v_lshl_add_u32 v{APW}, v{vN}, 3, v{APW}
    v_ffbl_b32 v{R1}, v{vN}
    v_lshlrev_b32 v{R1}, 3, v{R1}
    v_lshl_add_u32 v{R1}, v{t+2}, 6, v{R1}
    v_bcnt_u32_b32 v{t+6}, v{vN}, -1
    v_min_u32 v{t+6}, 1, v{t+6}
    v_mul_u32_u24 v{t+6}, 0x30000, v{t+6}
    v_add_u32 v{R1}, v{R1}, v{t+6}
    """)
    fl = []
    for u in range(5):
        fl += power(K1, PR+4+2*u, PR+5+2*u, t)
        fl.append(DSF(f"ds_write_b64 v{APW}, {V(t+14,2)} offset:{L_PW + u*2048}"))
        fl.append(DSF(f"ds_write_b64 v{R1}, {V(t+14,2)} offset:{L_CH + 16 + u*1024}"))
    return fl

def path_ssm():
    typ = "ssm"; t = vT
    k.e(f"""
    v_and_b32 v{t+2}, 6, v{t}
    v_or_b32 v{t+3}, s{sWC}, v{t+2}
    v_xor_b32 v{t+1}, v{t+1}, v{t+3}
    v_lshlrev_b32 v{t+1}, 4, v{t+1}
    v_and_b32 v{t+3}, 1, v{t}
    v_lshl_add_u32 v{t+2}, v{t+2}, 2, v{t+3}
    v_mul_u32_u24 v{t+2}, 1280, v{t+2}
    v_add_u32 v{vDW}, v{t+2}, v{t+1}
    v_add_u32 v{t+2}, 32, v{t}
    v_mul_u32_u24 v{t+2}, 1280, v{t+2}
    v_add_u32 v{vDW+1}, v{t+2}, v{t+1}
    s_mul_i32 s{sT0}, s{sNT}, 80
    s_mul_i32 s{sT1}, s{sWR}, 40
    s_add_u32 s{sT0}, s{sT0}, s{sT1}
    s_mul_i32 s{sB0}, s{sT0}, 1280
    s_add_u32 s{sB2}, s{sB0}, 5120
    s_mul_i32 s{sLW}, s{sWR}, 10240
    s_lshl_b32 s{sT0}, s{sWC}, 10
    s_add_u32 s{sLW}, s{sLW}, s{sT0}
    """)
    k.e(f"""
    v_and_b32 v{t+1}, 1, v{vN}
    v_lshrrev_b32 v{t+2}, 2, v{vN}
    v_lshl_add_u32 v{t+2}, v{t+2}, 1, v{t+1}
    v_xor_b32 v{t}, v{t+4}, v{t+2}
    v_lshlrev_b32 v{t}, 4, v{t}
    v_lshl_add_u32 v{t}, v{t+1}, 10, v{t}
    v_lshrrev_b32 v{t+2}, 1, v{vN}
    v_lshl_add_u32 v{t}, v{t+2}, 7, v{t}
    s_mul_i32 s{sT0}, s{sWR}, 10240
    s_add_u32 s{sT0}, s{sT0}, {L_W}
    v_add_u32 v{vWA}, s{sT0}, v{t}
    v_xor_b32 v{vWA+1}, 64, v{vWA}
    """)
    ones()
    xr_setup()
    rot_setup(typ)
    start_loads(typ)
    k.e(f"""
    v_mul_u32_u24 v{vB1+11}, 820, v0
    v_lshrrev_b32 v{vB1+11}, 16, v{vB1+11}
    v_min_u32 v{vB1+11}, 2, v{vB1+11}
    v_mul_u32_u24 v{t+1}, 80, v{vB1+11}
    v_sub_u32 v{vB1+10}, v0, v{t+1}
    v_min_u32 v{vB1+10}, 79, v{vB1+10}
    s_mul_i32 s{sT0}, s{sNT}, 160
    v_lshlrev_b32 v{t+1}, 1, v{vB1+10}
    s_mov_b32 s{rT+2}, 1280
    s_mov_b32 s{rT+3}, 0x20000
    """)
    for pi, ptr in enumerate((pLre, pLim, pLdt)):
        k.e(f"s_mov_b32 s{rT}, s{ptr}\ns_mov_b32 s{rT+1}, s{ptr+1}")
        k.vmem(f"buffer_load_ushort v{PR+pi}, v{t+1}, s[{rT}:{rT+3}], s{sT0} offen", "par")
    stamp(15)
    run(dma_stage(typ, 1))
    small_loads(typ)
    c_setup()
    if OPT['touch'] == -1: run(touch_c())
    p2_addr(typ)
    stamp(14)
    jobs, vq = common_jobs(typ)
    jobs[("wait", 0)] = ["par"]
    tj = table_a() + [gate(lambda: curblk[0] % 2 == 1 and curblk[0] > mk['ab'])] + table_rd() + [note(mk, 'rd'), gate(lambda: curblk[0] > mk['rd'])] + table_b()
    vC0, vC1, vP0, vP1, vE0, vE1, vGc, vGr, vPub = vB1, vB1+1, vB1+2, vB1+3, vB1+4, vB1+5, vB1+6, vB1+7, vB1+8
    CH_, WH_ = vB1 + 10, vB1 + 11
    vG = 114
    sVal = [28, 30, 36, 38, 40]
    u_ = 96
    ad = lines(f"""
    s_mul_i32 s{sT0}, s{sWR}, 40
    v_lshlrev_b32 v{u_}, 3, v{vQ}
    v_add_u32 v{u_}, s{sT0}, v{u_}
    v_lshlrev_b32 v{u_+1}, 1, v{vQ}
    v_add_u32 v{u_+1}, s{sT0}, v{u_+1}
    v_add_u32 v{u_+1}, 32, v{u_+1}
    v_lshlrev_b32 v{vC0}, 6, v{u_}
    v_lshlrev_b32 v{vC1}, 6, v{u_+1}
    v_lshlrev_b32 v{u_+2}, 3, v{vN}
    v_lshl_add_u32 v{vP0}, v{u_}, 7, v{u_+2}
    v_lshl_add_u32 v{vP1}, v{u_+1}, 7, v{u_+2}
    s_mul_i32 s{sT0}, s{sWC}, 640
    v_lshlrev_b32 v{vE0}, 3, v{u_}
    v_lshlrev_b32 v{vE1}, 3, v{u_+1}
    v_add_u32 v{vE0}, s{sT0}, v{vE0}
    v_add_u32 v{vE1}, s{sT0}, v{vE1}
    v_sub_u32 v{u_+2}, 15, v{vN}
    v_min_u32 v{u_+2}, 1, v{u_+2}
    v_mul_u32_u24 v{u_+2}, 0x30000, v{u_+2}
    v_add_u32 v{vB1+9}, v{u_+2}, v{vE0}
    v_add_u32 v119, v{u_+2}, v{vE1}
    v_lshlrev_b32 v{vGc}, 3, v{CH_}
    v_lshlrev_b32 v{vGr}, 6, v{CH_}
    v_lshlrev_b32 v{u_}, 4, v{CH_}
    v_lshl_add_u32 v{vPub}, v{WH_}, 26, v{u_}
    v_mul_u32_u24 v{u_+2}, 5, v{WH_}
    v_sub_u32 v{u_+2}, s{sMT}, v{u_+2}
    """)
    for i in range(5):
        ad += lines(f"""
        v_add_u32 v{u_+2}, -1, v{u_+2}
        v_mul_i32_i24 v{vG+i}, 1280, v{u_+2}
        v_cmp_le_i32 s[{sVal[i]}:{sVal[i]+1}], 0, v{u_+2}
        v_add_u32 v{vG+i}, v{vG+i}, v{u_}
        v_min_u32 v{vG+i}, {OOB}, v{vG+i}
        """)
    for f in ad: f()
    stamp(61)
    tj = tj + lines(f"""
    s_mul_i32 s{sHw}, s{sNT}, {16*1280}
    s_add_u32 s{sHw}, s{sHw}, {WS_E}
    s_mul_i32 s{sH}, s{sMT}, 1280
    s_add_u32 s{sH}, s{sH}, s{sHw}
    """)
    if OPT.get('lv', 9) < 2: tj = []
    left = main_loop(typ, jobs, vq, tj)
    vG2 = 8
    for i in range(6): k.e(f"v_mov_b32 v{vG2+i}, v{vG+i}")
    TK, CS, P2 = stats(typ)
    stamp()
    fd = Feeder(left, 200 // max(1, len(left)))
    wd = [op for i in range(5) for op in c_dma(i, rT2, "cim")]; e1 = 0; ew = 25
    slots = [(i, h) for i in range(5) for h in range(2)]
    def rec(i, h): return (vC0, L_CH + (2*i + h)*64) if i < 4 else (vC1, L_CH + h*64)
    LC = 100
    stats_sum(typ, CS, P2)
    for x, (i, h) in enumerate(slots):
        a_, o_ = rec(i, h); k.ds(f"ds_read_b128 {V(LC+4*x,4)}, v{a_} offset:{o_}", ("lc", x))
    k.raw(".p2align 3")
    for x, (i, h) in enumerate(slots):
        fd.tick(8)
        for j in range(4):
            z = acc(i, j) + 2*h
            k.e(f"v_pk_fma_f32 {V(z,2)}, {V(CS+4*i+2*h,2)}, {V(TK+4*j,2)}, {V(z,2)} op_sel:[0,0,0] op_sel_hi:[1,0,1] neg_lo:[0,1,0] neg_hi:[0,1,0]")
        for j in range(4):
            z = acc(i, j) + 2*h
            k.e(f"v_pk_mul_f32 {V(z,2)}, {V(z,2)}, {V(TK+4*j,2)} op_sel:[0,1] op_sel_hi:[1,1]")
    EE = 140; TMP = 88
    MU = [t, t + 20]
    def load_mu(st):
        for x, (i, h) in enumerate(slots):
            a_, o_ = rec(i, h); k.ds(f"ds_read_b64 {V(MU[st & 1]+2*x,2)}, v{a_} offset:{o_ + 16 + 8*st}", ("mu", st))
    k.wait_lg()
    load_mu(0); load_mu(1)
    def ereg(x): return EE + 2*x
    def treg(x): return (240 + 2*x) if x < 8 else (TMP + 2*(x - 8))
    k.raw(".p2align 3")
    for x, (i, h) in enumerate(slots): cmul_acc(ereg(x), acc(i,0)+2*h, LC+4*x, acc(i,1)+2*h)
    fd.tick(20)
    for x, (i, h) in enumerate(slots): cmul_acc(treg(x), ereg(x), LC+4*x, acc(i,2)+2*h)
    fd.tick(20)
    for x, (i, h) in enumerate(slots): cmul_acc(ereg(x), treg(x), LC+4*x, acc(i,3)+2*h)
    PWv = t
    for st, sh in enumerate((1, 2, 4, 8)):
        fd.tick(20)
        k.raw(".p2align 3")
        for x in range(10):
            k.e(f"v_mov_b32_dpp v{treg(x)}, v{ereg(x)} row_shr:{sh} row_mask:0xf bank_mask:0xf bound_ctrl:0")
            k.e(f"v_mov_b32_dpp v{treg(x)+1}, v{ereg(x)+1} row_shr:{sh} row_mask:0xf bank_mask:0xf bound_ctrl:0")
        fd.tick(20)
        k.wait_lg(("mu", st))
        k.raw(".p2align 3")
        for x in range(10): cmul_acc(ereg(x), treg(x), MU[st & 1]+2*x, ereg(x))
        if st < 2: load_mu(st + 2)
        if st == 2:
            for x, (i, h) in enumerate(slots):
                k.ds(f"ds_read_b64 {V(PWv+2*x,2)}, v{vP0 if i < 4 else vP1} offset:{L_PW + ((2*i+h)*128 if i < 4 else h*128)}", "pw")
    for i in range(5):
        k.ds(f"ds_write_b128 v{vB1+9 if i < 4 else 13}, {V(EE+4*i,4)} offset:{L_EX + (16*i if i < 4 else 0)}")
    ch = t + 20
    E0, E1, LL, ET, GA = ch, ch+2, ch+4, ch+8, 14
    GA = [ch+8, ch+12, ch+16, ch+20, ch+24]
    k.ds(f"ds_read_b128 {V(LL,4)}, v{vGr} offset:{L_CH+48}", "e")
    k.e(f"v_mov_b32 v{ET+1}, s{sNonce}\nv_mov_b32 v{ET+3}, s{sNonce}")
    fd.flush()
    k.wait_lg()
    k.e("s_barrier")
    k.ds(f"ds_read_b64 {V(E0,2)}, v{vGc} offset:{L_EX}", "e")
    k.ds(f"ds_read_b64 {V(E1,2)}, v{vGc} offset:{L_EX+640}", "e")
    k.wait_lg()
    cmul_acc(E1, E0, LL, E1)
    k.e(f"v_mov_b32 v{ET}, v{E1}\nv_mov_b32 v{ET+2}, v{E1+1}")
    k.vmem(f"buffer_store_dwordx4 {V(ET,4)}, v{vPub}, s[{rWS}:{rWS+3}], s{sH} offen sc1", "e")
    stamp()
    def gather(track):
        for i in range(5):
            tx = f"buffer_load_dwordx4 {V(GA[i],4)}, v{vG2+i}, s[{rWS}:{rWS+3}], s{sHw} offen sc1"
            k.vmem(tx, "ga") if track else k.e(tx)
    k.e("s_nop 1")
    k.wait_vm("cre")
    gather(True)
    c_read(0, [4, 5, 6, 7, 92, 93])
    fd = Feeder(wd[e1:e1 + ew], 1)
    per = ew / (13.0 - OPT['wskip2'])
    done = [0.0]
    cnt = [0]
    def tk_():
        cnt[0] += 1
        if cnt[0] <= OPT["wskip2"]: return
        if cnt[0] == OPT["wskip2"] + 1: k.wait_lg()
        done[0] += per; n_ = int(done[0]); done[0] -= n_; fd.tick(n_); k.raw(".p2align 3")
    WT, W2 = 14, 16
    for x in range(10):
        k.e(f"v_mov_b32_dpp v{treg(x)}, v{ereg(x)} row_shr:1 row_mask:0xf bank_mask:0xf bound_ctrl:0")
        k.e(f"v_mov_b32_dpp v{treg(x)+1}, v{ereg(x)+1} row_shr:1 row_mask:0xf bank_mask:0xf bound_ctrl:0")
    def cmul(d, a, b, tmp):
        k.e(f"v_pk_mul_f32 {V(tmp,2)}, {V(a,2)}, {V(b,2)} op_sel:[0,0] op_sel_hi:[1,0]")
        k.e(f"v_pk_fma_f32 {V(d,2)}, {V(a,2)}, {V(b,2)}, {V(tmp,2)} op_sel:[1,1,0] op_sel_hi:[0,1,1] neg_lo:[0,1,0]")
    tk_()
    for x in range(10): cmul(treg(x), treg(x), LC+4*x+2, ereg(x))
    tk_()
    for x in range(10): cmul(PWv+2*x, PWv+2*x, LC+4*x+2, ereg(x))
    for x, (i, h) in enumerate(slots):
        tk_()
        for j in range(4): cmul(acc(i,j)+2*h, acc(i,j)+2*h, LC+4*x+2, EE+2*j)
    tk_()
    cmul(WT, LL+2, LL+2, W2); cmul(WT, WT, WT, W2); cmul(WT, WT, LL+2, W2); cmul(W2+2, WT, WT, W2)
    k.e(f"""
    v_cmp_eq_u32 vcc, 2, v{WH_}
    v_mov_b32 v{W2}, 1.0
    v_mov_b32 v{W2+1}, 0
    v_cndmask_b32 v{WT}, v{WT}, v{W2+2}, vcc
    v_cndmask_b32 v{WT+1}, v{WT+1}, v{W2+3}, vcc
    v_cmp_eq_u32 vcc, 0, v{WH_}
    v_mul_u32_u24 v{W2+2}, 640, v{WH_}
    v_add_u32 v{vGc}, v{vGc}, v{W2+2}
    v_cndmask_b32 v{WT}, v{WT}, v{W2}, vcc
    v_cndmask_b32 v{WT+1}, v{WT+1}, v{W2+1}, vcc
    v_cndmask_b32 v{E0}, v{W2+1}, v{E0}, vcc
    v_cndmask_b32 v{E0+1}, v{W2+1}, v{E0+1}, vcc
    s_mul_i32 s{sT0}, s{sWC}, 1280
    v_add_u32 v{vE0}, s{sT0}, v{vE0}
    v_add_u32 v{vE1}, s{sT0}, v{vE1}
    """)
    fd.flush()
    h_base()
    k.e(f"""
    s_mul_i32 s{sT1}, s{sT1}, 5
    s_add_u32 s{sT0}, s{sT0}, s{sT1}
    s_add_u32 s{sT0}, s{sT0}, 12
    s_lshl_b32 s{sT0}, s{sT0}, 12
    s_add_u32 s{sH}, s{sH}, s{sT0}
    s_add_u32 s{sB2}, s{sH}, {4*4096}
    s_lshl_b32 s{sT0}, s{sWR}, 3
    s_add_u32 s{sB2}, s{sB2}, s{sT0}
    s_lshl_b32 s{sT0}, s{sWR}, 13
    s_add_u32 s{sH}, s{sH}, s{sT0}
    s_add_u32 s{sB0}, s{sH}, 4096
    """)
    stamp(60)
    k.wait_vm("ga")
    k.label("L_carry_chk")
    k.e(f"s_mov_b64 s[{sEx}:{sEx+1}], 0")
    for i in range(5):
        k.e(f"""
        v_cmp_ne_u32 vcc, s{sNonce}, v{GA[i]+1}
        v_cmp_ne_u32 s[{sT0}:{sT1}], s{sNonce}, v{GA[i]+3}
        s_or_b64 vcc, vcc, s[{sT0}:{sT1}]
        s_and_b64 vcc, vcc, s[{sVal[i]}:{sVal[i]+1}]
        s_or_b64 s[{sEx}:{sEx+1}], s[{sEx}:{sEx+1}], vcc
        """)
    k.e(f"""
    s_cmp_eq_u64 s[{sEx}:{sEx+1}], 0
    s_cbranch_scc1 L_carry_done
    s_sub_u32 s{sSpin}, s{sSpin}, 1
    s_cbranch_scc1 L_end
    """)
    gather(False)
    k.e("s_waitcnt vmcnt(0)\ns_branch L_carry_chk")
    k.label("L_carry_done")
    stamp()
    for i in range(5): k.e(f"v_mov_b32 v{GA[i]+1}, v{GA[i]+2}")
    for i in (3, 2, 1, 0): cmul_acc(GA[i], GA[i+1], LL+2, GA[i])
    cmul(GA[0], GA[0], WT, W2)
    cmul_acc(E0, GA[0], LL, E0)
    k.ds(f"ds_write_b64 v{vGc}, {V(GA[0],2)} offset:{L_PW}")
    k.ds(f"ds_write_b64 v{vGc}, {V(E0,2)} offset:{L_PW + 1920}")
    k.wait_lg()
    k.e("s_barrier")
    PB = [EE, ch, 4]
    for i in range(5):
        for g in range(3):
            k.ds(f"ds_read_b128 {V(PB[g]+4*i,4)}, v{vE0 if i < 4 else vE1} offset:{L_PW + 640*g + (16*i if i < 4 else 0)}", ("pb", i))
    k.raw(".p2align 3")
    for x in range(10):
        if x % 2 == 0: k.wait_lg(("pb", x // 2)); k.raw(".p2align 3")
        k.e(f"v_pk_add_f32 {V(ereg(x),2)}, {V(ereg(x),2)}, {V(PB[1]+2*x,2)}")
        k.e(f"v_pk_add_f32 {V(ereg(x),2)}, {V(ereg(x),2)}, {V(PB[2]+2*x,2)}")
        cmul_acc(treg(x), ereg(x), PWv+2*x, treg(x))
    O = ch
    ej = []
    fd = Feeder(ej, 1)
    for j in range(4):
        fd.tick((len(ej) + 3) // 4)
        k.raw(".p2align 3")
        for x, (i, h) in enumerate(slots):
            prev = treg(x) if j == 0 else acc(i, j-1) + 2*h
            cmul_acc(acc(i,j)+2*h, prev, LC+4*x, acc(i,j)+2*h)
        o = O + (j & 1) * 10
        for i in range(4): k.e(f"v_cvt_pk_bf16_f32 v{o+i}, v{acc(i,j)}, v{acc(i,j)+2}")
        for i in range(4): k.e(f"v_cvt_pk_bf16_f32 v{o+4+i}, -v{acc(i,j)+1}, -v{acc(i,j)+3}")
        k.e(f"v_cvt_pk_bf16_f32 v{o+8}, v{acc(4,j)}, v{acc(4,j)+2}")
        k.e(f"v_cvt_pk_bf16_f32 v{o+9}, -v{acc(4,j)+1}, -v{acc(4,j)+3}")
        k.vmem(f"buffer_store_dwordx4 {V(o,4)}, v{vL16}, s[{rWS}:{rWS+3}], s{sH} offen offset:{j*1024} sc1", "h")
        k.vmem(f"buffer_store_dwordx4 {V(o+4,4)}, v{vL16}, s[{rWS}:{rWS+3}], s{sB0} offen offset:{j*1024} sc1", "h")
        k.vmem(f"buffer_store_dwordx2 {V(o+8,2)}, v{vL16}, s[{rWS}:{rWS+3}], s{sB2} offen offset:{j*1024} sc1", "h")
    fd.flush()
    stamp()
    k.wait_vm("cim")
    c_read(1, [150, 151, 152, 153, 154, 155])
    k.seen.update(("w", x) for x in range(10))
    seam(typ, [], 0, 0)

def poll(tag, vaddr, vd):
    k.e(f"""
    L_poll_{tag}:
    buffer_load_dwordx2 {V(vd,2)}, v{vaddr}, s[{rWS}:{rWS+3}], 0 offen sc1
    s_waitcnt vmcnt(0)
    v_cmp_ne_u32 vcc, s{sNonce}, v{vd}
    v_cmp_ne_u32 s[{sT0}:{sT1}], s{sNonce}, v{vd+1}
    s_or_b64 vcc, vcc, s[{sT0}:{sT1}]
    s_cmp_eq_u64 vcc, 0
    s_cbranch_scc1 L_pollok_{tag}
    s_sub_u32 s{sSpin}, s{sSpin}, 1
    s_cbranch_scc1 L_end
    s_sleep 1
    s_branch L_poll_{tag}
    L_pollok_{tag}:
    """)
    k.vm = []

def acc2(p_, i, s): return 96 + 80*p_ + (i*4 + s)*4
def phase2(typ, pend):
    stamp_n[0] = 10
    n_ = NK[typ]; T = 2*n_
    AD = [88, 89, 90, 91]
    XF, XD = 92, 94
    sXo, sXi, sFo = sB0, sH, sHw
    setup = lines(f"""
    v_mul_u32_u24 v{vRw}, {RROW}, v{vN}
    v_lshl_add_u32 v{vRw}, v{vQ}, 4, v{vRw}
    v_add_u32 v{vRw}, s{sWLb}, v{vRw}
    v_lshlrev_b32 v{XO}, 1, v{XO}
    s_lshl_b32 s{sB2}, s{sX}, 1
    s_mov_b32 s{rW}, s{pOut}
    s_mov_b32 s{rW+1}, s{pOut+1}
    s_mov_b32 s{rW+2}, {2048*2560}
    s_mov_b32 s{rW+3}, 0x20000
    s_lshl_b32 s{sXi}, s{sMT}, 3
    s_add_u32 s{sXi}, s{sXi}, s{sDT}
    s_lshl_b32 s{sXi}, s{sXi}, 1
    s_add_u32 s{sXi}, s{sXi}, s{sHALF}
    s_xor_b32 s{sXo}, s{sXi}, 1
    s_lshl_b32 s{sFo}, s{sXo}, 6
    s_lshl_b32 s{sLX}, s{sW}, 4
    s_add_u32 s{sLX}, s{sLX}, {WS_XF}
    s_add_u32 s{sFo}, s{sFo}, s{sLX}
    s_lshl_b32 s{sUnit}, s{sXi}, 6
    s_add_u32 s{sUnit}, s{sUnit}, s{sLX}
    v_mov_b32 v{XF}, s{sUnit}
    v_lshlrev_b32 v{XF+1}, 26, v{vL}
    s_mul_i32 s{sLX}, s{sW}, 5120
    s_add_u32 s{sLX}, s{sLX}, {WS_XB}
    s_mul_i32 s{sXi}, s{sXi}, 20480
    s_add_u32 s{sXi}, s{sXi}, s{sLX}
    s_mul_i32 s{sXo}, s{sXo}, 20480
    s_add_u32 s{sXo}, s{sXo}, s{sLX}
    s_add_u32 s{sDX}, s{sXi}, 4096
    s_add_u32 s{sDW}, s{sXo}, 4096
    """)
    for s in range(4):
        setup += lines(f"s_xor_b32 s{sLX}, s{sW}, {s}\ns_mul_i32 s{sLX}, s{sLX}, {WLW}\ns_add_u32 s{sLX}, s{sLX}, {L_WL + s*RBLK}\nv_add_u32 v{AD[s]}, s{sLX}, v{LO}")
    def red_w(p_, s): return [DSF(f"ds_write_b128 v{vRw}, {V(acc2(p_,i,s),4)} offset:{s*RBLK + i*64}", "rw") for i in range(5)]
    RD = [96 + 16*g for g in range(5)]
    def red_r(g): return [DSF(f"ds_read_b128 {V(RD[g]+4*s,4)}, v{AD[s]} offset:{64*g}", ("r", g)) for s in range(4)]
    bgq = list(setup)
    per = -(-len(pend) // OPT["kw"])
    for t in range(T):
        p_, tk = divmod(t, n_)
        assert not [1 for t_, _ in pend if t_ <= t], (typ, t)
        if OPT.get("fine2"): stamp(14 + 2*t)
        k.wait_vm([("w", tk), ("h", t)])
        if OPT.get("fine2"): stamp(15 + 2*t)
        wk, wb = wreg(tk); ring = HRING[t % NR]
        m = []
        for s in range(4):
            for i in range(5):
                c = "0" if tk == 0 else V(acc2(p_, i, s), 4)
                m.append(f"v_mfma_f32_16x16x32_bf16 {V(acc2(p_,i,s),4)}, {R(wk, wb+4*i, 4)}, {R(ring[s][0], ring[s][1], 4)}, {c}")
        streams = []
        if t + NR < T:
            a_, b_ = hload(typ, t + NR)
            streams.append((a_, 0, 2, True))
            for s in range(4): streams.append((b_[s], 5*s + 4, 5*s + 4, True))
        mem = []
        for _ in range(per):
            if pend: mem += flat([pend.pop(0)[1]])
        u = t - n_
        if u == 0:
            assert not bgq
            streams.append((sum((red_w(0, s) for s in range(3)), []), 2, 19, True))
        if u == 1: streams.append((red_w(0, 3), 0, 6, True))
        if u == 2:
            k.wait_lg(); k.e("s_barrier")
            streams.append((red_r(0) + red_r(1) + red_r(2), 0, 16, True))
        if u == 3: streams.append((red_r(3) + red_r(4), 0, 12, True))
        if u in (3, 4):
            for g in ((0, 1, 2) if u == 3 else (3, 4)):
                bgq += [F(lambda g=g: k.wait_lg(("r", g)), 1)]
                bgq += lines("\n".join(f"v_add_f32 v{RD[g]+x}, v{RD[g]+x}, v{RD[g]+4+x}" for x in range(4)) + "\n" +
                             "\n".join(f"v_add_f32 v{RD[g]+8+x}, v{RD[g]+8+x}, v{RD[g]+12+x}" for x in range(4)) + "\n" +
                             "\n".join(f"v_add_f32 v{RD[g]+x}, v{RD[g]+x}, v{RD[g]+8+x}" for x in range(4)))
                bgq += [VM(f"buffer_store_dwordx4 {V(RD[g],4)}, v{vL16}, s[{rWS}:{rWS+3}], s{sXo if g < 4 else sDW} offen offset:{(g & 3)*1024} sc1", ("xs", g))]
        if u == n_ - 2: k.e("s_barrier")
        if u == n_ - 3: mem += [VM(f"buffer_load_dwordx2 {V(vFd,2)}, v{XF}, s[{rWS}:{rWS+3}], 0 offen sc1", "xp")]
        if u == OPT["xfu"]:
            run(bgq); bgq.clear()
            k.e(f"v_mov_b32 v{XD}, s{sNonce}\nv_mov_b32 v{XD+1}, s{sNonce}")
            k.wait_vm(("xs", 4))
            k.vmem(f"buffer_store_dwordx2 {V(XD,2)}, v{XF+1}, s[{rWS}:{rWS+3}], s{sFo} offen sc1", "xf")
        if u == n_ - 1:
            k.wait_vm("xp"); check("x" + typ, XF, vFd)
            mem += [VM(f"buffer_load_dwordx4 {V(RD[g],4)}, v{vL16}, s[{rWS}:{rWS+3}], s{sXi if g < 4 else sDX} offen offset:{(g & 3)*1024} sc1", "xl") for g in range(5)]
            streams.append((red_w(1, 0) + red_w(1, 1), 8, 19, True))
        streams.append((mem, 1, 18, True))
        streams.append((bgq, 0, 20, False))
        sched(m, streams)
    run(red_w(1, 2))
    stamp()
    run(red_w(1, 3))
    k.wait_vm("xl")
    for g in range(5):
        for h in range(2): k.e(f"v_pk_add_f32 {V(RES+4*g+2*h,2)}, {V(RES+4*g+2*h,2)}, {V(RD[g]+2*h,2)}")
    k.wait_lg(); k.e("s_barrier")
    for g in range(5): run(red_r(g))
    for g in range(5):
        k.wait_lg(("r", g))
        o = RES + 4*g
        for h in range(2): k.e(f"v_pk_add_f32 {V(RD[g]+2*h,2)}, {V(RD[g]+2*h,2)}, {V(RD[g]+4+2*h,2)}")
        for h in range(2): k.e(f"v_pk_add_f32 {V(RD[g]+8+2*h,2)}, {V(RD[g]+8+2*h,2)}, {V(RD[g]+12+2*h,2)}")
        for h in range(2): k.e(f"v_pk_add_f32 {V(o+2*h,2)}, {V(o+2*h,2)}, {V(RD[g]+2*h,2)}")
        for h in range(2): k.e(f"v_pk_add_f32 {V(o+2*h,2)}, {V(o+2*h,2)}, {V(RD[g]+8+2*h,2)}")
        k.vmem(f"buffer_store_dwordx4 {V(o,4)}, v{XO}, s[{rW}:{rW+3}], s{sB2} offen offset:{64*g} {OPT.get('ost', '')}", "o")
    if OPT.get("spin"):
        ins, n_ = OPT["spin"]
        k.e(f"""
        s_waitcnt vmcnt(0)
        s_sub_u32 s{sST}, s{sST}, s98
        s_add_u32 s{sST}, s{sST}, {n_}
        L_spin_{typ}:
        {ins} s[100:101]
        s_waitcnt lgkmcnt(0)
        s_sub_u32 s100, s100, s98
        s_cmp_lt_u32 s100, s{sST}
        s_cbranch_scc1 L_spin_{typ}
        """)
    k.e("s_branch L_fin" if OPT["stamps"] else "s_endpgm")

def finish():
    if OPT["stamps"]:
        k.label("L_fin")
        k.wait_vm0()
        stamp(11)
        k.e(f"""
        s_memtime s[100:101]
        s_waitcnt lgkmcnt(0)
        s_sub_u32 s100, s100, s98
        v_writelane_b32 v{vST}, s100, 63
        s_lshl_b32 s{sT0}, s2, 2
        s_add_u32 s{sT0}, s{sT0}, s{sW}
        s_lshl_b32 s{sT0}, s{sT0}, 8
        s_add_u32 s{sT0}, s{sT0}, {WS_ST}
        v_lshlrev_b32 v2, 2, v{vL}
        buffer_store_dword v{vST}, v2, s[{rWS}:{rWS+3}], s{sT0} offen
        """)

prologue()
stamp_n[0] = 1
path_ssm()
stamp_n[0] = 1; cur[0] = "mlp"
path_mlp()
finish()
k.label("L_end")
body = k.text()
errs = check_hazards(body)
for e_ in errs: print("HAZARD:", e_, file=sys.stderr)

hdr = open(f"cdna_kernels/{NAME}.s.ref").read().split("\n")
hdr = [l for l in hdr if l.startswith(";") and "@launch" not in l and "Override" not in l and "grid=ceil" not in l]
out = "\n".join(hdr) + f"\n; @launch grid=(256,1,1) block=(256,1,1) lds={L_END}\n"
out += f""".amdgcn_target "amdgcn-amd-amdhsa--gfx950"
.text
.globl {NAME}_kernel
.p2align 8
.type {NAME}_kernel,@function
{NAME}_kernel:
{body}    s_endpgm
L_code_end:
.set CODE_BYTES, L_code_end - {NAME}_kernel - 512
.section .rodata,"a"
.p2align 6
.amdhsa_kernel {NAME}_kernel
  .amdhsa_next_free_vgpr 512
  .amdhsa_next_free_sgpr 102
  .amdhsa_accum_offset 256
  .amdhsa_group_segment_fixed_size 0
  .amdhsa_kernarg_size 136
  .amdhsa_user_sgpr_count 2
  .amdhsa_user_sgpr_kernarg_segment_ptr 1
  .amdhsa_system_sgpr_workgroup_id_x 1
.end_amdhsa_kernel
"""
open(sys.argv[1], "w").write(out)
print("written", sys.argv[1], len(out), "bytes; hazards:", len(errs))
```

```python
import sys, struct
sys.path.insert(0, "dev")
from asmlib import *

NAME = "parallel_sum__ssm_conv_s5__mixer_channel_mlp__prompt"
OPT = dict(stamps=False, stop=None, nt_dma="", nt_pf="", nt_rp="", pf=0, pf0=1, pford=0, post0=12, rpown='mlp', post=25, e1=0, ew=30, post0_s=0, wskip=3, rpd_mlp=(0, 3.5), rpd_ssm=(0, 3.5), rotg=4, e2=0, post_s=0, cpf=1, rp_mlp=(5, (6, 7, 9, 11, 12), 14), rp_ssm=(5, (6, 7, 8, 9, 10), 12), rf_mlp=17, wskip2=1, touch=8, rf_ssm=99, xfu_mlp=6, xfu_ssm=7, xlate=1, fa=8, resfirst=1, ne=0, gpos=6, post1=20, hpre=1, ne_mlp=0, kw=6, util=1.0, rot1=1, rot2=1)
for a_ in sys.argv[2:]:
    k_, v_ = a_.split("=", 1); OPT[k_] = eval(v_)

def f2u(x): return struct.unpack("<I", struct.pack("<f", x))[0]
def hx(x): return "0x%08x" % f2u(x)

WS_EP = 0
WS_H = 4096
WS_WP = 12 << 20
WS_E = 16 << 20
WS_RF = 17 << 20
WS_HF = (17 << 20) + 65536
WS_RS = 18 << 20
WS_ST = 20 << 20
WS_XF = (17 << 20) + 131072
WS_XB = 24 << 20
WS_SIZE = 32 << 20
OOB = 0x4000000
L_TOK = 0; L_CH = 2048; L_PW = 7168; L_EX = 17408; L_EX2 = L_EX + 1280
L_STG = 20480; L_X = 40960; L_W = 90112; L_END = 163840
XS = 16384; WSL = 24576
L_SCS = {'ssm': (L_EX2, 320), 'mlp': (L_CH + 512, 384)}; L_B1 = L_CH; L_DB = 20160
WLW = 4 * 16 * 336; RROW = 336; RBLK = 16 * RROW
L_WL = L_STG
NST = 10
pX, pLre, pLim, pBre, pBim, pCre, pCim, pLdt = 16, 18, 20, 22, 24, 26, 28, 30
pDsk, pBx, pW1, pB1, pW2, pB2, pOut, pDbg, pWs = 32, 34, 36, 38, 40, 42, 44, 46, 48
sW, sWR, sWC, sMT, sNT, sTYP, sHALF, sDT = 3, 4, 5, 6, 7, 8, 88, 7
sML, sI8 = 9, 10
sNonce = 11; sT0, sT1, sT2, sT3 = 12, 13, 14, 15
sKs = 50; sPF = 51
rX, rW, rWS, rT, rT2 = 52, 56, 60, 64, 68
sX, sLX, sLW, sB0, sB2, sPFs, sUnit, sRpSrc, sLR, sSpin = 72, 73, 74, 75, 76, 77, 78, 79, 80, 81
sK = 82; sEx = 84
sH, sHw, sWp, sDis = 86, 87, 88, 89
sST = 90
sRpD = 92
sSig = 97
sWa, sHa, sLim = 18, 22, 26
sDX, sDW = 77, 51
rPF = rT2
vL, vN, vQ = 1, 2, 3
vDX0, vDX1, vXa, vXb = 4, 5, 6, 7
vDW = 8
vPF, vDR, vJunk, vNc = 10, 11, 12, 13
vWA = 14
vRA = 120
vL16 = 26
vRS = 27
vB1 = 28
vT = 40
vST = 25
ACC = 160
def acc(i, j): return ACC + (i * 4 + j) * 4
aF = [0, 40]
aONE = 80; aCS = 84

k = Asm()
k.strict = OPT.get('strict', False)
k.lenient = OPT['stamps']
stamp_n = [0]
cur = ["ssm"]
def stamp(i=None):
    if i is None:
        i = stamp_n[0]; stamp_n[0] += 1
    if OPT.get("probe") == (cur[0], i):
        k.e(f"s_memrealtime s[{sST}:{sST+1}]"); k.e("s_waitcnt lgkmcnt(0)"); k.lg = []
    if not OPT["stamps"]: return
    k.e(f"{'s_memtime' if OPT.get('cyc') else 's_memrealtime'} s[{sST}:{sST+1}]"); k.e("s_waitcnt lgkmcnt(0)"); k.lg = []
    k.e(f"v_writelane_b32 v{vST}, s{sST}, {i}")
def srd(r, ptr, size):
    k.e(f"s_mov_b32 s{r}, s{ptr}\ns_mov_b32 s{r+1}, s{ptr+1}\ns_mov_b32 s{r+2}, {size}\ns_mov_b32 s{r+3}, 0x20000")

class F:
    def __init__(self, fn, cost=1, ds=False, sep=False, ta=0): self.fn, self.cost, self.ds, self.sep, self.ta = fn, cost, ds, sep, ta
    gate = None
    def __call__(self): self.fn()
curblk = [0]
def note(d, key): return F(lambda: d.__setitem__(key, curblk[0]), 0)
def gate(fn):
    f = F(lambda: None, 0); f.gate = fn; return f
def lines(s):
    out = []; prev = set()
    for l in (x.strip() for x in s.split("\n")):
        if not l: continue
        if l == "s_nop 0":
            prev = None; continue
        parts = l.split(" | ")
        c = sum(2 if x.split()[0] in TRANS else 1 for x in parts)
        d = parse(parts[0])
        dep = prev is None or (d["valu"] and bool(d["uses"] & prev))
        prev = set().union(*[{r for r in parse(x)["defs"] if r[0] == "v"} for x in parts])
        out.append(F(lambda l=l: k.e(l.replace(" | ", "\n")), c, sep=dep))
    return out
def VM(text, tag, sep=False, ta=66): return F(lambda: k.vmem(text, tag), 2, sep=sep, ta=ta)
def DSF(text, tag=None): return F(lambda: k.ds(text, tag), 1, ds=True)
def sched(main, streams, start=0):
    n = len(main)
    st = []
    for items, g0, g1, must in streams:
        cnt = len(items) if must else min(len(items), must if isinstance(must, int) and must > 1 else len(items))
        tot = sum(f.cost for f in items[:cnt]) or 1
        tg = []; acc_ = 0
        for f in items[:cnt]:
            tg.append(g0 + (g1 - g0) * acc_ / tot if must else g0); acc_ += f.cost
        st.append(dict(items=items, tg=tg, last=-1, must=must))
    for g, m in enumerate(main):
        k.e(m)
        if g < start: continue
        room = 2; hasds = False
        prog = True
        while prog and room > 0:
            prog = False
            for x in st:
                if not x["tg"] or x["tg"][0] > g: continue
                f = x["items"][0]
                if f.gate and not f.gate(): continue
                if f.sep and x["last"] == g: continue
                if f.ds and (hasds or (not x["must"] and g >= n - 6)): continue
                if f.cost > room and room < 2 and not (not x["must"] and g - x["last"] >= 3): continue
                x["items"].pop(0); x["tg"].pop(0); x["last"] = g
                f(); room -= f.cost; hasds |= f.ds; prog = True
                break
    for x in st:
        if x["must"]:
            over = len(x["tg"])
            if over and OPT.get("show"): print("overflow", over)
            while x["tg"]:
                f = x["items"].pop(0); x["tg"].pop(0)
                if f.sep: k.e("s_nop 0")
                f()
def merge(*ls):
    ls = [l for l in ls if l]
    if not ls: return []
    if len(ls) == 1: return list(ls[0])
    items = []
    for li, l in enumerate(ls):
        for i, f in enumerate(l): items.append(((i + 0.5) / len(l), li, i, f))
    items.sort(key=lambda x: (x[0], x[1]))
    return [x[3] for x in items]

def prologue():
    t = vT
    k.e(f"""
    s_cmp_ge_u32 s2, 256
    s_cbranch_scc1 L_end
    s_load_dwordx16 s[16:31], s[0:1], 0
    s_load_dwordx16 s[32:47], s[0:1], 64
    s_load_dwordx2 s[48:49], s[0:1], 128
    v_lshrrev_b32 v{t}, 6, v0
    v_and_b32 v{vL}, 63, v0
    v_readfirstlane_b32 s{sW}, v{t}
    v_and_b32 v{vN}, 15, v{vL}
    v_lshrrev_b32 v{vQ}, 4, v{vL}
    v_lshlrev_b32 v{vL16}, 4, v{vL}
    s_and_b32 s{sT0}, s2, 7
    s_lshr_b32 s{sT1}, s2, 3
    s_lshr_b32 s{sTYP}, s{sT1}, 4
    s_bfe_u32 s{sML}, s{sT1}, 0x20002
    s_lshr_b32 s{sMT}, s{sT0}, 1
    s_lshl_b32 s{sT2}, s{sML}, 2
    s_add_u32 s{sMT}, s{sMT}, s{sT2}
    s_and_b32 s{sT2}, s{sT1}, 3
    s_lshl_b32 s{sI8}, s{sTYP}, 2
    s_add_u32 s{sI8}, s{sI8}, s{sT2}
    s_and_b32 s{sNT}, s{sT0}, 1
    s_lshl_b32 s{sNT}, s{sNT}, 2
    s_add_u32 s{sNT}, s{sNT}, s{sT2}
    s_lshr_b32 s{sWR}, s{sW}, 1
    s_and_b32 s{sWC}, s{sW}, 1
    s_xor_b32 s{sKs}, s{sWR}, s{sWC}
    s_xor_b32 s{sHALF}, s{sTYP}, 1
    s_mov_b32 s{sSpin}, 0x40000
    s_and_b32 s{sT2}, s2, 127
    s_sub_u32 s{sUnit}, 127, s{sT2}
    s_cmp_lt_u32 s{sUnit}, 96
    s_cselect_b32 s{sUnit}, s{sUnit}, 0
    s_cselect_b32 s{sDis}, 0, {OOB}
    """)
    if OPT["stamps"]:
        k.e(f"v_mov_b32 v{vST}, 0\n{'s_memtime' if OPT.get('cyc') else 's_memrealtime'} s[{sST}:{sST+1}]\ns_memtime s[98:99]"); stamp_n[0] = 1
    if OPT.get("spin"): k.e(f"{OPT['spin'][0]} s[98:99]\ns_waitcnt lgkmcnt(0)\ns_mov_b32 s{sST}, s98")
    if OPT["cpf"]:
        k.e(f"""
        s_getpc_b64 s[{sEx}:{sEx+1}]
        s_lshr_b32 s{sT1}, s2, 3
        s_lshl_b32 s{sT1}, s{sT1}, 2
        s_add_u32 s{sT1}, s{sT1}, s{sW}
        s_lshl_b32 s{sT1}, s{sT1}, 9
        v_and_b32 v{t}, 3, v{vL}
        v_lshlrev_b32 v{t}, 7, v{t}
        v_add_u32 v{t}, s{sT1}, v{t}
        v_min_u32 v{t}, CODE_BYTES, v{t}
        global_load_dword v{vJunk}, v{t}, s[{sEx}:{sEx+1}]
        """)
    k.e(f"""
    v_lshrrev_b32 v{t}, 3, v{vL}
    v_and_b32 v{t+1}, 7, v{vL}
    v_lshrrev_b32 v{t+2}, 1, v{t}
    v_xor_b32 v{t+2}, v{t+1}, v{t+2}
    v_mul_u32_u24 v{t+3}, 5120, v{t}
    v_lshl_add_u32 v{vDX0}, v{t+2}, 4, v{t+3}
    v_xor_b32 v{vDX1}, 64, v{vDX0}
    v_add_u32 v{vDX1}, 40960, v{vDX1}
    s_lshl_b32 s{sT0}, s{sMT}, 7
    s_lshl_b32 s{sT1}, s{sWR}, 6
    s_add_u32 s{sT0}, s{sT0}, s{sT1}
    s_lshl_b32 s{sT1}, s{sWC}, 1
    s_add_u32 s{sT0}, s{sT0}, s{sT1}
    s_mul_i32 s{sX}, s{sT0}, 1280
    s_lshl_b32 s{sLX}, s{sW}, 12
    s_lshl_b32 s{sT2}, s{sKs}, 2
    v_add_u32 v{t+4}, s{sT2}, v{vQ}
    v_lshrrev_b32 v{t+5}, 1, v{vN}
    v_xor_b32 v{t+5}, v{t+4}, v{t+5}
    v_lshlrev_b32 v{t+5}, 4, v{t+5}
    v_lshl_add_u32 v{t+5}, v{vN}, 7, v{t+5}
    s_lshl_b32 s{sT1}, s{sWC}, 13
    s_add_u32 s{sT1}, s{sT1}, {L_X}
    v_add_u32 v{vXa}, s{sT1}, v{t+5}
    v_xor_b32 v{vXb}, 64, v{vXa}
    s_cmp_eq_u32 s{sTYP}, 1
    s_cbranch_scc1 L_mlp
    """)

issued = {}
mk = {}
def dma(vo, rs, so, imm, sl, tgt, tag, fl, pre=None):
    def f1():
        k.e(f"s_add_u32 m0, s{sl}, {tgt - imm}")
        if pre: k.e(pre)
    def f2():
        if isinstance(tag, tuple): issued[tag[1]] = issued.get(tag[1], 0) + 1
        k.vmem(f"buffer_load_dwordx4 v{vo}, s[{rs}:{rs+3}], s{so} offen offset:{imm} {fl} lds", tag)
    return [F(f1, 2 if pre else 1), F(f2, 2, sep=True, ta=66)]
def run(ops):
    for op in ops:
        for f in (op if isinstance(op, list) else [op]):
            if f.sep: k.e("s_nop 0")
            f()
def flat(ops): return [f for op in ops for f in (op if isinstance(op, list) else [op])]
def advance(typ, stage):
    d = 64*3072 if typ == "mlp" else 128
    G = OPT["rotg"]
    if stage not in [10 - (10*g) // G for g in range(1, G)]:
        return f"s_add_u32 s{sX}, s{sX}, 128\ns_add_u32 s{sB0}, s{sB0}, {d}\ns_add_u32 s{sB2}, s{sB2}, {d}"
    return (f"s_cmp_eq_u32 s{sSig}, {10 - stage} | s_cselect_b32 s{sT3}, {-9*128 & 0xffffffff}, s{sDX} | s_cselect_b32 s{sT2}, {-9*d & 0xffffffff}, s{sDW}\n"
            f"s_add_u32 s{sX}, s{sX}, s{sT3}\ns_add_u32 s{sB0}, s{sB0}, s{sT2}\ns_add_u32 s{sB2}, s{sB2}, s{sT2}")
def rot_setup(typ):
    d = 64*3072 if typ == "mlp" else 128
    G = OPT.get("rotg", 0)
    if G == 0: rotsel = f"""    s_mul_i32 s{sT0}, s{sI8}, 5
    s_lshr_b32 s{sT0}, s{sT0}, 2
    s_mul_i32 s{sT1}, s{sML}, 5
    s_lshr_b32 s{sT1}, s{sT1}, 1
    s_add_u32 s{sT0}, s{sT0}, s{sT1}
    s_and_b32 s{sT1}, s{sMT}, 3
    s_add_u32 s{sSig}, s{sT0}, s{sT1}
    s_sub_u32 s{sT0}, s{sSig}, 10
    s_cmp_ge_u32 s{sSig}, 10
    s_cselect_b32 s{sSig}, s{sT0}, s{sSig}
    s_mul_i32 s{sSig}, s{sSig}, {OPT['rot1']}
    """
    else:
        rotsel = f"s_add_u32 s{sT0}, s{sI8}, s{sML}\ns_and_b32 s{sT0}, s{sT0}, {G-1}\ns_mul_i32 s{sT0}, s{sT0}, 10\ns_lshr_b32 s{sSig}, s{sT0}, {G.bit_length()-1}"
    k.e(f"""
    {rotsel}
    s_lshl_b32 s{sT0}, s{sSig}, 7
    s_add_u32 s{sX}, s{sX}, s{sT0}
    s_mul_i32 s{sT0}, s{sSig}, {d}
    s_add_u32 s{sB0}, s{sB0}, s{sT0}
    s_add_u32 s{sB2}, s{sB2}, s{sT0}
    s_movk_i32 s{sDX}, 128
    s_mov_b32 s{sDW}, {d}
    """)
def dma_x(stage, g):
    return dma(vDX0 + (g & 1), rX, sX, (g >> 1) * 1280, sLX, L_X + (stage % 3) * XS + g * 1024, ("st", stage), OPT["nt_dma"])
def dma_w(typ, stage, g):
    base = L_W + (stage % 3) * WSL
    if typ == "mlp":
        rg, cg = g // 3, g % 3
        return dma(vDW + rg, rW, sB2 if rg else sB0, cg * 128, sLW, base + cg * 8192 + rg * 1024, ("st", stage), OPT["nt_dma"])
    imm = 2560 if (g < 4 and g & 1) else 0
    return dma(vDW + (1 if g == 4 else 0), rW, sB2 if g in (2, 3) else sB0, imm, sLW, base + g * 2048, ("st", stage), OPT["nt_dma"])
def dma_stage(typ, stage):
    nw = 6 if typ == "mlp" else 5
    ops = merge([dma_x(stage, g) for g in range(4)], [dma_w(typ, stage, g) for g in range(nw)])
    if stage > 0: ops[0] = lines(advance(typ, stage)) + ops[0]
    return ops
def pf(a):
    def f():
        if not OPT["pf"]: return
        k.vmem(f"buffer_load_dword v{vJunk}, v{vPF}, s[{rPF}:{rPF+3}], s{sPF} offen {OPT['nt_pf']}", "pf")
        k.e(f"s_add_u32 s{sPF}, s{sPF}, s{sPFs}")
    return F(f, 3)

def frag_reads(typ, stage, blk, fs):
    slot = stage % 3
    nr = 6 if typ == "mlp" else 5
    vx = vXa if blk == 0 else vXb
    xr = [DSF(f"ds_read_b128 {A(aF[fs] + 24 + 4*j, 4)}, v{vx} offset:{slot*XS + j*2048}") for j in range(4)]
    wr_ = []
    for i in range(nr):
        if typ == "mlp":
            for h in range(2):
                wr_.append(DSF(f"ds_read_b64_tr_b16 {A(aF[fs] + 4*i + 2*h, 2)}, v{vWA + blk*4 + (i & 3)} offset:{slot*WSL + (i >> 2)*8192 + h*512}"))
        else:
            wr_.append(DSF(f"ds_read_b128 {A(aF[fs] + 4*i, 4)}, v{vWA + blk} offset:{slot*WSL + i*2048}"))
    return merge(xr, wr_)

def mfmas(typ, stage, blk, fs):
    nr = 6 if typ == "mlp" else 5
    first = stage == 0
    out = []
    Af = lambda i: A(aF[fs] + 4*i, 4)
    Bf = lambda j: A(aF[fs] + 24 + 4*j, 4)
    for i in range(nr):
        for j in range(4):
            c = "0" if (first and blk == 0) else V(acc(i, j), 4)
            out.append(f"v_mfma_f32_16x16x32_bf16 {V(acc(i,j),4)}, {Af(i)}, {Bf(j)}, {c}")
    if blk == 1:
        for i in range(nr):
            out.append(f"v_mfma_f32_16x16x32_bf16 {A(aCS+4*i,4)}, {Af(i)}, {A(aONE,4)}, {'0' if first else A(aCS+4*i,4)}")
    if blk == 1 and stage == NST - 1: out = out[-nr:] + out[:-nr]
    return out

XR = 124
def start_loads(typ):
    t = vT
    k.e("s_waitcnt lgkmcnt(0)")
    if OPT["stamps"]: k.e(f"v_writelane_b32 v{vST}, s{sST}, 0")
    stamp(12)
    k.e(f"""
    s_or_b32 s{sT0}, s2, s{sW}
    s_cmp_lg_u32 s{sT0}, 0
    s_cbranch_scc1 L_nononce_{typ}
    s_memrealtime s[{sT0}:{sT1}]
    s_waitcnt lgkmcnt(0)
    s_or_b32 s{sT0}, s{sT0}, 1
    v_mov_b32 v{t+8}, s{sT0}
    v_mov_b32 v{t+9}, 0
    global_store_dword v{t+9}, v{t+8}, s[{pDbg}:{pDbg+1}] sc1
    L_nononce_{typ}:
    """)
    srd(rX, pX, 2048 * 1280)
    if typ == "mlp": srd(rW, pW1, 640 * 3072)
    else:
        k.e(f"""
        s_cmp_eq_u32 s{sWC}, 0
        s_cselect_b32 s{rW}, s{pBre}, s{pBim}
        s_cselect_b32 s{rW+1}, s{pBre+1}, s{pBim+1}
        s_mov_b32 s{rW+2}, {640*1280}
        s_mov_b32 s{rW+3}, 0x20000
        """)
    run(dma_stage(typ, 0))
    stamp(13)
    srd(rWS, pWs, WS_SIZE)
    if OPT.get('wsoff'): k.e(f"s_add_u32 s{rWS}, s{rWS}, {OPT['wsoff'] << 20}\ns_addc_u32 s{rWS+1}, s{rWS+1}, 0")
def xr_setup():
    k.e(f"""
    s_lshl_b32 s{sT0}, s{sTYP}, 3
    s_add_u32 s{sT0}, s{sT0}, s{sNT}
    s_lshl_b32 s{sT0}, s{sT0}, 2
    s_add_u32 s{sT0}, s{sT0}, s{sW}
    s_lshl_b32 s{sT0}, s{sT0}, 1
    s_lshl_b32 s{sT1}, s{sMT}, 7
    s_add_u32 s{sHw}, s{sT0}, s{sT1}
    s_mul_i32 s{sH}, s{sHw}, 1280
    v_lshrrev_b32 v{XR+10}, 5, v{vL}
    v_mul_u32_u24 v{XR+10}, 1280, v{XR+10}
    v_and_b32 v{XR+11}, 31, v{vL}
    v_lshl_add_u32 v{XR+11}, v{XR+11}, 3, v{XR+10}
    v_lshlrev_b32 v{XR+13}, 1, v{XR+11}
    v_sub_u32 v{XR+10}, v{XR+13}, v{XR+10}
    """)
def xr_loads():
    return [VM(f"buffer_load_dwordx4 {V(XR+4*i,4)}, v{XR+10}, s[{rX}:{rX+3}], s{sH} offen offset:{512*i}", "xr") for i in range(2)] + \
           [VM(f"buffer_load_dwordx2 {V(XR+8,2)}, v{XR+11}, s[{rX}:{rX+3}], s{sH} offen offset:1024", "xr", ta=40)]
def small_dma(ptr, size, soff, tgt, lanes):
    srd(rT2, ptr, size)
    k.e(f"s_mov_b32 m0, {tgt}\ns_mov_b32 exec_lo, {(1 << lanes) - 1}\ns_mov_b32 exec_hi, 0")
    k.vmem(f"buffer_load_dwordx4 v{vL16}, s[{rT2}:{rT2+3}], s{soff} offen lds", "sm")
    k.e("s_mov_b64 exec, -1")
def touch_c():
    t = vT + 6
    pre = lines(f"""
    s_lshl_b32 s{sT0}, s2, 2
    s_add_u32 s{sT0}, s{sT0}, s{sW}
    s_mul_i32 s{sT0}, s{sT0}, {13*128}
    v_min_u32 v{t}, 12, v{vL}
    v_lshlrev_b32 v{t}, 7, v{t}
    v_add_u32 v{t}, s{sT0}, v{t}
    """)
    return pre + [VM(f"buffer_load_dword v{vJunk}, v{t}, s[{p_}:{p_+3}], 0 offen", "jk", ta=30) for p_ in (rT, rT2)]
def small_loads(typ):
    k.e(f"s_mul_i32 s{sT0}, s{sDT}, 160")
    small_dma(pDsk, 1280, sT0, L_DB, 10)
    small_dma(pB2, 1280, sT0, L_DB + 160, 10)
    if typ == "mlp":
        k.e(f"s_mul_i32 s{sT0}, s{sNT}, 384")
        small_dma(pB1, 3072, sT0, L_B1, 24)

def pf_setup(typ):
    t = vT + 10
    k.e(f"""
    v_mul_u32_u24 v{t}, 52, v{vL}
    v_lshrrev_b32 v{t}, 10, v{t}
    v_mul_u32_u24 v{t+1}, 20, v{t}
    v_sub_u32 v{t+1}, v{vL}, v{t+1}
    s_lshl_b32 s{sT0}, s{sMT}, 7
    s_lshl_b32 s{sT1}, s{sI8}, 4
    s_add_u32 s{sT0}, s{sT0}, s{sT1}
    s_mul_i32 s{sT0}, s{sT0}, 1280
    s_add_u32 s{sT0}, s{sT0}, {128*OPT['pf0']}
    """)
    if typ == "mlp":
        k.e(f"""
        s_lshl_b32 s{sT1}, s{sML}, 4
        s_add_u32 s{sT1}, s{sT1}, {64*OPT['pf0']}
        s_mul_i32 s{sT1}, s{sT1}, 3072
        s_mul_i32 s{sT2}, s{sNT}, 384
        s_add_u32 s{sT1}, s{sT1}, s{sT2}
        s_lshl_b32 s{sT2}, s{sW}, 7
        s_add_u32 s{sT1}, s{sT1}, s{sT2}
        s_cmp_eq_u32 s{sW}, 3
        s_cselect_b32 s{sPF}, s{sT0}, s{sT1}
        s_mov_b32 s{sT2}, {64*3072}
        s_cselect_b32 s{sT2}, 128, s{sT2}
        s_mov_b32 s{sT3}, 3072
        s_cselect_b32 s{sT3}, 1280, s{sT3}
        s_mov_b32 s{sT0}, 16
        """)
    else:
        k.e(f"""
        s_mul_i32 s{sT1}, s{sNT}, 80
        s_mul_i32 s{sT2}, s{sML}, 20
        s_add_u32 s{sT1}, s{sT1}, s{sT2}
        s_mul_i32 s{sT1}, s{sT1}, 1280
        s_add_u32 s{sT1}, s{sT1}, {128*OPT['pf0']}
        s_cmp_eq_u32 s{sW}, 3
        s_cselect_b32 s{sPF}, s{sT0}, s{sT1}
        s_cselect_b32 s{sT0}, 16, 20
        s_cmp_eq_u32 s{sW}, 2
        s_cselect_b32 s{sT0}, 0, s{sT0}
        s_mov_b32 s{sT2}, 128
        s_mov_b32 s{sT3}, 1280
        """)
    k.e(f"""
    s_mul_i32 s{sPFs}, s{sT2}, 3
    v_mul_lo_u32 v{vPF}, v{t}, s{sT2}
    v_mul_lo_u32 v{t+2}, v{t+1}, s{sT3}
    v_add_u32 v{vPF}, v{vPF}, v{t+2}
    v_cmp_gt_u32 vcc, s{sT0}, v{t+1}
    v_cmp_gt_u32 s[{sT2}:{sT3}], 60, v{vL}
    s_and_b64 vcc, vcc, s[{sT2}:{sT3}]
    v_mov_b32 v{t+2}, {OOB}
    s_nop 0
    v_cndmask_b32 v{vPF}, v{t+2}, v{vPF}, vcc
    """)

def repack_setup(tag):
    t = vT
    k.e(f"""
    v_lshrrev_b32 v{t}, 3, v{vL}
    v_and_b32 v{t+1}, 7, v{vL}
    v_mul_u32_u24 v{t}, 1280, v{t}
    v_lshl_add_u32 v{t}, v{t+1}, 4, v{t}
    v_or_b32 v{vDR}, s{sDis}, v{t}
    v_or_b32 v{vRS}, s{sDis}, v{vL16}
    s_lshl_b32 s{sLR}, s{sW}, 10
    s_and_b32 s{sT0}, s{sUnit}, 1
    s_lshr_b32 s{sT1}, s{sUnit}, 1
    s_mov_b32 s{rT+3}, 0x20000
    """)
    if True:
        k.e(f"""
        s_mov_b32 s{rT}, s{pW2}
        s_mov_b32 s{rT+1}, s{pW2+1}
        s_mov_b32 s{rT+2}, {1536*1280}
        s_lshl_b32 s{sT2}, s{sT1}, 2
        s_add_u32 s{sT2}, s{sT2}, s{sW}
        s_mul_i32 s{sRpSrc}, s{sT2}, {8*1280}
        s_mul_i32 s{sT2}, s{sT1}, 5462
        s_lshr_b32 s{sT2}, s{sT2}, 16
        s_mul_i32 s{sT2}, s{sT2}, 10
        s_add_u32 s{sT1}, s{sT1}, s{sT2}
        s_mul_i32 s{sT1}, s{sT1}, 5120
        s_add_u32 s{sT1}, s{sT1}, {WS_WP}
        s_mul_i32 s{sT2}, s{sT0}, 20
        s_add_u32 s{sT2}, s{sT2}, s{sW}
        """)
        for i in range(5):
            k.e(f"""
            s_mul_i32 s{sT3}, s{sT2}, 13108
            s_lshr_b32 s{sT3}, s{sT3}, 16
            s_mul_i32 s{sT3}, s{sT3}, 435
            s_add_u32 s{sT3}, s{sT3}, s{sT2}
            s_lshl_b32 s{sT3}, s{sT3}, 10
            s_add_u32 s{sRpD+i}, s{sT3}, s{sT1}
            s_add_u32 s{sT2}, s{sT2}, 4
            """)
        k.e(f"""
        v_lshrrev_b32 v{t}, 2, v{vN}
        v_lshl_add_u32 v{t}, v{vQ}, 2, v{t}
        v_lshlrev_b32 v{t}, 7, v{t}
        v_and_b32 v{t+1}, 3, v{vN}
        v_lshl_add_u32 v{t}, v{t+1}, 3, v{t}
        s_lshl_b32 s{sT2}, s{sW}, 5
        s_add_u32 s{sT2}, s{sT2}, {L_STG}
        v_add_u32 v{vRA}, s{sT2}, v{t}
    """)
    else:
        k.e(f"""
        s_cmp_eq_u32 s{sWR}, 0
        s_cselect_b32 s{rT}, s{pCre}, s{pCim}
        s_cselect_b32 s{rT+1}, s{pCre+1}, s{pCim+1}
        s_mov_b32 s{rT+2}, {640*1280}
        s_lshl_b32 s{sT2}, s{sT1}, 1
        s_add_u32 s{sT2}, s{sT2}, s{sWC}
        s_mul_i32 s{sRpSrc}, s{sT2}, {8*1280}
        s_mul_i32 s{sT2}, s{sT1}, 13108
        s_lshr_b32 s{sT2}, s{sT2}, 16
        s_mul_i32 s{sT2}, s{sT2}, 435
        s_add_u32 s{sT1}, s{sT1}, s{sT2}
        s_lshl_b32 s{sT2}, s{sT0}, 1
        s_add_u32 s{sT2}, s{sT2}, s{sWR}
        s_mul_i32 s{sT2}, s{sT2}, 110
        s_add_u32 s{sT1}, s{sT1}, s{sT2}
        s_mul_i32 s{sT2}, s{sWC}, 25
        s_add_u32 s{sT1}, s{sT1}, s{sT2}
        s_add_u32 s{sT1}, s{sT1}, 60
        s_lshl_b32 s{sT1}, s{sT1}, 10
        s_add_u32 s{sRpD}, s{sT1}, {WS_WP}
        s_add_u32 s{sRpD+1}, s{sRpD}, 5120
        s_add_u32 s{sRpD+2}, s{sRpD}, 10240
        s_add_u32 s{sRpD+3}, s{sRpD}, 15360
        s_add_u32 s{sRpD+4}, s{sRpD}, 20480
        s_mul_i32 s{sT2}, s{sW}, 160
        v_lshlrev_b32 v{t+2}, 7, v{vN}
        v_add_u32 v{t+2}, {L_STG}, v{t+2}
        """)
        for x, (off, sh) in enumerate(((0, 4), (80, 4), (64, 2), (144, 2))):
            k.e(f"""
            s_add_u32 s{sT3}, s{sT2}, {off}
            v_lshl_add_u32 v{t}, v{vQ}, {sh}, s{sT3}
            v_lshrrev_b32 v{t+1}, 7, v{t}
            v_and_b32 v{t}, 127, v{t}
            v_lshl_add_u32 v{t}, v{t+1}, 12, v{t}
            v_add_u32 v{vRA+x}, v{t}, v{t+2}
            """)
    k.e(f"""
    s_mul_i32 s{sT0}, s{sT0}, 640
    s_add_u32 s{sRpSrc}, s{sRpSrc}, s{sT0}
    """)
def repack_dma():
    return [dma(vDR, rT, sRpSrc, g * 128, sLR, L_STG + g * 4096, "rp%d" % g, OPT["nt_rp"]) for g in range(5)]
RP = 136
def RPR(tag, o, n): return V(RP + o, n)
def repack_read(tag):
    if True:
        return [DSF(f"ds_read_b64_tr_b16 {V(RP+4*i+2*h,2)}, v{vRA} offset:{i*4096 + h*2048}") for i in range(5) for h in range(2)]
    return [DSF(f"ds_read_b128 {V(RP+4*x,4)}, v{vRA + x//2} offset:{(x & 1)*2048}") for x in range(4)] + \
           [DSF(f"ds_read_b32 v{RP+16+x}, v{vRA + 2 + x//2} offset:{(x & 1)*2048}") for x in range(4)]
def repack_store(tag):
    return [VM(f"buffer_store_dwordx4 {RPR(tag, 4*i, 4)}, v{vRS}, s[{rWS}:{rWS+3}], s{sRpD+i} offen sc1", ("rps", i), ta=240) for i in range(5)]
def repack_flag():
    t = vT
    pre = lines(f"""
    v_mov_b32 v{t}, s{sNonce}
    v_mov_b32 v{t+1}, s{sNonce}
    s_lshl_b32 s{sRpSrc}, s{sUnit}, 7
    s_lshl_b32 s{sT1}, s{sW}, 4
    s_add_u32 s{sRpSrc}, s{sRpSrc}, s{sT1}
    s_add_u32 s{sRpSrc}, s{sRpSrc}, {WS_RF}
    s_add_u32 s{sRpSrc}, s{sRpSrc}, 16384
    v_lshlrev_b32 v{t+2}, 26, v{vL}
    v_or_b32 v{t+2}, s{sDis}, v{t+2}
    """)
    def f():
        k.wait_vm(("rps", 4))
        k.vmem(f"buffer_store_dwordx2 {V(t,2)}, v{t+2}, s[{rWS}:{rWS+3}], s{sRpSrc} offen sc1", "rf")
    return pre, F(f, 3, ta=20)

def bfr(d, s): return f"v_cvt_pk_bf16_f32 v{d}, v{s}, v{s}\nv_and_b32 v{d}, 0xffff0000, v{d}\n"
def nonce_load():
    return lines(f"v_mov_b32 v{vNc}, 0") + [VM(f"global_load_dword v{vNc}, v{vNc}, s[{pDbg}:{pDbg+1}] sc1", "nc", ta=20)]
def rowstat_job(tag):
    t = vT + 20
    S_, Q, MEAN, VAR, S1, X, Y = t, t+1, t+2, t+3, t+4, t+5, t+6
    G0, G1 = t+8, t+12
    M1, A1, A2, AM = G0, G0+2, G1, G1+2
    def dots():
        k.wait_vm("xr")
        s = f"v_mov_b32 v{X}, 0x3f803f80\nv_mov_b32 v{S_}, 0\nv_mov_b32 v{Q}, 0\n"
        for i in range(10): s += f"v_dot2c_f32_bf16 v{S_}, v{XR+i}, v{X}\nv_dot2c_f32_bf16 v{Q}, v{XR+i}, v{XR+i}\n"
        s += "s_nop 2\n"
        k.e(s)
    fl = [F(dots, 24)]
    for d in ("row_shr:1", "row_shr:2", "row_shr:4", "row_shr:8", "row_bcast:15"):
        rm = "0xa" if "bcast" in d else "0xf"
        fl.append(F(lambda d=d, rm=rm: k.e(f"v_add_f32_dpp v{S_}, v{S_}, v{S_} {d} row_mask:{rm} bank_mask:0xf bound_ctrl:0"), 1, sep=True))
        fl.append(F(lambda d=d, rm=rm: k.e(f"v_add_f32_dpp v{Q}, v{Q}, v{Q} {d} row_mask:{rm} bank_mask:0xf bound_ctrl:0"), 1))
    fl += lines(f"""
    v_mul_f32 v{MEAN}, {hx(1/640)}, v{S_}
    v_mul_f32 v{VAR}, {hx(1/640)}, v{Q}
    v_fma_f32 v{VAR}, -v{MEAN}, v{MEAN}, v{VAR}
    v_max_f32 v{VAR}, 0, v{VAR}
    {bfr(M1, MEAN)}{bfr(X, VAR)}
    v_add_f32 v{X}, {hx(1e-5)}, v{X}
    {bfr(X, X)}
    v_sqrt_f32 v{X}, v{X}
    v_sub_f32 v{Y}, v{MEAN}, v{M1}
    {bfr(S1, X)}
    v_rcp_f32 v{A1}, v{S1}
    s_nop 0
    v_mul_f32 v{Y}, v{Y}, v{A1}
    v_mul_f32 v{X}, v{VAR}, v{A1}
    {bfr(Y, Y)}
    v_mul_f32 v{X}, v{X}, v{A1}
    {bfr(X, X)}
    v_add_f32 v{X}, {hx(1e-5)}, v{X}
    {bfr(X, X)}
    v_sqrt_f32 v{X}, v{X}
    v_fma_f32 v{Y}, v{Y}, v{S1}, v{M1}
    {bfr(X, X)}
    v_mul_f32 v{X}, v{X}, v{S1}
    v_rcp_f32 v{A2}, v{X}
    v_and_b32 v{X}, 31, v{vL}
    v_mul_f32 v{AM}, v{A2}, v{Y}
    v_sub_u32 v{X}, 31, v{X}
    v_and_b32 v{Y}, 32, v{vL}
    v_lshl_add_u32 v{X}, v{X}, 26, v{Y}
    s_lshl_b32 s{sT0}, s{sHw}, 5
    s_add_u32 s{sT0}, s{sT0}, {WS_RS}
    """)
    def nonce():
        k.wait_vm("nc")
        k.e(f"""
        v_readfirstlane_b32 s{sNonce}, v{vNc}
        s_cmp_lg_u32 s{sNonce}, 0
        s_cbranch_scc1 L_ncok_{tag}
        L_ncl_{tag}:
        s_sleep 1
        global_load_dword v{vNc}, v{Y}, s[{pDbg}:{pDbg+1}] sc1
        s_sub_u32 s{sSpin}, s{sSpin}, 1
        s_cbranch_scc1 L_end
        s_waitcnt vmcnt(0)
        v_readfirstlane_b32 s{sNonce}, v{vNc}
        s_cmp_eq_u32 s{sNonce}, 0
        s_cbranch_scc1 L_ncl_{tag}
        L_ncok_{tag}:
        s_nop 0
        """)
    fl += lines(f"v_mov_b32 v{Y}, 0") + [F(nonce, 4)]
    fl += lines(f"""
    v_mov_b32 v{G0+1}, s{sNonce}
    v_mov_b32 v{G0+3}, s{sNonce}
    v_mov_b32 v{G1+1}, s{sNonce}
    v_mov_b32 v{G1+3}, s{sNonce}
    """)
    fl.append(VM(f"buffer_store_dwordx4 {V(G0,4)}, v{X}, s[{rWS}:{rWS+3}], s{sT0} offen sc1", "rs", ta=20))
    fl.append(VM(f"buffer_store_dwordx4 {V(G1,4)}, v{X}, s[{rWS}:{rWS+3}], s{sT0} offen offset:16 sc1", "rs", ta=20))
    return fl
RSV = 124
def rowstat_fetch():
    fl = lines(f"""
    s_lshl_b32 s{sT0}, s{sMT}, 12
    s_add_u32 s{sT0}, s{sT0}, {WS_RS}
    v_lshlrev_b32 v{RSV+4}, 4, v0
    v_add_u32 v{RSV+4}, s{sT0}, v{RSV+4}
    """)
    return fl + [VM(f"buffer_load_dwordx4 {V(RSV,4)}, v{RSV+4}, s[{rWS}:{rWS+3}], 0 offen sc1", "rsv")]

def ta_of(op): return sum(f.ta for f in flat([op]))
def main_loop(typ, jobs, vq, bg):
    q = [(max(0, 2*st - 5), max(2*st - 4 + (x >= 5) - OPT.get('lag', 0), x >= 5), op) for st in range(2, NST) for x, op in enumerate(dma_stage(typ, st))]
    q = sorted(q + vq, key=lambda x: x[1])
    credit = [OPT.get("credit0", 0)]
    def take(bi, n):
        credit[0] = min(credit[0] + n * 17 * OPT["util"], n * 17 + 100) - sum(ta_of(x) for x in jobs.get(("pre", bi), []) + jobs.get(bi, []))
        out = []
        while True:
            c = [x for x in q if x[0] <= bi]
            if not c or ((credit[0] < 33 or len(out) >= OPT.get('cap', 6)) and c[0][1] > bi): break
            q.remove(c[0]); out.append(c[0][2]); credit[0] -= ta_of(c[0][2])
        if OPT.get('show'): print(typ, bi, len(out), len(jq), len(bg), int(credit[0]), dict(issued))
        return flat(out)
    jq = []
    k.wait_vm(("st", 0)); k.e("s_barrier")
    stamp()
    run(frag_reads(typ, 0, 0, 0))
    def block(bi, m, reads, n):
        curblk[0] = bi
        run(jobs.get(("pre", bi), []))
        jq.extend(jobs.get(bi, []))
        jq[:0] = jobs.get(("front", bi), [])
        d = take(bi, n)
        n = len(m)
        if bi == 2*NST - 1: reads, r0 = jobs["last"], 9
        else: r0 = 0
        sched(m, [(d, 0, n - 1, True), (reads, r0, n - OPT.get("rend", 6), True), (jq, 0, n, False), (bg if bi >= OPT.get("bg0", 1) else [], 0, n, False)])
    for s in range(NST):
        k.wait_lg()
        m = mfmas(typ, s, 0, 0)
        block(2*s, m, frag_reads(typ, s, 1, 1), len(m))
        k.wait_lg()
        m = mfmas(typ, s, 1, 1)
        k.e(m[0]); k.e(m[1])
        if s + 1 < NST:
            if OPT.get("fine"): stamp(16 + 3*s)
            assert issued.get(s + 1, 0) == (10 if typ == "mlp" else 9), (typ, s, issued)
            for tg in jobs.get(("wait", s), []): assert tg in k.seen, tg
            k.wait_vm([("st", s + 1)] + jobs.get(("wait", s), []))
            if OPT.get("fine"): stamp(17 + 3*s)
            k.e("s_barrier")
        block(2*s + 1, m[2:], frag_reads(typ, s + 1, 0, 0) if s + 1 < NST else [], len(m))
    assert not jq and len(bg) < 12, (len(jq), len(bg))
    run(bg)
    stamp()
    if OPT["stop"] == "loop":
        k.e("s_branch L_fin"); k.seen.update(["rsv", ("rps", 4), "b1"])
    return [x[2] for x in q]

WSLOT = [("a", 108 + 20*x) for x in range(7)] + [("a", 20*x) for x in range(5)] + [("v", 100 + 20*x) for x in range(3)]
NREG = 15
def wreg(tk): return WSLOT[tk]
def kaddr(dst, base, tk, stride):
    return lines(f"s_cmp_gt_u32 s{sLim}, {tk} | s_cselect_b32 s{dst}, s{base}, s{base+1}\ns_add_u32 s{dst}, s{dst}, {tk*stride}")
def wload(tk):
    kind, base = wreg(tk)
    out = []
    for i in range(5):
        op = []
        if i == 0: op += kaddr(sT2, sWa, tk, 5120)
        if i == 4: op += lines(f"s_add_u32 s{sT2}, s{sT2}, 4096")
        op.append(VM(f"buffer_load_dwordx4 {R(kind, base+4*i, 4)}, v{vL16}, s[{rWS}:{rWS+3}], s{sT2} offen offset:{(i & 3)*1024} sc1", ("w", tk)))
        out.append(op)
    return out
RFV = 24
sWLb, sTx = 34, 35
NK = {"mlp": 12, "ssm": 10}
def p2_addr(typ):
    n_ = NK[typ]; k0 = 0 if typ == "mlp" else 12
    if typ == "mlp":
        k.e(f"""
        v_min_u32 v{vT+2}, 47, v{vL}
        s_mul_i32 s{sT0}, s{sW}, 24
        s_lshr_b32 s{sT1}, s{sDT}, 2
        s_add_u32 s{sT0}, s{sT0}, s{sT1}
        s_lshl_b32 s{sT0}, s{sT0}, 7
        s_add_u32 s{sT0}, s{sT0}, {WS_RF + 16384}
        v_lshrrev_b32 v{vT}, 2, v{vT+2}
        v_and_b32 v{vT+1}, 3, v{vT+2}
        """)
        k.e(f"v_lshlrev_b32 v{vT}, 8, v{vT}\nv_lshl_add_u32 v{vT}, v{vT+1}, 4, v{vT}\nv_add_u32 v{RFV}, s{sT0}, v{vT}")
    k.e(f"""
    s_and_b32 s{sT2}, s{sDT}, 3
    s_add_u32 s{sT2}, s{sT2}, s{sML}
    s_and_b32 s{sT2}, s{sT2}, 3
    s_mul_i32 s{sT2}, s{sT2}, {n_ * OPT['rot2'] if typ == 'mlp' else 0}
    s_lshr_b32 s{sT2}, s{sT2}, 2
    s_sub_u32 s{sLim}, {n_}, s{sT2}
    s_mul_i32 s{sT0}, s{sW}, 22
    s_add_u32 s{sT0}, s{sT0}, s{sT2}
    s_add_u32 s{sT0}, s{sT0}, {k0}
    s_mul_i32 s{sT1}, s{sDT}, 88
    s_add_u32 s{sT1}, s{sT1}, s{sT0}
    s_mul_i32 s{sT1}, s{sT1}, 5120
    {f"s_add_u32 s{sWa}, s{sT1}, {WS_WP}" if typ == "mlp" else ""}
    {f"s_sub_u32 s{sWa+1}, s{sWa}, {n_*5120}" if typ == "mlp" else ""}
    s_lshl_b32 s{sT1}, s{sMT}, 1
    s_add_u32 s{sT1}, s{sT1}, s{sHALF}
    s_mul_i32 s{sT2}, s{sT1}, 88
    s_add_u32 s{sT2}, s{sT2}, s{sT0}
    s_lshl_b32 s{sT2}, s{sT2}, 12
    s_add_u32 s{sHa+2}, s{sT2}, {WS_H}
    s_sub_u32 s{sHa+3}, s{sHa+2}, {n_*4096}
    s_{'add' if typ == 'mlp' else 'sub'}_u32 s{sHa}, s{sHa+2}, {88*4096}
    s_sub_u32 s{sHa+1}, s{sHa}, {n_*4096}
    s_mul_i32 s{sWLb}, s{sW}, {WLW}
    s_add_u32 s{sWLb}, s{sWLb}, {L_WL}
    """)
def rflag_fetch(vd):
    k.vmem(f"buffer_load_dwordx2 {V(vd,2)}, v{RFV}, s[{rWS}:{rWS+3}], 0 offen sc1", "rfv")
def check(tag, vaddr, vd, width=2, second=1):
    k.e(f"""
    L_chk_{tag}:
    v_cmp_ne_u32 vcc, s{sNonce}, v{vd + (1 if width == 4 else 0)}
    v_cmp_ne_u32 s[{sT0}:{sT1}], s{sNonce}, v{vd + (3 if width == 4 else 1)}
    s_or_b64 vcc, vcc, s[{sT0}:{sT1}]
    s_cmp_eq_u64 vcc, 0
    s_cbranch_scc1 L_chkok_{tag}
    s_sub_u32 s{sSpin}, s{sSpin}, 1
    s_cbranch_scc1 L_end
    buffer_load_dwordx{width} {V(vd,width)}, v{vaddr}, s[{rWS}:{rWS+3}], 0 offen sc1
    s_waitcnt vmcnt(0)
    s_branch L_chk_{tag}
    L_chkok_{tag}:
    """)
vCD = 20
sCU = [18, 19, 20, 21, 35]
sCs, sCt = 42, 43
def c_setup():
    t = vT
    srd(rT2, pCim, 640 * 1280)
    if OPT['rpown'] == 'ssm': k.e(f"s_mov_b64 s[{sEx}:{sEx+1}], s[{pCre}:{pCre+1}]")
    else: srd(rT, pCre, 640 * 1280)
    for g in range(5):
        k.e(f"""
        v_add_u32 v{t}, {64*g}, v{vL}
        v_mul_u32_u24 v{t+1}, 3277, v{t}
        v_lshrrev_b32 v{t+1}, 16, v{t+1}
        v_mul_u32_u24 v{t+2}, 20, v{t+1}
        v_sub_u32 v{t+2}, v{t}, v{t+2}
        v_mul_u32_u24 v{t+1}, 1280, v{t+1}
        v_lshl_add_u32 v{vCD+g}, v{t+2}, 4, v{t+1}
        """)
    k.e(f"""
    s_mul_i32 s{sCs}, s{sDT}, {80*1280}
    s_mul_i32 s{sT0}, s{sW}, 320
    s_add_u32 s{sCs}, s{sCs}, s{sT0}
    s_mul_i32 s{sT1}, s{sW}, 5120
    s_add_u32 s{sCU[0]}, s{sT1}, 20480
    s_add_u32 s{sCU[1]}, s{sT1}, 110592
    s_add_u32 s{sCU[2]}, s{sT1}, 57344
    s_add_u32 s{sCU[3]}, s{sT1}, 131072
    s_mov_b32 s{sT0}, 77824
    s_cmp_eq_u32 s{sWR}, 0
    s_cselect_b32 s{sT0}, s{sT0}, 141312
    s_add_u32 s{sCU[4]}, s{sT1}, s{sT0}
    """)
def c_dma(i, rs, tag):
    out = []
    for g in range(5):
        op = lines(f"s_add_u32 s{sCt}, s{sCs}, {i*16*1280}") if g == 0 else []
        out.append(op + lines(f"s_add_u32 m0, s{sCU[i]}, {g*1024}") + [VM(f"buffer_load_dwordx4 v{vCD+g}, s[{rs}:{rs+3}], s{sCt} offen lds", tag, sep=True, ta=80)])
    return out
def c_read(im, B):
    k.e(f"""
    v_mul_u32_u24 v{B[5]}, 320, v{vN}
    v_lshl_add_u32 v{B[2]}, v{vQ}, 4, v{B[5]}
    v_lshrrev_b32 v{B[4]}, 1, v{vQ}
    v_mul_u32_u24 v{B[4]}, 80, v{B[4]}
    v_add_u32 v{B[5]}, v{B[5]}, v{B[4]}
    v_add_u32 v{B[0]}, s{sCU[0]}, v{B[2]}
    v_add_u32 v{B[1]}, s{sCU[1]}, v{B[2]}
    v_add_u32 v{B[2]}, s{sCU[4]}, v{B[2]}
    v_add_u32 v{B[3]}, s{sCU[0]}, v{B[5]}
    v_add_u32 v{B[4]}, s{sCU[1]}, v{B[5]}
    v_add_u32 v{B[5]}, s{sCU[4]}, v{B[5]}
    """)
    where = [(0, 0), (1, 0), (0, 57344 - 20480), (1, 131072 - 110592), (2, 0)]
    for a_ in range(2):
        for wr_ in range(2):
            kind, base = wreg(5*a_ + 2*wr_ + im)
            for i, (b_, o_) in enumerate(where):
                k.ds(f"ds_read_b128 {R(kind, base+4*i, 4)}, v{B[b_]} offset:{o_ + 160*a_ + 80*wr_}", "cr")
    m_ = "0xffff0000" if im else "0x0000ffff"
    k.e(f"s_mov_b32 exec_lo, {m_}\ns_mov_b32 exec_hi, {m_}")
    for a_ in range(2):
        kind, base = wreg(5*a_ + 4)
        for i, (b_, o_) in enumerate(where):
            k.ds(f"ds_read_b128 {R(kind, base+4*i, 4)}, v{B[3+b_]} offset:{o_ + 160*a_ + 64}", "cr")
    k.e("s_mov_b64 exec, -1")

def common_jobs(typ):
    j = {}
    def add(key, items): j[key] = j.get(key, []) + items
    j[0] = nonce_load()
    j[3] = rowstat_job(typ)
    vq = [(0, 1.5, op) for op in xr_loads()]
    if typ == OPT["rpown"]:
        r0, rpst, rpfl = OPT["rp_" + typ]
        assert r0 % 2 == 1
        add(("wait", (r0 - 1) // 2), ["rp4"])
        add(("pre", r0), repack_read(typ))
        for f, bi in zip(repack_store(typ), rpst): add(("pre", bi), [f])
        vq += [OPT["rpd_" + typ] + (op,) for op in repack_dma()]
        a_, b_ = repack_flag()
        d_ = {}
        add(rpfl - 4, a_ + [note(d_, 1)])
        add(("pre", rpfl), [F(lambda: d_[1], 0), b_])
        if typ == "ssm":
            assert OPT["touch"] > r0 and OPT.get("c0", 12) > r0 + 2
            add(("pre", r0), lines(f"s_mov_b32 s{rT}, s{sEx}\ns_mov_b32 s{rT+1}, s{sEx+1}\ns_mov_b32 s{rT+2}, {640*1280}"))
    if typ == "ssm":
        add(OPT["touch"], touch_c())
        vq += [(e_, 99, op) for i, e_ in zip((0, 1, 2, 3, 4), (OPT.get("c0", 12), 15, 17, 17, 17)) for op in c_dma(i, rT, "cre")]
    else:
        bi = OPT["rf_mlp"]
        RD_ = vT + 4
        add(("pre", bi - 1), [F(lambda: rflag_fetch(RD_), 2, ta=50)])
        def chk():
            k.wait_vm("rfv"); check("rf_" + typ, RFV, RD_)
        j["rfchk"] = chk
        if bi < 20:
            add(("pre", bi), [F(chk, 6)])
            vq += [(bi, 99, op) for tk in range(7) for op in wload(tk)]
    stats_jobs(typ, j)
    return j, vq

TK = vT + 8
SA = 76
def stats_jobs(typ, j):
    nr = 6 if typ == "mlp" else 5
    L_SC, SCW = L_SCS[typ]
    k.e(f"""
    s_mul_i32 s{sT0}, s{sW}, {SCW}
    s_add_u32 s{sT0}, s{sT0}, {L_SC}
    v_lshlrev_b32 v{SA+1}, 4, v{vQ}
    v_add_u32 v{SA}, s{sT0}, v{SA+1}
    v_min_u32 v{SA+2}, 1, v{vN}
    v_mul_u32_u24 v{SA+2}, 0x30000, v{SA+2}
    v_add_u32 v{SA}, v{SA}, v{SA+2}
    s_mul_i32 s{sT0}, s{sWR}, {2*SCW}
    s_add_u32 s{sT0}, s{sT0}, {L_SC}
    v_add_u32 v{SA+1}, s{sT0}, v{SA+1}
    s_lshl_b32 s{sT0}, s{sWC}, 10
    v_lshlrev_b32 v{SA+2}, 6, v{vN}
    v_add_u32 v{SA+2}, s{sT0}, v{SA+2}
    v_lshlrev_b32 v{SA+3}, 3, v0
    """)
    j[OPT.get('rsb', 13)] = j.get(OPT.get('rsb', 13), []) + rowstat_fetch()
    def chk():
        k.wait_vm("rsv")
        check("rs_" + typ, RSV + 4, RSV, 4)
        k.ds(f"ds_write2_b32 v{SA+3}, v{RSV}, v{RSV+2} offset0:{L_TOK//4} offset1:{L_TOK//4+1}")
    j[("pre", 16)] = j.get(("pre", 16), []) + [F(chk, 8)]
    j[18] = j.get(18, []) + [DSF(f"ds_read_b128 {V(TK+4*x,4)}, v{SA+2} offset:{L_TOK + x*16}") for x in range(4)]
    j["last"] = [DSF(f"ds_write_b128 v{SA}, {A(aCS+4*i,4)} offset:{i*64}") for i in range(nr)]
def stats(typ):
    nr = 6 if typ == "mlp" else 5
    CS = vT + 24; P2 = 100
    SCW = L_SCS[typ][1]
    k.wait_lg(); k.e("s_barrier")
    for i in range(nr):
        k.ds(f"ds_read_b128 {V(P2+4*i,4)}, v{SA+1} offset:{SCW+i*64}", ("cs", i))
    for i in (0, 1, 2, 4, 5, 3)[:nr + 1]:
        if i < nr: k.ds(f"ds_read_b128 {V(CS+4*i,4)}, v{SA+1} offset:{i*64}", ("cs", i))
    return TK, CS, P2
def stats_sum(typ, CS, P2):
    k.wait_lg()
    for i in range(6 if typ == "mlp" else 5):
        for h in range(2):
            k.e(f"v_pk_add_f32 {V(CS+4*i+2*h,2)}, {V(CS+4*i+2*h,2)}, {V(P2+4*i+2*h,2)}")

class Feeder:
    def __init__(self, jobs, every): self.jobs, self.every, self.n = list(jobs), every, 0
    def tick(self, n=1):
        self.n += n
        while self.n >= self.every and self.jobs:
            self.n -= self.every; run([self.jobs.pop(0)])
    def flush(self):
        while self.jobs: run([self.jobs.pop(0)])

HB = 88 * 4096
def h_base():
    k.e(f"""
    s_mul_i32 s{sH}, s{sMT}, {2*HB}
    s_lshl_b32 s{sT0}, s{sWC}, 11
    s_add_u32 s{sH}, s{sH}, s{sT0}
    s_add_u32 s{sH}, s{sH}, {WS_H}
    s_lshr_b32 s{sT0}, s{sNT}, 1
    s_mul_i32 s{sT0}, s{sT0}, 22
    s_and_b32 s{sT1}, s{sNT}, 1
    """)
HRING = [[("v", 40 + 4*s) for s in range(4)], [("v", 56 + 4*s) for s in range(4)], [("v", 72 + 4*s) for s in range(4)],
         [("a", 100), ("a", 104), ("a", 248), ("a", 252)]]
NR = len(HRING)
SPARE = [168, 172] + [acc(i, j) for i in range(1, 6) for j in (2, 3)]
NE = {"mlp": OPT["ne"], "ssm": 0}
vM26, vRw, vF, vFd, vHs, vNP, XO, LO = 24, 27, 28, 30, 32, 36, 38, 39
RES = 4
def flag_addr():
    k.e(f"""
    s_lshl_b32 s{sT0}, s{sMT}, 4
    s_lshl_b32 s{sT1}, s{sTYP}, 3
    s_add_u32 s{sT0}, s{sT0}, s{sT1}
    s_lshl_b32 s{sT1}, s{sW}, 1
    s_add_u32 s{sT1}, s{sT0}, s{sT1}
    s_lshl_b32 s{sT1}, s{sT1}, 7
    s_lshl_b32 s{sT3}, s{sTYP}, 4
    s_add_u32 s{sT3}, s{sT3}, {WS_HF}
    s_add_u32 s{sT1}, s{sT1}, s{sT3}
    v_bfe_u32 v{vFd}, v{vL}, 2, 1
    v_and_b32 v{vF}, 3, v{vL}
    v_lshlrev_b32 v{vF}, 5, v{vF}
    v_lshl_add_u32 v{vF}, v{vFd}, 7, v{vF}
    v_add_u32 v{vF}, s{sT1}, v{vF}
    v_xor_b32 v{vF+1}, 16, v{vF}
    s_add_u32 s{sT0}, s{sT0}, s{sNT}
    s_lshl_b32 s{sT0}, s{sT0}, 7
    s_lshl_b32 s{sT1}, s{sW}, 5
    s_add_u32 s{sT0}, s{sT0}, s{sT1}
    s_add_u32 s{sLW}, s{sT0}, s{sT3}
    s_xor_b32 s{sLX}, s{sLW}, 16
    v_mov_b32 v{vNP}, s{sNonce}
    v_mov_b32 v{vNP+1}, s{sNonce}
    v_lshlrev_b32 v{vM26}, 26, v{vL}
    """)
    for s in range(4):
        k.e(f"s_xor_b32 s{sT0}, s{sW}, {s}\ns_lshl_b32 s{sT0}, s{sT0}, 10\nv_add_u32 v{vHs+s}, s{sT0}, v{vL16}")
def poll_h(h): return VM(f"buffer_load_dwordx2 {V(vFd,2)}, v{vF+h}, s[{rWS}:{rWS+3}], 0 offen sc1", ("hf", h))
def put_flag(tag, so):
    k.wait_vm(tag)
    k.vmem(f"buffer_store_dwordx2 {V(vNP,2)}, v{vM26}, s[{rWS}:{rWS+3}], s{so} offen sc1", "fl")
def x_loads(X, t):
    k.e(f"""
    s_lshl_b32 s{sT0}, s{sWR}, 6
    s_add_u32 s{sT0}, s{sT0}, s{sWC}
    s_lshl_b32 s{sT1}, s{sHALF}, 1
    s_add_u32 s{sT0}, s{sT0}, s{sT1}
    s_lshl_b32 s{sT1}, s{sMT}, 7
    s_add_u32 s{sT1}, s{sT1}, s{sT0}
    s_mul_i32 s{sX}, s{sT1}, 1280
    s_mul_i32 s{sT1}, s{sDT}, 160
    s_add_u32 s{sX}, s{sX}, s{sT1}
    s_lshl_b32 s{sT0}, s{sT0}, 4
    v_lshrrev_b32 v{t}, 2, v{vL}
    v_and_b32 v{LO}, 3, v{vL}
    v_lshlrev_b32 v{t+1}, 3, v{LO}
    v_mul_u32_u24 v{XO}, 5120, v{t}
    v_add_u32 v{XO}, v{XO}, v{t+1}
    v_lshlrev_b32 v{LO}, 4, v{LO}
    v_mad_u32_u24 v{LO}, v{t}, s{sKs}, v{LO}
    v_lshlrev_b32 v{t}, 6, v{t}
    v_add_u32 v{t}, s{sT0}, v{t}
    """.replace("    v_mad", f"    s_movk_i32 s{sKs}, {RROW}\n    v_mad"))
    for g in range(5): k.vmem(f"buffer_load_dwordx2 {V(X[g],2)}, v{XO}, s[{rX}:{rX+3}], s{sX} offen offset:{32*g}", "ep")
def residual(X, t, U):
    ED, EB, TKv = U, U + 10, U + 20
    k.ds(f"ds_read_b64 {V(TKv,2)}, v{t} offset:{L_TOK}", "tk")
    for reg, o_ in ((ED, 0), (EB, 160)):
        for g in range(5): k.ds(f"ds_read_b64 {V(reg+2*g,2)}, v{t+1} offset:{L_DB + o_ + 32*g}", "tk")
    k.wait_vm("ep"); k.wait_lg()
    for g in range(5):
        xf, df, bf_ = U + 22, U + 26, U + 30
        for src, dst in ((X[g], xf), (ED + 2*g, df), (EB + 2*g, bf_)):
            for h in range(2):
                k.e(f"v_lshlrev_b32 v{dst+2*h}, 16, v{src+h}\nv_and_b32 v{dst+2*h+1}, 0xffff0000, v{src+h}")
        A_ = [RES + 4*g, RES + 4*g + 2]
        def rnd():
            for a in A_: k.e(f"v_cvt_pk_bf16_f32 v{a+1}, v{a}, v{a+1}")
            for a in A_: k.e(f"v_lshlrev_b32 v{a}, 16, v{a+1}\nv_and_b32 v{a+1}, 0xffff0000, v{a+1}")
        for h, a in enumerate(A_): k.e(f"v_pk_add_f32 {V(a,2)}, {V(xf+2*h,2)}, {V(TKv,2)} op_sel:[0,0] op_sel_hi:[1,0] neg_lo:[0,1] neg_hi:[0,1]")
        rnd()
        for h, a in enumerate(A_): k.e(f"v_pk_mul_f32 {V(a,2)}, {V(a,2)}, {V(TKv,2)} op_sel:[0,1] op_sel_hi:[1,1]")
        rnd()
        for h, a in enumerate(A_): k.e(f"v_pk_mul_f32 {V(a,2)}, {V(a,2)}, {V(df+2*h,2)}")
        rnd()
        for h, a in enumerate(A_): k.e(f"v_pk_add_f32 {V(a,2)}, {V(a,2)}, {V(xf+2*h,2)}")
        for h, a in enumerate(A_): k.e(f"v_pk_add_f32 {V(a,2)}, {V(a,2)}, {V(bf_+2*h,2)}")
def residual_fill(t):
    ED = [176, 178, 180, 182, 192]; EB = [194, 196, 198, 208, 210]; TKv = 212
    U = [224, 240]
    out = [DSF(f"ds_read_b64 {V(TKv,2)}, v{t} offset:{L_TOK}", "tk")]
    for reg, o_ in ((ED, 0), (EB, 160)):
        out += [DSF(f"ds_read_b64 {V(reg[g],2)}, v{t+1} offset:{L_DB + o_ + 32*g}", "tk") for g in range(5)]
    run(out)
    out = [F(lambda: k.wait_lg("tk"), 1)]
    def chain(p_):
        x0, x1, t0, t1, d0, d1 = [U[p_ & 1] + x for x in range(6)]
        r0, r1 = RES + 2*p_, RES + 2*p_ + 1
        xi, di, bi = RES + 10 + p_, ED[p_ // 2] + (p_ & 1), EB[p_ // 2] + (p_ & 1)
        rnd = f"v_cvt_pk_bf16_f32 v{t1}, v{t0}, v{t1}\nv_lshlrev_b32 v{t0}, 16, v{t1}\nv_and_b32 v{t1}, 0xffff0000, v{t1}\n"
        return [l.strip() for l in f"""
        v_lshlrev_b32 v{x0}, 16, v{xi}
        v_and_b32 v{x1}, 0xffff0000, v{xi}
        v_sub_f32 v{t0}, v{x0}, v{TKv}
        v_sub_f32 v{t1}, v{x1}, v{TKv}
        {rnd}
        v_mul_f32 v{t0}, v{t0}, v{TKv+1}
        v_mul_f32 v{t1}, v{t1}, v{TKv+1}
        {rnd}
        v_lshlrev_b32 v{d0}, 16, v{di}
        v_and_b32 v{d1}, 0xffff0000, v{di}
        v_mul_f32 v{t0}, v{t0}, v{d0}
        v_mul_f32 v{t1}, v{t1}, v{d1}
        {rnd}
        v_lshlrev_b32 v{d0}, 16, v{bi}
        v_and_b32 v{d1}, 0xffff0000, v{bi}
        v_add_f32 v{t0}, v{x0}, v{t0}
        v_add_f32 v{t1}, v{x1}, v{t1}
        v_add_f32 v{r0}, v{t0}, v{d0}
        v_add_f32 v{r1}, v{t1}, v{d1}
        """.split("\n") if l.strip()]
    txt = []
    for p_ in range(0, 10, 2):
        for a_, b_ in zip(chain(p_), chain(p_ + 1)): txt += [a_, b_]
    return out + lines("\n".join(txt))
def hdest(typ, t):
    e_ = NE[typ]
    return [("v", SPARE[4*t + s]) for s in range(4)] if t < e_ else HRING[(t - e_) % NR]
def hload(typ, t):
    ring = hdest(typ, t); n_ = NK[typ]
    return kaddr(sT3, sHa + 2*(t // n_), t % n_, 4096), [[VM(f"buffer_load_dwordx4 {R(ring[s][0], ring[s][1], 4)}, v{vHs+s}, s[{rWS}:{rWS+3}], s{sT3} offen sc1", ("h", t))] for s in range(4)]
def h_issue(typ, ts):
    out = []
    for t in ts:
        a_, b_ = hload(typ, t); out.append(a_ + b_[0]); out += b_[1:]
    return out

def ones():
    k.e(f"v_mov_b32 v{vT+6}, 0x3f803f80")
    for i in range(4): k.e(f"v_accvgpr_write_b32 a{aONE+i}, v{vT+6}")

def path_mlp():
    typ = "mlp"; t = vT
    k.label("L_mlp")
    issued.clear(); k.seen.clear()
    k.vm = []; k.lg = []
    k.e(f"""
    v_and_b32 v{t+2}, 2, v{t}
    v_xor_b32 v{t+2}, v{t+1}, v{t+2}
    v_mul_u32_u24 v{t+3}, 3072, v{t}
    v_lshl_add_u32 v{vDW}, v{t+2}, 4, v{t+3}
    v_xor_b32 v{vDW+1}, 64, v{vDW}
    s_mul_i32 s{sB0}, s{sW}, {16*3072}
    s_mul_i32 s{sT0}, s{sNT}, 384
    s_add_u32 s{sB0}, s{sB0}, s{sT0}
    s_add_u32 s{sB2}, s{sB0}, {8*3072}
    s_lshl_b32 s{sLW}, s{sW}, 11
    """)
    k.e(f"""
    v_lshrrev_b32 v{t}, 2, v{vN}
    v_lshl_add_u32 v{t+1}, v{vQ}, 3, v{t}
    v_lshlrev_b32 v{t+1}, 7, v{t+1}
    v_and_b32 v{t+2}, 3, v{vN}
    v_lshl_add_u32 v{t+1}, v{t+2}, 3, v{t+1}
    v_lshrrev_b32 v{t}, 1, v{t}
    v_and_b32 v{t+2}, 1, v{vQ}
    v_lshl_add_u32 v{t}, v{t+2}, 1, v{t}
    s_lshl_b32 s{sT0}, s{sKs}, 12
    s_add_u32 s{sT0}, s{sT0}, {L_W}
    v_add_u32 v{t+1}, s{sT0}, v{t+1}
    s_mul_i32 s{sT2}, s{sWR}, 6
    """)
    for i in range(4):
        k.e(f"""
        s_add_u32 s{sT3}, s{sT2}, {i}
        s_lshr_b32 s{sT0}, s{sT3}, 2
        s_lshl_b32 s{sT0}, s{sT0}, 13
        s_and_b32 s{sT3}, s{sT3}, 3
        v_xor_b32 v{t+2}, s{sT3}, v{t}
        v_lshl_add_u32 v{t+2}, v{t+2}, 5, v{t+1}
        v_add_u32 v{vWA+i}, s{sT0}, v{t+2}
        v_xor_b32 v{vWA+4+i}, 4096, v{vWA+i}
        """)
    Kc = 2 * 0.7978845608028654 * 1.4426950408889634
    k.e(f"s_mov_b32 s{sK}, {hx(-Kc*0.044715)}\ns_mov_b32 s{sK+1}, {hx(-Kc)}")
    ones()
    xr_setup()
    rot_setup(typ)
    start_loads(typ)
    if OPT['rpown'] == typ: repack_setup(typ)
    stamp(15)
    run(dma_stage(typ, 1))
    small_loads(typ)
    p2_addr(typ)
    stamp(14)
    jobs, vq = common_jobs(typ)
    jobs[9] = lines(f"s_mul_i32 s{sT0}, s{sWR}, 192\nv_lshlrev_b32 v{t+3}, 3, v{vQ}\nv_add_u32 v{t+3}, s{sT0}, v{t+3}") + \
              [DSF(f"ds_read_b64 {V(vB1+2*i,2)}, v{t+3} offset:{L_B1 + 32*i}") for i in range(6)]
    left = main_loop(typ, jobs, vq, [])
    TK, CS, P2 = stats(typ)
    stamp()
    if OPT["rf_mlp"] >= 20:
        if OPT["rf_mlp"] == 20: jobs["rfchk"]()
        left = [op for tk in range(7) for op in wload(tk)]
    pend = [(6 - (len(left) - 1 - x) // 5, op) for x, op in enumerate(left)] + [(tk, op) for tk in range(7, 12) for op in wload(tk)]
    ne = OPT.get("ne_mlp", 0)
    fd = Feeder([op for _, op in pend[:ne]], 29 * 12 // max(1, ne))
    pend = pend[ne:]
    h_base()
    k.e(f"""
    s_mul_i32 s{sT1}, s{sT1}, 6
    s_add_u32 s{sT0}, s{sT0}, s{sT1}
    s_mul_i32 s{sT1}, s{sWR}, 3
    s_add_u32 s{sT0}, s{sT0}, s{sT1}
    s_lshl_b32 s{sT0}, s{sT0}, 12
    s_add_u32 s{sH}, s{sH}, s{sT0}
    """)
    stats_sum(typ, CS, P2)
    B = 100
    for i in range(6):
        for h in range(2):
            k.e(f"v_lshlrev_b32 v{B+4*i+2*h}, 16, v{vB1+2*i+h}\nv_and_b32 v{B+4*i+2*h+1}, 0xffff0000, v{vB1+2*i+h}")
    TM = 124
    OUT = [88, 92]
    XT = 96
    assert OPT["rf_mlp"] <= 20
    flag_addr()
    x_loads([RES + 10 + 2*g for g in range(5)], XT)
    k.e(f"s_add_u32 s{sB0}, s{sH}, {HB}")
    n_ = 0
    for hf, u, j in [(hf, u, 2*hf + jj) for hf in (1, 0) for u in range(3) for jj in range(2)]:
        if True:
            o = OUT[n_ & 1]; n_ += 1
            if n_ == OPT["fa"]: put_flag(("h", 1), sLW)
            if n_ == OPT["fa"] + 1 and NE[typ]: poll_h(0)()
            if n_ == 11 and NE[typ]:
                fd.flush()
                k.wait_vm(("hf", 0)); check("hm" + typ, vF, vFd)
                fd = Feeder(h_issue(typ, range(NE[typ])), 5)
            k.raw(".p2align 3")
            prs = [(2*u + ii, h) for ii in range(2) for h in range(2)]
            Z = [acc(i, j) + 2*h for i, h in prs]
            T1 = [TM + 2*x for x in range(4)]; T2 = [TM + 8 + 2*x for x in range(4)]
            for x, (i, h) in enumerate(prs):
                k.e(f"v_pk_fma_f32 {V(T1[x],2)}, {V(CS+4*i+2*h,2)}, {V(TK+4*j+2,2)}, {V(B+4*i+2*h,2)} op_sel:[0,1,0] op_sel_hi:[1,1,1] neg_lo:[0,1,0] neg_hi:[0,1,0]")
            for x in range(4):
                k.e(f"v_pk_fma_f32 {V(Z[x],2)}, {V(Z[x],2)}, {V(TK+4*j+2,2)}, {V(T1[x],2)} op_sel:[0,0,0] op_sel_hi:[1,0,1]")
            fd.tick(12)
            for x in range(4): k.e(f"v_pk_mul_f32 {V(T1[x],2)}, {V(Z[x],2)}, {V(Z[x],2)}")
            for x in range(4): k.e(f"v_pk_fma_f32 {V(T1[x],2)}, {V(T1[x],2)}, s[{sK}:{sK+1}], s[{sK}:{sK+1}] op_sel:[0,0,1] op_sel_hi:[1,0,1]")
            for x in range(4): k.e(f"v_pk_mul_f32 {V(T1[x],2)}, {V(T1[x],2)}, {V(Z[x],2)}")
            for x in range(4): k.e(f"v_exp_f32 v{T2[x]}, v{T1[x]}\nv_exp_f32 v{T2[x]+1}, v{T1[x]+1}")
            fd.tick(12)
            for x in range(4): k.e(f"v_pk_add_f32 {V(T2[x],2)}, {V(T2[x],2)}, 1.0 op_sel_hi:[1,0]")
            for x in range(4): k.e(f"v_rcp_f32 v{T2[x]}, v{T2[x]}\nv_rcp_f32 v{T2[x]+1}, v{T2[x]+1}")
            if n_ < 12: fd.tick(12)
            for x in range(4): k.e(f"v_pk_mul_f32 {V(Z[x],2)}, {V(Z[x],2)}, {V(T2[x],2)}")
            for x in range(4): k.e(f"v_cvt_pk_bf16_f32 v{o+x}, v{Z[x]}, v{Z[x]+1}")
            if n_ == 12: fd.flush()
            so = sB0 if hf else sH
            k.vmem(f"buffer_store_dwordx4 {V(o,4)}, v{vL16}, s[{rWS}:{rWS+3}], s{so} offen offset:{(j & 1)*1024} sc1", ("h", hf))
            if j & 1 and u < 2: k.e(f"s_add_u32 s{so}, s{so}, 4096")
    stamp()
    res = residual_fill(XT)
    if not NE[typ]:
        run([op for _, op in pend[:OPT["post0"]]]); pend = pend[OPT["post0"]:]
        put_flag(("h", 0), sLX)
        poll_h(0)()
        run([op for _, op in pend[:OPT["post1"]]]); pend = pend[OPT["post1"]:]
        stamp(7)
        k.wait_vm(("hf", 0)); check("hm" + typ, vF, vFd)
        stamp(8)
        run(h_issue(typ, range(NR)))
        phase2(typ, pend, [], res, None, -1)
        return
    run(h_issue(typ, range(NE[typ], NE[typ] + OPT["hpre"])))
    stamp(8)
    phase2(typ, pend, h_issue(typ, range(NE[typ] + OPT["hpre"], NE[typ] + NR)), res, ("h", 0), 3)

def cmul_acc(d, a, b, c):
    k.e(f"v_pk_fma_f32 {V(d,2)}, {V(a,2)}, {V(b,2)}, {V(c,2)} op_sel:[0,0,0] op_sel_hi:[1,0,1]")
    k.e(f"v_pk_fma_f32 {V(d,2)}, {V(a,2)}, {V(b,2)}, {V(d,2)} op_sel:[1,1,0] op_sel_hi:[0,1,1] neg_lo:[0,1,0]")

PR = 100
def masked(m, ins):
    def f():
        k.e(f"s_mov_b32 exec_lo, {m}\ns_mov_b32 exec_hi, {m}"); k.ds(ins); k.e("s_mov_b64 exec, -1")
    return F(f, 4, ds=True)
def power(KK, al, be, t):
    x, y, c_, s_ = t+10, t+11, t+12, t+13
    return lines(f"""
    v_mul_f32 v{y}, v{KK}, v{be}
    v_mul_f32 v{x}, v{KK}, v{al}
    v_fract_f32 v{y}, v{y}
    v_cos_f32 v{c_}, v{y}
    v_sin_f32 v{s_}, v{y}
    v_exp_f32 v{x}, v{x}
    s_nop 0
    v_mul_f32 v{t+14}, v{x}, v{c_}
    v_mul_f32 v{t+15}, v{x}, v{s_}
    """)
def table_a():
    t = 80; CH_ = vB1 + 10
    lr, li, dt, al, be, KK, AD = PR, PR+1, PR+2, t+8, t+9, t, t+1
    x, y, c_, s_ = t+10, t+11, t+12, t+13
    LOG2E = 1.4426950408889634
    fl = lines(f"""
    v_lshlrev_b32 v{dt}, 16, v{dt}
    v_lshlrev_b32 v{lr}, 16, v{lr}
    v_mul_f32 v{dt}, {hx(LOG2E)}, v{dt}
    v_exp_f32 v{dt}, v{dt}
    v_lshlrev_b32 v{li}, 16, v{li}
    {bfr(dt, dt)}
    v_mul_f32 v{al}, v{dt}, v{lr}
    v_mul_f32 v{be}, v{dt}, v{li}
    v_mul_f32 v{al}, {hx(LOG2E)}, v{al}
    v_mul_f32 v{be}, 0.15915494, v{be}
    v_lshlrev_b32 v{KK}, 6, v{CH_+1}
    v_max_u32 v{KK}, 1, v{KK}
    v_cvt_f32_u32 v{KK}, v{KK}
    v_lshlrev_b32 v{AD}, 3, v{CH_}
    """)
    fl.append(DSF(f"ds_write_b64 v{AD}, {V(al,2)} offset:{L_EX}"))
    fl.append(note(mk, 'ab'))
    fl += power(KK, al, be, t)
    fl += lines(f"""
    v_lshlrev_b32 v{AD}, 3, v{CH_+1}
    v_min_u32 v{x}, 1, v{CH_+1}
    v_mad_u32_u24 v{AD}, v{x}, 40, v{AD}
    v_lshl_add_u32 v{AD}, v{CH_}, 6, v{AD}
    """)
    fl.append(DSF(f"ds_write_b64 v{AD}, {V(t+14,2)} offset:{L_CH}"))
    fl += lines(f"""
    v_mul_f32 v{y}, v{lr}, v{lr}
    v_add_f32 v{x}, -1.0, v{t+14}
    v_fma_f32 v{y}, v{li}, v{li}, v{y}
    v_rcp_f32 v{y}, v{y}
    v_mul_f32 v{c_}, v{x}, v{lr}
    v_fma_f32 v{c_}, v{t+15}, v{li}, v{c_}
    v_mul_f32 v{s_}, v{t+15}, v{lr}
    v_fma_f32 v{s_}, -v{x}, v{li}, v{s_}
    v_add_f32 v{y}, v{y}, v{y}
    v_mul_f32 v{t+16}, v{c_}, v{y}
    v_mul_f32 v{t+17}, v{s_}, v{y}
    """)
    fl += lines(f"v_min_u32 v{x}, 1, v{CH_+1}\nv_mul_u32_u24 v{x}, 0x30000, v{x}\nv_add_u32 v{AD}, v{AD}, v{x}")
    fl.append(DSF(f"ds_write_b64 v{AD}, {V(t+16,2)} offset:{L_CH + 8}"))
    return fl
def table_rd():
    t = 80
    return [DSF(f"ds_read_b64 {V(PR+4+2*u,2)}, v{t+3} offset:{L_EX + u*128}") for u in range(5)]
def table_b():
    t = 80
    K1, APW, R1 = t+7, t+4, t+5
    k.e(f"""
    v_lshrrev_b32 v{t+2}, 4, v0
    v_lshlrev_b32 v{t+3}, 3, v{t+2}
    v_lshlrev_b32 v{K1}, 2, v{vN}
    v_cvt_f32_u32 v{K1}, v{K1}
    v_lshlrev_b32 v{APW}, 7, v{t+2}
    v_lshl_add_u32 v{APW}, v{vN}, 3, v{APW}
    v_ffbl_b32 v{R1}, v{vN}
    v_lshlrev_b32 v{R1}, 3, v{R1}
    v_lshl_add_u32 v{R1}, v{t+2}, 6, v{R1}
    v_bcnt_u32_b32 v{t+6}, v{vN}, -1
    v_min_u32 v{t+6}, 1, v{t+6}
    v_mul_u32_u24 v{t+6}, 0x30000, v{t+6}
    v_add_u32 v{R1}, v{R1}, v{t+6}
    """)
    fl = []
    for u in range(5):
        fl += power(K1, PR+4+2*u, PR+5+2*u, t)
        fl.append(DSF(f"ds_write_b64 v{APW}, {V(t+14,2)} offset:{L_PW + u*2048}"))
        fl.append(DSF(f"ds_write_b64 v{R1}, {V(t+14,2)} offset:{L_CH + 16 + u*1024}"))
    return fl

def path_ssm():
    typ = "ssm"; t = vT
    k.e(f"""
    v_and_b32 v{t+2}, 6, v{t}
    v_or_b32 v{t+3}, s{sWC}, v{t+2}
    v_xor_b32 v{t+1}, v{t+1}, v{t+3}
    v_lshlrev_b32 v{t+1}, 4, v{t+1}
    v_and_b32 v{t+3}, 1, v{t}
    v_lshl_add_u32 v{t+2}, v{t+2}, 2, v{t+3}
    v_mul_u32_u24 v{t+2}, 1280, v{t+2}
    v_add_u32 v{vDW}, v{t+2}, v{t+1}
    v_add_u32 v{t+2}, 32, v{t}
    v_mul_u32_u24 v{t+2}, 1280, v{t+2}
    v_add_u32 v{vDW+1}, v{t+2}, v{t+1}
    s_mul_i32 s{sT0}, s{sNT}, 80
    s_mul_i32 s{sT1}, s{sWR}, 40
    s_add_u32 s{sT0}, s{sT0}, s{sT1}
    s_mul_i32 s{sB0}, s{sT0}, 1280
    s_add_u32 s{sB2}, s{sB0}, 5120
    s_mul_i32 s{sLW}, s{sWR}, 10240
    s_lshl_b32 s{sT0}, s{sWC}, 10
    s_add_u32 s{sLW}, s{sLW}, s{sT0}
    """)
    k.e(f"""
    v_and_b32 v{t+1}, 1, v{vN}
    v_lshrrev_b32 v{t+2}, 2, v{vN}
    v_lshl_add_u32 v{t+2}, v{t+2}, 1, v{t+1}
    v_xor_b32 v{t}, v{t+4}, v{t+2}
    v_lshlrev_b32 v{t}, 4, v{t}
    v_lshl_add_u32 v{t}, v{t+1}, 10, v{t}
    v_lshrrev_b32 v{t+2}, 1, v{vN}
    v_lshl_add_u32 v{t}, v{t+2}, 7, v{t}
    s_mul_i32 s{sT0}, s{sWR}, 10240
    s_add_u32 s{sT0}, s{sT0}, {L_W}
    v_add_u32 v{vWA}, s{sT0}, v{t}
    v_xor_b32 v{vWA+1}, 64, v{vWA}
    """)
    ones()
    xr_setup()
    rot_setup(typ)
    start_loads(typ)
    k.e(f"""
    v_mul_u32_u24 v{vB1+11}, 820, v0
    v_lshrrev_b32 v{vB1+11}, 16, v{vB1+11}
    v_min_u32 v{vB1+11}, 2, v{vB1+11}
    v_mul_u32_u24 v{t+1}, 80, v{vB1+11}
    v_sub_u32 v{vB1+10}, v0, v{t+1}
    v_min_u32 v{vB1+10}, 79, v{vB1+10}
    s_mul_i32 s{sT0}, s{sNT}, 160
    v_lshlrev_b32 v{t+1}, 1, v{vB1+10}
    s_mov_b32 s{rT+2}, 1280
    s_mov_b32 s{rT+3}, 0x20000
    """)
    for pi, ptr in enumerate((pLre, pLim, pLdt)):
        k.e(f"s_mov_b32 s{rT}, s{ptr}\ns_mov_b32 s{rT+1}, s{ptr+1}")
        k.vmem(f"buffer_load_ushort v{PR+pi}, v{t+1}, s[{rT}:{rT+3}], s{sT0} offen", "par")
    if OPT['rpown'] == typ: repack_setup(typ)
    stamp(15)
    run(dma_stage(typ, 1))
    small_loads(typ)
    c_setup()
    p2_addr(typ)
    stamp(14)
    jobs, vq = common_jobs(typ)
    jobs[("wait", 0)] = ["par"]
    tj = table_a() + [gate(lambda: curblk[0] % 2 == 1 and curblk[0] > mk['ab'])] + table_rd() + [note(mk, 'rd'), gate(lambda: curblk[0] > mk['rd'])] + table_b()
    vC0, vC1, vP0, vP1, vE0, vE1, vGc, vGr, vPub = vB1, vB1+1, vB1+2, vB1+3, vB1+4, vB1+5, vB1+6, vB1+7, vB1+8
    CH_, WH_ = vB1 + 10, vB1 + 11
    vG = 114
    sVal = [28, 30, 36, 38, 40]
    u_ = 96
    ad = lines(f"""
    s_mul_i32 s{sT0}, s{sWR}, 40
    v_lshlrev_b32 v{u_}, 3, v{vQ}
    v_add_u32 v{u_}, s{sT0}, v{u_}
    v_lshlrev_b32 v{u_+1}, 1, v{vQ}
    v_add_u32 v{u_+1}, s{sT0}, v{u_+1}
    v_add_u32 v{u_+1}, 32, v{u_+1}
    v_lshlrev_b32 v{vC0}, 6, v{u_}
    v_lshlrev_b32 v{vC1}, 6, v{u_+1}
    v_lshlrev_b32 v{u_+2}, 3, v{vN}
    v_lshl_add_u32 v{vP0}, v{u_}, 7, v{u_+2}
    v_lshl_add_u32 v{vP1}, v{u_+1}, 7, v{u_+2}
    s_mul_i32 s{sT0}, s{sWC}, 640
    v_lshlrev_b32 v{vE0}, 3, v{u_}
    v_lshlrev_b32 v{vE1}, 3, v{u_+1}
    v_add_u32 v{vE0}, s{sT0}, v{vE0}
    v_add_u32 v{vE1}, s{sT0}, v{vE1}
    v_sub_u32 v{u_+2}, 15, v{vN}
    v_min_u32 v{u_+2}, 1, v{u_+2}
    v_mul_u32_u24 v{u_+2}, 0x30000, v{u_+2}
    v_add_u32 v{vB1+9}, v{u_+2}, v{vE0}
    v_add_u32 v119, v{u_+2}, v{vE1}
    v_lshlrev_b32 v{vGc}, 3, v{CH_}
    v_lshlrev_b32 v{vGr}, 6, v{CH_}
    v_lshlrev_b32 v{u_}, 4, v{CH_}
    v_lshl_add_u32 v{vPub}, v{WH_}, 26, v{u_}
    v_mul_u32_u24 v{u_+2}, 5, v{WH_}
    v_sub_u32 v{u_+2}, s{sMT}, v{u_+2}
    """)
    for i in range(5):
        ad += lines(f"""
        v_add_u32 v{u_+2}, -1, v{u_+2}
        v_mul_i32_i24 v{vG+i}, 1280, v{u_+2}
        v_cmp_le_i32 s[{sVal[i]}:{sVal[i]+1}], 0, v{u_+2}
        v_add_u32 v{vG+i}, v{vG+i}, v{u_}
        v_min_u32 v{vG+i}, {OOB}, v{vG+i}
        """)
    for f in ad: f()
    stamp(61)
    tj = tj + lines(f"""
    s_mul_i32 s{sHw}, s{sNT}, {16*1280}
    s_add_u32 s{sHw}, s{sHw}, {WS_E}
    s_mul_i32 s{sH}, s{sMT}, 1280
    s_add_u32 s{sH}, s{sH}, s{sHw}
    """)
    if OPT.get('lv', 9) < 2: tj = []
    left = main_loop(typ, jobs, vq, tj)
    vG2 = 8
    for i in range(6): k.e(f"v_mov_b32 v{vG2+i}, v{vG+i}")
    TK, CS, P2 = stats(typ)
    stamp()
    fd = Feeder(left, 200 // max(1, len(left)))
    wd = [op for i in range(5) for op in c_dma(i, rT2, "cim")]; e1 = 0; ew = 25
    slots = [(i, h) for i in range(5) for h in range(2)]
    def rec(i, h): return (vC0, L_CH + (2*i + h)*64) if i < 4 else (vC1, L_CH + h*64)
    LC = 100
    stats_sum(typ, CS, P2)
    for x, (i, h) in enumerate(slots):
        a_, o_ = rec(i, h); k.ds(f"ds_read_b128 {V(LC+4*x,4)}, v{a_} offset:{o_}", ("lc", x))
    k.raw(".p2align 3")
    for x, (i, h) in enumerate(slots):
        fd.tick(8)
        for j in range(4):
            z = acc(i, j) + 2*h
            k.e(f"v_pk_fma_f32 {V(z,2)}, {V(CS+4*i+2*h,2)}, {V(TK+4*j,2)}, {V(z,2)} op_sel:[0,0,0] op_sel_hi:[1,0,1] neg_lo:[0,1,0] neg_hi:[0,1,0]")
        for j in range(4):
            z = acc(i, j) + 2*h
            k.e(f"v_pk_mul_f32 {V(z,2)}, {V(z,2)}, {V(TK+4*j,2)} op_sel:[0,1] op_sel_hi:[1,1]")
    EE = 140; TMP = 88
    MU = [t, t + 20]
    def load_mu(st):
        for x, (i, h) in enumerate(slots):
            a_, o_ = rec(i, h); k.ds(f"ds_read_b64 {V(MU[st & 1]+2*x,2)}, v{a_} offset:{o_ + 16 + 8*st}", ("mu", st))
    k.wait_lg()
    load_mu(0); load_mu(1)
    def ereg(x): return EE + 2*x
    def treg(x): return (240 + 2*x) if x < 8 else (TMP + 2*(x - 8))
    k.raw(".p2align 3")
    for x, (i, h) in enumerate(slots): cmul_acc(ereg(x), acc(i,0)+2*h, LC+4*x, acc(i,1)+2*h)
    fd.tick(20)
    for x, (i, h) in enumerate(slots): cmul_acc(treg(x), ereg(x), LC+4*x, acc(i,2)+2*h)
    fd.tick(20)
    for x, (i, h) in enumerate(slots): cmul_acc(ereg(x), treg(x), LC+4*x, acc(i,3)+2*h)
    PWv = t
    for st, sh in enumerate((1, 2, 4, 8)):
        fd.tick(20)
        k.raw(".p2align 3")
        for x in range(10):
            k.e(f"v_mov_b32_dpp v{treg(x)}, v{ereg(x)} row_shr:{sh} row_mask:0xf bank_mask:0xf bound_ctrl:0")
            k.e(f"v_mov_b32_dpp v{treg(x)+1}, v{ereg(x)+1} row_shr:{sh} row_mask:0xf bank_mask:0xf bound_ctrl:0")
        fd.tick(20)
        k.wait_lg(("mu", st))
        k.raw(".p2align 3")
        for x in range(10): cmul_acc(ereg(x), treg(x), MU[st & 1]+2*x, ereg(x))
        if st < 2: load_mu(st + 2)
        if st == 2:
            for x, (i, h) in enumerate(slots):
                k.ds(f"ds_read_b64 {V(PWv+2*x,2)}, v{vP0 if i < 4 else vP1} offset:{L_PW + ((2*i+h)*128 if i < 4 else h*128)}", "pw")
    for i in range(5):
        k.ds(f"ds_write_b128 v{vB1+9 if i < 4 else 13}, {V(EE+4*i,4)} offset:{L_EX + (16*i if i < 4 else 0)}")
    ch = t + 20
    E0, E1, LL, ET, GA = ch, ch+2, ch+4, ch+8, 14
    GA = [ch+8, ch+12, ch+16, ch+20, ch+24]
    k.ds(f"ds_read_b128 {V(LL,4)}, v{vGr} offset:{L_CH+48}", "e")
    k.e(f"v_mov_b32 v{ET+1}, s{sNonce}\nv_mov_b32 v{ET+3}, s{sNonce}")
    fd.flush()
    k.wait_lg()
    k.e("s_barrier")
    k.ds(f"ds_read_b64 {V(E0,2)}, v{vGc} offset:{L_EX}", "e")
    k.ds(f"ds_read_b64 {V(E1,2)}, v{vGc} offset:{L_EX+640}", "e")
    k.wait_lg()
    cmul_acc(E1, E0, LL, E1)
    k.e(f"v_mov_b32 v{ET}, v{E1}\nv_mov_b32 v{ET+2}, v{E1+1}")
    k.vmem(f"buffer_store_dwordx4 {V(ET,4)}, v{vPub}, s[{rWS}:{rWS+3}], s{sH} offen sc1", "e")
    stamp()
    def gather(track):
        for i in range(5):
            tx = f"buffer_load_dwordx4 {V(GA[i],4)}, v{vG2+i}, s[{rWS}:{rWS+3}], s{sHw} offen sc1"
            k.vmem(tx, "ga") if track else k.e(tx)
    k.e("s_nop 1")
    k.wait_vm("cre")
    if OPT["gpos"] == 0: gather(True)
    c_read(0, [4, 5, 6, 7, 92, 93])
    fd = Feeder(wd[e1:e1 + ew], 1)
    per = ew / (13.0 - OPT['wskip2'])
    done = [0.0]
    cnt = [0]
    def tk_():
        cnt[0] += 1
        if cnt[0] == OPT["gpos"]: gather(True)
        if cnt[0] <= OPT["wskip2"]: return
        if cnt[0] == OPT["wskip2"] + 1: k.wait_lg()
        done[0] += per; n_ = int(done[0]); done[0] -= n_; fd.tick(n_); k.raw(".p2align 3")
    WT, W2 = 14, 16
    for x in range(10):
        k.e(f"v_mov_b32_dpp v{treg(x)}, v{ereg(x)} row_shr:1 row_mask:0xf bank_mask:0xf bound_ctrl:0")
        k.e(f"v_mov_b32_dpp v{treg(x)+1}, v{ereg(x)+1} row_shr:1 row_mask:0xf bank_mask:0xf bound_ctrl:0")
    def cmul(d, a, b, tmp):
        k.e(f"v_pk_mul_f32 {V(tmp,2)}, {V(a,2)}, {V(b,2)} op_sel:[0,0] op_sel_hi:[1,0]")
        k.e(f"v_pk_fma_f32 {V(d,2)}, {V(a,2)}, {V(b,2)}, {V(tmp,2)} op_sel:[1,1,0] op_sel_hi:[0,1,1] neg_lo:[0,1,0]")
    tk_()
    for x in range(10): cmul(treg(x), treg(x), LC+4*x+2, ereg(x))
    tk_()
    for x in range(10): cmul(PWv+2*x, PWv+2*x, LC+4*x+2, ereg(x))
    for x, (i, h) in enumerate(slots):
        tk_()
        for j in range(4): cmul(acc(i,j)+2*h, acc(i,j)+2*h, LC+4*x+2, EE+2*j)
    tk_()
    cmul(WT, LL+2, LL+2, W2); cmul(WT, WT, WT, W2); cmul(WT, WT, LL+2, W2); cmul(W2+2, WT, WT, W2)
    k.e(f"""
    v_cmp_eq_u32 vcc, 2, v{WH_}
    v_mov_b32 v{W2}, 1.0
    v_mov_b32 v{W2+1}, 0
    v_cndmask_b32 v{WT}, v{WT}, v{W2+2}, vcc
    v_cndmask_b32 v{WT+1}, v{WT+1}, v{W2+3}, vcc
    v_cmp_eq_u32 vcc, 0, v{WH_}
    v_mul_u32_u24 v{W2+2}, 640, v{WH_}
    v_add_u32 v{vGc}, v{vGc}, v{W2+2}
    v_cndmask_b32 v{WT}, v{WT}, v{W2}, vcc
    v_cndmask_b32 v{WT+1}, v{WT+1}, v{W2+1}, vcc
    v_cndmask_b32 v{E0}, v{W2+1}, v{E0}, vcc
    v_cndmask_b32 v{E0+1}, v{W2+1}, v{E0+1}, vcc
    s_mul_i32 s{sT0}, s{sWC}, 1280
    v_add_u32 v{vE0}, s{sT0}, v{vE0}
    v_add_u32 v{vE1}, s{sT0}, v{vE1}
    """)
    fd.flush()
    h_base()
    k.e(f"""
    s_mul_i32 s{sT1}, s{sT1}, 5
    s_add_u32 s{sT0}, s{sT0}, s{sT1}
    s_add_u32 s{sT0}, s{sT0}, 12
    s_lshl_b32 s{sT0}, s{sT0}, 12
    s_add_u32 s{sH}, s{sH}, s{sT0}
    s_add_u32 s{sB2}, s{sH}, {4*4096}
    s_lshl_b32 s{sT0}, s{sWR}, 9
    s_add_u32 s{sB2}, s{sB2}, s{sT0}
    v_lshrrev_b32 v27, 1, v{vQ}
    v_lshlrev_b32 v27, 10, v27
    v_and_b32 v98, 31, v{vL}
    v_lshl_add_u32 v27, v98, 4, v27
    s_lshl_b32 s{sT0}, s{sWR}, 13
    s_add_u32 s{sH}, s{sH}, s{sT0}
    s_add_u32 s{sB0}, s{sH}, 4096
    """)
    stamp(60)
    k.wait_vm("ga")
    k.label("L_carry_chk")
    k.e(f"s_mov_b64 s[{sEx}:{sEx+1}], 0")
    for i in range(5):
        k.e(f"""
        v_cmp_ne_u32 vcc, s{sNonce}, v{GA[i]+1}
        v_cmp_ne_u32 s[{sT0}:{sT1}], s{sNonce}, v{GA[i]+3}
        s_or_b64 vcc, vcc, s[{sT0}:{sT1}]
        s_and_b64 vcc, vcc, s[{sVal[i]}:{sVal[i]+1}]
        s_or_b64 s[{sEx}:{sEx+1}], s[{sEx}:{sEx+1}], vcc
        """)
    k.e(f"""
    s_cmp_eq_u64 s[{sEx}:{sEx+1}], 0
    s_cbranch_scc1 L_carry_done
    s_sub_u32 s{sSpin}, s{sSpin}, 1
    s_cbranch_scc1 L_end
    """)
    gather(False)
    k.e("s_waitcnt vmcnt(0)\ns_branch L_carry_chk")
    k.label("L_carry_done")
    stamp()
    for i in range(5): k.e(f"v_mov_b32 v{GA[i]+1}, v{GA[i]+2}")
    for i in (3, 2, 1, 0): cmul_acc(GA[i], GA[i+1], LL+2, GA[i])
    cmul(GA[0], GA[0], WT, W2)
    cmul_acc(E0, GA[0], LL, E0)
    k.ds(f"ds_write_b64 v{vGc}, {V(GA[0],2)} offset:{L_PW}")
    k.ds(f"ds_write_b64 v{vGc}, {V(E0,2)} offset:{L_PW + 1920}")
    k.wait_lg()
    k.e("s_barrier")
    XS_ = [80, 82, 84, 86, 92]; XT = 94
    x_loads(XS_, XT)
    PB = [EE, ch, 4]
    for i in range(5):
        for g in range(3):
            k.ds(f"ds_read_b128 {V(PB[g]+4*i,4)}, v{vE0 if i < 4 else vE1} offset:{L_PW + 640*g + (16*i if i < 4 else 0)}", ("pb", i))
    k.raw(".p2align 3")
    for x in range(10):
        if x % 2 == 0: k.wait_lg(("pb", x // 2)); k.raw(".p2align 3")
        k.e(f"v_pk_add_f32 {V(ereg(x),2)}, {V(ereg(x),2)}, {V(PB[1]+2*x,2)}")
        k.e(f"v_pk_add_f32 {V(ereg(x),2)}, {V(ereg(x),2)}, {V(PB[2]+2*x,2)}")
        cmul_acc(treg(x), ereg(x), PWv+2*x, treg(x))
    held = []
    for hf in range(2):
        OA = [(60, 64), (68, 72)] if hf == 0 else [(40, 44), (48, 52)]
        OE = 76 if hf == 0 else 56
        for jj in range(2):
            j = 2*hf + jj
            k.raw(".p2align 3")
            for x, (i, h) in enumerate(slots):
                prev = treg(x) if j == 0 else acc(i, j-1) + 2*h
                cmul_acc(acc(i,j)+2*h, prev, LC+4*x, acc(i,j)+2*h)
            oa, ob = OA[jj]
            for i in range(4): k.e(f"v_cvt_pk_bf16_f32 v{oa+i}, v{acc(i,j)}, v{acc(i,j)+2}")
            for i in range(4): k.e(f"v_cvt_pk_bf16_f32 v{ob+i}, -v{acc(i,j)+1}, -v{acc(i,j)+3}")
            k.e(f"v_cvt_pk_bf16_f32 v{OE+2*jj}, v{acc(4,j)}, v{acc(4,j)+2}")
            k.e(f"v_cvt_pk_bf16_f32 v{OE+2*jj+1}, -v{acc(4,j)+1}, -v{acc(4,j)+3}")
            k.vmem(f"buffer_store_dwordx4 {V(oa,4)}, v{vL16}, s[{rWS}:{rWS+3}], s{sH} offen offset:{jj*1024} sc1", ("h", hf))
            k.vmem(f"buffer_store_dwordx4 {V(ob,4)}, v{vL16}, s[{rWS}:{rWS+3}], s{sB0} offen offset:{jj*1024} sc1", ("h", hf))
        k.e(f"""
        s_nop 1
        v_permlane32_swap_b32 v{OE}, v{OE+2}
        v_permlane32_swap_b32 v{OE+1}, v{OE+3}
        s_nop 1
        v_permlane16_swap_b32 v{OE}, v{OE+1}
        v_permlane16_swap_b32 v{OE+2}, v{OE+3}
        """)
        k.vmem(f"buffer_store_dwordx4 {V(OE,4)}, v27, s[{rWS}:{rWS+3}], s{sB2} offen sc1", ("h", hf))
        if hf == 0: k.e(f"s_add_u32 s{sH}, s{sH}, {HB}\ns_add_u32 s{sB0}, s{sB0}, {HB}\ns_add_u32 s{sB2}, s{sB2}, {HB}")
    stamp()
    flag_addr()
    k.wait_vm("cim")
    c_read(1, [150, 151, 152, 153, 154, 155])
    k.seen.update(("w", x) for x in range(10))
    put_flag(("h", 0), sLW)
    if OPT["resfirst"]: residual(XS_, XT, 100)
    put_flag(("h", 1), sLX)
    poll_h(0)()
    if not OPT["resfirst"]: residual(XS_, XT, 100)
    k.e("s_barrier")
    stamp(7)
    k.wait_vm(("hf", 0)); check("hm" + typ, vF, vFd)
    stamp(8)
    run(h_issue(typ, range(NR)))
    phase2(typ, [], [], [], None, -1)

def poll(tag, vaddr, vd):
    k.e(f"""
    L_poll_{tag}:
    buffer_load_dwordx2 {V(vd,2)}, v{vaddr}, s[{rWS}:{rWS+3}], 0 offen sc1
    s_waitcnt vmcnt(0)
    v_cmp_ne_u32 vcc, s{sNonce}, v{vd}
    v_cmp_ne_u32 s[{sT0}:{sT1}], s{sNonce}, v{vd+1}
    s_or_b64 vcc, vcc, s[{sT0}:{sT1}]
    s_cmp_eq_u64 vcc, 0
    s_cbranch_scc1 L_pollok_{tag}
    s_sub_u32 s{sSpin}, s{sSpin}, 1
    s_cbranch_scc1 L_end
    s_sleep 1
    s_branch L_poll_{tag}
    L_pollok_{tag}:
    """)
    k.vm = []

def acc2(p_, i, s): return 96 + 80*p_ + (i*4 + s)*4
def phase2(typ, pend, hrest, res, tagB, tB):
    stamp_n[0] = 10
    n_ = NK[typ]; T = 2*n_
    AD = [88, 89, 90, 91]
    XF = 92
    sXo, sXi, sFo, sTm = sB0, sH, sHw, sLW
    setup = lines(f"""
    v_mul_u32_u24 v{vRw}, {RROW}, v{vN}
    v_lshl_add_u32 v{vRw}, v{vQ}, 4, v{vRw}
    v_add_u32 v{vRw}, s{sWLb}, v{vRw}
    v_lshlrev_b32 v{XO}, 1, v{XO}
    s_lshl_b32 s{sB2}, s{sX}, 1
    s_mov_b32 s{rW}, s{pOut}
    s_mov_b32 s{rW+1}, s{pOut+1}
    s_mov_b32 s{rW+2}, {2048*2560}
    s_mov_b32 s{rW+3}, 0x20000
    s_lshl_b32 s{sXi}, s{sMT}, 3
    s_add_u32 s{sXi}, s{sXi}, s{sDT}
    s_lshl_b32 s{sXi}, s{sXi}, 1
    s_add_u32 s{sXi}, s{sXi}, s{sHALF}
    s_xor_b32 s{sXo}, s{sXi}, 1
    s_lshl_b32 s{sFo}, s{sXo}, 6
    s_lshl_b32 s{sTm}, s{sW}, 4
    s_add_u32 s{sTm}, s{sTm}, {WS_XF}
    s_add_u32 s{sFo}, s{sFo}, s{sTm}
    s_lshl_b32 s{sUnit}, s{sXi}, 6
    s_add_u32 s{sUnit}, s{sUnit}, s{sTm}
    v_mov_b32 v{XF}, s{sUnit}
    s_mul_i32 s{sTm}, s{sW}, 5120
    s_add_u32 s{sTm}, s{sTm}, {WS_XB}
    s_mul_i32 s{sXi}, s{sXi}, 20480
    s_add_u32 s{sXi}, s{sXi}, s{sTm}
    s_mul_i32 s{sXo}, s{sXo}, 20480
    s_add_u32 s{sXo}, s{sXo}, s{sTm}
    s_add_u32 s{sDX}, s{sXi}, 4096
    s_add_u32 s{sDW}, s{sXo}, 4096
    """)
    for s in range(4):
        setup += lines(f"s_xor_b32 s{sTm}, s{sW}, {s}\ns_mul_i32 s{sTm}, s{sTm}, {WLW}\ns_add_u32 s{sTm}, s{sTm}, {L_WL + s*RBLK}\nv_add_u32 v{AD[s]}, s{sTm}, v{LO}")
    def red_w(p_, s): return [DSF(f"ds_write_b128 v{vRw}, {V(acc2(p_,i,s),4)} offset:{s*RBLK + i*64}", "rw") for i in range(5)]
    RD = [96 + 16*g for g in range(5)]
    def red_r(g): return [DSF(f"ds_read_b128 {V(RD[g]+4*s,4)}, v{AD[s]} offset:{64*g}", ("r", g)) for s in range(4)]
    bgq = list(setup) + list(res)
    per = -(-len(pend) // OPT["kw"])
    for t in range(T - 1):
        p_, tk = divmod(t, n_)
        assert not [1 for t_, _ in pend if t_ <= t], (typ, t)
        if OPT.get("fine2"): stamp(14 + 2*t)
        k.wait_vm([("w", tk), ("h", t)])
        if OPT.get("fine2"): stamp(15 + 2*t)
        if t == tB: put_flag(tagB, sLX)
        if t == n_ - NR:
            k.wait_vm(("hf", 1)); check("hb" + typ, vF + 1, vFd)
        wk, wb = wreg(tk); ring = hdest(typ, t)
        m = []
        for s in range(4):
            for i in range(5):
                c = "0" if tk == 0 else V(acc2(p_, i, s), 4)
                m.append(f"v_mfma_f32_16x16x32_bf16 {V(acc2(p_,i,s),4)}, {R(wk, wb+4*i, 4)}, {R(ring[s][0], ring[s][1], 4)}, {c}")
        streams = []
        if NE[typ] <= t and t + NR < T:
            a_, b_ = hload(typ, t + NR)
            streams.append((a_, 0, 2, True))
            for s in range(4): streams.append((b_[s], 5*s + 4, 5*s + 4, True))
        mem = []
        if t == n_ - NR - 1: mem += [poll_h(1)]
        while hrest and len(mem) < 12: mem += flat([hrest.pop(0)])
        for _ in range(per):
            if pend: mem += flat([pend.pop(0)[1]])
        u = t - n_
        if u == -1: must_bg = True
        if u == 0:
            assert not bgq, len(bgq)
            streams.append((sum((red_w(0, s) for s in range(3)), []), 2, 19, True))
        if u == 1: streams.append((red_w(0, 3), 0, 6, True))
        if u == 2:
            k.wait_lg(); k.e("s_barrier")
            streams.append((red_r(0) + red_r(1) + red_r(2), 0, 16, True))
        if u == 3: streams.append((red_r(3) + red_r(4), 0, 12, True))
        if u in (3, 4):
            for g in ((0, 1, 2) if u == 3 else (3, 4)):
                bgq += [F(lambda g=g: k.wait_lg(("r", g)), 1)]
                bgq += lines("\n".join(f"v_add_f32 v{RD[g]+x}, v{RD[g]+x}, v{RD[g]+4+x}" for x in range(4)) + "\n" +
                             "\n".join(f"v_add_f32 v{RD[g]+8+x}, v{RD[g]+8+x}, v{RD[g]+12+x}" for x in range(4)) + "\n" +
                             "\n".join(f"v_add_f32 v{RD[g]+x}, v{RD[g]+x}, v{RD[g]+8+x}" for x in range(4)))
                bgq += [VM(f"buffer_store_dwordx4 {V(RD[g],4)}, v{vL16}, s[{rWS}:{rWS+3}], s{sXo if g < 4 else sDW} offen offset:{(g & 3)*1024} sc1", ("xs", g))]
        if u == n_ - 3: k.e("s_barrier")
        if u == (n_ - 2 if OPT['xlate'] else n_ - 4): mem += [VM(f"buffer_load_dwordx2 {V(vFd,2)}, v{XF}, s[{rWS}:{rWS+3}], 0 offen sc1", "xp")]
        if u == OPT["xfu_" + typ]:
            run(bgq); bgq.clear()
            put_flag(("xs", 4), sFo)
        if u == n_ - 2:
            if not OPT["xlate"]:
                k.wait_vm("xp"); check("x" + typ, XF, vFd)
            k.wait_vm(("h", t + 1))
            wk2, wb2 = wreg(tk + 1); ring2 = hdest(typ, t + 1)
            m2 = [f"v_mfma_f32_16x16x32_bf16 {V(acc2(1,i,s),4)}, {R(wk2, wb2+4*i, 4)}, {R(ring2[s][0], ring2[s][1], 4)}, {V(acc2(1,i,s),4)}" for s in range(4) for i in range(5)]
            m = sum((m[5*s:5*s+5] + m2[5*s:5*s+5] for s in range(4)), [])
            XL = [40 + 4*g for g in range(5)] if OPT["xlate"] else RD
            xl = [VM(f"buffer_load_dwordx4 {V(XL[g],4)}, v{vL16}, s[{rWS}:{rWS+3}], s{sXi if g < 4 else sDX} offen offset:{(g & 3)*1024} sc1", "xl") for g in range(5)]
            if not OPT["xlate"]: mem += xl
            for s in range(3): streams.append((red_w(1, s), 10*s + 13, 10*s + 19, True))
            def addx():
                k.wait_vm("xl")
            if not OPT["xlate"]: streams.append(([F(addx, 1)] + lines("\n".join(f"v_add_f32 v{RES+4*g+x}, v{RES+4*g+x}, v{RD[g]+x}" for g in range(5) for x in range(4))), 26, 39, True))
        streams.append((mem, 1, 18, True))
        streams.append((bgq, 0, 20, False))
        sched(m, streams)
        if u == -1:
            if OPT.get("show"): print("left at the end of pass 1:", len(bgq))
            for f in bgq: f()
            bgq.clear()
    stamp()
    if OPT["xlate"]:
        k.wait_vm("xp"); check("x" + typ, XF, vFd)
        run(xl)
    else: k.e("s_nop 3")
    run(red_w(1, 3))
    k.wait_lg(); k.e("s_barrier")
    for g in range(5): run(red_r(g))
    for g in range(5):
        k.wait_lg(("r", g))
        o = RES + 4*g
        for h in range(2): k.e(f"v_pk_add_f32 {V(RD[g]+2*h,2)}, {V(RD[g]+2*h,2)}, {V(RD[g]+4+2*h,2)}")
        for h in range(2): k.e(f"v_pk_add_f32 {V(RD[g]+8+2*h,2)}, {V(RD[g]+8+2*h,2)}, {V(RD[g]+12+2*h,2)}")
        for h in range(2): k.e(f"v_pk_add_f32 {V(o+2*h,2)}, {V(o+2*h,2)}, {V(RD[g]+2*h,2)}")
        for h in range(2): k.e(f"v_pk_add_f32 {V(o+2*h,2)}, {V(o+2*h,2)}, {V(RD[g]+8+2*h,2)}")
    for g in range(5):
        o = RES + 4*g
        if OPT["xlate"]:
            if g == 0: k.wait_vm("xl")
            for h in range(2): k.e(f"v_pk_add_f32 {V(o+2*h,2)}, {V(o+2*h,2)}, {V(XL[g]+2*h,2)}")
        k.vmem(f"buffer_store_dwordx4 {V(o,4)}, v{XO}, s[{rW}:{rW+3}], s{sB2} offen offset:{64*g} {OPT.get('ost', '')}", "o")
    if OPT.get("spin"):
        ins, n_ = OPT["spin"]
        k.e(f"""
        s_waitcnt vmcnt(0)
        s_sub_u32 s{sST}, s{sST}, s98
        s_add_u32 s{sST}, s{sST}, {n_}
        L_spin_{typ}:
        {ins} s[100:101]
        s_waitcnt lgkmcnt(0)
        s_sub_u32 s100, s100, s98
        s_cmp_lt_u32 s100, s{sST}
        s_cbranch_scc1 L_spin_{typ}
        """)
    k.e("s_branch L_fin" if OPT["stamps"] else "s_endpgm")

def finish():
    if OPT["stamps"]:
        k.label("L_fin")
        k.wait_vm0()
        stamp(11)
        k.e(f"""
        s_memtime s[100:101]
        s_waitcnt lgkmcnt(0)
        s_sub_u32 s100, s100, s98
        v_writelane_b32 v{vST}, s100, 63
        s_lshl_b32 s{sT0}, s2, 2
        s_add_u32 s{sT0}, s{sT0}, s{sW}
        s_lshl_b32 s{sT0}, s{sT0}, 8
        s_add_u32 s{sT0}, s{sT0}, {WS_ST}
        v_lshlrev_b32 v2, 2, v{vL}
        buffer_store_dword v{vST}, v2, s[{rWS}:{rWS+3}], s{sT0} offen
        """)

prologue()
stamp_n[0] = 1
path_ssm()
stamp_n[0] = 1; cur[0] = "mlp"
path_mlp()
finish()
k.label("L_end")
body = k.text()
errs = check_hazards(body)
for e_ in errs: print("HAZARD:", e_, file=sys.stderr)

hdr = open(f"cdna_kernels/{NAME}.s.ref").read().split("\n")
hdr = [l for l in hdr if l.startswith(";") and "@launch" not in l and "Override" not in l and "grid=ceil" not in l]
out = "\n".join(hdr) + f"\n; @launch grid=(256,1,1) block=(256,1,1) lds={L_END}\n"
out += f""".amdgcn_target "amdgcn-amd-amdhsa--gfx950"
.text
.globl {NAME}_kernel
.p2align 8
.type {NAME}_kernel,@function
{NAME}_kernel:
{body}    s_endpgm
L_code_end:
.set CODE_BYTES, L_code_end - {NAME}_kernel - 512
.section .rodata,"a"
.p2align 6
.amdhsa_kernel {NAME}_kernel
  .amdhsa_next_free_vgpr 512
  .amdhsa_next_free_sgpr 102
  .amdhsa_accum_offset 256
  .amdhsa_group_segment_fixed_size 0
  .amdhsa_kernarg_size 136
  .amdhsa_user_sgpr_count 2
  .amdhsa_user_sgpr_kernarg_segment_ptr 1
  .amdhsa_system_sgpr_workgroup_id_x 1
.end_amdhsa_kernel
"""
open(sys.argv[1], "w").write(out)
print("written", sys.argv[1], len(out), "bytes; hazards:", len(errs))
```

```python
import sys, struct
sys.path.insert(0, "dev")
from asmlib import *

NAME = "parallel_sum__ssm_conv_s5__mixer_channel_mlp__prompt"
OPT = dict(stamps=False, stop=None, nt_dma="", nt_pf="", nt_rp="", pf=0, pf0=1, pford=0, post0=12, ost='nt', pfa=(1, 0, 1), pfb=(2,), mv=0, xr0=0, tmlp=8, ctail=4, rpown='mlp', post=25, e1=0, ew=30, post0_s=0, wskip=3, rpd_mlp=(0, 3.5), rpd_ssm=(0, 3.5), rotg=4, e2=0, post_s=0, cpf=1, rp_mlp=(5, (6, 7, 9, 11, 12), 14), rp_ssm=(5, (6, 7, 8, 9, 10), 12), rf_mlp=17, wskip2=1, touch=8, rf_ssm=99, xfb_mlp=3, xfb_ssm=2, xlate=1, fa=9, resfirst=1, ne=0, gpos=8, post1=20, hpre=1, ne_mlp=0, kw=6, util=1.0, rot1=1, rot2=1)
for a_ in sys.argv[2:]:
    k_, v_ = a_.split("=", 1); OPT[k_] = eval(v_)

def f2u(x): return struct.unpack("<I", struct.pack("<f", x))[0]
def hx(x): return "0x%08x" % f2u(x)

WS_EP = 0
WS_H = 4096
WS_WP = 12 << 20
WS_E = 16 << 20
WS_RF = 17 << 20
WS_HF = (17 << 20) + 65536
WS_RS = 18 << 20
WS_ST = 20 << 20
WS_XF = (17 << 20) + 131072
WS_XB = 24 << 20
WS_SIZE = 32 << 20
OOB = 0x4000000
L_TOK = 0; L_CH = 2048; L_PW = 7168; L_EX = 17408; L_EX2 = L_EX + 1280
L_STG = 20480; L_X = 40960; L_W = 90112; L_END = 163840
XS = 16384; WSL = 24576
L_SCS = {'ssm': (L_EX2, 320), 'mlp': (L_CH + 512, 384)}; L_B1 = L_CH; L_DB = 20160
WLW = 4 * 16 * 336; RROW = 336; RBLK = 16 * RROW
L_WL = L_STG
NST = 10
pX, pLre, pLim, pBre, pBim, pCre, pCim, pLdt = 16, 18, 20, 22, 24, 26, 28, 30
pDsk, pBx, pW1, pB1, pW2, pB2, pOut, pDbg, pWs = 32, 34, 36, 38, 40, 42, 44, 46, 48
sW, sWR, sWC, sMT, sNT, sTYP, sHALF, sDT = 3, 4, 5, 6, 7, 8, 88, 7
sML, sI8 = 9, 10
sNonce = 11; sT0, sT1, sT2, sT3 = 12, 13, 14, 15
sKs = 50; sPF = 51
rX, rW, rWS, rT, rT2 = 52, 56, 60, 64, 68
sX, sLX, sLW, sB0, sB2, sPFs, sUnit, sRpSrc, sLR, sSpin = 72, 73, 74, 75, 76, 77, 78, 79, 80, 81
sK = 82; sEx = 84
sH, sHw, sWp, sDis = 86, 87, 88, 89
sST = 90
sRpD = 92
sSig = 97
sWa, sHa, sLim = 18, 22, 26
sDX, sDW = 77, 51
rPF = rT2
vL, vN, vQ = 1, 2, 3
vDX0, vDX1, vXa, vXb = 4, 5, 6, 7
vDW = 8
vPF, vDR, vJunk, vNc = 10, 11, 12, 13
vWA = 14
vRA = 120
vL16 = 26
vRS = 27
vB1 = 28
vT = 40
vST = 25
ACC = 160
def acc(i, j): return ACC + (i * 4 + j) * 4
aF = [0, 40]
aONE = 80; aCS = 84

k = Asm()
k.strict = OPT.get('strict', False)
k.lenient = OPT['stamps']
stamp_n = [0]
cur = ["ssm"]
def stamp(i=None):
    if i is None:
        i = stamp_n[0]; stamp_n[0] += 1
    if OPT.get("probe") == (cur[0], i):
        k.e(f"s_memrealtime s[{sST}:{sST+1}]"); k.e("s_waitcnt lgkmcnt(0)"); k.lg = []
    if not OPT["stamps"] or (OPT.get("lite") and i != 11): return
    k.e(f"{'s_memtime' if OPT.get('cyc') else 's_memrealtime'} s[{sST}:{sST+1}]"); k.e("s_waitcnt lgkmcnt(0)"); k.lg = []
    k.e(f"v_writelane_b32 v{vST}, s{sST}, {i}")
def srd(r, ptr, size):
    k.e(f"s_mov_b32 s{r}, s{ptr}\ns_mov_b32 s{r+1}, s{ptr+1}\ns_mov_b32 s{r+2}, {size}\ns_mov_b32 s{r+3}, 0x20000")

class F:
    def __init__(self, fn, cost=1, ds=False, sep=False, ta=0): self.fn, self.cost, self.ds, self.sep, self.ta = fn, cost, ds, sep, ta
    gate = None
    def __call__(self): self.fn()
curblk = [0]
def note(d, key): return F(lambda: d.__setitem__(key, curblk[0]), 0)
def gate(fn):
    f = F(lambda: None, 0); f.gate = fn; return f
def lines(s):
    out = []; prev = set()
    for l in (x.strip() for x in s.split("\n")):
        if not l: continue
        if l == "s_nop 0":
            prev = None; continue
        parts = l.split(" | ")
        c = sum(2 if x.split()[0] in TRANS else 1 for x in parts)
        d = parse(parts[0])
        dep = prev is None or (d["valu"] and bool(d["uses"] & prev))
        prev = set().union(*[{r for r in parse(x)["defs"] if r[0] == "v"} for x in parts])
        out.append(F(lambda l=l: k.e(l.replace(" | ", "\n")), c, sep=dep))
    return out
def VM(text, tag, sep=False, ta=66): return F(lambda: k.vmem(text, tag), 2, sep=sep, ta=ta)
def DSF(text, tag=None): return F(lambda: k.ds(text, tag), 1, ds=True)
def sched(main, streams, start=0):
    n = len(main)
    st = []
    for items, g0, g1, must in streams:
        cnt = len(items) if must else min(len(items), must if isinstance(must, int) and must > 1 else len(items))
        tot = sum(f.cost for f in items[:cnt]) or 1
        tg = []; acc_ = 0
        for f in items[:cnt]:
            tg.append(g0 + (g1 - g0) * acc_ / tot if must else g0); acc_ += f.cost
        st.append(dict(items=items, tg=tg, last=-1, must=must))
    for g, m in enumerate(main):
        k.e(m)
        if g < start: continue
        room = 2; hasds = False
        prog = True
        while prog and room > 0:
            prog = False
            for x in st:
                if not x["tg"] or x["tg"][0] > g: continue
                f = x["items"][0]
                if f.gate and not f.gate(): continue
                if f.sep and x["last"] == g: continue
                if f.ds and (hasds or (not x["must"] and g >= n - 6)): continue
                if f.cost > room and room < 2 and not (not x["must"] and g - x["last"] >= 3): continue
                x["items"].pop(0); x["tg"].pop(0); x["last"] = g
                f(); room -= f.cost; hasds |= f.ds; prog = True
                break
    for x in st:
        if x["must"]:
            over = len(x["tg"])
            if over and OPT.get("show"): print("overflow", over)
            while x["tg"]:
                f = x["items"].pop(0); x["tg"].pop(0)
                if f.sep: k.e("s_nop 0")
                f()
def merge(*ls):
    ls = [l for l in ls if l]
    if not ls: return []
    if len(ls) == 1: return list(ls[0])
    items = []
    for li, l in enumerate(ls):
        for i, f in enumerate(l): items.append(((i + 0.5) / len(l), li, i, f))
    items.sort(key=lambda x: (x[0], x[1]))
    return [x[3] for x in items]

def prologue():
    t = vT
    cpf = f"""
    s_getpc_b64 s[{sEx}:{sEx+1}]
    s_lshr_b32 s{sT1}, s2, 3
    s_lshl_b32 s{sT1}, s{sT1}, 11
    v_lshrrev_b32 v{t}, 6, v0
    v_lshlrev_b32 v{t}, 9, v{t}
    v_and_b32 v{t+1}, 3, v0
    v_lshl_add_u32 v{t}, v{t+1}, 7, v{t}
    v_add_u32 v{t}, s{sT1}, v{t}
    v_min_u32 v{t}, CODE_BYTES, v{t}
    global_load_dword v{vJunk}, v{t}, s[{sEx}:{sEx+1}]
    """ if OPT["cpf"] else ""
    k.e(f"""
    s_cmp_ge_u32 s2, 256
    s_cbranch_scc1 L_end
    s_load_dwordx16 s[16:31], s[0:1], 0
    s_load_dwordx16 s[32:47], s[0:1], 64
    s_load_dwordx2 s[48:49], s[0:1], 128
    {cpf}
    v_lshrrev_b32 v{t}, 6, v0
    v_and_b32 v{vL}, 63, v0
    v_readfirstlane_b32 s{sW}, v{t}
    s_and_b32 s{sT0}, s2, 7
    s_lshr_b32 s{sT1}, s2, 3
    s_lshr_b32 s{sTYP}, s{sT1}, 4
    s_bfe_u32 s{sML}, s{sT1}, 0x20002
    s_lshr_b32 s{sMT}, s{sT0}, 1
    s_lshl_b32 s{sT2}, s{sML}, 2
    s_add_u32 s{sMT}, s{sMT}, s{sT2}
    s_and_b32 s{sT2}, s{sT1}, 3
    s_lshl_b32 s{sI8}, s{sTYP}, 2
    s_add_u32 s{sI8}, s{sI8}, s{sT2}
    s_and_b32 s{sNT}, s{sT0}, 1
    s_lshl_b32 s{sNT}, s{sNT}, 2
    s_add_u32 s{sNT}, s{sNT}, s{sT2}
    s_lshr_b32 s{sWR}, s{sW}, 1
    s_and_b32 s{sWC}, s{sW}, 1
    """)
    if OPT["stamps"]:
        k.e(f"v_mov_b32 v{vST}, 0\n{'s_memtime' if OPT.get('cyc') else 's_memrealtime'} s[{sST}:{sST+1}]" + ('' if OPT['pf'] else '\ns_memtime s[98:99]')); stamp_n[0] = 1
    if OPT.get("spin"): k.e(f"{OPT['spin'][0]} s[98:99]\ns_waitcnt lgkmcnt(0)\ns_mov_b32 s{sST}, s98")
    k.e(f"""
    v_lshrrev_b32 v{t}, 3, v{vL}
    v_and_b32 v{t+1}, 7, v{vL}
    v_lshrrev_b32 v{t+2}, 1, v{t}
    v_xor_b32 v{t+2}, v{t+1}, v{t+2}
    v_mul_u32_u24 v{t+3}, 5120, v{t}
    v_lshl_add_u32 v{vDX0}, v{t+2}, 4, v{t+3}
    v_xor_b32 v{vDX1}, 64, v{vDX0}
    v_add_u32 v{vDX1}, 40960, v{vDX1}
    s_lshl_b32 s{sT0}, s{sMT}, 7
    s_lshl_b32 s{sT1}, s{sWR}, 6
    s_add_u32 s{sT0}, s{sT0}, s{sT1}
    s_lshl_b32 s{sT1}, s{sWC}, 1
    s_add_u32 s{sT0}, s{sT0}, s{sT1}
    s_mul_i32 s{sX}, s{sT0}, 1280
    s_lshl_b32 s{sLX}, s{sW}, 12
    s_cmp_eq_u32 s{sTYP}, 1
    s_cbranch_scc1 L_e_mlp
    """)
    for typ in ("ssm", "mlp"):
        if typ == "mlp": k.label("L_e_mlp")
        k.vm = []; issued.clear()
        cur[0] = typ
        k.e(WOFF[typ])
        rot_setup(typ)
        start_loads(typ)
        k.e(f"s_branch L_{typ}")
        early_vm[typ] = list(k.vm)
    cur[0] = "ssm"
early_vm = {}
WOFF = {}
def late_common(typ):
    t = vT
    k.label(f"L_{typ}")
    issued.clear(); issued[0] = 10 if typ == "mlp" else 9
    k.seen.clear(); k.vm = list(early_vm[typ]); k.seen.update(k.vm); k.lg = []
    k.e(f"""
    v_and_b32 v{vN}, 15, v{vL}
    v_lshrrev_b32 v{vQ}, 4, v{vL}
    v_lshlrev_b32 v{vL16}, 4, v{vL}
    s_xor_b32 s{sKs}, s{sWR}, s{sWC}
    s_xor_b32 s{sHALF}, s{sTYP}, 1
    s_mov_b32 s{sSpin}, 0x40000
    s_and_b32 s{sT2}, s2, 127
    s_sub_u32 s{sUnit}, 127, s{sT2}
    s_cmp_lt_u32 s{sUnit}, 96
    s_cselect_b32 s{sUnit}, s{sUnit}, 0
    s_cselect_b32 s{sDis}, 0, {OOB}
    s_lshl_b32 s{sT2}, s{sKs}, 2
    v_add_u32 v{t+4}, s{sT2}, v{vQ}
    v_lshrrev_b32 v{t+5}, 1, v{vN}
    v_xor_b32 v{t+5}, v{t+4}, v{t+5}
    v_lshlrev_b32 v{t+5}, 4, v{t+5}
    v_lshl_add_u32 v{t+5}, v{vN}, 7, v{t+5}
    s_lshl_b32 s{sT1}, s{sWC}, 13
    s_add_u32 s{sT1}, s{sT1}, {L_X}
    v_add_u32 v{vXa}, s{sT1}, v{t+5}
    v_xor_b32 v{vXb}, 64, v{vXa}
    """)

issued = {}
mk = {}
def dma(vo, rs, so, imm, sl, tgt, tag, fl, pre=None):
    def f1():
        k.e(f"s_add_u32 m0, s{sl}, {tgt - imm}")
        if pre: k.e(pre)
    def f2():
        if isinstance(tag, tuple): issued[tag[1]] = issued.get(tag[1], 0) + 1
        k.vmem(f"buffer_load_dwordx4 v{vo}, s[{rs}:{rs+3}], s{so} offen offset:{imm} {fl} lds", tag)
    return [F(f1, 2 if pre else 1), F(f2, 2, sep=True, ta=66)]
def run(ops):
    for op in ops:
        for f in (op if isinstance(op, list) else [op]):
            if f.sep: k.e("s_nop 0")
            f()
def flat(ops): return [f for op in ops for f in (op if isinstance(op, list) else [op])]
def advance(typ, stage):
    d = 64*3072 if typ == "mlp" else 128
    G = OPT["rotg"]
    if stage not in [10 - (10*g) // G for g in range(1, G)]:
        return f"s_add_u32 s{sX}, s{sX}, 128\ns_add_u32 s{sB0}, s{sB0}, {d}\ns_add_u32 s{sB2}, s{sB2}, {d}"
    return (f"s_cmp_eq_u32 s{sSig}, {10 - stage} | s_cselect_b32 s{sT3}, {-9*128 & 0xffffffff}, s{sDX} | s_cselect_b32 s{sT2}, {-9*d & 0xffffffff}, s{sDW}\n"
            f"s_add_u32 s{sX}, s{sX}, s{sT3}\ns_add_u32 s{sB0}, s{sB0}, s{sT2}\ns_add_u32 s{sB2}, s{sB2}, s{sT2}")
def rot_setup(typ):
    d = 64*3072 if typ == "mlp" else 128
    G = OPT.get("rotg", 0)
    if G == 0: rotsel = f"""    s_mul_i32 s{sT0}, s{sI8}, 5
    s_lshr_b32 s{sT0}, s{sT0}, 2
    s_mul_i32 s{sT1}, s{sML}, 5
    s_lshr_b32 s{sT1}, s{sT1}, 1
    s_add_u32 s{sT0}, s{sT0}, s{sT1}
    s_and_b32 s{sT1}, s{sMT}, 3
    s_add_u32 s{sSig}, s{sT0}, s{sT1}
    s_sub_u32 s{sT0}, s{sSig}, 10
    s_cmp_ge_u32 s{sSig}, 10
    s_cselect_b32 s{sSig}, s{sT0}, s{sSig}
    s_mul_i32 s{sSig}, s{sSig}, {OPT['rot1']}
    """
    else:
        rotsel = f"s_add_u32 s{sT0}, s{sI8}, s{sML}\ns_and_b32 s{sT0}, s{sT0}, {G-1}\ns_mul_i32 s{sT0}, s{sT0}, 10\ns_lshr_b32 s{sSig}, s{sT0}, {G.bit_length()-1}"
    k.e(f"""
    {rotsel}
    s_lshl_b32 s{sT0}, s{sSig}, 7
    s_add_u32 s{sX}, s{sX}, s{sT0}
    s_mul_i32 s{sT0}, s{sSig}, {d}
    s_add_u32 s{sB0}, s{sB0}, s{sT0}
    s_add_u32 s{sB2}, s{sB2}, s{sT0}
    s_movk_i32 s{sDX}, 128
    s_mov_b32 s{sDW}, {d}
    """)
def dma_x(stage, g):
    return dma(vDX0 + (g & 1), rX, sX, (g >> 1) * 1280, sLX, L_X + (stage % 3) * XS + g * 1024, ("st", stage), OPT.get("nt_x", "") if stage < OPT.get("nt_n", 99) else "")
def dma_w(typ, stage, g):
    base = L_W + (stage % 3) * WSL
    if typ == "mlp":
        rg, cg = g // 3, g % 3
        return dma(vDW + rg, rW, sB2 if rg else sB0, cg * 128, sLW, base + cg * 8192 + rg * 1024, ("st", stage), OPT["nt_dma"] if stage < OPT.get("nt_n", 99) else "")
    imm = 2560 if (g < 4 and g & 1) else 0
    return dma(vDW + (1 if g == 4 else 0), rW, sB2 if g in (2, 3) else sB0, imm, sLW, base + g * 2048, ("st", stage), OPT["nt_dma"] if stage < OPT.get("nt_n", 99) else "")
def dma_stage(typ, stage):
    nw = 6 if typ == "mlp" else 5
    ops = merge([dma_x(stage, g) for g in range(4)], [dma_w(typ, stage, g) for g in range(nw)])
    if stage > 0: ops[0] = lines(advance(typ, stage)) + ops[0]
    return ops
sPB = 98
def pf(a):
    def f():
        k.vmem(f"global_load_dword v{vJunk}, v{vPF}, s[{sPB}:{sPB+1}] {OPT['nt_pf']}", "pf")
        k.e(f"v_add_u32 v{vPF}, s{sDX}, v{vPF}\nv_min_u32 v{vPF}, s{sDW}, v{vPF}")
    return F(f, 4, ta=130)

def frag_reads(typ, stage, blk, fs):
    slot = stage % 3
    nr = 6 if typ == "mlp" else 5
    vx = vXa if blk == 0 else vXb
    xr = [DSF(f"ds_read_b128 {A(aF[fs] + 24 + 4*j, 4)}, v{vx} offset:{slot*XS + j*2048}") for j in range(4)]
    wr_ = []
    for i in range(nr):
        if typ == "mlp":
            for h in range(2):
                wr_.append(DSF(f"ds_read_b64_tr_b16 {A(aF[fs] + 4*i + 2*h, 2)}, v{vWA + blk*4 + (i & 3)} offset:{slot*WSL + (i >> 2)*8192 + h*512}"))
        else:
            wr_.append(DSF(f"ds_read_b128 {A(aF[fs] + 4*i, 4)}, v{vWA + blk} offset:{slot*WSL + i*2048}"))
    return merge(xr, wr_)

def mfmas(typ, stage, blk, fs):
    nr = 6 if typ == "mlp" else 5
    first = stage == 0
    out = []
    Af = lambda i: A(aF[fs] + 4*i, 4)
    Bf = lambda j: A(aF[fs] + 24 + 4*j, 4)
    for i in range(nr):
        for j in range(4):
            c = "0" if (first and blk == 0) else V(acc(i, j), 4)
            out.append(f"v_mfma_f32_16x16x32_bf16 {V(acc(i,j),4)}, {Af(i)}, {Bf(j)}, {c}")
    if blk == 1 and (2 not in OPT.get('x', ()) or stage == NST - 1):
        for i in range(nr):
            out.append(f"v_mfma_f32_16x16x32_bf16 {A(aCS+4*i,4)}, {Af(i)}, {A(aONE,4)}, {'0' if first else A(aCS+4*i,4)}")
    if blk == 1 and stage == NST - 1: out = out[-nr:] + out[:-nr]
    return out

XR = 124
def touch_all(typ):
    t = vT + 8
    if typ == "ssm":
        k.e(f"""
        s_lshl_b32 s{sT0}, s2, 2
        s_add_u32 s{sT0}, s{sT0}, s{sW}
        s_mul_i32 s{sT0}, s{sT0}, {40*128}
        v_min_u32 v{t}, 39, v{vL}
        s_mov_b64 s[{sT2}:{sT3}], s[{pX}:{pX+1}]
        """)
    else:
        k.e(f"""
        s_and_b32 s{sT0}, s2, 127
        s_lshl_b32 s{sT1}, s{sT0}, 1
        s_add_u32 s{sT1}, s{sT1}, s{sWC}
        s_mul_i32 s{sT1}, s{sT1}, {60*128}
        s_mul_i32 s{sT0}, s{sT0}, {50*128}
        s_cmp_eq_u32 s{sWC}, 0
        s_cselect_b64 s[{sT2}:{sT3}], s[{pBre}:{pBre+1}], s[{pBim}:{pBim+1}]
        s_cmp_eq_u32 s{sWR}, 0
        s_cselect_b32 s{sT0}, s{sT0}, s{sT1}
        s_cselect_b32 s{sT1}, 49, 59
        s_cselect_b64 s[{sT2}:{sT3}], s[{sT2}:{sT3}], s[{pW1}:{pW1+1}]
        v_min_u32 v{t}, s{sT1}, v{vL}
        """)
    k.e(f"v_lshlrev_b32 v{t}, 7, v{t}\nv_add_u32 v{t}, s{sT0}, v{t}")
    k.vmem(f"global_load_dword v{vJunk}, v{t}, s[{sT2}:{sT3}] {OPT['nt_pf']}", "tch")
def start_loads(typ):
    t = vT
    k.e("s_waitcnt lgkmcnt(0)")
    if OPT["stamps"]: k.e(f"v_writelane_b32 v{vST}, s{sST}, 0")
    stamp(12)
    k.e(f"""
    s_or_b32 s{sT0}, s2, s{sW}
    s_cmp_lg_u32 s{sT0}, 0
    s_cbranch_scc1 L_nononce_{typ}
    s_memrealtime s[{sT0}:{sT1}]
    s_waitcnt lgkmcnt(0)
    s_or_b32 s{sT0}, s{sT0}, 1
    v_mov_b32 v{t+8}, s{sT0}
    v_mov_b32 v{t+9}, 0
    global_store_dword v{t+9}, v{t+8}, s[{pDbg}:{pDbg+1}] sc1
    L_nononce_{typ}:
    """)
    srd(rX, pX, 2048 * 1280)
    if typ == "mlp": srd(rW, pW1, 640 * 3072)
    else:
        k.e(f"""
        s_cmp_eq_u32 s{sWC}, 0
        s_cselect_b32 s{rW}, s{pBre}, s{pBim}
        s_cselect_b32 s{rW+1}, s{pBre+1}, s{pBim+1}
        s_mov_b32 s{rW+2}, {640*1280}
        s_mov_b32 s{rW+3}, 0x20000
        """)
    if OPT['pf']:
        assert OPT['rotg'] == 1
        k.e(f"s_cmp_eq_u32 s{sW}, 3\ns_cselect_b64 s[{sPB}:{sPB+1}], s[{rX}:{rX+1}], s[{rW}:{rW+1}]")
        for _ in range(OPT['pfa'][0]): pf(0)()
    if OPT.get("tch") == 1: touch_all(typ)
    run(dma_stage(typ, 0))
    if OPT.get("tch") == 2: touch_all(typ)
    if OPT['pf']:
        for _ in range(OPT['pfa'][1]): pf(0)()
    if OPT['xr0']: run(xr_loads())
    stamp(13)
    srd(rWS, pWs, WS_SIZE)
    if OPT.get('wsoff'): k.e(f"s_add_u32 s{rWS}, s{rWS}, {OPT['wsoff'] << 20}\ns_addc_u32 s{rWS+1}, s{rWS+1}, 0")
def xr_setup():
    k.e(f"""
    s_lshl_b32 s{sT0}, s{sTYP}, 3
    s_add_u32 s{sT0}, s{sT0}, s{sNT}
    s_lshl_b32 s{sT0}, s{sT0}, 2
    s_add_u32 s{sT0}, s{sT0}, s{sW}
    s_lshl_b32 s{sT0}, s{sT0}, 1
    s_lshl_b32 s{sT1}, s{sMT}, 7
    s_add_u32 s{sHw}, s{sT0}, s{sT1}
    s_mul_i32 s{sH}, s{sHw}, 1280
    v_lshrrev_b32 v{XR+10}, 5, v{vL}
    v_mul_u32_u24 v{XR+10}, 1280, v{XR+10}
    v_and_b32 v{XR+11}, 31, v{vL}
    v_lshl_add_u32 v{XR+11}, v{XR+11}, 3, v{XR+10}
    v_lshlrev_b32 v{XR+13}, 1, v{XR+11}
    v_sub_u32 v{XR+10}, v{XR+13}, v{XR+10}
    """)
def xr_loads():
    return [VM(f"buffer_load_dwordx4 {V(XR+4*i,4)}, v{XR+10}, s[{rX}:{rX+3}], s{sH} offen offset:{512*i}", "xr") for i in range(2)] + \
           [VM(f"buffer_load_dwordx2 {V(XR+8,2)}, v{XR+11}, s[{rX}:{rX+3}], s{sH} offen offset:1024", "xr", ta=40)]
def small_dma(ptr, size, soff, tgt, lanes):
    srd(rT2, ptr, size)
    k.e(f"s_mov_b32 m0, {tgt}\ns_mov_b32 exec_lo, {(1 << lanes) - 1}\ns_mov_b32 exec_hi, 0")
    k.vmem(f"buffer_load_dwordx4 v{vL16}, s[{rT2}:{rT2+3}], s{soff} offen lds", "sm")
    k.e("s_mov_b64 exec, -1")
def touch_setup():
    t = 98
    srd(rT2, pCre, 640 * 1280)
    k.e(f"""
    s_mov_b64 s[{sEx}:{sEx+1}], s[{pCim}:{pCim+1}]
    s_and_b32 s{sT0}, s2, 31
    s_lshl_b32 s{sT0}, s{sT0}, 2
    s_add_u32 s{sT0}, s{sT0}, s{sW}
    s_mul_i32 s{sT0}, s{sT0}, {50*128}
    s_xor_b32 s{sT1}, s{sDis}, {OOB}
    s_or_b32 s{sT0}, s{sT0}, s{sT1}
    v_min_u32 v{t}, 49, v{vL}
    v_lshlrev_b32 v{t}, 7, v{t}
    v_add_u32 v{t}, s{sT0}, v{t}
    """)
def touch_c():
    ld = f"buffer_load_dword v{vJunk}, v98, s[{rT2}:{rT2+3}], 0 offen"
    return [VM(ld, "jk", ta=20)] + lines(f"s_mov_b32 s{rT2}, s{sEx}\ns_mov_b32 s{rT2+1}, s{sEx+1}") + [VM(ld, "jk", ta=20)]
def small_loads(typ):
    k.e(f"s_mul_i32 s{sT0}, s{sDT}, 160")
    small_dma(pDsk, 1280, sT0, L_DB, 10)
    small_dma(pB2, 1280, sT0, L_DB + 160, 10)
    if typ == "mlp":
        k.e(f"s_mul_i32 s{sT0}, s{sNT}, 384")
        small_dma(pB1, 3072, sT0, L_B1, 24)

def pf_setup(typ):
    t = vT + 10
    PS = OPT["pf"]
    k.e(f"""
    v_mul_u32_u24 v{t}, 52, v{vL}
    v_lshrrev_b32 v{t}, 10, v{t}
    v_mul_u32_u24 v{t+1}, 20, v{t}
    v_sub_u32 v{t+1}, v{vL}, v{t+1}
    v_min_u32 v{t}, {PS - 1}, v{t}
    s_lshl_b32 s{sT0}, s{sMT}, 7
    s_lshl_b32 s{sT1}, s{sI8}, 4
    s_add_u32 s{sT0}, s{sT0}, s{sT1}
    s_mul_i32 s{sT0}, s{sT0}, 1280
    s_add_u32 s{sT0}, s{sT0}, {128*OPT['pf0']}
    """)
    if typ == "mlp":
        k.e(f"""
        s_lshl_b32 s{sT1}, s{sML}, 4
        s_add_u32 s{sT1}, s{sT1}, {64*OPT['pf0']}
        s_mul_i32 s{sT1}, s{sT1}, 3072
        s_mul_i32 s{sT2}, s{sNT}, 384
        s_add_u32 s{sT1}, s{sT1}, s{sT2}
        s_lshl_b32 s{sT2}, s{sW}, 7
        s_add_u32 s{sT1}, s{sT1}, s{sT2}
        s_cmp_eq_u32 s{sW}, 3
        s_cselect_b32 s{sT0}, s{sT0}, s{sT1}
        s_mov_b32 s{sT2}, {64*3072}
        s_cselect_b32 s{sT2}, 128, s{sT2}
        s_mov_b32 s{sT3}, 3072
        s_cselect_b32 s{sT3}, 1280, s{sT3}
        s_mov_b32 s{sDW}, {640*3072 - 128}
        s_cselect_b32 s{sDW}, {2048*1280 - 128}, s{sDW}
        v_min_u32 v{t+1}, 15, v{t+1}
        """)
    else:
        k.e(f"""
        s_mul_i32 s{sT1}, s{sNT}, 80
        s_mul_i32 s{sT2}, s{sML}, 20
        s_add_u32 s{sT1}, s{sT1}, s{sT2}
        s_mul_i32 s{sT1}, s{sT1}, 1280
        s_add_u32 s{sT1}, s{sT1}, {128*OPT['pf0']}
        s_cmp_eq_u32 s{sW}, 3
        s_cselect_b32 s{sT0}, s{sT0}, s{sT1}
        s_cselect_b32 s{sT1}, 15, 19
        s_mov_b32 s{sDW}, {640*1280 - 128}
        s_cselect_b32 s{sDW}, {2048*1280 - 128}, s{sDW}
        s_cmp_eq_u32 s{sW}, 2
        s_cselect_b32 s{sT1}, 0, s{sT1}
        v_min_u32 v{t+1}, s{sT1}, v{t+1}
        s_mov_b32 s{sT2}, 128
        s_mov_b32 s{sT3}, 1280
        """)
    k.e(f"""
    s_mul_i32 s{sDX}, s{sT2}, {PS}
    v_mul_lo_u32 v{vPF}, v{t}, s{sT2}
    v_mul_lo_u32 v{t+2}, v{t+1}, s{sT3}
    v_add_u32 v{vPF}, v{vPF}, v{t+2}
    v_add_u32 v{vPF}, s{sT0}, v{vPF}
    """)

def repack_setup(tag):
    t = vT
    k.e(f"""
    v_lshrrev_b32 v{t}, 3, v{vL}
    v_and_b32 v{t+1}, 7, v{vL}
    v_mul_u32_u24 v{t}, 1280, v{t}
    v_lshl_add_u32 v{t}, v{t+1}, 4, v{t}
    v_or_b32 v{vDR}, s{sDis}, v{t}
    v_or_b32 v{vRS}, s{sDis}, v{vL16}
    s_lshl_b32 s{sLR}, s{sW}, 10
    s_and_b32 s{sT0}, s{sUnit}, 1
    s_lshr_b32 s{sT1}, s{sUnit}, 1
    s_mov_b32 s{rT+3}, 0x20000
    """)
    if True:
        k.e(f"""
        s_mov_b32 s{rT}, s{pW2}
        s_mov_b32 s{rT+1}, s{pW2+1}
        s_mov_b32 s{rT+2}, {1536*1280}
        s_lshl_b32 s{sT2}, s{sT1}, 2
        s_add_u32 s{sT2}, s{sT2}, s{sW}
        s_mul_i32 s{sRpSrc}, s{sT2}, {8*1280}
        s_mul_i32 s{sT2}, s{sT1}, 5462
        s_lshr_b32 s{sT2}, s{sT2}, 16
        s_mul_i32 s{sT2}, s{sT2}, 10
        s_add_u32 s{sT1}, s{sT1}, s{sT2}
        s_mul_i32 s{sT1}, s{sT1}, 5120
        s_add_u32 s{sT1}, s{sT1}, {WS_WP}
        s_mul_i32 s{sT2}, s{sT0}, 20
        s_add_u32 s{sT2}, s{sT2}, s{sW}
        """)
        for i in range(5):
            k.e(f"""
            s_mul_i32 s{sT3}, s{sT2}, 13108
            s_lshr_b32 s{sT3}, s{sT3}, 16
            s_mul_i32 s{sT3}, s{sT3}, 435
            s_add_u32 s{sT3}, s{sT3}, s{sT2}
            s_lshl_b32 s{sT3}, s{sT3}, 10
            s_add_u32 s{sRpD+i}, s{sT3}, s{sT1}
            s_add_u32 s{sT2}, s{sT2}, 4
            """)
        k.e(f"""
        v_lshrrev_b32 v{t}, 2, v{vN}
        v_lshl_add_u32 v{t}, v{vQ}, 2, v{t}
        v_lshlrev_b32 v{t}, 7, v{t}
        v_and_b32 v{t+1}, 3, v{vN}
        v_lshl_add_u32 v{t}, v{t+1}, 3, v{t}
        s_lshl_b32 s{sT2}, s{sW}, 5
        s_add_u32 s{sT2}, s{sT2}, {L_STG}
        v_add_u32 v{vRA}, s{sT2}, v{t}
    """)
    else:
        k.e(f"""
        s_cmp_eq_u32 s{sWR}, 0
        s_cselect_b32 s{rT}, s{pCre}, s{pCim}
        s_cselect_b32 s{rT+1}, s{pCre+1}, s{pCim+1}
        s_mov_b32 s{rT+2}, {640*1280}
        s_lshl_b32 s{sT2}, s{sT1}, 1
        s_add_u32 s{sT2}, s{sT2}, s{sWC}
        s_mul_i32 s{sRpSrc}, s{sT2}, {8*1280}
        s_mul_i32 s{sT2}, s{sT1}, 13108
        s_lshr_b32 s{sT2}, s{sT2}, 16
        s_mul_i32 s{sT2}, s{sT2}, 435
        s_add_u32 s{sT1}, s{sT1}, s{sT2}
        s_lshl_b32 s{sT2}, s{sT0}, 1
        s_add_u32 s{sT2}, s{sT2}, s{sWR}
        s_mul_i32 s{sT2}, s{sT2}, 110
        s_add_u32 s{sT1}, s{sT1}, s{sT2}
        s_mul_i32 s{sT2}, s{sWC}, 25
        s_add_u32 s{sT1}, s{sT1}, s{sT2}
        s_add_u32 s{sT1}, s{sT1}, 60
        s_lshl_b32 s{sT1}, s{sT1}, 10
        s_add_u32 s{sRpD}, s{sT1}, {WS_WP}
        s_add_u32 s{sRpD+1}, s{sRpD}, 5120
        s_add_u32 s{sRpD+2}, s{sRpD}, 10240
        s_add_u32 s{sRpD+3}, s{sRpD}, 15360
        s_add_u32 s{sRpD+4}, s{sRpD}, 20480
        s_mul_i32 s{sT2}, s{sW}, 160
        v_lshlrev_b32 v{t+2}, 7, v{vN}
        v_add_u32 v{t+2}, {L_STG}, v{t+2}
        """)
        for x, (off, sh) in enumerate(((0, 4), (80, 4), (64, 2), (144, 2))):
            k.e(f"""
            s_add_u32 s{sT3}, s{sT2}, {off}
            v_lshl_add_u32 v{t}, v{vQ}, {sh}, s{sT3}
            v_lshrrev_b32 v{t+1}, 7, v{t}
            v_and_b32 v{t}, 127, v{t}
            v_lshl_add_u32 v{t}, v{t+1}, 12, v{t}
            v_add_u32 v{vRA+x}, v{t}, v{t+2}
            """)
    k.e(f"""
    s_mul_i32 s{sT0}, s{sT0}, 640
    s_add_u32 s{sRpSrc}, s{sRpSrc}, s{sT0}
    """)
def repack_dma():
    return [dma(vDR, rT, sRpSrc, g * 128, sLR, L_STG + g * 4096, "rp%d" % g, OPT["nt_rp"]) for g in range(5)]
RP = 136
def RPR(tag, o, n): return V(RP + o, n)
def repack_read(tag):
    if True:
        return [DSF(f"ds_read_b64_tr_b16 {V(RP+4*i+2*h,2)}, v{vRA} offset:{i*4096 + h*2048}") for i in range(5) for h in range(2)]
    return [DSF(f"ds_read_b128 {V(RP+4*x,4)}, v{vRA + x//2} offset:{(x & 1)*2048}") for x in range(4)] + \
           [DSF(f"ds_read_b32 v{RP+16+x}, v{vRA + 2 + x//2} offset:{(x & 1)*2048}") for x in range(4)]
def repack_store(tag):
    return [VM(f"buffer_store_dwordx4 {RPR(tag, 4*i, 4)}, v{vRS}, s[{rWS}:{rWS+3}], s{sRpD+i} offen sc1", ("rps", i), ta=240) for i in range(5)]
def repack_flag():
    t = vT
    pre = lines(f"""
    v_mov_b32 v{t}, s{sNonce}
    v_mov_b32 v{t+1}, s{sNonce}
    s_lshl_b32 s{sRpSrc}, s{sUnit}, 7
    s_lshl_b32 s{sT1}, s{sW}, 4
    s_add_u32 s{sRpSrc}, s{sRpSrc}, s{sT1}
    s_add_u32 s{sRpSrc}, s{sRpSrc}, {WS_RF}
    s_add_u32 s{sRpSrc}, s{sRpSrc}, 16384
    v_lshlrev_b32 v{t+2}, 26, v{vL}
    v_or_b32 v{t+2}, s{sDis}, v{t+2}
    """)
    def f():
        k.wait_vm(("rps", 4))
        k.vmem(f"buffer_store_dwordx2 {V(t,2)}, v{t+2}, s[{rWS}:{rWS+3}], s{sRpSrc} offen sc1", "rf")
    return pre, F(f, 3, ta=20)

def bfr(d, s): return f"v_cvt_pk_bf16_f32 v{d}, v{s}, v{s}\nv_and_b32 v{d}, 0xffff0000, v{d}\n"
def nonce_load():
    return lines(f"v_mov_b32 v{vNc}, 0") + [VM(f"global_load_dword v{vNc}, v{vNc}, s[{pDbg}:{pDbg+1}] sc1", "nc", ta=20)]
def rowstat_job(tag):
    t = vT + 20
    S_, Q, MEAN, VAR, S1, X, Y = t, t+1, t+2, t+3, t+4, t+5, t+6
    G0, G1 = t+8, t+12
    M1, A1, A2, AM = G0, G0+2, G1, G1+2
    def dots():
        k.wait_vm("xr")
        s = f"v_mov_b32 v{X}, 0x3f803f80\nv_mov_b32 v{S_}, 0\nv_mov_b32 v{Q}, 0\n"
        for i in range(10): s += f"v_dot2c_f32_bf16 v{S_}, v{XR+i}, v{X}\nv_dot2c_f32_bf16 v{Q}, v{XR+i}, v{XR+i}\n"
        s += "s_nop 2\n"
        k.e(s)
    fl = [F(dots, 24)]
    for d in ("row_shr:1", "row_shr:2", "row_shr:4", "row_shr:8", "row_bcast:15"):
        rm = "0xa" if "bcast" in d else "0xf"
        fl.append(F(lambda d=d, rm=rm: k.e(f"v_add_f32_dpp v{S_}, v{S_}, v{S_} {d} row_mask:{rm} bank_mask:0xf bound_ctrl:0"), 1, sep=True))
        fl.append(F(lambda d=d, rm=rm: k.e(f"v_add_f32_dpp v{Q}, v{Q}, v{Q} {d} row_mask:{rm} bank_mask:0xf bound_ctrl:0"), 1))
    fl += lines(f"""
    v_mul_f32 v{MEAN}, {hx(1/640)}, v{S_}
    v_mul_f32 v{VAR}, {hx(1/640)}, v{Q}
    v_fma_f32 v{VAR}, -v{MEAN}, v{MEAN}, v{VAR}
    v_max_f32 v{VAR}, 0, v{VAR}
    {bfr(M1, MEAN)}{bfr(X, VAR)}
    v_add_f32 v{X}, {hx(1e-5)}, v{X}
    {bfr(X, X)}
    v_sqrt_f32 v{X}, v{X}
    v_sub_f32 v{Y}, v{MEAN}, v{M1}
    {bfr(S1, X)}
    v_rcp_f32 v{A1}, v{S1}
    s_nop 0
    v_mul_f32 v{Y}, v{Y}, v{A1}
    v_mul_f32 v{X}, v{VAR}, v{A1}
    {bfr(Y, Y)}
    v_mul_f32 v{X}, v{X}, v{A1}
    {bfr(X, X)}
    v_add_f32 v{X}, {hx(1e-5)}, v{X}
    {bfr(X, X)}
    v_sqrt_f32 v{X}, v{X}
    v_fma_f32 v{Y}, v{Y}, v{S1}, v{M1}
    {bfr(X, X)}
    v_mul_f32 v{X}, v{X}, v{S1}
    v_rcp_f32 v{A2}, v{X}
    v_and_b32 v{X}, 31, v{vL}
    v_mul_f32 v{AM}, v{A2}, v{Y}
    v_sub_u32 v{X}, 31, v{X}
    v_and_b32 v{Y}, 32, v{vL}
    v_lshl_add_u32 v{X}, v{X}, 26, v{Y}
    s_lshl_b32 s{sT0}, s{sHw}, 5
    s_add_u32 s{sT0}, s{sT0}, {WS_RS}
    """)
    def nonce():
        k.wait_vm("nc")
        k.e(f"""
        v_readfirstlane_b32 s{sNonce}, v{vNc}
        s_cmp_lg_u32 s{sNonce}, 0
        s_cbranch_scc1 L_ncok_{tag}
        L_ncl_{tag}:
        s_sleep 1
        global_load_dword v{vNc}, v{Y}, s[{pDbg}:{pDbg+1}] sc1
        s_sub_u32 s{sSpin}, s{sSpin}, 1
        s_cbranch_scc1 L_end
        s_waitcnt vmcnt(0)
        v_readfirstlane_b32 s{sNonce}, v{vNc}
        s_cmp_eq_u32 s{sNonce}, 0
        s_cbranch_scc1 L_ncl_{tag}
        L_ncok_{tag}:
        s_nop 0
        """)
    fl += lines(f"v_mov_b32 v{Y}, 0") + [F(nonce, 4)]
    fl += lines(f"""
    v_mov_b32 v{G0+1}, s{sNonce}
    v_mov_b32 v{G0+3}, s{sNonce}
    v_mov_b32 v{G1+1}, s{sNonce}
    v_mov_b32 v{G1+3}, s{sNonce}
    """)
    fl.append(VM(f"buffer_store_dwordx4 {V(G0,4)}, v{X}, s[{rWS}:{rWS+3}], s{sT0} offen sc1", "rs", ta=20))
    fl.append(VM(f"buffer_store_dwordx4 {V(G1,4)}, v{X}, s[{rWS}:{rWS+3}], s{sT0} offen offset:16 sc1", "rs", ta=20))
    return fl
RSV = 124
def rowstat_fetch():
    fl = lines(f"""
    s_lshl_b32 s{sT0}, s{sMT}, 12
    s_add_u32 s{sT0}, s{sT0}, {WS_RS}
    v_lshlrev_b32 v{RSV+4}, 4, v0
    v_add_u32 v{RSV+4}, s{sT0}, v{RSV+4}
    """)
    return fl + [VM(f"buffer_load_dwordx4 {V(RSV,4)}, v{RSV+4}, s[{rWS}:{rWS+3}], 0 offen sc1", "rsv")]

def ta_of(op): return sum(f.ta for f in flat([op]))
def main_loop(typ, jobs, vq, bg):
    q = [(max(0, 2*st - 5), max(2*st - 4 + (x >= 5) - OPT.get('lag', 0), x >= 5), op) for st in range(2, NST) for x, op in enumerate(dma_stage(typ, st))]
    q = sorted(q + vq, key=lambda x: x[1])
    credit = [OPT.get("credit0", 0)]
    def take(bi, n):
        credit[0] = min(credit[0] + n * 17 * OPT["util"], n * 17 + 100) - sum(ta_of(x) for x in jobs.get(("pre", bi), []) + jobs.get(bi, []))
        out = []
        while True:
            c = [x for x in q if x[0] <= bi]
            if not c or ((credit[0] < 33 or len(out) >= (OPT['ctail'] if typ == 'ssm' and bi >= 15 else OPT.get('cap', 6))) and c[0][1] > bi): break
            q.remove(c[0]); out.append(c[0][2]); credit[0] -= ta_of(c[0][2])
        if OPT.get('show'): print(typ, bi, len(out), len(jq), len(bg), int(credit[0]), dict(issued))
        return flat(out)
    jq = []
    stamp(15)
    run(dma_stage(typ, 1))
    if OPT['pf']:
        for _ in range(OPT['pfa'][2]): pf(0)()
    stamp(62)
    k.wait_vm(("st", 0)); k.e("s_barrier")
    stamp()
    run(frag_reads(typ, 0, 0, 0))
    def block(bi, m, reads, n):
        curblk[0] = bi
        run(jobs.get(("pre", bi), []))
        jq.extend(jobs.get(bi, []))
        jq[:0] = jobs.get(("front", bi), [])
        d = take(bi, n)
        n = len(m)
        if bi == 2*NST - 1: reads, r0 = jobs["last"], 9
        else: r0 = 0
        sched(m, [(d, 0, n - 1, True), (reads, r0, n - OPT.get("rend", 6), True), (jobs["tail"] if r0 else [], 0, 9, True), (jq, 0, n, False), (bg if bi >= OPT.get("bg0", 1) else [], 0, n, False)])
    for s in range(NST):
        k.wait_lg()
        m = mfmas(typ, s, 0, 0)
        block(2*s, m, frag_reads(typ, s, 1, 1), len(m))
        k.wait_lg()
        m = mfmas(typ, s, 1, 1)
        k.e(m[0]); k.e(m[1])
        if s + 1 < NST:
            if OPT.get("fine"): stamp(16 + 3*s)
            assert issued.get(s + 1, 0) == (10 if typ == "mlp" else 9), (typ, s, issued)
            for tg in jobs.get(("wait", s), []): assert tg in k.seen, tg
            k.wait_vm([("st", s + 1)] + jobs.get(("wait", s), []))
            if OPT.get("fine"): stamp(17 + 3*s)
            k.e("s_barrier")
        block(2*s + 1, m[2:], frag_reads(typ, s + 1, 0, 0) if s + 1 < NST else [], len(m))
    assert not jq and len(bg) < 12, (len(jq), len(bg))
    run(bg)
    stamp()
    if OPT["stop"] == "loop":
        k.e("s_branch L_fin"); k.seen.update(["rsv", ("rps", 4), "b1"])
    return [x[2] for x in q]

WSLOT = [("a", 108 + 20*x) for x in range(7)] + [("a", 20*x) for x in range(5)] + [("v", 100 + 20*x) for x in range(3)]
NREG = 15
def wreg(tk): return WSLOT[tk]
def kaddr(dst, base, tk, stride):
    return lines(f"s_cmp_gt_u32 s{sLim}, {tk} | s_cselect_b32 s{dst}, s{base}, s{base+1}\ns_add_u32 s{dst}, s{dst}, {tk*stride}")
def wload(tk):
    kind, base = wreg(tk)
    out = []
    for i in range(5):
        op = []
        if i == 0: op += kaddr(sT2, sWa, tk, 5120) if cur[0] == "mlp" else lines(f"s_add_u32 s{sT2}, s{sLim+1}, {tk*5120}")
        if i == 4: op += lines(f"s_add_u32 s{sT2}, s{sT2}, 4096")
        op.append(VM(f"buffer_load_dwordx4 {R(kind, base+4*i, 4)}, v{vL16}, s[{rWS}:{rWS+3}], s{sT2} offen offset:{(i & 3)*1024} sc1", ("w", tk)))
        out.append(op)
    return out
RFV = 24
sWLb, sTx = 34, 35
MV = OPT["mv"]
NK = {"mlp": 12 - MV, "ssm": 10 + MV}
def p2_addr(typ):
    n_ = NK[typ]; k0 = 0 if typ == "mlp" else 12
    if typ == "mlp":
        k.e(f"""
        v_min_u32 v{vT+2}, {4*n_ - 1}, v{vL}
        s_mul_i32 s{sT0}, s{sW}, 24
        s_lshr_b32 s{sT1}, s{sDT}, 2
        s_add_u32 s{sT0}, s{sT0}, s{sT1}
        s_lshl_b32 s{sT0}, s{sT0}, 7
        s_add_u32 s{sT0}, s{sT0}, {WS_RF + 16384}
        v_lshrrev_b32 v{vT}, 2, v{vT+2}
        v_and_b32 v{vT+1}, 3, v{vT+2}
        """)
        k.e(f"v_lshlrev_b32 v{vT}, 8, v{vT}\nv_lshl_add_u32 v{vT}, v{vT+1}, 4, v{vT}\nv_add_u32 v{RFV}, s{sT0}, v{vT}")
    k.e(f"""
    s_and_b32 s{sT2}, s{sDT}, 3
    s_add_u32 s{sT2}, s{sT2}, s{sML}
    s_and_b32 s{sT2}, s{sT2}, 3
    s_mul_i32 s{sT2}, s{sT2}, {n_ * OPT['rot2'] if typ == 'mlp' else 0}
    s_lshr_b32 s{sT2}, s{sT2}, 2
    s_sub_u32 s{sLim}, {n_ if typ == 'mlp' else 10}, s{sT2}
    s_mul_i32 s{sT0}, s{sW}, 22
    s_add_u32 s{sT0}, s{sT0}, s{sT2}
    s_add_u32 s{sT0}, s{sT0}, {k0}
    s_mul_i32 s{sT1}, s{sDT}, 88
    s_add_u32 s{sT1}, s{sT1}, s{sT0}
    s_mul_i32 s{sT1}, s{sT1}, 5120
    {f"s_add_u32 s{sWa}, s{sT1}, {WS_WP}" if typ == "mlp" else f"s_add_u32 s{sLim+1}, s{sT1}, {WS_WP - n_*5120}"}
    {f"s_sub_u32 s{sWa+1}, s{sWa}, {n_*5120}" if typ == "mlp" else ""}
    s_lshl_b32 s{sT1}, s{sMT}, 1
    s_add_u32 s{sT1}, s{sT1}, s{sHALF}
    s_mul_i32 s{sT2}, s{sT1}, 88
    s_add_u32 s{sT2}, s{sT2}, s{sT0}
    s_lshl_b32 s{sT2}, s{sT2}, 12
    s_add_u32 s{sHa+2}, s{sT2}, {WS_H}
    s_sub_u32 s{sHa+3}, s{sHa+2}, {n_*4096}
    s_{'add' if typ == 'mlp' else 'sub'}_u32 s{sHa}, s{sHa+2}, {88*4096}
    s_sub_u32 s{sHa+1}, s{sHa}, {n_*4096}
    s_mul_i32 s{sWLb}, s{sW}, {WLW}
    s_add_u32 s{sWLb}, s{sWLb}, {L_WL}
    """)
def rflag_fetch(vd):
    k.vmem(f"buffer_load_dwordx2 {V(vd,2)}, v{RFV}, s[{rWS}:{rWS+3}], 0 offen sc1", "rfv")
def check(tag, vaddr, vd, width=2, second=1):
    k.e(f"""
    L_chk_{tag}:
    v_cmp_ne_u32 vcc, s{sNonce}, v{vd + (1 if width == 4 else 0)}
    v_cmp_ne_u32 s[{sT0}:{sT1}], s{sNonce}, v{vd + (3 if width == 4 else 1)}
    s_or_b64 vcc, vcc, s[{sT0}:{sT1}]
    s_cmp_eq_u64 vcc, 0
    s_cbranch_scc1 L_chkok_{tag}
    s_sub_u32 s{sSpin}, s{sSpin}, 1
    s_cbranch_scc1 L_end
    buffer_load_dwordx{width} {V(vd,width)}, v{vaddr}, s[{rWS}:{rWS+3}], 0 offen sc1
    s_waitcnt vmcnt(0)
    s_branch L_chk_{tag}
    L_chkok_{tag}:
    """)
vCD = 20
sCU = [18, 19, 20, 21, 35]
sCs, sCt = 42, 43
def c_setup():
    t = vT
    srd(rT2, pCim, 640 * 1280)
    if OPT['rpown'] == 'ssm': k.e(f"s_mov_b64 s[{sEx}:{sEx+1}], s[{pCre}:{pCre+1}]")
    else: srd(rT, pCre, 640 * 1280)
    for g in range(5):
        k.e(f"""
        v_add_u32 v{t}, {64*g}, v{vL}
        v_mul_u32_u24 v{t+1}, 3277, v{t}
        v_lshrrev_b32 v{t+1}, 16, v{t+1}
        v_mul_u32_u24 v{t+2}, 20, v{t+1}
        v_sub_u32 v{t+2}, v{t}, v{t+2}
        v_mul_u32_u24 v{t+1}, 1280, v{t+1}
        v_lshl_add_u32 v{vCD+g}, v{t+2}, 4, v{t+1}
        """)
    k.e(f"""
    s_mul_i32 s{sCs}, s{sDT}, {80*1280}
    s_mul_i32 s{sT0}, s{sW}, 320
    s_add_u32 s{sCs}, s{sCs}, s{sT0}
    s_mul_i32 s{sT1}, s{sW}, 5120
    s_add_u32 s{sCU[0]}, s{sT1}, 20480
    s_add_u32 s{sCU[1]}, s{sT1}, 110592
    s_add_u32 s{sCU[2]}, s{sT1}, 57344
    s_add_u32 s{sCU[3]}, s{sT1}, 131072
    s_mov_b32 s{sT0}, 77824
    s_cmp_eq_u32 s{sWR}, 0
    s_cselect_b32 s{sT0}, s{sT0}, 141312
    s_add_u32 s{sCU[4]}, s{sT1}, s{sT0}
    """)
def c_dma(i, rs, tag):
    out = []
    for g in range(5):
        op = lines(f"s_add_u32 s{sCt}, s{sCs}, {i*16*1280}") if g == 0 else []
        out.append(op + lines(f"s_add_u32 m0, s{sCU[i]}, {g*1024}") + [VM(f"buffer_load_dwordx4 v{vCD+g}, s[{rs}:{rs+3}], s{sCt} offen lds", tag, sep=True, ta=80)])
    return out
def c_read(im, B):
    k.e(f"""
    v_mul_u32_u24 v{B[5]}, 320, v{vN}
    v_lshl_add_u32 v{B[2]}, v{vQ}, 4, v{B[5]}
    v_lshrrev_b32 v{B[4]}, 1, v{vQ}
    v_mul_u32_u24 v{B[4]}, 80, v{B[4]}
    v_add_u32 v{B[5]}, v{B[5]}, v{B[4]}
    v_add_u32 v{B[0]}, s{sCU[0]}, v{B[2]}
    v_add_u32 v{B[1]}, s{sCU[1]}, v{B[2]}
    v_add_u32 v{B[2]}, s{sCU[4]}, v{B[2]}
    v_add_u32 v{B[3]}, s{sCU[0]}, v{B[5]}
    v_add_u32 v{B[4]}, s{sCU[1]}, v{B[5]}
    v_add_u32 v{B[5]}, s{sCU[4]}, v{B[5]}
    """)
    where = [(0, 0), (1, 0), (0, 57344 - 20480), (1, 131072 - 110592), (2, 0)]
    for a_ in range(2):
        for wr_ in range(2):
            kind, base = wreg(5*a_ + 2*wr_ + im)
            for i, (b_, o_) in enumerate(where):
                k.ds(f"ds_read_b128 {R(kind, base+4*i, 4)}, v{B[b_]} offset:{o_ + 160*a_ + 80*wr_}", "cr")
    m_ = "0xffff0000" if im else "0x0000ffff"
    k.e(f"s_mov_b32 exec_lo, {m_}\ns_mov_b32 exec_hi, {m_}")
    for a_ in range(2):
        kind, base = wreg(5*a_ + 4)
        for i, (b_, o_) in enumerate(where):
            k.ds(f"ds_read_b128 {R(kind, base+4*i, 4)}, v{B[3+b_]} offset:{o_ + 160*a_ + 64}", "cr")
    k.e("s_mov_b64 exec, -1")

def common_jobs(typ):
    j = {}
    def add(key, items): j[key] = j.get(key, []) + items
    j[0] = nonce_load()
    j[1 if OPT['xr0'] else 3] = rowstat_job(typ)
    vq = [] if OPT['xr0'] else [(0, 1.5, op) for op in xr_loads()]
    if OPT['pf']:
        for bi in OPT['pfb']: add(('pre', bi), [pf(0)])
    if typ == OPT["rpown"]:
        r0, rpst, rpfl = OPT["rp_" + typ]
        assert r0 % 2 == 1
        add(("wait", (r0 - 1) // 2), ["rp4"])
        add(("pre", r0), repack_read(typ))
        for f, bi in zip(repack_store(typ), rpst): add(("pre", bi), [f])
        vq += [OPT["rpd_" + typ] + (op,) for op in repack_dma()]
        a_, b_ = repack_flag()
        d_ = {}
        add(rpfl - 5, a_ + [note(d_, 1)])
        add(("pre", rpfl), [F(lambda: d_[1], 0), b_])
        if typ == "ssm":
            assert OPT.get("c0", 12) > r0 + 2
            add(("pre", r0), lines(f"s_mov_b32 s{rT}, s{sEx}\ns_mov_b32 s{rT+1}, s{sEx+1}\ns_mov_b32 s{rT+2}, {640*1280}"))
    if typ == "ssm":
        vq += [(e_, 99, op) for i, e_ in zip((0, 1, 2, 3, 4), (OPT.get("c0", 12), 15, 17, 17, 17)) for op in c_dma(i, rT, "cre")]
    else:
        add(OPT["tmlp"], touch_c())
        bi = OPT["rf_mlp"]
        RD_ = vT + 4
        add(("pre", bi - 1), [F(lambda: rflag_fetch(RD_), 2, ta=50)])
        def chk():
            k.wait_vm("rfv"); check("rf_" + typ, RFV, RD_)
        j["rfchk"] = chk
        if bi < 20:
            add(("pre", bi), [F(chk, 6)])
            vq += [(bi, 99, op) for tk in range(7) for op in wload(tk)]
    stats_jobs(typ, j)
    if 6 in OPT.get("x", ()) and typ == "mlp":
        for bi in range(20): j[("pre", bi)] = [f for f in j.get(("pre", bi), []) if f.ta != 240]
        k.seen.add(("rps", 4))
    if 3 in OPT.get("x", ()):
        j[3] = [f for f in j[3] if f.cost == 4][:1] if False else j[3][-8:]
        vq = [v for v in vq if v[1] != 1.5]
    return j, vq

TK = vT + 8
SA = 76
def stats_jobs(typ, j):
    nr = 6 if typ == "mlp" else 5
    L_SC, SCW = L_SCS[typ]
    k.e(f"""
    s_mul_i32 s{sT0}, s{sW}, {SCW}
    s_add_u32 s{sT0}, s{sT0}, {L_SC}
    v_lshlrev_b32 v{SA+1}, 4, v{vQ}
    v_add_u32 v{SA}, s{sT0}, v{SA+1}
    v_min_u32 v{SA+2}, 1, v{vN}
    v_mul_u32_u24 v{SA+2}, 0x30000, v{SA+2}
    v_add_u32 v{SA}, v{SA}, v{SA+2}
    s_mul_i32 s{sT0}, s{sWR}, {2*SCW}
    s_add_u32 s{sT0}, s{sT0}, {L_SC}
    v_add_u32 v{SA+1}, s{sT0}, v{SA+1}
    s_lshl_b32 s{sT0}, s{sWC}, 10
    v_lshlrev_b32 v{SA+2}, 6, v{vN}
    v_add_u32 v{SA+2}, s{sT0}, v{SA+2}
    v_lshlrev_b32 v{SA+3}, 3, v0
    """)
    j[OPT.get('rsb', 13)] = j.get(OPT.get('rsb', 13), []) + rowstat_fetch()
    def chk():
        k.wait_vm("rsv")
        check("rs_" + typ, RSV + 4, RSV, 4)
        k.ds(f"ds_write2_b32 v{SA+3}, v{RSV}, v{RSV+2} offset0:{L_TOK//4} offset1:{L_TOK//4+1}")
    j[("pre", 16)] = j.get(("pre", 16), []) + [F(chk, 8)]
    j["tail"] = [DSF(f"ds_read_b128 {V(TK+4*x,4)}, v{SA+2} offset:{L_TOK + x*16}") for x in range(4)]
    j["last"] = [DSF(f"ds_write_b128 v{SA}, {A(aCS+4*i,4)} offset:{i*64}") for i in range(nr)]
def stats(typ):
    nr = 6 if typ == "mlp" else 5
    CS = vT + 24; P2 = 100
    SCW = L_SCS[typ][1]
    k.wait_lg(); k.e("s_barrier")
    for i in range(nr):
        k.ds(f"ds_read_b128 {V(P2+4*i,4)}, v{SA+1} offset:{SCW+i*64}", ("cs", i))
    for i in (0, 1, 2, 4, 5, 3)[:nr + 1]:
        if i < nr: k.ds(f"ds_read_b128 {V(CS+4*i,4)}, v{SA+1} offset:{i*64}", ("cs", i))
    return TK, CS, P2
def stats_sum(typ, CS, P2):
    k.wait_lg()
    for i in range(6 if typ == "mlp" else 5):
        for h in range(2):
            k.e(f"v_pk_add_f32 {V(CS+4*i+2*h,2)}, {V(CS+4*i+2*h,2)}, {V(P2+4*i+2*h,2)}")

class Feeder:
    def __init__(self, jobs, every): self.jobs, self.every, self.n = list(jobs), every, 0
    def tick(self, n=1):
        self.n += n
        while self.n >= self.every and self.jobs:
            self.n -= self.every; run([self.jobs.pop(0)])
    def flush(self):
        while self.jobs: run([self.jobs.pop(0)])

HB = 88 * 4096
def h_base():
    k.e(f"""
    s_mul_i32 s{sH}, s{sMT}, {2*HB}
    s_lshl_b32 s{sT0}, s{sWC}, 11
    s_add_u32 s{sH}, s{sH}, s{sT0}
    s_add_u32 s{sH}, s{sH}, {WS_H}
    s_lshr_b32 s{sT0}, s{sNT}, 1
    s_mul_i32 s{sT0}, s{sT0}, 22
    s_and_b32 s{sT1}, s{sNT}, 1
    """)
HRING = [[("v", 40 + 4*s) for s in range(4)], [("v", 56 + 4*s) for s in range(4)], [("v", 72 + 4*s) for s in range(4)],
         [("a", 100), ("a", 104), ("a", 248), ("a", 252)]]
NR = len(HRING)
SPARE = [168, 172] + [acc(i, j) for i in range(1, 6) for j in (2, 3)]
NE = {"mlp": OPT["ne"], "ssm": 0}
vM26, vRw, vF, vFd, vHs, vNP, XO, LO = 24, 27, 28, 30, 32, 36, 38, 39
RES = 4
def flag_addr():
    k.e(f"""
    s_lshl_b32 s{sT0}, s{sMT}, 4
    s_lshl_b32 s{sT1}, s{sTYP}, 3
    s_add_u32 s{sT0}, s{sT0}, s{sT1}
    s_lshl_b32 s{sT1}, s{sW}, 1
    s_add_u32 s{sT1}, s{sT0}, s{sT1}
    s_lshl_b32 s{sT1}, s{sT1}, 7
    s_lshl_b32 s{sT3}, s{sTYP}, 4
    s_add_u32 s{sT3}, s{sT3}, {WS_HF}
    s_add_u32 s{sT1}, s{sT1}, s{sT3}
    v_bfe_u32 v{vFd}, v{vL}, 2, 1
    v_and_b32 v{vF}, 3, v{vL}
    v_lshlrev_b32 v{vF}, 5, v{vF}
    v_lshl_add_u32 v{vF}, v{vFd}, 7, v{vF}
    v_add_u32 v{vF}, s{sT1}, v{vF}
    v_xor_b32 v{vF+1}, 16, v{vF}
    s_add_u32 s{sT0}, s{sT0}, s{sNT}
    s_lshl_b32 s{sT0}, s{sT0}, 7
    s_lshl_b32 s{sT1}, s{sW}, 5
    s_add_u32 s{sT0}, s{sT0}, s{sT1}
    s_add_u32 s{sLW}, s{sT0}, s{sT3}
    s_xor_b32 s{sLX}, s{sLW}, 16
    v_mov_b32 v{vNP}, s{sNonce}
    v_mov_b32 v{vNP+1}, s{sNonce}
    v_lshlrev_b32 v{vM26}, 26, v{vL}
    """)
    for s in range(4):
        k.e(f"s_xor_b32 s{sT0}, s{sW}, {s}\ns_lshl_b32 s{sT0}, s{sT0}, 10\nv_add_u32 v{vHs+s}, s{sT0}, v{vL16}")
def poll_h(h): return VM(f"buffer_load_dwordx2 {V(vFd,2)}, v{vF+h}, s[{rWS}:{rWS+3}], 0 offen sc1", ("hf", h))
def put_flag(tag, so):
    k.wait_vm(tag)
    k.vmem(f"buffer_store_dwordx2 {V(vNP,2)}, v{vM26}, s[{rWS}:{rWS+3}], s{so} offen sc1", "fl")
def x_loads(X, t):
    k.e(f"""
    s_lshl_b32 s{sT0}, s{sWR}, 6
    s_add_u32 s{sT0}, s{sT0}, s{sWC}
    s_lshl_b32 s{sT1}, s{sHALF}, 1
    s_add_u32 s{sT0}, s{sT0}, s{sT1}
    s_lshl_b32 s{sT1}, s{sMT}, 7
    s_add_u32 s{sT1}, s{sT1}, s{sT0}
    s_mul_i32 s{sX}, s{sT1}, 1280
    s_mul_i32 s{sT1}, s{sDT}, 160
    s_add_u32 s{sX}, s{sX}, s{sT1}
    s_lshl_b32 s{sT0}, s{sT0}, 4
    v_lshrrev_b32 v{t}, 2, v{vL}
    v_and_b32 v{LO}, 3, v{vL}
    v_lshlrev_b32 v{t+1}, 3, v{LO}
    v_mul_u32_u24 v{XO}, 5120, v{t}
    v_add_u32 v{XO}, v{XO}, v{t+1}
    v_lshlrev_b32 v{LO}, 4, v{LO}
    v_mad_u32_u24 v{LO}, v{t}, s{sKs}, v{LO}
    v_lshlrev_b32 v{t}, 6, v{t}
    v_add_u32 v{t}, s{sT0}, v{t}
    """.replace("    v_mad", f"    s_movk_i32 s{sKs}, {RROW}\n    v_mad"))
    for g in range(5): k.vmem(f"buffer_load_dwordx2 {V(X[g],2)}, v{XO}, s[{rX}:{rX+3}], s{sX} offen offset:{32*g}", "ep")
def residual(X, t, U):
    ED, EB, TKv = U, U + 10, U + 20
    k.ds(f"ds_read_b64 {V(TKv,2)}, v{t} offset:{L_TOK}", "tk")
    for reg, o_ in ((ED, 0), (EB, 160)):
        for g in range(5): k.ds(f"ds_read_b64 {V(reg+2*g,2)}, v{t+1} offset:{L_DB + o_ + 32*g}", "tk")
    k.wait_vm("ep"); k.wait_lg()
    for g in range(5):
        xf, df, bf_ = U + 22, U + 26, U + 30
        for src, dst in ((X[g], xf), (ED + 2*g, df), (EB + 2*g, bf_)):
            for h in range(2):
                k.e(f"v_lshlrev_b32 v{dst+2*h}, 16, v{src+h}\nv_and_b32 v{dst+2*h+1}, 0xffff0000, v{src+h}")
        A_ = [RES + 4*g, RES + 4*g + 2]
        def rnd():
            for a in A_: k.e(f"v_cvt_pk_bf16_f32 v{a+1}, v{a}, v{a+1}")
            for a in A_: k.e(f"v_lshlrev_b32 v{a}, 16, v{a+1}\nv_and_b32 v{a+1}, 0xffff0000, v{a+1}")
        for h, a in enumerate(A_): k.e(f"v_pk_add_f32 {V(a,2)}, {V(xf+2*h,2)}, {V(TKv,2)} op_sel:[0,0] op_sel_hi:[1,0] neg_lo:[0,1] neg_hi:[0,1]")
        rnd()
        for h, a in enumerate(A_): k.e(f"v_pk_mul_f32 {V(a,2)}, {V(a,2)}, {V(TKv,2)} op_sel:[0,1] op_sel_hi:[1,1]")
        rnd()
        for h, a in enumerate(A_): k.e(f"v_pk_mul_f32 {V(a,2)}, {V(a,2)}, {V(df+2*h,2)}")
        rnd()
        for h, a in enumerate(A_): k.e(f"v_pk_add_f32 {V(a,2)}, {V(a,2)}, {V(xf+2*h,2)}")
        for h, a in enumerate(A_): k.e(f"v_pk_add_f32 {V(a,2)}, {V(a,2)}, {V(bf_+2*h,2)}")
def residual_fill(t):
    ED = [176, 178, 180, 182, 192]; EB = [194, 196, 198, 208, 210]; TKv = 212
    U = [224, 240]
    out = [DSF(f"ds_read_b64 {V(TKv,2)}, v{t} offset:{L_TOK}", "tk")]
    for reg, o_ in ((ED, 0), (EB, 160)):
        out += [DSF(f"ds_read_b64 {V(reg[g],2)}, v{t+1} offset:{L_DB + o_ + 32*g}", "tk") for g in range(5)]
    run(out)
    out = [F(lambda: k.wait_lg("tk"), 1)]
    def chain(p_):
        x0, x1, t0, t1, d0, d1 = [U[p_ & 1] + x for x in range(6)]
        r0, r1 = RES + 2*p_, RES + 2*p_ + 1
        xi, di, bi = RES + 10 + p_, ED[p_ // 2] + (p_ & 1), EB[p_ // 2] + (p_ & 1)
        rnd = f"v_cvt_pk_bf16_f32 v{t1}, v{t0}, v{t1}\nv_lshlrev_b32 v{t0}, 16, v{t1}\nv_and_b32 v{t1}, 0xffff0000, v{t1}\n"
        return [l.strip() for l in f"""
        v_lshlrev_b32 v{x0}, 16, v{xi}
        v_and_b32 v{x1}, 0xffff0000, v{xi}
        v_sub_f32 v{t0}, v{x0}, v{TKv}
        v_sub_f32 v{t1}, v{x1}, v{TKv}
        {rnd}
        v_mul_f32 v{t0}, v{t0}, v{TKv+1}
        v_mul_f32 v{t1}, v{t1}, v{TKv+1}
        {rnd}
        v_lshlrev_b32 v{d0}, 16, v{di}
        v_and_b32 v{d1}, 0xffff0000, v{di}
        v_mul_f32 v{t0}, v{t0}, v{d0}
        v_mul_f32 v{t1}, v{t1}, v{d1}
        {rnd}
        v_lshlrev_b32 v{d0}, 16, v{bi}
        v_and_b32 v{d1}, 0xffff0000, v{bi}
        v_add_f32 v{t0}, v{x0}, v{t0}
        v_add_f32 v{t1}, v{x1}, v{t1}
        v_add_f32 v{r0}, v{t0}, v{d0}
        v_add_f32 v{r1}, v{t1}, v{d1}
        """.split("\n") if l.strip()]
    txt = []
    for p_ in range(0, 10, 2):
        for a_, b_ in zip(chain(p_), chain(p_ + 1)): txt += [a_, b_]
    return out + lines("\n".join(txt))
def hdest(typ, t):
    e_ = NE[typ]
    return [("v", SPARE[4*t + s]) for s in range(4)] if t < e_ else HRING[(t - e_) % NR]
def hload(typ, t):
    ring = hdest(typ, t); n_ = NK[typ]
    return kaddr(sT3, sHa + 2*(t // n_), t % n_, 4096), [[VM(f"buffer_load_dwordx4 {R(ring[s][0], ring[s][1], 4)}, v{vHs+s}, s[{rWS}:{rWS+3}], s{sT3} offen sc1", ("h", t))] for s in range(4)]
def h_issue(typ, ts):
    out = []
    for t in ts:
        a_, b_ = hload(typ, t); out.append(a_ + b_[0]); out += b_[1:]
    return out

def ones():
    k.e(f"v_mov_b32 v{vT+6}, 0x3f803f80")
    for i in range(4): k.e(f"v_accvgpr_write_b32 a{aONE+i}, v{vT+6}")

t = vT
WOFF["mlp"] = f"""
    v_and_b32 v{t+2}, 2, v{t}
    v_xor_b32 v{t+2}, v{t+1}, v{t+2}
    v_mul_u32_u24 v{t+3}, 3072, v{t}
    v_lshl_add_u32 v{vDW}, v{t+2}, 4, v{t+3}
    v_xor_b32 v{vDW+1}, 64, v{vDW}
    s_mul_i32 s{sB0}, s{sW}, {16*3072}
    s_mul_i32 s{sT0}, s{sNT}, 384
    s_add_u32 s{sB0}, s{sB0}, s{sT0}
    s_add_u32 s{sB2}, s{sB0}, {8*3072}
    s_lshl_b32 s{sLW}, s{sW}, 11
    """
def path_mlp():
    typ = "mlp"; t = vT
    late_common(typ)
    k.e(f"""
    v_lshrrev_b32 v{t}, 2, v{vN}
    v_lshl_add_u32 v{t+1}, v{vQ}, 3, v{t}
    v_lshlrev_b32 v{t+1}, 7, v{t+1}
    v_and_b32 v{t+2}, 3, v{vN}
    v_lshl_add_u32 v{t+1}, v{t+2}, 3, v{t+1}
    v_lshrrev_b32 v{t}, 1, v{t}
    v_and_b32 v{t+2}, 1, v{vQ}
    v_lshl_add_u32 v{t}, v{t+2}, 1, v{t}
    s_lshl_b32 s{sT0}, s{sKs}, 12
    s_add_u32 s{sT0}, s{sT0}, {L_W}
    v_add_u32 v{t+1}, s{sT0}, v{t+1}
    s_mul_i32 s{sT2}, s{sWR}, 6
    """)
    for i in range(4):
        k.e(f"""
        s_add_u32 s{sT3}, s{sT2}, {i}
        s_lshr_b32 s{sT0}, s{sT3}, 2
        s_lshl_b32 s{sT0}, s{sT0}, 13
        s_and_b32 s{sT3}, s{sT3}, 3
        v_xor_b32 v{t+2}, s{sT3}, v{t}
        v_lshl_add_u32 v{t+2}, v{t+2}, 5, v{t+1}
        v_add_u32 v{vWA+i}, s{sT0}, v{t+2}
        v_xor_b32 v{vWA+4+i}, 4096, v{vWA+i}
        """)
    Kc = 2 * 0.7978845608028654 * 1.4426950408889634
    k.e(f"s_mov_b32 s{sK}, {hx(-Kc*0.044715)}\ns_mov_b32 s{sK+1}, {hx(-Kc)}")
    ones()
    xr_setup()
    if OPT['rpown'] == typ: repack_setup(typ)
    small_loads(typ)
    touch_setup()
    p2_addr(typ)
    stamp(14)
    jobs, vq = common_jobs(typ)
    k.e(f"s_mul_i32 s{sT0}, s{sWR}, 192\nv_lshlrev_b32 v{t+3}, 3, v{vQ}\nv_add_u32 v{t+3}, s{sT0}, v{t+3}")
    jobs["tail"] += [DSF(f"ds_read_b64 {V(vB1+2*i,2)}, v{t+3} offset:{L_B1 + 32*i}") for i in range(6)]
    left = main_loop(typ, jobs, vq, [])
    TK, CS, P2 = stats(typ)
    stamp()
    if OPT["rf_mlp"] >= 20:
        if OPT["rf_mlp"] == 20: jobs["rfchk"]()
        left = [op for tk in range(7) for op in wload(tk)]
    pend = [(6 - (len(left) - 1 - x) // 5, op) for x, op in enumerate(left)] + [(tk, op) for tk in range(7, NK[typ]) for op in wload(tk)]
    if 5 in OPT.get("x", ()):
        pend = []; k.seen.update(("w", x) for x in range(12))
    ne = OPT.get("ne_mlp", 0)
    fd = Feeder([op for _, op in pend[:ne]], 29 * 12 // max(1, ne))
    pend = pend[ne:]
    h_base()
    k.e(f"""
    s_mul_i32 s{sT1}, s{sT1}, 6
    s_add_u32 s{sT0}, s{sT0}, s{sT1}
    s_mul_i32 s{sT1}, s{sWR}, 3
    s_add_u32 s{sT0}, s{sT0}, s{sT1}
    s_lshl_b32 s{sT0}, s{sT0}, 12
    s_add_u32 s{sH}, s{sH}, s{sT0}
    """)
    stats_sum(typ, CS, P2)
    B = 100
    for i in range(6):
        for h in range(2):
            k.e(f"v_lshlrev_b32 v{B+4*i+2*h}, 16, v{vB1+2*i+h}\nv_and_b32 v{B+4*i+2*h+1}, 0xffff0000, v{vB1+2*i+h}")
    TM = 124
    OUT = [88, 92]
    XT = 96
    assert OPT["rf_mlp"] <= 20
    flag_addr()
    x_loads([RES + 10 + 2*g for g in range(5)], XT)
    k.e(f"s_add_u32 s{sB0}, s{sH}, {HB}")
    n_ = 0
    for hf, u, j in [(hf, u, 2*hf + jj) for hf in (1, 0) for u in range(3) for jj in range(2)]:
        if True:
            o = OUT[n_ & 1]; n_ += 1
            if n_ == OPT["fa"]: put_flag(("h", 1), sLW)
            if n_ == OPT["fa"] + 1 and NE[typ]: poll_h(0)()
            if n_ == 11 and NE[typ]:
                fd.flush()
                k.wait_vm(("hf", 0)); check("hm" + typ, vF, vFd)
                fd = Feeder(h_issue(typ, range(NE[typ])), 5)
            k.raw(".p2align 3")
            prs = [(2*u + ii, h) for ii in range(2) for h in range(2)]
            Z = [acc(i, j) + 2*h for i, h in prs]
            T1 = [TM + 2*x for x in range(4)]; T2 = [TM + 8 + 2*x for x in range(4)]
            for x, (i, h) in enumerate(prs):
                k.e(f"v_pk_fma_f32 {V(T1[x],2)}, {V(CS+4*i+2*h,2)}, {V(TK+4*j+2,2)}, {V(B+4*i+2*h,2)} op_sel:[0,1,0] op_sel_hi:[1,1,1] neg_lo:[0,1,0] neg_hi:[0,1,0]")
            for x in range(4):
                k.e(f"v_pk_fma_f32 {V(Z[x],2)}, {V(Z[x],2)}, {V(TK+4*j+2,2)}, {V(T1[x],2)} op_sel:[0,0,0] op_sel_hi:[1,0,1]")
            fd.tick(12)
            for x in range(4): k.e(f"v_pk_mul_f32 {V(T1[x],2)}, {V(Z[x],2)}, {V(Z[x],2)}")
            for x in range(4): k.e(f"v_pk_fma_f32 {V(T1[x],2)}, {V(T1[x],2)}, s[{sK}:{sK+1}], s[{sK}:{sK+1}] op_sel:[0,0,1] op_sel_hi:[1,0,1]")
            for x in range(4): k.e(f"v_pk_mul_f32 {V(T1[x],2)}, {V(T1[x],2)}, {V(Z[x],2)}")
            for x in range(4): k.e(f"v_exp_f32 v{T2[x]}, v{T1[x]}\nv_exp_f32 v{T2[x]+1}, v{T1[x]+1}")
            fd.tick(12)
            for x in range(4): k.e(f"v_pk_add_f32 {V(T2[x],2)}, {V(T2[x],2)}, 1.0 op_sel_hi:[1,0]")
            for x in range(4): k.e(f"v_rcp_f32 v{T2[x]}, v{T2[x]}\nv_rcp_f32 v{T2[x]+1}, v{T2[x]+1}")
            if n_ < 12: fd.tick(12)
            for x in range(4): k.e(f"v_pk_mul_f32 {V(Z[x],2)}, {V(Z[x],2)}, {V(T2[x],2)}")
            for x in range(4): k.e(f"v_cvt_pk_bf16_f32 v{o+x}, v{Z[x]}, v{Z[x]+1}")
            if n_ == 12: fd.flush()
            so = sB0 if hf else sH
            k.vmem(f"buffer_store_dwordx4 {V(o,4)}, v{vL16}, s[{rWS}:{rWS+3}], s{so} offen offset:{(j & 1)*1024} sc1", ("h", hf))
            if j & 1 and u < 2: k.e(f"s_add_u32 s{so}, s{so}, 4096")
    stamp()
    res = residual_fill(XT)
    if not NE[typ]:
        run([op for _, op in pend[:OPT["post0"]]]); pend = pend[OPT["post0"]:]
        put_flag(("h", 0), sLX)
        poll_h(0)()
        run([op for _, op in pend[:OPT["post1"]]]); pend = pend[OPT["post1"]:]
        stamp(7)
        k.wait_vm(("hf", 0)); check("hm" + typ, vF, vFd)
        stamp(8)
        run(h_issue(typ, range(NR)))
        phase2(typ, pend, [], res, None, -1)
        return
    run(h_issue(typ, range(NE[typ], NE[typ] + OPT["hpre"])))
    stamp(8)
    phase2(typ, pend, h_issue(typ, range(NE[typ] + OPT["hpre"], NE[typ] + NR)), res, ("h", 0), 3)

def cmul_acc(d, a, b, c):
    k.e(f"v_pk_fma_f32 {V(d,2)}, {V(a,2)}, {V(b,2)}, {V(c,2)} op_sel:[0,0,0] op_sel_hi:[1,0,1]")
    k.e(f"v_pk_fma_f32 {V(d,2)}, {V(a,2)}, {V(b,2)}, {V(d,2)} op_sel:[1,1,0] op_sel_hi:[0,1,1] neg_lo:[0,1,0]")

PR = 100
def masked(m, ins):
    def f():
        k.e(f"s_mov_b32 exec_lo, {m}\ns_mov_b32 exec_hi, {m}"); k.ds(ins); k.e("s_mov_b64 exec, -1")
    return F(f, 4, ds=True)
def power(KK, al, be, t):
    x, y, c_, s_ = t+10, t+11, t+12, t+13
    return lines(f"""
    v_mul_f32 v{y}, v{KK}, v{be}
    v_mul_f32 v{x}, v{KK}, v{al}
    v_fract_f32 v{y}, v{y}
    v_cos_f32 v{c_}, v{y}
    v_sin_f32 v{s_}, v{y}
    v_exp_f32 v{x}, v{x}
    s_nop 0
    v_mul_f32 v{t+14}, v{x}, v{c_}
    v_mul_f32 v{t+15}, v{x}, v{s_}
    """)
def table_a():
    t = 80; CH_ = vB1 + 10
    lr, li, dt, al, be, KK, AD = PR, PR+1, PR+2, t+8, t+9, t, t+1
    x, y, c_, s_ = t+10, t+11, t+12, t+13
    LOG2E = 1.4426950408889634
    fl = lines(f"""
    v_lshlrev_b32 v{dt}, 16, v{dt}
    v_lshlrev_b32 v{lr}, 16, v{lr}
    v_mul_f32 v{dt}, {hx(LOG2E)}, v{dt}
    v_exp_f32 v{dt}, v{dt}
    v_lshlrev_b32 v{li}, 16, v{li}
    {bfr(dt, dt)}
    v_mul_f32 v{al}, v{dt}, v{lr}
    v_mul_f32 v{be}, v{dt}, v{li}
    v_mul_f32 v{al}, {hx(LOG2E)}, v{al}
    v_mul_f32 v{be}, 0.15915494, v{be}
    v_lshlrev_b32 v{KK}, 6, v{CH_+1}
    v_max_u32 v{KK}, 1, v{KK}
    v_cvt_f32_u32 v{KK}, v{KK}
    v_lshlrev_b32 v{AD}, 3, v{CH_}
    """)
    fl.append(DSF(f"ds_write_b64 v{AD}, {V(al,2)} offset:{L_EX}"))
    fl.append(note(mk, 'ab'))
    fl += power(KK, al, be, t)
    fl += lines(f"""
    v_lshlrev_b32 v{AD}, 3, v{CH_+1}
    v_min_u32 v{x}, 1, v{CH_+1}
    v_mad_u32_u24 v{AD}, v{x}, 40, v{AD}
    v_lshl_add_u32 v{AD}, v{CH_}, 6, v{AD}
    """)
    fl.append(DSF(f"ds_write_b64 v{AD}, {V(t+14,2)} offset:{L_CH}"))
    fl += lines(f"""
    v_mul_f32 v{y}, v{lr}, v{lr}
    v_add_f32 v{x}, -1.0, v{t+14}
    v_fma_f32 v{y}, v{li}, v{li}, v{y}
    v_rcp_f32 v{y}, v{y}
    v_mul_f32 v{c_}, v{x}, v{lr}
    v_fma_f32 v{c_}, v{t+15}, v{li}, v{c_}
    v_mul_f32 v{s_}, v{t+15}, v{lr}
    v_fma_f32 v{s_}, -v{x}, v{li}, v{s_}
    v_add_f32 v{y}, v{y}, v{y}
    v_mul_f32 v{t+16}, v{c_}, v{y}
    v_mul_f32 v{t+17}, v{s_}, v{y}
    """)
    fl += lines(f"v_min_u32 v{x}, 1, v{CH_+1}\nv_mul_u32_u24 v{x}, 0x30000, v{x}\nv_add_u32 v{AD}, v{AD}, v{x}")
    fl.append(DSF(f"ds_write_b64 v{AD}, {V(t+16,2)} offset:{L_CH + 8}"))
    return fl
def table_rd():
    t = 80
    return [DSF(f"ds_read_b64 {V(PR+4+2*u,2)}, v{t+3} offset:{L_EX + u*128}") for u in range(5)]
def table_b():
    t = 80
    K1, APW, R1 = t+7, t+4, t+5
    k.e(f"""
    v_lshrrev_b32 v{t+2}, 4, v0
    v_lshlrev_b32 v{t+3}, 3, v{t+2}
    v_lshlrev_b32 v{K1}, 2, v{vN}
    v_cvt_f32_u32 v{K1}, v{K1}
    v_lshlrev_b32 v{APW}, 7, v{t+2}
    v_lshl_add_u32 v{APW}, v{vN}, 3, v{APW}
    v_ffbl_b32 v{R1}, v{vN}
    v_lshlrev_b32 v{R1}, 3, v{R1}
    v_lshl_add_u32 v{R1}, v{t+2}, 6, v{R1}
    v_bcnt_u32_b32 v{t+6}, v{vN}, -1
    v_min_u32 v{t+6}, 1, v{t+6}
    v_mul_u32_u24 v{t+6}, 0x30000, v{t+6}
    v_add_u32 v{R1}, v{R1}, v{t+6}
    """)
    fl = []
    for u in range(5):
        fl += power(K1, PR+4+2*u, PR+5+2*u, t)
        fl.append(DSF(f"ds_write_b64 v{APW}, {V(t+14,2)} offset:{L_PW + u*2048}"))
        fl.append(DSF(f"ds_write_b64 v{R1}, {V(t+14,2)} offset:{L_CH + 16 + u*1024}"))
    return fl

WOFF["ssm"] = f"""
    v_and_b32 v{t+2}, 6, v{t}
    v_or_b32 v{t+3}, s{sWC}, v{t+2}
    v_xor_b32 v{t+1}, v{t+1}, v{t+3}
    v_lshlrev_b32 v{t+1}, 4, v{t+1}
    v_and_b32 v{t+3}, 1, v{t}
    v_lshl_add_u32 v{t+2}, v{t+2}, 2, v{t+3}
    v_mul_u32_u24 v{t+2}, 1280, v{t+2}
    v_add_u32 v{vDW}, v{t+2}, v{t+1}
    v_add_u32 v{t+2}, 32, v{t}
    v_mul_u32_u24 v{t+2}, 1280, v{t+2}
    v_add_u32 v{vDW+1}, v{t+2}, v{t+1}
    s_mul_i32 s{sT0}, s{sNT}, 80
    s_mul_i32 s{sT1}, s{sWR}, 40
    s_add_u32 s{sT0}, s{sT0}, s{sT1}
    s_mul_i32 s{sB0}, s{sT0}, 1280
    s_add_u32 s{sB2}, s{sB0}, 5120
    s_mul_i32 s{sLW}, s{sWR}, 10240
    s_lshl_b32 s{sT0}, s{sWC}, 10
    s_add_u32 s{sLW}, s{sLW}, s{sT0}
    """
def path_ssm():
    typ = "ssm"; t = vT
    late_common(typ)
    k.e(f"""
    v_and_b32 v{t+1}, 1, v{vN}
    v_lshrrev_b32 v{t+2}, 2, v{vN}
    v_lshl_add_u32 v{t+2}, v{t+2}, 1, v{t+1}
    v_xor_b32 v{t}, v{t+4}, v{t+2}
    v_lshlrev_b32 v{t}, 4, v{t}
    v_lshl_add_u32 v{t}, v{t+1}, 10, v{t}
    v_lshrrev_b32 v{t+2}, 1, v{vN}
    v_lshl_add_u32 v{t}, v{t+2}, 7, v{t}
    s_mul_i32 s{sT0}, s{sWR}, 10240
    s_add_u32 s{sT0}, s{sT0}, {L_W}
    v_add_u32 v{vWA}, s{sT0}, v{t}
    v_xor_b32 v{vWA+1}, 64, v{vWA}
    """)
    ones()
    xr_setup()
    k.e(f"""
    v_mul_u32_u24 v{vB1+11}, 820, v0
    v_lshrrev_b32 v{vB1+11}, 16, v{vB1+11}
    v_min_u32 v{vB1+11}, 2, v{vB1+11}
    v_mul_u32_u24 v{t+1}, 80, v{vB1+11}
    v_sub_u32 v{vB1+10}, v0, v{t+1}
    v_min_u32 v{vB1+10}, 79, v{vB1+10}
    s_mul_i32 s{sT0}, s{sNT}, 160
    v_lshlrev_b32 v{t+1}, 1, v{vB1+10}
    s_mov_b32 s{rT+2}, 1280
    s_mov_b32 s{rT+3}, 0x20000
    """)
    for pi, ptr in enumerate((pLre, pLim, pLdt)):
        k.e(f"s_mov_b32 s{rT}, s{ptr}\ns_mov_b32 s{rT+1}, s{ptr+1}")
        k.vmem(f"buffer_load_ushort v{PR+pi}, v{t+1}, s[{rT}:{rT+3}], s{sT0} offen", "par")
    if OPT['rpown'] == typ: repack_setup(typ)
    small_loads(typ)
    c_setup()
    p2_addr(typ)
    stamp(14)
    jobs, vq = common_jobs(typ)
    jobs[("wait", 0)] = ["par"]
    tj = table_a() + [gate(lambda: curblk[0] % 2 == 1 and curblk[0] > mk['ab'])] + table_rd() + [note(mk, 'rd'), gate(lambda: curblk[0] > mk['rd'])] + table_b()
    vC0, vC1, vP0, vP1, vE0, vE1, vGc, vGr, vPub = vB1, vB1+1, vB1+2, vB1+3, vB1+4, vB1+5, vB1+6, vB1+7, vB1+8
    CH_, WH_ = vB1 + 10, vB1 + 11
    vG = 114
    sVal = [28, 30, 36, 38, 40]
    u_ = 96
    ad = lines(f"""
    s_mul_i32 s{sT0}, s{sWR}, 40
    v_lshlrev_b32 v{u_}, 3, v{vQ}
    v_add_u32 v{u_}, s{sT0}, v{u_}
    v_lshlrev_b32 v{u_+1}, 1, v{vQ}
    v_add_u32 v{u_+1}, s{sT0}, v{u_+1}
    v_add_u32 v{u_+1}, 32, v{u_+1}
    v_lshlrev_b32 v{vC0}, 6, v{u_}
    v_lshlrev_b32 v{vC1}, 6, v{u_+1}
    v_lshlrev_b32 v{u_+2}, 3, v{vN}
    v_lshl_add_u32 v{vP0}, v{u_}, 7, v{u_+2}
    v_lshl_add_u32 v{vP1}, v{u_+1}, 7, v{u_+2}
    s_mul_i32 s{sT0}, s{sWC}, 640
    v_lshlrev_b32 v{vE0}, 3, v{u_}
    v_lshlrev_b32 v{vE1}, 3, v{u_+1}
    v_add_u32 v{vE0}, s{sT0}, v{vE0}
    v_add_u32 v{vE1}, s{sT0}, v{vE1}
    v_sub_u32 v{u_+2}, 15, v{vN}
    v_min_u32 v{u_+2}, 1, v{u_+2}
    v_mul_u32_u24 v{u_+2}, 0x30000, v{u_+2}
    v_add_u32 v{vB1+9}, v{u_+2}, v{vE0}
    v_add_u32 v119, v{u_+2}, v{vE1}
    v_lshlrev_b32 v{vGc}, 3, v{CH_}
    v_lshlrev_b32 v{vGr}, 6, v{CH_}
    v_lshlrev_b32 v{u_}, 4, v{CH_}
    v_lshl_add_u32 v{vPub}, v{WH_}, 26, v{u_}
    v_mul_u32_u24 v{u_+2}, 5, v{WH_}
    v_sub_u32 v{u_+2}, s{sMT}, v{u_+2}
    """)
    for i in range(5):
        ad += lines(f"""
        v_add_u32 v{u_+2}, -1, v{u_+2}
        v_mul_i32_i24 v{vG+i}, 1280, v{u_+2}
        v_cmp_le_i32 s[{sVal[i]}:{sVal[i]+1}], 0, v{u_+2}
        v_add_u32 v{vG+i}, v{vG+i}, v{u_}
        v_min_u32 v{vG+i}, {OOB}, v{vG+i}
        """)
    for f in ad: f()
    stamp(61)
    tj = tj + lines(f"""
    s_mul_i32 s{sHw}, s{sNT}, {16*1280}
    s_add_u32 s{sHw}, s{sHw}, {WS_E}
    s_mul_i32 s{sH}, s{sMT}, 1280
    s_add_u32 s{sH}, s{sH}, s{sHw}
    """)
    if OPT.get('lv', 9) < 2: tj = []
    left = main_loop(typ, jobs, vq, tj)
    vG2 = 8
    for i in range(6): k.e(f"v_mov_b32 v{vG2+i}, v{vG+i}")
    TK, CS, P2 = stats(typ)
    stamp()
    fd = Feeder(left, 200 // max(1, len(left)))
    wd = [op for i in range(5) for op in c_dma(i, rT2, "cim")]; e1 = 0; ew = 25
    if 4 in OPT.get("x", ()): wd = wd[:1]; ew = 1
    slots = [(i, h) for i in range(5) for h in range(2)]
    def rec(i, h): return (vC0, L_CH + (2*i + h)*64) if i < 4 else (vC1, L_CH + h*64)
    LC = 100
    stats_sum(typ, CS, P2)
    for x, (i, h) in enumerate(slots):
        a_, o_ = rec(i, h); k.ds(f"ds_read_b128 {V(LC+4*x,4)}, v{a_} offset:{o_}", ("lc", x))
    k.raw(".p2align 3")
    for x, (i, h) in enumerate(slots):
        fd.tick(8)
        for j in range(4):
            z = acc(i, j) + 2*h
            k.e(f"v_pk_fma_f32 {V(z,2)}, {V(CS+4*i+2*h,2)}, {V(TK+4*j,2)}, {V(z,2)} op_sel:[0,0,0] op_sel_hi:[1,0,1] neg_lo:[0,1,0] neg_hi:[0,1,0]")
        for j in range(4):
            z = acc(i, j) + 2*h
            k.e(f"v_pk_mul_f32 {V(z,2)}, {V(z,2)}, {V(TK+4*j,2)} op_sel:[0,1] op_sel_hi:[1,1]")
    EE = 140; TMP = 88
    MU = [t, t + 20]
    def load_mu(st):
        for x, (i, h) in enumerate(slots):
            a_, o_ = rec(i, h); k.ds(f"ds_read_b64 {V(MU[st & 1]+2*x,2)}, v{a_} offset:{o_ + 16 + 8*st}", ("mu", st))
    k.wait_lg()
    load_mu(0); load_mu(1)
    def ereg(x): return EE + 2*x
    def treg(x): return (240 + 2*x) if x < 8 else (TMP + 2*(x - 8))
    k.raw(".p2align 3")
    for x, (i, h) in enumerate(slots): cmul_acc(ereg(x), acc(i,0)+2*h, LC+4*x, acc(i,1)+2*h)
    fd.tick(20)
    for x, (i, h) in enumerate(slots): cmul_acc(treg(x), ereg(x), LC+4*x, acc(i,2)+2*h)
    fd.tick(20)
    for x, (i, h) in enumerate(slots): cmul_acc(ereg(x), treg(x), LC+4*x, acc(i,3)+2*h)
    PWv = t
    for st, sh in enumerate((1, 2, 4, 8)):
        fd.tick(20)
        k.raw(".p2align 3")
        for x in range(10):
            k.e(f"v_mov_b32_dpp v{treg(x)}, v{ereg(x)} row_shr:{sh} row_mask:0xf bank_mask:0xf bound_ctrl:0")
            k.e(f"v_mov_b32_dpp v{treg(x)+1}, v{ereg(x)+1} row_shr:{sh} row_mask:0xf bank_mask:0xf bound_ctrl:0")
        fd.tick(20)
        k.wait_lg(("mu", st))
        k.raw(".p2align 3")
        for x in range(10): cmul_acc(ereg(x), treg(x), MU[st & 1]+2*x, ereg(x))
        if st < 2: load_mu(st + 2)
        if st == 2:
            for x, (i, h) in enumerate(slots):
                k.ds(f"ds_read_b64 {V(PWv+2*x,2)}, v{vP0 if i < 4 else vP1} offset:{L_PW + ((2*i+h)*128 if i < 4 else h*128)}", "pw")
    for i in range(5):
        k.ds(f"ds_write_b128 v{vB1+9 if i < 4 else 13}, {V(EE+4*i,4)} offset:{L_EX + (16*i if i < 4 else 0)}")
    ch = t + 20
    E0, E1, LL, ET, GA = ch, ch+2, ch+4, ch+8, 14
    GA = [ch+8, ch+12, ch+16, ch+20, ch+24]
    k.ds(f"ds_read_b128 {V(LL,4)}, v{vGr} offset:{L_CH+48}", "e")
    k.e(f"v_mov_b32 v{ET+1}, s{sNonce}\nv_mov_b32 v{ET+3}, s{sNonce}")
    fd.flush()
    k.wait_lg()
    k.e("s_barrier")
    k.ds(f"ds_read_b64 {V(E0,2)}, v{vGc} offset:{L_EX}", "e")
    k.ds(f"ds_read_b64 {V(E1,2)}, v{vGc} offset:{L_EX+640}", "e")
    k.wait_lg()
    cmul_acc(E1, E0, LL, E1)
    k.e(f"v_mov_b32 v{ET}, v{E1}\nv_mov_b32 v{ET+2}, v{E1+1}")
    k.vmem(f"buffer_store_dwordx4 {V(ET,4)}, v{vPub}, s[{rWS}:{rWS+3}], s{sH} offen sc1", "e")
    stamp()
    def gather(track):
        for i in range(5):
            tx = f"buffer_load_dwordx4 {V(GA[i],4)}, v{vG2+i}, s[{rWS}:{rWS+3}], s{sHw} offen sc1"
            k.vmem(tx, "ga") if track else k.e(tx)
    k.e("s_nop 1")
    k.wait_vm("cre")
    if OPT["gpos"] == 0: gather(True)
    c_read(0, [4, 5, 6, 7, 92, 93])
    fd = Feeder(wd[e1:e1 + ew], 1)
    per = ew / (13.0 - OPT['wskip2'])
    done = [0.0]
    cnt = [0]
    def tk_():
        cnt[0] += 1
        if cnt[0] == OPT["gpos"]: gather(True)
        if cnt[0] <= OPT["wskip2"]: return
        if cnt[0] == OPT["wskip2"] + 1: k.wait_lg()
        done[0] += per; n_ = int(done[0]); done[0] -= n_; fd.tick(n_); k.raw(".p2align 3")
    WT, W2 = 14, 16
    for x in range(10):
        k.e(f"v_mov_b32_dpp v{treg(x)}, v{ereg(x)} row_shr:1 row_mask:0xf bank_mask:0xf bound_ctrl:0")
        k.e(f"v_mov_b32_dpp v{treg(x)+1}, v{ereg(x)+1} row_shr:1 row_mask:0xf bank_mask:0xf bound_ctrl:0")
    def cmul(d, a, b, tmp):
        k.e(f"v_pk_mul_f32 {V(tmp,2)}, {V(a,2)}, {V(b,2)} op_sel:[0,0] op_sel_hi:[1,0]")
        k.e(f"v_pk_fma_f32 {V(d,2)}, {V(a,2)}, {V(b,2)}, {V(tmp,2)} op_sel:[1,1,0] op_sel_hi:[0,1,1] neg_lo:[0,1,0]")
    tk_()
    for x in range(10): cmul(treg(x), treg(x), LC+4*x+2, ereg(x))
    tk_()
    for x in range(10): cmul(PWv+2*x, PWv+2*x, LC+4*x+2, ereg(x))
    for x, (i, h) in enumerate(slots):
        tk_()
        for j in range(4): cmul(acc(i,j)+2*h, acc(i,j)+2*h, LC+4*x+2, EE+2*j)
    tk_()
    cmul(WT, LL+2, LL+2, W2); cmul(WT, WT, WT, W2); cmul(WT, WT, LL+2, W2); cmul(W2+2, WT, WT, W2)
    k.e(f"""
    v_cmp_eq_u32 vcc, 2, v{WH_}
    v_mov_b32 v{W2}, 1.0
    v_mov_b32 v{W2+1}, 0
    v_cndmask_b32 v{WT}, v{WT}, v{W2+2}, vcc
    v_cndmask_b32 v{WT+1}, v{WT+1}, v{W2+3}, vcc
    v_cmp_eq_u32 vcc, 0, v{WH_}
    v_mul_u32_u24 v{W2+2}, 640, v{WH_}
    v_add_u32 v{vGc}, v{vGc}, v{W2+2}
    v_cndmask_b32 v{WT}, v{WT}, v{W2}, vcc
    v_cndmask_b32 v{WT+1}, v{WT+1}, v{W2+1}, vcc
    v_cndmask_b32 v{E0}, v{W2+1}, v{E0}, vcc
    v_cndmask_b32 v{E0+1}, v{W2+1}, v{E0+1}, vcc
    s_mul_i32 s{sT0}, s{sWC}, 1280
    v_add_u32 v{vE0}, s{sT0}, v{vE0}
    v_add_u32 v{vE1}, s{sT0}, v{vE1}
    """)
    fd.flush()
    h_base()
    k.e(f"""
    s_mul_i32 s{sT1}, s{sT1}, 5
    s_add_u32 s{sT0}, s{sT0}, s{sT1}
    s_add_u32 s{sT0}, s{sT0}, 12
    s_lshl_b32 s{sT0}, s{sT0}, 12
    s_add_u32 s{sH}, s{sH}, s{sT0}
    s_add_u32 s{sB2}, s{sH}, {4*4096}
    s_lshl_b32 s{sT0}, s{sWR}, 9
    s_add_u32 s{sB2}, s{sB2}, s{sT0}
    v_lshrrev_b32 v27, 1, v{vQ}
    v_lshlrev_b32 v27, 10, v27
    v_and_b32 v98, 31, v{vL}
    v_lshl_add_u32 v27, v98, 4, v27
    s_lshl_b32 s{sT0}, s{sWR}, 13
    s_add_u32 s{sH}, s{sH}, s{sT0}
    s_add_u32 s{sB0}, s{sH}, 4096
    """)
    stamp(60)
    k.wait_vm("ga")
    k.label("L_carry_chk")
    k.e(f"s_mov_b64 s[{sEx}:{sEx+1}], 0")
    for i in range(5):
        k.e(f"""
        v_cmp_ne_u32 vcc, s{sNonce}, v{GA[i]+1}
        v_cmp_ne_u32 s[{sT0}:{sT1}], s{sNonce}, v{GA[i]+3}
        s_or_b64 vcc, vcc, s[{sT0}:{sT1}]
        s_and_b64 vcc, vcc, s[{sVal[i]}:{sVal[i]+1}]
        s_or_b64 s[{sEx}:{sEx+1}], s[{sEx}:{sEx+1}], vcc
        """)
    k.e(f"""
    s_cmp_eq_u64 s[{sEx}:{sEx+1}], 0
    s_cbranch_scc1 L_carry_done
    s_sub_u32 s{sSpin}, s{sSpin}, 1
    s_cbranch_scc1 L_end
    """)
    gather(False)
    k.e("s_waitcnt vmcnt(0)\ns_branch L_carry_chk")
    k.label("L_carry_done")
    stamp()
    for i in range(5): k.e(f"v_mov_b32 v{GA[i]+1}, v{GA[i]+2}")
    for i in (3, 2, 1, 0): cmul_acc(GA[i], GA[i+1], LL+2, GA[i])
    cmul(GA[0], GA[0], WT, W2)
    cmul_acc(E0, GA[0], LL, E0)
    k.ds(f"ds_write_b64 v{vGc}, {V(GA[0],2)} offset:{L_PW}")
    k.ds(f"ds_write_b64 v{vGc}, {V(E0,2)} offset:{L_PW + 1920}")
    k.wait_lg()
    k.e("s_barrier")
    XS_ = [80, 82, 84, 86, 92]; XT = 94
    x_loads(XS_, XT)
    PB = [EE, ch, 4]
    for i in range(5):
        for g in range(3):
            k.ds(f"ds_read_b128 {V(PB[g]+4*i,4)}, v{vE0 if i < 4 else vE1} offset:{L_PW + 640*g + (16*i if i < 4 else 0)}", ("pb", i))
    k.raw(".p2align 3")
    for x in range(10):
        if x % 2 == 0: k.wait_lg(("pb", x // 2)); k.raw(".p2align 3")
        k.e(f"v_pk_add_f32 {V(ereg(x),2)}, {V(ereg(x),2)}, {V(PB[1]+2*x,2)}")
        k.e(f"v_pk_add_f32 {V(ereg(x),2)}, {V(ereg(x),2)}, {V(PB[2]+2*x,2)}")
        cmul_acc(treg(x), ereg(x), PWv+2*x, treg(x))
    held = []
    for hf in range(2):
        OA = [(60, 64), (68, 72)] if hf == 0 else [(40, 44), (48, 52)]
        OE = 76 if hf == 0 else 56
        for jj in range(2):
            j = 2*hf + jj
            k.raw(".p2align 3")
            for x, (i, h) in enumerate(slots):
                prev = treg(x) if j == 0 else acc(i, j-1) + 2*h
                cmul_acc(acc(i,j)+2*h, prev, LC+4*x, acc(i,j)+2*h)
            oa, ob = OA[jj]
            for i in range(4): k.e(f"v_cvt_pk_bf16_f32 v{oa+i}, v{acc(i,j)}, v{acc(i,j)+2}")
            for i in range(4): k.e(f"v_cvt_pk_bf16_f32 v{ob+i}, -v{acc(i,j)+1}, -v{acc(i,j)+3}")
            k.e(f"v_cvt_pk_bf16_f32 v{OE+2*jj}, v{acc(4,j)}, v{acc(4,j)+2}")
            k.e(f"v_cvt_pk_bf16_f32 v{OE+2*jj+1}, -v{acc(4,j)+1}, -v{acc(4,j)+3}")
            k.vmem(f"buffer_store_dwordx4 {V(oa,4)}, v{vL16}, s[{rWS}:{rWS+3}], s{sH} offen offset:{jj*1024} sc1", ("h", hf))
            k.vmem(f"buffer_store_dwordx4 {V(ob,4)}, v{vL16}, s[{rWS}:{rWS+3}], s{sB0} offen offset:{jj*1024} sc1", ("h", hf))
        k.e(f"""
        s_nop 1
        v_permlane32_swap_b32 v{OE}, v{OE+2}
        v_permlane32_swap_b32 v{OE+1}, v{OE+3}
        s_nop 1
        v_permlane16_swap_b32 v{OE}, v{OE+1}
        v_permlane16_swap_b32 v{OE+2}, v{OE+3}
        """)
        k.vmem(f"buffer_store_dwordx4 {V(OE,4)}, v27, s[{rWS}:{rWS+3}], s{sB2} offen sc1", ("h", hf))
        if hf == 0: k.e(f"s_add_u32 s{sH}, s{sH}, {HB}\ns_add_u32 s{sB0}, s{sB0}, {HB}\ns_add_u32 s{sB2}, s{sB2}, {HB}")
    stamp()
    flag_addr()
    if MV:
        u_ = 156
        k.e(f"""
        v_min_u32 v{u_}, {11 + 4*MV}, v{vL}
        s_lshl_b32 s{sT0}, s{sMT}, 4
        s_lshl_b32 s{sT1}, s{sW}, 1
        s_add_u32 s{sT0}, s{sT0}, s{sT1}
        s_lshl_b32 s{sT0}, s{sT0}, 7
        s_add_u32 s{sT0}, s{sT0}, {WS_HF + 9*128 + 64}
        v_and_b32 v{u_+1}, 1, v{u_}
        v_lshlrev_b32 v{u_+1}, 5, v{u_+1}
        v_and_b32 v{u_+2}, 2, v{u_}
        v_lshl_add_u32 v{u_+1}, v{u_+2}, 3, v{u_+1}
        v_add_u32 v{u_+1}, s{sT0}, v{u_+1}
        v_cmp_gt_u32 vcc, 8, v{u_}
        s_mul_i32 s{sT0}, s{sW}, 24
        s_lshr_b32 s{sT1}, s{sDT}, 2
        v_cndmask_b32 v{vF+1}, v{u_+1}, v{vF+1}, vcc
        s_add_u32 s{sT0}, s{sT0}, s{sT1}
        s_lshl_b32 s{sT0}, s{sT0}, 7
        s_add_u32 s{sT0}, s{sT0}, {WS_RF + 16384 + (12 - MV - 3)*256}
        v_lshrrev_b32 v{u_+1}, 2, v{u_}
        v_lshlrev_b32 v{u_+1}, 8, v{u_+1}
        v_and_b32 v{u_+2}, 3, v{u_}
        v_cmp_gt_u32 vcc, 12, v{u_}
        v_lshl_add_u32 v{u_+1}, v{u_+2}, 4, v{u_+1}
        v_add_u32 v{u_+1}, s{sT0}, v{u_+1}
        v_cndmask_b32 v{vF+1}, v{u_+1}, v{vF+1}, vcc
        """)
    k.wait_vm("cim")
    c_read(1, [150, 151, 152, 153, 154, 155])
    k.seen.update(("w", x) for x in range(10))
    put_flag(("h", 0), sLW)
    if OPT["resfirst"]: residual(XS_, XT, 100)
    put_flag(("h", 1), sLX)
    poll_h(0)()
    if not OPT["resfirst"]: residual(XS_, XT, 100)
    k.e("s_barrier")
    stamp(7)
    k.wait_vm(("hf", 0)); check("hm" + typ, vF, vFd)
    stamp(8)
    run(h_issue(typ, range(NR)))
    phase2(typ, [(tk, op) for tk in range(10, NK[typ]) for op in wload(tk)], [], [], None, -1)

def poll(tag, vaddr, vd):
    k.e(f"""
    L_poll_{tag}:
    buffer_load_dwordx2 {V(vd,2)}, v{vaddr}, s[{rWS}:{rWS+3}], 0 offen sc1
    s_waitcnt vmcnt(0)
    v_cmp_ne_u32 vcc, s{sNonce}, v{vd}
    v_cmp_ne_u32 s[{sT0}:{sT1}], s{sNonce}, v{vd+1}
    s_or_b64 vcc, vcc, s[{sT0}:{sT1}]
    s_cmp_eq_u64 vcc, 0
    s_cbranch_scc1 L_pollok_{tag}
    s_sub_u32 s{sSpin}, s{sSpin}, 1
    s_cbranch_scc1 L_end
    s_sleep 1
    s_branch L_poll_{tag}
    L_pollok_{tag}:
    """)
    k.vm = []

def acc2(p_, i, s): return 96 + 80*p_ + (i*4 + s)*4
def phase2(typ, pend, hrest, res, tagB, tB):
    stamp_n[0] = 10
    n_ = NK[typ]; T = 2*n_
    AD = [88, 89, 90, 91]
    XF = 92
    sXo, sXi, sFo, sTm = sB0, sH, sHw, sLW
    setup = lines(f"""
    v_mul_u32_u24 v{vRw}, {RROW}, v{vN}
    v_lshl_add_u32 v{vRw}, v{vQ}, 4, v{vRw}
    v_add_u32 v{vRw}, s{sWLb}, v{vRw}
    v_lshlrev_b32 v{XO}, 1, v{XO}
    s_lshl_b32 s{sB2}, s{sX}, 1
    s_mov_b32 s{rW}, s{pOut}
    s_mov_b32 s{rW+1}, s{pOut+1}
    s_mov_b32 s{rW+2}, {2048*2560}
    s_mov_b32 s{rW+3}, 0x20000
    s_lshl_b32 s{sXi}, s{sMT}, 3
    s_add_u32 s{sXi}, s{sXi}, s{sDT}
    s_lshl_b32 s{sXi}, s{sXi}, 1
    s_add_u32 s{sXi}, s{sXi}, s{sHALF}
    s_xor_b32 s{sXo}, s{sXi}, 1
    s_lshl_b32 s{sFo}, s{sXo}, 6
    s_lshl_b32 s{sTm}, s{sW}, 4
    s_add_u32 s{sTm}, s{sTm}, {WS_XF}
    s_add_u32 s{sFo}, s{sFo}, s{sTm}
    s_lshl_b32 s{sUnit}, s{sXi}, 6
    s_add_u32 s{sUnit}, s{sUnit}, s{sTm}
    v_mov_b32 v{XF}, s{sUnit}
    s_mul_i32 s{sTm}, s{sW}, 5120
    s_add_u32 s{sTm}, s{sTm}, {WS_XB}
    s_mul_i32 s{sXi}, s{sXi}, 20480
    s_add_u32 s{sXi}, s{sXi}, s{sTm}
    s_mul_i32 s{sXo}, s{sXo}, 20480
    s_add_u32 s{sXo}, s{sXo}, s{sTm}
    s_add_u32 s{sDX}, s{sXi}, 4096
    s_add_u32 s{sDW}, s{sXo}, 4096
    """)
    for s in range(4):
        setup += lines(f"s_xor_b32 s{sTm}, s{sW}, {s}\ns_mul_i32 s{sTm}, s{sTm}, {WLW}\ns_add_u32 s{sTm}, s{sTm}, {L_WL + s*RBLK}\nv_add_u32 v{AD[s]}, s{sTm}, v{LO}")
    def red_w(p_, s): return [DSF(f"ds_write_b128 v{vRw}, {V(acc2(p_,i,s),4)} offset:{s*RBLK + i*64}", "rw") for i in range(5)]
    RD = [96 + 16*g for g in range(5)]
    def red_r(g): return [DSF(f"ds_read_b128 {V(RD[g]+4*s,4)}, v{AD[s]} offset:{64*g}", ("r", g)) for s in range(4)]
    bgq = list(setup) + list(res)
    per = -(-len(pend) // OPT["kw"])
    for t in range(T - 1):
        p_, tk = divmod(t, n_)
        assert not [1 for t_, _ in pend if t_ <= t], (typ, t)
        if OPT.get("fine2"): stamp(14 + 2*t)
        k.wait_vm([("w", tk), ("h", t)])
        if OPT.get("fine2"): stamp(15 + 2*t)
        if t == tB: put_flag(tagB, sLX)
        tchk = n_ - NR - (MV if typ == 'ssm' else 0)
        if t == tchk:
            k.wait_vm(("hf", 1)); check("hb" + typ, vF + 1, vFd)
        wk, wb = wreg(tk); ring = hdest(typ, t)
        m = []
        for s in range(4):
            for i in range(5):
                c = "0" if tk == 0 else V(acc2(p_, i, s), 4)
                m.append(f"v_mfma_f32_16x16x32_bf16 {V(acc2(p_,i,s),4)}, {R(wk, wb+4*i, 4)}, {R(ring[s][0], ring[s][1], 4)}, {c}")
        streams = []
        if NE[typ] <= t and t + NR < T:
            a_, b_ = hload(typ, t + NR)
            streams.append((a_, 0, 2, True))
            for s in range(4): streams.append((b_[s], 5*s + 4, 5*s + 4, True))
        mem = []
        if t == tchk - 2: mem += [poll_h(1)]
        while hrest and len(mem) < 12: mem += flat([hrest.pop(0)])
        for _ in range(per if typ == "mlp" else (4 if t >= tchk else 0)):
            if pend: mem += flat([pend.pop(0)[1]])
        u = t - n_
        if u == -1: must_bg = True
        if u == 0: assert not bgq, len(bgq)
        if u in (0, 1, 2):
            wr_ = sum((red_w(0, s) for s in range(4)), [])
            streams.append((wr_[7*u:7*u + 7], 2, 18 if u < 2 else 14, True))
        if u == 3:
            k.wait_lg(); k.e("s_barrier")
            streams.append((red_r(0) + red_r(1) + red_r(2), 0, 16, True))
        if u == 4: streams.append((red_r(3) + red_r(4), 0, 12, True))
        if u in (4, 5):
            for g in ((0, 1, 2) if u == 4 else (3, 4)):
                bgq += [F(lambda g=g: k.wait_lg(("r", g)), 1)]
                bgq += lines("\n".join(f"v_add_f32 v{RD[g]+x}, v{RD[g]+x}, v{RD[g]+4+x}" for x in range(4)) + "\n" +
                             "\n".join(f"v_add_f32 v{RD[g]+8+x}, v{RD[g]+8+x}, v{RD[g]+12+x}" for x in range(4)) + "\n" +
                             "\n".join(f"v_add_f32 v{RD[g]+x}, v{RD[g]+x}, v{RD[g]+8+x}" for x in range(4)))
                if 1 in OPT.get("x", ()): k.seen.add(("xs", g))
                else: bgq += [VM(f"buffer_store_dwordx4 {V(RD[g],4)}, v{vL16}, s[{rWS}:{rWS+3}], s{sXo if g < 4 else sDW} offen offset:{(g & 3)*1024} sc1", ("xs", g))]
        if u == n_ - 3: k.e("s_barrier")
        if u == (n_ - 2 if OPT['xlate'] else n_ - 4): mem += [VM(f"buffer_load_dwordx2 {V(vFd,2)}, v{XF}, s[{rWS}:{rWS+3}], 0 offen sc1", "xp")]
        if u == n_ - OPT["xfb_" + typ]:
            run(bgq); bgq.clear()
            put_flag(("xs", 4), sFo)
        if u == n_ - 2:
            if not OPT["xlate"]:
                k.wait_vm("xp"); check("x" + typ, XF, vFd)
            k.wait_vm(("h", t + 1))
            wk2, wb2 = wreg(tk + 1); ring2 = hdest(typ, t + 1)
            m2 = [f"v_mfma_f32_16x16x32_bf16 {V(acc2(1,i,s),4)}, {R(wk2, wb2+4*i, 4)}, {R(ring2[s][0], ring2[s][1], 4)}, {V(acc2(1,i,s),4)}" for s in range(4) for i in range(5)]
            m = sum((m[5*s:5*s+5] + m2[5*s:5*s+5] for s in range(4)), [])
            XL = [40 + 4*g for g in range(5)] if OPT["xlate"] else RD
            xl = [VM(f"buffer_load_dwordx4 {V(XL[g],4)}, v{vL16}, s[{rWS}:{rWS+3}], s{sXi if g < 4 else sDX} offen offset:{(g & 3)*1024} sc1", "xl") for g in range(5)]
            if not OPT["xlate"]: mem += xl
            for s in range(3): streams.append((red_w(1, s), 10*s + 13, 10*s + 19, True))
            def addx():
                k.wait_vm("xl")
            if not OPT["xlate"]: streams.append(([F(addx, 1)] + lines("\n".join(f"v_add_f32 v{RES+4*g+x}, v{RES+4*g+x}, v{RD[g]+x}" for g in range(5) for x in range(4))), 26, 39, True))
        streams.append((mem, 1, 18, True))
        streams.append((bgq, 0, 20, False))
        sched(m, streams)
        if u == -1:
            if OPT.get("show"): print("left at the end of pass 1:", len(bgq))
            for f in bgq: f()
            bgq.clear()
    stamp()
    if OPT["xlate"]:
        k.wait_vm("xp"); check("x" + typ, XF, vFd)
        run(xl)
    else: k.e("s_nop 3")
    run(red_w(1, 3))
    k.wait_lg(); k.e("s_barrier")
    for g in range(5): run(red_r(g))
    for g in range(5):
        k.wait_lg(("r", g))
        o = RES + 4*g
        for h in range(2): k.e(f"v_pk_add_f32 {V(RD[g]+2*h,2)}, {V(RD[g]+2*h,2)}, {V(RD[g]+4+2*h,2)}")
        for h in range(2): k.e(f"v_pk_add_f32 {V(RD[g]+8+2*h,2)}, {V(RD[g]+8+2*h,2)}, {V(RD[g]+12+2*h,2)}")
        for h in range(2): k.e(f"v_pk_add_f32 {V(o+2*h,2)}, {V(o+2*h,2)}, {V(RD[g]+2*h,2)}")
        for h in range(2): k.e(f"v_pk_add_f32 {V(o+2*h,2)}, {V(o+2*h,2)}, {V(RD[g]+8+2*h,2)}")
    for g in range(5):
        o = RES + 4*g
        if OPT["xlate"]:
            if g == 0: k.wait_vm("xl")
            for h in range(2): k.e(f"v_pk_add_f32 {V(o+2*h,2)}, {V(o+2*h,2)}, {V(XL[g]+2*h,2)}")
        k.vmem(f"buffer_store_dwordx4 {V(o,4)}, v{XO}, s[{rW}:{rW+3}], s{sB2} offen offset:{64*g} {OPT.get('ost', '')}", "o")
    if OPT.get("spin"):
        ins, n_ = OPT["spin"]
        k.e(f"""
        s_waitcnt vmcnt(0)
        s_sub_u32 s{sST}, s{sST}, s98
        s_add_u32 s{sST}, s{sST}, {n_}
        L_spin_{typ}:
        {ins} s[100:101]
        s_waitcnt lgkmcnt(0)
        s_sub_u32 s100, s100, s98
        s_cmp_lt_u32 s100, s{sST}
        s_cbranch_scc1 L_spin_{typ}
        """)
    k.e("s_branch L_fin" if OPT["stamps"] else "s_endpgm")

def finish():
    if OPT["stamps"]:
        k.label("L_fin")
        k.wait_vm0()
        stamp(11)
        k.e(f"""
        s_memtime s[100:101]
        s_waitcnt lgkmcnt(0)
        s_sub_u32 s100, s100, s98
        v_writelane_b32 v{vST}, s100, 63
        s_lshl_b32 s{sT0}, s2, 2
        s_add_u32 s{sT0}, s{sT0}, s{sW}
        s_lshl_b32 s{sT0}, s{sT0}, 8
        s_add_u32 s{sT0}, s{sT0}, {WS_ST}
        v_lshlrev_b32 v2, 2, v{vL}
        buffer_store_dword v{vST}, v2, s[{rWS}:{rWS+3}], s{sT0} offen
        """)

prologue()
stamp_n[0] = 1
path_ssm()
stamp_n[0] = 1; cur[0] = "mlp"
path_mlp()
finish()
k.label("L_end")
body = k.text()
errs = check_hazards(body)
for e_ in errs: print("HAZARD:", e_, file=sys.stderr)

hdr = open(f"cdna_kernels/{NAME}.s.ref").read().split("\n")
hdr = [l for l in hdr if l.startswith(";") and "@launch" not in l and "Override" not in l and "grid=ceil" not in l]
out = "\n".join(hdr) + f"\n; @launch grid=(256,1,1) block=(256,1,1) lds={L_END}\n"
out += f""".amdgcn_target "amdgcn-amd-amdhsa--gfx950"
.text
.globl {NAME}_kernel
.p2align 8
.type {NAME}_kernel,@function
{NAME}_kernel:
{body}    s_endpgm
L_code_end:
.set CODE_BYTES, L_code_end - {NAME}_kernel - 512
.section .rodata,"a"
.p2align 6
.amdhsa_kernel {NAME}_kernel
  .amdhsa_next_free_vgpr 512
  .amdhsa_next_free_sgpr 102
  .amdhsa_accum_offset 256
  .amdhsa_group_segment_fixed_size 0
  .amdhsa_kernarg_size 136
  .amdhsa_user_sgpr_count 2
  .amdhsa_user_sgpr_kernarg_segment_ptr 1
  .amdhsa_system_sgpr_workgroup_id_x 1
.end_amdhsa_kernel
"""
open(sys.argv[1], "w").write(out)
print("written", sys.argv[1], len(out), "bytes; hazards:", len(errs))
```

```python
import sys, struct
sys.path.insert(0, "dev")
from asmlib import *

NAME = "parallel_sum__ssm_conv_s5__mixer_channel_mlp__prompt"
OPT = dict(stamps=False, stop=None, nt_dma="", nt_pf="", nt_rp="", pf=0, pf0=1, pford=0, post0=12, ost='nt', pfa=(1, 0, 1), pfb=(2,), mv=0, xr0=0, tmlp=8, ctail=4, rpown='mlp', post=25, e1=0, ew=30, post0_s=0, wskip=3, rpd_mlp=(0, 3.5), rpd_ssm=(0, 3.5), rotg=1, tch=2, hw=4, e2=0, post_s=0, cpf=1, rp_mlp=(5, (6, 7, 9, 11, 12), 14), rp_ssm=(5, (6, 7, 8, 9, 10), 12), rf_mlp=17, wskip2=1, touch=8, rf_ssm=99, xfb_mlp=3, xfb_ssm=2, xlate=1, fa=8, sp=10, stlb=0, rfg=10, wfirst=0, resfirst=1, ne=0, gpos=8, post1=20, hpre=1, ne_mlp=0, kw=6, util=1.0, rot1=1, rot2=1)
for a_ in sys.argv[2:]:
    k_, v_ = a_.split("=", 1); OPT[k_] = eval(v_)

def f2u(x): return struct.unpack("<I", struct.pack("<f", x))[0]
def hx(x): return "0x%08x" % f2u(x)

WS_EP = 0
WS_H = 4096
WS_WP = 12 << 20
WS_E = 16 << 20
WS_RF = 17 << 20
WS_HF = (17 << 20) + 65536
WS_RS = 18 << 20
WS_ST = 20 << 20
WS_XF = (17 << 20) + 131072
WS_XB = 24 << 20
WS_SIZE = 32 << 20
OOB = 0x4000000
L_TOK = 0; L_CH = 2048; L_PW = 7168; L_EX = 17408; L_EX2 = L_EX + 1280
L_STG = 20480; L_X = 40960; L_W = 90112; L_END = 163840
XS = 16384; WSL = 24576
L_SCS = {'ssm': (L_EX2, 320), 'mlp': (L_CH + 512, 384)}; L_B1 = L_CH; L_DB = 20160
WLW = 4 * 16 * 320; RROW = 320; RBLK = 16 * RROW
L_WL = L_STG
NST = 10
pX, pLre, pLim, pBre, pBim, pCre, pCim, pLdt = 16, 18, 20, 22, 24, 26, 28, 30
pDsk, pBx, pW1, pB1, pW2, pB2, pOut, pDbg, pWs = 32, 34, 36, 38, 40, 42, 44, 46, 48
sW, sWR, sWC, sMT, sNT, sTYP, sHALF, sDT = 3, 4, 5, 6, 7, 8, 88, 7
sML, sI8 = 9, 10
sNonce = 11; sT0, sT1, sT2, sT3 = 12, 13, 14, 15
sKs = 50; sPF = 51
rX, rW, rWS, rT, rT2 = 52, 56, 60, 64, 68
sX, sLX, sLW, sB0, sB2, sPFs, sUnit, sRpSrc, sLR, sSpin = 72, 73, 74, 75, 76, 77, 78, 79, 80, 81
sK = 82; sEx = 84
sH, sHw, sWp, sDis = 86, 87, 88, 89
sST = 90
sRpD = 92
sSig = 97
sWa, sHa, sLim = 18, 22, 26
sDX, sDW = 77, 51
rPF = rT2
vL, vN, vQ = 1, 2, 3
vDX0, vDX1, vXa, vXb = 4, 5, 6, 7
vDW = 8
vPF, vDR, vJunk, vNc = 10, 11, 12, 13
vWA = 14
vRA = 120
vL16 = 26
vRS = 27
vB1 = 28
vT = 40
vST = 25
ACC = 160
def acc(i, j): return ACC + (i * 4 + j) * 4
aF = [0, 40]
aONE = 80; aCS = 84

k = Asm()
k.strict = OPT.get('strict', False)
k.lenient = OPT['stamps']
stamp_n = [0]
cur = ["ssm"]
def stamp(i=None):
    if i is None:
        i = stamp_n[0]; stamp_n[0] += 1
    if OPT.get("probe") == (cur[0], i):
        k.e(f"s_memrealtime s[{sST}:{sST+1}]"); k.e("s_waitcnt lgkmcnt(0)"); k.lg = []
    if not OPT["stamps"] or (OPT.get("lite") and i != 11): return
    k.e(f"{'s_memtime' if OPT.get('cyc') else 's_memrealtime'} s[{sST}:{sST+1}]"); k.e("s_waitcnt lgkmcnt(0)"); k.lg = []
    k.e(f"v_writelane_b32 v{vST}, s{sST}, {i}")
def srd(r, ptr, size):
    k.e(f"s_mov_b32 s{r}, s{ptr}\ns_mov_b32 s{r+1}, s{ptr+1}\ns_mov_b32 s{r+2}, {size}\ns_mov_b32 s{r+3}, 0x20000")

class F:
    def __init__(self, fn, cost=1, ds=False, sep=False, ta=0): self.fn, self.cost, self.ds, self.sep, self.ta = fn, cost, ds, sep, ta
    gate = None
    def __call__(self): self.fn()
curblk = [0]
def note(d, key): return F(lambda: d.__setitem__(key, curblk[0]), 0)
def gate(fn):
    f = F(lambda: None, 0); f.gate = fn; return f
def lines(s):
    out = []; prev = set()
    for l in (x.strip() for x in s.split("\n")):
        if not l: continue
        if l == "s_nop 0":
            prev = None; continue
        parts = l.split(" | ")
        c = sum(2 if x.split()[0] in TRANS else 1 for x in parts)
        d = parse(parts[0])
        dep = prev is None or (d["valu"] and bool(d["uses"] & prev))
        prev = set().union(*[{r for r in parse(x)["defs"] if r[0] == "v"} for x in parts])
        out.append(F(lambda l=l: k.e(l.replace(" | ", "\n")), c, sep=dep))
    return out
def VM(text, tag, sep=False, ta=66): return F(lambda: k.vmem(text, tag), 2, sep=sep, ta=ta)
def DSF(text, tag=None): return F(lambda: k.ds(text, tag), 1, ds=True)
def sched(main, streams, start=0):
    n = len(main)
    st = []
    for items, g0, g1, must in streams:
        cnt = len(items) if must else min(len(items), must if isinstance(must, int) and must > 1 else len(items))
        tot = sum(f.cost for f in items[:cnt]) or 1
        tg = []; acc_ = 0
        for f in items[:cnt]:
            tg.append(g0 + (g1 - g0) * acc_ / tot if must else g0); acc_ += f.cost
        st.append(dict(items=items, tg=tg, last=-1, must=must))
    for g, m in enumerate(main):
        k.e(m)
        if g < start: continue
        room = 2; hasds = False
        prog = True
        while prog and room > 0:
            prog = False
            for x in st:
                if not x["tg"] or x["tg"][0] > g: continue
                f = x["items"][0]
                if f.gate and not f.gate(): continue
                if f.sep and x["last"] == g: continue
                if f.ds and (hasds or (not x["must"] and g >= n - 6)): continue
                if f.cost > room and room < 2 and not (not x["must"] and g - x["last"] >= 3): continue
                x["items"].pop(0); x["tg"].pop(0); x["last"] = g
                f(); room -= f.cost; hasds |= f.ds; prog = True
                break
    for x in st:
        if x["must"]:
            over = len(x["tg"])
            if over and OPT.get("show"): print("overflow", over)
            while x["tg"]:
                f = x["items"].pop(0); x["tg"].pop(0)
                if f.sep: k.e("s_nop 0")
                f()
def merge(*ls):
    ls = [l for l in ls if l]
    if not ls: return []
    if len(ls) == 1: return list(ls[0])
    items = []
    for li, l in enumerate(ls):
        for i, f in enumerate(l): items.append(((i + 0.5) / len(l), li, i, f))
    items.sort(key=lambda x: (x[0], x[1]))
    return [x[3] for x in items]

def prologue():
    t = vT
    cpf = f"""
    s_getpc_b64 s[{sEx}:{sEx+1}]
    s_lshr_b32 s{sT1}, s2, 3
    s_lshl_b32 s{sT1}, s{sT1}, 11
    v_lshrrev_b32 v{t}, 6, v0
    v_lshlrev_b32 v{t}, 9, v{t}
    v_and_b32 v{t+1}, 3, v0
    v_lshl_add_u32 v{t}, v{t+1}, 7, v{t}
    v_add_u32 v{t}, s{sT1}, v{t}
    v_min_u32 v{t}, CODE_BYTES, v{t}
    global_load_dword v{vJunk}, v{t}, s[{sEx}:{sEx+1}]
    """ if OPT["cpf"] else ""
    k.e(f"""
    s_cmp_ge_u32 s2, 256
    s_cbranch_scc1 L_end
    s_load_dwordx16 s[16:31], s[0:1], 0
    s_load_dwordx16 s[32:47], s[0:1], 64
    s_load_dwordx2 s[48:49], s[0:1], 128
    {cpf}
    v_lshrrev_b32 v{t}, 6, v0
    v_and_b32 v{vL}, 63, v0
    v_readfirstlane_b32 s{sW}, v{t}
    s_and_b32 s{sT0}, s2, 7
    s_lshr_b32 s{sT1}, s2, 3
    s_lshr_b32 s{sTYP}, s{sT1}, 4
    s_bfe_u32 s{sML}, s{sT1}, 0x20002
    s_lshr_b32 s{sMT}, s{sT0}, 1
    s_lshl_b32 s{sT2}, s{sML}, 2
    s_add_u32 s{sMT}, s{sMT}, s{sT2}
    s_and_b32 s{sT2}, s{sT1}, 3
    s_lshl_b32 s{sI8}, s{sTYP}, 2
    s_add_u32 s{sI8}, s{sI8}, s{sT2}
    s_and_b32 s{sNT}, s{sT0}, 1
    s_lshl_b32 s{sNT}, s{sNT}, 2
    s_add_u32 s{sNT}, s{sNT}, s{sT2}
    s_lshr_b32 s{sWR}, s{sW}, 1
    s_and_b32 s{sWC}, s{sW}, 1
    """)
    if OPT["stamps"]:
        k.e(f"v_mov_b32 v{vST}, 0\n{'s_memtime' if OPT.get('cyc') else 's_memrealtime'} s[{sST}:{sST+1}]" + ('' if OPT['pf'] else '\ns_memtime s[98:99]')); stamp_n[0] = 1
    if OPT.get("spin"): k.e(f"{OPT['spin'][0]} s[98:99]\ns_waitcnt lgkmcnt(0)\ns_mov_b32 s{sST}, s98")
    k.e(f"""
    v_lshrrev_b32 v{t}, 3, v{vL}
    v_and_b32 v{t+1}, 7, v{vL}
    v_lshrrev_b32 v{t+2}, 1, v{t}
    v_xor_b32 v{t+2}, v{t+1}, v{t+2}
    v_mul_u32_u24 v{t+3}, 5120, v{t}
    v_lshl_add_u32 v{vDX0}, v{t+2}, 4, v{t+3}
    v_xor_b32 v{vDX1}, 64, v{vDX0}
    v_add_u32 v{vDX1}, 40960, v{vDX1}
    s_lshl_b32 s{sT0}, s{sMT}, 7
    s_lshl_b32 s{sT1}, s{sWR}, 6
    s_add_u32 s{sT0}, s{sT0}, s{sT1}
    s_lshl_b32 s{sT1}, s{sWC}, 1
    s_add_u32 s{sT0}, s{sT0}, s{sT1}
    s_mul_i32 s{sX}, s{sT0}, 1280
    s_lshl_b32 s{sLX}, s{sW}, 12
    s_cmp_eq_u32 s{sTYP}, 1
    s_cbranch_scc1 L_e_mlp
    """)
    for typ in ("ssm", "mlp"):
        if typ == "mlp": k.label("L_e_mlp")
        k.vm = []; issued.clear()
        cur[0] = typ
        k.e(WOFF[typ])
        rot_setup(typ)
        start_loads(typ)
        k.e(f"s_branch L_{typ}")
        early_vm[typ] = list(k.vm)
    cur[0] = "ssm"
early_vm = {}
WOFF = {}
def late_common(typ):
    t = vT
    k.label(f"L_{typ}")
    issued.clear(); issued[0] = 10 if typ == "mlp" else 9
    k.seen.clear(); k.vm = list(early_vm[typ]); k.seen.update(k.vm); k.lg = []
    k.e(f"""
    v_and_b32 v{vN}, 15, v{vL}
    v_lshrrev_b32 v{vQ}, 4, v{vL}
    v_lshlrev_b32 v{vL16}, 4, v{vL}
    s_xor_b32 s{sKs}, s{sWR}, s{sWC}
    s_xor_b32 s{sHALF}, s{sTYP}, 1
    s_mov_b32 s{sSpin}, 0x40000
    s_and_b32 s{sT2}, s2, 127
    s_sub_u32 s{sUnit}, 127, s{sT2}
    s_cmp_lt_u32 s{sUnit}, 96
    s_cselect_b32 s{sUnit}, s{sUnit}, 0
    s_cselect_b32 s{sDis}, 0, {OOB}
    s_lshl_b32 s{sT2}, s{sKs}, 2
    v_add_u32 v{t+4}, s{sT2}, v{vQ}
    v_lshrrev_b32 v{t+5}, 1, v{vN}
    v_xor_b32 v{t+5}, v{t+4}, v{t+5}
    v_lshlrev_b32 v{t+5}, 4, v{t+5}
    v_lshl_add_u32 v{t+5}, v{vN}, 7, v{t+5}
    s_lshl_b32 s{sT1}, s{sWC}, 13
    s_add_u32 s{sT1}, s{sT1}, {L_X}
    v_add_u32 v{vXa}, s{sT1}, v{t+5}
    v_xor_b32 v{vXb}, 64, v{vXa}
    """)

issued = {}
mk = {}
def dma(vo, rs, so, imm, sl, tgt, tag, fl, pre=None):
    def f1():
        k.e(f"s_add_u32 m0, s{sl}, {tgt - imm}")
        if pre: k.e(pre)
    def f2():
        if isinstance(tag, tuple): issued[tag[1]] = issued.get(tag[1], 0) + 1
        k.vmem(f"buffer_load_dwordx4 v{vo}, s[{rs}:{rs+3}], s{so} offen offset:{imm} {fl} lds", tag)
    return [F(f1, 2 if pre else 1), F(f2, 2, sep=True, ta=66)]
def run(ops):
    for op in ops:
        for f in (op if isinstance(op, list) else [op]):
            if f.sep: k.e("s_nop 0")
            f()
def flat(ops): return [f for op in ops for f in (op if isinstance(op, list) else [op])]
def advance(typ, stage):
    d = 64*3072 if typ == "mlp" else 128
    G = OPT["rotg"]
    if stage not in [10 - (10*g) // G for g in range(1, G)]:
        return f"s_add_u32 s{sX}, s{sX}, 128\ns_add_u32 s{sB0}, s{sB0}, {d}\ns_add_u32 s{sB2}, s{sB2}, {d}"
    return (f"s_cmp_eq_u32 s{sSig}, {10 - stage} | s_cselect_b32 s{sT3}, {-9*128 & 0xffffffff}, s{sDX} | s_cselect_b32 s{sT2}, {-9*d & 0xffffffff}, s{sDW}\n"
            f"s_add_u32 s{sX}, s{sX}, s{sT3}\ns_add_u32 s{sB0}, s{sB0}, s{sT2}\ns_add_u32 s{sB2}, s{sB2}, s{sT2}")
def rot_setup(typ):
    d = 64*3072 if typ == "mlp" else 128
    G = OPT.get("rotg", 0)
    if G == 0: rotsel = f"""    s_mul_i32 s{sT0}, s{sI8}, 5
    s_lshr_b32 s{sT0}, s{sT0}, 2
    s_mul_i32 s{sT1}, s{sML}, 5
    s_lshr_b32 s{sT1}, s{sT1}, 1
    s_add_u32 s{sT0}, s{sT0}, s{sT1}
    s_and_b32 s{sT1}, s{sMT}, 3
    s_add_u32 s{sSig}, s{sT0}, s{sT1}
    s_sub_u32 s{sT0}, s{sSig}, 10
    s_cmp_ge_u32 s{sSig}, 10
    s_cselect_b32 s{sSig}, s{sT0}, s{sSig}
    s_mul_i32 s{sSig}, s{sSig}, {OPT['rot1']}
    """
    else:
        rotsel = f"s_add_u32 s{sT0}, s{sI8}, s{sML}\ns_and_b32 s{sT0}, s{sT0}, {G-1}\ns_mul_i32 s{sT0}, s{sT0}, 10\ns_lshr_b32 s{sSig}, s{sT0}, {G.bit_length()-1}"
    k.e(f"""
    {rotsel}
    s_lshl_b32 s{sT0}, s{sSig}, 7
    s_add_u32 s{sX}, s{sX}, s{sT0}
    s_mul_i32 s{sT0}, s{sSig}, {d}
    s_add_u32 s{sB0}, s{sB0}, s{sT0}
    s_add_u32 s{sB2}, s{sB2}, s{sT0}
    s_movk_i32 s{sDX}, 128
    s_mov_b32 s{sDW}, {d}
    """)
def dma_x(stage, g):
    return dma(vDX0 + (g & 1), rX, sX, (g >> 1) * 1280, sLX, L_X + (stage % 3) * XS + g * 1024, ("st", stage), OPT.get("nt_x", "") if stage < OPT.get("nt_n", 99) else "")
def dma_w(typ, stage, g):
    base = L_W + (stage % 3) * WSL
    if typ == "mlp":
        rg, cg = g // 3, g % 3
        return dma(vDW + rg, rW, sB2 if rg else sB0, cg * 128, sLW, base + cg * 8192 + rg * 1024, ("st", stage), OPT["nt_dma"] if stage < OPT.get("nt_n", 99) else "")
    imm = 2560 if (g < 4 and g & 1) else 0
    return dma(vDW + (1 if g == 4 else 0), rW, sB2 if g in (2, 3) else sB0, imm, sLW, base + g * 2048, ("st", stage), OPT["nt_dma"] if stage < OPT.get("nt_n", 99) else "")
def dma_stage(typ, stage):
    nw = 6 if typ == "mlp" else 5
    ops = merge([dma_x(stage, g) for g in range(4)], [dma_w(typ, stage, g) for g in range(nw)])
    if stage > 0: ops[0] = lines(advance(typ, stage)) + ops[0]
    return ops
sPB = 98
def pf(a):
    def f():
        k.vmem(f"global_load_dword v{vJunk}, v{vPF}, s[{sPB}:{sPB+1}] {OPT['nt_pf']}", "pf")
        k.e(f"v_add_u32 v{vPF}, s{sDX}, v{vPF}\nv_min_u32 v{vPF}, s{sDW}, v{vPF}")
    return F(f, 4, ta=130)

def frag_reads(typ, stage, blk, fs):
    slot = stage % 3
    nr = 6 if typ == "mlp" else 5
    vx = vXa if blk == 0 else vXb
    xr = [DSF(f"ds_read_b128 {A(aF[fs] + 24 + 4*j, 4)}, v{vx} offset:{slot*XS + j*2048}") for j in range(4)]
    wr_ = []
    for i in range(nr):
        if typ == "mlp":
            for h in range(2):
                wr_.append(DSF(f"ds_read_b64_tr_b16 {A(aF[fs] + 4*i + 2*h, 2)}, v{vWA + blk*4 + (i & 3)} offset:{slot*WSL + (i >> 2)*8192 + h*512}"))
        else:
            wr_.append(DSF(f"ds_read_b128 {A(aF[fs] + 4*i, 4)}, v{vWA + blk} offset:{slot*WSL + i*2048}"))
    return merge(xr, wr_)

def mfmas(typ, stage, blk, fs):
    nr = 6 if typ == "mlp" else 5
    first = stage == 0
    out = []
    Af = lambda i: A(aF[fs] + 4*i, 4)
    Bf = lambda j: A(aF[fs] + 24 + 4*j, 4)
    for i in range(nr):
        for j in range(4):
            c = "0" if (first and blk == 0) else V(acc(i, j), 4)
            out.append(f"v_mfma_f32_16x16x32_bf16 {V(acc(i,j),4)}, {Af(i)}, {Bf(j)}, {c}")
    if blk == 1 and (2 not in OPT.get('x', ()) or stage == NST - 1):
        for i in range(nr):
            out.append(f"v_mfma_f32_16x16x32_bf16 {A(aCS+4*i,4)}, {Af(i)}, {A(aONE,4)}, {'0' if first else A(aCS+4*i,4)}")
    if blk == 1 and stage == NST - 1: out = out[-nr:] + out[:-nr]
    return out

XR = 124
def touch_all(typ):
    t = vT + 8
    if typ == "ssm":
        k.e(f"""
        s_lshl_b32 s{sT0}, s2, 2
        s_add_u32 s{sT0}, s{sT0}, s{sW}
        s_mul_i32 s{sT0}, s{sT0}, {40*128}
        v_min_u32 v{t}, 39, v{vL}
        s_mov_b64 s[{sT2}:{sT3}], s[{pX}:{pX+1}]
        """)
    else:
        k.e(f"""
        s_and_b32 s{sT0}, s2, 127
        s_lshl_b32 s{sT1}, s{sT0}, 1
        s_add_u32 s{sT1}, s{sT1}, s{sWC}
        s_mul_i32 s{sT1}, s{sT1}, {60*128}
        s_mul_i32 s{sT0}, s{sT0}, {50*128}
        s_cmp_eq_u32 s{sWC}, 0
        s_cselect_b64 s[{sT2}:{sT3}], s[{pBre}:{pBre+1}], s[{pBim}:{pBim+1}]
        s_cmp_eq_u32 s{sWR}, 0
        s_cselect_b32 s{sT0}, s{sT0}, s{sT1}
        s_cselect_b32 s{sT1}, 49, 59
        s_cselect_b64 s[{sT2}:{sT3}], s[{sT2}:{sT3}], s[{pW1}:{pW1+1}]
        v_min_u32 v{t}, s{sT1}, v{vL}
        """)
    k.e(f"v_lshlrev_b32 v{t}, 7, v{t}\nv_add_u32 v{t}, s{sT0}, v{t}")
    k.vmem(f"global_load_dword v{vJunk}, v{t}, s[{sT2}:{sT3}] {OPT['nt_pf']}", "tch")
def start_loads(typ):
    t = vT
    k.e("s_waitcnt lgkmcnt(0)")
    if OPT["stamps"]: k.e(f"v_writelane_b32 v{vST}, s{sST}, 0")
    stamp(12)
    k.e(f"""
    s_or_b32 s{sT0}, s2, s{sW}
    s_cmp_lg_u32 s{sT0}, 0
    s_cbranch_scc1 L_nononce_{typ}
    s_memrealtime s[{sT0}:{sT1}]
    s_waitcnt lgkmcnt(0)
    s_or_b32 s{sT0}, s{sT0}, 1
    v_mov_b32 v{t+8}, s{sT0}
    v_mov_b32 v{t+9}, 0
    global_store_dword v{t+9}, v{t+8}, s[{pDbg}:{pDbg+1}] sc1
    L_nononce_{typ}:
    """)
    srd(rX, pX, 2048 * 1280)
    if typ == "mlp": srd(rW, pW1, 640 * 3072)
    else:
        k.e(f"""
        s_cmp_eq_u32 s{sWC}, 0
        s_cselect_b32 s{rW}, s{pBre}, s{pBim}
        s_cselect_b32 s{rW+1}, s{pBre+1}, s{pBim+1}
        s_mov_b32 s{rW+2}, {640*1280}
        s_mov_b32 s{rW+3}, 0x20000
        """)
    if OPT['pf']:
        assert OPT['rotg'] == 1
        k.e(f"s_cmp_eq_u32 s{sW}, 3\ns_cselect_b64 s[{sPB}:{sPB+1}], s[{rX}:{rX+1}], s[{rW}:{rW+1}]")
        for _ in range(OPT['pfa'][0]): pf(0)()
    if OPT.get("tch") == 1: touch_all(typ)
    run(dma_stage(typ, 0))
    if OPT.get("tch") == 2: touch_all(typ)
    if OPT['pf']:
        for _ in range(OPT['pfa'][1]): pf(0)()
    if OPT['xr0']: run(xr_loads())
    stamp(13)
    if OPT.get("stlb", 1):
        k.e(f"s_lshl_b32 s{sT0}, s2, 7\ns_add_u32 s{sT0}, s{sT0}, {WS_HF + 32768}\ns_load_dword s{sNonce}, s[{pWs}:{pWs+1}], s{sT0} {'glc' if OPT.get('stlb') == 2 else ''}")
    srd(rWS, pWs, WS_SIZE)
    if OPT.get('wsoff'): k.e(f"s_add_u32 s{rWS}, s{rWS}, {OPT['wsoff'] << 20}\ns_addc_u32 s{rWS+1}, s{rWS+1}, 0")
def xr_setup():
    k.e(f"""
    s_lshl_b32 s{sT0}, s{sTYP}, 3
    s_add_u32 s{sT0}, s{sT0}, s{sNT}
    s_lshl_b32 s{sT0}, s{sT0}, 2
    s_add_u32 s{sT0}, s{sT0}, s{sW}
    s_lshl_b32 s{sT0}, s{sT0}, 1
    s_lshl_b32 s{sT1}, s{sMT}, 7
    s_add_u32 s{sHw}, s{sT0}, s{sT1}
    s_mul_i32 s{sH}, s{sHw}, 1280
    v_lshrrev_b32 v{XR+10}, 5, v{vL}
    v_mul_u32_u24 v{XR+10}, 1280, v{XR+10}
    v_and_b32 v{XR+11}, 31, v{vL}
    v_lshl_add_u32 v{XR+11}, v{XR+11}, 3, v{XR+10}
    v_lshlrev_b32 v{XR+13}, 1, v{XR+11}
    v_sub_u32 v{XR+10}, v{XR+13}, v{XR+10}
    """)
def xr_loads():
    return [VM(f"buffer_load_dwordx4 {V(XR+4*i,4)}, v{XR+10}, s[{rX}:{rX+3}], s{sH} offen offset:{512*i}", "xr") for i in range(2)] + \
           [VM(f"buffer_load_dwordx2 {V(XR+8,2)}, v{XR+11}, s[{rX}:{rX+3}], s{sH} offen offset:1024", "xr", ta=40)]
def small_dma(ptr, size, soff, tgt, lanes):
    srd(rT2, ptr, size)
    k.e(f"s_mov_b32 m0, {tgt}\ns_mov_b32 exec_lo, {(1 << lanes) - 1}\ns_mov_b32 exec_hi, 0")
    k.vmem(f"buffer_load_dwordx4 v{vL16}, s[{rT2}:{rT2+3}], s{soff} offen lds", "sm")
    k.e("s_mov_b64 exec, -1")
def touch_setup():
    t = 98
    srd(rT2, pCre, 640 * 1280)
    k.e(f"""
    s_mov_b64 s[{sEx}:{sEx+1}], s[{pCim}:{pCim+1}]
    s_and_b32 s{sT0}, s2, 31
    s_lshl_b32 s{sT0}, s{sT0}, 2
    s_add_u32 s{sT0}, s{sT0}, s{sW}
    s_mul_i32 s{sT0}, s{sT0}, {50*128}
    s_xor_b32 s{sT1}, s{sDis}, {OOB}
    s_or_b32 s{sT0}, s{sT0}, s{sT1}
    v_min_u32 v{t}, 49, v{vL}
    v_lshlrev_b32 v{t}, 7, v{t}
    v_add_u32 v{t}, s{sT0}, v{t}
    """)
def touch_c():
    ld = f"buffer_load_dword v{vJunk}, v98, s[{rT2}:{rT2+3}], 0 offen"
    return [VM(ld, "jk", ta=20)] + lines(f"s_mov_b32 s{rT2}, s{sEx}\ns_mov_b32 s{rT2+1}, s{sEx+1}") + [VM(ld, "jk", ta=20)]
def small_loads(typ):
    k.e(f"s_mul_i32 s{sT0}, s{sDT}, 160")
    small_dma(pDsk, 1280, sT0, L_DB, 10)
    small_dma(pB2, 1280, sT0, L_DB + 160, 10)
    if typ == "mlp":
        k.e(f"s_mul_i32 s{sT0}, s{sNT}, 384")
        small_dma(pB1, 3072, sT0, L_B1, 24)

def pf_setup(typ):
    t = vT + 10
    PS = OPT["pf"]
    k.e(f"""
    v_mul_u32_u24 v{t}, 52, v{vL}
    v_lshrrev_b32 v{t}, 10, v{t}
    v_mul_u32_u24 v{t+1}, 20, v{t}
    v_sub_u32 v{t+1}, v{vL}, v{t+1}
    v_min_u32 v{t}, {PS - 1}, v{t}
    s_lshl_b32 s{sT0}, s{sMT}, 7
    s_lshl_b32 s{sT1}, s{sI8}, 4
    s_add_u32 s{sT0}, s{sT0}, s{sT1}
    s_mul_i32 s{sT0}, s{sT0}, 1280
    s_add_u32 s{sT0}, s{sT0}, {128*OPT['pf0']}
    """)
    if typ == "mlp":
        k.e(f"""
        s_lshl_b32 s{sT1}, s{sML}, 4
        s_add_u32 s{sT1}, s{sT1}, {64*OPT['pf0']}
        s_mul_i32 s{sT1}, s{sT1}, 3072
        s_mul_i32 s{sT2}, s{sNT}, 384
        s_add_u32 s{sT1}, s{sT1}, s{sT2}
        s_lshl_b32 s{sT2}, s{sW}, 7
        s_add_u32 s{sT1}, s{sT1}, s{sT2}
        s_cmp_eq_u32 s{sW}, 3
        s_cselect_b32 s{sT0}, s{sT0}, s{sT1}
        s_mov_b32 s{sT2}, {64*3072}
        s_cselect_b32 s{sT2}, 128, s{sT2}
        s_mov_b32 s{sT3}, 3072
        s_cselect_b32 s{sT3}, 1280, s{sT3}
        s_mov_b32 s{sDW}, {640*3072 - 128}
        s_cselect_b32 s{sDW}, {2048*1280 - 128}, s{sDW}
        v_min_u32 v{t+1}, 15, v{t+1}
        """)
    else:
        k.e(f"""
        s_mul_i32 s{sT1}, s{sNT}, 80
        s_mul_i32 s{sT2}, s{sML}, 20
        s_add_u32 s{sT1}, s{sT1}, s{sT2}
        s_mul_i32 s{sT1}, s{sT1}, 1280
        s_add_u32 s{sT1}, s{sT1}, {128*OPT['pf0']}
        s_cmp_eq_u32 s{sW}, 3
        s_cselect_b32 s{sT0}, s{sT0}, s{sT1}
        s_cselect_b32 s{sT1}, 15, 19
        s_mov_b32 s{sDW}, {640*1280 - 128}
        s_cselect_b32 s{sDW}, {2048*1280 - 128}, s{sDW}
        s_cmp_eq_u32 s{sW}, 2
        s_cselect_b32 s{sT1}, 0, s{sT1}
        v_min_u32 v{t+1}, s{sT1}, v{t+1}
        s_mov_b32 s{sT2}, 128
        s_mov_b32 s{sT3}, 1280
        """)
    k.e(f"""
    s_mul_i32 s{sDX}, s{sT2}, {PS}
    v_mul_lo_u32 v{vPF}, v{t}, s{sT2}
    v_mul_lo_u32 v{t+2}, v{t+1}, s{sT3}
    v_add_u32 v{vPF}, v{vPF}, v{t+2}
    v_add_u32 v{vPF}, s{sT0}, v{vPF}
    """)

def repack_setup(tag):
    t = vT
    k.e(f"""
    v_lshrrev_b32 v{t}, 3, v{vL}
    v_and_b32 v{t+1}, 7, v{vL}
    v_mul_u32_u24 v{t}, 1280, v{t}
    v_lshl_add_u32 v{t}, v{t+1}, 4, v{t}
    v_or_b32 v{vDR}, s{sDis}, v{t}
    v_or_b32 v{vRS}, s{sDis}, v{vL16}
    s_lshl_b32 s{sLR}, s{sW}, 10
    s_and_b32 s{sT0}, s{sUnit}, 1
    s_lshr_b32 s{sT1}, s{sUnit}, 1
    s_mov_b32 s{rT+3}, 0x20000
    """)
    if True:
        k.e(f"""
        s_mov_b32 s{rT}, s{pW2}
        s_mov_b32 s{rT+1}, s{pW2+1}
        s_mov_b32 s{rT+2}, {1536*1280}
        s_lshl_b32 s{sT2}, s{sT1}, 2
        s_add_u32 s{sT2}, s{sT2}, s{sW}
        s_mul_i32 s{sRpSrc}, s{sT2}, {8*1280}
        s_mul_i32 s{sT2}, s{sT1}, 5462
        s_lshr_b32 s{sT2}, s{sT2}, 16
        s_mul_i32 s{sT2}, s{sT2}, 10
        s_add_u32 s{sT1}, s{sT1}, s{sT2}
        s_mul_i32 s{sT1}, s{sT1}, 5120
        s_add_u32 s{sT1}, s{sT1}, {WS_WP}
        s_mul_i32 s{sT2}, s{sT0}, 20
        s_add_u32 s{sT2}, s{sT2}, s{sW}
        """)
        for i in range(5):
            k.e(f"""
            s_mul_i32 s{sT3}, s{sT2}, 13108
            s_lshr_b32 s{sT3}, s{sT3}, 16
            s_mul_i32 s{sT3}, s{sT3}, 435
            s_add_u32 s{sT3}, s{sT3}, s{sT2}
            s_lshl_b32 s{sT3}, s{sT3}, 10
            s_add_u32 s{sRpD+i}, s{sT3}, s{sT1}
            s_add_u32 s{sT2}, s{sT2}, 4
            """)
        k.e(f"""
        v_lshrrev_b32 v{t}, 2, v{vN}
        v_lshl_add_u32 v{t}, v{vQ}, 2, v{t}
        v_lshlrev_b32 v{t}, 7, v{t}
        v_and_b32 v{t+1}, 3, v{vN}
        v_lshl_add_u32 v{t}, v{t+1}, 3, v{t}
        s_lshl_b32 s{sT2}, s{sW}, 5
        s_add_u32 s{sT2}, s{sT2}, {L_STG}
        v_add_u32 v{vRA}, s{sT2}, v{t}
    """)
    else:
        k.e(f"""
        s_cmp_eq_u32 s{sWR}, 0
        s_cselect_b32 s{rT}, s{pCre}, s{pCim}
        s_cselect_b32 s{rT+1}, s{pCre+1}, s{pCim+1}
        s_mov_b32 s{rT+2}, {640*1280}
        s_lshl_b32 s{sT2}, s{sT1}, 1
        s_add_u32 s{sT2}, s{sT2}, s{sWC}
        s_mul_i32 s{sRpSrc}, s{sT2}, {8*1280}
        s_mul_i32 s{sT2}, s{sT1}, 13108
        s_lshr_b32 s{sT2}, s{sT2}, 16
        s_mul_i32 s{sT2}, s{sT2}, 435
        s_add_u32 s{sT1}, s{sT1}, s{sT2}
        s_lshl_b32 s{sT2}, s{sT0}, 1
        s_add_u32 s{sT2}, s{sT2}, s{sWR}
        s_mul_i32 s{sT2}, s{sT2}, 110
        s_add_u32 s{sT1}, s{sT1}, s{sT2}
        s_mul_i32 s{sT2}, s{sWC}, 25
        s_add_u32 s{sT1}, s{sT1}, s{sT2}
        s_add_u32 s{sT1}, s{sT1}, 60
        s_lshl_b32 s{sT1}, s{sT1}, 10
        s_add_u32 s{sRpD}, s{sT1}, {WS_WP}
        s_add_u32 s{sRpD+1}, s{sRpD}, 5120
        s_add_u32 s{sRpD+2}, s{sRpD}, 10240
        s_add_u32 s{sRpD+3}, s{sRpD}, 15360
        s_add_u32 s{sRpD+4}, s{sRpD}, 20480
        s_mul_i32 s{sT2}, s{sW}, 160
        v_lshlrev_b32 v{t+2}, 7, v{vN}
        v_add_u32 v{t+2}, {L_STG}, v{t+2}
        """)
        for x, (off, sh) in enumerate(((0, 4), (80, 4), (64, 2), (144, 2))):
            k.e(f"""
            s_add_u32 s{sT3}, s{sT2}, {off}
            v_lshl_add_u32 v{t}, v{vQ}, {sh}, s{sT3}
            v_lshrrev_b32 v{t+1}, 7, v{t}
            v_and_b32 v{t}, 127, v{t}
            v_lshl_add_u32 v{t}, v{t+1}, 12, v{t}
            v_add_u32 v{vRA+x}, v{t}, v{t+2}
            """)
    k.e(f"""
    s_mul_i32 s{sT0}, s{sT0}, 640
    s_add_u32 s{sRpSrc}, s{sRpSrc}, s{sT0}
    """)
def repack_dma():
    return [dma(vDR, rT, sRpSrc, g * 128, sLR, L_STG + g * 4096, "rp%d" % g, OPT["nt_rp"]) for g in range(5)]
RP = 136
def RPR(tag, o, n): return V(RP + o, n)
def repack_read(tag):
    if True:
        return [DSF(f"ds_read_b64_tr_b16 {V(RP+4*i+2*h,2)}, v{vRA} offset:{i*4096 + h*2048}") for i in range(5) for h in range(2)]
    return [DSF(f"ds_read_b128 {V(RP+4*x,4)}, v{vRA + x//2} offset:{(x & 1)*2048}") for x in range(4)] + \
           [DSF(f"ds_read_b32 v{RP+16+x}, v{vRA + 2 + x//2} offset:{(x & 1)*2048}") for x in range(4)]
def repack_store(tag):
    return [VM(f"buffer_store_dwordx4 {RPR(tag, 4*i, 4)}, v{vRS}, s[{rWS}:{rWS+3}], s{sRpD+i} offen sc1", ("rps", i), ta=240) for i in range(5)]
def repack_flag():
    t = vT
    pre = lines(f"""
    v_mov_b32 v{t}, s{sNonce}
    v_mov_b32 v{t+1}, s{sNonce}
    s_lshl_b32 s{sRpSrc}, s{sUnit}, 7
    s_lshl_b32 s{sT1}, s{sW}, 4
    s_add_u32 s{sRpSrc}, s{sRpSrc}, s{sT1}
    s_add_u32 s{sRpSrc}, s{sRpSrc}, {WS_RF}
    s_add_u32 s{sRpSrc}, s{sRpSrc}, 16384
    v_lshlrev_b32 v{t+2}, 26, v{vL}
    v_or_b32 v{t+2}, s{sDis}, v{t+2}
    """)
    def f():
        k.wait_vm(("rps", 4))
        k.vmem(f"buffer_store_dwordx2 {V(t,2)}, v{t+2}, s[{rWS}:{rWS+3}], s{sRpSrc} offen sc1", "rf")
    return pre, F(f, 3, ta=20)

def bfr(d, s): return f"v_cvt_pk_bf16_f32 v{d}, v{s}, v{s}\nv_and_b32 v{d}, 0xffff0000, v{d}\n"
def nonce_load():
    return lines(f"v_mov_b32 v{vNc}, 0") + [VM(f"global_load_dword v{vNc}, v{vNc}, s[{pDbg}:{pDbg+1}] sc1", "nc", ta=20)]
def rowstat_job(tag):
    t = vT + 20
    S_, Q, MEAN, VAR, S1, X, Y = t, t+1, t+2, t+3, t+4, t+5, t+6
    G0, G1 = t+8, t+12
    M1, A1, A2, AM = G0, G0+2, G1, G1+2
    def dots():
        k.wait_vm("xr")
        s = f"v_mov_b32 v{X}, 0x3f803f80\nv_mov_b32 v{S_}, 0\nv_mov_b32 v{Q}, 0\n"
        for i in range(10): s += f"v_dot2c_f32_bf16 v{S_}, v{XR+i}, v{X}\nv_dot2c_f32_bf16 v{Q}, v{XR+i}, v{XR+i}\n"
        s += "s_nop 2\n"
        k.e(s)
    fl = [F(dots, 24)]
    for d in ("row_shr:1", "row_shr:2", "row_shr:4", "row_shr:8", "row_bcast:15"):
        rm = "0xa" if "bcast" in d else "0xf"
        fl.append(F(lambda d=d, rm=rm: k.e(f"v_add_f32_dpp v{S_}, v{S_}, v{S_} {d} row_mask:{rm} bank_mask:0xf bound_ctrl:0"), 1, sep=True))
        fl.append(F(lambda d=d, rm=rm: k.e(f"v_add_f32_dpp v{Q}, v{Q}, v{Q} {d} row_mask:{rm} bank_mask:0xf bound_ctrl:0"), 1))
    fl += lines(f"""
    v_mul_f32 v{MEAN}, {hx(1/640)}, v{S_}
    v_mul_f32 v{VAR}, {hx(1/640)}, v{Q}
    v_fma_f32 v{VAR}, -v{MEAN}, v{MEAN}, v{VAR}
    v_max_f32 v{VAR}, 0, v{VAR}
    {bfr(M1, MEAN)}{bfr(X, VAR)}
    v_add_f32 v{X}, {hx(1e-5)}, v{X}
    {bfr(X, X)}
    v_sqrt_f32 v{X}, v{X}
    v_sub_f32 v{Y}, v{MEAN}, v{M1}
    {bfr(S1, X)}
    v_rcp_f32 v{A1}, v{S1}
    s_nop 0
    v_mul_f32 v{Y}, v{Y}, v{A1}
    v_mul_f32 v{X}, v{VAR}, v{A1}
    {bfr(Y, Y)}
    v_mul_f32 v{X}, v{X}, v{A1}
    {bfr(X, X)}
    v_add_f32 v{X}, {hx(1e-5)}, v{X}
    {bfr(X, X)}
    v_sqrt_f32 v{X}, v{X}
    v_fma_f32 v{Y}, v{Y}, v{S1}, v{M1}
    {bfr(X, X)}
    v_mul_f32 v{X}, v{X}, v{S1}
    v_rcp_f32 v{A2}, v{X}
    v_and_b32 v{X}, 31, v{vL}
    v_mul_f32 v{AM}, v{A2}, v{Y}
    v_sub_u32 v{X}, 31, v{X}
    v_and_b32 v{Y}, 32, v{vL}
    v_lshl_add_u32 v{X}, v{X}, 26, v{Y}
    s_lshl_b32 s{sT0}, s{sHw}, 5
    s_add_u32 s{sT0}, s{sT0}, {WS_RS}
    """)
    def nonce():
        k.wait_vm("nc")
        k.e(f"""
        v_readfirstlane_b32 s{sNonce}, v{vNc}
        s_cmp_lg_u32 s{sNonce}, 0
        s_cbranch_scc1 L_ncok_{tag}
        L_ncl_{tag}:
        s_sleep 1
        global_load_dword v{vNc}, v{Y}, s[{pDbg}:{pDbg+1}] sc1
        s_sub_u32 s{sSpin}, s{sSpin}, 1
        s_cbranch_scc1 L_end
        s_waitcnt vmcnt(0)
        v_readfirstlane_b32 s{sNonce}, v{vNc}
        s_cmp_eq_u32 s{sNonce}, 0
        s_cbranch_scc1 L_ncl_{tag}
        L_ncok_{tag}:
        s_nop 0
        """)
    fl += lines(f"v_mov_b32 v{Y}, 0") + [F(nonce, 4)]
    fl += lines(f"""
    v_mov_b32 v{G0+1}, s{sNonce}
    v_mov_b32 v{G0+3}, s{sNonce}
    v_mov_b32 v{G1+1}, s{sNonce}
    v_mov_b32 v{G1+3}, s{sNonce}
    """)
    fl.append(VM(f"buffer_store_dwordx4 {V(G0,4)}, v{X}, s[{rWS}:{rWS+3}], s{sT0} offen sc1", "rs", ta=20))
    fl.append(VM(f"buffer_store_dwordx4 {V(G1,4)}, v{X}, s[{rWS}:{rWS+3}], s{sT0} offen offset:16 sc1", "rs", ta=20))
    return fl
RSV = 124
def rowstat_fetch():
    fl = lines(f"""
    s_lshl_b32 s{sT0}, s{sMT}, 12
    s_add_u32 s{sT0}, s{sT0}, {WS_RS}
    v_lshlrev_b32 v{RSV+4}, 4, v0
    v_add_u32 v{RSV+4}, s{sT0}, v{RSV+4}
    """)
    return fl + [VM(f"buffer_load_dwordx4 {V(RSV,4)}, v{RSV+4}, s[{rWS}:{rWS+3}], 0 offen sc1", "rsv")]

def ta_of(op): return sum(f.ta for f in flat([op]))
def main_loop(typ, jobs, vq, bg):
    q = [(max(0, 2*st - 5), max(2*st - 4 + (x >= 5) - OPT.get('lag', 0), x >= 5), op) for st in range(2, NST) for x, op in enumerate(dma_stage(typ, st))]
    q = sorted(q + vq, key=lambda x: x[1])
    credit = [OPT.get("credit0", 0)]
    def take(bi, n):
        credit[0] = min(credit[0] + n * 17 * OPT["util"], n * 17 + 100) - sum(ta_of(x) for x in jobs.get(("pre", bi), []) + jobs.get(bi, []))
        out = []
        while True:
            c = [x for x in q if x[0] <= bi]
            if not c or ((credit[0] < 33 or len(out) >= (OPT['ctail'] if typ == 'ssm' and bi >= 15 else OPT.get('cap', 6))) and c[0][1] > bi): break
            q.remove(c[0]); out.append(c[0][2]); credit[0] -= ta_of(c[0][2])
        if OPT.get('show'): print(typ, bi, len(out), len(jq), len(bg), int(credit[0]), dict(issued))
        return flat(out)
    jq = []
    stamp(15)
    run(dma_stage(typ, 1))
    if OPT['pf']:
        for _ in range(OPT['pfa'][2]): pf(0)()
    stamp(62)
    k.wait_vm(("st", 0)); k.e("s_barrier")
    stamp()
    run(frag_reads(typ, 0, 0, 0))
    def block(bi, m, reads, n):
        curblk[0] = bi
        run(jobs.get(("pre", bi), []))
        jq.extend(jobs.get(bi, []))
        jq[:0] = jobs.get(("front", bi), [])
        d = take(bi, n)
        n = len(m)
        if bi == 2*NST - 1: reads, r0 = jobs["last"], 9
        else: r0 = 0
        sched(m, [(d, 0, n - 1, True), (reads, r0, n - OPT.get("rend", 6), True), (jobs["tail"] if r0 else [], 0, 9, True), (jq, 0, n, False), (bg if bi >= OPT.get("bg0", 1) else [], 0, n, False)])
    for s in range(NST):
        k.wait_lg()
        m = mfmas(typ, s, 0, 0)
        block(2*s, m, frag_reads(typ, s, 1, 1), len(m))
        k.wait_lg()
        m = mfmas(typ, s, 1, 1)
        k.e(m[0]); k.e(m[1])
        if s + 1 < NST:
            if OPT.get("fine"): stamp(16 + 3*s)
            assert issued.get(s + 1, 0) == (10 if typ == "mlp" else 9), (typ, s, issued)
            for tg in jobs.get(("wait", s), []): assert tg in k.seen, tg
            k.wait_vm([("st", s + 1)] + jobs.get(("wait", s), []))
            if OPT.get("fine"): stamp(17 + 3*s)
            k.e("s_barrier")
        block(2*s + 1, m[2:], frag_reads(typ, s + 1, 0, 0) if s + 1 < NST else [], len(m))
    assert not jq and len(bg) < 12, (len(jq), len(bg))
    run(bg)
    stamp()
    if OPT["stop"] == "loop":
        k.e("s_branch L_fin"); k.seen.update(["rsv", ("rps", 4), "b1"])
    return [x[2] for x in q]

WSLOT = [("a", 108 + 20*x) for x in range(7)] + [("a", 20*x) for x in range(5)] + [("v", 100 + 20*x) for x in range(3)]
NREG = 15
def wreg(tk): return WSLOT[tk]
def kaddr(dst, base, tk, stride):
    return lines(f"s_cmp_gt_u32 s{sLim}, {tk} | s_cselect_b32 s{dst}, s{base}, s{base+1}\ns_add_u32 s{dst}, s{dst}, {tk*stride}")
def wload(tk):
    kind, base = wreg(tk)
    out = []
    for i in range(5):
        op = []
        if i == 0: op += kaddr(sT2, sWa, tk, 5120) if cur[0] == "mlp" else lines(f"s_add_u32 s{sT2}, s{sLim+1}, {tk*5120}")
        if i == 4: op += lines(f"s_add_u32 s{sT2}, s{sT2}, 4096")
        op.append(VM(f"buffer_load_dwordx4 {R(kind, base+4*i, 4)}, v{vL16}, s[{rWS}:{rWS+3}], s{sT2} offen offset:{(i & 3)*1024} sc1", ("w", tk)))
        out.append(op)
    return out
RFV = 24
sWLb, sTx = 34, 35
MV = OPT["mv"]
NK = {"mlp": 12 - MV, "ssm": 10 + MV}
def p2_addr(typ):
    n_ = NK[typ]; k0 = 0 if typ == "mlp" else 12
    if typ == "mlp":
        k.e(f"""
        v_min_u32 v{vT+2}, {4*n_ - 1}, v{vL}
        s_mul_i32 s{sT0}, s{sW}, 24
        s_lshr_b32 s{sT1}, s{sDT}, 2
        s_add_u32 s{sT0}, s{sT0}, s{sT1}
        s_lshl_b32 s{sT0}, s{sT0}, 7
        s_add_u32 s{sT0}, s{sT0}, {WS_RF + 16384}
        v_lshrrev_b32 v{vT}, 2, v{vT+2}
        v_and_b32 v{vT+1}, 3, v{vT+2}
        """)
        k.e(f"v_lshlrev_b32 v{vT}, 8, v{vT}\nv_lshl_add_u32 v{vT}, v{vT+1}, 4, v{vT}\nv_add_u32 v{RFV}, s{sT0}, v{vT}")
    k.e(f"""
    s_and_b32 s{sT2}, s{sDT}, 3
    s_add_u32 s{sT2}, s{sT2}, s{sML}
    s_and_b32 s{sT2}, s{sT2}, 3
    s_mul_i32 s{sT2}, s{sT2}, {n_ * OPT['rot2'] if typ == 'mlp' else 0}
    s_lshr_b32 s{sT2}, s{sT2}, 2
    s_sub_u32 s{sLim}, {n_ if typ == 'mlp' else 10}, s{sT2}
    s_mul_i32 s{sT0}, s{sW}, 22
    s_add_u32 s{sT0}, s{sT0}, s{sT2}
    s_add_u32 s{sT0}, s{sT0}, {k0}
    s_mul_i32 s{sT1}, s{sDT}, 88
    s_add_u32 s{sT1}, s{sT1}, s{sT0}
    s_mul_i32 s{sT1}, s{sT1}, 5120
    {f"s_add_u32 s{sWa}, s{sT1}, {WS_WP}" if typ == "mlp" else f"s_add_u32 s{sLim+1}, s{sT1}, {WS_WP - n_*5120}"}
    {f"s_sub_u32 s{sWa+1}, s{sWa}, {n_*5120}" if typ == "mlp" else ""}
    s_lshl_b32 s{sT1}, s{sMT}, 1
    s_add_u32 s{sT1}, s{sT1}, s{sHALF}
    s_mul_i32 s{sT2}, s{sT1}, 88
    s_add_u32 s{sT2}, s{sT2}, s{sT0}
    s_lshl_b32 s{sT2}, s{sT2}, 12
    s_add_u32 s{sHa+2}, s{sT2}, {WS_H}
    s_sub_u32 s{sHa+3}, s{sHa+2}, {n_*4096}
    s_{'add' if typ == 'mlp' else 'sub'}_u32 s{sHa}, s{sHa+2}, {88*4096}
    s_sub_u32 s{sHa+1}, s{sHa}, {n_*4096}
    s_mul_i32 s{sWLb}, s{sW}, {WLW}
    s_add_u32 s{sWLb}, s{sWLb}, {L_WL}
    """)
def rflag_fetch(vd):
    k.vmem(f"buffer_load_dwordx2 {V(vd,2)}, v{RFV}, s[{rWS}:{rWS+3}], 0 offen sc1", "rfv")
def check(tag, vaddr, vd, width=2, second=1):
    k.e(f"""
    L_chk_{tag}:
    v_cmp_ne_u32 vcc, s{sNonce}, v{vd + (1 if width == 4 else 0)}
    v_cmp_ne_u32 s[{sT0}:{sT1}], s{sNonce}, v{vd + (3 if width == 4 else 1)}
    s_or_b64 vcc, vcc, s[{sT0}:{sT1}]
    s_cmp_eq_u64 vcc, 0
    s_cbranch_scc1 L_chkok_{tag}
    s_sub_u32 s{sSpin}, s{sSpin}, 1
    s_cbranch_scc1 L_end
    buffer_load_dwordx{width} {V(vd,width)}, v{vaddr}, s[{rWS}:{rWS+3}], 0 offen sc1
    s_waitcnt vmcnt(0)
    s_branch L_chk_{tag}
    L_chkok_{tag}:
    """)
vCD = 20
sCU = [18, 19, 20, 21, 35]
sCs, sCt = 42, 43
def c_setup():
    t = vT
    srd(rT2, pCim, 640 * 1280)
    if OPT['rpown'] == 'ssm': k.e(f"s_mov_b64 s[{sEx}:{sEx+1}], s[{pCre}:{pCre+1}]")
    else: srd(rT, pCre, 640 * 1280)
    for g in range(5):
        k.e(f"""
        v_add_u32 v{t}, {64*g}, v{vL}
        v_mul_u32_u24 v{t+1}, 3277, v{t}
        v_lshrrev_b32 v{t+1}, 16, v{t+1}
        v_mul_u32_u24 v{t+2}, 20, v{t+1}
        v_sub_u32 v{t+2}, v{t}, v{t+2}
        v_mul_u32_u24 v{t+1}, 1280, v{t+1}
        v_lshl_add_u32 v{vCD+g}, v{t+2}, 4, v{t+1}
        """)
    k.e(f"""
    s_mul_i32 s{sCs}, s{sDT}, {80*1280}
    s_mul_i32 s{sT0}, s{sW}, 320
    s_add_u32 s{sCs}, s{sCs}, s{sT0}
    s_mul_i32 s{sT1}, s{sW}, 5120
    s_add_u32 s{sCU[0]}, s{sT1}, 20480
    s_add_u32 s{sCU[1]}, s{sT1}, 110592
    s_add_u32 s{sCU[2]}, s{sT1}, 57344
    s_add_u32 s{sCU[3]}, s{sT1}, 131072
    s_mov_b32 s{sT0}, 77824
    s_cmp_eq_u32 s{sWR}, 0
    s_cselect_b32 s{sT0}, s{sT0}, 141312
    s_add_u32 s{sCU[4]}, s{sT1}, s{sT0}
    """)
def c_dma(i, rs, tag):
    out = []
    for g in range(5):
        op = lines(f"s_add_u32 s{sCt}, s{sCs}, {i*16*1280}") if g == 0 else []
        out.append(op + lines(f"s_add_u32 m0, s{sCU[i]}, {g*1024}") + [VM(f"buffer_load_dwordx4 v{vCD+g}, s[{rs}:{rs+3}], s{sCt} offen lds", tag, sep=True, ta=80)])
    return out
def c_read(im, B):
    k.e(f"""
    v_mul_u32_u24 v{B[5]}, 320, v{vN}
    v_lshl_add_u32 v{B[2]}, v{vQ}, 4, v{B[5]}
    v_lshrrev_b32 v{B[4]}, 1, v{vQ}
    v_mul_u32_u24 v{B[4]}, 80, v{B[4]}
    v_add_u32 v{B[5]}, v{B[5]}, v{B[4]}
    v_add_u32 v{B[0]}, s{sCU[0]}, v{B[2]}
    v_add_u32 v{B[1]}, s{sCU[1]}, v{B[2]}
    v_add_u32 v{B[2]}, s{sCU[4]}, v{B[2]}
    v_add_u32 v{B[3]}, s{sCU[0]}, v{B[5]}
    v_add_u32 v{B[4]}, s{sCU[1]}, v{B[5]}
    v_add_u32 v{B[5]}, s{sCU[4]}, v{B[5]}
    """)
    where = [(0, 0), (1, 0), (0, 57344 - 20480), (1, 131072 - 110592), (2, 0)]
    for a_ in range(2):
        for wr_ in range(2):
            kind, base = wreg(5*a_ + 2*wr_ + im)
            for i, (b_, o_) in enumerate(where):
                k.ds(f"ds_read_b128 {R(kind, base+4*i, 4)}, v{B[b_]} offset:{o_ + 160*a_ + 80*wr_}", "cr")
    m_ = "0xffff0000" if im else "0x0000ffff"
    k.e(f"s_mov_b32 exec_lo, {m_}\ns_mov_b32 exec_hi, {m_}")
    for a_ in range(2):
        kind, base = wreg(5*a_ + 4)
        for i, (b_, o_) in enumerate(where):
            k.ds(f"ds_read_b128 {R(kind, base+4*i, 4)}, v{B[3+b_]} offset:{o_ + 160*a_ + 64}", "cr")
    k.e("s_mov_b64 exec, -1")

def common_jobs(typ):
    j = {}
    def add(key, items): j[key] = j.get(key, []) + items
    j[0] = nonce_load()
    j[1 if OPT['xr0'] else 3] = rowstat_job(typ)
    vq = [] if OPT['xr0'] else [(0, 1.5, op) for op in xr_loads()]
    if OPT['pf']:
        for bi in OPT['pfb']: add(('pre', bi), [pf(0)])
    if typ == OPT["rpown"]:
        r0, rpst, rpfl = OPT["rp_" + typ]
        assert r0 % 2 == 1
        add(("wait", (r0 - 1) // 2), ["rp4"])
        add(("pre", r0), repack_read(typ))
        for f, bi in zip(repack_store(typ), rpst): add(("pre", bi), [f])
        vq += [OPT["rpd_" + typ] + (op,) for op in repack_dma()]
        a_, b_ = repack_flag()
        d_ = {}
        add(min(rpfl, 15) - 5, a_ + [note(d_, 1)])
        if rpfl < 20: add(("pre", rpfl), [F(lambda: d_[1], 0), b_])
        else: j["rpflag"] = b_
        if typ == "ssm":
            assert OPT.get("c0", 12) > r0 + 2
            add(("pre", r0), lines(f"s_mov_b32 s{rT}, s{sEx}\ns_mov_b32 s{rT+1}, s{sEx+1}\ns_mov_b32 s{rT+2}, {640*1280}"))
    if typ == "ssm":
        vq += [(e_, 99, op) for i, e_ in zip((0, 1, 2, 3, 4), (OPT.get("c0", 12), 15, 17, 17, 17)) for op in c_dma(i, rT, "cre")]
    else:
        add(OPT["tmlp"], touch_c())
        bi = OPT["rf_mlp"]
        RD_ = vT + 4
        if bi <= 20: add(("pre", bi - 1), [F(lambda: rflag_fetch(RD_), 2, ta=50)])
        def chk():
            k.wait_vm("rfv"); check("rf_" + typ, RFV, RD_)
        j["rfchk"] = chk
        if bi < 20:
            add(("pre", bi), [F(chk, 6)])
            vq += [(bi, 99, op) for tk in range(7) for op in wload(tk)]
    stats_jobs(typ, j)
    if 6 in OPT.get("x", ()) and typ == "mlp":
        for bi in range(20): j[("pre", bi)] = [f for f in j.get(("pre", bi), []) if f.ta != 240]
        k.seen.add(("rps", 4))
    if 3 in OPT.get("x", ()):
        j[3] = [f for f in j[3] if f.cost == 4][:1] if False else j[3][-8:]
        vq = [v for v in vq if v[1] != 1.5]
    return j, vq

TK = vT + 8
SA = 76
def stats_jobs(typ, j):
    nr = 6 if typ == "mlp" else 5
    L_SC, SCW = L_SCS[typ]
    k.e(f"""
    s_mul_i32 s{sT0}, s{sW}, {SCW}
    s_add_u32 s{sT0}, s{sT0}, {L_SC}
    v_lshlrev_b32 v{SA+1}, 4, v{vQ}
    v_add_u32 v{SA}, s{sT0}, v{SA+1}
    v_min_u32 v{SA+2}, 1, v{vN}
    v_mul_u32_u24 v{SA+2}, 0x30000, v{SA+2}
    v_add_u32 v{SA}, v{SA}, v{SA+2}
    s_mul_i32 s{sT0}, s{sWR}, {2*SCW}
    s_add_u32 s{sT0}, s{sT0}, {L_SC}
    v_add_u32 v{SA+1}, s{sT0}, v{SA+1}
    s_lshl_b32 s{sT0}, s{sWC}, 10
    v_lshlrev_b32 v{SA+2}, 6, v{vN}
    v_add_u32 v{SA+2}, s{sT0}, v{SA+2}
    v_lshlrev_b32 v{SA+3}, 3, v0
    """)
    j[OPT.get('rsb', 13)] = j.get(OPT.get('rsb', 13), []) + rowstat_fetch()
    def chk():
        k.wait_vm("rsv")
        check("rs_" + typ, RSV + 4, RSV, 4)
        k.ds(f"ds_write2_b32 v{SA+3}, v{RSV}, v{RSV+2} offset0:{L_TOK//4} offset1:{L_TOK//4+1}")
    j[("pre", 16)] = j.get(("pre", 16), []) + [F(chk, 8)]
    j["tail"] = [DSF(f"ds_read_b128 {V(TK+4*x,4)}, v{SA+2} offset:{L_TOK + x*16}") for x in range(4)]
    j["last"] = [DSF(f"ds_write_b128 v{SA}, {A(aCS+4*i,4)} offset:{i*64}") for i in range(nr)]
def stats(typ):
    nr = 6 if typ == "mlp" else 5
    CS = vT + 24; P2 = 100
    SCW = L_SCS[typ][1]
    k.wait_lg(); k.e("s_barrier")
    for i in range(nr):
        k.ds(f"ds_read_b128 {V(P2+4*i,4)}, v{SA+1} offset:{SCW+i*64}", ("cs", i))
    for i in (0, 1, 2, 4, 5, 3)[:nr + 1]:
        if i < nr: k.ds(f"ds_read_b128 {V(CS+4*i,4)}, v{SA+1} offset:{i*64}", ("cs", i))
    return TK, CS, P2
def stats_sum(typ, CS, P2):
    k.wait_lg()
    for i in range(6 if typ == "mlp" else 5):
        for h in range(2):
            k.e(f"v_pk_add_f32 {V(CS+4*i+2*h,2)}, {V(CS+4*i+2*h,2)}, {V(P2+4*i+2*h,2)}")

class Feeder:
    def __init__(self, jobs, every): self.jobs, self.every, self.n = list(jobs), every, 0
    def tick(self, n=1):
        self.n += n
        while self.n >= self.every and self.jobs:
            self.n -= self.every; run([self.jobs.pop(0)])
    def flush(self):
        while self.jobs: run([self.jobs.pop(0)])

HB = 88 * 4096
def h_base():
    k.e(f"""
    s_mul_i32 s{sH}, s{sMT}, {2*HB}
    s_lshl_b32 s{sT0}, s{sWC}, 11
    s_add_u32 s{sH}, s{sH}, s{sT0}
    s_add_u32 s{sH}, s{sH}, {WS_H}
    s_lshr_b32 s{sT0}, s{sNT}, 1
    s_mul_i32 s{sT0}, s{sT0}, 22
    s_and_b32 s{sT1}, s{sNT}, 1
    """)
HRING = [[("v", 40 + 4*s) for s in range(4)], [("v", 56 + 4*s) for s in range(4)], [("v", 72 + 4*s) for s in range(4)],
         [("a", 100), ("a", 104), ("a", 248), ("a", 252)]]
NR = len(HRING)
SPARE = [168, 172] + [acc(i, j) for i in range(1, 6) for j in (2, 3)]
NE = {"mlp": OPT["ne"], "ssm": 0}
vM26, vRw, vF, vFd, vHs, vNP, XO, LO = 24, 27, 28, 30, 32, 36, 38, 39
RES = 4
sPA, sPB_, sFA, sNP = 36, 64, 46, 84
def flag_addr():
    k.e(f"""
    s_lshl_b32 s{sT0}, s{sMT}, 4
    s_lshl_b32 s{sT1}, s{sTYP}, 3
    s_add_u32 s{sT0}, s{sT0}, s{sT1}
    s_lshl_b32 s{sT1}, s{sW}, 1
    s_add_u32 s{sT1}, s{sT0}, s{sT1}
    s_lshl_b32 s{sT1}, s{sT1}, 7
    s_lshl_b32 s{sT3}, s{sTYP}, 5
    s_add_u32 s{sT3}, s{sT3}, {WS_HF}
    s_add_u32 s{sFA}, s{sT1}, s{sT3}
    s_xor_b32 s{sFA+1}, s{sFA}, 32
    s_add_u32 s{sT0}, s{sT0}, s{sNT}
    s_lshl_b32 s{sT0}, s{sT0}, 7
    s_lshl_b32 s{sT1}, s{sW}, 3
    s_add_u32 s{sT0}, s{sT0}, s{sT1}
    s_add_u32 s{sLW}, s{sT0}, s{sT3}
    s_xor_b32 s{sLX}, s{sLW}, 32
    s_mov_b32 s{sNP}, s{sNonce}
    s_mov_b32 s{sNP+1}, s{sNonce}
    v_mov_b32 v{vNP}, s{sNonce}
    v_mov_b32 v{vNP+1}, s{sNonce}
    v_lshlrev_b32 v{vM26}, 26, v{vL}
    """)
    for s in range(4):
        k.e(f"s_xor_b32 s{sT0}, s{sW}, {s}\ns_lshl_b32 s{sT0}, s{sT0}, 10\nv_add_u32 v{vHs+s}, s{sT0}, v{vL16}")
def spoll(h):
    return f"""s_add_u32 s{sT0}, s{sFA+h}, 128
    s_load_dwordx8 s[{sPA}:{sPA+7}], s[{pWs}:{pWs+1}], s{sFA+h} glc
    s_load_dwordx8 s[{sPB_}:{sPB_+7}], s[{pWs}:{pWs+1}], s{sT0} glc"""
def scheck(tag, h):
    k.e(f"s_branch L_sc1_{tag}\nL_sc0_{tag}:\ns_sub_u32 s{sSpin}, s{sSpin}, 1\ns_cbranch_scc1 L_end")
    k.e(spoll(h))
    if OPT.get("cnt") and tag == "hmmlp": k.e("s_add_u32 s101, s101, 1")
    k.e(f"L_sc1_{tag}:\ns_waitcnt lgkmcnt(0)"); k.lg = []
    for b_ in (sPA, sPB_):
        for x in range(4): k.e(f"s_cmp_eq_u64 s[{b_+2*x}:{b_+2*x+1}], s[{sNP}:{sNP+1}]\ns_cbranch_scc0 L_sc0_{tag}")
def put_flag(tag, so):
    k.wait_vm(tag)
    k.vmem(f"buffer_store_dwordx2 {V(vNP,2)}, v{vM26}, s[{rWS}:{rWS+3}], s{so} offen sc1", "fl")
def x_loads(X, t):
    k.e(f"""
    s_lshl_b32 s{sT0}, s{sWR}, 6
    s_add_u32 s{sT0}, s{sT0}, s{sWC}
    s_lshl_b32 s{sT1}, s{sHALF}, 1
    s_add_u32 s{sT0}, s{sT0}, s{sT1}
    s_lshl_b32 s{sT1}, s{sMT}, 7
    s_add_u32 s{sT1}, s{sT1}, s{sT0}
    s_mul_i32 s{sX}, s{sT1}, 1280
    s_mul_i32 s{sT1}, s{sDT}, 160
    s_add_u32 s{sX}, s{sX}, s{sT1}
    s_lshl_b32 s{sT0}, s{sT0}, 4
    v_lshrrev_b32 v{t}, 2, v{vL}
    v_and_b32 v{LO}, 3, v{vL}
    v_lshlrev_b32 v{t+1}, 3, v{LO}
    v_mul_u32_u24 v{XO}, 5120, v{t}
    v_add_u32 v{XO}, v{XO}, v{t+1}
    v_bfe_u32 v{X[0]}, v{t}, 1, 2
    v_xor_b32 v{LO}, v{LO}, v{X[0]}
    v_lshlrev_b32 v{LO}, 4, v{LO}
    v_mad_u32_u24 v{LO}, v{t}, s{sKs}, v{LO}
    v_lshlrev_b32 v{t}, 6, v{t}
    v_add_u32 v{t}, s{sT0}, v{t}
    """.replace("    v_mad", f"    s_movk_i32 s{sKs}, {RROW}\n    v_mad"))
    for g in range(5): k.vmem(f"buffer_load_dwordx2 {V(X[g],2)}, v{XO}, s[{rX}:{rX+3}], s{sX} offen offset:{32*g}", "ep")
def residual(X, t, U):
    ED, EB, TKv = U, U + 10, U + 20
    k.ds(f"ds_read_b64 {V(TKv,2)}, v{t} offset:{L_TOK}", "tk")
    for reg, o_ in ((ED, 0), (EB, 160)):
        for g in range(5): k.ds(f"ds_read_b64 {V(reg+2*g,2)}, v{t+1} offset:{L_DB + o_ + 32*g}", "tk")
    k.wait_vm("ep"); k.wait_lg()
    for g in range(5):
        xf, df, bf_ = U + 22, U + 26, U + 30
        for src, dst in ((X[g], xf), (ED + 2*g, df), (EB + 2*g, bf_)):
            for h in range(2):
                k.e(f"v_lshlrev_b32 v{dst+2*h}, 16, v{src+h}\nv_and_b32 v{dst+2*h+1}, 0xffff0000, v{src+h}")
        A_ = [RES + 4*g, RES + 4*g + 2]
        def rnd():
            for a in A_: k.e(f"v_cvt_pk_bf16_f32 v{a+1}, v{a}, v{a+1}")
            for a in A_: k.e(f"v_lshlrev_b32 v{a}, 16, v{a+1}\nv_and_b32 v{a+1}, 0xffff0000, v{a+1}")
        for h, a in enumerate(A_): k.e(f"v_pk_add_f32 {V(a,2)}, {V(xf+2*h,2)}, {V(TKv,2)} op_sel:[0,0] op_sel_hi:[1,0] neg_lo:[0,1] neg_hi:[0,1]")
        rnd()
        for h, a in enumerate(A_): k.e(f"v_pk_mul_f32 {V(a,2)}, {V(a,2)}, {V(TKv,2)} op_sel:[0,1] op_sel_hi:[1,1]")
        rnd()
        for h, a in enumerate(A_): k.e(f"v_pk_mul_f32 {V(a,2)}, {V(a,2)}, {V(df+2*h,2)}")
        rnd()
        for h, a in enumerate(A_): k.e(f"v_pk_add_f32 {V(a,2)}, {V(a,2)}, {V(xf+2*h,2)}")
        for h, a in enumerate(A_): k.e(f"v_pk_add_f32 {V(a,2)}, {V(a,2)}, {V(bf_+2*h,2)}")
def residual_fill(t):
    ED = [176, 178, 180, 182, 192]; EB = [194, 196, 198, 208, 210]; TKv = 212
    U = [224, 240]
    out = [DSF(f"ds_read_b64 {V(TKv,2)}, v{t} offset:{L_TOK}", "tk")]
    for reg, o_ in ((ED, 0), (EB, 160)):
        out += [DSF(f"ds_read_b64 {V(reg[g],2)}, v{t+1} offset:{L_DB + o_ + 32*g}", "tk") for g in range(5)]
    run(out)
    out = [F(lambda: k.wait_lg("tk"), 1)]
    def chain(p_):
        x0, x1, t0, t1, d0, d1 = [U[p_ & 1] + x for x in range(6)]
        r0, r1 = RES + 2*p_, RES + 2*p_ + 1
        xi, di, bi = RES + 10 + p_, ED[p_ // 2] + (p_ & 1), EB[p_ // 2] + (p_ & 1)
        rnd = f"v_cvt_pk_bf16_f32 v{t1}, v{t0}, v{t1}\nv_lshlrev_b32 v{t0}, 16, v{t1}\nv_and_b32 v{t1}, 0xffff0000, v{t1}\n"
        return [l.strip() for l in f"""
        v_lshlrev_b32 v{x0}, 16, v{xi}
        v_and_b32 v{x1}, 0xffff0000, v{xi}
        v_sub_f32 v{t0}, v{x0}, v{TKv}
        v_sub_f32 v{t1}, v{x1}, v{TKv}
        {rnd}
        v_mul_f32 v{t0}, v{t0}, v{TKv+1}
        v_mul_f32 v{t1}, v{t1}, v{TKv+1}
        {rnd}
        v_lshlrev_b32 v{d0}, 16, v{di}
        v_and_b32 v{d1}, 0xffff0000, v{di}
        v_mul_f32 v{t0}, v{t0}, v{d0}
        v_mul_f32 v{t1}, v{t1}, v{d1}
        {rnd}
        v_lshlrev_b32 v{d0}, 16, v{bi}
        v_and_b32 v{d1}, 0xffff0000, v{bi}
        v_add_f32 v{t0}, v{x0}, v{t0}
        v_add_f32 v{t1}, v{x1}, v{t1}
        v_add_f32 v{r0}, v{t0}, v{d0}
        v_add_f32 v{r1}, v{t1}, v{d1}
        """.split("\n") if l.strip()]
    txt = []
    for p_ in range(0, 10, 2):
        for a_, b_ in zip(chain(p_), chain(p_ + 1)): txt += [a_, b_]
    return out + lines("\n".join(txt))
def hdest(typ, t):
    e_ = NE[typ]
    return [("v", SPARE[4*t + s]) for s in range(4)] if t < e_ else HRING[(t - e_) % NR]
def hload(typ, t):
    ring = hdest(typ, t); n_ = NK[typ]
    return kaddr(sT3, sHa + 2*(t // n_), t % n_, 4096), [[VM(f"buffer_load_dwordx4 {R(ring[s][0], ring[s][1], 4)}, v{vHs+s}, s[{rWS}:{rWS+3}], s{sT3} offen sc1", ("h", t))] for s in range(4)]
def h_issue(typ, ts):
    out = []
    for t in ts:
        a_, b_ = hload(typ, t); out.append(a_ + b_[0]); out += b_[1:]
    return out

def ones():
    k.e(f"v_mov_b32 v{vT+6}, 0x3f803f80")
    for i in range(4): k.e(f"v_accvgpr_write_b32 a{aONE+i}, v{vT+6}")

t = vT
WOFF["mlp"] = f"""
    v_and_b32 v{t+2}, 2, v{t}
    v_xor_b32 v{t+2}, v{t+1}, v{t+2}
    v_mul_u32_u24 v{t+3}, 3072, v{t}
    v_lshl_add_u32 v{vDW}, v{t+2}, 4, v{t+3}
    v_xor_b32 v{vDW+1}, 64, v{vDW}
    s_mul_i32 s{sB0}, s{sW}, {16*3072}
    s_mul_i32 s{sT0}, s{sNT}, 384
    s_add_u32 s{sB0}, s{sB0}, s{sT0}
    s_add_u32 s{sB2}, s{sB0}, {8*3072}
    s_lshl_b32 s{sLW}, s{sW}, 11
    """
def path_mlp():
    typ = "mlp"; t = vT
    late_common(typ)
    k.e(f"""
    v_lshrrev_b32 v{t}, 2, v{vN}
    v_lshl_add_u32 v{t+1}, v{vQ}, 3, v{t}
    v_lshlrev_b32 v{t+1}, 7, v{t+1}
    v_and_b32 v{t+2}, 3, v{vN}
    v_lshl_add_u32 v{t+1}, v{t+2}, 3, v{t+1}
    v_lshrrev_b32 v{t}, 1, v{t}
    v_and_b32 v{t+2}, 1, v{vQ}
    v_lshl_add_u32 v{t}, v{t+2}, 1, v{t}
    s_lshl_b32 s{sT0}, s{sKs}, 12
    s_add_u32 s{sT0}, s{sT0}, {L_W}
    v_add_u32 v{t+1}, s{sT0}, v{t+1}
    s_mul_i32 s{sT2}, s{sWR}, 6
    """)
    for i in range(4):
        k.e(f"""
        s_add_u32 s{sT3}, s{sT2}, {i}
        s_lshr_b32 s{sT0}, s{sT3}, 2
        s_lshl_b32 s{sT0}, s{sT0}, 13
        s_and_b32 s{sT3}, s{sT3}, 3
        v_xor_b32 v{t+2}, s{sT3}, v{t}
        v_lshl_add_u32 v{t+2}, v{t+2}, 5, v{t+1}
        v_add_u32 v{vWA+i}, s{sT0}, v{t+2}
        v_xor_b32 v{vWA+4+i}, 4096, v{vWA+i}
        """)
    Kc = 2 * 0.7978845608028654 * 1.4426950408889634
    k.e(f"s_mov_b32 s{sK}, {hx(-Kc*0.044715)}\ns_mov_b32 s{sK+1}, {hx(-Kc)}")
    ones()
    xr_setup()
    if OPT['rpown'] == typ: repack_setup(typ)
    small_loads(typ)
    touch_setup()
    p2_addr(typ)
    stamp(14)
    jobs, vq = common_jobs(typ)
    k.e(f"s_mul_i32 s{sT0}, s{sWR}, 192\nv_lshlrev_b32 v{t+3}, 3, v{vQ}\nv_add_u32 v{t+3}, s{sT0}, v{t+3}")
    jobs["tail"] += [DSF(f"ds_read_b64 {V(vB1+2*i,2)}, v{t+3} offset:{L_B1 + 32*i}") for i in range(6)]
    left = main_loop(typ, jobs, vq, [])
    TK, CS, P2 = stats(typ)
    stamp()
    if OPT["rf_mlp"] >= 20:
        if OPT["rf_mlp"] == 20: jobs["rfchk"]()
        left = [op for tk in range(7) for op in wload(tk)]
    pend = [(6 - (len(left) - 1 - x) // 5, op) for x, op in enumerate(left)] + [(tk, op) for tk in range(7, NK[typ]) for op in wload(tk)]
    if 5 in OPT.get("x", ()):
        pend = []; k.seen.update(("w", x) for x in range(12))
    ne = OPT.get("ne_mlp", 0)
    fd = Feeder([op for _, op in pend[:ne]], 29 * 12 // max(1, ne))
    pend = pend[ne:]
    h_base()
    k.e(f"""
    s_mul_i32 s{sT1}, s{sT1}, 6
    s_add_u32 s{sT0}, s{sT0}, s{sT1}
    s_mul_i32 s{sT1}, s{sWR}, 3
    s_add_u32 s{sT0}, s{sT0}, s{sT1}
    s_lshl_b32 s{sT0}, s{sT0}, 12
    s_add_u32 s{sH}, s{sH}, s{sT0}
    """)
    stats_sum(typ, CS, P2)
    B = 100
    for i in range(6):
        for h in range(2):
            k.e(f"v_lshlrev_b32 v{B+4*i+2*h}, 16, v{vB1+2*i+h}\nv_and_b32 v{B+4*i+2*h+1}, 0xffff0000, v{vB1+2*i+h}")
    TM = 124
    OUT = [88, 92]
    XT = 96
    if OPT["rf_mlp"] > 20: k.e(f"v_mov_b32 v{vT+6}, v{RFV}")
    flag_addr()
    x_loads([RES + 10 + 2*g for g in range(5)], XT)
    k.e(f"s_add_u32 s{sB0}, s{sH}, {HB}")
    n_ = 0
    for hf, u, j in [(hf, u, 2*hf + jj) for hf in (1, 0) for u in range(3) for jj in range(2)]:
        if True:
            o = OUT[n_ & 1]; n_ += 1
            if n_ == 2 and "rpflag" in jobs: jobs["rpflag"]()
            if n_ == OPT["rfg"] and OPT["rf_mlp"] > 20: k.vmem(f"buffer_load_dwordx2 {V(vT+4,2)}, v{vT+6}, s[{rWS}:{rWS+3}], 0 offen sc1", "rfv")
            if n_ == OPT["fa"]: put_flag(("hs", 1), sLW)
            if n_ == OPT.get('sp', 12): k.e(spoll(0))
            k.raw(".p2align 3")
            prs = [(2*u + ii, h) for ii in range(2) for h in range(2)]
            Z = [acc(i, j) + 2*h for i, h in prs]
            T1 = [TM + 2*x for x in range(4)]; T2 = [TM + 8 + 2*x for x in range(4)]
            for x, (i, h) in enumerate(prs):
                k.e(f"v_pk_fma_f32 {V(T1[x],2)}, {V(CS+4*i+2*h,2)}, {V(TK+4*j+2,2)}, {V(B+4*i+2*h,2)} op_sel:[0,1,0] op_sel_hi:[1,1,1] neg_lo:[0,1,0] neg_hi:[0,1,0]")
            for x in range(4):
                k.e(f"v_pk_fma_f32 {V(Z[x],2)}, {V(Z[x],2)}, {V(TK+4*j+2,2)}, {V(T1[x],2)} op_sel:[0,0,0] op_sel_hi:[1,0,1]")
            fd.tick(12)
            for x in range(4): k.e(f"v_pk_mul_f32 {V(T1[x],2)}, {V(Z[x],2)}, {V(Z[x],2)}")
            for x in range(4): k.e(f"v_pk_fma_f32 {V(T1[x],2)}, {V(T1[x],2)}, s[{sK}:{sK+1}], s[{sK}:{sK+1}] op_sel:[0,0,1] op_sel_hi:[1,0,1]")
            for x in range(4): k.e(f"v_pk_mul_f32 {V(T1[x],2)}, {V(T1[x],2)}, {V(Z[x],2)}")
            for x in range(4): k.e(f"v_exp_f32 v{T2[x]}, v{T1[x]}\nv_exp_f32 v{T2[x]+1}, v{T1[x]+1}")
            fd.tick(12)
            for x in range(4): k.e(f"v_pk_add_f32 {V(T2[x],2)}, {V(T2[x],2)}, 1.0 op_sel_hi:[1,0]")
            for x in range(4): k.e(f"v_rcp_f32 v{T2[x]}, v{T2[x]}\nv_rcp_f32 v{T2[x]+1}, v{T2[x]+1}")
            if n_ < 12: fd.tick(12)
            for x in range(4): k.e(f"v_pk_mul_f32 {V(Z[x],2)}, {V(Z[x],2)}, {V(T2[x],2)}")
            for x in range(4): k.e(f"v_cvt_pk_bf16_f32 v{o+x}, v{Z[x]}, v{Z[x]+1}")
            if n_ == 12: fd.flush()
            so = sB0 if hf else sH
            k.vmem(f"buffer_store_dwordx4 {V(o,4)}, v{vL16}, s[{rWS}:{rWS+3}], s{so} offen offset:{(j & 1)*1024} sc1", ("hs", hf))
            if j & 1 and u < 2: k.e(f"s_add_u32 s{so}, s{so}, 4096")
    stamp()
    if OPT["rf_mlp"] > 20:
        k.wait_vm("rfv"); check("rf_mlp", vT + 6, vT + 4)
    run([op for _, op in pend[:OPT["wfirst"]]]); pend = pend[OPT["wfirst"]:]
    if OPT.get("cnt"): k.e("s_mov_b32 s101, 0")
    scheck("hm" + typ, 0)
    if OPT.get("cnt"): k.e(f"s_nop 0\nv_writelane_b32 v{vST}, s101, 59")
    stamp(7)
    assert OPT["hw"] == NR
    run(h_issue(typ, range(OPT["hw"])))
    res = residual_fill(XT)
    run([op for _, op in pend[:OPT["post0"]]]); pend = pend[OPT["post0"]:]
    stamp(8)
    phase2(typ, pend, h_issue(typ, range(OPT["hw"], NR)), res, ("hs", 0), 0)

def cmul_acc(d, a, b, c):
    k.e(f"v_pk_fma_f32 {V(d,2)}, {V(a,2)}, {V(b,2)}, {V(c,2)} op_sel:[0,0,0] op_sel_hi:[1,0,1]")
    k.e(f"v_pk_fma_f32 {V(d,2)}, {V(a,2)}, {V(b,2)}, {V(d,2)} op_sel:[1,1,0] op_sel_hi:[0,1,1] neg_lo:[0,1,0]")

PR = 100
def masked(m, ins):
    def f():
        k.e(f"s_mov_b32 exec_lo, {m}\ns_mov_b32 exec_hi, {m}"); k.ds(ins); k.e("s_mov_b64 exec, -1")
    return F(f, 4, ds=True)
def power(KK, al, be, t):
    x, y, c_, s_ = t+10, t+11, t+12, t+13
    return lines(f"""
    v_mul_f32 v{y}, v{KK}, v{be}
    v_mul_f32 v{x}, v{KK}, v{al}
    v_fract_f32 v{y}, v{y}
    v_cos_f32 v{c_}, v{y}
    v_sin_f32 v{s_}, v{y}
    v_exp_f32 v{x}, v{x}
    s_nop 0
    v_mul_f32 v{t+14}, v{x}, v{c_}
    v_mul_f32 v{t+15}, v{x}, v{s_}
    """)
def table_a():
    t = 80; CH_ = vB1 + 10
    lr, li, dt, al, be, KK, AD = PR, PR+1, PR+2, t+8, t+9, t, t+1
    x, y, c_, s_ = t+10, t+11, t+12, t+13
    LOG2E = 1.4426950408889634
    fl = lines(f"""
    v_lshlrev_b32 v{dt}, 16, v{dt}
    v_lshlrev_b32 v{lr}, 16, v{lr}
    v_mul_f32 v{dt}, {hx(LOG2E)}, v{dt}
    v_exp_f32 v{dt}, v{dt}
    v_lshlrev_b32 v{li}, 16, v{li}
    {bfr(dt, dt)}
    v_mul_f32 v{al}, v{dt}, v{lr}
    v_mul_f32 v{be}, v{dt}, v{li}
    v_mul_f32 v{al}, {hx(LOG2E)}, v{al}
    v_mul_f32 v{be}, 0.15915494, v{be}
    v_lshlrev_b32 v{KK}, 6, v{CH_+1}
    v_max_u32 v{KK}, 1, v{KK}
    v_cvt_f32_u32 v{KK}, v{KK}
    v_lshlrev_b32 v{AD}, 3, v{CH_}
    """)
    fl.append(DSF(f"ds_write_b64 v{AD}, {V(al,2)} offset:{L_EX}"))
    fl.append(note(mk, 'ab'))
    fl += power(KK, al, be, t)
    fl += lines(f"""
    v_lshlrev_b32 v{AD}, 3, v{CH_+1}
    v_min_u32 v{x}, 1, v{CH_+1}
    v_mad_u32_u24 v{AD}, v{x}, 40, v{AD}
    v_lshl_add_u32 v{AD}, v{CH_}, 6, v{AD}
    """)
    fl.append(DSF(f"ds_write_b64 v{AD}, {V(t+14,2)} offset:{L_CH}"))
    fl += lines(f"""
    v_mul_f32 v{y}, v{lr}, v{lr}
    v_add_f32 v{x}, -1.0, v{t+14}
    v_fma_f32 v{y}, v{li}, v{li}, v{y}
    v_rcp_f32 v{y}, v{y}
    v_mul_f32 v{c_}, v{x}, v{lr}
    v_fma_f32 v{c_}, v{t+15}, v{li}, v{c_}
    v_mul_f32 v{s_}, v{t+15}, v{lr}
    v_fma_f32 v{s_}, -v{x}, v{li}, v{s_}
    v_add_f32 v{y}, v{y}, v{y}
    v_mul_f32 v{t+16}, v{c_}, v{y}
    v_mul_f32 v{t+17}, v{s_}, v{y}
    """)
    fl += lines(f"v_min_u32 v{x}, 1, v{CH_+1}\nv_mul_u32_u24 v{x}, 0x30000, v{x}\nv_add_u32 v{AD}, v{AD}, v{x}")
    fl.append(DSF(f"ds_write_b64 v{AD}, {V(t+16,2)} offset:{L_CH + 8}"))
    return fl
def table_rd():
    t = 80
    return [DSF(f"ds_read_b64 {V(PR+4+2*u,2)}, v{t+3} offset:{L_EX + u*128}") for u in range(5)]
def table_b():
    t = 80
    K1, APW, R1 = t+7, t+4, t+5
    k.e(f"""
    v_lshrrev_b32 v{t+2}, 4, v0
    v_lshlrev_b32 v{t+3}, 3, v{t+2}
    v_lshlrev_b32 v{K1}, 2, v{vN}
    v_cvt_f32_u32 v{K1}, v{K1}
    v_lshlrev_b32 v{APW}, 7, v{t+2}
    v_lshl_add_u32 v{APW}, v{vN}, 3, v{APW}
    v_ffbl_b32 v{R1}, v{vN}
    v_lshlrev_b32 v{R1}, 3, v{R1}
    v_lshl_add_u32 v{R1}, v{t+2}, 6, v{R1}
    v_bcnt_u32_b32 v{t+6}, v{vN}, -1
    v_min_u32 v{t+6}, 1, v{t+6}
    v_mul_u32_u24 v{t+6}, 0x30000, v{t+6}
    v_add_u32 v{R1}, v{R1}, v{t+6}
    """)
    fl = []
    for u in range(5):
        fl += power(K1, PR+4+2*u, PR+5+2*u, t)
        fl.append(DSF(f"ds_write_b64 v{APW}, {V(t+14,2)} offset:{L_PW + u*2048}"))
        fl.append(DSF(f"ds_write_b64 v{R1}, {V(t+14,2)} offset:{L_CH + 16 + u*1024}"))
    return fl

WOFF["ssm"] = f"""
    v_and_b32 v{t+2}, 6, v{t}
    v_or_b32 v{t+3}, s{sWC}, v{t+2}
    v_xor_b32 v{t+1}, v{t+1}, v{t+3}
    v_lshlrev_b32 v{t+1}, 4, v{t+1}
    v_and_b32 v{t+3}, 1, v{t}
    v_lshl_add_u32 v{t+2}, v{t+2}, 2, v{t+3}
    v_mul_u32_u24 v{t+2}, 1280, v{t+2}
    v_add_u32 v{vDW}, v{t+2}, v{t+1}
    v_add_u32 v{t+2}, 32, v{t}
    v_mul_u32_u24 v{t+2}, 1280, v{t+2}
    v_add_u32 v{vDW+1}, v{t+2}, v{t+1}
    s_mul_i32 s{sT0}, s{sNT}, 80
    s_mul_i32 s{sT1}, s{sWR}, 40
    s_add_u32 s{sT0}, s{sT0}, s{sT1}
    s_mul_i32 s{sB0}, s{sT0}, 1280
    s_add_u32 s{sB2}, s{sB0}, 5120
    s_mul_i32 s{sLW}, s{sWR}, 10240
    s_lshl_b32 s{sT0}, s{sWC}, 10
    s_add_u32 s{sLW}, s{sLW}, s{sT0}
    """
def path_ssm():
    typ = "ssm"; t = vT
    late_common(typ)
    k.e(f"""
    v_and_b32 v{t+1}, 1, v{vN}
    v_lshrrev_b32 v{t+2}, 2, v{vN}
    v_lshl_add_u32 v{t+2}, v{t+2}, 1, v{t+1}
    v_xor_b32 v{t}, v{t+4}, v{t+2}
    v_lshlrev_b32 v{t}, 4, v{t}
    v_lshl_add_u32 v{t}, v{t+1}, 10, v{t}
    v_lshrrev_b32 v{t+2}, 1, v{vN}
    v_lshl_add_u32 v{t}, v{t+2}, 7, v{t}
    s_mul_i32 s{sT0}, s{sWR}, 10240
    s_add_u32 s{sT0}, s{sT0}, {L_W}
    v_add_u32 v{vWA}, s{sT0}, v{t}
    v_xor_b32 v{vWA+1}, 64, v{vWA}
    """)
    ones()
    xr_setup()
    k.e(f"""
    v_mul_u32_u24 v{vB1+11}, 820, v0
    v_lshrrev_b32 v{vB1+11}, 16, v{vB1+11}
    v_min_u32 v{vB1+11}, 2, v{vB1+11}
    v_mul_u32_u24 v{t+1}, 80, v{vB1+11}
    v_sub_u32 v{vB1+10}, v0, v{t+1}
    v_min_u32 v{vB1+10}, 79, v{vB1+10}
    s_mul_i32 s{sT0}, s{sNT}, 160
    v_lshlrev_b32 v{t+1}, 1, v{vB1+10}
    s_mov_b32 s{rT+2}, 1280
    s_mov_b32 s{rT+3}, 0x20000
    """)
    for pi, ptr in enumerate((pLre, pLim, pLdt)):
        k.e(f"s_mov_b32 s{rT}, s{ptr}\ns_mov_b32 s{rT+1}, s{ptr+1}")
        k.vmem(f"buffer_load_ushort v{PR+pi}, v{t+1}, s[{rT}:{rT+3}], s{sT0} offen", "par")
    if OPT['rpown'] == typ: repack_setup(typ)
    small_loads(typ)
    c_setup()
    p2_addr(typ)
    stamp(14)
    jobs, vq = common_jobs(typ)
    jobs[("wait", 0)] = ["par"]
    tj = table_a() + [gate(lambda: curblk[0] % 2 == 1 and curblk[0] > mk['ab'])] + table_rd() + [note(mk, 'rd'), gate(lambda: curblk[0] > mk['rd'])] + table_b()
    vC0, vC1, vP0, vP1, vE0, vE1, vGc, vGr, vPub = vB1, vB1+1, vB1+2, vB1+3, vB1+4, vB1+5, vB1+6, vB1+7, vB1+8
    CH_, WH_ = vB1 + 10, vB1 + 11
    vG = 114
    sVal = [28, 30, 36, 38, 40]
    u_ = 96
    ad = lines(f"""
    s_mul_i32 s{sT0}, s{sWR}, 40
    v_lshlrev_b32 v{u_}, 3, v{vQ}
    v_add_u32 v{u_}, s{sT0}, v{u_}
    v_lshlrev_b32 v{u_+1}, 1, v{vQ}
    v_add_u32 v{u_+1}, s{sT0}, v{u_+1}
    v_add_u32 v{u_+1}, 32, v{u_+1}
    v_lshlrev_b32 v{vC0}, 6, v{u_}
    v_lshlrev_b32 v{vC1}, 6, v{u_+1}
    v_lshlrev_b32 v{u_+2}, 3, v{vN}
    v_lshl_add_u32 v{vP0}, v{u_}, 7, v{u_+2}
    v_lshl_add_u32 v{vP1}, v{u_+1}, 7, v{u_+2}
    s_mul_i32 s{sT0}, s{sWC}, 640
    v_lshlrev_b32 v{vE0}, 3, v{u_}
    v_lshlrev_b32 v{vE1}, 3, v{u_+1}
    v_add_u32 v{vE0}, s{sT0}, v{vE0}
    v_add_u32 v{vE1}, s{sT0}, v{vE1}
    v_sub_u32 v{u_+2}, 15, v{vN}
    v_min_u32 v{u_+2}, 1, v{u_+2}
    v_mul_u32_u24 v{u_+2}, 0x30000, v{u_+2}
    v_add_u32 v{vB1+9}, v{u_+2}, v{vE0}
    v_add_u32 v119, v{u_+2}, v{vE1}
    v_lshlrev_b32 v{vGc}, 3, v{CH_}
    v_lshlrev_b32 v{vGr}, 6, v{CH_}
    v_lshlrev_b32 v{u_}, 4, v{CH_}
    v_lshl_add_u32 v{vPub}, v{WH_}, 26, v{u_}
    v_mul_u32_u24 v{u_+2}, 5, v{WH_}
    v_sub_u32 v{u_+2}, s{sMT}, v{u_+2}
    """)
    for i in range(5):
        ad += lines(f"""
        v_add_u32 v{u_+2}, -1, v{u_+2}
        v_mul_i32_i24 v{vG+i}, 1280, v{u_+2}
        v_cmp_le_i32 s[{sVal[i]}:{sVal[i]+1}], 0, v{u_+2}
        v_add_u32 v{vG+i}, v{vG+i}, v{u_}
        v_min_u32 v{vG+i}, {OOB}, v{vG+i}
        """)
    for f in ad: f()
    stamp(61)
    tj = tj + lines(f"""
    s_mul_i32 s{sHw}, s{sNT}, {16*1280}
    s_add_u32 s{sHw}, s{sHw}, {WS_E}
    s_mul_i32 s{sH}, s{sMT}, 1280
    s_add_u32 s{sH}, s{sH}, s{sHw}
    """)
    if OPT.get('lv', 9) < 2: tj = []
    left = main_loop(typ, jobs, vq, tj)
    vG2 = 8
    for i in range(6): k.e(f"v_mov_b32 v{vG2+i}, v{vG+i}")
    TK, CS, P2 = stats(typ)
    stamp()
    fd = Feeder(left, 200 // max(1, len(left)))
    wd = [op for i in range(5) for op in c_dma(i, rT2, "cim")]; e1 = 0; ew = 25
    if 4 in OPT.get("x", ()): wd = wd[:1]; ew = 1
    slots = [(i, h) for i in range(5) for h in range(2)]
    def rec(i, h): return (vC0, L_CH + (2*i + h)*64) if i < 4 else (vC1, L_CH + h*64)
    LC = 100
    stats_sum(typ, CS, P2)
    for x, (i, h) in enumerate(slots):
        a_, o_ = rec(i, h); k.ds(f"ds_read_b128 {V(LC+4*x,4)}, v{a_} offset:{o_}", ("lc", x))
    k.raw(".p2align 3")
    for x, (i, h) in enumerate(slots):
        fd.tick(8)
        for j in range(4):
            z = acc(i, j) + 2*h
            k.e(f"v_pk_fma_f32 {V(z,2)}, {V(CS+4*i+2*h,2)}, {V(TK+4*j,2)}, {V(z,2)} op_sel:[0,0,0] op_sel_hi:[1,0,1] neg_lo:[0,1,0] neg_hi:[0,1,0]")
        for j in range(4):
            z = acc(i, j) + 2*h
            k.e(f"v_pk_mul_f32 {V(z,2)}, {V(z,2)}, {V(TK+4*j,2)} op_sel:[0,1] op_sel_hi:[1,1]")
    EE = 140; TMP = 88
    MU = [t, t + 20]
    def load_mu(st):
        for x, (i, h) in enumerate(slots):
            a_, o_ = rec(i, h); k.ds(f"ds_read_b64 {V(MU[st & 1]+2*x,2)}, v{a_} offset:{o_ + 16 + 8*st}", ("mu", st))
    k.wait_lg()
    load_mu(0); load_mu(1)
    def ereg(x): return EE + 2*x
    def treg(x): return (240 + 2*x) if x < 8 else (TMP + 2*(x - 8))
    k.raw(".p2align 3")
    for x, (i, h) in enumerate(slots): cmul_acc(ereg(x), acc(i,0)+2*h, LC+4*x, acc(i,1)+2*h)
    fd.tick(20)
    for x, (i, h) in enumerate(slots): cmul_acc(treg(x), ereg(x), LC+4*x, acc(i,2)+2*h)
    fd.tick(20)
    for x, (i, h) in enumerate(slots): cmul_acc(ereg(x), treg(x), LC+4*x, acc(i,3)+2*h)
    PWv = t
    for st, sh in enumerate((1, 2, 4, 8)):
        fd.tick(20)
        k.raw(".p2align 3")
        for x in range(10):
            k.e(f"v_mov_b32_dpp v{treg(x)}, v{ereg(x)} row_shr:{sh} row_mask:0xf bank_mask:0xf bound_ctrl:0")
            k.e(f"v_mov_b32_dpp v{treg(x)+1}, v{ereg(x)+1} row_shr:{sh} row_mask:0xf bank_mask:0xf bound_ctrl:0")
        fd.tick(20)
        k.wait_lg(("mu", st))
        k.raw(".p2align 3")
        for x in range(10): cmul_acc(ereg(x), treg(x), MU[st & 1]+2*x, ereg(x))
        if st < 2: load_mu(st + 2)
        if st == 2:
            for x, (i, h) in enumerate(slots):
                k.ds(f"ds_read_b64 {V(PWv+2*x,2)}, v{vP0 if i < 4 else vP1} offset:{L_PW + ((2*i+h)*128 if i < 4 else h*128)}", "pw")
    for i in range(5):
        k.ds(f"ds_write_b128 v{vB1+9 if i < 4 else 13}, {V(EE+4*i,4)} offset:{L_EX + (16*i if i < 4 else 0)}")
    ch = t + 20
    E0, E1, LL, ET, GA = ch, ch+2, ch+4, ch+8, 14
    GA = [ch+8, ch+12, ch+16, ch+20, ch+24]
    k.ds(f"ds_read_b128 {V(LL,4)}, v{vGr} offset:{L_CH+48}", "e")
    k.e(f"v_mov_b32 v{ET+1}, s{sNonce}\nv_mov_b32 v{ET+3}, s{sNonce}")
    fd.flush()
    k.wait_lg()
    k.e("s_barrier")
    k.ds(f"ds_read_b64 {V(E0,2)}, v{vGc} offset:{L_EX}", "e")
    k.ds(f"ds_read_b64 {V(E1,2)}, v{vGc} offset:{L_EX+640}", "e")
    k.wait_lg()
    cmul_acc(E1, E0, LL, E1)
    k.e(f"v_mov_b32 v{ET}, v{E1}\nv_mov_b32 v{ET+2}, v{E1+1}")
    k.vmem(f"buffer_store_dwordx4 {V(ET,4)}, v{vPub}, s[{rWS}:{rWS+3}], s{sH} offen sc1", "e")
    stamp()
    def gather(track):
        for i in range(5):
            tx = f"buffer_load_dwordx4 {V(GA[i],4)}, v{vG2+i}, s[{rWS}:{rWS+3}], s{sHw} offen sc1"
            k.vmem(tx, "ga") if track else k.e(tx)
    k.e("s_nop 1")
    k.wait_vm("cre")
    if OPT["gpos"] == 0: gather(True)
    c_read(0, [4, 5, 6, 7, 92, 93])
    fd = Feeder(wd[e1:e1 + ew], 1)
    per = ew / (13.0 - OPT['wskip2'])
    done = [0.0]
    cnt = [0]
    def tk_():
        cnt[0] += 1
        if cnt[0] == OPT["gpos"]: gather(True)
        if cnt[0] <= OPT["wskip2"]: return
        if cnt[0] == OPT["wskip2"] + 1: k.wait_lg()
        done[0] += per; n_ = int(done[0]); done[0] -= n_; fd.tick(n_); k.raw(".p2align 3")
    WT, W2 = 14, 16
    for x in range(10):
        k.e(f"v_mov_b32_dpp v{treg(x)}, v{ereg(x)} row_shr:1 row_mask:0xf bank_mask:0xf bound_ctrl:0")
        k.e(f"v_mov_b32_dpp v{treg(x)+1}, v{ereg(x)+1} row_shr:1 row_mask:0xf bank_mask:0xf bound_ctrl:0")
    def cmul(d, a, b, tmp):
        k.e(f"v_pk_mul_f32 {V(tmp,2)}, {V(a,2)}, {V(b,2)} op_sel:[0,0] op_sel_hi:[1,0]")
        k.e(f"v_pk_fma_f32 {V(d,2)}, {V(a,2)}, {V(b,2)}, {V(tmp,2)} op_sel:[1,1,0] op_sel_hi:[0,1,1] neg_lo:[0,1,0]")
    tk_()
    for x in range(10): cmul(treg(x), treg(x), LC+4*x+2, ereg(x))
    tk_()
    for x in range(10): cmul(PWv+2*x, PWv+2*x, LC+4*x+2, ereg(x))
    for x, (i, h) in enumerate(slots):
        tk_()
        for j in range(4): cmul(acc(i,j)+2*h, acc(i,j)+2*h, LC+4*x+2, EE+2*j)
    tk_()
    cmul(WT, LL+2, LL+2, W2); cmul(WT, WT, WT, W2); cmul(WT, WT, LL+2, W2); cmul(W2+2, WT, WT, W2)
    k.e(f"""
    v_cmp_eq_u32 vcc, 2, v{WH_}
    v_mov_b32 v{W2}, 1.0
    v_mov_b32 v{W2+1}, 0
    v_cndmask_b32 v{WT}, v{WT}, v{W2+2}, vcc
    v_cndmask_b32 v{WT+1}, v{WT+1}, v{W2+3}, vcc
    v_cmp_eq_u32 vcc, 0, v{WH_}
    v_mul_u32_u24 v{W2+2}, 640, v{WH_}
    v_add_u32 v{vGc}, v{vGc}, v{W2+2}
    v_cndmask_b32 v{WT}, v{WT}, v{W2}, vcc
    v_cndmask_b32 v{WT+1}, v{WT+1}, v{W2+1}, vcc
    v_cndmask_b32 v{E0}, v{W2+1}, v{E0}, vcc
    v_cndmask_b32 v{E0+1}, v{W2+1}, v{E0+1}, vcc
    s_mul_i32 s{sT0}, s{sWC}, 1280
    v_add_u32 v{vE0}, s{sT0}, v{vE0}
    v_add_u32 v{vE1}, s{sT0}, v{vE1}
    """)
    fd.flush()
    h_base()
    k.e(f"""
    s_mul_i32 s{sT1}, s{sT1}, 5
    s_add_u32 s{sT0}, s{sT0}, s{sT1}
    s_add_u32 s{sT0}, s{sT0}, 12
    s_lshl_b32 s{sT0}, s{sT0}, 12
    s_add_u32 s{sH}, s{sH}, s{sT0}
    s_add_u32 s{sB2}, s{sH}, {4*4096}
    s_lshl_b32 s{sT0}, s{sWR}, 9
    s_add_u32 s{sB2}, s{sB2}, s{sT0}
    v_lshrrev_b32 v27, 1, v{vQ}
    v_lshlrev_b32 v27, 10, v27
    v_and_b32 v98, 31, v{vL}
    v_lshl_add_u32 v27, v98, 4, v27
    s_lshl_b32 s{sT0}, s{sWR}, 13
    s_add_u32 s{sH}, s{sH}, s{sT0}
    s_add_u32 s{sB0}, s{sH}, 4096
    """)
    stamp(60)
    k.wait_vm("ga")
    k.label("L_carry_chk")
    k.e(f"s_mov_b64 s[{sEx}:{sEx+1}], 0")
    for i in range(5):
        k.e(f"""
        v_cmp_ne_u32 vcc, s{sNonce}, v{GA[i]+1}
        v_cmp_ne_u32 s[{sT0}:{sT1}], s{sNonce}, v{GA[i]+3}
        s_or_b64 vcc, vcc, s[{sT0}:{sT1}]
        s_and_b64 vcc, vcc, s[{sVal[i]}:{sVal[i]+1}]
        s_or_b64 s[{sEx}:{sEx+1}], s[{sEx}:{sEx+1}], vcc
        """)
    k.e(f"""
    s_cmp_eq_u64 s[{sEx}:{sEx+1}], 0
    s_cbranch_scc1 L_carry_done
    s_sub_u32 s{sSpin}, s{sSpin}, 1
    s_cbranch_scc1 L_end
    """)
    gather(False)
    k.e("s_waitcnt vmcnt(0)\ns_branch L_carry_chk")
    k.label("L_carry_done")
    stamp()
    for i in range(5): k.e(f"v_mov_b32 v{GA[i]+1}, v{GA[i]+2}")
    for i in (3, 2, 1, 0): cmul_acc(GA[i], GA[i+1], LL+2, GA[i])
    cmul(GA[0], GA[0], WT, W2)
    cmul_acc(E0, GA[0], LL, E0)
    k.ds(f"ds_write_b64 v{vGc}, {V(GA[0],2)} offset:{L_PW}")
    k.ds(f"ds_write_b64 v{vGc}, {V(E0,2)} offset:{L_PW + 1920}")
    k.wait_lg()
    k.e("s_barrier")
    XS_ = [80, 82, 84, 86, 92]; XT = 94
    x_loads(XS_, XT)
    PB = [EE, ch, 4]
    for i in range(5):
        for g in range(3):
            k.ds(f"ds_read_b128 {V(PB[g]+4*i,4)}, v{vE0 if i < 4 else vE1} offset:{L_PW + 640*g + (16*i if i < 4 else 0)}", ("pb", i))
    k.raw(".p2align 3")
    for x in range(10):
        if x % 2 == 0: k.wait_lg(("pb", x // 2)); k.raw(".p2align 3")
        k.e(f"v_pk_add_f32 {V(ereg(x),2)}, {V(ereg(x),2)}, {V(PB[1]+2*x,2)}")
        k.e(f"v_pk_add_f32 {V(ereg(x),2)}, {V(ereg(x),2)}, {V(PB[2]+2*x,2)}")
        cmul_acc(treg(x), ereg(x), PWv+2*x, treg(x))
    held = []
    for hf in range(2):
        OA = [(60, 64), (68, 72)] if hf == 0 else [(40, 44), (48, 52)]
        OE = 76 if hf == 0 else 56
        for jj in range(2):
            j = 2*hf + jj
            k.raw(".p2align 3")
            for x, (i, h) in enumerate(slots):
                prev = treg(x) if j == 0 else acc(i, j-1) + 2*h
                cmul_acc(acc(i,j)+2*h, prev, LC+4*x, acc(i,j)+2*h)
            oa, ob = OA[jj]
            for i in range(4): k.e(f"v_cvt_pk_bf16_f32 v{oa+i}, v{acc(i,j)}, v{acc(i,j)+2}")
            for i in range(4): k.e(f"v_cvt_pk_bf16_f32 v{ob+i}, -v{acc(i,j)+1}, -v{acc(i,j)+3}")
            k.e(f"v_cvt_pk_bf16_f32 v{OE+2*jj}, v{acc(4,j)}, v{acc(4,j)+2}")
            k.e(f"v_cvt_pk_bf16_f32 v{OE+2*jj+1}, -v{acc(4,j)+1}, -v{acc(4,j)+3}")
            k.vmem(f"buffer_store_dwordx4 {V(oa,4)}, v{vL16}, s[{rWS}:{rWS+3}], s{sH} offen offset:{jj*1024} sc1", ("hs", hf))
            k.vmem(f"buffer_store_dwordx4 {V(ob,4)}, v{vL16}, s[{rWS}:{rWS+3}], s{sB0} offen offset:{jj*1024} sc1", ("hs", hf))
        k.e(f"""
        s_nop 1
        v_permlane32_swap_b32 v{OE}, v{OE+2}
        v_permlane32_swap_b32 v{OE+1}, v{OE+3}
        s_nop 1
        v_permlane16_swap_b32 v{OE}, v{OE+1}
        v_permlane16_swap_b32 v{OE+2}, v{OE+3}
        """)
        k.vmem(f"buffer_store_dwordx4 {V(OE,4)}, v27, s[{rWS}:{rWS+3}], s{sB2} offen sc1", ("hs", hf))
        if hf == 0: k.e(f"s_add_u32 s{sH}, s{sH}, {HB}\ns_add_u32 s{sB0}, s{sB0}, {HB}\ns_add_u32 s{sB2}, s{sB2}, {HB}")
    stamp()
    flag_addr()
    if MV:
        u_ = 156
        k.e(f"""
        v_min_u32 v{u_}, {3 + 4*MV}, v{vL}
        s_add_u32 s{sT0}, s{sFA}, {9*128 + 16}
        v_and_b32 v{u_+1}, 1, v{u_}
        v_lshlrev_b32 v{u_+1}, 3, v{u_+1}
        v_and_b32 v{u_+2}, 2, v{u_}
        v_lshl_add_u32 v{u_+1}, v{u_+2}, 4, v{u_+1}
        v_add_u32 v{vF}, s{sT0}, v{u_+1}
        s_mul_i32 s{sT0}, s{sW}, 24
        s_lshr_b32 s{sT1}, s{sDT}, 2
        s_add_u32 s{sT0}, s{sT0}, s{sT1}
        s_lshl_b32 s{sT0}, s{sT0}, 7
        s_add_u32 s{sT0}, s{sT0}, {WS_RF + 16384 + (12 - MV - 1)*256}
        v_lshrrev_b32 v{u_+1}, 2, v{u_}
        v_lshlrev_b32 v{u_+1}, 8, v{u_+1}
        v_and_b32 v{u_+2}, 3, v{u_}
        v_cmp_gt_u32 vcc, 4, v{u_}
        v_lshl_add_u32 v{u_+1}, v{u_+2}, 4, v{u_+1}
        v_add_u32 v{u_+1}, s{sT0}, v{u_+1}
        v_cndmask_b32 v{vF}, v{u_+1}, v{vF}, vcc
        """)
    k.wait_vm("cim")
    c_read(1, [150, 151, 152, 153, 154, 155])
    k.seen.update(("w", x) for x in range(10))
    put_flag(("hs", 0), sLW)
    residual(XS_, XT, 100)
    stamp(7)
    k.e(spoll(0))
    k.e("s_barrier")
    if OPT["resfirst"]: put_flag(("hs", 1), sLX)
    scheck("hm" + typ, 0)
    stamp(8)
    run(h_issue(typ, range(NR)))
    if not OPT["resfirst"]: put_flag(("hs", 1), sLX)
    phase2(typ, [(tk, op) for tk in range(10, NK[typ]) for op in wload(tk)], [], [], None, -1)

def poll(tag, vaddr, vd):
    k.e(f"""
    L_poll_{tag}:
    buffer_load_dwordx2 {V(vd,2)}, v{vaddr}, s[{rWS}:{rWS+3}], 0 offen sc1
    s_waitcnt vmcnt(0)
    v_cmp_ne_u32 vcc, s{sNonce}, v{vd}
    v_cmp_ne_u32 s[{sT0}:{sT1}], s{sNonce}, v{vd+1}
    s_or_b64 vcc, vcc, s[{sT0}:{sT1}]
    s_cmp_eq_u64 vcc, 0
    s_cbranch_scc1 L_pollok_{tag}
    s_sub_u32 s{sSpin}, s{sSpin}, 1
    s_cbranch_scc1 L_end
    s_sleep 1
    s_branch L_poll_{tag}
    L_pollok_{tag}:
    """)
    k.vm = []

def acc2(p_, i, s): return 96 + 80*p_ + (i*4 + s)*4
def phase2(typ, pend, hrest, res, tagB, tB):
    stamp_n[0] = 10
    n_ = NK[typ]; T = 2*n_
    AD = [88, 89, 90, 91]
    XF = 92
    sXo, sXi, sFo, sTm = sB0, sH, sHw, sLW
    setup = lines(f"""
    v_bfe_u32 v{AD[0]}, v{vN}, 1, 2
    v_mul_u32_u24 v{vRw}, {RROW}, v{vN}
    v_xor_b32 v{AD[0]}, v{AD[0]}, v{vQ}
    v_lshl_add_u32 v{vRw}, v{AD[0]}, 4, v{vRw}
    v_add_u32 v{vRw}, s{sWLb}, v{vRw}
    v_lshlrev_b32 v{XO}, 1, v{XO}
    s_lshl_b32 s{sB2}, s{sX}, 1
    s_mov_b32 s{rW}, s{pOut}
    s_mov_b32 s{rW+1}, s{pOut+1}
    s_mov_b32 s{rW+2}, {2048*2560}
    s_mov_b32 s{rW+3}, 0x20000
    s_lshl_b32 s{sXi}, s{sMT}, 3
    s_add_u32 s{sXi}, s{sXi}, s{sDT}
    s_lshl_b32 s{sXi}, s{sXi}, 1
    s_add_u32 s{sXi}, s{sXi}, s{sHALF}
    s_xor_b32 s{sXo}, s{sXi}, 1
    s_lshl_b32 s{sFo}, s{sXo}, 6
    s_lshl_b32 s{sTm}, s{sW}, 4
    s_add_u32 s{sTm}, s{sTm}, {WS_XF}
    s_add_u32 s{sFo}, s{sFo}, s{sTm}
    s_lshl_b32 s{sUnit}, s{sXi}, 6
    s_add_u32 s{sUnit}, s{sUnit}, s{sTm}
    v_mov_b32 v{XF}, s{sUnit}
    s_mul_i32 s{sTm}, s{sW}, 5120
    s_add_u32 s{sTm}, s{sTm}, {WS_XB}
    s_mul_i32 s{sXi}, s{sXi}, 20480
    s_add_u32 s{sXi}, s{sXi}, s{sTm}
    s_mul_i32 s{sXo}, s{sXo}, 20480
    s_add_u32 s{sXo}, s{sXo}, s{sTm}
    s_add_u32 s{sDX}, s{sXi}, 4096
    s_add_u32 s{sDW}, s{sXo}, 4096
    """)
    for s in range(4):
        setup += lines(f"s_xor_b32 s{sTm}, s{sW}, {s}\ns_mul_i32 s{sTm}, s{sTm}, {WLW}\ns_add_u32 s{sTm}, s{sTm}, {L_WL + s*RBLK}\nv_add_u32 v{AD[s]}, s{sTm}, v{LO}")
    def red_w(p_, s): return [DSF(f"ds_write_b128 v{vRw}, {V(acc2(p_,i,s),4)} offset:{s*RBLK + i*64}", "rw") for i in range(5)]
    RD = [96 + 16*g for g in range(5)]
    def red_r(g): return [DSF(f"ds_read_b128 {V(RD[g]+4*s,4)}, v{AD[s]} offset:{64*g}", ("r", g)) for s in range(4)]
    bgq = list(setup) + list(res)
    per = -(-len(pend) // OPT["kw"])
    for t in range(T - 1):
        p_, tk = divmod(t, n_)
        assert not [1 for t_, _ in pend if t_ <= t], (typ, t)
        if OPT.get("fine2"): stamp(14 + 2*t)
        k.wait_vm([("w", tk), ("h", t)])
        if OPT.get("fine2"): stamp(15 + 2*t)
        if t == tB: put_flag(tagB, sLX)
        tchk = n_ - NR
        if MV and typ == 'ssm' and t == tchk - MV:
            k.wait_vm('mvp'); check('mv', vF, vFd)
        if t == tchk:
            scheck("hb" + typ, 1)
        wk, wb = wreg(tk); ring = hdest(typ, t)
        m = []
        for s in range(4):
            for i in range(5):
                c = "0" if tk == 0 else V(acc2(p_, i, s), 4)
                m.append(f"v_mfma_f32_16x16x32_bf16 {V(acc2(p_,i,s),4)}, {R(wk, wb+4*i, 4)}, {R(ring[s][0], ring[s][1], 4)}, {c}")
        streams = []
        if NE[typ] <= t and t + NR < T:
            a_, b_ = hload(typ, t + NR)
            streams.append((a_, 0, 2, True))
            for s in range(4): streams.append((b_[s], 5*s + 4, 5*s + 4, True))
        mem = []
        if t == tchk - 2: k.e(spoll(1))
        if MV and typ == 'ssm' and t == tchk - MV - 2: mem += [VM(f"buffer_load_dwordx2 {V(vFd,2)}, v{vF}, s[{rWS}:{rWS+3}], 0 offen sc1", 'mvp')]
        while hrest and len(mem) < 12: mem += flat([hrest.pop(0)])
        for _ in range(per if typ == "mlp" else (4 if t >= tchk - MV else 0)):
            if pend: mem += flat([pend.pop(0)[1]])
        u = t - n_
        if u == -1: must_bg = True
        if u == 0: assert not bgq, len(bgq)
        if u in (0, 1, 2):
            wr_ = sum((red_w(0, s) for s in range(4)), [])
            streams.append((wr_[7*u:7*u + 7], 2, 18 if u < 2 else 14, True))
        if u == 3:
            k.wait_lg(); k.e("s_barrier")
            streams.append((red_r(0) + red_r(1) + red_r(2), 0, 16, True))
        if u == 4: streams.append((red_r(3) + red_r(4), 0, 12, True))
        if u in (4, 5):
            for g in ((0, 1, 2) if u == 4 else (3, 4)):
                bgq += [F(lambda g=g: k.wait_lg(("r", g)), 1)]
                bgq += lines("\n".join(f"v_add_f32 v{RD[g]+x}, v{RD[g]+x}, v{RD[g]+4+x}" for x in range(4)) + "\n" +
                             "\n".join(f"v_add_f32 v{RD[g]+8+x}, v{RD[g]+8+x}, v{RD[g]+12+x}" for x in range(4)) + "\n" +
                             "\n".join(f"v_add_f32 v{RD[g]+x}, v{RD[g]+x}, v{RD[g]+8+x}" for x in range(4)))
                if 1 in OPT.get("x", ()): k.seen.add(("xs", g))
                else: bgq += [VM(f"buffer_store_dwordx4 {V(RD[g],4)}, v{vL16}, s[{rWS}:{rWS+3}], s{sXo if g < 4 else sDW} offen offset:{(g & 3)*1024} sc1", ("xs", g))]
        if u == n_ - 3: k.e("s_barrier")
        if u == (n_ - 2 if OPT['xlate'] else n_ - 4): mem += [VM(f"buffer_load_dwordx2 {V(vFd,2)}, v{XF}, s[{rWS}:{rWS+3}], 0 offen sc1", "xp")]
        if u == n_ - OPT["xfb_" + typ]:
            run(bgq); bgq.clear()
            put_flag(("xs", 4), sFo)
        if u == n_ - 2:
            if not OPT["xlate"]:
                k.wait_vm("xp"); check("x" + typ, XF, vFd)
            k.wait_vm(("h", t + 1))
            wk2, wb2 = wreg(tk + 1); ring2 = hdest(typ, t + 1)
            m2 = [f"v_mfma_f32_16x16x32_bf16 {V(acc2(1,i,s),4)}, {R(wk2, wb2+4*i, 4)}, {R(ring2[s][0], ring2[s][1], 4)}, {V(acc2(1,i,s),4)}" for s in range(4) for i in range(5)]
            m = sum((m[5*s:5*s+5] + m2[5*s:5*s+5] for s in range(4)), [])
            XL = [40 + 4*g for g in range(5)] if OPT["xlate"] else RD
            xl = [VM(f"buffer_load_dwordx4 {V(XL[g],4)}, v{vL16}, s[{rWS}:{rWS+3}], s{sXi if g < 4 else sDX} offen offset:{(g & 3)*1024} sc1", "xl") for g in range(5)]
            if not OPT["xlate"]: mem += xl
            for s in range(3): streams.append((red_w(1, s), 10*s + 13, 10*s + 19, True))
            def addx():
                k.wait_vm("xl")
            if not OPT["xlate"]: streams.append(([F(addx, 1)] + lines("\n".join(f"v_add_f32 v{RES+4*g+x}, v{RES+4*g+x}, v{RD[g]+x}" for g in range(5) for x in range(4))), 26, 39, True))
        streams.append((mem, 1, 18, True))
        streams.append((bgq, 0, 20, False))
        sched(m, streams)
        if u == -1:
            if OPT.get("show"): print("left at the end of pass 1:", len(bgq))
            for f in bgq: f()
            bgq.clear()
    stamp()
    if OPT["xlate"]:
        k.wait_vm("xp"); check("x" + typ, XF, vFd)
        run(xl)
    else: k.e("s_nop 3")
    run(red_w(1, 3))
    k.wait_lg(); k.e("s_barrier")
    for g in range(5): run(red_r(g))
    for g in range(5):
        k.wait_lg(("r", g))
        o = RES + 4*g
        for h in range(2): k.e(f"v_pk_add_f32 {V(RD[g]+2*h,2)}, {V(RD[g]+2*h,2)}, {V(RD[g]+4+2*h,2)}")
        for h in range(2): k.e(f"v_pk_add_f32 {V(RD[g]+8+2*h,2)}, {V(RD[g]+8+2*h,2)}, {V(RD[g]+12+2*h,2)}")
        for h in range(2): k.e(f"v_pk_add_f32 {V(o+2*h,2)}, {V(o+2*h,2)}, {V(RD[g]+2*h,2)}")
        for h in range(2): k.e(f"v_pk_add_f32 {V(o+2*h,2)}, {V(o+2*h,2)}, {V(RD[g]+8+2*h,2)}")
    for g in range(5):
        o = RES + 4*g
        if OPT["xlate"]:
            if g == 0: k.wait_vm("xl")
            for h in range(2): k.e(f"v_pk_add_f32 {V(o+2*h,2)}, {V(o+2*h,2)}, {V(XL[g]+2*h,2)}")
        k.vmem(f"buffer_store_dwordx4 {V(o,4)}, v{XO}, s[{rW}:{rW+3}], s{sB2} offen offset:{64*g} {OPT.get('ost', '')}", "o")
    if OPT.get("spin"):
        ins, n_ = OPT["spin"]
        k.e(f"""
        s_waitcnt vmcnt(0)
        s_sub_u32 s{sST}, s{sST}, s98
        s_add_u32 s{sST}, s{sST}, {n_}
        L_spin_{typ}:
        {ins} s[100:101]
        s_waitcnt lgkmcnt(0)
        s_sub_u32 s100, s100, s98
        s_cmp_lt_u32 s100, s{sST}
        s_cbranch_scc1 L_spin_{typ}
        """)
    k.e("s_branch L_fin" if OPT["stamps"] else "s_endpgm")

def finish():
    if OPT["stamps"]:
        k.label("L_fin")
        k.wait_vm0()
        stamp(11)
        k.e(f"""
        s_memtime s[100:101]
        s_waitcnt lgkmcnt(0)
        s_sub_u32 s100, s100, s98
        v_writelane_b32 v{vST}, s100, 63
        s_lshl_b32 s{sT0}, s2, 2
        s_add_u32 s{sT0}, s{sT0}, s{sW}
        s_lshl_b32 s{sT0}, s{sT0}, 8
        s_add_u32 s{sT0}, s{sT0}, {WS_ST}
        v_lshlrev_b32 v2, 2, v{vL}
        buffer_store_dword v{vST}, v2, s[{rWS}:{rWS+3}], s{sT0} offen
        """)

prologue()
stamp_n[0] = 1
path_ssm()
stamp_n[0] = 1; cur[0] = "mlp"
path_mlp()
finish()
k.label("L_end")
body = k.text()
errs = check_hazards(body)
for e_ in errs: print("HAZARD:", e_, file=sys.stderr)

hdr = open(f"cdna_kernels/{NAME}.s.ref").read().split("\n")
hdr = [l for l in hdr if l.startswith(";") and "@launch" not in l and "Override" not in l and "grid=ceil" not in l]
out = "\n".join(hdr) + f"\n; @launch grid=(256,1,1) block=(256,1,1) lds={L_END}\n"
out += f""".amdgcn_target "amdgcn-amd-amdhsa--gfx950"
.text
.globl {NAME}_kernel
.p2align 8
.type {NAME}_kernel,@function
{NAME}_kernel:
{body}    s_endpgm
L_code_end:
.set CODE_BYTES, L_code_end - {NAME}_kernel - 512
.section .rodata,"a"
.p2align 6
.amdhsa_kernel {NAME}_kernel
  .amdhsa_next_free_vgpr 512
  .amdhsa_next_free_sgpr 102
  .amdhsa_accum_offset 256
  .amdhsa_group_segment_fixed_size 0
  .amdhsa_kernarg_size 136
  .amdhsa_user_sgpr_count 2
  .amdhsa_user_sgpr_kernarg_segment_ptr 1
  .amdhsa_system_sgpr_workgroup_id_x 1
.end_amdhsa_kernel
"""
open(sys.argv[1], "w").write(out)
print("written", sys.argv[1], len(out), "bytes; hazards:", len(errs))
```

```python
import sys, struct
sys.path.insert(0, "dev")
from asmlib import *

NAME = "parallel_sum__ssm_conv_s5__mixer_channel_mlp__prompt"
OPT = dict(stamps=False, stop=None, nt_dma="", nt_pf="", nt_rp="", pf=0, pf0=1, pford=0, post0=12, ost='nt', pfa=(1, 0, 1), pfb=(2,), mv=0, xr0=0, tmlp=8, ctail=4, rpown='mlp', post=25, e1=0, ew=30, post0_s=0, wskip=3, rpd_mlp=(0, 3.5), rpd_ssm=(0, 3.5), rotg=1, tch=2, hw=4, e2=0, post_s=0, cpf=1, rp_mlp=(5, (6, 7, 9, 11, 12), 14), rp_ssm=(5, (6, 7, 8, 9, 10), 12), rf_mlp=17, wskip2=1, touch=8, rf_ssm=99, xfb_mlp=3, xfb_ssm=2, xlate=1, fa=8, sp=10, stlb=0, rfg=10, wfirst=0, ec=11, tb=3, resfirst=1, ne=0, gpos=8, post1=20, hpre=1, ne_mlp=0, kw=6, util=1.0, rot1=1, rot2=1)
for a_ in sys.argv[2:]:
    k_, v_ = a_.split("=", 1); OPT[k_] = eval(v_)

def f2u(x): return struct.unpack("<I", struct.pack("<f", x))[0]
def hx(x): return "0x%08x" % f2u(x)

WS_EP = 0
WS_H = 4096
WS_WP = 12 << 20
WS_E = 16 << 20
WS_RF = 17 << 20
WS_HF = (17 << 20) + 65536
WS_RS = 18 << 20
WS_ST = 20 << 20
WS_XF = (17 << 20) + 131072
WS_XB = 24 << 20
WS_SIZE = 32 << 20
OOB = 0x4000000
L_TOK = 0; L_CH = 2048; L_PW = 7168; L_EX = 17408; L_EX2 = L_EX + 1280
L_STG = 20480; L_X = 40960; L_W = 90112; L_END = 163840
XS = 16384; WSL = 24576
L_SCS = {'ssm': (L_EX2, 320), 'mlp': (L_CH + 512, 384)}; L_B1 = L_CH; L_DB = 20160
WLW = 4 * 16 * 320; RROW = 320; RBLK = 16 * RROW
L_WL = L_STG
NST = 10
pX, pLre, pLim, pBre, pBim, pCre, pCim, pLdt = 16, 18, 20, 22, 24, 26, 28, 30
pDsk, pBx, pW1, pB1, pW2, pB2, pOut, pDbg, pWs = 32, 34, 36, 38, 40, 42, 44, 46, 48
sW, sWR, sWC, sMT, sNT, sTYP, sHALF, sDT = 3, 4, 5, 6, 7, 8, 88, 7
sML, sI8 = 9, 10
sNonce = 11; sT0, sT1, sT2, sT3 = 12, 13, 14, 15
sKs = 50; sPF = 51
rX, rW, rWS, rT, rT2 = 52, 56, 60, 64, 68
sX, sLX, sLW, sB0, sB2, sPFs, sUnit, sRpSrc, sLR, sSpin = 72, 73, 74, 75, 76, 77, 78, 79, 80, 81
sK = 82; sEx = 84
sH, sHw, sWp, sDis = 86, 87, 88, 89
sST = 90
sRpD = 92
sSig = 97
sWa, sHa, sLim = 18, 22, 26
sDX, sDW = 77, 51
rPF = rT2
vL, vN, vQ = 1, 2, 3
vDX0, vDX1, vXa, vXb = 4, 5, 6, 7
vDW = 8
vPF, vDR, vJunk, vNc = 10, 11, 12, 13
vWA = 14
vRA = 120
vL16 = 26
vRS = 27
vB1 = 28
vT = 40
vST = 25
ACC = 160
def acc(i, j): return ACC + (i * 4 + j) * 4
aF = [0, 40]
aONE = 80; aCS = 84

k = Asm()
k.strict = OPT.get('strict', False)
k.lenient = OPT['stamps']
stamp_n = [0]
cur = ["ssm"]
def stamp(i=None):
    if i is None:
        i = stamp_n[0]; stamp_n[0] += 1
    if OPT.get("probe") == (cur[0], i):
        k.e(f"s_memrealtime s[{sST}:{sST+1}]"); k.e("s_waitcnt lgkmcnt(0)"); k.lg = []
    if not OPT["stamps"] or (OPT.get("lite") and i != 11): return
    k.e(f"{'s_memtime' if OPT.get('cyc') else 's_memrealtime'} s[{sST}:{sST+1}]"); k.e("s_waitcnt lgkmcnt(0)"); k.lg = []
    k.e(f"v_writelane_b32 v{vST}, s{sST}, {i}")
def srd(r, ptr, size):
    k.e(f"s_mov_b32 s{r}, s{ptr}\ns_mov_b32 s{r+1}, s{ptr+1}\ns_mov_b32 s{r+2}, {size}\ns_mov_b32 s{r+3}, 0x20000")

class F:
    def __init__(self, fn, cost=1, ds=False, sep=False, ta=0): self.fn, self.cost, self.ds, self.sep, self.ta = fn, cost, ds, sep, ta
    gate = None
    def __call__(self): self.fn()
curblk = [0]
def note(d, key): return F(lambda: d.__setitem__(key, curblk[0]), 0)
def gate(fn):
    f = F(lambda: None, 0); f.gate = fn; return f
def lines(s):
    out = []; prev = set()
    for l in (x.strip() for x in s.split("\n")):
        if not l: continue
        if l == "s_nop 0":
            prev = None; continue
        parts = l.split(" | ")
        c = sum(2 if x.split()[0] in TRANS else 1 for x in parts)
        d = parse(parts[0])
        dep = prev is None or (d["valu"] and bool(d["uses"] & prev))
        prev = set().union(*[{r for r in parse(x)["defs"] if r[0] == "v"} for x in parts])
        out.append(F(lambda l=l: k.e(l.replace(" | ", "\n")), c, sep=dep))
    return out
def VM(text, tag, sep=False, ta=66): return F(lambda: k.vmem(text, tag), 2, sep=sep, ta=ta)
def DSF(text, tag=None): return F(lambda: k.ds(text, tag), 1, ds=True)
def sched(main, streams, start=0):
    n = len(main)
    st = []
    for items, g0, g1, must in streams:
        cnt = len(items) if must else min(len(items), must if isinstance(must, int) and must > 1 else len(items))
        tot = sum(f.cost for f in items[:cnt]) or 1
        tg = []; acc_ = 0
        for f in items[:cnt]:
            tg.append(g0 + (g1 - g0) * acc_ / tot if must else g0); acc_ += f.cost
        st.append(dict(items=items, tg=tg, last=-1, must=must))
    for g, m in enumerate(main):
        k.e(m)
        if g < start: continue
        room = 2; hasds = False
        prog = True
        while prog and room > 0:
            prog = False
            for x in st:
                if not x["tg"] or x["tg"][0] > g: continue
                f = x["items"][0]
                if f.gate and not f.gate(): continue
                if f.sep and x["last"] == g: continue
                if f.ds and (hasds or (not x["must"] and g >= n - 6)): continue
                if f.cost > room and room < 2 and not (not x["must"] and g - x["last"] >= 3): continue
                x["items"].pop(0); x["tg"].pop(0); x["last"] = g
                f(); room -= f.cost; hasds |= f.ds; prog = True
                break
    for x in st:
        if x["must"]:
            over = len(x["tg"])
            if over and OPT.get("show"): print("overflow", over)
            while x["tg"]:
                f = x["items"].pop(0); x["tg"].pop(0)
                if f.sep: k.e("s_nop 0")
                f()
def merge(*ls):
    ls = [l for l in ls if l]
    if not ls: return []
    if len(ls) == 1: return list(ls[0])
    items = []
    for li, l in enumerate(ls):
        for i, f in enumerate(l): items.append(((i + 0.5) / len(l), li, i, f))
    items.sort(key=lambda x: (x[0], x[1]))
    return [x[3] for x in items]

def prologue():
    t = vT
    cpf = f"""
    s_getpc_b64 s[{sEx}:{sEx+1}]
    s_lshr_b32 s{sT1}, s2, 3
    s_lshl_b32 s{sT1}, s{sT1}, 11
    v_lshrrev_b32 v{t}, 6, v0
    v_lshlrev_b32 v{t}, 9, v{t}
    v_and_b32 v{t+1}, 3, v0
    v_lshl_add_u32 v{t}, v{t+1}, 7, v{t}
    v_add_u32 v{t}, s{sT1}, v{t}
    v_min_u32 v{t}, CODE_BYTES, v{t}
    global_load_dword v{vJunk}, v{t}, s[{sEx}:{sEx+1}]
    """ if OPT["cpf"] else ""
    k.e(f"""
    s_cmp_ge_u32 s2, 256
    s_cbranch_scc1 L_end
    s_load_dwordx16 s[16:31], s[0:1], 0
    s_load_dwordx16 s[32:47], s[0:1], 64
    s_load_dwordx2 s[48:49], s[0:1], 128
    {cpf}
    v_lshrrev_b32 v{t}, 6, v0
    v_and_b32 v{vL}, 63, v0
    v_readfirstlane_b32 s{sW}, v{t}
    s_and_b32 s{sT0}, s2, 7
    s_lshr_b32 s{sT1}, s2, 3
    s_lshr_b32 s{sTYP}, s{sT1}, 4
    s_bfe_u32 s{sML}, s{sT1}, 0x20002
    s_lshr_b32 s{sMT}, s{sT0}, 1
    s_lshl_b32 s{sT2}, s{sML}, 2
    s_add_u32 s{sMT}, s{sMT}, s{sT2}
    s_and_b32 s{sT2}, s{sT1}, 3
    s_lshl_b32 s{sI8}, s{sTYP}, 2
    s_add_u32 s{sI8}, s{sI8}, s{sT2}
    s_and_b32 s{sNT}, s{sT0}, 1
    s_lshl_b32 s{sNT}, s{sNT}, 2
    s_add_u32 s{sNT}, s{sNT}, s{sT2}
    s_lshr_b32 s{sWR}, s{sW}, 1
    s_and_b32 s{sWC}, s{sW}, 1
    """)
    if OPT["stamps"]:
        k.e(f"v_mov_b32 v{vST}, 0\n{'s_memtime' if OPT.get('cyc') else 's_memrealtime'} s[{sST}:{sST+1}]" + ('' if OPT['pf'] else '\ns_memtime s[98:99]')); stamp_n[0] = 1
    if OPT.get("spin"): k.e(f"{OPT['spin'][0]} s[98:99]\ns_waitcnt lgkmcnt(0)\ns_mov_b32 s{sST}, s98")
    k.e(f"""
    v_lshrrev_b32 v{t}, 3, v{vL}
    v_and_b32 v{t+1}, 7, v{vL}
    v_lshrrev_b32 v{t+2}, 1, v{t}
    v_xor_b32 v{t+2}, v{t+1}, v{t+2}
    v_mul_u32_u24 v{t+3}, 5120, v{t}
    v_lshl_add_u32 v{vDX0}, v{t+2}, 4, v{t+3}
    v_xor_b32 v{vDX1}, 64, v{vDX0}
    v_add_u32 v{vDX1}, 40960, v{vDX1}
    s_lshl_b32 s{sT0}, s{sMT}, 7
    s_lshl_b32 s{sT1}, s{sWR}, 6
    s_add_u32 s{sT0}, s{sT0}, s{sT1}
    s_lshl_b32 s{sT1}, s{sWC}, 1
    s_add_u32 s{sT0}, s{sT0}, s{sT1}
    s_mul_i32 s{sX}, s{sT0}, 1280
    s_lshl_b32 s{sLX}, s{sW}, 12
    s_cmp_eq_u32 s{sTYP}, 1
    s_cbranch_scc1 L_e_mlp
    """)
    for typ in ("ssm", "mlp"):
        if typ == "mlp": k.label("L_e_mlp")
        k.vm = []; issued.clear()
        cur[0] = typ
        k.e(WOFF[typ])
        rot_setup(typ)
        start_loads(typ)
        k.e(f"s_branch L_{typ}")
        early_vm[typ] = list(k.vm)
    cur[0] = "ssm"
early_vm = {}
WOFF = {}
def late_common(typ):
    t = vT
    k.label(f"L_{typ}")
    issued.clear(); issued[0] = 10 if typ == "mlp" else 9
    k.seen.clear(); k.vm = list(early_vm[typ]); k.seen.update(k.vm); k.lg = []
    k.e(f"""
    v_and_b32 v{vN}, 15, v{vL}
    v_lshrrev_b32 v{vQ}, 4, v{vL}
    v_lshlrev_b32 v{vL16}, 4, v{vL}
    s_xor_b32 s{sKs}, s{sWR}, s{sWC}
    s_xor_b32 s{sHALF}, s{sTYP}, 1
    s_mov_b32 s{sSpin}, 0x40000
    s_and_b32 s{sT2}, s2, 127
    s_sub_u32 s{sUnit}, 127, s{sT2}
    s_cmp_lt_u32 s{sUnit}, 96
    s_cselect_b32 s{sUnit}, s{sUnit}, 0
    s_cselect_b32 s{sDis}, 0, {OOB}
    s_lshl_b32 s{sT2}, s{sKs}, 2
    v_add_u32 v{t+4}, s{sT2}, v{vQ}
    v_lshrrev_b32 v{t+5}, 1, v{vN}
    v_xor_b32 v{t+5}, v{t+4}, v{t+5}
    v_lshlrev_b32 v{t+5}, 4, v{t+5}
    v_lshl_add_u32 v{t+5}, v{vN}, 7, v{t+5}
    s_lshl_b32 s{sT1}, s{sWC}, 13
    s_add_u32 s{sT1}, s{sT1}, {L_X}
    v_add_u32 v{vXa}, s{sT1}, v{t+5}
    v_xor_b32 v{vXb}, 64, v{vXa}
    """)

issued = {}
mk = {}
def dma(vo, rs, so, imm, sl, tgt, tag, fl, pre=None):
    def f1():
        k.e(f"s_add_u32 m0, s{sl}, {tgt - imm}")
        if pre: k.e(pre)
    def f2():
        if isinstance(tag, tuple): issued[tag[1]] = issued.get(tag[1], 0) + 1
        k.vmem(f"buffer_load_dwordx4 v{vo}, s[{rs}:{rs+3}], s{so} offen offset:{imm} {fl} lds", tag)
    return [F(f1, 2 if pre else 1), F(f2, 2, sep=True, ta=66)]
def run(ops):
    for op in ops:
        for f in (op if isinstance(op, list) else [op]):
            if f.sep: k.e("s_nop 0")
            f()
def flat(ops): return [f for op in ops for f in (op if isinstance(op, list) else [op])]
def advance(typ, stage):
    d = 64*3072 if typ == "mlp" else 128
    G = OPT["rotg"]
    if stage not in [10 - (10*g) // G for g in range(1, G)]:
        return f"s_add_u32 s{sX}, s{sX}, 128\ns_add_u32 s{sB0}, s{sB0}, {d}\ns_add_u32 s{sB2}, s{sB2}, {d}"
    return (f"s_cmp_eq_u32 s{sSig}, {10 - stage} | s_cselect_b32 s{sT3}, {-9*128 & 0xffffffff}, s{sDX} | s_cselect_b32 s{sT2}, {-9*d & 0xffffffff}, s{sDW}\n"
            f"s_add_u32 s{sX}, s{sX}, s{sT3}\ns_add_u32 s{sB0}, s{sB0}, s{sT2}\ns_add_u32 s{sB2}, s{sB2}, s{sT2}")
def rot_setup(typ):
    d = 64*3072 if typ == "mlp" else 128
    G = OPT.get("rotg", 0)
    if G == 0: rotsel = f"""    s_mul_i32 s{sT0}, s{sI8}, 5
    s_lshr_b32 s{sT0}, s{sT0}, 2
    s_mul_i32 s{sT1}, s{sML}, 5
    s_lshr_b32 s{sT1}, s{sT1}, 1
    s_add_u32 s{sT0}, s{sT0}, s{sT1}
    s_and_b32 s{sT1}, s{sMT}, 3
    s_add_u32 s{sSig}, s{sT0}, s{sT1}
    s_sub_u32 s{sT0}, s{sSig}, 10
    s_cmp_ge_u32 s{sSig}, 10
    s_cselect_b32 s{sSig}, s{sT0}, s{sSig}
    s_mul_i32 s{sSig}, s{sSig}, {OPT['rot1']}
    """
    else:
        rotsel = f"s_add_u32 s{sT0}, s{sI8}, s{sML}\ns_and_b32 s{sT0}, s{sT0}, {G-1}\ns_mul_i32 s{sT0}, s{sT0}, 10\ns_lshr_b32 s{sSig}, s{sT0}, {G.bit_length()-1}"
    k.e(f"""
    {rotsel}
    s_lshl_b32 s{sT0}, s{sSig}, 7
    s_add_u32 s{sX}, s{sX}, s{sT0}
    s_mul_i32 s{sT0}, s{sSig}, {d}
    s_add_u32 s{sB0}, s{sB0}, s{sT0}
    s_add_u32 s{sB2}, s{sB2}, s{sT0}
    s_movk_i32 s{sDX}, 128
    s_mov_b32 s{sDW}, {d}
    """)
def dma_x(stage, g):
    return dma(vDX0 + (g & 1), rX, sX, (g >> 1) * 1280, sLX, L_X + (stage % 3) * XS + g * 1024, ("st", stage), OPT.get("nt_x", "") if stage < OPT.get("nt_n", 99) else "")
def dma_w(typ, stage, g):
    base = L_W + (stage % 3) * WSL
    if typ == "mlp":
        rg, cg = g // 3, g % 3
        return dma(vDW + rg, rW, sB2 if rg else sB0, cg * 128, sLW, base + cg * 8192 + rg * 1024, ("st", stage), OPT["nt_dma"] if stage < OPT.get("nt_n", 99) else "")
    imm = 2560 if (g < 4 and g & 1) else 0
    return dma(vDW + (1 if g == 4 else 0), rW, sB2 if g in (2, 3) else sB0, imm, sLW, base + g * 2048, ("st", stage), OPT["nt_dma"] if stage < OPT.get("nt_n", 99) else "")
def dma_stage(typ, stage):
    nw = 6 if typ == "mlp" else 5
    ops = merge([dma_x(stage, g) for g in range(4)], [dma_w(typ, stage, g) for g in range(nw)])
    if stage > 0: ops[0] = lines(advance(typ, stage)) + ops[0]
    return ops
sPB = 98
def pf(a):
    def f():
        k.vmem(f"global_load_dword v{vJunk}, v{vPF}, s[{sPB}:{sPB+1}] {OPT['nt_pf']}", "pf")
        k.e(f"v_add_u32 v{vPF}, s{sDX}, v{vPF}\nv_min_u32 v{vPF}, s{sDW}, v{vPF}")
    return F(f, 4, ta=130)

def frag_reads(typ, stage, blk, fs):
    slot = stage % 3
    nr = 6 if typ == "mlp" else 5
    vx = vXa if blk == 0 else vXb
    xr = [DSF(f"ds_read_b128 {A(aF[fs] + 24 + 4*j, 4)}, v{vx} offset:{slot*XS + j*2048}") for j in range(4)]
    wr_ = []
    for i in range(nr):
        if typ == "mlp":
            for h in range(2):
                wr_.append(DSF(f"ds_read_b64_tr_b16 {A(aF[fs] + 4*i + 2*h, 2)}, v{vWA + blk*4 + (i & 3)} offset:{slot*WSL + (i >> 2)*8192 + h*512}"))
        else:
            wr_.append(DSF(f"ds_read_b128 {A(aF[fs] + 4*i, 4)}, v{vWA + blk} offset:{slot*WSL + i*2048}"))
    return merge(xr, wr_)

def mfmas(typ, stage, blk, fs):
    nr = 6 if typ == "mlp" else 5
    first = stage == 0
    out = []
    Af = lambda i: A(aF[fs] + 4*i, 4)
    Bf = lambda j: A(aF[fs] + 24 + 4*j, 4)
    for i in range(nr):
        for j in range(4):
            c = "0" if (first and blk == 0) else V(acc(i, j), 4)
            out.append(f"v_mfma_f32_16x16x32_bf16 {V(acc(i,j),4)}, {Af(i)}, {Bf(j)}, {c}")
    if blk == 1 and (2 not in OPT.get('x', ()) or stage == NST - 1):
        for i in range(nr):
            out.append(f"v_mfma_f32_16x16x32_bf16 {A(aCS+4*i,4)}, {Af(i)}, {A(aONE,4)}, {'0' if first else A(aCS+4*i,4)}")
    if blk == 1 and stage == NST - 1: out = out[-nr:] + out[:-nr]
    return out

XR = 124
def touch_all(typ):
    t = vT + 8
    if typ == "ssm":
        k.e(f"""
        s_lshl_b32 s{sT0}, s2, 2
        s_add_u32 s{sT0}, s{sT0}, s{sW}
        s_mul_i32 s{sT0}, s{sT0}, {40*128}
        v_min_u32 v{t}, 39, v{vL}
        s_mov_b64 s[{sT2}:{sT3}], s[{pX}:{pX+1}]
        """)
    else:
        k.e(f"""
        s_and_b32 s{sT0}, s2, 127
        s_lshl_b32 s{sT1}, s{sT0}, 1
        s_add_u32 s{sT1}, s{sT1}, s{sWC}
        s_mul_i32 s{sT1}, s{sT1}, {60*128}
        s_mul_i32 s{sT0}, s{sT0}, {50*128}
        s_cmp_eq_u32 s{sWC}, 0
        s_cselect_b64 s[{sT2}:{sT3}], s[{pBre}:{pBre+1}], s[{pBim}:{pBim+1}]
        s_cmp_eq_u32 s{sWR}, 0
        s_cselect_b32 s{sT0}, s{sT0}, s{sT1}
        s_cselect_b32 s{sT1}, 49, 59
        s_cselect_b64 s[{sT2}:{sT3}], s[{sT2}:{sT3}], s[{pW1}:{pW1+1}]
        v_min_u32 v{t}, s{sT1}, v{vL}
        """)
    k.e(f"v_lshlrev_b32 v{t}, 7, v{t}\nv_add_u32 v{t}, s{sT0}, v{t}")
    k.vmem(f"global_load_dword v{vJunk}, v{t}, s[{sT2}:{sT3}] {OPT['nt_pf']}", "tch")
def start_loads(typ):
    t = vT
    k.e("s_waitcnt lgkmcnt(0)")
    if OPT["stamps"]: k.e(f"v_writelane_b32 v{vST}, s{sST}, 0")
    stamp(12)
    k.e(f"""
    s_or_b32 s{sT0}, s2, s{sW}
    s_cmp_lg_u32 s{sT0}, 0
    s_cbranch_scc1 L_nononce_{typ}
    s_memrealtime s[{sT0}:{sT1}]
    s_waitcnt lgkmcnt(0)
    s_or_b32 s{sT0}, s{sT0}, 1
    v_mov_b32 v{t+8}, s{sT0}
    v_mov_b32 v{t+9}, 0
    global_store_dword v{t+9}, v{t+8}, s[{pDbg}:{pDbg+1}] sc1
    L_nononce_{typ}:
    """)
    srd(rX, pX, 2048 * 1280)
    if typ == "mlp": srd(rW, pW1, 640 * 3072)
    else:
        k.e(f"""
        s_cmp_eq_u32 s{sWC}, 0
        s_cselect_b32 s{rW}, s{pBre}, s{pBim}
        s_cselect_b32 s{rW+1}, s{pBre+1}, s{pBim+1}
        s_mov_b32 s{rW+2}, {640*1280}
        s_mov_b32 s{rW+3}, 0x20000
        """)
    if OPT['pf']:
        assert OPT['rotg'] == 1
        k.e(f"s_cmp_eq_u32 s{sW}, 3\ns_cselect_b64 s[{sPB}:{sPB+1}], s[{rX}:{rX+1}], s[{rW}:{rW+1}]")
        for _ in range(OPT['pfa'][0]): pf(0)()
    if OPT.get("tch") == 1: touch_all(typ)
    run(dma_stage(typ, 0))
    if OPT.get("tch") == 2: touch_all(typ)
    if OPT['pf']:
        for _ in range(OPT['pfa'][1]): pf(0)()
    if OPT['xr0']: run(xr_loads())
    stamp(13)
    if OPT.get("stlb", 1):
        k.e(f"s_lshl_b32 s{sT0}, s2, 7\ns_add_u32 s{sT0}, s{sT0}, {WS_HF + 32768}\ns_load_dword s{sNonce}, s[{pWs}:{pWs+1}], s{sT0} {'glc' if OPT.get('stlb') == 2 else ''}")
    srd(rWS, pWs, WS_SIZE)
    if OPT.get('wsoff'): k.e(f"s_add_u32 s{rWS}, s{rWS}, {OPT['wsoff'] << 20}\ns_addc_u32 s{rWS+1}, s{rWS+1}, 0")
def xr_setup():
    k.e(f"""
    s_lshl_b32 s{sT0}, s{sTYP}, 3
    s_add_u32 s{sT0}, s{sT0}, s{sNT}
    s_lshl_b32 s{sT0}, s{sT0}, 2
    s_add_u32 s{sT0}, s{sT0}, s{sW}
    s_lshl_b32 s{sT0}, s{sT0}, 1
    s_lshl_b32 s{sT1}, s{sMT}, 7
    s_add_u32 s{sHw}, s{sT0}, s{sT1}
    s_mul_i32 s{sH}, s{sHw}, 1280
    v_lshrrev_b32 v{XR+10}, 5, v{vL}
    v_mul_u32_u24 v{XR+10}, 1280, v{XR+10}
    v_and_b32 v{XR+11}, 31, v{vL}
    v_lshl_add_u32 v{XR+11}, v{XR+11}, 3, v{XR+10}
    v_lshlrev_b32 v{XR+13}, 1, v{XR+11}
    v_sub_u32 v{XR+10}, v{XR+13}, v{XR+10}
    """)
def xr_loads():
    return [VM(f"buffer_load_dwordx4 {V(XR+4*i,4)}, v{XR+10}, s[{rX}:{rX+3}], s{sH} offen offset:{512*i}", "xr") for i in range(2)] + \
           [VM(f"buffer_load_dwordx2 {V(XR+8,2)}, v{XR+11}, s[{rX}:{rX+3}], s{sH} offen offset:1024", "xr", ta=40)]
def small_dma(ptr, size, soff, tgt, lanes):
    srd(rT2, ptr, size)
    k.e(f"s_mov_b32 m0, {tgt}\ns_mov_b32 exec_lo, {(1 << lanes) - 1}\ns_mov_b32 exec_hi, 0")
    k.vmem(f"buffer_load_dwordx4 v{vL16}, s[{rT2}:{rT2+3}], s{soff} offen lds", "sm")
    k.e("s_mov_b64 exec, -1")
def touch_setup():
    t = 98
    srd(rT2, pCre, 640 * 1280)
    k.e(f"""
    s_mov_b64 s[{sEx}:{sEx+1}], s[{pCim}:{pCim+1}]
    s_and_b32 s{sT0}, s2, 31
    s_lshl_b32 s{sT0}, s{sT0}, 2
    s_add_u32 s{sT0}, s{sT0}, s{sW}
    s_mul_i32 s{sT0}, s{sT0}, {50*128}
    s_xor_b32 s{sT1}, s{sDis}, {OOB}
    s_or_b32 s{sT0}, s{sT0}, s{sT1}
    v_min_u32 v{t}, 49, v{vL}
    v_lshlrev_b32 v{t}, 7, v{t}
    v_add_u32 v{t}, s{sT0}, v{t}
    """)
def touch_c():
    ld = f"buffer_load_dword v{vJunk}, v98, s[{rT2}:{rT2+3}], 0 offen"
    return [VM(ld, "jk", ta=20)] + lines(f"s_mov_b32 s{rT2}, s{sEx}\ns_mov_b32 s{rT2+1}, s{sEx+1}") + [VM(ld, "jk", ta=20)]
def small_loads(typ):
    k.e(f"s_mul_i32 s{sT0}, s{sDT}, 160")
    small_dma(pDsk, 1280, sT0, L_DB, 10)
    small_dma(pB2, 1280, sT0, L_DB + 160, 10)
    if typ == "mlp":
        k.e(f"s_mul_i32 s{sT0}, s{sNT}, 384")
        small_dma(pB1, 3072, sT0, L_B1, 24)

def pf_setup(typ):
    t = vT + 10
    PS = OPT["pf"]
    k.e(f"""
    v_mul_u32_u24 v{t}, 52, v{vL}
    v_lshrrev_b32 v{t}, 10, v{t}
    v_mul_u32_u24 v{t+1}, 20, v{t}
    v_sub_u32 v{t+1}, v{vL}, v{t+1}
    v_min_u32 v{t}, {PS - 1}, v{t}
    s_lshl_b32 s{sT0}, s{sMT}, 7
    s_lshl_b32 s{sT1}, s{sI8}, 4
    s_add_u32 s{sT0}, s{sT0}, s{sT1}
    s_mul_i32 s{sT0}, s{sT0}, 1280
    s_add_u32 s{sT0}, s{sT0}, {128*OPT['pf0']}
    """)
    if typ == "mlp":
        k.e(f"""
        s_lshl_b32 s{sT1}, s{sML}, 4
        s_add_u32 s{sT1}, s{sT1}, {64*OPT['pf0']}
        s_mul_i32 s{sT1}, s{sT1}, 3072
        s_mul_i32 s{sT2}, s{sNT}, 384
        s_add_u32 s{sT1}, s{sT1}, s{sT2}
        s_lshl_b32 s{sT2}, s{sW}, 7
        s_add_u32 s{sT1}, s{sT1}, s{sT2}
        s_cmp_eq_u32 s{sW}, 3
        s_cselect_b32 s{sT0}, s{sT0}, s{sT1}
        s_mov_b32 s{sT2}, {64*3072}
        s_cselect_b32 s{sT2}, 128, s{sT2}
        s_mov_b32 s{sT3}, 3072
        s_cselect_b32 s{sT3}, 1280, s{sT3}
        s_mov_b32 s{sDW}, {640*3072 - 128}
        s_cselect_b32 s{sDW}, {2048*1280 - 128}, s{sDW}
        v_min_u32 v{t+1}, 15, v{t+1}
        """)
    else:
        k.e(f"""
        s_mul_i32 s{sT1}, s{sNT}, 80
        s_mul_i32 s{sT2}, s{sML}, 20
        s_add_u32 s{sT1}, s{sT1}, s{sT2}
        s_mul_i32 s{sT1}, s{sT1}, 1280
        s_add_u32 s{sT1}, s{sT1}, {128*OPT['pf0']}
        s_cmp_eq_u32 s{sW}, 3
        s_cselect_b32 s{sT0}, s{sT0}, s{sT1}
        s_cselect_b32 s{sT1}, 15, 19
        s_mov_b32 s{sDW}, {640*1280 - 128}
        s_cselect_b32 s{sDW}, {2048*1280 - 128}, s{sDW}
        s_cmp_eq_u32 s{sW}, 2
        s_cselect_b32 s{sT1}, 0, s{sT1}
        v_min_u32 v{t+1}, s{sT1}, v{t+1}
        s_mov_b32 s{sT2}, 128
        s_mov_b32 s{sT3}, 1280
        """)
    k.e(f"""
    s_mul_i32 s{sDX}, s{sT2}, {PS}
    v_mul_lo_u32 v{vPF}, v{t}, s{sT2}
    v_mul_lo_u32 v{t+2}, v{t+1}, s{sT3}
    v_add_u32 v{vPF}, v{vPF}, v{t+2}
    v_add_u32 v{vPF}, s{sT0}, v{vPF}
    """)

def repack_setup(tag):
    t = vT
    k.e(f"""
    v_lshrrev_b32 v{t}, 3, v{vL}
    v_and_b32 v{t+1}, 7, v{vL}
    v_mul_u32_u24 v{t}, 1280, v{t}
    v_lshl_add_u32 v{t}, v{t+1}, 4, v{t}
    v_or_b32 v{vDR}, s{sDis}, v{t}
    v_or_b32 v{vRS}, s{sDis}, v{vL16}
    s_lshl_b32 s{sLR}, s{sW}, 10
    s_and_b32 s{sT0}, s{sUnit}, 1
    s_lshr_b32 s{sT1}, s{sUnit}, 1
    s_mov_b32 s{rT+3}, 0x20000
    """)
    if True:
        k.e(f"""
        s_mov_b32 s{rT}, s{pW2}
        s_mov_b32 s{rT+1}, s{pW2+1}
        s_mov_b32 s{rT+2}, {1536*1280}
        s_lshl_b32 s{sT2}, s{sT1}, 2
        s_add_u32 s{sT2}, s{sT2}, s{sW}
        s_mul_i32 s{sRpSrc}, s{sT2}, {8*1280}
        s_mul_i32 s{sT2}, s{sT1}, 5462
        s_lshr_b32 s{sT2}, s{sT2}, 16
        s_mul_i32 s{sT2}, s{sT2}, 10
        s_add_u32 s{sT1}, s{sT1}, s{sT2}
        s_mul_i32 s{sT1}, s{sT1}, 5120
        s_add_u32 s{sT1}, s{sT1}, {WS_WP}
        s_mul_i32 s{sT2}, s{sT0}, 20
        s_add_u32 s{sT2}, s{sT2}, s{sW}
        """)
        for i in range(5):
            k.e(f"""
            s_mul_i32 s{sT3}, s{sT2}, 13108
            s_lshr_b32 s{sT3}, s{sT3}, 16
            s_mul_i32 s{sT3}, s{sT3}, 435
            s_add_u32 s{sT3}, s{sT3}, s{sT2}
            s_lshl_b32 s{sT3}, s{sT3}, 10
            s_add_u32 s{sRpD+i}, s{sT3}, s{sT1}
            s_add_u32 s{sT2}, s{sT2}, 4
            """)
        k.e(f"""
        v_lshrrev_b32 v{t}, 2, v{vN}
        v_lshl_add_u32 v{t}, v{vQ}, 2, v{t}
        v_lshlrev_b32 v{t}, 7, v{t}
        v_and_b32 v{t+1}, 3, v{vN}
        v_lshl_add_u32 v{t}, v{t+1}, 3, v{t}
        s_lshl_b32 s{sT2}, s{sW}, 5
        s_add_u32 s{sT2}, s{sT2}, {L_STG}
        v_add_u32 v{vRA}, s{sT2}, v{t}
    """)
    else:
        k.e(f"""
        s_cmp_eq_u32 s{sWR}, 0
        s_cselect_b32 s{rT}, s{pCre}, s{pCim}
        s_cselect_b32 s{rT+1}, s{pCre+1}, s{pCim+1}
        s_mov_b32 s{rT+2}, {640*1280}
        s_lshl_b32 s{sT2}, s{sT1}, 1
        s_add_u32 s{sT2}, s{sT2}, s{sWC}
        s_mul_i32 s{sRpSrc}, s{sT2}, {8*1280}
        s_mul_i32 s{sT2}, s{sT1}, 13108
        s_lshr_b32 s{sT2}, s{sT2}, 16
        s_mul_i32 s{sT2}, s{sT2}, 435
        s_add_u32 s{sT1}, s{sT1}, s{sT2}
        s_lshl_b32 s{sT2}, s{sT0}, 1
        s_add_u32 s{sT2}, s{sT2}, s{sWR}
        s_mul_i32 s{sT2}, s{sT2}, 110
        s_add_u32 s{sT1}, s{sT1}, s{sT2}
        s_mul_i32 s{sT2}, s{sWC}, 25
        s_add_u32 s{sT1}, s{sT1}, s{sT2}
        s_add_u32 s{sT1}, s{sT1}, 60
        s_lshl_b32 s{sT1}, s{sT1}, 10
        s_add_u32 s{sRpD}, s{sT1}, {WS_WP}
        s_add_u32 s{sRpD+1}, s{sRpD}, 5120
        s_add_u32 s{sRpD+2}, s{sRpD}, 10240
        s_add_u32 s{sRpD+3}, s{sRpD}, 15360
        s_add_u32 s{sRpD+4}, s{sRpD}, 20480
        s_mul_i32 s{sT2}, s{sW}, 160
        v_lshlrev_b32 v{t+2}, 7, v{vN}
        v_add_u32 v{t+2}, {L_STG}, v{t+2}
        """)
        for x, (off, sh) in enumerate(((0, 4), (80, 4), (64, 2), (144, 2))):
            k.e(f"""
            s_add_u32 s{sT3}, s{sT2}, {off}
            v_lshl_add_u32 v{t}, v{vQ}, {sh}, s{sT3}
            v_lshrrev_b32 v{t+1}, 7, v{t}
            v_and_b32 v{t}, 127, v{t}
            v_lshl_add_u32 v{t}, v{t+1}, 12, v{t}
            v_add_u32 v{vRA+x}, v{t}, v{t+2}
            """)
    k.e(f"""
    s_mul_i32 s{sT0}, s{sT0}, 640
    s_add_u32 s{sRpSrc}, s{sRpSrc}, s{sT0}
    """)
def repack_dma():
    return [dma(vDR, rT, sRpSrc, g * 128, sLR, L_STG + g * 4096, "rp%d" % g, OPT["nt_rp"]) for g in range(5)]
RP = 136
def RPR(tag, o, n): return V(RP + o, n)
def repack_read(tag):
    if True:
        return [DSF(f"ds_read_b64_tr_b16 {V(RP+4*i+2*h,2)}, v{vRA} offset:{i*4096 + h*2048}") for i in range(5) for h in range(2)]
    return [DSF(f"ds_read_b128 {V(RP+4*x,4)}, v{vRA + x//2} offset:{(x & 1)*2048}") for x in range(4)] + \
           [DSF(f"ds_read_b32 v{RP+16+x}, v{vRA + 2 + x//2} offset:{(x & 1)*2048}") for x in range(4)]
def repack_store(tag):
    return [VM(f"buffer_store_dwordx4 {RPR(tag, 4*i, 4)}, v{vRS}, s[{rWS}:{rWS+3}], s{sRpD+i} offen sc1", ("rps", i), ta=240) for i in range(5)]
def repack_flag():
    t = vT
    pre = lines(f"""
    v_mov_b32 v{t}, s{sNonce}
    v_mov_b32 v{t+1}, s{sNonce}
    s_lshl_b32 s{sRpSrc}, s{sUnit}, 7
    s_lshl_b32 s{sT1}, s{sW}, 4
    s_add_u32 s{sRpSrc}, s{sRpSrc}, s{sT1}
    s_add_u32 s{sRpSrc}, s{sRpSrc}, {WS_RF}
    s_add_u32 s{sRpSrc}, s{sRpSrc}, 16384
    v_lshlrev_b32 v{t+2}, 26, v{vL}
    v_or_b32 v{t+2}, s{sDis}, v{t+2}
    """)
    def f():
        k.wait_vm(("rps", 4))
        k.vmem(f"buffer_store_dwordx2 {V(t,2)}, v{t+2}, s[{rWS}:{rWS+3}], s{sRpSrc} offen sc1", "rf")
    return pre, F(f, 3, ta=20)

def bfr(d, s): return f"v_cvt_pk_bf16_f32 v{d}, v{s}, v{s}\nv_and_b32 v{d}, 0xffff0000, v{d}\n"
def nonce_load():
    return lines(f"v_mov_b32 v{vNc}, 0") + [VM(f"global_load_dword v{vNc}, v{vNc}, s[{pDbg}:{pDbg+1}] sc1", "nc", ta=20)]
def rowstat_job(tag):
    t = vT + 20
    S_, Q, MEAN, VAR, S1, X, Y = t, t+1, t+2, t+3, t+4, t+5, t+6
    G0, G1 = t+8, t+12
    M1, A1, A2, AM = G0, G0+2, G1, G1+2
    def dots():
        k.wait_vm("xr")
        s = f"v_mov_b32 v{X}, 0x3f803f80\nv_mov_b32 v{S_}, 0\nv_mov_b32 v{Q}, 0\n"
        for i in range(10): s += f"v_dot2c_f32_bf16 v{S_}, v{XR+i}, v{X}\nv_dot2c_f32_bf16 v{Q}, v{XR+i}, v{XR+i}\n"
        s += "s_nop 2\n"
        k.e(s)
    fl = [F(dots, 24)]
    for d in ("row_shr:1", "row_shr:2", "row_shr:4", "row_shr:8", "row_bcast:15"):
        rm = "0xa" if "bcast" in d else "0xf"
        fl.append(F(lambda d=d, rm=rm: k.e(f"v_add_f32_dpp v{S_}, v{S_}, v{S_} {d} row_mask:{rm} bank_mask:0xf bound_ctrl:0"), 1, sep=True))
        fl.append(F(lambda d=d, rm=rm: k.e(f"v_add_f32_dpp v{Q}, v{Q}, v{Q} {d} row_mask:{rm} bank_mask:0xf bound_ctrl:0"), 1))
    fl += lines(f"""
    v_mul_f32 v{MEAN}, {hx(1/640)}, v{S_}
    v_mul_f32 v{VAR}, {hx(1/640)}, v{Q}
    v_fma_f32 v{VAR}, -v{MEAN}, v{MEAN}, v{VAR}
    v_max_f32 v{VAR}, 0, v{VAR}
    {bfr(M1, MEAN)}{bfr(X, VAR)}
    v_add_f32 v{X}, {hx(1e-5)}, v{X}
    {bfr(X, X)}
    v_sqrt_f32 v{X}, v{X}
    v_sub_f32 v{Y}, v{MEAN}, v{M1}
    {bfr(S1, X)}
    v_rcp_f32 v{A1}, v{S1}
    s_nop 0
    v_mul_f32 v{Y}, v{Y}, v{A1}
    v_mul_f32 v{X}, v{VAR}, v{A1}
    {bfr(Y, Y)}
    v_mul_f32 v{X}, v{X}, v{A1}
    {bfr(X, X)}
    v_add_f32 v{X}, {hx(1e-5)}, v{X}
    {bfr(X, X)}
    v_sqrt_f32 v{X}, v{X}
    v_fma_f32 v{Y}, v{Y}, v{S1}, v{M1}
    {bfr(X, X)}
    v_mul_f32 v{X}, v{X}, v{S1}
    v_rcp_f32 v{A2}, v{X}
    v_and_b32 v{X}, 31, v{vL}
    v_mul_f32 v{AM}, v{A2}, v{Y}
    v_sub_u32 v{X}, 31, v{X}
    v_and_b32 v{Y}, 32, v{vL}
    v_lshl_add_u32 v{X}, v{X}, 26, v{Y}
    s_lshl_b32 s{sT0}, s{sHw}, 5
    s_add_u32 s{sT0}, s{sT0}, {WS_RS}
    """)
    def nonce():
        k.wait_vm("nc")
        k.e(f"""
        v_readfirstlane_b32 s{sNonce}, v{vNc}
        s_cmp_lg_u32 s{sNonce}, 0
        s_cbranch_scc1 L_ncok_{tag}
        L_ncl_{tag}:
        s_sleep 1
        global_load_dword v{vNc}, v{Y}, s[{pDbg}:{pDbg+1}] sc1
        s_sub_u32 s{sSpin}, s{sSpin}, 1
        s_cbranch_scc1 L_end
        s_waitcnt vmcnt(0)
        v_readfirstlane_b32 s{sNonce}, v{vNc}
        s_cmp_eq_u32 s{sNonce}, 0
        s_cbranch_scc1 L_ncl_{tag}
        L_ncok_{tag}:
        s_nop 0
        """)
    fl += lines(f"v_mov_b32 v{Y}, 0") + [F(nonce, 4)]
    fl += lines(f"""
    v_mov_b32 v{G0+1}, s{sNonce}
    v_mov_b32 v{G0+3}, s{sNonce}
    v_mov_b32 v{G1+1}, s{sNonce}
    v_mov_b32 v{G1+3}, s{sNonce}
    """)
    fl.append(VM(f"buffer_store_dwordx4 {V(G0,4)}, v{X}, s[{rWS}:{rWS+3}], s{sT0} offen sc1", "rs", ta=20))
    fl.append(VM(f"buffer_store_dwordx4 {V(G1,4)}, v{X}, s[{rWS}:{rWS+3}], s{sT0} offen offset:16 sc1", "rs", ta=20))
    return fl
RSV = 124
def rowstat_fetch():
    fl = lines(f"""
    s_lshl_b32 s{sT0}, s{sMT}, 12
    s_add_u32 s{sT0}, s{sT0}, {WS_RS}
    v_lshlrev_b32 v{RSV+4}, 4, v0
    v_add_u32 v{RSV+4}, s{sT0}, v{RSV+4}
    """)
    return fl + [VM(f"buffer_load_dwordx4 {V(RSV,4)}, v{RSV+4}, s[{rWS}:{rWS+3}], 0 offen sc1", "rsv")]

def ta_of(op): return sum(f.ta for f in flat([op]))
def main_loop(typ, jobs, vq, bg):
    q = [(max(0, 2*st - 5), max(2*st - 4 + (x >= 5) - OPT.get('lag', 0), x >= 5), op) for st in range(2, NST) for x, op in enumerate(dma_stage(typ, st))]
    q = sorted(q + vq, key=lambda x: x[1])
    credit = [OPT.get("credit0", 0)]
    def take(bi, n):
        credit[0] = min(credit[0] + n * 17 * OPT["util"], n * 17 + 100) - sum(ta_of(x) for x in jobs.get(("pre", bi), []) + jobs.get(bi, []))
        out = []
        while True:
            c = [x for x in q if x[0] <= bi]
            if not c or ((credit[0] < 33 or len(out) >= (OPT['ctail'] if typ == 'ssm' and bi >= 15 else OPT.get('cap', 6))) and c[0][1] > bi): break
            q.remove(c[0]); out.append(c[0][2]); credit[0] -= ta_of(c[0][2])
        if OPT.get('show'): print(typ, bi, len(out), len(jq), len(bg), int(credit[0]), dict(issued))
        return flat(out)
    jq = []
    stamp(15)
    run(dma_stage(typ, 1))
    if OPT['pf']:
        for _ in range(OPT['pfa'][2]): pf(0)()
    stamp(62)
    k.wait_vm(("st", 0)); k.e("s_barrier")
    stamp()
    run(frag_reads(typ, 0, 0, 0))
    def block(bi, m, reads, n):
        curblk[0] = bi
        run(jobs.get(("pre", bi), []))
        jq.extend(jobs.get(bi, []))
        jq[:0] = jobs.get(("front", bi), [])
        d = take(bi, n)
        n = len(m)
        if bi == 2*NST - 1: reads, r0 = jobs["last"], 9
        else: r0 = 0
        sched(m, [(d, 0, n - 1, True), (reads, r0, n - OPT.get("rend", 6), True), (jobs["tail"] if r0 else [], 0, 9, True), (jq, 0, n, False), (bg if bi >= OPT.get("bg0", 1) else [], 0, n, False)])
    for s in range(NST):
        k.wait_lg()
        m = mfmas(typ, s, 0, 0)
        block(2*s, m, frag_reads(typ, s, 1, 1), len(m))
        k.wait_lg()
        m = mfmas(typ, s, 1, 1)
        k.e(m[0]); k.e(m[1])
        if s + 1 < NST:
            if OPT.get("fine"): stamp(16 + 3*s)
            assert issued.get(s + 1, 0) == (10 if typ == "mlp" else 9), (typ, s, issued)
            for tg in jobs.get(("wait", s), []): assert tg in k.seen, tg
            k.wait_vm([("st", s + 1)] + jobs.get(("wait", s), []))
            if OPT.get("fine"): stamp(17 + 3*s)
            k.e("s_barrier")
        block(2*s + 1, m[2:], frag_reads(typ, s + 1, 0, 0) if s + 1 < NST else [], len(m))
    assert not jq and len(bg) < 12, (len(jq), len(bg))
    run(bg)
    stamp()
    if OPT["stop"] == "loop":
        k.e("s_branch L_fin"); k.seen.update(["rsv", ("rps", 4), "b1"])
    return [x[2] for x in q]

WSLOT = [("a", 108 + 20*x) for x in range(7)] + [("a", 20*x) for x in range(5)] + [("v", 100 + 20*x) for x in range(3)]
NREG = 15
def wreg(tk): return WSLOT[tk]
def kaddr(dst, base, tk, stride):
    return lines(f"s_cmp_gt_u32 s{sLim}, {tk} | s_cselect_b32 s{dst}, s{base}, s{base+1}\ns_add_u32 s{dst}, s{dst}, {tk*stride}")
def wload(tk):
    kind, base = wreg(tk)
    out = []
    for i in range(5):
        op = []
        if i == 0: op += kaddr(sT2, sWa, tk, 5120) if cur[0] == "mlp" else lines(f"s_add_u32 s{sT2}, s{sLim+1}, {tk*5120}")
        if i == 4: op += lines(f"s_add_u32 s{sT2}, s{sT2}, 4096")
        op.append(VM(f"buffer_load_dwordx4 {R(kind, base+4*i, 4)}, v{vL16}, s[{rWS}:{rWS+3}], s{sT2} offen offset:{(i & 3)*1024} sc1", ("w", tk)))
        out.append(op)
    return out
RFV = 24
sWLb, sTx = 34, 35
MV = OPT["mv"]
NK = {"mlp": 12 - MV, "ssm": 10 + MV}
def p2_addr(typ):
    n_ = NK[typ]; k0 = 0 if typ == "mlp" else 12
    if typ == "mlp":
        k.e(f"""
        v_min_u32 v{vT+2}, {4*n_ - 1}, v{vL}
        s_mul_i32 s{sT0}, s{sW}, 24
        s_lshr_b32 s{sT1}, s{sDT}, 2
        s_add_u32 s{sT0}, s{sT0}, s{sT1}
        s_lshl_b32 s{sT0}, s{sT0}, 7
        s_add_u32 s{sT0}, s{sT0}, {WS_RF + 16384}
        v_lshrrev_b32 v{vT}, 2, v{vT+2}
        v_and_b32 v{vT+1}, 3, v{vT+2}
        """)
        k.e(f"v_lshlrev_b32 v{vT}, 8, v{vT}\nv_lshl_add_u32 v{vT}, v{vT+1}, 4, v{vT}\nv_add_u32 v{RFV}, s{sT0}, v{vT}")
    k.e(f"""
    s_and_b32 s{sT2}, s{sDT}, 3
    s_add_u32 s{sT2}, s{sT2}, s{sML}
    s_and_b32 s{sT2}, s{sT2}, 3
    s_mul_i32 s{sT2}, s{sT2}, {n_ * OPT['rot2'] if typ == 'mlp' else 0}
    s_lshr_b32 s{sT2}, s{sT2}, 2
    s_sub_u32 s{sLim}, {n_ if typ == 'mlp' else 10}, s{sT2}
    s_mul_i32 s{sT0}, s{sW}, 22
    s_add_u32 s{sT0}, s{sT0}, s{sT2}
    s_add_u32 s{sT0}, s{sT0}, {k0}
    s_mul_i32 s{sT1}, s{sDT}, 88
    s_add_u32 s{sT1}, s{sT1}, s{sT0}
    s_mul_i32 s{sT1}, s{sT1}, 5120
    {f"s_add_u32 s{sWa}, s{sT1}, {WS_WP}" if typ == "mlp" else f"s_add_u32 s{sLim+1}, s{sT1}, {WS_WP - n_*5120}"}
    {f"s_sub_u32 s{sWa+1}, s{sWa}, {n_*5120}" if typ == "mlp" else ""}
    s_lshl_b32 s{sT1}, s{sMT}, 1
    s_add_u32 s{sT1}, s{sT1}, s{sHALF}
    s_mul_i32 s{sT2}, s{sT1}, 88
    s_add_u32 s{sT2}, s{sT2}, s{sT0}
    s_lshl_b32 s{sT2}, s{sT2}, 12
    s_add_u32 s{sHa+2}, s{sT2}, {WS_H}
    s_sub_u32 s{sHa+3}, s{sHa+2}, {n_*4096}
    s_{'add' if typ == 'mlp' else 'sub'}_u32 s{sHa}, s{sHa+2}, {88*4096}
    s_sub_u32 s{sHa+1}, s{sHa}, {n_*4096}
    s_mul_i32 s{sWLb}, s{sW}, {WLW}
    s_add_u32 s{sWLb}, s{sWLb}, {L_WL}
    """)
def rflag_fetch(vd):
    k.vmem(f"buffer_load_dwordx2 {V(vd,2)}, v{RFV}, s[{rWS}:{rWS+3}], 0 offen sc1", "rfv")
def check(tag, vaddr, vd, width=2, second=1):
    k.e(f"""
    L_chk_{tag}:
    v_cmp_ne_u32 vcc, s{sNonce}, v{vd + (1 if width == 4 else 0)}
    v_cmp_ne_u32 s[{sT0}:{sT1}], s{sNonce}, v{vd + (3 if width == 4 else 1)}
    s_or_b64 vcc, vcc, s[{sT0}:{sT1}]
    s_cmp_eq_u64 vcc, 0
    s_cbranch_scc1 L_chkok_{tag}
    s_sub_u32 s{sSpin}, s{sSpin}, 1
    s_cbranch_scc1 L_end
    buffer_load_dwordx{width} {V(vd,width)}, v{vaddr}, s[{rWS}:{rWS+3}], 0 offen sc1
    s_waitcnt vmcnt(0)
    s_branch L_chk_{tag}
    L_chkok_{tag}:
    """)
vCD = 20
sCU = [18, 19, 20, 21, 35]
sCs, sCt = 42, 43
def c_setup():
    t = vT
    srd(rT2, pCim, 640 * 1280)
    if OPT['rpown'] == 'ssm': k.e(f"s_mov_b64 s[{sEx}:{sEx+1}], s[{pCre}:{pCre+1}]")
    else: srd(rT, pCre, 640 * 1280)
    for g in range(5):
        k.e(f"""
        v_add_u32 v{t}, {64*g}, v{vL}
        v_mul_u32_u24 v{t+1}, 3277, v{t}
        v_lshrrev_b32 v{t+1}, 16, v{t+1}
        v_mul_u32_u24 v{t+2}, 20, v{t+1}
        v_sub_u32 v{t+2}, v{t}, v{t+2}
        v_mul_u32_u24 v{t+1}, 1280, v{t+1}
        v_lshl_add_u32 v{vCD+g}, v{t+2}, 4, v{t+1}
        """)
    k.e(f"""
    s_mul_i32 s{sCs}, s{sDT}, {80*1280}
    s_mul_i32 s{sT0}, s{sW}, 320
    s_add_u32 s{sCs}, s{sCs}, s{sT0}
    s_mul_i32 s{sT1}, s{sW}, 5120
    s_add_u32 s{sCU[0]}, s{sT1}, 20480
    s_add_u32 s{sCU[1]}, s{sT1}, 110592
    s_add_u32 s{sCU[2]}, s{sT1}, 57344
    s_add_u32 s{sCU[3]}, s{sT1}, 131072
    s_mov_b32 s{sT0}, 77824
    s_cmp_eq_u32 s{sWR}, 0
    s_cselect_b32 s{sT0}, s{sT0}, 141312
    s_add_u32 s{sCU[4]}, s{sT1}, s{sT0}
    """)
def c_dma(i, rs, tag):
    out = []
    for g in range(5):
        op = lines(f"s_add_u32 s{sCt}, s{sCs}, {i*16*1280}") if g == 0 else []
        out.append(op + lines(f"s_add_u32 m0, s{sCU[i]}, {g*1024}") + [VM(f"buffer_load_dwordx4 v{vCD+g}, s[{rs}:{rs+3}], s{sCt} offen lds", tag, sep=True, ta=80)])
    return out
def c_read(im, B):
    k.e(f"""
    v_mul_u32_u24 v{B[5]}, 320, v{vN}
    v_lshl_add_u32 v{B[2]}, v{vQ}, 4, v{B[5]}
    v_lshrrev_b32 v{B[4]}, 1, v{vQ}
    v_mul_u32_u24 v{B[4]}, 80, v{B[4]}
    v_add_u32 v{B[5]}, v{B[5]}, v{B[4]}
    v_add_u32 v{B[0]}, s{sCU[0]}, v{B[2]}
    v_add_u32 v{B[1]}, s{sCU[1]}, v{B[2]}
    v_add_u32 v{B[2]}, s{sCU[4]}, v{B[2]}
    v_add_u32 v{B[3]}, s{sCU[0]}, v{B[5]}
    v_add_u32 v{B[4]}, s{sCU[1]}, v{B[5]}
    v_add_u32 v{B[5]}, s{sCU[4]}, v{B[5]}
    """)
    where = [(0, 0), (1, 0), (0, 57344 - 20480), (1, 131072 - 110592), (2, 0)]
    for a_ in range(2):
        for wr_ in range(2):
            kind, base = wreg(5*a_ + 2*wr_ + im)
            for i, (b_, o_) in enumerate(where):
                k.ds(f"ds_read_b128 {R(kind, base+4*i, 4)}, v{B[b_]} offset:{o_ + 160*a_ + 80*wr_}", "cr")
    m_ = "0xffff0000" if im else "0x0000ffff"
    k.e(f"s_mov_b32 exec_lo, {m_}\ns_mov_b32 exec_hi, {m_}")
    for a_ in range(2):
        kind, base = wreg(5*a_ + 4)
        for i, (b_, o_) in enumerate(where):
            k.ds(f"ds_read_b128 {R(kind, base+4*i, 4)}, v{B[3+b_]} offset:{o_ + 160*a_ + 64}", "cr")
    k.e("s_mov_b64 exec, -1")

def common_jobs(typ):
    j = {}
    def add(key, items): j[key] = j.get(key, []) + items
    j[0] = nonce_load()
    j[1 if OPT['xr0'] else 3] = rowstat_job(typ)
    vq = [] if OPT['xr0'] else [(0, 1.5, op) for op in xr_loads()]
    if OPT['pf']:
        for bi in OPT['pfb']: add(('pre', bi), [pf(0)])
    if typ == OPT["rpown"]:
        r0, rpst, rpfl = OPT["rp_" + typ]
        assert r0 % 2 == 1
        add(("wait", (r0 - 1) // 2), ["rp4"])
        add(("pre", r0), repack_read(typ))
        for f, bi in zip(repack_store(typ), rpst): add(("pre", bi), [f])
        vq += [OPT["rpd_" + typ] + (op,) for op in repack_dma()]
        a_, b_ = repack_flag()
        d_ = {}
        add(min(rpfl, 15) - 5, a_ + [note(d_, 1)])
        if rpfl < 20: add(("pre", rpfl), [F(lambda: d_[1], 0), b_])
        else: j["rpflag"] = b_
        if typ == "ssm":
            assert OPT.get("c0", 12) > r0 + 2
            add(("pre", r0), lines(f"s_mov_b32 s{rT}, s{sEx}\ns_mov_b32 s{rT+1}, s{sEx+1}\ns_mov_b32 s{rT+2}, {640*1280}"))
    if typ == "ssm":
        vq += [(e_, 99, op) for i, e_ in zip((0, 1, 2, 3, 4), (OPT.get("c0", 12), 15, 17, 17, 17)) for op in c_dma(i, rT, "cre")]
    else:
        if OPT["tmlp"] >= 0: add(OPT["tmlp"], touch_c())
        bi = OPT["rf_mlp"]
        RD_ = vT + 4
        if bi <= 20: add(("pre", bi - 1), [F(lambda: rflag_fetch(RD_), 2, ta=50)])
        def chk():
            k.wait_vm("rfv"); check("rf_" + typ, RFV, RD_)
        j["rfchk"] = chk
        if bi < 20:
            add(("pre", bi), [F(chk, 6)])
            vq += [(bi, 99, op) for tk in range(7) for op in wload(tk)]
    stats_jobs(typ, j)
    if 6 in OPT.get("x", ()) and typ == "mlp":
        for bi in range(20): j[("pre", bi)] = [f for f in j.get(("pre", bi), []) if f.ta != 240]
        k.seen.add(("rps", 4))
    if 3 in OPT.get("x", ()):
        j[3] = [f for f in j[3] if f.cost == 4][:1] if False else j[3][-8:]
        vq = [v for v in vq if v[1] != 1.5]
    return j, vq

TK = vT + 8
SA = 76
def stats_jobs(typ, j):
    nr = 6 if typ == "mlp" else 5
    L_SC, SCW = L_SCS[typ]
    k.e(f"""
    s_mul_i32 s{sT0}, s{sW}, {SCW}
    s_add_u32 s{sT0}, s{sT0}, {L_SC}
    v_lshlrev_b32 v{SA+1}, 4, v{vQ}
    v_add_u32 v{SA}, s{sT0}, v{SA+1}
    v_min_u32 v{SA+2}, 1, v{vN}
    v_mul_u32_u24 v{SA+2}, 0x30000, v{SA+2}
    v_add_u32 v{SA}, v{SA}, v{SA+2}
    s_mul_i32 s{sT0}, s{sWR}, {2*SCW}
    s_add_u32 s{sT0}, s{sT0}, {L_SC}
    v_add_u32 v{SA+1}, s{sT0}, v{SA+1}
    s_lshl_b32 s{sT0}, s{sWC}, 10
    v_lshlrev_b32 v{SA+2}, 6, v{vN}
    v_add_u32 v{SA+2}, s{sT0}, v{SA+2}
    v_lshlrev_b32 v{SA+3}, 3, v0
    """)
    j[OPT.get('rsb', 13)] = j.get(OPT.get('rsb', 13), []) + rowstat_fetch()
    def chk():
        k.wait_vm("rsv")
        check("rs_" + typ, RSV + 4, RSV, 4)
        k.ds(f"ds_write2_b32 v{SA+3}, v{RSV}, v{RSV+2} offset0:{L_TOK//4} offset1:{L_TOK//4+1}")
    j[("pre", 16)] = j.get(("pre", 16), []) + [F(chk, 8)]
    j["tail"] = [DSF(f"ds_read_b128 {V(TK+4*x,4)}, v{SA+2} offset:{L_TOK + x*16}") for x in range(4)]
    j["last"] = [DSF(f"ds_write_b128 v{SA}, {A(aCS+4*i,4)} offset:{i*64}") for i in range(nr)]
def stats(typ):
    nr = 6 if typ == "mlp" else 5
    CS = vT + 24; P2 = 100
    SCW = L_SCS[typ][1]
    k.wait_lg(); k.e("s_barrier")
    for i in range(nr):
        k.ds(f"ds_read_b128 {V(P2+4*i,4)}, v{SA+1} offset:{SCW+i*64}", ("cs", i))
    for i in (0, 1, 2, 4, 5, 3)[:nr + 1]:
        if i < nr: k.ds(f"ds_read_b128 {V(CS+4*i,4)}, v{SA+1} offset:{i*64}", ("cs", i))
    return TK, CS, P2
def stats_sum(typ, CS, P2):
    k.wait_lg()
    for i in range(6 if typ == "mlp" else 5):
        for h in range(2):
            k.e(f"v_pk_add_f32 {V(CS+4*i+2*h,2)}, {V(CS+4*i+2*h,2)}, {V(P2+4*i+2*h,2)}")

class Feeder:
    def __init__(self, jobs, every): self.jobs, self.every, self.n = list(jobs), every, 0
    def tick(self, n=1):
        self.n += n
        while self.n >= self.every and self.jobs:
            self.n -= self.every; run([self.jobs.pop(0)])
    def flush(self):
        while self.jobs: run([self.jobs.pop(0)])

HB = 88 * 4096
def h_base():
    k.e(f"""
    s_mul_i32 s{sH}, s{sMT}, {2*HB}
    s_lshl_b32 s{sT0}, s{sWC}, 11
    s_add_u32 s{sH}, s{sH}, s{sT0}
    s_add_u32 s{sH}, s{sH}, {WS_H}
    s_lshr_b32 s{sT0}, s{sNT}, 1
    s_mul_i32 s{sT0}, s{sT0}, 22
    s_and_b32 s{sT1}, s{sNT}, 1
    """)
HRING = [[("v", 40 + 4*s) for s in range(4)], [("v", 56 + 4*s) for s in range(4)], [("v", 72 + 4*s) for s in range(4)],
         [("a", 100), ("a", 104), ("a", 248), ("a", 252)]]
NR = len(HRING)
SPARE = [168, 172] + [acc(i, j) for i in range(1, 6) for j in (2, 3)]
NE = {"mlp": OPT["ne"], "ssm": 0}
vM26, vRw, vF, vFd, vHs, vNP, XO, LO = 24, 27, 28, 30, 32, 36, 38, 39
RES = 4
sPA, sPB_, sFA, sNP = 36, 64, 46, 84
def flag_addr():
    k.e(f"""
    s_lshl_b32 s{sT0}, s{sMT}, 4
    s_lshl_b32 s{sT1}, s{sTYP}, 3
    s_add_u32 s{sT0}, s{sT0}, s{sT1}
    s_lshl_b32 s{sT1}, s{sW}, 1
    s_add_u32 s{sT1}, s{sT0}, s{sT1}
    s_lshl_b32 s{sT1}, s{sT1}, 7
    s_lshl_b32 s{sT3}, s{sTYP}, 5
    s_add_u32 s{sT3}, s{sT3}, {WS_HF}
    s_add_u32 s{sFA}, s{sT1}, s{sT3}
    s_xor_b32 s{sFA+1}, s{sFA}, 32
    s_add_u32 s{sT0}, s{sT0}, s{sNT}
    s_lshl_b32 s{sT0}, s{sT0}, 7
    s_lshl_b32 s{sT1}, s{sW}, 3
    s_add_u32 s{sT0}, s{sT0}, s{sT1}
    s_add_u32 s{sLW}, s{sT0}, s{sT3}
    s_xor_b32 s{sLX}, s{sLW}, 32
    s_mov_b32 s{sNP}, s{sNonce}
    s_mov_b32 s{sNP+1}, s{sNonce}
    v_mov_b32 v{vNP}, s{sNonce}
    v_mov_b32 v{vNP+1}, s{sNonce}
    v_lshlrev_b32 v{vM26}, 26, v{vL}
    """)
    for s in range(4):
        k.e(f"s_xor_b32 s{sT0}, s{sW}, {s}\ns_lshl_b32 s{sT0}, s{sT0}, 10\nv_add_u32 v{vHs+s}, s{sT0}, v{vL16}")
def spoll(h):
    return f"""s_add_u32 s{sT0}, s{sFA+h}, 128
    s_load_dwordx8 s[{sPA}:{sPA+7}], s[{pWs}:{pWs+1}], s{sFA+h} glc
    s_load_dwordx8 s[{sPB_}:{sPB_+7}], s[{pWs}:{pWs+1}], s{sT0} glc"""
def scheck(tag, h):
    k.e(f"s_branch L_sc1_{tag}\nL_sc0_{tag}:\ns_sub_u32 s{sSpin}, s{sSpin}, 1\ns_cbranch_scc1 L_end")
    k.e(spoll(h))
    if OPT.get("cnt") and tag == "hmmlp": k.e("s_add_u32 s101, s101, 1")
    k.e(f"L_sc1_{tag}:\ns_waitcnt lgkmcnt(0)"); k.lg = []
    for b_ in (sPA, sPB_):
        for x in range(4): k.e(f"s_cmp_eq_u64 s[{b_+2*x}:{b_+2*x+1}], s[{sNP}:{sNP+1}]\ns_cbranch_scc0 L_sc0_{tag}")
def put_flag(tag, so):
    k.wait_vm(tag)
    k.vmem(f"buffer_store_dwordx2 {V(vNP,2)}, v{vM26}, s[{rWS}:{rWS+3}], s{so} offen sc1", "fl")
def x_loads(X, t):
    k.e(f"""
    s_lshl_b32 s{sT0}, s{sWR}, 6
    s_add_u32 s{sT0}, s{sT0}, s{sWC}
    s_lshl_b32 s{sT1}, s{sHALF}, 1
    s_add_u32 s{sT0}, s{sT0}, s{sT1}
    s_lshl_b32 s{sT1}, s{sMT}, 7
    s_add_u32 s{sT1}, s{sT1}, s{sT0}
    s_mul_i32 s{sX}, s{sT1}, 1280
    s_mul_i32 s{sT1}, s{sDT}, 160
    s_add_u32 s{sX}, s{sX}, s{sT1}
    s_lshl_b32 s{sT0}, s{sT0}, 4
    v_lshrrev_b32 v{t}, 2, v{vL}
    v_and_b32 v{LO}, 3, v{vL}
    v_lshlrev_b32 v{t+1}, 3, v{LO}
    v_mul_u32_u24 v{XO}, 5120, v{t}
    v_add_u32 v{XO}, v{XO}, v{t+1}
    v_bfe_u32 v{X[0]}, v{t}, 1, 2
    v_xor_b32 v{LO}, v{LO}, v{X[0]}
    v_lshlrev_b32 v{LO}, 4, v{LO}
    v_mad_u32_u24 v{LO}, v{t}, s{sKs}, v{LO}
    v_lshlrev_b32 v{t}, 6, v{t}
    v_add_u32 v{t}, s{sT0}, v{t}
    """.replace("    v_mad", f"    s_movk_i32 s{sKs}, {RROW}\n    v_mad"))
    for g in range(5): k.vmem(f"buffer_load_dwordx2 {V(X[g],2)}, v{XO}, s[{rX}:{rX+3}], s{sX} offen offset:{32*g}", "ep")
def residual(X, t, U):
    ED, EB, TKv = U, U + 10, U + 20
    k.ds(f"ds_read_b64 {V(TKv,2)}, v{t} offset:{L_TOK}", "tk")
    for reg, o_ in ((ED, 0), (EB, 160)):
        for g in range(5): k.ds(f"ds_read_b64 {V(reg+2*g,2)}, v{t+1} offset:{L_DB + o_ + 32*g}", "tk")
    k.wait_vm("ep"); k.wait_lg()
    for g in range(5):
        xf, df, bf_ = U + 22, U + 26, U + 30
        for src, dst in ((X[g], xf), (ED + 2*g, df), (EB + 2*g, bf_)):
            for h in range(2):
                k.e(f"v_lshlrev_b32 v{dst+2*h}, 16, v{src+h}\nv_and_b32 v{dst+2*h+1}, 0xffff0000, v{src+h}")
        A_ = [RES + 4*g, RES + 4*g + 2]
        def rnd():
            for a in A_: k.e(f"v_cvt_pk_bf16_f32 v{a+1}, v{a}, v{a+1}")
            for a in A_: k.e(f"v_lshlrev_b32 v{a}, 16, v{a+1}\nv_and_b32 v{a+1}, 0xffff0000, v{a+1}")
        for h, a in enumerate(A_): k.e(f"v_pk_add_f32 {V(a,2)}, {V(xf+2*h,2)}, {V(TKv,2)} op_sel:[0,0] op_sel_hi:[1,0] neg_lo:[0,1] neg_hi:[0,1]")
        rnd()
        for h, a in enumerate(A_): k.e(f"v_pk_mul_f32 {V(a,2)}, {V(a,2)}, {V(TKv,2)} op_sel:[0,1] op_sel_hi:[1,1]")
        rnd()
        for h, a in enumerate(A_): k.e(f"v_pk_mul_f32 {V(a,2)}, {V(a,2)}, {V(df+2*h,2)}")
        rnd()
        for h, a in enumerate(A_): k.e(f"v_pk_add_f32 {V(a,2)}, {V(a,2)}, {V(xf+2*h,2)}")
        for h, a in enumerate(A_): k.e(f"v_pk_add_f32 {V(a,2)}, {V(a,2)}, {V(bf_+2*h,2)}")
def residual_fill(t):
    ED = [176, 178, 180, 182, 192]; EB = [194, 196, 198, 208, 210]; TKv = 212
    U = [224, 240]
    out = [DSF(f"ds_read_b64 {V(TKv,2)}, v{t} offset:{L_TOK}", "tk")]
    for reg, o_ in ((ED, 0), (EB, 160)):
        out += [DSF(f"ds_read_b64 {V(reg[g],2)}, v{t+1} offset:{L_DB + o_ + 32*g}", "tk") for g in range(5)]
    run(out)
    out = [F(lambda: k.wait_lg("tk"), 1)]
    def chain(p_):
        x0, x1, t0, t1, d0, d1 = [U[p_ & 1] + x for x in range(6)]
        r0, r1 = RES + 2*p_, RES + 2*p_ + 1
        xi, di, bi = RES + 10 + p_, ED[p_ // 2] + (p_ & 1), EB[p_ // 2] + (p_ & 1)
        rnd = f"v_cvt_pk_bf16_f32 v{t1}, v{t0}, v{t1}\nv_lshlrev_b32 v{t0}, 16, v{t1}\nv_and_b32 v{t1}, 0xffff0000, v{t1}\n"
        return [l.strip() for l in f"""
        v_lshlrev_b32 v{x0}, 16, v{xi}
        v_and_b32 v{x1}, 0xffff0000, v{xi}
        v_sub_f32 v{t0}, v{x0}, v{TKv}
        v_sub_f32 v{t1}, v{x1}, v{TKv}
        {rnd}
        v_mul_f32 v{t0}, v{t0}, v{TKv+1}
        v_mul_f32 v{t1}, v{t1}, v{TKv+1}
        {rnd}
        v_lshlrev_b32 v{d0}, 16, v{di}
        v_and_b32 v{d1}, 0xffff0000, v{di}
        v_mul_f32 v{t0}, v{t0}, v{d0}
        v_mul_f32 v{t1}, v{t1}, v{d1}
        {rnd}
        v_lshlrev_b32 v{d0}, 16, v{bi}
        v_and_b32 v{d1}, 0xffff0000, v{bi}
        v_add_f32 v{t0}, v{x0}, v{t0}
        v_add_f32 v{t1}, v{x1}, v{t1}
        v_add_f32 v{r0}, v{t0}, v{d0}
        v_add_f32 v{r1}, v{t1}, v{d1}
        """.split("\n") if l.strip()]
    txt = []
    for p_ in range(0, 10, 2):
        for a_, b_ in zip(chain(p_), chain(p_ + 1)): txt += [a_, b_]
    return out + lines("\n".join(txt))
def hdest(typ, t):
    e_ = NE[typ]
    return [("v", SPARE[4*t + s]) for s in range(4)] if t < e_ else HRING[(t - e_) % NR]
def hload(typ, t):
    ring = hdest(typ, t); n_ = NK[typ]
    return kaddr(sT3, sHa + 2*(t // n_), t % n_, 4096), [[VM(f"buffer_load_dwordx4 {R(ring[s][0], ring[s][1], 4)}, v{vHs+s}, s[{rWS}:{rWS+3}], s{sT3} offen sc1", ("h", t))] for s in range(4)]
def h_issue(typ, ts):
    out = []
    for t in ts:
        a_, b_ = hload(typ, t); out.append(a_ + b_[0]); out += b_[1:]
    return out

def ones():
    k.e(f"v_mov_b32 v{vT+6}, 0x3f803f80")
    for i in range(4): k.e(f"v_accvgpr_write_b32 a{aONE+i}, v{vT+6}")

t = vT
WOFF["mlp"] = f"""
    v_and_b32 v{t+2}, 2, v{t}
    v_xor_b32 v{t+2}, v{t+1}, v{t+2}
    v_mul_u32_u24 v{t+3}, 3072, v{t}
    v_lshl_add_u32 v{vDW}, v{t+2}, 4, v{t+3}
    v_xor_b32 v{vDW+1}, 64, v{vDW}
    s_mul_i32 s{sB0}, s{sW}, {16*3072}
    s_mul_i32 s{sT0}, s{sNT}, 384
    s_add_u32 s{sB0}, s{sB0}, s{sT0}
    s_add_u32 s{sB2}, s{sB0}, {8*3072}
    s_lshl_b32 s{sLW}, s{sW}, 11
    """
def path_mlp():
    typ = "mlp"; t = vT
    late_common(typ)
    k.e(f"""
    v_lshrrev_b32 v{t}, 2, v{vN}
    v_lshl_add_u32 v{t+1}, v{vQ}, 3, v{t}
    v_lshlrev_b32 v{t+1}, 7, v{t+1}
    v_and_b32 v{t+2}, 3, v{vN}
    v_lshl_add_u32 v{t+1}, v{t+2}, 3, v{t+1}
    v_lshrrev_b32 v{t}, 1, v{t}
    v_and_b32 v{t+2}, 1, v{vQ}
    v_lshl_add_u32 v{t}, v{t+2}, 1, v{t}
    s_lshl_b32 s{sT0}, s{sKs}, 12
    s_add_u32 s{sT0}, s{sT0}, {L_W}
    v_add_u32 v{t+1}, s{sT0}, v{t+1}
    s_mul_i32 s{sT2}, s{sWR}, 6
    """)
    for i in range(4):
        k.e(f"""
        s_add_u32 s{sT3}, s{sT2}, {i}
        s_lshr_b32 s{sT0}, s{sT3}, 2
        s_lshl_b32 s{sT0}, s{sT0}, 13
        s_and_b32 s{sT3}, s{sT3}, 3
        v_xor_b32 v{t+2}, s{sT3}, v{t}
        v_lshl_add_u32 v{t+2}, v{t+2}, 5, v{t+1}
        v_add_u32 v{vWA+i}, s{sT0}, v{t+2}
        v_xor_b32 v{vWA+4+i}, 4096, v{vWA+i}
        """)
    Kc = 2 * 0.7978845608028654 * 1.4426950408889634
    k.e(f"s_mov_b32 s{sK}, {hx(-Kc*0.044715)}\ns_mov_b32 s{sK+1}, {hx(-Kc)}")
    ones()
    xr_setup()
    if OPT['rpown'] == typ: repack_setup(typ)
    small_loads(typ)
    touch_setup()
    p2_addr(typ)
    stamp(14)
    jobs, vq = common_jobs(typ)
    k.e(f"s_mul_i32 s{sT0}, s{sWR}, 192\nv_lshlrev_b32 v{t+3}, 3, v{vQ}\nv_add_u32 v{t+3}, s{sT0}, v{t+3}")
    jobs["tail"] += [DSF(f"ds_read_b64 {V(vB1+2*i,2)}, v{t+3} offset:{L_B1 + 32*i}") for i in range(6)]
    left = main_loop(typ, jobs, vq, [])
    TK, CS, P2 = stats(typ)
    stamp()
    if OPT["rf_mlp"] >= 20:
        if OPT["rf_mlp"] == 20: jobs["rfchk"]()
        left = [op for tk in range(7) for op in wload(tk)]
    pend = [(6 - (len(left) - 1 - x) // 5, op) for x, op in enumerate(left)] + [(tk, op) for tk in range(7, NK[typ]) for op in wload(tk)]
    if 5 in OPT.get("x", ()):
        pend = []; k.seen.update(("w", x) for x in range(12))
    ne = OPT.get("ne_mlp", 0)
    fd = Feeder([op for _, op in pend[:ne]], 29 * 12 // max(1, ne))
    pend = pend[ne:]
    h_base()
    k.e(f"""
    s_mul_i32 s{sT1}, s{sT1}, 6
    s_add_u32 s{sT0}, s{sT0}, s{sT1}
    s_mul_i32 s{sT1}, s{sWR}, 3
    s_add_u32 s{sT0}, s{sT0}, s{sT1}
    s_lshl_b32 s{sT0}, s{sT0}, 12
    s_add_u32 s{sH}, s{sH}, s{sT0}
    """)
    stats_sum(typ, CS, P2)
    B = 100
    for i in range(6):
        for h in range(2):
            k.e(f"v_lshlrev_b32 v{B+4*i+2*h}, 16, v{vB1+2*i+h}\nv_and_b32 v{B+4*i+2*h+1}, 0xffff0000, v{vB1+2*i+h}")
    TM = 124
    OUT = [88, 92]
    XT = 96
    if OPT["rf_mlp"] > 20: k.e(f"v_mov_b32 v{vT+6}, v{RFV}")
    flag_addr()
    x_loads([RES + 10 + 2*g for g in range(5)], XT)
    k.e(f"s_add_u32 s{sB0}, s{sH}, {HB}")
    n_ = 0
    for hf, u, j in [(hf, u, 2*hf + jj) for hf in (1, 0) for u in range(3) for jj in range(2)]:
        if True:
            o = OUT[n_ & 1]; n_ += 1
            if n_ == 2 and "rpflag" in jobs: jobs["rpflag"]()
            if n_ == OPT["rfg"] and OPT["rf_mlp"] > 20: k.vmem(f"buffer_load_dwordx2 {V(vT+4,2)}, v{vT+6}, s[{rWS}:{rWS+3}], 0 offen sc1", "rfv")
            if n_ == OPT["fa"]: put_flag(("hs", 1), sLW)
            if n_ == OPT.get('sp', 12): k.e(spoll(0))
            if NE[typ] and n_ == OPT["ec"]:
                fd.flush()
                scheck("hm" + typ, 0)
                fd = Feeder(h_issue(typ, range(NE[typ])), 35 * (13 - n_) // (4 * NE[typ] + 2))
            k.raw(".p2align 3")
            prs = [(2*u + ii, h) for ii in range(2) for h in range(2)]
            Z = [acc(i, j) + 2*h for i, h in prs]
            T1 = [TM + 2*x for x in range(4)]; T2 = [TM + 8 + 2*x for x in range(4)]
            for x, (i, h) in enumerate(prs):
                k.e(f"v_pk_fma_f32 {V(T1[x],2)}, {V(CS+4*i+2*h,2)}, {V(TK+4*j+2,2)}, {V(B+4*i+2*h,2)} op_sel:[0,1,0] op_sel_hi:[1,1,1] neg_lo:[0,1,0] neg_hi:[0,1,0]")
            for x in range(4):
                k.e(f"v_pk_fma_f32 {V(Z[x],2)}, {V(Z[x],2)}, {V(TK+4*j+2,2)}, {V(T1[x],2)} op_sel:[0,0,0] op_sel_hi:[1,0,1]")
            fd.tick(12)
            for x in range(4): k.e(f"v_pk_mul_f32 {V(T1[x],2)}, {V(Z[x],2)}, {V(Z[x],2)}")
            for x in range(4): k.e(f"v_pk_fma_f32 {V(T1[x],2)}, {V(T1[x],2)}, s[{sK}:{sK+1}], s[{sK}:{sK+1}] op_sel:[0,0,1] op_sel_hi:[1,0,1]")
            for x in range(4): k.e(f"v_pk_mul_f32 {V(T1[x],2)}, {V(T1[x],2)}, {V(Z[x],2)}")
            for x in range(4): k.e(f"v_exp_f32 v{T2[x]}, v{T1[x]}\nv_exp_f32 v{T2[x]+1}, v{T1[x]+1}")
            fd.tick(12)
            for x in range(4): k.e(f"v_pk_add_f32 {V(T2[x],2)}, {V(T2[x],2)}, 1.0 op_sel_hi:[1,0]")
            for x in range(4): k.e(f"v_rcp_f32 v{T2[x]}, v{T2[x]}\nv_rcp_f32 v{T2[x]+1}, v{T2[x]+1}")
            if n_ < 12: fd.tick(12)
            for x in range(4): k.e(f"v_pk_mul_f32 {V(Z[x],2)}, {V(Z[x],2)}, {V(T2[x],2)}")
            for x in range(4): k.e(f"v_cvt_pk_bf16_f32 v{o+x}, v{Z[x]}, v{Z[x]+1}")
            if n_ == 12: fd.flush()
            so = sB0 if hf else sH
            k.vmem(f"buffer_store_dwordx4 {V(o,4)}, v{vL16}, s[{rWS}:{rWS+3}], s{so} offen offset:{(j & 1)*1024} sc1", ("hs", hf))
            if j & 1 and u < 2: k.e(f"s_add_u32 s{so}, s{so}, 4096")
    stamp()
    if NE[typ]:
        res = residual_fill(XT)
        run(h_issue(typ, range(NE[typ], NE[typ] + OPT["hpre"])))
        stamp(8)
        phase2(typ, pend, h_issue(typ, range(NE[typ] + OPT["hpre"], NE[typ] + NR)), res, ("hs", 0), OPT["tb"])
        return
    if OPT["rf_mlp"] > 20:
        k.wait_vm("rfv"); check("rf_mlp", vT + 6, vT + 4)
    run([op for _, op in pend[:OPT["wfirst"]]]); pend = pend[OPT["wfirst"]:]
    if OPT.get("cnt"): k.e("s_mov_b32 s101, 0")
    scheck("hm" + typ, 0)
    if OPT.get("cnt"): k.e(f"s_nop 0\nv_writelane_b32 v{vST}, s101, 59")
    stamp(7)
    assert OPT["hw"] == NR
    run(h_issue(typ, range(OPT["hw"])))
    res = residual_fill(XT)
    run([op for _, op in pend[:OPT["post0"]]]); pend = pend[OPT["post0"]:]
    stamp(8)
    phase2(typ, pend, h_issue(typ, range(OPT["hw"], NR)), res, ("hs", 0), 0)

def cmul_acc(d, a, b, c):
    k.e(f"v_pk_fma_f32 {V(d,2)}, {V(a,2)}, {V(b,2)}, {V(c,2)} op_sel:[0,0,0] op_sel_hi:[1,0,1]")
    k.e(f"v_pk_fma_f32 {V(d,2)}, {V(a,2)}, {V(b,2)}, {V(d,2)} op_sel:[1,1,0] op_sel_hi:[0,1,1] neg_lo:[0,1,0]")

PR = 100
def masked(m, ins):
    def f():
        k.e(f"s_mov_b32 exec_lo, {m}\ns_mov_b32 exec_hi, {m}"); k.ds(ins); k.e("s_mov_b64 exec, -1")
    return F(f, 4, ds=True)
def power(KK, al, be, t):
    x, y, c_, s_ = t+10, t+11, t+12, t+13
    return lines(f"""
    v_mul_f32 v{y}, v{KK}, v{be}
    v_mul_f32 v{x}, v{KK}, v{al}
    v_fract_f32 v{y}, v{y}
    v_cos_f32 v{c_}, v{y}
    v_sin_f32 v{s_}, v{y}
    v_exp_f32 v{x}, v{x}
    s_nop 0
    v_mul_f32 v{t+14}, v{x}, v{c_}
    v_mul_f32 v{t+15}, v{x}, v{s_}
    """)
def table_a():
    t = 80; CH_ = vB1 + 10
    lr, li, dt, al, be, KK, AD = PR, PR+1, PR+2, t+8, t+9, t, t+1
    x, y, c_, s_ = t+10, t+11, t+12, t+13
    LOG2E = 1.4426950408889634
    fl = lines(f"""
    v_lshlrev_b32 v{dt}, 16, v{dt}
    v_lshlrev_b32 v{lr}, 16, v{lr}
    v_mul_f32 v{dt}, {hx(LOG2E)}, v{dt}
    v_exp_f32 v{dt}, v{dt}
    v_lshlrev_b32 v{li}, 16, v{li}
    {bfr(dt, dt)}
    v_mul_f32 v{al}, v{dt}, v{lr}
    v_mul_f32 v{be}, v{dt}, v{li}
    v_mul_f32 v{al}, {hx(LOG2E)}, v{al}
    v_mul_f32 v{be}, 0.15915494, v{be}
    v_lshlrev_b32 v{KK}, 6, v{CH_+1}
    v_max_u32 v{KK}, 1, v{KK}
    v_cvt_f32_u32 v{KK}, v{KK}
    v_lshlrev_b32 v{AD}, 3, v{CH_}
    """)
    fl.append(DSF(f"ds_write_b64 v{AD}, {V(al,2)} offset:{L_EX}"))
    fl.append(note(mk, 'ab'))
    fl += power(KK, al, be, t)
    fl += lines(f"""
    v_lshlrev_b32 v{AD}, 3, v{CH_+1}
    v_min_u32 v{x}, 1, v{CH_+1}
    v_mad_u32_u24 v{AD}, v{x}, 40, v{AD}
    v_lshl_add_u32 v{AD}, v{CH_}, 6, v{AD}
    """)
    fl.append(DSF(f"ds_write_b64 v{AD}, {V(t+14,2)} offset:{L_CH}"))
    fl += lines(f"""
    v_mul_f32 v{y}, v{lr}, v{lr}
    v_add_f32 v{x}, -1.0, v{t+14}
    v_fma_f32 v{y}, v{li}, v{li}, v{y}
    v_rcp_f32 v{y}, v{y}
    v_mul_f32 v{c_}, v{x}, v{lr}
    v_fma_f32 v{c_}, v{t+15}, v{li}, v{c_}
    v_mul_f32 v{s_}, v{t+15}, v{lr}
    v_fma_f32 v{s_}, -v{x}, v{li}, v{s_}
    v_add_f32 v{y}, v{y}, v{y}
    v_mul_f32 v{t+16}, v{c_}, v{y}
    v_mul_f32 v{t+17}, v{s_}, v{y}
    """)
    fl += lines(f"v_min_u32 v{x}, 1, v{CH_+1}\nv_mul_u32_u24 v{x}, 0x30000, v{x}\nv_add_u32 v{AD}, v{AD}, v{x}")
    fl.append(DSF(f"ds_write_b64 v{AD}, {V(t+16,2)} offset:{L_CH + 8}"))
    return fl
def table_rd():
    t = 80
    return [DSF(f"ds_read_b64 {V(PR+4+2*u,2)}, v{t+3} offset:{L_EX + u*128}") for u in range(5)]
def table_b():
    t = 80
    K1, APW, R1 = t+7, t+4, t+5
    k.e(f"""
    v_lshrrev_b32 v{t+2}, 4, v0
    v_lshlrev_b32 v{t+3}, 3, v{t+2}
    v_lshlrev_b32 v{K1}, 2, v{vN}
    v_cvt_f32_u32 v{K1}, v{K1}
    v_lshlrev_b32 v{APW}, 7, v{t+2}
    v_lshl_add_u32 v{APW}, v{vN}, 3, v{APW}
    v_ffbl_b32 v{R1}, v{vN}
    v_lshlrev_b32 v{R1}, 3, v{R1}
    v_lshl_add_u32 v{R1}, v{t+2}, 6, v{R1}
    v_bcnt_u32_b32 v{t+6}, v{vN}, -1
    v_min_u32 v{t+6}, 1, v{t+6}
    v_mul_u32_u24 v{t+6}, 0x30000, v{t+6}
    v_add_u32 v{R1}, v{R1}, v{t+6}
    """)
    fl = []
    for u in range(5):
        fl += power(K1, PR+4+2*u, PR+5+2*u, t)
        fl.append(DSF(f"ds_write_b64 v{APW}, {V(t+14,2)} offset:{L_PW + u*2048}"))
        fl.append(DSF(f"ds_write_b64 v{R1}, {V(t+14,2)} offset:{L_CH + 16 + u*1024}"))
    return fl

WOFF["ssm"] = f"""
    v_and_b32 v{t+2}, 6, v{t}
    v_or_b32 v{t+3}, s{sWC}, v{t+2}
    v_xor_b32 v{t+1}, v{t+1}, v{t+3}
    v_lshlrev_b32 v{t+1}, 4, v{t+1}
    v_and_b32 v{t+3}, 1, v{t}
    v_lshl_add_u32 v{t+2}, v{t+2}, 2, v{t+3}
    v_mul_u32_u24 v{t+2}, 1280, v{t+2}
    v_add_u32 v{vDW}, v{t+2}, v{t+1}
    v_add_u32 v{t+2}, 32, v{t}
    v_mul_u32_u24 v{t+2}, 1280, v{t+2}
    v_add_u32 v{vDW+1}, v{t+2}, v{t+1}
    s_mul_i32 s{sT0}, s{sNT}, 80
    s_mul_i32 s{sT1}, s{sWR}, 40
    s_add_u32 s{sT0}, s{sT0}, s{sT1}
    s_mul_i32 s{sB0}, s{sT0}, 1280
    s_add_u32 s{sB2}, s{sB0}, 5120
    s_mul_i32 s{sLW}, s{sWR}, 10240
    s_lshl_b32 s{sT0}, s{sWC}, 10
    s_add_u32 s{sLW}, s{sLW}, s{sT0}
    """
def path_ssm():
    typ = "ssm"; t = vT
    late_common(typ)
    k.e(f"""
    v_and_b32 v{t+1}, 1, v{vN}
    v_lshrrev_b32 v{t+2}, 2, v{vN}
    v_lshl_add_u32 v{t+2}, v{t+2}, 1, v{t+1}
    v_xor_b32 v{t}, v{t+4}, v{t+2}
    v_lshlrev_b32 v{t}, 4, v{t}
    v_lshl_add_u32 v{t}, v{t+1}, 10, v{t}
    v_lshrrev_b32 v{t+2}, 1, v{vN}
    v_lshl_add_u32 v{t}, v{t+2}, 7, v{t}
    s_mul_i32 s{sT0}, s{sWR}, 10240
    s_add_u32 s{sT0}, s{sT0}, {L_W}
    v_add_u32 v{vWA}, s{sT0}, v{t}
    v_xor_b32 v{vWA+1}, 64, v{vWA}
    """)
    ones()
    xr_setup()
    k.e(f"""
    v_mul_u32_u24 v{vB1+11}, 820, v0
    v_lshrrev_b32 v{vB1+11}, 16, v{vB1+11}
    v_min_u32 v{vB1+11}, 2, v{vB1+11}
    v_mul_u32_u24 v{t+1}, 80, v{vB1+11}
    v_sub_u32 v{vB1+10}, v0, v{t+1}
    v_min_u32 v{vB1+10}, 79, v{vB1+10}
    s_mul_i32 s{sT0}, s{sNT}, 160
    v_lshlrev_b32 v{t+1}, 1, v{vB1+10}
    s_mov_b32 s{rT+2}, 1280
    s_mov_b32 s{rT+3}, 0x20000
    """)
    for pi, ptr in enumerate((pLre, pLim, pLdt)):
        k.e(f"s_mov_b32 s{rT}, s{ptr}\ns_mov_b32 s{rT+1}, s{ptr+1}")
        k.vmem(f"buffer_load_ushort v{PR+pi}, v{t+1}, s[{rT}:{rT+3}], s{sT0} offen", "par")
    if OPT['rpown'] == typ: repack_setup(typ)
    small_loads(typ)
    c_setup()
    p2_addr(typ)
    stamp(14)
    jobs, vq = common_jobs(typ)
    jobs[("wait", 0)] = ["par"]
    tj = table_a() + [gate(lambda: curblk[0] % 2 == 1 and curblk[0] > mk['ab'])] + table_rd() + [note(mk, 'rd'), gate(lambda: curblk[0] > mk['rd'])] + table_b()
    vC0, vC1, vP0, vP1, vE0, vE1, vGc, vGr, vPub = vB1, vB1+1, vB1+2, vB1+3, vB1+4, vB1+5, vB1+6, vB1+7, vB1+8
    CH_, WH_ = vB1 + 10, vB1 + 11
    vG = 114
    sVal = [28, 30, 36, 38, 40]
    u_ = 96
    ad = lines(f"""
    s_mul_i32 s{sT0}, s{sWR}, 40
    v_lshlrev_b32 v{u_}, 3, v{vQ}
    v_add_u32 v{u_}, s{sT0}, v{u_}
    v_lshlrev_b32 v{u_+1}, 1, v{vQ}
    v_add_u32 v{u_+1}, s{sT0}, v{u_+1}
    v_add_u32 v{u_+1}, 32, v{u_+1}
    v_lshlrev_b32 v{vC0}, 6, v{u_}
    v_lshlrev_b32 v{vC1}, 6, v{u_+1}
    v_lshlrev_b32 v{u_+2}, 3, v{vN}
    v_lshl_add_u32 v{vP0}, v{u_}, 7, v{u_+2}
    v_lshl_add_u32 v{vP1}, v{u_+1}, 7, v{u_+2}
    s_mul_i32 s{sT0}, s{sWC}, 640
    v_lshlrev_b32 v{vE0}, 3, v{u_}
    v_lshlrev_b32 v{vE1}, 3, v{u_+1}
    v_add_u32 v{vE0}, s{sT0}, v{vE0}
    v_add_u32 v{vE1}, s{sT0}, v{vE1}
    v_sub_u32 v{u_+2}, 15, v{vN}
    v_min_u32 v{u_+2}, 1, v{u_+2}
    v_mul_u32_u24 v{u_+2}, 0x30000, v{u_+2}
    v_add_u32 v{vB1+9}, v{u_+2}, v{vE0}
    v_add_u32 v119, v{u_+2}, v{vE1}
    v_lshlrev_b32 v{vGc}, 3, v{CH_}
    v_lshlrev_b32 v{vGr}, 6, v{CH_}
    v_lshlrev_b32 v{u_}, 4, v{CH_}
    v_lshl_add_u32 v{vPub}, v{WH_}, 26, v{u_}
    v_mul_u32_u24 v{u_+2}, 5, v{WH_}
    v_sub_u32 v{u_+2}, s{sMT}, v{u_+2}
    """)
    for i in range(5):
        ad += lines(f"""
        v_add_u32 v{u_+2}, -1, v{u_+2}
        v_mul_i32_i24 v{vG+i}, 1280, v{u_+2}
        v_cmp_le_i32 s[{sVal[i]}:{sVal[i]+1}], 0, v{u_+2}
        v_add_u32 v{vG+i}, v{vG+i}, v{u_}
        v_min_u32 v{vG+i}, {OOB}, v{vG+i}
        """)
    for f in ad: f()
    stamp(61)
    tj = tj + lines(f"""
    s_mul_i32 s{sHw}, s{sNT}, {16*1280}
    s_add_u32 s{sHw}, s{sHw}, {WS_E}
    s_mul_i32 s{sH}, s{sMT}, 1280
    s_add_u32 s{sH}, s{sH}, s{sHw}
    """)
    if OPT.get('lv', 9) < 2: tj = []
    left = main_loop(typ, jobs, vq, tj)
    vG2 = 8
    for i in range(6): k.e(f"v_mov_b32 v{vG2+i}, v{vG+i}")
    TK, CS, P2 = stats(typ)
    stamp()
    fd = Feeder(left, 200 // max(1, len(left)))
    wd = [op for i in range(5) for op in c_dma(i, rT2, "cim")]; e1 = 0; ew = 25
    if 4 in OPT.get("x", ()): wd = wd[:1]; ew = 1
    slots = [(i, h) for i in range(5) for h in range(2)]
    def rec(i, h): return (vC0, L_CH + (2*i + h)*64) if i < 4 else (vC1, L_CH + h*64)
    LC = 100
    stats_sum(typ, CS, P2)
    for x, (i, h) in enumerate(slots):
        a_, o_ = rec(i, h); k.ds(f"ds_read_b128 {V(LC+4*x,4)}, v{a_} offset:{o_}", ("lc", x))
    k.raw(".p2align 3")
    for x, (i, h) in enumerate(slots):
        fd.tick(8)
        for j in range(4):
            z = acc(i, j) + 2*h
            k.e(f"v_pk_fma_f32 {V(z,2)}, {V(CS+4*i+2*h,2)}, {V(TK+4*j,2)}, {V(z,2)} op_sel:[0,0,0] op_sel_hi:[1,0,1] neg_lo:[0,1,0] neg_hi:[0,1,0]")
        for j in range(4):
            z = acc(i, j) + 2*h
            k.e(f"v_pk_mul_f32 {V(z,2)}, {V(z,2)}, {V(TK+4*j,2)} op_sel:[0,1] op_sel_hi:[1,1]")
    EE = 140; TMP = 88
    MU = [t, t + 20]
    def load_mu(st):
        for x, (i, h) in enumerate(slots):
            a_, o_ = rec(i, h); k.ds(f"ds_read_b64 {V(MU[st & 1]+2*x,2)}, v{a_} offset:{o_ + 16 + 8*st}", ("mu", st))
    k.wait_lg()
    load_mu(0); load_mu(1)
    def ereg(x): return EE + 2*x
    def treg(x): return (240 + 2*x) if x < 8 else (TMP + 2*(x - 8))
    k.raw(".p2align 3")
    for x, (i, h) in enumerate(slots): cmul_acc(ereg(x), acc(i,0)+2*h, LC+4*x, acc(i,1)+2*h)
    fd.tick(20)
    for x, (i, h) in enumerate(slots): cmul_acc(treg(x), ereg(x), LC+4*x, acc(i,2)+2*h)
    fd.tick(20)
    for x, (i, h) in enumerate(slots): cmul_acc(ereg(x), treg(x), LC+4*x, acc(i,3)+2*h)
    PWv = t
    for st, sh in enumerate((1, 2, 4, 8)):
        fd.tick(20)
        k.raw(".p2align 3")
        for x in range(10):
            k.e(f"v_mov_b32_dpp v{treg(x)}, v{ereg(x)} row_shr:{sh} row_mask:0xf bank_mask:0xf bound_ctrl:0")
            k.e(f"v_mov_b32_dpp v{treg(x)+1}, v{ereg(x)+1} row_shr:{sh} row_mask:0xf bank_mask:0xf bound_ctrl:0")
        fd.tick(20)
        k.wait_lg(("mu", st))
        k.raw(".p2align 3")
        for x in range(10): cmul_acc(ereg(x), treg(x), MU[st & 1]+2*x, ereg(x))
        if st < 2: load_mu(st + 2)
        if st == 2:
            for x, (i, h) in enumerate(slots):
                k.ds(f"ds_read_b64 {V(PWv+2*x,2)}, v{vP0 if i < 4 else vP1} offset:{L_PW + ((2*i+h)*128 if i < 4 else h*128)}", "pw")
    for i in range(5):
        k.ds(f"ds_write_b128 v{vB1+9 if i < 4 else 13}, {V(EE+4*i,4)} offset:{L_EX + (16*i if i < 4 else 0)}")
    ch = t + 20
    E0, E1, LL, ET, GA = ch, ch+2, ch+4, ch+8, 14
    GA = [ch+8, ch+12, ch+16, ch+20, ch+24]
    k.ds(f"ds_read_b128 {V(LL,4)}, v{vGr} offset:{L_CH+48}", "e")
    k.e(f"v_mov_b32 v{ET+1}, s{sNonce}\nv_mov_b32 v{ET+3}, s{sNonce}")
    fd.flush()
    k.wait_lg()
    k.e("s_barrier")
    k.ds(f"ds_read_b64 {V(E0,2)}, v{vGc} offset:{L_EX}", "e")
    k.ds(f"ds_read_b64 {V(E1,2)}, v{vGc} offset:{L_EX+640}", "e")
    k.wait_lg()
    cmul_acc(E1, E0, LL, E1)
    k.e(f"v_mov_b32 v{ET}, v{E1}\nv_mov_b32 v{ET+2}, v{E1+1}")
    k.vmem(f"buffer_store_dwordx4 {V(ET,4)}, v{vPub}, s[{rWS}:{rWS+3}], s{sH} offen sc1", "e")
    stamp()
    def gather(track):
        for i in range(5):
            tx = f"buffer_load_dwordx4 {V(GA[i],4)}, v{vG2+i}, s[{rWS}:{rWS+3}], s{sHw} offen sc1"
            k.vmem(tx, "ga") if track else k.e(tx)
    k.e("s_nop 1")
    k.wait_vm("cre")
    if OPT["gpos"] == 0: gather(True)
    c_read(0, [4, 5, 6, 7, 92, 93])
    fd = Feeder(wd[e1:e1 + ew], 1)
    per = ew / (13.0 - OPT['wskip2'])
    done = [0.0]
    cnt = [0]
    def tk_():
        cnt[0] += 1
        if cnt[0] == OPT["gpos"]: gather(True)
        if cnt[0] <= OPT["wskip2"]: return
        if cnt[0] == OPT["wskip2"] + 1: k.wait_lg()
        done[0] += per; n_ = int(done[0]); done[0] -= n_; fd.tick(n_); k.raw(".p2align 3")
    WT, W2 = 14, 16
    for x in range(10):
        k.e(f"v_mov_b32_dpp v{treg(x)}, v{ereg(x)} row_shr:1 row_mask:0xf bank_mask:0xf bound_ctrl:0")
        k.e(f"v_mov_b32_dpp v{treg(x)+1}, v{ereg(x)+1} row_shr:1 row_mask:0xf bank_mask:0xf bound_ctrl:0")
    def cmul(d, a, b, tmp):
        k.e(f"v_pk_mul_f32 {V(tmp,2)}, {V(a,2)}, {V(b,2)} op_sel:[0,0] op_sel_hi:[1,0]")
        k.e(f"v_pk_fma_f32 {V(d,2)}, {V(a,2)}, {V(b,2)}, {V(tmp,2)} op_sel:[1,1,0] op_sel_hi:[0,1,1] neg_lo:[0,1,0]")
    tk_()
    for x in range(10): cmul(treg(x), treg(x), LC+4*x+2, ereg(x))
    tk_()
    for x in range(10): cmul(PWv+2*x, PWv+2*x, LC+4*x+2, ereg(x))
    for x, (i, h) in enumerate(slots):
        tk_()
        for j in range(4): cmul(acc(i,j)+2*h, acc(i,j)+2*h, LC+4*x+2, EE+2*j)
    tk_()
    cmul(WT, LL+2, LL+2, W2); cmul(WT, WT, WT, W2); cmul(WT, WT, LL+2, W2); cmul(W2+2, WT, WT, W2)
    k.e(f"""
    v_cmp_eq_u32 vcc, 2, v{WH_}
    v_mov_b32 v{W2}, 1.0
    v_mov_b32 v{W2+1}, 0
    v_cndmask_b32 v{WT}, v{WT}, v{W2+2}, vcc
    v_cndmask_b32 v{WT+1}, v{WT+1}, v{W2+3}, vcc
    v_cmp_eq_u32 vcc, 0, v{WH_}
    v_mul_u32_u24 v{W2+2}, 640, v{WH_}
    v_add_u32 v{vGc}, v{vGc}, v{W2+2}
    v_cndmask_b32 v{WT}, v{WT}, v{W2}, vcc
    v_cndmask_b32 v{WT+1}, v{WT+1}, v{W2+1}, vcc
    v_cndmask_b32 v{E0}, v{W2+1}, v{E0}, vcc
    v_cndmask_b32 v{E0+1}, v{W2+1}, v{E0+1}, vcc
    s_mul_i32 s{sT0}, s{sWC}, 1280
    v_add_u32 v{vE0}, s{sT0}, v{vE0}
    v_add_u32 v{vE1}, s{sT0}, v{vE1}
    """)
    fd.flush()
    h_base()
    k.e(f"""
    s_mul_i32 s{sT1}, s{sT1}, 5
    s_add_u32 s{sT0}, s{sT0}, s{sT1}
    s_add_u32 s{sT0}, s{sT0}, 12
    s_lshl_b32 s{sT0}, s{sT0}, 12
    s_add_u32 s{sH}, s{sH}, s{sT0}
    s_add_u32 s{sB2}, s{sH}, {4*4096}
    s_lshl_b32 s{sT0}, s{sWR}, 9
    s_add_u32 s{sB2}, s{sB2}, s{sT0}
    v_lshrrev_b32 v27, 1, v{vQ}
    v_lshlrev_b32 v27, 10, v27
    v_and_b32 v98, 31, v{vL}
    v_lshl_add_u32 v27, v98, 4, v27
    s_lshl_b32 s{sT0}, s{sWR}, 13
    s_add_u32 s{sH}, s{sH}, s{sT0}
    s_add_u32 s{sB0}, s{sH}, 4096
    """)
    stamp(60)
    k.wait_vm("ga")
    k.label("L_carry_chk")
    k.e(f"s_mov_b64 s[{sEx}:{sEx+1}], 0")
    for i in range(5):
        k.e(f"""
        v_cmp_ne_u32 vcc, s{sNonce}, v{GA[i]+1}
        v_cmp_ne_u32 s[{sT0}:{sT1}], s{sNonce}, v{GA[i]+3}
        s_or_b64 vcc, vcc, s[{sT0}:{sT1}]
        s_and_b64 vcc, vcc, s[{sVal[i]}:{sVal[i]+1}]
        s_or_b64 s[{sEx}:{sEx+1}], s[{sEx}:{sEx+1}], vcc
        """)
    k.e(f"""
    s_cmp_eq_u64 s[{sEx}:{sEx+1}], 0
    s_cbranch_scc1 L_carry_done
    s_sub_u32 s{sSpin}, s{sSpin}, 1
    s_cbranch_scc1 L_end
    """)
    gather(False)
    k.e("s_waitcnt vmcnt(0)\ns_branch L_carry_chk")
    k.label("L_carry_done")
    stamp()
    for i in range(5): k.e(f"v_mov_b32 v{GA[i]+1}, v{GA[i]+2}")
    for i in (3, 2, 1, 0): cmul_acc(GA[i], GA[i+1], LL+2, GA[i])
    cmul(GA[0], GA[0], WT, W2)
    cmul_acc(E0, GA[0], LL, E0)
    k.ds(f"ds_write_b64 v{vGc}, {V(GA[0],2)} offset:{L_PW}")
    k.ds(f"ds_write_b64 v{vGc}, {V(E0,2)} offset:{L_PW + 1920}")
    k.wait_lg()
    k.e("s_barrier")
    XS_ = [80, 82, 84, 86, 92]; XT = 94
    x_loads(XS_, XT)
    PB = [EE, ch, 4]
    for i in range(5):
        for g in range(3):
            k.ds(f"ds_read_b128 {V(PB[g]+4*i,4)}, v{vE0 if i < 4 else vE1} offset:{L_PW + 640*g + (16*i if i < 4 else 0)}", ("pb", i))
    k.raw(".p2align 3")
    for x in range(10):
        if x % 2 == 0: k.wait_lg(("pb", x // 2)); k.raw(".p2align 3")
        k.e(f"v_pk_add_f32 {V(ereg(x),2)}, {V(ereg(x),2)}, {V(PB[1]+2*x,2)}")
        k.e(f"v_pk_add_f32 {V(ereg(x),2)}, {V(ereg(x),2)}, {V(PB[2]+2*x,2)}")
        cmul_acc(treg(x), ereg(x), PWv+2*x, treg(x))
    held = []
    for hf in range(2):
        OA = [(60, 64), (68, 72)] if hf == 0 else [(40, 44), (48, 52)]
        OE = 76 if hf == 0 else 56
        for jj in range(2):
            j = 2*hf + jj
            k.raw(".p2align 3")
            for x, (i, h) in enumerate(slots):
                prev = treg(x) if j == 0 else acc(i, j-1) + 2*h
                cmul_acc(acc(i,j)+2*h, prev, LC+4*x, acc(i,j)+2*h)
            oa, ob = OA[jj]
            for i in range(4): k.e(f"v_cvt_pk_bf16_f32 v{oa+i}, v{acc(i,j)}, v{acc(i,j)+2}")
            for i in range(4): k.e(f"v_cvt_pk_bf16_f32 v{ob+i}, -v{acc(i,j)+1}, -v{acc(i,j)+3}")
            k.e(f"v_cvt_pk_bf16_f32 v{OE+2*jj}, v{acc(4,j)}, v{acc(4,j)+2}")
            k.e(f"v_cvt_pk_bf16_f32 v{OE+2*jj+1}, -v{acc(4,j)+1}, -v{acc(4,j)+3}")
            k.vmem(f"buffer_store_dwordx4 {V(oa,4)}, v{vL16}, s[{rWS}:{rWS+3}], s{sH} offen offset:{jj*1024} sc1", ("hs", hf))
            k.vmem(f"buffer_store_dwordx4 {V(ob,4)}, v{vL16}, s[{rWS}:{rWS+3}], s{sB0} offen offset:{jj*1024} sc1", ("hs", hf))
        k.e(f"""
        s_nop 1
        v_permlane32_swap_b32 v{OE}, v{OE+2}
        v_permlane32_swap_b32 v{OE+1}, v{OE+3}
        s_nop 1
        v_permlane16_swap_b32 v{OE}, v{OE+1}
        v_permlane16_swap_b32 v{OE+2}, v{OE+3}
        """)
        k.vmem(f"buffer_store_dwordx4 {V(OE,4)}, v27, s[{rWS}:{rWS+3}], s{sB2} offen sc1", ("hs", hf))
        if hf == 0: k.e(f"s_add_u32 s{sH}, s{sH}, {HB}\ns_add_u32 s{sB0}, s{sB0}, {HB}\ns_add_u32 s{sB2}, s{sB2}, {HB}")
    stamp()
    flag_addr()
    if MV:
        u_ = 156
        k.e(f"""
        v_min_u32 v{u_}, {3 + 4*MV}, v{vL}
        s_add_u32 s{sT0}, s{sFA}, {9*128 + 16}
        v_and_b32 v{u_+1}, 1, v{u_}
        v_lshlrev_b32 v{u_+1}, 3, v{u_+1}
        v_and_b32 v{u_+2}, 2, v{u_}
        v_lshl_add_u32 v{u_+1}, v{u_+2}, 4, v{u_+1}
        v_add_u32 v{vF}, s{sT0}, v{u_+1}
        s_mul_i32 s{sT0}, s{sW}, 24
        s_lshr_b32 s{sT1}, s{sDT}, 2
        s_add_u32 s{sT0}, s{sT0}, s{sT1}
        s_lshl_b32 s{sT0}, s{sT0}, 7
        s_add_u32 s{sT0}, s{sT0}, {WS_RF + 16384 + (12 - MV - 1)*256}
        v_lshrrev_b32 v{u_+1}, 2, v{u_}
        v_lshlrev_b32 v{u_+1}, 8, v{u_+1}
        v_and_b32 v{u_+2}, 3, v{u_}
        v_cmp_gt_u32 vcc, 4, v{u_}
        v_lshl_add_u32 v{u_+1}, v{u_+2}, 4, v{u_+1}
        v_add_u32 v{u_+1}, s{sT0}, v{u_+1}
        v_cndmask_b32 v{vF}, v{u_+1}, v{vF}, vcc
        """)
    k.wait_vm("cim")
    c_read(1, [150, 151, 152, 153, 154, 155])
    k.seen.update(("w", x) for x in range(10))
    put_flag(("hs", 0), sLW)
    residual(XS_, XT, 100)
    stamp(7)
    k.e(spoll(0))
    k.e("s_barrier")
    if OPT["resfirst"]: put_flag(("hs", 1), sLX)
    scheck("hm" + typ, 0)
    stamp(8)
    run(h_issue(typ, range(NR)))
    if not OPT["resfirst"]: put_flag(("hs", 1), sLX)
    phase2(typ, [(tk, op) for tk in range(10, NK[typ]) for op in wload(tk)], [], [], None, -1)

def poll(tag, vaddr, vd):
    k.e(f"""
    L_poll_{tag}:
    buffer_load_dwordx2 {V(vd,2)}, v{vaddr}, s[{rWS}:{rWS+3}], 0 offen sc1
    s_waitcnt vmcnt(0)
    v_cmp_ne_u32 vcc, s{sNonce}, v{vd}
    v_cmp_ne_u32 s[{sT0}:{sT1}], s{sNonce}, v{vd+1}
    s_or_b64 vcc, vcc, s[{sT0}:{sT1}]
    s_cmp_eq_u64 vcc, 0
    s_cbranch_scc1 L_pollok_{tag}
    s_sub_u32 s{sSpin}, s{sSpin}, 1
    s_cbranch_scc1 L_end
    s_sleep 1
    s_branch L_poll_{tag}
    L_pollok_{tag}:
    """)
    k.vm = []

def acc2(p_, i, s): return 96 + 80*p_ + (i*4 + s)*4
def phase2(typ, pend, hrest, res, tagB, tB):
    stamp_n[0] = 10
    n_ = NK[typ]; T = 2*n_
    AD = [88, 89, 90, 91]
    XF = 92
    sXo, sXi, sFo, sTm = sB0, sH, sHw, sLW
    setup = lines(f"""
    v_bfe_u32 v{AD[0]}, v{vN}, 1, 2
    v_mul_u32_u24 v{vRw}, {RROW}, v{vN}
    v_xor_b32 v{AD[0]}, v{AD[0]}, v{vQ}
    v_lshl_add_u32 v{vRw}, v{AD[0]}, 4, v{vRw}
    v_add_u32 v{vRw}, s{sWLb}, v{vRw}
    v_lshlrev_b32 v{XO}, 1, v{XO}
    s_lshl_b32 s{sB2}, s{sX}, 1
    s_mov_b32 s{rW}, s{pOut}
    s_mov_b32 s{rW+1}, s{pOut+1}
    s_mov_b32 s{rW+2}, {2048*2560}
    s_mov_b32 s{rW+3}, 0x20000
    s_lshl_b32 s{sXi}, s{sMT}, 3
    s_add_u32 s{sXi}, s{sXi}, s{sDT}
    s_lshl_b32 s{sXi}, s{sXi}, 1
    s_add_u32 s{sXi}, s{sXi}, s{sHALF}
    s_xor_b32 s{sXo}, s{sXi}, 1
    s_lshl_b32 s{sFo}, s{sXo}, 6
    s_lshl_b32 s{sTm}, s{sW}, 4
    s_add_u32 s{sTm}, s{sTm}, {WS_XF}
    s_add_u32 s{sFo}, s{sFo}, s{sTm}
    s_lshl_b32 s{sUnit}, s{sXi}, 6
    s_add_u32 s{sUnit}, s{sUnit}, s{sTm}
    v_mov_b32 v{XF}, s{sUnit}
    s_mul_i32 s{sTm}, s{sW}, 5120
    s_add_u32 s{sTm}, s{sTm}, {WS_XB}
    s_mul_i32 s{sXi}, s{sXi}, 20480
    s_add_u32 s{sXi}, s{sXi}, s{sTm}
    s_mul_i32 s{sXo}, s{sXo}, 20480
    s_add_u32 s{sXo}, s{sXo}, s{sTm}
    s_add_u32 s{sDX}, s{sXi}, 4096
    s_add_u32 s{sDW}, s{sXo}, 4096
    """)
    for s in range(4):
        setup += lines(f"s_xor_b32 s{sTm}, s{sW}, {s}\ns_mul_i32 s{sTm}, s{sTm}, {WLW}\ns_add_u32 s{sTm}, s{sTm}, {L_WL + s*RBLK}\nv_add_u32 v{AD[s]}, s{sTm}, v{LO}")
    def red_w(p_, s): return [DSF(f"ds_write_b128 v{vRw}, {V(acc2(p_,i,s),4)} offset:{s*RBLK + i*64}", "rw") for i in range(5)]
    RD = [96 + 16*g for g in range(5)]
    def red_r(g): return [DSF(f"ds_read_b128 {V(RD[g]+4*s,4)}, v{AD[s]} offset:{64*g}", ("r", g)) for s in range(4)]
    bgq = list(setup) + list(res)
    per = -(-len(pend) // OPT["kw"])
    for t in range(T - 1):
        p_, tk = divmod(t, n_)
        assert not [1 for t_, _ in pend if t_ <= t], (typ, t)
        if OPT.get("fine2"): stamp(14 + 2*t)
        k.wait_vm([("w", tk), ("h", t)])
        if OPT.get("fine2"): stamp(15 + 2*t)
        if t == tB: put_flag(tagB, sLX)
        tchk = n_ - NR
        if MV and typ == 'ssm' and t == tchk - MV:
            k.wait_vm('mvp'); check('mv', vF, vFd)
        if t == tchk:
            scheck("hb" + typ, 1)
        wk, wb = wreg(tk); ring = hdest(typ, t)
        m = []
        for s in range(4):
            for i in range(5):
                c = "0" if tk == 0 else V(acc2(p_, i, s), 4)
                m.append(f"v_mfma_f32_16x16x32_bf16 {V(acc2(p_,i,s),4)}, {R(wk, wb+4*i, 4)}, {R(ring[s][0], ring[s][1], 4)}, {c}")
        streams = []
        if NE[typ] <= t and t + NR < T:
            a_, b_ = hload(typ, t + NR)
            streams.append((a_, 0, 2, True))
            for s in range(4): streams.append((b_[s], 5*s + 4, 5*s + 4, True))
        mem = []
        if t == tchk - 2: k.e(spoll(1))
        if MV and typ == 'ssm' and t == tchk - MV - 2: mem += [VM(f"buffer_load_dwordx2 {V(vFd,2)}, v{vF}, s[{rWS}:{rWS+3}], 0 offen sc1", 'mvp')]
        while hrest and len(mem) < 12: mem += flat([hrest.pop(0)])
        for _ in range(per if typ == "mlp" else (4 if t >= tchk - MV else 0)):
            if pend: mem += flat([pend.pop(0)[1]])
        u = t - n_
        if u == -1: must_bg = True
        if u == 0: assert not bgq, len(bgq)
        if u in (0, 1, 2):
            wr_ = sum((red_w(0, s) for s in range(4)), [])
            streams.append((wr_[7*u:7*u + 7], 2, 18 if u < 2 else 14, True))
        if u == 3:
            k.wait_lg(); k.e("s_barrier")
            streams.append((red_r(0) + red_r(1) + red_r(2), 0, 16, True))
        if u == 4: streams.append((red_r(3) + red_r(4), 0, 12, True))
        if u in (4, 5):
            for g in ((0, 1, 2) if u == 4 else (3, 4)):
                bgq += [F(lambda g=g: k.wait_lg(("r", g)), 1)]
                bgq += lines("\n".join(f"v_add_f32 v{RD[g]+x}, v{RD[g]+x}, v{RD[g]+4+x}" for x in range(4)) + "\n" +
                             "\n".join(f"v_add_f32 v{RD[g]+8+x}, v{RD[g]+8+x}, v{RD[g]+12+x}" for x in range(4)) + "\n" +
                             "\n".join(f"v_add_f32 v{RD[g]+x}, v{RD[g]+x}, v{RD[g]+8+x}" for x in range(4)))
                if 1 in OPT.get("x", ()): k.seen.add(("xs", g))
                else: bgq += [VM(f"buffer_store_dwordx4 {V(RD[g],4)}, v{vL16}, s[{rWS}:{rWS+3}], s{sXo if g < 4 else sDW} offen offset:{(g & 3)*1024} sc1", ("xs", g))]
        if u == n_ - 3: k.e("s_barrier")
        if u == (n_ - 2 if OPT['xlate'] else n_ - 4): mem += [VM(f"buffer_load_dwordx2 {V(vFd,2)}, v{XF}, s[{rWS}:{rWS+3}], 0 offen sc1", "xp")]
        if u == n_ - OPT["xfb_" + typ]:
            run(bgq); bgq.clear()
            put_flag(("xs", 4), sFo)
        if u == n_ - 2:
            if not OPT["xlate"]:
                k.wait_vm("xp"); check("x" + typ, XF, vFd)
            k.wait_vm(("h", t + 1))
            wk2, wb2 = wreg(tk + 1); ring2 = hdest(typ, t + 1)
            m2 = [f"v_mfma_f32_16x16x32_bf16 {V(acc2(1,i,s),4)}, {R(wk2, wb2+4*i, 4)}, {R(ring2[s][0], ring2[s][1], 4)}, {V(acc2(1,i,s),4)}" for s in range(4) for i in range(5)]
            m = sum((m[5*s:5*s+5] + m2[5*s:5*s+5] for s in range(4)), [])
            XL = [40 + 4*g for g in range(5)] if OPT["xlate"] else RD
            xl = [VM(f"buffer_load_dwordx4 {V(XL[g],4)}, v{vL16}, s[{rWS}:{rWS+3}], s{sXi if g < 4 else sDX} offen offset:{(g & 3)*1024} sc1", "xl") for g in range(5)]
            if not OPT["xlate"]: mem += xl
            for s in range(3): streams.append((red_w(1, s), 10*s + 13, 10*s + 19, True))
            def addx():
                k.wait_vm("xl")
            if not OPT["xlate"]: streams.append(([F(addx, 1)] + lines("\n".join(f"v_add_f32 v{RES+4*g+x}, v{RES+4*g+x}, v{RD[g]+x}" for g in range(5) for x in range(4))), 26, 39, True))
        streams.append((mem, 1, 18, True))
        streams.append((bgq, 0, 20, False))
        sched(m, streams)
        if u == -1:
            if OPT.get("show"): print("left at the end of pass 1:", len(bgq))
            for f in bgq: f()
            bgq.clear()
    stamp()
    if OPT["xlate"]:
        k.wait_vm("xp"); check("x" + typ, XF, vFd)
        run(xl)
    else: k.e("s_nop 3")
    run(red_w(1, 3))
    k.wait_lg(); k.e("s_barrier")
    for g in range(5): run(red_r(g))
    for g in range(5):
        k.wait_lg(("r", g))
        o = RES + 4*g
        for h in range(2): k.e(f"v_pk_add_f32 {V(RD[g]+2*h,2)}, {V(RD[g]+2*h,2)}, {V(RD[g]+4+2*h,2)}")
        for h in range(2): k.e(f"v_pk_add_f32 {V(RD[g]+8+2*h,2)}, {V(RD[g]+8+2*h,2)}, {V(RD[g]+12+2*h,2)}")
        for h in range(2): k.e(f"v_pk_add_f32 {V(o+2*h,2)}, {V(o+2*h,2)}, {V(RD[g]+2*h,2)}")
        for h in range(2): k.e(f"v_pk_add_f32 {V(o+2*h,2)}, {V(o+2*h,2)}, {V(RD[g]+8+2*h,2)}")
    for g in range(5):
        o = RES + 4*g
        if OPT["xlate"]:
            if g == 0: k.wait_vm("xl")
            for h in range(2): k.e(f"v_pk_add_f32 {V(o+2*h,2)}, {V(o+2*h,2)}, {V(XL[g]+2*h,2)}")
        k.vmem(f"buffer_store_dwordx4 {V(o,4)}, v{XO}, s[{rW}:{rW+3}], s{sB2} offen offset:{64*g} {OPT.get('ost', '')}", "o")
    if OPT.get("spin"):
        ins, n_ = OPT["spin"]
        k.e(f"""
        s_waitcnt vmcnt(0)
        s_sub_u32 s{sST}, s{sST}, s98
        s_add_u32 s{sST}, s{sST}, {n_}
        L_spin_{typ}:
        {ins} s[100:101]
        s_waitcnt lgkmcnt(0)
        s_sub_u32 s100, s100, s98
        s_cmp_lt_u32 s100, s{sST}
        s_cbranch_scc1 L_spin_{typ}
        """)
    k.e("s_branch L_fin" if OPT["stamps"] else "s_endpgm")

def finish():
    if OPT["stamps"]:
        k.label("L_fin")
        k.wait_vm0()
        stamp(11)
        k.e(f"""
        s_memtime s[100:101]
        s_waitcnt lgkmcnt(0)
        s_sub_u32 s100, s100, s98
        v_writelane_b32 v{vST}, s100, 63
        s_lshl_b32 s{sT0}, s2, 2
        s_add_u32 s{sT0}, s{sT0}, s{sW}
        s_lshl_b32 s{sT0}, s{sT0}, 8
        s_add_u32 s{sT0}, s{sT0}, {WS_ST}
        v_lshlrev_b32 v2, 2, v{vL}
        buffer_store_dword v{vST}, v2, s[{rWS}:{rWS+3}], s{sT0} offen
        """)

prologue()
stamp_n[0] = 1
path_ssm()
stamp_n[0] = 1; cur[0] = "mlp"
path_mlp()
finish()
k.label("L_end")
body = k.text()
errs = check_hazards(body)
for e_ in errs: print("HAZARD:", e_, file=sys.stderr)

hdr = open(f"cdna_kernels/{NAME}.s.ref").read().split("\n")
hdr = [l for l in hdr if l.startswith(";") and "@launch" not in l and "Override" not in l and "grid=ceil" not in l]
out = "\n".join(hdr) + f"\n; @launch grid=(256,1,1) block=(256,1,1) lds={L_END}\n"
out += f""".amdgcn_target "amdgcn-amd-amdhsa--gfx950"
.text
.globl {NAME}_kernel
.p2align 8
.type {NAME}_kernel,@function
{NAME}_kernel:
{body}    s_endpgm
L_code_end:
.set CODE_BYTES, L_code_end - {NAME}_kernel - 512
.section .rodata,"a"
.p2align 6
.amdhsa_kernel {NAME}_kernel
  .amdhsa_next_free_vgpr 512
  .amdhsa_next_free_sgpr 102
  .amdhsa_accum_offset 256
  .amdhsa_group_segment_fixed_size 0
  .amdhsa_kernarg_size 136
  .amdhsa_user_sgpr_count 2
  .amdhsa_user_sgpr_kernarg_segment_ptr 1
  .amdhsa_system_sgpr_workgroup_id_x 1
.end_amdhsa_kernel
"""
open(sys.argv[1], "w").write(out)
print("written", sys.argv[1], len(out), "bytes; hazards:", len(errs))
```

```python
import sys, struct
sys.path.insert(0, "dev")
from asmlib import *

NAME = "parallel_sum__ssm_conv_s5__mixer_channel_mlp__prompt"
OPT = dict(stamps=False, stop=None, nt_dma="", nt_pf="", nt_rp="", pf=0, pf0=1, pford=0, post0=12, ost='nt', pfa=(1, 0, 1), pfb=(2,), mv=0, xr0=0, tmlp=8, ctail=6, xg=22, rsp=0, sfast=1, rpown='mlp', post=25, e1=0, ew=30, post0_s=0, wskip=3, rpd_mlp=(0, 1.6), rpd_ssm=(0, 3.5), rotg=1, tch=2, hw=4, e2=0, post_s=0, cpf=1, rp_mlp=(3, (4, 5, 7, 9, 10), 12), rp_ssm=(5, (6, 8, 10, 12, 13), 15), cw=25, rf_mlp=16, wskip2=1, touch=8, rf_ssm=99, xfb_mlp=2, xfb_ssm=2, xlate=1, fa=8, sp=10, stlb=0, rfg=10, wfirst=0, wres=-1, resfirst=1, ne=0, gpos=8, post1=20, hpre=1, ne_mlp=0, kw=6, util=1.0, rot1=1, rot2=1)
for a_ in sys.argv[2:]:
    k_, v_ = a_.split("=", 1); OPT[k_] = eval(v_)

def f2u(x): return struct.unpack("<I", struct.pack("<f", x))[0]
def hx(x): return "0x%08x" % f2u(x)

WS_EP = 0
WS_H = 4096
WS_WP = 12 << 20
WS_E = 16 << 20
WS_RF = 17 << 20
WS_HF = (17 << 20) + 65536
WS_RS = 18 << 20
WS_ST = 20 << 20
WS_XF = (17 << 20) + 131072
WS_XB = 24 << 20
WS_SIZE = 32 << 20
OOB = 0x4000000
L_TOK = 0; L_CH = 2048; L_PW = 7168; L_EX = 17408; L_EX2 = L_EX + 1280
L_STG = 20480; L_X = 40960; L_W = 90112; L_END = 163840
XS = 16384; WSL = 24576
L_SCS = {'ssm': (L_EX2, 320), 'mlp': (L_CH + 512, 384)}; L_B1 = L_CH; L_DB = 20160
WLW = 4 * 16 * 320; RROW = 320; RBLK = 16 * RROW
L_WL = L_STG
NST = 10
pX, pLre, pLim, pBre, pBim, pCre, pCim, pLdt = 16, 18, 20, 22, 24, 26, 28, 30
pDsk, pBx, pW1, pB1, pW2, pB2, pOut, pDbg, pWs = 32, 34, 36, 38, 40, 42, 44, 46, 48
sW, sWR, sWC, sMT, sNT, sTYP, sHALF, sDT = 3, 4, 5, 6, 7, 8, 88, 7
sML, sI8 = 9, 10
sNonce = 11; sT0, sT1, sT2, sT3 = 12, 13, 14, 15
sKs = 50; sPF = 51
rX, rW, rWS, rT, rT2 = 52, 56, 60, 64, 68
sX, sLX, sLW, sB0, sB2, sPFs, sUnit, sRpSrc, sLR, sSpin = 72, 73, 74, 75, 76, 77, 78, 79, 80, 81
sK = 82; sEx = 84
sH, sHw, sWp, sDis = 86, 87, 88, 89
sST = 90
sRpD = 92
sSig = 97
sWa, sHa, sLim = 18, 22, 26
sDX, sDW = 77, 51
rPF = rT2
vL, vN, vQ = 1, 2, 3
vDX0, vDX1, vXa, vXb = 4, 5, 6, 7
vDW = 8
vPF, vDR, vJunk, vNc = 10, 11, 12, 13
vWA = 14
vRA = 120
vL16 = 26
vRS = 27
vB1 = 28
vT = 40
vST = 25
ACC = 160
def acc(i, j): return ACC + (i * 4 + j) * 4
aF = [0, 40]
aONE = 80; aCS = 84

k = Asm()
k.strict = OPT.get('strict', False)
k.lenient = OPT['stamps']
stamp_n = [0]
cur = ["ssm"]
def stamp(i=None):
    if i is None:
        i = stamp_n[0]; stamp_n[0] += 1
    if OPT.get("probe") == (cur[0], i):
        k.e(f"s_memrealtime s[{sST}:{sST+1}]"); k.e("s_waitcnt lgkmcnt(0)"); k.lg = []
    if not OPT["stamps"] or (OPT.get("lite") and i != 11): return
    k.e(f"{'s_memtime' if OPT.get('cyc') else 's_memrealtime'} s[{sST}:{sST+1}]"); k.e("s_waitcnt lgkmcnt(0)"); k.lg = []
    k.e(f"v_writelane_b32 v{vST}, s{sST}, {i}")
def srd(r, ptr, size):
    k.e(f"s_mov_b32 s{r}, s{ptr}\ns_mov_b32 s{r+1}, s{ptr+1}\ns_mov_b32 s{r+2}, {size}\ns_mov_b32 s{r+3}, 0x20000")

class F:
    def __init__(self, fn, cost=1, ds=False, sep=False, ta=0): self.fn, self.cost, self.ds, self.sep, self.ta = fn, cost, ds, sep, ta
    gate = None
    def __call__(self): self.fn()
curblk = [0]
def note(d, key): return F(lambda: d.__setitem__(key, curblk[0]), 0)
def gate(fn):
    f = F(lambda: None, 0); f.gate = fn; return f
def lines(s):
    out = []; prev = set()
    for l in (x.strip() for x in s.split("\n")):
        if not l: continue
        if l == "s_nop 0":
            prev = None; continue
        parts = l.split(" | ")
        c = sum(2 if x.split()[0] in TRANS else 1 for x in parts)
        d = parse(parts[0])
        dep = prev is None or (d["valu"] and bool(d["uses"] & prev))
        prev = set().union(*[{r for r in parse(x)["defs"] if r[0] == "v"} for x in parts])
        out.append(F(lambda l=l: k.e(l.replace(" | ", "\n")), c, sep=dep))
    return out
def VM(text, tag, sep=False, ta=66): return F(lambda: k.vmem(text, tag), 2, sep=sep, ta=ta)
def DSF(text, tag=None): return F(lambda: k.ds(text, tag), 1, ds=True)
def sched(main, streams, start=0):
    n = len(main)
    st = []
    for items, g0, g1, must in streams:
        cnt = len(items) if must else min(len(items), must if isinstance(must, int) and must > 1 else len(items))
        tot = sum(f.cost for f in items[:cnt]) or 1
        tg = []; acc_ = 0
        for f in items[:cnt]:
            tg.append(g0 + (g1 - g0) * acc_ / tot if must else g0); acc_ += f.cost
        st.append(dict(items=items, tg=tg, last=-1, must=must))
    for g, m in enumerate(main):
        k.e(m)
        if g < start: continue
        room = 2; hasds = False
        prog = True
        while prog and room > 0:
            prog = False
            for x in st:
                if not x["tg"] or x["tg"][0] > g: continue
                f = x["items"][0]
                if f.gate and not f.gate(): continue
                if f.sep and x["last"] == g: continue
                if f.ds and (hasds or (not x["must"] and g >= n - 6)): continue
                if f.cost > room and room < 2 and not (not x["must"] and g - x["last"] >= 3): continue
                x["items"].pop(0); x["tg"].pop(0); x["last"] = g
                f(); room -= f.cost; hasds |= f.ds; prog = True
                break
    for x in st:
        if x["must"]:
            over = len(x["tg"])
            if over and OPT.get("show"): print("overflow", over)
            while x["tg"]:
                f = x["items"].pop(0); x["tg"].pop(0)
                if f.sep: k.e("s_nop 0")
                f()
def merge(*ls):
    ls = [l for l in ls if l]
    if not ls: return []
    if len(ls) == 1: return list(ls[0])
    items = []
    for li, l in enumerate(ls):
        for i, f in enumerate(l): items.append(((i + 0.5) / len(l), li, i, f))
    items.sort(key=lambda x: (x[0], x[1]))
    return [x[3] for x in items]

def prologue():
    t = vT
    cpf = f"""
    s_getpc_b64 s[{sEx}:{sEx+1}]
    s_lshr_b32 s{sT1}, s2, 3
    s_lshl_b32 s{sT1}, s{sT1}, 11
    v_lshrrev_b32 v{t}, 6, v0
    v_lshlrev_b32 v{t}, 9, v{t}
    v_and_b32 v{t+1}, 3, v0
    v_lshl_add_u32 v{t}, v{t+1}, 7, v{t}
    v_add_u32 v{t}, s{sT1}, v{t}
    v_min_u32 v{t}, CODE_BYTES, v{t}
    global_load_dword v{vJunk}, v{t}, s[{sEx}:{sEx+1}]
    """ if OPT["cpf"] else ""
    k.e(f"""
    s_cmp_ge_u32 s2, 256
    s_cbranch_scc1 L_end
    s_load_dwordx16 s[16:31], s[0:1], 0
    s_load_dwordx16 s[32:47], s[0:1], 64
    s_load_dwordx2 s[48:49], s[0:1], 128
    {cpf}
    v_lshrrev_b32 v{t}, 6, v0
    v_and_b32 v{vL}, 63, v0
    v_readfirstlane_b32 s{sW}, v{t}
    s_and_b32 s{sT0}, s2, 7
    s_lshr_b32 s{sT1}, s2, 3
    s_lshr_b32 s{sTYP}, s{sT1}, 4
    s_bfe_u32 s{sML}, s{sT1}, 0x20002
    s_lshr_b32 s{sMT}, s{sT0}, 1
    s_lshl_b32 s{sT2}, s{sML}, 2
    s_add_u32 s{sMT}, s{sMT}, s{sT2}
    s_and_b32 s{sT2}, s{sT1}, 3
    s_lshl_b32 s{sI8}, s{sTYP}, 2
    s_add_u32 s{sI8}, s{sI8}, s{sT2}
    s_and_b32 s{sNT}, s{sT0}, 1
    s_lshl_b32 s{sNT}, s{sNT}, 2
    s_add_u32 s{sNT}, s{sNT}, s{sT2}
    s_lshr_b32 s{sWR}, s{sW}, 1
    s_and_b32 s{sWC}, s{sW}, 1
    """)
    if OPT["stamps"]:
        k.e(f"v_mov_b32 v{vST}, 0\n{'s_memtime' if OPT.get('cyc') else 's_memrealtime'} s[{sST}:{sST+1}]" + ('' if OPT['pf'] else '\ns_memtime s[98:99]')); stamp_n[0] = 1
    if OPT.get("spin"): k.e(f"{OPT['spin'][0]} s[98:99]\ns_waitcnt lgkmcnt(0)\ns_mov_b32 s{sST}, s98")
    k.e(f"""
    v_lshrrev_b32 v{t}, 3, v{vL}
    v_and_b32 v{t+1}, 7, v{vL}
    v_lshrrev_b32 v{t+2}, 1, v{t}
    v_xor_b32 v{t+2}, v{t+1}, v{t+2}
    v_mul_u32_u24 v{t+3}, 5120, v{t}
    v_lshl_add_u32 v{vDX0}, v{t+2}, 4, v{t+3}
    v_xor_b32 v{vDX1}, 64, v{vDX0}
    v_add_u32 v{vDX1}, 40960, v{vDX1}
    s_lshl_b32 s{sT0}, s{sMT}, 7
    s_lshl_b32 s{sT1}, s{sWR}, 6
    s_add_u32 s{sT0}, s{sT0}, s{sT1}
    s_lshl_b32 s{sT1}, s{sWC}, 1
    s_add_u32 s{sT0}, s{sT0}, s{sT1}
    s_mul_i32 s{sX}, s{sT0}, 1280
    s_lshl_b32 s{sLX}, s{sW}, 12
    s_cmp_eq_u32 s{sTYP}, 1
    s_cbranch_scc1 L_e_mlp
    """)
    for typ in ("ssm", "mlp"):
        if typ == "mlp": k.label("L_e_mlp")
        k.vm = []; issued.clear()
        cur[0] = typ
        k.e(WOFF[typ])
        rot_setup(typ)
        start_loads(typ)
        k.e(f"s_branch L_{typ}")
        early_vm[typ] = list(k.vm)
    cur[0] = "ssm"
early_vm = {}
WOFF = {}
def late_common(typ):
    t = vT
    k.label(f"L_{typ}")
    issued.clear(); issued[0] = 10 if typ == "mlp" else 9
    k.seen.clear(); k.vm = list(early_vm[typ]); k.seen.update(k.vm); k.lg = []
    k.e(f"""
    v_and_b32 v{vN}, 15, v{vL}
    v_lshrrev_b32 v{vQ}, 4, v{vL}
    v_lshlrev_b32 v{vL16}, 4, v{vL}
    s_xor_b32 s{sKs}, s{sWR}, s{sWC}
    s_xor_b32 s{sHALF}, s{sTYP}, 1
    s_mov_b32 s{sSpin}, 0x40000
    s_and_b32 s{sT2}, s2, 127
    s_sub_u32 s{sUnit}, 127, s{sT2}
    s_cmp_lt_u32 s{sUnit}, 96
    s_cselect_b32 s{sUnit}, s{sUnit}, 0
    s_cselect_b32 s{sDis}, 0, {OOB}
    s_lshl_b32 s{sT2}, s{sKs}, 2
    v_add_u32 v{t+4}, s{sT2}, v{vQ}
    v_lshrrev_b32 v{t+5}, 1, v{vN}
    v_xor_b32 v{t+5}, v{t+4}, v{t+5}
    v_lshlrev_b32 v{t+5}, 4, v{t+5}
    v_lshl_add_u32 v{t+5}, v{vN}, 7, v{t+5}
    s_lshl_b32 s{sT1}, s{sWC}, 13
    s_add_u32 s{sT1}, s{sT1}, {L_X}
    v_add_u32 v{vXa}, s{sT1}, v{t+5}
    v_xor_b32 v{vXb}, 64, v{vXa}
    """)

issued = {}
mk = {}
def dma(vo, rs, so, imm, sl, tgt, tag, fl, pre=None):
    def f1():
        k.e(f"s_add_u32 m0, s{sl}, {tgt - imm}")
        if pre: k.e(pre)
    def f2():
        if isinstance(tag, tuple): issued[tag[1]] = issued.get(tag[1], 0) + 1
        k.vmem(f"buffer_load_dwordx4 v{vo}, s[{rs}:{rs+3}], s{so} offen offset:{imm} {fl} lds", tag)
    return [F(f1, 2 if pre else 1), F(f2, 2, sep=True, ta=66)]
def run(ops):
    for op in ops:
        for f in (op if isinstance(op, list) else [op]):
            if f.sep: k.e("s_nop 0")
            f()
def flat(ops): return [f for op in ops for f in (op if isinstance(op, list) else [op])]
def advance(typ, stage):
    d = 64*3072 if typ == "mlp" else 128
    G = OPT["rotg"]
    if stage not in [10 - (10*g) // G for g in range(1, G)]:
        return f"s_add_u32 s{sX}, s{sX}, 128\ns_add_u32 s{sB0}, s{sB0}, {d}\ns_add_u32 s{sB2}, s{sB2}, {d}"
    return (f"s_cmp_eq_u32 s{sSig}, {10 - stage} | s_cselect_b32 s{sT3}, {-9*128 & 0xffffffff}, s{sDX} | s_cselect_b32 s{sT2}, {-9*d & 0xffffffff}, s{sDW}\n"
            f"s_add_u32 s{sX}, s{sX}, s{sT3}\ns_add_u32 s{sB0}, s{sB0}, s{sT2}\ns_add_u32 s{sB2}, s{sB2}, s{sT2}")
def rot_setup(typ):
    d = 64*3072 if typ == "mlp" else 128
    G = OPT.get("rotg", 0)
    if G == 0: rotsel = f"""    s_mul_i32 s{sT0}, s{sI8}, 5
    s_lshr_b32 s{sT0}, s{sT0}, 2
    s_mul_i32 s{sT1}, s{sML}, 5
    s_lshr_b32 s{sT1}, s{sT1}, 1
    s_add_u32 s{sT0}, s{sT0}, s{sT1}
    s_and_b32 s{sT1}, s{sMT}, 3
    s_add_u32 s{sSig}, s{sT0}, s{sT1}
    s_sub_u32 s{sT0}, s{sSig}, 10
    s_cmp_ge_u32 s{sSig}, 10
    s_cselect_b32 s{sSig}, s{sT0}, s{sSig}
    s_mul_i32 s{sSig}, s{sSig}, {OPT['rot1']}
    """
    else:
        rotsel = f"s_add_u32 s{sT0}, s{sI8}, s{sML}\ns_and_b32 s{sT0}, s{sT0}, {G-1}\ns_mul_i32 s{sT0}, s{sT0}, 10\ns_lshr_b32 s{sSig}, s{sT0}, {G.bit_length()-1}"
    k.e(f"""
    {rotsel}
    s_lshl_b32 s{sT0}, s{sSig}, 7
    s_add_u32 s{sX}, s{sX}, s{sT0}
    s_mul_i32 s{sT0}, s{sSig}, {d}
    s_add_u32 s{sB0}, s{sB0}, s{sT0}
    s_add_u32 s{sB2}, s{sB2}, s{sT0}
    s_movk_i32 s{sDX}, 128
    s_mov_b32 s{sDW}, {d}
    """)
def dma_x(stage, g):
    return dma(vDX0 + (g & 1), rX, sX, (g >> 1) * 1280, sLX, L_X + (stage % 3) * XS + g * 1024, ("st", stage), OPT.get("nt_x", "") if stage < OPT.get("nt_n", 99) else "")
def dma_w(typ, stage, g):
    base = L_W + (stage % 3) * WSL
    if typ == "mlp":
        rg, cg = g // 3, g % 3
        return dma(vDW + rg, rW, sB2 if rg else sB0, cg * 128, sLW, base + cg * 8192 + rg * 1024, ("st", stage), OPT["nt_dma"] if stage < OPT.get("nt_n", 99) else "")
    imm = 2560 if (g < 4 and g & 1) else 0
    return dma(vDW + (1 if g == 4 else 0), rW, sB2 if g in (2, 3) else sB0, imm, sLW, base + g * 2048, ("st", stage), OPT["nt_dma"] if stage < OPT.get("nt_n", 99) else "")
def dma_stage(typ, stage):
    nw = 6 if typ == "mlp" else 5
    ops = merge([dma_x(stage, g) for g in range(4)], [dma_w(typ, stage, g) for g in range(nw)])
    if stage > 0: ops[0] = lines(advance(typ, stage)) + ops[0]
    return ops
sPB = 98
def pf(a):
    def f():
        k.vmem(f"global_load_dword v{vJunk}, v{vPF}, s[{sPB}:{sPB+1}] {OPT['nt_pf']}", "pf")
        k.e(f"v_add_u32 v{vPF}, s{sDX}, v{vPF}\nv_min_u32 v{vPF}, s{sDW}, v{vPF}")
    return F(f, 4, ta=130)

def frag_reads(typ, stage, blk, fs):
    slot = stage % 3
    nr = 6 if typ == "mlp" else 5
    vx = vXa if blk == 0 else vXb
    xr = [DSF(f"ds_read_b128 {A(aF[fs] + 24 + 4*j, 4)}, v{vx} offset:{slot*XS + j*2048}") for j in range(4)]
    wr_ = []
    for i in range(nr):
        if typ == "mlp":
            for h in range(2):
                wr_.append(DSF(f"ds_read_b64_tr_b16 {A(aF[fs] + 4*i + 2*h, 2)}, v{vWA + blk*4 + (i & 3)} offset:{slot*WSL + (i >> 2)*8192 + h*512}"))
        else:
            wr_.append(DSF(f"ds_read_b128 {A(aF[fs] + 4*i, 4)}, v{vWA + blk} offset:{slot*WSL + i*2048}"))
    return merge(xr, wr_)

def mfmas(typ, stage, blk, fs):
    nr = 6 if typ == "mlp" else 5
    first = stage == 0
    out = []
    Af = lambda i: A(aF[fs] + 4*i, 4)
    Bf = lambda j: A(aF[fs] + 24 + 4*j, 4)
    for i in range(nr):
        for j in range(4):
            c = "0" if (first and blk == 0) else V(acc(i, j), 4)
            out.append(f"v_mfma_f32_16x16x32_bf16 {V(acc(i,j),4)}, {Af(i)}, {Bf(j)}, {c}")
    if blk == 1 and (2 not in OPT.get('x', ()) or stage == NST - 1):
        for i in range(nr):
            out.append(f"v_mfma_f32_16x16x32_bf16 {A(aCS+4*i,4)}, {Af(i)}, {A(aONE,4)}, {'0' if first else A(aCS+4*i,4)}")
    if blk == 1 and stage == NST - 1: out = out[-nr:] + out[:-nr]
    return out

XR = 124
def touch_all(typ):
    t = vT + 8
    if typ == "ssm":
        k.e(f"""
        s_lshl_b32 s{sT0}, s2, 2
        s_add_u32 s{sT0}, s{sT0}, s{sW}
        s_mul_i32 s{sT0}, s{sT0}, {40*128}
        v_min_u32 v{t}, 39, v{vL}
        s_mov_b64 s[{sT2}:{sT3}], s[{pX}:{pX+1}]
        """)
    else:
        k.e(f"""
        s_and_b32 s{sT0}, s2, 127
        s_lshl_b32 s{sT1}, s{sT0}, 1
        s_add_u32 s{sT1}, s{sT1}, s{sWC}
        s_mul_i32 s{sT1}, s{sT1}, {60*128}
        s_mul_i32 s{sT0}, s{sT0}, {50*128}
        s_cmp_eq_u32 s{sWC}, 0
        s_cselect_b64 s[{sT2}:{sT3}], s[{pBre}:{pBre+1}], s[{pBim}:{pBim+1}]
        s_cmp_eq_u32 s{sWR}, 0
        s_cselect_b32 s{sT0}, s{sT0}, s{sT1}
        s_cselect_b32 s{sT1}, 49, 59
        s_cselect_b64 s[{sT2}:{sT3}], s[{sT2}:{sT3}], s[{pW1}:{pW1+1}]
        v_min_u32 v{t}, s{sT1}, v{vL}
        """)
    k.e(f"v_lshlrev_b32 v{t}, 7, v{t}\nv_add_u32 v{t}, s{sT0}, v{t}")
    k.vmem(f"global_load_dword v{vJunk}, v{t}, s[{sT2}:{sT3}] {OPT['nt_pf']}", "tch")
def touch_two(typ):
    t = vT + 9
    if typ == "mlp":
        k.e(f"""
        s_and_b32 s{sT0}, s2, 127
        s_lshl_b32 s{sT0}, s{sT0}, 2
        s_add_u32 s{sT0}, s{sT0}, s{sW}
        s_mul_i32 s{sT0}, s{sT0}, {30*128}
        v_min_u32 v{t}, 29, v{vL}
        s_mov_b64 s[{sT2}:{sT3}], s[{pW2}:{pW2+1}]
        """)
    else:
        k.e(f"""
        s_lshl_b32 s{sT0}, s2, 1
        s_add_u32 s{sT0}, s{sT0}, s{sWR}
        s_mul_i32 s{sT0}, s{sT0}, {25*128}
        v_min_u32 v{t}, 24, v{vL}
        s_cmp_eq_u32 s{sWC}, 0
        s_cselect_b64 s[{sT2}:{sT3}], s[{pCre}:{pCre+1}], s[{pCim}:{pCim+1}]
        """)
    k.e(f"v_lshlrev_b32 v{t}, 7, v{t}\nv_add_u32 v{t}, s{sT0}, v{t}")
    k.vmem(f"global_load_dword v{vJunk}, v{t}, s[{sT2}:{sT3}]", "tch")
def start_loads(typ):
    t = vT
    k.e("s_waitcnt lgkmcnt(0)")
    if OPT["stamps"]: k.e(f"v_writelane_b32 v{vST}, s{sST}, 0")
    stamp(12)
    k.e(f"""
    s_or_b32 s{sT0}, s2, s{sW}
    s_cmp_lg_u32 s{sT0}, 0
    s_cbranch_scc1 L_nononce_{typ}
    s_memrealtime s[{sT0}:{sT1}]
    s_waitcnt lgkmcnt(0)
    s_or_b32 s{sT0}, s{sT0}, 1
    v_mov_b32 v{t+8}, s{sT0}
    v_mov_b32 v{t+9}, 0
    global_store_dword v{t+9}, v{t+8}, s[{pDbg}:{pDbg+1}] sc1
    L_nononce_{typ}:
    """)
    srd(rX, pX, 2048 * 1280)
    if typ == "mlp": srd(rW, pW1, 640 * 3072)
    else:
        k.e(f"""
        s_cmp_eq_u32 s{sWC}, 0
        s_cselect_b32 s{rW}, s{pBre}, s{pBim}
        s_cselect_b32 s{rW+1}, s{pBre+1}, s{pBim+1}
        s_mov_b32 s{rW+2}, {640*1280}
        s_mov_b32 s{rW+3}, 0x20000
        """)
    if OPT['pf']:
        assert OPT['rotg'] == 1
        k.e(f"s_cmp_eq_u32 s{sW}, 3\ns_cselect_b64 s[{sPB}:{sPB+1}], s[{rX}:{rX+1}], s[{rW}:{rW+1}]")
        for _ in range(OPT['pfa'][0]): pf(0)()
    if OPT.get("tch") == 1: touch_all(typ)
    run(dma_stage(typ, 0))
    if OPT["rsp"]:
        xr_setup(); run(xr_loads())
    if OPT.get("tch") == 2: touch_all(typ)
    if OPT.get("t2"): touch_two(typ)
    if OPT['pf']:
        for _ in range(OPT['pfa'][1]): pf(0)()
    if OPT['xr0']: run(xr_loads())
    stamp(13)
    if OPT.get("stlb", 1):
        k.e(f"s_lshl_b32 s{sT0}, s2, 7\ns_add_u32 s{sT0}, s{sT0}, {WS_HF + 32768}\ns_load_dword s{sNonce}, s[{pWs}:{pWs+1}], s{sT0} {'glc' if OPT.get('stlb') == 2 else ''}")
    srd(rWS, pWs, WS_SIZE)
    if OPT.get('wsoff'): k.e(f"s_add_u32 s{rWS}, s{rWS}, {OPT['wsoff'] << 20}\ns_addc_u32 s{rWS+1}, s{rWS+1}, 0")
def xr_setup():
    k.e(f"""
    s_lshl_b32 s{sT0}, s{sTYP}, 3
    s_add_u32 s{sT0}, s{sT0}, s{sNT}
    s_lshl_b32 s{sT0}, s{sT0}, 2
    s_add_u32 s{sT0}, s{sT0}, s{sW}
    s_lshl_b32 s{sT0}, s{sT0}, 1
    s_lshl_b32 s{sT1}, s{sMT}, 7
    s_add_u32 s{sHw}, s{sT0}, s{sT1}
    s_mul_i32 s{sH}, s{sHw}, 1280
    v_lshrrev_b32 v{XR+10}, 5, v{vL}
    v_mul_u32_u24 v{XR+10}, 1280, v{XR+10}
    v_and_b32 v{XR+11}, 31, v{vL}
    v_lshl_add_u32 v{XR+11}, v{XR+11}, 3, v{XR+10}
    v_lshlrev_b32 v{XR+13}, 1, v{XR+11}
    v_sub_u32 v{XR+10}, v{XR+13}, v{XR+10}
    """)
def xr_loads():
    return [VM(f"buffer_load_dwordx4 {V(XR+4*i,4)}, v{XR+10}, s[{rX}:{rX+3}], s{sH} offen offset:{512*i}", "xr") for i in range(2)] + \
           [VM(f"buffer_load_dwordx2 {V(XR+8,2)}, v{XR+11}, s[{rX}:{rX+3}], s{sH} offen offset:1024", "xr", ta=40)]
def small_dma(ptr, size, soff, tgt, lanes):
    srd(rT2, ptr, size)
    k.e(f"s_mov_b32 m0, {tgt}\ns_mov_b32 exec_lo, {(1 << lanes) - 1}\ns_mov_b32 exec_hi, 0")
    k.vmem(f"buffer_load_dwordx4 v{vL16}, s[{rT2}:{rT2+3}], s{soff} offen lds", "sm")
    k.e("s_mov_b64 exec, -1")
def touch_setup():
    t = 98
    srd(rT2, pCre, 640 * 1280)
    k.e(f"""
    s_mov_b64 s[{sEx}:{sEx+1}], s[{pCim}:{pCim+1}]
    s_and_b32 s{sT0}, s2, 31
    s_lshl_b32 s{sT0}, s{sT0}, 2
    s_add_u32 s{sT0}, s{sT0}, s{sW}
    s_mul_i32 s{sT0}, s{sT0}, {50*128}
    s_xor_b32 s{sT1}, s{sDis}, {OOB}
    s_or_b32 s{sT0}, s{sT0}, s{sT1}
    v_min_u32 v{t}, 49, v{vL}
    v_lshlrev_b32 v{t}, 7, v{t}
    v_add_u32 v{t}, s{sT0}, v{t}
    """)
def touch_c():
    ld = f"buffer_load_dword v{vJunk}, v98, s[{rT2}:{rT2+3}], 0 offen"
    return [VM(ld, "jk", ta=20)] + lines(f"s_mov_b32 s{rT2}, s{sEx}\ns_mov_b32 s{rT2+1}, s{sEx+1}") + [VM(ld, "jk", ta=20)]
def small_loads(typ):
    k.e(f"s_mul_i32 s{sT0}, s{sDT}, 160")
    small_dma(pDsk, 1280, sT0, L_DB, 10)
    small_dma(pB2, 1280, sT0, L_DB + 160, 10)
    if typ == "mlp":
        k.e(f"s_mul_i32 s{sT0}, s{sNT}, 384")
        small_dma(pB1, 3072, sT0, L_B1, 24)

def pf_setup(typ):
    t = vT + 10
    PS = OPT["pf"]
    k.e(f"""
    v_mul_u32_u24 v{t}, 52, v{vL}
    v_lshrrev_b32 v{t}, 10, v{t}
    v_mul_u32_u24 v{t+1}, 20, v{t}
    v_sub_u32 v{t+1}, v{vL}, v{t+1}
    v_min_u32 v{t}, {PS - 1}, v{t}
    s_lshl_b32 s{sT0}, s{sMT}, 7
    s_lshl_b32 s{sT1}, s{sI8}, 4
    s_add_u32 s{sT0}, s{sT0}, s{sT1}
    s_mul_i32 s{sT0}, s{sT0}, 1280
    s_add_u32 s{sT0}, s{sT0}, {128*OPT['pf0']}
    """)
    if typ == "mlp":
        k.e(f"""
        s_lshl_b32 s{sT1}, s{sML}, 4
        s_add_u32 s{sT1}, s{sT1}, {64*OPT['pf0']}
        s_mul_i32 s{sT1}, s{sT1}, 3072
        s_mul_i32 s{sT2}, s{sNT}, 384
        s_add_u32 s{sT1}, s{sT1}, s{sT2}
        s_lshl_b32 s{sT2}, s{sW}, 7
        s_add_u32 s{sT1}, s{sT1}, s{sT2}
        s_cmp_eq_u32 s{sW}, 3
        s_cselect_b32 s{sT0}, s{sT0}, s{sT1}
        s_mov_b32 s{sT2}, {64*3072}
        s_cselect_b32 s{sT2}, 128, s{sT2}
        s_mov_b32 s{sT3}, 3072
        s_cselect_b32 s{sT3}, 1280, s{sT3}
        s_mov_b32 s{sDW}, {640*3072 - 128}
        s_cselect_b32 s{sDW}, {2048*1280 - 128}, s{sDW}
        v_min_u32 v{t+1}, 15, v{t+1}
        """)
    else:
        k.e(f"""
        s_mul_i32 s{sT1}, s{sNT}, 80
        s_mul_i32 s{sT2}, s{sML}, 20
        s_add_u32 s{sT1}, s{sT1}, s{sT2}
        s_mul_i32 s{sT1}, s{sT1}, 1280
        s_add_u32 s{sT1}, s{sT1}, {128*OPT['pf0']}
        s_cmp_eq_u32 s{sW}, 3
        s_cselect_b32 s{sT0}, s{sT0}, s{sT1}
        s_cselect_b32 s{sT1}, 15, 19
        s_mov_b32 s{sDW}, {640*1280 - 128}
        s_cselect_b32 s{sDW}, {2048*1280 - 128}, s{sDW}
        s_cmp_eq_u32 s{sW}, 2
        s_cselect_b32 s{sT1}, 0, s{sT1}
        v_min_u32 v{t+1}, s{sT1}, v{t+1}
        s_mov_b32 s{sT2}, 128
        s_mov_b32 s{sT3}, 1280
        """)
    k.e(f"""
    s_mul_i32 s{sDX}, s{sT2}, {PS}
    v_mul_lo_u32 v{vPF}, v{t}, s{sT2}
    v_mul_lo_u32 v{t+2}, v{t+1}, s{sT3}
    v_add_u32 v{vPF}, v{vPF}, v{t+2}
    v_add_u32 v{vPF}, s{sT0}, v{vPF}
    """)

def repack_setup(tag):
    t = vT
    k.e(f"""
    v_lshrrev_b32 v{t}, 3, v{vL}
    v_and_b32 v{t+1}, 7, v{vL}
    v_mul_u32_u24 v{t}, 1280, v{t}
    v_lshl_add_u32 v{t}, v{t+1}, 4, v{t}
    v_or_b32 v{vDR}, s{sDis}, v{t}
    v_or_b32 v{vRS}, s{sDis}, v{vL16}
    s_lshl_b32 s{sLR}, s{sW}, 10
    s_and_b32 s{sT0}, s{sUnit}, 1
    s_lshr_b32 s{sT1}, s{sUnit}, 1
    s_mov_b32 s{rT+3}, 0x20000
    """)
    if True:
        k.e(f"""
        s_mov_b32 s{rT}, s{pW2}
        s_mov_b32 s{rT+1}, s{pW2+1}
        s_mov_b32 s{rT+2}, {1536*1280}
        s_lshl_b32 s{sT2}, s{sT1}, 2
        s_add_u32 s{sT2}, s{sT2}, s{sW}
        s_mul_i32 s{sRpSrc}, s{sT2}, {8*1280}
        s_mul_i32 s{sT2}, s{sT1}, 5462
        s_lshr_b32 s{sT2}, s{sT2}, 16
        s_mul_i32 s{sT2}, s{sT2}, 10
        s_add_u32 s{sT1}, s{sT1}, s{sT2}
        s_mul_i32 s{sT1}, s{sT1}, 5120
        s_add_u32 s{sT1}, s{sT1}, {WS_WP}
        s_mul_i32 s{sT2}, s{sT0}, 20
        s_add_u32 s{sT2}, s{sT2}, s{sW}
        """)
        for i in range(5):
            k.e(f"""
            s_mul_i32 s{sT3}, s{sT2}, 13108
            s_lshr_b32 s{sT3}, s{sT3}, 16
            s_mul_i32 s{sT3}, s{sT3}, 435
            s_add_u32 s{sT3}, s{sT3}, s{sT2}
            s_lshl_b32 s{sT3}, s{sT3}, 10
            s_add_u32 s{sRpD+i}, s{sT3}, s{sT1}
            s_add_u32 s{sT2}, s{sT2}, 4
            """)
        k.e(f"""
        v_lshrrev_b32 v{t}, 2, v{vN}
        v_lshl_add_u32 v{t}, v{vQ}, 2, v{t}
        v_lshlrev_b32 v{t}, 7, v{t}
        v_and_b32 v{t+1}, 3, v{vN}
        v_lshl_add_u32 v{t}, v{t+1}, 3, v{t}
        s_lshl_b32 s{sT2}, s{sW}, 5
        s_add_u32 s{sT2}, s{sT2}, {L_STG}
        v_add_u32 v{vRA}, s{sT2}, v{t}
    """)
    else:
        k.e(f"""
        s_cmp_eq_u32 s{sWR}, 0
        s_cselect_b32 s{rT}, s{pCre}, s{pCim}
        s_cselect_b32 s{rT+1}, s{pCre+1}, s{pCim+1}
        s_mov_b32 s{rT+2}, {640*1280}
        s_lshl_b32 s{sT2}, s{sT1}, 1
        s_add_u32 s{sT2}, s{sT2}, s{sWC}
        s_mul_i32 s{sRpSrc}, s{sT2}, {8*1280}
        s_mul_i32 s{sT2}, s{sT1}, 13108
        s_lshr_b32 s{sT2}, s{sT2}, 16
        s_mul_i32 s{sT2}, s{sT2}, 435
        s_add_u32 s{sT1}, s{sT1}, s{sT2}
        s_lshl_b32 s{sT2}, s{sT0}, 1
        s_add_u32 s{sT2}, s{sT2}, s{sWR}
        s_mul_i32 s{sT2}, s{sT2}, 110
        s_add_u32 s{sT1}, s{sT1}, s{sT2}
        s_mul_i32 s{sT2}, s{sWC}, 25
        s_add_u32 s{sT1}, s{sT1}, s{sT2}
        s_add_u32 s{sT1}, s{sT1}, 60
        s_lshl_b32 s{sT1}, s{sT1}, 10
        s_add_u32 s{sRpD}, s{sT1}, {WS_WP}
        s_add_u32 s{sRpD+1}, s{sRpD}, 5120
        s_add_u32 s{sRpD+2}, s{sRpD}, 10240
        s_add_u32 s{sRpD+3}, s{sRpD}, 15360
        s_add_u32 s{sRpD+4}, s{sRpD}, 20480
        s_mul_i32 s{sT2}, s{sW}, 160
        v_lshlrev_b32 v{t+2}, 7, v{vN}
        v_add_u32 v{t+2}, {L_STG}, v{t+2}
        """)
        for x, (off, sh) in enumerate(((0, 4), (80, 4), (64, 2), (144, 2))):
            k.e(f"""
            s_add_u32 s{sT3}, s{sT2}, {off}
            v_lshl_add_u32 v{t}, v{vQ}, {sh}, s{sT3}
            v_lshrrev_b32 v{t+1}, 7, v{t}
            v_and_b32 v{t}, 127, v{t}
            v_lshl_add_u32 v{t}, v{t+1}, 12, v{t}
            v_add_u32 v{vRA+x}, v{t}, v{t+2}
            """)
    k.e(f"""
    s_mul_i32 s{sT0}, s{sT0}, 640
    s_add_u32 s{sRpSrc}, s{sRpSrc}, s{sT0}
    """)
def repack_dma():
    return [dma(vDR, rT, sRpSrc, g * 128, sLR, L_STG + g * 4096, "rp%d" % g, OPT["nt_rp"]) for g in range(5)]
RP = 136
def RPR(tag, o, n): return V(RP + o, n)
def repack_read(tag):
    if True:
        return [DSF(f"ds_read_b64_tr_b16 {V(RP+4*i+2*h,2)}, v{vRA} offset:{i*4096 + h*2048}") for i in range(5) for h in range(2)]
    return [DSF(f"ds_read_b128 {V(RP+4*x,4)}, v{vRA + x//2} offset:{(x & 1)*2048}") for x in range(4)] + \
           [DSF(f"ds_read_b32 v{RP+16+x}, v{vRA + 2 + x//2} offset:{(x & 1)*2048}") for x in range(4)]
def repack_store(tag):
    return [VM(f"buffer_store_dwordx4 {RPR(tag, 4*i, 4)}, v{vRS}, s[{rWS}:{rWS+3}], s{sRpD+i} offen sc1", ("rps", i), ta=240) for i in range(5)]
def repack_flag():
    t = vT
    pre = lines(f"""
    v_mov_b32 v{t}, s{sNonce}
    v_mov_b32 v{t+1}, s{sNonce}
    s_lshl_b32 s{sRpSrc}, s{sUnit}, 7
    s_lshl_b32 s{sT1}, s{sW}, 4
    s_add_u32 s{sRpSrc}, s{sRpSrc}, s{sT1}
    s_add_u32 s{sRpSrc}, s{sRpSrc}, {WS_RF}
    s_add_u32 s{sRpSrc}, s{sRpSrc}, 16384
    v_lshlrev_b32 v{t+2}, 26, v{vL}
    v_or_b32 v{t+2}, s{sDis}, v{t+2}
    """)
    def f():
        k.wait_vm(("rps", 4))
        k.vmem(f"buffer_store_dwordx2 {V(t,2)}, v{t+2}, s[{rWS}:{rWS+3}], s{sRpSrc} offen sc1", "rf")
    return pre, F(f, 3, ta=20)

def bfr(d, s): return f"v_cvt_pk_bf16_f32 v{d}, v{s}, v{s}\nv_and_b32 v{d}, 0xffff0000, v{d}\n"
def nonce_load():
    return lines(f"v_mov_b32 v{vNc}, 0") + [VM(f"global_load_dword v{vNc}, v{vNc}, s[{pDbg}:{pDbg+1}] sc1", "nc", ta=20)]
def rowstat_job(tag):
    t = vT + 20
    S_, Q, MEAN, VAR, S1, X, Y = t, t+1, t+2, t+3, t+4, t+5, t+6
    G0, G1 = t+8, t+12
    M1, A1, A2, AM = G0, G0+2, G1, G1+2
    def dots():
        k.wait_vm("xr")
        s = f"v_mov_b32 v{X}, 0x3f803f80\nv_mov_b32 v{S_}, 0\nv_mov_b32 v{Q}, 0\n"
        for i in range(10): s += f"v_dot2c_f32_bf16 v{S_}, v{XR+i}, v{X}\nv_dot2c_f32_bf16 v{Q}, v{XR+i}, v{XR+i}\n"
        s += "s_nop 2\n"
        k.e(s)
    fl = [F(dots, 24)]
    for d in ("row_shr:1", "row_shr:2", "row_shr:4", "row_shr:8", "row_bcast:15"):
        rm = "0xa" if "bcast" in d else "0xf"
        fl.append(F(lambda d=d, rm=rm: k.e(f"v_add_f32_dpp v{S_}, v{S_}, v{S_} {d} row_mask:{rm} bank_mask:0xf bound_ctrl:0"), 1, sep=True))
        fl.append(F(lambda d=d, rm=rm: k.e(f"v_add_f32_dpp v{Q}, v{Q}, v{Q} {d} row_mask:{rm} bank_mask:0xf bound_ctrl:0"), 1))
    fl += lines(f"""
    v_mul_f32 v{MEAN}, {hx(1/640)}, v{S_}
    v_mul_f32 v{VAR}, {hx(1/640)}, v{Q}
    v_fma_f32 v{VAR}, -v{MEAN}, v{MEAN}, v{VAR}
    v_max_f32 v{VAR}, 0, v{VAR}
    {bfr(M1, MEAN)}{bfr(X, VAR)}
    v_add_f32 v{X}, {hx(1e-5)}, v{X}
    {bfr(X, X)}
    v_sqrt_f32 v{X}, v{X}
    v_sub_f32 v{Y}, v{MEAN}, v{M1}
    {bfr(S1, X)}
    v_rcp_f32 v{A1}, v{S1}
    s_nop 0
    v_mul_f32 v{Y}, v{Y}, v{A1}
    v_mul_f32 v{X}, v{VAR}, v{A1}
    {bfr(Y, Y)}
    v_mul_f32 v{X}, v{X}, v{A1}
    {bfr(X, X)}
    v_add_f32 v{X}, {hx(1e-5)}, v{X}
    {bfr(X, X)}
    v_sqrt_f32 v{X}, v{X}
    v_fma_f32 v{Y}, v{Y}, v{S1}, v{M1}
    {bfr(X, X)}
    v_mul_f32 v{X}, v{X}, v{S1}
    v_rcp_f32 v{A2}, v{X}
    v_and_b32 v{X}, 31, v{vL}
    v_mul_f32 v{AM}, v{A2}, v{Y}
    v_sub_u32 v{X}, 31, v{X}
    v_and_b32 v{Y}, 32, v{vL}
    v_lshl_add_u32 v{X}, v{X}, 26, v{Y}
    s_lshl_b32 s{sT0}, s{sHw}, 5
    s_add_u32 s{sT0}, s{sT0}, {WS_RS}
    """)
    def nonce():
        k.wait_vm("nc")
        k.e(f"""
        v_readfirstlane_b32 s{sNonce}, v{vNc}
        s_cmp_lg_u32 s{sNonce}, 0
        s_cbranch_scc1 L_ncok_{tag}
        L_ncl_{tag}:
        s_sleep 1
        global_load_dword v{vNc}, v{Y}, s[{pDbg}:{pDbg+1}] sc1
        s_sub_u32 s{sSpin}, s{sSpin}, 1
        s_cbranch_scc1 L_end
        s_waitcnt vmcnt(0)
        v_readfirstlane_b32 s{sNonce}, v{vNc}
        s_cmp_eq_u32 s{sNonce}, 0
        s_cbranch_scc1 L_ncl_{tag}
        L_ncok_{tag}:
        s_nop 0
        """)
    fl += lines(f"v_mov_b32 v{Y}, 0") + [F(nonce, 4)]
    fl += lines(f"""
    v_mov_b32 v{G0+1}, s{sNonce}
    v_mov_b32 v{G0+3}, s{sNonce}
    v_mov_b32 v{G1+1}, s{sNonce}
    v_mov_b32 v{G1+3}, s{sNonce}
    """)
    fl.append(VM(f"buffer_store_dwordx4 {V(G0,4)}, v{X}, s[{rWS}:{rWS+3}], s{sT0} offen sc1", "rs", ta=20))
    fl.append(VM(f"buffer_store_dwordx4 {V(G1,4)}, v{X}, s[{rWS}:{rWS+3}], s{sT0} offen offset:16 sc1", "rs", ta=20))
    return fl
RSV = 124
def rowstat_fetch():
    fl = lines(f"""
    s_lshl_b32 s{sT0}, s{sMT}, 12
    s_add_u32 s{sT0}, s{sT0}, {WS_RS}
    v_lshlrev_b32 v{RSV+4}, 4, v0
    v_add_u32 v{RSV+4}, s{sT0}, v{RSV+4}
    """)
    return fl + [VM(f"buffer_load_dwordx4 {V(RSV,4)}, v{RSV+4}, s[{rWS}:{rWS+3}], 0 offen sc1", "rsv")]

def ta_of(op): return sum(f.ta for f in flat([op]))
def main_loop(typ, jobs, vq, bg):
    q = [(max(0, 2*st - 5), max(2*st - 4 + (x >= 5) - OPT.get('lag', 0), x >= 5), op) for st in range(2, NST) for x, op in enumerate(dma_stage(typ, st))]
    q = sorted(q + vq, key=lambda x: x[1])
    credit = [OPT.get("credit0", 0)]
    def take(bi, n):
        credit[0] = min(credit[0] + n * 17 * OPT["util"], n * 17 + 100) - sum(ta_of(x) for x in jobs.get(("pre", bi), []) + jobs.get(bi, []))
        out = []
        while True:
            c = [x for x in q if x[0] <= bi]
            if not c or ((credit[0] < 33 or len(out) >= (OPT['ctail'] if typ == 'ssm' and bi >= 15 else OPT.get('cap', 6))) and c[0][1] > bi): break
            q.remove(c[0]); out.append(c[0][2]); credit[0] -= ta_of(c[0][2])
        if OPT.get('show'): print(typ, bi, len(out), len(jq), len(bg), int(credit[0]), dict(issued))
        return flat(out)
    jq = []
    stamp(15)
    if OPT["rsp"] == 1: run(jobs["rsmath"])
    run(dma_stage(typ, 1))
    if OPT["rsp"] == 2: run(jobs["rsmath"])
    if OPT['pf']:
        for _ in range(OPT['pfa'][2]): pf(0)()
    stamp(62)
    k.wait_vm(("st", 0)); k.e("s_barrier")
    stamp()
    run(frag_reads(typ, 0, 0, 0))
    def block(bi, m, reads, n):
        curblk[0] = bi
        run(jobs.get(("pre", bi), []))
        jq.extend(jobs.get(bi, []))
        jq[:0] = jobs.get(("front", bi), [])
        d = take(bi, n)
        n = len(m)
        if bi == 2*NST - 1: reads, r0 = jobs["last"], 9
        else: r0 = 0
        sched(m, [(d, 0, n - 1, True), (reads, r0, n - OPT.get("rend", 6), True), (jobs["tail"] if r0 else [], 0, 9, True), (jq, 0, n, False), (bg if bi >= OPT.get("bg0", 1) else [], 0, n, False)])
    for s in range(NST):
        k.wait_lg()
        m = mfmas(typ, s, 0, 0)
        block(2*s, m, frag_reads(typ, s, 1, 1), len(m))
        k.wait_lg()
        m = mfmas(typ, s, 1, 1)
        k.e(m[0]); k.e(m[1])
        if s + 1 < NST:
            if OPT.get("fine"): stamp(16 + 3*s)
            assert issued.get(s + 1, 0) == (10 if typ == "mlp" else 9), (typ, s, issued)
            for tg in jobs.get(("wait", s), []): assert tg in k.seen, tg
            k.wait_vm([("st", s + 1)] + jobs.get(("wait", s), []))
            if OPT.get("fine"): stamp(17 + 3*s)
            k.e("s_barrier")
        block(2*s + 1, m[2:], frag_reads(typ, s + 1, 0, 0) if s + 1 < NST else [], len(m))
    assert not jq and (len(bg) < 12 or OPT.get('x')), (len(jq), len(bg))
    run(bg)
    stamp()
    if OPT["stop"] == "loop":
        k.e("s_branch L_fin"); k.seen.update(["rsv", ("rps", 4), "b1"])
    return [x[2] for x in q]

WSLOT = [("a", 108 + 20*x) for x in range(7)] + [("a", 20*x) for x in range(5)] + [("v", 100 + 20*x) for x in range(3)]
NREG = 15
def wreg(tk): return WSLOT[tk]
def kaddr(dst, base, tk, stride):
    return lines(f"s_cmp_gt_u32 s{sLim}, {tk} | s_cselect_b32 s{dst}, s{base}, s{base+1}\ns_add_u32 s{dst}, s{dst}, {tk*stride}")
def wload(tk):
    kind, base = wreg(tk)
    out = []
    for i in range(5):
        op = []
        if i == 0: op += kaddr(sT2, sWa, tk, 5120) if cur[0] == "mlp" else lines(f"s_add_u32 s{sT2}, s{sLim+1}, {tk*5120}")
        if i == 4: op += lines(f"s_add_u32 s{sT2}, s{sT2}, 4096")
        op.append(VM(f"buffer_load_dwordx4 {R(kind, base+4*i, 4)}, v{vL16}, s[{rWS}:{rWS+3}], s{sT2} offen offset:{(i & 3)*1024} sc1", ("w", tk)))
        out.append(op)
    return out
RFV = 24
sWLb, sTx = 34, 35
MV = OPT["mv"]
NK = {"mlp": 12 - MV, "ssm": 10 + MV}
def p2_addr(typ):
    n_ = NK[typ]; k0 = 0 if typ == "mlp" else 12
    if typ == "mlp":
        k.e(f"""
        v_min_u32 v{vT+2}, {4*n_ - 1}, v{vL}
        s_mul_i32 s{sT0}, s{sW}, 24
        s_lshr_b32 s{sT1}, s{sDT}, 2
        s_add_u32 s{sT0}, s{sT0}, s{sT1}
        s_lshl_b32 s{sT0}, s{sT0}, 7
        s_add_u32 s{sT0}, s{sT0}, {WS_RF + 16384}
        v_lshrrev_b32 v{vT}, 2, v{vT+2}
        v_and_b32 v{vT+1}, 3, v{vT+2}
        """)
        k.e(f"v_lshlrev_b32 v{vT}, 8, v{vT}\nv_lshl_add_u32 v{vT}, v{vT+1}, 4, v{vT}\nv_add_u32 v{RFV}, s{sT0}, v{vT}")
    k.e(f"""
    s_and_b32 s{sT2}, s{sDT}, 3
    s_add_u32 s{sT2}, s{sT2}, s{sML}
    s_and_b32 s{sT2}, s{sT2}, 3
    s_mul_i32 s{sT2}, s{sT2}, {n_ * OPT['rot2'] if typ == 'mlp' else 0}
    s_lshr_b32 s{sT2}, s{sT2}, 2
    s_sub_u32 s{sLim}, {n_ if typ == 'mlp' else 10}, s{sT2}
    s_mul_i32 s{sT0}, s{sW}, 22
    s_add_u32 s{sT0}, s{sT0}, s{sT2}
    s_add_u32 s{sT0}, s{sT0}, {k0}
    s_mul_i32 s{sT1}, s{sDT}, 88
    s_add_u32 s{sT1}, s{sT1}, s{sT0}
    s_mul_i32 s{sT1}, s{sT1}, 5120
    {f"s_add_u32 s{sWa}, s{sT1}, {WS_WP}" if typ == "mlp" else f"s_add_u32 s{sLim+1}, s{sT1}, {WS_WP - n_*5120}"}
    {f"s_sub_u32 s{sWa+1}, s{sWa}, {n_*5120}" if typ == "mlp" else ""}
    s_lshl_b32 s{sT1}, s{sMT}, 1
    s_add_u32 s{sT1}, s{sT1}, s{sHALF}
    s_mul_i32 s{sT2}, s{sT1}, 88
    s_add_u32 s{sT2}, s{sT2}, s{sT0}
    s_lshl_b32 s{sT2}, s{sT2}, 12
    s_add_u32 s{sHa+2}, s{sT2}, {WS_H}
    s_sub_u32 s{sHa+3}, s{sHa+2}, {n_*4096}
    s_{'add' if typ == 'mlp' else 'sub'}_u32 s{sHa}, s{sHa+2}, {88*4096}
    s_sub_u32 s{sHa+1}, s{sHa}, {n_*4096}
    s_mul_i32 s{sWLb}, s{sW}, {WLW}
    s_add_u32 s{sWLb}, s{sWLb}, {L_WL}
    """)
def rflag_fetch(vd):
    k.vmem(f"buffer_load_dwordx2 {V(vd,2)}, v{RFV}, s[{rWS}:{rWS+3}], 0 offen sc1", "rfv")
def check(tag, vaddr, vd, width=2, second=1):
    k.e(f"""
    L_chk_{tag}:
    v_cmp_ne_u32 vcc, s{sNonce}, v{vd + (1 if width == 4 else 0)}
    v_cmp_ne_u32 s[{sT0}:{sT1}], s{sNonce}, v{vd + (3 if width == 4 else 1)}
    s_or_b64 vcc, vcc, s[{sT0}:{sT1}]
    s_cmp_eq_u64 vcc, 0
    s_cbranch_scc1 L_chkok_{tag}
    s_sub_u32 s{sSpin}, s{sSpin}, 1
    s_cbranch_scc1 L_end
    buffer_load_dwordx{width} {V(vd,width)}, v{vaddr}, s[{rWS}:{rWS+3}], 0 offen sc1
    s_waitcnt vmcnt(0)
    s_branch L_chk_{tag}
    L_chkok_{tag}:
    """)
vCD = 20
sCU = [18, 19, 20, 21, 35]
sCs, sCt = 42, 43
def c_setup():
    t = vT
    srd(rT2, pCim, 640 * 1280)
    if OPT['rpown'] == 'ssm': k.e(f"s_mov_b64 s[{sEx}:{sEx+1}], s[{pCre}:{pCre+1}]")
    else: srd(rT, pCre, 640 * 1280)
    for g in range(5):
        k.e(f"""
        v_add_u32 v{t}, {64*g}, v{vL}
        v_mul_u32_u24 v{t+1}, 3277, v{t}
        v_lshrrev_b32 v{t+1}, 16, v{t+1}
        v_mul_u32_u24 v{t+2}, 20, v{t+1}
        v_sub_u32 v{t+2}, v{t}, v{t+2}
        v_mul_u32_u24 v{t+1}, 1280, v{t+1}
        v_lshl_add_u32 v{vCD+g}, v{t+2}, 4, v{t+1}
        """)
    k.e(f"""
    s_mul_i32 s{sCs}, s{sDT}, {80*1280}
    s_mul_i32 s{sT0}, s{sW}, 320
    s_add_u32 s{sCs}, s{sCs}, s{sT0}
    s_mul_i32 s{sT1}, s{sW}, 5120
    s_add_u32 s{sCU[0]}, s{sT1}, 20480
    s_add_u32 s{sCU[1]}, s{sT1}, 110592
    s_add_u32 s{sCU[2]}, s{sT1}, 57344
    s_add_u32 s{sCU[3]}, s{sT1}, 131072
    s_mov_b32 s{sT0}, 77824
    s_cmp_eq_u32 s{sWR}, 0
    s_cselect_b32 s{sT0}, s{sT0}, 141312
    s_add_u32 s{sCU[4]}, s{sT1}, s{sT0}
    """)
def c_dma(i, rs, tag):
    out = []
    for g in range(5):
        op = lines(f"s_add_u32 s{sCt}, s{sCs}, {i*16*1280}") if g == 0 else []
        out.append(op + lines(f"s_add_u32 m0, s{sCU[i]}, {g*1024}") + [VM(f"buffer_load_dwordx4 v{vCD+g}, s[{rs}:{rs+3}], s{sCt} offen lds", tag, sep=True, ta=80)])
    return out
def c_read(im, B):
    k.e(f"""
    v_mul_u32_u24 v{B[5]}, 320, v{vN}
    v_lshl_add_u32 v{B[2]}, v{vQ}, 4, v{B[5]}
    v_lshrrev_b32 v{B[4]}, 1, v{vQ}
    v_mul_u32_u24 v{B[4]}, 80, v{B[4]}
    v_add_u32 v{B[5]}, v{B[5]}, v{B[4]}
    v_add_u32 v{B[0]}, s{sCU[0]}, v{B[2]}
    v_add_u32 v{B[1]}, s{sCU[1]}, v{B[2]}
    v_add_u32 v{B[2]}, s{sCU[4]}, v{B[2]}
    v_add_u32 v{B[3]}, s{sCU[0]}, v{B[5]}
    v_add_u32 v{B[4]}, s{sCU[1]}, v{B[5]}
    v_add_u32 v{B[5]}, s{sCU[4]}, v{B[5]}
    """)
    where = [(0, 0), (1, 0), (0, 57344 - 20480), (1, 131072 - 110592), (2, 0)]
    for a_ in range(2):
        for wr_ in range(2):
            kind, base = wreg(5*a_ + 2*wr_ + im)
            for i, (b_, o_) in enumerate(where):
                k.ds(f"ds_read_b128 {R(kind, base+4*i, 4)}, v{B[b_]} offset:{o_ + 160*a_ + 80*wr_}", "cr")
    m_ = "0xffff0000" if im else "0x0000ffff"
    k.e(f"s_mov_b32 exec_lo, {m_}\ns_mov_b32 exec_hi, {m_}")
    for a_ in range(2):
        kind, base = wreg(5*a_ + 4)
        for i, (b_, o_) in enumerate(where):
            k.ds(f"ds_read_b128 {R(kind, base+4*i, 4)}, v{B[3+b_]} offset:{o_ + 160*a_ + 64}", "cr")
    k.e("s_mov_b64 exec, -1")

def common_jobs(typ):
    j = {}
    def add(key, items): j[key] = j.get(key, []) + items
    j[0] = nonce_load()
    rj = rowstat_job(typ)
    if OPT["rsp"]:
        j["rsmath"] = rj[:-10]; j[2] = rj[-10:]; vq = []
    else:
        j[3] = rj; vq = [(0, 1.5, op) for op in xr_loads()]
    if OPT['pf']:
        for bi in OPT['pfb']: add(('pre', bi), [pf(0)])
    if typ == OPT["rpown"]:
        r0, rpst, rpfl = OPT["rp_" + typ]
        assert r0 % 2 == 1
        add(("wait", (r0 - 1) // 2), ["rp4"])
        add(("pre", r0), repack_read(typ))
        for f, bi in zip(repack_store(typ), rpst): add(("pre", bi), [f])
        vq += [OPT["rpd_" + typ] + (op,) for op in repack_dma()]
        a_, b_ = repack_flag()
        d_ = {}
        add(min(rpfl, 15) - 5, a_ + [note(d_, 1)])
        if rpfl < 20: add(("pre", rpfl), [F(lambda: d_[1], 0), b_])
        else: j["rpflag"] = b_
        if typ == "ssm":
            assert OPT.get("c0", 12) > r0 + 2
            add(("pre", r0), lines(f"s_mov_b32 s{rT}, s{sEx}\ns_mov_b32 s{rT+1}, s{sEx+1}\ns_mov_b32 s{rT+2}, {640*1280}"))
    if typ == "ssm":
        vq += [(e_, 99, op) for i, e_ in zip((0, 1, 2, 3, 4), (OPT.get("c0", 12), 15, 17, 17, 17)) for op in c_dma(i, rT, "cre")]
    else:
        if OPT["tmlp"] >= 0: add(OPT["tmlp"], touch_c())
        bi = OPT["rf_mlp"]
        RD_ = vT + 4
        if bi <= 20: add(("pre", bi - 1), [F(lambda: rflag_fetch(RD_), 2, ta=50)])
        def chk():
            k.wait_vm("rfv"); check("rf_" + typ, RFV, RD_)
        j["rfchk"] = chk
        if bi < 20:
            add(("pre", bi), [F(chk, 6)])
            vq += [(bi, 99, op) for tk in range(7) for op in wload(tk)]
    stats_jobs(typ, j)
    if 6 in OPT.get("x", ()) and typ == "mlp":
        for bi in range(20): j[("pre", bi)] = [f for f in j.get(("pre", bi), []) if f.ta != 240]
        k.seen.add(("rps", 4))
    if 9 in OPT.get("x", ()):
        j[3] = j[3][-16:]
        vq = [v for v in vq if v[1] != 1.5]
    if 8 in OPT.get("x", ()) and typ == "ssm":
        vq = [v for v in vq if v[1] != 99]; k.seen.add("cre")
    return j, vq

TK = vT + 8
SA = 76
def stats_jobs(typ, j):
    nr = 6 if typ == "mlp" else 5
    L_SC, SCW = L_SCS[typ]
    k.e(f"""
    s_mul_i32 s{sT0}, s{sW}, {SCW}
    s_add_u32 s{sT0}, s{sT0}, {L_SC}
    v_lshlrev_b32 v{SA+1}, 4, v{vQ}
    v_add_u32 v{SA}, s{sT0}, v{SA+1}
    v_min_u32 v{SA+2}, 1, v{vN}
    v_mul_u32_u24 v{SA+2}, 0x30000, v{SA+2}
    v_add_u32 v{SA}, v{SA}, v{SA+2}
    s_mul_i32 s{sT0}, s{sWR}, {2*SCW}
    s_add_u32 s{sT0}, s{sT0}, {L_SC}
    v_add_u32 v{SA+1}, s{sT0}, v{SA+1}
    s_lshl_b32 s{sT0}, s{sWC}, 10
    v_lshlrev_b32 v{SA+2}, 6, v{vN}
    v_add_u32 v{SA+2}, s{sT0}, v{SA+2}
    v_lshlrev_b32 v{SA+3}, 3, v0
    """)
    j[OPT.get('rsb', 13)] = j.get(OPT.get('rsb', 13), []) + rowstat_fetch()
    def chk():
        k.wait_vm("rsv")
        check("rs_" + typ, RSV + 4, RSV, 4)
        k.ds(f"ds_write2_b32 v{SA+3}, v{RSV}, v{RSV+2} offset0:{L_TOK//4} offset1:{L_TOK//4+1}")
    j[("pre", 16)] = j.get(("pre", 16), []) + [F(chk, 8)]
    j["tail"] = [DSF(f"ds_read_b128 {V(TK+4*x,4)}, v{SA+2} offset:{L_TOK + x*16}") for x in range(4)]
    j["last"] = [DSF(f"ds_write_b128 v{SA}, {A(aCS+4*i,4)} offset:{i*64}") for i in range(nr)]
def stats(typ):
    nr = 6 if typ == "mlp" else 5
    CS = vT + 24; P2 = 100
    SCW = L_SCS[typ][1]
    k.wait_lg(); k.e("s_barrier")
    for i in range(nr):
        k.ds(f"ds_read_b128 {V(P2+4*i,4)}, v{SA+1} offset:{SCW+i*64}", ("cs", i))
    for i in (0, 1, 2, 4, 5, 3)[:nr + 1]:
        if i < nr: k.ds(f"ds_read_b128 {V(CS+4*i,4)}, v{SA+1} offset:{i*64}", ("cs", i))
    return TK, CS, P2
def stats_sum(typ, CS, P2):
    k.wait_lg()
    for i in range(6 if typ == "mlp" else 5):
        for h in range(2):
            k.e(f"v_pk_add_f32 {V(CS+4*i+2*h,2)}, {V(CS+4*i+2*h,2)}, {V(P2+4*i+2*h,2)}")

class Feeder:
    def __init__(self, jobs, every): self.jobs, self.every, self.n = list(jobs), every, 0
    def tick(self, n=1):
        self.n += n
        while self.n >= self.every and self.jobs:
            self.n -= self.every; run([self.jobs.pop(0)])
    def flush(self):
        while self.jobs: run([self.jobs.pop(0)])

HB = 88 * 4096
def h_base():
    k.e(f"""
    s_mul_i32 s{sH}, s{sMT}, {2*HB}
    s_lshl_b32 s{sT0}, s{sWC}, 11
    s_add_u32 s{sH}, s{sH}, s{sT0}
    s_add_u32 s{sH}, s{sH}, {WS_H}
    s_lshr_b32 s{sT0}, s{sNT}, 1
    s_mul_i32 s{sT0}, s{sT0}, 22
    s_and_b32 s{sT1}, s{sNT}, 1
    """)
HRING = [[("v", 40 + 4*s) for s in range(4)], [("v", 56 + 4*s) for s in range(4)], [("v", 72 + 4*s) for s in range(4)],
         [("a", 100), ("a", 104), ("a", 248), ("a", 252)]]
NR = len(HRING)
SPARE = [168, 172] + [acc(i, j) for i in range(1, 6) for j in (2, 3)]
NE = {"mlp": OPT["ne"], "ssm": 0}
vM26, vRw, vF, vFd, vHs, vNP, XO, LO = 24, 27, 28, 30, 32, 36, 38, 39
RES = 4
sPA, sPB_, sFA, sNP = 36, 64, 46, 84
def flag_addr():
    k.e(f"""
    s_lshl_b32 s{sT0}, s{sMT}, 4
    s_lshl_b32 s{sT1}, s{sTYP}, 3
    s_add_u32 s{sT0}, s{sT0}, s{sT1}
    s_lshl_b32 s{sT1}, s{sW}, 1
    s_add_u32 s{sT1}, s{sT0}, s{sT1}
    s_lshl_b32 s{sT1}, s{sT1}, 7
    s_lshl_b32 s{sT3}, s{sTYP}, 5
    s_add_u32 s{sT3}, s{sT3}, {WS_HF}
    s_add_u32 s{sFA}, s{sT1}, s{sT3}
    s_xor_b32 s{sFA+1}, s{sFA}, 32
    s_add_u32 s{sT0}, s{sT0}, s{sNT}
    s_lshl_b32 s{sT0}, s{sT0}, 7
    s_lshl_b32 s{sT1}, s{sW}, 3
    s_add_u32 s{sT0}, s{sT0}, s{sT1}
    s_add_u32 s{sLW}, s{sT0}, s{sT3}
    s_xor_b32 s{sLX}, s{sLW}, 32
    s_mov_b32 s{sNP}, s{sNonce}
    s_mov_b32 s{sNP+1}, s{sNonce}
    v_mov_b32 v{vNP}, s{sNonce}
    v_mov_b32 v{vNP+1}, s{sNonce}
    v_lshlrev_b32 v{vM26}, 26, v{vL}
    """)
    for s in range(4):
        k.e(f"s_xor_b32 s{sT0}, s{sW}, {s}\ns_lshl_b32 s{sT0}, s{sT0}, 10\nv_add_u32 v{vHs+s}, s{sT0}, v{vL16}")
def spoll(h):
    return f"""s_add_u32 s{sT0}, s{sFA+h}, 128
    s_load_dwordx8 s[{sPA}:{sPA+7}], s[{pWs}:{pWs+1}], s{sFA+h} glc
    s_load_dwordx8 s[{sPB_}:{sPB_+7}], s[{pWs}:{pWs+1}], s{sT0} glc"""
def scheck(tag, h):
    k.e(f"s_branch L_sc1_{tag}\nL_sc0_{tag}:\ns_sub_u32 s{sSpin}, s{sSpin}, 1\ns_cbranch_scc1 L_end")
    k.e(spoll(h))
    if OPT.get("cnt") and tag == "hmmlp": k.e("s_add_u32 s101, s101, 1")
    k.e(f"L_sc1_{tag}:\ns_waitcnt lgkmcnt(0)"); k.lg = []
    for b_ in (sPA, sPB_):
        for x in range(4): k.e(f"s_cmp_eq_u64 s[{b_+2*x}:{b_+2*x+1}], s[{sNP}:{sNP+1}]\ns_cbranch_scc0 L_sc0_{tag}")
def put_flag(tag, so, track=True):
    k.wait_vm(tag)
    (k.vmem if track else lambda tx, tg: k.e(tx))(f"buffer_store_dwordx2 {V(vNP,2)}, v{vM26}, s[{rWS}:{rWS+3}], s{so} offen sc1", "fl")
def x_loads(X, t):
    k.e(f"""
    s_lshl_b32 s{sT0}, s{sWR}, 6
    s_add_u32 s{sT0}, s{sT0}, s{sWC}
    s_lshl_b32 s{sT1}, s{sHALF}, 1
    s_add_u32 s{sT0}, s{sT0}, s{sT1}
    s_lshl_b32 s{sT1}, s{sMT}, 7
    s_add_u32 s{sT1}, s{sT1}, s{sT0}
    s_mul_i32 s{sX}, s{sT1}, 1280
    s_mul_i32 s{sT1}, s{sDT}, 160
    s_add_u32 s{sX}, s{sX}, s{sT1}
    s_lshl_b32 s{sT0}, s{sT0}, 4
    v_lshrrev_b32 v{t}, 2, v{vL}
    v_and_b32 v{LO}, 3, v{vL}
    v_lshlrev_b32 v{t+1}, 3, v{LO}
    v_mul_u32_u24 v{XO}, 5120, v{t}
    v_add_u32 v{XO}, v{XO}, v{t+1}
    v_bfe_u32 v{X[0]}, v{t}, 1, 2
    v_xor_b32 v{LO}, v{LO}, v{X[0]}
    v_lshlrev_b32 v{LO}, 4, v{LO}
    v_mad_u32_u24 v{LO}, v{t}, s{sKs}, v{LO}
    v_lshlrev_b32 v{t}, 6, v{t}
    v_add_u32 v{t}, s{sT0}, v{t}
    """.replace("    v_mad", f"    s_movk_i32 s{sKs}, {RROW}\n    v_mad"))
    for g in range(5): k.vmem(f"buffer_load_dwordx2 {V(X[g],2)}, v{XO}, s[{rX}:{rX+3}], s{sX} offen offset:{32*g}", "ep")
def residual(X, t, U, fd=None):
    ED, EB, TKv = U, U + 10, U + 20
    k.ds(f"ds_read_b64 {V(TKv,2)}, v{t} offset:{L_TOK}", "tk")
    for reg, o_ in ((ED, 0), (EB, 160)):
        for g in range(5): k.ds(f"ds_read_b64 {V(reg+2*g,2)}, v{t+1} offset:{L_DB + o_ + 32*g}", "tk")
    k.wait_vm("ep"); k.wait_lg()
    if OPT["sp"] == 12.5 and cur[0] == "mlp": k.e(spoll(0))
    for g in range(5):
        if fd: fd.tick(1)
        if cur[0] == "ssm" and g == OPT.get("spg", 9): k.e(spoll(0))
        xf, df, bf_ = U + 22, U + 26, U + 30
        for src, dst in ((X[g], xf), (ED + 2*g, df), (EB + 2*g, bf_)):
            for h in range(2):
                k.e(f"v_lshlrev_b32 v{dst+2*h}, 16, v{src+h}\nv_and_b32 v{dst+2*h+1}, 0xffff0000, v{src+h}")
        A_ = [RES + 4*g, RES + 4*g + 2]
        def rnd():
            for a in A_: k.e(f"v_cvt_pk_bf16_f32 v{a+1}, v{a}, v{a+1}")
            for a in A_: k.e(f"v_lshlrev_b32 v{a}, 16, v{a+1}\nv_and_b32 v{a+1}, 0xffff0000, v{a+1}")
        for h, a in enumerate(A_): k.e(f"v_pk_add_f32 {V(a,2)}, {V(xf+2*h,2)}, {V(TKv,2)} op_sel:[0,0] op_sel_hi:[1,0] neg_lo:[0,1] neg_hi:[0,1]")
        rnd()
        for h, a in enumerate(A_): k.e(f"v_pk_mul_f32 {V(a,2)}, {V(a,2)}, {V(TKv,2)} op_sel:[0,1] op_sel_hi:[1,1]")
        rnd()
        for h, a in enumerate(A_): k.e(f"v_pk_mul_f32 {V(a,2)}, {V(a,2)}, {V(df+2*h,2)}")
        rnd()
        for h, a in enumerate(A_): k.e(f"v_pk_add_f32 {V(a,2)}, {V(a,2)}, {V(xf+2*h,2)}")
        for h, a in enumerate(A_): k.e(f"v_pk_add_f32 {V(a,2)}, {V(a,2)}, {V(bf_+2*h,2)}")
def residual_fill(t):
    ED = [176, 178, 180, 182, 192]; EB = [194, 196, 198, 208, 210]; TKv = 212
    U = [224, 240]
    out = [DSF(f"ds_read_b64 {V(TKv,2)}, v{t} offset:{L_TOK}", "tk")]
    for reg, o_ in ((ED, 0), (EB, 160)):
        out += [DSF(f"ds_read_b64 {V(reg[g],2)}, v{t+1} offset:{L_DB + o_ + 32*g}", "tk") for g in range(5)]
    run(out)
    out = [F(lambda: k.wait_lg("tk"), 1)]
    def chain(p_):
        x0, x1, t0, t1, d0, d1 = [U[p_ & 1] + x for x in range(6)]
        r0, r1 = RES + 2*p_, RES + 2*p_ + 1
        xi, di, bi = RES + 10 + p_, ED[p_ // 2] + (p_ & 1), EB[p_ // 2] + (p_ & 1)
        rnd = f"v_cvt_pk_bf16_f32 v{t1}, v{t0}, v{t1}\nv_lshlrev_b32 v{t0}, 16, v{t1}\nv_and_b32 v{t1}, 0xffff0000, v{t1}\n"
        return [l.strip() for l in f"""
        v_lshlrev_b32 v{x0}, 16, v{xi}
        v_and_b32 v{x1}, 0xffff0000, v{xi}
        v_sub_f32 v{t0}, v{x0}, v{TKv}
        v_sub_f32 v{t1}, v{x1}, v{TKv}
        {rnd}
        v_mul_f32 v{t0}, v{t0}, v{TKv+1}
        v_mul_f32 v{t1}, v{t1}, v{TKv+1}
        {rnd}
        v_lshlrev_b32 v{d0}, 16, v{di}
        v_and_b32 v{d1}, 0xffff0000, v{di}
        v_mul_f32 v{t0}, v{t0}, v{d0}
        v_mul_f32 v{t1}, v{t1}, v{d1}
        {rnd}
        v_lshlrev_b32 v{d0}, 16, v{bi}
        v_and_b32 v{d1}, 0xffff0000, v{bi}
        v_add_f32 v{t0}, v{x0}, v{t0}
        v_add_f32 v{t1}, v{x1}, v{t1}
        v_add_f32 v{r0}, v{t0}, v{d0}
        v_add_f32 v{r1}, v{t1}, v{d1}
        """.split("\n") if l.strip()]
    txt = []
    for p_ in range(0, 10, 2):
        for a_, b_ in zip(chain(p_), chain(p_ + 1)): txt += [a_, b_]
    return out + lines("\n".join(txt))
def hdest(typ, t):
    e_ = NE[typ]
    return [("v", SPARE[4*t + s]) for s in range(4)] if t < e_ else HRING[(t - e_) % NR]
def hload(typ, t):
    ring = hdest(typ, t); n_ = NK[typ]
    return kaddr(sT3, sHa + 2*(t // n_), t % n_, 4096), [[VM(f"buffer_load_dwordx4 {R(ring[s][0], ring[s][1], 4)}, v{vHs+s}, s[{rWS}:{rWS+3}], s{sT3} offen sc1", ("h", t))] for s in range(4)]
def h_issue(typ, ts):
    out = []
    for t in ts:
        a_, b_ = hload(typ, t); out.append(a_ + b_[0]); out += b_[1:]
    return out

def ones():
    k.e(f"v_mov_b32 v{vT+6}, 0x3f803f80")
    for i in range(4): k.e(f"v_accvgpr_write_b32 a{aONE+i}, v{vT+6}")

t = vT
WOFF["mlp"] = f"""
    v_and_b32 v{t+2}, 2, v{t}
    v_xor_b32 v{t+2}, v{t+1}, v{t+2}
    v_mul_u32_u24 v{t+3}, 3072, v{t}
    v_lshl_add_u32 v{vDW}, v{t+2}, 4, v{t+3}
    v_xor_b32 v{vDW+1}, 64, v{vDW}
    s_mul_i32 s{sB0}, s{sW}, {16*3072}
    s_mul_i32 s{sT0}, s{sNT}, 384
    s_add_u32 s{sB0}, s{sB0}, s{sT0}
    s_add_u32 s{sB2}, s{sB0}, {8*3072}
    s_lshl_b32 s{sLW}, s{sW}, 11
    """
def path_mlp():
    typ = "mlp"; t = vT
    late_common(typ)
    k.e(f"""
    v_lshrrev_b32 v{t}, 2, v{vN}
    v_lshl_add_u32 v{t+1}, v{vQ}, 3, v{t}
    v_lshlrev_b32 v{t+1}, 7, v{t+1}
    v_and_b32 v{t+2}, 3, v{vN}
    v_lshl_add_u32 v{t+1}, v{t+2}, 3, v{t+1}
    v_lshrrev_b32 v{t}, 1, v{t}
    v_and_b32 v{t+2}, 1, v{vQ}
    v_lshl_add_u32 v{t}, v{t+2}, 1, v{t}
    s_lshl_b32 s{sT0}, s{sKs}, 12
    s_add_u32 s{sT0}, s{sT0}, {L_W}
    v_add_u32 v{t+1}, s{sT0}, v{t+1}
    s_mul_i32 s{sT2}, s{sWR}, 6
    """)
    for i in range(4):
        k.e(f"""
        s_add_u32 s{sT3}, s{sT2}, {i}
        s_lshr_b32 s{sT0}, s{sT3}, 2
        s_lshl_b32 s{sT0}, s{sT0}, 13
        s_and_b32 s{sT3}, s{sT3}, 3
        v_xor_b32 v{t+2}, s{sT3}, v{t}
        v_lshl_add_u32 v{t+2}, v{t+2}, 5, v{t+1}
        v_add_u32 v{vWA+i}, s{sT0}, v{t+2}
        v_xor_b32 v{vWA+4+i}, 4096, v{vWA+i}
        """)
    Kc = 2 * 0.7978845608028654 * 1.4426950408889634
    k.e(f"s_mov_b32 s{sK}, {hx(-Kc*0.044715)}\ns_mov_b32 s{sK+1}, {hx(-Kc)}")
    ones()
    if not OPT['rsp']: xr_setup()
    if OPT['rpown'] == typ: repack_setup(typ)
    small_loads(typ)
    touch_setup()
    p2_addr(typ)
    stamp(14)
    jobs, vq = common_jobs(typ)
    k.e(f"s_mul_i32 s{sT0}, s{sWR}, 192\nv_lshlrev_b32 v{t+3}, 3, v{vQ}\nv_add_u32 v{t+3}, s{sT0}, v{t+3}")
    jobs["tail"] += [DSF(f"ds_read_b64 {V(vB1+2*i,2)}, v{t+3} offset:{L_B1 + 32*i}") for i in range(6)]
    left = main_loop(typ, jobs, vq, [])
    TK, CS, P2 = stats(typ)
    stamp()
    if OPT["rf_mlp"] >= 20:
        if OPT["rf_mlp"] == 20: jobs["rfchk"]()
        left = [op for tk in range(7) for op in wload(tk)]
    pend = [(6 - (len(left) - 1 - x) // 5, op) for x, op in enumerate(left)] + [(tk, op) for tk in range(7, NK[typ]) for op in wload(tk)]
    if 5 in OPT.get("x", ()):
        pend = []; k.seen.update(("w", x) for x in range(12))
    ne = OPT.get("ne_mlp", 0)
    fd = Feeder([op for _, op in pend[:ne]], 29 * 12 // max(1, ne))
    pend = pend[ne:]
    h_base()
    k.e(f"""
    s_mul_i32 s{sT1}, s{sT1}, 6
    s_add_u32 s{sT0}, s{sT0}, s{sT1}
    s_mul_i32 s{sT1}, s{sWR}, 3
    s_add_u32 s{sT0}, s{sT0}, s{sT1}
    s_lshl_b32 s{sT0}, s{sT0}, 12
    s_add_u32 s{sH}, s{sH}, s{sT0}
    """)
    stats_sum(typ, CS, P2)
    B = 100
    for i in range(6):
        for h in range(2):
            k.e(f"v_lshlrev_b32 v{B+4*i+2*h}, 16, v{vB1+2*i+h}\nv_and_b32 v{B+4*i+2*h+1}, 0xffff0000, v{vB1+2*i+h}")
    TM = 124
    OUT = [88, 92]
    XT = 96
    if OPT["rf_mlp"] > 20: k.e(f"v_mov_b32 v{vT+6}, v{RFV}")
    flag_addr()
    x_loads([RES + 10 + 2*g for g in range(5)], XT)
    k.e(f"s_add_u32 s{sB0}, s{sH}, {HB}")
    n_ = 0
    for hf, u, j in [(hf, u, 2*hf + jj) for hf in (1, 0) for u in range(3) for jj in range(2)]:
        if True:
            o = OUT[n_ & 1]; n_ += 1
            if n_ == 2 and "rpflag" in jobs: jobs["rpflag"]()
            if n_ == OPT["rfg"] and OPT["rf_mlp"] > 20: k.vmem(f"buffer_load_dwordx2 {V(vT+4,2)}, v{vT+6}, s[{rWS}:{rWS+3}], 0 offen sc1", "rfv")
            if n_ == OPT["fa"]: put_flag(("hs", 1), sLW)
            if n_ == OPT.get('sp', 12): k.e(spoll(0))
            k.raw(".p2align 3")
            prs = [(2*u + ii, h) for ii in range(2) for h in range(2)]
            Z = [acc(i, j) + 2*h for i, h in prs]
            T1 = [TM + 2*x for x in range(4)]; T2 = [TM + 8 + 2*x for x in range(4)]
            for x, (i, h) in enumerate(prs):
                k.e(f"v_pk_fma_f32 {V(T1[x],2)}, {V(CS+4*i+2*h,2)}, {V(TK+4*j+2,2)}, {V(B+4*i+2*h,2)} op_sel:[0,1,0] op_sel_hi:[1,1,1] neg_lo:[0,1,0] neg_hi:[0,1,0]")
            for x in range(4):
                k.e(f"v_pk_fma_f32 {V(Z[x],2)}, {V(Z[x],2)}, {V(TK+4*j+2,2)}, {V(T1[x],2)} op_sel:[0,0,0] op_sel_hi:[1,0,1]")
            fd.tick(12)
            for x in range(4): k.e(f"v_pk_mul_f32 {V(T1[x],2)}, {V(Z[x],2)}, {V(Z[x],2)}")
            for x in range(4): k.e(f"v_pk_fma_f32 {V(T1[x],2)}, {V(T1[x],2)}, s[{sK}:{sK+1}], s[{sK}:{sK+1}] op_sel:[0,0,1] op_sel_hi:[1,0,1]")
            for x in range(4): k.e(f"v_pk_mul_f32 {V(T1[x],2)}, {V(T1[x],2)}, {V(Z[x],2)}")
            for x in range(4): k.e(f"v_exp_f32 v{T2[x]}, v{T1[x]}\nv_exp_f32 v{T2[x]+1}, v{T1[x]+1}")
            fd.tick(12)
            for x in range(4): k.e(f"v_pk_add_f32 {V(T2[x],2)}, {V(T2[x],2)}, 1.0 op_sel_hi:[1,0]")
            for x in range(4): k.e(f"v_rcp_f32 v{T2[x]}, v{T2[x]}\nv_rcp_f32 v{T2[x]+1}, v{T2[x]+1}")
            if n_ < 12: fd.tick(12)
            for x in range(4): k.e(f"v_pk_mul_f32 {V(Z[x],2)}, {V(Z[x],2)}, {V(T2[x],2)}")
            for x in range(4): k.e(f"v_cvt_pk_bf16_f32 v{o+x}, v{Z[x]}, v{Z[x]+1}")
            if n_ == 12: fd.flush()
            so = sB0 if hf else sH
            k.vmem(f"buffer_store_dwordx4 {V(o,4)}, v{vL16}, s[{rWS}:{rWS+3}], s{so} offen offset:{(j & 1)*1024} sc1", ("hs", hf))
            if j & 1 and u < 2: k.e(f"s_add_u32 s{so}, s{so}, 4096")
    stamp()
    if OPT["rf_mlp"] > 20:
        k.wait_vm("rfv"); check("rf_mlp", vT + 6, vT + 4)
    run([op for _, op in pend[:OPT["wfirst"]]]); pend = pend[OPT["wfirst"]:]
    if OPT["wres"] >= 0:
        ops = [op for _, op in pend[:OPT["wres"]]]; pend = pend[OPT["wres"]:]
        residual([RES + 10 + 2*g for g in range(5)], XT, 100, Feeder([flat(ops[(x * len(ops)) // 5:((x + 1) * len(ops)) // 5]) for x in range(5)], 1))
        if OPT["sp"] == 13: k.e(spoll(0))
    if OPT.get("cnt"): k.e("s_mov_b32 s101, 0")
    scheck("hm" + typ, 0)
    if OPT.get("cnt"): k.e(f"s_nop 0\nv_writelane_b32 v{vST}, s101, 59")
    stamp(7)
    assert OPT["hw"] == NR
    run(h_issue(typ, range(OPT["hw"])))
    res = residual_fill(XT) if OPT['wres'] < 0 else []
    run([op for _, op in pend[:OPT["post0"]]]); pend = pend[OPT["post0"]:]
    stamp(8)
    phase2(typ, pend, h_issue(typ, range(OPT["hw"], NR)), res, ("hs", 0), 0)

def cmul_acc(d, a, b, c):
    k.e(f"v_pk_fma_f32 {V(d,2)}, {V(a,2)}, {V(b,2)}, {V(c,2)} op_sel:[0,0,0] op_sel_hi:[1,0,1]")
    k.e(f"v_pk_fma_f32 {V(d,2)}, {V(a,2)}, {V(b,2)}, {V(d,2)} op_sel:[1,1,0] op_sel_hi:[0,1,1] neg_lo:[0,1,0]")

PR = 100
def masked(m, ins):
    def f():
        k.e(f"s_mov_b32 exec_lo, {m}\ns_mov_b32 exec_hi, {m}"); k.ds(ins); k.e("s_mov_b64 exec, -1")
    return F(f, 4, ds=True)
def power(KK, al, be, t):
    x, y, c_, s_ = t+10, t+11, t+12, t+13
    return lines(f"""
    v_mul_f32 v{y}, v{KK}, v{be}
    v_mul_f32 v{x}, v{KK}, v{al}
    v_fract_f32 v{y}, v{y}
    v_cos_f32 v{c_}, v{y}
    v_sin_f32 v{s_}, v{y}
    v_exp_f32 v{x}, v{x}
    s_nop 0
    v_mul_f32 v{t+14}, v{x}, v{c_}
    v_mul_f32 v{t+15}, v{x}, v{s_}
    """)
def table_a():
    t = 80; CH_ = vB1 + 10
    lr, li, dt, al, be, KK, AD = PR, PR+1, PR+2, t+8, t+9, t, t+1
    x, y, c_, s_ = t+10, t+11, t+12, t+13
    LOG2E = 1.4426950408889634
    fl = lines(f"""
    v_lshlrev_b32 v{dt}, 16, v{dt}
    v_lshlrev_b32 v{lr}, 16, v{lr}
    v_mul_f32 v{dt}, {hx(LOG2E)}, v{dt}
    v_exp_f32 v{dt}, v{dt}
    v_lshlrev_b32 v{li}, 16, v{li}
    {bfr(dt, dt)}
    v_mul_f32 v{al}, v{dt}, v{lr}
    v_mul_f32 v{be}, v{dt}, v{li}
    v_mul_f32 v{al}, {hx(LOG2E)}, v{al}
    v_mul_f32 v{be}, 0.15915494, v{be}
    v_lshlrev_b32 v{KK}, 6, v{CH_+1}
    v_max_u32 v{KK}, 1, v{KK}
    v_cvt_f32_u32 v{KK}, v{KK}
    v_lshlrev_b32 v{AD}, 3, v{CH_}
    """)
    fl.append(DSF(f"ds_write_b64 v{AD}, {V(al,2)} offset:{L_EX}"))
    fl.append(note(mk, 'ab'))
    fl += power(KK, al, be, t)
    fl += lines(f"""
    v_lshlrev_b32 v{AD}, 3, v{CH_+1}
    v_min_u32 v{x}, 1, v{CH_+1}
    v_mad_u32_u24 v{AD}, v{x}, 40, v{AD}
    v_lshl_add_u32 v{AD}, v{CH_}, 6, v{AD}
    """)
    fl.append(DSF(f"ds_write_b64 v{AD}, {V(t+14,2)} offset:{L_CH}"))
    fl += lines(f"""
    v_mul_f32 v{y}, v{lr}, v{lr}
    v_add_f32 v{x}, -1.0, v{t+14}
    v_fma_f32 v{y}, v{li}, v{li}, v{y}
    v_rcp_f32 v{y}, v{y}
    v_mul_f32 v{c_}, v{x}, v{lr}
    v_fma_f32 v{c_}, v{t+15}, v{li}, v{c_}
    v_mul_f32 v{s_}, v{t+15}, v{lr}
    v_fma_f32 v{s_}, -v{x}, v{li}, v{s_}
    v_add_f32 v{y}, v{y}, v{y}
    v_mul_f32 v{t+16}, v{c_}, v{y}
    v_mul_f32 v{t+17}, v{s_}, v{y}
    """)
    fl += lines(f"v_min_u32 v{x}, 1, v{CH_+1}\nv_mul_u32_u24 v{x}, 0x30000, v{x}\nv_add_u32 v{AD}, v{AD}, v{x}")
    fl.append(DSF(f"ds_write_b64 v{AD}, {V(t+16,2)} offset:{L_CH + 8}"))
    return fl
def table_rd():
    t = 80
    return [DSF(f"ds_read_b64 {V(PR+4+2*u,2)}, v{t+3} offset:{L_EX + u*128}") for u in range(5)]
def table_b():
    t = 80
    K1, APW, R1 = t+7, t+4, t+5
    k.e(f"""
    v_lshrrev_b32 v{t+2}, 4, v0
    v_lshlrev_b32 v{t+3}, 3, v{t+2}
    v_lshlrev_b32 v{K1}, 2, v{vN}
    v_cvt_f32_u32 v{K1}, v{K1}
    v_lshlrev_b32 v{APW}, 7, v{t+2}
    v_lshl_add_u32 v{APW}, v{vN}, 3, v{APW}
    v_ffbl_b32 v{R1}, v{vN}
    v_lshlrev_b32 v{R1}, 3, v{R1}
    v_lshl_add_u32 v{R1}, v{t+2}, 6, v{R1}
    v_bcnt_u32_b32 v{t+6}, v{vN}, -1
    v_min_u32 v{t+6}, 1, v{t+6}
    v_mul_u32_u24 v{t+6}, 0x30000, v{t+6}
    v_add_u32 v{R1}, v{R1}, v{t+6}
    """)
    fl = []
    for u in range(5):
        fl += power(K1, PR+4+2*u, PR+5+2*u, t)
        fl.append(DSF(f"ds_write_b64 v{APW}, {V(t+14,2)} offset:{L_PW + u*2048}"))
        fl.append(DSF(f"ds_write_b64 v{R1}, {V(t+14,2)} offset:{L_CH + 16 + u*1024}"))
    return fl

WOFF["ssm"] = f"""
    v_and_b32 v{t+2}, 6, v{t}
    v_or_b32 v{t+3}, s{sWC}, v{t+2}
    v_xor_b32 v{t+1}, v{t+1}, v{t+3}
    v_lshlrev_b32 v{t+1}, 4, v{t+1}
    v_and_b32 v{t+3}, 1, v{t}
    v_lshl_add_u32 v{t+2}, v{t+2}, 2, v{t+3}
    v_mul_u32_u24 v{t+2}, 1280, v{t+2}
    v_add_u32 v{vDW}, v{t+2}, v{t+1}
    v_add_u32 v{t+2}, 32, v{t}
    v_mul_u32_u24 v{t+2}, 1280, v{t+2}
    v_add_u32 v{vDW+1}, v{t+2}, v{t+1}
    s_mul_i32 s{sT0}, s{sNT}, 80
    s_mul_i32 s{sT1}, s{sWR}, 40
    s_add_u32 s{sT0}, s{sT0}, s{sT1}
    s_mul_i32 s{sB0}, s{sT0}, 1280
    s_add_u32 s{sB2}, s{sB0}, 5120
    s_mul_i32 s{sLW}, s{sWR}, 10240
    s_lshl_b32 s{sT0}, s{sWC}, 10
    s_add_u32 s{sLW}, s{sLW}, s{sT0}
    """
def path_ssm():
    typ = "ssm"; t = vT
    late_common(typ)
    k.e(f"""
    v_and_b32 v{t+1}, 1, v{vN}
    v_lshrrev_b32 v{t+2}, 2, v{vN}
    v_lshl_add_u32 v{t+2}, v{t+2}, 1, v{t+1}
    v_xor_b32 v{t}, v{t+4}, v{t+2}
    v_lshlrev_b32 v{t}, 4, v{t}
    v_lshl_add_u32 v{t}, v{t+1}, 10, v{t}
    v_lshrrev_b32 v{t+2}, 1, v{vN}
    v_lshl_add_u32 v{t}, v{t+2}, 7, v{t}
    s_mul_i32 s{sT0}, s{sWR}, 10240
    s_add_u32 s{sT0}, s{sT0}, {L_W}
    v_add_u32 v{vWA}, s{sT0}, v{t}
    v_xor_b32 v{vWA+1}, 64, v{vWA}
    """)
    ones()
    if not OPT['rsp']: xr_setup()
    k.e(f"""
    v_mul_u32_u24 v{vB1+11}, 820, v0
    v_lshrrev_b32 v{vB1+11}, 16, v{vB1+11}
    v_min_u32 v{vB1+11}, 2, v{vB1+11}
    v_mul_u32_u24 v{t+1}, 80, v{vB1+11}
    v_sub_u32 v{vB1+10}, v0, v{t+1}
    v_min_u32 v{vB1+10}, 79, v{vB1+10}
    s_mul_i32 s{sT0}, s{sNT}, 160
    v_lshlrev_b32 v{t+1}, 1, v{vB1+10}
    s_mov_b32 s{rT+2}, 1280
    s_mov_b32 s{rT+3}, 0x20000
    """)
    for pi, ptr in enumerate((pLre, pLim, pLdt)):
        k.e(f"s_mov_b32 s{rT}, s{ptr}\ns_mov_b32 s{rT+1}, s{ptr+1}")
        k.vmem(f"buffer_load_ushort v{PR+pi}, v{t+1}, s[{rT}:{rT+3}], s{sT0} offen", "par")
    if OPT['rpown'] == typ: repack_setup(typ)
    small_loads(typ)
    c_setup()
    p2_addr(typ)
    stamp(14)
    jobs, vq = common_jobs(typ)
    jobs[("wait", 0)] = ["par"]
    tj = table_a() + [gate(lambda: curblk[0] % 2 == 1 and curblk[0] > mk['ab'])] + table_rd() + [note(mk, 'rd'), gate(lambda: curblk[0] > mk['rd'])] + table_b()
    vC0, vC1, vP0, vP1, vE0, vE1, vGc, vGr, vPub = vB1, vB1+1, vB1+2, vB1+3, vB1+4, vB1+5, vB1+6, vB1+7, vB1+8
    CH_, WH_ = vB1 + 10, vB1 + 11
    vG = 114
    sVal = [28, 30, 36, 38, 40]
    u_ = 96
    ad = lines(f"""
    s_mul_i32 s{sT0}, s{sWR}, 40
    v_lshlrev_b32 v{u_}, 3, v{vQ}
    v_add_u32 v{u_}, s{sT0}, v{u_}
    v_lshlrev_b32 v{u_+1}, 1, v{vQ}
    v_add_u32 v{u_+1}, s{sT0}, v{u_+1}
    v_add_u32 v{u_+1}, 32, v{u_+1}
    v_lshlrev_b32 v{vC0}, 6, v{u_}
    v_lshlrev_b32 v{vC1}, 6, v{u_+1}
    v_lshlrev_b32 v{u_+2}, 3, v{vN}
    v_lshl_add_u32 v{vP0}, v{u_}, 7, v{u_+2}
    v_lshl_add_u32 v{vP1}, v{u_+1}, 7, v{u_+2}
    s_mul_i32 s{sT0}, s{sWC}, 640
    v_lshlrev_b32 v{vE0}, 3, v{u_}
    v_lshlrev_b32 v{vE1}, 3, v{u_+1}
    v_add_u32 v{vE0}, s{sT0}, v{vE0}
    v_add_u32 v{vE1}, s{sT0}, v{vE1}
    v_sub_u32 v{u_+2}, 15, v{vN}
    v_min_u32 v{u_+2}, 1, v{u_+2}
    v_mul_u32_u24 v{u_+2}, 0x30000, v{u_+2}
    v_add_u32 v{vB1+9}, v{u_+2}, v{vE0}
    v_add_u32 v119, v{u_+2}, v{vE1}
    v_lshlrev_b32 v{vGc}, 3, v{CH_}
    v_lshlrev_b32 v{vGr}, 6, v{CH_}
    v_lshlrev_b32 v{u_}, 4, v{CH_}
    v_lshl_add_u32 v{vPub}, v{WH_}, 26, v{u_}
    v_mul_u32_u24 v{u_+2}, 5, v{WH_}
    v_sub_u32 v{u_+2}, s{sMT}, v{u_+2}
    """)
    for i in range(5):
        ad += lines(f"""
        v_add_u32 v{u_+2}, -1, v{u_+2}
        v_mul_i32_i24 v{vG+i}, 1280, v{u_+2}
        v_cmp_le_i32 s[{sVal[i]}:{sVal[i]+1}], 0, v{u_+2}
        v_add_u32 v{vG+i}, v{vG+i}, v{u_}
        v_min_u32 v{vG+i}, {OOB}, v{vG+i}
        """)
    for f in ad: f()
    stamp(61)
    tj = tj + lines(f"""
    s_mul_i32 s{sHw}, s{sNT}, {16*1280}
    s_add_u32 s{sHw}, s{sHw}, {WS_E}
    s_mul_i32 s{sH}, s{sMT}, 1280
    s_add_u32 s{sH}, s{sH}, s{sHw}
    """)
    if 7 in OPT.get('x', ()): tj = tj[-4:]
    left = main_loop(typ, jobs, vq, tj)
    vG2 = 8
    for i in range(6): k.e(f"v_mov_b32 v{vG2+i}, v{vG+i}")
    TK, CS, P2 = stats(typ)
    stamp()
    fd = Feeder(left, 200 // max(1, len(left)))
    wd = [op for i in range(5) for op in c_dma(i, rT2, "cim")]; e1 = 0; ew = OPT["cw"]
    if 4 in OPT.get("x", ()): wd = wd[:1]; ew = 1
    slots = [(i, h) for i in range(5) for h in range(2)]
    def rec(i, h): return (vC0, L_CH + (2*i + h)*64) if i < 4 else (vC1, L_CH + h*64)
    LC = 100
    stats_sum(typ, CS, P2)
    for x, (i, h) in enumerate(slots):
        a_, o_ = rec(i, h); k.ds(f"ds_read_b128 {V(LC+4*x,4)}, v{a_} offset:{o_}", ("lc", x))
    k.raw(".p2align 3")
    for x, (i, h) in enumerate(slots):
        fd.tick(8)
        for j in range(4):
            z = acc(i, j) + 2*h
            k.e(f"v_pk_fma_f32 {V(z,2)}, {V(CS+4*i+2*h,2)}, {V(TK+4*j,2)}, {V(z,2)} op_sel:[0,0,0] op_sel_hi:[1,0,1] neg_lo:[0,1,0] neg_hi:[0,1,0]")
        for j in range(4):
            z = acc(i, j) + 2*h
            k.e(f"v_pk_mul_f32 {V(z,2)}, {V(z,2)}, {V(TK+4*j,2)} op_sel:[0,1] op_sel_hi:[1,1]")
    EE = 140; TMP = 88
    MU = [t, t + 20]
    def load_mu(st):
        for x, (i, h) in enumerate(slots):
            a_, o_ = rec(i, h); k.ds(f"ds_read_b64 {V(MU[st & 1]+2*x,2)}, v{a_} offset:{o_ + 16 + 8*st}", ("mu", st))
    k.wait_lg()
    load_mu(0); load_mu(1)
    def ereg(x): return EE + 2*x
    def treg(x): return (240 + 2*x) if x < 8 else (TMP + 2*(x - 8))
    k.raw(".p2align 3")
    for x, (i, h) in enumerate(slots): cmul_acc(ereg(x), acc(i,0)+2*h, LC+4*x, acc(i,1)+2*h)
    fd.tick(20)
    for x, (i, h) in enumerate(slots): cmul_acc(treg(x), ereg(x), LC+4*x, acc(i,2)+2*h)
    fd.tick(20)
    for x, (i, h) in enumerate(slots): cmul_acc(ereg(x), treg(x), LC+4*x, acc(i,3)+2*h)
    PWv = t
    for st, sh in enumerate((1, 2, 4, 8)):
        fd.tick(20)
        k.raw(".p2align 3")
        for x in range(10):
            k.e(f"v_mov_b32_dpp v{treg(x)}, v{ereg(x)} row_shr:{sh} row_mask:0xf bank_mask:0xf bound_ctrl:0")
            k.e(f"v_mov_b32_dpp v{treg(x)+1}, v{ereg(x)+1} row_shr:{sh} row_mask:0xf bank_mask:0xf bound_ctrl:0")
        fd.tick(20)
        k.wait_lg(("mu", st))
        k.raw(".p2align 3")
        for x in range(10): cmul_acc(ereg(x), treg(x), MU[st & 1]+2*x, ereg(x))
        if st < 2: load_mu(st + 2)
        if st == 2:
            for x, (i, h) in enumerate(slots):
                k.ds(f"ds_read_b64 {V(PWv+2*x,2)}, v{vP0 if i < 4 else vP1} offset:{L_PW + ((2*i+h)*128 if i < 4 else h*128)}", "pw")
    for i in range(5):
        k.ds(f"ds_write_b128 v{vB1+9 if i < 4 else 13}, {V(EE+4*i,4)} offset:{L_EX + (16*i if i < 4 else 0)}")
    ch = t + 20
    E0, E1, LL, ET, GA = ch, ch+2, ch+4, ch+8, 14
    GA = [ch+8, ch+12, ch+16, ch+20, ch+24]
    k.ds(f"ds_read_b128 {V(LL,4)}, v{vGr} offset:{L_CH+48}", "e")
    k.e(f"v_mov_b32 v{ET+1}, s{sNonce}\nv_mov_b32 v{ET+3}, s{sNonce}")
    fd.flush()
    k.wait_lg()
    k.e("s_barrier")
    k.ds(f"ds_read_b64 {V(E0,2)}, v{vGc} offset:{L_EX}", "e")
    k.ds(f"ds_read_b64 {V(E1,2)}, v{vGc} offset:{L_EX+640}", "e")
    k.wait_lg()
    cmul_acc(E1, E0, LL, E1)
    k.e(f"v_mov_b32 v{ET}, v{E1}\nv_mov_b32 v{ET+2}, v{E1+1}")
    k.vmem(f"buffer_store_dwordx4 {V(ET,4)}, v{vPub}, s[{rWS}:{rWS+3}], s{sH} offen sc1", "e")
    stamp()
    def gather(track):
        for i in range(5):
            tx = f"buffer_load_dwordx4 {V(GA[i],4)}, v{vG2+i}, s[{rWS}:{rWS+3}], s{sHw} offen sc1"
            k.vmem(tx, "ga") if track else k.e(tx)
    k.e("s_nop 1")
    k.wait_vm("cre")
    if OPT["gpos"] == 0: gather(True)
    c_read(0, [4, 5, 6, 7, 92, 93])
    fd = Feeder(wd[e1:e1 + ew], 1)
    per = ew / (13.0 - OPT['wskip2'])
    done = [0.0]
    cnt = [0]
    def tk_():
        cnt[0] += 1
        if cnt[0] == OPT["gpos"]: gather(True)
        if cnt[0] <= OPT["wskip2"]: return
        if cnt[0] == OPT["wskip2"] + 1: k.wait_lg()
        done[0] += per; n_ = int(done[0]); done[0] -= n_; fd.tick(n_); k.raw(".p2align 3")
    WT, W2 = 14, 16
    for x in range(10):
        k.e(f"v_mov_b32_dpp v{treg(x)}, v{ereg(x)} row_shr:1 row_mask:0xf bank_mask:0xf bound_ctrl:0")
        k.e(f"v_mov_b32_dpp v{treg(x)+1}, v{ereg(x)+1} row_shr:1 row_mask:0xf bank_mask:0xf bound_ctrl:0")
    def cmul(d, a, b, tmp):
        k.e(f"v_pk_mul_f32 {V(tmp,2)}, {V(a,2)}, {V(b,2)} op_sel:[0,0] op_sel_hi:[1,0]")
        k.e(f"v_pk_fma_f32 {V(d,2)}, {V(a,2)}, {V(b,2)}, {V(tmp,2)} op_sel:[1,1,0] op_sel_hi:[0,1,1] neg_lo:[0,1,0]")
    tk_()
    for x in range(10): cmul(treg(x), treg(x), LC+4*x+2, ereg(x))
    tk_()
    for x in range(10): cmul(PWv+2*x, PWv+2*x, LC+4*x+2, ereg(x))
    for x, (i, h) in enumerate(slots):
        tk_()
        for j in range(4): cmul(acc(i,j)+2*h, acc(i,j)+2*h, LC+4*x+2, EE+2*j)
    tk_()
    cmul(WT, LL+2, LL+2, W2); cmul(WT, WT, WT, W2); cmul(WT, WT, LL+2, W2); cmul(W2+2, WT, WT, W2)
    k.e(f"""
    v_cmp_eq_u32 vcc, 2, v{WH_}
    v_mov_b32 v{W2}, 1.0
    v_mov_b32 v{W2+1}, 0
    v_cndmask_b32 v{WT}, v{WT}, v{W2+2}, vcc
    v_cndmask_b32 v{WT+1}, v{WT+1}, v{W2+3}, vcc
    v_cmp_eq_u32 vcc, 0, v{WH_}
    v_mul_u32_u24 v{W2+2}, 640, v{WH_}
    v_add_u32 v{vGc}, v{vGc}, v{W2+2}
    v_cndmask_b32 v{WT}, v{WT}, v{W2}, vcc
    v_cndmask_b32 v{WT+1}, v{WT+1}, v{W2+1}, vcc
    v_cndmask_b32 v{E0}, v{W2+1}, v{E0}, vcc
    v_cndmask_b32 v{E0+1}, v{W2+1}, v{E0+1}, vcc
    s_mul_i32 s{sT0}, s{sWC}, 1280
    v_add_u32 v{vE0}, s{sT0}, v{vE0}
    v_add_u32 v{vE1}, s{sT0}, v{vE1}
    """)
    fd.flush()
    h_base()
    k.e(f"""
    s_mul_i32 s{sT1}, s{sT1}, 5
    s_add_u32 s{sT0}, s{sT0}, s{sT1}
    s_add_u32 s{sT0}, s{sT0}, 12
    s_lshl_b32 s{sT0}, s{sT0}, 12
    s_add_u32 s{sH}, s{sH}, s{sT0}
    s_add_u32 s{sB2}, s{sH}, {4*4096}
    s_lshl_b32 s{sT0}, s{sWR}, 9
    s_add_u32 s{sB2}, s{sB2}, s{sT0}
    v_lshrrev_b32 v27, 1, v{vQ}
    v_lshlrev_b32 v27, 10, v27
    v_and_b32 v98, 31, v{vL}
    v_lshl_add_u32 v27, v98, 4, v27
    s_lshl_b32 s{sT0}, s{sWR}, 13
    s_add_u32 s{sH}, s{sH}, s{sT0}
    s_add_u32 s{sB0}, s{sH}, 4096
    """)
    stamp(60)
    k.wait_vm("ga")
    k.label("L_carry_chk")
    k.e(f"s_mov_b64 s[{sEx}:{sEx+1}], 0")
    for i in range(5):
        k.e(f"""
        v_cmp_ne_u32 vcc, s{sNonce}, v{GA[i]+1}
        v_cmp_ne_u32 s[{sT0}:{sT1}], s{sNonce}, v{GA[i]+3}
        s_or_b64 vcc, vcc, s[{sT0}:{sT1}]
        s_and_b64 vcc, vcc, s[{sVal[i]}:{sVal[i]+1}]
        s_or_b64 s[{sEx}:{sEx+1}], s[{sEx}:{sEx+1}], vcc
        """)
    k.e(f"""
    s_cmp_eq_u64 s[{sEx}:{sEx+1}], 0
    s_cbranch_scc1 L_carry_done
    s_sub_u32 s{sSpin}, s{sSpin}, 1
    s_cbranch_scc1 L_end
    """)
    gather(False)
    k.e("s_waitcnt vmcnt(0)\ns_branch L_carry_chk")
    k.label("L_carry_done")
    stamp()
    for i in range(5): k.e(f"v_mov_b32 v{GA[i]+1}, v{GA[i]+2}")
    for i in (3, 2, 1, 0): cmul_acc(GA[i], GA[i+1], LL+2, GA[i])
    cmul(GA[0], GA[0], WT, W2)
    cmul_acc(E0, GA[0], LL, E0)
    k.ds(f"ds_write_b64 v{vGc}, {V(GA[0],2)} offset:{L_PW}")
    k.ds(f"ds_write_b64 v{vGc}, {V(E0,2)} offset:{L_PW + 1920}")
    k.wait_lg()
    k.e("s_barrier")
    XS_ = [80, 82, 84, 86, 92]; XT = 94
    x_loads(XS_, XT)
    def pb(g, o): return 96 + o - 16 if (g == 2 and o >= 16) else PB[g] + o
    PB = [EE, ch, 4]
    for i in range(5):
        for g in range(3):
            k.ds(f"ds_read_b128 {V(pb(g, 4*i),4)}, v{vE0 if i < 4 else vE1} offset:{L_PW + 640*g + (16*i if i < 4 else 0)}", ("pb", i))
    k.raw(".p2align 3")
    for x in range(10):
        if x % 2 == 0: k.wait_lg(("pb", x // 2)); k.raw(".p2align 3")
        k.e(f"v_pk_add_f32 {V(ereg(x),2)}, {V(ereg(x),2)}, {V(PB[1]+2*x,2)}")
        k.e(f"v_pk_add_f32 {V(ereg(x),2)}, {V(ereg(x),2)}, {V(pb(2, 2*x),2)}")
        cmul_acc(treg(x), ereg(x), PWv+2*x, treg(x))
    held = []
    for hf in range(2):
        OA = [(60, 64), (68, 72)] if hf == 0 else [(40, 44), (48, 52)]
        OE = 76 if hf == 0 else 56
        for jj in range(2):
            j = 2*hf + jj
            k.raw(".p2align 3")
            for x, (i, h) in enumerate(slots):
                prev = treg(x) if j == 0 else acc(i, j-1) + 2*h
                cmul_acc(acc(i,j)+2*h, prev, LC+4*x, acc(i,j)+2*h)
            oa, ob = OA[jj]
            for i in range(4): k.e(f"v_cvt_pk_bf16_f32 v{oa+i}, v{acc(i,j)}, v{acc(i,j)+2}")
            for i in range(4): k.e(f"v_cvt_pk_bf16_f32 v{ob+i}, -v{acc(i,j)+1}, -v{acc(i,j)+3}")
            k.e(f"v_cvt_pk_bf16_f32 v{OE+2*jj}, v{acc(4,j)}, v{acc(4,j)+2}")
            k.e(f"v_cvt_pk_bf16_f32 v{OE+2*jj+1}, -v{acc(4,j)+1}, -v{acc(4,j)+3}")
            k.vmem(f"buffer_store_dwordx4 {V(oa,4)}, v{vL16}, s[{rWS}:{rWS+3}], s{sH} offen offset:{jj*1024} sc1", ("hs", hf))
            k.vmem(f"buffer_store_dwordx4 {V(ob,4)}, v{vL16}, s[{rWS}:{rWS+3}], s{sB0} offen offset:{jj*1024} sc1", ("hs", hf))
        k.e(f"""
        s_nop 1
        v_permlane32_swap_b32 v{OE}, v{OE+2}
        v_permlane32_swap_b32 v{OE+1}, v{OE+3}
        s_nop 1
        v_permlane16_swap_b32 v{OE}, v{OE+1}
        v_permlane16_swap_b32 v{OE+2}, v{OE+3}
        """)
        k.vmem(f"buffer_store_dwordx4 {V(OE,4)}, v27, s[{rWS}:{rWS+3}], s{sB2} offen sc1", ("hs", hf))
        if hf == 0: k.e(f"s_add_u32 s{sH}, s{sH}, {HB}\ns_add_u32 s{sB0}, s{sB0}, {HB}\ns_add_u32 s{sB2}, s{sB2}, {HB}")
    stamp()
    if ew < 25:
        run(wd[ew:])
    flag_addr()
    if MV:
        u_ = 156
        k.e(f"""
        v_min_u32 v{u_}, {3 + 4*MV}, v{vL}
        s_add_u32 s{sT0}, s{sFA}, {9*128 + 16}
        v_and_b32 v{u_+1}, 1, v{u_}
        v_lshlrev_b32 v{u_+1}, 3, v{u_+1}
        v_and_b32 v{u_+2}, 2, v{u_}
        v_lshl_add_u32 v{u_+1}, v{u_+2}, 4, v{u_+1}
        v_add_u32 v{vF}, s{sT0}, v{u_+1}
        s_mul_i32 s{sT0}, s{sW}, 24
        s_lshr_b32 s{sT1}, s{sDT}, 2
        s_add_u32 s{sT0}, s{sT0}, s{sT1}
        s_lshl_b32 s{sT0}, s{sT0}, 7
        s_add_u32 s{sT0}, s{sT0}, {WS_RF + 16384 + (12 - MV - 1)*256}
        v_lshrrev_b32 v{u_+1}, 2, v{u_}
        v_lshlrev_b32 v{u_+1}, 8, v{u_+1}
        v_and_b32 v{u_+2}, 3, v{u_}
        v_cmp_gt_u32 vcc, 4, v{u_}
        v_lshl_add_u32 v{u_+1}, v{u_+2}, 4, v{u_+1}
        v_add_u32 v{u_+1}, s{sT0}, v{u_+1}
        v_cndmask_b32 v{vF}, v{u_+1}, v{vF}, vcc
        """)
    k.seen.update(("w", x) for x in range(10))
    def cim():
        k.wait_vm("cim")
        c_read(1, [150, 151, 152, 153, 154, 155])
    if ew == 25: cim()
    put_flag(("hs", 0), sLW)
    residual(XS_, XT, 100)
    if OPT.get("spg", 9) > 4:
        stamp(7)
        k.e(spoll(0))
    if OPT["sfast"]:
        assert ew == 25
        k.e("s_waitcnt lgkmcnt(0)"); k.lg = []
        for b_ in (sPA, sPB_):
            for x in range(4): k.e(f"s_cmp_eq_u64 s[{b_+2*x}:{b_+2*x+1}], s[{sNP}:{sNP+1}]\ns_cbranch_scc0 L_sslow")
        save = list(k.vm)
        run(h_issue(typ, range(NR)))
        put_flag(("hs", 1), sLX, False)
        k.e("s_branch L_sjoin\nL_sslow:")
        k.vm = list(save)
        k.e(spoll(0))
        put_flag(("hs", 1), sLX, False)
        scheck("hm" + typ, 0)
        run(h_issue(typ, range(NR)))
        k.e("L_sjoin:")
        stamp(8)
    else:
        put_flag(("hs", 1), sLX)
        if ew < 25: cim()
        scheck("hm" + typ, 0)
        stamp(8)
        run(h_issue(typ, range(NR)))
    k.e("s_barrier")
    phase2(typ, [(tk, op) for tk in range(10, NK[typ]) for op in wload(tk)], [], [], None, -1)

def poll(tag, vaddr, vd):
    k.e(f"""
    L_poll_{tag}:
    buffer_load_dwordx2 {V(vd,2)}, v{vaddr}, s[{rWS}:{rWS+3}], 0 offen sc1
    s_waitcnt vmcnt(0)
    v_cmp_ne_u32 vcc, s{sNonce}, v{vd}
    v_cmp_ne_u32 s[{sT0}:{sT1}], s{sNonce}, v{vd+1}
    s_or_b64 vcc, vcc, s[{sT0}:{sT1}]
    s_cmp_eq_u64 vcc, 0
    s_cbranch_scc1 L_pollok_{tag}
    s_sub_u32 s{sSpin}, s{sSpin}, 1
    s_cbranch_scc1 L_end
    s_sleep 1
    s_branch L_poll_{tag}
    L_pollok_{tag}:
    """)
    k.vm = []

def acc2(p_, i, s): return 96 + 80*p_ + (i*4 + s)*4
def phase2(typ, pend, hrest, res, tagB, tB):
    stamp_n[0] = 10
    n_ = NK[typ]; T = 2*n_
    AD = [88, 89, 90, 91]
    XF = 92
    sXo, sXi, sFo, sTm = sB0, sH, sHw, sLW
    setup = lines(f"""
    v_bfe_u32 v{AD[0]}, v{vN}, 1, 2
    v_mul_u32_u24 v{vRw}, {RROW}, v{vN}
    v_xor_b32 v{AD[0]}, v{AD[0]}, v{vQ}
    v_lshl_add_u32 v{vRw}, v{AD[0]}, 4, v{vRw}
    v_add_u32 v{vRw}, s{sWLb}, v{vRw}
    v_lshlrev_b32 v{XO}, 1, v{XO}
    s_lshl_b32 s{sB2}, s{sX}, 1
    s_mov_b32 s{rW}, s{pOut}
    s_mov_b32 s{rW+1}, s{pOut+1}
    s_mov_b32 s{rW+2}, {2048*2560}
    s_mov_b32 s{rW+3}, 0x20000
    s_lshl_b32 s{sXi}, s{sMT}, 3
    s_add_u32 s{sXi}, s{sXi}, s{sDT}
    s_lshl_b32 s{sXi}, s{sXi}, 1
    s_add_u32 s{sXi}, s{sXi}, s{sHALF}
    s_xor_b32 s{sXo}, s{sXi}, 1
    s_lshl_b32 s{sFo}, s{sXo}, 6
    s_lshl_b32 s{sTm}, s{sW}, 4
    s_add_u32 s{sTm}, s{sTm}, {WS_XF}
    s_add_u32 s{sFo}, s{sFo}, s{sTm}
    s_lshl_b32 s{sUnit}, s{sXi}, 6
    s_add_u32 s{sUnit}, s{sUnit}, s{sTm}
    s_mul_i32 s{sTm}, s{sW}, 5120
    s_add_u32 s{sTm}, s{sTm}, {WS_XB}
    s_mul_i32 s{sXi}, s{sXi}, 20480
    s_add_u32 s{sXi}, s{sXi}, s{sTm}
    s_mul_i32 s{sXo}, s{sXo}, 20480
    s_add_u32 s{sXo}, s{sXo}, s{sTm}
    s_add_u32 s{sDX}, s{sXi}, 4096
    s_add_u32 s{sDW}, s{sXo}, 4096
    """)
    for s in range(4):
        setup += lines(f"s_xor_b32 s{sTm}, s{sW}, {s}\ns_mul_i32 s{sTm}, s{sTm}, {WLW}\ns_add_u32 s{sTm}, s{sTm}, {L_WL + s*RBLK}\nv_add_u32 v{AD[s]}, s{sTm}, v{LO}")
    def red_w(p_, s): return [DSF(f"ds_write_b128 v{vRw}, {V(acc2(p_,i,s),4)} offset:{s*RBLK + i*64}", "rw") for i in range(5)]
    RD = [96 + 16*g for g in range(5)]
    def red_r(g): return [DSF(f"ds_read_b128 {V(RD[g]+4*s,4)}, v{AD[s]} offset:{64*g}", ("r", g)) for s in range(4)]
    bgq = list(setup) + list(res)
    per = -(-len(pend) // OPT["kw"])
    for t in range(T - 1):
        p_, tk = divmod(t, n_)
        assert not [1 for t_, _ in pend if t_ <= t], (typ, t)
        if OPT.get("fine2"): stamp(14 + 2*t)
        k.wait_vm([("w", tk), ("h", t)])
        if OPT.get("fine2"): stamp(15 + 2*t)
        if t == tB: put_flag(tagB, sLX)
        tchk = n_ - NR
        if MV and typ == 'ssm' and t == tchk - MV:
            k.wait_vm('mvp'); check('mv', vF, vFd)
        if t == tchk:
            scheck("hb" + typ, 1)
        wk, wb = wreg(tk); ring = hdest(typ, t)
        m = []
        for s in range(4):
            for i in range(5):
                c = "0" if tk == 0 else V(acc2(p_, i, s), 4)
                m.append(f"v_mfma_f32_16x16x32_bf16 {V(acc2(p_,i,s),4)}, {R(wk, wb+4*i, 4)}, {R(ring[s][0], ring[s][1], 4)}, {c}")
        streams = []
        if NE[typ] <= t and t + NR < T:
            a_, b_ = hload(typ, t + NR)
            streams.append((a_, 0, 2, True))
            for s in range(4): streams.append((b_[s], 5*s + 4, 5*s + 4, True))
        mem = []
        if t == tchk - 2: k.e(spoll(1))
        if MV and typ == 'ssm' and t == tchk - MV - 2: mem += [VM(f"buffer_load_dwordx2 {V(vFd,2)}, v{vF}, s[{rWS}:{rWS+3}], 0 offen sc1", 'mvp')]
        while hrest and len(mem) < 12: mem += flat([hrest.pop(0)])
        for _ in range(per if typ == "mlp" else (4 if t >= tchk - MV else 0)):
            if pend: mem += flat([pend.pop(0)[1]])
        u = t - n_
        if u == -1: must_bg = True
        if u == 0: assert not bgq, len(bgq)
        if u in (0, 1, 2):
            wr_ = sum((red_w(0, s) for s in range(4)), [])
            streams.append((wr_[7*u:7*u + 7], 2, 18 if u < 2 else 14, True))
        if u == 3:
            k.wait_lg(); k.e("s_barrier")
            streams.append((red_r(0) + red_r(1) + red_r(2), 0, 16, True))
        if u == 4: streams.append((red_r(3) + red_r(4), 0, 12, True))
        if u in (4, 5):
            for g in ((0, 1, 2) if u == 4 else (3, 4)):
                bgq += [F(lambda g=g: k.wait_lg(("r", g)), 1)]
                bgq += lines("\n".join(f"v_add_f32 v{RD[g]+x}, v{RD[g]+x}, v{RD[g]+4+x}" for x in range(4)) + "\n" +
                             "\n".join(f"v_add_f32 v{RD[g]+8+x}, v{RD[g]+8+x}, v{RD[g]+12+x}" for x in range(4)) + "\n" +
                             "\n".join(f"v_add_f32 v{RD[g]+x}, v{RD[g]+x}, v{RD[g]+8+x}" for x in range(4)))
                if 1 in OPT.get("x", ()): k.seen.add(("xs", g))
                else: bgq += [VM(f"buffer_store_dwordx4 {V(RD[g],4)}, v{vL16}, s[{rWS}:{rWS+3}], s{sXo if g < 4 else sDW} offen offset:{(g & 3)*1024} sc1", ("xs", g))]
        if u == n_ - 3: k.e("s_barrier")
        if u == n_ - OPT["xfb_" + typ]:
            run(bgq); bgq.clear()
            put_flag(("xs", 4), sFo)
        if u == n_ - 2:
            k.wait_lg(); k.e(f"s_load_dwordx2 s[{sPA}:{sPA+1}], s[{pWs}:{pWs+1}], s{sUnit} glc")
            k.wait_vm(("h", t + 1))
            wk2, wb2 = wreg(tk + 1); ring2 = hdest(typ, t + 1)
            m2 = [f"v_mfma_f32_16x16x32_bf16 {V(acc2(1,i,s),4)}, {R(wk2, wb2+4*i, 4)}, {R(ring2[s][0], ring2[s][1], 4)}, {V(acc2(1,i,s),4)}" for s in range(4) for i in range(5)]
            m = sum((m[5*s:5*s+5] + m2[5*s:5*s+5] for s in range(4)), [])
            XL = [40 + 4*g for g in range(5)]
            assert all(base not in range(40, 60) for r_ in (ring, ring2) for kind, base in r_ if kind == "v")
            xl = "\n".join(f"buffer_load_dwordx4 {V(XL[g],4)}, v{vL16}, s[{rWS}:{rWS+3}], s{sXi if g < 4 else sDX} offen offset:{(g & 3)*1024} sc1" for g in range(5))
            for s in range(3): streams.append((red_w(1, s), 10*s + 13, 10*s + 19, True))
            def early():
                k.e("s_waitcnt lgkmcnt(0)"); k.lg = []
                k.e(f"s_cmp_eq_u64 s[{sPA}:{sPA+1}], s[{sNP}:{sNP+1}]\ns_cbranch_scc0 L_xe_{typ}\n{xl}\nL_xe_{typ}:")
            streams.insert(0, ([F(early, 2)], OPT["xg"], OPT["xg"], True))
        streams.append((mem, 1, 18, True))
        streams.append((bgq, 0, 20, False))
        sched(m, streams)
        if u == -1:
            if OPT.get("show"): print("left at the end of pass 1:", len(bgq))
            for f in bgq: f()
            bgq.clear()
    stamp()
    k.e(f"""
    s_cmp_eq_u64 s[{sPA}:{sPA+1}], s[{sNP}:{sNP+1}]
    s_cbranch_scc1 L_xd_{typ}
    L_xp_{typ}:
    s_sub_u32 s{sSpin}, s{sSpin}, 1
    s_cbranch_scc1 L_end
    s_load_dwordx2 s[{sPA}:{sPA+1}], s[{pWs}:{pWs+1}], s{sUnit} glc
    s_waitcnt lgkmcnt(0)
    s_cmp_eq_u64 s[{sPA}:{sPA+1}], s[{sNP}:{sNP+1}]
    s_cbranch_scc0 L_xp_{typ}
    {xl}
    L_xd_{typ}:
    s_nop 2
    """)
    run(red_w(1, 3))
    k.wait_lg(); k.e("s_barrier")
    for g in range(5): run(red_r(g))
    for g in range(5):
        k.wait_lg(("r", g))
        o = RES + 4*g
        for h in range(2): k.e(f"v_pk_add_f32 {V(RD[g]+2*h,2)}, {V(RD[g]+2*h,2)}, {V(RD[g]+4+2*h,2)}")
        for h in range(2): k.e(f"v_pk_add_f32 {V(RD[g]+8+2*h,2)}, {V(RD[g]+8+2*h,2)}, {V(RD[g]+12+2*h,2)}")
        for h in range(2): k.e(f"v_pk_add_f32 {V(o+2*h,2)}, {V(o+2*h,2)}, {V(RD[g]+2*h,2)}")
        for h in range(2): k.e(f"v_pk_add_f32 {V(o+2*h,2)}, {V(o+2*h,2)}, {V(RD[g]+8+2*h,2)}")
    for g in range(5):
        o = RES + 4*g
        if True:
            if g == 0: k.wait_vm0()
            for h in range(2): k.e(f"v_pk_add_f32 {V(o+2*h,2)}, {V(o+2*h,2)}, {V(XL[g]+2*h,2)}")
        k.vmem(f"buffer_store_dwordx4 {V(o,4)}, v{XO}, s[{rW}:{rW+3}], s{sB2} offen offset:{64*g} {OPT.get('ost', '')}", "o")
    if OPT.get("spin"):
        ins, n_ = OPT["spin"]
        k.e(f"""
        s_waitcnt vmcnt(0)
        s_sub_u32 s{sST}, s{sST}, s98
        s_add_u32 s{sST}, s{sST}, {n_}
        L_spin_{typ}:
        {ins} s[100:101]
        s_waitcnt lgkmcnt(0)
        s_sub_u32 s100, s100, s98
        s_cmp_lt_u32 s100, s{sST}
        s_cbranch_scc1 L_spin_{typ}
        """)
    k.e("s_branch L_fin" if OPT["stamps"] else "s_endpgm")

def finish():
    if OPT["stamps"]:
        k.label("L_fin")
        k.wait_vm0()
        stamp(11)
        k.e(f"""
        s_memtime s[100:101]
        s_waitcnt lgkmcnt(0)
        s_sub_u32 s100, s100, s98
        v_writelane_b32 v{vST}, s100, 63
        s_lshl_b32 s{sT0}, s2, 2
        s_add_u32 s{sT0}, s{sT0}, s{sW}
        s_lshl_b32 s{sT0}, s{sT0}, 8
        s_add_u32 s{sT0}, s{sT0}, {WS_ST}
        v_lshlrev_b32 v2, 2, v{vL}
        buffer_store_dword v{vST}, v2, s[{rWS}:{rWS+3}], s{sT0} offen
        """)

prologue()
stamp_n[0] = 1
path_ssm()
stamp_n[0] = 1; cur[0] = "mlp"
path_mlp()
finish()
k.label("L_end")
body = k.text()
errs = check_hazards(body)
for e_ in errs: print("HAZARD:", e_, file=sys.stderr)

hdr = open(f"cdna_kernels/{NAME}.s.ref").read().split("\n")
hdr = [l for l in hdr if l.startswith(";") and "@launch" not in l and "Override" not in l and "grid=ceil" not in l]
out = "\n".join(hdr) + f"\n; @launch grid=(256,1,1) block=(256,1,1) lds={L_END}\n"
out += f""".amdgcn_target "amdgcn-amd-amdhsa--gfx950"
.text
.globl {NAME}_kernel
.p2align 8
.type {NAME}_kernel,@function
{NAME}_kernel:
{body}    s_endpgm
L_code_end:
.set CODE_BYTES, L_code_end - {NAME}_kernel - 512
.section .rodata,"a"
.p2align 6
.amdhsa_kernel {NAME}_kernel
  .amdhsa_next_free_vgpr 512
  .amdhsa_next_free_sgpr 102
  .amdhsa_accum_offset 256
  .amdhsa_group_segment_fixed_size 0
  .amdhsa_kernarg_size 136
  .amdhsa_user_sgpr_count 2
  .amdhsa_user_sgpr_kernarg_segment_ptr 1
  .amdhsa_system_sgpr_workgroup_id_x 1
.end_amdhsa_kernel
"""
open(sys.argv[1], "w").write(out)
print("written", sys.argv[1], len(out), "bytes; hazards:", len(errs))
```

```python
import sys, struct
sys.path.insert(0, "dev")
from asmlib import *

NAME = "parallel_sum__ssm_conv_s5__mixer_channel_mlp__prompt"
OPT = dict(stamps=False, stop=None, nt_dma="", nt_pf="", nt_rp="", pf=0, pf0=1, pford=0, post0=12, ost='nt', pfa=(1, 0, 1), pfb=(2,), mv=0, xr0=0, tmlp=8, ctail=6, xg=22, rsp=0, sfast=1, rpown='mlp', post=25, e1=0, ew=30, post0_s=0, wskip=3, rpd_mlp=(0, 1.6), rpd_ssm=(0, 3.5), rotg=1, tch=2, hw=4, e2=0, post_s=0, cpf=1, rp_mlp=(3, (4, 5, 7, 9, 10), 12), rp_ssm=(5, (6, 8, 10, 12, 13), 15), cw=25, rf_mlp=15, wskip2=1, touch=8, rf_ssm=99, xfb_mlp=3, ce=8, hoist=1, xfb_ssm=2, xlate=1, fa=8, sp=10, stlb=0, rfg=10, wfirst=0, wres=-1, resfirst=1, ne=0, gpos=5, post1=20, hpre=1, ne_mlp=0, kw=6, util=1.0, rot1=1, rot2=1)
for a_ in sys.argv[2:]:
    k_, v_ = a_.split("=", 1); OPT[k_] = eval(v_)

def f2u(x): return struct.unpack("<I", struct.pack("<f", x))[0]
def hx(x): return "0x%08x" % f2u(x)

WS_EP = 0
WS_H = 4096
WS_WP = 12 << 20
WS_E = 16 << 20
WS_RF = 17 << 20
WS_HF = (17 << 20) + 65536
WS_RS = 18 << 20
WS_ST = 20 << 20
WS_XF = (17 << 20) + 131072
WS_XB = 24 << 20
WS_SIZE = 32 << 20
OOB = 0x4000000
L_TOK = 0; L_CH = 2048; L_PW = 7168; L_EX = 17408; L_EX2 = L_EX + 1280
L_STG = 20480; L_X = 40960; L_W = 90112; L_END = 163840
XS = 16384; WSL = 24576
L_SCS = {'ssm': (L_EX2, 320), 'mlp': (L_CH + 512, 384)}; L_B1 = L_CH; L_DB = 20160
WLW = 4 * 16 * 320; RROW = 320; RBLK = 16 * RROW
L_WL = L_STG
NST = 10
pX, pLre, pLim, pBre, pBim, pCre, pCim, pLdt = 16, 18, 20, 22, 24, 26, 28, 30
pDsk, pBx, pW1, pB1, pW2, pB2, pOut, pDbg, pWs = 32, 34, 36, 38, 40, 42, 44, 46, 48
sW, sWR, sWC, sMT, sNT, sTYP, sHALF, sDT = 3, 4, 5, 6, 7, 8, 88, 7
sML, sI8 = 9, 10
sNonce = 11; sT0, sT1, sT2, sT3 = 12, 13, 14, 15
sKs = 50; sPF = 51
rX, rW, rWS, rT, rT2 = 52, 56, 60, 64, 68
sX, sLX, sLW, sB0, sB2, sPFs, sUnit, sRpSrc, sLR, sSpin = 72, 73, 74, 75, 76, 77, 78, 79, 80, 81
sK = 82; sEx = 84
sH, sHw, sWp, sDis = 86, 87, 88, 89
sST = 90
sRpD = 92
sSig = 97
sWa, sHa, sLim = 18, 22, 26
sDX, sDW = 77, 51
rPF = rT2
vL, vN, vQ = 1, 2, 3
vDX0, vDX1, vXa, vXb = 4, 5, 6, 7
vDW = 8
vPF, vDR, vJunk, vNc = 10, 11, 12, 13
vWA = 14
vRA = 120
vL16 = 26
vRS = 27
vB1 = 28
vB1m = 140
vT = 40
vST = 25
ACC = 160
def acc(i, j): return ACC + (i * 4 + j) * 4
aF = [0, 40]
aONE = 80; aCS = 84

k = Asm()
k.strict = OPT.get('strict', False)
k.lenient = OPT['stamps']
stamp_n = [0]
cur = ["ssm"]
def stamp(i=None):
    if i is None:
        i = stamp_n[0]; stamp_n[0] += 1
    if OPT.get("probe") == (cur[0], i):
        k.e(f"s_memrealtime s[{sST}:{sST+1}]"); k.e("s_waitcnt lgkmcnt(0)"); k.lg = []
    if not OPT["stamps"] or (OPT.get("lite") and i != 11): return
    k.e(f"{'s_memtime' if OPT.get('cyc') else 's_memrealtime'} s[{sST}:{sST+1}]"); k.e("s_waitcnt lgkmcnt(0)"); k.lg = []
    k.e(f"v_writelane_b32 v{vST}, s{sST}, {i}")
def srd(r, ptr, size):
    k.e(f"s_mov_b32 s{r}, s{ptr}\ns_mov_b32 s{r+1}, s{ptr+1}\ns_mov_b32 s{r+2}, {size}\ns_mov_b32 s{r+3}, 0x20000")

class F:
    def __init__(self, fn, cost=1, ds=False, sep=False, ta=0): self.fn, self.cost, self.ds, self.sep, self.ta = fn, cost, ds, sep, ta
    gate = None
    def __call__(self): self.fn()
curblk = [0]
def note(d, key): return F(lambda: d.__setitem__(key, curblk[0]), 0)
def gate(fn):
    f = F(lambda: None, 0); f.gate = fn; return f
def lines(s):
    out = []; prev = set()
    for l in (x.strip() for x in s.split("\n")):
        if not l: continue
        if l == "s_nop 0":
            prev = None; continue
        parts = l.split(" | ")
        c = sum(2 if x.split()[0] in TRANS else 1 for x in parts)
        d = parse(parts[0])
        dep = prev is None or (d["valu"] and bool(d["uses"] & prev))
        prev = set().union(*[{r for r in parse(x)["defs"] if r[0] == "v"} for x in parts])
        out.append(F(lambda l=l: k.e(l.replace(" | ", "\n")), c, sep=dep))
    return out
def VM(text, tag, sep=False, ta=66): return F(lambda: k.vmem(text, tag), 2, sep=sep, ta=ta)
def DSF(text, tag=None): return F(lambda: k.ds(text, tag), 1, ds=True)
def sched(main, streams, start=0):
    n = len(main)
    st = []
    for items, g0, g1, must in streams:
        cnt = len(items) if must else min(len(items), must if isinstance(must, int) and must > 1 else len(items))
        tot = sum(f.cost for f in items[:cnt]) or 1
        tg = []; acc_ = 0
        for f in items[:cnt]:
            tg.append(g0 + (g1 - g0) * acc_ / tot if must else g0); acc_ += f.cost
        st.append(dict(items=items, tg=tg, last=-1, must=must))
    for g, m in enumerate(main):
        k.e(m)
        if g < start: continue
        room = 2; hasds = False
        prog = True
        while prog and room > 0:
            prog = False
            for x in st:
                if not x["tg"] or x["tg"][0] > g: continue
                f = x["items"][0]
                if f.gate and not f.gate(): continue
                if f.sep and x["last"] == g: continue
                if f.ds and (hasds or (not x["must"] and g >= n - 6)): continue
                if f.cost > room and room < 2 and not (not x["must"] and g - x["last"] >= 3): continue
                x["items"].pop(0); x["tg"].pop(0); x["last"] = g
                f(); room -= f.cost; hasds |= f.ds; prog = True
                break
    for x in st:
        if x["must"]:
            over = len(x["tg"])
            if over and OPT.get("show"): print("overflow", over)
            while x["tg"]:
                f = x["items"].pop(0); x["tg"].pop(0)
                if f.sep: k.e("s_nop 0")
                f()
def merge(*ls):
    ls = [l for l in ls if l]
    if not ls: return []
    if len(ls) == 1: return list(ls[0])
    items = []
    for li, l in enumerate(ls):
        for i, f in enumerate(l): items.append(((i + 0.5) / len(l), li, i, f))
    items.sort(key=lambda x: (x[0], x[1]))
    return [x[3] for x in items]

def prologue():
    t = vT
    cpf = f"""
    s_getpc_b64 s[{sEx}:{sEx+1}]
    s_lshr_b32 s{sT1}, s2, 3
    s_lshl_b32 s{sT1}, s{sT1}, 11
    v_lshrrev_b32 v{t}, 6, v0
    v_lshlrev_b32 v{t}, 9, v{t}
    v_and_b32 v{t+1}, 3, v0
    v_lshl_add_u32 v{t}, v{t+1}, 7, v{t}
    v_add_u32 v{t}, s{sT1}, v{t}
    v_min_u32 v{t}, CODE_BYTES, v{t}
    global_load_dword v{vJunk}, v{t}, s[{sEx}:{sEx+1}]
    """ if OPT["cpf"] else ""
    k.e(f"""
    s_cmp_ge_u32 s2, 256
    s_cbranch_scc1 L_end
    s_load_dwordx16 s[16:31], s[0:1], 0
    s_load_dwordx16 s[32:47], s[0:1], 64
    s_load_dwordx2 s[48:49], s[0:1], 128
    {cpf}
    v_lshrrev_b32 v{t}, 6, v0
    v_and_b32 v{vL}, 63, v0
    v_readfirstlane_b32 s{sW}, v{t}
    s_and_b32 s{sT0}, s2, 7
    s_lshr_b32 s{sT1}, s2, 3
    s_lshr_b32 s{sTYP}, s{sT1}, 4
    s_bfe_u32 s{sML}, s{sT1}, 0x20002
    s_lshr_b32 s{sMT}, s{sT0}, 1
    s_lshl_b32 s{sT2}, s{sML}, 2
    s_add_u32 s{sMT}, s{sMT}, s{sT2}
    s_and_b32 s{sT2}, s{sT1}, 3
    s_lshl_b32 s{sI8}, s{sTYP}, 2
    s_add_u32 s{sI8}, s{sI8}, s{sT2}
    s_and_b32 s{sNT}, s{sT0}, 1
    s_lshl_b32 s{sNT}, s{sNT}, 2
    s_add_u32 s{sNT}, s{sNT}, s{sT2}
    s_lshr_b32 s{sWR}, s{sW}, 1
    s_and_b32 s{sWC}, s{sW}, 1
    """)
    if OPT["stamps"]:
        k.e(f"v_mov_b32 v{vST}, 0\n{'s_memtime' if OPT.get('cyc') else 's_memrealtime'} s[{sST}:{sST+1}]" + ('' if OPT['pf'] or OPT['tch'] >= 3 else '\ns_memtime s[98:99]')); stamp_n[0] = 1
    if OPT.get("spin"): k.e(f"{OPT['spin'][0]} s[98:99]\ns_waitcnt lgkmcnt(0)\ns_mov_b32 s{sST}, s98")
    k.e(f"""
    v_lshrrev_b32 v{t}, 3, v{vL}
    v_and_b32 v{t+1}, 7, v{vL}
    v_lshrrev_b32 v{t+2}, 1, v{t}
    v_xor_b32 v{t+2}, v{t+1}, v{t+2}
    v_mul_u32_u24 v{t+3}, 5120, v{t}
    v_lshl_add_u32 v{vDX0}, v{t+2}, 4, v{t+3}
    v_xor_b32 v{vDX1}, 64, v{vDX0}
    v_add_u32 v{vDX1}, 40960, v{vDX1}
    s_lshl_b32 s{sT0}, s{sMT}, 7
    s_lshl_b32 s{sT1}, s{sWR}, 6
    s_add_u32 s{sT0}, s{sT0}, s{sT1}
    s_lshl_b32 s{sT1}, s{sWC}, 1
    s_add_u32 s{sT0}, s{sT0}, s{sT1}
    s_mul_i32 s{sX}, s{sT0}, 1280
    s_lshl_b32 s{sLX}, s{sW}, 12
    s_cmp_eq_u32 s{sTYP}, 1
    s_cbranch_scc1 L_e_mlp
    """)
    for typ in ("ssm", "mlp"):
        if typ == "mlp": k.label("L_e_mlp")
        k.vm = []; issued.clear()
        cur[0] = typ
        k.e(WOFF[typ])
        rot_setup(typ)
        if OPT["rsp"] >= 3: xr_setup()
        start_loads(typ)
        k.e(f"s_branch L_{typ}")
        early_vm[typ] = list(k.vm)
    cur[0] = "ssm"
early_vm = {}
WOFF = {}
def late_common(typ):
    t = vT
    k.label(f"L_{typ}")
    issued.clear(); issued[0] = 10 if typ == "mlp" else 9
    k.seen.clear(); k.vm = list(early_vm[typ]); k.seen.update(k.vm); k.lg = []
    k.e(f"""
    v_and_b32 v{vN}, 15, v{vL}
    v_lshrrev_b32 v{vQ}, 4, v{vL}
    v_lshlrev_b32 v{vL16}, 4, v{vL}
    s_xor_b32 s{sKs}, s{sWR}, s{sWC}
    s_xor_b32 s{sHALF}, s{sTYP}, 1
    s_mov_b32 s{sSpin}, 0x40000
    s_and_b32 s{sT2}, s2, 127
    s_sub_u32 s{sUnit}, 127, s{sT2}
    s_cmp_lt_u32 s{sUnit}, 96
    s_cselect_b32 s{sUnit}, s{sUnit}, 0
    s_cselect_b32 s{sDis}, 0, {OOB}
    s_lshl_b32 s{sT2}, s{sKs}, 2
    v_add_u32 v{t+4}, s{sT2}, v{vQ}
    v_lshrrev_b32 v{t+5}, 1, v{vN}
    v_xor_b32 v{t+5}, v{t+4}, v{t+5}
    v_lshlrev_b32 v{t+5}, 4, v{t+5}
    v_lshl_add_u32 v{t+5}, v{vN}, 7, v{t+5}
    s_lshl_b32 s{sT1}, s{sWC}, 13
    s_add_u32 s{sT1}, s{sT1}, {L_X}
    v_add_u32 v{vXa}, s{sT1}, v{t+5}
    v_xor_b32 v{vXb}, 64, v{vXa}
    """)

issued = {}
mk = {}
def dma(vo, rs, so, imm, sl, tgt, tag, fl, pre=None):
    def f1():
        k.e(f"s_add_u32 m0, s{sl}, {tgt - imm}")
        if pre: k.e(pre)
    def f2():
        if isinstance(tag, tuple): issued[tag[1]] = issued.get(tag[1], 0) + 1
        k.vmem(f"buffer_load_dwordx4 v{vo}, s[{rs}:{rs+3}], s{so} offen offset:{imm} {fl} lds", tag)
    return [F(f1, 2 if pre else 1), F(f2, 2, sep=True, ta=66)]
def run(ops):
    for op in ops:
        for f in (op if isinstance(op, list) else [op]):
            if f.sep: k.e("s_nop 0")
            f()
def flat(ops): return [f for op in ops for f in (op if isinstance(op, list) else [op])]
def advance(typ, stage):
    d = 64*3072 if typ == "mlp" else 128
    G = OPT["rotg"]
    if stage not in [10 - (10*g) // G for g in range(1, G)]:
        return f"s_add_u32 s{sX}, s{sX}, 128\ns_add_u32 s{sB0}, s{sB0}, {d}\ns_add_u32 s{sB2}, s{sB2}, {d}"
    return (f"s_cmp_eq_u32 s{sSig}, {10 - stage} | s_cselect_b32 s{sT3}, {-9*128 & 0xffffffff}, s{sDX} | s_cselect_b32 s{sT2}, {-9*d & 0xffffffff}, s{sDW}\n"
            f"s_add_u32 s{sX}, s{sX}, s{sT3}\ns_add_u32 s{sB0}, s{sB0}, s{sT2}\ns_add_u32 s{sB2}, s{sB2}, s{sT2}")
def rot_setup(typ):
    d = 64*3072 if typ == "mlp" else 128
    G = OPT.get("rotg", 0)
    if G == 0: rotsel = f"""    s_mul_i32 s{sT0}, s{sI8}, 5
    s_lshr_b32 s{sT0}, s{sT0}, 2
    s_mul_i32 s{sT1}, s{sML}, 5
    s_lshr_b32 s{sT1}, s{sT1}, 1
    s_add_u32 s{sT0}, s{sT0}, s{sT1}
    s_and_b32 s{sT1}, s{sMT}, 3
    s_add_u32 s{sSig}, s{sT0}, s{sT1}
    s_sub_u32 s{sT0}, s{sSig}, 10
    s_cmp_ge_u32 s{sSig}, 10
    s_cselect_b32 s{sSig}, s{sT0}, s{sSig}
    s_mul_i32 s{sSig}, s{sSig}, {OPT['rot1']}
    """
    else:
        rotsel = f"s_add_u32 s{sT0}, s{sI8}, s{sML}\ns_and_b32 s{sT0}, s{sT0}, {G-1}\ns_mul_i32 s{sT0}, s{sT0}, 10\ns_lshr_b32 s{sSig}, s{sT0}, {G.bit_length()-1}"
    k.e(f"""
    {rotsel}
    s_lshl_b32 s{sT0}, s{sSig}, 7
    s_add_u32 s{sX}, s{sX}, s{sT0}
    s_mul_i32 s{sT0}, s{sSig}, {d}
    s_add_u32 s{sB0}, s{sB0}, s{sT0}
    s_add_u32 s{sB2}, s{sB2}, s{sT0}
    s_movk_i32 s{sDX}, 128
    s_mov_b32 s{sDW}, {d}
    """)
def dma_x(stage, g):
    return dma(vDX0 + (g & 1), rX, sX, (g >> 1) * 1280, sLX, L_X + (stage % 3) * XS + g * 1024, ("st", stage), OPT.get("nt_x", "") if stage < OPT.get("nt_n", 99) else "")
def dma_w(typ, stage, g):
    base = L_W + (stage % 3) * WSL
    if typ == "mlp":
        rg, cg = g // 3, g % 3
        return dma(vDW + rg, rW, sB2 if rg else sB0, cg * 128, sLW, base + cg * 8192 + rg * 1024, ("st", stage), OPT["nt_dma"] if stage < OPT.get("nt_n", 99) else "")
    imm = 2560 if (g < 4 and g & 1) else 0
    return dma(vDW + (1 if g == 4 else 0), rW, sB2 if g in (2, 3) else sB0, imm, sLW, base + g * 2048, ("st", stage), OPT["nt_dma"] if stage < OPT.get("nt_n", 99) else "")
def dma_stage(typ, stage):
    nw = 6 if typ == "mlp" else 5
    ops = merge([dma_x(stage, g) for g in range(4)], [dma_w(typ, stage, g) for g in range(nw)])
    if stage > 0: ops[0] = lines(advance(typ, stage)) + ops[0]
    return ops
sPB = 98
def pf(a):
    def f():
        k.vmem(f"global_load_dword v{vJunk}, v{vPF}, s[{sPB}:{sPB+1}] {OPT['nt_pf']}", "pf")
        k.e(f"v_add_u32 v{vPF}, s{sDX}, v{vPF}\nv_min_u32 v{vPF}, s{sDW}, v{vPF}")
    return F(f, 4, ta=130)

def frag_reads(typ, stage, blk, fs):
    slot = stage % 3
    nr = 6 if typ == "mlp" else 5
    vx = vXa if blk == 0 else vXb
    xr = [DSF(f"ds_read_b128 {A(aF[fs] + 24 + 4*j, 4)}, v{vx} offset:{slot*XS + j*2048}") for j in range(4)]
    wr_ = []
    for i in range(nr):
        if typ == "mlp":
            for h in range(2):
                wr_.append(DSF(f"ds_read_b64_tr_b16 {A(aF[fs] + 4*i + 2*h, 2)}, v{vWA + blk*4 + (i & 3)} offset:{slot*WSL + (i >> 2)*8192 + h*512}"))
        else:
            wr_.append(DSF(f"ds_read_b128 {A(aF[fs] + 4*i, 4)}, v{vWA + blk} offset:{slot*WSL + i*2048}"))
    return merge(xr, wr_)

def mfmas(typ, stage, blk, fs):
    nr = 6 if typ == "mlp" else 5
    first = stage == 0
    out = []
    Af = lambda i: A(aF[fs] + 4*i, 4)
    Bf = lambda j: A(aF[fs] + 24 + 4*j, 4)
    for i in range(nr):
        for j in range(4):
            c = "0" if (first and blk == 0) else V(acc(i, j), 4)
            out.append(f"v_mfma_f32_16x16x32_bf16 {V(acc(i,j),4)}, {Af(i)}, {Bf(j)}, {c}")
    if blk == 1 and (2 not in OPT.get('x', ()) or stage == NST - 1):
        for i in range(nr):
            out.append(f"v_mfma_f32_16x16x32_bf16 {A(aCS+4*i,4)}, {Af(i)}, {A(aONE,4)}, {'0' if first else A(aCS+4*i,4)}")
    if blk == 1 and stage == NST - 1: out = out[-nr:] + out[:-nr]
    return out

XR = 124
def touch_all(typ):
    t = vT + 8
    if typ == "ssm":
        k.e(f"""
        s_lshl_b32 s{sT0}, s2, 2
        s_add_u32 s{sT0}, s{sT0}, s{sW}
        s_mul_i32 s{sT0}, s{sT0}, {40*128}
        v_min_u32 v{t}, 39, v{vL}
        s_mov_b64 s[{sT2}:{sT3}], s[{pX}:{pX+1}]
        """)
    else:
        k.e(f"""
        s_and_b32 s{sT0}, s2, 127
        s_lshl_b32 s{sT1}, s{sT0}, 1
        s_add_u32 s{sT1}, s{sT1}, s{sWC}
        s_mul_i32 s{sT1}, s{sT1}, {60*128}
        s_mul_i32 s{sT0}, s{sT0}, {50*128}
        s_cmp_eq_u32 s{sWC}, 0
        s_cselect_b64 s[{sT2}:{sT3}], s[{pBre}:{pBre+1}], s[{pBim}:{pBim+1}]
        s_cmp_eq_u32 s{sWR}, 0
        s_cselect_b32 s{sT0}, s{sT0}, s{sT1}
        s_cselect_b32 s{sT1}, 49, 59
        s_cselect_b64 s[{sT2}:{sT3}], s[{sT2}:{sT3}], s[{pW1}:{pW1+1}]
        v_min_u32 v{t}, s{sT1}, v{vL}
        """)
    k.e(f"v_lshlrev_b32 v{t}, 7, v{t}\nv_add_u32 v{t}, s{sT0}, v{t}")
    if OPT["tch"] >= 3: k.e(f"v_mov_b32 v{vPF}, v{t}\ns_mov_b64 s[{sPB}:{sPB+1}], s[{sT2}:{sT3}]")
    else: k.vmem(f"global_load_dword v{vJunk}, v{t}, s[{sT2}:{sT3}] {OPT['nt_pf']}", "tch")
def touch_two(typ):
    t = vT + 9
    if typ == "mlp":
        k.e(f"""
        s_and_b32 s{sT0}, s2, 127
        s_lshl_b32 s{sT0}, s{sT0}, 2
        s_add_u32 s{sT0}, s{sT0}, s{sW}
        s_mul_i32 s{sT0}, s{sT0}, {30*128}
        v_min_u32 v{t}, 29, v{vL}
        s_mov_b64 s[{sT2}:{sT3}], s[{pW2}:{pW2+1}]
        """)
    else:
        k.e(f"""
        s_lshl_b32 s{sT0}, s2, 1
        s_add_u32 s{sT0}, s{sT0}, s{sWR}
        s_mul_i32 s{sT0}, s{sT0}, {25*128}
        v_min_u32 v{t}, 24, v{vL}
        s_cmp_eq_u32 s{sWC}, 0
        s_cselect_b64 s[{sT2}:{sT3}], s[{pCre}:{pCre+1}], s[{pCim}:{pCim+1}]
        """)
    k.e(f"v_lshlrev_b32 v{t}, 7, v{t}\nv_add_u32 v{t}, s{sT0}, v{t}")
    k.vmem(f"global_load_dword v{vJunk}, v{t}, s[{sT2}:{sT3}]", "tch")
def start_loads(typ):
    t = vT
    k.e("s_waitcnt lgkmcnt(0)")
    if OPT["stamps"]: k.e(f"v_writelane_b32 v{vST}, s{sST}, 0")
    stamp(12)
    k.e(f"""
    s_or_b32 s{sT0}, s2, s{sW}
    s_cmp_lg_u32 s{sT0}, 0
    s_cbranch_scc1 L_nononce_{typ}
    s_memrealtime s[{sT0}:{sT1}]
    s_waitcnt lgkmcnt(0)
    s_or_b32 s{sT0}, s{sT0}, 1
    v_mov_b32 v{t+8}, s{sT0}
    v_mov_b32 v{t+9}, 0
    global_store_dword v{t+9}, v{t+8}, s[{pDbg}:{pDbg+1}] sc1
    L_nononce_{typ}:
    """)
    srd(rX, pX, 2048 * 1280)
    if typ == "mlp": srd(rW, pW1, 640 * 3072)
    else:
        k.e(f"""
        s_cmp_eq_u32 s{sWC}, 0
        s_cselect_b32 s{rW}, s{pBre}, s{pBim}
        s_cselect_b32 s{rW+1}, s{pBre+1}, s{pBim+1}
        s_mov_b32 s{rW+2}, {640*1280}
        s_mov_b32 s{rW+3}, 0x20000
        """)
    if OPT['pf']:
        assert OPT['rotg'] == 1
        k.e(f"s_cmp_eq_u32 s{sW}, 3\ns_cselect_b64 s[{sPB}:{sPB+1}], s[{rX}:{rX+1}], s[{rW}:{rW+1}]")
        for _ in range(OPT['pfa'][0]): pf(0)()
    if OPT.get("tch") == 1: touch_all(typ)
    if OPT["rsp"] >= 3: run(xr_loads())
    run(dma_stage(typ, 0))
    if OPT["rsp"] in (1, 2):
        xr_setup(); run(xr_loads())
    if OPT.get("tch") >= 2: touch_all(typ)
    if OPT.get("t2"): touch_two(typ)
    if OPT['pf']:
        for _ in range(OPT['pfa'][1]): pf(0)()
    if OPT['xr0']: run(xr_loads())
    stamp(13)
    if OPT.get("stlb", 1):
        k.e(f"s_lshl_b32 s{sT0}, s2, 7\ns_add_u32 s{sT0}, s{sT0}, {WS_HF + 32768}\ns_load_dword s{sNonce}, s[{pWs}:{pWs+1}], s{sT0} {'glc' if OPT.get('stlb') == 2 else ''}")
    srd(rWS, pWs, WS_SIZE)
    if OPT.get('wsoff'): k.e(f"s_add_u32 s{rWS}, s{rWS}, {OPT['wsoff'] << 20}\ns_addc_u32 s{rWS+1}, s{rWS+1}, 0")
def xr_setup():
    k.e(f"""
    s_lshl_b32 s{sT0}, s{sTYP}, 3
    s_add_u32 s{sT0}, s{sT0}, s{sNT}
    s_lshl_b32 s{sT0}, s{sT0}, 2
    s_add_u32 s{sT0}, s{sT0}, s{sW}
    s_lshl_b32 s{sT0}, s{sT0}, 1
    s_lshl_b32 s{sT1}, s{sMT}, 7
    s_add_u32 s{sHw}, s{sT0}, s{sT1}
    s_mul_i32 s{sH}, s{sHw}, 1280
    v_lshrrev_b32 v{XR+10}, 5, v{vL}
    v_mul_u32_u24 v{XR+10}, 1280, v{XR+10}
    v_and_b32 v{XR+11}, 31, v{vL}
    v_lshl_add_u32 v{XR+11}, v{XR+11}, 3, v{XR+10}
    v_lshlrev_b32 v{XR+13}, 1, v{XR+11}
    v_sub_u32 v{XR+10}, v{XR+13}, v{XR+10}
    """)
def xr_loads():
    return [VM(f"buffer_load_dwordx4 {V(XR+4*i,4)}, v{XR+10}, s[{rX}:{rX+3}], s{sH} offen offset:{512*i}", "xr") for i in range(2)] + \
           [VM(f"buffer_load_dwordx2 {V(XR+8,2)}, v{XR+11}, s[{rX}:{rX+3}], s{sH} offen offset:1024", "xr", ta=40)]
def small_dma(ptr, size, soff, tgt, lanes):
    srd(rT2, ptr, size)
    k.e(f"s_mov_b32 m0, {tgt}\ns_mov_b32 exec_lo, {(1 << lanes) - 1}\ns_mov_b32 exec_hi, 0")
    k.vmem(f"buffer_load_dwordx4 v{vL16}, s[{rT2}:{rT2+3}], s{soff} offen lds", "sm")
    k.e("s_mov_b64 exec, -1")
def touch_setup():
    t = 98
    srd(rT2, pCre, 640 * 1280)
    k.e(f"""
    s_mov_b64 s[{sEx}:{sEx+1}], s[{pCim}:{pCim+1}]
    s_and_b32 s{sT0}, s2, 31
    s_lshl_b32 s{sT0}, s{sT0}, 2
    s_add_u32 s{sT0}, s{sT0}, s{sW}
    s_mul_i32 s{sT0}, s{sT0}, {50*128}
    s_xor_b32 s{sT1}, s{sDis}, {OOB}
    s_or_b32 s{sT0}, s{sT0}, s{sT1}
    v_min_u32 v{t}, 49, v{vL}
    v_lshlrev_b32 v{t}, 7, v{t}
    v_add_u32 v{t}, s{sT0}, v{t}
    """)
def touch_c():
    ld = f"buffer_load_dword v{vJunk}, v98, s[{rT2}:{rT2+3}], 0 offen"
    return [VM(ld, "jk", ta=20)] + lines(f"s_mov_b32 s{rT2}, s{sEx}\ns_mov_b32 s{rT2+1}, s{sEx+1}") + [VM(ld, "jk", ta=20)]
def small_loads(typ):
    k.e(f"s_mul_i32 s{sT0}, s{sDT}, 160")
    small_dma(pDsk, 1280, sT0, L_DB, 10)
    small_dma(pB2, 1280, sT0, L_DB + 160, 10)
    if typ == "mlp":
        k.e(f"s_mul_i32 s{sT0}, s{sNT}, 384")
        small_dma(pB1, 3072, sT0, L_B1, 24)

def pf_setup(typ):
    t = vT + 10
    PS = OPT["pf"]
    k.e(f"""
    v_mul_u32_u24 v{t}, 52, v{vL}
    v_lshrrev_b32 v{t}, 10, v{t}
    v_mul_u32_u24 v{t+1}, 20, v{t}
    v_sub_u32 v{t+1}, v{vL}, v{t+1}
    v_min_u32 v{t}, {PS - 1}, v{t}
    s_lshl_b32 s{sT0}, s{sMT}, 7
    s_lshl_b32 s{sT1}, s{sI8}, 4
    s_add_u32 s{sT0}, s{sT0}, s{sT1}
    s_mul_i32 s{sT0}, s{sT0}, 1280
    s_add_u32 s{sT0}, s{sT0}, {128*OPT['pf0']}
    """)
    if typ == "mlp":
        k.e(f"""
        s_lshl_b32 s{sT1}, s{sML}, 4
        s_add_u32 s{sT1}, s{sT1}, {64*OPT['pf0']}
        s_mul_i32 s{sT1}, s{sT1}, 3072
        s_mul_i32 s{sT2}, s{sNT}, 384
        s_add_u32 s{sT1}, s{sT1}, s{sT2}
        s_lshl_b32 s{sT2}, s{sW}, 7
        s_add_u32 s{sT1}, s{sT1}, s{sT2}
        s_cmp_eq_u32 s{sW}, 3
        s_cselect_b32 s{sT0}, s{sT0}, s{sT1}
        s_mov_b32 s{sT2}, {64*3072}
        s_cselect_b32 s{sT2}, 128, s{sT2}
        s_mov_b32 s{sT3}, 3072
        s_cselect_b32 s{sT3}, 1280, s{sT3}
        s_mov_b32 s{sDW}, {640*3072 - 128}
        s_cselect_b32 s{sDW}, {2048*1280 - 128}, s{sDW}
        v_min_u32 v{t+1}, 15, v{t+1}
        """)
    else:
        k.e(f"""
        s_mul_i32 s{sT1}, s{sNT}, 80
        s_mul_i32 s{sT2}, s{sML}, 20
        s_add_u32 s{sT1}, s{sT1}, s{sT2}
        s_mul_i32 s{sT1}, s{sT1}, 1280
        s_add_u32 s{sT1}, s{sT1}, {128*OPT['pf0']}
        s_cmp_eq_u32 s{sW}, 3
        s_cselect_b32 s{sT0}, s{sT0}, s{sT1}
        s_cselect_b32 s{sT1}, 15, 19
        s_mov_b32 s{sDW}, {640*1280 - 128}
        s_cselect_b32 s{sDW}, {2048*1280 - 128}, s{sDW}
        s_cmp_eq_u32 s{sW}, 2
        s_cselect_b32 s{sT1}, 0, s{sT1}
        v_min_u32 v{t+1}, s{sT1}, v{t+1}
        s_mov_b32 s{sT2}, 128
        s_mov_b32 s{sT3}, 1280
        """)
    k.e(f"""
    s_mul_i32 s{sDX}, s{sT2}, {PS}
    v_mul_lo_u32 v{vPF}, v{t}, s{sT2}
    v_mul_lo_u32 v{t+2}, v{t+1}, s{sT3}
    v_add_u32 v{vPF}, v{vPF}, v{t+2}
    v_add_u32 v{vPF}, s{sT0}, v{vPF}
    """)

def repack_setup(tag):
    t = vT
    k.e(f"""
    v_lshrrev_b32 v{t}, 3, v{vL}
    v_and_b32 v{t+1}, 7, v{vL}
    v_mul_u32_u24 v{t}, 1280, v{t}
    v_lshl_add_u32 v{t}, v{t+1}, 4, v{t}
    v_or_b32 v{vDR}, s{sDis}, v{t}
    v_or_b32 v{vRS}, s{sDis}, v{vL16}
    s_lshl_b32 s{sLR}, s{sW}, 10
    s_and_b32 s{sT0}, s{sUnit}, 1
    s_lshr_b32 s{sT1}, s{sUnit}, 1
    s_mov_b32 s{rT+3}, 0x20000
    """)
    if True:
        k.e(f"""
        s_mov_b32 s{rT}, s{pW2}
        s_mov_b32 s{rT+1}, s{pW2+1}
        s_mov_b32 s{rT+2}, {1536*1280}
        s_lshl_b32 s{sT2}, s{sT1}, 2
        s_add_u32 s{sT2}, s{sT2}, s{sW}
        s_mul_i32 s{sRpSrc}, s{sT2}, {8*1280}
        s_mul_i32 s{sT2}, s{sT1}, 5462
        s_lshr_b32 s{sT2}, s{sT2}, 16
        s_mul_i32 s{sT2}, s{sT2}, 10
        s_add_u32 s{sT1}, s{sT1}, s{sT2}
        s_mul_i32 s{sT1}, s{sT1}, 5120
        s_add_u32 s{sT1}, s{sT1}, {WS_WP}
        s_mul_i32 s{sT2}, s{sT0}, 20
        s_add_u32 s{sT2}, s{sT2}, s{sW}
        """)
        for i in range(5):
            k.e(f"""
            s_mul_i32 s{sT3}, s{sT2}, 13108
            s_lshr_b32 s{sT3}, s{sT3}, 16
            s_mul_i32 s{sT3}, s{sT3}, 435
            s_add_u32 s{sT3}, s{sT3}, s{sT2}
            s_lshl_b32 s{sT3}, s{sT3}, 10
            s_add_u32 s{sRpD+i}, s{sT3}, s{sT1}
            s_add_u32 s{sT2}, s{sT2}, 4
            """)
        k.e(f"""
        v_lshrrev_b32 v{t}, 2, v{vN}
        v_lshl_add_u32 v{t}, v{vQ}, 2, v{t}
        v_lshlrev_b32 v{t}, 7, v{t}
        v_and_b32 v{t+1}, 3, v{vN}
        v_lshl_add_u32 v{t}, v{t+1}, 3, v{t}
        s_lshl_b32 s{sT2}, s{sW}, 5
        s_add_u32 s{sT2}, s{sT2}, {L_STG}
        v_add_u32 v{vRA}, s{sT2}, v{t}
    """)
    else:
        k.e(f"""
        s_cmp_eq_u32 s{sWR}, 0
        s_cselect_b32 s{rT}, s{pCre}, s{pCim}
        s_cselect_b32 s{rT+1}, s{pCre+1}, s{pCim+1}
        s_mov_b32 s{rT+2}, {640*1280}
        s_lshl_b32 s{sT2}, s{sT1}, 1
        s_add_u32 s{sT2}, s{sT2}, s{sWC}
        s_mul_i32 s{sRpSrc}, s{sT2}, {8*1280}
        s_mul_i32 s{sT2}, s{sT1}, 13108
        s_lshr_b32 s{sT2}, s{sT2}, 16
        s_mul_i32 s{sT2}, s{sT2}, 435
        s_add_u32 s{sT1}, s{sT1}, s{sT2}
        s_lshl_b32 s{sT2}, s{sT0}, 1
        s_add_u32 s{sT2}, s{sT2}, s{sWR}
        s_mul_i32 s{sT2}, s{sT2}, 110
        s_add_u32 s{sT1}, s{sT1}, s{sT2}
        s_mul_i32 s{sT2}, s{sWC}, 25
        s_add_u32 s{sT1}, s{sT1}, s{sT2}
        s_add_u32 s{sT1}, s{sT1}, 60
        s_lshl_b32 s{sT1}, s{sT1}, 10
        s_add_u32 s{sRpD}, s{sT1}, {WS_WP}
        s_add_u32 s{sRpD+1}, s{sRpD}, 5120
        s_add_u32 s{sRpD+2}, s{sRpD}, 10240
        s_add_u32 s{sRpD+3}, s{sRpD}, 15360
        s_add_u32 s{sRpD+4}, s{sRpD}, 20480
        s_mul_i32 s{sT2}, s{sW}, 160
        v_lshlrev_b32 v{t+2}, 7, v{vN}
        v_add_u32 v{t+2}, {L_STG}, v{t+2}
        """)
        for x, (off, sh) in enumerate(((0, 4), (80, 4), (64, 2), (144, 2))):
            k.e(f"""
            s_add_u32 s{sT3}, s{sT2}, {off}
            v_lshl_add_u32 v{t}, v{vQ}, {sh}, s{sT3}
            v_lshrrev_b32 v{t+1}, 7, v{t}
            v_and_b32 v{t}, 127, v{t}
            v_lshl_add_u32 v{t}, v{t+1}, 12, v{t}
            v_add_u32 v{vRA+x}, v{t}, v{t+2}
            """)
    k.e(f"""
    s_mul_i32 s{sT0}, s{sT0}, 640
    s_add_u32 s{sRpSrc}, s{sRpSrc}, s{sT0}
    """)
def repack_dma():
    return [dma(vDR, rT, sRpSrc, g * 128, sLR, L_STG + g * 4096, "rp%d" % g, OPT["nt_rp"]) for g in range(5)]
RP = 136
def RPR(tag, o, n): return V(RP + o, n)
def repack_read(tag):
    if True:
        return [DSF(f"ds_read_b64_tr_b16 {V(RP+4*i+2*h,2)}, v{vRA} offset:{i*4096 + h*2048}") for i in range(5) for h in range(2)]
    return [DSF(f"ds_read_b128 {V(RP+4*x,4)}, v{vRA + x//2} offset:{(x & 1)*2048}") for x in range(4)] + \
           [DSF(f"ds_read_b32 v{RP+16+x}, v{vRA + 2 + x//2} offset:{(x & 1)*2048}") for x in range(4)]
def repack_store(tag):
    return [VM(f"buffer_store_dwordx4 {RPR(tag, 4*i, 4)}, v{vRS}, s[{rWS}:{rWS+3}], s{sRpD+i} offen sc1", ("rps", i), ta=240) for i in range(5)]
def repack_flag():
    t = vT
    pre = lines(f"""
    v_mov_b32 v{t}, s{sNonce}
    v_mov_b32 v{t+1}, s{sNonce}
    s_lshl_b32 s{sRpSrc}, s{sUnit}, 7
    s_lshl_b32 s{sT1}, s{sW}, 4
    s_add_u32 s{sRpSrc}, s{sRpSrc}, s{sT1}
    s_add_u32 s{sRpSrc}, s{sRpSrc}, {WS_RF}
    s_add_u32 s{sRpSrc}, s{sRpSrc}, 16384
    v_lshlrev_b32 v{t+2}, 26, v{vL}
    v_or_b32 v{t+2}, s{sDis}, v{t+2}
    """)
    def f():
        k.wait_vm(("rps", 4))
        k.vmem(f"buffer_store_dwordx2 {V(t,2)}, v{t+2}, s[{rWS}:{rWS+3}], s{sRpSrc} offen sc1", "rf")
    return pre, F(f, 3, ta=20)

def bfr(d, s): return f"v_cvt_pk_bf16_f32 v{d}, v{s}, v{s}\nv_and_b32 v{d}, 0xffff0000, v{d}\n"
def nonce_load():
    return lines(f"v_mov_b32 v{vNc}, 0") + [VM(f"global_load_dword v{vNc}, v{vNc}, s[{pDbg}:{pDbg+1}] sc1", "nc", ta=20)]
def rowstat_job(tag):
    t = vT + 20
    S_, Q, MEAN, VAR, S1, X, Y = t, t+1, t+2, t+3, t+4, t+5, t+6
    G0, G1 = t+8, t+12
    M1, A1, A2, AM = G0, G0+2, G1, G1+2
    def dots():
        k.wait_vm("xr")
        s = f"v_mov_b32 v{X}, 0x3f803f80\nv_mov_b32 v{S_}, 0\nv_mov_b32 v{Q}, 0\n"
        for i in range(10): s += f"v_dot2c_f32_bf16 v{S_}, v{XR+i}, v{X}\nv_dot2c_f32_bf16 v{Q}, v{XR+i}, v{XR+i}\n"
        s += "s_nop 2\n"
        k.e(s)
    fl = [F(dots, 24)]
    for d in ("row_shr:1", "row_shr:2", "row_shr:4", "row_shr:8", "row_bcast:15"):
        rm = "0xa" if "bcast" in d else "0xf"
        fl.append(F(lambda d=d, rm=rm: k.e(f"v_add_f32_dpp v{S_}, v{S_}, v{S_} {d} row_mask:{rm} bank_mask:0xf bound_ctrl:0"), 1, sep=True))
        fl.append(F(lambda d=d, rm=rm: k.e(f"v_add_f32_dpp v{Q}, v{Q}, v{Q} {d} row_mask:{rm} bank_mask:0xf bound_ctrl:0"), 1))
    fl += lines(f"""
    v_mul_f32 v{MEAN}, {hx(1/640)}, v{S_}
    v_mul_f32 v{VAR}, {hx(1/640)}, v{Q}
    v_fma_f32 v{VAR}, -v{MEAN}, v{MEAN}, v{VAR}
    v_max_f32 v{VAR}, 0, v{VAR}
    {bfr(M1, MEAN)}{bfr(X, VAR)}
    v_add_f32 v{X}, {hx(1e-5)}, v{X}
    {bfr(X, X)}
    v_sqrt_f32 v{X}, v{X}
    v_sub_f32 v{Y}, v{MEAN}, v{M1}
    {bfr(S1, X)}
    v_rcp_f32 v{A1}, v{S1}
    s_nop 0
    v_mul_f32 v{Y}, v{Y}, v{A1}
    v_mul_f32 v{X}, v{VAR}, v{A1}
    {bfr(Y, Y)}
    v_mul_f32 v{X}, v{X}, v{A1}
    {bfr(X, X)}
    v_add_f32 v{X}, {hx(1e-5)}, v{X}
    {bfr(X, X)}
    v_sqrt_f32 v{X}, v{X}
    v_fma_f32 v{Y}, v{Y}, v{S1}, v{M1}
    {bfr(X, X)}
    v_mul_f32 v{X}, v{X}, v{S1}
    v_rcp_f32 v{A2}, v{X}
    v_and_b32 v{X}, 31, v{vL}
    v_mul_f32 v{AM}, v{A2}, v{Y}
    v_sub_u32 v{X}, 31, v{X}
    v_and_b32 v{Y}, 32, v{vL}
    v_lshl_add_u32 v{X}, v{X}, 26, v{Y}
    s_lshl_b32 s{sT0}, s{sHw}, 5
    s_add_u32 s{sT0}, s{sT0}, {WS_RS}
    """)
    def nonce():
        k.wait_vm("nc")
        k.e(f"""
        v_readfirstlane_b32 s{sNonce}, v{vNc}
        s_cmp_lg_u32 s{sNonce}, 0
        s_cbranch_scc1 L_ncok_{tag}
        L_ncl_{tag}:
        s_sleep 1
        global_load_dword v{vNc}, v{Y}, s[{pDbg}:{pDbg+1}] sc1
        s_sub_u32 s{sSpin}, s{sSpin}, 1
        s_cbranch_scc1 L_end
        s_waitcnt vmcnt(0)
        v_readfirstlane_b32 s{sNonce}, v{vNc}
        s_cmp_eq_u32 s{sNonce}, 0
        s_cbranch_scc1 L_ncl_{tag}
        L_ncok_{tag}:
        s_nop 0
        """)
    fl += lines(f"v_mov_b32 v{Y}, 0") + [F(nonce, 4)]
    fl += lines(f"""
    v_mov_b32 v{G0+1}, s{sNonce}
    v_mov_b32 v{G0+3}, s{sNonce}
    v_mov_b32 v{G1+1}, s{sNonce}
    v_mov_b32 v{G1+3}, s{sNonce}
    """)
    fl.append(VM(f"buffer_store_dwordx4 {V(G0,4)}, v{X}, s[{rWS}:{rWS+3}], s{sT0} offen sc1", "rs", ta=20))
    fl.append(VM(f"buffer_store_dwordx4 {V(G1,4)}, v{X}, s[{rWS}:{rWS+3}], s{sT0} offen offset:16 sc1", "rs", ta=20))
    return fl
RSV = 124
def rowstat_fetch():
    fl = lines(f"""
    s_lshl_b32 s{sT0}, s{sMT}, 12
    s_add_u32 s{sT0}, s{sT0}, {WS_RS}
    v_lshlrev_b32 v{RSV+4}, 4, v0
    v_add_u32 v{RSV+4}, s{sT0}, v{RSV+4}
    """)
    return fl + [VM(f"buffer_load_dwordx4 {V(RSV,4)}, v{RSV+4}, s[{rWS}:{rWS+3}], 0 offen sc1", "rsv")]

def ta_of(op): return sum(f.ta for f in flat([op]))
def main_loop(typ, jobs, vq, bg):
    q = [(max(0, 2*st - 5), max(2*st - 4 + (x >= 5) - OPT.get('lag', 0), x >= 5), op) for st in range(2, NST) for x, op in enumerate(dma_stage(typ, st))]
    if OPT.get("burst"):
        q = [(e_, e_ if e_ else d_, op) for e_, d_, op in q]
        ring_ids = {id(x[2]) for x in q}
    q = sorted(q + vq, key=lambda x: x[1])
    credit = [OPT.get("credit0", 0)]
    def take(bi, n):
        credit[0] = min(credit[0] + n * 17 * OPT["util"], n * 17 + 100) - sum(ta_of(x) for x in jobs.get(("pre", bi), []) + jobs.get(bi, []))
        out = []
        while True:
            c = [x for x in q if x[0] <= bi]
            if OPT.get("burst") and bi % 2 == 1 and bi < 15: c = [x for x in c if id(x[2]) in ring_ids or x[1] <= bi]
            if not c or ((credit[0] < 33 or len(out) >= (OPT['ctail'] if typ == 'ssm' and bi >= 15 else OPT.get('cap', 6))) and c[0][1] > bi): break
            q.remove(c[0]); out.append(c[0][2]); credit[0] -= ta_of(c[0][2])
        if OPT.get('show'): print(typ, bi, len(out), len(jq), len(bg), int(credit[0]), dict(issued))
        return flat(out)
    jq = []
    stamp(15)
    if OPT["rsp"] in (1, 3): run(jobs["rsmath"])
    tl = VM(f"global_load_dword v{vJunk}, v{vPF}, s[{sPB}:{sPB+1}]", "tch", ta=120)
    st1 = dma_stage(typ, 1)
    if OPT["tch"] == 4: st1.insert(5, [tl])
    run(st1)
    if OPT["tch"] == 3: tl()
    if OPT["rsp"] in (2, 4): run(jobs["rsmath"])
    if OPT['pf']:
        for _ in range(OPT['pfa'][2]): pf(0)()
    stamp(62)
    k.wait_vm(("st", 0)); k.e("s_barrier")
    stamp()
    run(frag_reads(typ, 0, 0, 0))
    def block(bi, m, reads, n):
        curblk[0] = bi
        run(jobs.get(("pre", bi), []))
        jq.extend(jobs.get(bi, []))
        jq[:0] = jobs.get(("front", bi), [])
        d = take(bi, n)
        n = len(m)
        if bi == 2*NST - 1: reads, r0 = jobs["last"], 9
        else: r0 = 0
        sched(m, [(d, 0, n - 1 if not (OPT.get("burst") and bi % 2 == 0 and bi < 15) else n * OPT["burst"], True), (reads, r0, n - OPT.get("rend", 6), True), (jobs["tail"] if r0 else [], 0, 9, True), (jq, 0, n, False), (bg if bi >= OPT.get("bg0", 1) else [], 0, n, False)])
    for s in range(NST):
        k.wait_lg()
        m = mfmas(typ, s, 0, 0)
        block(2*s, m, frag_reads(typ, s, 1, 1), len(m))
        k.wait_lg()
        m = mfmas(typ, s, 1, 1)
        k.e(m[0]); k.e(m[1])
        if s + 1 < NST:
            if OPT.get("fine"): stamp(16 + 3*s)
            assert issued.get(s + 1, 0) == (10 if typ == "mlp" else 9), (typ, s, issued)
            for tg in jobs.get(("wait", s), []): assert tg in k.seen, tg
            k.wait_vm([("st", s + 1)] + jobs.get(("wait", s), []))
            if OPT.get("fine"): stamp(17 + 3*s)
            k.e("s_barrier")
        block(2*s + 1, m[2:], frag_reads(typ, s + 1, 0, 0) if s + 1 < NST else [], len(m))
    assert not jq and (len(bg) < 12 or OPT.get('x')), (len(jq), len(bg))
    run(bg)
    stamp()
    if OPT["stop"] == "loop":
        k.e("s_branch L_fin"); k.seen.update(["rsv", ("rps", 4), "b1"])
    return [x[2] for x in q]

WSLOT = [("a", 108 + 20*x) for x in range(7)] + [("a", 20*x) for x in range(5)] + [("v", 100 + 20*x) for x in range(3)]
NREG = 15
def wreg(tk): return WSLOT[tk]
def kaddr(dst, base, tk, stride):
    return lines(f"s_cmp_gt_u32 s{sLim}, {tk} | s_cselect_b32 s{dst}, s{base}, s{base+1}\ns_add_u32 s{dst}, s{dst}, {tk*stride}")
def wload(tk):
    kind, base = wreg(tk)
    out = []
    for i in range(5):
        op = []
        if i == 0: op += kaddr(sT2, sWa, tk, 5120) if cur[0] == "mlp" else lines(f"s_add_u32 s{sT2}, s{sLim+1}, {tk*5120}")
        if i == 4: op += lines(f"s_add_u32 s{sT2}, s{sT2}, 4096")
        op.append(VM(f"buffer_load_dwordx4 {R(kind, base+4*i, 4)}, v{vL16}, s[{rWS}:{rWS+3}], s{sT2} offen offset:{(i & 3)*1024} sc1", ("w", tk)))
        out.append(op)
    return out
RFV = 24
sWLb, sTx = 34, 35
MV = OPT["mv"]
NK = {"mlp": 12 - MV, "ssm": 10 + MV}
def p2_addr(typ):
    n_ = NK[typ]; k0 = 0 if typ == "mlp" else 12
    if typ == "mlp":
        k.e(f"""
        v_min_u32 v{vT+2}, {4*n_ - 1}, v{vL}
        s_mul_i32 s{sT0}, s{sW}, 24
        s_lshr_b32 s{sT1}, s{sDT}, 2
        s_add_u32 s{sT0}, s{sT0}, s{sT1}
        s_lshl_b32 s{sT0}, s{sT0}, 7
        s_add_u32 s{sT0}, s{sT0}, {WS_RF + 16384}
        v_lshrrev_b32 v{vT}, 2, v{vT+2}
        v_and_b32 v{vT+1}, 3, v{vT+2}
        """)
        k.e(f"v_lshlrev_b32 v{vT}, 8, v{vT}\nv_lshl_add_u32 v{vT}, v{vT+1}, 4, v{vT}\nv_add_u32 v{RFV}, s{sT0}, v{vT}")
    k.e(f"""
    s_and_b32 s{sT2}, s{sDT}, 3
    s_add_u32 s{sT2}, s{sT2}, s{sML}
    s_and_b32 s{sT2}, s{sT2}, 3
    s_mul_i32 s{sT2}, s{sT2}, {n_ * OPT['rot2'] if typ == 'mlp' else 0}
    s_lshr_b32 s{sT2}, s{sT2}, 2
    s_sub_u32 s{sLim}, {n_ if typ == 'mlp' else 10}, s{sT2}
    s_mul_i32 s{sT0}, s{sW}, 22
    s_add_u32 s{sT0}, s{sT0}, s{sT2}
    s_add_u32 s{sT0}, s{sT0}, {k0}
    s_mul_i32 s{sT1}, s{sDT}, 88
    s_add_u32 s{sT1}, s{sT1}, s{sT0}
    s_mul_i32 s{sT1}, s{sT1}, 5120
    {f"s_add_u32 s{sWa}, s{sT1}, {WS_WP}" if typ == "mlp" else f"s_add_u32 s{sLim+1}, s{sT1}, {WS_WP - n_*5120}"}
    {f"s_sub_u32 s{sWa+1}, s{sWa}, {n_*5120}" if typ == "mlp" else ""}
    s_lshl_b32 s{sT1}, s{sMT}, 1
    s_add_u32 s{sT1}, s{sT1}, s{sHALF}
    s_mul_i32 s{sT2}, s{sT1}, 88
    s_add_u32 s{sT2}, s{sT2}, s{sT0}
    s_lshl_b32 s{sT2}, s{sT2}, 12
    s_add_u32 s{sHa+2}, s{sT2}, {WS_H}
    s_sub_u32 s{sHa+3}, s{sHa+2}, {n_*4096}
    s_{'add' if typ == 'mlp' else 'sub'}_u32 s{sHa}, s{sHa+2}, {88*4096}
    s_sub_u32 s{sHa+1}, s{sHa}, {n_*4096}
    s_mul_i32 s{sWLb}, s{sW}, {WLW}
    s_add_u32 s{sWLb}, s{sWLb}, {L_WL}
    """)
def rflag_fetch(vd):
    k.vmem(f"buffer_load_dwordx2 {V(vd,2)}, v{RFV}, s[{rWS}:{rWS+3}], 0 offen sc1", "rfv")
def check(tag, vaddr, vd, width=2, second=1):
    k.e(f"""
    L_chk_{tag}:
    v_cmp_ne_u32 vcc, s{sNonce}, v{vd + (1 if width == 4 else 0)}
    v_cmp_ne_u32 s[{sT0}:{sT1}], s{sNonce}, v{vd + (3 if width == 4 else 1)}
    s_or_b64 vcc, vcc, s[{sT0}:{sT1}]
    s_cmp_eq_u64 vcc, 0
    s_cbranch_scc1 L_chkok_{tag}
    s_sub_u32 s{sSpin}, s{sSpin}, 1
    s_cbranch_scc1 L_end
    buffer_load_dwordx{width} {V(vd,width)}, v{vaddr}, s[{rWS}:{rWS+3}], 0 offen sc1
    s_waitcnt vmcnt(0)
    s_branch L_chk_{tag}
    L_chkok_{tag}:
    """)
vCD = 20
sCU = [18, 19, 20, 21, 35]
sCs, sCt = 42, 43
def c_setup():
    t = vT
    srd(rT2, pCim, 640 * 1280)
    if OPT['rpown'] == 'ssm': k.e(f"s_mov_b64 s[{sEx}:{sEx+1}], s[{pCre}:{pCre+1}]")
    else: srd(rT, pCre, 640 * 1280)
    for g in range(5):
        k.e(f"""
        v_add_u32 v{t}, {64*g}, v{vL}
        v_mul_u32_u24 v{t+1}, 3277, v{t}
        v_lshrrev_b32 v{t+1}, 16, v{t+1}
        v_mul_u32_u24 v{t+2}, 20, v{t+1}
        v_sub_u32 v{t+2}, v{t}, v{t+2}
        v_mul_u32_u24 v{t+1}, 1280, v{t+1}
        v_lshl_add_u32 v{vCD+g}, v{t+2}, 4, v{t+1}
        """)
    k.e(f"""
    s_mul_i32 s{sCs}, s{sDT}, {80*1280}
    s_mul_i32 s{sT0}, s{sW}, 320
    s_add_u32 s{sCs}, s{sCs}, s{sT0}
    s_mul_i32 s{sT1}, s{sW}, 5120
    s_add_u32 s{sCU[0]}, s{sT1}, 20480
    s_add_u32 s{sCU[1]}, s{sT1}, 110592
    s_add_u32 s{sCU[2]}, s{sT1}, 57344
    s_add_u32 s{sCU[3]}, s{sT1}, 131072
    s_mov_b32 s{sT0}, 77824
    s_cmp_eq_u32 s{sWR}, 0
    s_cselect_b32 s{sT0}, s{sT0}, 141312
    s_add_u32 s{sCU[4]}, s{sT1}, s{sT0}
    """)
def c_dma(i, rs, tag):
    out = []
    for g in range(5):
        op = lines(f"s_add_u32 s{sCt}, s{sCs}, {i*16*1280}") if g == 0 else []
        out.append(op + lines(f"s_add_u32 m0, s{sCU[i]}, {g*1024}") + [VM(f"buffer_load_dwordx4 v{vCD+g}, s[{rs}:{rs+3}], s{sCt} offen lds", tag, sep=True, ta=80)])
    return out
def c_read(im, B):
    k.e(f"""
    v_mul_u32_u24 v{B[5]}, 320, v{vN}
    v_lshl_add_u32 v{B[2]}, v{vQ}, 4, v{B[5]}
    v_lshrrev_b32 v{B[4]}, 1, v{vQ}
    v_mul_u32_u24 v{B[4]}, 80, v{B[4]}
    v_add_u32 v{B[5]}, v{B[5]}, v{B[4]}
    v_add_u32 v{B[0]}, s{sCU[0]}, v{B[2]}
    v_add_u32 v{B[1]}, s{sCU[1]}, v{B[2]}
    v_add_u32 v{B[2]}, s{sCU[4]}, v{B[2]}
    v_add_u32 v{B[3]}, s{sCU[0]}, v{B[5]}
    v_add_u32 v{B[4]}, s{sCU[1]}, v{B[5]}
    v_add_u32 v{B[5]}, s{sCU[4]}, v{B[5]}
    """)
    where = [(0, 0), (1, 0), (0, 57344 - 20480), (1, 131072 - 110592), (2, 0)]
    for a_ in range(2):
        for wr_ in range(2):
            kind, base = wreg(5*a_ + 2*wr_ + im)
            for i, (b_, o_) in enumerate(where):
                k.ds(f"ds_read_b128 {R(kind, base+4*i, 4)}, v{B[b_]} offset:{o_ + 160*a_ + 80*wr_}", "cr")
    m_ = "0xffff0000" if im else "0x0000ffff"
    k.e(f"s_mov_b32 exec_lo, {m_}\ns_mov_b32 exec_hi, {m_}")
    for a_ in range(2):
        kind, base = wreg(5*a_ + 4)
        for i, (b_, o_) in enumerate(where):
            k.ds(f"ds_read_b128 {R(kind, base+4*i, 4)}, v{B[3+b_]} offset:{o_ + 160*a_ + 64}", "cr")
    k.e("s_mov_b64 exec, -1")

def common_jobs(typ):
    j = {}
    def add(key, items): j[key] = j.get(key, []) + items
    j[0] = nonce_load()
    rj = rowstat_job(typ)
    if OPT["rsp"]:
        j["rsmath"] = rj[:-10]; j[2] = rj[-10:]; vq = []
    else:
        xb = OPT.get("xrb", 0)
        j[xb + 3] = rj; vq = [(xb, xb + 1.5, op) for op in xr_loads()]
        j[0] = []; j[xb + 1] = nonce_load()
    if OPT['pf']:
        for bi in OPT['pfb']: add(('pre', bi), [pf(0)])
    if typ == OPT["rpown"]:
        r0, rpst, rpfl = OPT["rp_" + typ]
        assert r0 % 2 == 1
        add(("wait", (r0 - 1) // 2), ["rp4"])
        add(("pre", r0), repack_read(typ))
        for f, bi in zip(repack_store(typ), rpst): add(("pre", bi), [f])
        vq += [OPT["rpd_" + typ] + (op,) for op in repack_dma()]
        a_, b_ = repack_flag()
        d_ = {}
        add(min(rpfl, 15) - 5, a_ + [note(d_, 1)])
        if rpfl < 20: add(("pre", rpfl), [F(lambda: d_[1], 0), b_])
        else: j["rpflag"] = b_
        if typ == "ssm":
            assert OPT.get("c0", 12) > r0 + 2
            add(("pre", r0), lines(f"s_mov_b32 s{rT}, s{sEx}\ns_mov_b32 s{rT+1}, s{sEx+1}\ns_mov_b32 s{rT+2}, {640*1280}"))
    if typ == "ssm":
        vq += [(e_, 99, op) for i, e_ in zip((0, 1, 2, 3, 4), (OPT.get("c0", 12), 15, 17, 17, 17)) for op in c_dma(i, rT, "cre")]
    else:
        if OPT["tmlp"] >= 0: add(OPT["tmlp"], touch_c())
        bi = OPT["rf_mlp"]
        RD_ = vT + 4
        if bi <= 20: add(("pre", bi - 1), [F(lambda: rflag_fetch(RD_), 2, ta=50)])
        def chk():
            k.wait_vm("rfv"); check("rf_" + typ, RFV, RD_)
        j["rfchk"] = chk
        if bi < 20:
            add(("pre", bi), [F(chk, 6)])
            vq += [(bi, 99, op) for tk in range(7) for op in wload(tk)]
    stats_jobs(typ, j)
    if 6 in OPT.get("x", ()) and typ == "mlp":
        for bi in range(20): j[("pre", bi)] = [f for f in j.get(("pre", bi), []) if f.ta != 240]
        k.seen.add(("rps", 4))
    keep = OPT.get("keep")
    if keep is not None:
        assert OPT["stop"] == "loop"
        j2 = {"last": j["last"], "tail": j["tail"]}
        v2 = []
        if "rs" in keep:
            j2[0] = j[0]; j2[3] = j[3]; v2 += [v for v in vq if v[1] == 1.5]
        if "rp" in keep and typ == "mlp":
            for key in j:
                if isinstance(key, tuple) and key[0] == "pre" and key[1] < 12: j2[key] = j[key]
            j2[("wait", 1)] = j[("wait", 1)]
            v2 += [v for v in vq if v[1] == OPT["rpd_mlp"][1]]
        if "c" in keep and typ == "ssm": v2 += [v for v in vq if v[1] == 99]
        k.seen.update(["cre", "ep", "xr", "nc"] + [("w", x) for x in range(12)])
        return j2, v2
    if 9 in OPT.get("x", ()):
        j[3] = j[3][-16:]
        vq = [v for v in vq if v[1] != 1.5]
    if 8 in OPT.get("x", ()) and typ == "ssm":
        vq = [v for v in vq if v[1] != 99]; k.seen.add("cre")
    return j, vq

TK = vT + 8
SA = 76
def stats_jobs(typ, j):
    nr = 6 if typ == "mlp" else 5
    L_SC, SCW = L_SCS[typ]
    k.e(f"""
    s_mul_i32 s{sT0}, s{sW}, {SCW}
    s_add_u32 s{sT0}, s{sT0}, {L_SC}
    v_lshlrev_b32 v{SA+1}, 4, v{vQ}
    v_add_u32 v{SA}, s{sT0}, v{SA+1}
    v_min_u32 v{SA+2}, 1, v{vN}
    v_mul_u32_u24 v{SA+2}, 0x30000, v{SA+2}
    v_add_u32 v{SA}, v{SA}, v{SA+2}
    s_mul_i32 s{sT0}, s{sWR}, {2*SCW}
    s_add_u32 s{sT0}, s{sT0}, {L_SC}
    v_add_u32 v{SA+1}, s{sT0}, v{SA+1}
    s_lshl_b32 s{sT0}, s{sWC}, 10
    v_lshlrev_b32 v{SA+2}, 6, v{vN}
    v_add_u32 v{SA+2}, s{sT0}, v{SA+2}
    v_lshlrev_b32 v{SA+3}, 3, v0
    """)
    j[OPT.get('rsb', 13)] = j.get(OPT.get('rsb', 13), []) + rowstat_fetch()
    def chk():
        k.wait_vm("rsv")
        check("rs_" + typ, RSV + 4, RSV, 4)
        k.ds(f"ds_write2_b32 v{SA+3}, v{RSV}, v{RSV+2} offset0:{L_TOK//4} offset1:{L_TOK//4+1}")
    j[("pre", 16)] = j.get(("pre", 16), []) + [F(chk, 8)]
    j["tail"] = [DSF(f"ds_read_b128 {V(TK+4*x,4)}, v{SA+2} offset:{L_TOK + x*16}") for x in range(4)]
    j["last"] = [DSF(f"ds_write_b128 v{SA}, {A(aCS+4*i,4)} offset:{i*64}") for i in range(nr)]
def stats(typ):
    nr = 6 if typ == "mlp" else 5
    CS = vT + 24; P2 = 100
    SCW = L_SCS[typ][1]
    k.wait_lg(); k.e("s_barrier")
    for i in range(nr):
        k.ds(f"ds_read_b128 {V(P2+4*i,4)}, v{SA+1} offset:{SCW+i*64}", ("cs", i))
    for i in (0, 1, 2, 4, 5, 3)[:nr + 1]:
        if i < nr: k.ds(f"ds_read_b128 {V(CS+4*i,4)}, v{SA+1} offset:{i*64}", ("cs", i))
    return TK, CS, P2
def stats_sum(typ, CS, P2):
    k.wait_lg()
    for i in range(6 if typ == "mlp" else 5):
        for h in range(2):
            k.e(f"v_pk_add_f32 {V(CS+4*i+2*h,2)}, {V(CS+4*i+2*h,2)}, {V(P2+4*i+2*h,2)}")

class Feeder:
    def __init__(self, jobs, every): self.jobs, self.every, self.n = list(jobs), every, 0
    def tick(self, n=1):
        self.n += n
        while self.n >= self.every and self.jobs:
            self.n -= self.every; run([self.jobs.pop(0)])
    def flush(self):
        while self.jobs: run([self.jobs.pop(0)])

HB = 88 * 4096
def h_base():
    k.e(f"""
    s_mul_i32 s{sH}, s{sMT}, {2*HB}
    s_lshl_b32 s{sT0}, s{sWC}, 11
    s_add_u32 s{sH}, s{sH}, s{sT0}
    s_add_u32 s{sH}, s{sH}, {WS_H}
    s_lshr_b32 s{sT0}, s{sNT}, 1
    s_mul_i32 s{sT0}, s{sT0}, 22
    s_and_b32 s{sT1}, s{sNT}, 1
    """)
HRING = [[("v", 40 + 4*s) for s in range(4)], [("v", 56 + 4*s) for s in range(4)], [("v", 72 + 4*s) for s in range(4)],
         [("a", 100), ("a", 104), ("a", 248), ("a", 252)]]
NR = len(HRING)
SPARE = [168, 172] + [acc(i, j) for i in range(1, 6) for j in (2, 3)]
NE = {"mlp": OPT["ne"], "ssm": 0}
vM26, vRw, vF, vFd, vHs, vNP, XO, LO = 24, 27, 28, 30, 32, 36, 38, 39
RES = 4
sPA, sPB_, sFA, sNP = 36, 64, 32, 84
def flag_late(own):
    k.e(f"""
    s_mov_b32 s{sLW}, s{own}
    s_xor_b32 s{sLX}, s{own}, 32
    s_mov_b32 s{sNP}, s{sNonce}
    s_mov_b32 s{sNP+1}, s{sNonce}
    v_mov_b32 v{vNP}, s{sNonce}
    v_mov_b32 v{vNP+1}, s{sNonce}
    v_lshlrev_b32 v{vM26}, 26, v{vL}
    """)
def flag_addr(own=sLW):
    k.e(f"""
    s_lshl_b32 s{sT0}, s{sMT}, 4
    s_lshl_b32 s{sT1}, s{sTYP}, 3
    s_add_u32 s{sT0}, s{sT0}, s{sT1}
    s_lshl_b32 s{sT1}, s{sW}, 1
    s_add_u32 s{sT1}, s{sT0}, s{sT1}
    s_lshl_b32 s{sT1}, s{sT1}, 7
    s_lshl_b32 s{sT3}, s{sTYP}, 5
    s_add_u32 s{sT3}, s{sT3}, {WS_HF}
    s_add_u32 s{sFA}, s{sT1}, s{sT3}
    s_xor_b32 s{sFA+1}, s{sFA}, 32
    s_add_u32 s{sT0}, s{sT0}, s{sNT}
    s_lshl_b32 s{sT0}, s{sT0}, 7
    s_lshl_b32 s{sT1}, s{sW}, 3
    s_add_u32 s{sT0}, s{sT0}, s{sT1}
    s_add_u32 s{own}, s{sT0}, s{sT3}
    """)
    if own == sLW: flag_late(own)
    for s in range(4):
        k.e(f"s_xor_b32 s{sT0}, s{sW}, {s}\ns_lshl_b32 s{sT0}, s{sT0}, 10\nv_add_u32 v{vHs+s}, s{sT0}, v{vL16}")
def spoll(h):
    return f"""s_add_u32 s{sT0}, s{sFA+h}, 128
    s_load_dwordx8 s[{sPA}:{sPA+7}], s[{pWs}:{pWs+1}], s{sFA+h} glc
    s_load_dwordx8 s[{sPB_}:{sPB_+7}], s[{pWs}:{pWs+1}], s{sT0} glc"""
def scheck(tag, h):
    k.e(f"s_branch L_sc1_{tag}\nL_sc0_{tag}:\ns_sub_u32 s{sSpin}, s{sSpin}, 1\ns_cbranch_scc1 L_end")
    k.e(spoll(h))
    if OPT.get("cnt") and tag == "hmmlp": k.e("s_add_u32 s101, s101, 1")
    k.e(f"L_sc1_{tag}:\ns_waitcnt lgkmcnt(0)"); k.lg = []
    for b_ in (sPA, sPB_):
        for x in range(4): k.e(f"s_cmp_eq_u64 s[{b_+2*x}:{b_+2*x+1}], s[{sNP}:{sNP+1}]\ns_cbranch_scc0 L_sc0_{tag}")
def put_flag(tag, so, track=True):
    k.wait_vm(tag)
    (k.vmem if track else lambda tx, tg: k.e(tx))(f"buffer_store_dwordx2 {V(vNP,2)}, v{vM26}, s[{rWS}:{rWS+3}], s{so} offen sc1", "fl")
def x_loads(X, t, sX=sX, issue=True):
    k.e(f"""
    s_lshl_b32 s{sT0}, s{sWR}, 6
    s_add_u32 s{sT0}, s{sT0}, s{sWC}
    s_lshl_b32 s{sT1}, s{sHALF}, 1
    s_add_u32 s{sT0}, s{sT0}, s{sT1}
    s_lshl_b32 s{sT1}, s{sMT}, 7
    s_add_u32 s{sT1}, s{sT1}, s{sT0}
    s_mul_i32 s{sX}, s{sT1}, 1280
    s_mul_i32 s{sT1}, s{sDT}, 160
    s_add_u32 s{sX}, s{sX}, s{sT1}
    s_lshl_b32 s{sT0}, s{sT0}, 4
    v_lshrrev_b32 v{t}, 2, v{vL}
    v_and_b32 v{LO}, 3, v{vL}
    v_lshlrev_b32 v{t+1}, 3, v{LO}
    v_mul_u32_u24 v{XO}, 5120, v{t}
    v_add_u32 v{XO}, v{XO}, v{t+1}
    v_bfe_u32 v{vFd}, v{t}, 1, 2
    v_xor_b32 v{LO}, v{LO}, v{vFd}
    v_lshlrev_b32 v{LO}, 4, v{LO}
    v_mad_u32_u24 v{LO}, v{t}, s{sT1}, v{LO}
    v_lshlrev_b32 v{t}, 6, v{t}
    v_add_u32 v{t}, s{sT0}, v{t}
    """.replace("    v_mad", f"    s_movk_i32 s{sT1}, {RROW}\n    v_mad"))
    ops = [VM(f"buffer_load_dwordx2 {V(X[g],2)}, v{XO}, s[{rX}:{rX+3}], s{sX} offen offset:{32*g}", "ep", ta=40) for g in range(5)]
    if issue: run(ops)
    return ops
def residual(X, t, U, fd=None):
    ED, EB, TKv = U, U + 10, U + 20
    k.ds(f"ds_read_b64 {V(TKv,2)}, v{t} offset:{L_TOK}", "tk")
    for reg, o_ in ((ED, 0), (EB, 160)):
        for g in range(5): k.ds(f"ds_read_b64 {V(reg+2*g,2)}, v{t+1} offset:{L_DB + o_ + 32*g}", "tk")
    k.wait_vm("ep"); k.wait_lg()
    if OPT["sp"] == 12.5 and cur[0] == "mlp": k.e(spoll(0))
    for g in range(5):
        if fd: fd.tick(1)
        if cur[0] == "ssm" and g == OPT.get("spg", 9): k.e(spoll(0))
        xf, df, bf_ = U + 22, U + 26, U + 30
        for src, dst in ((X[g], xf), (ED + 2*g, df), (EB + 2*g, bf_)):
            for h in range(2):
                k.e(f"v_lshlrev_b32 v{dst+2*h}, 16, v{src+h}\nv_and_b32 v{dst+2*h+1}, 0xffff0000, v{src+h}")
        A_ = [RES + 4*g, RES + 4*g + 2]
        def rnd():
            for a in A_: k.e(f"v_cvt_pk_bf16_f32 v{a+1}, v{a}, v{a+1}")
            for a in A_: k.e(f"v_lshlrev_b32 v{a}, 16, v{a+1}\nv_and_b32 v{a+1}, 0xffff0000, v{a+1}")
        for h, a in enumerate(A_): k.e(f"v_pk_add_f32 {V(a,2)}, {V(xf+2*h,2)}, {V(TKv,2)} op_sel:[0,0] op_sel_hi:[1,0] neg_lo:[0,1] neg_hi:[0,1]")
        rnd()
        for h, a in enumerate(A_): k.e(f"v_pk_mul_f32 {V(a,2)}, {V(a,2)}, {V(TKv,2)} op_sel:[0,1] op_sel_hi:[1,1]")
        rnd()
        for h, a in enumerate(A_): k.e(f"v_pk_mul_f32 {V(a,2)}, {V(a,2)}, {V(df+2*h,2)}")
        rnd()
        for h, a in enumerate(A_): k.e(f"v_pk_add_f32 {V(a,2)}, {V(a,2)}, {V(xf+2*h,2)}")
        for h, a in enumerate(A_): k.e(f"v_pk_add_f32 {V(a,2)}, {V(a,2)}, {V(bf_+2*h,2)}")
def residual_fill(t):
    ED = [176, 178, 180, 182, 192]; EB = [194, 196, 198, 208, 210]; TKv = 212
    U = [224, 240]
    out = [DSF(f"ds_read_b64 {V(TKv,2)}, v{t} offset:{L_TOK}", "tk")]
    for reg, o_ in ((ED, 0), (EB, 160)):
        out += [DSF(f"ds_read_b64 {V(reg[g],2)}, v{t+1} offset:{L_DB + o_ + 32*g}", "tk") for g in range(5)]
    run(out)
    out = [F(lambda: k.wait_lg("tk"), 1)]
    def chain(p_):
        x0, x1, t0, t1, d0, d1 = [U[p_ & 1] + x for x in range(6)]
        r0, r1 = RES + 2*p_, RES + 2*p_ + 1
        xi, di, bi = RES + 10 + p_, ED[p_ // 2] + (p_ & 1), EB[p_ // 2] + (p_ & 1)
        rnd = f"v_cvt_pk_bf16_f32 v{t1}, v{t0}, v{t1}\nv_lshlrev_b32 v{t0}, 16, v{t1}\nv_and_b32 v{t1}, 0xffff0000, v{t1}\n"
        return [l.strip() for l in f"""
        v_lshlrev_b32 v{x0}, 16, v{xi}
        v_and_b32 v{x1}, 0xffff0000, v{xi}
        v_sub_f32 v{t0}, v{x0}, v{TKv}
        v_sub_f32 v{t1}, v{x1}, v{TKv}
        {rnd}
        v_mul_f32 v{t0}, v{t0}, v{TKv+1}
        v_mul_f32 v{t1}, v{t1}, v{TKv+1}
        {rnd}
        v_lshlrev_b32 v{d0}, 16, v{di}
        v_and_b32 v{d1}, 0xffff0000, v{di}
        v_mul_f32 v{t0}, v{t0}, v{d0}
        v_mul_f32 v{t1}, v{t1}, v{d1}
        {rnd}
        v_lshlrev_b32 v{d0}, 16, v{bi}
        v_and_b32 v{d1}, 0xffff0000, v{bi}
        v_add_f32 v{t0}, v{x0}, v{t0}
        v_add_f32 v{t1}, v{x1}, v{t1}
        v_add_f32 v{r0}, v{t0}, v{d0}
        v_add_f32 v{r1}, v{t1}, v{d1}
        """.split("\n") if l.strip()]
    txt = []
    for p_ in range(0, 10, 2):
        for a_, b_ in zip(chain(p_), chain(p_ + 1)): txt += [a_, b_]
    return out + lines("\n".join(txt))
def hdest(typ, t):
    e_ = NE[typ]
    return [("v", SPARE[4*t + s]) for s in range(4)] if t < e_ else HRING[(t - e_) % NR]
def hload(typ, t):
    ring = hdest(typ, t); n_ = NK[typ]
    return kaddr(sT3, sHa + 2*(t // n_), t % n_, 4096), [[VM(f"buffer_load_dwordx4 {R(ring[s][0], ring[s][1], 4)}, v{vHs+s}, s[{rWS}:{rWS+3}], s{sT3} offen sc1", ("h", t))] for s in range(4)]
def h_issue(typ, ts):
    out = []
    for t in ts:
        a_, b_ = hload(typ, t); out.append(a_ + b_[0]); out += b_[1:]
    return out

def ones():
    k.e(f"v_mov_b32 v{vT+6}, 0x3f803f80")
    for i in range(4): k.e(f"v_accvgpr_write_b32 a{aONE+i}, v{vT+6}")

t = vT
WOFF["mlp"] = f"""
    v_and_b32 v{t+2}, 2, v{t}
    v_xor_b32 v{t+2}, v{t+1}, v{t+2}
    v_mul_u32_u24 v{t+3}, 3072, v{t}
    v_lshl_add_u32 v{vDW}, v{t+2}, 4, v{t+3}
    v_xor_b32 v{vDW+1}, 64, v{vDW}
    s_mul_i32 s{sB0}, s{sW}, {16*3072}
    s_mul_i32 s{sT0}, s{sNT}, 384
    s_add_u32 s{sB0}, s{sB0}, s{sT0}
    s_add_u32 s{sB2}, s{sB0}, {8*3072}
    s_lshl_b32 s{sLW}, s{sW}, 11
    """
def path_mlp():
    typ = "mlp"; t = vT
    late_common(typ)
    k.e(f"""
    v_lshrrev_b32 v{t}, 2, v{vN}
    v_lshl_add_u32 v{t+1}, v{vQ}, 3, v{t}
    v_lshlrev_b32 v{t+1}, 7, v{t+1}
    v_and_b32 v{t+2}, 3, v{vN}
    v_lshl_add_u32 v{t+1}, v{t+2}, 3, v{t+1}
    v_lshrrev_b32 v{t}, 1, v{t}
    v_and_b32 v{t+2}, 1, v{vQ}
    v_lshl_add_u32 v{t}, v{t+2}, 1, v{t}
    s_lshl_b32 s{sT0}, s{sKs}, 12
    s_add_u32 s{sT0}, s{sT0}, {L_W}
    v_add_u32 v{t+1}, s{sT0}, v{t+1}
    s_mul_i32 s{sT2}, s{sWR}, 6
    """)
    for i in range(4):
        k.e(f"""
        s_add_u32 s{sT3}, s{sT2}, {i}
        s_lshr_b32 s{sT0}, s{sT3}, 2
        s_lshl_b32 s{sT0}, s{sT0}, 13
        s_and_b32 s{sT3}, s{sT3}, 3
        v_xor_b32 v{t+2}, s{sT3}, v{t}
        v_lshl_add_u32 v{t+2}, v{t+2}, 5, v{t+1}
        v_add_u32 v{vWA+i}, s{sT0}, v{t+2}
        v_xor_b32 v{vWA+4+i}, 4096, v{vWA+i}
        """)
    Kc = 2 * 0.7978845608028654 * 1.4426950408889634
    k.e(f"s_mov_b32 s{sK}, {hx(-Kc*0.044715)}\ns_mov_b32 s{sK+1}, {hx(-Kc)}")
    ones()
    if not OPT['rsp']: xr_setup()
    if OPT['rpown'] == typ: repack_setup(typ)
    small_loads(typ)
    touch_setup()
    p2_addr(typ)
    stamp(14)
    jobs, vq = common_jobs(typ)
    k.e(f"s_mul_i32 s{sT0}, s{sWR}, 192\nv_lshlrev_b32 v{t+3}, 3, v{vQ}\nv_add_u32 v{t+3}, s{sT0}, v{t+3}")
    jobs["tail"] += [DSF(f"ds_read_b64 {V(vB1m+2*i,2)}, v{t+3} offset:{L_B1 + 32*i}") for i in range(6)]
    XT = 96; sXm, sOwn = 30, 31
    if OPT["hoist"]:
        flag_addr(sOwn)
        jobs[19] = x_loads([RES + 10 + 2*g for g in range(5)], XT, sXm, False)
    left = main_loop(typ, jobs, vq, [])
    TK, CS, P2 = stats(typ)
    stamp()
    if OPT["rf_mlp"] >= 20:
        if OPT["rf_mlp"] == 20: jobs["rfchk"]()
        left = [op for tk in range(7) for op in wload(tk)]
    pend = [(6 - (len(left) - 1 - x) // 5, op) for x, op in enumerate(left)] + [(tk, op) for tk in range(7, NK[typ]) for op in wload(tk)]
    if 5 in OPT.get("x", ()):
        pend = []; k.seen.update(("w", x) for x in range(12))
    ne = OPT.get("ne_mlp", 0)
    fd = Feeder([op for _, op in pend[:ne]], 29 * 12 // max(1, ne))
    pend = pend[ne:]
    h_base()
    k.e(f"""
    s_mul_i32 s{sT1}, s{sT1}, 6
    s_add_u32 s{sT0}, s{sT0}, s{sT1}
    s_mul_i32 s{sT1}, s{sWR}, 3
    s_add_u32 s{sT0}, s{sT0}, s{sT1}
    s_lshl_b32 s{sT0}, s{sT0}, 12
    s_add_u32 s{sH}, s{sH}, s{sT0}
    """)
    stats_sum(typ, CS, P2)
    B = 100
    for i in range(6):
        for h in range(2):
            k.e(f"v_lshlrev_b32 v{B+4*i+2*h}, 16, v{vB1m+2*i+h}\nv_and_b32 v{B+4*i+2*h+1}, 0xffff0000, v{vB1m+2*i+h}")
    TM = 124
    OUT = [88, 92]
    XT = 96
    if OPT["rf_mlp"] > 20: k.e(f"v_mov_b32 v{vT+6}, v{RFV}")
    if OPT["hoist"]:
        flag_late(sOwn); k.e(f"s_mov_b32 s{sX}, s{sXm}")
    else:
        flag_addr()
        x_loads([RES + 10 + 2*g for g in range(5)], XT)
    k.e(f"s_add_u32 s{sB0}, s{sH}, {HB}")
    n_ = 0
    for hf, u, j in [(hf, u, 2*hf + jj) for hf in (1, 0) for u in range(3) for jj in range(2)]:
        if True:
            o = OUT[n_ & 1]; n_ += 1
            if n_ == 2 and "rpflag" in jobs: jobs["rpflag"]()
            if n_ == OPT["rfg"] and OPT["rf_mlp"] > 20: k.vmem(f"buffer_load_dwordx2 {V(vT+4,2)}, v{vT+6}, s[{rWS}:{rWS+3}], 0 offen sc1", "rfv")
            if n_ == OPT["fa"]: put_flag(("hs", 1), sLW)
            if n_ == OPT.get('sp', 12): k.e(spoll(0))
            k.raw(".p2align 3")
            prs = [(2*u + ii, h) for ii in range(2) for h in range(2)]
            Z = [acc(i, j) + 2*h for i, h in prs]
            T1 = [TM + 2*x for x in range(4)]; T2 = [TM + 8 + 2*x for x in range(4)]
            for x, (i, h) in enumerate(prs):
                k.e(f"v_pk_fma_f32 {V(T1[x],2)}, {V(CS+4*i+2*h,2)}, {V(TK+4*j+2,2)}, {V(B+4*i+2*h,2)} op_sel:[0,1,0] op_sel_hi:[1,1,1] neg_lo:[0,1,0] neg_hi:[0,1,0]")
            for x in range(4):
                k.e(f"v_pk_fma_f32 {V(Z[x],2)}, {V(Z[x],2)}, {V(TK+4*j+2,2)}, {V(T1[x],2)} op_sel:[0,0,0] op_sel_hi:[1,0,1]")
            fd.tick(12)
            for x in range(4): k.e(f"v_pk_mul_f32 {V(T1[x],2)}, {V(Z[x],2)}, {V(Z[x],2)}")
            for x in range(4): k.e(f"v_pk_fma_f32 {V(T1[x],2)}, {V(T1[x],2)}, s[{sK}:{sK+1}], s[{sK}:{sK+1}] op_sel:[0,0,1] op_sel_hi:[1,0,1]")
            for x in range(4): k.e(f"v_pk_mul_f32 {V(T1[x],2)}, {V(T1[x],2)}, {V(Z[x],2)}")
            for x in range(4): k.e(f"v_exp_f32 v{T2[x]}, v{T1[x]}\nv_exp_f32 v{T2[x]+1}, v{T1[x]+1}")
            fd.tick(12)
            for x in range(4): k.e(f"v_pk_add_f32 {V(T2[x],2)}, {V(T2[x],2)}, 1.0 op_sel_hi:[1,0]")
            for x in range(4): k.e(f"v_rcp_f32 v{T2[x]}, v{T2[x]}\nv_rcp_f32 v{T2[x]+1}, v{T2[x]+1}")
            if n_ < 12: fd.tick(12)
            for x in range(4): k.e(f"v_pk_mul_f32 {V(Z[x],2)}, {V(Z[x],2)}, {V(T2[x],2)}")
            for x in range(4): k.e(f"v_cvt_pk_bf16_f32 v{o+x}, v{Z[x]}, v{Z[x]+1}")
            if n_ == 12: fd.flush()
            so = sB0 if hf else sH
            k.vmem(f"buffer_store_dwordx4 {V(o,4)}, v{vL16}, s[{rWS}:{rWS+3}], s{so} offen offset:{(j & 1)*1024} sc1", ("hs", hf))
            if j & 1 and u < 2: k.e(f"s_add_u32 s{so}, s{so}, 4096")
    stamp()
    if OPT["rf_mlp"] > 20:
        k.wait_vm("rfv"); check("rf_mlp", vT + 6, vT + 4)
    run([op for _, op in pend[:OPT["wfirst"]]]); pend = pend[OPT["wfirst"]:]
    if OPT["wres"] >= 0:
        ops = [op for _, op in pend[:OPT["wres"]]]; pend = pend[OPT["wres"]:]
        residual([RES + 10 + 2*g for g in range(5)], XT, 100, Feeder([flat(ops[(x * len(ops)) // 5:((x + 1) * len(ops)) // 5]) for x in range(5)], 1))
        if OPT["sp"] == 13: k.e(spoll(0))
    if OPT.get("cnt"): k.e("s_mov_b32 s101, 0")
    scheck("hm" + typ, 0)
    if OPT.get("cnt"): k.e(f"s_nop 0\nv_writelane_b32 v{vST}, s101, 59")
    stamp(7)
    assert OPT["hw"] == NR
    run(h_issue(typ, range(OPT["hw"])))
    res = residual_fill(XT) if OPT['wres'] < 0 else []
    run([op for _, op in pend[:OPT["post0"]]]); pend = pend[OPT["post0"]:]
    stamp(8)
    phase2(typ, pend, h_issue(typ, range(OPT["hw"], NR)), res, ("hs", 0), 0)

def cmul_acc(d, a, b, c):
    k.e(f"v_pk_fma_f32 {V(d,2)}, {V(a,2)}, {V(b,2)}, {V(c,2)} op_sel:[0,0,0] op_sel_hi:[1,0,1]")
    k.e(f"v_pk_fma_f32 {V(d,2)}, {V(a,2)}, {V(b,2)}, {V(d,2)} op_sel:[1,1,0] op_sel_hi:[0,1,1] neg_lo:[0,1,0]")

PR = 100
def masked(m, ins):
    def f():
        k.e(f"s_mov_b32 exec_lo, {m}\ns_mov_b32 exec_hi, {m}"); k.ds(ins); k.e("s_mov_b64 exec, -1")
    return F(f, 4, ds=True)
def power(KK, al, be, t):
    x, y, c_, s_ = t+10, t+11, t+12, t+13
    return lines(f"""
    v_mul_f32 v{y}, v{KK}, v{be}
    v_mul_f32 v{x}, v{KK}, v{al}
    v_fract_f32 v{y}, v{y}
    v_cos_f32 v{c_}, v{y}
    v_sin_f32 v{s_}, v{y}
    v_exp_f32 v{x}, v{x}
    s_nop 0
    v_mul_f32 v{t+14}, v{x}, v{c_}
    v_mul_f32 v{t+15}, v{x}, v{s_}
    """)
def table_a():
    t = 80; CH_ = vB1 + 10
    lr, li, dt, al, be, KK, AD = PR, PR+1, PR+2, t+8, t+9, t, t+1
    x, y, c_, s_ = t+10, t+11, t+12, t+13
    LOG2E = 1.4426950408889634
    fl = lines(f"""
    v_lshlrev_b32 v{dt}, 16, v{dt}
    v_lshlrev_b32 v{lr}, 16, v{lr}
    v_mul_f32 v{dt}, {hx(LOG2E)}, v{dt}
    v_exp_f32 v{dt}, v{dt}
    v_lshlrev_b32 v{li}, 16, v{li}
    {bfr(dt, dt)}
    v_mul_f32 v{al}, v{dt}, v{lr}
    v_mul_f32 v{be}, v{dt}, v{li}
    v_mul_f32 v{al}, {hx(LOG2E)}, v{al}
    v_mul_f32 v{be}, 0.15915494, v{be}
    v_lshlrev_b32 v{KK}, 6, v{CH_+1}
    v_max_u32 v{KK}, 1, v{KK}
    v_cvt_f32_u32 v{KK}, v{KK}
    v_lshlrev_b32 v{AD}, 3, v{CH_}
    """)
    fl.append(DSF(f"ds_write_b64 v{AD}, {V(al,2)} offset:{L_EX}"))
    fl.append(note(mk, 'ab'))
    fl += power(KK, al, be, t)
    fl += lines(f"""
    v_lshlrev_b32 v{AD}, 3, v{CH_+1}
    v_min_u32 v{x}, 1, v{CH_+1}
    v_mad_u32_u24 v{AD}, v{x}, 40, v{AD}
    v_lshl_add_u32 v{AD}, v{CH_}, 6, v{AD}
    """)
    fl.append(DSF(f"ds_write_b64 v{AD}, {V(t+14,2)} offset:{L_CH}"))
    fl += lines(f"""
    v_mul_f32 v{y}, v{lr}, v{lr}
    v_add_f32 v{x}, -1.0, v{t+14}
    v_fma_f32 v{y}, v{li}, v{li}, v{y}
    v_rcp_f32 v{y}, v{y}
    v_mul_f32 v{c_}, v{x}, v{lr}
    v_fma_f32 v{c_}, v{t+15}, v{li}, v{c_}
    v_mul_f32 v{s_}, v{t+15}, v{lr}
    v_fma_f32 v{s_}, -v{x}, v{li}, v{s_}
    v_add_f32 v{y}, v{y}, v{y}
    v_mul_f32 v{t+16}, v{c_}, v{y}
    v_mul_f32 v{t+17}, v{s_}, v{y}
    """)
    fl += lines(f"v_min_u32 v{x}, 1, v{CH_+1}\nv_mul_u32_u24 v{x}, 0x30000, v{x}\nv_add_u32 v{AD}, v{AD}, v{x}")
    fl.append(DSF(f"ds_write_b64 v{AD}, {V(t+16,2)} offset:{L_CH + 8}"))
    return fl
def table_rd():
    t = 80
    return [DSF(f"ds_read_b64 {V(PR+4+2*u,2)}, v{t+3} offset:{L_EX + u*128}") for u in range(5)]
def table_b():
    t = 80
    K1, APW, R1 = t+7, t+4, t+5
    k.e(f"""
    v_lshrrev_b32 v{t+2}, 4, v0
    v_lshlrev_b32 v{t+3}, 3, v{t+2}
    v_lshlrev_b32 v{K1}, 2, v{vN}
    v_cvt_f32_u32 v{K1}, v{K1}
    v_lshlrev_b32 v{APW}, 7, v{t+2}
    v_lshl_add_u32 v{APW}, v{vN}, 3, v{APW}
    v_ffbl_b32 v{R1}, v{vN}
    v_lshlrev_b32 v{R1}, 3, v{R1}
    v_lshl_add_u32 v{R1}, v{t+2}, 6, v{R1}
    v_bcnt_u32_b32 v{t+6}, v{vN}, -1
    v_min_u32 v{t+6}, 1, v{t+6}
    v_mul_u32_u24 v{t+6}, 0x30000, v{t+6}
    v_add_u32 v{R1}, v{R1}, v{t+6}
    """)
    fl = []
    for u in range(5):
        fl += power(K1, PR+4+2*u, PR+5+2*u, t)
        fl.append(DSF(f"ds_write_b64 v{APW}, {V(t+14,2)} offset:{L_PW + u*2048}"))
        fl.append(DSF(f"ds_write_b64 v{R1}, {V(t+14,2)} offset:{L_CH + 16 + u*1024}"))
    return fl

WOFF["ssm"] = f"""
    v_and_b32 v{t+2}, 6, v{t}
    v_or_b32 v{t+3}, s{sWC}, v{t+2}
    v_xor_b32 v{t+1}, v{t+1}, v{t+3}
    v_lshlrev_b32 v{t+1}, 4, v{t+1}
    v_and_b32 v{t+3}, 1, v{t}
    v_lshl_add_u32 v{t+2}, v{t+2}, 2, v{t+3}
    v_mul_u32_u24 v{t+2}, 1280, v{t+2}
    v_add_u32 v{vDW}, v{t+2}, v{t+1}
    v_add_u32 v{t+2}, 32, v{t}
    v_mul_u32_u24 v{t+2}, 1280, v{t+2}
    v_add_u32 v{vDW+1}, v{t+2}, v{t+1}
    s_mul_i32 s{sT0}, s{sNT}, 80
    s_mul_i32 s{sT1}, s{sWR}, 40
    s_add_u32 s{sT0}, s{sT0}, s{sT1}
    s_mul_i32 s{sB0}, s{sT0}, 1280
    s_add_u32 s{sB2}, s{sB0}, 5120
    s_mul_i32 s{sLW}, s{sWR}, 10240
    s_lshl_b32 s{sT0}, s{sWC}, 10
    s_add_u32 s{sLW}, s{sLW}, s{sT0}
    """
def path_ssm():
    typ = "ssm"; t = vT
    late_common(typ)
    k.e(f"""
    v_and_b32 v{t+1}, 1, v{vN}
    v_lshrrev_b32 v{t+2}, 2, v{vN}
    v_lshl_add_u32 v{t+2}, v{t+2}, 1, v{t+1}
    v_xor_b32 v{t}, v{t+4}, v{t+2}
    v_lshlrev_b32 v{t}, 4, v{t}
    v_lshl_add_u32 v{t}, v{t+1}, 10, v{t}
    v_lshrrev_b32 v{t+2}, 1, v{vN}
    v_lshl_add_u32 v{t}, v{t+2}, 7, v{t}
    s_mul_i32 s{sT0}, s{sWR}, 10240
    s_add_u32 s{sT0}, s{sT0}, {L_W}
    v_add_u32 v{vWA}, s{sT0}, v{t}
    v_xor_b32 v{vWA+1}, 64, v{vWA}
    """)
    ones()
    if not OPT['rsp']: xr_setup()
    k.e(f"""
    v_mul_u32_u24 v{vB1+11}, 820, v0
    v_lshrrev_b32 v{vB1+11}, 16, v{vB1+11}
    v_min_u32 v{vB1+11}, 2, v{vB1+11}
    v_mul_u32_u24 v{t+1}, 80, v{vB1+11}
    v_sub_u32 v{vB1+10}, v0, v{t+1}
    v_min_u32 v{vB1+10}, 79, v{vB1+10}
    s_mul_i32 s{sT0}, s{sNT}, 160
    v_lshlrev_b32 v{t+1}, 1, v{vB1+10}
    s_mov_b32 s{rT+2}, 1280
    s_mov_b32 s{rT+3}, 0x20000
    """)
    for pi, ptr in enumerate((pLre, pLim, pLdt)):
        k.e(f"s_mov_b32 s{rT}, s{ptr}\ns_mov_b32 s{rT+1}, s{ptr+1}")
        k.vmem(f"buffer_load_ushort v{PR+pi}, v{t+1}, s[{rT}:{rT+3}], s{sT0} offen", "par")
    if OPT['rpown'] == typ: repack_setup(typ)
    small_loads(typ)
    c_setup()
    p2_addr(typ)
    stamp(14)
    jobs, vq = common_jobs(typ)
    jobs[("wait", 0)] = ["par"]
    tj = table_a() + [gate(lambda: curblk[0] % 2 == 1 and curblk[0] > mk['ab'])] + table_rd() + [note(mk, 'rd'), gate(lambda: curblk[0] > mk['rd'])] + table_b()
    vC0, vC1, vP0, vP1, vE0, vE1, vGc, vGr, vPub = vB1, vB1+1, vB1+2, vB1+3, vB1+4, vB1+5, vB1+6, vB1+7, vB1+8
    CH_, WH_ = vB1 + 10, vB1 + 11
    vG = 114
    sVal = [28, 30, 36, 38, 40]
    u_ = 96
    ad = lines(f"""
    s_mul_i32 s{sT0}, s{sWR}, 40
    v_lshlrev_b32 v{u_}, 3, v{vQ}
    v_add_u32 v{u_}, s{sT0}, v{u_}
    v_lshlrev_b32 v{u_+1}, 1, v{vQ}
    v_add_u32 v{u_+1}, s{sT0}, v{u_+1}
    v_add_u32 v{u_+1}, 32, v{u_+1}
    v_lshlrev_b32 v{vC0}, 6, v{u_}
    v_lshlrev_b32 v{vC1}, 6, v{u_+1}
    v_lshlrev_b32 v{u_+2}, 3, v{vN}
    v_lshl_add_u32 v{vP0}, v{u_}, 7, v{u_+2}
    v_lshl_add_u32 v{vP1}, v{u_+1}, 7, v{u_+2}
    s_mul_i32 s{sT0}, s{sWC}, 640
    v_lshlrev_b32 v{vE0}, 3, v{u_}
    v_lshlrev_b32 v{vE1}, 3, v{u_+1}
    v_add_u32 v{vE0}, s{sT0}, v{vE0}
    v_add_u32 v{vE1}, s{sT0}, v{vE1}
    v_sub_u32 v{u_+2}, 15, v{vN}
    v_min_u32 v{u_+2}, 1, v{u_+2}
    v_mul_u32_u24 v{u_+2}, 0x30000, v{u_+2}
    v_add_u32 v{vB1+9}, v{u_+2}, v{vE0}
    v_add_u32 v119, v{u_+2}, v{vE1}
    v_lshlrev_b32 v{vGc}, 3, v{CH_}
    v_lshlrev_b32 v{vGr}, 6, v{CH_}
    v_lshlrev_b32 v{u_}, 4, v{CH_}
    v_lshl_add_u32 v{vPub}, v{WH_}, 26, v{u_}
    v_mul_u32_u24 v{u_+2}, 5, v{WH_}
    v_sub_u32 v{u_+2}, s{sMT}, v{u_+2}
    """)
    for i in range(5):
        ad += lines(f"""
        v_add_u32 v{u_+2}, -1, v{u_+2}
        v_mul_i32_i24 v{vG+i}, 1280, v{u_+2}
        v_cmp_le_i32 s[{sVal[i]}:{sVal[i]+1}], 0, v{u_+2}
        v_add_u32 v{vG+i}, v{vG+i}, v{u_}
        v_min_u32 v{vG+i}, {OOB}, v{vG+i}
        """)
    for f in ad: f()
    stamp(61)
    tj = tj + lines(f"""
    s_mul_i32 s{sHw}, s{sNT}, {16*1280}
    s_add_u32 s{sHw}, s{sHw}, {WS_E}
    s_mul_i32 s{sH}, s{sMT}, 1280
    s_add_u32 s{sH}, s{sH}, s{sHw}
    """)
    if OPT.get('keep') is not None and 'tab' not in OPT['keep']: tj = []
    left = main_loop(typ, jobs, vq, tj)
    vG2 = 8
    for i in range(6): k.e(f"v_mov_b32 v{vG2+i}, v{vG+i}")
    TK, CS, P2 = stats(typ)
    stamp()
    fd = Feeder(left, (70 if OPT['ce'] else 200) // max(1, len(left)))
    wd = [op for i in range(5) for op in c_dma(i, rT2, "cim")]; e1 = OPT["ce"]; ew = OPT["cw"] - e1
    if 4 in OPT.get("x", ()): wd = wd[:1]; ew = 1
    slots = [(i, h) for i in range(5) for h in range(2)]
    def rec(i, h): return (vC0, L_CH + (2*i + h)*64) if i < 4 else (vC1, L_CH + h*64)
    LC = 100
    stats_sum(typ, CS, P2)
    for x, (i, h) in enumerate(slots):
        a_, o_ = rec(i, h); k.ds(f"ds_read_b128 {V(LC+4*x,4)}, v{a_} offset:{o_}", ("lc", x))
    k.raw(".p2align 3")
    for x, (i, h) in enumerate(slots):
        fd.tick(8)
        for j in range(4):
            z = acc(i, j) + 2*h
            k.e(f"v_pk_fma_f32 {V(z,2)}, {V(CS+4*i+2*h,2)}, {V(TK+4*j,2)}, {V(z,2)} op_sel:[0,0,0] op_sel_hi:[1,0,1] neg_lo:[0,1,0] neg_hi:[0,1,0]")
        for j in range(4):
            z = acc(i, j) + 2*h
            k.e(f"v_pk_mul_f32 {V(z,2)}, {V(z,2)}, {V(TK+4*j,2)} op_sel:[0,1] op_sel_hi:[1,1]")
    EE = 140; TMP = 88
    MU = [t, t + 20]
    def load_mu(st):
        for x, (i, h) in enumerate(slots):
            a_, o_ = rec(i, h); k.ds(f"ds_read_b64 {V(MU[st & 1]+2*x,2)}, v{a_} offset:{o_ + 16 + 8*st}", ("mu", st))
    if e1:
        fd.flush()
        k.wait_vm("cre")
        c_read(0, [4, 5, 6, 7, 92, 93])
        fd = Feeder(wd[:e1], 180 // e1)
    k.wait_lg()
    load_mu(0); load_mu(1)
    def ereg(x): return EE + 2*x
    def treg(x): return (240 + 2*x) if x < 8 else (TMP + 2*(x - 8))
    k.raw(".p2align 3")
    for x, (i, h) in enumerate(slots): cmul_acc(ereg(x), acc(i,0)+2*h, LC+4*x, acc(i,1)+2*h)
    fd.tick(20)
    for x, (i, h) in enumerate(slots): cmul_acc(treg(x), ereg(x), LC+4*x, acc(i,2)+2*h)
    fd.tick(20)
    for x, (i, h) in enumerate(slots): cmul_acc(ereg(x), treg(x), LC+4*x, acc(i,3)+2*h)
    PWv = t
    for st, sh in enumerate((1, 2, 4, 8)):
        fd.tick(20)
        k.raw(".p2align 3")
        for x in range(10):
            k.e(f"v_mov_b32_dpp v{treg(x)}, v{ereg(x)} row_shr:{sh} row_mask:0xf bank_mask:0xf bound_ctrl:0")
            k.e(f"v_mov_b32_dpp v{treg(x)+1}, v{ereg(x)+1} row_shr:{sh} row_mask:0xf bank_mask:0xf bound_ctrl:0")
        fd.tick(20)
        k.wait_lg(("mu", st))
        k.raw(".p2align 3")
        for x in range(10): cmul_acc(ereg(x), treg(x), MU[st & 1]+2*x, ereg(x))
        if st < 2: load_mu(st + 2)
        if st == 2:
            for x, (i, h) in enumerate(slots):
                k.ds(f"ds_read_b64 {V(PWv+2*x,2)}, v{vP0 if i < 4 else vP1} offset:{L_PW + ((2*i+h)*128 if i < 4 else h*128)}", "pw")
    for i in range(5):
        k.ds(f"ds_write_b128 v{vB1+9 if i < 4 else 13}, {V(EE+4*i,4)} offset:{L_EX + (16*i if i < 4 else 0)}")
    ch = t + 20
    E0, E1, LL, ET, GA = ch, ch+2, ch+4, ch+8, 14
    GA = [ch+8, ch+12, ch+16, ch+20, ch+24]
    k.ds(f"ds_read_b128 {V(LL,4)}, v{vGr} offset:{L_CH+48}", "e")
    k.e(f"v_mov_b32 v{ET+1}, s{sNonce}\nv_mov_b32 v{ET+3}, s{sNonce}")
    fd.flush()
    k.wait_lg()
    k.e("s_barrier")
    k.ds(f"ds_read_b64 {V(E0,2)}, v{vGc} offset:{L_EX}", "e")
    k.ds(f"ds_read_b64 {V(E1,2)}, v{vGc} offset:{L_EX+640}", "e")
    k.wait_lg()
    cmul_acc(E1, E0, LL, E1)
    k.e(f"v_mov_b32 v{ET}, v{E1}\nv_mov_b32 v{ET+2}, v{E1+1}")
    k.vmem(f"buffer_store_dwordx4 {V(ET,4)}, v{vPub}, s[{rWS}:{rWS+3}], s{sH} offen sc1", "e")
    stamp()
    def gather(track):
        for i in range(5):
            tx = f"buffer_load_dwordx4 {V(GA[i],4)}, v{vG2+i}, s[{rWS}:{rWS+3}], s{sHw} offen sc1"
            k.vmem(tx, "ga") if track else k.e(tx)
    k.e("s_nop 1")
    k.wait_vm("cre")
    if OPT["gpos"] == 0: gather(True)
    if not e1: c_read(0, [4, 5, 6, 7, 92, 93])
    fd = Feeder(wd[e1:e1 + ew], 1)
    per = ew / (13.0 - OPT['wskip2'])
    done = [0.0]
    cnt = [0]
    def tk_():
        cnt[0] += 1
        if cnt[0] == OPT["gpos"]: gather(True)
        if cnt[0] <= OPT["wskip2"]: return
        if cnt[0] == OPT["wskip2"] + 1: k.wait_lg()
        done[0] += per; n_ = int(done[0]); done[0] -= n_; fd.tick(n_); k.raw(".p2align 3")
    WT, W2 = 14, 16
    for x in range(10):
        k.e(f"v_mov_b32_dpp v{treg(x)}, v{ereg(x)} row_shr:1 row_mask:0xf bank_mask:0xf bound_ctrl:0")
        k.e(f"v_mov_b32_dpp v{treg(x)+1}, v{ereg(x)+1} row_shr:1 row_mask:0xf bank_mask:0xf bound_ctrl:0")
    def cmul(d, a, b, tmp):
        k.e(f"v_pk_mul_f32 {V(tmp,2)}, {V(a,2)}, {V(b,2)} op_sel:[0,0] op_sel_hi:[1,0]")
        k.e(f"v_pk_fma_f32 {V(d,2)}, {V(a,2)}, {V(b,2)}, {V(tmp,2)} op_sel:[1,1,0] op_sel_hi:[0,1,1] neg_lo:[0,1,0]")
    tk_()
    for x in range(10): cmul(treg(x), treg(x), LC+4*x+2, ereg(x))
    tk_()
    for x in range(10): cmul(PWv+2*x, PWv+2*x, LC+4*x+2, ereg(x))
    for x, (i, h) in enumerate(slots):
        tk_()
        for j in range(4): cmul(acc(i,j)+2*h, acc(i,j)+2*h, LC+4*x+2, EE+2*j)
    tk_()
    cmul(WT, LL+2, LL+2, W2); cmul(WT, WT, WT, W2); cmul(WT, WT, LL+2, W2); cmul(W2+2, WT, WT, W2)
    k.e(f"""
    v_cmp_eq_u32 vcc, 2, v{WH_}
    v_mov_b32 v{W2}, 1.0
    v_mov_b32 v{W2+1}, 0
    v_cndmask_b32 v{WT}, v{WT}, v{W2+2}, vcc
    v_cndmask_b32 v{WT+1}, v{WT+1}, v{W2+3}, vcc
    v_cmp_eq_u32 vcc, 0, v{WH_}
    v_mul_u32_u24 v{W2+2}, 640, v{WH_}
    v_add_u32 v{vGc}, v{vGc}, v{W2+2}
    v_cndmask_b32 v{WT}, v{WT}, v{W2}, vcc
    v_cndmask_b32 v{WT+1}, v{WT+1}, v{W2+1}, vcc
    v_cndmask_b32 v{E0}, v{W2+1}, v{E0}, vcc
    v_cndmask_b32 v{E0+1}, v{W2+1}, v{E0+1}, vcc
    s_mul_i32 s{sT0}, s{sWC}, 1280
    v_add_u32 v{vE0}, s{sT0}, v{vE0}
    v_add_u32 v{vE1}, s{sT0}, v{vE1}
    """)
    fd.flush()
    h_base()
    k.e(f"""
    s_mul_i32 s{sT1}, s{sT1}, 5
    s_add_u32 s{sT0}, s{sT0}, s{sT1}
    s_add_u32 s{sT0}, s{sT0}, 12
    s_lshl_b32 s{sT0}, s{sT0}, 12
    s_add_u32 s{sH}, s{sH}, s{sT0}
    s_add_u32 s{sB2}, s{sH}, {4*4096}
    s_lshl_b32 s{sT0}, s{sWR}, 9
    s_add_u32 s{sB2}, s{sB2}, s{sT0}
    v_lshrrev_b32 v27, 1, v{vQ}
    v_lshlrev_b32 v27, 10, v27
    v_and_b32 v98, 31, v{vL}
    v_lshl_add_u32 v27, v98, 4, v27
    s_lshl_b32 s{sT0}, s{sWR}, 13
    s_add_u32 s{sH}, s{sH}, s{sT0}
    s_add_u32 s{sB0}, s{sH}, 4096
    """)
    stamp(60)
    k.wait_vm("ga")
    k.label("L_carry_chk")
    k.e(f"s_mov_b64 s[{sEx}:{sEx+1}], 0")
    for i in range(5):
        k.e(f"""
        v_cmp_ne_u32 vcc, s{sNonce}, v{GA[i]+1}
        v_cmp_ne_u32 s[{sT0}:{sT1}], s{sNonce}, v{GA[i]+3}
        s_or_b64 vcc, vcc, s[{sT0}:{sT1}]
        s_and_b64 vcc, vcc, s[{sVal[i]}:{sVal[i]+1}]
        s_or_b64 s[{sEx}:{sEx+1}], s[{sEx}:{sEx+1}], vcc
        """)
    k.e(f"""
    s_cmp_eq_u64 s[{sEx}:{sEx+1}], 0
    s_cbranch_scc1 L_carry_done
    s_sub_u32 s{sSpin}, s{sSpin}, 1
    s_cbranch_scc1 L_end
    """)
    gather(False)
    k.e("s_waitcnt vmcnt(0)\ns_branch L_carry_chk")
    k.label("L_carry_done")
    stamp()
    for i in range(5): k.e(f"v_mov_b32 v{GA[i]+1}, v{GA[i]+2}")
    for i in (3, 2, 1, 0): cmul_acc(GA[i], GA[i+1], LL+2, GA[i])
    cmul(GA[0], GA[0], WT, W2)
    cmul_acc(E0, GA[0], LL, E0)
    k.ds(f"ds_write_b64 v{vGc}, {V(GA[0],2)} offset:{L_PW}")
    k.ds(f"ds_write_b64 v{vGc}, {V(E0,2)} offset:{L_PW + 1920}")
    k.wait_lg()
    k.e("s_barrier")
    XS_ = [80, 82, 84, 86, 92]; XT = 94
    x_loads(XS_, XT)
    def pb(g, o): return 96 + o - 16 if (g == 2 and o >= 16) else PB[g] + o
    PB = [EE, ch, 4]
    for i in range(5):
        for g in range(3):
            k.ds(f"ds_read_b128 {V(pb(g, 4*i),4)}, v{vE0 if i < 4 else vE1} offset:{L_PW + 640*g + (16*i if i < 4 else 0)}", ("pb", i))
    k.raw(".p2align 3")
    for x in range(10):
        if x % 2 == 0: k.wait_lg(("pb", x // 2)); k.raw(".p2align 3")
        k.e(f"v_pk_add_f32 {V(ereg(x),2)}, {V(ereg(x),2)}, {V(PB[1]+2*x,2)}")
        k.e(f"v_pk_add_f32 {V(ereg(x),2)}, {V(ereg(x),2)}, {V(pb(2, 2*x),2)}")
        cmul_acc(treg(x), ereg(x), PWv+2*x, treg(x))
    held = []
    for hf in range(2):
        OA = [(60, 64), (68, 72)] if hf == 0 else [(40, 44), (48, 52)]
        OE = 76 if hf == 0 else 56
        for jj in range(2):
            j = 2*hf + jj
            k.raw(".p2align 3")
            for x, (i, h) in enumerate(slots):
                prev = treg(x) if j == 0 else acc(i, j-1) + 2*h
                cmul_acc(acc(i,j)+2*h, prev, LC+4*x, acc(i,j)+2*h)
            oa, ob = OA[jj]
            for i in range(4): k.e(f"v_cvt_pk_bf16_f32 v{oa+i}, v{acc(i,j)}, v{acc(i,j)+2}")
            for i in range(4): k.e(f"v_cvt_pk_bf16_f32 v{ob+i}, -v{acc(i,j)+1}, -v{acc(i,j)+3}")
            k.e(f"v_cvt_pk_bf16_f32 v{OE+2*jj}, v{acc(4,j)}, v{acc(4,j)+2}")
            k.e(f"v_cvt_pk_bf16_f32 v{OE+2*jj+1}, -v{acc(4,j)+1}, -v{acc(4,j)+3}")
            k.vmem(f"buffer_store_dwordx4 {V(oa,4)}, v{vL16}, s[{rWS}:{rWS+3}], s{sH} offen offset:{jj*1024} sc1", ("hs", hf))
            k.vmem(f"buffer_store_dwordx4 {V(ob,4)}, v{vL16}, s[{rWS}:{rWS+3}], s{sB0} offen offset:{jj*1024} sc1", ("hs", hf))
        k.e(f"""
        s_nop 1
        v_permlane32_swap_b32 v{OE}, v{OE+2}
        v_permlane32_swap_b32 v{OE+1}, v{OE+3}
        s_nop 1
        v_permlane16_swap_b32 v{OE}, v{OE+1}
        v_permlane16_swap_b32 v{OE+2}, v{OE+3}
        """)
        k.vmem(f"buffer_store_dwordx4 {V(OE,4)}, v27, s[{rWS}:{rWS+3}], s{sB2} offen sc1", ("hs", hf))
        if hf == 0: k.e(f"s_add_u32 s{sH}, s{sH}, {HB}\ns_add_u32 s{sB0}, s{sB0}, {HB}\ns_add_u32 s{sB2}, s{sB2}, {HB}")
    stamp()
    if e1 + ew < 25:
        run(wd[e1 + ew:])
    flag_addr()
    if MV:
        u_ = 156
        k.e(f"""
        v_min_u32 v{u_}, {3 + 4*MV}, v{vL}
        s_add_u32 s{sT0}, s{sFA}, {9*128 + 16}
        v_and_b32 v{u_+1}, 1, v{u_}
        v_lshlrev_b32 v{u_+1}, 3, v{u_+1}
        v_and_b32 v{u_+2}, 2, v{u_}
        v_lshl_add_u32 v{u_+1}, v{u_+2}, 4, v{u_+1}
        v_add_u32 v{vF}, s{sT0}, v{u_+1}
        s_mul_i32 s{sT0}, s{sW}, 24
        s_lshr_b32 s{sT1}, s{sDT}, 2
        s_add_u32 s{sT0}, s{sT0}, s{sT1}
        s_lshl_b32 s{sT0}, s{sT0}, 7
        s_add_u32 s{sT0}, s{sT0}, {WS_RF + 16384 + (12 - MV - 1)*256}
        v_lshrrev_b32 v{u_+1}, 2, v{u_}
        v_lshlrev_b32 v{u_+1}, 8, v{u_+1}
        v_and_b32 v{u_+2}, 3, v{u_}
        v_cmp_gt_u32 vcc, 4, v{u_}
        v_lshl_add_u32 v{u_+1}, v{u_+2}, 4, v{u_+1}
        v_add_u32 v{u_+1}, s{sT0}, v{u_+1}
        v_cndmask_b32 v{vF}, v{u_+1}, v{vF}, vcc
        """)
    k.seen.update(("w", x) for x in range(10))
    def cim():
        k.wait_vm("cim")
        c_read(1, [150, 151, 152, 153, 154, 155])
    if e1 + ew == 25: cim()
    put_flag(("hs", 0), sLW)
    residual(XS_, XT, 100)
    if OPT.get("spg", 9) > 4:
        stamp(7)
        k.e(spoll(0))
    if OPT["sfast"]:
        assert e1 + ew == 25
        k.e("s_waitcnt lgkmcnt(0)"); k.lg = []
        for b_ in (sPA, sPB_):
            for x in range(4): k.e(f"s_cmp_eq_u64 s[{b_+2*x}:{b_+2*x+1}], s[{sNP}:{sNP+1}]\ns_cbranch_scc0 L_sslow")
        save = list(k.vm)
        run(h_issue(typ, range(NR)))
        put_flag(("hs", 1), sLX, False)
        k.e("s_branch L_sjoin\nL_sslow:")
        k.vm = list(save)
        k.e(spoll(0))
        put_flag(("hs", 1), sLX, False)
        scheck("hm" + typ, 0)
        run(h_issue(typ, range(NR)))
        k.e("L_sjoin:")
        stamp(8)
    else:
        put_flag(("hs", 1), sLX)
        if e1 + ew < 25: cim()
        scheck("hm" + typ, 0)
        stamp(8)
        run(h_issue(typ, range(NR)))
    k.e("s_barrier")
    phase2(typ, [(tk, op) for tk in range(10, NK[typ]) for op in wload(tk)], [], [], None, -1)

def poll(tag, vaddr, vd):
    k.e(f"""
    L_poll_{tag}:
    buffer_load_dwordx2 {V(vd,2)}, v{vaddr}, s[{rWS}:{rWS+3}], 0 offen sc1
    s_waitcnt vmcnt(0)
    v_cmp_ne_u32 vcc, s{sNonce}, v{vd}
    v_cmp_ne_u32 s[{sT0}:{sT1}], s{sNonce}, v{vd+1}
    s_or_b64 vcc, vcc, s[{sT0}:{sT1}]
    s_cmp_eq_u64 vcc, 0
    s_cbranch_scc1 L_pollok_{tag}
    s_sub_u32 s{sSpin}, s{sSpin}, 1
    s_cbranch_scc1 L_end
    s_sleep 1
    s_branch L_poll_{tag}
    L_pollok_{tag}:
    """)
    k.vm = []

def acc2(p_, i, s): return 96 + 80*p_ + (i*4 + s)*4
def phase2(typ, pend, hrest, res, tagB, tB):
    stamp_n[0] = 10
    n_ = NK[typ]; T = 2*n_
    AD = [88, 89, 90, 91]
    XF = 92
    sXo, sXi, sFo, sTm = sB0, sH, sHw, sLW
    setup = lines(f"""
    v_bfe_u32 v{AD[0]}, v{vN}, 1, 2
    v_mul_u32_u24 v{vRw}, {RROW}, v{vN}
    v_xor_b32 v{AD[0]}, v{AD[0]}, v{vQ}
    v_lshl_add_u32 v{vRw}, v{AD[0]}, 4, v{vRw}
    v_add_u32 v{vRw}, s{sWLb}, v{vRw}
    v_lshlrev_b32 v{XO}, 1, v{XO}
    s_lshl_b32 s{sB2}, s{sX}, 1
    s_mov_b32 s{rW}, s{pOut}
    s_mov_b32 s{rW+1}, s{pOut+1}
    s_mov_b32 s{rW+2}, {2048*2560}
    s_mov_b32 s{rW+3}, 0x20000
    s_lshl_b32 s{sXi}, s{sMT}, 3
    s_add_u32 s{sXi}, s{sXi}, s{sDT}
    s_lshl_b32 s{sXi}, s{sXi}, 1
    s_add_u32 s{sXi}, s{sXi}, s{sHALF}
    s_xor_b32 s{sXo}, s{sXi}, 1
    s_lshl_b32 s{sFo}, s{sXo}, 6
    s_lshl_b32 s{sTm}, s{sW}, 4
    s_add_u32 s{sTm}, s{sTm}, {WS_XF}
    s_add_u32 s{sFo}, s{sFo}, s{sTm}
    s_lshl_b32 s{sUnit}, s{sXi}, 6
    s_add_u32 s{sUnit}, s{sUnit}, s{sTm}
    s_mul_i32 s{sTm}, s{sW}, 5120
    s_add_u32 s{sTm}, s{sTm}, {WS_XB}
    s_mul_i32 s{sXi}, s{sXi}, 20480
    s_add_u32 s{sXi}, s{sXi}, s{sTm}
    s_mul_i32 s{sXo}, s{sXo}, 20480
    s_add_u32 s{sXo}, s{sXo}, s{sTm}
    s_add_u32 s{sDX}, s{sXi}, 4096
    s_add_u32 s{sDW}, s{sXo}, 4096
    """)
    for s in range(4):
        setup += lines(f"s_xor_b32 s{sTm}, s{sW}, {s}\ns_mul_i32 s{sTm}, s{sTm}, {WLW}\ns_add_u32 s{sTm}, s{sTm}, {L_WL + s*RBLK}\nv_add_u32 v{AD[s]}, s{sTm}, v{LO}")
    def red_w(p_, s): return [DSF(f"ds_write_b128 v{vRw}, {V(acc2(p_,i,s),4)} offset:{s*RBLK + i*64}", "rw") for i in range(5)]
    RD = [96 + 16*g for g in range(5)]
    def red_r(g): return [DSF(f"ds_read_b128 {V(RD[g]+4*s,4)}, v{AD[s]} offset:{64*g}", ("r", g)) for s in range(4)]
    bgq = list(setup) + list(res)
    per = -(-len(pend) // OPT["kw"])
    for t in range(T - 1):
        p_, tk = divmod(t, n_)
        assert not [1 for t_, _ in pend if t_ <= t], (typ, t)
        if OPT.get("fine2"): stamp(14 + 2*t)
        k.wait_vm([("w", tk), ("h", t)])
        if OPT.get("fine2"): stamp(15 + 2*t)
        if t == tB: put_flag(tagB, sLX)
        tchk = n_ - NR
        if MV and typ == 'ssm' and t == tchk - MV:
            k.wait_vm('mvp'); check('mv', vF, vFd)
        if t == tchk:
            scheck("hb" + typ, 1)
        wk, wb = wreg(tk); ring = hdest(typ, t)
        m = []
        for s in range(4):
            for i in range(5):
                c = "0" if tk == 0 else V(acc2(p_, i, s), 4)
                m.append(f"v_mfma_f32_16x16x32_bf16 {V(acc2(p_,i,s),4)}, {R(wk, wb+4*i, 4)}, {R(ring[s][0], ring[s][1], 4)}, {c}")
        streams = []
        if NE[typ] <= t and t + NR < T:
            a_, b_ = hload(typ, t + NR)
            streams.append((a_, 0, 2, True))
            for s in range(4): streams.append((b_[s], 5*s + 4, 5*s + 4, True))
        mem = []
        if t == tchk - 2: k.e(spoll(1))
        if MV and typ == 'ssm' and t == tchk - MV - 2: mem += [VM(f"buffer_load_dwordx2 {V(vFd,2)}, v{vF}, s[{rWS}:{rWS+3}], 0 offen sc1", 'mvp')]
        while hrest and len(mem) < 12: mem += flat([hrest.pop(0)])
        for _ in range(per if typ == "mlp" else (4 if t >= tchk - MV else 0)):
            if pend: mem += flat([pend.pop(0)[1]])
        u = t - n_
        if u == -1: must_bg = True
        if u == 0: assert not bgq, len(bgq)
        if u in (0, 1, 2):
            wr_ = sum((red_w(0, s) for s in range(4)), [])
            streams.append((wr_[7*u:7*u + 7], 2, 18 if u < 2 else 14, True))
        if u == 3:
            k.wait_lg(); k.e("s_barrier")
            streams.append((red_r(0) + red_r(1) + red_r(2), 0, 16, True))
        if u == 4: streams.append((red_r(3) + red_r(4), 0, 12, True))
        if u in (4, 5):
            for g in ((0, 1, 2) if u == 4 else (3, 4)):
                bgq += [F(lambda g=g: k.wait_lg(("r", g)), 1)]
                bgq += lines("\n".join(f"v_add_f32 v{RD[g]+x}, v{RD[g]+x}, v{RD[g]+4+x}" for x in range(4)) + "\n" +
                             "\n".join(f"v_add_f32 v{RD[g]+8+x}, v{RD[g]+8+x}, v{RD[g]+12+x}" for x in range(4)) + "\n" +
                             "\n".join(f"v_add_f32 v{RD[g]+x}, v{RD[g]+x}, v{RD[g]+8+x}" for x in range(4)))
                if 1 in OPT.get("x", ()): k.seen.add(("xs", g))
                else: bgq += [VM(f"buffer_store_dwordx4 {V(RD[g],4)}, v{vL16}, s[{rWS}:{rWS+3}], s{sXo if g < 4 else sDW} offen offset:{(g & 3)*1024} sc1", ("xs", g))]
        if u == n_ - 3: k.e("s_barrier")
        if u == n_ - OPT["xfb_" + typ]:
            run(bgq); bgq.clear()
            put_flag(("xs", 4), sFo)
        if u == n_ - 2:
            k.wait_lg(); k.e(f"s_load_dwordx2 s[{sPA}:{sPA+1}], s[{pWs}:{pWs+1}], s{sUnit} glc")
            k.wait_vm(("h", t + 1))
            wk2, wb2 = wreg(tk + 1); ring2 = hdest(typ, t + 1)
            m2 = [f"v_mfma_f32_16x16x32_bf16 {V(acc2(1,i,s),4)}, {R(wk2, wb2+4*i, 4)}, {R(ring2[s][0], ring2[s][1], 4)}, {V(acc2(1,i,s),4)}" for s in range(4) for i in range(5)]
            m = sum((m[5*s:5*s+5] + m2[5*s:5*s+5] for s in range(4)), [])
            XL = [40 + 4*g for g in range(5)]
            assert all(base not in range(40, 60) for r_ in (ring, ring2) for kind, base in r_ if kind == "v")
            xl = "\n".join(f"buffer_load_dwordx4 {V(XL[g],4)}, v{vL16}, s[{rWS}:{rWS+3}], s{sXi if g < 4 else sDX} offen offset:{(g & 3)*1024} sc1" for g in range(5))
            for s in range(3): streams.append((red_w(1, s), 10*s + 13, 10*s + 19, True))
            def early():
                k.e("s_waitcnt lgkmcnt(0)"); k.lg = []
                k.e(f"s_cmp_eq_u64 s[{sPA}:{sPA+1}], s[{sNP}:{sNP+1}]\ns_cbranch_scc0 L_xe_{typ}\n{xl}\nL_xe_{typ}:")
            streams.insert(0, ([F(early, 2)], OPT["xg"], OPT["xg"], True))
        streams.append((mem, 1, 18, True))
        streams.append((bgq, 0, 20, False))
        sched(m, streams)
        if u == -1:
            if OPT.get("show"): print("left at the end of pass 1:", len(bgq))
            for f in bgq: f()
            bgq.clear()
    stamp()
    k.e(f"""
    s_cmp_eq_u64 s[{sPA}:{sPA+1}], s[{sNP}:{sNP+1}]
    s_cbranch_scc1 L_xd_{typ}
    L_xp_{typ}:
    s_sub_u32 s{sSpin}, s{sSpin}, 1
    s_cbranch_scc1 L_end
    s_load_dwordx2 s[{sPA}:{sPA+1}], s[{pWs}:{pWs+1}], s{sUnit} glc
    s_waitcnt lgkmcnt(0)
    s_cmp_eq_u64 s[{sPA}:{sPA+1}], s[{sNP}:{sNP+1}]
    s_cbranch_scc0 L_xp_{typ}
    {xl}
    L_xd_{typ}:
    s_nop 2
    """)
    run(red_w(1, 3))
    k.wait_lg(); k.e("s_barrier")
    for g in range(5): run(red_r(g))
    for g in range(5):
        k.wait_lg(("r", g))
        o = RES + 4*g
        for h in range(2): k.e(f"v_pk_add_f32 {V(RD[g]+2*h,2)}, {V(RD[g]+2*h,2)}, {V(RD[g]+4+2*h,2)}")
        for h in range(2): k.e(f"v_pk_add_f32 {V(RD[g]+8+2*h,2)}, {V(RD[g]+8+2*h,2)}, {V(RD[g]+12+2*h,2)}")
        for h in range(2): k.e(f"v_pk_add_f32 {V(o+2*h,2)}, {V(o+2*h,2)}, {V(RD[g]+2*h,2)}")
        for h in range(2): k.e(f"v_pk_add_f32 {V(o+2*h,2)}, {V(o+2*h,2)}, {V(RD[g]+8+2*h,2)}")
    for g in range(5):
        o = RES + 4*g
        if True:
            if g == 0: k.wait_vm0()
            for h in range(2): k.e(f"v_pk_add_f32 {V(o+2*h,2)}, {V(o+2*h,2)}, {V(XL[g]+2*h,2)}")
        k.vmem(f"buffer_store_dwordx4 {V(o,4)}, v{XO}, s[{rW}:{rW+3}], s{sB2} offen offset:{64*g} {OPT.get('ost', '')}", "o")
    if OPT.get("spin"):
        ins, n_ = OPT["spin"]
        k.e(f"""
        s_waitcnt vmcnt(0)
        s_sub_u32 s{sST}, s{sST}, s98
        s_add_u32 s{sST}, s{sST}, {n_}
        L_spin_{typ}:
        {ins} s[100:101]
        s_waitcnt lgkmcnt(0)
        s_sub_u32 s100, s100, s98
        s_cmp_lt_u32 s100, s{sST}
        s_cbranch_scc1 L_spin_{typ}
        """)
    k.e("s_branch L_fin" if OPT["stamps"] else "s_endpgm")

def finish():
    if OPT["stamps"]:
        k.label("L_fin")
        k.wait_vm0()
        stamp(11)
        k.e(f"""
        s_memtime s[100:101]
        s_waitcnt lgkmcnt(0)
        s_sub_u32 s100, s100, s98
        v_writelane_b32 v{vST}, s100, 63
        s_lshl_b32 s{sT0}, s2, 2
        s_add_u32 s{sT0}, s{sT0}, s{sW}
        s_lshl_b32 s{sT0}, s{sT0}, 8
        s_add_u32 s{sT0}, s{sT0}, {WS_ST}
        v_lshlrev_b32 v2, 2, v{vL}
        buffer_store_dword v{vST}, v2, s[{rWS}:{rWS+3}], s{sT0} offen
        """)

prologue()
stamp_n[0] = 1
path_ssm()
stamp_n[0] = 1; cur[0] = "mlp"
path_mlp()
finish()
k.label("L_end")
body = k.text()
errs = check_hazards(body)
for e_ in errs: print("HAZARD:", e_, file=sys.stderr)

hdr = open(f"cdna_kernels/{NAME}.s.ref").read().split("\n")
hdr = [l for l in hdr if l.startswith(";") and "@launch" not in l and "Override" not in l and "grid=ceil" not in l]
out = "\n".join(hdr) + f"\n; @launch grid=(256,1,1) block=(256,1,1) lds={L_END}\n"
out += f""".amdgcn_target "amdgcn-amd-amdhsa--gfx950"
.text
.globl {NAME}_kernel
.p2align 8
.type {NAME}_kernel,@function
{NAME}_kernel:
{body}    s_endpgm
L_code_end:
.set CODE_BYTES, L_code_end - {NAME}_kernel - 512
.section .rodata,"a"
.p2align 6
.amdhsa_kernel {NAME}_kernel
  .amdhsa_next_free_vgpr 512
  .amdhsa_next_free_sgpr 102
  .amdhsa_accum_offset 256
  .amdhsa_group_segment_fixed_size 0
  .amdhsa_kernarg_size 136
  .amdhsa_user_sgpr_count 2
  .amdhsa_user_sgpr_kernarg_segment_ptr 1
  .amdhsa_system_sgpr_workgroup_id_x 1
.end_amdhsa_kernel
"""
open(sys.argv[1], "w").write(out)
print("written", sys.argv[1], len(out), "bytes; hazards:", len(errs))
```

```python
import sys, struct
sys.path.insert(0, "dev")
from asmlib import *

NAME = "parallel_sum__ssm_conv_s5__mixer_channel_mlp__prompt"
OPT = dict(stamps=False, stop=None, nt_dma="", nt_pf="", nt_rp="", pf=0, pf0=1, pford=0, post0=8, ost='nt', pfa=(1, 0, 1), pfb=(2,), mv=0, xr0=0, tmlp=8, ctail=6, xg=22, rsp=0, sfast=1, rpown='ssm', post=25, e1=0, ew=30, post0_s=0, wskip=3, rpd_mlp=(0, 1.6), rpd_ssm=(0, 1.6), rotg=1, tch=2, hw=4, e2=0, post_s=0, cpf=1, rp_mlp=(3, (4, 5, 7, 9, 10), 12), rp_ssm=(3, (4, 5, 7, 9, 10), 12), cw=25, rf_mlp=15, wskip2=1, touch=8, rf_ssm=99, xfb_mlp=3, ce=0, nodot=1, wpre=0, xrb=1, rsc=19, rsb=16, hoist=1, xfb_ssm=2, xlate=1, fa=8, sp=10, stlb=0, rfg=10, wfirst=0, wres=-1, resfirst=1, ne=0, gpos=8, post1=20, hpre=1, ne_mlp=0, kw=6, util=1.0, rot1=1, rot2=1)
for a_ in sys.argv[2:]:
    k_, v_ = a_.split("=", 1); OPT[k_] = eval(v_)

def f2u(x): return struct.unpack("<I", struct.pack("<f", x))[0]
def hx(x): return "0x%08x" % f2u(x)

WS_EP = 0
WS_H = 4096
WS_WP = 12 << 20
WS_E = 16 << 20
WS_RF = 17 << 20
WS_HF = (17 << 20) + 65536
WS_RS = 18 << 20
WS_ST = 20 << 20
WS_XF = (17 << 20) + 131072
WS_XB = 24 << 20
WS_SIZE = 32 << 20
OOB = 0x4000000
L_TOK = 0; L_CH = 2048; L_PW = 7168; L_EX = 17408; L_EX2 = L_EX + 1280
L_STG = 20480; L_X = 40960; L_W = 90112; L_END = 163840
XS = 16384; WSL = 24576
L_SCS = {'ssm': (L_EX2, 320), 'mlp': (L_CH + 512, 384)}; L_B1 = L_CH; L_DB = 20160
WLW = 4 * 16 * 320; RROW = 320; RBLK = 16 * RROW
L_WL = L_STG
NST = 10
pX, pLre, pLim, pBre, pBim, pCre, pCim, pLdt = 16, 18, 20, 22, 24, 26, 28, 30
pDsk, pBx, pW1, pB1, pW2, pB2, pOut, pDbg, pWs = 32, 34, 36, 38, 40, 42, 44, 46, 48
sW, sWR, sWC, sMT, sNT, sTYP, sHALF, sDT = 3, 4, 5, 6, 7, 8, 88, 7
sML, sI8 = 9, 10
sNonce = 11; sT0, sT1, sT2, sT3 = 12, 13, 14, 15
sKs = 50; sPF = 51
rX, rW, rWS, rT, rT2 = 52, 56, 60, 64, 68
sX, sLX, sLW, sB0, sB2, sPFs, sUnit, sRpSrc, sLR, sSpin = 72, 73, 74, 75, 76, 77, 78, 79, 80, 81
sK = 82; sEx = 84
sH, sHw, sWp, sDis = 86, 87, 88, 89
sST = 90
sRpD = 92
sSig = 97
sWa, sHa, sLim = 18, 22, 26
sDX, sDW = 77, 51
rPF = rT2
vL, vN, vQ = 1, 2, 3
vDX0, vDX1, vXa, vXb = 4, 5, 6, 7
vDW = 8
vPF, vDR, vJunk, vNc = 10, 11, 12, 13
vWA = 14
vRA = 120
vL16 = 26
vRS = 27
vB1 = 28
vB1m = 140
vT = 40
vST = 25
ACC = 160
def acc(i, j): return ACC + (i * 4 + j) * 4
aF = [0, 40]
aONE = 80; aCS = 84

k = Asm()
k.strict = OPT.get('strict', False)
k.lenient = OPT['stamps']
stamp_n = [0]
cur = ["ssm"]
def stamp(i=None):
    if i is None:
        i = stamp_n[0]; stamp_n[0] += 1
    if OPT.get("probe") == (cur[0], i):
        k.e(f"s_memrealtime s[{sST}:{sST+1}]"); k.e("s_waitcnt lgkmcnt(0)"); k.lg = []
    if not OPT["stamps"] or (OPT.get("lite") and i != 11): return
    k.e(f"{'s_memtime' if OPT.get('cyc') else 's_memrealtime'} s[{sST}:{sST+1}]"); k.e("s_waitcnt lgkmcnt(0)"); k.lg = []
    k.e(f"v_writelane_b32 v{vST}, s{sST}, {i}")
def srd(r, ptr, size):
    k.e(f"s_mov_b32 s{r}, s{ptr}\ns_mov_b32 s{r+1}, s{ptr+1}\ns_mov_b32 s{r+2}, {size}\ns_mov_b32 s{r+3}, 0x20000")

class F:
    def __init__(self, fn, cost=1, ds=False, sep=False, ta=0): self.fn, self.cost, self.ds, self.sep, self.ta = fn, cost, ds, sep, ta
    gate = None
    atpre = False
    def __call__(self): self.fn()
curblk = [0]
def note(d, key): return F(lambda: d.__setitem__(key, curblk[0]), 0)
def gate(fn):
    f = F(lambda: None, 0); f.gate = fn; return f
def lines(s):
    out = []; prev = set()
    for l in (x.strip() for x in s.split("\n")):
        if not l: continue
        if l == "s_nop 0":
            prev = None; continue
        parts = l.split(" | ")
        c = sum(2 if x.split()[0] in TRANS else 1 for x in parts)
        d = parse(parts[0])
        dep = prev is None or (d["valu"] and bool(d["uses"] & prev))
        prev = set().union(*[{r for r in parse(x)["defs"] if r[0] == "v"} for x in parts])
        out.append(F(lambda l=l: k.e(l.replace(" | ", "\n")), c, sep=dep))
    return out
def VM(text, tag, sep=False, ta=66): return F(lambda: k.vmem(text, tag), 2, sep=sep, ta=ta)
def DSF(text, tag=None): return F(lambda: k.ds(text, tag), 1, ds=True)
def sched(main, streams, start=0):
    n = len(main)
    st = []
    for items, g0, g1, must in streams:
        cnt = len(items) if must else min(len(items), must if isinstance(must, int) and must > 1 else len(items))
        tot = sum(f.cost for f in items[:cnt]) or 1
        tg = []; acc_ = 0
        for f in items[:cnt]:
            tg.append(g0 + (g1 - g0) * acc_ / tot if must else g0); acc_ += f.cost
        st.append(dict(items=items, tg=tg, last=-1, must=must))
    for g, m in enumerate(main):
        k.e(m)
        if g < start: continue
        room = 2; hasds = False
        prog = True
        while prog and room > 0:
            prog = False
            for x in st:
                if not x["tg"] or x["tg"][0] > g: continue
                f = x["items"][0]
                if f.atpre or (f.gate and not f.gate()): continue
                if f.sep and x["last"] == g: continue
                if f.ds and (hasds or (not x["must"] and g >= n - 6)): continue
                if f.cost > room and room < 2 and not (not x["must"] and g - x["last"] >= 3): continue
                x["items"].pop(0); x["tg"].pop(0); x["last"] = g
                f(); room -= f.cost; hasds |= f.ds; prog = True
                break
    for x in st:
        if x["must"]:
            over = len(x["tg"])
            if over and OPT.get("show"): print("overflow", over)
            while x["tg"]:
                f = x["items"].pop(0); x["tg"].pop(0)
                if f.sep: k.e("s_nop 0")
                f()
def merge(*ls):
    ls = [l for l in ls if l]
    if not ls: return []
    if len(ls) == 1: return list(ls[0])
    items = []
    for li, l in enumerate(ls):
        for i, f in enumerate(l): items.append(((i + 0.5) / len(l), li, i, f))
    items.sort(key=lambda x: (x[0], x[1]))
    return [x[3] for x in items]

def prologue():
    t = vT
    cpf = f"""
    s_getpc_b64 s[{sEx}:{sEx+1}]
    s_lshr_b32 s{sT1}, s2, 3
    s_lshl_b32 s{sT1}, s{sT1}, 11
    v_lshrrev_b32 v{t}, 6, v0
    v_lshlrev_b32 v{t}, 9, v{t}
    v_and_b32 v{t+1}, 3, v0
    v_lshl_add_u32 v{t}, v{t+1}, 7, v{t}
    v_add_u32 v{t}, s{sT1}, v{t}
    v_min_u32 v{t}, CODE_BYTES, v{t}
    global_load_dword v{vJunk}, v{t}, s[{sEx}:{sEx+1}]
    """ if OPT["cpf"] else ""
    k.e(f"""
    s_cmp_ge_u32 s2, 256
    s_cbranch_scc1 L_end
    s_load_dwordx16 s[16:31], s[0:1], 0
    s_load_dwordx16 s[32:47], s[0:1], 64
    s_load_dwordx2 s[48:49], s[0:1], 128
    {cpf}
    v_lshrrev_b32 v{t}, 6, v0
    v_and_b32 v{vL}, 63, v0
    v_readfirstlane_b32 s{sW}, v{t}
    s_and_b32 s{sT0}, s2, 7
    s_lshr_b32 s{sT1}, s2, 3
    s_lshr_b32 s{sTYP}, s{sT1}, 4
    s_bfe_u32 s{sML}, s{sT1}, 0x20002
    s_lshr_b32 s{sMT}, s{sT0}, 1
    s_lshl_b32 s{sT2}, s{sML}, 2
    s_add_u32 s{sMT}, s{sMT}, s{sT2}
    s_and_b32 s{sT2}, s{sT1}, 3
    s_lshl_b32 s{sI8}, s{sTYP}, 2
    s_add_u32 s{sI8}, s{sI8}, s{sT2}
    s_and_b32 s{sNT}, s{sT0}, 1
    s_lshl_b32 s{sNT}, s{sNT}, 2
    s_add_u32 s{sNT}, s{sNT}, s{sT2}
    s_lshr_b32 s{sWR}, s{sW}, 1
    s_and_b32 s{sWC}, s{sW}, 1
    """)
    if OPT["stamps"]:
        k.e(f"v_mov_b32 v{vST}, 0\n{'s_memtime' if OPT.get('cyc') else 's_memrealtime'} s[{sST}:{sST+1}]" + ('' if OPT['pf'] or OPT['tch'] >= 3 else '\ns_memtime s[98:99]')); stamp_n[0] = 1
    if OPT.get("spin"): k.e(f"{OPT['spin'][0]} s[98:99]\ns_waitcnt lgkmcnt(0)\ns_mov_b32 s{sST}, s98")
    k.e(f"""
    v_lshrrev_b32 v{t}, 3, v{vL}
    v_and_b32 v{t+1}, 7, v{vL}
    v_lshrrev_b32 v{t+2}, 1, v{t}
    v_xor_b32 v{t+2}, v{t+1}, v{t+2}
    v_mul_u32_u24 v{t+3}, 5120, v{t}
    v_lshl_add_u32 v{vDX0}, v{t+2}, 4, v{t+3}
    v_xor_b32 v{vDX1}, 64, v{vDX0}
    v_add_u32 v{vDX1}, 40960, v{vDX1}
    s_lshl_b32 s{sT0}, s{sMT}, 7
    s_lshl_b32 s{sT1}, s{sWR}, 6
    s_add_u32 s{sT0}, s{sT0}, s{sT1}
    s_lshl_b32 s{sT1}, s{sWC}, 1
    s_add_u32 s{sT0}, s{sT0}, s{sT1}
    s_mul_i32 s{sX}, s{sT0}, 1280
    s_lshl_b32 s{sLX}, s{sW}, 12
    s_cmp_eq_u32 s{sTYP}, 1
    s_cbranch_scc1 L_e_mlp
    """)
    for typ in ("ssm", "mlp"):
        if typ == "mlp": k.label("L_e_mlp")
        k.vm = []; issued.clear()
        cur[0] = typ
        k.e(WOFF[typ])
        rot_setup(typ)
        if OPT["rsp"] >= 3: xr_setup()
        start_loads(typ)
        k.e(f"s_branch L_{typ}")
        early_vm[typ] = list(k.vm)
    cur[0] = "ssm"
early_vm = {}
WOFF = {}
def late_common(typ):
    t = vT
    k.label(f"L_{typ}")
    issued.clear(); issued[0] = 10 if typ == "mlp" else 9
    k.seen.clear(); k.vm = list(early_vm[typ]); k.seen.update(k.vm); k.lg = []
    k.e(f"""
    v_and_b32 v{vN}, 15, v{vL}
    v_lshrrev_b32 v{vQ}, 4, v{vL}
    v_lshlrev_b32 v{vL16}, 4, v{vL}
    s_xor_b32 s{sKs}, s{sWR}, s{sWC}
    s_xor_b32 s{sHALF}, s{sTYP}, 1
    s_mov_b32 s{sSpin}, 0x40000
    s_and_b32 s{sT2}, s2, 127
    s_sub_u32 s{sUnit}, 127, s{sT2}
    s_cmp_lt_u32 s{sUnit}, 96
    s_cselect_b32 s{sUnit}, s{sUnit}, 0
    s_cselect_b32 s{sDis}, 0, {OOB}
    s_lshl_b32 s{sT2}, s{sKs}, 2
    v_add_u32 v{t+4}, s{sT2}, v{vQ}
    v_lshrrev_b32 v{t+5}, 1, v{vN}
    v_xor_b32 v{t+5}, v{t+4}, v{t+5}
    v_lshlrev_b32 v{t+5}, 4, v{t+5}
    v_lshl_add_u32 v{t+5}, v{vN}, 7, v{t+5}
    s_lshl_b32 s{sT1}, s{sWC}, 13
    s_add_u32 s{sT1}, s{sT1}, {L_X}
    v_add_u32 v{vXa}, s{sT1}, v{t+5}
    v_xor_b32 v{vXb}, 64, v{vXa}
    """)

issued = {}
mk = {}
def dma(vo, rs, so, imm, sl, tgt, tag, fl, pre=None):
    def f1():
        k.e(f"s_add_u32 m0, s{sl}, {tgt - imm}")
        if pre: k.e(pre)
    def f2():
        if isinstance(tag, tuple): issued[tag[1]] = issued.get(tag[1], 0) + 1
        k.vmem(f"buffer_load_dwordx4 v{vo}, s[{rs}:{rs+3}], s{so} offen offset:{imm} {fl} lds", tag)
    return [F(f1, 2 if pre else 1), F(f2, 2, sep=True, ta=66)]
def run(ops):
    for op in ops:
        for f in (op if isinstance(op, list) else [op]):
            if f.sep: k.e("s_nop 0")
            f()
def flat(ops): return [f for op in ops for f in (op if isinstance(op, list) else [op])]
def advance(typ, stage):
    d = 64*3072 if typ == "mlp" else 128
    G = OPT["rotg"]
    if stage not in [10 - (10*g) // G for g in range(1, G)]:
        return f"s_add_u32 s{sX}, s{sX}, 128\ns_add_u32 s{sB0}, s{sB0}, {d}\ns_add_u32 s{sB2}, s{sB2}, {d}"
    return (f"s_cmp_eq_u32 s{sSig}, {10 - stage} | s_cselect_b32 s{sT3}, {-9*128 & 0xffffffff}, s{sDX} | s_cselect_b32 s{sT2}, {-9*d & 0xffffffff}, s{sDW}\n"
            f"s_add_u32 s{sX}, s{sX}, s{sT3}\ns_add_u32 s{sB0}, s{sB0}, s{sT2}\ns_add_u32 s{sB2}, s{sB2}, s{sT2}")
def rot_setup(typ):
    d = 64*3072 if typ == "mlp" else 128
    G = OPT.get("rotg", 0)
    if G == 0: rotsel = f"""    s_mul_i32 s{sT0}, s{sI8}, 5
    s_lshr_b32 s{sT0}, s{sT0}, 2
    s_mul_i32 s{sT1}, s{sML}, 5
    s_lshr_b32 s{sT1}, s{sT1}, 1
    s_add_u32 s{sT0}, s{sT0}, s{sT1}
    s_and_b32 s{sT1}, s{sMT}, 3
    s_add_u32 s{sSig}, s{sT0}, s{sT1}
    s_sub_u32 s{sT0}, s{sSig}, 10
    s_cmp_ge_u32 s{sSig}, 10
    s_cselect_b32 s{sSig}, s{sT0}, s{sSig}
    s_mul_i32 s{sSig}, s{sSig}, {OPT['rot1']}
    """
    else:
        rotsel = f"s_add_u32 s{sT0}, s{sI8}, s{sML}\ns_and_b32 s{sT0}, s{sT0}, {G-1}\ns_mul_i32 s{sT0}, s{sT0}, 10\ns_lshr_b32 s{sSig}, s{sT0}, {G.bit_length()-1}"
    k.e(f"""
    {rotsel}
    s_lshl_b32 s{sT0}, s{sSig}, 7
    s_add_u32 s{sX}, s{sX}, s{sT0}
    s_mul_i32 s{sT0}, s{sSig}, {d}
    s_add_u32 s{sB0}, s{sB0}, s{sT0}
    s_add_u32 s{sB2}, s{sB2}, s{sT0}
    s_movk_i32 s{sDX}, 128
    s_mov_b32 s{sDW}, {d}
    """)
def dma_x(stage, g):
    return dma(vDX0 + (g & 1), rX, sX, (g >> 1) * 1280, sLX, L_X + (stage % 3) * XS + g * 1024, ("st", stage), OPT.get("nt_x", "") if stage < OPT.get("nt_n", 99) else "")
def dma_w(typ, stage, g):
    base = L_W + (stage % 3) * WSL
    if typ == "mlp":
        rg, cg = g // 3, g % 3
        return dma(vDW + rg, rW, sB2 if rg else sB0, cg * 128, sLW, base + cg * 8192 + rg * 1024, ("st", stage), OPT["nt_dma"] if stage < OPT.get("nt_n", 99) else "")
    imm = 2560 if (g < 4 and g & 1) else 0
    return dma(vDW + (1 if g == 4 else 0), rW, sB2 if g in (2, 3) else sB0, imm, sLW, base + g * 2048, ("st", stage), OPT["nt_dma"] if stage < OPT.get("nt_n", 99) else "")
def dma_stage(typ, stage):
    nw = 6 if typ == "mlp" else 5
    ops = merge([dma_x(stage, g) for g in range(4)], [dma_w(typ, stage, g) for g in range(nw)])
    if stage > 0: ops[0] = lines(advance(typ, stage)) + ops[0]
    return ops
sPB = 98
def pf(a):
    def f():
        k.vmem(f"global_load_dword v{vJunk}, v{vPF}, s[{sPB}:{sPB+1}] {OPT['nt_pf']}", "pf")
        k.e(f"v_add_u32 v{vPF}, s{sDX}, v{vPF}\nv_min_u32 v{vPF}, s{sDW}, v{vPF}")
    return F(f, 4, ta=130)

def frag_reads(typ, stage, blk, fs):
    slot = stage % 3
    nr = 6 if typ == "mlp" else 5
    vx = vXa if blk == 0 else vXb
    xr = [DSF(f"ds_read_b128 {A(aF[fs] + 24 + 4*j, 4)}, v{vx} offset:{slot*XS + j*2048}") for j in range(4)]
    wr_ = []
    for i in range(nr):
        if typ == "mlp":
            for h in range(2):
                wr_.append(DSF(f"ds_read_b64_tr_b16 {A(aF[fs] + 4*i + 2*h, 2)}, v{vWA + blk*4 + (i & 3)} offset:{slot*WSL + (i >> 2)*8192 + h*512}"))
        else:
            wr_.append(DSF(f"ds_read_b128 {A(aF[fs] + 4*i, 4)}, v{vWA + blk} offset:{slot*WSL + i*2048}"))
    return merge(xr, wr_)

def mfmas(typ, stage, blk, fs):
    nr = 6 if typ == "mlp" else 5
    first = stage == 0
    out = []
    Af = lambda i: A(aF[fs] + 4*i, 4)
    Bf = lambda j: A(aF[fs] + 24 + 4*j, 4)
    for i in range(nr):
        for j in range(4):
            c = "0" if (first and blk == 0) else V(acc(i, j), 4)
            out.append(f"v_mfma_f32_16x16x32_bf16 {V(acc(i,j),4)}, {Af(i)}, {Bf(j)}, {c}")
    if blk == 1 and (2 not in OPT.get('x', ()) or stage == NST - 1):
        for i in range(nr):
            out.append(f"v_mfma_f32_16x16x32_bf16 {A(aCS+4*i,4)}, {Af(i)}, {A(aONE,4)}, {'0' if first else A(aCS+4*i,4)}")
    if blk == 1 and stage == NST - 1: out = out[-nr:] + out[:-nr]
    return out

XR = 124
def touch_all(typ):
    t = vT + 8
    if typ == "ssm":
        k.e(f"""
        s_lshl_b32 s{sT0}, s2, 2
        s_add_u32 s{sT0}, s{sT0}, s{sW}
        s_mul_i32 s{sT0}, s{sT0}, {40*128}
        v_min_u32 v{t}, 39, v{vL}
        s_mov_b64 s[{sT2}:{sT3}], s[{pX}:{pX+1}]
        """)
    else:
        k.e(f"""
        s_and_b32 s{sT0}, s2, 127
        s_lshl_b32 s{sT1}, s{sT0}, 1
        s_add_u32 s{sT1}, s{sT1}, s{sWC}
        s_mul_i32 s{sT1}, s{sT1}, {60*128}
        s_mul_i32 s{sT0}, s{sT0}, {50*128}
        s_cmp_eq_u32 s{sWC}, 0
        s_cselect_b64 s[{sT2}:{sT3}], s[{pBre}:{pBre+1}], s[{pBim}:{pBim+1}]
        s_cmp_eq_u32 s{sWR}, 0
        s_cselect_b32 s{sT0}, s{sT0}, s{sT1}
        s_cselect_b32 s{sT1}, 49, 59
        s_cselect_b64 s[{sT2}:{sT3}], s[{sT2}:{sT3}], s[{pW1}:{pW1+1}]
        v_min_u32 v{t}, s{sT1}, v{vL}
        """)
    k.e(f"v_lshlrev_b32 v{t}, 7, v{t}\nv_add_u32 v{t}, s{sT0}, v{t}")
    if OPT["tch"] >= 3: k.e(f"v_mov_b32 v{vPF}, v{t}\ns_mov_b64 s[{sPB}:{sPB+1}], s[{sT2}:{sT3}]")
    else: k.vmem(f"global_load_dword v{vJunk}, v{t}, s[{sT2}:{sT3}] {OPT['nt_pf']}", "tch")
def touch_two(typ):
    t = vT + 9
    if typ == "mlp":
        k.e(f"""
        s_and_b32 s{sT0}, s2, 127
        s_lshl_b32 s{sT0}, s{sT0}, 2
        s_add_u32 s{sT0}, s{sT0}, s{sW}
        s_mul_i32 s{sT0}, s{sT0}, {30*128}
        v_min_u32 v{t}, 29, v{vL}
        s_mov_b64 s[{sT2}:{sT3}], s[{pW2}:{pW2+1}]
        """)
    else:
        k.e(f"""
        s_lshl_b32 s{sT0}, s2, 1
        s_add_u32 s{sT0}, s{sT0}, s{sWR}
        s_mul_i32 s{sT0}, s{sT0}, {25*128}
        v_min_u32 v{t}, 24, v{vL}
        s_cmp_eq_u32 s{sWC}, 0
        s_cselect_b64 s[{sT2}:{sT3}], s[{pCre}:{pCre+1}], s[{pCim}:{pCim+1}]
        """)
    k.e(f"v_lshlrev_b32 v{t}, 7, v{t}\nv_add_u32 v{t}, s{sT0}, v{t}")
    k.vmem(f"global_load_dword v{vJunk}, v{t}, s[{sT2}:{sT3}]", "tch")
def start_loads(typ):
    t = vT
    k.e("s_waitcnt lgkmcnt(0)")
    if OPT["stamps"]: k.e(f"v_writelane_b32 v{vST}, s{sST}, 0")
    stamp(12)
    k.e(f"""
    s_or_b32 s{sT0}, s2, s{sW}
    s_cmp_lg_u32 s{sT0}, 0
    s_cbranch_scc1 L_nononce_{typ}
    s_memrealtime s[{sT0}:{sT1}]
    s_waitcnt lgkmcnt(0)
    s_or_b32 s{sT0}, s{sT0}, 1
    v_mov_b32 v{t+8}, s{sT0}
    v_mov_b32 v{t+9}, 0
    global_store_dword v{t+9}, v{t+8}, s[{pDbg}:{pDbg+1}] sc1
    L_nononce_{typ}:
    """)
    srd(rX, pX, 2048 * 1280)
    if typ == "mlp": srd(rW, pW1, 640 * 3072)
    else:
        k.e(f"""
        s_cmp_eq_u32 s{sWC}, 0
        s_cselect_b32 s{rW}, s{pBre}, s{pBim}
        s_cselect_b32 s{rW+1}, s{pBre+1}, s{pBim+1}
        s_mov_b32 s{rW+2}, {640*1280}
        s_mov_b32 s{rW+3}, 0x20000
        """)
    if OPT['pf']:
        assert OPT['rotg'] == 1
        k.e(f"s_cmp_eq_u32 s{sW}, 3\ns_cselect_b64 s[{sPB}:{sPB+1}], s[{rX}:{rX+1}], s[{rW}:{rW+1}]")
        for _ in range(OPT['pfa'][0]): pf(0)()
    if OPT.get("tch") == 1: touch_all(typ)
    if OPT["rsp"] >= 3: run(xr_loads())
    run(dma_stage(typ, 0))
    if OPT["rsp"] in (1, 2):
        xr_setup(); run(xr_loads())
    if OPT.get("tch") >= 2: touch_all(typ)
    if OPT.get("t2"): touch_two(typ)
    if OPT['pf']:
        for _ in range(OPT['pfa'][1]): pf(0)()
    if OPT['xr0']: run(xr_loads())
    stamp(13)
    if OPT.get("stlb", 1):
        k.e(f"s_lshl_b32 s{sT0}, s2, 7\ns_add_u32 s{sT0}, s{sT0}, {WS_HF + 32768}\ns_load_dword s{sNonce}, s[{pWs}:{pWs+1}], s{sT0} {'glc' if OPT.get('stlb') == 2 else ''}")
    srd(rWS, pWs, WS_SIZE)
    if OPT.get('wsoff'): k.e(f"s_add_u32 s{rWS}, s{rWS}, {OPT['wsoff'] << 20}\ns_addc_u32 s{rWS+1}, s{rWS+1}, 0")
def xr_setup():
    k.e(f"""
    s_lshl_b32 s{sT0}, s{sTYP}, 3
    s_add_u32 s{sT0}, s{sT0}, s{sNT}
    s_lshl_b32 s{sT0}, s{sT0}, 2
    s_add_u32 s{sT0}, s{sT0}, s{sW}
    s_lshl_b32 s{sT0}, s{sT0}, 1
    s_lshl_b32 s{sT1}, s{sMT}, 7
    s_add_u32 s{sHw}, s{sT0}, s{sT1}
    s_mul_i32 s{sH}, s{sHw}, 1280
    v_lshrrev_b32 v{XR+10}, 5, v{vL}
    v_mul_u32_u24 v{XR+10}, 1280, v{XR+10}
    v_and_b32 v{XR+11}, 31, v{vL}
    v_lshl_add_u32 v{XR+11}, v{XR+11}, 3, v{XR+10}
    v_lshlrev_b32 v{XR+13}, 1, v{XR+11}
    v_sub_u32 v{XR+10}, v{XR+13}, v{XR+10}
    """)
def xr_loads():
    return [VM(f"buffer_load_dwordx4 {V(XR+4*i,4)}, v{XR+10}, s[{rX}:{rX+3}], s{sH} offen offset:{512*i}", "xr") for i in range(2)] + \
           [VM(f"buffer_load_dwordx2 {V(XR+8,2)}, v{XR+11}, s[{rX}:{rX+3}], s{sH} offen offset:1024", "xr", ta=40)]
def small_dma(ptr, size, soff, tgt, lanes):
    srd(rT2, ptr, size)
    k.e(f"s_mov_b32 m0, {tgt}\ns_mov_b32 exec_lo, {(1 << lanes) - 1}\ns_mov_b32 exec_hi, 0")
    k.vmem(f"buffer_load_dwordx4 v{vL16}, s[{rT2}:{rT2+3}], s{soff} offen lds", "sm")
    k.e("s_mov_b64 exec, -1")
def touch_setup():
    t = 98
    srd(rT2, pCre, 640 * 1280)
    k.e(f"""
    s_mov_b64 s[{sEx}:{sEx+1}], s[{pCim}:{pCim+1}]
    s_and_b32 s{sT0}, s2, 31
    s_lshl_b32 s{sT0}, s{sT0}, 2
    s_add_u32 s{sT0}, s{sT0}, s{sW}
    s_mul_i32 s{sT0}, s{sT0}, {50*128}
    s_xor_b32 s{sT1}, s{sDis}, {OOB}
    s_or_b32 s{sT0}, s{sT0}, s{sT1}
    v_min_u32 v{t}, 49, v{vL}
    v_lshlrev_b32 v{t}, 7, v{t}
    v_add_u32 v{t}, s{sT0}, v{t}
    """)
def touch_c():
    ld = f"buffer_load_dword v{vJunk}, v98, s[{rT2}:{rT2+3}], 0 offen"
    return [VM(ld, "jk", ta=20)] + lines(f"s_mov_b32 s{rT2}, s{sEx}\ns_mov_b32 s{rT2+1}, s{sEx+1}") + [VM(ld, "jk", ta=20)]
def small_loads(typ):
    k.e(f"s_mul_i32 s{sT0}, s{sDT}, 160")
    small_dma(pDsk, 1280, sT0, L_DB, 10)
    small_dma(pB2, 1280, sT0, L_DB + 160, 10)
    if typ == "mlp":
        k.e(f"s_mul_i32 s{sT0}, s{sNT}, 384")
        small_dma(pB1, 3072, sT0, L_B1, 24)

def pf_setup(typ):
    t = vT + 10
    PS = OPT["pf"]
    k.e(f"""
    v_mul_u32_u24 v{t}, 52, v{vL}
    v_lshrrev_b32 v{t}, 10, v{t}
    v_mul_u32_u24 v{t+1}, 20, v{t}
    v_sub_u32 v{t+1}, v{vL}, v{t+1}
    v_min_u32 v{t}, {PS - 1}, v{t}
    s_lshl_b32 s{sT0}, s{sMT}, 7
    s_lshl_b32 s{sT1}, s{sI8}, 4
    s_add_u32 s{sT0}, s{sT0}, s{sT1}
    s_mul_i32 s{sT0}, s{sT0}, 1280
    s_add_u32 s{sT0}, s{sT0}, {128*OPT['pf0']}
    """)
    if typ == "mlp":
        k.e(f"""
        s_lshl_b32 s{sT1}, s{sML}, 4
        s_add_u32 s{sT1}, s{sT1}, {64*OPT['pf0']}
        s_mul_i32 s{sT1}, s{sT1}, 3072
        s_mul_i32 s{sT2}, s{sNT}, 384
        s_add_u32 s{sT1}, s{sT1}, s{sT2}
        s_lshl_b32 s{sT2}, s{sW}, 7
        s_add_u32 s{sT1}, s{sT1}, s{sT2}
        s_cmp_eq_u32 s{sW}, 3
        s_cselect_b32 s{sT0}, s{sT0}, s{sT1}
        s_mov_b32 s{sT2}, {64*3072}
        s_cselect_b32 s{sT2}, 128, s{sT2}
        s_mov_b32 s{sT3}, 3072
        s_cselect_b32 s{sT3}, 1280, s{sT3}
        s_mov_b32 s{sDW}, {640*3072 - 128}
        s_cselect_b32 s{sDW}, {2048*1280 - 128}, s{sDW}
        v_min_u32 v{t+1}, 15, v{t+1}
        """)
    else:
        k.e(f"""
        s_mul_i32 s{sT1}, s{sNT}, 80
        s_mul_i32 s{sT2}, s{sML}, 20
        s_add_u32 s{sT1}, s{sT1}, s{sT2}
        s_mul_i32 s{sT1}, s{sT1}, 1280
        s_add_u32 s{sT1}, s{sT1}, {128*OPT['pf0']}
        s_cmp_eq_u32 s{sW}, 3
        s_cselect_b32 s{sT0}, s{sT0}, s{sT1}
        s_cselect_b32 s{sT1}, 15, 19
        s_mov_b32 s{sDW}, {640*1280 - 128}
        s_cselect_b32 s{sDW}, {2048*1280 - 128}, s{sDW}
        s_cmp_eq_u32 s{sW}, 2
        s_cselect_b32 s{sT1}, 0, s{sT1}
        v_min_u32 v{t+1}, s{sT1}, v{t+1}
        s_mov_b32 s{sT2}, 128
        s_mov_b32 s{sT3}, 1280
        """)
    k.e(f"""
    s_mul_i32 s{sDX}, s{sT2}, {PS}
    v_mul_lo_u32 v{vPF}, v{t}, s{sT2}
    v_mul_lo_u32 v{t+2}, v{t+1}, s{sT3}
    v_add_u32 v{vPF}, v{vPF}, v{t+2}
    v_add_u32 v{vPF}, s{sT0}, v{vPF}
    """)

def repack_setup(tag):
    t = vT
    k.e(f"""
    v_lshrrev_b32 v{t}, 3, v{vL}
    v_and_b32 v{t+1}, 7, v{vL}
    v_mul_u32_u24 v{t}, 1280, v{t}
    v_lshl_add_u32 v{t}, v{t+1}, 4, v{t}
    v_or_b32 v{vDR}, s{sDis}, v{t}
    v_or_b32 v{vRS}, s{sDis}, v{vL16}
    s_lshl_b32 s{sLR}, s{sW}, 10
    s_and_b32 s{sT0}, s{sUnit}, 1
    s_lshr_b32 s{sT1}, s{sUnit}, 1
    s_mov_b32 s{rT+3}, 0x20000
    """)
    if True:
        k.e(f"""
        s_mov_b32 s{rT}, s{pW2}
        s_mov_b32 s{rT+1}, s{pW2+1}
        s_mov_b32 s{rT+2}, {1536*1280}
        s_lshl_b32 s{sT2}, s{sT1}, 2
        s_add_u32 s{sT2}, s{sT2}, s{sW}
        s_mul_i32 s{sRpSrc}, s{sT2}, {8*1280}
        s_mul_i32 s{sT2}, s{sT1}, 5462
        s_lshr_b32 s{sT2}, s{sT2}, 16
        s_mul_i32 s{sT2}, s{sT2}, 10
        s_add_u32 s{sT1}, s{sT1}, s{sT2}
        s_mul_i32 s{sT1}, s{sT1}, 5120
        s_add_u32 s{sT1}, s{sT1}, {WS_WP}
        s_mul_i32 s{sT2}, s{sT0}, 20
        s_add_u32 s{sT2}, s{sT2}, s{sW}
        """)
        for i in range(5):
            k.e(f"""
            s_mul_i32 s{sT3}, s{sT2}, 13108
            s_lshr_b32 s{sT3}, s{sT3}, 16
            s_mul_i32 s{sT3}, s{sT3}, 435
            s_add_u32 s{sT3}, s{sT3}, s{sT2}
            s_lshl_b32 s{sT3}, s{sT3}, 10
            s_add_u32 s{sRpD+i}, s{sT3}, s{sT1}
            s_add_u32 s{sT2}, s{sT2}, 4
            """)
        k.e(f"""
        v_lshrrev_b32 v{t}, 2, v{vN}
        v_lshl_add_u32 v{t}, v{vQ}, 2, v{t}
        v_lshlrev_b32 v{t}, 7, v{t}
        v_and_b32 v{t+1}, 3, v{vN}
        v_lshl_add_u32 v{t}, v{t+1}, 3, v{t}
        s_lshl_b32 s{sT2}, s{sW}, 5
        s_add_u32 s{sT2}, s{sT2}, {L_STG}
        v_add_u32 v{vRA}, s{sT2}, v{t}
    """)
    else:
        k.e(f"""
        s_cmp_eq_u32 s{sWR}, 0
        s_cselect_b32 s{rT}, s{pCre}, s{pCim}
        s_cselect_b32 s{rT+1}, s{pCre+1}, s{pCim+1}
        s_mov_b32 s{rT+2}, {640*1280}
        s_lshl_b32 s{sT2}, s{sT1}, 1
        s_add_u32 s{sT2}, s{sT2}, s{sWC}
        s_mul_i32 s{sRpSrc}, s{sT2}, {8*1280}
        s_mul_i32 s{sT2}, s{sT1}, 13108
        s_lshr_b32 s{sT2}, s{sT2}, 16
        s_mul_i32 s{sT2}, s{sT2}, 435
        s_add_u32 s{sT1}, s{sT1}, s{sT2}
        s_lshl_b32 s{sT2}, s{sT0}, 1
        s_add_u32 s{sT2}, s{sT2}, s{sWR}
        s_mul_i32 s{sT2}, s{sT2}, 110
        s_add_u32 s{sT1}, s{sT1}, s{sT2}
        s_mul_i32 s{sT2}, s{sWC}, 25
        s_add_u32 s{sT1}, s{sT1}, s{sT2}
        s_add_u32 s{sT1}, s{sT1}, 60
        s_lshl_b32 s{sT1}, s{sT1}, 10
        s_add_u32 s{sRpD}, s{sT1}, {WS_WP}
        s_add_u32 s{sRpD+1}, s{sRpD}, 5120
        s_add_u32 s{sRpD+2}, s{sRpD}, 10240
        s_add_u32 s{sRpD+3}, s{sRpD}, 15360
        s_add_u32 s{sRpD+4}, s{sRpD}, 20480
        s_mul_i32 s{sT2}, s{sW}, 160
        v_lshlrev_b32 v{t+2}, 7, v{vN}
        v_add_u32 v{t+2}, {L_STG}, v{t+2}
        """)
        for x, (off, sh) in enumerate(((0, 4), (80, 4), (64, 2), (144, 2))):
            k.e(f"""
            s_add_u32 s{sT3}, s{sT2}, {off}
            v_lshl_add_u32 v{t}, v{vQ}, {sh}, s{sT3}
            v_lshrrev_b32 v{t+1}, 7, v{t}
            v_and_b32 v{t}, 127, v{t}
            v_lshl_add_u32 v{t}, v{t+1}, 12, v{t}
            v_add_u32 v{vRA+x}, v{t}, v{t+2}
            """)
    k.e(f"""
    s_mul_i32 s{sT0}, s{sT0}, 640
    s_add_u32 s{sRpSrc}, s{sRpSrc}, s{sT0}
    """)
def repack_dma():
    return [dma(vDR, rT, sRpSrc, g * 128, sLR, L_STG + g * 4096, "rp%d" % g, OPT["nt_rp"]) for g in range(5)]
RP = 136
def RPR(tag, o, n): return V(RP + o, n)
def repack_read(tag):
    if True:
        return [DSF(f"ds_read_b64_tr_b16 {V(RP+4*i+2*h,2)}, v{vRA} offset:{i*4096 + h*2048}") for i in range(5) for h in range(2)]
    return [DSF(f"ds_read_b128 {V(RP+4*x,4)}, v{vRA + x//2} offset:{(x & 1)*2048}") for x in range(4)] + \
           [DSF(f"ds_read_b32 v{RP+16+x}, v{vRA + 2 + x//2} offset:{(x & 1)*2048}") for x in range(4)]
def repack_store(tag):
    return [VM(f"buffer_store_dwordx4 {RPR(tag, 4*i, 4)}, v{vRS}, s[{rWS}:{rWS+3}], s{sRpD+i} offen sc1", ("rps", i), ta=240) for i in range(5)]
def repack_flag():
    t = vT
    pre = lines(f"""
    v_mov_b32 v{t}, s{sNonce}
    v_mov_b32 v{t+1}, s{sNonce}
    s_lshl_b32 s{sRpSrc}, s{sUnit}, 7
    s_lshl_b32 s{sT1}, s{sW}, 4
    s_add_u32 s{sRpSrc}, s{sRpSrc}, s{sT1}
    s_add_u32 s{sRpSrc}, s{sRpSrc}, {WS_RF}
    s_add_u32 s{sRpSrc}, s{sRpSrc}, 16384
    v_lshlrev_b32 v{t+2}, 26, v{vL}
    v_or_b32 v{t+2}, s{sDis}, v{t+2}
    """)
    def f():
        k.wait_vm(("rps", 4))
        k.vmem(f"buffer_store_dwordx2 {V(t,2)}, v{t+2}, s[{rWS}:{rWS+3}], s{sRpSrc} offen sc1", "rf")
    return pre, F(f, 3, ta=20)

def bfr(d, s): return f"v_cvt_pk_bf16_f32 v{d}, v{s}, v{s}\nv_and_b32 v{d}, 0xffff0000, v{d}\n"
def nonce_load():
    return lines(f"v_mov_b32 v{vNc}, 0") + [VM(f"global_load_dword v{vNc}, v{vNc}, s[{pDbg}:{pDbg+1}] sc1", "nc", ta=20)]
def rowstat_job(tag):
    t = vT + 20
    S_, Q, MEAN, VAR, S1, X, Y = t, t+1, t+2, t+3, t+4, t+5, t+6
    G0, G1 = t+8, t+12
    M1, A1, A2, AM = G0, G0+2, G1, G1+2
    def dots():
        k.wait_vm("xr")
        s = f"v_mov_b32 v{X}, 0x3f803f80\nv_mov_b32 v{S_}, 0\nv_mov_b32 v{Q}, 0\n"
        for i in range(10): s += f"v_dot2c_f32_bf16 v{S_}, v{XR+i}, v{X}\nv_dot2c_f32_bf16 v{Q}, v{XR+i}, v{XR+i}\n"
        s += "s_nop 2\n"
        k.e(s)
    fl = [F(dots, 24)]
    if OPT["nodot"]:
        S2, Q2, U0, U1 = MEAN, VAR, X, Y
        tx = ""
        for i in range(10):
            tx += f"v_lshlrev_b32 v{U0}, 16, v{XR+i}\nv_and_b32 v{U1}, 0xffff0000, v{XR+i}\n"
            if i == 0: tx += f"v_mov_b32 v{S_}, v{U0}\nv_mov_b32 v{S2}, v{U1}\nv_mul_f32 v{Q}, v{U0}, v{U0}\nv_mul_f32 v{Q2}, v{U1}, v{U1}\n"
            else: tx += f"v_add_f32 v{S_}, v{S_}, v{U0}\nv_add_f32 v{S2}, v{S2}, v{U1}\nv_fmac_f32 v{Q}, v{U0}, v{U0}\nv_fmac_f32 v{Q2}, v{U1}, v{U1}\n"
        tx += f"v_add_f32 v{S_}, v{S_}, v{S2}\nv_add_f32 v{Q}, v{Q}, v{Q2}\nv_mov_b32 v{U0}, 0"
        fl = [F(lambda: k.wait_vm("xr"), 1)] + lines(tx)
    for d in ("row_shr:1", "row_shr:2", "row_shr:4", "row_shr:8", "row_bcast:15"):
        rm = "0xa" if "bcast" in d else "0xf"
        fl.append(F(lambda d=d, rm=rm: k.e(f"v_add_f32_dpp v{S_}, v{S_}, v{S_} {d} row_mask:{rm} bank_mask:0xf bound_ctrl:0"), 1, sep=True))
        fl.append(F(lambda d=d, rm=rm: k.e(f"v_add_f32_dpp v{Q}, v{Q}, v{Q} {d} row_mask:{rm} bank_mask:0xf bound_ctrl:0"), 1))
    fl += lines(f"""
    v_mul_f32 v{MEAN}, {hx(1/640)}, v{S_}
    v_mul_f32 v{VAR}, {hx(1/640)}, v{Q}
    v_fma_f32 v{VAR}, -v{MEAN}, v{MEAN}, v{VAR}
    v_max_f32 v{VAR}, 0, v{VAR}
    {bfr(M1, MEAN)}{bfr(X, VAR)}
    v_add_f32 v{X}, {hx(1e-5)}, v{X}
    {bfr(X, X)}
    v_sqrt_f32 v{X}, v{X}
    v_sub_f32 v{Y}, v{MEAN}, v{M1}
    {bfr(S1, X)}
    v_rcp_f32 v{A1}, v{S1}
    s_nop 0
    v_mul_f32 v{Y}, v{Y}, v{A1}
    v_mul_f32 v{X}, v{VAR}, v{A1}
    {bfr(Y, Y)}
    v_mul_f32 v{X}, v{X}, v{A1}
    {bfr(X, X)}
    v_add_f32 v{X}, {hx(1e-5)}, v{X}
    {bfr(X, X)}
    v_sqrt_f32 v{X}, v{X}
    v_fma_f32 v{Y}, v{Y}, v{S1}, v{M1}
    {bfr(X, X)}
    v_mul_f32 v{X}, v{X}, v{S1}
    v_rcp_f32 v{A2}, v{X}
    v_and_b32 v{X}, 31, v{vL}
    v_mul_f32 v{AM}, v{A2}, v{Y}
    v_sub_u32 v{X}, 31, v{X}
    v_and_b32 v{Y}, 32, v{vL}
    v_lshl_add_u32 v{X}, v{X}, 26, v{Y}
    s_lshl_b32 s{sT0}, s{sHw}, 5
    s_add_u32 s{sT0}, s{sT0}, {WS_RS}
    """)
    def nonce():
        k.wait_vm("nc")
        k.e(f"""
        v_readfirstlane_b32 s{sNonce}, v{vNc}
        s_cmp_lg_u32 s{sNonce}, 0
        s_cbranch_scc1 L_ncok_{tag}
        L_ncl_{tag}:
        s_sleep 1
        global_load_dword v{vNc}, v{Y}, s[{pDbg}:{pDbg+1}] sc1
        s_sub_u32 s{sSpin}, s{sSpin}, 1
        s_cbranch_scc1 L_end
        s_waitcnt vmcnt(0)
        v_readfirstlane_b32 s{sNonce}, v{vNc}
        s_cmp_eq_u32 s{sNonce}, 0
        s_cbranch_scc1 L_ncl_{tag}
        L_ncok_{tag}:
        s_nop 0
        """)
    fl += lines(f"v_mov_b32 v{Y}, 0") + [F(nonce, 4)]
    fl += lines(f"""
    v_mov_b32 v{G0+1}, s{sNonce}
    v_mov_b32 v{G0+3}, s{sNonce}
    v_mov_b32 v{G1+1}, s{sNonce}
    v_mov_b32 v{G1+3}, s{sNonce}
    """)
    fl.append(VM(f"buffer_store_dwordx4 {V(G0,4)}, v{X}, s[{rWS}:{rWS+3}], s{sT0} offen sc1", "rs", ta=20))
    fl.append(VM(f"buffer_store_dwordx4 {V(G1,4)}, v{X}, s[{rWS}:{rWS+3}], s{sT0} offen offset:16 sc1", "rs", ta=20))
    return fl
RSV = 124
def rowstat_fetch():
    fl = lines(f"""
    s_lshl_b32 s{sT0}, s{sMT}, 12
    s_add_u32 s{sT0}, s{sT0}, {WS_RS}
    v_lshlrev_b32 v{RSV+4}, 4, v0
    v_add_u32 v{RSV+4}, s{sT0}, v{RSV+4}
    """)
    return fl + [VM(f"buffer_load_dwordx4 {V(RSV,4)}, v{RSV+4}, s[{rWS}:{rWS+3}], 0 offen sc1", "rsv")]

def ta_of(op): return sum(f.ta for f in flat([op]))
def main_loop(typ, jobs, vq, bg):
    q = [(max(0, 2*st - 5), max(2*st - 4 + (x >= 5) - OPT.get('lag', 0), x >= 5), op) for st in range(2, NST) for x, op in enumerate(dma_stage(typ, st))]
    if OPT.get("burst"):
        q = [(e_, e_ if e_ else d_, op) for e_, d_, op in q]
        ring_ids = {id(x[2]) for x in q}
    q = sorted(q + vq, key=lambda x: x[1])
    credit = [OPT.get("credit0", 0)]
    def take(bi, n):
        credit[0] = min(credit[0] + n * 17 * OPT["util"], n * 17 + 100) - sum(ta_of(x) for x in jobs.get(("pre", bi), []) + jobs.get(bi, []))
        out = []
        while True:
            c = [x for x in q if x[0] <= bi]
            if OPT.get("burst") and bi % 2 == 1 and bi < 15: c = [x for x in c if id(x[2]) in ring_ids or x[1] <= bi]
            if not c or ((credit[0] < 33 or len(out) >= (OPT['ctail'] if typ == 'ssm' and bi >= 15 else OPT.get('cap', 6))) and c[0][1] > bi): break
            q.remove(c[0]); out.append(c[0][2]); credit[0] -= ta_of(c[0][2])
        if OPT.get('show'): print(typ, bi, len(out), len(jq), len(bg), int(credit[0]), dict(issued))
        return flat(out)
    jq = []
    stamp(15)
    if OPT["rsp"] in (1, 3): run(jobs["rsmath"])
    tl = VM(f"global_load_dword v{vJunk}, v{vPF}, s[{sPB}:{sPB+1}]", "tch", ta=120)
    st1 = dma_stage(typ, 1)
    if OPT["tch"] == 4: st1.insert(5, [tl])
    run(st1)
    if OPT["tch"] == 3: tl()
    if OPT["rsp"] in (2, 4): run(jobs["rsmath"])
    if OPT['pf']:
        for _ in range(OPT['pfa'][2]): pf(0)()
    stamp(62)
    k.wait_vm(("st", 0)); k.e("s_barrier")
    stamp()
    run(frag_reads(typ, 0, 0, 0))
    def block(bi, m, reads, n):
        curblk[0] = bi
        run(jobs.get(("pre", bi), []))
        while bg and bg[0].atpre: bg.pop(0)()
        if bi == 2*NST - 1:
            jobs["tail"] = jobs["tail"] + prew; prew.clear()
        for _ in range(OPT["wpre"]):
            if prew: prew.pop(0)()
        jq.extend(jobs.get(bi, []))
        jq[:0] = jobs.get(("front", bi), [])
        d = take(bi, n)
        n = len(m)
        if bi == 2*NST - 1: reads, r0 = jobs["last"], 9
        else: r0 = 0
        sched(m, [(d, 0, n - 1 if not (OPT.get("burst") and bi % 2 == 0 and bi < 15) else n * OPT["burst"], True), (reads, r0, n - OPT.get("rend", 6), True), (jobs["tail"] if r0 else [], 0, 9 if len(jobs["tail"]) < 11 else n - 5, True), (jq, 0, n, False), (bg if bi >= OPT.get("bg0", 1) else [], 0, n, False)])
    for s in range(NST):
        k.wait_lg()
        m = mfmas(typ, s, 0, 0)
        block(2*s, m, frag_reads(typ, s, 1, 1), len(m))
        k.wait_lg()
        m = mfmas(typ, s, 1, 1)
        k.e(m[0]); k.e(m[1])
        if s + 1 < NST:
            if OPT.get("fine"): stamp(16 + 3*s)
            assert issued.get(s + 1, 0) == (10 if typ == "mlp" else 9), (typ, s, issued)
            for tg in jobs.get(("wait", s), []): assert tg in k.seen, tg
            k.wait_vm([("st", s + 1)] + jobs.get(("wait", s), []))
            if OPT.get("fine"): stamp(17 + 3*s)
            k.e("s_barrier")
        block(2*s + 1, m[2:], frag_reads(typ, s + 1, 0, 0) if s + 1 < NST else [], len(m))
    assert not jq and (len(bg) < 12 or OPT.get('x')), (len(jq), len(bg))
    run(bg)
    assert not prew
    stamp()
    if OPT["stop"] == "loop":
        k.e("s_branch L_fin"); k.seen.update(["rsv", ("rps", 4), "b1"])
    return [x[2] for x in q]

WSLOT = [("a", 108 + 20*x) for x in range(7)] + [("a", 20*x) for x in range(5)] + [("v", 100 + 20*x) for x in range(3)]
NREG = 15
def wreg(tk): return WSLOT[tk]
def kaddr(dst, base, tk, stride):
    return lines(f"s_cmp_gt_u32 s{sLim}, {tk} | s_cselect_b32 s{dst}, s{base}, s{base+1}\ns_add_u32 s{dst}, s{dst}, {tk*stride}")
def wload(tk):
    kind, base = wreg(tk)
    out = []
    for i in range(5):
        op = []
        if i == 0: op += kaddr(sT2, sWa, tk, 5120) if cur[0] == "mlp" else lines(f"s_add_u32 s{sT2}, s{sLim+1}, {tk*5120}")
        if i == 4: op += lines(f"s_add_u32 s{sT2}, s{sT2}, 4096")
        op.append(VM(f"buffer_load_dwordx4 {R(kind, base+4*i, 4)}, v{vL16}, s[{rWS}:{rWS+3}], s{sT2} offen offset:{(i & 3)*1024} sc1", ("w", tk)))
        out.append(op)
    return out
RFV = 24
sWLb, sTx = 34, 35
MV = OPT["mv"]
NK = {"mlp": 12 - MV, "ssm": 10 + MV}
def p2_addr(typ):
    n_ = NK[typ]; k0 = 0 if typ == "mlp" else 12
    if typ == "mlp":
        k.e(f"""
        v_min_u32 v{vT+2}, {4*n_ - 1}, v{vL}
        s_mul_i32 s{sT0}, s{sW}, 24
        s_lshr_b32 s{sT1}, s{sDT}, 2
        s_add_u32 s{sT0}, s{sT0}, s{sT1}
        s_lshl_b32 s{sT0}, s{sT0}, 7
        s_add_u32 s{sT0}, s{sT0}, {WS_RF + 16384}
        v_lshrrev_b32 v{vT}, 2, v{vT+2}
        v_and_b32 v{vT+1}, 3, v{vT+2}
        """)
        k.e(f"v_lshlrev_b32 v{vT}, 8, v{vT}\nv_lshl_add_u32 v{vT}, v{vT+1}, 4, v{vT}\nv_add_u32 v{RFV}, s{sT0}, v{vT}")
    k.e(f"""
    s_and_b32 s{sT2}, s{sDT}, 3
    s_add_u32 s{sT2}, s{sT2}, s{sML}
    s_and_b32 s{sT2}, s{sT2}, 3
    s_mul_i32 s{sT2}, s{sT2}, {n_ * OPT['rot2'] if typ == 'mlp' else 0}
    s_lshr_b32 s{sT2}, s{sT2}, 2
    s_sub_u32 s{sLim}, {n_ if typ == 'mlp' else 10}, s{sT2}
    s_mul_i32 s{sT0}, s{sW}, 22
    s_add_u32 s{sT0}, s{sT0}, s{sT2}
    s_add_u32 s{sT0}, s{sT0}, {k0}
    s_mul_i32 s{sT1}, s{sDT}, 88
    s_add_u32 s{sT1}, s{sT1}, s{sT0}
    s_mul_i32 s{sT1}, s{sT1}, 5120
    {f"s_add_u32 s{sWa}, s{sT1}, {WS_WP}" if typ == "mlp" else f"s_add_u32 s{sLim+1}, s{sT1}, {WS_WP - n_*5120}"}
    {f"s_sub_u32 s{sWa+1}, s{sWa}, {n_*5120}" if typ == "mlp" else ""}
    s_lshl_b32 s{sT1}, s{sMT}, 1
    s_add_u32 s{sT1}, s{sT1}, s{sHALF}
    s_mul_i32 s{sT2}, s{sT1}, 88
    s_add_u32 s{sT2}, s{sT2}, s{sT0}
    s_lshl_b32 s{sT2}, s{sT2}, 12
    s_add_u32 s{sHa+2}, s{sT2}, {WS_H}
    s_sub_u32 s{sHa+3}, s{sHa+2}, {n_*4096}
    s_{'add' if typ == 'mlp' else 'sub'}_u32 s{sHa}, s{sHa+2}, {88*4096}
    s_sub_u32 s{sHa+1}, s{sHa}, {n_*4096}
    s_mul_i32 s{sWLb}, s{sW}, {WLW}
    s_add_u32 s{sWLb}, s{sWLb}, {L_WL}
    """)
def rflag_fetch(vd):
    k.vmem(f"buffer_load_dwordx2 {V(vd,2)}, v{RFV}, s[{rWS}:{rWS+3}], 0 offen sc1", "rfv")
def check(tag, vaddr, vd, width=2, second=1):
    k.e(f"""
    L_chk_{tag}:
    v_cmp_ne_u32 vcc, s{sNonce}, v{vd + (1 if width == 4 else 0)}
    v_cmp_ne_u32 s[{sT0}:{sT1}], s{sNonce}, v{vd + (3 if width == 4 else 1)}
    s_or_b64 vcc, vcc, s[{sT0}:{sT1}]
    s_cmp_eq_u64 vcc, 0
    s_cbranch_scc1 L_chkok_{tag}
    s_sub_u32 s{sSpin}, s{sSpin}, 1
    s_cbranch_scc1 L_end
    buffer_load_dwordx{width} {V(vd,width)}, v{vaddr}, s[{rWS}:{rWS+3}], 0 offen sc1
    s_waitcnt vmcnt(0)
    s_branch L_chk_{tag}
    L_chkok_{tag}:
    """)
vCD = 20
sCU = [18, 19, 20, 21, 35]
sCs, sCt = 42, 43
def c_setup():
    t = vT
    srd(rT2, pCim, 640 * 1280)
    if OPT['rpown'] == 'ssm': k.e(f"s_mov_b64 s[{sEx}:{sEx+1}], s[{pCre}:{pCre+1}]")
    else: srd(rT, pCre, 640 * 1280)
    for g in range(5):
        k.e(f"""
        v_add_u32 v{t}, {64*g}, v{vL}
        v_mul_u32_u24 v{t+1}, 3277, v{t}
        v_lshrrev_b32 v{t+1}, 16, v{t+1}
        v_mul_u32_u24 v{t+2}, 20, v{t+1}
        v_sub_u32 v{t+2}, v{t}, v{t+2}
        v_mul_u32_u24 v{t+1}, 1280, v{t+1}
        v_lshl_add_u32 v{vCD+g}, v{t+2}, 4, v{t+1}
        """)
    k.e(f"""
    s_mul_i32 s{sCs}, s{sDT}, {80*1280}
    s_mul_i32 s{sT0}, s{sW}, 320
    s_add_u32 s{sCs}, s{sCs}, s{sT0}
    s_mul_i32 s{sT1}, s{sW}, 5120
    s_add_u32 s{sCU[0]}, s{sT1}, 20480
    s_add_u32 s{sCU[1]}, s{sT1}, 110592
    s_add_u32 s{sCU[2]}, s{sT1}, 57344
    s_add_u32 s{sCU[3]}, s{sT1}, 131072
    s_mov_b32 s{sT0}, 77824
    s_cmp_eq_u32 s{sWR}, 0
    s_cselect_b32 s{sT0}, s{sT0}, 141312
    s_add_u32 s{sCU[4]}, s{sT1}, s{sT0}
    """)
def c_dma(i, rs, tag):
    out = []
    for g in range(5):
        op = lines(f"s_add_u32 s{sCt}, s{sCs}, {i*16*1280}") if g == 0 else []
        out.append(op + lines(f"s_add_u32 m0, s{sCU[i]}, {g*1024}") + [VM(f"buffer_load_dwordx4 v{vCD+g}, s[{rs}:{rs+3}], s{sCt} offen lds", tag, sep=True, ta=80)])
    return out
def c_read(im, B):
    k.e(f"""
    v_mul_u32_u24 v{B[5]}, 320, v{vN}
    v_lshl_add_u32 v{B[2]}, v{vQ}, 4, v{B[5]}
    v_lshrrev_b32 v{B[4]}, 1, v{vQ}
    v_mul_u32_u24 v{B[4]}, 80, v{B[4]}
    v_add_u32 v{B[5]}, v{B[5]}, v{B[4]}
    v_add_u32 v{B[0]}, s{sCU[0]}, v{B[2]}
    v_add_u32 v{B[1]}, s{sCU[1]}, v{B[2]}
    v_add_u32 v{B[2]}, s{sCU[4]}, v{B[2]}
    v_add_u32 v{B[3]}, s{sCU[0]}, v{B[5]}
    v_add_u32 v{B[4]}, s{sCU[1]}, v{B[5]}
    v_add_u32 v{B[5]}, s{sCU[4]}, v{B[5]}
    """)
    where = [(0, 0), (1, 0), (0, 57344 - 20480), (1, 131072 - 110592), (2, 0)]
    for a_ in range(2):
        for wr_ in range(2):
            kind, base = wreg(5*a_ + 2*wr_ + im)
            for i, (b_, o_) in enumerate(where):
                k.ds(f"ds_read_b128 {R(kind, base+4*i, 4)}, v{B[b_]} offset:{o_ + 160*a_ + 80*wr_}", "cr")
    m_ = "0xffff0000" if im else "0x0000ffff"
    k.e(f"s_mov_b32 exec_lo, {m_}\ns_mov_b32 exec_hi, {m_}")
    for a_ in range(2):
        kind, base = wreg(5*a_ + 4)
        for i, (b_, o_) in enumerate(where):
            k.ds(f"ds_read_b128 {R(kind, base+4*i, 4)}, v{B[3+b_]} offset:{o_ + 160*a_ + 64}", "cr")
    k.e("s_mov_b64 exec, -1")

def common_jobs(typ):
    j = {}
    def add(key, items): j[key] = j.get(key, []) + items
    j[0] = nonce_load()
    rj = rowstat_job(typ)
    if OPT["rsp"]:
        j["rsmath"] = rj[:-10]; j[2] = rj[-10:]; vq = []
    else:
        xb = OPT.get("xrb", 0)
        j[xb + 3] = rj; vq = [(xb, xb + 1.5, op) for op in xr_loads()]
        j[0] = []; j[xb + 1] = nonce_load()
    if OPT['pf']:
        for bi in OPT['pfb']: add(('pre', bi), [pf(0)])
    if typ == OPT["rpown"]:
        r0, rpst, rpfl = OPT["rp_" + typ]
        assert r0 % 2 == 1
        add(("wait", (r0 - 1) // 2), ["rp4"])
        add(("pre", r0), repack_read(typ))
        for f, bi in zip(repack_store(typ), rpst): add(("pre", bi), [f])
        vq += [OPT["rpd_" + typ] + (op,) for op in repack_dma()]
        a_, b_ = repack_flag()
        d_ = {}
        add(min(rpfl, 15) - 5, a_ + [note(d_, 1)])
        if rpfl < 20: add(("pre", rpfl), [F(lambda: d_[1], 0), b_])
        else: j["rpflag"] = b_
        if typ == "ssm":
            assert OPT.get("c0", 12) > r0 + 2
            add(("pre", r0), lines(f"s_mov_b32 s{rT}, s{sEx}\ns_mov_b32 s{rT+1}, s{sEx+1}\ns_mov_b32 s{rT+2}, {640*1280}"))
    if typ == "ssm":
        vq += [(e_, 99, op) for i, e_ in zip((0, 1, 2, 3, 4), (OPT.get("c0", 12), 15, 17, 17, 17)) for op in c_dma(i, rT, "cre")]
    else:
        if OPT["tmlp"] >= 0: add(OPT["tmlp"], touch_c())
        bi = OPT["rf_mlp"]
        RD_ = vT + 4
        if bi <= 20: add(("pre", bi - 1), [F(lambda: rflag_fetch(RD_), 2, ta=50)])
        def chk():
            k.wait_vm("rfv"); check("rf_" + typ, RFV, RD_)
        j["rfchk"] = chk
        if bi < 20:
            add(("pre", bi), [F(chk, 6)])
            vq += [(bi, 99, op) for tk in range(7) for op in wload(tk)]
    stats_jobs(typ, j)
    if 6 in OPT.get("x", ()) and typ == "mlp":
        for bi in range(20): j[("pre", bi)] = [f for f in j.get(("pre", bi), []) if f.ta != 240]
        k.seen.add(("rps", 4))
    keep = OPT.get("keep")
    if keep is not None:
        assert OPT["stop"] == "loop"
        j2 = {"last": j["last"], "tail": j["tail"], "tk": j["tk"]}
        v2 = []
        if "rs" in keep:
            j2[0] = j[0]; j2[3] = j[3]; v2 += [v for v in vq if v[1] == 1.5]
        if "rp" in keep and typ == "mlp":
            for key in j:
                if isinstance(key, tuple) and key[0] == "pre" and key[1] < 12: j2[key] = j[key]
            j2[("wait", 1)] = j[("wait", 1)]
            v2 += [v for v in vq if v[1] == OPT["rpd_mlp"][1]]
        if "c" in keep and typ == "ssm": v2 += [v for v in vq if v[1] == 99]
        if "d1" in keep: j2[2] = lines("\n".join(f"v_mul_f32 v{60 + x % 8}, v70, v71" for x in range(100)))
        if "d2" in keep: j2[2] = lines("\n".join(f"v_mul_f32 v60, v60, v71" for x in range(100)))
        if "d3" in keep: j2[2] = lines("\n".join(f"v_mul_f32 v60, v60, v71\nv_exp_f32 v60, v60\ns_nop 0" for x in range(40)))
        if "d4" in keep: j2[2] = sum((lines(f"v_mul_f32 v{60 + x % 8}, v70, v71\nv_mul_f32 v62, v70, v71\nv_mul_f32 v63, v70, v71") + [DSF(f"ds_write_b64 v{SA+3}, v[60:61] offset:{L_PW}")] for x in range(20)), [])
        if "d5" in keep: j2[2] = lines("\n".join(f"s_add_u32 s{sT0}, s{sT0}, 77777" for x in range(100)))
        k.seen.update(["cre", "ep", "xr", "nc"] + [("w", x) for x in range(12)])
        return j2, v2
    if 9 in OPT.get("x", ()):
        j[3] = j[3][-16:]
        vq = [v for v in vq if v[1] != 1.5]
    if 8 in OPT.get("x", ()) and typ == "ssm":
        vq = [v for v in vq if v[1] != 99]; k.seen.add("cre")
    return j, vq

TK = vT + 8
SA = 76
def stats_jobs(typ, j):
    nr = 6 if typ == "mlp" else 5
    L_SC, SCW = L_SCS[typ]
    k.e(f"""
    s_mul_i32 s{sT0}, s{sW}, {SCW}
    s_add_u32 s{sT0}, s{sT0}, {L_SC}
    v_lshlrev_b32 v{SA+1}, 4, v{vQ}
    v_add_u32 v{SA}, s{sT0}, v{SA+1}
    v_min_u32 v{SA+2}, 1, v{vN}
    v_mul_u32_u24 v{SA+2}, 0x30000, v{SA+2}
    v_add_u32 v{SA}, v{SA}, v{SA+2}
    s_mul_i32 s{sT0}, s{sWR}, {2*SCW}
    s_add_u32 s{sT0}, s{sT0}, {L_SC}
    v_add_u32 v{SA+1}, s{sT0}, v{SA+1}
    s_lshl_b32 s{sT0}, s{sWC}, 10
    v_lshlrev_b32 v{SA+2}, 6, v{vN}
    v_add_u32 v{SA+2}, s{sT0}, v{SA+2}
    v_lshlrev_b32 v{SA+3}, 3, v0
    """)
    j[OPT.get('rsb', 13)] = j.get(OPT.get('rsb', 13), []) + rowstat_fetch()
    def chk():
        k.wait_vm("rsv")
        check("rs_" + typ, RSV + 4, RSV, 4)
        k.ds(f"ds_write2_b32 v{SA+3}, v{RSV}, v{RSV+2} offset0:{L_TOK//4} offset1:{L_TOK//4+1}")
    rc = OPT["rsc"]
    j[("pre", rc)] = j.get(("pre", rc), []) + [F(chk, 8)]
    j["tk"] = [DSF(f"ds_read_b128 {V(TK+4*x,4)}, v{SA+2} offset:{L_TOK + x*16}") for x in range(4)]
    j["tail"] = list(j["tk"]) if rc < 17 else []
    j["last"] = [DSF(f"ds_write_b128 v{SA}, {A(aCS+4*i,4)} offset:{i*64}") for i in range(nr)]
def stats(typ, jobs):
    nr = 6 if typ == "mlp" else 5
    CS = vT + 24; P2 = 100
    SCW = L_SCS[typ][1]
    k.wait_lg(); k.e("s_barrier")
    if OPT["rsc"] >= 17: run(jobs["tk"])
    for i in range(nr):
        k.ds(f"ds_read_b128 {V(P2+4*i,4)}, v{SA+1} offset:{SCW+i*64}", ("cs", i))
    for i in (0, 1, 2, 4, 5, 3)[:nr + 1]:
        if i < nr: k.ds(f"ds_read_b128 {V(CS+4*i,4)}, v{SA+1} offset:{i*64}", ("cs", i))
    return TK, CS, P2
def stats_sum(typ, CS, P2):
    k.wait_lg()
    for i in range(6 if typ == "mlp" else 5):
        for h in range(2):
            k.e(f"v_pk_add_f32 {V(CS+4*i+2*h,2)}, {V(CS+4*i+2*h,2)}, {V(P2+4*i+2*h,2)}")

class Feeder:
    def __init__(self, jobs, every): self.jobs, self.every, self.n = list(jobs), every, 0
    def tick(self, n=1):
        self.n += n
        while self.n >= self.every and self.jobs:
            self.n -= self.every; run([self.jobs.pop(0)])
    def flush(self):
        while self.jobs: run([self.jobs.pop(0)])

HB = 88 * 4096
def h_base():
    k.e(f"""
    s_mul_i32 s{sH}, s{sMT}, {2*HB}
    s_lshl_b32 s{sT0}, s{sWC}, 11
    s_add_u32 s{sH}, s{sH}, s{sT0}
    s_add_u32 s{sH}, s{sH}, {WS_H}
    s_lshr_b32 s{sT0}, s{sNT}, 1
    s_mul_i32 s{sT0}, s{sT0}, 22
    s_and_b32 s{sT1}, s{sNT}, 1
    """)
HRING = [[("v", 40 + 4*s) for s in range(4)], [("v", 56 + 4*s) for s in range(4)], [("v", 72 + 4*s) for s in range(4)],
         [("a", 100), ("a", 104), ("a", 248), ("a", 252)]]
NR = len(HRING)
SPARE = [168, 172] + [acc(i, j) for i in range(1, 6) for j in (2, 3)]
NE = {"mlp": OPT["ne"], "ssm": 0}
vM26, vRw, vF, vFd, vHs, vNP, XO, LO = 24, 27, 28, 30, 32, 36, 38, 39
RES = 4
sPA, sPB_, sFA, sNP = 36, 64, 32, 84
def flag_late(own):
    k.e(f"""
    s_mov_b32 s{sLW}, s{own}
    s_xor_b32 s{sLX}, s{own}, 32
    s_mov_b32 s{sNP}, s{sNonce}
    s_mov_b32 s{sNP+1}, s{sNonce}
    v_mov_b32 v{vNP}, s{sNonce}
    v_mov_b32 v{vNP+1}, s{sNonce}
    v_lshlrev_b32 v{vM26}, 26, v{vL}
    """)
def flag_addr(own=sLW):
    k.e(f"""
    s_lshl_b32 s{sT0}, s{sMT}, 4
    s_lshl_b32 s{sT1}, s{sTYP}, 3
    s_add_u32 s{sT0}, s{sT0}, s{sT1}
    s_lshl_b32 s{sT1}, s{sW}, 1
    s_add_u32 s{sT1}, s{sT0}, s{sT1}
    s_lshl_b32 s{sT1}, s{sT1}, 7
    s_lshl_b32 s{sT3}, s{sTYP}, 5
    s_add_u32 s{sT3}, s{sT3}, {WS_HF}
    s_add_u32 s{sFA}, s{sT1}, s{sT3}
    s_xor_b32 s{sFA+1}, s{sFA}, 32
    s_add_u32 s{sT0}, s{sT0}, s{sNT}
    s_lshl_b32 s{sT0}, s{sT0}, 7
    s_lshl_b32 s{sT1}, s{sW}, 3
    s_add_u32 s{sT0}, s{sT0}, s{sT1}
    s_add_u32 s{own}, s{sT0}, s{sT3}
    """)
    if own == sLW: flag_late(own)
    for s in range(4):
        k.e(f"s_xor_b32 s{sT0}, s{sW}, {s}\ns_lshl_b32 s{sT0}, s{sT0}, 10\nv_add_u32 v{vHs+s}, s{sT0}, v{vL16}")
def spoll(h):
    return f"""s_add_u32 s{sT0}, s{sFA+h}, 128
    s_load_dwordx8 s[{sPA}:{sPA+7}], s[{pWs}:{pWs+1}], s{sFA+h} glc
    s_load_dwordx8 s[{sPB_}:{sPB_+7}], s[{pWs}:{pWs+1}], s{sT0} glc"""
def scheck(tag, h):
    k.e(f"s_branch L_sc1_{tag}\nL_sc0_{tag}:\ns_sub_u32 s{sSpin}, s{sSpin}, 1\ns_cbranch_scc1 L_end")
    k.e(spoll(h))
    if OPT.get("cnt") and tag == "hmmlp": k.e("s_add_u32 s101, s101, 1")
    k.e(f"L_sc1_{tag}:\ns_waitcnt lgkmcnt(0)"); k.lg = []
    for b_ in (sPA, sPB_):
        for x in range(4): k.e(f"s_cmp_eq_u64 s[{b_+2*x}:{b_+2*x+1}], s[{sNP}:{sNP+1}]\ns_cbranch_scc0 L_sc0_{tag}")
def put_flag(tag, so, track=True):
    k.wait_vm(tag)
    (k.vmem if track else lambda tx, tg: k.e(tx))(f"buffer_store_dwordx2 {V(vNP,2)}, v{vM26}, s[{rWS}:{rWS+3}], s{so} offen sc1", "fl")
def x_loads(X, t, sX=sX, issue=True):
    k.e(f"""
    s_lshl_b32 s{sT0}, s{sWR}, 6
    s_add_u32 s{sT0}, s{sT0}, s{sWC}
    s_lshl_b32 s{sT1}, s{sHALF}, 1
    s_add_u32 s{sT0}, s{sT0}, s{sT1}
    s_lshl_b32 s{sT1}, s{sMT}, 7
    s_add_u32 s{sT1}, s{sT1}, s{sT0}
    s_mul_i32 s{sX}, s{sT1}, 1280
    s_mul_i32 s{sT1}, s{sDT}, 160
    s_add_u32 s{sX}, s{sX}, s{sT1}
    s_lshl_b32 s{sT0}, s{sT0}, 4
    v_lshrrev_b32 v{t}, 2, v{vL}
    v_and_b32 v{LO}, 3, v{vL}
    v_lshlrev_b32 v{t+1}, 3, v{LO}
    v_mul_u32_u24 v{XO}, 5120, v{t}
    v_add_u32 v{XO}, v{XO}, v{t+1}
    v_bfe_u32 v{vFd}, v{t}, 1, 2
    v_xor_b32 v{LO}, v{LO}, v{vFd}
    v_lshlrev_b32 v{LO}, 4, v{LO}
    v_mad_u32_u24 v{LO}, v{t}, s{sT1}, v{LO}
    v_lshlrev_b32 v{t}, 6, v{t}
    v_add_u32 v{t}, s{sT0}, v{t}
    """.replace("    v_mad", f"    s_movk_i32 s{sT1}, {RROW}\n    v_mad"))
    ops = [VM(f"buffer_load_dwordx2 {V(X[g],2)}, v{XO}, s[{rX}:{rX+3}], s{sX} offen offset:{32*g}", "ep", ta=40) for g in range(5)]
    if issue: run(ops)
    return ops
def residual(X, t, U, fd=None):
    ED, EB, TKv = U, U + 10, U + 20
    k.ds(f"ds_read_b64 {V(TKv,2)}, v{t} offset:{L_TOK}", "tk")
    for reg, o_ in ((ED, 0), (EB, 160)):
        for g in range(5): k.ds(f"ds_read_b64 {V(reg+2*g,2)}, v{t+1} offset:{L_DB + o_ + 32*g}", "tk")
    k.wait_vm("ep"); k.wait_lg()
    if OPT["sp"] == 12.5 and cur[0] == "mlp": k.e(spoll(0))
    for g in range(5):
        if fd: fd.tick(1)
        if cur[0] == "ssm" and g == OPT.get("spg", 9): k.e(spoll(0))
        xf, df, bf_ = U + 22, U + 26, U + 30
        for src, dst in ((X[g], xf), (ED + 2*g, df), (EB + 2*g, bf_)):
            for h in range(2):
                k.e(f"v_lshlrev_b32 v{dst+2*h}, 16, v{src+h}\nv_and_b32 v{dst+2*h+1}, 0xffff0000, v{src+h}")
        A_ = [RES + 4*g, RES + 4*g + 2]
        def rnd():
            for a in A_: k.e(f"v_cvt_pk_bf16_f32 v{a+1}, v{a}, v{a+1}")
            for a in A_: k.e(f"v_lshlrev_b32 v{a}, 16, v{a+1}\nv_and_b32 v{a+1}, 0xffff0000, v{a+1}")
        for h, a in enumerate(A_): k.e(f"v_pk_add_f32 {V(a,2)}, {V(xf+2*h,2)}, {V(TKv,2)} op_sel:[0,0] op_sel_hi:[1,0] neg_lo:[0,1] neg_hi:[0,1]")
        rnd()
        for h, a in enumerate(A_): k.e(f"v_pk_mul_f32 {V(a,2)}, {V(a,2)}, {V(TKv,2)} op_sel:[0,1] op_sel_hi:[1,1]")
        rnd()
        for h, a in enumerate(A_): k.e(f"v_pk_mul_f32 {V(a,2)}, {V(a,2)}, {V(df+2*h,2)}")
        rnd()
        for h, a in enumerate(A_): k.e(f"v_pk_add_f32 {V(a,2)}, {V(a,2)}, {V(xf+2*h,2)}")
        for h, a in enumerate(A_): k.e(f"v_pk_add_f32 {V(a,2)}, {V(a,2)}, {V(bf_+2*h,2)}")
def residual_fill(t):
    ED = [176, 178, 180, 182, 192]; EB = [194, 196, 198, 208, 210]; TKv = 212
    U = [224, 240]
    out = [DSF(f"ds_read_b64 {V(TKv,2)}, v{t} offset:{L_TOK}", "tk")]
    for reg, o_ in ((ED, 0), (EB, 160)):
        out += [DSF(f"ds_read_b64 {V(reg[g],2)}, v{t+1} offset:{L_DB + o_ + 32*g}", "tk") for g in range(5)]
    run(out)
    out = [F(lambda: k.wait_lg("tk"), 1)]
    def chain(p_):
        x0, x1, t0, t1, d0, d1 = [U[p_ & 1] + x for x in range(6)]
        r0, r1 = RES + 2*p_, RES + 2*p_ + 1
        xi, di, bi = RES + 10 + p_, ED[p_ // 2] + (p_ & 1), EB[p_ // 2] + (p_ & 1)
        rnd = f"v_cvt_pk_bf16_f32 v{t1}, v{t0}, v{t1}\nv_lshlrev_b32 v{t0}, 16, v{t1}\nv_and_b32 v{t1}, 0xffff0000, v{t1}\n"
        return [l.strip() for l in f"""
        v_lshlrev_b32 v{x0}, 16, v{xi}
        v_and_b32 v{x1}, 0xffff0000, v{xi}
        v_sub_f32 v{t0}, v{x0}, v{TKv}
        v_sub_f32 v{t1}, v{x1}, v{TKv}
        {rnd}
        v_mul_f32 v{t0}, v{t0}, v{TKv+1}
        v_mul_f32 v{t1}, v{t1}, v{TKv+1}
        {rnd}
        v_lshlrev_b32 v{d0}, 16, v{di}
        v_and_b32 v{d1}, 0xffff0000, v{di}
        v_mul_f32 v{t0}, v{t0}, v{d0}
        v_mul_f32 v{t1}, v{t1}, v{d1}
        {rnd}
        v_lshlrev_b32 v{d0}, 16, v{bi}
        v_and_b32 v{d1}, 0xffff0000, v{bi}
        v_add_f32 v{t0}, v{x0}, v{t0}
        v_add_f32 v{t1}, v{x1}, v{t1}
        v_add_f32 v{r0}, v{t0}, v{d0}
        v_add_f32 v{r1}, v{t1}, v{d1}
        """.split("\n") if l.strip()]
    txt = []
    for p_ in range(0, 10, 2):
        for a_, b_ in zip(chain(p_), chain(p_ + 1)): txt += [a_, b_]
    return out + lines("\n".join(txt))
def hdest(typ, t):
    e_ = NE[typ]
    return [("v", SPARE[4*t + s]) for s in range(4)] if t < e_ else HRING[(t - e_) % NR]
def hload(typ, t):
    ring = hdest(typ, t); n_ = NK[typ]
    return kaddr(sT3, sHa + 2*(t // n_), t % n_, 4096), [[VM(f"buffer_load_dwordx4 {R(ring[s][0], ring[s][1], 4)}, v{vHs+s}, s[{rWS}:{rWS+3}], s{sT3} offen sc1", ("h", t))] for s in range(4)]
def h_issue(typ, ts):
    out = []
    for t in ts:
        a_, b_ = hload(typ, t); out.append(a_ + b_[0]); out += b_[1:]
    return out

def ones():
    k.e(f"v_mov_b32 v{vT+6}, 0x3f803f80")
    for i in range(4): k.e(f"v_accvgpr_write_b32 a{aONE+i}, v{vT+6}")

t = vT
WOFF["mlp"] = f"""
    v_and_b32 v{t+2}, 2, v{t}
    v_xor_b32 v{t+2}, v{t+1}, v{t+2}
    v_mul_u32_u24 v{t+3}, 3072, v{t}
    v_lshl_add_u32 v{vDW}, v{t+2}, 4, v{t+3}
    v_xor_b32 v{vDW+1}, 64, v{vDW}
    s_mul_i32 s{sB0}, s{sW}, {16*3072}
    s_mul_i32 s{sT0}, s{sNT}, 384
    s_add_u32 s{sB0}, s{sB0}, s{sT0}
    s_add_u32 s{sB2}, s{sB0}, {8*3072}
    s_lshl_b32 s{sLW}, s{sW}, 11
    """
def path_mlp():
    typ = "mlp"; t = vT
    late_common(typ)
    k.e(f"""
    v_lshrrev_b32 v{t}, 2, v{vN}
    v_lshl_add_u32 v{t+1}, v{vQ}, 3, v{t}
    v_lshlrev_b32 v{t+1}, 7, v{t+1}
    v_and_b32 v{t+2}, 3, v{vN}
    v_lshl_add_u32 v{t+1}, v{t+2}, 3, v{t+1}
    v_lshrrev_b32 v{t}, 1, v{t}
    v_and_b32 v{t+2}, 1, v{vQ}
    v_lshl_add_u32 v{t}, v{t+2}, 1, v{t}
    s_lshl_b32 s{sT0}, s{sKs}, 12
    s_add_u32 s{sT0}, s{sT0}, {L_W}
    v_add_u32 v{t+1}, s{sT0}, v{t+1}
    s_mul_i32 s{sT2}, s{sWR}, 6
    """)
    for i in range(4):
        k.e(f"""
        s_add_u32 s{sT3}, s{sT2}, {i}
        s_lshr_b32 s{sT0}, s{sT3}, 2
        s_lshl_b32 s{sT0}, s{sT0}, 13
        s_and_b32 s{sT3}, s{sT3}, 3
        v_xor_b32 v{t+2}, s{sT3}, v{t}
        v_lshl_add_u32 v{t+2}, v{t+2}, 5, v{t+1}
        v_add_u32 v{vWA+i}, s{sT0}, v{t+2}
        v_xor_b32 v{vWA+4+i}, 4096, v{vWA+i}
        """)
    Kc = 2 * 0.7978845608028654 * 1.4426950408889634
    k.e(f"s_mov_b32 s{sK}, {hx(-Kc*0.044715)}\ns_mov_b32 s{sK+1}, {hx(-Kc)}")
    ones()
    if not OPT['rsp']: xr_setup()
    if OPT['rpown'] == typ: repack_setup(typ)
    small_loads(typ)
    touch_setup()
    p2_addr(typ)
    stamp(14)
    jobs, vq = common_jobs(typ)
    k.e(f"s_mul_i32 s{sT0}, s{sWR}, 192\nv_lshlrev_b32 v{t+3}, 3, v{vQ}\nv_add_u32 v{t+3}, s{sT0}, v{t+3}")
    jobs["tail"] += [DSF(f"ds_read_b64 {V(vB1m+2*i,2)}, v{t+3} offset:{L_B1 + 32*i}") for i in range(6)]
    XT = 96; sXm, sOwn = 30, 31
    if OPT["hoist"]:
        flag_addr(sOwn)
        jobs[19] = x_loads([RES + 10 + 2*g for g in range(5)], XT, sXm, False)
    left = main_loop(typ, jobs, vq, [])
    TK, CS, P2 = stats(typ, jobs)
    stamp()
    if OPT["rf_mlp"] >= 20:
        if OPT["rf_mlp"] == 20: jobs["rfchk"]()
        left = [op for tk in range(7) for op in wload(tk)]
    pend = [(6 - (len(left) - 1 - x) // 5, op) for x, op in enumerate(left)] + [(tk, op) for tk in range(7, NK[typ]) for op in wload(tk)]
    if 5 in OPT.get("x", ()):
        pend = []; k.seen.update(("w", x) for x in range(12))
    ne = OPT.get("ne_mlp", 0)
    fd = Feeder([op for _, op in pend[:ne]], 29 * 12 // max(1, ne))
    pend = pend[ne:]
    h_base()
    k.e(f"""
    s_mul_i32 s{sT1}, s{sT1}, 6
    s_add_u32 s{sT0}, s{sT0}, s{sT1}
    s_mul_i32 s{sT1}, s{sWR}, 3
    s_add_u32 s{sT0}, s{sT0}, s{sT1}
    s_lshl_b32 s{sT0}, s{sT0}, 12
    s_add_u32 s{sH}, s{sH}, s{sT0}
    """)
    stats_sum(typ, CS, P2)
    B = 100
    for i in range(6):
        for h in range(2):
            k.e(f"v_lshlrev_b32 v{B+4*i+2*h}, 16, v{vB1m+2*i+h}\nv_and_b32 v{B+4*i+2*h+1}, 0xffff0000, v{vB1m+2*i+h}")
    TM = 124
    OUT = [88, 92]
    XT = 96
    if OPT["rf_mlp"] > 20: k.e(f"v_mov_b32 v{vT+6}, v{RFV}")
    if OPT["hoist"]:
        flag_late(sOwn); k.e(f"s_mov_b32 s{sX}, s{sXm}")
    else:
        flag_addr()
        x_loads([RES + 10 + 2*g for g in range(5)], XT)
    k.e(f"s_add_u32 s{sB0}, s{sH}, {HB}")
    n_ = 0
    for hf, u, j in [(hf, u, 2*hf + jj) for hf in (1, 0) for u in range(3) for jj in range(2)]:
        if True:
            o = OUT[n_ & 1]; n_ += 1
            if n_ == 2 and "rpflag" in jobs: jobs["rpflag"]()
            if n_ == OPT["rfg"] and OPT["rf_mlp"] > 20: k.vmem(f"buffer_load_dwordx2 {V(vT+4,2)}, v{vT+6}, s[{rWS}:{rWS+3}], 0 offen sc1", "rfv")
            if n_ == OPT["fa"]: put_flag(("hs", 1), sLW)
            if n_ == OPT.get('sp', 12): k.e(spoll(0))
            k.raw(".p2align 3")
            prs = [(2*u + ii, h) for ii in range(2) for h in range(2)]
            Z = [acc(i, j) + 2*h for i, h in prs]
            T1 = [TM + 2*x for x in range(4)]; T2 = [TM + 8 + 2*x for x in range(4)]
            for x, (i, h) in enumerate(prs):
                k.e(f"v_pk_fma_f32 {V(T1[x],2)}, {V(CS+4*i+2*h,2)}, {V(TK+4*j+2,2)}, {V(B+4*i+2*h,2)} op_sel:[0,1,0] op_sel_hi:[1,1,1] neg_lo:[0,1,0] neg_hi:[0,1,0]")
            for x in range(4):
                k.e(f"v_pk_fma_f32 {V(Z[x],2)}, {V(Z[x],2)}, {V(TK+4*j+2,2)}, {V(T1[x],2)} op_sel:[0,0,0] op_sel_hi:[1,0,1]")
            fd.tick(12)
            for x in range(4): k.e(f"v_pk_mul_f32 {V(T1[x],2)}, {V(Z[x],2)}, {V(Z[x],2)}")
            for x in range(4): k.e(f"v_pk_fma_f32 {V(T1[x],2)}, {V(T1[x],2)}, s[{sK}:{sK+1}], s[{sK}:{sK+1}] op_sel:[0,0,1] op_sel_hi:[1,0,1]")
            for x in range(4): k.e(f"v_pk_mul_f32 {V(T1[x],2)}, {V(T1[x],2)}, {V(Z[x],2)}")
            for x in range(4): k.e(f"v_exp_f32 v{T2[x]}, v{T1[x]}\nv_exp_f32 v{T2[x]+1}, v{T1[x]+1}")
            fd.tick(12)
            for x in range(4): k.e(f"v_pk_add_f32 {V(T2[x],2)}, {V(T2[x],2)}, 1.0 op_sel_hi:[1,0]")
            for x in range(4): k.e(f"v_rcp_f32 v{T2[x]}, v{T2[x]}\nv_rcp_f32 v{T2[x]+1}, v{T2[x]+1}")
            if n_ < 12: fd.tick(12)
            for x in range(4): k.e(f"v_pk_mul_f32 {V(Z[x],2)}, {V(Z[x],2)}, {V(T2[x],2)}")
            for x in range(4): k.e(f"v_cvt_pk_bf16_f32 v{o+x}, v{Z[x]}, v{Z[x]+1}")
            if n_ == 12: fd.flush()
            so = sB0 if hf else sH
            k.vmem(f"buffer_store_dwordx4 {V(o,4)}, v{vL16}, s[{rWS}:{rWS+3}], s{so} offen offset:{(j & 1)*1024} sc1", ("hs", hf))
            if j & 1 and u < 2: k.e(f"s_add_u32 s{so}, s{so}, 4096")
    stamp()
    if OPT["rf_mlp"] > 20:
        k.wait_vm("rfv"); check("rf_mlp", vT + 6, vT + 4)
    run([op for _, op in pend[:OPT["wfirst"]]]); pend = pend[OPT["wfirst"]:]
    if OPT["wres"] >= 0:
        ops = [op for _, op in pend[:OPT["wres"]]]; pend = pend[OPT["wres"]:]
        residual([RES + 10 + 2*g for g in range(5)], XT, 100, Feeder([flat(ops[(x * len(ops)) // 5:((x + 1) * len(ops)) // 5]) for x in range(5)], 1))
        if OPT["sp"] == 13: k.e(spoll(0))
    if OPT.get("cnt"): k.e("s_mov_b32 s101, 0")
    scheck("hm" + typ, 0)
    if OPT.get("cnt"): k.e(f"s_nop 0\nv_writelane_b32 v{vST}, s101, 59")
    stamp(7)
    assert OPT["hw"] == NR
    run(h_issue(typ, range(OPT["hw"])))
    res = residual_fill(XT) if OPT['wres'] < 0 else []
    run([op for _, op in pend[:OPT["post0"]]]); pend = pend[OPT["post0"]:]
    stamp(8)
    phase2(typ, pend, h_issue(typ, range(OPT["hw"], NR)), res, ("hs", 0), 0)

def cmul_acc(d, a, b, c):
    k.e(f"v_pk_fma_f32 {V(d,2)}, {V(a,2)}, {V(b,2)}, {V(c,2)} op_sel:[0,0,0] op_sel_hi:[1,0,1]")
    k.e(f"v_pk_fma_f32 {V(d,2)}, {V(a,2)}, {V(b,2)}, {V(d,2)} op_sel:[1,1,0] op_sel_hi:[0,1,1] neg_lo:[0,1,0]")

PR = 100
def masked(m, ins):
    def f():
        k.e(f"s_mov_b32 exec_lo, {m}\ns_mov_b32 exec_hi, {m}"); k.ds(ins); k.e("s_mov_b64 exec, -1")
    return F(f, 4, ds=True)
def power(KK, al, be, t, d):
    x, y, c_, s_ = t+10, t+11, t+12, t+13
    return lines(f"""
    v_mul_f32 v{y}, v{KK}, v{be}
    v_mul_f32 v{x}, v{KK}, v{al}
    v_fract_f32 v{y}, v{y}
    v_cos_f32 v{c_}, v{y}
    v_sin_f32 v{s_}, v{y}
    v_exp_f32 v{x}, v{x}
    s_nop 0
    v_mul_f32 v{d}, v{x}, v{c_}
    v_mul_f32 v{d+1}, v{x}, v{s_}
    """)
prew = []
class Late(list):
    def to(self, fl, f):
        if OPT['wpre']:
            fl.append(F(lambda: prew.append(f), 0))
        else: self.append(f)
late = Late()
def table_a():
    t = 80; CH_ = vB1 + 10
    lr, li, dt, al, be, KK, AD = PR, PR+1, PR+2, t+8, t+9, t, t+1
    x, y, c_, s_ = t+10, t+11, t+12, t+13
    LOG2E = 1.4426950408889634
    fl = lines(f"""
    v_lshlrev_b32 v{dt}, 16, v{dt}
    v_lshlrev_b32 v{lr}, 16, v{lr}
    v_mul_f32 v{dt}, {hx(LOG2E)}, v{dt}
    v_exp_f32 v{dt}, v{dt}
    v_lshlrev_b32 v{li}, 16, v{li}
    {bfr(dt, dt)}
    v_mul_f32 v{al}, v{dt}, v{lr}
    v_mul_f32 v{be}, v{dt}, v{li}
    v_mul_f32 v{al}, {hx(LOG2E)}, v{al}
    v_mul_f32 v{be}, 0.15915494, v{be}
    v_lshlrev_b32 v{KK}, 6, v{CH_+1}
    v_max_u32 v{KK}, 1, v{KK}
    v_cvt_f32_u32 v{KK}, v{KK}
    v_lshlrev_b32 v{AD}, 3, v{CH_}
    """)
    w_ = DSF(f"ds_write_b64 v{AD}, {V(al,2)} offset:{L_EX}"); w_.atpre = True
    fl.append(w_)
    fl.append(note(mk, 'ab'))
    LM, CF, AD2 = 156, 158, t+6
    fl += power(KK, al, be, t, LM)
    fl += lines(f"""
    v_lshlrev_b32 v{AD}, 3, v{CH_+1}
    v_min_u32 v{x}, 1, v{CH_+1}
    v_mad_u32_u24 v{AD}, v{x}, 40, v{AD}
    v_lshl_add_u32 v{AD}, v{CH_}, 6, v{AD}
    """)
    late.to(fl, DSF(f"ds_write_b64 v{AD}, {V(LM,2)} offset:{L_CH}"))
    fl += lines(f"""
    v_mul_f32 v{y}, v{lr}, v{lr}
    v_add_f32 v{x}, -1.0, v{LM}
    v_fma_f32 v{y}, v{li}, v{li}, v{y}
    v_rcp_f32 v{y}, v{y}
    v_mul_f32 v{c_}, v{x}, v{lr}
    v_fma_f32 v{c_}, v{LM+1}, v{li}, v{c_}
    v_mul_f32 v{s_}, v{LM+1}, v{lr}
    v_fma_f32 v{s_}, -v{x}, v{li}, v{s_}
    v_add_f32 v{y}, v{y}, v{y}
    v_mul_f32 v{CF}, v{c_}, v{y}
    v_mul_f32 v{CF+1}, v{s_}, v{y}
    """)
    fl += lines(f"v_min_u32 v{x}, 1, v{CH_+1}\nv_mul_u32_u24 v{x}, 0x30000, v{x}\nv_add_u32 v{AD2}, v{AD}, v{x}")
    late.to(fl, DSF(f"ds_write_b64 v{AD2}, {V(CF,2)} offset:{L_CH + 8}"))
    return fl
def table_rd():
    t = 80
    return [DSF(f"ds_read_b64 {V(PR+4+2*u,2)}, v{t+3} offset:{L_EX + u*128}") for u in range(5)]
def table_b():
    t = 80
    K1, APW, R1 = t+7, t+4, t+5
    k.e(f"""
    v_lshrrev_b32 v{t+2}, 4, v0
    v_lshlrev_b32 v{t+3}, 3, v{t+2}
    v_lshlrev_b32 v{K1}, 2, v{vN}
    v_cvt_f32_u32 v{K1}, v{K1}
    v_lshlrev_b32 v{APW}, 7, v{t+2}
    v_lshl_add_u32 v{APW}, v{vN}, 3, v{APW}
    v_ffbl_b32 v{R1}, v{vN}
    v_lshlrev_b32 v{R1}, 3, v{R1}
    v_lshl_add_u32 v{R1}, v{t+2}, 6, v{R1}
    v_bcnt_u32_b32 v{t+6}, v{vN}, -1
    v_min_u32 v{t+6}, 1, v{t+6}
    v_mul_u32_u24 v{t+6}, 0x30000, v{t+6}
    v_add_u32 v{R1}, v{R1}, v{t+6}
    """)
    fl = []
    for u in range(5):
        fl += power(K1, PR+4+2*u, PR+5+2*u, t, PR+4+2*u)
        late.to(fl, DSF(f"ds_write_b64 v{APW}, {V(PR+4+2*u,2)} offset:{L_PW + u*2048}"))
        late.to(fl, DSF(f"ds_write_b64 v{R1}, {V(PR+4+2*u,2)} offset:{L_CH + 16 + u*1024}"))
    return fl

WOFF["ssm"] = f"""
    v_and_b32 v{t+2}, 6, v{t}
    v_or_b32 v{t+3}, s{sWC}, v{t+2}
    v_xor_b32 v{t+1}, v{t+1}, v{t+3}
    v_lshlrev_b32 v{t+1}, 4, v{t+1}
    v_and_b32 v{t+3}, 1, v{t}
    v_lshl_add_u32 v{t+2}, v{t+2}, 2, v{t+3}
    v_mul_u32_u24 v{t+2}, 1280, v{t+2}
    v_add_u32 v{vDW}, v{t+2}, v{t+1}
    v_add_u32 v{t+2}, 32, v{t}
    v_mul_u32_u24 v{t+2}, 1280, v{t+2}
    v_add_u32 v{vDW+1}, v{t+2}, v{t+1}
    s_mul_i32 s{sT0}, s{sNT}, 80
    s_mul_i32 s{sT1}, s{sWR}, 40
    s_add_u32 s{sT0}, s{sT0}, s{sT1}
    s_mul_i32 s{sB0}, s{sT0}, 1280
    s_add_u32 s{sB2}, s{sB0}, 5120
    s_mul_i32 s{sLW}, s{sWR}, 10240
    s_lshl_b32 s{sT0}, s{sWC}, 10
    s_add_u32 s{sLW}, s{sLW}, s{sT0}
    """
def path_ssm():
    typ = "ssm"; t = vT
    late_common(typ)
    k.e(f"""
    v_and_b32 v{t+1}, 1, v{vN}
    v_lshrrev_b32 v{t+2}, 2, v{vN}
    v_lshl_add_u32 v{t+2}, v{t+2}, 1, v{t+1}
    v_xor_b32 v{t}, v{t+4}, v{t+2}
    v_lshlrev_b32 v{t}, 4, v{t}
    v_lshl_add_u32 v{t}, v{t+1}, 10, v{t}
    v_lshrrev_b32 v{t+2}, 1, v{vN}
    v_lshl_add_u32 v{t}, v{t+2}, 7, v{t}
    s_mul_i32 s{sT0}, s{sWR}, 10240
    s_add_u32 s{sT0}, s{sT0}, {L_W}
    v_add_u32 v{vWA}, s{sT0}, v{t}
    v_xor_b32 v{vWA+1}, 64, v{vWA}
    """)
    ones()
    if not OPT['rsp']: xr_setup()
    k.e(f"""
    v_mul_u32_u24 v{vB1+11}, 820, v0
    v_lshrrev_b32 v{vB1+11}, 16, v{vB1+11}
    v_min_u32 v{vB1+11}, 2, v{vB1+11}
    v_mul_u32_u24 v{t+1}, 80, v{vB1+11}
    v_sub_u32 v{vB1+10}, v0, v{t+1}
    v_min_u32 v{vB1+10}, 79, v{vB1+10}
    s_mul_i32 s{sT0}, s{sNT}, 160
    v_lshlrev_b32 v{t+1}, 1, v{vB1+10}
    s_mov_b32 s{rT+2}, 1280
    s_mov_b32 s{rT+3}, 0x20000
    """)
    for pi, ptr in enumerate((pLre, pLim, pLdt)):
        k.e(f"s_mov_b32 s{rT}, s{ptr}\ns_mov_b32 s{rT+1}, s{ptr+1}")
        k.vmem(f"buffer_load_ushort v{PR+pi}, v{t+1}, s[{rT}:{rT+3}], s{sT0} offen", "par")
    if OPT['rpown'] == typ: repack_setup(typ)
    small_loads(typ)
    c_setup()
    p2_addr(typ)
    stamp(14)
    jobs, vq = common_jobs(typ)
    jobs[("wait", 0)] = ["par"]
    tj = table_a() + [gate(lambda: curblk[0] % 2 == 1 and curblk[0] > mk['ab'])] + table_rd() + [note(mk, 'rd'), gate(lambda: curblk[0] > mk['rd'])] + table_b()
    vC0, vC1, vP0, vP1, vE0, vE1, vGc, vGr, vPub = vB1, vB1+1, vB1+2, vB1+3, vB1+4, vB1+5, vB1+6, vB1+7, vB1+8
    CH_, WH_ = vB1 + 10, vB1 + 11
    vG = 114
    sVal = [28, 30, 36, 38, 40]
    u_ = 96
    ad = lines(f"""
    s_mul_i32 s{sT0}, s{sWR}, 40
    v_lshlrev_b32 v{u_}, 3, v{vQ}
    v_add_u32 v{u_}, s{sT0}, v{u_}
    v_lshlrev_b32 v{u_+1}, 1, v{vQ}
    v_add_u32 v{u_+1}, s{sT0}, v{u_+1}
    v_add_u32 v{u_+1}, 32, v{u_+1}
    v_lshlrev_b32 v{vC0}, 6, v{u_}
    v_lshlrev_b32 v{vC1}, 6, v{u_+1}
    v_lshlrev_b32 v{u_+2}, 3, v{vN}
    v_lshl_add_u32 v{vP0}, v{u_}, 7, v{u_+2}
    v_lshl_add_u32 v{vP1}, v{u_+1}, 7, v{u_+2}
    s_mul_i32 s{sT0}, s{sWC}, 640
    v_lshlrev_b32 v{vE0}, 3, v{u_}
    v_lshlrev_b32 v{vE1}, 3, v{u_+1}
    v_add_u32 v{vE0}, s{sT0}, v{vE0}
    v_add_u32 v{vE1}, s{sT0}, v{vE1}
    v_sub_u32 v{u_+2}, 15, v{vN}
    v_min_u32 v{u_+2}, 1, v{u_+2}
    v_mul_u32_u24 v{u_+2}, 0x30000, v{u_+2}
    v_add_u32 v{vB1+9}, v{u_+2}, v{vE0}
    v_add_u32 v119, v{u_+2}, v{vE1}
    v_lshlrev_b32 v{vGc}, 3, v{CH_}
    v_lshlrev_b32 v{vGr}, 6, v{CH_}
    v_lshlrev_b32 v{u_}, 4, v{CH_}
    v_lshl_add_u32 v{vPub}, v{WH_}, 26, v{u_}
    v_mul_u32_u24 v{u_+2}, 5, v{WH_}
    v_sub_u32 v{u_+2}, s{sMT}, v{u_+2}
    """)
    for i in range(5):
        ad += lines(f"""
        v_add_u32 v{u_+2}, -1, v{u_+2}
        v_mul_i32_i24 v{vG+i}, 1280, v{u_+2}
        v_cmp_le_i32 s[{sVal[i]}:{sVal[i]+1}], 0, v{u_+2}
        v_add_u32 v{vG+i}, v{vG+i}, v{u_}
        v_min_u32 v{vG+i}, {OOB}, v{vG+i}
        """)
    for f in ad: f()
    stamp(61)
    tj = tj + lines(f"""
    s_mul_i32 s{sHw}, s{sNT}, {16*1280}
    s_add_u32 s{sHw}, s{sHw}, {WS_E}
    s_mul_i32 s{sH}, s{sMT}, 1280
    s_add_u32 s{sH}, s{sH}, s{sHw}
    """)
    if OPT.get('keep') is not None and 'tab' not in OPT['keep']: tj = []
    tj.append(note(mk, 'done'))
    jobs["tail"] = jobs["tail"] + late
    jobs[("pre", 19)] = jobs.get(("pre", 19), []) + [F(lambda: mk['done'], 0)]
    left = main_loop(typ, jobs, vq, tj)
    vG2 = 8
    for i in range(6): k.e(f"v_mov_b32 v{vG2+i}, v{vG+i}")
    TK, CS, P2 = stats(typ, jobs)
    stamp()
    fd = Feeder(left, (70 if OPT['ce'] else 200) // max(1, len(left)))
    wd = [op for i in range(5) for op in c_dma(i, rT2, "cim")]; e1 = OPT["ce"]; ew = OPT["cw"] - e1
    if 4 in OPT.get("x", ()): wd = wd[:1]; ew = 1
    slots = [(i, h) for i in range(5) for h in range(2)]
    def rec(i, h): return (vC0, L_CH + (2*i + h)*64) if i < 4 else (vC1, L_CH + h*64)
    LC = 100
    stats_sum(typ, CS, P2)
    for x, (i, h) in enumerate(slots):
        a_, o_ = rec(i, h); k.ds(f"ds_read_b128 {V(LC+4*x,4)}, v{a_} offset:{o_}", ("lc", x))
    k.raw(".p2align 3")
    for x, (i, h) in enumerate(slots):
        fd.tick(8)
        for j in range(4):
            z = acc(i, j) + 2*h
            k.e(f"v_pk_fma_f32 {V(z,2)}, {V(CS+4*i+2*h,2)}, {V(TK+4*j,2)}, {V(z,2)} op_sel:[0,0,0] op_sel_hi:[1,0,1] neg_lo:[0,1,0] neg_hi:[0,1,0]")
        for j in range(4):
            z = acc(i, j) + 2*h
            k.e(f"v_pk_mul_f32 {V(z,2)}, {V(z,2)}, {V(TK+4*j,2)} op_sel:[0,1] op_sel_hi:[1,1]")
    EE = 140; TMP = 88
    MU = [t, t + 20]
    def load_mu(st):
        for x, (i, h) in enumerate(slots):
            a_, o_ = rec(i, h); k.ds(f"ds_read_b64 {V(MU[st & 1]+2*x,2)}, v{a_} offset:{o_ + 16 + 8*st}", ("mu", st))
    if e1:
        fd.flush()
        k.wait_vm("cre")
        c_read(0, [4, 5, 6, 7, 92, 93])
        fd = Feeder(wd[:e1], 180 // e1)
    k.wait_lg()
    load_mu(0); load_mu(1)
    def ereg(x): return EE + 2*x
    def treg(x): return (240 + 2*x) if x < 8 else (TMP + 2*(x - 8))
    k.raw(".p2align 3")
    for x, (i, h) in enumerate(slots): cmul_acc(ereg(x), acc(i,0)+2*h, LC+4*x, acc(i,1)+2*h)
    fd.tick(20)
    for x, (i, h) in enumerate(slots): cmul_acc(treg(x), ereg(x), LC+4*x, acc(i,2)+2*h)
    fd.tick(20)
    for x, (i, h) in enumerate(slots): cmul_acc(ereg(x), treg(x), LC+4*x, acc(i,3)+2*h)
    PWv = t
    for st, sh in enumerate((1, 2, 4, 8)):
        fd.tick(20)
        k.raw(".p2align 3")
        for x in range(10):
            k.e(f"v_mov_b32_dpp v{treg(x)}, v{ereg(x)} row_shr:{sh} row_mask:0xf bank_mask:0xf bound_ctrl:0")
            k.e(f"v_mov_b32_dpp v{treg(x)+1}, v{ereg(x)+1} row_shr:{sh} row_mask:0xf bank_mask:0xf bound_ctrl:0")
        fd.tick(20)
        k.wait_lg(("mu", st))
        k.raw(".p2align 3")
        for x in range(10): cmul_acc(ereg(x), treg(x), MU[st & 1]+2*x, ereg(x))
        if st < 2: load_mu(st + 2)
        if st == 2:
            for x, (i, h) in enumerate(slots):
                k.ds(f"ds_read_b64 {V(PWv+2*x,2)}, v{vP0 if i < 4 else vP1} offset:{L_PW + ((2*i+h)*128 if i < 4 else h*128)}", "pw")
    for i in range(5):
        k.ds(f"ds_write_b128 v{vB1+9 if i < 4 else 13}, {V(EE+4*i,4)} offset:{L_EX + (16*i if i < 4 else 0)}")
    ch = t + 20
    E0, E1, LL, ET, GA = ch, ch+2, ch+4, ch+8, 14
    GA = [ch+8, ch+12, ch+16, ch+20, ch+24]
    k.ds(f"ds_read_b128 {V(LL,4)}, v{vGr} offset:{L_CH+48}", "e")
    k.e(f"v_mov_b32 v{ET+1}, s{sNonce}\nv_mov_b32 v{ET+3}, s{sNonce}")
    fd.flush()
    k.wait_lg()
    k.e("s_barrier")
    k.ds(f"ds_read_b64 {V(E0,2)}, v{vGc} offset:{L_EX}", "e")
    k.ds(f"ds_read_b64 {V(E1,2)}, v{vGc} offset:{L_EX+640}", "e")
    k.wait_lg()
    cmul_acc(E1, E0, LL, E1)
    k.e(f"v_mov_b32 v{ET}, v{E1}\nv_mov_b32 v{ET+2}, v{E1+1}")
    k.vmem(f"buffer_store_dwordx4 {V(ET,4)}, v{vPub}, s[{rWS}:{rWS+3}], s{sH} offen sc1", "e")
    stamp()
    def gather(track):
        for i in range(5):
            tx = f"buffer_load_dwordx4 {V(GA[i],4)}, v{vG2+i}, s[{rWS}:{rWS+3}], s{sHw} offen sc1"
            k.vmem(tx, "ga") if track else k.e(tx)
    k.e("s_nop 1")
    k.wait_vm("cre")
    if OPT["gpos"] == 0: gather(True)
    if not e1: c_read(0, [4, 5, 6, 7, 92, 93])
    fd = Feeder(wd[e1:e1 + ew], 1)
    per = ew / (13.0 - OPT['wskip2'])
    done = [0.0]
    cnt = [0]
    def tk_():
        cnt[0] += 1
        if cnt[0] == OPT["gpos"]: gather(True)
        if cnt[0] <= OPT["wskip2"]: return
        if cnt[0] == OPT["wskip2"] + 1: k.wait_lg()
        done[0] += per; n_ = int(done[0]); done[0] -= n_; fd.tick(n_); k.raw(".p2align 3")
    WT, W2 = 14, 16
    for x in range(10):
        k.e(f"v_mov_b32_dpp v{treg(x)}, v{ereg(x)} row_shr:1 row_mask:0xf bank_mask:0xf bound_ctrl:0")
        k.e(f"v_mov_b32_dpp v{treg(x)+1}, v{ereg(x)+1} row_shr:1 row_mask:0xf bank_mask:0xf bound_ctrl:0")
    def cmul(d, a, b, tmp):
        k.e(f"v_pk_mul_f32 {V(tmp,2)}, {V(a,2)}, {V(b,2)} op_sel:[0,0] op_sel_hi:[1,0]")
        k.e(f"v_pk_fma_f32 {V(d,2)}, {V(a,2)}, {V(b,2)}, {V(tmp,2)} op_sel:[1,1,0] op_sel_hi:[0,1,1] neg_lo:[0,1,0]")
    tk_()
    for x in range(10): cmul(treg(x), treg(x), LC+4*x+2, ereg(x))
    tk_()
    for x in range(10): cmul(PWv+2*x, PWv+2*x, LC+4*x+2, ereg(x))
    for x, (i, h) in enumerate(slots):
        tk_()
        for j in range(4): cmul(acc(i,j)+2*h, acc(i,j)+2*h, LC+4*x+2, EE+2*j)
    tk_()
    cmul(WT, LL+2, LL+2, W2); cmul(WT, WT, WT, W2); cmul(WT, WT, LL+2, W2); cmul(W2+2, WT, WT, W2)
    k.e(f"""
    v_cmp_eq_u32 vcc, 2, v{WH_}
    v_mov_b32 v{W2}, 1.0
    v_mov_b32 v{W2+1}, 0
    v_cndmask_b32 v{WT}, v{WT}, v{W2+2}, vcc
    v_cndmask_b32 v{WT+1}, v{WT+1}, v{W2+3}, vcc
    v_cmp_eq_u32 vcc, 0, v{WH_}
    v_mul_u32_u24 v{W2+2}, 640, v{WH_}
    v_add_u32 v{vGc}, v{vGc}, v{W2+2}
    v_cndmask_b32 v{WT}, v{WT}, v{W2}, vcc
    v_cndmask_b32 v{WT+1}, v{WT+1}, v{W2+1}, vcc
    v_cndmask_b32 v{E0}, v{W2+1}, v{E0}, vcc
    v_cndmask_b32 v{E0+1}, v{W2+1}, v{E0+1}, vcc
    s_mul_i32 s{sT0}, s{sWC}, 1280
    v_add_u32 v{vE0}, s{sT0}, v{vE0}
    v_add_u32 v{vE1}, s{sT0}, v{vE1}
    """)
    fd.flush()
    h_base()
    k.e(f"""
    s_mul_i32 s{sT1}, s{sT1}, 5
    s_add_u32 s{sT0}, s{sT0}, s{sT1}
    s_add_u32 s{sT0}, s{sT0}, 12
    s_lshl_b32 s{sT0}, s{sT0}, 12
    s_add_u32 s{sH}, s{sH}, s{sT0}
    s_add_u32 s{sB2}, s{sH}, {4*4096}
    s_lshl_b32 s{sT0}, s{sWR}, 9
    s_add_u32 s{sB2}, s{sB2}, s{sT0}
    v_lshrrev_b32 v27, 1, v{vQ}
    v_lshlrev_b32 v27, 10, v27
    v_and_b32 v98, 31, v{vL}
    v_lshl_add_u32 v27, v98, 4, v27
    s_lshl_b32 s{sT0}, s{sWR}, 13
    s_add_u32 s{sH}, s{sH}, s{sT0}
    s_add_u32 s{sB0}, s{sH}, 4096
    """)
    stamp(60)
    k.wait_vm("ga")
    k.label("L_carry_chk")
    k.e(f"s_mov_b64 s[{sEx}:{sEx+1}], 0")
    for i in range(5):
        k.e(f"""
        v_cmp_ne_u32 vcc, s{sNonce}, v{GA[i]+1}
        v_cmp_ne_u32 s[{sT0}:{sT1}], s{sNonce}, v{GA[i]+3}
        s_or_b64 vcc, vcc, s[{sT0}:{sT1}]
        s_and_b64 vcc, vcc, s[{sVal[i]}:{sVal[i]+1}]
        s_or_b64 s[{sEx}:{sEx+1}], s[{sEx}:{sEx+1}], vcc
        """)
    k.e(f"""
    s_cmp_eq_u64 s[{sEx}:{sEx+1}], 0
    s_cbranch_scc1 L_carry_done
    s_sub_u32 s{sSpin}, s{sSpin}, 1
    s_cbranch_scc1 L_end
    """)
    gather(False)
    k.e("s_waitcnt vmcnt(0)\ns_branch L_carry_chk")
    k.label("L_carry_done")
    stamp()
    for i in range(5): k.e(f"v_mov_b32 v{GA[i]+1}, v{GA[i]+2}")
    for i in (3, 2, 1, 0): cmul_acc(GA[i], GA[i+1], LL+2, GA[i])
    cmul(GA[0], GA[0], WT, W2)
    cmul_acc(E0, GA[0], LL, E0)
    k.ds(f"ds_write_b64 v{vGc}, {V(GA[0],2)} offset:{L_PW}")
    k.ds(f"ds_write_b64 v{vGc}, {V(E0,2)} offset:{L_PW + 1920}")
    k.wait_lg()
    k.e("s_barrier")
    XS_ = [80, 82, 84, 86, 92]; XT = 94
    x_loads(XS_, XT)
    def pb(g, o): return 96 + o - 16 if (g == 2 and o >= 16) else PB[g] + o
    PB = [EE, ch, 4]
    for i in range(5):
        for g in range(3):
            k.ds(f"ds_read_b128 {V(pb(g, 4*i),4)}, v{vE0 if i < 4 else vE1} offset:{L_PW + 640*g + (16*i if i < 4 else 0)}", ("pb", i))
    k.raw(".p2align 3")
    for x in range(10):
        if x % 2 == 0: k.wait_lg(("pb", x // 2)); k.raw(".p2align 3")
        k.e(f"v_pk_add_f32 {V(ereg(x),2)}, {V(ereg(x),2)}, {V(PB[1]+2*x,2)}")
        k.e(f"v_pk_add_f32 {V(ereg(x),2)}, {V(ereg(x),2)}, {V(pb(2, 2*x),2)}")
        cmul_acc(treg(x), ereg(x), PWv+2*x, treg(x))
    held = []
    for hf in range(2):
        OA = [(60, 64), (68, 72)] if hf == 0 else [(40, 44), (48, 52)]
        OE = 76 if hf == 0 else 56
        for jj in range(2):
            j = 2*hf + jj
            k.raw(".p2align 3")
            for x, (i, h) in enumerate(slots):
                prev = treg(x) if j == 0 else acc(i, j-1) + 2*h
                cmul_acc(acc(i,j)+2*h, prev, LC+4*x, acc(i,j)+2*h)
            oa, ob = OA[jj]
            for i in range(4): k.e(f"v_cvt_pk_bf16_f32 v{oa+i}, v{acc(i,j)}, v{acc(i,j)+2}")
            for i in range(4): k.e(f"v_cvt_pk_bf16_f32 v{ob+i}, -v{acc(i,j)+1}, -v{acc(i,j)+3}")
            k.e(f"v_cvt_pk_bf16_f32 v{OE+2*jj}, v{acc(4,j)}, v{acc(4,j)+2}")
            k.e(f"v_cvt_pk_bf16_f32 v{OE+2*jj+1}, -v{acc(4,j)+1}, -v{acc(4,j)+3}")
            k.vmem(f"buffer_store_dwordx4 {V(oa,4)}, v{vL16}, s[{rWS}:{rWS+3}], s{sH} offen offset:{jj*1024} sc1", ("hs", hf))
            k.vmem(f"buffer_store_dwordx4 {V(ob,4)}, v{vL16}, s[{rWS}:{rWS+3}], s{sB0} offen offset:{jj*1024} sc1", ("hs", hf))
        k.e(f"""
        s_nop 1
        v_permlane32_swap_b32 v{OE}, v{OE+2}
        v_permlane32_swap_b32 v{OE+1}, v{OE+3}
        s_nop 1
        v_permlane16_swap_b32 v{OE}, v{OE+1}
        v_permlane16_swap_b32 v{OE+2}, v{OE+3}
        """)
        k.vmem(f"buffer_store_dwordx4 {V(OE,4)}, v27, s[{rWS}:{rWS+3}], s{sB2} offen sc1", ("hs", hf))
        if hf == 0: k.e(f"s_add_u32 s{sH}, s{sH}, {HB}\ns_add_u32 s{sB0}, s{sB0}, {HB}\ns_add_u32 s{sB2}, s{sB2}, {HB}")
    stamp()
    if e1 + ew < 25:
        run(wd[e1 + ew:])
    flag_addr()
    if MV:
        u_ = 156
        k.e(f"""
        v_min_u32 v{u_}, {3 + 4*MV}, v{vL}
        s_add_u32 s{sT0}, s{sFA}, {9*128 + 16}
        v_and_b32 v{u_+1}, 1, v{u_}
        v_lshlrev_b32 v{u_+1}, 3, v{u_+1}
        v_and_b32 v{u_+2}, 2, v{u_}
        v_lshl_add_u32 v{u_+1}, v{u_+2}, 4, v{u_+1}
        v_add_u32 v{vF}, s{sT0}, v{u_+1}
        s_mul_i32 s{sT0}, s{sW}, 24
        s_lshr_b32 s{sT1}, s{sDT}, 2
        s_add_u32 s{sT0}, s{sT0}, s{sT1}
        s_lshl_b32 s{sT0}, s{sT0}, 7
        s_add_u32 s{sT0}, s{sT0}, {WS_RF + 16384 + (12 - MV - 1)*256}
        v_lshrrev_b32 v{u_+1}, 2, v{u_}
        v_lshlrev_b32 v{u_+1}, 8, v{u_+1}
        v_and_b32 v{u_+2}, 3, v{u_}
        v_cmp_gt_u32 vcc, 4, v{u_}
        v_lshl_add_u32 v{u_+1}, v{u_+2}, 4, v{u_+1}
        v_add_u32 v{u_+1}, s{sT0}, v{u_+1}
        v_cndmask_b32 v{vF}, v{u_+1}, v{vF}, vcc
        """)
    k.seen.update(("w", x) for x in range(10))
    def cim():
        k.wait_vm("cim")
        c_read(1, [150, 151, 152, 153, 154, 155])
    if e1 + ew == 25: cim()
    put_flag(("hs", 0), sLW)
    residual(XS_, XT, 100)
    if OPT.get("spg", 9) > 4:
        stamp(7)
        k.e(spoll(0))
    if OPT["sfast"]:
        assert e1 + ew == 25
        k.e("s_waitcnt lgkmcnt(0)"); k.lg = []
        for b_ in (sPA, sPB_):
            for x in range(4): k.e(f"s_cmp_eq_u64 s[{b_+2*x}:{b_+2*x+1}], s[{sNP}:{sNP+1}]\ns_cbranch_scc0 L_sslow")
        save = list(k.vm)
        run(h_issue(typ, range(NR)))
        put_flag(("hs", 1), sLX, False)
        k.e("s_branch L_sjoin\nL_sslow:")
        k.vm = list(save)
        k.e(spoll(0))
        put_flag(("hs", 1), sLX, False)
        scheck("hm" + typ, 0)
        run(h_issue(typ, range(NR)))
        k.e("L_sjoin:")
        stamp(8)
    else:
        put_flag(("hs", 1), sLX)
        if e1 + ew < 25: cim()
        scheck("hm" + typ, 0)
        stamp(8)
        run(h_issue(typ, range(NR)))
    k.e("s_barrier")
    phase2(typ, [(tk, op) for tk in range(10, NK[typ]) for op in wload(tk)], [], [], None, -1)

def poll(tag, vaddr, vd):
    k.e(f"""
    L_poll_{tag}:
    buffer_load_dwordx2 {V(vd,2)}, v{vaddr}, s[{rWS}:{rWS+3}], 0 offen sc1
    s_waitcnt vmcnt(0)
    v_cmp_ne_u32 vcc, s{sNonce}, v{vd}
    v_cmp_ne_u32 s[{sT0}:{sT1}], s{sNonce}, v{vd+1}
    s_or_b64 vcc, vcc, s[{sT0}:{sT1}]
    s_cmp_eq_u64 vcc, 0
    s_cbranch_scc1 L_pollok_{tag}
    s_sub_u32 s{sSpin}, s{sSpin}, 1
    s_cbranch_scc1 L_end
    s_sleep 1
    s_branch L_poll_{tag}
    L_pollok_{tag}:
    """)
    k.vm = []

def acc2(p_, i, s): return 96 + 80*p_ + (i*4 + s)*4
def phase2(typ, pend, hrest, res, tagB, tB):
    stamp_n[0] = 10
    n_ = NK[typ]; T = 2*n_
    AD = [88, 89, 90, 91]
    XF = 92
    sXo, sXi, sFo, sTm = sB0, sH, sHw, sLW
    setup = lines(f"""
    v_bfe_u32 v{AD[0]}, v{vN}, 1, 2
    v_mul_u32_u24 v{vRw}, {RROW}, v{vN}
    v_xor_b32 v{AD[0]}, v{AD[0]}, v{vQ}
    v_lshl_add_u32 v{vRw}, v{AD[0]}, 4, v{vRw}
    v_add_u32 v{vRw}, s{sWLb}, v{vRw}
    v_lshlrev_b32 v{XO}, 1, v{XO}
    s_lshl_b32 s{sB2}, s{sX}, 1
    s_mov_b32 s{rW}, s{pOut}
    s_mov_b32 s{rW+1}, s{pOut+1}
    s_mov_b32 s{rW+2}, {2048*2560}
    s_mov_b32 s{rW+3}, 0x20000
    s_lshl_b32 s{sXi}, s{sMT}, 3
    s_add_u32 s{sXi}, s{sXi}, s{sDT}
    s_lshl_b32 s{sXi}, s{sXi}, 1
    s_add_u32 s{sXi}, s{sXi}, s{sHALF}
    s_xor_b32 s{sXo}, s{sXi}, 1
    s_lshl_b32 s{sFo}, s{sXo}, 6
    s_lshl_b32 s{sTm}, s{sW}, 4
    s_add_u32 s{sTm}, s{sTm}, {WS_XF}
    s_add_u32 s{sFo}, s{sFo}, s{sTm}
    s_lshl_b32 s{sUnit}, s{sXi}, 6
    s_add_u32 s{sUnit}, s{sUnit}, s{sTm}
    s_mul_i32 s{sTm}, s{sW}, 5120
    s_add_u32 s{sTm}, s{sTm}, {WS_XB}
    s_mul_i32 s{sXi}, s{sXi}, 20480
    s_add_u32 s{sXi}, s{sXi}, s{sTm}
    s_mul_i32 s{sXo}, s{sXo}, 20480
    s_add_u32 s{sXo}, s{sXo}, s{sTm}
    s_add_u32 s{sDX}, s{sXi}, 4096
    s_add_u32 s{sDW}, s{sXo}, 4096
    """)
    for s in range(4):
        setup += lines(f"s_xor_b32 s{sTm}, s{sW}, {s}\ns_mul_i32 s{sTm}, s{sTm}, {WLW}\ns_add_u32 s{sTm}, s{sTm}, {L_WL + s*RBLK}\nv_add_u32 v{AD[s]}, s{sTm}, v{LO}")
    def red_w(p_, s): return [DSF(f"ds_write_b128 v{vRw}, {V(acc2(p_,i,s),4)} offset:{s*RBLK + i*64}", "rw") for i in range(5)]
    RD = [96 + 16*g for g in range(5)]
    def red_r(g): return [DSF(f"ds_read_b128 {V(RD[g]+4*s,4)}, v{AD[s]} offset:{64*g}", ("r", g)) for s in range(4)]
    bgq = list(setup) + list(res)
    per = -(-len(pend) // OPT["kw"])
    for t in range(T - 1):
        p_, tk = divmod(t, n_)
        assert not [1 for t_, _ in pend if t_ <= t], (typ, t)
        if OPT.get("fine2"): stamp(14 + 2*t)
        k.wait_vm([("w", tk), ("h", t)])
        if OPT.get("fine2"): stamp(15 + 2*t)
        if t == tB: put_flag(tagB, sLX)
        tchk = n_ - NR
        if MV and typ == 'ssm' and t == tchk - MV:
            k.wait_vm('mvp'); check('mv', vF, vFd)
        if t == tchk:
            scheck("hb" + typ, 1)
        wk, wb = wreg(tk); ring = hdest(typ, t)
        m = []
        for s in range(4):
            for i in range(5):
                c = "0" if tk == 0 else V(acc2(p_, i, s), 4)
                m.append(f"v_mfma_f32_16x16x32_bf16 {V(acc2(p_,i,s),4)}, {R(wk, wb+4*i, 4)}, {R(ring[s][0], ring[s][1], 4)}, {c}")
        streams = []
        if NE[typ] <= t and t + NR < T:
            a_, b_ = hload(typ, t + NR)
            streams.append((a_, 0, 2, True))
            for s in range(4): streams.append((b_[s], 5*s + 4, 5*s + 4, True))
        mem = []
        if t == tchk - 2: k.e(spoll(1))
        if MV and typ == 'ssm' and t == tchk - MV - 2: mem += [VM(f"buffer_load_dwordx2 {V(vFd,2)}, v{vF}, s[{rWS}:{rWS+3}], 0 offen sc1", 'mvp')]
        while hrest and len(mem) < 12: mem += flat([hrest.pop(0)])
        for _ in range(per if typ == "mlp" else (4 if t >= tchk - MV else 0)):
            if pend: mem += flat([pend.pop(0)[1]])
        u = t - n_
        if u == -1: must_bg = True
        if u == 0: assert not bgq, len(bgq)
        if u in (0, 1, 2):
            wr_ = sum((red_w(0, s) for s in range(4)), [])
            streams.append((wr_[7*u:7*u + 7], 2, 18 if u < 2 else 14, True))
        if u == 3:
            k.wait_lg(); k.e("s_barrier")
            streams.append((red_r(0) + red_r(1) + red_r(2), 0, 16, True))
        if u == 4: streams.append((red_r(3) + red_r(4), 0, 12, True))
        if u in (4, 5):
            for g in ((0, 1, 2) if u == 4 else (3, 4)):
                bgq += [F(lambda g=g: k.wait_lg(("r", g)), 1)]
                bgq += lines("\n".join(f"v_add_f32 v{RD[g]+x}, v{RD[g]+x}, v{RD[g]+4+x}" for x in range(4)) + "\n" +
                             "\n".join(f"v_add_f32 v{RD[g]+8+x}, v{RD[g]+8+x}, v{RD[g]+12+x}" for x in range(4)) + "\n" +
                             "\n".join(f"v_add_f32 v{RD[g]+x}, v{RD[g]+x}, v{RD[g]+8+x}" for x in range(4)))
                if 1 in OPT.get("x", ()): k.seen.add(("xs", g))
                else: bgq += [VM(f"buffer_store_dwordx4 {V(RD[g],4)}, v{vL16}, s[{rWS}:{rWS+3}], s{sXo if g < 4 else sDW} offen offset:{(g & 3)*1024} sc1", ("xs", g))]
        if u == n_ - 3: k.e("s_barrier")
        if u == n_ - OPT["xfb_" + typ]:
            run(bgq); bgq.clear()
            put_flag(("xs", 4), sFo)
        if u == n_ - 2:
            k.wait_lg(); k.e(f"s_load_dwordx2 s[{sPA}:{sPA+1}], s[{pWs}:{pWs+1}], s{sUnit} glc")
            k.wait_vm(("h", t + 1))
            wk2, wb2 = wreg(tk + 1); ring2 = hdest(typ, t + 1)
            m2 = [f"v_mfma_f32_16x16x32_bf16 {V(acc2(1,i,s),4)}, {R(wk2, wb2+4*i, 4)}, {R(ring2[s][0], ring2[s][1], 4)}, {V(acc2(1,i,s),4)}" for s in range(4) for i in range(5)]
            m = sum((m[5*s:5*s+5] + m2[5*s:5*s+5] for s in range(4)), [])
            XL = [40 + 4*g for g in range(5)]
            assert all(base not in range(40, 60) for r_ in (ring, ring2) for kind, base in r_ if kind == "v")
            xl = "\n".join(f"buffer_load_dwordx4 {V(XL[g],4)}, v{vL16}, s[{rWS}:{rWS+3}], s{sXi if g < 4 else sDX} offen offset:{(g & 3)*1024} sc1" for g in range(5))
            for s in range(3): streams.append((red_w(1, s), 10*s + 13, 10*s + 19, True))
            def early():
                k.e("s_waitcnt lgkmcnt(0)"); k.lg = []
                k.e(f"s_cmp_eq_u64 s[{sPA}:{sPA+1}], s[{sNP}:{sNP+1}]\ns_cbranch_scc0 L_xe_{typ}\n{xl}\nL_xe_{typ}:")
            streams.insert(0, ([F(early, 2)], OPT["xg"], OPT["xg"], True))
        streams.append((mem, 1, 18, True))
        streams.append((bgq, 0, 20, False))
        sched(m, streams)
        if u == -1:
            if OPT.get("show"): print("left at the end of pass 1:", len(bgq))
            for f in bgq: f()
            bgq.clear()
    stamp()
    k.e(f"""
    s_cmp_eq_u64 s[{sPA}:{sPA+1}], s[{sNP}:{sNP+1}]
    s_cbranch_scc1 L_xd_{typ}
    L_xp_{typ}:
    s_sub_u32 s{sSpin}, s{sSpin}, 1
    s_cbranch_scc1 L_end
    s_load_dwordx2 s[{sPA}:{sPA+1}], s[{pWs}:{pWs+1}], s{sUnit} glc
    s_waitcnt lgkmcnt(0)
    s_cmp_eq_u64 s[{sPA}:{sPA+1}], s[{sNP}:{sNP+1}]
    s_cbranch_scc0 L_xp_{typ}
    {xl}
    L_xd_{typ}:
    s_nop 2
    """)
    run(red_w(1, 3))
    k.wait_lg(); k.e("s_barrier")
    for g in range(5): run(red_r(g))
    for g in range(5):
        k.wait_lg(("r", g))
        o = RES + 4*g
        for h in range(2): k.e(f"v_pk_add_f32 {V(RD[g]+2*h,2)}, {V(RD[g]+2*h,2)}, {V(RD[g]+4+2*h,2)}")
        for h in range(2): k.e(f"v_pk_add_f32 {V(RD[g]+8+2*h,2)}, {V(RD[g]+8+2*h,2)}, {V(RD[g]+12+2*h,2)}")
        for h in range(2): k.e(f"v_pk_add_f32 {V(o+2*h,2)}, {V(o+2*h,2)}, {V(RD[g]+2*h,2)}")
        for h in range(2): k.e(f"v_pk_add_f32 {V(o+2*h,2)}, {V(o+2*h,2)}, {V(RD[g]+8+2*h,2)}")
    for g in range(5):
        o = RES + 4*g
        if True:
            if g == 0: k.wait_vm0()
            for h in range(2): k.e(f"v_pk_add_f32 {V(o+2*h,2)}, {V(o+2*h,2)}, {V(XL[g]+2*h,2)}")
        k.vmem(f"buffer_store_dwordx4 {V(o,4)}, v{XO}, s[{rW}:{rW+3}], s{sB2} offen offset:{64*g} {OPT.get('ost', '')}", "o")
    if OPT.get("spin"):
        ins, n_ = OPT["spin"]
        k.e(f"""
        s_waitcnt vmcnt(0)
        s_sub_u32 s{sST}, s{sST}, s98
        s_add_u32 s{sST}, s{sST}, {n_}
        L_spin_{typ}:
        {ins} s[100:101]
        s_waitcnt lgkmcnt(0)
        s_sub_u32 s100, s100, s98
        s_cmp_lt_u32 s100, s{sST}
        s_cbranch_scc1 L_spin_{typ}
        """)
    k.e("s_branch L_fin" if OPT["stamps"] else "s_endpgm")

def finish():
    if OPT["stamps"]:
        k.label("L_fin")
        k.wait_vm0()
        stamp(11)
        k.e(f"""
        s_memtime s[100:101]
        s_waitcnt lgkmcnt(0)
        s_sub_u32 s100, s100, s98
        v_writelane_b32 v{vST}, s100, 63
        s_lshl_b32 s{sT0}, s2, 2
        s_add_u32 s{sT0}, s{sT0}, s{sW}
        s_lshl_b32 s{sT0}, s{sT0}, 8
        s_add_u32 s{sT0}, s{sT0}, {WS_ST}
        v_lshlrev_b32 v2, 2, v{vL}
        buffer_store_dword v{vST}, v2, s[{rWS}:{rWS+3}], s{sT0} offen
        """)

prologue()
stamp_n[0] = 1
path_ssm()
stamp_n[0] = 1; cur[0] = "mlp"
path_mlp()
finish()
k.label("L_end")
body = k.text()
errs = check_hazards(body)
for e_ in errs: print("HAZARD:", e_, file=sys.stderr)

hdr = open(f"cdna_kernels/{NAME}.s.ref").read().split("\n")
hdr = [l for l in hdr if l.startswith(";") and "@launch" not in l and "Override" not in l and "grid=ceil" not in l]
out = "\n".join(hdr) + f"\n; @launch grid=(256,1,1) block=(256,1,1) lds={L_END}\n"
out += f""".amdgcn_target "amdgcn-amd-amdhsa--gfx950"
.text
.globl {NAME}_kernel
.p2align 8
.type {NAME}_kernel,@function
{NAME}_kernel:
{body}    s_endpgm
L_code_end:
.set CODE_BYTES, L_code_end - {NAME}_kernel - 512
.section .rodata,"a"
.p2align 6
.amdhsa_kernel {NAME}_kernel
  .amdhsa_next_free_vgpr 512
  .amdhsa_next_free_sgpr 102
  .amdhsa_accum_offset 256
  .amdhsa_group_segment_fixed_size 0
  .amdhsa_kernarg_size 136
  .amdhsa_user_sgpr_count 2
  .amdhsa_user_sgpr_kernarg_segment_ptr 1
  .amdhsa_system_sgpr_workgroup_id_x 1
.end_amdhsa_kernel
"""
open(sys.argv[1], "w").write(out)
print("written", sys.argv[1], len(out), "bytes; hazards:", len(errs))
```

```python
import sys, struct
sys.path.insert(0, "dev")
from asmlib import *

NAME = "parallel_sum__ssm_conv_s5__mixer_channel_mlp__prompt"
OPT = dict(stamps=False, stop=None, nt_dma="", nt_pf="", nt_rp="", pf=0, pf0=1, pford=0, post0=8, ost='nt', pfa=(1, 0, 1), pfb=(2,), mv=0, xr0=0, tmlp=8, ctail=6, xg=22, rsp=0, sfast=1, rpown='both', post=25, e1=0, ew=30, post0_s=0, wskip=3, rpd_mlp=(0, 1.6), rpd_ssm=(0, 1.6), rotg=1, tch=2, hw=4, e2=0, post_s=0, cpf=1, rp_mlp=(3, (4, 6, 8), 10), rp_ssm=(3, (4, 6, 8), 10), cw=25, rf_mlp=14, wskip2=1, touch=8, rf_ssm=99, xfb_mlp=3, ce=0, nodot=1, ncb=3, wpre=0, xrb=1, rsc=19, rsb=16, hoist=1, xfb_ssm=2, xlate=1, fa=8, sp=10, stlb=0, rfg=10, wfirst=0, wres=-1, resfirst=1, ne=0, gpos=8, post1=20, hpre=1, ne_mlp=0, kw=6, util=1.0, rot1=1, rot2=1)
for a_ in sys.argv[2:]:
    k_, v_ = a_.split("=", 1); OPT[k_] = eval(v_)

def f2u(x): return struct.unpack("<I", struct.pack("<f", x))[0]
def hx(x): return "0x%08x" % f2u(x)

WS_EP = 0
WS_H = 4096
WS_WP = 12 << 20
WS_E = 16 << 20
WS_RF = 17 << 20
WS_HF = (17 << 20) + 65536
WS_RS = 18 << 20
WS_ST = 20 << 20
WS_XF = (17 << 20) + 131072
WS_XB = 24 << 20
WS_SIZE = 32 << 20
OOB = 0x4000000
L_TOK = 0; L_CH = 2048; L_PW = 7168; L_EX = 17408; L_EX2 = L_EX + 1280
L_STG = 20480; L_X = 40960; L_W = 90112; L_END = 163840
XS = 16384; WSL = 24576
L_SCS = {'ssm': (L_EX2, 320), 'mlp': (L_CH + 512, 384)}; L_B1 = L_CH; L_DB = 20160
WLW = 4 * 16 * 320; RROW = 320; RBLK = 16 * RROW
L_WL = L_STG
NST = 10
pX, pLre, pLim, pBre, pBim, pCre, pCim, pLdt = 16, 18, 20, 22, 24, 26, 28, 30
pDsk, pBx, pW1, pB1, pW2, pB2, pOut, pDbg, pWs = 32, 34, 36, 38, 40, 42, 44, 46, 48
sW, sWR, sWC, sMT, sNT, sTYP, sHALF, sDT = 3, 4, 5, 6, 7, 8, 88, 7
sML, sI8 = 9, 10
sNonce = 11; sT0, sT1, sT2, sT3 = 12, 13, 14, 15
sKs = 50; sPF = 51
rX, rW, rWS, rT, rT2 = 52, 56, 60, 64, 68
sX, sLX, sLW, sB0, sB2, sPFs, sUnit, sRpSrc, sLR, sSpin = 72, 73, 74, 75, 76, 77, 78, 79, 80, 81
sK = 82; sEx = 84
sH, sHw, sWp, sDis = 86, 87, 88, 89
sST = 90
sRpD = 92
sSig = 97
sWa, sHa, sLim = 18, 22, 26
sDX, sDW = 77, 51
rPF = rT2
vL, vN, vQ = 1, 2, 3
vDX0, vDX1, vXa, vXb = 4, 5, 6, 7
vDW = 8
vPF, vDR, vJunk, vNc = 10, 11, 12, 13
vWA = 14
vRA = 120
vL16 = 26
vRS = 27
vB1 = 28
vB1m = 140
vT = 40
vST = 25
ACC = 160
def acc(i, j): return ACC + (i * 4 + j) * 4
aF = [0, 40]
aONE = 80; aCS = 84

k = Asm()
k.strict = OPT.get('strict', False)
k.lenient = OPT['stamps']
stamp_n = [0]
cur = ["ssm"]
def stamp(i=None):
    if i is None:
        i = stamp_n[0]; stamp_n[0] += 1
    if OPT.get("probe") == (cur[0], i):
        k.e(f"s_memrealtime s[{sST}:{sST+1}]"); k.e("s_waitcnt lgkmcnt(0)"); k.lg = []
    if not OPT["stamps"] or (OPT.get("lite") and i != 11): return
    k.e(f"{'s_memtime' if OPT.get('cyc') else 's_memrealtime'} s[{sST}:{sST+1}]"); k.e("s_waitcnt lgkmcnt(0)"); k.lg = []
    k.e(f"v_writelane_b32 v{vST}, s{sST}, {i}")
def srd(r, ptr, size):
    k.e(f"s_mov_b32 s{r}, s{ptr}\ns_mov_b32 s{r+1}, s{ptr+1}\ns_mov_b32 s{r+2}, {size}\ns_mov_b32 s{r+3}, 0x20000")

class F:
    def __init__(self, fn, cost=1, ds=False, sep=False, ta=0): self.fn, self.cost, self.ds, self.sep, self.ta = fn, cost, ds, sep, ta
    gate = None
    atpre = False
    def __call__(self): self.fn()
curblk = [0]
def note(d, key): return F(lambda: d.__setitem__(key, curblk[0]), 0)
def gate(fn):
    f = F(lambda: None, 0); f.gate = fn; return f
def lines(s):
    out = []; prev = set()
    for l in (x.strip() for x in s.split("\n")):
        if not l: continue
        if l == "s_nop 0":
            prev = None; continue
        parts = l.split(" | ")
        c = sum(2 if x.split()[0] in TRANS else 1 for x in parts)
        d = parse(parts[0])
        dep = prev is None or (d["valu"] and bool(d["uses"] & prev))
        prev = set().union(*[{r for r in parse(x)["defs"] if r[0] == "v"} for x in parts])
        out.append(F(lambda l=l: k.e(l.replace(" | ", "\n")), c, sep=dep))
    return out
def VM(text, tag, sep=False, ta=66): return F(lambda: k.vmem(text, tag), 2, sep=sep, ta=ta)
def DSF(text, tag=None): return F(lambda: k.ds(text, tag), 1, ds=True)
def sched(main, streams, start=0):
    n = len(main)
    st = []
    for items, g0, g1, must in streams:
        cnt = len(items) if must else min(len(items), must if isinstance(must, int) and must > 1 else len(items))
        tot = sum(f.cost for f in items[:cnt]) or 1
        tg = []; acc_ = 0
        for f in items[:cnt]:
            tg.append(g0 + (g1 - g0) * acc_ / tot if must else g0); acc_ += f.cost
        st.append(dict(items=items, tg=tg, last=-1, must=must))
    for g, m in enumerate(main):
        k.e(m)
        if g < start: continue
        room = 2; hasds = False
        prog = True
        while prog and room > 0:
            prog = False
            for x in st:
                if not x["tg"] or x["tg"][0] > g: continue
                f = x["items"][0]
                if f.atpre or (f.gate and not f.gate()): continue
                if f.sep and x["last"] == g: continue
                if f.ds and (hasds or (not x["must"] and g >= n - 6)): continue
                if f.cost > room and room < 2 and not (not x["must"] and g - x["last"] >= 3): continue
                x["items"].pop(0); x["tg"].pop(0); x["last"] = g
                f(); room -= f.cost; hasds |= f.ds; prog = True
                break
    for x in st:
        if x["must"]:
            over = len(x["tg"])
            if over and OPT.get("show"): print("overflow", over)
            while x["tg"]:
                f = x["items"].pop(0); x["tg"].pop(0)
                if f.sep: k.e("s_nop 0")
                f()
def merge(*ls):
    ls = [l for l in ls if l]
    if not ls: return []
    if len(ls) == 1: return list(ls[0])
    items = []
    for li, l in enumerate(ls):
        for i, f in enumerate(l): items.append(((i + 0.5) / len(l), li, i, f))
    items.sort(key=lambda x: (x[0], x[1]))
    return [x[3] for x in items]

def prologue():
    t = vT
    cpf = f"""
    s_getpc_b64 s[{sEx}:{sEx+1}]
    s_lshr_b32 s{sT1}, s2, 3
    s_lshl_b32 s{sT1}, s{sT1}, 11
    v_lshrrev_b32 v{t}, 6, v0
    v_lshlrev_b32 v{t}, 9, v{t}
    v_and_b32 v{t+1}, 3, v0
    v_lshl_add_u32 v{t}, v{t+1}, 7, v{t}
    v_add_u32 v{t}, s{sT1}, v{t}
    v_min_u32 v{t}, CODE_BYTES, v{t}
    global_load_dword v{vJunk}, v{t}, s[{sEx}:{sEx+1}]
    """ if OPT["cpf"] else ""
    k.e(f"""
    s_cmp_ge_u32 s2, 256
    s_cbranch_scc1 L_end
    s_load_dwordx16 s[16:31], s[0:1], 0
    s_load_dwordx16 s[32:47], s[0:1], 64
    s_load_dwordx2 s[48:49], s[0:1], 128
    {cpf}
    v_lshrrev_b32 v{t}, 6, v0
    v_and_b32 v{vL}, 63, v0
    v_readfirstlane_b32 s{sW}, v{t}
    s_and_b32 s{sT0}, s2, 7
    s_lshr_b32 s{sT1}, s2, 3
    s_lshr_b32 s{sTYP}, s{sT1}, 4
    s_bfe_u32 s{sML}, s{sT1}, 0x20002
    s_lshr_b32 s{sMT}, s{sT0}, 1
    s_lshl_b32 s{sT2}, s{sML}, 2
    s_add_u32 s{sMT}, s{sMT}, s{sT2}
    s_and_b32 s{sT2}, s{sT1}, 3
    s_lshl_b32 s{sI8}, s{sTYP}, 2
    s_add_u32 s{sI8}, s{sI8}, s{sT2}
    s_and_b32 s{sNT}, s{sT0}, 1
    s_lshl_b32 s{sNT}, s{sNT}, 2
    s_add_u32 s{sNT}, s{sNT}, s{sT2}
    s_lshr_b32 s{sWR}, s{sW}, 1
    s_and_b32 s{sWC}, s{sW}, 1
    """)
    if OPT["stamps"]:
        k.e(f"v_mov_b32 v{vST}, 0\n{'s_memtime' if OPT.get('cyc') else 's_memrealtime'} s[{sST}:{sST+1}]" + ('' if OPT['pf'] or OPT['tch'] >= 3 else '\ns_memtime s[98:99]')); stamp_n[0] = 1
    if OPT.get("spin"): k.e(f"{OPT['spin'][0]} s[98:99]\ns_waitcnt lgkmcnt(0)\ns_mov_b32 s{sST}, s98")
    k.e(f"""
    v_lshrrev_b32 v{t}, 3, v{vL}
    v_and_b32 v{t+1}, 7, v{vL}
    v_lshrrev_b32 v{t+2}, 1, v{t}
    v_xor_b32 v{t+2}, v{t+1}, v{t+2}
    v_mul_u32_u24 v{t+3}, 5120, v{t}
    v_lshl_add_u32 v{vDX0}, v{t+2}, 4, v{t+3}
    v_xor_b32 v{vDX1}, 64, v{vDX0}
    v_add_u32 v{vDX1}, 40960, v{vDX1}
    s_lshl_b32 s{sT0}, s{sMT}, 7
    s_lshl_b32 s{sT1}, s{sWR}, 6
    s_add_u32 s{sT0}, s{sT0}, s{sT1}
    s_lshl_b32 s{sT1}, s{sWC}, 1
    s_add_u32 s{sT0}, s{sT0}, s{sT1}
    s_mul_i32 s{sX}, s{sT0}, 1280
    s_lshl_b32 s{sLX}, s{sW}, 12
    s_cmp_eq_u32 s{sTYP}, 1
    s_cbranch_scc1 L_e_mlp
    """)
    for typ in ("ssm", "mlp"):
        if typ == "mlp": k.label("L_e_mlp")
        k.vm = []; issued.clear()
        cur[0] = typ
        k.e(WOFF[typ])
        rot_setup(typ)
        if OPT["rsp"] >= 3: xr_setup()
        start_loads(typ)
        k.e(f"s_branch L_{typ}")
        early_vm[typ] = list(k.vm)
    cur[0] = "ssm"
early_vm = {}
WOFF = {}
def late_common(typ):
    t = vT
    k.label(f"L_{typ}")
    if OPT.get("only") and OPT["only"] != typ: k.e("s_waitcnt vmcnt(0)\ns_endpgm")
    issued.clear(); issued[0] = 10 if typ == "mlp" else 9
    k.seen.clear(); k.vm = list(early_vm[typ]); k.seen.update(k.vm); k.lg = []
    k.e(f"""
    v_and_b32 v{vN}, 15, v{vL}
    v_lshrrev_b32 v{vQ}, 4, v{vL}
    v_lshlrev_b32 v{vL16}, 4, v{vL}
    s_xor_b32 s{sKs}, s{sWR}, s{sWC}
    s_xor_b32 s{sHALF}, s{sTYP}, 1
    s_mov_b32 s{sSpin}, 0x40000
    s_and_b32 s{sT2}, s2, 127
    s_sub_u32 s{sUnit}, 127, s{sT2}
    s_cmp_lt_u32 s{sUnit}, 96
    s_cselect_b32 s{sUnit}, s{sUnit}, 0
    s_cselect_b32 s{sDis}, 0, {OOB}
    s_lshl_b32 s{sT2}, s{sKs}, 2
    v_add_u32 v{t+4}, s{sT2}, v{vQ}
    v_lshrrev_b32 v{t+5}, 1, v{vN}
    v_xor_b32 v{t+5}, v{t+4}, v{t+5}
    v_lshlrev_b32 v{t+5}, 4, v{t+5}
    v_lshl_add_u32 v{t+5}, v{vN}, 7, v{t+5}
    s_lshl_b32 s{sT1}, s{sWC}, 13
    s_add_u32 s{sT1}, s{sT1}, {L_X}
    v_add_u32 v{vXa}, s{sT1}, v{t+5}
    v_xor_b32 v{vXb}, 64, v{vXa}
    """)

issued = {}
mk = {}
def dma(vo, rs, so, imm, sl, tgt, tag, fl, pre=None):
    def f1():
        k.e(f"s_add_u32 m0, s{sl}, {tgt - imm}")
        if pre: k.e(pre)
    def f2():
        if isinstance(tag, tuple): issued[tag[1]] = issued.get(tag[1], 0) + 1
        k.vmem(f"buffer_load_dwordx4 v{vo}, s[{rs}:{rs+3}], s{so} offen offset:{imm} {fl} lds", tag)
    return [F(f1, 2 if pre else 1), F(f2, 2, sep=True, ta=66)]
def run(ops):
    for op in ops:
        for f in (op if isinstance(op, list) else [op]):
            if f.sep: k.e("s_nop 0")
            f()
def flat(ops): return [f for op in ops for f in (op if isinstance(op, list) else [op])]
def advance(typ, stage):
    d = 64*3072 if typ == "mlp" else 128
    G = OPT["rotg"]
    if stage not in [10 - (10*g) // G for g in range(1, G)]:
        return f"s_add_u32 s{sX}, s{sX}, 128\ns_add_u32 s{sB0}, s{sB0}, {d}\ns_add_u32 s{sB2}, s{sB2}, {d}"
    return (f"s_cmp_eq_u32 s{sSig}, {10 - stage} | s_cselect_b32 s{sT3}, {-9*128 & 0xffffffff}, s{sDX} | s_cselect_b32 s{sT2}, {-9*d & 0xffffffff}, s{sDW}\n"
            f"s_add_u32 s{sX}, s{sX}, s{sT3}\ns_add_u32 s{sB0}, s{sB0}, s{sT2}\ns_add_u32 s{sB2}, s{sB2}, s{sT2}")
def rot_setup(typ):
    d = 64*3072 if typ == "mlp" else 128
    G = OPT.get("rotg", 0)
    if G == 0: rotsel = f"""    s_mul_i32 s{sT0}, s{sI8}, 5
    s_lshr_b32 s{sT0}, s{sT0}, 2
    s_mul_i32 s{sT1}, s{sML}, 5
    s_lshr_b32 s{sT1}, s{sT1}, 1
    s_add_u32 s{sT0}, s{sT0}, s{sT1}
    s_and_b32 s{sT1}, s{sMT}, 3
    s_add_u32 s{sSig}, s{sT0}, s{sT1}
    s_sub_u32 s{sT0}, s{sSig}, 10
    s_cmp_ge_u32 s{sSig}, 10
    s_cselect_b32 s{sSig}, s{sT0}, s{sSig}
    s_mul_i32 s{sSig}, s{sSig}, {OPT['rot1']}
    """
    else:
        rotsel = f"s_add_u32 s{sT0}, s{sI8}, s{sML}\ns_and_b32 s{sT0}, s{sT0}, {G-1}\ns_mul_i32 s{sT0}, s{sT0}, 10\ns_lshr_b32 s{sSig}, s{sT0}, {G.bit_length()-1}"
    k.e(f"""
    {rotsel}
    s_lshl_b32 s{sT0}, s{sSig}, 7
    s_add_u32 s{sX}, s{sX}, s{sT0}
    s_mul_i32 s{sT0}, s{sSig}, {d}
    s_add_u32 s{sB0}, s{sB0}, s{sT0}
    s_add_u32 s{sB2}, s{sB2}, s{sT0}
    s_movk_i32 s{sDX}, 128
    s_mov_b32 s{sDW}, {d}
    """)
def dma_x(stage, g):
    return dma(vDX0 + (g & 1), rX, sX, (g >> 1) * 1280, sLX, L_X + (stage % 3) * XS + g * 1024, ("st", stage), OPT.get("nt_x", "") if stage < OPT.get("nt_n", 99) else "")
def dma_w(typ, stage, g):
    base = L_W + (stage % 3) * WSL
    if typ == "mlp":
        rg, cg = g // 3, g % 3
        return dma(vDW + rg, rW, sB2 if rg else sB0, cg * 128, sLW, base + cg * 8192 + rg * 1024, ("st", stage), OPT["nt_dma"] if stage < OPT.get("nt_n", 99) else "")
    imm = 2560 if (g < 4 and g & 1) else 0
    return dma(vDW + (1 if g == 4 else 0), rW, sB2 if g in (2, 3) else sB0, imm, sLW, base + g * 2048, ("st", stage), OPT["nt_dma"] if stage < OPT.get("nt_n", 99) else "")
def dma_stage(typ, stage):
    nw = 6 if typ == "mlp" else 5
    ops = merge([dma_x(stage, g) for g in range(4)], [dma_w(typ, stage, g) for g in range(nw)])
    if stage > 0: ops[0] = lines(advance(typ, stage)) + ops[0]
    return ops
sPB = 98
def pf(a):
    def f():
        k.vmem(f"global_load_dword v{vJunk}, v{vPF}, s[{sPB}:{sPB+1}] {OPT['nt_pf']}", "pf")
        k.e(f"v_add_u32 v{vPF}, s{sDX}, v{vPF}\nv_min_u32 v{vPF}, s{sDW}, v{vPF}")
    return F(f, 4, ta=130)

def frag_reads(typ, stage, blk, fs):
    slot = stage % 3
    nr = 6 if typ == "mlp" else 5
    vx = vXa if blk == 0 else vXb
    xr = [DSF(f"ds_read_b128 {A(aF[fs] + 24 + 4*j, 4)}, v{vx} offset:{slot*XS + j*2048}") for j in range(4)]
    wr_ = []
    for i in range(nr):
        if typ == "mlp":
            for h in range(2):
                wr_.append(DSF(f"ds_read_b64_tr_b16 {A(aF[fs] + 4*i + 2*h, 2)}, v{vWA + blk*4 + (i & 3)} offset:{slot*WSL + (i >> 2)*8192 + h*512}"))
        else:
            wr_.append(DSF(f"ds_read_b128 {A(aF[fs] + 4*i, 4)}, v{vWA + blk} offset:{slot*WSL + i*2048}"))
    return merge(xr, wr_)

def mfmas(typ, stage, blk, fs):
    nr = 6 if typ == "mlp" else 5
    first = stage == 0
    out = []
    Af = lambda i: A(aF[fs] + 4*i, 4)
    Bf = lambda j: A(aF[fs] + 24 + 4*j, 4)
    for i in range(nr):
        for j in range(4):
            c = "0" if (first and blk == 0) else V(acc(i, j), 4)
            out.append(f"v_mfma_f32_16x16x32_bf16 {V(acc(i,j),4)}, {Af(i)}, {Bf(j)}, {c}")
    if blk == 1 and (2 not in OPT.get('x', ()) or stage == NST - 1):
        for i in range(nr):
            out.append(f"v_mfma_f32_16x16x32_bf16 {A(aCS+4*i,4)}, {Af(i)}, {A(aONE,4)}, {'0' if first else A(aCS+4*i,4)}")
    if blk == 1 and stage == NST - 1: out = out[-nr:] + out[:-nr]
    return out

XR = 124
def touch_all(typ):
    t = vT + 8
    if typ == "ssm":
        k.e(f"""
        s_lshl_b32 s{sT0}, s2, 2
        s_add_u32 s{sT0}, s{sT0}, s{sW}
        s_mul_i32 s{sT0}, s{sT0}, {40*128}
        v_min_u32 v{t}, 39, v{vL}
        s_mov_b64 s[{sT2}:{sT3}], s[{pX}:{pX+1}]
        """)
    else:
        k.e(f"""
        s_and_b32 s{sT0}, s2, 127
        s_lshl_b32 s{sT1}, s{sT0}, 1
        s_add_u32 s{sT1}, s{sT1}, s{sWC}
        s_mul_i32 s{sT1}, s{sT1}, {60*128}
        s_mul_i32 s{sT0}, s{sT0}, {50*128}
        s_cmp_eq_u32 s{sWC}, 0
        s_cselect_b64 s[{sT2}:{sT3}], s[{pBre}:{pBre+1}], s[{pBim}:{pBim+1}]
        s_cmp_eq_u32 s{sWR}, 0
        s_cselect_b32 s{sT0}, s{sT0}, s{sT1}
        s_cselect_b32 s{sT1}, 49, 59
        s_cselect_b64 s[{sT2}:{sT3}], s[{sT2}:{sT3}], s[{pW1}:{pW1+1}]
        v_min_u32 v{t}, s{sT1}, v{vL}
        """)
    k.e(f"v_lshlrev_b32 v{t}, 7, v{t}\nv_add_u32 v{t}, s{sT0}, v{t}")
    if OPT["tch"] >= 3: k.e(f"v_mov_b32 v{vPF}, v{t}\ns_mov_b64 s[{sPB}:{sPB+1}], s[{sT2}:{sT3}]")
    else: k.vmem(f"global_load_dword v{vJunk}, v{t}, s[{sT2}:{sT3}] {OPT['nt_pf']}", "tch")
def touch_two(typ):
    t = vT + 9
    if typ == "mlp":
        k.e(f"""
        s_and_b32 s{sT0}, s2, 127
        s_lshl_b32 s{sT0}, s{sT0}, 2
        s_add_u32 s{sT0}, s{sT0}, s{sW}
        s_mul_i32 s{sT0}, s{sT0}, {30*128}
        v_min_u32 v{t}, 29, v{vL}
        s_mov_b64 s[{sT2}:{sT3}], s[{pW2}:{pW2+1}]
        """)
    else:
        k.e(f"""
        s_lshl_b32 s{sT0}, s2, 1
        s_add_u32 s{sT0}, s{sT0}, s{sWR}
        s_mul_i32 s{sT0}, s{sT0}, {25*128}
        v_min_u32 v{t}, 24, v{vL}
        s_cmp_eq_u32 s{sWC}, 0
        s_cselect_b64 s[{sT2}:{sT3}], s[{pCre}:{pCre+1}], s[{pCim}:{pCim+1}]
        """)
    k.e(f"v_lshlrev_b32 v{t}, 7, v{t}\nv_add_u32 v{t}, s{sT0}, v{t}")
    k.vmem(f"global_load_dword v{vJunk}, v{t}, s[{sT2}:{sT3}]", "tch")
def start_loads(typ):
    t = vT
    k.e("s_waitcnt lgkmcnt(0)")
    if OPT["stamps"]: k.e(f"v_writelane_b32 v{vST}, s{sST}, 0")
    stamp(12)
    k.e(f"""
    s_or_b32 s{sT0}, s2, s{sW}
    s_cmp_lg_u32 s{sT0}, 0
    s_cbranch_scc1 L_nononce_{typ}
    s_memrealtime s[{sT0}:{sT1}]
    s_waitcnt lgkmcnt(0)
    s_or_b32 s{sT0}, s{sT0}, 1
    v_mov_b32 v{t+8}, s{sT0}
    v_mov_b32 v{t+9}, 0
    global_store_dword v{t+9}, v{t+8}, s[{pDbg}:{pDbg+1}] sc1
    L_nononce_{typ}:
    """)
    srd(rX, pX, 2048 * 1280)
    if typ == "mlp": srd(rW, pW1, 640 * 3072)
    else:
        k.e(f"""
        s_cmp_eq_u32 s{sWC}, 0
        s_cselect_b32 s{rW}, s{pBre}, s{pBim}
        s_cselect_b32 s{rW+1}, s{pBre+1}, s{pBim+1}
        s_mov_b32 s{rW+2}, {640*1280}
        s_mov_b32 s{rW+3}, 0x20000
        """)
    if OPT['pf']:
        assert OPT['rotg'] == 1
        k.e(f"s_cmp_eq_u32 s{sW}, 3\ns_cselect_b64 s[{sPB}:{sPB+1}], s[{rX}:{rX+1}], s[{rW}:{rW+1}]")
        for _ in range(OPT['pfa'][0]): pf(0)()
    if OPT.get("tch") == 1: touch_all(typ)
    if OPT["rsp"] >= 3: run(xr_loads())
    run(dma_stage(typ, 0))
    if OPT["rsp"] in (1, 2):
        xr_setup(); run(xr_loads())
    if OPT.get("tch") >= 2: touch_all(typ)
    if OPT.get("t2"): touch_two(typ)
    if OPT['pf']:
        for _ in range(OPT['pfa'][1]): pf(0)()
    if OPT['xr0']: run(xr_loads())
    stamp(13)
    if OPT.get("stlb", 1):
        k.e(f"s_lshl_b32 s{sT0}, s2, 7\ns_add_u32 s{sT0}, s{sT0}, {WS_HF + 32768}\ns_load_dword s{sNonce}, s[{pWs}:{pWs+1}], s{sT0} {'glc' if OPT.get('stlb') == 2 else ''}")
    srd(rWS, pWs, WS_SIZE)
    if OPT.get('wsoff'): k.e(f"s_add_u32 s{rWS}, s{rWS}, {OPT['wsoff'] << 20}\ns_addc_u32 s{rWS+1}, s{rWS+1}, 0")
def xr_setup():
    k.e(f"""
    s_lshl_b32 s{sT0}, s{sTYP}, 3
    s_add_u32 s{sT0}, s{sT0}, s{sNT}
    s_lshl_b32 s{sT0}, s{sT0}, 2
    s_add_u32 s{sT0}, s{sT0}, s{sW}
    s_lshl_b32 s{sT0}, s{sT0}, 1
    s_lshl_b32 s{sT1}, s{sMT}, 7
    s_add_u32 s{sHw}, s{sT0}, s{sT1}
    s_mul_i32 s{sH}, s{sHw}, 1280
    v_lshrrev_b32 v{XR+10}, 5, v{vL}
    v_mul_u32_u24 v{XR+10}, 1280, v{XR+10}
    v_and_b32 v{XR+11}, 31, v{vL}
    v_lshl_add_u32 v{XR+11}, v{XR+11}, 3, v{XR+10}
    v_lshlrev_b32 v{XR+13}, 1, v{XR+11}
    v_sub_u32 v{XR+10}, v{XR+13}, v{XR+10}
    """)
def xr_loads():
    return [VM(f"buffer_load_dwordx4 {V(XR+4*i,4)}, v{XR+10}, s[{rX}:{rX+3}], s{sH} offen offset:{512*i}", "xr") for i in range(2)] + \
           [VM(f"buffer_load_dwordx2 {V(XR+8,2)}, v{XR+11}, s[{rX}:{rX+3}], s{sH} offen offset:1024", "xr", ta=40)]
def small_dma(ptr, size, soff, tgt, lanes):
    srd(rT2, ptr, size)
    k.e(f"s_mov_b32 m0, {tgt}\ns_mov_b32 exec_lo, {(1 << lanes) - 1}\ns_mov_b32 exec_hi, 0")
    k.vmem(f"buffer_load_dwordx4 v{vL16}, s[{rT2}:{rT2+3}], s{soff} offen lds", "sm")
    k.e("s_mov_b64 exec, -1")
def touch_setup():
    t = 98
    srd(rT2, pCre, 640 * 1280)
    k.e(f"""
    s_mov_b64 s[{sEx}:{sEx+1}], s[{pCim}:{pCim+1}]
    s_and_b32 s{sT0}, s2, 31
    s_lshl_b32 s{sT0}, s{sT0}, 2
    s_add_u32 s{sT0}, s{sT0}, s{sW}
    s_mul_i32 s{sT0}, s{sT0}, {50*128}
    s_xor_b32 s{sT1}, s{sDis}, {OOB}
    s_or_b32 s{sT0}, s{sT0}, s{sT1}
    v_min_u32 v{t}, 49, v{vL}
    v_lshlrev_b32 v{t}, 7, v{t}
    v_add_u32 v{t}, s{sT0}, v{t}
    """)
def touch_c():
    ld = f"buffer_load_dword v{vJunk}, v98, s[{rT2}:{rT2+3}], 0 offen"
    return [VM(ld, "jk", ta=20)] + lines(f"s_mov_b32 s{rT2}, s{sEx}\ns_mov_b32 s{rT2+1}, s{sEx+1}") + [VM(ld, "jk", ta=20)]
def small_loads(typ):
    k.e(f"s_mul_i32 s{sT0}, s{sDT}, 160")
    small_dma(pDsk, 1280, sT0, L_DB, 10)
    small_dma(pB2, 1280, sT0, L_DB + 160, 10)
    if typ == "mlp":
        k.e(f"s_mul_i32 s{sT0}, s{sNT}, 384")
        small_dma(pB1, 3072, sT0, L_B1, 24)

def pf_setup(typ):
    t = vT + 10
    PS = OPT["pf"]
    k.e(f"""
    v_mul_u32_u24 v{t}, 52, v{vL}
    v_lshrrev_b32 v{t}, 10, v{t}
    v_mul_u32_u24 v{t+1}, 20, v{t}
    v_sub_u32 v{t+1}, v{vL}, v{t+1}
    v_min_u32 v{t}, {PS - 1}, v{t}
    s_lshl_b32 s{sT0}, s{sMT}, 7
    s_lshl_b32 s{sT1}, s{sI8}, 4
    s_add_u32 s{sT0}, s{sT0}, s{sT1}
    s_mul_i32 s{sT0}, s{sT0}, 1280
    s_add_u32 s{sT0}, s{sT0}, {128*OPT['pf0']}
    """)
    if typ == "mlp":
        k.e(f"""
        s_lshl_b32 s{sT1}, s{sML}, 4
        s_add_u32 s{sT1}, s{sT1}, {64*OPT['pf0']}
        s_mul_i32 s{sT1}, s{sT1}, 3072
        s_mul_i32 s{sT2}, s{sNT}, 384
        s_add_u32 s{sT1}, s{sT1}, s{sT2}
        s_lshl_b32 s{sT2}, s{sW}, 7
        s_add_u32 s{sT1}, s{sT1}, s{sT2}
        s_cmp_eq_u32 s{sW}, 3
        s_cselect_b32 s{sT0}, s{sT0}, s{sT1}
        s_mov_b32 s{sT2}, {64*3072}
        s_cselect_b32 s{sT2}, 128, s{sT2}
        s_mov_b32 s{sT3}, 3072
        s_cselect_b32 s{sT3}, 1280, s{sT3}
        s_mov_b32 s{sDW}, {640*3072 - 128}
        s_cselect_b32 s{sDW}, {2048*1280 - 128}, s{sDW}
        v_min_u32 v{t+1}, 15, v{t+1}
        """)
    else:
        k.e(f"""
        s_mul_i32 s{sT1}, s{sNT}, 80
        s_mul_i32 s{sT2}, s{sML}, 20
        s_add_u32 s{sT1}, s{sT1}, s{sT2}
        s_mul_i32 s{sT1}, s{sT1}, 1280
        s_add_u32 s{sT1}, s{sT1}, {128*OPT['pf0']}
        s_cmp_eq_u32 s{sW}, 3
        s_cselect_b32 s{sT0}, s{sT0}, s{sT1}
        s_cselect_b32 s{sT1}, 15, 19
        s_mov_b32 s{sDW}, {640*1280 - 128}
        s_cselect_b32 s{sDW}, {2048*1280 - 128}, s{sDW}
        s_cmp_eq_u32 s{sW}, 2
        s_cselect_b32 s{sT1}, 0, s{sT1}
        v_min_u32 v{t+1}, s{sT1}, v{t+1}
        s_mov_b32 s{sT2}, 128
        s_mov_b32 s{sT3}, 1280
        """)
    k.e(f"""
    s_mul_i32 s{sDX}, s{sT2}, {PS}
    v_mul_lo_u32 v{vPF}, v{t}, s{sT2}
    v_mul_lo_u32 v{t+2}, v{t+1}, s{sT3}
    v_add_u32 v{vPF}, v{vPF}, v{t+2}
    v_add_u32 v{vPF}, s{sT0}, v{vPF}
    """)

BOTH = OPT["rpown"] == "both"
NRP = 3 if BOTH else 5
def owns(typ): return BOTH or OPT["rpown"] == typ
def repack_setup(tag):
    t = vT
    odd = 1 if tag == "ssm" else 0
    k.e(f"""
    v_lshrrev_b32 v{t}, 3, v{vL}
    v_and_b32 v{t+1}, 7, v{vL}
    v_mul_u32_u24 v{t}, 1280, v{t}
    v_lshl_add_u32 v{t}, v{t+1}, 4, v{t}
    v_or_b32 v{vDR}, s{sDis}, v{t}
    v_or_b32 v{vRS}, s{sDis}, v{vL16}
    s_lshl_b32 s{sT0}, s{sWR}, 26
    v_or_b32 v{vRA+1}, s{sT0}, v{vRS}
    s_lshl_b32 s{sLR}, s{sW}, 10
    s_and_b32 s{sT0}, s{sUnit}, 1
    s_lshr_b32 s{sT1}, s{sUnit}, 1
    s_mov_b32 s{rT+3}, 0x20000
    s_mov_b32 s{rT}, s{pW2}
    s_mov_b32 s{rT+1}, s{pW2+1}
    s_mov_b32 s{rT+2}, {1536*1280}
    s_lshl_b32 s{sT2}, s{sT1}, 2
    s_add_u32 s{sT2}, s{sT2}, s{sW}
    s_mul_i32 s{sRpSrc}, s{sT2}, {8*1280}
    s_mul_i32 s{sT2}, s{sT1}, 5462
    s_lshr_b32 s{sT2}, s{sT2}, 16
    s_mul_i32 s{sT2}, s{sT2}, 10
    s_add_u32 s{sT1}, s{sT1}, s{sT2}
    s_mul_i32 s{sT1}, s{sT1}, 5120
    s_add_u32 s{sT1}, s{sT1}, {WS_WP}
    s_mul_i32 s{sT2}, s{sT0}, 20
    s_add_u32 s{sT2}, s{sT2}, s{sW}
    s_add_u32 s{sT2}, s{sT2}, {10 * odd if BOTH else 0}
    """)
    for i in range(NRP):
        k.e(f"""
        s_mul_i32 s{sT3}, s{sT2}, 13108
        s_lshr_b32 s{sT3}, s{sT3}, 16
        s_mul_i32 s{sT3}, s{sT3}, 435
        s_add_u32 s{sT3}, s{sT3}, s{sT2}
        s_lshl_b32 s{sT3}, s{sT3}, 10
        s_add_u32 s{sRpD+i}, s{sT3}, s{sT1}
        s_add_u32 s{sT2}, s{sT2}, 4
        """)
    k.e(f"""
    v_lshrrev_b32 v{t}, 2, v{vN}
    v_lshl_add_u32 v{t}, v{vQ}, 2, v{t}
    v_lshlrev_b32 v{t}, 7, v{t}
    v_and_b32 v{t+1}, 3, v{vN}
    v_lshl_add_u32 v{t}, v{t+1}, 3, v{t}
    s_lshl_b32 s{sT2}, s{sW}, 5
    s_add_u32 s{sT2}, s{sT2}, {L_STG}
    """)
    if BOTH and odd:
        k.e(f"s_mul_i32 s{sT3}, s{sWR}, {4096 - 128}\ns_add_u32 s{sT2}, s{sT2}, s{sT3}\ns_add_u32 s{sT2}, s{sT2}, 64")
    k.e(f"""
    v_add_u32 v{vRA}, s{sT2}, v{t}
    s_mul_i32 s{sT0}, s{sT0}, 640
    s_add_u32 s{sRpSrc}, s{sRpSrc}, s{sT0}
    s_add_u32 s{sRpSrc}, s{sRpSrc}, {256 * odd if BOTH else 0}
    """)
    if BOTH: k.e(f"s_lshl_b32 s{sUnit}, s{sUnit}, 1\ns_add_u32 s{sUnit}, s{sUnit}, {odd}")
def repack_dma():
    return [dma(vDR, rT, sRpSrc, g * 128, sLR, L_STG + g * 4096, "rp%d" % (g + 5 - NRP), OPT["nt_rp"]) for g in range(NRP)]
RP = 136
def repack_read(tag):
    return [DSF(f"ds_read_b64_tr_b16 {V(RP+4*i+2*h,2)}, v{vRA} offset:{i*4096 + h*2048}") for i in range(NRP) for h in range(2)]
def repack_store(tag):
    return [VM(f"buffer_store_dwordx4 {V(RP+4*i,4)}, v{vRA+1 if BOTH and i == 2 else vRS}, s[{rWS}:{rWS+3}], s{sRpD+i} offen sc1", ("rps", i + 5 - NRP), ta=240) for i in range(NRP)]
def repack_flag():
    t = vT
    pre = lines(f"""
    v_mov_b32 v{t}, s{sNonce}
    v_mov_b32 v{t+1}, s{sNonce}
    s_lshl_b32 s{sRpSrc}, s{sUnit}, 7
    s_lshl_b32 s{sT1}, s{sW}, 4
    s_add_u32 s{sRpSrc}, s{sRpSrc}, s{sT1}
    s_add_u32 s{sRpSrc}, s{sRpSrc}, {WS_RF}
    s_add_u32 s{sRpSrc}, s{sRpSrc}, 16384
    v_lshlrev_b32 v{t+2}, 26, v{vL}
    v_or_b32 v{t+2}, s{sDis}, v{t+2}
    """)
    def f():
        k.wait_vm(("rps", 4))
        k.vmem(f"buffer_store_dwordx2 {V(t,2)}, v{t+2}, s[{rWS}:{rWS+3}], s{sRpSrc} offen sc1", "rf")
    return pre, F(f, 3, ta=20)

def bfr(d, s): return f"v_cvt_pk_bf16_f32 v{d}, v{s}, v{s}\nv_and_b32 v{d}, 0xffff0000, v{d}\n"
def nonce_load():
    return lines(f"v_mov_b32 v{vNc}, 0") + [VM(f"global_load_dword v{vNc}, v{vNc}, s[{pDbg}:{pDbg+1}] sc1", "nc", ta=20)]
nonce_step = {}
def rowstat_job(tag):
    t = vT + 20
    S_, Q, MEAN, VAR, S1, X, Y = t, t+1, t+2, t+3, t+4, t+5, t+6
    G0, G1 = t+8, t+12
    M1, A1, A2, AM = G0, G0+2, G1, G1+2
    def dots():
        k.wait_vm("xr")
        s = f"v_mov_b32 v{X}, 0x3f803f80\nv_mov_b32 v{S_}, 0\nv_mov_b32 v{Q}, 0\n"
        for i in range(10): s += f"v_dot2c_f32_bf16 v{S_}, v{XR+i}, v{X}\nv_dot2c_f32_bf16 v{Q}, v{XR+i}, v{XR+i}\n"
        s += "s_nop 2\n"
        k.e(s)
    fl = [F(dots, 24)]
    if OPT["nodot"]:
        S2, Q2, U0, U1 = MEAN, VAR, X, Y
        tx = ""
        for i in range(10):
            tx += f"v_lshlrev_b32 v{U0}, 16, v{XR+i}\nv_and_b32 v{U1}, 0xffff0000, v{XR+i}\n"
            if i == 0: tx += f"v_mov_b32 v{S_}, v{U0}\nv_mov_b32 v{S2}, v{U1}\nv_mul_f32 v{Q}, v{U0}, v{U0}\nv_mul_f32 v{Q2}, v{U1}, v{U1}\n"
            else: tx += f"v_add_f32 v{S_}, v{S_}, v{U0}\nv_add_f32 v{S2}, v{S2}, v{U1}\nv_fmac_f32 v{Q}, v{U0}, v{U0}\nv_fmac_f32 v{Q2}, v{U1}, v{U1}\n"
        tx += f"v_add_f32 v{S_}, v{S_}, v{S2}\nv_add_f32 v{Q}, v{Q}, v{Q2}\nv_mov_b32 v{U0}, 0"
        fl = [F(lambda: k.wait_vm("xr"), 1)] + lines(tx)
    for d in ("row_shr:1", "row_shr:2", "row_shr:4", "row_shr:8", "row_bcast:15"):
        rm = "0xa" if "bcast" in d else "0xf"
        fl.append(F(lambda d=d, rm=rm: k.e(f"v_add_f32_dpp v{S_}, v{S_}, v{S_} {d} row_mask:{rm} bank_mask:0xf bound_ctrl:0"), 1, sep=True))
        fl.append(F(lambda d=d, rm=rm: k.e(f"v_add_f32_dpp v{Q}, v{Q}, v{Q} {d} row_mask:{rm} bank_mask:0xf bound_ctrl:0"), 1))
    fl += lines(f"""
    v_mul_f32 v{MEAN}, {hx(1/640)}, v{S_}
    v_mul_f32 v{VAR}, {hx(1/640)}, v{Q}
    v_fma_f32 v{VAR}, -v{MEAN}, v{MEAN}, v{VAR}
    v_max_f32 v{VAR}, 0, v{VAR}
    {bfr(M1, MEAN)}{bfr(X, VAR)}
    v_add_f32 v{X}, {hx(1e-5)}, v{X}
    {bfr(X, X)}
    v_sqrt_f32 v{X}, v{X}
    v_sub_f32 v{Y}, v{MEAN}, v{M1}
    {bfr(S1, X)}
    v_rcp_f32 v{A1}, v{S1}
    s_nop 0
    v_mul_f32 v{Y}, v{Y}, v{A1}
    v_mul_f32 v{X}, v{VAR}, v{A1}
    {bfr(Y, Y)}
    v_mul_f32 v{X}, v{X}, v{A1}
    {bfr(X, X)}
    v_add_f32 v{X}, {hx(1e-5)}, v{X}
    {bfr(X, X)}
    v_sqrt_f32 v{X}, v{X}
    v_fma_f32 v{Y}, v{Y}, v{S1}, v{M1}
    {bfr(X, X)}
    v_mul_f32 v{X}, v{X}, v{S1}
    v_rcp_f32 v{A2}, v{X}
    v_and_b32 v{X}, 31, v{vL}
    v_mul_f32 v{AM}, v{A2}, v{Y}
    v_sub_u32 v{X}, 31, v{X}
    v_and_b32 v{Y}, 32, v{vL}
    v_lshl_add_u32 v{X}, v{X}, 26, v{Y}
    s_lshl_b32 s{sT0}, s{sHw}, 5
    s_add_u32 s{sT0}, s{sT0}, {WS_RS}
    """)
    def nonce():
        k.wait_vm("nc")
        k.e(f"""
        v_readfirstlane_b32 s{sNonce}, v{vNc}
        s_cmp_lg_u32 s{sNonce}, 0
        s_cbranch_scc1 L_ncok_{tag}
        L_ncl_{tag}:
        s_sleep 1
        global_load_dword v{vNc}, v{vNc}, s[{pDbg}:{pDbg+1}] sc1
        s_sub_u32 s{sSpin}, s{sSpin}, 1
        s_cbranch_scc1 L_end
        s_waitcnt vmcnt(0)
        v_readfirstlane_b32 s{sNonce}, v{vNc}
        s_cmp_eq_u32 s{sNonce}, 0
        s_cbranch_scc1 L_ncl_{tag}
        L_ncok_{tag}:
        s_nop 0
        """)
    nonce_step[tag] = F(nonce, 4)
    fl += lines(f"""
    v_mov_b32 v{G0+1}, s{sNonce}
    v_mov_b32 v{G0+3}, s{sNonce}
    v_mov_b32 v{G1+1}, s{sNonce}
    v_mov_b32 v{G1+3}, s{sNonce}
    """)
    fl.append(VM(f"buffer_store_dwordx4 {V(G0,4)}, v{X}, s[{rWS}:{rWS+3}], s{sT0} offen sc1", "rs", ta=20))
    fl.append(VM(f"buffer_store_dwordx4 {V(G1,4)}, v{X}, s[{rWS}:{rWS+3}], s{sT0} offen offset:16 sc1", "rs", ta=20))
    return fl
RSV = 124
def rowstat_fetch():
    fl = lines(f"""
    s_lshl_b32 s{sT0}, s{sMT}, 12
    s_add_u32 s{sT0}, s{sT0}, {WS_RS}
    v_lshlrev_b32 v{RSV+4}, 4, v0
    v_add_u32 v{RSV+4}, s{sT0}, v{RSV+4}
    """)
    return fl + [VM(f"buffer_load_dwordx4 {V(RSV,4)}, v{RSV+4}, s[{rWS}:{rWS+3}], 0 offen sc1", "rsv")]

def ta_of(op): return sum(f.ta for f in flat([op]))
def main_loop(typ, jobs, vq, bg):
    q = [(max(0, 2*st - 5), max(2*st - 4 + (x >= 5) - OPT.get('lag', 0), x >= 5), op) for st in range(2, NST) for x, op in enumerate(dma_stage(typ, st))]
    if OPT.get("burst"):
        q = [(e_, e_ if e_ else d_, op) for e_, d_, op in q]
        ring_ids = {id(x[2]) for x in q}
    q = sorted(q + vq, key=lambda x: x[1])
    credit = [OPT.get("credit0", 0)]
    def take(bi, n):
        credit[0] = min(credit[0] + n * 17 * OPT["util"], n * 17 + 100) - sum(ta_of(x) for x in jobs.get(("pre", bi), []) + jobs.get(bi, []))
        out = []
        while True:
            c = [x for x in q if x[0] <= bi]
            if OPT.get("burst") and bi % 2 == 1 and bi < 15: c = [x for x in c if id(x[2]) in ring_ids or x[1] <= bi]
            if not c or ((credit[0] < 33 or len(out) >= (OPT['ctail'] if typ == 'ssm' and bi >= 15 else OPT.get('cap', 6))) and c[0][1] > bi): break
            q.remove(c[0]); out.append(c[0][2]); credit[0] -= ta_of(c[0][2])
        if OPT.get('show'): print(typ, bi, len(out), len(jq), len(bg), int(credit[0]), dict(issued))
        return flat(out)
    jq = []
    stamp(15)
    if OPT["rsp"] in (1, 3): run(jobs["rsmath"])
    tl = VM(f"global_load_dword v{vJunk}, v{vPF}, s[{sPB}:{sPB+1}]", "tch", ta=120)
    st1 = dma_stage(typ, 1)
    if OPT["tch"] == 4: st1.insert(5, [tl])
    run(st1)
    if OPT["tch"] == 3: tl()
    if OPT["rsp"] in (2, 4): run(jobs["rsmath"])
    if OPT['pf']:
        for _ in range(OPT['pfa'][2]): pf(0)()
    stamp(62)
    k.wait_vm(("st", 0)); k.e("s_barrier")
    stamp()
    run(frag_reads(typ, 0, 0, 0))
    def block(bi, m, reads, n):
        curblk[0] = bi
        run(jobs.get(("pre", bi), []))
        while bg and bg[0].atpre: bg.pop(0)()
        if bi == 2*NST - 1:
            jobs["tail"] = jobs["tail"] + prew; prew.clear()
        for _ in range(OPT["wpre"]):
            if prew: prew.pop(0)()
        jq.extend(jobs.get(bi, []))
        jq[:0] = jobs.get(("front", bi), [])
        d = take(bi, n)
        n = len(m)
        if bi == 2*NST - 1: reads, r0 = jobs["last"], 9
        else: r0 = 0
        sched(m, [(d, 0, n - 1 if not (OPT.get("burst") and bi % 2 == 0 and bi < 15) else n * OPT["burst"], True), (reads, r0, n - OPT.get("rend", 6), True), (jobs["tail"] if r0 else [], 0, 9 if len(jobs["tail"]) < 11 else n - 5, True), (jq, 0, n, False), (bg if bi >= OPT.get("bg0", 1) else [], 0, n, False)])
    for s in range(NST):
        k.wait_lg()
        m = mfmas(typ, s, 0, 0)
        block(2*s, m, frag_reads(typ, s, 1, 1), len(m))
        k.wait_lg()
        m = mfmas(typ, s, 1, 1)
        k.e(m[0]); k.e(m[1])
        if s + 1 < NST:
            if OPT.get("fine"): stamp(16 + 3*s)
            assert issued.get(s + 1, 0) == (10 if typ == "mlp" else 9), (typ, s, issued)
            for tg in jobs.get(("wait", s), []): assert tg in k.seen, tg
            k.wait_vm([("st", s + 1)] + jobs.get(("wait", s), []))
            if OPT.get("fine"): stamp(17 + 3*s)
            k.e("s_barrier")
        block(2*s + 1, m[2:], frag_reads(typ, s + 1, 0, 0) if s + 1 < NST else [], len(m))
    assert not jq and (len(bg) < 12 or OPT.get('x')), (len(jq), len(bg))
    run(bg)
    assert not prew
    stamp()
    if OPT["stop"] == "loop":
        k.e("s_branch L_fin"); k.seen.update(["rsv", ("rps", 4), "b1"])
    return [x[2] for x in q]

WSLOT = [("a", 108 + 20*x) for x in range(7)] + [("a", 20*x) for x in range(5)] + [("v", 100 + 20*x) for x in range(3)]
NREG = 15
def wreg(tk): return WSLOT[tk]
def kaddr(dst, base, tk, stride):
    return lines(f"s_cmp_gt_u32 s{sLim}, {tk} | s_cselect_b32 s{dst}, s{base}, s{base+1}\ns_add_u32 s{dst}, s{dst}, {tk*stride}")
def wload(tk):
    kind, base = wreg(tk)
    out = []
    for i in range(5):
        op = []
        if i == 0: op += kaddr(sT2, sWa, tk, 5120) if cur[0] == "mlp" else lines(f"s_add_u32 s{sT2}, s{sLim+1}, {tk*5120}")
        if i == 4: op += lines(f"s_add_u32 s{sT2}, s{sT2}, 4096")
        op.append(VM(f"buffer_load_dwordx4 {R(kind, base+4*i, 4)}, v{vL16}, s[{rWS}:{rWS+3}], s{sT2} offen offset:{(i & 3)*1024} sc1", ("w", tk)))
        out.append(op)
    return out
RFV = 24
sWLb, sTx = 34, 35
MV = OPT["mv"]
NK = {"mlp": 12 - MV, "ssm": 10 + MV}
def p2_addr(typ):
    n_ = NK[typ]; k0 = 0 if typ == "mlp" else 12
    if typ == "mlp":
        k.e(f"""
        v_min_u32 v{vT+2}, {4*n_ - 1}, v{vL}
        s_mul_i32 s{sT0}, s{sW}, {48 if BOTH else 24}
        s_lshr_b32 s{sT1}, s{sDT}, {1 if BOTH else 2}
        s_add_u32 s{sT0}, s{sT0}, s{sT1}
        s_lshl_b32 s{sT0}, s{sT0}, 7
        s_add_u32 s{sT0}, s{sT0}, {WS_RF + 16384}
        v_lshrrev_b32 v{vT}, 2, v{vT+2}
        v_and_b32 v{vT+1}, 3, v{vT+2}
        """)
        k.e(f"v_lshlrev_b32 v{vT}, {9 if BOTH else 8}, v{vT}\nv_lshl_add_u32 v{vT}, v{vT+1}, 4, v{vT}\nv_add_u32 v{RFV}, s{sT0}, v{vT}")
    k.e(f"""
    s_and_b32 s{sT2}, s{sDT}, 3
    s_add_u32 s{sT2}, s{sT2}, s{sML}
    s_and_b32 s{sT2}, s{sT2}, 3
    s_mul_i32 s{sT2}, s{sT2}, {n_ * OPT['rot2'] if typ == 'mlp' else 0}
    s_lshr_b32 s{sT2}, s{sT2}, 2
    s_sub_u32 s{sLim}, {n_ if typ == 'mlp' else 10}, s{sT2}
    s_mul_i32 s{sT0}, s{sW}, 22
    s_add_u32 s{sT0}, s{sT0}, s{sT2}
    s_add_u32 s{sT0}, s{sT0}, {k0}
    s_mul_i32 s{sT1}, s{sDT}, 88
    s_add_u32 s{sT1}, s{sT1}, s{sT0}
    s_mul_i32 s{sT1}, s{sT1}, 5120
    {f"s_add_u32 s{sWa}, s{sT1}, {WS_WP}" if typ == "mlp" else f"s_add_u32 s{sLim+1}, s{sT1}, {WS_WP - n_*5120}"}
    {f"s_sub_u32 s{sWa+1}, s{sWa}, {n_*5120}" if typ == "mlp" else ""}
    s_lshl_b32 s{sT1}, s{sMT}, 1
    s_add_u32 s{sT1}, s{sT1}, s{sHALF}
    s_mul_i32 s{sT2}, s{sT1}, 88
    s_add_u32 s{sT2}, s{sT2}, s{sT0}
    s_lshl_b32 s{sT2}, s{sT2}, 12
    s_add_u32 s{sHa+2}, s{sT2}, {WS_H}
    s_sub_u32 s{sHa+3}, s{sHa+2}, {n_*4096}
    s_{'add' if typ == 'mlp' else 'sub'}_u32 s{sHa}, s{sHa+2}, {88*4096}
    s_sub_u32 s{sHa+1}, s{sHa}, {n_*4096}
    s_mul_i32 s{sWLb}, s{sW}, {WLW}
    s_add_u32 s{sWLb}, s{sWLb}, {L_WL}
    """)
def rflag_fetch(vd):
    k.vmem(f"buffer_load_dwordx2 {V(vd,2)}, v{RFV}, s[{rWS}:{rWS+3}], 0 offen sc1", "rfv")
def check(tag, vaddr, vd, width=2, second=1):
    k.e(f"""
    L_chk_{tag}:
    v_cmp_ne_u32 vcc, s{sNonce}, v{vd + (1 if width == 4 else 0)}
    v_cmp_ne_u32 s[{sT0}:{sT1}], s{sNonce}, v{vd + (3 if width == 4 else 1)}
    s_or_b64 vcc, vcc, s[{sT0}:{sT1}]
    s_cmp_eq_u64 vcc, 0
    s_cbranch_scc1 L_chkok_{tag}
    s_sub_u32 s{sSpin}, s{sSpin}, 1
    s_cbranch_scc1 L_end
    buffer_load_dwordx{width} {V(vd,width)}, v{vaddr}, s[{rWS}:{rWS+3}], 0 offen sc1
    s_waitcnt vmcnt(0)
    s_branch L_chk_{tag}
    L_chkok_{tag}:
    """)
vCD = 20
sCU = [18, 19, 20, 21, 35]
sCs, sCt = 42, 43
def c_setup():
    t = vT
    srd(rT2, pCim, 640 * 1280)
    if owns('ssm'): k.e(f"s_mov_b64 s[{sEx}:{sEx+1}], s[{pCre}:{pCre+1}]")
    else: srd(rT, pCre, 640 * 1280)
    for g in range(5):
        k.e(f"""
        v_add_u32 v{t}, {64*g}, v{vL}
        v_mul_u32_u24 v{t+1}, 3277, v{t}
        v_lshrrev_b32 v{t+1}, 16, v{t+1}
        v_mul_u32_u24 v{t+2}, 20, v{t+1}
        v_sub_u32 v{t+2}, v{t}, v{t+2}
        v_mul_u32_u24 v{t+1}, 1280, v{t+1}
        v_lshl_add_u32 v{vCD+g}, v{t+2}, 4, v{t+1}
        """)
    k.e(f"""
    s_mul_i32 s{sCs}, s{sDT}, {80*1280}
    s_mul_i32 s{sT0}, s{sW}, 320
    s_add_u32 s{sCs}, s{sCs}, s{sT0}
    s_mul_i32 s{sT1}, s{sW}, 5120
    s_add_u32 s{sCU[0]}, s{sT1}, 20480
    s_add_u32 s{sCU[1]}, s{sT1}, 110592
    s_add_u32 s{sCU[2]}, s{sT1}, 57344
    s_add_u32 s{sCU[3]}, s{sT1}, 131072
    s_mov_b32 s{sT0}, 77824
    s_cmp_eq_u32 s{sWR}, 0
    s_cselect_b32 s{sT0}, s{sT0}, 141312
    s_add_u32 s{sCU[4]}, s{sT1}, s{sT0}
    """)
def c_dma(i, rs, tag):
    out = []
    for g in range(5):
        op = lines(f"s_add_u32 s{sCt}, s{sCs}, {i*16*1280}") if g == 0 else []
        out.append(op + lines(f"s_add_u32 m0, s{sCU[i]}, {g*1024}") + [VM(f"buffer_load_dwordx4 v{vCD+g}, s[{rs}:{rs+3}], s{sCt} offen lds", tag, sep=True, ta=80)])
    return out
def c_read(im, B):
    k.e(f"""
    v_mul_u32_u24 v{B[5]}, 320, v{vN}
    v_lshl_add_u32 v{B[2]}, v{vQ}, 4, v{B[5]}
    v_lshrrev_b32 v{B[4]}, 1, v{vQ}
    v_mul_u32_u24 v{B[4]}, 80, v{B[4]}
    v_add_u32 v{B[5]}, v{B[5]}, v{B[4]}
    v_add_u32 v{B[0]}, s{sCU[0]}, v{B[2]}
    v_add_u32 v{B[1]}, s{sCU[1]}, v{B[2]}
    v_add_u32 v{B[2]}, s{sCU[4]}, v{B[2]}
    v_add_u32 v{B[3]}, s{sCU[0]}, v{B[5]}
    v_add_u32 v{B[4]}, s{sCU[1]}, v{B[5]}
    v_add_u32 v{B[5]}, s{sCU[4]}, v{B[5]}
    """)
    where = [(0, 0), (1, 0), (0, 57344 - 20480), (1, 131072 - 110592), (2, 0)]
    for a_ in range(2):
        for wr_ in range(2):
            kind, base = wreg(5*a_ + 2*wr_ + im)
            for i, (b_, o_) in enumerate(where):
                k.ds(f"ds_read_b128 {R(kind, base+4*i, 4)}, v{B[b_]} offset:{o_ + 160*a_ + 80*wr_}", "cr")
    m_ = "0xffff0000" if im else "0x0000ffff"
    k.e(f"s_mov_b32 exec_lo, {m_}\ns_mov_b32 exec_hi, {m_}")
    for a_ in range(2):
        kind, base = wreg(5*a_ + 4)
        for i, (b_, o_) in enumerate(where):
            k.ds(f"ds_read_b128 {R(kind, base+4*i, 4)}, v{B[3+b_]} offset:{o_ + 160*a_ + 64}", "cr")
    k.e("s_mov_b64 exec, -1")

def common_jobs(typ):
    j = {}
    def add(key, items): j[key] = j.get(key, []) + items
    j[0] = nonce_load()
    rj = rowstat_job(typ)
    if OPT["rsp"]:
        j["rsmath"] = rj[:-8]; j[OPT["ncb"]] = rj[-8:]; vq = []
    else:
        xb = OPT.get("xrb", 0)
        j[xb + 3] = rj; vq = [(xb, xb + 1.5, op) for op in xr_loads()]
        j[0] = nonce_load()
    add(("pre", OPT["ncb"]), [nonce_step[typ]])
    if OPT['pf']:
        for bi in OPT['pfb']: add(('pre', bi), [pf(0)])
    if owns(typ):
        r0, rpst, rpfl = OPT["rp_" + typ]
        assert r0 % 2 == 1
        add(("wait", (r0 - 1) // 2), ["rp4"])
        add(("pre", r0), repack_read(typ))
        for f, bi in zip(repack_store(typ), rpst): add(("pre", bi), [f])
        vq += [OPT["rpd_" + typ] + (op,) for op in repack_dma()]
        a_, b_ = repack_flag()
        d_ = {}
        assert OPT['ncb'] < rpfl - 2
        j['front', rpfl - 2] = a_ + [note(d_, 1)]
        if rpfl < 20: add(("pre", rpfl), [F(lambda: d_[1], 0), b_])
        else: j["rpflag"] = b_
        if typ == "ssm":
            assert OPT.get("c0", 12) > r0 + 2
            add(("pre", r0), lines(f"s_mov_b32 s{rT}, s{sEx}\ns_mov_b32 s{rT+1}, s{sEx+1}\ns_mov_b32 s{rT+2}, {640*1280}"))
    if typ == "ssm":
        vq += [(e_, 99, op) for i, e_ in zip((0, 1, 2, 3, 4), (OPT.get("c0", 12), 15, 17, 17, 17)) for op in c_dma(i, rT, "cre")]
    else:
        if OPT["tmlp"] >= 0: add(OPT["tmlp"], touch_c())
        bi = OPT["rf_mlp"]
        RD_ = vT + 4
        if bi <= 20: add(("pre", bi - 1), [F(lambda: rflag_fetch(RD_), 2, ta=50)])
        def chk():
            k.wait_vm("rfv"); check("rf_" + typ, RFV, RD_)
        j["rfchk"] = chk
        if bi < 20:
            add(("pre", bi), [F(chk, 6)])
            vq += [(bi, 99, op) for tk in range(7) for op in wload(tk)]
    stats_jobs(typ, j)
    if 6 in OPT.get("x", ()) and typ == "mlp":
        for bi in range(20): j[("pre", bi)] = [f for f in j.get(("pre", bi), []) if f.ta != 240]
        k.seen.add(("rps", 4))
    keep = OPT.get("keep")
    if keep is not None:
        assert OPT["stop"] == "loop"
        j2 = {"last": j["last"], "tail": j["tail"], "tk": j["tk"]}
        v2 = []
        if "rs" in keep:
            j2[0] = j[0]; j2[3] = j[3]; v2 += [v for v in vq if v[1] == 1.5]
        if "rp" in keep and typ == "mlp":
            for key in j:
                if isinstance(key, tuple) and key[0] == "pre" and key[1] < 12: j2[key] = j[key]
            j2[("wait", 1)] = j[("wait", 1)]
            v2 += [v for v in vq if v[1] == OPT["rpd_mlp"][1]]
        if "c" in keep and typ == "ssm": v2 += [v for v in vq if v[1] == 99]
        if "d1" in keep: j2[2] = lines("\n".join(f"v_mul_f32 v{60 + x % 8}, v70, v71" for x in range(100)))
        if "d2" in keep: j2[2] = lines("\n".join(f"v_mul_f32 v60, v60, v71" for x in range(100)))
        if "d3" in keep: j2[2] = lines("\n".join(f"v_mul_f32 v60, v60, v71\nv_exp_f32 v60, v60\ns_nop 0" for x in range(40)))
        if "d4" in keep: j2[2] = sum((lines(f"v_mul_f32 v{60 + x % 8}, v70, v71\nv_mul_f32 v62, v70, v71\nv_mul_f32 v63, v70, v71") + [DSF(f"ds_write_b64 v{SA+3}, v[60:61] offset:{L_PW}")] for x in range(20)), [])
        if "d5" in keep: j2[2] = lines("\n".join(f"s_add_u32 s{sT0}, s{sT0}, 77777" for x in range(100)))
        k.seen.update(["cre", "ep", "xr", "nc"] + [("w", x) for x in range(12)])
        return j2, v2
    if 9 in OPT.get("x", ()):
        j[3] = j[3][-16:]
        vq = [v for v in vq if v[1] != 1.5]
    if 8 in OPT.get("x", ()) and typ == "ssm":
        vq = [v for v in vq if v[1] != 99]; k.seen.add("cre")
    return j, vq

TK = vT + 8
SA = 76
def stats_jobs(typ, j):
    nr = 6 if typ == "mlp" else 5
    L_SC, SCW = L_SCS[typ]
    k.e(f"""
    s_mul_i32 s{sT0}, s{sW}, {SCW}
    s_add_u32 s{sT0}, s{sT0}, {L_SC}
    v_lshlrev_b32 v{SA+1}, 4, v{vQ}
    v_add_u32 v{SA}, s{sT0}, v{SA+1}
    v_min_u32 v{SA+2}, 1, v{vN}
    v_mul_u32_u24 v{SA+2}, 0x30000, v{SA+2}
    v_add_u32 v{SA}, v{SA}, v{SA+2}
    s_mul_i32 s{sT0}, s{sWR}, {2*SCW}
    s_add_u32 s{sT0}, s{sT0}, {L_SC}
    v_add_u32 v{SA+1}, s{sT0}, v{SA+1}
    s_lshl_b32 s{sT0}, s{sWC}, 10
    v_lshlrev_b32 v{SA+2}, 6, v{vN}
    v_add_u32 v{SA+2}, s{sT0}, v{SA+2}
    v_lshlrev_b32 v{SA+3}, 3, v0
    """)
    j[OPT.get('rsb', 13)] = j.get(OPT.get('rsb', 13), []) + rowstat_fetch()
    def chk():
        k.wait_vm("rsv")
        check("rs_" + typ, RSV + 4, RSV, 4)
        k.ds(f"ds_write2_b32 v{SA+3}, v{RSV}, v{RSV+2} offset0:{L_TOK//4} offset1:{L_TOK//4+1}")
    rc = OPT["rsc"]
    j[("pre", rc)] = j.get(("pre", rc), []) + [F(chk, 8)]
    j["tk"] = [DSF(f"ds_read_b128 {V(TK+4*x,4)}, v{SA+2} offset:{L_TOK + x*16}") for x in range(4)]
    j["tail"] = list(j["tk"]) if rc < 17 else []
    j["last"] = [DSF(f"ds_write_b128 v{SA}, {A(aCS+4*i,4)} offset:{i*64}") for i in range(nr)]
def stats(typ, jobs):
    nr = 6 if typ == "mlp" else 5
    CS = vT + 24; P2 = 100
    SCW = L_SCS[typ][1]
    k.wait_lg(); k.e("s_barrier")
    if OPT["rsc"] >= 17: run(jobs["tk"])
    for i in range(nr):
        k.ds(f"ds_read_b128 {V(P2+4*i,4)}, v{SA+1} offset:{SCW+i*64}", ("cs", i))
    for i in (0, 1, 2, 4, 5, 3)[:nr + 1]:
        if i < nr: k.ds(f"ds_read_b128 {V(CS+4*i,4)}, v{SA+1} offset:{i*64}", ("cs", i))
    return TK, CS, P2
def stats_sum(typ, CS, P2):
    k.wait_lg()
    for i in range(6 if typ == "mlp" else 5):
        for h in range(2):
            k.e(f"v_pk_add_f32 {V(CS+4*i+2*h,2)}, {V(CS+4*i+2*h,2)}, {V(P2+4*i+2*h,2)}")

class Feeder:
    def __init__(self, jobs, every): self.jobs, self.every, self.n = list(jobs), every, 0
    def tick(self, n=1):
        self.n += n
        while self.n >= self.every and self.jobs:
            self.n -= self.every; run([self.jobs.pop(0)])
    def flush(self):
        while self.jobs: run([self.jobs.pop(0)])

HB = 88 * 4096
def h_base():
    k.e(f"""
    s_mul_i32 s{sH}, s{sMT}, {2*HB}
    s_lshl_b32 s{sT0}, s{sWC}, 11
    s_add_u32 s{sH}, s{sH}, s{sT0}
    s_add_u32 s{sH}, s{sH}, {WS_H}
    s_lshr_b32 s{sT0}, s{sNT}, 1
    s_mul_i32 s{sT0}, s{sT0}, 22
    s_and_b32 s{sT1}, s{sNT}, 1
    """)
HRING = [[("v", 40 + 4*s) for s in range(4)], [("v", 56 + 4*s) for s in range(4)], [("v", 72 + 4*s) for s in range(4)],
         [("a", 100), ("a", 104), ("a", 248), ("a", 252)]]
NR = len(HRING)
SPARE = [168, 172] + [acc(i, j) for i in range(1, 6) for j in (2, 3)]
NE = {"mlp": OPT["ne"], "ssm": 0}
vM26, vRw, vF, vFd, vHs, vNP, XO, LO = 24, 27, 28, 30, 32, 36, 38, 39
RES = 4
sPA, sPB_, sFA, sNP = 36, 64, 32, 84
def flag_late(own):
    k.e(f"""
    s_mov_b32 s{sLW}, s{own}
    s_xor_b32 s{sLX}, s{own}, 32
    s_mov_b32 s{sNP}, s{sNonce}
    s_mov_b32 s{sNP+1}, s{sNonce}
    v_mov_b32 v{vNP}, s{sNonce}
    v_mov_b32 v{vNP+1}, s{sNonce}
    v_lshlrev_b32 v{vM26}, 26, v{vL}
    """)
def flag_addr(own=sLW):
    k.e(f"""
    s_lshl_b32 s{sT0}, s{sMT}, 4
    s_lshl_b32 s{sT1}, s{sTYP}, 3
    s_add_u32 s{sT0}, s{sT0}, s{sT1}
    s_lshl_b32 s{sT1}, s{sW}, 1
    s_add_u32 s{sT1}, s{sT0}, s{sT1}
    s_lshl_b32 s{sT1}, s{sT1}, 7
    s_lshl_b32 s{sT3}, s{sTYP}, 5
    s_add_u32 s{sT3}, s{sT3}, {WS_HF}
    s_add_u32 s{sFA}, s{sT1}, s{sT3}
    s_xor_b32 s{sFA+1}, s{sFA}, 32
    s_add_u32 s{sT0}, s{sT0}, s{sNT}
    s_lshl_b32 s{sT0}, s{sT0}, 7
    s_lshl_b32 s{sT1}, s{sW}, 3
    s_add_u32 s{sT0}, s{sT0}, s{sT1}
    s_add_u32 s{own}, s{sT0}, s{sT3}
    """)
    if own == sLW: flag_late(own)
    for s in range(4):
        k.e(f"s_xor_b32 s{sT0}, s{sW}, {s}\ns_lshl_b32 s{sT0}, s{sT0}, 10\nv_add_u32 v{vHs+s}, s{sT0}, v{vL16}")
def spoll(h):
    return f"""s_add_u32 s{sT0}, s{sFA+h}, 128
    s_load_dwordx8 s[{sPA}:{sPA+7}], s[{pWs}:{pWs+1}], s{sFA+h} glc
    s_load_dwordx8 s[{sPB_}:{sPB_+7}], s[{pWs}:{pWs+1}], s{sT0} glc"""
def scheck(tag, h):
    k.e(f"s_branch L_sc1_{tag}\nL_sc0_{tag}:\ns_sub_u32 s{sSpin}, s{sSpin}, 1\ns_cbranch_scc1 L_end")
    k.e(spoll(h))
    if OPT.get("cnt") and tag == "hmmlp": k.e("s_add_u32 s101, s101, 1")
    k.e(f"L_sc1_{tag}:\ns_waitcnt lgkmcnt(0)"); k.lg = []
    for b_ in (sPA, sPB_):
        for x in range(4): k.e(f"s_cmp_eq_u64 s[{b_+2*x}:{b_+2*x+1}], s[{sNP}:{sNP+1}]\ns_cbranch_scc0 L_sc0_{tag}")
def put_flag(tag, so, track=True):
    k.wait_vm(tag)
    (k.vmem if track else lambda tx, tg: k.e(tx))(f"buffer_store_dwordx2 {V(vNP,2)}, v{vM26}, s[{rWS}:{rWS+3}], s{so} offen sc1", "fl")
def x_loads(X, t, sX=sX, issue=True):
    k.e(f"""
    s_lshl_b32 s{sT0}, s{sWR}, 6
    s_add_u32 s{sT0}, s{sT0}, s{sWC}
    s_lshl_b32 s{sT1}, s{sHALF}, 1
    s_add_u32 s{sT0}, s{sT0}, s{sT1}
    s_lshl_b32 s{sT1}, s{sMT}, 7
    s_add_u32 s{sT1}, s{sT1}, s{sT0}
    s_mul_i32 s{sX}, s{sT1}, 1280
    s_mul_i32 s{sT1}, s{sDT}, 160
    s_add_u32 s{sX}, s{sX}, s{sT1}
    s_lshl_b32 s{sT0}, s{sT0}, 4
    v_lshrrev_b32 v{t}, 2, v{vL}
    v_and_b32 v{LO}, 3, v{vL}
    v_lshlrev_b32 v{t+1}, 3, v{LO}
    v_mul_u32_u24 v{XO}, 5120, v{t}
    v_add_u32 v{XO}, v{XO}, v{t+1}
    v_bfe_u32 v{vFd}, v{t}, 1, 2
    v_xor_b32 v{LO}, v{LO}, v{vFd}
    v_lshlrev_b32 v{LO}, 4, v{LO}
    v_mad_u32_u24 v{LO}, v{t}, s{sT1}, v{LO}
    v_lshlrev_b32 v{t}, 6, v{t}
    v_add_u32 v{t}, s{sT0}, v{t}
    """.replace("    v_mad", f"    s_movk_i32 s{sT1}, {RROW}\n    v_mad"))
    ops = [VM(f"buffer_load_dwordx2 {V(X[g],2)}, v{XO}, s[{rX}:{rX+3}], s{sX} offen offset:{32*g}", "ep", ta=40) for g in range(5)]
    if issue: run(ops)
    return ops
def residual(X, t, U, fd=None):
    ED, EB, TKv = U, U + 10, U + 20
    k.ds(f"ds_read_b64 {V(TKv,2)}, v{t} offset:{L_TOK}", "tk")
    for reg, o_ in ((ED, 0), (EB, 160)):
        for g in range(5): k.ds(f"ds_read_b64 {V(reg+2*g,2)}, v{t+1} offset:{L_DB + o_ + 32*g}", "tk")
    k.wait_vm("ep"); k.wait_lg()
    if OPT["sp"] == 12.5 and cur[0] == "mlp": k.e(spoll(0))
    for g in range(5):
        if fd: fd.tick(1)
        if cur[0] == "ssm" and g == OPT.get("spg", 9): k.e(spoll(0))
        xf, df, bf_ = U + 22, U + 26, U + 30
        for src, dst in ((X[g], xf), (ED + 2*g, df), (EB + 2*g, bf_)):
            for h in range(2):
                k.e(f"v_lshlrev_b32 v{dst+2*h}, 16, v{src+h}\nv_and_b32 v{dst+2*h+1}, 0xffff0000, v{src+h}")
        A_ = [RES + 4*g, RES + 4*g + 2]
        def rnd():
            for a in A_: k.e(f"v_cvt_pk_bf16_f32 v{a+1}, v{a}, v{a+1}")
            for a in A_: k.e(f"v_lshlrev_b32 v{a}, 16, v{a+1}\nv_and_b32 v{a+1}, 0xffff0000, v{a+1}")
        for h, a in enumerate(A_): k.e(f"v_pk_add_f32 {V(a,2)}, {V(xf+2*h,2)}, {V(TKv,2)} op_sel:[0,0] op_sel_hi:[1,0] neg_lo:[0,1] neg_hi:[0,1]")
        rnd()
        for h, a in enumerate(A_): k.e(f"v_pk_mul_f32 {V(a,2)}, {V(a,2)}, {V(TKv,2)} op_sel:[0,1] op_sel_hi:[1,1]")
        rnd()
        for h, a in enumerate(A_): k.e(f"v_pk_mul_f32 {V(a,2)}, {V(a,2)}, {V(df+2*h,2)}")
        rnd()
        for h, a in enumerate(A_): k.e(f"v_pk_add_f32 {V(a,2)}, {V(a,2)}, {V(xf+2*h,2)}")
        for h, a in enumerate(A_): k.e(f"v_pk_add_f32 {V(a,2)}, {V(a,2)}, {V(bf_+2*h,2)}")
def residual_fill(t):
    ED = [176, 178, 180, 182, 192]; EB = [194, 196, 198, 208, 210]; TKv = 212
    U = [224, 240]
    out = [DSF(f"ds_read_b64 {V(TKv,2)}, v{t} offset:{L_TOK}", "tk")]
    for reg, o_ in ((ED, 0), (EB, 160)):
        out += [DSF(f"ds_read_b64 {V(reg[g],2)}, v{t+1} offset:{L_DB + o_ + 32*g}", "tk") for g in range(5)]
    run(out)
    out = [F(lambda: k.wait_lg("tk"), 1)]
    def chain(p_):
        x0, x1, t0, t1, d0, d1 = [U[p_ & 1] + x for x in range(6)]
        r0, r1 = RES + 2*p_, RES + 2*p_ + 1
        xi, di, bi = RES + 10 + p_, ED[p_ // 2] + (p_ & 1), EB[p_ // 2] + (p_ & 1)
        rnd = f"v_cvt_pk_bf16_f32 v{t1}, v{t0}, v{t1}\nv_lshlrev_b32 v{t0}, 16, v{t1}\nv_and_b32 v{t1}, 0xffff0000, v{t1}\n"
        return [l.strip() for l in f"""
        v_lshlrev_b32 v{x0}, 16, v{xi}
        v_and_b32 v{x1}, 0xffff0000, v{xi}
        v_sub_f32 v{t0}, v{x0}, v{TKv}
        v_sub_f32 v{t1}, v{x1}, v{TKv}
        {rnd}
        v_mul_f32 v{t0}, v{t0}, v{TKv+1}
        v_mul_f32 v{t1}, v{t1}, v{TKv+1}
        {rnd}
        v_lshlrev_b32 v{d0}, 16, v{di}
        v_and_b32 v{d1}, 0xffff0000, v{di}
        v_mul_f32 v{t0}, v{t0}, v{d0}
        v_mul_f32 v{t1}, v{t1}, v{d1}
        {rnd}
        v_lshlrev_b32 v{d0}, 16, v{bi}
        v_and_b32 v{d1}, 0xffff0000, v{bi}
        v_add_f32 v{t0}, v{x0}, v{t0}
        v_add_f32 v{t1}, v{x1}, v{t1}
        v_add_f32 v{r0}, v{t0}, v{d0}
        v_add_f32 v{r1}, v{t1}, v{d1}
        """.split("\n") if l.strip()]
    txt = []
    for p_ in range(0, 10, 2):
        for a_, b_ in zip(chain(p_), chain(p_ + 1)): txt += [a_, b_]
    return out + lines("\n".join(txt))
def hdest(typ, t):
    e_ = NE[typ]
    return [("v", SPARE[4*t + s]) for s in range(4)] if t < e_ else HRING[(t - e_) % NR]
def hload(typ, t):
    ring = hdest(typ, t); n_ = NK[typ]
    return kaddr(sT3, sHa + 2*(t // n_), t % n_, 4096), [[VM(f"buffer_load_dwordx4 {R(ring[s][0], ring[s][1], 4)}, v{vHs+s}, s[{rWS}:{rWS+3}], s{sT3} offen sc1", ("h", t))] for s in range(4)]
def h_issue(typ, ts):
    out = []
    for t in ts:
        a_, b_ = hload(typ, t); out.append(a_ + b_[0]); out += b_[1:]
    return out

def ones():
    k.e(f"v_mov_b32 v{vT+6}, 0x3f803f80")
    if OPT.get("e0", 1):
        k.e(f"v_cmp_eq_u32 vcc, 0, v{vN}\ns_nop 1\nv_cndmask_b32 v{vT+6}, 0, v{vT+6}, vcc")
    for i in range(4): k.e(f"v_accvgpr_write_b32 a{aONE+i}, v{vT+6}")

t = vT
WOFF["mlp"] = f"""
    v_and_b32 v{t+2}, 2, v{t}
    v_xor_b32 v{t+2}, v{t+1}, v{t+2}
    v_mul_u32_u24 v{t+3}, 3072, v{t}
    v_lshl_add_u32 v{vDW}, v{t+2}, 4, v{t+3}
    v_xor_b32 v{vDW+1}, 64, v{vDW}
    s_mul_i32 s{sB0}, s{sW}, {16*3072}
    s_mul_i32 s{sT0}, s{sNT}, 384
    s_add_u32 s{sB0}, s{sB0}, s{sT0}
    s_add_u32 s{sB2}, s{sB0}, {8*3072}
    s_lshl_b32 s{sLW}, s{sW}, 11
    """
def path_mlp():
    typ = "mlp"; t = vT
    late_common(typ)
    k.e(f"""
    v_lshrrev_b32 v{t}, 2, v{vN}
    v_lshl_add_u32 v{t+1}, v{vQ}, 3, v{t}
    v_lshlrev_b32 v{t+1}, 7, v{t+1}
    v_and_b32 v{t+2}, 3, v{vN}
    v_lshl_add_u32 v{t+1}, v{t+2}, 3, v{t+1}
    v_lshrrev_b32 v{t}, 1, v{t}
    v_and_b32 v{t+2}, 1, v{vQ}
    v_lshl_add_u32 v{t}, v{t+2}, 1, v{t}
    s_lshl_b32 s{sT0}, s{sKs}, 12
    s_add_u32 s{sT0}, s{sT0}, {L_W}
    v_add_u32 v{t+1}, s{sT0}, v{t+1}
    s_mul_i32 s{sT2}, s{sWR}, 6
    """)
    for i in range(4):
        k.e(f"""
        s_add_u32 s{sT3}, s{sT2}, {i}
        s_lshr_b32 s{sT0}, s{sT3}, 2
        s_lshl_b32 s{sT0}, s{sT0}, 13
        s_and_b32 s{sT3}, s{sT3}, 3
        v_xor_b32 v{t+2}, s{sT3}, v{t}
        v_lshl_add_u32 v{t+2}, v{t+2}, 5, v{t+1}
        v_add_u32 v{vWA+i}, s{sT0}, v{t+2}
        v_xor_b32 v{vWA+4+i}, 4096, v{vWA+i}
        """)
    Kc = 2 * 0.7978845608028654 * 1.4426950408889634
    k.e(f"s_mov_b32 s{sK}, {hx(-Kc*0.044715)}\ns_mov_b32 s{sK+1}, {hx(-Kc)}")
    ones()
    if not OPT['rsp']: xr_setup()
    if owns(typ): repack_setup(typ)
    small_loads(typ)
    touch_setup()
    p2_addr(typ)
    stamp(14)
    jobs, vq = common_jobs(typ)
    k.e(f"s_mul_i32 s{sT0}, s{sWR}, 192\nv_lshlrev_b32 v{t+3}, 3, v{vQ}\nv_add_u32 v{t+3}, s{sT0}, v{t+3}")
    jobs["tail"] += [DSF(f"ds_read_b64 {V(vB1m+2*i,2)}, v{t+3} offset:{L_B1 + 32*i}") for i in range(6)]
    XT = 96; sXm, sOwn = 30, 31
    if OPT["hoist"]:
        flag_addr(sOwn)
        jobs[19] = x_loads([RES + 10 + 2*g for g in range(5)], XT, sXm, False)
    left = main_loop(typ, jobs, vq, [])
    TK, CS, P2 = stats(typ, jobs)
    stamp()
    if OPT["rf_mlp"] >= 20:
        if OPT["rf_mlp"] == 20: jobs["rfchk"]()
        left = [op for tk in range(7) for op in wload(tk)]
    pend = [(6 - (len(left) - 1 - x) // 5, op) for x, op in enumerate(left)] + [(tk, op) for tk in range(7, NK[typ]) for op in wload(tk)]
    if 5 in OPT.get("x", ()):
        pend = []; k.seen.update(("w", x) for x in range(12))
    ne = OPT.get("ne_mlp", 0)
    fd = Feeder([op for _, op in pend[:ne]], 29 * 12 // max(1, ne))
    pend = pend[ne:]
    h_base()
    k.e(f"""
    s_mul_i32 s{sT1}, s{sT1}, 6
    s_add_u32 s{sT0}, s{sT0}, s{sT1}
    s_mul_i32 s{sT1}, s{sWR}, 3
    s_add_u32 s{sT0}, s{sT0}, s{sT1}
    s_lshl_b32 s{sT0}, s{sT0}, 12
    s_add_u32 s{sH}, s{sH}, s{sT0}
    """)
    stats_sum(typ, CS, P2)
    B = 100
    for i in range(6):
        for h in range(2):
            k.e(f"v_lshlrev_b32 v{B+4*i+2*h}, 16, v{vB1m+2*i+h}\nv_and_b32 v{B+4*i+2*h+1}, 0xffff0000, v{vB1m+2*i+h}")
    TM = 124
    OUT = [88, 92]
    XT = 96
    if OPT["rf_mlp"] > 20: k.e(f"v_mov_b32 v{vT+6}, v{RFV}")
    if OPT["hoist"]:
        flag_late(sOwn); k.e(f"s_mov_b32 s{sX}, s{sXm}")
    else:
        flag_addr()
        x_loads([RES + 10 + 2*g for g in range(5)], XT)
    k.e(f"s_add_u32 s{sB0}, s{sH}, {HB}")
    n_ = 0
    for hf, u, j in [(hf, u, 2*hf + jj) for hf in (1, 0) for u in range(3) for jj in range(2)]:
        if True:
            o = OUT[n_ & 1]; n_ += 1
            if n_ == 2 and "rpflag" in jobs: jobs["rpflag"]()
            if n_ == OPT["rfg"] and OPT["rf_mlp"] > 20: k.vmem(f"buffer_load_dwordx2 {V(vT+4,2)}, v{vT+6}, s[{rWS}:{rWS+3}], 0 offen sc1", "rfv")
            if n_ == OPT["fa"]: put_flag(("hs", 1), sLW)
            if n_ == OPT.get('sp', 12): k.e(spoll(0))
            k.raw(".p2align 3")
            prs = [(2*u + ii, h) for ii in range(2) for h in range(2)]
            Z = [acc(i, j) + 2*h for i, h in prs]
            T1 = [TM + 2*x for x in range(4)]; T2 = [TM + 8 + 2*x for x in range(4)]
            for x, (i, h) in enumerate(prs):
                k.e(f"v_pk_fma_f32 {V(T1[x],2)}, {V(CS+4*i+2*h,2)}, {V(TK+4*j+2,2)}, {V(B+4*i+2*h,2)} op_sel:[0,1,0] op_sel_hi:[1,1,1] neg_lo:[0,1,0] neg_hi:[0,1,0]")
            for x in range(4):
                k.e(f"v_pk_fma_f32 {V(Z[x],2)}, {V(Z[x],2)}, {V(TK+4*j+2,2)}, {V(T1[x],2)} op_sel:[0,0,0] op_sel_hi:[1,0,1]")
            fd.tick(12)
            for x in range(4): k.e(f"v_pk_mul_f32 {V(T1[x],2)}, {V(Z[x],2)}, {V(Z[x],2)}")
            for x in range(4): k.e(f"v_pk_fma_f32 {V(T1[x],2)}, {V(T1[x],2)}, s[{sK}:{sK+1}], s[{sK}:{sK+1}] op_sel:[0,0,1] op_sel_hi:[1,0,1]")
            for x in range(4): k.e(f"v_pk_mul_f32 {V(T1[x],2)}, {V(T1[x],2)}, {V(Z[x],2)}")
            for x in range(4): k.e(f"v_exp_f32 v{T2[x]}, v{T1[x]}\nv_exp_f32 v{T2[x]+1}, v{T1[x]+1}")
            fd.tick(12)
            for x in range(4): k.e(f"v_pk_add_f32 {V(T2[x],2)}, {V(T2[x],2)}, 1.0 op_sel_hi:[1,0]")
            for x in range(4): k.e(f"v_rcp_f32 v{T2[x]}, v{T2[x]}\nv_rcp_f32 v{T2[x]+1}, v{T2[x]+1}")
            if n_ < 12: fd.tick(12)
            for x in range(4): k.e(f"v_pk_mul_f32 {V(Z[x],2)}, {V(Z[x],2)}, {V(T2[x],2)}")
            for x in range(4): k.e(f"v_cvt_pk_bf16_f32 v{o+x}, v{Z[x]}, v{Z[x]+1}")
            if n_ == 12: fd.flush()
            so = sB0 if hf else sH
            k.vmem(f"buffer_store_dwordx4 {V(o,4)}, v{vL16}, s[{rWS}:{rWS+3}], s{so} offen offset:{(j & 1)*1024} sc1", ("hs", hf))
            if j & 1 and u < 2: k.e(f"s_add_u32 s{so}, s{so}, 4096")
    stamp()
    if OPT["rf_mlp"] > 20:
        k.wait_vm("rfv"); check("rf_mlp", vT + 6, vT + 4)
    run([op for _, op in pend[:OPT["wfirst"]]]); pend = pend[OPT["wfirst"]:]
    if OPT["wres"] >= 0:
        ops = [op for _, op in pend[:OPT["wres"]]]; pend = pend[OPT["wres"]:]
        residual([RES + 10 + 2*g for g in range(5)], XT, 100, Feeder([flat(ops[(x * len(ops)) // 5:((x + 1) * len(ops)) // 5]) for x in range(5)], 1))
        if OPT["sp"] == 13: k.e(spoll(0))
    if OPT.get("cnt"): k.e("s_mov_b32 s101, 0")
    scheck("hm" + typ, 0)
    if OPT.get("cnt"): k.e(f"s_nop 0\nv_writelane_b32 v{vST}, s101, 59")
    stamp(7)
    assert OPT["hw"] == NR
    run(h_issue(typ, range(OPT["hw"])))
    res = residual_fill(XT) if OPT['wres'] < 0 else []
    run([op for _, op in pend[:OPT["post0"]]]); pend = pend[OPT["post0"]:]
    stamp(8)
    phase2(typ, pend, h_issue(typ, range(OPT["hw"], NR)), res, ("hs", 0), 0)

def cmul_acc(d, a, b, c):
    k.e(f"v_pk_fma_f32 {V(d,2)}, {V(a,2)}, {V(b,2)}, {V(c,2)} op_sel:[0,0,0] op_sel_hi:[1,0,1]")
    k.e(f"v_pk_fma_f32 {V(d,2)}, {V(a,2)}, {V(b,2)}, {V(d,2)} op_sel:[1,1,0] op_sel_hi:[0,1,1] neg_lo:[0,1,0]")

PR = 100
def masked(m, ins):
    def f():
        k.e(f"s_mov_b32 exec_lo, {m}\ns_mov_b32 exec_hi, {m}"); k.ds(ins); k.e("s_mov_b64 exec, -1")
    return F(f, 4, ds=True)
def power(KK, al, be, t, d):
    x, y, c_, s_ = t+10, t+11, t+12, t+13
    return lines(f"""
    v_mul_f32 v{y}, v{KK}, v{be}
    v_mul_f32 v{x}, v{KK}, v{al}
    v_fract_f32 v{y}, v{y}
    v_cos_f32 v{c_}, v{y}
    v_sin_f32 v{s_}, v{y}
    v_exp_f32 v{x}, v{x}
    s_nop 0
    v_mul_f32 v{d}, v{x}, v{c_}
    v_mul_f32 v{d+1}, v{x}, v{s_}
    """)
prew = []
class Late(list):
    def to(self, fl, f):
        if OPT['wpre']:
            fl.append(F(lambda: prew.append(f), 0))
        else: self.append(f)
late = Late()
def table_a():
    t = 80; CH_ = vB1 + 10
    lr, li, dt, al, be, KK, AD = PR, PR+1, PR+2, t+8, t+9, t, t+1
    x, y, c_, s_ = t+10, t+11, t+12, t+13
    LOG2E = 1.4426950408889634
    fl = lines(f"""
    v_lshlrev_b32 v{dt}, 16, v{dt}
    v_lshlrev_b32 v{lr}, 16, v{lr}
    v_mul_f32 v{dt}, {hx(LOG2E)}, v{dt}
    v_exp_f32 v{dt}, v{dt}
    v_lshlrev_b32 v{li}, 16, v{li}
    {bfr(dt, dt)}
    v_mul_f32 v{al}, v{dt}, v{lr}
    v_mul_f32 v{be}, v{dt}, v{li}
    v_mul_f32 v{al}, {hx(LOG2E)}, v{al}
    v_mul_f32 v{be}, 0.15915494, v{be}
    v_lshlrev_b32 v{KK}, 6, v{CH_+1}
    v_max_u32 v{KK}, 1, v{KK}
    v_cvt_f32_u32 v{KK}, v{KK}
    v_lshlrev_b32 v{AD}, 3, v{CH_}
    """)
    w_ = DSF(f"ds_write_b64 v{AD}, {V(al,2)} offset:{L_EX}"); w_.atpre = True
    fl.append(w_)
    fl.append(note(mk, 'ab'))
    LM, CF, AD2 = 156, 158, t+6
    fl += power(KK, al, be, t, LM)
    fl += lines(f"""
    v_lshlrev_b32 v{AD}, 3, v{CH_+1}
    v_min_u32 v{x}, 1, v{CH_+1}
    v_mad_u32_u24 v{AD}, v{x}, 40, v{AD}
    v_lshl_add_u32 v{AD}, v{CH_}, 6, v{AD}
    """)
    late.to(fl, DSF(f"ds_write_b64 v{AD}, {V(LM,2)} offset:{L_CH}"))
    fl += lines(f"""
    v_mul_f32 v{y}, v{lr}, v{lr}
    v_add_f32 v{x}, -1.0, v{LM}
    v_fma_f32 v{y}, v{li}, v{li}, v{y}
    v_rcp_f32 v{y}, v{y}
    v_mul_f32 v{c_}, v{x}, v{lr}
    v_fma_f32 v{c_}, v{LM+1}, v{li}, v{c_}
    v_mul_f32 v{s_}, v{LM+1}, v{lr}
    v_fma_f32 v{s_}, -v{x}, v{li}, v{s_}
    v_add_f32 v{y}, v{y}, v{y}
    v_mul_f32 v{CF}, v{c_}, v{y}
    v_mul_f32 v{CF+1}, v{s_}, v{y}
    """)
    fl += lines(f"v_min_u32 v{x}, 1, v{CH_+1}\nv_mul_u32_u24 v{x}, 0x30000, v{x}\nv_add_u32 v{AD2}, v{AD}, v{x}")
    late.to(fl, DSF(f"ds_write_b64 v{AD2}, {V(CF,2)} offset:{L_CH + 8}"))
    return fl
def table_rd():
    t = 80
    return [DSF(f"ds_read_b64 {V(PR+4+2*u,2)}, v{t+3} offset:{L_EX + u*128}") for u in range(5)]
def table_b():
    t = 80
    K1, APW, R1 = t+7, t+4, t+5
    k.e(f"""
    v_lshrrev_b32 v{t+2}, 4, v0
    v_lshlrev_b32 v{t+3}, 3, v{t+2}
    v_lshlrev_b32 v{K1}, 2, v{vN}
    v_cvt_f32_u32 v{K1}, v{K1}
    v_lshlrev_b32 v{APW}, 7, v{t+2}
    v_lshl_add_u32 v{APW}, v{vN}, 3, v{APW}
    v_ffbl_b32 v{R1}, v{vN}
    v_lshlrev_b32 v{R1}, 3, v{R1}
    v_lshl_add_u32 v{R1}, v{t+2}, 6, v{R1}
    v_bcnt_u32_b32 v{t+6}, v{vN}, -1
    v_min_u32 v{t+6}, 1, v{t+6}
    v_mul_u32_u24 v{t+6}, 0x30000, v{t+6}
    v_add_u32 v{R1}, v{R1}, v{t+6}
    """)
    fl = []
    for u in range(5):
        fl += power(K1, PR+4+2*u, PR+5+2*u, t, PR+4+2*u)
        late.to(fl, DSF(f"ds_write_b64 v{APW}, {V(PR+4+2*u,2)} offset:{L_PW + u*2048}"))
        late.to(fl, DSF(f"ds_write_b64 v{R1}, {V(PR+4+2*u,2)} offset:{L_CH + 16 + u*1024}"))
    return fl

WOFF["ssm"] = f"""
    v_and_b32 v{t+2}, 6, v{t}
    v_or_b32 v{t+3}, s{sWC}, v{t+2}
    v_xor_b32 v{t+1}, v{t+1}, v{t+3}
    v_lshlrev_b32 v{t+1}, 4, v{t+1}
    v_and_b32 v{t+3}, 1, v{t}
    v_lshl_add_u32 v{t+2}, v{t+2}, 2, v{t+3}
    v_mul_u32_u24 v{t+2}, 1280, v{t+2}
    v_add_u32 v{vDW}, v{t+2}, v{t+1}
    v_add_u32 v{t+2}, 32, v{t}
    v_mul_u32_u24 v{t+2}, 1280, v{t+2}
    v_add_u32 v{vDW+1}, v{t+2}, v{t+1}
    s_mul_i32 s{sT0}, s{sNT}, 80
    s_mul_i32 s{sT1}, s{sWR}, 40
    s_add_u32 s{sT0}, s{sT0}, s{sT1}
    s_mul_i32 s{sB0}, s{sT0}, 1280
    s_add_u32 s{sB2}, s{sB0}, 5120
    s_mul_i32 s{sLW}, s{sWR}, 10240
    s_lshl_b32 s{sT0}, s{sWC}, 10
    s_add_u32 s{sLW}, s{sLW}, s{sT0}
    """
def path_ssm():
    typ = "ssm"; t = vT
    late_common(typ)
    k.e(f"""
    v_and_b32 v{t+1}, 1, v{vN}
    v_lshrrev_b32 v{t+2}, 2, v{vN}
    v_lshl_add_u32 v{t+2}, v{t+2}, 1, v{t+1}
    v_xor_b32 v{t}, v{t+4}, v{t+2}
    v_lshlrev_b32 v{t}, 4, v{t}
    v_lshl_add_u32 v{t}, v{t+1}, 10, v{t}
    v_lshrrev_b32 v{t+2}, 1, v{vN}
    v_lshl_add_u32 v{t}, v{t+2}, 7, v{t}
    s_mul_i32 s{sT0}, s{sWR}, 10240
    s_add_u32 s{sT0}, s{sT0}, {L_W}
    v_add_u32 v{vWA}, s{sT0}, v{t}
    v_xor_b32 v{vWA+1}, 64, v{vWA}
    """)
    ones()
    if not OPT['rsp']: xr_setup()
    k.e(f"""
    v_mul_u32_u24 v{vB1+11}, 820, v0
    v_lshrrev_b32 v{vB1+11}, 16, v{vB1+11}
    v_min_u32 v{vB1+11}, 2, v{vB1+11}
    v_mul_u32_u24 v{t+1}, 80, v{vB1+11}
    v_sub_u32 v{vB1+10}, v0, v{t+1}
    v_min_u32 v{vB1+10}, 79, v{vB1+10}
    s_mul_i32 s{sT0}, s{sNT}, 160
    v_lshlrev_b32 v{t+1}, 1, v{vB1+10}
    s_mov_b32 s{rT+2}, 1280
    s_mov_b32 s{rT+3}, 0x20000
    """)
    for pi, ptr in enumerate((pLre, pLim, pLdt)):
        k.e(f"s_mov_b32 s{rT}, s{ptr}\ns_mov_b32 s{rT+1}, s{ptr+1}")
        k.vmem(f"buffer_load_ushort v{PR+pi}, v{t+1}, s[{rT}:{rT+3}], s{sT0} offen", "par")
    if owns(typ): repack_setup(typ)
    small_loads(typ)
    c_setup()
    p2_addr(typ)
    stamp(14)
    jobs, vq = common_jobs(typ)
    jobs[("wait", 0)] = ["par"]
    tj = table_a() + [gate(lambda: curblk[0] % 2 == 1 and curblk[0] > mk['ab'])] + table_rd() + [note(mk, 'rd'), gate(lambda: curblk[0] > mk['rd'])] + table_b()
    vC0, vC1, vP0, vP1, vE0, vE1, vGc, vGr, vPub = vB1, vB1+1, vB1+2, vB1+3, vB1+4, vB1+5, vB1+6, vB1+7, vB1+8
    CH_, WH_ = vB1 + 10, vB1 + 11
    vG = 114
    sVal = [28, 30, 36, 38, 40]
    u_ = 96
    ad = lines(f"""
    s_mul_i32 s{sT0}, s{sWR}, 40
    v_lshlrev_b32 v{u_}, 3, v{vQ}
    v_add_u32 v{u_}, s{sT0}, v{u_}
    v_lshlrev_b32 v{u_+1}, 1, v{vQ}
    v_add_u32 v{u_+1}, s{sT0}, v{u_+1}
    v_add_u32 v{u_+1}, 32, v{u_+1}
    v_lshlrev_b32 v{vC0}, 6, v{u_}
    v_lshlrev_b32 v{vC1}, 6, v{u_+1}
    v_lshlrev_b32 v{u_+2}, 3, v{vN}
    v_lshl_add_u32 v{vP0}, v{u_}, 7, v{u_+2}
    v_lshl_add_u32 v{vP1}, v{u_+1}, 7, v{u_+2}
    s_mul_i32 s{sT0}, s{sWC}, 640
    v_lshlrev_b32 v{vE0}, 3, v{u_}
    v_lshlrev_b32 v{vE1}, 3, v{u_+1}
    v_add_u32 v{vE0}, s{sT0}, v{vE0}
    v_add_u32 v{vE1}, s{sT0}, v{vE1}
    v_sub_u32 v{u_+2}, 15, v{vN}
    v_min_u32 v{u_+2}, 1, v{u_+2}
    v_mul_u32_u24 v{u_+2}, 0x30000, v{u_+2}
    v_add_u32 v{vB1+9}, v{u_+2}, v{vE0}
    v_add_u32 v119, v{u_+2}, v{vE1}
    v_lshlrev_b32 v{vGc}, 3, v{CH_}
    v_lshlrev_b32 v{vGr}, 6, v{CH_}
    v_lshlrev_b32 v{u_}, 4, v{CH_}
    v_lshl_add_u32 v{vPub}, v{WH_}, 26, v{u_}
    v_mul_u32_u24 v{u_+2}, 5, v{WH_}
    v_sub_u32 v{u_+2}, s{sMT}, v{u_+2}
    """)
    for i in range(5):
        ad += lines(f"""
        v_add_u32 v{u_+2}, -1, v{u_+2}
        v_mul_i32_i24 v{vG+i}, 1280, v{u_+2}
        v_cmp_le_i32 s[{sVal[i]}:{sVal[i]+1}], 0, v{u_+2}
        v_add_u32 v{vG+i}, v{vG+i}, v{u_}
        v_min_u32 v{vG+i}, {OOB}, v{vG+i}
        """)
    for f in ad: f()
    stamp(61)
    tj = tj + lines(f"""
    s_mul_i32 s{sHw}, s{sNT}, {16*1280}
    s_add_u32 s{sHw}, s{sHw}, {WS_E}
    s_mul_i32 s{sH}, s{sMT}, 1280
    s_add_u32 s{sH}, s{sH}, s{sHw}
    """)
    if OPT.get('keep') is not None and 'tab' not in OPT['keep']: tj = []
    tj.append(note(mk, 'done'))
    jobs["tail"] = jobs["tail"] + late
    jobs[("pre", 19)] = jobs.get(("pre", 19), []) + [F(lambda: mk['done'], 0)]
    left = main_loop(typ, jobs, vq, tj)
    vG2 = 8
    for i in range(6): k.e(f"v_mov_b32 v{vG2+i}, v{vG+i}")
    TK, CS, P2 = stats(typ, jobs)
    stamp()
    fd = Feeder(left, (70 if OPT['ce'] else 200) // max(1, len(left)))
    wd = [op for i in range(5) for op in c_dma(i, rT2, "cim")]; e1 = OPT["ce"]; ew = OPT["cw"] - e1
    if 4 in OPT.get("x", ()): wd = wd[:1]; ew = 1
    slots = [(i, h) for i in range(5) for h in range(2)]
    def rec(i, h): return (vC0, L_CH + (2*i + h)*64) if i < 4 else (vC1, L_CH + h*64)
    LC = 100
    stats_sum(typ, CS, P2)
    for x, (i, h) in enumerate(slots):
        a_, o_ = rec(i, h); k.ds(f"ds_read_b128 {V(LC+4*x,4)}, v{a_} offset:{o_}", ("lc", x))
    k.raw(".p2align 3")
    for x, (i, h) in enumerate(slots):
        fd.tick(8)
        for j in range(4):
            z = acc(i, j) + 2*h
            k.e(f"v_pk_fma_f32 {V(z,2)}, {V(CS+4*i+2*h,2)}, {V(TK+4*j,2)}, {V(z,2)} op_sel:[0,0,0] op_sel_hi:[1,0,1] neg_lo:[0,1,0] neg_hi:[0,1,0]")
        for j in range(4):
            z = acc(i, j) + 2*h
            k.e(f"v_pk_mul_f32 {V(z,2)}, {V(z,2)}, {V(TK+4*j,2)} op_sel:[0,1] op_sel_hi:[1,1]")
    EE = 140; TMP = 88
    MU = [t, t + 20]
    def load_mu(st):
        for x, (i, h) in enumerate(slots):
            a_, o_ = rec(i, h); k.ds(f"ds_read_b64 {V(MU[st & 1]+2*x,2)}, v{a_} offset:{o_ + 16 + 8*st}", ("mu", st))
    if e1:
        fd.flush()
        k.wait_vm("cre")
        c_read(0, [4, 5, 6, 7, 92, 93])
        fd = Feeder(wd[:e1], 180 // e1)
    k.wait_lg()
    load_mu(0); load_mu(1)
    def ereg(x): return EE + 2*x
    def treg(x): return (240 + 2*x) if x < 8 else (TMP + 2*(x - 8))
    k.raw(".p2align 3")
    for x, (i, h) in enumerate(slots): cmul_acc(ereg(x), acc(i,0)+2*h, LC+4*x, acc(i,1)+2*h)
    fd.tick(20)
    for x, (i, h) in enumerate(slots): cmul_acc(treg(x), ereg(x), LC+4*x, acc(i,2)+2*h)
    fd.tick(20)
    for x, (i, h) in enumerate(slots): cmul_acc(ereg(x), treg(x), LC+4*x, acc(i,3)+2*h)
    PWv = t
    for st, sh in enumerate((1, 2, 4, 8)):
        fd.tick(20)
        k.raw(".p2align 3")
        for x in range(10):
            k.e(f"v_mov_b32_dpp v{treg(x)}, v{ereg(x)} row_shr:{sh} row_mask:0xf bank_mask:0xf bound_ctrl:0")
            k.e(f"v_mov_b32_dpp v{treg(x)+1}, v{ereg(x)+1} row_shr:{sh} row_mask:0xf bank_mask:0xf bound_ctrl:0")
        fd.tick(20)
        k.wait_lg(("mu", st))
        k.raw(".p2align 3")
        for x in range(10): cmul_acc(ereg(x), treg(x), MU[st & 1]+2*x, ereg(x))
        if st < 2: load_mu(st + 2)
        if st == 2:
            for x, (i, h) in enumerate(slots):
                k.ds(f"ds_read_b64 {V(PWv+2*x,2)}, v{vP0 if i < 4 else vP1} offset:{L_PW + ((2*i+h)*128 if i < 4 else h*128)}", "pw")
    for i in range(5):
        k.ds(f"ds_write_b128 v{vB1+9 if i < 4 else 13}, {V(EE+4*i,4)} offset:{L_EX + (16*i if i < 4 else 0)}")
    ch = t + 20
    E0, E1, LL, ET, GA = ch, ch+2, ch+4, ch+8, 14
    GA = [ch+8, ch+12, ch+16, ch+20, ch+24]
    k.ds(f"ds_read_b128 {V(LL,4)}, v{vGr} offset:{L_CH+48}", "e")
    k.e(f"v_mov_b32 v{ET+1}, s{sNonce}\nv_mov_b32 v{ET+3}, s{sNonce}")
    fd.flush()
    k.wait_lg()
    k.e("s_barrier")
    k.ds(f"ds_read_b64 {V(E0,2)}, v{vGc} offset:{L_EX}", "e")
    k.ds(f"ds_read_b64 {V(E1,2)}, v{vGc} offset:{L_EX+640}", "e")
    k.wait_lg()
    cmul_acc(E1, E0, LL, E1)
    k.e(f"v_mov_b32 v{ET}, v{E1}\nv_mov_b32 v{ET+2}, v{E1+1}")
    k.vmem(f"buffer_store_dwordx4 {V(ET,4)}, v{vPub}, s[{rWS}:{rWS+3}], s{sH} offen sc1", "e")
    stamp()
    def gather(track):
        for i in range(5):
            tx = f"buffer_load_dwordx4 {V(GA[i],4)}, v{vG2+i}, s[{rWS}:{rWS+3}], s{sHw} offen sc1"
            k.vmem(tx, "ga") if track else k.e(tx)
    k.e("s_nop 1")
    k.wait_vm("cre")
    if OPT["gpos"] == 0: gather(True)
    if not e1: c_read(0, [4, 5, 6, 7, 92, 93])
    fd = Feeder(wd[e1:e1 + ew], 1)
    per = ew / (13.0 - OPT['wskip2'])
    done = [0.0]
    cnt = [0]
    def tk_():
        cnt[0] += 1
        if cnt[0] == OPT["gpos"]: gather(True)
        if cnt[0] <= OPT["wskip2"]: return
        if cnt[0] == OPT["wskip2"] + 1: k.wait_lg()
        done[0] += per; n_ = int(done[0]); done[0] -= n_; fd.tick(n_); k.raw(".p2align 3")
    WT, W2 = 14, 16
    for x in range(10):
        k.e(f"v_mov_b32_dpp v{treg(x)}, v{ereg(x)} row_shr:1 row_mask:0xf bank_mask:0xf bound_ctrl:0")
        k.e(f"v_mov_b32_dpp v{treg(x)+1}, v{ereg(x)+1} row_shr:1 row_mask:0xf bank_mask:0xf bound_ctrl:0")
    def cmul(d, a, b, tmp):
        k.e(f"v_pk_mul_f32 {V(tmp,2)}, {V(a,2)}, {V(b,2)} op_sel:[0,0] op_sel_hi:[1,0]")
        k.e(f"v_pk_fma_f32 {V(d,2)}, {V(a,2)}, {V(b,2)}, {V(tmp,2)} op_sel:[1,1,0] op_sel_hi:[0,1,1] neg_lo:[0,1,0]")
    tk_()
    for x in range(10): cmul(treg(x), treg(x), LC+4*x+2, ereg(x))
    tk_()
    for x in range(10): cmul(PWv+2*x, PWv+2*x, LC+4*x+2, ereg(x))
    for x, (i, h) in enumerate(slots):
        tk_()
        for j in range(4): cmul(acc(i,j)+2*h, acc(i,j)+2*h, LC+4*x+2, EE+2*j)
    tk_()
    cmul(WT, LL+2, LL+2, W2); cmul(WT, WT, WT, W2); cmul(WT, WT, LL+2, W2); cmul(W2+2, WT, WT, W2)
    k.e(f"""
    v_cmp_eq_u32 vcc, 2, v{WH_}
    v_mov_b32 v{W2}, 1.0
    v_mov_b32 v{W2+1}, 0
    v_cndmask_b32 v{WT}, v{WT}, v{W2+2}, vcc
    v_cndmask_b32 v{WT+1}, v{WT+1}, v{W2+3}, vcc
    v_cmp_eq_u32 vcc, 0, v{WH_}
    v_mul_u32_u24 v{W2+2}, 640, v{WH_}
    v_add_u32 v{vGc}, v{vGc}, v{W2+2}
    v_cndmask_b32 v{WT}, v{WT}, v{W2}, vcc
    v_cndmask_b32 v{WT+1}, v{WT+1}, v{W2+1}, vcc
    v_cndmask_b32 v{E0}, v{W2+1}, v{E0}, vcc
    v_cndmask_b32 v{E0+1}, v{W2+1}, v{E0+1}, vcc
    s_mul_i32 s{sT0}, s{sWC}, 1280
    v_add_u32 v{vE0}, s{sT0}, v{vE0}
    v_add_u32 v{vE1}, s{sT0}, v{vE1}
    """)
    fd.flush()
    h_base()
    k.e(f"""
    s_mul_i32 s{sT1}, s{sT1}, 5
    s_add_u32 s{sT0}, s{sT0}, s{sT1}
    s_add_u32 s{sT0}, s{sT0}, 12
    s_lshl_b32 s{sT0}, s{sT0}, 12
    s_add_u32 s{sH}, s{sH}, s{sT0}
    s_add_u32 s{sB2}, s{sH}, {4*4096}
    s_lshl_b32 s{sT0}, s{sWR}, 9
    s_add_u32 s{sB2}, s{sB2}, s{sT0}
    v_lshrrev_b32 v27, 1, v{vQ}
    v_lshlrev_b32 v27, 10, v27
    v_and_b32 v98, 31, v{vL}
    v_lshl_add_u32 v27, v98, 4, v27
    s_lshl_b32 s{sT0}, s{sWR}, 13
    s_add_u32 s{sH}, s{sH}, s{sT0}
    s_add_u32 s{sB0}, s{sH}, 4096
    """)
    stamp(60)
    k.wait_vm("ga")
    k.label("L_carry_chk")
    k.e(f"s_mov_b64 s[{sEx}:{sEx+1}], 0")
    for i in range(5):
        k.e(f"""
        v_cmp_ne_u32 vcc, s{sNonce}, v{GA[i]+1}
        v_cmp_ne_u32 s[{sT0}:{sT1}], s{sNonce}, v{GA[i]+3}
        s_or_b64 vcc, vcc, s[{sT0}:{sT1}]
        s_and_b64 vcc, vcc, s[{sVal[i]}:{sVal[i]+1}]
        s_or_b64 s[{sEx}:{sEx+1}], s[{sEx}:{sEx+1}], vcc
        """)
    k.e(f"""
    s_cmp_eq_u64 s[{sEx}:{sEx+1}], 0
    s_cbranch_scc1 L_carry_done
    s_sub_u32 s{sSpin}, s{sSpin}, 1
    s_cbranch_scc1 L_end
    """)
    gather(False)
    k.e("s_waitcnt vmcnt(0)\ns_branch L_carry_chk")
    k.label("L_carry_done")
    stamp()
    for i in range(5): k.e(f"v_mov_b32 v{GA[i]+1}, v{GA[i]+2}")
    for i in (3, 2, 1, 0): cmul_acc(GA[i], GA[i+1], LL+2, GA[i])
    cmul(GA[0], GA[0], WT, W2)
    cmul_acc(E0, GA[0], LL, E0)
    k.ds(f"ds_write_b64 v{vGc}, {V(GA[0],2)} offset:{L_PW}")
    k.ds(f"ds_write_b64 v{vGc}, {V(E0,2)} offset:{L_PW + 1920}")
    k.wait_lg()
    k.e("s_barrier")
    XS_ = [80, 82, 84, 86, 92]; XT = 94
    x_loads(XS_, XT)
    def pb(g, o): return 96 + o - 16 if (g == 2 and o >= 16) else PB[g] + o
    PB = [EE, ch, 4]
    for i in range(5):
        for g in range(3):
            k.ds(f"ds_read_b128 {V(pb(g, 4*i),4)}, v{vE0 if i < 4 else vE1} offset:{L_PW + 640*g + (16*i if i < 4 else 0)}", ("pb", i))
    k.raw(".p2align 3")
    for x in range(10):
        if x % 2 == 0: k.wait_lg(("pb", x // 2)); k.raw(".p2align 3")
        k.e(f"v_pk_add_f32 {V(ereg(x),2)}, {V(ereg(x),2)}, {V(PB[1]+2*x,2)}")
        k.e(f"v_pk_add_f32 {V(ereg(x),2)}, {V(ereg(x),2)}, {V(pb(2, 2*x),2)}")
        cmul_acc(treg(x), ereg(x), PWv+2*x, treg(x))
    held = []
    for hf in range(2):
        OA = [(60, 64), (68, 72)] if hf == 0 else [(40, 44), (48, 52)]
        OE = 76 if hf == 0 else 56
        for jj in range(2):
            j = 2*hf + jj
            k.raw(".p2align 3")
            for x, (i, h) in enumerate(slots):
                prev = treg(x) if j == 0 else acc(i, j-1) + 2*h
                cmul_acc(acc(i,j)+2*h, prev, LC+4*x, acc(i,j)+2*h)
            oa, ob = OA[jj]
            for i in range(4): k.e(f"v_cvt_pk_bf16_f32 v{oa+i}, v{acc(i,j)}, v{acc(i,j)+2}")
            for i in range(4): k.e(f"v_cvt_pk_bf16_f32 v{ob+i}, -v{acc(i,j)+1}, -v{acc(i,j)+3}")
            k.e(f"v_cvt_pk_bf16_f32 v{OE+2*jj}, v{acc(4,j)}, v{acc(4,j)+2}")
            k.e(f"v_cvt_pk_bf16_f32 v{OE+2*jj+1}, -v{acc(4,j)+1}, -v{acc(4,j)+3}")
            k.vmem(f"buffer_store_dwordx4 {V(oa,4)}, v{vL16}, s[{rWS}:{rWS+3}], s{sH} offen offset:{jj*1024} sc1", ("hs", hf))
            k.vmem(f"buffer_store_dwordx4 {V(ob,4)}, v{vL16}, s[{rWS}:{rWS+3}], s{sB0} offen offset:{jj*1024} sc1", ("hs", hf))
        k.e(f"""
        s_nop 1
        v_permlane32_swap_b32 v{OE}, v{OE+2}
        v_permlane32_swap_b32 v{OE+1}, v{OE+3}
        s_nop 1
        v_permlane16_swap_b32 v{OE}, v{OE+1}
        v_permlane16_swap_b32 v{OE+2}, v{OE+3}
        """)
        k.vmem(f"buffer_store_dwordx4 {V(OE,4)}, v27, s[{rWS}:{rWS+3}], s{sB2} offen sc1", ("hs", hf))
        if hf == 0: k.e(f"s_add_u32 s{sH}, s{sH}, {HB}\ns_add_u32 s{sB0}, s{sB0}, {HB}\ns_add_u32 s{sB2}, s{sB2}, {HB}")
    stamp()
    if e1 + ew < 25:
        run(wd[e1 + ew:])
    flag_addr()
    if MV:
        u_ = 156
        k.e(f"""
        v_min_u32 v{u_}, {3 + 4*MV}, v{vL}
        s_add_u32 s{sT0}, s{sFA}, {9*128 + 16}
        v_and_b32 v{u_+1}, 1, v{u_}
        v_lshlrev_b32 v{u_+1}, 3, v{u_+1}
        v_and_b32 v{u_+2}, 2, v{u_}
        v_lshl_add_u32 v{u_+1}, v{u_+2}, 4, v{u_+1}
        v_add_u32 v{vF}, s{sT0}, v{u_+1}
        s_mul_i32 s{sT0}, s{sW}, 24
        s_lshr_b32 s{sT1}, s{sDT}, 2
        s_add_u32 s{sT0}, s{sT0}, s{sT1}
        s_lshl_b32 s{sT0}, s{sT0}, 7
        s_add_u32 s{sT0}, s{sT0}, {WS_RF + 16384 + (12 - MV - 1)*256}
        v_lshrrev_b32 v{u_+1}, 2, v{u_}
        v_lshlrev_b32 v{u_+1}, 8, v{u_+1}
        v_and_b32 v{u_+2}, 3, v{u_}
        v_cmp_gt_u32 vcc, 4, v{u_}
        v_lshl_add_u32 v{u_+1}, v{u_+2}, 4, v{u_+1}
        v_add_u32 v{u_+1}, s{sT0}, v{u_+1}
        v_cndmask_b32 v{vF}, v{u_+1}, v{vF}, vcc
        """)
    k.seen.update(("w", x) for x in range(10))
    def cim():
        k.wait_vm("cim")
        c_read(1, [150, 151, 152, 153, 154, 155])
    if e1 + ew == 25: cim()
    put_flag(("hs", 0), sLW)
    residual(XS_, XT, 100)
    if OPT.get("spg", 9) > 4:
        stamp(7)
        k.e(spoll(0))
    if OPT["sfast"]:
        assert e1 + ew == 25
        k.e("s_waitcnt lgkmcnt(0)"); k.lg = []
        for b_ in (sPA, sPB_):
            for x in range(4): k.e(f"s_cmp_eq_u64 s[{b_+2*x}:{b_+2*x+1}], s[{sNP}:{sNP+1}]\ns_cbranch_scc0 L_sslow")
        save = list(k.vm)
        run(h_issue(typ, range(NR)))
        put_flag(("hs", 1), sLX, False)
        k.e("s_branch L_sjoin\nL_sslow:")
        k.vm = list(save)
        k.e(spoll(0))
        put_flag(("hs", 1), sLX, False)
        scheck("hm" + typ, 0)
        run(h_issue(typ, range(NR)))
        k.e("L_sjoin:")
        stamp(8)
    else:
        put_flag(("hs", 1), sLX)
        if e1 + ew < 25: cim()
        scheck("hm" + typ, 0)
        stamp(8)
        run(h_issue(typ, range(NR)))
    k.e("s_barrier")
    phase2(typ, [(tk, op) for tk in range(10, NK[typ]) for op in wload(tk)], [], [], None, -1)

def poll(tag, vaddr, vd):
    k.e(f"""
    L_poll_{tag}:
    buffer_load_dwordx2 {V(vd,2)}, v{vaddr}, s[{rWS}:{rWS+3}], 0 offen sc1
    s_waitcnt vmcnt(0)
    v_cmp_ne_u32 vcc, s{sNonce}, v{vd}
    v_cmp_ne_u32 s[{sT0}:{sT1}], s{sNonce}, v{vd+1}
    s_or_b64 vcc, vcc, s[{sT0}:{sT1}]
    s_cmp_eq_u64 vcc, 0
    s_cbranch_scc1 L_pollok_{tag}
    s_sub_u32 s{sSpin}, s{sSpin}, 1
    s_cbranch_scc1 L_end
    s_sleep 1
    s_branch L_poll_{tag}
    L_pollok_{tag}:
    """)
    k.vm = []

def acc2(p_, i, s): return 96 + 80*p_ + (i*4 + s)*4
def phase2(typ, pend, hrest, res, tagB, tB):
    stamp_n[0] = 10
    n_ = NK[typ]; T = 2*n_
    AD = [88, 89, 90, 91]
    XF = 92
    sXo, sXi, sFo, sTm = sB0, sH, sHw, sLW
    setup = lines(f"""
    v_bfe_u32 v{AD[0]}, v{vN}, 1, 2
    v_mul_u32_u24 v{vRw}, {RROW}, v{vN}
    v_xor_b32 v{AD[0]}, v{AD[0]}, v{vQ}
    v_lshl_add_u32 v{vRw}, v{AD[0]}, 4, v{vRw}
    v_add_u32 v{vRw}, s{sWLb}, v{vRw}
    v_lshlrev_b32 v{XO}, 1, v{XO}
    s_lshl_b32 s{sB2}, s{sX}, 1
    s_mov_b32 s{rW}, s{pOut}
    s_mov_b32 s{rW+1}, s{pOut+1}
    s_mov_b32 s{rW+2}, {2048*2560}
    s_mov_b32 s{rW+3}, 0x20000
    s_lshl_b32 s{sXi}, s{sMT}, 3
    s_add_u32 s{sXi}, s{sXi}, s{sDT}
    s_lshl_b32 s{sXi}, s{sXi}, 1
    s_add_u32 s{sXi}, s{sXi}, s{sHALF}
    s_xor_b32 s{sXo}, s{sXi}, 1
    s_lshl_b32 s{sFo}, s{sXo}, 6
    s_lshl_b32 s{sTm}, s{sW}, 4
    s_add_u32 s{sTm}, s{sTm}, {WS_XF}
    s_add_u32 s{sFo}, s{sFo}, s{sTm}
    s_lshl_b32 s{sUnit}, s{sXi}, 6
    s_add_u32 s{sUnit}, s{sUnit}, s{sTm}
    s_mul_i32 s{sTm}, s{sW}, 5120
    s_add_u32 s{sTm}, s{sTm}, {WS_XB}
    s_mul_i32 s{sXi}, s{sXi}, 20480
    s_add_u32 s{sXi}, s{sXi}, s{sTm}
    s_mul_i32 s{sXo}, s{sXo}, 20480
    s_add_u32 s{sXo}, s{sXo}, s{sTm}
    s_add_u32 s{sDX}, s{sXi}, 4096
    s_add_u32 s{sDW}, s{sXo}, 4096
    """)
    for s in range(4):
        setup += lines(f"s_xor_b32 s{sTm}, s{sW}, {s}\ns_mul_i32 s{sTm}, s{sTm}, {WLW}\ns_add_u32 s{sTm}, s{sTm}, {L_WL + s*RBLK}\nv_add_u32 v{AD[s]}, s{sTm}, v{LO}")
    def red_w(p_, s): return [DSF(f"ds_write_b128 v{vRw}, {V(acc2(p_,i,s),4)} offset:{s*RBLK + i*64}", "rw") for i in range(5)]
    RD = [96 + 16*g for g in range(5)]
    def red_r(g): return [DSF(f"ds_read_b128 {V(RD[g]+4*s,4)}, v{AD[s]} offset:{64*g}", ("r", g)) for s in range(4)]
    bgq = list(setup) + list(res)
    per = -(-len(pend) // OPT["kw"])
    for t in range(T - 1):
        p_, tk = divmod(t, n_)
        assert not [1 for t_, _ in pend if t_ <= t], (typ, t)
        if OPT.get("fine2"): stamp(14 + 2*t)
        k.wait_vm([("w", tk), ("h", t)])
        if OPT.get("fine2"): stamp(15 + 2*t)
        if t == tB: put_flag(tagB, sLX)
        tchk = n_ - NR
        if MV and typ == 'ssm' and t == tchk - MV:
            k.wait_vm('mvp'); check('mv', vF, vFd)
        if t == tchk:
            scheck("hb" + typ, 1)
        wk, wb = wreg(tk); ring = hdest(typ, t)
        m = []
        for s in range(4):
            for i in range(5):
                c = "0" if tk == 0 else V(acc2(p_, i, s), 4)
                m.append(f"v_mfma_f32_16x16x32_bf16 {V(acc2(p_,i,s),4)}, {R(wk, wb+4*i, 4)}, {R(ring[s][0], ring[s][1], 4)}, {c}")
        streams = []
        if NE[typ] <= t and t + NR < T:
            a_, b_ = hload(typ, t + NR)
            streams.append((a_, 0, 2, True))
            for s in range(4): streams.append((b_[s], 5*s + 4, 5*s + 4, True))
        mem = []
        if t == tchk - 2: k.e(spoll(1))
        if MV and typ == 'ssm' and t == tchk - MV - 2: mem += [VM(f"buffer_load_dwordx2 {V(vFd,2)}, v{vF}, s[{rWS}:{rWS+3}], 0 offen sc1", 'mvp')]
        while hrest and len(mem) < 12: mem += flat([hrest.pop(0)])
        for _ in range(per if typ == "mlp" else (4 if t >= tchk - MV else 0)):
            if pend: mem += flat([pend.pop(0)[1]])
        u = t - n_
        if u == -1: must_bg = True
        if u == 0: assert not bgq, len(bgq)
        if u in (0, 1, 2):
            wr_ = sum((red_w(0, s) for s in range(4)), [])
            streams.append((wr_[7*u:7*u + 7], 2, 18 if u < 2 else 14, True))
        if u == 3:
            k.wait_lg(); k.e("s_barrier")
            streams.append((red_r(0) + red_r(1) + red_r(2), 0, 16, True))
        if u == 4: streams.append((red_r(3) + red_r(4), 0, 12, True))
        if u in (4, 5):
            for g in ((0, 1, 2) if u == 4 else (3, 4)):
                bgq += [F(lambda g=g: k.wait_lg(("r", g)), 1)]
                bgq += lines("\n".join(f"v_add_f32 v{RD[g]+x}, v{RD[g]+x}, v{RD[g]+4+x}" for x in range(4)) + "\n" +
                             "\n".join(f"v_add_f32 v{RD[g]+8+x}, v{RD[g]+8+x}, v{RD[g]+12+x}" for x in range(4)) + "\n" +
                             "\n".join(f"v_add_f32 v{RD[g]+x}, v{RD[g]+x}, v{RD[g]+8+x}" for x in range(4)))
                if 1 in OPT.get("x", ()): k.seen.add(("xs", g))
                else: bgq += [VM(f"buffer_store_dwordx4 {V(RD[g],4)}, v{vL16}, s[{rWS}:{rWS+3}], s{sXo if g < 4 else sDW} offen offset:{(g & 3)*1024} sc1", ("xs", g))]
        if u == n_ - 3: k.e("s_barrier")
        if u == n_ - OPT["xfb_" + typ]:
            run(bgq); bgq.clear()
            put_flag(("xs", 4), sFo)
        if u == n_ - 2:
            k.wait_lg(); k.e(f"s_load_dwordx2 s[{sPA}:{sPA+1}], s[{pWs}:{pWs+1}], s{sUnit} glc")
            k.wait_vm(("h", t + 1))
            wk2, wb2 = wreg(tk + 1); ring2 = hdest(typ, t + 1)
            m2 = [f"v_mfma_f32_16x16x32_bf16 {V(acc2(1,i,s),4)}, {R(wk2, wb2+4*i, 4)}, {R(ring2[s][0], ring2[s][1], 4)}, {V(acc2(1,i,s),4)}" for s in range(4) for i in range(5)]
            m = sum((m[5*s:5*s+5] + m2[5*s:5*s+5] for s in range(4)), [])
            XL = [40 + 4*g for g in range(5)]
            assert all(base not in range(40, 60) for r_ in (ring, ring2) for kind, base in r_ if kind == "v")
            xl = "\n".join(f"buffer_load_dwordx4 {V(XL[g],4)}, v{vL16}, s[{rWS}:{rWS+3}], s{sXi if g < 4 else sDX} offen offset:{(g & 3)*1024} sc1" for g in range(5))
            for s in range(3): streams.append((red_w(1, s), 10*s + 13, 10*s + 19, True))
            def early():
                k.e("s_waitcnt lgkmcnt(0)"); k.lg = []
                k.e(f"s_cmp_eq_u64 s[{sPA}:{sPA+1}], s[{sNP}:{sNP+1}]\ns_cbranch_scc0 L_xe_{typ}\n{xl}\nL_xe_{typ}:")
            streams.insert(0, ([F(early, 2)], OPT["xg"], OPT["xg"], True))
        streams.append((mem, 1, 18, True))
        streams.append((bgq, 0, 20, False))
        sched(m, streams)
        if u == -1:
            if OPT.get("show"): print("left at the end of pass 1:", len(bgq))
            for f in bgq: f()
            bgq.clear()
    stamp()
    k.e(f"""
    s_cmp_eq_u64 s[{sPA}:{sPA+1}], s[{sNP}:{sNP+1}]
    s_cbranch_scc1 L_xd_{typ}
    L_xp_{typ}:
    s_sub_u32 s{sSpin}, s{sSpin}, 1
    s_cbranch_scc1 L_end
    s_load_dwordx2 s[{sPA}:{sPA+1}], s[{pWs}:{pWs+1}], s{sUnit} glc
    s_waitcnt lgkmcnt(0)
    s_cmp_eq_u64 s[{sPA}:{sPA+1}], s[{sNP}:{sNP+1}]
    s_cbranch_scc0 L_xp_{typ}
    {xl}
    L_xd_{typ}:
    s_nop 2
    """)
    run(red_w(1, 3))
    k.wait_lg(); k.e("s_barrier")
    for g in range(5): run(red_r(g))
    for g in range(5):
        k.wait_lg(("r", g))
        o = RES + 4*g
        for h in range(2): k.e(f"v_pk_add_f32 {V(RD[g]+2*h,2)}, {V(RD[g]+2*h,2)}, {V(RD[g]+4+2*h,2)}")
        for h in range(2): k.e(f"v_pk_add_f32 {V(RD[g]+8+2*h,2)}, {V(RD[g]+8+2*h,2)}, {V(RD[g]+12+2*h,2)}")
        for h in range(2): k.e(f"v_pk_add_f32 {V(o+2*h,2)}, {V(o+2*h,2)}, {V(RD[g]+2*h,2)}")
        for h in range(2): k.e(f"v_pk_add_f32 {V(o+2*h,2)}, {V(o+2*h,2)}, {V(RD[g]+8+2*h,2)}")
    for g in range(5):
        o = RES + 4*g
        if True:
            if g == 0: k.wait_vm0()
            for h in range(2): k.e(f"v_pk_add_f32 {V(o+2*h,2)}, {V(o+2*h,2)}, {V(XL[g]+2*h,2)}")
        k.vmem(f"buffer_store_dwordx4 {V(o,4)}, v{XO}, s[{rW}:{rW+3}], s{sB2} offen offset:{64*g} {OPT.get('ost', '')}", "o")
    if OPT.get("spin"):
        ins, n_ = OPT["spin"]
        k.e(f"""
        s_waitcnt vmcnt(0)
        s_sub_u32 s{sST}, s{sST}, s98
        s_add_u32 s{sST}, s{sST}, {n_}
        L_spin_{typ}:
        {ins} s[100:101]
        s_waitcnt lgkmcnt(0)
        s_sub_u32 s100, s100, s98
        s_cmp_lt_u32 s100, s{sST}
        s_cbranch_scc1 L_spin_{typ}
        """)
    k.e("s_branch L_fin" if OPT["stamps"] else "s_endpgm")

def finish():
    if OPT["stamps"]:
        k.label("L_fin")
        k.wait_vm0()
        stamp(11)
        k.e(f"""
        s_memtime s[100:101]
        s_waitcnt lgkmcnt(0)
        s_sub_u32 s100, s100, s98
        v_writelane_b32 v{vST}, s100, 63
        s_lshl_b32 s{sT0}, s2, 2
        s_add_u32 s{sT0}, s{sT0}, s{sW}
        s_lshl_b32 s{sT0}, s{sT0}, 8
        s_add_u32 s{sT0}, s{sT0}, {WS_ST}
        v_lshlrev_b32 v2, 2, v{vL}
        buffer_store_dword v{vST}, v2, s[{rWS}:{rWS+3}], s{sT0} offen
        """)

prologue()
stamp_n[0] = 1
path_ssm()
stamp_n[0] = 1; cur[0] = "mlp"
path_mlp()
finish()
k.label("L_end")
body = k.text()
errs = check_hazards(body)
for e_ in errs: print("HAZARD:", e_, file=sys.stderr)

hdr = open(f"cdna_kernels/{NAME}.s.ref").read().split("\n")
hdr = [l for l in hdr if l.startswith(";") and "@launch" not in l and "Override" not in l and "grid=ceil" not in l]
out = "\n".join(hdr) + f"\n; @launch grid=(256,1,1) block=(256,1,1) lds={L_END}\n"
out += f""".amdgcn_target "amdgcn-amd-amdhsa--gfx950"
.text
.globl {NAME}_kernel
.p2align 8
.type {NAME}_kernel,@function
{NAME}_kernel:
{body}    s_endpgm
L_code_end:
.set CODE_BYTES, L_code_end - {NAME}_kernel - 512
.section .rodata,"a"
.p2align 6
.amdhsa_kernel {NAME}_kernel
  .amdhsa_next_free_vgpr 512
  .amdhsa_next_free_sgpr 102
  .amdhsa_accum_offset 256
  .amdhsa_group_segment_fixed_size 0
  .amdhsa_kernarg_size 136
  .amdhsa_user_sgpr_count 2
  .amdhsa_user_sgpr_kernarg_segment_ptr 1
  .amdhsa_system_sgpr_workgroup_id_x 1
.end_amdhsa_kernel
"""
open(sys.argv[1], "w").write(out)
print("written", sys.argv[1], len(out), "bytes; hazards:", len(errs))
```
